```python
import torch

def _softmax(x, axis=-1):
    return torch.softmax(x, dim=axis)
def _gelu(x):
    return torch.nn.functional.gelu(x, approximate="tanh")
def _silu(x):
    return torch.nn.functional.silu(x)
def _sigmoid(x):
    return torch.sigmoid(x)
def _layernorm(x, axis=-1, eps=1e-5):
    m = x.mean(dim=axis, keepdim=True)
    v = x.var(dim=axis, keepdim=True, unbiased=False)
    return (x - m) / torch.sqrt(v + eps)
def _scatter_add(tgt, idx, src, axis=0):
    return tgt.clone().index_add_(axis, idx, src)
def _segment_sum(src, seg, n):
    out = torch.zeros((n,) + src.shape[1:], dtype=src.dtype)
    return out.index_add_(0, seg, src)
def _pad(x, pw):
    flat = tuple(v for pair in reversed(pw) for v in pair)
    return torch.nn.functional.pad(x, flat)

kernel_name = 'recurrent_scan__sliding_block_cached__geglu_ffn__prompt'

def setup_inputs():

    _w = (lambda a: (lambda t: t.to(torch.bfloat16) if t.is_floating_point() else t)(torch.as_tensor(a)))
    def _A_setup():
        B, Sq, D = 1, 2048, 1024
        Hq, Hkv, Sk, Dh = 32, 4, 2048, 128
        assert Hq % Hkv == 0, (Hq, Hkv)
        return {
            "x": _w((lambda *s: torch.randn(*s, dtype=torch.bfloat16) * 0.05)(B, Sq, D)),
            "k_cache": _w((lambda *s: torch.randn(*s, dtype=torch.bfloat16) * 0.8)(B, Hkv, Sk, Dh)),
            "v_cache": _w((lambda *s: torch.randn(*s, dtype=torch.bfloat16) * 0.2)(B, Hkv, Sk, Dh)),
            "wq": _w((lambda *s: torch.randn(*s, dtype=torch.bfloat16) * 0.8)(D, Hq * Dh) * (D ** -0.5)),
            "wo": _w((lambda *s: torch.randn(*s, dtype=torch.bfloat16) * 0.2)(Hq * Dh, D) * ((Hq * Dh) ** -0.5)),
        }
    _A_in = _A_setup()

    def _B_setup():
        B, S, D, F = 1, 2048, 1024, 3584
        return {
            "x": _w((lambda *s: torch.randn(*s, dtype=torch.bfloat16) * 0.05)(B, S, D)),
            "w_gate": _w((lambda *s: torch.randn(*s, dtype=torch.bfloat16) * 0.1)(D, F)),
            "w_up": _w((lambda *s: torch.randn(*s, dtype=torch.bfloat16) * 0.1)(D, F)),
            "w_down": _w((lambda *s: torch.randn(*s, dtype=torch.bfloat16) * 0.1)(F, D)),
        }
    _B_in = _B_setup()

    return {
        "A_x": _A_in["x"],
        "A_k_cache": _A_in["k_cache"],
        "A_v_cache": _A_in["v_cache"],
        "A_wq": _A_in["wq"],
        "A_wo": _A_in["wo"],
        "B_x": _B_in["x"],
        "B_w_gate": _B_in["w_gate"],
        "B_w_up": _B_in["w_up"],
        "B_w_down": _B_in["w_down"],
    }

def reference(A_x, A_k_cache, A_v_cache, A_wq, A_wo, B_x, B_w_gate, B_w_up, B_w_down):
    def _A_ref(x, k_cache, v_cache, wq, wo):
        B, Sq, D = x.shape
        Hq, Dh = 32, 128
        Hkv, Sk = k_cache.shape[1], k_cache.shape[2]
        W = min(4096, max(256, Sk // 4))
        rep = Hq // Hkv
        q = (lambda x, *d: x.permute(*d))((x @ wq).reshape(B, Sq, Hq, Dh), 0, 2, 1, 3)
        k = (lambda x, n, axis: torch.repeat_interleave(x, n, dim=axis))(k_cache[:, :, Sk - W:, :], rep, axis=1)
        v = (lambda x, n, axis: torch.repeat_interleave(x, n, dim=axis))(v_cache[:, :, Sk - W:, :], rep, axis=1)
        scores = torch.einsum("bhqd,bhkd->bhqk", q, k) * (Dh ** -0.5)
        p = _softmax(scores, axis=-1)
        o = torch.einsum("bhqk,bhkd->bhqd", p, v)
        return (lambda x, *d: x.permute(*d))(o, 0, 2, 1, 3).reshape(B, Sq, Hq * Dh) @ wo

    def _B_ref(x, w_gate, w_up, w_down):
        return (_gelu(x @ w_gate) * (x @ w_up)) @ w_down

    x = A_x
    xn = _layernorm(x, axis=-1)
    s = _A_ref(xn, A_k_cache, A_v_cache, A_wq, A_wo)
    g = _silu(_B_ref(xn, B_w_gate, B_w_up, B_w_down))
    return x + s * g
```

```python
import re

TRANS = ('v_exp_f32','v_log_f32','v_rcp_f32','v_rsq_f32','v_sqrt_f32','v_sin_f32','v_cos_f32')

def expand(op):
    op = op.strip()
    op = op.lstrip('-')
    if op.startswith('abs(') : op = op[4:-1]
    if op.startswith('|'): op = op.strip('|')
    m = re.fullmatch(r'([vas])\[(\d+):(\d+)\]', op)
    if m: return [f"{m.group(1)}{i}" for i in range(int(m.group(2)), int(m.group(3))+1)]
    m = re.fullmatch(r'([vas])(\d+)', op)
    if m: return [op]
    if op in ('vcc',): return ['vcc']
    if op in ('vcc_lo','vcc_hi'): return ['vcc']
    if op == 'exec': return ['exec']
    if op == 'm0': return ['m0']
    return []

class I:
    __slots__ = ('text','op','kind','rd','wr','tag','passes','cregs','abregs','wait')
    def __init__(self, text, tag=None):
        self.text = text; self.tag = tag
        t = text.split(';')[0].strip()
        parts = t.split(None, 1)
        op = parts[0]; self.op = op
        args = [a.strip() for a in parts[1].split(',')] if len(parts) > 1 else []
        mods = []
        if args:
            la = args[-1].split()
            args[-1] = la[0] if la else ''
            mods = la[1:]
        self.rd = set(); self.wr = set(); self.passes = 0; self.cregs = set(); self.abregs = set(); self.wait = None
        E = lambda i: set(expand(args[i])) if i < len(args) else set()
        allargs = lambda lo: set().union(*[E(i) for i in range(lo, len(args))]) if len(args) > lo else set()
        if op.endswith(':'): self.kind = 'label'
        elif op.startswith('.'): self.kind = 'dir'
        elif op.startswith('v_mfma'):
            self.kind = 'mfma'; self.wr = E(0); self.abregs = E(1) | E(2); self.cregs = E(3); self.rd = self.abregs | self.cregs
            self.passes = 8 if '32x32x16' in op else 4
        elif op == 's_waitcnt':
            self.kind = 'wait'; w = {}
            for m in re.finditer(r'(vmcnt|lgkmcnt)\((\d+)\)', t): w[m.group(1)] = int(m.group(2))
            self.wait = w
        elif op == 's_barrier': self.kind = 'barrier'
        elif op == 's_nop': self.kind = 'nop'; self.passes = int(args[0], 0) + 1
        elif op in ('s_endpgm','s_setprio','s_sleep'): self.kind = 'salu'
        elif op.startswith('s_cbranch') or op == 's_branch':
            self.kind = 'branch'
            if 'scc' in op: self.rd = {'scc'}
            if 'vcc' in op: self.rd = {'vcc'}
            if 'exec' in op: self.rd = {'exec'}
        elif op.startswith('s_load') or op.startswith('s_memtime') or op.startswith('s_memrealtime') or op.startswith('s_atomic'):
            self.kind = 'smem'; self.wr = E(0); self.rd = allargs(1)
        elif op.startswith('s_cmp'):
            self.kind = 'salu'; self.rd = allargs(0); self.wr = {'scc'}
        elif op.startswith('s_'):
            self.kind = 'salu'; self.wr = E(0); self.rd = allargs(1)
            if op.split('_')[1] in ('add','sub','addc','subb','lshl','lshr','and','or','xor','andn2','ashr','min','max','not','addk','bfe'): self.wr |= {'scc'}
            if op.startswith('s_cselect') or op.startswith('s_addc') or op.startswith('s_subb'): self.rd |= {'scc'}
            if op.startswith('s_addk') or op.startswith('s_mulk'): self.rd |= E(0)
            if 'saveexec' in op: self.wr |= {'exec','scc'}; self.rd |= {'exec'}
            if op.startswith('s_getreg'): self.rd = set()
        elif op.startswith('ds_read') or op.startswith('ds_bpermute') or op.startswith('ds_swizzle') or op.startswith('ds_permute'):
            self.kind = 'dsr'; self.wr = E(0); self.rd = allargs(1)
        elif op.startswith('ds_write') :
            self.kind = 'dsw'; self.rd = allargs(0)
        elif op.startswith('ds_'):
            if '_rtn' in op: self.kind = 'dsr'; self.wr = E(0); self.rd = allargs(1)
            else: self.kind = 'dsw'; self.rd = allargs(0)
        elif op.startswith('buffer_load') or op.startswith('global_load'):
            if 'lds' in mods or op.startswith('global_load_lds'):
                self.kind = 'dma'; self.rd = allargs(0) | {'m0'}
            else:
                self.kind = 'vld'; self.wr = E(0); self.rd = allargs(1)
        elif op.startswith('buffer_store') or op.startswith('global_store'):
            self.kind = 'vst'; self.rd = allargs(0)
            self.cregs = E(0) if op.startswith('buffer_store') else E(1)
            self.passes = 4 if op.endswith('x4') or op.endswith('x3') else 0
        elif op.startswith('buffer_atomic') or op.startswith('global_atomic'):
            ret = 'sc0' in mods
            self.kind = 'vld' if ret else 'vst'
            self.rd = allargs(0)
            if ret: self.wr = E(0)
        elif op.startswith('buffer_inv') or op.startswith('buffer_wbl2'):
            self.kind = 'vst'
        elif op.startswith('v_'):
            self.kind = 'trans' if op.replace('_e32','').replace('_e64','') in TRANS else 'valu'
            self.wr = E(0); self.rd = allargs(1)
            if op.startswith('v_permlane') and 'swap' in op:
                self.wr = E(0) | E(1); self.rd = E(0) | E(1)
            if op.startswith('v_fmac') or op.startswith('v_pk_fmac') or op.startswith('v_dot2c') or op.startswith('v_writelane'): self.rd |= E(0)
            if op.startswith('v_add_co') or op.startswith('v_addc_co') or op.startswith('v_sub_co'):
                self.wr = E(0) | E(1); self.rd = allargs(2)
            if op.startswith('v_cmpx'): self.wr |= {'exec'}
            if op.startswith('v_cndmask') and len(args) == 3: self.rd |= {'vcc'}
        else:
            raise ValueError('unknown op ' + text)

class Loop:
    def __init__(self, name, count, body): self.name = name; self.count = count; self.body = body

class Prog:
    def __init__(self): self.items = []; self.stack = [self.items]
    def __call__(self, text, tag=None):
        for ln in text.split('\n'):
            ln = ln.strip()
            if not ln: continue
            if ln.startswith(';'):
                c = I('.comment'); c.text = ln; self.stack[-1].append(c); continue
            self.stack[-1].append(I(ln, tag))
    def add(self, inst): self.stack[-1].append(inst)
    def loop_begin(self, name, count, align=True):
        L = Loop(name, count, [])
        if align: self('.p2align 6')
        self.stack[-1].append(L); self.stack.append(L.body)
        self(f'{name}:')
    def loop_end(self): self.stack.pop()
    def text(self):
        out = []
        def w(items):
            for it in items:
                if isinstance(it, Loop): w(it.body)
                else: out.append(it.text if it.kind in ('label','dir') else '  ' + it.text)
        w(self.items); return '\n'.join(out)
    def trace(self, maxiter=10**9):
        def w(items, itn):
            for it in items:
                if isinstance(it, Loop):
                    for n in range(min(it.count, maxiter)): yield from w(it.body, n)
                else: yield it, itn
        return w(self.items, 0)
    def need(self, tag):
        c = I('.need'); c.text = '; need ' + str(tag); c.kind = 'need'; c.tag = tag; self.stack[-1].append(c)
    def needrd(self, tag):
        c = I('.need'); c.text = '; needrd ' + str(tag); c.kind = 'needrd'; c.tag = tag; self.stack[-1].append(c)

def rtag(tag, itn):
    name, ring, v0, stride = tag
    ver = v0 + itn * stride
    return (name, ver % ring), ver

def autowait(prog, maxiter=10**9):
    need_vm = {}; need_lg = {}
    vm = []; lg = []
    for ins, itn in prog.trace(maxiter):
        k = ins.kind
        if k in ('label','dir','barrier','nop'): continue
        if k == 'wait':
            if 'vmcnt' in ins.wait: del vm[:max(0, len(vm) - ins.wait['vmcnt'])]
            if 'lgkmcnt' in ins.wait: del lg[:max(0, len(lg) - ins.wait['lgkmcnt'])]
            continue
        regs = ins.rd | ins.wr
        def dep(o):
            oi, ot = o
            if k == 'need': return ot is not None and oi.kind in ('dma','dsw') and ot == rtag(ins.tag, itn)
            if k == 'needrd': return ot is not None and oi.kind == 'dsr' and ot[0] == rtag(ins.tag, itn)[0]
            return bool(oi.wr & regs)
        for q, nd, cap in ((vm, need_vm, 63), (lg, need_lg, 15)):
            last = -1
            for i, o in enumerate(q):
                if dep(o): last = i
            if id(ins) in nd:
                n0 = nd[id(ins)]
                del q[:max(0, len(q) - n0)]
                last = -1
                for i, o in enumerate(q):
                    if dep(o): last = i
            if last >= 0:
                n = min(len(q) - 1 - last, cap)
                if q is lg and any(o[0].kind == 'smem' for o in q): n = 0
                nd[id(ins)] = min(nd.get(id(ins), 99), n)
                del q[:len(q) - n]
        tg = rtag(ins.tag, itn) if ins.tag and k in ('dma','dsw','dsr') else None
        if k in ('vld','vst','dma'): vm.append((ins, tg))
        if k in ('dsr','dsw','smem'): lg.append((ins, tg))
    def w(items):
        out = []
        for it in items:
            if isinstance(it, Loop): it.body[:] = w(it.body); out.append(it); continue
            s = []
            if id(it) in need_vm: s.append(f'vmcnt({need_vm[id(it)]})')
            if id(it) in need_lg: s.append(f'lgkmcnt({need_lg[id(it)]})')
            if s: out.append(I('s_waitcnt ' + ' '.join(s)))
            out.append(it)
        return out
    prog.items[:] = w(prog.items)

def check(prog, name='', maxiter=10**9, verbose=True):
    probs = []
    vm = []
    lg = []
    pend = {}
    state = 0
    last_valu_wr = {}; last_trans_wr = {}; last_mfma_wr = {}; last_mfma_c = {}; last_salu_wr = {}; last_store_data = {}
    valu_sgpr_wr = {}
    reg_state = {}
    nbar = 0
    dma_done_bar = {}
    dma_out = {}
    rd_out = {}
    rd_done_bar = {}
    cur_ver = {}
    seq = 0
    def P(msg, ins): probs.append(f"{name}: {msg}: [{ins.text}] (seq {seq})")
    for ins, itn in prog.trace(maxiter):
        seq += 1
        k = ins.kind
        if k in ('label','dir','need','needrd'): continue
        if k == 'wait':
            if 'vmcnt' in ins.wait:
                n = ins.wait['vmcnt']
                while len(vm) > n:
                    o, s = vm.pop(0)
                    for r in o.wr:
                        if pend.get(r, (None,None,None))[2] == s: del pend[r]
                    if o.kind == 'dma' and o.tag:
                        key = dma_out.pop(s);
                        dma_done_bar[key] = max(dma_done_bar.get(key, -1), nbar)
            if 'lgkmcnt' in ins.wait:
                n = ins.wait['lgkmcnt']
                if n > 0 and any(o.kind == 'smem' for o, s in lg): P('counted lgkmcnt with smem outstanding', ins)
                while len(lg) > n:
                    o, s = lg.pop(0)
                    for r in o.wr:
                        if pend.get(r, (None,None,None))[2] == s: del pend[r]
                    if s in rd_out:
                        rg = rd_out.pop(s); rd_done_bar[rg] = max(rd_done_bar.get(rg, -1), nbar)
                    if s in dma_out:
                        key = dma_out.pop(s); dma_done_bar[key] = max(dma_done_bar.get(key, -1), nbar)
            state += 1; continue
        if k == 'barrier': nbar += 1; state += 1; continue
        if k == 'nop': state += ins.passes; continue
        for r in ins.rd | ins.wr:
            if r in pend: P(f'reg {r} has pending load [{pend[r][1].text}]', ins)
        def dist(tbl, r): return state - tbl[r][0] - 1 if r in tbl else 1000
        isvalu = k in ('valu','trans')
        if k == 'mfma':
            for r in ins.rd:
                if dist(last_valu_wr, r) < 2: P(f'VALU->MFMA {r} needs 2', ins)
            for r in ins.abregs:
                if r in last_mfma_wr:
                    need = {4: 8, 8: 12}[last_mfma_wr[r][1].passes]
                    if dist(last_mfma_wr, r) < need: P(f'MFMA D->MFMA AB {r} needs {need}', ins)
            for r in ins.cregs:
                if r in last_mfma_wr:
                    p = last_mfma_wr[r][1]
                    if p.wr == ins.cregs and p.passes == ins.passes: pass
                    else:
                        need = {4: 6, 8: 10}[p.passes]
                        if dist(last_mfma_wr, r) < need: P(f'MFMA D->MFMA C partial {r} needs {need}', ins)
            for r in ins.wr - ins.cregs:
                if r in last_mfma_wr:
                    need = {4: 8, 8: 12}[last_mfma_wr[r][1].passes]
                    if dist(last_mfma_wr, r) < need: P(f'MFMA D->MFMA D WAW {r} needs {need}(conservative)', ins)
                if r in last_mfma_c:
                    need = {4: 3, 8: 7}[last_mfma_c[r][1].passes]
                    if dist(last_mfma_c, r) < need: P(f'MFMA C read -> MFMA write {r} needs {need}(conservative)', ins)
            if dist(last_valu_wr, 'exec') < 4: P('exec write -> mfma', ins)
        else:
            for r in ins.rd | ins.wr:
                if r in last_mfma_wr:
                    need = {4: 8, 8: 12}[last_mfma_wr[r][1].passes]
                    if dist(last_mfma_wr, r) < need: P(f'MFMA D->use {r} needs {need}', ins)
            if isvalu or k in ('vld','dsr'):
                for r in ins.wr:
                    if r in last_mfma_c and isvalu:
                        need = {4: 3, 8: 7}[last_mfma_c[r][1].passes]
                        if dist(last_mfma_c, r) < need: P(f'MFMA C read -> VALU write {r} needs {need}', ins)
                    if r in last_store_data and dist(last_store_data, r) < 2: P(f'store data WAR {r}', ins)
        if isvalu:
            if k == 'valu':
                for r in ins.rd:
                    if dist(last_trans_wr, r) < 1: P(f'trans->valu {r}', ins)
            if ins.op.startswith('v_permlane'):
                for r in ins.rd:
                    if dist(last_valu_wr, r) < 2: P(f'VALU->permlane {r} needs 2', ins)
            if ins.op.startswith('v_readfirstlane') or ins.op.startswith('v_readlane'):
                for r in ins.rd:
                    if r[0] == 'v' and r != 'vcc' and dist(last_valu_wr, r) < 1: P(f'VALU->readlane {r} needs 1', ins)
            if 'dpp' in ins.text or 'row_' in ins.text or 'quad_perm' in ins.text:
                for r in ins.rd:
                    if dist(last_valu_wr, r) < 2: P(f'VALU->DPP {r} needs 2', ins)
            for r in ins.rd:
                if (r[0] == 's' or r == 'vcc') and dist(valu_sgpr_wr, r) < 2: P(f'VALU sgpr wr->VALU rd {r} needs 2', ins)
        if k in ('vld','vst','dma'):
            for r in ins.rd:
                if r[0] == 's' and dist(valu_sgpr_wr, r) < 5: P(f'VALU sgpr->VMEM {r} needs 5', ins)
            if k == 'dma' and dist(last_salu_wr, 'm0') < 1: P('m0 write -> dma needs 1', ins)
        if k in ('salu','branch','smem'):
            for r in ins.rd:
                if dist(valu_sgpr_wr, r) < 1 and r != 'scc': P(f'VALU sgpr wr->SALU rd {r} (pad 1)', ins)
        if ins.tag and k in ('dma','dsw'):
            rg, ver = rtag(ins.tag, itn)
            if cur_ver.get(rg) != ver:
                if any(v == rg for v in rd_out.values()): P(f'LDS WAR: reads of {rg} still outstanding', ins)
                elif rd_done_bar.get(rg, -1) >= nbar: P(f'LDS WAR: no barrier since last read of {rg} completed', ins)
                cur_ver[rg] = ver
            dma_out[seq] = (rg, ver)
        if ins.tag and k == 'dsr':
            rg, ver = rtag(ins.tag, itn)
            if cur_ver.get(rg) != ver: P(f'LDS read of {rg} ver {ver} but current {cur_ver.get(rg)}', ins)
            if any(v == (rg, ver) for v in dma_out.values()): P(f'LDS RAW: write to {rg} outstanding', ins)
            elif dma_done_bar.get((rg, ver), -1) >= nbar: P(f'LDS RAW: no barrier after write to {rg} done', ins)
            rd_out[seq] = rg
        if k in ('vld','vst','dma'):
            vm.append((ins, seq))
            if len(vm) > 63: P('vmcnt overflow', ins)
            for r in ins.wr: pend[r] = ('vm', ins, seq)
            if k == 'vst' and ins.passes:
                for r in ins.cregs: last_store_data[r] = (state, ins)
        if k in ('dsr','dsw','smem'):
            lg.append((ins, seq))
            for r in ins.wr: pend[r] = ('lg', ins, seq)
        if k == 'mfma':
            for r in ins.wr: last_mfma_wr[r] = (state, ins); last_valu_wr.pop(r, None)
            for r in ins.cregs: last_mfma_c[r] = (state, ins)
        if isvalu:
            for r in ins.wr:
                last_valu_wr[r] = (state, ins); last_mfma_wr.pop(r, None)
                if k == 'trans': last_trans_wr[r] = (state, ins)
                else: last_trans_wr.pop(r, None)
                if r[0] == 's' or r == 'vcc': valu_sgpr_wr[r] = (state, ins)
        if k == 'salu':
            for r in ins.wr: last_salu_wr[r] = (state, ins); valu_sgpr_wr.pop(r, None)
        if k in ('vld','dsr'):
            for r in ins.wr: last_mfma_wr.pop(r, None); last_valu_wr.pop(r, None)
        state += 1
    if verbose:
        seen = set()
        for p in probs:
            key = p.split('(seq')[0]
            if key in seen: continue
            seen.add(key); print('CHECK', p)
            if len(seen) > 40: break
    return probs
```

```python
import sys, struct, math
from dsl import *

NAME = 'recurrent_scan__sliding_block_cached__geglu_ffn__prompt'
WS_XN = 0
WS_O  = 4 << 20
WS_H  = 20 << 20
WS_G  = 36 << 20
WS_FL = 40 << 20
WS_TS = 48 << 20
def f2u(x): return struct.unpack('<I', struct.pack('<f', x))[0]

def srd(p, d, lo, add, size):
    if add: p(f's_add_u32 s{d}, s{lo}, {add:#x}\ns_addc_u32 s{d+1}, s{lo+1}, 0')
    else:   p(f's_mov_b32 s{d}, s{lo}\ns_mov_b32 s{d+1}, s{lo+1}')
    p(f's_mov_b32 s{d+2}, {size:#x}\ns_mov_b32 s{d+3}, 0x20000')

def kernel_head(name):
    return f'.text\n.globl {name}\n.p2align 8\n.type {name},@function\n{name}:\n'
def kernel_desc(name, vgpr, accum):
    return (f'.section .rodata,"a"\n.p2align 6\n.amdhsa_kernel {name}\n  .amdhsa_next_free_vgpr {vgpr}\n  .amdhsa_next_free_sgpr 102\n'
            f'  .amdhsa_accum_offset {accum}\n  .amdhsa_group_segment_fixed_size 0\n  .amdhsa_kernarg_size 96\n'
            '  .amdhsa_user_sgpr_count 2\n  .amdhsa_user_sgpr_kernarg_segment_ptr 1\n  .amdhsa_system_sgpr_workgroup_id_x 1\n'
            '  .amdhsa_float_denorm_mode_32 3\n.end_amdhsa_kernel\n')

def emit(p, f):
    if callable(f): f(p)
    elif isinstance(f, tuple): p(f[0], f[1])
    else: p(f)
def interleave(p, mf, fill, pre=None):
    for f in fill.get(-1, []): emit(p, f)
    for i, m in enumerate(mf):
        p(m)
        for f in fill.get(i, []): emit(p, f)

class TS:
    def __init__(self, on, base): self.on = on; self.n = 0; self.base = base
    def stamp(self, p):
        if not self.on: return
        s = 70 + 4*self.n; self.n += 1; assert s + 3 < 100
        p(f's_waitcnt lgkmcnt(0)\ns_memtime s[{s}:{s+1}]\ns_memrealtime s[{s+2}:{s+3}]\ns_waitcnt lgkmcnt(0)')
    def dump(self, p, wsptr):
        if not self.on: return
        srd(p, 12, wsptr, WS_TS + self.base, 1 << 20)
        p('v_lshrrev_b32 v8, 6, v0\nv_lshlrev_b32 v8, 6, v8\ns_lshl_b32 s3, s2, 8\nv_add_u32 v8, s3, v8')
        for i in range(self.n):
            s = 70 + 4*i
            p(f'v_mov_b32 v4, s{s}\nv_mov_b32 v5, s{s+2}\nbuffer_store_dwordx2 v[4:5], v8, s[12:15], 0 offen offset:{8*i}\ns_nop 1')

def xlane_sum(p, v, t):
    p(f'v_mov_b32 v{t}, v{v}\ns_nop 1\nv_permlane16_swap_b32 v{v}, v{t}\ns_nop 1\nv_add_f32 v{v}, v{v}, v{t}')
    p(f'v_mov_b32 v{t}, v{v}\ns_nop 1\nv_permlane32_swap_b32 v{v}, v{t}\ns_nop 1\nv_add_f32 v{v}, v{v}, v{t}')

def gen_ln(cfg):
    p = Prog()
    p('s_cmp_ge_u32 s2, 128\ns_cbranch_scc1 LN_end')
    p('s_load_dwordx2 s[4:5], s[0:1], 0\ns_load_dwordx2 s[6:7], s[0:1], 88')
    p('v_and_b32 v1, 63, v0\nv_lshrrev_b32 v2, 6, v0')
    p('v_and_b32 v3, 15, v1\nv_lshrrev_b32 v4, 4, v1')
    p('s_lshl_b32 s3, s2, 15')
    p('v_lshlrev_b32 v5, 11, v3\nv_lshlrev_b32 v6, 4, v4\nv_lshlrev_b32 v7, 9, v2')
    p('v_add3_u32 v5, v5, v6, v7\nv_add_u32 v5, s3, v5')
    p('v_lshlrev_b32 v6, 4, v1\nv_lshlrev_b32 v7, 13, v2\nv_add3_u32 v6, v6, v7, s3')
    p('s_waitcnt lgkmcnt(0)')
    srd(p, 8, 4, 0, 4 << 20)
    srd(p, 12, 6, WS_XN, 4 << 20)
    for i in range(8):
        p(f'buffer_load_dwordx4 v[{16+4*i}:{19+4*i}], v5, s[8:11], 0 offen offset:{64*i}')
    srd(p, 20, 6, WS_FL, 128*128)
    p('s_lshl_b32 s3, s2, 7\nv_mov_b32 v10, s3\nv_mov_b32 v11, 0\nbuffer_store_dword v11, v10, s[20:23], 0 offen')
    p('v_lshlrev_b32 v8, 4, v3\nv_lshlrev_b32 v9, 2, v2\nv_add_u32 v9, v8, v9')
    p('s_mov_b32 s16, 0xffff0000')
    X = 64
    for i in range(32):
        p(f'v_lshlrev_b32 v{X+2*i}, 16, v{16+i}\nv_and_b32 v{X+2*i+1}, s16, v{16+i}')
    for a in range(4): p(f'v_add_f32 v{10+a}, v{X+a}, v{X+4+a}')
    for i in range(8, 64): p(f'v_add_f32 v{10+i%4}, v{10+i%4}, v{X+i}')
    p('v_add_f32 v10, v10, v11\nv_add_f32 v12, v12, v13\nv_add_f32 v10, v10, v12')
    xlane_sum(p, 10, 11)
    p('ds_write_b32 v9, v10\ns_waitcnt lgkmcnt(0)\ns_barrier')
    p('ds_read_b128 v[12:15], v8')
    p('v_add_f32 v12, v12, v13\nv_add_f32 v14, v14, v15\nv_add_f32 v10, v12, v14')
    p(f'v_mul_f32 v10, {f2u(1/1024):#x}, v10')
    for a in range(4):
        p(f'v_sub_f32 v16, v{X+a}, v10\nv_mul_f32 v{12+a}, v16, v16')
    for i in range(4, 64):
        p(f'v_sub_f32 v{16+i%4}, v{X+i}, v10\nv_fmac_f32 v{12+i%4}, v{16+i%4}, v{16+i%4}')
    p('v_add_f32 v12, v12, v13\nv_add_f32 v14, v14, v15\nv_add_f32 v12, v12, v14')
    xlane_sum(p, 12, 11)
    p('ds_write_b32 v9, v12 offset:256\ns_waitcnt lgkmcnt(0)\ns_barrier')
    p('ds_read_b128 v[12:15], v8 offset:256')
    p('v_add_f32 v12, v12, v13\nv_add_f32 v14, v14, v15\nv_add_f32 v12, v12, v14')
    p(f'v_mul_f32 v12, {f2u(1/1024):#x}, v12')
    def rnd(v): p(f'v_cvt_pk_bf16_f32 v{v}, v{v}, v{v}\nv_lshlrev_b32 v{v}, 16, v{v}')
    rnd(10); rnd(12)
    p(f'v_add_f32 v12, {f2u(1e-5):#x}, v12'); rnd(12)
    p('v_sqrt_f32 v12, v12\ns_nop 0'); rnd(12)
    p('v_rcp_f32 v12, v12')
    for i in range(32):
        a, b = X+2*i, X+2*i+1
        p(f'v_sub_f32 v{a}, v{a}, v10\nv_sub_f32 v{b}, v{b}, v10\nv_cvt_pk_bf16_f32 v{a}, v{a}, v{b}')
        p(f'v_and_b32 v{b}, s16, v{a}\nv_lshlrev_b32 v{a}, 16, v{a}')
        p(f'v_mul_f32 v{a}, v{a}, v12\nv_mul_f32 v{b}, v{b}, v12\nv_cvt_pk_bf16_f32 v{16+i}, v{a}, v{b}')
    p('v_add_u32 v7, 0x1000, v6')
    for i in range(8):
        p(f'buffer_store_dwordx4 v[{16+4*i}:{19+4*i}], v{6 if i < 4 else 7}, s[12:15], 0 offen offset:{1024*(i%4)}')
    p('LN_end:\ns_endpgm')
    autowait(p); check(p, 'ln')
    return p

class Cfg: pass

HS = 22528
NHS = 7
def gen_ab(cfg):
    p = Prog(); ts = TS(cfg.ts, 0)
    S_W, S_Q, S_XN, S_H, S_K, S_V, S_O = 8, 12, 16, 20, 24, 28, 32
    sW, sRB, sCB, sKW, sKQ, sKA, sCNT = 36, 37, 38, 39, 40, 41, 42
    sMW, sMQ, sRD, sDL, sLEFT, sLEFA = 43, 44, 45, 46, 47, 48
    sT = 50
    sP = 60
    p('s_cmp_ge_u32 s2, 256\ns_cbranch_scc1 AB_end')
    p(f's_load_dwordx4 s[{sP}:{sP+3}], s[0:1], 48\ns_load_dwordx2 s[6:7], s[0:1], 88')
    p(f's_load_dwordx4 s[{sP+4}:{sP+7}], s[0:1], 8\ns_load_dwordx2 s[4:5], s[0:1], 24')
    p(f'v_lshrrev_b32 v2, 6, v0\nv_and_b32 v1, 63, v0\nv_readfirstlane_b32 s{sW}, v2')
    p(f's_and_b32 s{sT}, s2, 7\ns_lshr_b32 s{sT+1}, s2, 3')
    if cfg.xmap == 'c':
        p(f's_and_b32 s{sRB}, s{sT}, 1\ns_lshl_b32 s{sRB}, s{sRB}, 2\ns_and_b32 s{sT+2}, s{sT+1}, 3\ns_add_u32 s{sRB}, s{sRB}, s{sT+2}')
        p(f's_lshr_b32 s{sCB}, s{sT}, 1\ns_lshl_b32 s{sCB}, s{sCB}, 3\ns_lshr_b32 s{sT+2}, s{sT+1}, 2\ns_add_u32 s{sCB}, s{sCB}, s{sT+2}')
    else:
        p(f's_and_b32 s{sRB}, s{sT+1}, 7\ns_lshl_b32 s{sCB}, s{sT}, 2\ns_lshr_b32 s{sT+2}, s{sT+1}, 3\ns_add_u32 s{sCB}, s{sCB}, s{sT+2}')
    ts.stamp(p)
    p('s_waitcnt lgkmcnt(0)')
    p(f's_cmp_ge_u32 s{sW}, 2\ns_cselect_b32 s{S_W}, s{sP+2}, s{sP}\ns_cselect_b32 s{S_W+1}, s{sP+3}, s{sP+1}')
    p(f's_mov_b32 s{S_W+2}, {1024*7168:#x}\ns_mov_b32 s{S_W+3}, 0x20000')
    srd(p, S_Q, 4, 0, 8 << 20)
    srd(p, S_XN, 6, WS_XN, 4 << 20)
    srd(p, S_H, 6, WS_H, 14 << 20)
    srd(p, S_K, sP+4, 0, 2 << 20)
    srd(p, S_V, sP+6, 0, 2 << 20)
    srd(p, S_O, 6, WS_O, 16 << 20)
    vAct, vDW, vDQ, vTr, vTq, vT = 4, 8, 15, 19, 20, 28
    vA, RA = 32, 8
    vB, RB = 64, 4
    def acc(t, b):
        if t < 16: c = (t*4+b)*4; return f'a[{c}:{c+3}]'
        c = 160 + ((t-16)*4+b)*4; return f'v[{c}:{c+3}]'
    def accr(t, b, r):
        if t < 16: return f'a{(t*4+b)*4+r}'
        return f'v{160+((t-16)*4+b)*4+r}'
    p(f's_lshl_b32 s{sT}, s{sRB}, 4\ns_lshl_b32 s{sT+1}, s{sW}, 2\ns_add_u32 s{sT}, s{sT}, s{sT+1}\ns_lshl_b32 s{sT}, s{sT}, 15')
    p(f'v_lshlrev_b32 v{vT}, 4, v1\nv_add_u32 v{vAct}, s{sT}, v{vT}')
    for b in range(1, 4): p(f'v_add_u32 v{vAct+b}, {b*32768:#x}, v{vAct}')
    p(f's_and_b32 s{sT}, s{sW}, 1\ns_mul_i32 s{sT}, s{sT}, {32*7168}\ns_mul_i32 s{sT+1}, s{sCB}, 224\ns_add_u32 s{sT}, s{sT}, s{sT+1}')
    p(f's_mov_b32 s{sT+1}, 4682\ns_mov_b32 s{sT+2}, 7168')
    for n in range(448): assert (n*4682) >> 16 == n // 14
    t = 32
    for pc in range(7):
        p(f'v_add_u32 v{t}, {64*pc}, v1')
        p(f'v_mul_lo_u32 v{t+1}, v{t}, s{sT+1}\nv_lshrrev_b32 v{t+1}, 16, v{t+1}')
        p(f'v_mul_u32_u24 v{t+2}, 14, v{t+1}\nv_sub_u32 v{t+2}, v{t}, v{t+2}')
        p(f'v_and_b32 v{t+3}, 0x13, v{t+1}\nv_and_b32 v{t+4}, 4, v{t+1}\nv_lshlrev_b32 v{t+4}, 1, v{t+4}\nv_or_b32 v{t+3}, v{t+3}, v{t+4}')
        p(f'v_and_b32 v{t+4}, 8, v{t+1}\nv_lshrrev_b32 v{t+4}, 1, v{t+4}\nv_or_b32 v{t+3}, v{t+3}, v{t+4}')
        p(f'v_mul_lo_u32 v{t+3}, v{t+3}, s{sT+2}\nv_lshlrev_b32 v{t+2}, 4, v{t+2}\nv_add3_u32 v{vDW+pc}, v{t+3}, v{t+2}, s{sT}')
        if pc % 4: p(f'v_subrev_u32 v{vDW+pc}, {1024*(pc%4)}, v{vDW+pc}')
    p(f's_lshl_b32 s{sT}, s{sW}, 17\ns_lshl_b32 s{sT+1}, s{sCB}, 8\ns_add_u32 s{sT}, s{sT}, s{sT+1}')
    p(f'v_lshrrev_b32 v{t}, 4, v1\nv_and_b32 v{t+1}, 15, v1\nv_lshlrev_b32 v{t+2}, 1, v{t}\nv_xor_b32 v{t+1}, v{t+1}, v{t+2}')
    p(f'v_lshlrev_b32 v{t}, 13, v{t}\nv_add_u32 v{t}, s{sT}, v{t}')
    for j in range(4):
        p(f'v_xor_b32 v{t+2}, {8*(j>>1)}, v{t+1}\nv_lshlrev_b32 v{t+2}, 4, v{t+2}\nv_add_u32 v{t+2}, v{t+2}, v{t}')
        p(f'v_add_u32 v{vDQ+j}, {j*(4*8192-1024)}, v{t+2}')
    p(f'v_lshrrev_b32 v{t}, 5, v1\nv_lshlrev_b32 v{t}, 4, v{t}\nv_bfe_u32 v{t+1}, v1, 4, 1\nv_lshlrev_b32 v{t+1}, 2, v{t+1}\nv_bfe_u32 v{t+2}, v1, 2, 2')
    p(f'v_add3_u32 v{t}, v{t}, v{t+1}, v{t+2}\nv_mul_u32_u24 v{t}, 224, v{t}\nv_and_b32 v{t+3}, 3, v1\nv_lshlrev_b32 v{t+3}, 3, v{t+3}\nv_add_u32 v{vTr}, v{t}, v{t+3}')
    p(f'v_or_b32 v{t+1}, v{t+1}, v{t+2}')
    p(f'v_lshrrev_b32 v{t}, 4, v1\nv_lshlrev_b32 v{t}, 3, v{t}\nv_add_u32 v{t}, v{t}, v{t+2}\nv_lshlrev_b32 v{t}, 8, v{t}')
    p(f'v_add_u32 v{t}, 14336, v{t}\nv_add_u32 v{t}, v{t}, v{t+3}')
    for tt in range(8):
        p(f'v_xor_b32 v{t+2}, {tt}, v{t+1}\nv_lshl_add_u32 v{vTq+tt}, v{t+2}, 5, v{t}')
    p(f's_and_b32 s{sT}, s{sW}, 1\ns_lshr_b32 s{sT+1}, s{sW}, 1')
    p(f's_mul_i32 s{sMW}, s{sT}, {HS}\ns_mul_i32 s{sT+2}, s{sT+1}, 7168')
    sRW, sRQ = 49, 3
    p(f's_mov_b32 s{sRW}, s{sT+2}')
    p(f's_mul_i32 s{sMQ}, s{sT+1}, {HS}\ns_lshl_b32 s{sRQ}, s{sT}, 12\ns_add_u32 s{sRQ}, s{sRQ}, 14336')
    KW, KQ, KA, NT = 64*7168, 64*8192, 2048, 16
    if cfg.stag:
        p(f's_lshl_b32 s{sT}, s{sRB}, 1\ns_mul_i32 s{sKW}, s{sT}, {KW}\ns_mul_i32 s{sKQ}, s{sT}, {KQ}\ns_mul_i32 s{sKA}, s{sT}, {KA}')
    else:
        p(f's_mov_b32 s{sKW}, 0\ns_mov_b32 s{sKQ}, 0\ns_mov_b32 s{sKA}, 0')
    p(f's_mov_b32 s{sLEFT}, {NT}\ns_mov_b32 s{sLEFA}, {NT}\ns_mov_b32 s{sRD}, 0')
    def adv_w():
        return [f's_add_u32 s{sKW}, s{sKW}, {KW}', f's_cmp_eq_u32 s{sKW}, {NT*KW}', f's_cselect_b32 s{sKW}, 0, s{sKW}',
                f's_add_u32 s{sMW}, s{sMW}, {2*HS}', f's_cmp_ge_u32 s{sMW}, {NHS*HS}', f's_cselect_b32 s{sT}, {NHS*HS}, 0', f's_sub_u32 s{sMW}, s{sMW}, s{sT}']
    def adv_q():
        return [f's_add_u32 s{sKQ}, s{sKQ}, {KQ}', f's_and_b32 s{sKQ}, s{sKQ}, {NT*KQ-1}',
                f's_add_u32 s{sMQ}, s{sMQ}, {2*HS}', f's_cmp_ge_u32 s{sMQ}, {NHS*HS}', f's_cselect_b32 s{sT}, {NHS*HS}, 0', f's_sub_u32 s{sMQ}, s{sMQ}, s{sT}',
                f's_sub_u32 s{sLEFT}, s{sLEFT}, 1', f's_cmp_eq_u32 s{sLEFT}, 0',
                f's_cselect_b32 s{S_W+2}, 0, s{S_W+2}', f's_cselect_b32 s{S_Q+2}, 0, s{S_Q+2}']
    def adv_a():
        return [f's_add_u32 s{sKA}, s{sKA}, {KA}', f's_and_b32 s{sKA}, s{sKA}, {NT*KA-1}',
                f's_sub_u32 s{sLEFA}, s{sLEFA}, 1', f's_cmp_eq_u32 s{sLEFA}, 0', f's_cselect_b32 s{S_XN+2}, 0, s{S_XN+2}']
    def adv_rd():
        l = [f's_add_u32 s{sRD}, s{sRD}, {HS}', f's_cmp_eq_u32 s{sRD}, {NHS*HS}', f's_mov_b32 s{sDL}, {HS}',
             f's_cselect_b32 s{sDL}, {-(NHS-1)*HS}, s{sDL}', f's_cselect_b32 s{sRD}, 0, s{sRD}']
        return l
    def dma(pc, tile, stride):
        tag = ('W', NHS, 2*tile + 1, 2*stride)
        if pc < 7: return (f'buffer_load_dwordx4 v{vDW+pc}, s[{S_W}:{S_W+3}], s{sKW} offen offset:{1024*(pc%4)} lds', tag)
        return (f'buffer_load_dwordx4 v{vDQ+pc-7}, s[{S_Q}:{S_Q+3}], s{sKQ} offen offset:{1024*(pc-7)} lds', tag)
    def m0set(pc):
        if pc == 0: return [f's_add_u32 m0, s{sMW}, s{sRW}']
        if pc == 4: return [f's_add_u32 s{sT}, s{sMW}, s{sRW}', f's_add_u32 m0, s{sT}, 4096']
        if pc == 7: return [f's_add_u32 m0, s{sMQ}, s{sRQ}']
        return []
    def act(sub, b):
        r = vB + 16*(sub % RB) + 4*b
        return f'buffer_load_dwordx4 v[{r}:{r+3}], v{vAct+b}, s[{S_XN}:{S_XN+3}], s{sKA} offen offset:{1024*(sub % 2)}'
    NG = 22
    def vm_sched(step, g2):
        s, t = divmod(g2, NG); sub = 2*step + s
        d = None; a = None
        if cfg.d0 <= g2 < cfg.d0 + 11*cfg.dstr and (g2 - cfg.d0) % cfg.dstr == 0: d = (g2 - cfg.d0)//cfg.dstr
        if cfg.a0 <= t < cfg.a0 + 4*cfg.astr and (t - cfg.a0) % cfg.astr == 0: a = (sub + cfg.ad, (t - cfg.a0)//cfg.astr)
        return d, a
    for step in range(-2, 0):
        for g2 in range(2*NG):
            d, a = vm_sched(step, g2)
            if a is not None and a[0] >= 0:
                p(act(*a))
                if a[1] == 3 and a[0] % 2 == 1:
                    for x in adv_a(): p(x)
            if d is not None:
                for x in m0set(d): p(x)
                if m0set(d): p('s_nop 0')
                emit(p, dma(d, step+2, 0))
                if d == 6:
                    for x in adv_w(): p(x)
                if d == 10:
                    for x in adv_q(): p(x)
    for i in range(256): p(f'v_accvgpr_write_b32 a{i}, 0')
    for i in range(160, 256): p(f'v_mov_b32 v{i}, 0')
    P = cfg.P
    def trr(G, tile0, stride):
        step, g2 = divmod(G, 2*NG); s, t = divmod(g2, NG)
        r = vA + 4*(G % RA)
        tag = ('W', NHS, 2*(tile0 + step) + 1, 2*stride) if s == 1 else None
        if t < 14:
            off = (t // 7)*7168 + (t % 7)*32; a = vTr; hh = 8*224
        else:
            off = 0; a = vTq + t - 14; hh = 1024
        return [(f'ds_read_b64_tr_b16 v[{r}:{r+1}], v{a} offset:{off}', tag),
                (f'ds_read_b64_tr_b16 v[{r+2}:{r+3}], v{a} offset:{off + hh}', tag)]
    p.need(('W', NHS, 1, 0)); p('s_barrier')
    for G in range(P):
        for f in trr(G, 0, 0): emit(p, f)
    p(f's_mov_b32 s{sDL}, 0')
    UN = 2
    p(f's_mov_b32 s{sCNT}, {NT//UN}')
    ts.stamp(p)
    p.loop_begin('G_loop', NT//UN)
    mf = []; fill = {}
    def F(i, x): fill.setdefault(i, []).append(x)
    NGB = 2*NG*UN
    for G in range(NGB):
        step, g2 = divmod(G, 2*NG); s, t = divmod(g2, NG)
        sub = 2*step + s
        for b in range(4):
            ra = vA + 4*(G % RA); rb = vB + 16*(sub % RB) + 4*b
            mf.append(f'v_mfma_f32_16x16x32_bf16 {acc(t,b)}, v[{ra}:{ra+3}], v[{rb}:{rb+3}], {acc(t,b)}')
        i0 = 4*G
        Gn = G + P
        tn = Gn % NG
        if Gn % (2*NG) == 0:
            stepn = Gn // (2*NG)
            F(i0, lambda p, stepn=stepn: (p.need(('W', NHS, 2*stepn + 1, 2*UN)), p('s_barrier')))
        if tn == 0: F(i0, f'v_add_u32 v{vTr}, s{sDL}, v{vTr}')
        r0, r1 = trr(Gn % NGB, (Gn // NGB)*UN, UN)
        F(i0, r0); F(i0+1, r1)
        if 1 <= tn <= 8: F(i0+2, f'v_add_u32 v{vTq+tn-1}, s{sDL}, v{vTq+tn-1}')
        if tn == 9:
            for x in adv_rd(): F(i0+3, x)
        pc, a = vm_sched(step, g2)
        if a is not None:
            F(i0+2, act(*a))
            if a[1] == 3 and a[0] % 2 == 1:
                for x in adv_a(): F(i0+2, x)
        if pc is not None:
            for x in m0set(pc): F(i0+2, x)
            F(i0+3, dma(pc, step + 2, UN))
            if pc == 6:
                for x in adv_w(): F(i0+3, x)
            if pc == 10:
                for x in adv_q(): F(i0+3, x)
    F(len(mf)-2, f's_sub_u32 s{sCNT}, s{sCNT}, 1'); F(len(mf)-2, f's_cmp_lg_u32 s{sCNT}, 0')
    F(len(mf)-1, 's_cbranch_scc1 G_loop')
    interleave(p, mf, fill)
    p.loop_end()
    p('s_waitcnt vmcnt(0) lgkmcnt(0)\ns_barrier')
    ts.stamp(p)

    vDK, vDV, vK, vV = 8, 12, 13, 21
    sKV, sMK, sAD = 39, 40, 43
    t = 128
    p(f'v_lshrrev_b32 v{t}, 4, v1\nv_and_b32 v{t+1}, 15, v1')
    p(f's_lshl_b32 s{sT}, s{sW}, 12')
    p(f'v_lshlrev_b32 v{t+2}, 8, v{t}\nv_add_u32 v{t+2}, s{sT}, v{t+2}')
    for j in range(4):
        p(f'v_add_u32 v{t+3}, {4*j}, v{t}\nv_xor_b32 v{t+3}, v{t+3}, v{t+1}\nv_lshl_add_u32 v{vDK+j}, v{t+3}, 4, v{t+2}')
    p(f'v_lshlrev_b32 v{t+3}, 2, v{t}\nv_xor_b32 v{t+3}, v{t+3}, v{t+1}\nv_lshl_add_u32 v{vDV}, v{t+3}, 4, v{t+2}')
    p(f's_lshr_b32 s{sKV}, s{sCB}, 3\ns_lshl_b32 s{sKV}, s{sKV}, 19\ns_add_u32 s{sKV}, s{sKV}, {1536*256}')
    p(f's_lshl_b32 s{sMK}, s{sW}, 12')
    def kdma(j, soff, tag): return (f'buffer_load_dwordx4 v{vDK+j}, s[{S_K}:{S_K+3}], s{soff} offen offset:{1024*j} lds', tag)
    def vdma(j, soff, tag): return (f'buffer_load_dwordx4 v{vDV}, s[{S_V}:{S_V+3}], s{soff} offen offset:{1024*j} lds', tag)
    def kv_first(p):
        for (kind, tl) in (('K', 0), ('K', 1), ('V', 0), ('K', 2), ('V', 1)):
            p(f's_add_u32 s{sT}, s{sKV}, {tl*16384}\ns_add_u32 m0, s{sMK}, {tl*16384 + (65536 if kind == "V" else 0)}\ns_nop 0')
            for j in range(4): emit(p, (kdma if kind == 'K' else vdma)(j, sT, (kind, 4, tl, 0)))
    kv_first(p)
    k1 = -2*math.sqrt(2/math.pi)*math.log2(math.e); k2 = k1*0.044715
    vC = 28
    p(f's_mov_b32 s{sT}, {f2u(k1):#x}\ns_mov_b32 s{sT+1}, {f2u(k2):#x}')
    p(f'v_mov_b32 v{vC}, s{sT}')
    p(f's_lshl_b32 s{sT+2}, s{sRB}, 4\ns_lshl_b32 s{sT+3}, s{sW}, 2\ns_add_u32 s{sT+5}, s{sT+2}, s{sT+3}\ns_mul_i32 s{sT+2}, s{sT+5}, {112*1024}')
    p(f's_mul_i32 s{sT+3}, s{sCB}, 7\ns_add_u32 s{sT+3}, s{sT+3}, 1\ns_lshr_b32 s{sT+3}, s{sT+3}, 1\ns_lshl_b32 s{sT+3}, s{sT+3}, 10')
    p(f's_add_u32 s{sT+2}, s{sT+2}, s{sT+3}')
    p(f'v_lshlrev_b32 v{t}, 4, v1\nv_add_u32 v{vAct}, s{sT+2}, v{t}')
    for b in range(1, 4): p(f'v_add_u32 v{vAct+b}, {b*112*1024:#x}, v{vAct}')
    p(f's_and_b32 s{sT+3}, s{sCB}, 1\ns_cmp_eq_u32 s{sT+3}, 0\ns_mov_b32 s{sT+4}, 3072\ns_cselect_b32 s{sT+4}, s{sT+4}, -1016')
    vHs = 132
    for b in range(4): p(f'v_add_u32 v{vHs+b}, s{sT+4}, v{vAct+b}')
    def gelu_tile(t, b, dst):
        X, U, T = 32, 36, 40
        for r in range(4): p(f'v_accvgpr_read_b32 v{X+r}, {accr(t,b,r)}')
        for r in range(4): p(f'v_accvgpr_read_b32 v{U+r}, {accr(t+7,b,r)}')
        for r in (0, 2): p(f'v_pk_mul_f32 v[{T+r}:{T+r+1}], v[{X+r}:{X+r+1}], v[{X+r}:{X+r+1}]')
        for r in range(4): p(f'v_fma_f32 v{T+r}, v{T+r}, s{sT+1}, v{vC}')
        for r in (0, 2): p(f'v_pk_mul_f32 v[{T+r}:{T+r+1}], v[{T+r}:{T+r+1}], v[{X+r}:{X+r+1}]')
        for r in range(4): p(f'v_exp_f32 v{T+r}, v{T+r}')
        for r in (0, 2): p(f'v_pk_mul_f32 v[{U+r}:{U+r+1}], v[{U+r}:{U+r+1}], v[{X+r}:{X+r+1}]')
        for r in (0, 2): p(f'v_pk_add_f32 v[{T+r}:{T+r+1}], v[{T+r}:{T+r+1}], 1.0 op_sel_hi:[1,0]')
        for r in range(4): p(f'v_rcp_f32 v{T+r}, v{T+r}')
        p('s_nop 0')
        for r in (0, 2): p(f'v_pk_mul_f32 v[{U+r}:{U+r+1}], v[{U+r}:{U+r+1}], v[{T+r}:{T+r+1}]')
        p(f'v_cvt_pk_bf16_f32 v{dst}, v{U}, v{U+1}\nv_cvt_pk_bf16_f32 v{dst+1}, v{U+2}, v{U+3}')
    for par in range(2):
        if par == 0: p('s_cbranch_scc0 B_epi_odd')
        else: p('B_epi_odd:')
        n = 0
        for b in range(4):
            for pr in range(3):
                d = 64 + 4*(n % 8); n += 1
                gelu_tile(2*pr + par, b, d); gelu_tile(2*pr + 1 + par, b, d + 2)
                p(f'buffer_store_dwordx4 v[{d}:{d+3}], v{vAct+b}, s[{S_H}:{S_H+3}], 0 offen offset:{1024*pr}')
            d = 64 + 4*(n % 8); n += 1
            gelu_tile(6 if par == 0 else 0, b, d)
            p(f'buffer_store_dwordx2 v[{d}:{d+1}], v{vHs+b}, s[{S_H}:{S_H+3}], 0 offen')
        if par == 0: p('s_branch B_epi_done')
    p('B_epi_done:')
    ts.stamp(p)
    vQ = 64
    qs = math.log2(math.e)/math.sqrt(128)
    p(f's_mov_b32 s{sT}, {f2u(qs):#x}\ns_nop 1')
    for qt in range(2):
        for s in range(8):
            d = vQ + (qt*8+s)*4
            for half in range(2):
                b = 2*qt + half
                for r in range(4):
                    src = accr(14+s, b, r)
                    if src[0] == 'a': p(f'v_accvgpr_read_b32 v{32+4*half+r}, {src}'); src = f'v{32+4*half+r}'
                    p(f'v_mul_f32 v{32+4*half+r}, s{sT}, {src}')
                p(f'v_cvt_pk_bf16_f32 v{d+2*half}, v{32+4*half}, v{33+4*half}\nv_cvt_pk_bf16_f32 v{d+2*half+1}, v{34+4*half}, v{35+4*half}')
            p(f's_nop 1\nv_permlane16_swap_b32 v{d}, v{d+2}\nv_permlane16_swap_b32 v{d+1}, v{d+3}')
    t = 32
    p(f'v_and_b32 v{t}, 31, v1\nv_lshrrev_b32 v{t+1}, 5, v1\nv_and_b32 v{t+2}, 15, v1\nv_xor_b32 v{t+1}, v{t+1}, v{t+2}\nv_lshlrev_b32 v{t}, 8, v{t}')
    for s in range(8):
        p(f'v_xor_b32 v{t+2}, {2*s}, v{t+1}\nv_lshl_add_u32 v{vK+s}, v{t+2}, 4, v{t}')
    p(f'v_lshrrev_b32 v{t}, 5, v1\nv_lshlrev_b32 v{t}, 2, v{t}\nv_bfe_u32 v{t+1}, v1, 2, 2\nv_add_u32 v{t}, v{t}, v{t+1}\nv_lshlrev_b32 v{t}, 8, v{t}')
    p(f'v_bfe_u32 v{t+2}, v1, 4, 1\nv_lshlrev_b32 v{t+2}, 5, v{t+2}\nv_and_b32 v{t+3}, 3, v1\nv_lshlrev_b32 v{t+3}, 3, v{t+3}\nv_add3_u32 v{t}, v{t}, v{t+2}, v{t+3}')
    p(f'v_add_u32 v{t}, 0x10000, v{t}')
    for dt in range(4):
        p(f'v_xor_b32 v{t+2}, {dt}, v{t+1}\nv_lshl_add_u32 v{vV+dt}, v{t+2}, 6, v{t}')
    vS = [128, 160]; vP = [192, 208]; vN = 224; vL = 28
    aF = 192
    def Sreg(n, qt): return vS[n % 2] + 16*qt
    def Preg(n, qt, ks): return vP[n % 2] + 8*qt + 4*ks
    def kread(n, s, tag):
        r = aF + 4*s
        return [(f'ds_read_b128 a[{r}:{r+3}], v{vK+s} offset:{(n % 2)*8192}', tag)]
    def vread(n, f, tag):
        ks, dt = divmod(f, 4); r = aF + 32 + 4*f
        off = (32*(n % 2) + 16*ks)*256
        return [(f'ds_read_b64_tr_b16 a[{r}:{r+1}], v{vV+dt} offset:{off}', tag),
                (f'ds_read_b64_tr_b16 a[{r+2}:{r+3}], v{vV+dt} offset:{off+2048}', tag)]
    def qk(n, s, qt, c0):
        S = Sreg(n, qt); c = f'v[{S}:{S+15}]' if s else c0(qt)
        return f'v_mfma_f32_32x32x16_bf16 v[{S}:{S+15}], a[{aF+4*s}:{aF+4*s+3}], v[{vQ+(qt*8+s)*4}:{vQ+(qt*8+s)*4+3}], {c}'
    def pv(n, f, qt):
        ks, dt = divmod(f, 4); o = (dt*2+qt)*16; P_ = Preg(n, qt, ks)
        return f'v_mfma_f32_32x32x16_bf16 a[{o}:{o+15}], a[{aF+32+4*f}:{aF+32+4*f+3}], v[{P_}:{P_+3}], a[{o}:{o+15}]'
    negm = lambda qt: f'v[{vN+16*qt}:{vN+16*qt+15}]'
    zero = lambda qt: '0'
    def softmax_ops(n):
        sl = [[] for _ in range(33)]
        for e in range(32):
            qt, i = divmod(e, 16); S = Sreg(n, qt)
            sl[e].insert(0, f'v_exp_f32 v{S+i}, v{S+i}')
            sl[e+1].append(f'v_add_f32 v{vL+2*qt+(i&1)}, v{vL+2*qt+(i&1)}, v{S+i}')
            if i & 1: sl[e+1].append(f'v_cvt_pk_bf16_f32 v{Preg(n, qt, i>>3)+((i&7)>>1)}, v{S+i-1}, v{S+i}')
        return [[x for x in s if x] for s in sl]
    p('A_restart:')
    for i in range(128): p(f'v_accvgpr_write_b32 a{i}, 0')
    for i in range(4): p(f'v_mov_b32 v{vL+i}, 0')
    p(f's_mov_b32 s{sAD}, 0')
    p.need(('K', 4, 0, 0)); p('s_barrier')
    ts.stamp(p)
    for s in range(8): emit(p, kread(0, s, ('K', 4, 0, 0))[0])
    for s in range(8):
        for qt in range(2): p(qk(0, s, qt, zero))
        emit(p, kread(1, s, ('K', 4, 0, 0))[0])
    p('s_nop 7\ns_nop 1')
    sFB = 42
    p(f's_cmp_eq_u32 s{sCNT}, 0\ns_cbranch_scc0 A_havemax')
    for qt in range(2):
        S = Sreg(0, qt); m = 32 + 2*qt
        p(f'v_max3_f32 v{m}, v{S}, v{S+1}, v{S+2}')
        for i in range(3, 15, 2): p(f'v_max3_f32 v{m}, v{m}, v{S+i}, v{S+i+1}')
        p(f'v_max_f32 v{m}, v{m}, v{S+15}')
        p(f'v_mov_b32 v{m+1}, v{m}\ns_nop 1\nv_permlane32_swap_b32 v{m}, v{m+1}\ns_nop 1\nv_max_f32 v{m}, v{m}, v{m+1}')
        p(f'v_sub_f32 v{vN+16*qt}, 0, v{m}')
        for i in range(1, 16): p(f'v_mov_b32 v{vN+16*qt+i}, v{vN+16*qt}')
    p('A_havemax:')
    for qt in range(2):
        S = Sreg(0, qt)
        for i in range(16): p(f'v_add_f32 v{S+i}, v{S+i}, v{vN+16*qt}')
    PF = cfg.PF
    def build(its, tile_tagK, tile_tagV, nxt, extra=None):
        pairs = []
        sm = []
        for (nq, ns, npv) in its:
            st = len(pairs)
            if nq is not None:
                for s in range(8): pairs.append((qk(nq, s, 0, negm), qk(nq, s, 1, negm), kread(nq, s, tile_tagK(nq))))
            if npv is not None:
                for f in range(8): pairs.append((pv(npv, f, 0), pv(npv, f, 1), vread(npv, f, tile_tagV(npv))))
            if ns is not None: sm.append((st, len(pairs), softmax_ops(ns)))
        mf = []; fill = {}
        def F(i, x): fill.setdefault(i, []).append(x)
        for i, (a, b, _) in enumerate(pairs):
            mf += [a, b]
        if extra: extra(F, len(mf))
        for i in range(len(pairs)):
            j = i + PF
            rds = pairs[j][2] if j < len(pairs) else nxt(j - len(pairs))
            for k, r in enumerate(rds): F(2*i + k, r)
        for (st, en, sl) in sm:
            ng = 2*(en - st)
            for e, ops in enumerate(sl):
                g = 2*st + min(ng - 1, e*ng//32)
                for o in ops: F(g, o)
        return mf, fill
    def adv_att():
        l = [f's_add_u32 s{sAD}, s{sAD}, 16384', f's_and_b32 s{sAD}, s{sAD}, 0xffff']
        return l
    def nxt0(k): return kread(2, k, ('K', 4, 1, 0))
    def extra0(F, n):
        pos = 2*(8 - PF)
        F(pos - 1, lambda p: (p.need(('K', 4, 1, 0)), p.need(('V', 4, 0, 0)), p('s_barrier')))
        for s in range(8): F(pos - 1 if s < PF else 2*(8-PF+0) + 0, f'v_add_u32 v{vK+s}, 0x4000, v{vK+s}')
    mf, fill = build([(1, 0, None)], lambda n: None, None, nxt0, extra0)
    fill = {k: [x for x in v if not (isinstance(x, tuple) and x[1] is None)] for k, v in fill.items()}
    interleave(p, mf, fill)
    p(f's_mov_b32 s{sLEFT}, 7\ns_add_u32 s{sKA}, s{sKV}, {2*16384}\ns_mov_b32 s{sRD}, {2*16384}')
    p.loop_begin('A_loop', 7)
    def extra(F, n):
        pos = n - 2*PF
        F(pos - 1, lambda p: (p.need(('K', 4, 2, 1)), p.need(('V', 4, 1, 1)), p('s_barrier')))
        F(2*(24 - PF), f's_add_u32 s{sAD}, s{sAD}, 1'); F(2*(24-PF), f's_and_b32 s{sT}, s{sAD}, 3')
        F(2*(24 - PF), f's_cmp_eq_u32 s{sT}, 3'); F(2*(24-PF), f's_mov_b32 s{sDL}, 0x4000'); F(2*(24-PF), f's_cselect_b32 s{sDL}, -0xc000, s{sDL}')
        F(2*(24 - PF), f's_cmp_eq_u32 s{sT}, 0'); F(2*(24-PF), f's_mov_b32 s{sT+1}, 0x4000'); F(2*(24-PF), f's_cselect_b32 s{sT+1}, -0xc000, s{sT+1}')
        for s in range(8): F(2*(24 - PF) + 1 + s//2, f'v_add_u32 v{vK+s}, s{sDL}, v{vK+s}')
        for dt in range(4): F(n - 2*PF + 1 + dt, f'v_add_u32 v{vV+dt}, s{sT+1}, v{vV+dt}')
        F(1, f's_add_u32 s{sT+2}, s{sRD}, 0x4000'); F(1, f's_and_b32 s{sT+2}, s{sT+2}, 0xffff'); F(1, f's_add_u32 m0, s{sT+2}, s{sMK}')
        F(1, f's_add_u32 s{sT+3}, s{sKA}, 0x4000')
        for j in range(4): F(2 + 3*j, kdma(j, sT+3, ('K', 4, 3, 1)))
        F(13, f's_add_u32 s{sT+2}, s{sRD}, s{sMK}'); F(13, f's_add_u32 m0, s{sT+2}, 0x10000')
        for j in range(4): F(14 + 3*j, vdma(j, sKA, ('V', 4, 2, 1)))
        F(24, f's_add_u32 s{sKA}, s{sKA}, 0x4000'); F(24, f's_add_u32 s{sRD}, s{sRD}, 0x4000'); F(24, f's_and_b32 s{sRD}, s{sRD}, 0xffff')
        F(n-2, f's_sub_u32 s{sLEFT}, s{sLEFT}, 1'); F(n-2, f's_cmp_lg_u32 s{sLEFT}, 0');
    mf, fill = build([(2, 1, 0), (3, 2, 1)], lambda n: ('K', 4, 1, 1), lambda n: ('V', 4, 0, 1),
                     lambda k: kread(2, k, ('K', 4, 2, 1)), extra)
    fill.setdefault(len(mf)-1, []).append('s_cbranch_scc1 A_loop')
    interleave(p, mf, fill)
    p.loop_end()
    for f in range(PF):
        for r in vread(14, f, ('V', 4, 7, 0)): emit(p, r)
    mf, fill = build([(None, 15, 14), (None, None, 15)], None, lambda n: ('V', 4, 7, 0), lambda k: [])
    interleave(p, mf, fill)
    ts.stamp(p)
    for qt in range(2):
        l = vL + 2*qt
        p(f'v_add_f32 v{l}, v{l}, v{l+1}\nv_mov_b32 v{l+1}, v{l}\ns_nop 1\nv_permlane32_swap_b32 v{l}, v{l+1}\ns_nop 1\nv_add_f32 v{l}, v{l}, v{l+1}')
    p(f'v_rcp_f32 v{vL}, v{vL}\nv_rcp_f32 v{vL+2}, v{vL+2}')
    t = 32
    p(f's_lshl_b32 s{sT}, s{sRB}, 4\ns_lshl_b32 s{sT+1}, s{sW}, 2\ns_add_u32 s{sT}, s{sT}, s{sT+1}\ns_lshl_b32 s{sT}, s{sT}, 17\ns_lshl_b32 s{sT+1}, s{sCB}, 12\ns_add_u32 s{sT}, s{sT}, s{sT+1}')
    p(f'v_bfe_u32 v{t}, v1, 4, 1\nv_lshlrev_b32 v{t}, 17, v{t}\nv_lshrrev_b32 v{t+1}, 5, v1\nv_lshlrev_b32 v{t+1}, 8, v{t+1}\nv_and_b32 v{t+2}, 15, v1\nv_lshlrev_b32 v{t+2}, 4, v{t+2}')
    p(f'v_add3_u32 v{t}, v{t}, v{t+1}, v{t+2}\nv_add_u32 v4, s{sT}, v{t}\nv_add_u32 v5, 0x40000, v4')
    p(f'v_mov_b32 v{vL+1}, v{vL}\nv_mov_b32 v{vL+3}, v{vL+2}')
    n = 0
    for dt in range(4):
        for qt in range(2):
            o = (dt*2+qt)*16
            for half in range(2):
                x = 128 + 8*(n % 4); d = 64 + 4*(n % 8); n += 1
                for i in range(8): p(f'v_accvgpr_read_b32 v{x+i}, a{o+8*half+i}')
                for i in range(0, 8, 2): p(f'v_pk_mul_f32 v[{x+i}:{x+i+1}], v[{x+i}:{x+i+1}], v[{vL+2*qt}:{vL+2*qt+1}]')
                for i in range(0, 8, 2): p(f'v_cvt_pk_bf16_f32 v{d+i//2}, v{x+i}, v{x+i+1}')
                p(f'buffer_store_dwordx4 v[{d}:{d+3}], v{4+qt}, s[{S_O}:{S_O+3}], 0 offen offset:{dt*1024 + half*512}')
    ts.stamp(p)
    ts.dump(p, 6)
    p('AB_end:\ns_endpgm')
    autowait(p); check(p, 'ab')
    return p


def gen_c(cfg):
    p = Prog(); ts = TS(cfg.ts, 1 << 18)
    S_A, S_W, S_X, S_OUT, S_G, S_FL = 8, 12, 16, 20, 24, 28
    sW, sGM, sTB, sCB, sKW, sKA, sCNT, sMW = 36, 37, 38, 39, 40, 41, 42, 43
    sT = 50; sP = 60
    p('s_cmp_ge_u32 s2, 256\ns_cbranch_scc1 C_end')
    p(f's_load_dwordx2 s[{sP}:{sP+1}], s[0:1], 32\ns_load_dwordx2 s[{sP+2}:{sP+3}], s[0:1], 64\ns_load_dwordx2 s[6:7], s[0:1], 88')
    p(f's_load_dwordx2 s[{sP+4}:{sP+5}], s[0:1], 0\ns_load_dwordx2 s[{sP+6}:{sP+7}], s[0:1], 72')
    p(f'v_lshrrev_b32 v2, 6, v0\nv_and_b32 v1, 63, v0\nv_readfirstlane_b32 s{sW}, v2')
    p(f's_lshr_b32 s{sGM}, s2, 7\ns_and_b32 s{sT}, s2, 7\ns_bfe_u32 s{sT+1}, s2, 0x40003')
    p(f's_lshr_b32 s{sTB}, s{sT}, 1\ns_lshl_b32 s{sTB}, s{sTB}, 2\ns_and_b32 s{sT+2}, s{sT+1}, 3\ns_add_u32 s{sTB}, s{sTB}, s{sT+2}')
    p(f's_and_b32 s{sCB}, s{sT}, 1\ns_lshl_b32 s{sCB}, s{sCB}, 2\ns_lshr_b32 s{sT+2}, s{sT+1}, 2\ns_add_u32 s{sCB}, s{sCB}, s{sT+2}')
    ts.stamp(p)
    p('s_waitcnt lgkmcnt(0)')
    p(f's_cmp_eq_u32 s{sGM}, 1')
    p(f's_cselect_b32 s{S_W}, s{sP}, s{sP+2}\ns_cselect_b32 s{S_W+1}, s{sP+1}, s{sP+3}')
    p(f's_mov_b32 s{sT}, {8<<20}\ns_cselect_b32 s{S_W+2}, s{sT}, {7<<20}\ns_mov_b32 s{S_W+3}, 0x20000')
    p(f's_mov_b32 s{sT}, {WS_O}\ns_cselect_b32 s{sT}, s{sT}, {WS_H}')
    p(f's_mov_b32 s{sT+1}, {16<<20}\ns_cselect_b32 s{S_A+2}, s{sT+1}, {14<<20}')
    p(f's_mov_b32 s{sT+1}, {128*1024}\ns_cselect_b32 s{sT+1}, s{sT+1}, {112*1024}')
    p(f's_cselect_b32 s{sCNT}, 8, 7')
    p(f's_add_u32 s{S_A}, s6, s{sT}\ns_addc_u32 s{S_A+1}, s7, 0\ns_mov_b32 s{S_A+3}, 0x20000')
    srd(p, S_X, sP+4, 0, 4 << 20); srd(p, S_OUT, sP+6, 0, 4 << 20)
    srd(p, S_G, 6, WS_G, 4 << 20); srd(p, S_FL, 6, WS_FL, 128*128)
    vAct, vD, vTr, vA, vC, vX, vG = 4, 8, 16, 32, 64, 128, 160
    RA, RB = 8, 16
    t = 192
    p(f's_lshl_b32 s{sT}, s{sTB}, 3\ns_lshl_b32 s{sT+2}, s{sW}, 1\ns_add_u32 s{sT}, s{sT}, s{sT+2}\ns_mul_i32 s{sT+2}, s{sT}, s{sT+1}')
    p(f'v_lshlrev_b32 v{t}, 4, v1\nv_add_u32 v{vAct}, s{sT+2}, v{t}\nv_add_u32 v{vAct+1}, s{sT+1}, v{vAct}')
    p(f's_lshl_b32 s{sT+2}, s{sW}, 16\ns_lshl_b32 s{sT+3}, s{sCB}, 8\ns_add_u32 s{sT+2}, s{sT+2}, s{sT+3}')
    p(f'v_lshrrev_b32 v{t}, 4, v1\nv_and_b32 v{t+1}, 15, v1\nv_lshlrev_b32 v{t+2}, 1, v{t}\nv_xor_b32 v{t+1}, v{t+1}, v{t+2}')
    p(f'v_lshlrev_b32 v{t}, 11, v{t}\nv_add_u32 v{t}, s{sT+2}, v{t}')
    for pc in range(8):
        sw = (pc & 1) | ((pc & 2) << 1) | ((pc & 4) >> 1)
        ko = 4*sw*2048 - 1024*(pc % 4); kh = 4*pc*2048 - 1024*(pc % 4)
        p(f's_cmp_eq_u32 s{sGM}, 1\ns_mov_b32 s{sT+3}, {ko}\ns_cselect_b32 s{sT+3}, s{sT+3}, {kh}')
        p(f'v_xor_b32 v{t+2}, {8*(pc & 1)}, v{t+1}\nv_lshl_add_u32 v{t+2}, v{t+2}, 4, v{t}\nv_add_u32 v{vD+pc}, s{sT+3}, v{t+2}')
    p(f'v_lshrrev_b32 v{t}, 2, v1\nv_and_b32 v{t+1}, 7, v{t}\nv_lshlrev_b32 v{t}, 8, v{t}\nv_and_b32 v{t+2}, 3, v1\nv_lshl_add_u32 v{t}, v{t+2}, 3, v{t}')
    for tt in range(8):
        p(f'v_xor_b32 v{t+2}, {tt}, v{t+1}\nv_lshl_add_u32 v{vTr+tt}, v{t+2}, 5, v{t}\nv_add_u32 v{vTr+8+tt}, 0x10000, v{vTr+tt}')
    p(f's_lshl_b32 s{sMW}, s{sW}, 13\ns_mov_b32 s{sKW}, 0\ns_mov_b32 s{sKA}, 0')
    SLOT = 32768; D = 2
    def dma(pc, tile, stride): return (f'buffer_load_dwordx4 v{vD+pc}, s[{S_W}:{S_W+3}], s{sKW} offen offset:{1024*(pc%4)} lds', ('W', 4, tile, stride))
    def act(sub, b):
        r = 8*(sub % RB) + 4*b
        return f'buffer_load_dwordx4 a[{r}:{r+3}], v{vAct+b}, s[{S_A}:{S_A+3}], s{sKA} offen offset:{1024*(sub % 4)}'
    ad = cfg.cad
    def vm_sched(step, g):
        s, t = divmod(g, 8); sub = 4*step + s
        d = None; a = None
        if g % cfg.cdstr == 1 and g // cfg.cdstr < 8: d = g // cfg.cdstr
        if t in (3, 6): a = (sub + ad, 0 if t == 3 else 1)
        return d, a
    first = -((ad + 3)//4) if ad > 8 else -2
    for step in range(first, 0):
        for g in range(32):
            d, a = vm_sched(step, g)
            if d is not None and step + D >= 0:
                if d % 4 == 0: p(f's_add_u32 m0, s{sMW}, {(step+D)*SLOT + 1024*d}\ns_nop 0')
                emit(p, dma(d, step + D, 0))
                if d == 7: p(f's_add_u32 s{sKW}, s{sKW}, {128*2048}')
            if a is not None and a[0] >= 0:
                p(act(*a))
                if a[1] == 1 and a[0] % 4 == 3: p(f's_add_u32 s{sKA}, s{sKA}, 4096')
    for i in range(64): p(f'v_mov_b32 v{vC+i}, 0')
    P = cfg.cP
    def trr(G, tile0, stride):
        step, g = divmod(G, 32); s, t = divmod(g, 8)
        r = vA + 4*(G % RA); a = vTr + t + (8 if step % 4 >= 2 else 0)
        off = (step % 2)*SLOT + s*8192
        tag = ('W', 4, tile0 + step, stride)
        return [(f'ds_read_b64_tr_b16 v[{r}:{r+1}], v{a} offset:{off}', tag),
                (f'ds_read_b64_tr_b16 v[{r+2}:{r+3}], v{a} offset:{off + 4096}', tag)]
    p.need(('W', 4, 0, 0)); p('s_barrier')
    for G in range(P):
        for f in trr(G, 0, 0): emit(p, f)
    ts.stamp(p)
    p.loop_begin('C_loop', 8)
    mf = []; fill = {}
    def F(i, x): fill.setdefault(i, []).append(x)
    NGB = 128
    for G in range(NGB):
        step, g = divmod(G, 32); s, t = divmod(g, 8); sub = 4*step + s
        for b in range(2):
            ra = vA + 4*(G % RA); rb = 8*(sub % RB) + 4*b; c = vC + (t*2+b)*4
            mf.append(f'v_mfma_f32_16x16x32_bf16 v[{c}:{c+3}], v[{ra}:{ra+3}], a[{rb}:{rb+3}], v[{c}:{c+3}]')
        i0 = 2*G; Gn = G + P
        if Gn % 32 == 0:
            stepn = Gn // 32
            F(i0, lambda p, stepn=stepn: (p.need(('W', 4, stepn, 4)), p('s_barrier')))
        r0, r1 = trr(Gn % NGB, (Gn // NGB)*4, 4)
        F(i0, r0); F(i0+1, r1)
        d, a = vm_sched(step, g)
        if d is not None:
            if d % 4 == 0: F(i0-1, f's_add_u32 m0, s{sMW}, {((step+D) % 4)*SLOT + 1024*d}')
            F(i0, dma(d, step + D, 4))
            if d == 7: F(i0+1, f's_add_u32 s{sKW}, s{sKW}, {128*2048}')
        if a is not None:
            F(i0+1, act(*a))
            if a[1] == 1 and a[0] % 4 == 3: F(i0+2, f's_add_u32 s{sKA}, s{sKA}, 4096')
    F(len(mf)-2, f's_sub_u32 s{sCNT}, s{sCNT}, 1'); F(len(mf)-2, f's_cmp_lg_u32 s{sCNT}, 0')
    F(len(mf)-1, 's_cbranch_scc1 C_loop')
    interleave(p, mf, fill)
    p.loop_end()
    p('s_waitcnt lgkmcnt(0)')
    ts.stamp(p)
    p(f's_lshl_b32 s{sT}, s{sTB}, 3\ns_add_u32 s{sT}, s{sT}, s{sCB}')
    p(f's_lshl_b32 s{sT+1}, s{sT}, 15\ns_lshl_b32 s{sT+2}, s{sW}, 13\ns_add_u32 s{sT+1}, s{sT+1}, s{sT+2}')
    p(f'v_lshlrev_b32 v8, 4, v1\nv_add_u32 v8, s{sT+1}, v8\nv_add_u32 v9, 0x1000, v8')
    p(f's_lshl_b32 s{sT}, s{sT}, 7\nv_mov_b32 v10, s{sT}')
    p(f's_cmp_eq_u32 s{sGM}, 1\ns_cbranch_scc1 C_s_epi')
    p(f's_mov_b32 s{sT+3}, {f2u(-math.log2(math.e)):#x}')
    for i2 in range(8):
        c = vC + 8*i2; tt = 32 + 8*(i2 % 2); d = vG + 4*i2
        for r in range(8): p(f'v_mul_f32 v{tt+r}, s{sT+3}, v{c+r}')
        for r in range(8): p(f'v_exp_f32 v{tt+r}, v{tt+r}')
        for r in range(8): p(f'v_add_f32 v{tt+r}, 1.0, v{tt+r}')
        for r in range(8): p(f'v_rcp_f32 v{tt+r}, v{tt+r}')
        for r in range(8): p(f'v_mul_f32 v{tt+r}, v{tt+r}, v{c+r}')
        for r in range(4): p(f'v_cvt_pk_bf16_f32 v{d+r}, v{tt+2*r}, v{tt+2*r+1}')
        p(f'buffer_store_dwordx4 v[{d}:{d+3}], v{8 + i2//4}, s[{S_G}:{S_G+3}], 0 offen offset:{1024*(i2 % 4)} sc1')
    p('s_waitcnt vmcnt(0)\ns_barrier')
    p(f's_cmp_eq_u32 s{sW}, 0\ns_cbranch_scc0 C_fin')
    p(f'v_mov_b32 v11, 1\nbuffer_store_dword v11, v10, s[{S_FL}:{S_FL+3}], 0 offen sc1')
    p('s_branch C_fin')
    p('C_s_epi:')
    p(f's_lshl_b32 s{sT+1}, s{sTB}, 7\ns_lshl_b32 s{sT+2}, s{sW}, 5\ns_add_u32 s{sT+1}, s{sT+1}, s{sT+2}\ns_lshl_b32 s{sT+1}, s{sT+1}, 11\ns_lshl_b32 s{sT+2}, s{sCB}, 8\ns_add_u32 s{sT+1}, s{sT+1}, s{sT+2}')
    p(f'v_and_b32 v12, 15, v1\nv_lshlrev_b32 v12, 11, v12\nv_add_u32 v12, s{sT+1}, v12\nv_lshrrev_b32 v13, 4, v1')
    p(f'v_lshl_add_u32 v14, v13, 3, v12\nv_add_u32 v15, 0x8000, v14')
    for tt in range(8):
        for b in range(2):
            r = vX + (tt*2+b)*2
            p(f'buffer_load_dwordx2 v[{r}:{r+1}], v{14+b}, s[{S_X}:{S_X+3}], 0 offen offset:{32*tt}')
    p(f'v_and_b32 v16, 1, v13\nv_lshlrev_b32 v16, 5, v16\nv_lshrrev_b32 v17, 1, v13\nv_lshlrev_b32 v17, 4, v17\nv_add3_u32 v16, v16, v17, v12\nv_add_u32 v17, 0x8000, v16')
    p(f's_cmp_eq_u32 s{sW}, 0\ns_cbranch_scc0 C_got')
    p('C_poll:')
    p(f'buffer_load_dword v11, v10, s[{S_FL}:{S_FL+3}], 0 offen sc1\ns_waitcnt vmcnt(0)\nv_readfirstlane_b32 s{sT+2}, v11\ns_nop 0\ns_cmp_eq_u32 s{sT+2}, 1\ns_cbranch_scc1 C_got\ns_sleep 2\ns_branch C_poll')
    p('C_got:\ns_barrier')
    for i2 in range(8):
        d = vG + 4*i2
        p(f'buffer_load_dwordx4 v[{d}:{d+3}], v{8 + i2//4}, s[{S_G}:{S_G+3}], 0 offen offset:{1024*(i2 % 4)} sc1')
    p(f's_mov_b32 s{sT+3}, 0xffff0000')
    for m in range(4):
        for b in range(2):
            o = 192 + 4*((m*2+b) % 4)
            for h in range(2):
                tt = 2*m + h; c = vC + (tt*2+b)*4; xr = vX + (tt*2+b)*2; gr = vG + (tt*2+b)*2
                for q in range(2):
                    p(f'v_lshlrev_b32 v32, 16, v{gr+q}\nv_and_b32 v33, s{sT+3}, v{gr+q}\nv_lshlrev_b32 v34, 16, v{xr+q}\nv_and_b32 v35, s{sT+3}, v{xr+q}')
                    p(f'v_fmac_f32 v34, v32, v{c+2*q}\nv_fmac_f32 v35, v33, v{c+2*q+1}\nv_cvt_pk_bf16_f32 v{o+2*h+q}, v34, v35')
            p(f's_nop 1\nv_permlane16_swap_b32 v{o}, v{o+2}\nv_permlane16_swap_b32 v{o+1}, v{o+3}')
            p(f'buffer_store_dwordx4 v[{o}:{o+3}], v{16+b}, s[{S_OUT}:{S_OUT+3}], 0 offen offset:{64*m}')
    p('C_fin:')
    ts.stamp(p)
    ts.dump(p, 6)
    p('C_end:\ns_endpgm')
    autowait(p); check(p, 'c')
    return p

def main():
    cfg = Cfg()
    cfg.ts = 1; cfg.xmap = 'b'; cfg.stag = 0; cfg.P = 4
    cfg.d0 = 0; cfg.dstr = 2; cfg.a0 = 1; cfg.astr = 2; cfg.ad = 3; cfg.PF = 3
    cfg.cad = 12; cfg.cdstr = 2; cfg.cP = 5
    for a in sys.argv[2:]:
        k, v = a.split('='); setattr(cfg, k, int(v) if v.lstrip('-').isdigit() else v)
    hdr = ('; @launch kernel=ln_kernel grid=(128,1,1) block=(256,1,1) lds=512\n'
           f'; @launch kernel=ab_kernel grid=(256,1,1) block=(256,1,1) lds={NHS*HS}\n'
           '; @launch kernel=c_kernel grid=(256,1,1) block=(256,1,1) lds=131072\n'
           '.amdgcn_target "amdgcn-amd-amdhsa--gfx950"\n')
    s = hdr + kernel_head('ln_kernel') + gen_ln(cfg).text() + '\n' + kernel_head('ab_kernel') + gen_ab(cfg).text() + '\n' + kernel_head('c_kernel') + gen_c(cfg).text() + '\n'
    s += kernel_desc('ln_kernel', 128, 128) + kernel_desc('ab_kernel', 512, 256) + kernel_desc('c_kernel', 384, 256)
    open(sys.argv[1], 'w').write(s)
if __name__ == '__main__': main()
```

```python
import sys, struct, math
from dsl import *

NAME = 'recurrent_scan__sliding_block_cached__geglu_ffn__prompt'
WS_XN = 0
WS_O  = 4 << 20
WS_H  = 20 << 20
WS_G  = 36 << 20
WS_FL = 40 << 20
WS_TS = 48 << 20
def f2u(x): return struct.unpack('<I', struct.pack('<f', x))[0]

def srd(p, d, lo, add, size):
    if add: p(f's_add_u32 s{d}, s{lo}, {add:#x}\ns_addc_u32 s{d+1}, s{lo+1}, 0')
    else:   p(f's_mov_b32 s{d}, s{lo}\ns_mov_b32 s{d+1}, s{lo+1}')
    p(f's_mov_b32 s{d+2}, {size:#x}\ns_mov_b32 s{d+3}, 0x20000')

def kernel_head(name):
    return f'.text\n.globl {name}\n.p2align 8\n.type {name},@function\n{name}:\n'
def kernel_desc(name, vgpr, accum):
    return (f'.section .rodata,"a"\n.p2align 6\n.amdhsa_kernel {name}\n  .amdhsa_next_free_vgpr {vgpr}\n  .amdhsa_next_free_sgpr 102\n'
            f'  .amdhsa_accum_offset {accum}\n  .amdhsa_group_segment_fixed_size 0\n  .amdhsa_kernarg_size 96\n'
            '  .amdhsa_user_sgpr_count 2\n  .amdhsa_user_sgpr_kernarg_segment_ptr 1\n  .amdhsa_system_sgpr_workgroup_id_x 1\n'
            '  .amdhsa_float_denorm_mode_32 3\n.end_amdhsa_kernel\n')

def emit(p, f):
    if callable(f): f(p)
    elif isinstance(f, tuple): p(f[0], f[1])
    else: p(f)
def interleave(p, mf, fill, pre=None):
    for f in fill.get(-1, []): emit(p, f)
    for i, m in enumerate(mf):
        p(m)
        for f in fill.get(i, []): emit(p, f)

def spread(hi, lo, n, cap, maxdelay=24, cost=None):
    out = {}; q = []
    def c(x):
        t = x[0] if isinstance(x, tuple) else x
        if callable(t): return 2 if t.__code__.co_names.count('touch') == 0 or 'need' in t.__code__.co_names else 0
        return 2 if t.split()[0] in TRANS else 1
    for i in range(-1, n):
        cur = list(hi.get(i, []))
        used = sum(c(x) for x in cur) + (cost(i) if cost else 0)
        for x in lo.get(i, []): q.append((i, x))
        tailb = [x for x in cur if isinstance(x, str) and x.startswith('s_cbranch')]
        cur = [x for x in cur if x not in tailb]
        while q and (used + c(q[0][1]) <= cap or i == n - 1 or i - q[0][0] >= maxdelay):
            j, x = q.pop(0); cur.append(x); used += c(x)
        out[i] = cur + tailb
    return out

m0gap = 's_nop 0 ; m0gap'
def fix_m0(fill, n):
    for i in range(-1, n):
        l = fill.get(i, [])
        for k, x in enumerate(l):
            if x is m0gap or x == m0gap:
                if k == 0 or k == len(l) - 1: l[k] = None
        fill[i] = [x for x in l if x is not None]

def chk_tail(fill, n):
    l = fill[n-2] + fill[n-1]
    k = [i for i, x in enumerate(l) if isinstance(x, str) and x.startswith('s_cmp_lg')][-1]
    for x in l[k+1:]:
        t = x[0] if isinstance(x, tuple) else x
        assert callable(t) or all('scc' not in I(u).wr for u in t.split('\n')), t

class TS:
    def __init__(self, on, base): self.on = on; self.n = 0; self.base = base
    def stamp(self, p):
        if not self.on: return
        s = 70 + 4*self.n; self.n += 1; assert s + 3 < 100
        p(f's_waitcnt lgkmcnt(0)\ns_memtime s[{s}:{s+1}]\ns_memrealtime s[{s+2}:{s+3}]\ns_waitcnt lgkmcnt(0)')
    def dump(self, p, wsptr):
        if not self.on: return
        srd(p, 12, wsptr, WS_TS + self.base, 1 << 20)
        p('v_lshrrev_b32 v8, 6, v0\nv_lshlrev_b32 v8, 6, v8\ns_lshl_b32 s3, s2, 8\nv_add_u32 v8, s3, v8')
        for i in range(self.n):
            s = 70 + 4*i
            p(f'v_mov_b32 v4, s{s}\nv_mov_b32 v5, s{s+2}\nbuffer_store_dwordx2 v[4:5], v8, s[12:15], 0 offen offset:{8*i}\ns_nop 1')

def xlane_sum(p, v, t):
    p(f'v_mov_b32 v{t}, v{v}\ns_nop 1\nv_permlane16_swap_b32 v{v}, v{t}\ns_nop 1\nv_add_f32 v{v}, v{v}, v{t}')
    p(f'v_mov_b32 v{t}, v{v}\ns_nop 1\nv_permlane32_swap_b32 v{v}, v{t}\ns_nop 1\nv_add_f32 v{v}, v{v}, v{t}')

def gen_ln(cfg):
    p = Prog(); ts = TS(cfg.ts, 2 << 18)
    p('s_cmp_ge_u32 s2, 128\ns_cbranch_scc1 LN_end')
    ts.stamp(p)
    p('s_load_dwordx2 s[4:5], s[0:1], 0\ns_load_dwordx2 s[6:7], s[0:1], 88')
    p('v_and_b32 v1, 63, v0\nv_lshrrev_b32 v2, 6, v0')
    p('v_and_b32 v3, 15, v1\nv_lshrrev_b32 v4, 4, v1')
    p('s_lshl_b32 s3, s2, 15')
    p('v_lshlrev_b32 v5, 11, v3\nv_lshlrev_b32 v6, 4, v4\nv_lshlrev_b32 v7, 9, v2')
    p('v_add3_u32 v5, v5, v6, v7\nv_add_u32 v5, s3, v5')
    p('v_lshlrev_b32 v6, 4, v1\nv_lshlrev_b32 v7, 13, v2\nv_add3_u32 v6, v6, v7, s3')
    p('s_waitcnt lgkmcnt(0)')
    srd(p, 8, 4, 0, 4 << 20)
    srd(p, 12, 6, WS_XN, 4 << 20)
    for i in range(8):
        p(f'buffer_load_dwordx4 v[{16+4*i}:{19+4*i}], v5, s[8:11], 0 offen offset:{64*i}')
    srd(p, 20, 6, WS_FL, 512*128)
    p('s_lshl_b32 s3, s2, 9\nv_lshlrev_b32 v10, 7, v2\nv_add_u32 v10, s3, v10\nv_mov_b32 v11, 0\nbuffer_store_dword v11, v10, s[20:23], 0 offen')
    p('v_lshlrev_b32 v8, 4, v3\nv_lshlrev_b32 v9, 2, v2\nv_add_u32 v9, v8, v9')
    p('s_mov_b32 s16, 0xffff0000')
    X = 64
    for i in range(32):
        p(f'v_lshlrev_b32 v{X+2*i}, 16, v{16+i}\nv_and_b32 v{X+2*i+1}, s16, v{16+i}')
    for a in range(4): p(f'v_add_f32 v{10+a}, v{X+a}, v{X+4+a}')
    for i in range(8, 64): p(f'v_add_f32 v{10+i%4}, v{10+i%4}, v{X+i}')
    p('v_add_f32 v10, v10, v11\nv_add_f32 v12, v12, v13\nv_add_f32 v10, v10, v12')
    xlane_sum(p, 10, 11)
    p('ds_write_b32 v9, v10\ns_waitcnt lgkmcnt(0)\ns_barrier')
    p('ds_read_b128 v[12:15], v8')
    p('v_add_f32 v12, v12, v13\nv_add_f32 v14, v14, v15\nv_add_f32 v10, v12, v14')
    p(f'v_mul_f32 v10, {f2u(1/1024):#x}, v10')
    for a in range(4):
        p(f'v_sub_f32 v16, v{X+a}, v10\nv_mul_f32 v{12+a}, v16, v16')
    for i in range(4, 64):
        p(f'v_sub_f32 v{16+i%4}, v{X+i}, v10\nv_fmac_f32 v{12+i%4}, v{16+i%4}, v{16+i%4}')
    p('v_add_f32 v12, v12, v13\nv_add_f32 v14, v14, v15\nv_add_f32 v12, v12, v14')
    xlane_sum(p, 12, 11)
    p('ds_write_b32 v9, v12 offset:256\ns_waitcnt lgkmcnt(0)\ns_barrier')
    p('ds_read_b128 v[12:15], v8 offset:256')
    p('v_add_f32 v12, v12, v13\nv_add_f32 v14, v14, v15\nv_add_f32 v12, v12, v14')
    p(f'v_mul_f32 v12, {f2u(1/1024):#x}, v12')
    def rnd(v): p(f'v_cvt_pk_bf16_f32 v{v}, v{v}, v{v}\nv_lshlrev_b32 v{v}, 16, v{v}')
    rnd(10); rnd(12)
    p(f'v_add_f32 v12, {f2u(1e-5):#x}, v12'); rnd(12)
    p('v_sqrt_f32 v12, v12\ns_nop 0'); rnd(12)
    p('v_rcp_f32 v12, v12')
    for i in range(32):
        a, b = X+2*i, X+2*i+1
        p(f'v_sub_f32 v{a}, v{a}, v10\nv_sub_f32 v{b}, v{b}, v10\nv_cvt_pk_bf16_f32 v{a}, v{a}, v{b}')
        p(f'v_and_b32 v{b}, s16, v{a}\nv_lshlrev_b32 v{a}, 16, v{a}')
        p(f'v_mul_f32 v{a}, v{a}, v12\nv_mul_f32 v{b}, v{b}, v12\nv_cvt_pk_bf16_f32 v{16+i}, v{a}, v{b}')
    p('v_add_u32 v7, 0x1000, v6')
    for i in range(8):
        p(f'buffer_store_dwordx4 v[{16+4*i}:{19+4*i}], v{6 if i < 4 else 7}, s[12:15], 0 offen offset:{1024*(i%4)}')
    if cfg.ts: p('s_waitcnt vmcnt(0)')
    ts.stamp(p); ts.dump(p, 6)
    p('LN_end:\ns_endpgm')
    autowait(p); check(p, 'ln')
    return p

class Cfg: pass

HS = 22528
NHS = 7
def gen_ab(cfg):
    p = Prog(); ts = TS(cfg.ts, 0)
    S_W, S_Q, S_XN, S_H, S_K, S_V, S_O = 8, 12, 16, 20, 24, 28, 32
    sW, sRB, sCB, sKW, sKQ, sKA, sCNT = 36, 37, 38, 39, 40, 41, 42
    sMW, sMQ, sRD, sDL, sLEFT, sLEFA = 43, 44, 45, 46, 47, 48
    sT = 50
    sP = 60
    p('s_cmp_ge_u32 s2, 256\ns_cbranch_scc1 AB_end')
    p(f's_load_dwordx4 s[{sP}:{sP+3}], s[0:1], 48\ns_load_dwordx2 s[6:7], s[0:1], 88')
    p(f's_load_dwordx4 s[{sP+4}:{sP+7}], s[0:1], 8\ns_load_dwordx2 s[4:5], s[0:1], 24')
    p(f'v_lshrrev_b32 v2, 6, v0\nv_and_b32 v1, 63, v0\nv_readfirstlane_b32 s{sW}, v2')
    p(f's_and_b32 s{sT}, s2, 7\ns_lshr_b32 s{sT+1}, s2, 3')
    if cfg.xmap == 'c':
        p(f's_and_b32 s{sRB}, s{sT}, 1\ns_lshl_b32 s{sRB}, s{sRB}, 2\ns_and_b32 s{sT+2}, s{sT+1}, 3\ns_add_u32 s{sRB}, s{sRB}, s{sT+2}')
        p(f's_lshr_b32 s{sCB}, s{sT}, 1\ns_lshl_b32 s{sCB}, s{sCB}, 3\ns_lshr_b32 s{sT+2}, s{sT+1}, 2\ns_add_u32 s{sCB}, s{sCB}, s{sT+2}')
    else:
        p(f's_and_b32 s{sRB}, s{sT+1}, 7\ns_lshl_b32 s{sCB}, s{sT}, 2\ns_lshr_b32 s{sT+2}, s{sT+1}, 3\ns_add_u32 s{sCB}, s{sCB}, s{sT+2}')
    ts.stamp(p)
    p('s_waitcnt lgkmcnt(0)')
    p(f's_cmp_ge_u32 s{sW}, 2\ns_cselect_b32 s{S_W}, s{sP+2}, s{sP}\ns_cselect_b32 s{S_W+1}, s{sP+3}, s{sP+1}')
    p(f's_mov_b32 s{S_W+2}, {1024*7168:#x}\ns_mov_b32 s{S_W+3}, 0x20000')
    srd(p, S_Q, 4, 0, 8 << 20)
    srd(p, S_XN, 6, WS_XN, 4 << 20)
    srd(p, S_H, 6, WS_H, 14 << 20)
    srd(p, S_K, sP+4, 0, 2 << 20)
    srd(p, S_V, sP+6, 0, 2 << 20)
    srd(p, S_O, 6, WS_O, 16 << 20)
    vAct, vDW, vDQ, vTr, vTq, vT = 4, 8, 15, 19, 20, 28
    vA, RA = 32, 8
    vB, RB = 64, 4
    def acc(t, b):
        if t < 16: c = (t*4+b)*4; return f'a[{c}:{c+3}]'
        c = 160 + ((t-16)*4+b)*4; return f'v[{c}:{c+3}]'
    def accr(t, b, r):
        if t < 16: return f'a{(t*4+b)*4+r}'
        return f'v{160+((t-16)*4+b)*4+r}'
    p(f's_lshl_b32 s{sT}, s{sRB}, 4\ns_lshl_b32 s{sT+1}, s{sW}, 2\ns_add_u32 s{sT}, s{sT}, s{sT+1}\ns_lshl_b32 s{sT}, s{sT}, 15')
    p(f'v_lshlrev_b32 v{vT}, 4, v1\nv_add_u32 v{vAct}, s{sT}, v{vT}')
    for b in range(1, 4): p(f'v_add_u32 v{vAct+b}, {b*32768:#x}, v{vAct}')
    p(f's_and_b32 s{sT}, s{sW}, 1\ns_mul_i32 s{sT}, s{sT}, {32*7168}\ns_mul_i32 s{sT+1}, s{sCB}, 224\ns_add_u32 s{sT}, s{sT}, s{sT+1}')
    p(f's_mov_b32 s{sT+1}, 4682\ns_mov_b32 s{sT+2}, 7168')
    for n in range(448): assert (n*4682) >> 16 == n // 14
    t = 32
    for pc in range(7):
        p(f'v_add_u32 v{t}, {64*pc}, v1')
        p(f'v_mul_lo_u32 v{t+1}, v{t}, s{sT+1}\nv_lshrrev_b32 v{t+1}, 16, v{t+1}')
        p(f'v_mul_u32_u24 v{t+2}, 14, v{t+1}\nv_sub_u32 v{t+2}, v{t}, v{t+2}')
        p(f'v_and_b32 v{t+3}, 0x13, v{t+1}\nv_and_b32 v{t+4}, 4, v{t+1}\nv_lshlrev_b32 v{t+4}, 1, v{t+4}\nv_or_b32 v{t+3}, v{t+3}, v{t+4}')
        p(f'v_and_b32 v{t+4}, 8, v{t+1}\nv_lshrrev_b32 v{t+4}, 1, v{t+4}\nv_or_b32 v{t+3}, v{t+3}, v{t+4}')
        p(f'v_mul_lo_u32 v{t+3}, v{t+3}, s{sT+2}\nv_lshlrev_b32 v{t+2}, 4, v{t+2}\nv_add3_u32 v{vDW+pc}, v{t+3}, v{t+2}, s{sT}')
        if pc % 4: p(f'v_subrev_u32 v{vDW+pc}, {1024*(pc%4)}, v{vDW+pc}')
    p(f's_lshl_b32 s{sT}, s{sW}, 17\ns_lshl_b32 s{sT+1}, s{sCB}, 8\ns_add_u32 s{sT}, s{sT}, s{sT+1}')
    p(f'v_lshrrev_b32 v{t}, 4, v1\nv_and_b32 v{t+1}, 15, v1\nv_lshlrev_b32 v{t+2}, 1, v{t}\nv_xor_b32 v{t+1}, v{t+1}, v{t+2}')
    p(f'v_lshlrev_b32 v{t}, 13, v{t}\nv_add_u32 v{t}, s{sT}, v{t}')
    for j in range(4):
        p(f'v_xor_b32 v{t+2}, {8*(j>>1)}, v{t+1}\nv_lshlrev_b32 v{t+2}, 4, v{t+2}\nv_add_u32 v{t+2}, v{t+2}, v{t}')
        p(f'v_add_u32 v{vDQ+j}, {j*(4*8192-1024)}, v{t+2}')
    p(f'v_lshrrev_b32 v{t}, 5, v1\nv_lshlrev_b32 v{t}, 4, v{t}\nv_bfe_u32 v{t+1}, v1, 4, 1\nv_lshlrev_b32 v{t+1}, 2, v{t+1}\nv_bfe_u32 v{t+2}, v1, 2, 2')
    p(f'v_add3_u32 v{t}, v{t}, v{t+1}, v{t+2}\nv_mul_u32_u24 v{t}, 224, v{t}\nv_and_b32 v{t+3}, 3, v1\nv_lshlrev_b32 v{t+3}, 3, v{t+3}\nv_add_u32 v{vTr}, v{t}, v{t+3}')
    p(f'v_or_b32 v{t+1}, v{t+1}, v{t+2}')
    p(f'v_lshrrev_b32 v{t}, 4, v1\nv_lshlrev_b32 v{t}, 3, v{t}\nv_add_u32 v{t}, v{t}, v{t+2}\nv_lshlrev_b32 v{t}, 8, v{t}')
    p(f'v_add_u32 v{t}, 14336, v{t}\nv_add_u32 v{t}, v{t}, v{t+3}')
    for tt in range(8):
        p(f'v_xor_b32 v{t+2}, {tt}, v{t+1}\nv_lshl_add_u32 v{vTq+tt}, v{t+2}, 5, v{t}')
    p(f's_and_b32 s{sT}, s{sW}, 1\ns_lshr_b32 s{sT+1}, s{sW}, 1')
    p(f's_mul_i32 s{sMW}, s{sT}, {HS}\ns_mul_i32 s{sT+2}, s{sT+1}, 7168')
    sRW, sRQ = 49, 3
    p(f's_mov_b32 s{sRW}, s{sT+2}')
    p(f's_mul_i32 s{sMQ}, s{sT+1}, {HS}\ns_lshl_b32 s{sRQ}, s{sT}, 12\ns_add_u32 s{sRQ}, s{sRQ}, 14336')
    KW, KQ, KA, NT = 64*7168, 64*8192, 2048, 16
    if cfg.stag:
        p(f's_lshl_b32 s{sT}, s{sRB}, 1\ns_mul_i32 s{sKW}, s{sT}, {KW}\ns_mul_i32 s{sKQ}, s{sT}, {KQ}\ns_mul_i32 s{sKA}, s{sT}, {KA}')
    else:
        p(f's_mov_b32 s{sKW}, 0\ns_mov_b32 s{sKQ}, 0\ns_mov_b32 s{sKA}, 0')
    p(f's_mov_b32 s{sLEFT}, {NT}\ns_mov_b32 s{sLEFA}, {NT}\ns_mov_b32 s{sRD}, 0')
    def adv_w():
        return [f's_add_u32 s{sKW}, s{sKW}, {KW}', f's_cmp_eq_u32 s{sKW}, {NT*KW}', f's_cselect_b32 s{sKW}, 0, s{sKW}',
                f's_add_u32 s{sMW}, s{sMW}, {2*HS}', f's_cmp_ge_u32 s{sMW}, {NHS*HS}', f's_cselect_b32 s{sT}, {NHS*HS}, 0', f's_sub_u32 s{sMW}, s{sMW}, s{sT}']
    def adv_q():
        return [f's_add_u32 s{sKQ}, s{sKQ}, {KQ}', f's_and_b32 s{sKQ}, s{sKQ}, {NT*KQ-1}',
                f's_add_u32 s{sMQ}, s{sMQ}, {2*HS}', f's_cmp_ge_u32 s{sMQ}, {NHS*HS}', f's_cselect_b32 s{sT}, {NHS*HS}, 0', f's_sub_u32 s{sMQ}, s{sMQ}, s{sT}',
                f's_sub_u32 s{sLEFT}, s{sLEFT}, 1', f's_cmp_eq_u32 s{sLEFT}, 0',
                f's_cselect_b32 s{S_W+2}, 0, s{S_W+2}', f's_cselect_b32 s{S_Q+2}, 0, s{S_Q+2}']
    def adv_a():
        return [f's_add_u32 s{sKA}, s{sKA}, {KA}', f's_and_b32 s{sKA}, s{sKA}, {NT*KA-1}',
                f's_sub_u32 s{sLEFA}, s{sLEFA}, 1', f's_cmp_eq_u32 s{sLEFA}, 0', f's_cselect_b32 s{S_XN+2}, 0, s{S_XN+2}']
    def adv_rd():
        l = [f's_add_u32 s{sRD}, s{sRD}, {HS}', f's_cmp_eq_u32 s{sRD}, {NHS*HS}', f's_mov_b32 s{sDL}, {HS}',
             f's_cselect_b32 s{sDL}, {-(NHS-1)*HS}, s{sDL}', f's_cselect_b32 s{sRD}, 0, s{sRD}']
        return l
    def dma(pc, tile, stride):
        tag = ('W', NHS, 2*tile + 1, 2*stride)
        if pc < 7: return (f'buffer_load_dwordx4 v{vDW+pc}, s[{S_W}:{S_W+3}], s{sKW} offen offset:{1024*(pc%4)} lds', tag)
        return (f'buffer_load_dwordx4 v{vDQ+pc-7}, s[{S_Q}:{S_Q+3}], s{sKQ} offen offset:{1024*(pc-7)} lds', tag)
    def m0set(pc):
        if pc == 0: return [f's_add_u32 m0, s{sMW}, s{sRW}']
        if pc == 4: return [f's_add_u32 s{sT}, s{sMW}, s{sRW}', f's_add_u32 m0, s{sT}, 4096']
        if pc == 7: return [f's_add_u32 m0, s{sMQ}, s{sRQ}']
        return []
    def act(sub, b):
        r = vB + 16*(sub % RB) + 4*b
        return f'buffer_load_dwordx4 v[{r}:{r+3}], v{vAct+b}, s[{S_XN}:{S_XN+3}], s{sKA} offen offset:{1024*(sub % 2)}'
    NG = 22
    def vm_sched(step, g2):
        s, t = divmod(g2, NG); sub = 2*step + s
        d = None; a = None
        if cfg.d0 <= g2 < cfg.d0 + 11*cfg.dstr and (g2 - cfg.d0) % cfg.dstr == 0: d = (g2 - cfg.d0)//cfg.dstr
        if cfg.a0 <= t < cfg.a0 + 4*cfg.astr and (t - cfg.a0) % cfg.astr == 0: a = (sub + cfg.ad, (t - cfg.a0)//cfg.astr)
        return d, a
    for step in range(-2, 0):
        for g2 in range(2*NG):
            d, a = vm_sched(step, g2)
            if a is not None and a[0] >= 0:
                p(act(*a))
                if a[1] == 3 and a[0] % 2 == 1:
                    for x in adv_a(): p(x)
            if d is not None:
                for x in m0set(d): p(x)
                if m0set(d): p('s_nop 0')
                emit(p, dma(d, step+2, 0))
                if d == 6:
                    for x in adv_w(): p(x)
                if d == 10:
                    for x in adv_q(): p(x)
    for i in range(256): p(f'v_accvgpr_write_b32 a{i}, 0')
    for i in range(160, 256): p(f'v_mov_b32 v{i}, 0')
    P = cfg.P
    def trr(G, tile0, stride):
        step, g2 = divmod(G, 2*NG); s, t = divmod(g2, NG)
        r = vA + 4*(G % RA)
        tag = ('W', NHS, 2*(tile0 + step) + 1, 2*stride) if s == 1 else None
        if t < 14:
            off = (t // 7)*7168 + (t % 7)*32; a = vTr; hh = 8*224
        else:
            off = 0; a = vTq + t - 14; hh = 1024
        return [(f'ds_read_b64_tr_b16 v[{r}:{r+1}], v{a} offset:{off}', tag),
                (f'ds_read_b64_tr_b16 v[{r+2}:{r+3}], v{a} offset:{off + hh}', tag)]
    p.need(('W', NHS, 1, 0)); p('s_barrier')
    for G in range(P):
        for f in trr(G, 0, 0): emit(p, f)
    p(f's_mov_b32 s{sDL}, 0')
    UN = 2
    p(f's_mov_b32 s{sCNT}, {NT//UN}')
    ts.stamp(p)
    p.loop_begin('G_loop', NT//UN)
    mf = []; hi = {}; lo = {}
    def H(i, x): hi.setdefault(i, []).append(x)
    def L(i, x): lo.setdefault(i, []).append(x)
    NGB = 2*NG*UN
    for G in range(NGB):
        step, g2 = divmod(G, 2*NG); s, t = divmod(g2, NG)
        sub = 2*step + s
        for b in range(4):
            ra = vA + 4*(G % RA); rb = vB + 16*(sub % RB) + 4*b
            mf.append(f'v_mfma_f32_16x16x32_bf16 {acc(t,b)}, v[{ra}:{ra+3}], v[{rb}:{rb+3}], {acc(t,b)}')
        i0 = 4*G
        Gn = G + P
        tn = Gn % NG
        if Gn % (2*NG) == 0:
            stepn = Gn // (2*NG)
            H(i0-1, lambda p, stepn=stepn: (p.need(('W', NHS, 2*stepn + 1, 2*UN)), p('s_barrier')))
        if tn == 0: H(i0-2, f'v_add_u32 v{vTr}, s{sDL}, v{vTr}')
        r0, r1 = trr(Gn % NGB, (Gn // NGB)*UN, UN)
        H(i0, r0); H(i0+1, r1)
        if 1 <= tn <= 8: L(i0, f'v_add_u32 v{vTq+tn-1}, s{sDL}, v{vTq+tn-1}')
        if tn == 9:
            for x in adv_rd(): L(i0, x)
        pc, a = vm_sched(step, g2)
        if a is not None:
            L(i0, act(*a))
            if a[1] == 3 and a[0] % 2 == 1:
                for x in adv_a(): L(i0, x)
        if pc is not None:
            for x in m0set(pc): L(i0, x)
            if m0set(pc): L(i0, m0gap)
            L(i0, dma(pc, step + 2, UN))
            if pc == 6:
                for x in adv_w(): L(i0, x)
            if pc == 10:
                for x in adv_q(): L(i0, x)
    H(len(mf)-3, f's_sub_u32 s{sCNT}, s{sCNT}, 1'); H(len(mf)-2, f's_cmp_lg_u32 s{sCNT}, 0')
    H(len(mf)-1, 's_cbranch_scc1 G_loop')
    fill = spread(hi, lo, len(mf), cfg.cap, 16, cost=lambda i: 1 if i % 4 == 3 else 0)
    fix_m0(fill, len(mf)); chk_tail(fill, len(mf))
    interleave(p, mf, fill)
    p.loop_end()
    p('s_waitcnt vmcnt(0) lgkmcnt(0)\ns_barrier')
    ts.stamp(p)

    vDK, vDV, vK, vV = 8, 12, 13, 21
    sKV, sMK, sAD = 39, 40, 43
    t = 128
    p(f'v_lshrrev_b32 v{t}, 4, v1\nv_and_b32 v{t+1}, 15, v1')
    p(f's_lshl_b32 s{sT}, s{sW}, 12')
    p(f'v_lshlrev_b32 v{t+2}, 8, v{t}\nv_add_u32 v{t+2}, s{sT}, v{t+2}')
    for j in range(4):
        p(f'v_add_u32 v{t+3}, {4*j}, v{t}\nv_xor_b32 v{t+3}, v{t+3}, v{t+1}\nv_lshl_add_u32 v{vDK+j}, v{t+3}, 4, v{t+2}')
    p(f'v_lshlrev_b32 v{t+3}, 2, v{t}\nv_xor_b32 v{t+3}, v{t+3}, v{t+1}\nv_lshl_add_u32 v{vDV}, v{t+3}, 4, v{t+2}')
    p(f's_lshr_b32 s{sKV}, s{sCB}, 3\ns_lshl_b32 s{sKV}, s{sKV}, 19\ns_add_u32 s{sKV}, s{sKV}, {1536*256}')
    p(f's_lshl_b32 s{sMK}, s{sW}, 12')
    def kdma(j, soff, tag): return (f'buffer_load_dwordx4 v{vDK+j}, s[{S_K}:{S_K+3}], s{soff} offen offset:{1024*j} lds', tag)
    def vdma(j, soff, tag): return (f'buffer_load_dwordx4 v{vDV}, s[{S_V}:{S_V+3}], s{soff} offen offset:{1024*j} lds', tag)
    def kv_first(p):
        for (kind, tl) in (('K', 0), ('K', 1), ('V', 0), ('K', 2), ('V', 1)):
            p(f's_add_u32 s{sT}, s{sKV}, {tl*16384}\ns_add_u32 m0, s{sMK}, {tl*16384 + (65536 if kind == "V" else 0)}\ns_nop 0')
            for j in range(4): emit(p, (kdma if kind == 'K' else vdma)(j, sT, (kind, 4, tl, 0)))
    kv_first(p)
    k1 = -2*math.sqrt(2/math.pi)*math.log2(math.e); k2 = k1*0.044715
    vC = 28
    p(f's_mov_b32 s{sT}, {f2u(k1):#x}\ns_mov_b32 s{sT+1}, {f2u(k2):#x}')
    p(f'v_mov_b32 v{vC}, s{sT}')
    p(f's_lshl_b32 s{sT+2}, s{sRB}, 4\ns_lshl_b32 s{sT+3}, s{sW}, 2\ns_add_u32 s{sT+5}, s{sT+2}, s{sT+3}\ns_mul_i32 s{sT+2}, s{sT+5}, {112*1024}')
    p(f's_mul_i32 s{sT+3}, s{sCB}, 7\ns_add_u32 s{sT+3}, s{sT+3}, 1\ns_lshr_b32 s{sT+3}, s{sT+3}, 1\ns_lshl_b32 s{sT+3}, s{sT+3}, 10')
    p(f's_add_u32 s{sT+2}, s{sT+2}, s{sT+3}')
    p(f'v_lshlrev_b32 v{t}, 4, v1\nv_add_u32 v{vAct}, s{sT+2}, v{t}')
    for b in range(1, 4): p(f'v_add_u32 v{vAct+b}, {b*112*1024:#x}, v{vAct}')
    p(f's_and_b32 s{sT+3}, s{sCB}, 1\ns_cmp_eq_u32 s{sT+3}, 0\ns_mov_b32 s{sT+4}, 3072\ns_cselect_b32 s{sT+4}, s{sT+4}, -1016')
    vHs = 132
    for b in range(4): p(f'v_add_u32 v{vHs+b}, s{sT+4}, v{vAct+b}')
    def gelu_tile(t, b, dst):
        X, U, T = 32, 36, 40
        for r in range(4): p(f'v_accvgpr_read_b32 v{X+r}, {accr(t,b,r)}')
        for r in range(4): p(f'v_accvgpr_read_b32 v{U+r}, {accr(t+7,b,r)}')
        for r in (0, 2): p(f'v_pk_mul_f32 v[{T+r}:{T+r+1}], v[{X+r}:{X+r+1}], v[{X+r}:{X+r+1}]')
        for r in range(4): p(f'v_fma_f32 v{T+r}, v{T+r}, s{sT+1}, v{vC}')
        for r in (0, 2): p(f'v_pk_mul_f32 v[{T+r}:{T+r+1}], v[{T+r}:{T+r+1}], v[{X+r}:{X+r+1}]')
        for r in range(4): p(f'v_exp_f32 v{T+r}, v{T+r}')
        for r in (0, 2): p(f'v_pk_mul_f32 v[{U+r}:{U+r+1}], v[{U+r}:{U+r+1}], v[{X+r}:{X+r+1}]')
        for r in (0, 2): p(f'v_pk_add_f32 v[{T+r}:{T+r+1}], v[{T+r}:{T+r+1}], 1.0 op_sel_hi:[1,0]')
        for r in range(4): p(f'v_rcp_f32 v{T+r}, v{T+r}')
        p('s_nop 0')
        for r in (0, 2): p(f'v_pk_mul_f32 v[{U+r}:{U+r+1}], v[{U+r}:{U+r+1}], v[{T+r}:{T+r+1}]')
        p(f'v_cvt_pk_bf16_f32 v{dst}, v{U}, v{U+1}\nv_cvt_pk_bf16_f32 v{dst+1}, v{U+2}, v{U+3}')
    for par in range(2):
        if par == 0: p('s_cbranch_scc0 B_epi_odd')
        else: p('B_epi_odd:')
        n = 0
        for b in range(4):
            for pr in range(3):
                d = 64 + 4*(n % 8); n += 1
                gelu_tile(2*pr + par, b, d); gelu_tile(2*pr + 1 + par, b, d + 2)
                p(f'buffer_store_dwordx4 v[{d}:{d+3}], v{vAct+b}, s[{S_H}:{S_H+3}], 0 offen offset:{1024*pr}')
            d = 64 + 4*(n % 8); n += 1
            gelu_tile(6 if par == 0 else 0, b, d)
            p(f'buffer_store_dwordx2 v[{d}:{d+1}], v{vHs+b}, s[{S_H}:{S_H+3}], 0 offen')
        if par == 0: p('s_branch B_epi_done')
    p('B_epi_done:')
    ts.stamp(p)
    vQ = 64
    qs = math.log2(math.e)/math.sqrt(128)
    p(f's_mov_b32 s{sT}, {f2u(qs):#x}\ns_nop 1')
    for qt in range(2):
        for s in range(8):
            d = vQ + (qt*8+s)*4
            for half in range(2):
                b = 2*qt + half
                for r in range(4):
                    src = accr(14+s, b, r)
                    if src[0] == 'a': p(f'v_accvgpr_read_b32 v{32+4*half+r}, {src}'); src = f'v{32+4*half+r}'
                    p(f'v_mul_f32 v{32+4*half+r}, s{sT}, {src}')
                p(f'v_cvt_pk_bf16_f32 v{d+2*half}, v{32+4*half}, v{33+4*half}\nv_cvt_pk_bf16_f32 v{d+2*half+1}, v{34+4*half}, v{35+4*half}')
            p(f's_nop 1\nv_permlane16_swap_b32 v{d}, v{d+2}\nv_permlane16_swap_b32 v{d+1}, v{d+3}')
    t = 32
    p(f'v_and_b32 v{t}, 31, v1\nv_lshrrev_b32 v{t+1}, 5, v1\nv_and_b32 v{t+2}, 15, v1\nv_xor_b32 v{t+1}, v{t+1}, v{t+2}\nv_lshlrev_b32 v{t}, 8, v{t}')
    for s in range(8):
        p(f'v_xor_b32 v{t+2}, {2*s}, v{t+1}\nv_lshl_add_u32 v{vK+s}, v{t+2}, 4, v{t}')
    p(f'v_lshrrev_b32 v{t}, 5, v1\nv_lshlrev_b32 v{t}, 2, v{t}\nv_bfe_u32 v{t+1}, v1, 2, 2\nv_add_u32 v{t}, v{t}, v{t+1}\nv_lshlrev_b32 v{t}, 8, v{t}')
    p(f'v_bfe_u32 v{t+2}, v1, 4, 1\nv_lshlrev_b32 v{t+2}, 5, v{t+2}\nv_and_b32 v{t+3}, 3, v1\nv_lshlrev_b32 v{t+3}, 3, v{t+3}\nv_add3_u32 v{t}, v{t}, v{t+2}, v{t+3}')
    p(f'v_add_u32 v{t}, 0x10000, v{t}')
    for dt in range(4):
        p(f'v_xor_b32 v{t+2}, {dt}, v{t+1}\nv_lshl_add_u32 v{vV+dt}, v{t+2}, 6, v{t}')
    vS = [128, 160]; vP = [192, 208]; vN = 224; vL = 28
    aF = 192
    def Sreg(n, qt): return vS[n % 2] + 16*qt
    def Preg(n, qt, ks): return vP[n % 2] + 8*qt + 4*ks
    def kread(n, s, tag):
        r = aF + 4*s
        return [(f'ds_read_b128 a[{r}:{r+3}], v{vK+s} offset:{(n % 2)*8192}', tag)]
    def vread(n, f, tag):
        ks, dt = divmod(f, 4); r = aF + 32 + 4*f
        off = (32*(n % 2) + 16*ks)*256
        return [(f'ds_read_b64_tr_b16 a[{r}:{r+1}], v{vV+dt} offset:{off}', tag),
                (f'ds_read_b64_tr_b16 a[{r+2}:{r+3}], v{vV+dt} offset:{off+2048}', tag)]
    def qk(n, s, qt, c0):
        S = Sreg(n, qt); c = f'v[{S}:{S+15}]' if s else c0(qt)
        return f'v_mfma_f32_32x32x16_bf16 v[{S}:{S+15}], a[{aF+4*s}:{aF+4*s+3}], v[{vQ+(qt*8+s)*4}:{vQ+(qt*8+s)*4+3}], {c}'
    def pv(n, f, qt):
        ks, dt = divmod(f, 4); o = (dt*2+qt)*16; P_ = Preg(n, qt, ks)
        return f'v_mfma_f32_32x32x16_bf16 a[{o}:{o+15}], a[{aF+32+4*f}:{aF+32+4*f+3}], v[{P_}:{P_+3}], a[{o}:{o+15}]'
    negm = lambda qt: f'v[{vN+16*qt}:{vN+16*qt+15}]'
    zero = lambda qt: '0'
    def softmax_ops(n):
        sl = [[] for _ in range(33)]
        for e in range(32):
            qt, i = divmod(e, 16); S = Sreg(n, qt)
            sl[e].insert(0, f'v_exp_f32 v{S+i}, v{S+i}')
            sl[e+1].append(f'v_add_f32 v{vL+2*qt+(i&1)}, v{vL+2*qt+(i&1)}, v{S+i}')
            if i & 1: sl[e+1].append(f'v_cvt_pk_bf16_f32 v{Preg(n, qt, i>>3)+((i&7)>>1)}, v{S+i-1}, v{S+i}')
        return [[x for x in s if x] for s in sl]
    p('A_restart:')
    for i in range(128): p(f'v_accvgpr_write_b32 a{i}, 0')
    for i in range(4): p(f'v_mov_b32 v{vL+i}, 0')
    p(f's_mov_b32 s{sAD}, 0')
    p.need(('K', 4, 0, 0)); p('s_barrier')
    ts.stamp(p)
    for s in range(8): emit(p, kread(0, s, ('K', 4, 0, 0))[0])
    for s in range(8):
        for qt in range(2): p(qk(0, s, qt, zero))
        emit(p, kread(1, s, ('K', 4, 0, 0))[0])
    p('s_nop 7\ns_nop 1')
    sFB = 42
    p(f's_cmp_eq_u32 s{sCNT}, 0\ns_cbranch_scc0 A_havemax')
    for qt in range(2):
        S = Sreg(0, qt); m = 32 + 2*qt
        p(f'v_max3_f32 v{m}, v{S}, v{S+1}, v{S+2}')
        for i in range(3, 15, 2): p(f'v_max3_f32 v{m}, v{m}, v{S+i}, v{S+i+1}')
        p(f'v_max_f32 v{m}, v{m}, v{S+15}')
        p(f'v_mov_b32 v{m+1}, v{m}\ns_nop 1\nv_permlane32_swap_b32 v{m}, v{m+1}\ns_nop 1\nv_max_f32 v{m}, v{m}, v{m+1}')
        p(f'v_sub_f32 v{vN+16*qt}, 0, v{m}')
        for i in range(1, 16): p(f'v_mov_b32 v{vN+16*qt+i}, v{vN+16*qt}')
    p('A_havemax:')
    for qt in range(2):
        S = Sreg(0, qt)
        for i in range(16): p(f'v_add_f32 v{S+i}, v{S+i}, v{vN+16*qt}')
    PF = cfg.PF
    def build(its, tile_tagK, tile_tagV, nxt, extra=None):
        pairs = []
        sm = []
        for (nq, ns, npv) in its:
            st = len(pairs)
            if nq is not None:
                for s in range(8): pairs.append((qk(nq, s, 0, negm), qk(nq, s, 1, negm), kread(nq, s, tile_tagK(nq))))
            if npv is not None:
                for f in range(8): pairs.append((pv(npv, f, 0), pv(npv, f, 1), vread(npv, f, tile_tagV(npv))))
            if ns is not None: sm.append((st, len(pairs), softmax_ops(ns)))
        mf = []; fill = {}
        def F(i, x): fill.setdefault(i, []).append(x)
        for i, (a, b, _) in enumerate(pairs):
            mf += [a, b]
        if extra: extra(F, len(mf))
        for i in range(len(pairs)):
            j = i + PF
            rds = pairs[j][2] if j < len(pairs) else nxt(j - len(pairs))
            for k, r in enumerate(rds): F(2*i + k, r)
        for (st, en, sl) in sm:
            ng = 2*(en - st)
            for e, ops in enumerate(sl):
                g = 2*st + min(ng - 1, e*ng//32)
                for o in ops: F(g, o)
        return mf, fill
    def adv_att():
        l = [f's_add_u32 s{sAD}, s{sAD}, 16384', f's_and_b32 s{sAD}, s{sAD}, 0xffff']
        return l
    def nxt0(k): return kread(2, k, ('K', 4, 1, 0))
    def extra0(F, n):
        pos = 2*(8 - PF)
        F(pos - 1, lambda p: (p.need(('K', 4, 1, 0)), p.need(('V', 4, 0, 0)), p('s_barrier')))
        for s in range(8): F(pos - 1 if s < PF else 2*(8-PF+0) + 0, f'v_add_u32 v{vK+s}, 0x4000, v{vK+s}')
    mf, fill = build([(1, 0, None)], lambda n: None, None, nxt0, extra0)
    fill = {k: [x for x in v if not (isinstance(x, tuple) and x[1] is None)] for k, v in fill.items()}
    interleave(p, mf, fill)
    p(f's_mov_b32 s{sLEFT}, 7\ns_add_u32 s{sKA}, s{sKV}, {2*16384}\ns_mov_b32 s{sRD}, {2*16384}')
    vPF, sPF = 25, 44
    if cfg.pf:
        p(f's_load_dwordx2 s[{sP}:{sP+1}], s[0:1], 32\ns_load_dwordx2 s[{sP+2}:{sP+3}], s[0:1], 64')
        p(f's_lshl_b32 s{sT}, s2, 2\ns_add_u32 s{sT}, s{sT}, s{sW}\ns_lshl_b32 s{sT+1}, s{sT}, 13\ns_mul_i32 s{sT}, s{sT}, 7168')
        p(f'v_lshlrev_b32 v{vPF}, 4, v1\nv_add_u32 v{vPF+1}, s{sT}, v{vPF}\nv_add_u32 v{vPF}, s{sT+1}, v{vPF}')
        p('s_waitcnt lgkmcnt(0)')
        srd(p, S_W, sP, 0, 8 << 20); srd(p, S_Q, sP+2, 0, 7 << 20)
        p(f's_mov_b32 s{sPF}, 7168\ns_add_u32 m0, s{sMK}, 0x20000\ns_nop 0')
        p(f'buffer_load_dwordx4 v{vPF}, s[{S_W}:{S_W+3}], s{sPF} offen lds\ns_mov_b32 s{sPF}, 0')
    p.loop_begin('A_loop', 7)
    def extra(F, n):
        pos = n - 2*PF
        F(pos - 1, lambda p: (p.need(('K', 4, 2, 1)), p.need(('V', 4, 1, 1)), p('s_barrier')))
        F(2*(24 - PF), f's_add_u32 s{sAD}, s{sAD}, 1'); F(2*(24-PF), f's_and_b32 s{sT}, s{sAD}, 3')
        F(2*(24 - PF), f's_cmp_eq_u32 s{sT}, 3'); F(2*(24-PF), f's_mov_b32 s{sDL}, 0x4000'); F(2*(24-PF), f's_cselect_b32 s{sDL}, -0xc000, s{sDL}')
        F(2*(24 - PF), f's_cmp_eq_u32 s{sT}, 0'); F(2*(24-PF), f's_mov_b32 s{sT+1}, 0x4000'); F(2*(24-PF), f's_cselect_b32 s{sT+1}, -0xc000, s{sT+1}')
        for s in range(8): F(2*(24 - PF) + 1 + s//2, f'v_add_u32 v{vK+s}, s{sDL}, v{vK+s}')
        for dt in range(4): F(n - 2*PF + 1 + dt, f'v_add_u32 v{vV+dt}, s{sT+1}, v{vV+dt}')
        F(1, f's_add_u32 s{sT+2}, s{sRD}, 0x4000'); F(1, f's_and_b32 s{sT+2}, s{sT+2}, 0xffff'); F(1, f's_add_u32 m0, s{sT+2}, s{sMK}')
        F(1, f's_add_u32 s{sT+3}, s{sKA}, 0x4000')
        for j in range(4): F(2 + 3*j, kdma(j, sT+3, ('K', 4, 3, 1)))
        F(13, f's_add_u32 s{sT+2}, s{sRD}, s{sMK}'); F(13, f's_add_u32 m0, s{sT+2}, 0x10000')
        for j in range(4): F(14 + 3*j, vdma(j, sKA, ('V', 4, 2, 1)))
        F(24, f's_add_u32 s{sKA}, s{sKA}, 0x4000'); F(24, f's_add_u32 s{sRD}, s{sRD}, 0x4000'); F(24, f's_and_b32 s{sRD}, s{sRD}, 0xffff')
        if cfg.pf:
            F(30, f's_add_u32 m0, s{sMK}, 0x20000')
            F(32, f'buffer_load_dwordx4 v{vPF}, s[{S_W}:{S_W+3}], s{sPF} offen lds')
            F(36, f'buffer_load_dwordx4 v{vPF+1}, s[{S_Q}:{S_Q+3}], s{sPF} offen lds')
            F(37, f's_add_u32 s{sPF}, s{sPF}, 1024')
        F(n-2, f's_sub_u32 s{sLEFT}, s{sLEFT}, 1'); F(n-2, f's_cmp_lg_u32 s{sLEFT}, 0');
    mf, fill = build([(2, 1, 0), (3, 2, 1)], lambda n: ('K', 4, 1, 1), lambda n: ('V', 4, 0, 1),
                     lambda k: kread(2, k, ('K', 4, 2, 1)), extra)
    fill.setdefault(len(mf)-1, []).append('s_cbranch_scc1 A_loop')
    interleave(p, mf, fill)
    p.loop_end()
    for f in range(PF):
        for r in vread(14, f, ('V', 4, 7, 0)): emit(p, r)
    mf, fill = build([(None, 15, 14), (None, None, 15)], None, lambda n: ('V', 4, 7, 0), lambda k: [])
    interleave(p, mf, fill)
    ts.stamp(p)
    for qt in range(2):
        l = vL + 2*qt
        p(f'v_add_f32 v{l}, v{l}, v{l+1}\nv_mov_b32 v{l+1}, v{l}\ns_nop 1\nv_permlane32_swap_b32 v{l}, v{l+1}\ns_nop 1\nv_add_f32 v{l}, v{l}, v{l+1}')
    p(f'v_rcp_f32 v{vL}, v{vL}\nv_rcp_f32 v{vL+2}, v{vL+2}')
    t = 32
    p(f's_lshl_b32 s{sT}, s{sRB}, 4\ns_lshl_b32 s{sT+1}, s{sW}, 2\ns_add_u32 s{sT}, s{sT}, s{sT+1}\ns_lshl_b32 s{sT}, s{sT}, 17\ns_lshl_b32 s{sT+1}, s{sCB}, 12\ns_add_u32 s{sT}, s{sT}, s{sT+1}')
    p(f'v_bfe_u32 v{t}, v1, 4, 1\nv_lshlrev_b32 v{t}, 17, v{t}\nv_lshrrev_b32 v{t+1}, 5, v1\nv_lshlrev_b32 v{t+1}, 8, v{t+1}\nv_and_b32 v{t+2}, 15, v1\nv_lshlrev_b32 v{t+2}, 4, v{t+2}')
    p(f'v_add3_u32 v{t}, v{t}, v{t+1}, v{t+2}\nv_add_u32 v4, s{sT}, v{t}\nv_add_u32 v5, 0x40000, v4')
    p(f'v_mov_b32 v{vL+1}, v{vL}\nv_mov_b32 v{vL+3}, v{vL+2}')
    n = 0
    for dt in range(4):
        for qt in range(2):
            o = (dt*2+qt)*16
            for half in range(2):
                x = 128 + 8*(n % 4); d = 64 + 4*(n % 8); n += 1
                for i in range(8): p(f'v_accvgpr_read_b32 v{x+i}, a{o+8*half+i}')
                for i in range(0, 8, 2): p(f'v_pk_mul_f32 v[{x+i}:{x+i+1}], v[{x+i}:{x+i+1}], v[{vL+2*qt}:{vL+2*qt+1}]')
                for i in range(0, 8, 2): p(f'v_cvt_pk_bf16_f32 v{d+i//2}, v{x+i}, v{x+i+1}')
                p(f'buffer_store_dwordx4 v[{d}:{d+3}], v{4+qt}, s[{S_O}:{S_O+3}], 0 offen offset:{dt*1024 + half*512}')
    ts.stamp(p)
    ts.dump(p, 6)
    p('AB_end:\ns_endpgm')
    autowait(p); check(p, 'ab')
    return p


def gen_c(cfg):
    p = Prog(); ts = TS(cfg.ts, 1 << 18)
    S_A, S_W, S_X, S_OUT, S_G, S_FL = 8, 12, 16, 20, 24, 28
    sW, sGM, sTB, sCB, sKW, sKA, sCNT, sMW = 36, 37, 38, 39, 40, 41, 42, 43
    sT = 50; sP = 60
    p('s_cmp_ge_u32 s2, 256\ns_cbranch_scc1 C_end')
    p(f's_load_dwordx2 s[{sP}:{sP+1}], s[0:1], 32\ns_load_dwordx2 s[{sP+2}:{sP+3}], s[0:1], 64\ns_load_dwordx2 s[6:7], s[0:1], 88')
    p(f's_load_dwordx2 s[{sP+4}:{sP+5}], s[0:1], 0\ns_load_dwordx2 s[{sP+6}:{sP+7}], s[0:1], 72')
    p(f'v_lshrrev_b32 v2, 6, v0\nv_and_b32 v1, 63, v0\nv_readfirstlane_b32 s{sW}, v2')
    if cfg.cmap == 'pair':
        p(f's_lshr_b32 s{sGM}, s2, 7\ns_and_b32 s{sT}, s2, 7\ns_bfe_u32 s{sT+1}, s2, 0x40003')
        p(f's_lshr_b32 s{sTB}, s{sT}, 1\ns_lshl_b32 s{sTB}, s{sTB}, 2\ns_and_b32 s{sT+2}, s{sT+1}, 3\ns_add_u32 s{sTB}, s{sTB}, s{sT+2}')
        p(f's_and_b32 s{sCB}, s{sT}, 1\ns_lshl_b32 s{sCB}, s{sCB}, 2\ns_lshr_b32 s{sT+2}, s{sT+1}, 2\ns_add_u32 s{sCB}, s{sCB}, s{sT+2}')
    elif cfg.cmap == 'split':
        p(f's_bfe_u32 s{sGM}, s2, 0x10002\ns_bfe_u32 s{sTB}, s2, 0x10001\ns_lshl_b32 s{sTB}, s{sTB}, 3\ns_bfe_u32 s{sT}, s2, 0x30003\ns_add_u32 s{sTB}, s{sTB}, s{sT}')
        p(f's_and_b32 s{sCB}, s2, 1\ns_lshl_b32 s{sCB}, s{sCB}, 2\ns_lshr_b32 s{sT}, s2, 6\ns_add_u32 s{sCB}, s{sCB}, s{sT}')
    else:
        p(f's_bfe_u32 s{sGM}, s2, 0x10002\ns_and_b32 s{sTB}, s2, 3\ns_lshl_b32 s{sTB}, s{sTB}, 2\ns_bfe_u32 s{sT}, s2, 0x20003\ns_add_u32 s{sTB}, s{sTB}, s{sT}')
        p(f's_lshr_b32 s{sCB}, s2, 5')
    ts.stamp(p)
    p('s_waitcnt lgkmcnt(0)')
    p(f's_cmp_eq_u32 s{sGM}, 1')
    p(f's_cselect_b32 s{S_W}, s{sP}, s{sP+2}\ns_cselect_b32 s{S_W+1}, s{sP+1}, s{sP+3}')
    p(f's_mov_b32 s{sT}, {8<<20}\ns_cselect_b32 s{S_W+2}, s{sT}, {7<<20}\ns_mov_b32 s{S_W+3}, 0x20000')
    p(f's_mov_b32 s{sT}, {WS_O}\ns_cselect_b32 s{sT}, s{sT}, {WS_H}')
    p(f's_mov_b32 s{sT+1}, {16<<20}\ns_cselect_b32 s{S_A+2}, s{sT+1}, {14<<20}')
    p(f's_mov_b32 s{sT+1}, {128*1024}\ns_cselect_b32 s{sT+1}, s{sT+1}, {112*1024}')
    p(f's_cselect_b32 s{sCNT}, 8, 7')
    p(f's_add_u32 s{S_A}, s6, s{sT}\ns_addc_u32 s{S_A+1}, s7, 0\ns_mov_b32 s{S_A+3}, 0x20000')
    srd(p, S_X, sP+4, 0, 4 << 20); srd(p, S_OUT, sP+6, 0, 4 << 20)
    srd(p, S_G, 6, WS_G, 4 << 20); srd(p, S_FL, 6, WS_FL, 128*128)
    vAct, vD, vTr, vA, vC, vX, vG = 4, 8, 16, 32, 64, 128, 160
    RA, RB = 8, 16
    t = 192
    p(f's_lshl_b32 s{sT}, s{sTB}, 3\ns_lshl_b32 s{sT+2}, s{sW}, 1\ns_add_u32 s{sT}, s{sT}, s{sT+2}\ns_mul_i32 s{sT+2}, s{sT}, s{sT+1}')
    p(f'v_lshlrev_b32 v{t}, 4, v1\nv_add_u32 v{vAct}, s{sT+2}, v{t}\nv_add_u32 v{vAct+1}, s{sT+1}, v{vAct}')
    p(f's_lshl_b32 s{sT+2}, s{sW}, 16\ns_lshl_b32 s{sT+3}, s{sCB}, 8\ns_add_u32 s{sT+2}, s{sT+2}, s{sT+3}')
    p(f'v_lshrrev_b32 v{t}, 4, v1\nv_and_b32 v{t+1}, 15, v1\nv_lshlrev_b32 v{t+2}, 1, v{t}\nv_xor_b32 v{t+1}, v{t+1}, v{t+2}')
    p(f'v_lshlrev_b32 v{t}, 11, v{t}\nv_add_u32 v{t}, s{sT+2}, v{t}')
    for pc in range(8):
        sw = (pc & 1) | ((pc & 2) << 1) | ((pc & 4) >> 1)
        ko = 4*sw*2048 - 1024*(pc % 4); kh = 4*pc*2048 - 1024*(pc % 4)
        p(f's_cmp_eq_u32 s{sGM}, 1\ns_mov_b32 s{sT+3}, {ko}\ns_cselect_b32 s{sT+3}, s{sT+3}, {kh}')
        p(f'v_xor_b32 v{t+2}, {8*(pc & 1)}, v{t+1}\nv_lshl_add_u32 v{t+2}, v{t+2}, 4, v{t}\nv_add_u32 v{vD+pc}, s{sT+3}, v{t+2}')
    p(f'v_lshrrev_b32 v{t}, 2, v1\nv_and_b32 v{t+1}, 7, v{t}\nv_lshlrev_b32 v{t}, 8, v{t}\nv_and_b32 v{t+2}, 3, v1\nv_lshl_add_u32 v{t}, v{t+2}, 3, v{t}')
    for tt in range(8):
        p(f'v_xor_b32 v{t+2}, {tt}, v{t+1}\nv_lshl_add_u32 v{vTr+tt}, v{t+2}, 5, v{t}\nv_add_u32 v{vTr+8+tt}, 0x10000, v{vTr+tt}')
    p(f's_lshl_b32 s{sMW}, s{sW}, 13\ns_mov_b32 s{sKW}, 0\ns_mov_b32 s{sKA}, 0')
    SLOT = 32768; D = 2
    def dma(pc, tile, stride): return (f'buffer_load_dwordx4 v{vD+pc}, s[{S_W}:{S_W+3}], s{sKW} offen offset:{1024*(pc%4)} lds', ('W', 4, tile, stride))
    def act(sub, b):
        r = 8*(sub % RB) + 4*b
        return f'buffer_load_dwordx4 a[{r}:{r+3}], v{vAct+b}, s[{S_A}:{S_A+3}], s{sKA} offen offset:{1024*(sub % 4)}'
    ad = cfg.cad
    def vm_sched(step, g):
        s, t = divmod(g, 8); sub = 4*step + s
        d = None; a = None
        if g % cfg.cdstr == 1 and g // cfg.cdstr < 8: d = g // cfg.cdstr
        if t in (3, 6): a = (sub + ad, 0 if t == 3 else 1)
        return d, a
    first = -((ad + 3)//4) if ad > 8 else -2
    for step in range(first, 0):
        for g in range(32):
            d, a = vm_sched(step, g)
            if d is not None and step + D >= 0:
                if d % 4 == 0: p(f's_add_u32 m0, s{sMW}, {(step+D)*SLOT + 1024*d}\ns_nop 0')
                emit(p, dma(d, step + D, 0))
                if d == 7: p(f's_add_u32 s{sKW}, s{sKW}, {128*2048}')
            if a is not None and a[0] >= 0:
                p(act(*a))
                if a[1] == 1 and a[0] % 4 == 3: p(f's_add_u32 s{sKA}, s{sKA}, 4096')
    for i in range(64): p(f'v_mov_b32 v{vC+i}, 0')
    P = cfg.cP
    def trr(G, tile0, stride):
        step, g = divmod(G, 32); s, t = divmod(g, 8)
        r = vA + 4*(G % RA); a = vTr + t + (8 if step % 4 >= 2 else 0)
        off = (step % 2)*SLOT + s*8192
        tag = ('W', 4, tile0 + step, stride)
        return [(f'ds_read_b64_tr_b16 v[{r}:{r+1}], v{a} offset:{off}', tag),
                (f'ds_read_b64_tr_b16 v[{r+2}:{r+3}], v{a} offset:{off + 4096}', tag)]
    p.need(('W', 4, 0, 0)); p('s_barrier')
    for G in range(P):
        for f in trr(G, 0, 0): emit(p, f)
    ts.stamp(p)
    p.loop_begin('C_loop', 8)
    mf = []; fill = {}
    def F(i, x): fill.setdefault(i, []).append(x)
    NGB = 128
    for G in range(NGB):
        step, g = divmod(G, 32); s, t = divmod(g, 8); sub = 4*step + s
        for b in range(2):
            ra = vA + 4*(G % RA); rb = 8*(sub % RB) + 4*b; c = vC + (t*2+b)*4
            mf.append(f'v_mfma_f32_16x16x32_bf16 v[{c}:{c+3}], v[{ra}:{ra+3}], a[{rb}:{rb+3}], v[{c}:{c+3}]')
        i0 = 2*G; Gn = G + P
        if Gn % 32 == 0:
            stepn = Gn // 32
            F(i0, lambda p, stepn=stepn: (p.need(('W', 4, stepn, 4)), p('s_barrier')))
        r0, r1 = trr(Gn % NGB, (Gn // NGB)*4, 4)
        F(i0, r0); F(i0+1, r1)
        d, a = vm_sched(step, g)
        if d is not None:
            if d % 4 == 0: F(i0-1, f's_add_u32 m0, s{sMW}, {((step+D) % 4)*SLOT + 1024*d}')
            F(i0, dma(d, step + D, 4))
            if d == 7: F(i0+1, f's_add_u32 s{sKW}, s{sKW}, {128*2048}')
        if a is not None:
            F(i0+1, act(*a))
            if a[1] == 1 and a[0] % 4 == 3: F(i0+2, f's_add_u32 s{sKA}, s{sKA}, 4096')
    F(len(mf)-2, f's_sub_u32 s{sCNT}, s{sCNT}, 1'); F(len(mf)-2, f's_cmp_lg_u32 s{sCNT}, 0')
    F(len(mf)-1, 's_cbranch_scc1 C_loop')
    interleave(p, mf, fill)
    p.loop_end()
    p('s_waitcnt lgkmcnt(0)')
    ts.stamp(p)
    p(f's_lshl_b32 s{sT}, s{sTB}, 3\ns_add_u32 s{sT}, s{sT}, s{sCB}')
    p(f's_lshl_b32 s{sT+1}, s{sT}, 15\ns_lshl_b32 s{sT+2}, s{sW}, 13\ns_add_u32 s{sT+1}, s{sT+1}, s{sT+2}')
    p(f'v_lshlrev_b32 v8, 4, v1\nv_add_u32 v8, s{sT+1}, v8\nv_add_u32 v9, 0x1000, v8')
    p(f's_lshl_b32 s{sT}, s{sT}, 7\nv_mov_b32 v10, s{sT}')
    p(f's_cmp_eq_u32 s{sGM}, 1\ns_cbranch_scc1 C_s_epi')
    p(f's_mov_b32 s{sT+3}, {f2u(-math.log2(math.e)):#x}')
    for i2 in range(8):
        c = vC + 8*i2; tt = 32 + 8*(i2 % 2); d = vG + 4*i2
        for r in range(8): p(f'v_mul_f32 v{tt+r}, s{sT+3}, v{c+r}')
        for r in range(8): p(f'v_exp_f32 v{tt+r}, v{tt+r}')
        for r in range(8): p(f'v_add_f32 v{tt+r}, 1.0, v{tt+r}')
        for r in range(8): p(f'v_rcp_f32 v{tt+r}, v{tt+r}')
        for r in range(8): p(f'v_mul_f32 v{tt+r}, v{tt+r}, v{c+r}')
        for r in range(4): p(f'v_cvt_pk_bf16_f32 v{d+r}, v{tt+2*r}, v{tt+2*r+1}')
        p(f'buffer_store_dwordx4 v[{d}:{d+3}], v{8 + i2//4}, s[{S_G}:{S_G+3}], 0 offen offset:{1024*(i2 % 4)} sc1')
    p('s_waitcnt vmcnt(0)\ns_barrier')
    p(f's_cmp_eq_u32 s{sW}, 0\ns_cbranch_scc0 C_fin')
    p(f'v_mov_b32 v11, 1\nbuffer_store_dword v11, v10, s[{S_FL}:{S_FL+3}], 0 offen sc1')
    p('s_branch C_fin')
    p('C_s_epi:')
    p(f's_lshl_b32 s{sT+1}, s{sTB}, 7\ns_lshl_b32 s{sT+2}, s{sW}, 5\ns_add_u32 s{sT+1}, s{sT+1}, s{sT+2}\ns_lshl_b32 s{sT+1}, s{sT+1}, 11\ns_lshl_b32 s{sT+2}, s{sCB}, 8\ns_add_u32 s{sT+1}, s{sT+1}, s{sT+2}')
    p(f'v_and_b32 v12, 15, v1\nv_lshlrev_b32 v12, 11, v12\nv_add_u32 v12, s{sT+1}, v12\nv_lshrrev_b32 v13, 4, v1')
    p(f'v_lshl_add_u32 v14, v13, 3, v12\nv_add_u32 v15, 0x8000, v14')
    for tt in range(8):
        for b in range(2):
            r = vX + (tt*2+b)*2
            p(f'buffer_load_dwordx2 v[{r}:{r+1}], v{14+b}, s[{S_X}:{S_X+3}], 0 offen offset:{32*tt}')
    p(f'v_and_b32 v16, 1, v13\nv_lshlrev_b32 v16, 5, v16\nv_lshrrev_b32 v17, 1, v13\nv_lshlrev_b32 v17, 4, v17\nv_add3_u32 v16, v16, v17, v12\nv_add_u32 v17, 0x8000, v16')
    p(f's_cmp_eq_u32 s{sW}, 0\ns_cbranch_scc0 C_got')
    p('C_poll:')
    p(f'buffer_load_dword v11, v10, s[{S_FL}:{S_FL+3}], 0 offen sc1\ns_waitcnt vmcnt(0)\nv_readfirstlane_b32 s{sT+2}, v11\ns_nop 0\ns_cmp_eq_u32 s{sT+2}, 1\ns_cbranch_scc1 C_got\ns_sleep 2\ns_branch C_poll')
    p('C_got:\ns_barrier')
    for i2 in range(8):
        d = vG + 4*i2
        p(f'buffer_load_dwordx4 v[{d}:{d+3}], v{8 + i2//4}, s[{S_G}:{S_G+3}], 0 offen offset:{1024*(i2 % 4)} sc1')
    p(f's_mov_b32 s{sT+3}, 0xffff0000')
    for m in range(4):
        for b in range(2):
            o = 192 + 4*((m*2+b) % 4)
            for h in range(2):
                tt = 2*m + h; c = vC + (tt*2+b)*4; xr = vX + (tt*2+b)*2; gr = vG + (tt*2+b)*2
                for q in range(2):
                    p(f'v_lshlrev_b32 v32, 16, v{gr+q}\nv_and_b32 v33, s{sT+3}, v{gr+q}\nv_lshlrev_b32 v34, 16, v{xr+q}\nv_and_b32 v35, s{sT+3}, v{xr+q}')
                    p(f'v_fmac_f32 v34, v32, v{c+2*q}\nv_fmac_f32 v35, v33, v{c+2*q+1}\nv_cvt_pk_bf16_f32 v{o+2*h+q}, v34, v35')
            p(f's_nop 1\nv_permlane16_swap_b32 v{o}, v{o+2}\nv_permlane16_swap_b32 v{o+1}, v{o+3}')
            p(f'buffer_store_dwordx4 v[{o}:{o+3}], v{16+b}, s[{S_OUT}:{S_OUT+3}], 0 offen offset:{64*m}')
    p('C_fin:')
    ts.stamp(p)
    ts.dump(p, 6)
    p('C_end:\ns_endpgm')
    autowait(p); check(p, 'c')
    return p


WS_P = 64 << 20
def gen_c2(cfg):
    p = Prog(); ts = TS(cfg.ts, 1 << 18)
    S_A, S_W, S_X, S_OUT, S_G, S_FL, S_P = 8, 12, 16, 20, 24, 28, 32
    sW, sGM, sRB, sCB, sKW, sKA, sCNT, sMW, sKH, sTG = 36, 37, 38, 39, 40, 41, 42, 43, 44, 45
    sT = 50; sP = 60
    p('s_cmp_ge_u32 s2, 256\ns_cbranch_scc1 C_end')
    p(f's_load_dwordx2 s[{sP}:{sP+1}], s[0:1], 32\ns_load_dwordx2 s[{sP+2}:{sP+3}], s[0:1], 64\ns_load_dwordx2 s[6:7], s[0:1], 88')
    p(f's_load_dwordx2 s[{sP+4}:{sP+5}], s[0:1], 0\ns_load_dwordx2 s[{sP+6}:{sP+7}], s[0:1], 72')
    p(f'v_lshrrev_b32 v2, 6, v0\nv_and_b32 v1, 63, v0\nv_readfirstlane_b32 s{sW}, v2')
    p(f's_bfe_u32 s{sGM}, s2, 0x10002\ns_bfe_u32 s{sKH}, s2, 0x10001\ns_and_b32 s{sRB}, s2, 1\ns_lshl_b32 s{sRB}, s{sRB}, 2\ns_bfe_u32 s{sT}, s2, 0x20003\ns_add_u32 s{sRB}, s{sRB}, s{sT}\ns_lshr_b32 s{sCB}, s2, 5')
    ts.stamp(p)
    p('s_waitcnt lgkmcnt(0)')
    p(f's_cmp_eq_u32 s{sGM}, 1')
    p(f's_cselect_b32 s{S_W}, s{sP}, s{sP+2}\ns_cselect_b32 s{S_W+1}, s{sP+1}, s{sP+3}')
    p(f's_mov_b32 s{sT}, {8<<20}\ns_cselect_b32 s{S_W+2}, s{sT}, {7<<20}\ns_mov_b32 s{S_W+3}, 0x20000')
    p(f's_mov_b32 s{sT}, {WS_O}\ns_cselect_b32 s{sT}, s{sT}, {WS_H}')
    p(f's_mov_b32 s{sT+1}, {16<<20}\ns_cselect_b32 s{S_A+2}, s{sT+1}, {14<<20}')
    p(f's_mov_b32 s{sT+1}, {128*1024}\ns_cselect_b32 s{sT+1}, s{sT+1}, {112*1024}')
    p(f's_cselect_b32 s{sCNT}, 8, 7')
    p(f's_add_u32 s{S_A}, s6, s{sT}\ns_addc_u32 s{S_A+1}, s7, 0\ns_mov_b32 s{S_A+3}, 0x20000')
    p(f's_mul_i32 s{sKA}, s{sKH}, s{sT+1}\ns_lshl_b32 s{sKW}, s{sKA}, 5\ns_lshr_b32 s{sKA}, s{sKA}, 1')
    srd(p, S_X, sP+4, 0, 4 << 20); srd(p, S_OUT, sP+6, 0, 4 << 20)
    srd(p, S_G, 6, WS_G, 4 << 20); srd(p, S_FL, 6, WS_FL, 512*128); srd(p, S_P, 6, WS_P, 16 << 20)
    vAct, vD, vTr, vA, vC = 4, 8, 16, 32, 128
    RA, RB = 8, 8
    t = 64
    p(f's_lshl_b32 s{sT}, s{sRB}, 4\ns_lshl_b32 s{sT+2}, s{sW}, 2\ns_add_u32 s{sT}, s{sT}, s{sT+2}\ns_mul_i32 s{sT+2}, s{sT}, s{sT+1}')
    p(f'v_lshlrev_b32 v{t}, 4, v1\nv_add_u32 v{vAct}, s{sT+2}, v{t}')
    for b in range(1, 4): p(f'v_add_u32 v{vAct+b}, s{sT+1}, v{vAct+b-1}')
    p(f's_lshl_b32 s{sT+2}, s{sW}, 16\ns_lshl_b32 s{sT+3}, s{sCB}, 8\ns_add_u32 s{sT+2}, s{sT+2}, s{sT+3}')
    p(f'v_lshrrev_b32 v{t}, 4, v1\nv_and_b32 v{t+1}, 15, v1\nv_lshlrev_b32 v{t+2}, 1, v{t}\nv_xor_b32 v{t+1}, v{t+1}, v{t+2}')
    p(f'v_lshlrev_b32 v{t}, 11, v{t}\nv_add_u32 v{t}, s{sT+2}, v{t}')
    for pc in range(8):
        sw = (pc & 1) | ((pc & 2) << 1) | ((pc & 4) >> 1)
        ko = 4*sw*2048 - 1024*(pc % 4); kh = 4*pc*2048 - 1024*(pc % 4)
        p(f's_cmp_eq_u32 s{sGM}, 1\ns_mov_b32 s{sT+3}, {ko}\ns_cselect_b32 s{sT+3}, s{sT+3}, {kh}')
        p(f'v_xor_b32 v{t+2}, {8*(pc & 1)}, v{t+1}\nv_lshl_add_u32 v{t+2}, v{t+2}, 4, v{t}\nv_add_u32 v{vD+pc}, s{sT+3}, v{t+2}')
    p(f's_lshl_b32 s{sT+3}, s{sKH}, 2')
    p(f'v_lshrrev_b32 v{t}, 2, v1\nv_and_b32 v{t+1}, 7, v{t}\nv_xor_b32 v{t+1}, s{sT+3}, v{t+1}\nv_lshlrev_b32 v{t}, 8, v{t}\nv_and_b32 v{t+2}, 3, v1\nv_lshl_add_u32 v{t}, v{t+2}, 3, v{t}')
    for tt in range(8):
        p(f'v_xor_b32 v{t+2}, {tt}, v{t+1}\nv_lshl_add_u32 v{vTr+tt}, v{t+2}, 5, v{t}')
    p(f's_lshl_b32 s{sMW}, s{sW}, 13')
    SLOT = 32768; D = 2
    def dma(pc, tile, stride): return (f'buffer_load_dwordx4 v{vD+pc}, s[{S_W}:{S_W+3}], s{sKW} offen offset:{1024*(pc%4)} lds', ('W', 4, tile, stride))
    def act(sub, b):
        r = 16*(sub % RB) + 4*b
        return f'buffer_load_dwordx4 a[{r}:{r+3}], v{vAct+b}, s[{S_A}:{S_A+3}], s{sKA} offen offset:{1024*(sub % 4)}'
    ad = cfg.cad
    def vm_sched(step, g):
        s, t = divmod(g, 8); sub = 4*step + s
        d = None; a = None
        if g % cfg.cdstr == 1 and g // cfg.cdstr < 8: d = g // cfg.cdstr
        if t % 2 == 0: a = (sub + ad, t // 2)
        return d, a
    sPS, sPR, sGO = 46, 47, 48
    vX, vG, vR, vO = 64, 96, 224, 28
    sID, sME = sT, sT+1
    p(f's_lshl_b32 s{sID}, s{sRB}, 3\ns_add_u32 s{sID}, s{sID}, s{sCB}\ns_lshl_b32 s{sID}, s{sID}, 1\ns_add_u32 s{sID}, s{sID}, s{sKH}')
    p(f's_lshl_b32 s{sME}, s{sGM}, 7\ns_add_u32 s{sME}, s{sME}, s{sID}')
    p(f's_lshl_b32 s{sT+3}, s{sW}, 13\ns_lshl_b32 s{sPS}, s{sME}, 15\ns_add_u32 s{sPS}, s{sPS}, s{sT+3}\ns_xor_b32 s{sPR}, s{sPS}, 0x8000')
    p(f's_lshl_b32 s{sGO}, s{sID}, 15\ns_add_u32 s{sGO}, s{sGO}, s{sT+3}')
    p(f'v_lshlrev_b32 v24, 4, v1\nv_add_u32 v25, 0x1000, v24')
    p(f's_lshl_b32 s{sT+6}, s{sME}, 7\nv_mov_b32 v26, s{sT+6}\ns_xor_b32 s{sT+6}, s{sT+6}, 128\nv_mov_b32 v27, s{sT+6}')
    p(f's_add_u32 s{sT+7}, s{sID}, 256\ns_lshl_b32 s{sT+7}, s{sT+7}, 7\nv_mov_b32 v3, s{sT+7}')
    p(f's_cmp_eq_u32 s{sGM}, 1\ns_cselect_b32 s{sT+6}, s{sT+7}, s{sT+6}\ns_cselect_b32 s{S_X+2}, s{S_X+2}, 0')
    p(f'v_writelane_b32 v27, s{sT+6}, 1')
    p(f's_lshl_b32 s{sT+8}, s{sRB}, 8\ns_lshl_b32 s{sT+9}, s{sW}, 6\ns_add_u32 s{sT+8}, s{sT+8}, s{sT+9}\ns_lshl_b32 s{sT+8}, s{sT+8}, 11')
    p(f's_lshl_b32 s{sT+9}, s{sCB}, 8\ns_add_u32 s{sT+8}, s{sT+8}, s{sT+9}\ns_lshl_b32 s{sT+9}, s{sKH}, 7\ns_add_u32 s{sT+8}, s{sT+8}, s{sT+9}')
    p(f'v_and_b32 v100, 15, v1\nv_lshlrev_b32 v100, 11, v100\nv_add_u32 v100, s{sT+8}, v100\nv_lshrrev_b32 v101, 4, v1')
    p(f'v_and_b32 v{vO}, 1, v101\nv_lshlrev_b32 v{vO}, 5, v{vO}\nv_lshrrev_b32 v{vO+1}, 1, v101\nv_lshlrev_b32 v{vO+1}, 4, v{vO+1}\nv_add3_u32 v{vO}, v{vO}, v{vO+1}, v100')
    for b in range(1, 4): p(f'v_add_u32 v{vO+b}, 0x8000, v{vO+b-1}')
    for step in range(-2, 0):
        for g in range(32):
            d, a = vm_sched(step, g)
            if a is not None and a[0] >= 0:
                p(act(*a))
                if a[1] == 3 and a[0] % 4 == 3: p(f's_add_u32 s{sKA}, s{sKA}, 4096')
            if d is not None and step + D >= 0:
                if d % 4 == 0: p(f's_add_u32 m0, s{sMW}, {(step+D)*SLOT + 1024*d}\ns_nop 0')
                emit(p, dma(d, step + D, 0))
                if d == 7: p(f's_add_u32 s{sKW}, s{sKW}, {128*2048}')
    for m in range(2):
        for b in range(4):
            r = vX + (m*4+b)*4
            p(f'buffer_load_dwordx4 v[{r}:{r+3}], v{vO+b}, s[{S_X}:{S_X+3}], 0 offen offset:{64*m}')
    for i in range(128): p(f'v_mov_b32 v{vC+i}, 0')
    p(f's_add_u32 s{sMW}, s{sMW}, 0x10000')
    P = cfg.cP
    NGB = 64
    def trr(G, tile0, stride):
        step, g = divmod(G, 32); s, t = divmod(g, 8)
        r = vA + 4*(G % RA); a = vTr + t
        off = (step % 2)*SLOT + s*8192
        tag = ('W', 4, tile0 + step, stride)
        return [(f'ds_read_b64_tr_b16 v[{r}:{r+1}], v{a} offset:{off}', tag),
                (f'ds_read_b64_tr_b16 v[{r+2}:{r+3}], v{a} offset:{off + 4096}', tag)]
    p.need(('W', 4, 0, 0)); p('s_barrier')
    for G in range(P):
        for f in trr(G, 0, 0): emit(p, f)
    p(f's_mov_b32 s{sTG}, 0x10000')
    ts.stamp(p)
    p.loop_begin('C_loop', 8)
    mf = []; hi = {}; lo = {}
    def H(i, x): hi.setdefault(i, []).append(x)
    def L(i, x): lo.setdefault(i, []).append(x)
    for G in range(NGB):
        step, g = divmod(G, 32); s, t = divmod(g, 8); sub = 4*step + s
        for b in range(4):
            ra = vA + 4*(G % RA); rb = 16*(sub % RB) + 4*b; c = vC + (t*4+b)*4
            mf.append(f'v_mfma_f32_16x16x32_bf16 v[{c}:{c+3}], v[{ra}:{ra+3}], a[{rb}:{rb+3}], v[{c}:{c+3}]')
        i0 = 4*G; Gn = G + P
        if Gn % 32 == 0:
            stepn = Gn // 32
            H(i0-1, lambda p, stepn=stepn: (p.need(('W', 4, stepn, 2)), p('s_barrier')))
        r0, r1 = trr(Gn % NGB, (Gn // NGB)*2, 2)
        H(i0, r0); H(i0+1, r1)
        if NGB - 8 <= Gn < NGB: H(i0+2, f'v_xor_b32 v{vTr + Gn % 8}, s{sTG}, v{vTr + Gn % 8}')
        d, a = vm_sched(step, g)
        if a is not None:
            L(i0, act(*a))
            if a[1] == 3 and a[0] % 4 == 3: L(i0, f's_add_u32 s{sKA}, s{sKA}, 4096')
        if d is not None:
            if d % 4 == 0: L(i0, f's_add_u32 m0, s{sMW}, {(step % 2)*SLOT + 1024*d}'); L(i0, m0gap)
            L(i0, dma(d, step + D, 2))
            if d == 7:
                L(i0, f's_add_u32 s{sKW}, s{sKW}, {128*2048}')
                if step == 1: L(i0, f's_xor_b32 s{sMW}, s{sMW}, 0x10000')
    H(len(mf)-3, f's_sub_u32 s{sCNT}, s{sCNT}, 1'); H(len(mf)-2, f's_cmp_lg_u32 s{sCNT}, 0')
    H(len(mf)-1, 's_cbranch_scc1 C_loop')
    fill = spread(hi, lo, len(mf), cfg.cap, 16, cost=lambda i: 1 if i % 4 == 3 else 0)
    fix_m0(fill, len(mf)); chk_tail(fill, len(mf))
    interleave(p, mf, fill)
    p.loop_end()
    p('s_waitcnt lgkmcnt(0)')
    ts.stamp(p)
    for i in range(8):
        c = vC + 64 + 8*i; d = vC + 64 + 4*i
        for r in range(4): p(f'v_cvt_pk_bf16_f32 v{d+r}, v{c+2*r}, v{c+2*r+1}')
        p(f'buffer_store_dwordx4 v[{d}:{d+3}], v{24 + i//4}, s[{S_P}:{S_P+3}], s{sPS} offen offset:{1024*(i%4)} sc1')
    p('s_waitcnt vmcnt(0)\ns_barrier')
    ts.stamp(p)
    p(f's_cmp_eq_u32 s{sW}, 0\ns_cbranch_scc0 C_got')
    p(f'v_mov_b32 v14, 1\nbuffer_store_dword v14, v26, s[{S_FL}:{S_FL+3}], 0 offen sc1')
    p('C_poll:')
    p(f'buffer_load_dword v14, v27, s[{S_FL}:{S_FL+3}], 0 offen sc1\ns_waitcnt vmcnt(0)\nv_cmp_ne_u32 vcc, 1, v14\ns_nop 1\ns_cbranch_vccz C_got\ns_sleep 1\ns_branch C_poll')
    p('C_got:\ns_barrier')
    ts.stamp(p)
    for i in range(8):
        c = vR + 4*i
        p(f'buffer_load_dwordx4 v[{c}:{c+3}], v{24 + i//4}, s[{S_P}:{S_P+3}], s{sPR} offen offset:{1024*(i%4)} sc1')
    p(f's_mov_b32 s{sT+3}, 0xffff0000')
    if cfg.ts: p('s_waitcnt vmcnt(0)')
    ts.stamp(p)
    p(f's_cmp_eq_u32 s{sGM}, 1\ns_cbranch_scc1 C_s_epi')
    p(f's_mov_b32 s{sT+4}, {f2u(-math.log2(math.e)):#x}')
    def addpart(i2):
        c = vC + 8*i2; rr = vR + 4*i2; tt = 32 + 8*(i2 % 2)
        for r in range(4): p(f'v_lshlrev_b32 v{tt+2*r}, 16, v{rr+r}\nv_and_b32 v{tt+2*r+1}, s{sT+3}, v{rr+r}')
        for r in range(0, 8, 2): p(f'v_pk_add_f32 v[{c+r}:{c+r+1}], v[{c+r}:{c+r+1}], v[{tt+r}:{tt+r+1}]')
    for i2 in range(8):
        c = vC + 8*i2; tt = 32 + 8*(i2 % 2); d = vG + 4*i2
        addpart(i2)
        for r in range(8): p(f'v_mul_f32 v{tt+r}, s{sT+4}, v{c+r}')
        for r in range(8): p(f'v_exp_f32 v{tt+r}, v{tt+r}')
        for r in range(0, 8, 2): p(f'v_pk_add_f32 v[{tt+r}:{tt+r+1}], v[{tt+r}:{tt+r+1}], 1.0 op_sel_hi:[1,0]')
        for r in range(8): p(f'v_rcp_f32 v{tt+r}, v{tt+r}')
        for r in range(0, 8, 2): p(f'v_pk_mul_f32 v[{tt+r}:{tt+r+1}], v[{tt+r}:{tt+r+1}], v[{c+r}:{c+r+1}]')
        for r in range(4): p(f'v_cvt_pk_bf16_f32 v{d+r}, v{tt+2*r}, v{tt+2*r+1}')
        p(f'buffer_store_dwordx4 v[{d}:{d+3}], v{24 + i2//4}, s[{S_G}:{S_G+3}], s{sGO} offen offset:{1024*(i2 % 4)} sc1')
    p('s_waitcnt vmcnt(0)\ns_barrier')
    p(f's_cmp_eq_u32 s{sW}, 0\ns_cbranch_scc0 C_fin')
    p(f'v_mov_b32 v14, 1\nbuffer_store_dword v14, v3, s[{S_FL}:{S_FL+3}], 0 offen sc1')
    p('s_branch C_fin')
    p('C_s_epi:')
    for i2 in range(8):
        d = vG + 4*i2
        p(f'buffer_load_dwordx4 v[{d}:{d+3}], v{24 + i2//4}, s[{S_G}:{S_G+3}], s{sGO} offen offset:{1024*(i2 % 4)} sc1')
    p('s_waitcnt vmcnt(8)')
    for i2 in range(8): addpart(i2)
    for m in range(2):
        for b in range(4):
            o = 48 + 4*((m*4+b) % 4); xr = vX + (m*4+b)*4
            c0 = vC + ((2*m)*4+b)*4; c1 = vC + ((2*m+1)*4+b)*4
            for h in range(2):
                c = (c0, c1)[h]; gr = vG + ((2*m+h)*4+b)*2
                for q in range(2):
                    p(f'v_lshlrev_b32 v{32+4*h+2*q}, 16, v{gr+q}\nv_and_b32 v{33+4*h+2*q}, s{sT+3}, v{gr+q}')
                for q in range(2):
                    p(f'v_pk_mul_f32 v[{c+2*q}:{c+2*q+1}], v[{32+4*h+2*q}:{33+4*h+2*q}], v[{c+2*q}:{c+2*q+1}]')
            for q in range(4): p(f'v_lshlrev_b32 v{40+2*q}, 16, v{xr+q}\nv_and_b32 v{41+2*q}, s{sT+3}, v{xr+q}')
            for r in range(4): p(f'v_permlane16_swap_b32 v{c0+r}, v{c1+r}')
            p('s_nop 0')
            for q in range(4):
                c = (c0, c0+2, c1, c1+2)[q]
                p(f'v_pk_add_f32 v[{40+2*q}:{41+2*q}], v[{40+2*q}:{41+2*q}], v[{c}:{c+1}]')
            for q in range(4): p(f'v_cvt_pk_bf16_f32 v{o+q}, v{40+2*q}, v{41+2*q}')
            p(f'buffer_store_dwordx4 v[{o}:{o+3}], v{vO+b}, s[{S_OUT}:{S_OUT+3}], 0 offen offset:{64*m}')
    p('C_fin:')
    ts.stamp(p)
    ts.dump(p, 6)
    p('C_end:\ns_endpgm')
    autowait(p); check(p, 'c2')
    return p

def main():
    cfg = Cfg()
    cfg.ts = 1; cfg.xmap = 'b'; cfg.stag = 0; cfg.P = 4
    cfg.d0 = 0; cfg.dstr = 2; cfg.a0 = 1; cfg.astr = 2; cfg.ad = 3; cfg.PF = 3; cfg.cap = 2; cfg.pf = 1
    cfg.cad = 12; cfg.cdstr = 2; cfg.cP = 5; cfg.cmap = 'split'; cfg.cv = 2; cfg.cad = 7; cfg.cdstr = 2; cfg.cP = 4
    for a in sys.argv[2:]:
        k, v = a.split('='); setattr(cfg, k, int(v) if v.lstrip('-').isdigit() else v)
    hdr = ('; @launch kernel=ln_kernel grid=(128,1,1) block=(256,1,1) lds=512\n'
           f'; @launch kernel=ab_kernel grid=(256,1,1) block=(256,1,1) lds={NHS*HS}\n'
           '; @launch kernel=c_kernel grid=(256,1,1) block=(256,1,1) lds=131072\n'
           '.amdgcn_target "amdgcn-amd-amdhsa--gfx950"\n')
    s = hdr + kernel_head('ln_kernel') + gen_ln(cfg).text() + '\n' + kernel_head('ab_kernel') + gen_ab(cfg).text() + '\n' + kernel_head('c_kernel') + (gen_c2(cfg) if cfg.cv == 2 else gen_c(cfg)).text() + '\n'
    s += kernel_desc('ln_kernel', 128, 128) + kernel_desc('ab_kernel', 512, 256) + kernel_desc('c_kernel', 384, 256)
    open(sys.argv[1], 'w').write(s)
if __name__ == '__main__': main()
```

```python
import re

TRANS = ('v_exp_f32','v_log_f32','v_rcp_f32','v_rsq_f32','v_sqrt_f32','v_sin_f32','v_cos_f32')

def expand(op):
    op = op.strip()
    op = op.lstrip('-')
    if op.startswith('abs(') : op = op[4:-1]
    if op.startswith('|'): op = op.strip('|')
    m = re.fullmatch(r'([vas])\[(\d+):(\d+)\]', op)
    if m: return [f"{m.group(1)}{i}" for i in range(int(m.group(2)), int(m.group(3))+1)]
    m = re.fullmatch(r'([vas])(\d+)', op)
    if m: return [op]
    if op in ('vcc',): return ['vcc']
    if op in ('vcc_lo','vcc_hi'): return ['vcc']
    if op == 'exec': return ['exec']
    if op == 'm0': return ['m0']
    return []

class I:
    __slots__ = ('text','op','kind','rd','wr','tag','passes','cregs','abregs','wait','skip')
    def __init__(self, text, tag=None):
        self.text = text; self.tag = tag; self.skip = False
        t = text.split(';')[0].strip()
        parts = t.split(None, 1)
        op = parts[0]; self.op = op
        args = [a.strip() for a in parts[1].split(',')] if len(parts) > 1 else []
        mods = []
        if args:
            la = args[-1].split()
            args[-1] = la[0] if la else ''
            mods = la[1:]
        self.rd = set(); self.wr = set(); self.passes = 0; self.cregs = set(); self.abregs = set(); self.wait = None
        E = lambda i: set(expand(args[i])) if i < len(args) else set()
        allargs = lambda lo: set().union(*[E(i) for i in range(lo, len(args))]) if len(args) > lo else set()
        if op.endswith(':'): self.kind = 'label'
        elif op.startswith('.'): self.kind = 'dir'
        elif op.startswith('v_mfma'):
            self.kind = 'mfma'; self.wr = E(0); self.abregs = E(1) | E(2); self.cregs = E(3); self.rd = self.abregs | self.cregs
            self.passes = 8 if '32x32x16' in op else 4
        elif op == 's_waitcnt':
            self.kind = 'wait'; w = {}
            for m in re.finditer(r'(vmcnt|lgkmcnt)\((\d+)\)', t): w[m.group(1)] = int(m.group(2))
            self.wait = w
        elif op == 's_barrier': self.kind = 'barrier'
        elif op == 's_nop': self.kind = 'nop'; self.passes = int(args[0], 0) + 1
        elif op in ('s_endpgm','s_setprio','s_sleep'): self.kind = 'salu'
        elif op.startswith('s_cbranch') or op == 's_branch':
            self.kind = 'branch'
            if 'scc' in op: self.rd = {'scc'}
            if 'vcc' in op: self.rd = {'vcc'}
            if 'exec' in op: self.rd = {'exec'}
        elif op.startswith('s_load') or op.startswith('s_memtime') or op.startswith('s_memrealtime') or op.startswith('s_atomic'):
            self.kind = 'smem'; self.wr = E(0); self.rd = allargs(1)
        elif op.startswith('s_cmp'):
            self.kind = 'salu'; self.rd = allargs(0); self.wr = {'scc'}
        elif op.startswith('s_'):
            self.kind = 'salu'; self.wr = E(0); self.rd = allargs(1)
            if op.split('_')[1] in ('add','sub','addc','subb','lshl','lshr','and','or','xor','andn2','ashr','min','max','not','addk','bfe'): self.wr |= {'scc'}
            if op.startswith('s_cselect') or op.startswith('s_addc') or op.startswith('s_subb'): self.rd |= {'scc'}
            if op.startswith('s_addk') or op.startswith('s_mulk'): self.rd |= E(0)
            if 'saveexec' in op: self.wr |= {'exec','scc'}; self.rd |= {'exec'}
            if op.startswith('s_getreg'): self.rd = set()
        elif op.startswith('ds_read') or op.startswith('ds_bpermute') or op.startswith('ds_swizzle') or op.startswith('ds_permute'):
            self.kind = 'dsr'; self.wr = E(0); self.rd = allargs(1)
        elif op.startswith('ds_write') :
            self.kind = 'dsw'; self.rd = allargs(0)
        elif op.startswith('ds_'):
            if '_rtn' in op: self.kind = 'dsr'; self.wr = E(0); self.rd = allargs(1)
            else: self.kind = 'dsw'; self.rd = allargs(0)
        elif op.startswith('buffer_load') or op.startswith('global_load'):
            if 'lds' in mods or op.startswith('global_load_lds'):
                self.kind = 'dma'; self.rd = allargs(0) | {'m0'}
            else:
                self.kind = 'vld'; self.wr = E(0); self.rd = allargs(1)
        elif op.startswith('buffer_store') or op.startswith('global_store'):
            self.kind = 'vst'; self.rd = allargs(0)
            self.cregs = E(0) if op.startswith('buffer_store') else E(1)
            self.passes = 4 if op.endswith('x4') or op.endswith('x3') else 0
        elif op.startswith('buffer_atomic') or op.startswith('global_atomic'):
            ret = 'sc0' in mods
            self.kind = 'vld' if ret else 'vst'
            self.rd = allargs(0)
            if ret: self.wr = E(0)
        elif op.startswith('buffer_inv') or op.startswith('buffer_wbl2'):
            self.kind = 'vst'
        elif op.startswith('v_'):
            self.kind = 'trans' if op.replace('_e32','').replace('_e64','') in TRANS else 'valu'
            self.wr = E(0); self.rd = allargs(1)
            if op.startswith('v_permlane') and 'swap' in op:
                self.wr = E(0) | E(1); self.rd = E(0) | E(1)
            if op.startswith('v_fmac') or op.startswith('v_pk_fmac') or op.startswith('v_dot2c') or op.startswith('v_writelane'): self.rd |= E(0)
            if op.startswith('v_add_co') or op.startswith('v_addc_co') or op.startswith('v_sub_co'):
                self.wr = E(0) | E(1); self.rd = allargs(2)
            if op.startswith('v_cmpx'): self.wr |= {'exec'}
            if op.startswith('v_cndmask') and len(args) == 3: self.rd |= {'vcc'}
        else:
            raise ValueError('unknown op ' + text)

class Loop:
    def __init__(self, name, count, body): self.name = name; self.count = count; self.body = body

class Prog:
    def __init__(self): self.items = []; self.stack = [self.items]; self.skipping = False
    def __call__(self, text, tag=None):
        for ln in text.split('\n'):
            ln = ln.strip()
            if not ln: continue
            if ln.startswith(';'):
                c = I('.comment'); c.text = ln; self.stack[-1].append(c); continue
            ins = I(ln, tag); ins.skip = self.skipping or ln.endswith(';cond'); self.stack[-1].append(ins)
    def cond(self, on): self.skipping = on
    def add(self, inst): self.stack[-1].append(inst)
    def loop_begin(self, name, count, align=True):
        L = Loop(name, count, [])
        if align: self('.p2align 6')
        self.stack[-1].append(L); self.stack.append(L.body)
        self(f'{name}:')
    def loop_end(self): self.stack.pop()
    def text(self):
        out = []
        def w(items):
            for it in items:
                if isinstance(it, Loop): w(it.body)
                else: out.append(it.text if it.kind in ('label','dir') else '  ' + it.text)
        w(self.items); return '\n'.join(out)
    def trace(self, maxiter=10**9):
        def w(items, itn):
            for it in items:
                if isinstance(it, Loop):
                    for n in range(min(it.count, maxiter)): yield from w(it.body, n)
                elif not it.skip: yield it, itn
        return w(self.items, 0)
    def need(self, tag):
        c = I('.need'); c.text = '; need ' + str(tag); c.kind = 'need'; c.tag = tag; self.stack[-1].append(c)
    def needrd(self, tag):
        c = I('.need'); c.text = '; needrd ' + str(tag); c.kind = 'needrd'; c.tag = tag; self.stack[-1].append(c)

def rtag(tag, itn):
    name, ring, v0, stride = tag
    ver = v0 + itn * stride
    return (name, ver % ring), ver

def autowait(prog, maxiter=10**9):
    need_vm = {}; need_lg = {}
    vm = []; lg = []
    for ins, itn in prog.trace(maxiter):
        k = ins.kind
        if k in ('label','dir','barrier','nop'): continue
        if k == 'wait':
            if 'vmcnt' in ins.wait: del vm[:max(0, len(vm) - ins.wait['vmcnt'])]
            if 'lgkmcnt' in ins.wait: del lg[:max(0, len(lg) - ins.wait['lgkmcnt'])]
            continue
        regs = ins.rd | ins.wr
        def dep(o):
            oi, ot = o
            if k == 'need': return ot is not None and oi.kind in ('dma','dsw') and ot == rtag(ins.tag, itn)
            if k == 'needrd': return ot is not None and oi.kind == 'dsr' and ot[0] == rtag(ins.tag, itn)[0]
            return bool(oi.wr & regs)
        for q, nd, cap in ((vm, need_vm, 63), (lg, need_lg, 15)):
            last = -1
            for i, o in enumerate(q):
                if dep(o): last = i
            if id(ins) in nd:
                n0 = nd[id(ins)]
                del q[:max(0, len(q) - n0)]
                last = -1
                for i, o in enumerate(q):
                    if dep(o): last = i
            if last >= 0:
                n = min(len(q) - 1 - last, cap)
                if q is lg and any(o[0].kind == 'smem' for o in q): n = 0
                nd[id(ins)] = min(nd.get(id(ins), 99), n)
                del q[:len(q) - n]
        tg = rtag(ins.tag, itn) if ins.tag and k in ('dma','dsw','dsr') else None
        if k in ('vld','vst','dma'): vm.append((ins, tg))
        if k in ('dsr','dsw','smem'): lg.append((ins, tg))
    def w(items):
        out = []
        for it in items:
            if isinstance(it, Loop): it.body[:] = w(it.body); out.append(it); continue
            s = []
            if id(it) in need_vm: s.append(f'vmcnt({need_vm[id(it)]})')
            if id(it) in need_lg: s.append(f'lgkmcnt({need_lg[id(it)]})')
            if s: out.append(I('s_waitcnt ' + ' '.join(s)))
            out.append(it)
        return out
    prog.items[:] = w(prog.items)

def check(prog, name='', maxiter=10**9, verbose=True):
    probs = []
    vm = []
    lg = []
    pend = {}
    state = 0
    last_valu_wr = {}; last_trans_wr = {}; last_mfma_wr = {}; last_mfma_c = {}; last_salu_wr = {}; last_store_data = {}
    valu_sgpr_wr = {}
    reg_state = {}
    nbar = 0
    dma_done_bar = {}
    dma_out = {}
    rd_out = {}
    rd_done_bar = {}
    cur_ver = {}
    seq = 0
    def P(msg, ins): probs.append(f"{name}: {msg}: [{ins.text}] (seq {seq})")
    for ins, itn in prog.trace(maxiter):
        seq += 1
        k = ins.kind
        if k in ('label','dir','need','needrd'): continue
        if k == 'wait':
            if 'vmcnt' in ins.wait:
                n = ins.wait['vmcnt']
                while len(vm) > n:
                    o, s = vm.pop(0)
                    for r in o.wr:
                        if pend.get(r, (None,None,None))[2] == s: del pend[r]
                    if o.kind == 'dma' and o.tag:
                        key = dma_out.pop(s);
                        dma_done_bar[key] = max(dma_done_bar.get(key, -1), nbar)
            if 'lgkmcnt' in ins.wait:
                n = ins.wait['lgkmcnt']
                if n > 0 and any(o.kind == 'smem' for o, s in lg): P('counted lgkmcnt with smem outstanding', ins)
                while len(lg) > n:
                    o, s = lg.pop(0)
                    for r in o.wr:
                        if pend.get(r, (None,None,None))[2] == s: del pend[r]
                    if s in rd_out:
                        rg = rd_out.pop(s); rd_done_bar[rg] = max(rd_done_bar.get(rg, -1), nbar)
                    if s in dma_out:
                        key = dma_out.pop(s); dma_done_bar[key] = max(dma_done_bar.get(key, -1), nbar)
            state += 1; continue
        if k == 'barrier': nbar += 1; state += 1; continue
        if k == 'nop': state += ins.passes; continue
        for r in ins.rd | ins.wr:
            if r in pend: P(f'reg {r} has pending load [{pend[r][1].text}]', ins)
        def dist(tbl, r): return state - tbl[r][0] - 1 if r in tbl else 1000
        isvalu = k in ('valu','trans')
        if k == 'mfma':
            for r in ins.rd:
                if dist(last_valu_wr, r) < 2: P(f'VALU->MFMA {r} needs 2', ins)
            for r in ins.abregs:
                if r in last_mfma_wr:
                    need = {4: 8, 8: 12}[last_mfma_wr[r][1].passes]
                    if dist(last_mfma_wr, r) < need: P(f'MFMA D->MFMA AB {r} needs {need}', ins)
            for r in ins.cregs:
                if r in last_mfma_wr:
                    p = last_mfma_wr[r][1]
                    if p.wr == ins.cregs and p.passes == ins.passes: pass
                    else:
                        need = {4: 6, 8: 10}[p.passes]
                        if dist(last_mfma_wr, r) < need: P(f'MFMA D->MFMA C partial {r} needs {need}', ins)
            for r in ins.wr - ins.cregs:
                if r in last_mfma_wr:
                    need = {4: 8, 8: 12}[last_mfma_wr[r][1].passes]
                    if dist(last_mfma_wr, r) < need: P(f'MFMA D->MFMA D WAW {r} needs {need}(conservative)', ins)
                if r in last_mfma_c:
                    need = {4: 3, 8: 7}[last_mfma_c[r][1].passes]
                    if dist(last_mfma_c, r) < need: P(f'MFMA C read -> MFMA write {r} needs {need}(conservative)', ins)
            if dist(last_valu_wr, 'exec') < 4: P('exec write -> mfma', ins)
        else:
            for r in ins.rd | ins.wr:
                if r in last_mfma_wr:
                    need = {4: 8, 8: 12}[last_mfma_wr[r][1].passes]
                    if dist(last_mfma_wr, r) < need: P(f'MFMA D->use {r} needs {need}', ins)
            if isvalu or k in ('vld','dsr'):
                for r in ins.wr:
                    if r in last_mfma_c and isvalu:
                        need = {4: 3, 8: 7}[last_mfma_c[r][1].passes]
                        if dist(last_mfma_c, r) < need: P(f'MFMA C read -> VALU write {r} needs {need}', ins)
                    if r in last_store_data and dist(last_store_data, r) < 2: P(f'store data WAR {r}', ins)
        if isvalu:
            if k == 'valu':
                for r in ins.rd:
                    if dist(last_trans_wr, r) < 1: P(f'trans->valu {r}', ins)
            if ins.op.startswith('v_permlane'):
                for r in ins.rd:
                    if dist(last_valu_wr, r) < 2: P(f'VALU->permlane {r} needs 2', ins)
            if ins.op.startswith('v_readfirstlane') or ins.op.startswith('v_readlane'):
                for r in ins.rd:
                    if r[0] == 'v' and r != 'vcc' and dist(last_valu_wr, r) < 1: P(f'VALU->readlane {r} needs 1', ins)
            if 'dpp' in ins.text or 'row_' in ins.text or 'quad_perm' in ins.text:
                for r in ins.rd:
                    if dist(last_valu_wr, r) < 2: P(f'VALU->DPP {r} needs 2', ins)
            for r in ins.rd:
                if (r[0] == 's' or r == 'vcc') and dist(valu_sgpr_wr, r) < 2: P(f'VALU sgpr wr->VALU rd {r} needs 2', ins)
        if k in ('vld','vst','dma'):
            for r in ins.rd:
                if r[0] == 's' and dist(valu_sgpr_wr, r) < 5: P(f'VALU sgpr->VMEM {r} needs 5', ins)
            if k == 'dma' and dist(last_salu_wr, 'm0') < 1: P('m0 write -> dma needs 1', ins)
        if k in ('salu','branch','smem'):
            for r in ins.rd:
                if dist(valu_sgpr_wr, r) < 1 and r != 'scc': P(f'VALU sgpr wr->SALU rd {r} (pad 1)', ins)
        if ins.tag and k in ('dma','dsw'):
            rg, ver = rtag(ins.tag, itn)
            if cur_ver.get(rg) != ver:
                if any(v == rg for v in rd_out.values()): P(f'LDS WAR: reads of {rg} still outstanding', ins)
                elif rd_done_bar.get(rg, -1) >= nbar: P(f'LDS WAR: no barrier since last read of {rg} completed', ins)
                cur_ver[rg] = ver
            dma_out[seq] = (rg, ver)
        if ins.tag and k == 'dsr':
            rg, ver = rtag(ins.tag, itn)
            if cur_ver.get(rg) != ver: P(f'LDS read of {rg} ver {ver} but current {cur_ver.get(rg)}', ins)
            if any(v == (rg, ver) for v in dma_out.values()): P(f'LDS RAW: write to {rg} outstanding', ins)
            elif dma_done_bar.get((rg, ver), -1) >= nbar: P(f'LDS RAW: no barrier after write to {rg} done', ins)
            rd_out[seq] = rg
        if k in ('vld','vst','dma'):
            vm.append((ins, seq))
            if len(vm) > 63: P('vmcnt overflow', ins)
            for r in ins.wr: pend[r] = ('vm', ins, seq)
            if k == 'vst' and ins.passes:
                for r in ins.cregs: last_store_data[r] = (state, ins)
        if k in ('dsr','dsw','smem'):
            lg.append((ins, seq))
            for r in ins.wr: pend[r] = ('lg', ins, seq)
        if k == 'mfma':
            for r in ins.wr: last_mfma_wr[r] = (state, ins); last_valu_wr.pop(r, None)
            for r in ins.cregs: last_mfma_c[r] = (state, ins)
        if isvalu:
            for r in ins.wr:
                last_valu_wr[r] = (state, ins); last_mfma_wr.pop(r, None)
                if k == 'trans': last_trans_wr[r] = (state, ins)
                else: last_trans_wr.pop(r, None)
                if r[0] == 's' or r == 'vcc': valu_sgpr_wr[r] = (state, ins)
        if k == 'salu':
            for r in ins.wr: last_salu_wr[r] = (state, ins); valu_sgpr_wr.pop(r, None)
        if k in ('vld','dsr'):
            for r in ins.wr: last_mfma_wr.pop(r, None); last_valu_wr.pop(r, None)
        state += 1
    if verbose:
        seen = set()
        for p in probs:
            key = p.split('(seq')[0]
            if key in seen: continue
            seen.add(key); print('CHECK', p)
            if len(seen) > 40: break
    return probs
```

```python
import sys, struct, math
from dsl import *
from gen2 import (f2u, srd, kernel_head, kernel_desc, emit, interleave, spread, m0gap, fix_m0, chk_tail, Cfg)

NAME = 'recurrent_scan__sliding_block_cached__geglu_ffn__prompt'
WS_XN = 0
WS_O  = 4 << 20
WS_H  = 20 << 20
WS_G  = 36 << 20
WS_FL = 40 << 20
WS_TS = 48 << 20
WS_P  = 64 << 20
HS = 22528; NHS = 7
LDS_SCR = NHS*HS
LDS_TOT = 163840

class TS:
    def __init__(self, on): self.on = on; self.n = 0
    def stamp(self, p):
        if not self.on: return
        s = 88 + self.n; self.n += 1;
        if s >= 102: return
        p(f's_waitcnt lgkmcnt(0)\ns_memrealtime s[4:5]\ns_waitcnt lgkmcnt(0)\ns_mov_b32 s{s}, s4')
    def dump(self, p, wsptr):
        if not self.on: return
        srd(p, 12, wsptr, WS_TS, 1 << 20)
        p('v_lshrrev_b32 v8, 6, v0\nv_lshlrev_b32 v8, 6, v8\ns_lshl_b32 s3, s2, 8\nv_add_u32 v8, s3, v8')
        for i in range(min(self.n, 14)):
            p(f'v_mov_b32 v4, s{88+i}\nbuffer_store_dword v4, v8, s[12:15], 0 offen offset:{4*i}\ns_nop 1')

def gen(cfg):
    p = Prog(); ts = TS(cfg.ts)
    SC = ' sc1'
    pX, pK, pV, pWQ, pWO, pWG, pWU, pWD, pOUT, pDBG, pWS = 64, 66, 68, 70, 72, 76, 78, 80, 82, 84, 86
    S_W, S_Q, S_XN, S_H, S_K, S_V, S_O = 8, 12, 16, 20, 24, 28, 32
    S_FL, S_DB = 56, 60
    sW, sRB, sCB, sKW, sKQ, sKA, sCNT = 36, 37, 38, 39, 40, 41, 42
    sMW, sMQ, sRD, sDL, sLEFT, sLEFA, sRW, sRQ = 43, 44, 45, 46, 47, 48, 49, 3
    sT = 50
    p('s_cmp_ge_u32 s2, 256\ns_cbranch_scc1 K_end')
    p('s_load_dwordx16 s[64:79], s[0:1], 0\ns_load_dwordx8 s[80:87], s[0:1], 64')
    p(f'v_lshrrev_b32 v2, 6, v0\nv_and_b32 v1, 63, v0\nv_readfirstlane_b32 s{sW}, v2')
    p(f's_and_b32 s{sT}, s2, 7\ns_lshr_b32 s{sT+1}, s2, 3')
    if cfg.xmap == 'c':
        p(f's_and_b32 s{sRB}, s{sT}, 1\ns_lshl_b32 s{sRB}, s{sRB}, 2\ns_and_b32 s{sT+2}, s{sT+1}, 3\ns_add_u32 s{sRB}, s{sRB}, s{sT+2}')
        p(f's_lshr_b32 s{sCB}, s{sT}, 1\ns_lshl_b32 s{sCB}, s{sCB}, 3\ns_lshr_b32 s{sT+2}, s{sT+1}, 2\ns_add_u32 s{sCB}, s{sCB}, s{sT+2}')
    else:
        p(f's_and_b32 s{sRB}, s{sT+1}, 7\ns_lshl_b32 s{sCB}, s{sT}, 2\ns_lshr_b32 s{sT+2}, s{sT+1}, 3\ns_add_u32 s{sCB}, s{sCB}, s{sT+2}')
    vAct, vDW, vDQ, vTr, vTq, vT = 4, 8, 15, 19, 20, 28
    vA, RA = 32, 8
    vB, RB = 64, 4
    def acc(t, b):
        if t < 16: c = (t*4+b)*4; return f'a[{c}:{c+3}]'
        c = 160 + ((t-16)*4+b)*4; return f'v[{c}:{c+3}]'
    def accr(t, b, r):
        if t < 16: return f'a{(t*4+b)*4+r}'
        return f'v{160+((t-16)*4+b)*4+r}'
    vLX, vLO, vLS = 128, 129, 130
    t = 132
    p(f's_lshl_b32 s{sT}, s{sRB}, 8\ns_lshl_b32 s{sT+1}, s{sCB}, 3\ns_add_u32 s{sT}, s{sT}, s{sT+1}\ns_lshl_b32 s{sT}, s{sT}, 11\ns_lshl_b32 s{sT+1}, s{sW}, 9\ns_add_u32 s{sT}, s{sT}, s{sT+1}')
    p(f'v_and_b32 v{t}, 7, v1\nv_bfe_u32 v{t+1}, v1, 3, 1\nv_lshrrev_b32 v{t+2}, 4, v1')
    p(f'v_lshlrev_b32 v{t+3}, 11, v{t}\nv_lshlrev_b32 v{t+4}, 8, v{t+1}\nv_lshlrev_b32 v{t+5}, 4, v{t+2}\nv_add3_u32 v{t+3}, v{t+3}, v{t+4}, v{t+5}\nv_add_u32 v{vLX}, s{sT}, v{t+3}')
    p(f's_lshl_b32 s{sT}, s{sRB}, 4\ns_lshr_b32 s{sT+1}, s{sCB}, 1\ns_add_u32 s{sT}, s{sT}, s{sT+1}\ns_lshl_b32 s{sT}, s{sT}, 15\ns_lshl_b32 s{sT+1}, s{sW}, 13\ns_add_u32 s{sT}, s{sT}, s{sT+1}')
    p(f's_and_b32 s{sT+1}, s{sCB}, 1\ns_lshl_b32 s{sT+1}, s{sT+1}, 7\ns_add_u32 s{sT}, s{sT}, s{sT+1}')
    p(f'v_lshlrev_b32 v{t+3}, 4, v{t}\nv_lshlrev_b32 v{t+4}, 12, v{t+1}\nv_lshlrev_b32 v{t+5}, 8, v{t+2}\nv_add3_u32 v{t+4}, v{t+3}, v{t+4}, v{t+5}\nv_add_u32 v{vLO}, s{sT}, v{t+4}')
    p(f'v_add_u32 v{vLS}, {LDS_SCR}, v{t+3}\nv_lshl_add_u32 v{vLS+1}, v2, 2, v{vLS}')
    p(f's_and_b32 s{sT}, s{sW}, 1\ns_mul_i32 s{sT}, s{sT}, {32*7168}\ns_mul_i32 s{sT+1}, s{sCB}, 224\ns_add_u32 s{sT}, s{sT}, s{sT+1}')
    p(f's_mov_b32 s{sT+1}, 4682\ns_mov_b32 s{sT+2}, 7168')
    for n in range(448): assert (n*4682) >> 16 == n // 14
    t = 32
    for pc in range(7):
        p(f'v_add_u32 v{t}, {64*pc}, v1')
        p(f'v_mul_u32_u24 v{t+1}, s{sT+1}, v{t}\nv_lshrrev_b32 v{t+1}, 16, v{t+1}')
        p(f'v_mul_u32_u24 v{t+2}, 14, v{t+1}\nv_sub_u32 v{t+2}, v{t}, v{t+2}')
        p(f'v_and_b32 v{t+3}, 0x13, v{t+1}\nv_and_b32 v{t+4}, 4, v{t+1}\nv_lshl_or_b32 v{t+3}, v{t+4}, 1, v{t+3}')
        p(f'v_bfe_u32 v{t+4}, v{t+1}, 3, 1\nv_lshl_or_b32 v{t+3}, v{t+4}, 2, v{t+3}')
        p(f'v_mul_u32_u24 v{t+3}, s{sT+2}, v{t+3}\nv_lshlrev_b32 v{t+2}, 4, v{t+2}\nv_add3_u32 v{vDW+pc}, v{t+3}, v{t+2}, s{sT}')
        if pc % 4: p(f'v_subrev_u32 v{vDW+pc}, {1024*(pc%4)}, v{vDW+pc}')
    p(f's_lshl_b32 s{sT}, s{sW}, 17\ns_lshl_b32 s{sT+1}, s{sCB}, 8\ns_add_u32 s{sT}, s{sT}, s{sT+1}')
    p(f'v_lshrrev_b32 v{t}, 4, v1\nv_and_b32 v{t+1}, 15, v1\nv_lshlrev_b32 v{t+2}, 1, v{t}\nv_xor_b32 v{t+1}, v{t+1}, v{t+2}')
    p(f'v_lshlrev_b32 v{t}, 13, v{t}\nv_add_u32 v{t}, s{sT}, v{t}')
    for j in range(4):
        p(f'v_xor_b32 v{t+2}, {8*(j>>1)}, v{t+1}\nv_lshl_add_u32 v{t+2}, v{t+2}, 4, v{t}')
        p(f'v_add_u32 v{vDQ+j}, {j*(4*8192-1024)}, v{t+2}')
    p(f's_and_b32 s{sT}, s{sW}, 1\ns_lshr_b32 s{sT+1}, s{sW}, 1')
    p(f's_mul_i32 s{sMW}, s{sT}, {HS}\ns_mul_i32 s{sRW}, s{sT+1}, 7168')
    p(f's_mul_i32 s{sMQ}, s{sT+1}, {HS}\ns_lshl_b32 s{sRQ}, s{sT}, 12\ns_add_u32 s{sRQ}, s{sRQ}, 14336')
    KW, KQ, KA, NT = 64*7168, 64*8192, 2048, 16
    if cfg.stag:
        p(f's_lshl_b32 s{sT}, s{sRB}, 1\ns_mul_i32 s{sKW}, s{sT}, {KW}\ns_mul_i32 s{sKQ}, s{sT}, {KQ}\ns_mul_i32 s{sKA}, s{sT}, {KA}')
    else:
        p(f's_mov_b32 s{sKW}, 0\ns_mov_b32 s{sKQ}, 0\ns_mov_b32 s{sKA}, 0')
    p(f's_mov_b32 s{sLEFT}, {NT}\ns_mov_b32 s{sLEFA}, {NT}\ns_mov_b32 s{sRD}, 0')
    def c_role(sGM, sKH, sRC, sCC, tmp):
        p(f's_bfe_u32 s{sGM}, s2, 0x10002\ns_bfe_u32 s{sKH}, s2, 0x10001\ns_and_b32 s{sRC}, s2, 1\ns_lshl_b32 s{sRC}, s{sRC}, 2\ns_bfe_u32 s{tmp}, s2, 0x20003\ns_add_u32 s{sRC}, s{sRC}, s{tmp}\ns_lshr_b32 s{sCC}, s2, 5')
    sNO = 6
    p('s_waitcnt lgkmcnt(0)')
    ts.stamp(p)
    S_X0 = S_H
    srd(p, S_X0, pX, 0, 4 << 20)
    vLD = 144
    for i in range(4): p(f'buffer_load_dwordx4 v[{vLD+4*i}:{vLD+4*i+3}], v{vLX}, s[{S_X0}:{S_X0+3}], 0 offen offset:{64*i}')
    p(f's_cmp_ge_u32 s{sW}, 2\ns_cselect_b32 s{S_W}, s{pWU}, s{pWG}\ns_cselect_b32 s{S_W+1}, s{pWU+1}, s{pWG+1}')
    p(f's_mov_b32 s{S_W+2}, {1024*7168:#x}\ns_mov_b32 s{S_W+3}, 0x20000')
    srd(p, S_Q, pWQ, 0, 8 << 20)
    srd(p, S_FL, pWS, WS_FL, 1152*128)
    srd(p, S_XN, pWS, WS_XN, 4 << 20)
    srd(p, S_DB, pDBG, 0, 256)
    def adv_w():
        return [f's_add_u32 s{sKW}, s{sKW}, {KW}', f's_cmp_eq_u32 s{sKW}, {NT*KW}', f's_cselect_b32 s{sKW}, 0, s{sKW}',
                f's_add_u32 s{sMW}, s{sMW}, {2*HS}', f's_cmp_ge_u32 s{sMW}, {NHS*HS}', f's_cselect_b32 s{sT}, {NHS*HS}, 0', f's_sub_u32 s{sMW}, s{sMW}, s{sT}']
    def adv_q():
        return [f's_add_u32 s{sKQ}, s{sKQ}, {KQ}', f's_and_b32 s{sKQ}, s{sKQ}, {NT*KQ-1}',
                f's_add_u32 s{sMQ}, s{sMQ}, {2*HS}', f's_cmp_ge_u32 s{sMQ}, {NHS*HS}', f's_cselect_b32 s{sT}, {NHS*HS}, 0', f's_sub_u32 s{sMQ}, s{sMQ}, s{sT}',
                f's_sub_u32 s{sLEFT}, s{sLEFT}, 1', f's_cmp_eq_u32 s{sLEFT}, 0',
                f's_cselect_b32 s{S_W+2}, 0, s{S_W+2}', f's_cselect_b32 s{S_Q+2}, 0, s{S_Q+2}']
    def adv_a():
        return [f's_add_u32 s{sKA}, s{sKA}, {KA}', f's_and_b32 s{sKA}, s{sKA}, {NT*KA-1}',
                f's_sub_u32 s{sLEFA}, s{sLEFA}, 1', f's_cmp_eq_u32 s{sLEFA}, 0', f's_cselect_b32 s{S_XN+2}, 0, s{S_XN+2}']
    def adv_rd():
        return [f's_add_u32 s{sRD}, s{sRD}, {HS}', f's_cmp_eq_u32 s{sRD}, {NHS*HS}', f's_mov_b32 s{sDL}, {HS}',
                f's_cselect_b32 s{sDL}, {-(NHS-1)*HS}, s{sDL}', f's_cselect_b32 s{sRD}, 0, s{sRD}']
    def dma(pc, tile, stride):
        tag = ('W', NHS, 2*tile + 1, 2*stride)
        if pc < 7: return (f'buffer_load_dwordx4 v{vDW+pc}, s[{S_W}:{S_W+3}], s{sKW} offen offset:{1024*(pc%4)} lds', tag)
        return (f'buffer_load_dwordx4 v{vDQ+pc-7}, s[{S_Q}:{S_Q+3}], s{sKQ} offen offset:{1024*(pc-7)} lds', tag)
    def m0set(pc):
        if pc == 0: return [f's_add_u32 m0, s{sMW}, s{sRW}']
        if pc == 4: return [f's_add_u32 s{sT}, s{sMW}, s{sRW}', f's_add_u32 m0, s{sT}, 4096']
        if pc == 7: return [f's_add_u32 m0, s{sMQ}, s{sRQ}']
        return []
    def dma_tile(tile):
        for d in range(11):
            for x in m0set(d): p(x)
            if m0set(d): p('s_nop 0')
            emit(p, dma(d, tile, 0))
            if d == 6:
                for x in adv_w(): p(x)
            if d == 10:
                for x in adv_q(): p(x)
    p(f's_add_u32 s{sT}, s2, s{sW}\ns_cmp_eq_u32 s{sT}, 0\ns_cbranch_scc0 L_no_nonce')
    p.cond(True)
    p(f's_memrealtime s[{sNO}:{sNO+1}]\nv_mov_b32 v34, 0\ns_waitcnt lgkmcnt(0)\ns_or_b32 s{sNO}, s{sNO}, 1\nv_mov_b32 v32, s{sNO}\nv_mov_b32 v33, s{sNO+1}')
    p(f'buffer_store_dwordx2 v[32:33], v34, s[{S_DB}:{S_DB+3}], 0 offen sc1')
    p.cond(False)
    p('L_no_nonce:')
    if not cfg.dbg & 2 and not cfg.late0: dma_tile(0)
    if not cfg.late1: dma_tile(1)
    p(f's_lshl_b32 s{sT}, s{sRB}, 4\ns_lshl_b32 s{sT+1}, s{sW}, 2\ns_add_u32 s{sT}, s{sT}, s{sT+1}\ns_lshl_b32 s{sT}, s{sT}, 15')
    p(f'v_lshlrev_b32 v{vT}, 4, v1\nv_add_u32 v{vAct}, s{sT}, v{vT}')
    for b in range(1, 4): p(f'v_add_u32 v{vAct+b}, {b*32768:#x}, v{vAct}')
    t = 32
    p(f'v_lshrrev_b32 v{t}, 5, v1\nv_lshlrev_b32 v{t}, 4, v{t}\nv_bfe_u32 v{t+1}, v1, 4, 1\nv_lshlrev_b32 v{t+1}, 2, v{t+1}\nv_bfe_u32 v{t+2}, v1, 2, 2')
    p(f'v_add3_u32 v{t}, v{t}, v{t+1}, v{t+2}\nv_mul_u32_u24 v{t}, 224, v{t}\nv_and_b32 v{t+3}, 3, v1\nv_lshlrev_b32 v{t+3}, 3, v{t+3}\nv_add_u32 v{vTr}, v{t}, v{t+3}')
    p(f'v_or_b32 v{t+1}, v{t+1}, v{t+2}')
    p(f'v_lshrrev_b32 v{t}, 4, v1\nv_lshlrev_b32 v{t}, 3, v{t}\nv_add_u32 v{t}, v{t}, v{t+2}\nv_lshlrev_b32 v{t}, 8, v{t}')
    p(f'v_add_u32 v{t}, 14336, v{t}\nv_add_u32 v{t}, v{t}, v{t+3}')
    for tt in range(8):
        p(f'v_xor_b32 v{t+2}, {tt}, v{t+1}\nv_lshl_add_u32 v{vTq+tt}, v{t+2}, 5, v{t}')
    for i in range(256): p(f'v_accvgpr_write_b32 a{i}, 0')
    if cfg.dbg & 4: p('s_waitcnt vmcnt(%d)' % (0 if cfg.late0 else 11 if cfg.late1 else 22)); ts.stamp(p)
    X = 64; sM = sT + 4
    p(f's_mov_b32 s{sM}, 0xffff0000')
    for i in range(16): p(f'v_lshlrev_b32 v{X+2*i}, 16, v{vLD+i}\nv_and_b32 v{X+2*i+1}, s{sM}, v{vLD+i}')
    if cfg.late0: dma_tile(0)
    def red(v, tt, off):
        p(f's_nop 1\nv_add_f32_dpp v{v}, v{v}, v{v} row_ror:8 row_mask:0xf bank_mask:0xf')
        p(f'v_mov_b32 v{tt}, v{v}\ns_nop 1\nv_permlane16_swap_b32 v{v}, v{tt}\ns_nop 1\nv_add_f32 v{v}, v{v}, v{tt}')
        p(f'v_mov_b32 v{tt}, v{v}\ns_nop 1\nv_permlane32_swap_b32 v{v}, v{tt}\ns_nop 1\nv_add_f32 v{v}, v{v}, v{tt}')
        p(f'ds_write_b32 v{vLS+1}, v{v} offset:{off}\ns_waitcnt lgkmcnt(0)\ns_barrier')
        p(f'ds_read_b128 v[40:43], v{vLS} offset:{off}')
        p(f'v_add_f32 v40, v40, v41\nv_add_f32 v42, v42, v43\nv_add_f32 v{v}, v40, v42\nv_mul_f32 v{v}, {f2u(1/1024):#x}, v{v}')
    for a in range(0, 4, 2): p(f'v_pk_add_f32 v[{32+a}:{33+a}], v[{X+a}:{X+a+1}], v[{X+4+a}:{X+5+a}]')
    for i in range(8, 32, 2): p(f'v_pk_add_f32 v[{32+i%4}:{33+i%4}], v[{32+i%4}:{33+i%4}], v[{X+i}:{X+i+1}]')
    p('v_pk_add_f32 v[32:33], v[32:33], v[34:35]\nv_add_f32 v32, v32, v33')
    red(32, 33, 0)
    for i in range(32): p(f'v_sub_f32 v{X+32+i}, v{X+i}, v32')
    for a in range(0, 4, 2): p(f'v_pk_mul_f32 v[{36+a}:{37+a}], v[{X+32+a}:{X+33+a}], v[{X+32+a}:{X+33+a}]')
    for i in range(4, 32, 2): p(f'v_pk_fma_f32 v[{36+i%4}:{37+i%4}], v[{X+32+i}:{X+33+i}], v[{X+32+i}:{X+33+i}], v[{36+i%4}:{37+i%4}]')
    p('v_pk_add_f32 v[36:37], v[36:37], v[38:39]\nv_add_f32 v36, v36, v37')
    p(f'v_mov_b32 v44, 0\nbuffer_load_dwordx2 v[2:3], v44, s[{S_DB}:{S_DB+3}], 0 offen sc1')
    red(36, 37, 128)
    def rnd(v): p(f'v_cvt_pk_bf16_f32 v{v}, v{v}, v{v}\nv_lshlrev_b32 v{v}, 16, v{v}')
    rnd(32); rnd(36)
    p(f'v_add_f32 v36, {f2u(1e-5):#x}, v36'); rnd(36)
    p('v_sqrt_f32 v36, v36\ns_nop 0'); rnd(36)
    p('v_rcp_f32 v36, v36\nv_mov_b32 v33, v32\nv_mov_b32 v37, v36')
    for i in range(16):
        a, b = X+2*i, X+2*i+1
        p(f'v_pk_add_f32 v[{a}:{b}], v[{a}:{b}], v[32:33] neg_lo:[0,1] neg_hi:[0,1]\nv_cvt_pk_bf16_f32 v{a}, v{a}, v{b}')
        p(f'v_and_b32 v{b}, s{sM}, v{a}\nv_lshlrev_b32 v{a}, 16, v{a}')
        p(f'v_pk_mul_f32 v[{a}:{b}], v[{a}:{b}], v[36:37]\nv_cvt_pk_bf16_f32 v{vLD+i}, v{a}, v{b}')
        if i % 4 == 3:
            r = vLD + i - 3
            p(f'buffer_store_dwordx4 v[{r}:{r+3}], v{vLO}, s[{S_XN}:{S_XN+3}], 0 offen offset:{1024*(i//4)} sc1')
    if cfg.dbg & 4: ts.stamp(p)
    for i in range(160, 256): p(f'v_mov_b32 v{i}, 0')
    vHF = 27
    p(f's_lshl_b32 s{sT}, s{sRB}, 12\ns_lshl_b32 s{sT+1}, s{sCB}, 7\ns_add_u32 s{sT+1}, s{sT}, s{sT+1}\nv_mov_b32 v32, s{sT+1}')
    p(f'v_and_b32 v34, 31, v1\nv_lshl_add_u32 v34, v34, 7, s{sT}')
    p('s_waitcnt vmcnt(0)\ns_barrier')
    ts.stamp(p)
    def poll(lbl, vaddr, done):
        p(f'{lbl}:')
        p(f'buffer_load_dwordx2 v[36:37], v{vaddr}, s[{S_FL}:{S_FL+3}], 0 offen sc1\ns_waitcnt vmcnt(0)')
        p(f'v_cmp_ne_u64 vcc, s[{sNO}:{sNO+1}], v[36:37]\ns_nop 1\ns_cbranch_vccz {done}\ns_sleep {cfg.slp}\ns_branch {lbl}')
    p(f's_cmp_eq_u32 s{sW}, 0\ns_cbranch_scc0 L_xn_got')
    p.cond(True)
    p('L_no_retry:')
    p(f'v_readfirstlane_b32 s{sNO}, v2\nv_readfirstlane_b32 s{sNO+1}, v3\ns_nop 0\ns_cmp_lg_u32 s{sNO}, 0\ns_cbranch_scc1 L_no_ok')
    p(f'buffer_load_dwordx2 v[2:3], v44, s[{S_DB}:{S_DB+3}], 0 offen sc1\ns_waitcnt vmcnt(0)\ns_branch L_no_retry')
    p('L_no_ok:')
    p(f'buffer_store_dwordx2 v[2:3], v32, s[{S_FL}:{S_FL+3}], 0 offen sc1')
    poll('L_xn_poll', 34, 'L_xn_got')
    p.cond(False)
    p('L_xn_got:\ns_barrier')
    ts.stamp(p)
    def act(sub, b):
        r = vB + 16*(sub % RB) + 4*b
        return f'buffer_load_dwordx4 v[{r}:{r+3}], v{vAct+b}, s[{S_XN}:{S_XN+3}], s{sKA} offen offset:{1024*(sub % 2)}{SC}'
    NG = 22
    def vm_sched(step, g2):
        s, t = divmod(g2, NG); sub = 2*step + s
        d = None; a = None
        if cfg.d0 <= g2 < cfg.d0 + 11*cfg.dstr and (g2 - cfg.d0) % cfg.dstr == 0: d = (g2 - cfg.d0)//cfg.dstr
        if cfg.a0 <= t < cfg.a0 + 4*cfg.astr and (t - cfg.a0) % cfg.astr == 0: a = (sub + cfg.ad, (t - cfg.a0)//cfg.astr)
        return d, a
    for sub in range(cfg.ad):
        for b in range(4): p(act(sub, b))
        if sub % 2 == 1:
            for x in adv_a(): p(x)
    if cfg.dbg & 2: dma_tile(0); p('s_waitcnt vmcnt(0)\ns_barrier')
    if cfg.late1: dma_tile(1)
    srd(p, S_H, pWS, WS_H, 14 << 20)
    srd(p, S_K, pK, 0, 2 << 20)
    srd(p, S_V, pV, 0, 2 << 20)
    srd(p, S_O, pWS, WS_O, 16 << 20)
    P = cfg.P
    def trr(G, tile0, stride):
        step, g2 = divmod(G, 2*NG); s, t = divmod(g2, NG)
        r = vA + 4*(G % RA)
        tag = ('W', NHS, 2*(tile0 + step) + 1, 2*stride) if s == 1 else None
        if t < 14: off = (t // 7)*7168 + (t % 7)*32; a = vTr; hh = 8*224
        else: off = 0; a = vTq + t - 14; hh = 1024
        return [(f'ds_read_b64_tr_b16 v[{r}:{r+1}], v{a} offset:{off}', tag),
                (f'ds_read_b64_tr_b16 v[{r+2}:{r+3}], v{a} offset:{off + hh}', tag)]
    for G in range(P):
        for f in trr(G, 0, 0): emit(p, f)
    UN = 2
    p(f's_mov_b32 s{sDL}, 0\ns_mov_b32 s{sCNT}, {NT//UN}')
    p(f's_waitcnt vmcnt({4*(cfg.ad-1) + (11 if cfg.late1 else 0)})')
    ts.stamp(p)
    p.loop_begin('G_loop', NT//UN)
    mf = []; hi = {}; lo = {}
    def H(i, x): hi.setdefault(i, []).append(x)
    def L(i, x): lo.setdefault(i, []).append(x)
    NGB = 2*NG*UN
    for G in range(NGB):
        step, g2 = divmod(G, 2*NG); s, t = divmod(g2, NG)
        sub = 2*step + s
        for b in range(4):
            ra = vA + 4*(G % RA); rb = vB + 16*(sub % RB) + 4*b
            mf.append(f'v_mfma_f32_16x16x32_bf16 {acc(t,b)}, v[{ra}:{ra+3}], v[{rb}:{rb+3}], {acc(t,b)}')
        i0 = 4*G; Gn = G + P; tn = Gn % NG
        if Gn % (2*NG) == 0:
            stepn = Gn // (2*NG)
            H(i0-1, lambda p, stepn=stepn: (p.need(('W', NHS, 2*stepn + 1, 2*UN)), p('s_barrier')))
        if tn == 0: H(i0-2, f'v_add_u32 v{vTr}, s{sDL}, v{vTr}')
        r0, r1 = trr(Gn % NGB, (Gn // NGB)*UN, UN)
        H(i0, r0); H(i0+1, r1)
        if 1 <= tn <= 8: L(i0, f'v_add_u32 v{vTq+tn-1}, s{sDL}, v{vTq+tn-1}')
        if tn == 9:
            for x in adv_rd(): L(i0, x)
        pc, a = vm_sched(step, g2)
        if a is not None:
            L(i0, act(*a))
            if a[1] == 3 and a[0] % 2 == 1:
                for x in adv_a(): L(i0, x)
        if pc is not None:
            for x in m0set(pc): L(i0, x)
            if m0set(pc): L(i0, m0gap)
            L(i0, dma(pc, step + 2, UN))
            if pc == 6:
                for x in adv_w(): L(i0, x)
            if pc == 10:
                for x in adv_q(): L(i0, x)
    H(len(mf)-3, f's_sub_u32 s{sCNT}, s{sCNT}, 1'); H(len(mf)-2, f's_cmp_lg_u32 s{sCNT}, 0')
    H(len(mf)-1, 's_cbranch_scc1 G_loop')
    fill = spread(hi, lo, len(mf), cfg.cap, 16, cost=lambda i: 1 if i % 4 == 3 else 0)
    fix_m0(fill, len(mf)); chk_tail(fill, len(mf))
    interleave(p, mf, fill)
    p.loop_end()
    p('s_waitcnt vmcnt(0) lgkmcnt(0)\ns_barrier')
    ts.stamp(p)

    vDK, vDV, vK, vV = 8, 12, 13, 21
    sKV, sMK, sAD, sPF = 39, 40, 43, 44
    t = 128
    p(f'v_lshrrev_b32 v{t}, 4, v1\nv_and_b32 v{t+1}, 15, v1')
    p(f's_lshl_b32 s{sMK}, s{sW}, 12')
    p(f'v_lshlrev_b32 v{t+2}, 8, v{t}\nv_add_u32 v{t+2}, s{sMK}, v{t+2}')
    for j in range(4):
        p(f'v_add_u32 v{t+3}, {4*j}, v{t}\nv_xor_b32 v{t+3}, v{t+3}, v{t+1}\nv_lshl_add_u32 v{vDK+j}, v{t+3}, 4, v{t+2}')
    p(f'v_lshlrev_b32 v{t+3}, 2, v{t}\nv_xor_b32 v{t+3}, v{t+3}, v{t+1}\nv_lshl_add_u32 v{vDV}, v{t+3}, 4, v{t+2}')
    p(f's_lshr_b32 s{sKV}, s{sCB}, 3\ns_lshl_b32 s{sKV}, s{sKV}, 19\ns_add_u32 s{sKV}, s{sKV}, {1536*256}')
    def kdma(j, soff, tag): return (f'buffer_load_dwordx4 v{vDK+j}, s[{S_K}:{S_K+3}], s{soff} offen offset:{1024*j} lds', tag)
    def vdma(j, soff, tag): return (f'buffer_load_dwordx4 v{vDV}, s[{S_V}:{S_V+3}], s{soff} offen offset:{1024*j} lds', tag)
    for (kind, tl) in (('K', 0), ('K', 1), ('V', 0), ('K', 2), ('V', 1)):
        p(f's_add_u32 s{sT}, s{sKV}, {tl*16384}\ns_add_u32 m0, s{sMK}, {tl*16384 + (65536 if kind == "V" else 0)}\ns_nop 0')
        for j in range(4): emit(p, (kdma if kind == 'K' else vdma)(j, sT, (kind, 4, tl, 0)))
    k1 = -2*math.sqrt(2/math.pi)*math.log2(math.e); k2 = k1*0.044715
    vC = 28
    p(f'v_mov_b32 v{vC}, {f2u(k1):#x}\nv_mov_b32 v{vC+1}, {f2u(k1):#x}\nv_mov_b32 v{vC+2}, {f2u(k2):#x}\nv_mov_b32 v{vC+3}, {f2u(k2):#x}')
    p(f's_lshl_b32 s{sT+2}, s{sRB}, 4\ns_lshl_b32 s{sT+3}, s{sW}, 2\ns_add_u32 s{sT+2}, s{sT+2}, s{sT+3}\ns_mul_i32 s{sT+2}, s{sT+2}, {112*1024}')
    p(f's_mul_i32 s{sT+3}, s{sCB}, 7\ns_add_u32 s{sT+3}, s{sT+3}, 1\ns_lshr_b32 s{sT+3}, s{sT+3}, 1\ns_lshl_b32 s{sT+3}, s{sT+3}, 10')
    p(f's_add_u32 s{sT+2}, s{sT+2}, s{sT+3}')
    p(f'v_lshlrev_b32 v{t}, 4, v1\nv_add_u32 v{vAct}, s{sT+2}, v{t}')
    for b in range(1, 4): p(f'v_add_u32 v{vAct+b}, {b*112*1024:#x}, v{vAct}')
    p(f's_and_b32 s{sT+3}, s{sCB}, 1\ns_cmp_eq_u32 s{sT+3}, 0\ns_mov_b32 s{sT+4}, 3072\ns_cselect_b32 s{sT+4}, s{sT+4}, -1016')
    vHs = 132
    for b in range(4): p(f'v_add_u32 v{vHs+b}, s{sT+4}, v{vAct+b}')
    def gelu_tiles(tiles):
        n = len(tiles)
        Xs = [32 + 12*i for i in range(n)]
        pk = lambda r: f'v[{r}:{r+1}]'
        for (t, b, d), X in zip(tiles, Xs):
            for r in range(4): p(f'v_accvgpr_read_b32 v{X+r}, {accr(t,b,r)}')
        for X in Xs:
            for r in (0, 2): p(f'v_pk_mul_f32 {pk(X+8+r)}, {pk(X+r)}, {pk(X+r)}')
        for X in Xs:
            for r in (0, 2): p(f'v_pk_fma_f32 {pk(X+8+r)}, {pk(X+8+r)}, {pk(vC+2)}, {pk(vC)}')
        for X in Xs:
            for r in (0, 2): p(f'v_pk_mul_f32 {pk(X+8+r)}, {pk(X+8+r)}, {pk(X+r)}')
        for (t, b, d), X in zip(tiles, Xs):
            for r in range(4): p(f'v_exp_f32 v{X+8+r}, v{X+8+r}')
            for r in range(4): p(f'v_accvgpr_read_b32 v{X+4+r}, {accr(t+7,b,r)}')
        for X in Xs:
            for r in (0, 2): p(f'v_pk_add_f32 {pk(X+8+r)}, {pk(X+8+r)}, 1.0 op_sel_hi:[1,0]')
        for X in Xs:
            for r in range(4): p(f'v_rcp_f32 v{X+8+r}, v{X+8+r}')
            for r in (0, 2): p(f'v_pk_mul_f32 {pk(X+4+r)}, {pk(X+4+r)}, {pk(X+r)}')
        for X in Xs:
            for r in (0, 2): p(f'v_pk_mul_f32 {pk(X+4+r)}, {pk(X+4+r)}, {pk(X+8+r)}')
        for (t, b, d), X in zip(tiles, Xs):
            p(f'v_cvt_pk_bf16_f32 v{d}, v{X+4}, v{X+5}\nv_cvt_pk_bf16_f32 v{d+1}, v{X+6}, v{X+7}')
    for par in range(2):
        if par == 0: p('s_cbranch_scc0 B_epi_odd')
        else: p.cond(True); p('B_epi_odd:')
        n = 0
        for b in range(4):
            for pr in range(3):
                d = 64 + 4*(n % 8); n += 1
                gelu_tiles([(2*pr + par, b, d), (2*pr + 1 + par, b, d + 2)])
                p(f'buffer_store_dwordx4 v[{d}:{d+3}], v{vAct+b}, s[{S_H}:{S_H+3}], 0 offen offset:{1024*pr}{SC}')
        for b in range(0, 4, 2):
            d = 64 + 4*(n % 8); n += 1
            gelu_tiles([(6 if par == 0 else 0, b, d), (6 if par == 0 else 0, b+1, d+2)])
            p(f'buffer_store_dwordx2 v[{d}:{d+1}], v{vHs+b}, s[{S_H}:{S_H+3}], 0 offen{SC}')
            p(f'buffer_store_dwordx2 v[{d+2}:{d+3}], v{vHs+b+1}, s[{S_H}:{S_H+3}], 0 offen{SC}')
        if par == 0: p('s_branch B_epi_done')
    p.cond(False)
    p('B_epi_done:')
    ts.stamp(p)
    vQ = 64
    qs = math.log2(math.e)/math.sqrt(128)
    p(f'v_mov_b32 v{vC}, {f2u(qs):#x}\nv_mov_b32 v{vC+1}, {f2u(qs):#x}')
    for qt in range(2):
        for s in range(8):
            d = vQ + (qt*8+s)*4
            for half in range(2):
                b = 2*qt + half; x = 32 + 4*half
                src = accr(14+s, b, 0)
                if src[0] == 'a':
                    for r in range(4): p(f'v_accvgpr_read_b32 v{x+r}, {accr(14+s, b, r)}')
                    s0 = x
                else: s0 = int(src[1:])
                for r in (0, 2): p(f'v_pk_mul_f32 v[{x+r}:{x+r+1}], v[{s0+r}:{s0+r+1}], v[{vC}:{vC+1}]')
                p(f'v_cvt_pk_bf16_f32 v{d+2*half}, v{x}, v{x+1}\nv_cvt_pk_bf16_f32 v{d+2*half+1}, v{x+2}, v{x+3}')
            if (qt, s) != (0, 0):
                dp = d - 4
                p(f'v_permlane16_swap_b32 v{dp}, v{dp+2}\nv_permlane16_swap_b32 v{dp+1}, v{dp+3}')
    t = 32
    p(f'v_and_b32 v{t}, 31, v1\nv_lshrrev_b32 v{t+1}, 5, v1\nv_and_b32 v{t+2}, 15, v1\nv_xor_b32 v{t+1}, v{t+1}, v{t+2}\nv_lshlrev_b32 v{t}, 8, v{t}')
    p(f'v_permlane16_swap_b32 v124, v126\nv_permlane16_swap_b32 v125, v127')
    for s in range(8):
        p(f'v_xor_b32 v{t+2}, {2*s}, v{t+1}\nv_lshl_add_u32 v{vK+s}, v{t+2}, 4, v{t}')
    p(f'v_lshrrev_b32 v{t}, 5, v1\nv_lshlrev_b32 v{t}, 2, v{t}\nv_bfe_u32 v{t+1}, v1, 2, 2\nv_add_u32 v{t}, v{t}, v{t+1}\nv_lshlrev_b32 v{t}, 8, v{t}')
    p(f'v_bfe_u32 v{t+2}, v1, 4, 1\nv_lshlrev_b32 v{t+2}, 5, v{t+2}\nv_and_b32 v{t+3}, 3, v1\nv_lshlrev_b32 v{t+3}, 3, v{t+3}\nv_add3_u32 v{t}, v{t}, v{t+2}, v{t+3}')
    p(f'v_add_u32 v{t}, 0x10000, v{t}')
    for dt in range(4):
        p(f'v_xor_b32 v{t+2}, {dt}, v{t+1}\nv_lshl_add_u32 v{vV+dt}, v{t+2}, 6, v{t}')
    vS = [128, 160]; vP = [192, 208]; vN = 224; vL = 28
    aF = 192
    def Sreg(n, qt): return vS[n % 2] + 16*qt
    def Preg(n, qt, ks): return vP[n % 2] + 8*qt + 4*ks
    def kread(n, s, tag):
        r = aF + 4*s
        return [(f'ds_read_b128 a[{r}:{r+3}], v{vK+s} offset:{(n % 2)*8192}', tag)]
    def vread(n, f, tag, base=None, off0=None):
        ks, dt = divmod(f, 4); r = aF + 32 + 4*f
        off = (32*(n % 2) + 16*ks)*256 if off0 is None else off0 + 16*ks*256
        b = vV if base is None else base
        return [(f'ds_read_b64_tr_b16 a[{r}:{r+1}], v{b+dt} offset:{off}', tag),
                (f'ds_read_b64_tr_b16 a[{r+2}:{r+3}], v{b+dt} offset:{off+2048}', tag)]
    def qk(n, s, qt, c0):
        S = Sreg(n, qt); c = f'v[{S}:{S+15}]' if s else c0(qt)
        return f'v_mfma_f32_32x32x16_bf16 v[{S}:{S+15}], a[{aF+4*s}:{aF+4*s+3}], v[{vQ+(qt*8+s)*4}:{vQ+(qt*8+s)*4+3}], {c}'
    def pv(n, f, qt):
        ks, dt = divmod(f, 4); o = (dt*2+qt)*16; P_ = Preg(n, qt, ks)
        return f'v_mfma_f32_32x32x16_bf16 a[{o}:{o+15}], a[{aF+32+4*f}:{aF+32+4*f+3}], v[{P_}:{P_+3}], a[{o}:{o+15}]'
    negm = lambda qt: f'v[{vN+16*qt}:{vN+16*qt+15}]'
    zero = lambda qt: '0'
    def softmax_ops(n):
        sl = [[] for _ in range(33)]
        for e in range(32):
            qt, i = divmod(e, 16); S = Sreg(n, qt)
            sl[e].insert(0, f'v_exp_f32 v{S+i}, v{S+i}')
            sl[e+1].append(f'v_add_f32 v{vL+2*qt+(i&1)}, v{vL+2*qt+(i&1)}, v{S+i}')
            if i & 1: sl[e+1].append(f'v_cvt_pk_bf16_f32 v{Preg(n, qt, i>>3)+((i&7)>>1)}, v{S+i-1}, v{S+i}')
        return sl
    p.need(('K', 4, 0, 0)); p('s_barrier')
    for s in range(8): emit(p, kread(0, s, ('K', 4, 0, 0))[0])
    for i in range(128): p(f'v_accvgpr_write_b32 a{i}, 0')
    for i in range(4): p(f'v_mov_b32 v{vL+i}, 0')
    p(f's_mov_b32 s{sAD}, 0')
    vPF = 25
    p(f's_lshl_b32 s{sT}, s2, 2\ns_add_u32 s{sT}, s{sT}, s{sW}\ns_lshl_b32 s{sT+1}, s{sT}, 13\ns_mul_i32 s{sT}, s{sT}, 7168')
    p(f'v_lshlrev_b32 v{vPF}, 4, v1\nv_add_u32 v{vPF+1}, s{sT}, v{vPF}\nv_add_u32 v{vPF}, s{sT+1}, v{vPF}')
    srd(p, S_W, pWO, 0, 8 << 20); srd(p, S_Q, pWD, 0, 7 << 20)
    p(f's_lshl_b32 s{sT}, s{sRB}, 12\ns_lshl_b32 s{sT+1}, s{sCB}, 7\ns_add_u32 s{sT}, s{sT}, s{sT+1}\ns_add_u32 s{sT}, s{sT}, {256*128}\nv_mov_b32 v{vHF}, s{sT}')
    sHW = 48; sDM = 55
    p(f's_add_u32 s{sDM}, s{sMK}, 0x20000')
    p(f's_cmp_eq_u32 s{sW}, 0\ns_cselect_b32 s{sHW}, 5, -1')
    ts.stamp(p)
    for s in range(8):
        for qt in range(2): p(qk(0, s, qt, zero))
        emit(p, kread(1, s, ('K', 4, 0, 0))[0])
    p(f's_mov_b32 s{sPF}, 7168\ns_add_u32 m0, s{sMK}, s{sDM}\ns_nop 0')
    p(f'buffer_load_dwordx4 v{vPF}, s[{S_W}:{S_W+3}], s{sPF} offen lds\ns_mov_b32 s{sPF}, 0')
    p('s_nop 6')
    def rowmax(n, first):
        for qt in range(2):
            S = Sreg(n, qt); m = 32 + 2*qt
            if first: p(f'v_max3_f32 v{m}, v{S}, v{S+1}, v{S+2}')
            else: p(f'v_max3_f32 v{m}, v{m}, v{S+1}, v{S+2}\nv_max_f32 v{m}, v{m}, v{S}')
            for i in range(3, 15, 2): p(f'v_max3_f32 v{m}, v{m}, v{S+i}, v{S+i+1}')
            p(f'v_max_f32 v{m}, v{m}, v{S+15}')
    def set_negm():
        for qt in range(2):
            m = 32 + 2*qt
            p(f'v_mov_b32 v{m+1}, v{m}\ns_nop 1\nv_permlane32_swap_b32 v{m}, v{m+1}\ns_nop 1\nv_max_f32 v{m}, v{m}, v{m+1}')
            p(f'v_sub_f32 v{vN+16*qt}, 0, v{m}')
            for i in range(1, 16): p(f'v_mov_b32 v{vN+16*qt+i}, v{vN+16*qt}')
    rowmax(0, True); set_negm()
    for qt in range(2):
        S = Sreg(0, qt)
        for i in range(0, 16, 2): p(f'v_pk_add_f32 v[{S+i}:{S+i+1}], v[{S+i}:{S+i+1}], v[{vN+16*qt}:{vN+16*qt+1}]')
    PF = cfg.PF
    def build(its, tile_tagK, tile_tagV, nxt, extra=None):
        pairs = []; sm = []
        for (nq, ns, npv) in its:
            st = len(pairs)
            if nq is not None:
                for s in range(8): pairs.append((qk(nq, s, 0, negm), qk(nq, s, 1, negm), kread(nq, s, tile_tagK(nq))))
            if npv is not None:
                for f in range(8): pairs.append((pv(npv, f, 0), pv(npv, f, 1), vread(npv, f, tile_tagV(npv))))
            if ns is not None: sm.append((st, len(pairs), softmax_ops(ns)))
        mf = []; fill = {}
        def F(i, x): fill.setdefault(i, []).append(x)
        for i, (a, b, _) in enumerate(pairs): mf += [a, b]
        if extra: extra(F, len(mf))
        for i in range(len(pairs)):
            j = i + PF
            rds = pairs[j][2] if j < len(pairs) else nxt(j - len(pairs))
            for k, r in enumerate(rds): F(2*i + k, r)
        for (st, en, sl) in sm:
            ng = 2*(en - st)
            for e, ops in enumerate(sl):
                g = 2*st + min(ng - 1, e*ng//32)
                for o in ops: F(g, o)
        return mf, fill
    def nxt0(k): return kread(2, k, ('K', 4, 1, 0))
    def extra0(F, n):
        pos = 2*(8 - PF)
        F(pos - 1, lambda p: (p.need(('K', 4, 1, 0)), p.need(('V', 4, 0, 0)), p('s_barrier')))
        for s in range(8): F(s, f'v_add_u32 v{vK+s}, 0x4000, v{vK+s}')
    mf, fill = build([(1, 0, None)], lambda n: None, None, nxt0, extra0)
    fill = {k: [x for x in v if not (isinstance(x, tuple) and x[1] is None)] for k, v in fill.items()}
    interleave(p, mf, fill)
    p(f's_mov_b32 s{sLEFT}, 7\ns_add_u32 s{sKA}, s{sKV}, {2*16384}\ns_mov_b32 s{sRD}, {2*16384}')
    p.loop_begin('A_loop', 7)
    def extra(F, n):
        pos = n - 2*PF
        F(pos - 1, lambda p: (p.need(('K', 4, 2, 1)), p.need(('V', 4, 1, 1)), p('s_barrier')))
        g0 = 2*(24-PF)
        for k, x in enumerate([f's_add_u32 s{sAD}, s{sAD}, 1', f's_and_b32 s{sT}, s{sAD}, 3', f's_cmp_eq_u32 s{sT}, 3', f's_mov_b32 s{sDL}, 0x4000', f's_cselect_b32 s{sDL}, -0xc000, s{sDL}',
                               f's_cmp_eq_u32 s{sT}, 0', f's_mov_b32 s{sT+1}, 0x4000', f's_cselect_b32 s{sT+1}, -0xc000, s{sT+1}']):
            F(g0 - 8 + k, x)
        for s in range(8): F(g0 + s, f'v_add_u32 v{vK+s}, s{sDL}, v{vK+s}')
        for dt in range(4): F(n - 2*PF + 1 + dt, f'v_add_u32 v{vV+dt}, s{sT+1}, v{vV+dt}')
        F(0, f's_add_u32 s{sT+2}, s{sRD}, 0x4000'); F(0, f's_and_b32 s{sT+2}, s{sT+2}, 0xffff')
        F(1, f's_cmp_le_u32 s{sLEFT}, 2'); F(1, f's_cselect_b32 s{sT+2}, s{sDM}, s{sT+2}')
        F(2, f's_cselect_b32 s{S_K+2}, 0, s{S_K+2}'); F(2, f's_add_u32 m0, s{sT+2}, s{sMK}')
        F(3, f's_add_u32 s{sT+3}, s{sKA}, 0x4000')
        for j in range(4): F(4 + 3*j, kdma(j, sT+3, ('K', 4, 3, 1)))
        F(14, f's_add_u32 s{sT+2}, s{sRD}, 0x10000'); F(14, f's_cmp_le_u32 s{sLEFT}, 1')
        F(15, f's_cselect_b32 s{sT+2}, s{sDM}, s{sT+2}'); F(15, f's_cselect_b32 s{S_V+2}, 0, s{S_V+2}')
        F(16, f's_add_u32 m0, s{sT+2}, s{sMK}')
        for j in range(4): F(17 + 3*j, vdma(j, sKA, ('V', 4, 2, 1)))
        F(27, f's_add_u32 s{sKA}, s{sKA}, 0x4000'); F(28, f's_add_u32 s{sRD}, s{sRD}, 0x4000'); F(29, f's_and_b32 s{sRD}, s{sRD}, 0xffff')
        F(30, f's_add_u32 m0, s{sMK}, s{sDM}')
        F(31, f'buffer_load_dwordx4 v{vPF}, s[{S_W}:{S_W+3}], s{sPF} offen lds')
        F(33, f'buffer_load_dwordx4 v{vPF+1}, s[{S_Q}:{S_Q+3}], s{sPF} offen lds')
        F(33, f's_add_u32 s{sPF}, s{sPF}, 1024')
        F(50, f's_cmp_eq_u32 s{sLEFT}, s{sHW}'); F(50, 's_cbranch_scc0 A_noflag')
        F(50, f'buffer_store_dwordx2 v[2:3], v{vHF}, s[{S_FL}:{S_FL+3}], 0 offen sc1 ;cond'); F(50, 'A_noflag:')
        F(n-3, f's_sub_u32 s{sLEFT}, s{sLEFT}, 1'); F(n-2, f's_cmp_lg_u32 s{sLEFT}, 0')
    mf, fill = build([(2, 1, 0), (3, 2, 1)], lambda n: ('K', 4, 1, 1), lambda n: ('V', 4, 0, 1),
                     lambda k: kread(2, k, None), extra)
    fill.setdefault(len(mf)-1, []).append('s_cbranch_scc1 A_loop')
    interleave(p, mf, fill)
    p.loop_end()
    S_A, S_CW, S_X, S_OUT, S_G, S_P = 16, 8, 12, 20, 24, 28
    sGM, sKH, sRC, sCC = 39, 41, 43, 44
    cKW, cKA, cCNT, cMW, cTG, cST = 45, 46, 42, 47, 48, 49
    cAct, cD, cTr, cA, cC = 48, 40, 52, 64, 128
    for f in range(PF):
        for r in vread(14, f, ('V', 4, 7, 0)): emit(p, r)
    pre = Prog(); q = p; p = pre
    c_role(sGM, sKH, sRC, sCC, sT)
    p(f's_cmp_eq_u32 s{sGM}, 1')
    p(f's_cselect_b32 s{S_CW}, s{pWO}, s{pWD}\ns_cselect_b32 s{S_CW+1}, s{pWO+1}, s{pWD+1}')
    p(f's_mov_b32 s{sT}, {8<<20}\ns_cselect_b32 s{S_CW+2}, s{sT}, {7<<20}')
    p(f's_mov_b32 s{cST}, {128*1024}\ns_cselect_b32 s{cST}, s{cST}, {112*1024}')
    p(f's_cselect_b32 s{cCNT}, 8, 7')
    p(f's_mul_i32 s{cKA}, s{sKH}, s{cST}\ns_lshl_b32 s{cKW}, s{cKA}, 5\ns_lshr_b32 s{cKA}, s{cKA}, 1')
    t = 36
    p(f's_lshl_b32 s{sT+2}, s{sW}, 16\ns_lshl_b32 s{sT+3}, s{sCC}, 8\ns_add_u32 s{sT+2}, s{sT+2}, s{sT+3}')
    p(f'v_lshrrev_b32 v{t}, 4, v1\nv_and_b32 v{t+1}, 15, v1\nv_lshlrev_b32 v{t+2}, 1, v{t}\nv_xor_b32 v{t+1}, v{t+1}, v{t+2}')
    p(f'v_lshlrev_b32 v{t}, 11, v{t}\nv_add_u32 v{t}, s{sT+2}, v{t}')
    p(f's_lshl_b32 s{cMW}, s{sW}, 13')
    SLOT = 32768; D = 2
    def cdma(pc, tile, stride): return (f'buffer_load_dwordx4 v{cD+pc}, s[{S_CW}:{S_CW+3}], s{cKW} offen offset:{1024*(pc%4)} lds', ('C', 4, tile, stride))
    p(f's_cmp_eq_u32 s{sGM}, 1')
    for pc in range(8):
        sw = (pc & 1) | ((pc & 2) << 1) | ((pc & 4) >> 1)
        ko = 4*sw*2048 - 1024*(pc % 4); kh = 4*pc*2048 - 1024*(pc % 4)
        if ko != kh: p(f's_mov_b32 s{sT+3}, {ko}\ns_cselect_b32 s{sT+3}, s{sT+3}, {kh}')
        else: p(f's_mov_b32 s{sT+3}, {ko}')
        p(f'v_xor_b32 v{t+2}, {8*(pc & 1)}, v{t+1}\nv_lshl_add_u32 v{t+2}, v{t+2}, 4, v{t}\nv_add_u32 v{cD+pc}, s{sT+3}, v{t+2}')
    for tile in range(2):
        for d in range(8):
            if d % 4 == 0: p(f's_add_u32 m0, s{cMW}, {tile*SLOT + 1024*d}\ns_nop 0')
            emit(p, cdma(d, tile, 0))
        p(f's_add_u32 s{cKW}, s{cKW}, {128*2048}')
    p = q
    pre_items = [(it.text, it.tag) for it in pre.items]
    def extraT(F, n):
        for k, x in enumerate(pre_items): F(min(n - 1, 12 + k*20//len(pre_items)), x)
    mf, fill = build([(None, 15, 14), (None, None, 15)], None, lambda n: ('V', 4, 7, 0), lambda k: [], extraT)
    interleave(p, mf, fill)
    ts.stamp(p)
    for qt in range(2):
        l = vL + 2*qt
        p(f'v_add_f32 v{l}, v{l}, v{l+1}\nv_mov_b32 v{l+1}, v{l}\ns_nop 1\nv_permlane32_swap_b32 v{l}, v{l+1}\ns_nop 1\nv_add_f32 v{l}, v{l}, v{l+1}')
    p(f'v_max_f32 v33, v{vL}, v{vL+2}\nv_add_f32 v33, v33, v{vL}\nv_add_f32 v33, v33, v{vL+2}')
    p(f's_mov_b32 s{sT}, {f2u(2.0**cfg.thr):#x}\nv_cmp_nlt_f32 vcc, v33, s{sT}\ns_nop 1\ns_cbranch_vccnz A_slow')
    p('A_done:')
    p(f'v_rcp_f32 v{vL}, v{vL}\nv_rcp_f32 v{vL+2}, v{vL+2}')
    t = 32
    p(f's_lshl_b32 s{sT}, s{sRB}, 4\ns_lshl_b32 s{sT+1}, s{sW}, 2\ns_add_u32 s{sT}, s{sT}, s{sT+1}\ns_lshl_b32 s{sT}, s{sT}, 17\ns_lshl_b32 s{sT+1}, s{sCB}, 12\ns_add_u32 s{sT}, s{sT}, s{sT+1}')
    p(f'v_bfe_u32 v{t}, v1, 4, 1\nv_lshlrev_b32 v{t}, 17, v{t}\nv_lshrrev_b32 v{t+1}, 5, v1\nv_lshlrev_b32 v{t+1}, 8, v{t+1}\nv_and_b32 v{t+2}, 15, v1\nv_lshlrev_b32 v{t+2}, 4, v{t+2}')
    p(f'v_add3_u32 v{t}, v{t}, v{t+1}, v{t+2}\nv_add_u32 v4, s{sT}, v{t}\nv_add_u32 v5, 0x40000, v4')
    p(f'v_mov_b32 v{vL+1}, v{vL}\nv_mov_b32 v{vL+3}, v{vL+2}')
    n = 0
    for dt in range(4):
        for qt in range(2):
            o = (dt*2+qt)*16
            for half in range(2):
                x = 128 + 8*(n % 4); d = 64 + 4*(n % 8); n += 1
                for i in range(8): p(f'v_accvgpr_read_b32 v{x+i}, a{o+8*half+i}')
                for i in range(0, 8, 2): p(f'v_pk_mul_f32 v[{x+i}:{x+i+1}], v[{x+i}:{x+i+1}], v[{vL+2*qt}:{vL+2*qt+1}]')
                for i in range(0, 8, 2): p(f'v_cvt_pk_bf16_f32 v{d+i//2}, v{x+i}, v{x+i+1}')
                p(f'buffer_store_dwordx4 v[{d}:{d+3}], v{4+qt}, s[{S_O}:{S_O+3}], 0 offen offset:{dt*1024 + half*512}{SC}')
    p(f's_cmp_eq_u32 s{sGM}, 1')
    p(f's_mov_b32 s{sT}, {WS_O}\ns_cselect_b32 s{sT}, s{sT}, {WS_H}')
    p(f's_mov_b32 s{sT+1}, {16<<20}\ns_cselect_b32 s{S_A+2}, s{sT+1}, {14<<20}')
    p(f's_add_u32 s{S_A}, s{pWS}, s{sT}\ns_addc_u32 s{S_A+1}, s{pWS+1}, 0\ns_mov_b32 s{S_A+3}, 0x20000')
    srd(p, S_X, pX, 0, 4 << 20); srd(p, S_OUT, pOUT, 0, 4 << 20)
    srd(p, S_G, pWS, WS_G, 4 << 20); srd(p, S_P, pWS, WS_P, 8 << 20)
    t = 32
    p(f's_lshl_b32 s{sT}, s{sRC}, 4\ns_lshl_b32 s{sT+2}, s{sW}, 2\ns_add_u32 s{sT}, s{sT}, s{sT+2}\ns_mul_i32 s{sT+2}, s{sT}, s{cST}')
    p(f'v_lshlrev_b32 v24, 4, v1\nv_add_u32 v25, 0x1000, v24\nv_add_u32 v{cAct}, s{sT+2}, v24')
    for b in range(1, 4): p(f'v_add_u32 v{cAct+b}, s{cST}, v{cAct+b-1}')
    p(f's_lshl_b32 s{sT+3}, s{sKH}, 2')
    p(f'v_lshrrev_b32 v{t}, 2, v1\nv_and_b32 v{t+1}, 7, v{t}\nv_xor_b32 v{t+1}, s{sT+3}, v{t+1}\nv_lshlrev_b32 v{t}, 8, v{t}\nv_and_b32 v{t+2}, 3, v1\nv_lshl_add_u32 v{t}, v{t+2}, 3, v{t}')
    for tt in range(8):
        p(f'v_xor_b32 v{t+2}, {tt}, v{t+1}\nv_lshl_add_u32 v{cTr+tt}, v{t+2}, 5, v{t}')
    sPS, sPR, sGO = 32, 33, 34
    vX, vG, vR, vO = 96, 64, 224, 60
    sID, sME = sT, sT+1
    p(f's_lshl_b32 s{sID}, s{sRC}, 3\ns_add_u32 s{sID}, s{sID}, s{sCC}\ns_lshl_b32 s{sID}, s{sID}, 1\ns_add_u32 s{sID}, s{sID}, s{sKH}')
    p(f's_lshl_b32 s{sME}, s{sGM}, 7\ns_add_u32 s{sME}, s{sME}, s{sID}')
    p(f's_lshl_b32 s{sT+3}, s{sW}, 13\ns_lshl_b32 s{sPS}, s{sME}, 15\ns_add_u32 s{sPS}, s{sPS}, s{sT+3}\ns_xor_b32 s{sPR}, s{sPS}, 0x8000')
    p(f's_lshl_b32 s{sGO}, s{sID}, 15\ns_add_u32 s{sGO}, s{sGO}, s{sT+3}')
    vFP, vFQ, vFG, vFO, vFW = 8, 9, 10, 11, 12
    p(f's_add_u32 s{sT+2}, s{sME}, 768\ns_lshl_b32 s{sT+2}, s{sT+2}, 7\nv_mov_b32 v{vFP}, s{sT+2}\ns_xor_b32 s{sT+2}, s{sT+2}, 128\nv_mov_b32 v{vFQ}, s{sT+2}')
    p(f's_add_u32 s{sT+3}, s{sID}, 1024\ns_lshl_b32 s{sT+3}, s{sT+3}, 7\nv_mov_b32 v{vFG}, s{sT+3}')
    p(f's_cmp_eq_u32 s{sGM}, 1\ns_cselect_b32 s{sT+2}, s{sT+3}, s{sT+2}\ns_cselect_b32 s{S_X+2}, s{S_X+2}, 0')
    p(f'v_writelane_b32 v{vFQ}, s{sT+2}, 1\nv_add_u32 v{vFO}, {256*128}, v{vHF}')
    p(f's_lshl_b32 s{sT+2}, s{sGM}, 3\ns_add_u32 s{sT+2}, s{sT+2}, s{sRC}\ns_add_u32 s{sT+2}, s{sT+2}, 8\ns_lshl_b32 s{sT+2}, s{sT+2}, 12')
    p(f'v_and_b32 v{vFW}, 31, v1\nv_lshl_add_u32 v{vFW}, v{vFW}, 7, s{sT+2}')
    p(f's_lshl_b32 s{sT+2}, s{sRC}, 8\ns_lshl_b32 s{sT+3}, s{sW}, 6\ns_add_u32 s{sT+2}, s{sT+2}, s{sT+3}\ns_lshl_b32 s{sT+2}, s{sT+2}, 11')
    p(f's_lshl_b32 s{sT+3}, s{sCC}, 8\ns_add_u32 s{sT+2}, s{sT+2}, s{sT+3}\ns_lshl_b32 s{sT+3}, s{sKH}, 7\ns_add_u32 s{sT+2}, s{sT+2}, s{sT+3}')
    p(f'v_and_b32 v{t}, 15, v1\nv_lshlrev_b32 v{t}, 11, v{t}\nv_add_u32 v{t}, s{sT+2}, v{t}\nv_lshrrev_b32 v{t+1}, 4, v1')
    p(f'v_and_b32 v{vO}, 1, v{t+1}\nv_lshlrev_b32 v{vO}, 5, v{vO}\nv_lshrrev_b32 v{vO+1}, 1, v{t+1}\nv_lshlrev_b32 v{vO+1}, 4, v{vO+1}\nv_add3_u32 v{vO}, v{vO}, v{vO+1}, v{t}')
    for b in range(1, 4): p(f'v_add_u32 v{vO+b}, 0x8000, v{vO+b-1}')
    for i in range(128): p(f'v_mov_b32 v{cC+i}, 0')
    p('s_waitcnt vmcnt(0)\ns_barrier')
    ts.stamp(p)
    p(f's_cmp_eq_u32 s{sW}, 0\ns_cbranch_scc0 L_oh_got')
    p.cond(True)
    p(f'buffer_store_dwordx2 v[2:3], v{vFO}, s[{S_FL}:{S_FL+3}], 0 offen sc1')
    poll('L_oh_poll', vFW, 'L_oh_got')
    p.cond(False)
    p('L_oh_got:\ns_barrier')
    ts.stamp(p)
    RA, RB = 8, 8
    def cact(sub, b):
        r = 128 + 16*(sub % RB) + 4*b
        return f'buffer_load_dwordx4 a[{r}:{r+3}], v{cAct+b}, s[{S_A}:{S_A+3}], s{cKA} offen offset:{1024*(sub % 4)}{SC}'
    ad = cfg.cad
    def cvm(step, g):
        s, t = divmod(g, 8); sub = 4*step + s
        d = None; a = None
        if g % cfg.cdstr == 1 and g // cfg.cdstr < 8: d = g // cfg.cdstr
        if t % 2 == 0: a = (sub + ad, t // 2)
        return d, a
    for sub in range(ad):
        for b in range(4): p(cact(sub, b))
        if sub % 4 == 3: p(f's_add_u32 s{cKA}, s{cKA}, 4096')
    for m in range(2):
        for b in range(4):
            r = vX + (m*4+b)*4
            p(f'buffer_load_dwordx4 v[{r}:{r+3}], v{vO+b}, s[{S_X}:{S_X+3}], 0 offen offset:{64*m}')
    p(f's_add_u32 s{cMW}, s{cMW}, 0x10000')
    P = cfg.cP
    NGB = 64
    def ctr(G, tile0, stride):
        step, g = divmod(G, 32); s, t = divmod(g, 8)
        r = cA + 4*(G % RA); a = cTr + t
        off = (step % 2)*SLOT + s*8192
        tag = ('C', 4, tile0 + step, stride)
        return [(f'ds_read_b64_tr_b16 v[{r}:{r+1}], v{a} offset:{off}', tag),
                (f'ds_read_b64_tr_b16 v[{r+2}:{r+3}], v{a} offset:{off + 4096}', tag)]
    for G in range(P):
        for f in ctr(G, 0, 0): emit(p, f)
    p(f's_mov_b32 s{cTG}, 0x10000')
    p(f's_waitcnt vmcnt({4*(ad-1) + 8})')
    ts.stamp(p)
    p.loop_begin('C_loop', 8)
    mf = []; hi = {}; lo = {}
    for G in range(NGB):
        step, g = divmod(G, 32); s, t = divmod(g, 8); sub = 4*step + s
        for b in range(4):
            ra = cA + 4*(G % RA); rb = 128 + 16*(sub % RB) + 4*b; c = cC + (t*4+b)*4
            mf.append(f'v_mfma_f32_16x16x32_bf16 v[{c}:{c+3}], v[{ra}:{ra+3}], a[{rb}:{rb+3}], v[{c}:{c+3}]')
        i0 = 4*G; Gn = G + P
        if Gn % 32 == 0:
            stepn = Gn // 32
            H(i0-1, lambda p, stepn=stepn: (p.need(('C', 4, stepn, 2)), p('s_barrier')))
        r0, r1 = ctr(Gn % NGB, (Gn // NGB)*2, 2)
        H(i0, r0); H(i0+1, r1)
        if NGB - 8 <= Gn < NGB: H(i0+2, f'v_xor_b32 v{cTr + Gn % 8}, s{cTG}, v{cTr + Gn % 8}')
        d, a = cvm(step, g)
        if a is not None:
            L(i0, cact(*a))
            if a[1] == 3 and a[0] % 4 == 3: L(i0, f's_add_u32 s{cKA}, s{cKA}, 4096')
        if d is not None:
            if d % 4 == 0: L(i0, f's_add_u32 m0, s{cMW}, {(step % 2)*SLOT + 1024*d}'); L(i0, m0gap)
            L(i0, cdma(d, step + D, 2))
            if d == 7:
                L(i0, f's_add_u32 s{cKW}, s{cKW}, {128*2048}')
                if step == 1: L(i0, f's_xor_b32 s{cMW}, s{cMW}, 0x10000')
    H(len(mf)-3, f's_sub_u32 s{cCNT}, s{cCNT}, 1'); H(len(mf)-2, f's_cmp_lg_u32 s{cCNT}, 0')
    H(len(mf)-1, 's_cbranch_scc1 C_loop')
    fill = spread(hi, lo, len(mf), cfg.cap, 16, cost=lambda i: 1 if i % 4 == 3 else 0)
    fix_m0(fill, len(mf)); chk_tail(fill, len(mf))
    interleave(p, mf, fill)
    p.loop_end()
    p('s_waitcnt lgkmcnt(0)\ns_nop 4')
    ts.stamp(p)
    vC = cC
    for i in range(8):
        c = vC + 64 + 8*i; d = vC + 64 + 4*i
        for r in range(4): p(f'v_cvt_pk_bf16_f32 v{d+r}, v{c+2*r}, v{c+2*r+1}')
        p(f'buffer_store_dwordx4 v[{d}:{d+3}], v{24 + i//4}, s[{S_P}:{S_P+3}], s{sPS} offen offset:{1024*(i%4)} sc1')
    p('s_waitcnt vmcnt(0)\ns_barrier')
    p(f's_cmp_eq_u32 s{sW}, 0\ns_cbranch_scc0 C_got')
    p.cond(True)
    p(f'buffer_store_dwordx2 v[2:3], v{vFP}, s[{S_FL}:{S_FL+3}], 0 offen sc1')
    poll('C_poll', vFQ, 'C_got')
    p.cond(False)
    p('C_got:\ns_barrier')
    ts.stamp(p)
    for i in range(8):
        c = vR + 4*i
        p(f'buffer_load_dwordx4 v[{c}:{c+3}], v{24 + i//4}, s[{S_P}:{S_P+3}], s{sPR} offen offset:{1024*(i%4)} sc1')
    p(f's_mov_b32 s{sT+3}, 0xffff0000')
    p(f's_cmp_eq_u32 s{sGM}, 1\ns_cbranch_scc1 C_s_epi')
    p(f's_mov_b32 s{sT+4}, {f2u(-math.log2(math.e)):#x}')
    def addpart(i2):
        c = vC + 8*i2; rr = vR + 4*i2; tt = 32 + 8*(i2 % 2)
        for r in range(4): p(f'v_lshlrev_b32 v{tt+2*r}, 16, v{rr+r}\nv_and_b32 v{tt+2*r+1}, s{sT+3}, v{rr+r}')
        for r in range(0, 8, 2): p(f'v_pk_add_f32 v[{c+r}:{c+r+1}], v[{c+r}:{c+r+1}], v[{tt+r}:{tt+r+1}]')
    for i2 in range(8):
        c = vC + 8*i2; tt = 32 + 8*(i2 % 2); d = vG + 4*i2
        addpart(i2)
        for r in range(8): p(f'v_mul_f32 v{tt+r}, s{sT+4}, v{c+r}')
        for r in range(8): p(f'v_exp_f32 v{tt+r}, v{tt+r}')
        for r in range(0, 8, 2): p(f'v_pk_add_f32 v[{tt+r}:{tt+r+1}], v[{tt+r}:{tt+r+1}], 1.0 op_sel_hi:[1,0]')
        for r in range(8): p(f'v_rcp_f32 v{tt+r}, v{tt+r}')
        for r in range(0, 8, 2): p(f'v_pk_mul_f32 v[{tt+r}:{tt+r+1}], v[{tt+r}:{tt+r+1}], v[{c+r}:{c+r+1}]')
        for r in range(4): p(f'v_cvt_pk_bf16_f32 v{d+r}, v{tt+2*r}, v{tt+2*r+1}')
        p(f'buffer_store_dwordx4 v[{d}:{d+3}], v{24 + i2//4}, s[{S_G}:{S_G+3}], s{sGO} offen offset:{1024*(i2 % 4)} sc1')
    p('s_waitcnt vmcnt(0)\ns_barrier')
    p(f's_cmp_eq_u32 s{sW}, 0\ns_cbranch_scc0 C_fin')
    p(f'buffer_store_dwordx2 v[2:3], v{vFG}, s[{S_FL}:{S_FL+3}], 0 offen sc1')
    p('s_branch C_fin')
    p('C_s_epi:')
    for i2 in range(8):
        d = vG + 4*i2
        p(f'buffer_load_dwordx4 v[{d}:{d+3}], v{24 + i2//4}, s[{S_G}:{S_G+3}], s{sGO} offen offset:{1024*(i2 % 4)} sc1')
    p('s_waitcnt vmcnt(8)')
    for i2 in range(8): addpart(i2)
    for m in range(2):
        for b in range(4):
            o = 48 + 4*((m*4+b) % 3); xr = vX + (m*4+b)*4
            c0 = vC + ((2*m)*4+b)*4; c1 = vC + ((2*m+1)*4+b)*4
            for h in range(2):
                c = (c0, c1)[h]; gr = vG + ((2*m+h)*4+b)*2
                for q in range(2):
                    p(f'v_lshlrev_b32 v{32+4*h+2*q}, 16, v{gr+q}\nv_and_b32 v{33+4*h+2*q}, s{sT+3}, v{gr+q}')
                for q in range(2):
                    p(f'v_pk_mul_f32 v[{c+2*q}:{c+2*q+1}], v[{32+4*h+2*q}:{33+4*h+2*q}], v[{c+2*q}:{c+2*q+1}]')
            for q in range(4): p(f'v_lshlrev_b32 v{40+2*q}, 16, v{xr+q}\nv_and_b32 v{41+2*q}, s{sT+3}, v{xr+q}')
            for r in range(4): p(f'v_permlane16_swap_b32 v{c0+r}, v{c1+r}')
            p('s_nop 0')
            for q in range(4):
                c = (c0, c0+2, c1, c1+2)[q]
                p(f'v_pk_add_f32 v[{40+2*q}:{41+2*q}], v[{40+2*q}:{41+2*q}], v[{c}:{c+1}]')
            for q in range(4): p(f'v_cvt_pk_bf16_f32 v{o+q}, v{40+2*q}, v{41+2*q}')
            p(f'buffer_store_dwordx4 v[{o}:{o+3}], v{vO+b}, s[{S_OUT}:{S_OUT+3}], 0 offen offset:{64*m}')
    p('C_fin:')
    ts.stamp(p)
    ts.dump(p, pWS)
    p('K_end:\ns_endpgm')
    autowait(p); check(p, 'main')

    z = Prog(); main = p; p = z
    p('A_slow:')
    p('s_waitcnt vmcnt(0) lgkmcnt(0)')
    srd(p, S_K, pK, 0, 2 << 20); srd(p, S_V, pV, 0, 2 << 20)
    zK, zD, zV = 13, 14, 21
    zKV, zN = sT, sT+1
    p(f's_lshr_b32 s{zKV}, s{sCB}, 3\ns_lshl_b32 s{zKV}, s{zKV}, 19\ns_add_u32 s{zKV}, s{zKV}, {1536*256}')
    p(f'v_and_b32 v{zK}, 31, v1\nv_lshlrev_b32 v{zK}, 8, v{zK}\nv_lshrrev_b32 v36, 5, v1\nv_lshl_add_u32 v{zK}, v36, 4, v{zK}')
    p(f'v_lshrrev_b32 v36, 4, v1\nv_and_b32 v37, 15, v1\nv_lshlrev_b32 v38, 2, v36\nv_xor_b32 v37, v37, v38\nv_lshlrev_b32 v36, 8, v36\nv_lshl_add_u32 v{zD}, v37, 4, v36\nv_add_u32 v{zD+1}, 0x1000, v{zD}')
    t = 36
    p(f'v_lshrrev_b32 v{t}, 5, v1\nv_lshlrev_b32 v{t}, 2, v{t}\nv_bfe_u32 v{t+1}, v1, 2, 2\nv_add_u32 v{t}, v{t}, v{t+1}\nv_lshlrev_b32 v{t}, 8, v{t}')
    p(f'v_bfe_u32 v{t+2}, v1, 4, 1\nv_lshlrev_b32 v{t+2}, 5, v{t+2}\nv_and_b32 v{t+3}, 3, v1\nv_lshlrev_b32 v{t+3}, 3, v{t+3}\nv_add3_u32 v{t}, v{t}, v{t+2}, v{t+3}')
    p(f's_lshl_b32 s{sT+2}, s{sW}, 13\ns_add_u32 s{sT+2}, s{sT+2}, 0x20000\nv_add_u32 v{t}, s{sT+2}, v{t}')
    for dt in range(4): p(f'v_xor_b32 v{t+2}, {dt}, v{t+1}\nv_lshl_add_u32 v{zV+dt}, v{t+2}, 6, v{t}')
    def kglob():
        for s in range(8): p(f'buffer_load_dwordx4 a[{aF+4*s}:{aF+4*s+3}], v{zK}, s[{S_K}:{S_K+3}], s{zN} offen offset:{32*s}')
    p(f'v_mov_b32 v32, 0xff800000\nv_mov_b32 v34, 0xff800000\ns_mov_b32 s{zN}, s{zKV}\ns_mov_b32 s{sT+3}, 16')
    p.loop_begin('Z1_loop', 16, align=False)
    kglob()
    for s in range(8):
        for qt in range(2): p(qk(0, s, qt, zero))
    p('s_nop 7\ns_nop 3')
    rowmax(0, False)
    p(f's_add_u32 s{zN}, s{zN}, 8192\ns_sub_u32 s{sT+3}, s{sT+3}, 1\ns_cmp_lg_u32 s{sT+3}, 0\ns_cbranch_scc1 Z1_loop')
    p.loop_end()
    set_negm()
    for i in range(128): p(f'v_accvgpr_write_b32 a{i}, 0')
    for i in range(4): p(f'v_mov_b32 v{vL+i}, 0')
    p(f's_mov_b32 s{zN}, s{zKV}\ns_mov_b32 s{sT+3}, 16')
    p.loop_begin('Z2_loop', 16, align=False)
    kglob()
    for j in range(8):
        if j % 4 == 0: p(f's_add_u32 m0, s{sT+2}, {1024*j}\ns_nop 0')
        p(f'buffer_load_dwordx4 v{zD + j//4}, s[{S_V}:{S_V+3}], s{zN} offen offset:{1024*(j%4)} lds')
    for s in range(8):
        for qt in range(2): p(qk(0, s, qt, negm))
    p('s_nop 7\ns_nop 3')
    for ops in softmax_ops(0):
        for o in ops: p(o)
    p('s_waitcnt vmcnt(0)')
    for f in range(8):
        for r in vread(0, f, None, base=zV, off0=0): emit(p, r)
    for f in range(8):
        for qt in range(2): p(pv(0, f, qt))
    p(f's_add_u32 s{zN}, s{zN}, 8192\ns_sub_u32 s{sT+3}, s{sT+3}, 1\ns_cmp_lg_u32 s{sT+3}, 0\ns_cbranch_scc1 Z2_loop')
    p.loop_end()
    p('s_nop 7\ns_nop 7')
    for qt in range(2):
        l = vL + 2*qt
        p(f'v_add_f32 v{l}, v{l}, v{l+1}\nv_mov_b32 v{l+1}, v{l}\ns_nop 1\nv_permlane32_swap_b32 v{l}, v{l+1}\ns_nop 1\nv_add_f32 v{l}, v{l}, v{l+1}')
    p('s_branch A_done')
    autowait(z); check(z, 'slow')
    return main.text() + '\n' + z.text()

def main():
    cfg = Cfg()
    cfg.ts = 1; cfg.xmap = 'b'; cfg.stag = 0; cfg.P = 4; cfg.late1 = 0; cfg.w0 = 0; cfg.cw0 = 8
    cfg.d0 = 0; cfg.dstr = 2; cfg.a0 = 1; cfg.astr = 2; cfg.ad = 3; cfg.PF = 3; cfg.cap = 2
    cfg.cad = 5; cfg.cdstr = 4; cfg.cP = 4; cfg.thr = 30; cfg.dbg = 0; cfg.slp = 1; cfg.late0 = 0
    for a in sys.argv[2:]:
        k, v = a.split('='); setattr(cfg, k, int(v) if v.lstrip('-').isdigit() else v)
    kn = NAME + '_kernel'
    hdr = (f'; @launch grid=(256,1,1) block=(256,1,1) lds={LDS_TOT}\n'
           '.amdgcn_target "amdgcn-amd-amdhsa--gfx950"\n')
    s = hdr + kernel_head(kn) + gen(cfg) + '\n' + kernel_desc(kn, 512, 256)
    open(sys.argv[1], 'w').write(s)
if __name__ == '__main__': main()
```

```python
import re

TRANS = ('v_exp_f32','v_log_f32','v_rcp_f32','v_rsq_f32','v_sqrt_f32','v_sin_f32','v_cos_f32')

def expand(op):
    op = op.strip()
    op = op.lstrip('-')
    if op.startswith('abs(') : op = op[4:-1]
    if op.startswith('|'): op = op.strip('|')
    m = re.fullmatch(r'([vas])\[(\d+):(\d+)\]', op)
    if m: return [f"{m.group(1)}{i}" for i in range(int(m.group(2)), int(m.group(3))+1)]
    m = re.fullmatch(r'([vas])(\d+)', op)
    if m: return [op]
    if op in ('vcc',): return ['vcc']
    if op in ('vcc_lo','vcc_hi'): return ['vcc']
    if op == 'exec': return ['exec']
    if op == 'm0': return ['m0']
    return []

class I:
    __slots__ = ('text','op','kind','rd','wr','tag','passes','cregs','abregs','wait','skip')
    def __init__(self, text, tag=None):
        self.text = text; self.tag = tag; self.skip = False
        t = text.split(';')[0].strip()
        parts = t.split(None, 1)
        op = parts[0]; self.op = op
        args = [a.strip() for a in parts[1].split(',')] if len(parts) > 1 else []
        mods = []
        if args:
            la = args[-1].split()
            args[-1] = la[0] if la else ''
            mods = la[1:]
        self.rd = set(); self.wr = set(); self.passes = 0; self.cregs = set(); self.abregs = set(); self.wait = None
        E = lambda i: set(expand(args[i])) if i < len(args) else set()
        allargs = lambda lo: set().union(*[E(i) for i in range(lo, len(args))]) if len(args) > lo else set()
        if op.endswith(':'): self.kind = 'label'
        elif op.startswith('.'): self.kind = 'dir'
        elif op.startswith('v_mfma'):
            self.kind = 'mfma'; self.wr = E(0); self.abregs = E(1) | E(2); self.cregs = E(3); self.rd = self.abregs | self.cregs
            self.passes = 8 if '32x32x16' in op else 4
        elif op == 's_waitcnt':
            self.kind = 'wait'; w = {}
            for m in re.finditer(r'(vmcnt|lgkmcnt)\((\d+)\)', t): w[m.group(1)] = int(m.group(2))
            self.wait = w
        elif op == 's_barrier': self.kind = 'barrier'
        elif op == 's_nop': self.kind = 'nop'; self.passes = int(args[0], 0) + 1
        elif op in ('s_endpgm','s_setprio','s_sleep'): self.kind = 'salu'
        elif op.startswith('s_cbranch') or op == 's_branch':
            self.kind = 'branch'
            if 'scc' in op: self.rd = {'scc'}
            if 'vcc' in op: self.rd = {'vcc'}
            if 'exec' in op: self.rd = {'exec'}
        elif op.startswith('s_load') or op.startswith('s_memtime') or op.startswith('s_memrealtime') or op.startswith('s_atomic'):
            self.kind = 'smem'; self.wr = E(0); self.rd = allargs(1)
        elif op.startswith('s_cmp'):
            self.kind = 'salu'; self.rd = allargs(0); self.wr = {'scc'}
        elif op.startswith('s_'):
            self.kind = 'salu'; self.wr = E(0); self.rd = allargs(1)
            if op.split('_')[1] in ('add','sub','addc','subb','lshl','lshr','and','or','xor','andn2','ashr','min','max','not','addk','bfe'): self.wr |= {'scc'}
            if op.startswith('s_cselect') or op.startswith('s_addc') or op.startswith('s_subb'): self.rd |= {'scc'}
            if op.startswith('s_addk') or op.startswith('s_mulk'): self.rd |= E(0)
            if 'saveexec' in op: self.wr |= {'exec','scc'}; self.rd |= {'exec'}
            if op.startswith('s_getreg') or op.startswith('s_getpc'): self.rd = set()
        elif op.startswith('ds_read') or op.startswith('ds_bpermute') or op.startswith('ds_swizzle') or op.startswith('ds_permute'):
            self.kind = 'dsr'; self.wr = E(0); self.rd = allargs(1)
        elif op.startswith('ds_write') :
            self.kind = 'dsw'; self.rd = allargs(0)
        elif op.startswith('ds_'):
            if '_rtn' in op: self.kind = 'dsr'; self.wr = E(0); self.rd = allargs(1)
            else: self.kind = 'dsw'; self.rd = allargs(0)
        elif op.startswith('buffer_load') or op.startswith('global_load'):
            if 'lds' in mods or op.startswith('global_load_lds'):
                self.kind = 'dma'; self.rd = allargs(0) | {'m0'}
            else:
                self.kind = 'vld'; self.wr = E(0); self.rd = allargs(1)
        elif op.startswith('buffer_store') or op.startswith('global_store'):
            self.kind = 'vst'; self.rd = allargs(0)
            self.cregs = E(0) if op.startswith('buffer_store') else E(1)
            self.passes = 4 if op.endswith('x4') or op.endswith('x3') else 0
        elif op.startswith('buffer_atomic') or op.startswith('global_atomic'):
            ret = 'sc0' in mods
            self.kind = 'vld' if ret else 'vst'
            self.rd = allargs(0)
            if ret: self.wr = E(0)
        elif op.startswith('buffer_inv') or op.startswith('buffer_wbl2'):
            self.kind = 'vst'
        elif op.startswith('v_'):
            self.kind = 'trans' if op.replace('_e32','').replace('_e64','') in TRANS else 'valu'
            self.wr = E(0); self.rd = allargs(1)
            if op.startswith('v_permlane') and 'swap' in op:
                self.wr = E(0) | E(1); self.rd = E(0) | E(1)
            if op.startswith('v_fmac') or op.startswith('v_pk_fmac') or op.startswith('v_dot2c') or op.startswith('v_writelane'): self.rd |= E(0)
            if op.startswith('v_add_co') or op.startswith('v_addc_co') or op.startswith('v_sub_co'):
                self.wr = E(0) | E(1); self.rd = allargs(2)
            if op.startswith('v_cmpx'): self.wr |= {'exec'}
            if op.startswith('v_cndmask') and len(args) == 3: self.rd |= {'vcc'}
        else:
            raise ValueError('unknown op ' + text)

class Loop:
    def __init__(self, name, count, body): self.name = name; self.count = count; self.body = body

class Ref:
    def __init__(self, loop, count): self.loop = loop; self.count = count

class Prog:
    def __init__(self): self.items = []; self.stack = [self.items]; self.skipping = False
    def __call__(self, text, tag=None):
        for ln in text.split('\n'):
            ln = ln.strip()
            if not ln: continue
            if ln.startswith(';'):
                c = I('.comment'); c.text = ln; self.stack[-1].append(c); continue
            ins = I(ln, tag); ins.skip = self.skipping or ln.endswith(';cond'); self.stack[-1].append(ins)
    def cond(self, on): self.skipping = on
    def add(self, inst): self.stack[-1].append(inst)
    def loop_begin(self, name, count, align=True):
        L = Loop(name, count, [])
        if align: self('.p2align 6')
        self.stack[-1].append(L); self.stack.append(L.body)
        self(f'{name}:')
        return L
    def again(self, loop, count): self.stack[-1].append(Ref(loop, count))
    def loop_end(self): self.stack.pop()
    def text(self):
        out = []
        def w(items):
            for it in items:
                if isinstance(it, Loop): w(it.body)
                elif isinstance(it, Ref): pass
                else: out.append(it.text if it.kind in ('label','dir') else '  ' + it.text)
        w(self.items); return '\n'.join(out)
    def trace(self, maxiter=10**9):
        def w(items, itn):
            for it in items:
                if isinstance(it, Loop):
                    for n in range(min(it.count, maxiter)): yield from w(it.body, n)
                elif isinstance(it, Ref):
                    for n in range(min(it.count, maxiter)): yield from w(it.loop.body, n + 1000)
                elif not it.skip: yield it, itn
        return w(self.items, 0)
    def need(self, tag):
        c = I('.need'); c.text = '; need ' + str(tag); c.kind = 'need'; c.tag = tag; self.stack[-1].append(c)
    def needrd(self, tag):
        c = I('.need'); c.text = '; needrd ' + str(tag); c.kind = 'needrd'; c.tag = tag; self.stack[-1].append(c)

def rtag(tag, itn):
    name, ring, v0, stride = tag
    ver = v0 + itn * stride
    return (name, ver % ring), ver

def autowait(prog, maxiter=10**9):
    need_vm = {}; need_lg = {}
    vm = []; lg = []
    for ins, itn in prog.trace(maxiter):
        k = ins.kind
        if k in ('label','dir','barrier','nop'): continue
        if k == 'wait':
            if 'vmcnt' in ins.wait: del vm[:max(0, len(vm) - ins.wait['vmcnt'])]
            if 'lgkmcnt' in ins.wait: del lg[:max(0, len(lg) - ins.wait['lgkmcnt'])]
            continue
        regs = ins.rd | ins.wr
        def dep(o):
            oi, ot = o
            if k == 'need': return ot is not None and oi.kind in ('dma','dsw','vst') and ot == rtag(ins.tag, itn)
            if k == 'needrd': return ot is not None and oi.kind == 'dsr' and ot[0] == rtag(ins.tag, itn)[0]
            return bool(oi.wr & regs)
        for q, nd, cap in ((vm, need_vm, 63), (lg, need_lg, 15)):
            last = -1
            for i, o in enumerate(q):
                if dep(o): last = i
            if id(ins) in nd:
                n0 = nd[id(ins)]
                del q[:max(0, len(q) - n0)]
                last = -1
                for i, o in enumerate(q):
                    if dep(o): last = i
            if last >= 0:
                n = min(len(q) - 1 - last, cap)
                if q is lg and any(o[0].kind == 'smem' for o in q): n = 0
                nd[id(ins)] = min(nd.get(id(ins), 99), n)
                del q[:len(q) - n]
        tg = rtag(ins.tag, itn) if ins.tag and k in ('dma','dsw','dsr','vst') else None
        if k in ('vld','vst','dma'): vm.append((ins, tg))
        if k in ('dsr','dsw','smem'): lg.append((ins, tg))
    def w(items):
        out = []
        for it in items:
            if isinstance(it, Loop): it.body[:] = w(it.body); out.append(it); continue
            if isinstance(it, Ref): out.append(it); continue
            s = []
            if id(it) in need_vm: s.append(f'vmcnt({need_vm[id(it)]})')
            if id(it) in need_lg: s.append(f'lgkmcnt({need_lg[id(it)]})')
            if s: out.append(I('s_waitcnt ' + ' '.join(s)))
            out.append(it)
        return out
    prog.items[:] = w(prog.items)

def check(prog, name='', maxiter=10**9, verbose=True):
    probs = []
    vm = []
    lg = []
    pend = {}
    state = 0
    last_valu_wr = {}; last_trans_wr = {}; last_mfma_wr = {}; last_mfma_c = {}; last_salu_wr = {}; last_store_data = {}
    valu_sgpr_wr = {}
    reg_state = {}
    nbar = 0
    dma_done_bar = {}
    dma_out = {}
    rd_out = {}
    rd_done_bar = {}
    cur_ver = {}
    seq = 0
    def P(msg, ins): probs.append(f"{name}: {msg}: [{ins.text}] (seq {seq})")
    for ins, itn in prog.trace(maxiter):
        seq += 1
        k = ins.kind
        if k in ('label','dir','need','needrd'): continue
        if k == 'wait':
            if 'vmcnt' in ins.wait:
                n = ins.wait['vmcnt']
                while len(vm) > n:
                    o, s = vm.pop(0)
                    for r in o.wr:
                        if pend.get(r, (None,None,None))[2] == s: del pend[r]
                    if o.kind == 'dma' and o.tag:
                        key = dma_out.pop(s);
                        dma_done_bar[key] = max(dma_done_bar.get(key, -1), nbar)
            if 'lgkmcnt' in ins.wait:
                n = ins.wait['lgkmcnt']
                if n > 0 and any(o.kind == 'smem' for o, s in lg): P('counted lgkmcnt with smem outstanding', ins)
                while len(lg) > n:
                    o, s = lg.pop(0)
                    for r in o.wr:
                        if pend.get(r, (None,None,None))[2] == s: del pend[r]
                    if s in rd_out:
                        rg = rd_out.pop(s); rd_done_bar[rg] = max(rd_done_bar.get(rg, -1), nbar)
                    if s in dma_out:
                        key = dma_out.pop(s); dma_done_bar[key] = max(dma_done_bar.get(key, -1), nbar)
            state += 1; continue
        if k == 'barrier': nbar += 1; state += 1; continue
        if k == 'nop': state += ins.passes; continue
        for r in ins.rd | ins.wr:
            if r in pend: P(f'reg {r} has pending load [{pend[r][1].text}]', ins)
        def dist(tbl, r): return state - tbl[r][0] - 1 if r in tbl else 1000
        isvalu = k in ('valu','trans')
        if k == 'mfma':
            for r in ins.rd:
                if dist(last_valu_wr, r) < 2: P(f'VALU->MFMA {r} needs 2', ins)
            for r in ins.abregs:
                if r in last_mfma_wr:
                    need = {4: 8, 8: 12}[last_mfma_wr[r][1].passes]
                    if dist(last_mfma_wr, r) < need: P(f'MFMA D->MFMA AB {r} needs {need}', ins)
            for r in ins.cregs:
                if r in last_mfma_wr:
                    p = last_mfma_wr[r][1]
                    if p.wr == ins.cregs and p.passes == ins.passes: pass
                    else:
                        need = {4: 6, 8: 10}[p.passes]
                        if dist(last_mfma_wr, r) < need: P(f'MFMA D->MFMA C partial {r} needs {need}', ins)
            for r in ins.wr - ins.cregs:
                if r in last_mfma_wr:
                    need = {4: 8, 8: 12}[last_mfma_wr[r][1].passes]
                    if dist(last_mfma_wr, r) < need: P(f'MFMA D->MFMA D WAW {r} needs {need}(conservative)', ins)
                if r in last_mfma_c:
                    need = {4: 3, 8: 7}[last_mfma_c[r][1].passes]
                    if dist(last_mfma_c, r) < need: P(f'MFMA C read -> MFMA write {r} needs {need}(conservative)', ins)
            if dist(last_valu_wr, 'exec') < 4: P('exec write -> mfma', ins)
        else:
            for r in ins.rd | ins.wr:
                if r in last_mfma_wr:
                    need = {4: 8, 8: 12}[last_mfma_wr[r][1].passes]
                    if dist(last_mfma_wr, r) < need: P(f'MFMA D->use {r} needs {need}', ins)
            if isvalu or k in ('vld','dsr'):
                for r in ins.wr:
                    if r in last_mfma_c and isvalu:
                        need = {4: 3, 8: 7}[last_mfma_c[r][1].passes]
                        if dist(last_mfma_c, r) < need: P(f'MFMA C read -> VALU write {r} needs {need}', ins)
                    if r in last_store_data and dist(last_store_data, r) < 2: P(f'store data WAR {r}', ins)
        if isvalu:
            if k == 'valu':
                for r in ins.rd:
                    if dist(last_trans_wr, r) < 1: P(f'trans->valu {r}', ins)
            if ins.op.startswith('v_permlane'):
                for r in ins.rd:
                    if dist(last_valu_wr, r) < 2: P(f'VALU->permlane {r} needs 2', ins)
            if ins.op.startswith('v_readfirstlane') or ins.op.startswith('v_readlane'):
                for r in ins.rd:
                    if r[0] == 'v' and r != 'vcc' and dist(last_valu_wr, r) < 1: P(f'VALU->readlane {r} needs 1', ins)
            if 'dpp' in ins.text or 'row_' in ins.text or 'quad_perm' in ins.text:
                for r in ins.rd:
                    if dist(last_valu_wr, r) < 2: P(f'VALU->DPP {r} needs 2', ins)
            for r in ins.rd:
                if (r[0] == 's' or r == 'vcc') and dist(valu_sgpr_wr, r) < 2: P(f'VALU sgpr wr->VALU rd {r} needs 2', ins)
        if k in ('vld','vst','dma'):
            for r in ins.rd:
                if r[0] == 's' and dist(valu_sgpr_wr, r) < 5: P(f'VALU sgpr->VMEM {r} needs 5', ins)
            if k == 'dma' and dist(last_salu_wr, 'm0') < 1: P('m0 write -> dma needs 1', ins)
        if k in ('salu','branch','smem'):
            for r in ins.rd:
                if dist(valu_sgpr_wr, r) < 1 and r != 'scc': P(f'VALU sgpr wr->SALU rd {r} (pad 1)', ins)
        if ins.tag and k in ('dma','dsw'):
            rg, ver = rtag(ins.tag, itn)
            if cur_ver.get(rg) != ver:
                if any(v == rg for v in rd_out.values()): P(f'LDS WAR: reads of {rg} still outstanding', ins)
                elif rd_done_bar.get(rg, -1) >= nbar: P(f'LDS WAR: no barrier since last read of {rg} completed', ins)
                cur_ver[rg] = ver
            dma_out[seq] = (rg, ver)
        if ins.tag and k == 'dsr':
            rg, ver = rtag(ins.tag, itn)
            if cur_ver.get(rg) != ver: P(f'LDS read of {rg} ver {ver} but current {cur_ver.get(rg)}', ins)
            if any(v == (rg, ver) for v in dma_out.values()): P(f'LDS RAW: write to {rg} outstanding', ins)
            elif dma_done_bar.get((rg, ver), -1) >= nbar: P(f'LDS RAW: no barrier after write to {rg} done', ins)
            rd_out[seq] = rg
        if k in ('vld','vst','dma'):
            vm.append((ins, seq))
            if len(vm) > 63: P('vmcnt overflow', ins)
            for r in ins.wr: pend[r] = ('vm', ins, seq)
            if k == 'vst' and ins.passes:
                for r in ins.cregs: last_store_data[r] = (state, ins)
        if k in ('dsr','dsw','smem'):
            lg.append((ins, seq))
            for r in ins.wr: pend[r] = ('lg', ins, seq)
        if k == 'mfma':
            for r in ins.wr: last_mfma_wr[r] = (state, ins); last_valu_wr.pop(r, None)
            for r in ins.cregs: last_mfma_c[r] = (state, ins)
        if isvalu:
            for r in ins.wr:
                last_valu_wr[r] = (state, ins); last_mfma_wr.pop(r, None)
                if k == 'trans': last_trans_wr[r] = (state, ins)
                else: last_trans_wr.pop(r, None)
                if r[0] == 's' or r == 'vcc': valu_sgpr_wr[r] = (state, ins)
        if k == 'salu':
            for r in ins.wr: last_salu_wr[r] = (state, ins); valu_sgpr_wr.pop(r, None)
        if k in ('vld','dsr'):
            for r in ins.wr: last_mfma_wr.pop(r, None); last_valu_wr.pop(r, None)
        state += 1
    if verbose:
        seen = set()
        for p in probs:
            key = p.split('(seq')[0]
            if key in seen: continue
            seen.add(key); print('CHECK', p)
            if len(seen) > 40: break
    return probs
```

```python
import sys, struct, math
from dsl import *
from gen2 import (f2u, srd, kernel_head, kernel_desc, emit, interleave, spread, m0gap, fix_m0, chk_tail, Cfg)

NAME = 'recurrent_scan__sliding_block_cached__geglu_ffn__prompt'
WS_XN = 0
WS_O  = 5 << 20
WS_H  = 23 << 20
WS_G  = 36 << 20
WS_FL = 40 << 20
WS_TS = 48 << 20
WS_P  = 64 << 20
HS = 22528; NHS = 7
LDS_SCR = NHS*HS
LDS_TOT = 163840

class TS:
    def __init__(self, on): self.on = on; self.n = 0
    def text(self, grp):
        if not self.on & grp or self.n >= 14: return None
        s = 88 + self.n; self.n += 1
        clk = 's_memtime' if self.on & 8 else 's_memrealtime'
        return f's_waitcnt lgkmcnt(0)\n{clk} s[4:5]\ns_waitcnt lgkmcnt(0)\ns_mov_b32 s{s}, s4'
    def stamp(self, p, grp=1):
        t = self.text(grp)
        if t: p(t)
    def old(self, p):
        if not self.on: return
        s = 88 + self.n; self.n += 1;
        if s >= 102: return
        p(f's_waitcnt lgkmcnt(0)\ns_memrealtime s[4:5]\ns_waitcnt lgkmcnt(0)\ns_mov_b32 s{s}, s4')
    def dump(self, p, wsptr):
        if not self.on: return
        srd(p, 12, wsptr, WS_TS, 1 << 20)
        p('v_lshrrev_b32 v8, 6, v0\nv_lshlrev_b32 v8, 6, v8\ns_lshl_b32 s3, s2, 8\nv_add_u32 v8, s3, v8')
        for i in range(min(self.n, 14)):
            p(f'v_mov_b32 v4, s{88+i}\nbuffer_store_dword v4, v8, s[12:15], 0 offen offset:{4*i}\ns_nop 1')

def gen(cfg):
    OST = 131072 + cfg.opad; XST = 32768 + cfg.xpad; HST = 112*1024 + cfg.hpad
    p = Prog(); ts = TS(cfg.ts)
    SC = ' sc1'
    pX, pK, pV, pWQ, pWO, pWG, pWU, pWD, pOUT, pDBG, pWS = 64, 66, 68, 70, 72, 76, 78, 80, 82, 84, 86
    S_W, S_Q, S_XN, S_H, S_K, S_V, S_O = 8, 12, 16, 20, 24, 28, 32
    S_FL, S_DB = 56, 60
    sW, sRB, sCB, sKW, sKQ, sKA, sCNT = 36, 37, 38, 39, 40, 41, 42
    sMW, sMQ, sRD, sDL, sLEFT, sLEFA, sRW, sRQ = 43, 44, 45, 46, 47, 48, 49, 3
    sT = 50
    p('s_cmp_ge_u32 s2, 256\ns_cbranch_scc1 K_end')
    p('s_load_dwordx16 s[64:79], s[0:1], 0\ns_load_dwordx8 s[80:87], s[0:1], 64')
    p(f'v_lshrrev_b32 v2, 6, v0\nv_and_b32 v1, 63, v0\nv_readfirstlane_b32 s{sW}, v2')
    p(f's_and_b32 s{sT}, s2, 7\ns_lshr_b32 s{sT+1}, s2, 3')
    if cfg.xmap == 'c':
        p(f's_and_b32 s{sRB}, s{sT}, 1\ns_lshl_b32 s{sRB}, s{sRB}, 2\ns_and_b32 s{sT+2}, s{sT+1}, 3\ns_add_u32 s{sRB}, s{sRB}, s{sT+2}')
        p(f's_lshr_b32 s{sCB}, s{sT}, 1\ns_lshl_b32 s{sCB}, s{sCB}, 3\ns_lshr_b32 s{sT+2}, s{sT+1}, 2\ns_add_u32 s{sCB}, s{sCB}, s{sT+2}')
    else:
        p(f's_and_b32 s{sRB}, s{sT+1}, 7\ns_lshl_b32 s{sCB}, s{sT}, 2\ns_lshr_b32 s{sT+2}, s{sT+1}, 3\ns_add_u32 s{sCB}, s{sCB}, s{sT+2}')
    vAct, vDW, vDQ, vTr, vTq, vT = 4, 8, 15, 19, 20, 28
    vA, RA = 32, 8
    vB, RB = 64, 4
    def acc(t, b):
        if t < 16: c = (t*4+b)*4; return f'a[{c}:{c+3}]'
        c = 160 + ((t-16)*4+b)*4; return f'v[{c}:{c+3}]'
    def accr(t, b, r):
        if t < 16: return f'a{(t*4+b)*4+r}'
        return f'v{160+((t-16)*4+b)*4+r}'
    vLX, vLO, vLS = 128, 129, 130
    t = 132
    p(f's_lshl_b32 s{sT}, s{sRB}, 8\ns_lshl_b32 s{sT+1}, s{sCB}, 3\ns_add_u32 s{sT}, s{sT}, s{sT+1}\ns_lshl_b32 s{sT}, s{sT}, 11\ns_lshl_b32 s{sT+1}, s{sW}, 9\ns_add_u32 s{sT}, s{sT}, s{sT+1}')
    p(f'v_and_b32 v{t}, 7, v1\nv_bfe_u32 v{t+1}, v1, 3, 1\nv_lshrrev_b32 v{t+2}, 4, v1')
    p(f'v_lshlrev_b32 v{t+3}, 11, v{t}\nv_lshlrev_b32 v{t+4}, 8, v{t+1}\nv_lshlrev_b32 v{t+5}, 4, v{t+2}\nv_add3_u32 v{t+3}, v{t+3}, v{t+4}, v{t+5}\nv_add_u32 v{vLX}, s{sT}, v{t+3}')
    p(f's_lshl_b32 s{sT}, s{sRB}, 4\ns_lshr_b32 s{sT+1}, s{sCB}, 1\ns_add_u32 s{sT}, s{sT}, s{sT+1}\ns_mul_i32 s{sT}, s{sT}, {XST}\ns_lshl_b32 s{sT+1}, s{sW}, 13\ns_add_u32 s{sT}, s{sT}, s{sT+1}')
    p(f's_and_b32 s{sT+1}, s{sCB}, 1\ns_lshl_b32 s{sT+1}, s{sT+1}, 7\ns_add_u32 s{sT}, s{sT}, s{sT+1}')
    p(f'v_lshlrev_b32 v{t+3}, 4, v{t}\nv_lshlrev_b32 v{t+4}, 12, v{t+1}\nv_lshlrev_b32 v{t+5}, 8, v{t+2}\nv_add3_u32 v{t+4}, v{t+3}, v{t+4}, v{t+5}\nv_add_u32 v{vLO}, s{sT}, v{t+4}')
    p(f'v_add_u32 v{vLS}, {LDS_SCR}, v{t+3}\nv_lshl_add_u32 v{vLS+1}, v2, 2, v{vLS}')
    p(f's_and_b32 s{sT}, s{sW}, 1\ns_mul_i32 s{sT}, s{sT}, {32*7168}\ns_mul_i32 s{sT+1}, s{sCB}, 224\ns_add_u32 s{sT}, s{sT}, s{sT+1}')
    p(f's_mov_b32 s{sT+1}, 4682\ns_mov_b32 s{sT+2}, 7168')
    for n in range(448): assert (n*4682) >> 16 == n // 14
    t = 32
    for pc in range(7):
        p(f'v_add_u32 v{t}, {64*pc}, v1')
        p(f'v_mul_u32_u24 v{t+1}, s{sT+1}, v{t}\nv_lshrrev_b32 v{t+1}, 16, v{t+1}')
        p(f'v_mul_u32_u24 v{t+2}, 14, v{t+1}\nv_sub_u32 v{t+2}, v{t}, v{t+2}')
        p(f'v_and_b32 v{t+3}, 0x13, v{t+1}\nv_and_b32 v{t+4}, 4, v{t+1}\nv_lshl_or_b32 v{t+3}, v{t+4}, 1, v{t+3}')
        p(f'v_bfe_u32 v{t+4}, v{t+1}, 3, 1\nv_lshl_or_b32 v{t+3}, v{t+4}, 2, v{t+3}')
        p(f'v_mul_u32_u24 v{t+3}, s{sT+2}, v{t+3}\nv_lshlrev_b32 v{t+2}, 4, v{t+2}\nv_add3_u32 v{vDW+pc}, v{t+3}, v{t+2}, s{sT}')
        if pc % 4: p(f'v_subrev_u32 v{vDW+pc}, {1024*(pc%4)}, v{vDW+pc}')
    p(f's_lshl_b32 s{sT}, s{sW}, 17\ns_lshl_b32 s{sT+1}, s{sCB}, 8\ns_add_u32 s{sT}, s{sT}, s{sT+1}')
    p(f'v_lshrrev_b32 v{t}, 4, v1\nv_and_b32 v{t+1}, 15, v1\nv_lshlrev_b32 v{t+2}, 1, v{t}\nv_xor_b32 v{t+1}, v{t+1}, v{t+2}')
    p(f'v_lshlrev_b32 v{t}, 13, v{t}\nv_add_u32 v{t}, s{sT}, v{t}')
    for j in range(4):
        p(f'v_xor_b32 v{t+2}, {8*(j>>1)}, v{t+1}\nv_lshl_add_u32 v{t+2}, v{t+2}, 4, v{t}')
        p(f'v_add_u32 v{vDQ+j}, {j*(4*8192-1024)}, v{t+2}')
    p(f's_and_b32 s{sT}, s{sW}, 1\ns_lshr_b32 s{sT+1}, s{sW}, 1')
    p(f's_mul_i32 s{sMW}, s{sT}, {HS}\ns_mul_i32 s{sRW}, s{sT+1}, 7168')
    p(f's_mul_i32 s{sMQ}, s{sT+1}, {HS}\ns_lshl_b32 s{sRQ}, s{sT}, 12\ns_add_u32 s{sRQ}, s{sRQ}, 14336')
    KW, KQ, KA, NT = 64*7168, 64*8192, 2048, 16
    if cfg.stag:
        p(f's_lshl_b32 s{sT}, s{sRB}, 1\ns_mul_i32 s{sKW}, s{sT}, {KW}\ns_mul_i32 s{sKQ}, s{sT}, {KQ}\ns_mul_i32 s{sKA}, s{sT}, {KA}')
    else:
        p(f's_mov_b32 s{sKW}, 0\ns_mov_b32 s{sKQ}, 0\ns_mov_b32 s{sKA}, 0')
    p(f's_mov_b32 s{sLEFT}, {NT}\ns_mov_b32 s{sLEFA}, {NT}\ns_mov_b32 s{sRD}, 0')
    def c_role(sGM, sKH, sRC, sCC, tmp):
        p(f's_bfe_u32 s{sGM}, s2, 0x10002\ns_bfe_u32 s{sKH}, s2, 0x10001\ns_and_b32 s{sRC}, s2, 1\ns_lshl_b32 s{sRC}, s{sRC}, 2\ns_bfe_u32 s{tmp}, s2, 0x20003\ns_add_u32 s{sRC}, s{sRC}, s{tmp}\ns_lshr_b32 s{sCC}, s2, 5')
    sNO = 6
    p('s_waitcnt lgkmcnt(0)')
    ts.stamp(p)
    S_X0 = S_H
    srd(p, S_X0, pX, 0, 4 << 20)
    vLD = 144
    for i in range(4): p(f'buffer_load_dwordx4 v[{vLD+4*i}:{vLD+4*i+3}], v{vLX}, s[{S_X0}:{S_X0+3}], 0 offen offset:{64*i}')
    p(f's_cmp_ge_u32 s{sW}, 2\ns_cselect_b32 s{S_W}, s{pWU}, s{pWG}\ns_cselect_b32 s{S_W+1}, s{pWU+1}, s{pWG+1}')
    p(f's_mov_b32 s{S_W+2}, {1024*7168:#x}\ns_mov_b32 s{S_W+3}, 0x20000')
    srd(p, S_Q, pWQ, 0, 8 << 20)
    srd(p, S_FL, pWS, WS_FL, 1280*128)
    srd(p, S_XN, pWS, WS_XN, 5 << 20)
    srd(p, S_DB, pDBG, 0, 256)
    if cfg.tlb:
        p(f'v_lshlrev_b32 v140, 17, v1')
        if cfg.tlb == 2: p(f's_lshl_b32 s{sT+1}, s{sW}, 15\nv_add_u32 v140, s{sT+1}, v140')
        p(f'buffer_load_dword v141, v140, s[{S_W}:{S_W+3}], 0 offen\nbuffer_load_dword v142, v140, s[{S_Q}:{S_Q+3}], 0 offen')
        if cfg.tlb == 2:
            p(f's_cmp_ge_u32 s{sW}, 2\ns_cselect_b32 s{S_K}, s{pWG}, s{pWU}\ns_cselect_b32 s{S_K+1}, s{pWG+1}, s{pWU+1}\ns_mov_b32 s{S_K+2}, {1024*7168:#x}\ns_mov_b32 s{S_K+3}, 0x20000')
            p(f'buffer_load_dword v143, v140, s[{S_K}:{S_K+3}], 0 offen')
    def adv_w():
        return [f's_add_u32 s{sKW}, s{sKW}, {KW}', f's_cmp_eq_u32 s{sKW}, {NT*KW}', f's_cselect_b32 s{sKW}, 0, s{sKW}',
                f's_add_u32 s{sMW}, s{sMW}, {2*HS}', f's_cmp_ge_u32 s{sMW}, {NHS*HS}', f's_cselect_b32 s{sT}, {NHS*HS}, 0', f's_sub_u32 s{sMW}, s{sMW}, s{sT}']
    def adv_q():
        return [f's_add_u32 s{sKQ}, s{sKQ}, {KQ}', f's_and_b32 s{sKQ}, s{sKQ}, {NT*KQ-1}',
                f's_add_u32 s{sMQ}, s{sMQ}, {2*HS}', f's_cmp_ge_u32 s{sMQ}, {NHS*HS}', f's_cselect_b32 s{sT}, {NHS*HS}, 0', f's_sub_u32 s{sMQ}, s{sMQ}, s{sT}',
                f's_sub_u32 s{sLEFT}, s{sLEFT}, 1', f's_cmp_eq_u32 s{sLEFT}, 0',
                f's_cselect_b32 s{S_W+2}, 0, s{S_W+2}', f's_cselect_b32 s{S_Q+2}, 0, s{S_Q+2}']
    def adv_a():
        return [f's_add_u32 s{sKA}, s{sKA}, {KA}', f's_and_b32 s{sKA}, s{sKA}, {NT*KA-1}',
                f's_sub_u32 s{sLEFA}, s{sLEFA}, 1', f's_cmp_eq_u32 s{sLEFA}, 0', f's_cselect_b32 s{S_XN+2}, 0, s{S_XN+2}']
    def adv_rd():
        return [f's_add_u32 s{sRD}, s{sRD}, {HS}', f's_cmp_eq_u32 s{sRD}, {NHS*HS}', f's_mov_b32 s{sDL}, {HS}',
                f's_cselect_b32 s{sDL}, {-(NHS-1)*HS}, s{sDL}', f's_cselect_b32 s{sRD}, 0, s{sRD}']
    def dma(pc, tile, stride):
        tag = ('W', NHS, 2*tile + 1, 2*stride)
        if pc < 7: return (f'buffer_load_dwordx4 v{vDW+pc}, s[{S_W}:{S_W+3}], s{sKW} offen offset:{1024*(pc%4)} lds', tag)
        return (f'buffer_load_dwordx4 v{vDQ+pc-7}, s[{S_Q}:{S_Q+3}], s{sKQ} offen offset:{1024*(pc-7)} lds', tag)
    def m0set(pc):
        if pc == 0: return [f's_add_u32 m0, s{sMW}, s{sRW}']
        if pc == 4: return [f's_add_u32 s{sT}, s{sMW}, s{sRW}', f's_add_u32 m0, s{sT}, 4096']
        if pc == 7: return [f's_add_u32 m0, s{sMQ}, s{sRQ}']
        return []
    def dma_tile(tile):
        for d in range(11):
            for x in m0set(d): p(x)
            if m0set(d): p('s_nop 0')
            emit(p, dma(d, tile, 0))
            if d == 6:
                for x in adv_w(): p(x)
            if d == 10:
                for x in adv_q(): p(x)
    p(f's_lshl_b32 s{sT}, s2, 2\ns_add_u32 s{sT}, s{sT}, s{sW}\ns_cmp_eq_u32 s{sT}, 1\ns_cbranch_scc0 L_no_nonce')
    p.cond(True)
    p(f's_memrealtime s[{sNO}:{sNO+1}]\nv_mov_b32 v34, 0\ns_waitcnt lgkmcnt(0)\ns_or_b32 s{sNO}, s{sNO}, 1\nv_mov_b32 v32, s{sNO}\nv_mov_b32 v33, s{sNO+1}')
    p(f'buffer_store_dwordx2 v[32:33], v34, s[{S_DB}:{S_DB+3}], 0 offen sc1')
    p.cond(False)
    p('L_no_nonce:')
    if cfg.late0 == 0: dma_tile(0)
    if not cfg.late1: dma_tile(1)
    if cfg.cpf:
        p(f's_getpc_b64 s[{S_K}:{S_K+1}]\nL_pc:\ns_mov_b32 s{S_K+2}, K_last-L_pc\ns_mov_b32 s{S_K+3}, 0x20000')
        p(f's_lshr_b32 s{sT}, s2, 3\ns_lshl_b32 s{sT}, s{sT}, 12\nv_lshlrev_b32 v140, 4, v0')
        p(f'buffer_load_dwordx4 v[140:143], v140, s[{S_K}:{S_K+3}], s{sT} offen')
    p(f's_lshl_b32 s{sT}, s{sRB}, 4\ns_lshl_b32 s{sT+1}, s{sW}, 2\ns_add_u32 s{sT}, s{sT}, s{sT+1}\ns_mul_i32 s{sT}, s{sT}, {XST}')
    p(f'v_lshlrev_b32 v{vT}, 4, v1\nv_add_u32 v{vAct}, s{sT}, v{vT}')
    for b in range(1, 4): p(f'v_add_u32 v{vAct+b}, {b*XST:#x}, v{vAct}')
    t = 32
    p(f'v_lshrrev_b32 v{t}, 5, v1\nv_lshlrev_b32 v{t}, 4, v{t}\nv_bfe_u32 v{t+1}, v1, 4, 1\nv_lshlrev_b32 v{t+1}, 2, v{t+1}\nv_bfe_u32 v{t+2}, v1, 2, 2')
    p(f'v_add3_u32 v{t}, v{t}, v{t+1}, v{t+2}\nv_mul_u32_u24 v{t}, 224, v{t}\nv_and_b32 v{t+3}, 3, v1\nv_lshlrev_b32 v{t+3}, 3, v{t+3}\nv_add_u32 v{vTr}, v{t}, v{t+3}')
    p(f'v_or_b32 v{t+1}, v{t+1}, v{t+2}')
    p(f'v_lshrrev_b32 v{t}, 4, v1\nv_lshlrev_b32 v{t}, 3, v{t}\nv_add_u32 v{t}, v{t}, v{t+2}\nv_lshlrev_b32 v{t}, 8, v{t}')
    p(f'v_add_u32 v{t}, 14336, v{t}\nv_add_u32 v{t}, v{t}, v{t+3}')
    for tt in range(8):
        p(f'v_xor_b32 v{t+2}, {tt}, v{t+1}\nv_lshl_add_u32 v{vTq+tt}, v{t+2}, 5, v{t}')
    for i in range(256): p(f'v_accvgpr_write_b32 a{i}, 0')
    if cfg.dbg & 4: p('s_waitcnt vmcnt(%d)' % (0 if cfg.late0 else 11 if cfg.late1 else 22)); ts.stamp(p)
    X = 64; sM = sT + 4
    p(f's_mov_b32 s{sM}, 0xffff0000')
    for i in range(16): p(f'v_lshlrev_b32 v{X+2*i}, 16, v{vLD+i}\nv_and_b32 v{X+2*i+1}, s{sM}, v{vLD+i}')
    if cfg.late0 == 1: dma_tile(0)
    def red(v, tt, off):
        p(f's_nop 1\nv_add_f32_dpp v{v}, v{v}, v{v} row_ror:8 row_mask:0xf bank_mask:0xf')
        p(f'v_mov_b32 v{tt}, v{v}\ns_nop 1\nv_permlane16_swap_b32 v{v}, v{tt}\ns_nop 1\nv_add_f32 v{v}, v{v}, v{tt}')
        p(f'v_mov_b32 v{tt}, v{v}\ns_nop 1\nv_permlane32_swap_b32 v{v}, v{tt}\ns_nop 1\nv_add_f32 v{v}, v{v}, v{tt}')
        p(f'ds_write_b32 v{vLS+1}, v{v} offset:{off}\ns_waitcnt lgkmcnt(0)\ns_barrier')
        p(f'ds_read_b128 v[40:43], v{vLS} offset:{off}')
        p(f'v_add_f32 v40, v40, v41\nv_add_f32 v42, v42, v43\nv_add_f32 v{v}, v40, v42\nv_mul_f32 v{v}, {f2u(1/1024):#x}, v{v}')
    for a in range(0, 4, 2): p(f'v_pk_add_f32 v[{32+a}:{33+a}], v[{X+a}:{X+a+1}], v[{X+4+a}:{X+5+a}]')
    for i in range(8, 32, 2): p(f'v_pk_add_f32 v[{32+i%4}:{33+i%4}], v[{32+i%4}:{33+i%4}], v[{X+i}:{X+i+1}]')
    p('v_pk_add_f32 v[32:33], v[32:33], v[34:35]\nv_add_f32 v32, v32, v33')
    red(32, 33, 0)
    for i in range(32): p(f'v_sub_f32 v{X+32+i}, v{X+i}, v32')
    for a in range(0, 4, 2): p(f'v_pk_mul_f32 v[{36+a}:{37+a}], v[{X+32+a}:{X+33+a}], v[{X+32+a}:{X+33+a}]')
    for i in range(4, 32, 2): p(f'v_pk_fma_f32 v[{36+i%4}:{37+i%4}], v[{X+32+i}:{X+33+i}], v[{X+32+i}:{X+33+i}], v[{36+i%4}:{37+i%4}]')
    p('v_pk_add_f32 v[36:37], v[36:37], v[38:39]\nv_add_f32 v36, v36, v37')
    p(f'v_mov_b32 v44, 0\nbuffer_load_dwordx2 v[2:3], v44, s[{S_DB}:{S_DB+3}], 0 offen sc1')
    red(36, 37, 128)
    def rnd(v): p(f'v_cvt_pk_bf16_f32 v{v}, v{v}, v{v}\nv_lshlrev_b32 v{v}, 16, v{v}')
    rnd(32); rnd(36)
    p(f'v_add_f32 v36, {f2u(1e-5):#x}, v36'); rnd(36)
    p('v_sqrt_f32 v36, v36\ns_nop 0'); rnd(36)
    p('v_rcp_f32 v36, v36\nv_mov_b32 v33, v32\nv_mov_b32 v37, v36')
    for i in range(16):
        a, b = X+2*i, X+2*i+1
        p(f'v_pk_add_f32 v[{a}:{b}], v[{a}:{b}], v[32:33] neg_lo:[0,1] neg_hi:[0,1]\nv_cvt_pk_bf16_f32 v{a}, v{a}, v{b}')
        p(f'v_and_b32 v{b}, s{sM}, v{a}\nv_lshlrev_b32 v{a}, 16, v{a}')
        p(f'v_pk_mul_f32 v[{a}:{b}], v[{a}:{b}], v[36:37]\nv_cvt_pk_bf16_f32 v{vLD+i}, v{a}, v{b}')
        if i % 4 == 3:
            r = vLD + i - 3
            p(f'buffer_store_dwordx4 v[{r}:{r+3}], v{vLO}, s[{S_XN}:{S_XN+3}], 0 offen offset:{1024*(i//4)} sc1')
    if cfg.dbg & 4: ts.stamp(p)
    if cfg.late0 == 2:
        p(f's_cmp_eq_u32 s{sW}, 1\ns_cbranch_scc1 L_t0_w1')
        p(f's_cmp_eq_u32 s{sW}, 0\ns_cbranch_scc0 L_t0_own')
        p.cond(True)
        p(f's_add_u32 s{sT+1}, s{sKW}, {32*7168}\ns_add_u32 s{sT+2}, s{sKQ}, {16*8192}')
        for d in range(11):
            if d in (0, 4): p(f's_mov_b32 m0, {HS + 1024*d}\ns_nop 0')
            if d == 7: p(f's_mov_b32 m0, {14336 + 4096}\ns_nop 0')
            t_ = dma(d, 0, 0)[0].replace(f's{sKW} offen', f's{sT+1} offen').replace(f's{sKQ} offen', f's{sT+2} offen')
            p(t_)
        p.cond(False)
        p('L_t0_own:')
        dma_tile(0)
        for i in range(160, 208): p(f'v_mov_b32 v{i}, 0')
        p(f's_cmp_eq_u32 s{sW}, 0\ns_cbranch_scc0 L_t0_w23')
        p.cond(True)
        p('s_waitcnt vmcnt(22)\ns_branch L_t0_done')
        p('L_t0_w1:')
        for x in adv_w() + adv_q(): p(x)
        for i in range(160, 208): p(f'v_mov_b32 v{i}, 0')
        p('s_waitcnt vmcnt(0)\ns_branch L_t0_done')
        p.cond(False)
        p('L_t0_w23:\ns_waitcnt vmcnt(11)\nL_t0_done:')
    else:
        for i in range(160, 208): p(f'v_mov_b32 v{i}, 0')
        p('s_waitcnt vmcnt(0)')
    vHF = 27
    p(f's_lshl_b32 s{sT}, s{sRB}, 12\ns_lshl_b32 s{sT+1}, s{sCB}, 7\ns_add_u32 s{sT+1}, s{sT}, s{sT+1}\nv_mov_b32 v32, s{sT+1}')
    p(f'v_and_b32 v34, 31, v1\nv_lshl_add_u32 v34, v34, 7, s{sT}')
    p('s_barrier')
    ts.stamp(p)
    def poll(lbl, vaddr, done):
        p(f'{lbl}:')
        p(f'buffer_load_dwordx2 v[36:37], v{vaddr}, s[{S_FL}:{S_FL+3}], 0 offen sc1\ns_waitcnt vmcnt(0)')
        p(f'v_cmp_ne_u64 vcc, s[{sNO}:{sNO+1}], v[36:37]\ns_nop 1\ns_cbranch_vccz {done}\ns_sleep {cfg.slp}\ns_branch {lbl}')
    p(f's_cmp_eq_u32 s{sW}, 1\ns_cbranch_scc0 L_xn_got')
    p.cond(True)
    p('L_no_retry:')
    p(f'v_readfirstlane_b32 s{sNO}, v2\nv_readfirstlane_b32 s{sNO+1}, v3\ns_nop 0\ns_cmp_lg_u32 s{sNO}, 0\ns_cbranch_scc1 L_no_ok')
    p(f'buffer_load_dwordx2 v[2:3], v44, s[{S_DB}:{S_DB+3}], 0 offen sc1\ns_waitcnt vmcnt(0)\ns_branch L_no_retry')
    p('L_no_ok:')
    p(f'buffer_store_dwordx2 v[2:3], v32, s[{S_FL}:{S_FL+3}], 0 offen sc1')
    poll('L_xn_poll', 34, 'L_xn_got')
    p.cond(False)
    p('L_xn_got:\ns_barrier')
    ts.stamp(p)
    p(f'buffer_load_dwordx2 v[2:3], v44, s[{S_DB}:{S_DB+3}], 0 offen sc1')
    def act(sub, b):
        r = vB + 16*(sub % RB) + 4*b
        return f'buffer_load_dwordx4 v[{r}:{r+3}], v{vAct+b}, s[{S_XN}:{S_XN+3}], s{sKA} offen offset:{1024*(sub % 2)}{SC}'
    NG = 22
    def vm_sched(step, g2):
        s, t = divmod(g2, NG); sub = 2*step + s
        d = None; a = None
        if cfg.d0 <= g2 < cfg.d0 + 11*cfg.dstr and (g2 - cfg.d0) % cfg.dstr == 0: d = (g2 - cfg.d0)//cfg.dstr
        if cfg.a0 <= t < cfg.a0 + 4*cfg.astr and (t - cfg.a0) % cfg.astr == 0: a = (sub + cfg.ad, (t - cfg.a0)//cfg.astr)
        return d, a
    for sub in range(cfg.ad):
        for b in range(4): p(act(sub, b))
        if sub % 2 == 1:
            for x in adv_a(): p(x)
    if cfg.late1: dma_tile(1)
    srd(p, S_H, pWS, WS_H, 15 << 20)
    srd(p, S_K, pK, 0, 2 << 20)
    srd(p, S_V, pV, 0, 2 << 20)
    srd(p, S_O, pWS, WS_O, 17 << 20)
    for i in range(208, 256): p(f'v_mov_b32 v{i}, 0')
    if cfg.late0 == 2: p.need(('W', NHS, 1, 0)); p('s_barrier')
    P = cfg.P
    def trr(G, tile0, stride):
        step, g2 = divmod(G, 2*NG); s, t = divmod(g2, NG)
        r = vA + 4*(G % RA)
        tag = ('W', NHS, 2*(tile0 + step) + 1, 2*stride) if s == 1 else None
        if t < 14: off = (t // 7)*7168 + (t % 7)*32; a = vTr; hh = 8*224
        else: off = 0; a = vTq + t - 14; hh = 1024
        return [(f'ds_read_b64_tr_b16 v[{r}:{r+1}], v{a} offset:{off}', tag),
                (f'ds_read_b64_tr_b16 v[{r+2}:{r+3}], v{a} offset:{off + hh}', tag)]
    for G in range(P):
        for f in trr(G, 0, 0): emit(p, f)
    UN = 2
    p(f's_mov_b32 s{sDL}, 0\ns_mov_b32 s{sCNT}, {NT//UN}')
    p(f's_waitcnt vmcnt({4*(cfg.ad-1) + (11 if cfg.late1 else 0)})')
    p(f'v_readfirstlane_b32 s{sNO}, v2\nv_readfirstlane_b32 s{sNO+1}, v3')
    ts.stamp(p)
    p.loop_begin('G_loop', NT//UN)
    mf = []; hi = {}; lo = {}
    def H(i, x): hi.setdefault(i, []).append(x)
    def L(i, x): lo.setdefault(i, []).append(x)
    NGB = 2*NG*UN
    for G in range(NGB):
        step, g2 = divmod(G, 2*NG); s, t = divmod(g2, NG)
        sub = 2*step + s
        for b in range(4):
            ra = vA + 4*(G % RA); rb = vB + 16*(sub % RB) + 4*b
            mf.append(f'v_mfma_f32_16x16x32_bf16 {acc(t,b)}, v[{ra}:{ra+3}], v[{rb}:{rb+3}], {acc(t,b)}')
        i0 = 4*G; Gn = G + P; tn = Gn % NG
        if Gn % (2*NG) == 0:
            stepn = Gn // (2*NG)
            H(i0-1, lambda p, stepn=stepn: (p.need(('W', NHS, 2*stepn + 1, 2*UN)), p('s_barrier')))
        if tn == 0: H(i0-2, f'v_add_u32 v{vTr}, s{sDL}, v{vTr}')
        r0, r1 = trr(Gn % NGB, (Gn // NGB)*UN, UN)
        H(i0, r0); H(i0+1, r1)
        if 1 <= tn <= 8: L(i0, f'v_add_u32 v{vTq+tn-1}, s{sDL}, v{vTq+tn-1}')
        if tn == 9:
            for x in adv_rd(): L(i0, x)
        pc, a = vm_sched(step, g2)
        if a is not None:
            L(i0, act(*a))
            if a[1] == 3 and a[0] % 2 == 1:
                for x in adv_a(): L(i0, x)
        if pc is not None:
            for x in m0set(pc): L(i0, x)
            if m0set(pc): L(i0, m0gap)
            L(i0, dma(pc, step + 2, UN))
            if pc == 6:
                for x in adv_w(): L(i0, x)
            if pc == 10:
                for x in adv_q(): L(i0, x)
    H(len(mf)-3, f's_sub_u32 s{sCNT}, s{sCNT}, 1'); H(len(mf)-2, f's_cmp_lg_u32 s{sCNT}, 0')
    H(len(mf)-1, 's_cbranch_scc1 G_loop')
    fill = spread(hi, lo, len(mf), cfg.cap, 16, cost=lambda i: 1 if i % 4 == 3 else 0)
    fix_m0(fill, len(mf)); chk_tail(fill, len(mf))
    interleave(p, mf, fill)
    p.loop_end()
    p('s_waitcnt vmcnt(0) lgkmcnt(0)\ns_barrier')
    ts.stamp(p)

    vDK, vDV, vK, vV = 8, 12, 13, 21
    sKV, sMK, sAD, sPF = 39, 40, 43, 44
    t = 128
    p(f'v_lshrrev_b32 v{t}, 4, v1\nv_and_b32 v{t+1}, 15, v1')
    p(f's_lshl_b32 s{sMK}, s{sW}, 12')
    p(f'v_lshlrev_b32 v{t+2}, 8, v{t}\nv_add_u32 v{t+2}, s{sMK}, v{t+2}')
    for j in range(4):
        p(f'v_add_u32 v{t+3}, {4*j}, v{t}\nv_xor_b32 v{t+3}, v{t+3}, v{t+1}\nv_lshl_add_u32 v{vDK+j}, v{t+3}, 4, v{t+2}')
    p(f'v_lshlrev_b32 v{t+3}, 2, v{t}\nv_xor_b32 v{t+3}, v{t+3}, v{t+1}\nv_lshl_add_u32 v{vDV}, v{t+3}, 4, v{t+2}')
    p(f's_lshr_b32 s{sKV}, s{sCB}, 3\ns_lshl_b32 s{sKV}, s{sKV}, 19\ns_add_u32 s{sKV}, s{sKV}, {1536*256}')
    def kdma(j, soff, tag): return (f'buffer_load_dwordx4 v{vDK+j}, s[{S_K}:{S_K+3}], s{soff} offen offset:{1024*j} lds', tag)
    def vdma(j, soff, tag): return (f'buffer_load_dwordx4 v{vDV}, s[{S_V}:{S_V+3}], s{soff} offen offset:{1024*j} lds', tag)
    for (kind, tl) in (('K', 0), ('K', 1), ('V', 0), ('K', 2), ('V', 1)):
        p(f's_add_u32 s{sT}, s{sKV}, {tl*16384}\ns_add_u32 m0, s{sMK}, {tl*16384 + (65536 if kind == "V" else 0)}\ns_nop 0')
        for j in range(4): emit(p, (kdma if kind == 'K' else vdma)(j, sT, (kind, 4, tl, 0)))
    k1 = -2*math.sqrt(2/math.pi)*math.log2(math.e); k2 = k1*0.044715
    vC = 28
    p(f'v_mov_b32 v{vC}, {f2u(k1):#x}\nv_mov_b32 v{vC+1}, {f2u(k1):#x}\nv_mov_b32 v{vC+2}, {f2u(k2):#x}\nv_mov_b32 v{vC+3}, {f2u(k2):#x}')
    p(f's_lshl_b32 s{sT+2}, s{sRB}, 4\ns_lshl_b32 s{sT+3}, s{sW}, 2\ns_add_u32 s{sT+2}, s{sT+2}, s{sT+3}\ns_mul_i32 s{sT+2}, s{sT+2}, {HST}')
    p(f's_mul_i32 s{sT+3}, s{sCB}, 7\ns_add_u32 s{sT+3}, s{sT+3}, 1\ns_lshr_b32 s{sT+3}, s{sT+3}, 1\ns_lshl_b32 s{sT+3}, s{sT+3}, 10')
    p(f's_add_u32 s{sT+2}, s{sT+2}, s{sT+3}')
    p(f'v_lshlrev_b32 v{t}, 4, v1\nv_add_u32 v{vAct}, s{sT+2}, v{t}')
    for b in range(1, 4): p(f'v_add_u32 v{vAct+b}, {b*HST:#x}, v{vAct}')
    p(f's_and_b32 s{sT+3}, s{sCB}, 1\ns_cmp_eq_u32 s{sT+3}, 0\ns_mov_b32 s{sT+4}, 3072\ns_cselect_b32 s{sT+4}, s{sT+4}, -1016')
    vHs = 132
    for b in range(4): p(f'v_add_u32 v{vHs+b}, s{sT+4}, v{vAct+b}')
    def gelu_tiles(tiles):
        n = len(tiles)
        Xs = [32 + 12*i for i in range(n)]
        pk = lambda r: f'v[{r}:{r+1}]'
        for (t, b, d), X in zip(tiles, Xs):
            for r in range(4): p(f'v_accvgpr_read_b32 v{X+r}, {accr(t,b,r)}')
        for X in Xs:
            for r in (0, 2): p(f'v_pk_mul_f32 {pk(X+8+r)}, {pk(X+r)}, {pk(X+r)}')
        for X in Xs:
            for r in (0, 2): p(f'v_pk_fma_f32 {pk(X+8+r)}, {pk(X+8+r)}, {pk(vC+2)}, {pk(vC)}')
        for X in Xs:
            for r in (0, 2): p(f'v_pk_mul_f32 {pk(X+8+r)}, {pk(X+8+r)}, {pk(X+r)}')
        for (t, b, d), X in zip(tiles, Xs):
            for r in range(4): p(f'v_exp_f32 v{X+8+r}, v{X+8+r}')
            for r in range(4): p(f'v_accvgpr_read_b32 v{X+4+r}, {accr(t+7,b,r)}')
        for X in Xs:
            for r in (0, 2): p(f'v_pk_add_f32 {pk(X+8+r)}, {pk(X+8+r)}, 1.0 op_sel_hi:[1,0]')
        for X in Xs:
            for r in range(4): p(f'v_rcp_f32 v{X+8+r}, v{X+8+r}')
            for r in (0, 2): p(f'v_pk_mul_f32 {pk(X+4+r)}, {pk(X+4+r)}, {pk(X+r)}')
        for X in Xs:
            for r in (0, 2): p(f'v_pk_mul_f32 {pk(X+4+r)}, {pk(X+4+r)}, {pk(X+8+r)}')
        for (t, b, d), X in zip(tiles, Xs):
            p(f'v_cvt_pk_bf16_f32 v{d}, v{X+4}, v{X+5}\nv_cvt_pk_bf16_f32 v{d+1}, v{X+6}, v{X+7}')
    for par in range(2):
        if par == 0: p('s_cbranch_scc0 B_epi_odd')
        else: p.cond(True); p('B_epi_odd:')
        n = 0
        for b in range(4):
            for pr in range(3):
                d = 64 + 4*(n % 8); n += 1
                gelu_tiles([(2*pr + par, b, d), (2*pr + 1 + par, b, d + 2)])
                p(f'buffer_store_dwordx4 v[{d}:{d+3}], v{vAct+b}, s[{S_H}:{S_H+3}], 0 offen offset:{1024*pr}{SC}')
        for b in range(0, 4, 2):
            d = 64 + 4*(n % 8); n += 1
            gelu_tiles([(6 if par == 0 else 0, b, d), (6 if par == 0 else 0, b+1, d+2)])
            p(f'buffer_store_dwordx2 v[{d}:{d+1}], v{vHs+b}, s[{S_H}:{S_H+3}], 0 offen{SC}')
            p(f'buffer_store_dwordx2 v[{d+2}:{d+3}], v{vHs+b+1}, s[{S_H}:{S_H+3}], 0 offen{SC}')
        if par == 0: p('s_branch B_epi_done')
    p.cond(False)
    p('B_epi_done:')
    ts.stamp(p)
    vQ = 64
    qs = math.log2(math.e)/math.sqrt(128)
    p(f'v_mov_b32 v{vC}, {f2u(qs):#x}\nv_mov_b32 v{vC+1}, {f2u(qs):#x}')
    for qt in range(2):
        for s in range(8):
            d = vQ + (qt*8+s)*4
            for half in range(2):
                b = 2*qt + half; x = 32 + 4*half
                src = accr(14+s, b, 0)
                if src[0] == 'a':
                    for r in range(4): p(f'v_accvgpr_read_b32 v{x+r}, {accr(14+s, b, r)}')
                    s0 = x
                else: s0 = int(src[1:])
                for r in (0, 2): p(f'v_pk_mul_f32 v[{x+r}:{x+r+1}], v[{s0+r}:{s0+r+1}], v[{vC}:{vC+1}]')
                p(f'v_cvt_pk_bf16_f32 v{d+2*half}, v{x}, v{x+1}\nv_cvt_pk_bf16_f32 v{d+2*half+1}, v{x+2}, v{x+3}')
            if (qt, s) != (0, 0):
                dp = d - 4
                p(f'v_permlane16_swap_b32 v{dp}, v{dp+2}\nv_permlane16_swap_b32 v{dp+1}, v{dp+3}')
    t = 32
    p(f'v_and_b32 v{t}, 31, v1\nv_lshrrev_b32 v{t+1}, 5, v1\nv_and_b32 v{t+2}, 15, v1\nv_xor_b32 v{t+1}, v{t+1}, v{t+2}\nv_lshlrev_b32 v{t}, 8, v{t}')
    p(f'v_permlane16_swap_b32 v124, v126\nv_permlane16_swap_b32 v125, v127')
    for s in range(8):
        p(f'v_xor_b32 v{t+2}, {2*s}, v{t+1}\nv_lshl_add_u32 v{vK+s}, v{t+2}, 4, v{t}')
    p(f'v_lshrrev_b32 v{t}, 5, v1\nv_lshlrev_b32 v{t}, 2, v{t}\nv_bfe_u32 v{t+1}, v1, 2, 2\nv_add_u32 v{t}, v{t}, v{t+1}\nv_lshlrev_b32 v{t}, 8, v{t}')
    p(f'v_bfe_u32 v{t+2}, v1, 4, 1\nv_lshlrev_b32 v{t+2}, 5, v{t+2}\nv_and_b32 v{t+3}, 3, v1\nv_lshlrev_b32 v{t+3}, 3, v{t+3}\nv_add3_u32 v{t}, v{t}, v{t+2}, v{t+3}')
    p(f'v_add_u32 v{t}, 0x10000, v{t}')
    for dt in range(4):
        p(f'v_xor_b32 v{t+2}, {dt}, v{t+1}\nv_lshl_add_u32 v{vV+dt}, v{t+2}, 6, v{t}')
    vS = [128, 160]; vP = [192, 208]; vN = 224; vL = 28
    aF = 192
    def Sreg(n, qt): return vS[n % 2] + 16*qt
    def Preg(n, qt, ks): return vP[n % 2] + 8*qt + 4*ks
    def kread(n, s, tag):
        r = aF + 4*s
        return [(f'ds_read_b128 a[{r}:{r+3}], v{vK+s} offset:{(n % 2)*8192}', tag)]
    def vread(n, f, tag, base=None, off0=None):
        ks, dt = divmod(f, 4); r = aF + 32 + 4*f
        off = (32*(n % 2) + 16*ks)*256 if off0 is None else off0 + 16*ks*256
        b = vV if base is None else base
        return [(f'ds_read_b64_tr_b16 a[{r}:{r+1}], v{b+dt} offset:{off}', tag),
                (f'ds_read_b64_tr_b16 a[{r+2}:{r+3}], v{b+dt} offset:{off+2048}', tag)]
    def qk(n, s, qt, c0):
        S = Sreg(n, qt); c = f'v[{S}:{S+15}]' if s else c0(qt)
        return f'v_mfma_f32_32x32x16_bf16 v[{S}:{S+15}], a[{aF+4*s}:{aF+4*s+3}], v[{vQ+(qt*8+s)*4}:{vQ+(qt*8+s)*4+3}], {c}'
    def pv(n, f, qt):
        ks, dt = divmod(f, 4); o = (dt*2+qt)*16; P_ = Preg(n, qt, ks)
        return f'v_mfma_f32_32x32x16_bf16 a[{o}:{o+15}], a[{aF+32+4*f}:{aF+32+4*f+3}], v[{P_}:{P_+3}], a[{o}:{o+15}]'
    negm = lambda qt: f'v[{vN+16*qt}:{vN+16*qt+15}]'
    zero = lambda qt: '0'
    def softmax_ops(n):
        sl = [[] for _ in range(33)]
        for e in range(32):
            qt, i = divmod(e, 16); S = Sreg(n, qt)
            sl[e].insert(0, f'v_exp_f32 v{S+i}, v{S+i}')
            sl[e+1].append(f'v_add_f32 v{vL+2*qt+(i&1)}, v{vL+2*qt+(i&1)}, v{S+i}')
            if i & 1: sl[e+1].append(f'v_cvt_pk_bf16_f32 v{Preg(n, qt, i>>3)+((i&7)>>1)}, v{S+i-1}, v{S+i}')
        return sl
    p.need(('K', 4, 0, 0)); p('s_barrier')
    for s in range(8): emit(p, kread(0, s, ('K', 4, 0, 0))[0])
    for i in range(128): p(f'v_accvgpr_write_b32 a{i}, 0')
    for i in range(4): p(f'v_mov_b32 v{vL+i}, 0')
    p(f's_mov_b32 s{sAD}, 0')
    vPF = 25
    p(f's_lshl_b32 s{sT}, s2, 2\ns_add_u32 s{sT}, s{sT}, s{sW}\ns_lshl_b32 s{sT+1}, s{sT}, 13\ns_mul_i32 s{sT}, s{sT}, 7168')
    p(f'v_lshlrev_b32 v{vPF}, 4, v1\nv_add_u32 v{vPF+1}, s{sT}, v{vPF}\nv_add_u32 v{vPF}, s{sT+1}, v{vPF}')
    srd(p, S_W, pWO, 0, 8 << 20); srd(p, S_Q, pWD, 0, 7 << 20)
    p(f's_lshl_b32 s{sT}, s{sRB}, 12\ns_lshl_b32 s{sT+1}, s{sCB}, 7\ns_add_u32 s{sT}, s{sT}, s{sT+1}\ns_add_u32 s{sT}, s{sT}, {256*128}\nv_mov_b32 v{vHF}, s{sT}')
    sHW = 48; sDM = 55
    p(f's_add_u32 s{sDM}, s{sMK}, 0x20000')
    p(f's_cmp_eq_u32 s{sW}, 1\ns_cselect_b32 s{sHW}, 5, -1')
    ts.stamp(p)
    for s in range(8):
        for qt in range(2): p(qk(0, s, qt, zero))
        emit(p, kread(1, s, ('K', 4, 0, 0))[0])
    p(f's_mov_b32 s{sPF}, 7168\ns_add_u32 m0, s{sMK}, s{sDM}\ns_nop 0')
    p(f'buffer_load_dwordx4 v{vPF}, s[{S_W}:{S_W+3}], s{sPF} offen lds\ns_mov_b32 s{sPF}, 0')
    p('s_nop 6')
    def rowmax(n, first):
        for qt in range(2):
            S = Sreg(n, qt); m = 32 + 2*qt
            if first: p(f'v_max3_f32 v{m}, v{S}, v{S+1}, v{S+2}')
            else: p(f'v_max3_f32 v{m}, v{m}, v{S+1}, v{S+2}\nv_max_f32 v{m}, v{m}, v{S}')
            for i in range(3, 15, 2): p(f'v_max3_f32 v{m}, v{m}, v{S+i}, v{S+i+1}')
            p(f'v_max_f32 v{m}, v{m}, v{S+15}')
    def set_negm():
        for qt in range(2):
            m = 32 + 2*qt
            p(f'v_mov_b32 v{m+1}, v{m}\ns_nop 1\nv_permlane32_swap_b32 v{m}, v{m+1}\ns_nop 1\nv_max_f32 v{m}, v{m}, v{m+1}')
            p(f'v_sub_f32 v{vN+16*qt}, 0, v{m}')
            for i in range(1, 16): p(f'v_mov_b32 v{vN+16*qt+i}, v{vN+16*qt}')
    rowmax(0, True); set_negm()
    for qt in range(2):
        S = Sreg(0, qt)
        for i in range(0, 16, 2): p(f'v_pk_add_f32 v[{S+i}:{S+i+1}], v[{S+i}:{S+i+1}], v[{vN+16*qt}:{vN+16*qt+1}]')
    PF = cfg.PF
    def build(its, tile_tagK, tile_tagV, nxt, extra=None):
        pairs = []; sm = []
        for (nq, ns, npv) in its:
            st = len(pairs)
            if nq is not None:
                for s in range(8): pairs.append((qk(nq, s, 0, negm), qk(nq, s, 1, negm), kread(nq, s, tile_tagK(nq))))
            if npv is not None:
                for f in range(8): pairs.append((pv(npv, f, 0), pv(npv, f, 1), vread(npv, f, tile_tagV(npv))))
            if ns is not None: sm.append((st, len(pairs), softmax_ops(ns)))
        mf = []; fill = {}
        def F(i, x): fill.setdefault(i, []).append(x)
        for i, (a, b, _) in enumerate(pairs): mf += [a, b]
        if extra: extra(F, len(mf))
        for i in range(len(pairs)):
            j = i + PF
            rds = pairs[j][2] if j < len(pairs) else nxt(j - len(pairs))
            for k, r in enumerate(rds): F(2*i + k, r)
        for (st, en, sl) in sm:
            ng = 2*(en - st)
            for e, ops in enumerate(sl):
                g = 2*st + min(ng - 1, e*ng//32)
                for o in ops: F(g, o)
        return mf, fill
    def nxt0(k): return kread(2, k, ('K', 4, 1, 0))
    def extra0(F, n):
        pos = 2*(8 - PF)
        F(pos - 1, lambda p: (p.need(('K', 4, 1, 0)), p.need(('V', 4, 0, 0)), p('s_barrier')))
        for s in range(8): F(s, f'v_add_u32 v{vK+s}, 0x4000, v{vK+s}')
    mf, fill = build([(1, 0, None)], lambda n: None, None, nxt0, extra0)
    fill = {k: [x for x in v if not (isinstance(x, tuple) and x[1] is None)] for k, v in fill.items()}
    interleave(p, mf, fill)
    p(f's_mov_b32 s{sLEFT}, 7\ns_add_u32 s{sKA}, s{sKV}, {2*16384}\ns_mov_b32 s{sRD}, {2*16384}')
    p.loop_begin('A_loop', 7)
    def extra(F, n):
        pos = n - 2*PF
        F(pos - 1, lambda p: (p.need(('K', 4, 2, 1)), p.need(('V', 4, 1, 1)), p('s_barrier')))
        g0 = 2*(24-PF)
        for k, x in enumerate([f's_add_u32 s{sAD}, s{sAD}, 1', f's_and_b32 s{sT}, s{sAD}, 3', f's_cmp_eq_u32 s{sT}, 3', f's_mov_b32 s{sDL}, 0x4000', f's_cselect_b32 s{sDL}, -0xc000, s{sDL}',
                               f's_cmp_eq_u32 s{sT}, 0', f's_mov_b32 s{sT+1}, 0x4000', f's_cselect_b32 s{sT+1}, -0xc000, s{sT+1}']):
            F(g0 - 8 + k, x)
        for s in range(8): F(g0 + s, f'v_add_u32 v{vK+s}, s{sDL}, v{vK+s}')
        for dt in range(4): F(n - 2*PF + 1 + dt, f'v_add_u32 v{vV+dt}, s{sT+1}, v{vV+dt}')
        F(0, f's_add_u32 s{sT+2}, s{sRD}, 0x4000'); F(0, f's_and_b32 s{sT+2}, s{sT+2}, 0xffff')
        F(1, f's_cmp_le_u32 s{sLEFT}, 2'); F(1, f's_cselect_b32 s{sT+2}, s{sDM}, s{sT+2}')
        F(2, f's_cselect_b32 s{S_K+2}, 0, s{S_K+2}'); F(2, f's_add_u32 m0, s{sT+2}, s{sMK}')
        F(3, f's_add_u32 s{sT+3}, s{sKA}, 0x4000')
        for j in range(4): F(4 + 3*j, kdma(j, sT+3, ('K', 4, 3, 1)))
        F(14, f's_add_u32 s{sT+2}, s{sRD}, 0x10000'); F(14, f's_cmp_le_u32 s{sLEFT}, 1')
        F(15, f's_cselect_b32 s{sT+2}, s{sDM}, s{sT+2}'); F(15, f's_cselect_b32 s{S_V+2}, 0, s{S_V+2}')
        F(16, f's_add_u32 m0, s{sT+2}, s{sMK}')
        for j in range(4): F(17 + 3*j, vdma(j, sKA, ('V', 4, 2, 1)))
        F(27, f's_add_u32 s{sKA}, s{sKA}, 0x4000'); F(28, f's_add_u32 s{sRD}, s{sRD}, 0x4000'); F(29, f's_and_b32 s{sRD}, s{sRD}, 0xffff')
        F(30, f's_add_u32 m0, s{sMK}, s{sDM}')
        F(31, f'buffer_load_dwordx4 v{vPF}, s[{S_W}:{S_W+3}], s{sPF} offen lds')
        F(33, f'buffer_load_dwordx4 v{vPF+1}, s[{S_Q}:{S_Q+3}], s{sPF} offen lds')
        F(33, f's_add_u32 s{sPF}, s{sPF}, 1024')
        F(50, f's_cmp_eq_u32 s{sLEFT}, s{sHW}'); F(50, 's_cbranch_scc0 A_noflag')
        F(50, f'buffer_store_dwordx2 v[2:3], v{vHF}, s[{S_FL}:{S_FL+3}], 0 offen sc1 ;cond'); F(50, 'A_noflag:')
        F(n-3, f's_sub_u32 s{sLEFT}, s{sLEFT}, 1'); F(n-2, f's_cmp_lg_u32 s{sLEFT}, 0')
    mf, fill = build([(2, 1, 0), (3, 2, 1)], lambda n: ('K', 4, 1, 1), lambda n: ('V', 4, 0, 1),
                     lambda k: kread(2, k, None), extra)
    fill.setdefault(len(mf)-1, []).append('s_cbranch_scc1 A_loop')
    interleave(p, mf, fill)
    p.loop_end()
    S_WD, S_WO, S_AH, S_AO, S_X, S_OUT, S_P = 8, 12, 16, 20, 24, 28, 60
    sJ, sRC, sCC = 39, 41, 43
    kWD, kWO, kAH, kAO, cMW, cTG = 44, 45, 46, 47, 48, 49
    dD, dO, aH, aO, cTr, cA, cC = 40, 8, 48, 4, 52, 64, 128
    vFH = 60
    SLOT = 32768
    k_h = lambda pc: 4*pc
    k_o = lambda pc: 4*((pc & 1) | ((pc & 2) << 1) | ((pc & 4) >> 1))
    def x_dma_addr(dst, kmap):
        t = 36
        p(f's_lshl_b32 s{sT+2}, s{sW}, 16\ns_lshl_b32 s{sT+3}, s{sCC}, 8\ns_add_u32 s{sT+2}, s{sT+2}, s{sT+3}')
        p(f'v_lshrrev_b32 v{t}, 4, v1\nv_and_b32 v{t+1}, 15, v1\nv_lshlrev_b32 v{t+2}, 1, v{t}\nv_xor_b32 v{t+1}, v{t+1}, v{t+2}')
        p(f'v_lshlrev_b32 v{t}, 11, v{t}\nv_add_u32 v{t}, s{sT+2}, v{t}')
        for pc in range(8):
            p(f'v_xor_b32 v{t+2}, {8*(pc & 1)}, v{t+1}\nv_lshl_add_u32 v{t+2}, v{t+2}, 4, v{t}\nv_add_u32 v{dst+pc}, {(kmap(pc) << 11) - 1024*(pc % 4)}, v{t+2}')
    NS = 15; kind = lambda sg: 'd' if sg < 7 else 's'
    def cdma(pc, sg):
        D_, S_, K_ = (dD, S_WD, kWD) if kind(sg) == 'd' else (dO, S_WO, kWO)
        g = []
        if pc % 4 == 0: g += [f's_add_u32 m0, s{cMW}, {(sg % 4)*SLOT + 1024*pc}', m0gap]
        g.append((f'buffer_load_dwordx4 v{D_+pc}, s[{S_}:{S_+3}], s{K_} offen offset:{1024*(pc%4)} lds', ('C', 4, sg, 0)))
        if pc == 7: g.append(f's_add_u32 s{K_}, s{K_}, {128*2048}')
        return g
    def cact(sub, b):
        A_, S_, K_ = (aH, S_AH, kAH) if kind(sub // 4) == 'd' else (aO, S_AO, kAO)
        r = 128 + 16*(sub % 8) + 4*b
        g = [f'buffer_load_dwordx4 a[{r}:{r+3}], v{A_+b}, s[{S_}:{S_+3}], s{K_} offen offset:{1024*(sub % 4)}{SC}']
        if b == 3 and sub % 4 == 3: g.append(f's_add_u32 s{K_}, s{K_}, 4096')
        return g
    def flagchk(lbl, vaddr, vd):
        return [f'v_cmp_ne_u64 vcc, s[{sNO}:{sNO+1}], v[{vd}:{vd+1}]', 's_nop 0', 's_nop 0', f's_cbranch_vccz {lbl}_ok',
                f'{lbl}_spin: ;cond', f'buffer_load_dwordx2 v[{vd}:{vd+1}], v{vaddr}, s[{S_FL}:{S_FL+3}], 0 offen sc1 ;cond', 's_waitcnt vmcnt(0) ;cond',
                f'v_cmp_ne_u64 vcc, s[{sNO}:{sNO+1}], v[{vd}:{vd+1}] ;cond', 's_nop 1 ;cond', f's_cbranch_vccnz {lbl}_spin ;cond', f'{lbl}_ok:']
    for f in range(PF):
        for r in vread(14, f, ('V', 4, 7, 0)): emit(p, r)
    pre = Prog(); q = p; p = pre
    p(f's_bfe_u32 s{sJ}, s2, 0x20001\ns_and_b32 s{sRC}, s2, 1\ns_lshl_b32 s{sRC}, s{sRC}, 2\ns_bfe_u32 s{sT}, s2, 0x20003\ns_add_u32 s{sRC}, s{sRC}, s{sT}\ns_lshr_b32 s{sCC}, s2, 5')
    p(f's_lshl_b32 s{sT}, s{sRC}, 5\ns_lshl_b32 s{sT+1}, s{sJ}, 3\ns_add_u32 s{sT}, s{sT}, s{sT+1}\ns_add_u32 s{sT}, s{sT}, 256\ns_lshl_b32 s{sT}, s{sT}, 7')
    p(f'v_and_b32 v{vFH}, 7, v1\nv_lshl_add_u32 v{vFH}, v{vFH}, 7, s{sT}')
    p(f'buffer_load_dwordx2 v[62:63], v{vFH}, s[{S_FL}:{S_FL+3}], 0 offen sc1')
    x_dma_addr(dD, k_h)
    srd(p, S_WD, pWD, 0, 7 << 20)
    p(f's_mul_i32 s{kWD}, s{sJ}, {896*2048}\ns_lshl_b32 s{cMW}, s{sW}, 13')
    for pc in range(8):
        for x in cdma(pc, 0): emit(p, x)
    srd(p, S_AH, pWS, WS_H, 15 << 20)
    p(f's_lshl_b32 s{sT}, s{sRC}, 4\ns_lshl_b32 s{sT+2}, s{sW}, 2\ns_add_u32 s{sT}, s{sT}, s{sT+2}\ns_mul_i32 s{sT+2}, s{sT}, {HST}\ns_mul_i32 s{kAH}, s{sJ}, {28*1024}')
    p(f'v_lshlrev_b32 v36, 4, v1\nv_add_u32 v{aH}, s{sT+2}, v36')
    for b in range(1, 4): p(f'v_add_u32 v{aH+b}, {HST}, v{aH+b-1}')
    n1 = len(pre.items)
    p('\n'.join(flagchk('L_h', vFH, 62)))
    n2 = len(pre.items)
    for sub in range(4):
        for b in range(4):
            for x in cact(sub, b): emit(p, x)
        for pc in (2*sub, 2*sub+1):
            for x in cdma(pc, 1): emit(p, x)
    t = 36
    p(f's_lshl_b32 s{sT+3}, s{sJ}, 1')
    p(f'v_lshrrev_b32 v{t}, 2, v1\nv_and_b32 v{t+1}, 7, v{t}\nv_xor_b32 v{t+1}, s{sT+3}, v{t+1}\nv_lshlrev_b32 v{t}, 8, v{t}\nv_and_b32 v{t+2}, 3, v1\nv_lshl_add_u32 v{t}, v{t+2}, 3, v{t}')
    for tt in range(8):
        p(f'v_xor_b32 v{t+2}, {tt}, v{t+1}\nv_lshl_add_u32 v{cTr+tt}, v{t+2}, 5, v{t}')
    p(f's_mov_b32 s{cTG}, 0x10000')
    p = q
    its = [(it.text, it.tag) for it in pre.items]
    pre_items = its[:n1] + [('\n'.join(x[0] for x in its[n1:n2]), None)] + its[n2:]
    def extraT(F, n):
        for k, x in enumerate(pre_items): F(min(n - 1, cfg.tail0 + k*(n - cfg.tail0)//len(pre_items)), x)
    mf, fill = build([(None, 15, 14), (None, None, 15)], None, lambda n: ('V', 4, 7, 0), lambda k: [], extraT)
    interleave(p, mf, fill)
    ts.stamp(p)
    for qt in range(2):
        l = vL + 2*qt
        p(f'v_add_f32 v{l}, v{l}, v{l+1}\nv_mov_b32 v{l+1}, v{l}\ns_nop 1\nv_permlane32_swap_b32 v{l}, v{l+1}\ns_nop 1\nv_add_f32 v{l}, v{l}, v{l+1}')
    p(f'v_max_f32 v33, v{vL}, v{vL+2}\nv_add_f32 v33, v33, v{vL}\nv_add_f32 v33, v33, v{vL+2}')
    p(f's_mov_b32 s{sT}, {f2u(2.0**cfg.thr):#x}\nv_cmp_nlt_f32 vcc, v33, s{sT}\ns_nop 1\ns_cbranch_vccnz A_slow')
    p('A_done:')
    ad = cfg.cad; P = cfg.cP
    for sub in range(4, ad):
        for b in range(4):
            for x in cact(sub, b): emit(p, x)
    p(f'v_rcp_f32 v{vL}, v{vL}\nv_rcp_f32 v{vL+2}, v{vL+2}')
    p.need(('C', 4, 0, 0)); p('s_barrier')
    for G in range(P):
        r = cA + 4*G
        p(f'ds_read_b64_tr_b16 v[{r}:{r+1}], v{cTr+G} offset:0', ('C', 4, 0, 0)); p(f'ds_read_b64_tr_b16 v[{r+2}:{r+3}], v{cTr+G} offset:4096', ('C', 4, 0, 0))
    def collect(fn):
        nonlocal p
        w = Prog(); q = p; p = w; fn(); p = q
        return [(it.text, it.tag) for it in w.items]
    vO, vX, vFO, vFD, vFS, vFQ = 16, 96, 20, 21, 22, 23
    sPS, sPR = 32, 33
    def o_epi():
        t = 32
        p(f's_lshl_b32 s{sT}, s{sRB}, 4\ns_lshl_b32 s{sT+1}, s{sW}, 2\ns_add_u32 s{sT}, s{sT}, s{sT+1}\ns_mul_i32 s{sT}, s{sT}, {OST}\ns_lshl_b32 s{sT+1}, s{sCB}, 12\ns_add_u32 s{sT}, s{sT}, s{sT+1}')
        p(f'v_bfe_u32 v{t}, v1, 4, 1\nv_mul_u32_u24 v{t}, {OST}, v{t}\nv_lshrrev_b32 v{t+1}, 5, v1\nv_lshlrev_b32 v{t+1}, 8, v{t+1}\nv_and_b32 v{t+2}, 15, v1\nv_lshlrev_b32 v{t+2}, 4, v{t+2}')
        p(f'v_add3_u32 v{t}, v{t}, v{t+1}, v{t+2}\nv_add_u32 v34, s{sT}, v{t}\nv_add_u32 v35, {2*OST}, v34')
        n = 0
        for dt in range(4):
            for qt in range(2):
                o = (dt*2+qt)*16
                for half in range(2):
                    x = 96 + 8*(n % 2); d = 112 + 4*(n % 4); n += 1
                    for i in range(8): p(f'v_accvgpr_read_b32 v{x+i}, a{o+8*half+i}')
                    for i in range(8): p(f'v_mul_f32 v{x+i}, v{x+i}, v{vL+2*qt}')
                    for i in range(0, 8, 2): p(f'v_cvt_pk_bf16_f32 v{d+i//2}, v{x+i}, v{x+i+1}')
                    p(f'buffer_store_dwordx4 v[{d}:{d+3}], v{34+qt}, s[{S_O}:{S_O+3}], 0 offen offset:{dt*1024 + half*512}{SC}', ('Ost', 1, 0, 0))
    def s_setup():
        x_dma_addr(dO, k_o)
        srd(p, S_WO, pWO, 0, 8 << 20); srd(p, S_AO, pWS, WS_O, 17 << 20)
        p(f's_lshl_b32 s{kWO}, s{sJ}, 21\ns_lshl_b32 s{kAO}, s{sJ}, 15')
        p(f's_lshl_b32 s{sT}, s{sRC}, 4\ns_lshl_b32 s{sT+2}, s{sW}, 2\ns_add_u32 s{sT}, s{sT}, s{sT+2}\ns_mul_i32 s{sT+2}, s{sT}, {OST}')
        p(f'v_lshlrev_b32 v24, 4, v1\nv_add_u32 v{aO}, s{sT+2}, v24')
        for b in range(1, 4): p(f'v_add_u32 v{aO+b}, {OST}, v{aO+b-1}')
        p(f'v_add_u32 v{vFO}, {256*128}, v{vHF}\nv_add_u32 v{vFH}, {256*128}, v{vFH}')
        srd(p, S_X, pX, 0, 4 << 20); srd(p, S_OUT, pOUT, 0, 4 << 20); srd(p, S_P, pWS, WS_P, 24 << 20)
        p(f's_lshl_b32 s{sT}, s{sRC}, 3\ns_add_u32 s{sT}, s{sT}, s{sCC}\ns_lshl_b32 s{sT}, s{sT}, 2\ns_add_u32 s{sT+1}, s{sT}, s{sJ}')
        p(f's_add_u32 s{sT+2}, s{sT+1}, 768\ns_lshl_b32 s{sT+2}, s{sT+2}, 7\nv_mov_b32 v{vFD}, s{sT+2}\nv_add_u32 v{vFS}, {256*128}, v{vFD}')
        p(f's_add_u32 s{sT+2}, s{sT}, 768\ns_lshl_b32 s{sT+2}, s{sT+2}, 7\nv_and_b32 v{vFQ}, 3, v1\nv_lshl_add_u32 v{vFQ}, v{vFQ}, 7, s{sT+2}')
        p(f's_lshl_b32 s{sT+3}, s{sW}, 12\ns_mul_i32 s{sPR}, s{sT+1}, {3*16384}\ns_add_u32 s{sPR}, s{sPR}, s{sT+3}')
        for q_ in (1, 2, 3):
            p(f's_xor_b32 s{sT+2}, s{sT+1}, {q_}\ns_mul_i32 s{sT+2}, s{sT+2}, {3*16384}\ns_add_u32 s{sT+2}, s{sT+2}, s{sT+3}\ns_add_u32 s{sT+2}, s{sT+2}, {(q_-1)*16384}\nv_add_u32 v{24+q_}, s{sT+2}, v24')
        p(f's_lshl_b32 s{sT+2}, s{sRC}, 8\ns_lshl_b32 s{sT+3}, s{sW}, 6\ns_add_u32 s{sT+2}, s{sT+2}, s{sT+3}\ns_lshl_b32 s{sT+2}, s{sT+2}, 11')
        p(f's_lshl_b32 s{sT+3}, s{sCC}, 8\ns_add_u32 s{sT+2}, s{sT+2}, s{sT+3}\ns_lshl_b32 s{sT+3}, s{sJ}, 6\ns_add_u32 s{sT+2}, s{sT+2}, s{sT+3}')
        t = 36
        p(f'v_and_b32 v{t}, 15, v1\nv_lshlrev_b32 v{t}, 11, v{t}\nv_add_u32 v{t}, s{sT+2}, v{t}\nv_lshrrev_b32 v{t+1}, 4, v1')
        p(f'v_and_b32 v{vO}, 1, v{t+1}\nv_lshlrev_b32 v{vO}, 5, v{vO}\nv_lshrrev_b32 v{vO+1}, 1, v{t+1}\nv_lshlrev_b32 v{vO+1}, 4, v{vO+1}\nv_add3_u32 v{vO}, v{vO}, v{vO+1}, v{t}')
        for b in range(1, 4): p(f'v_add_u32 v{vO+b}, 0x8000, v{vO+b-1}')
    def send(gemm, quads=range(12)):
        for i in quads:
            c = 32 + 8*i; d = 112 + 4*(i % 4)
            if gemm == 0:
                for r in range(4): p(f'v_cvt_pk_bf16_f32 v{d+r}, v{cC+c+2*r}, v{cC+c+2*r+1}')
            else:
                x = 160 + 8*(i % 4)
                for r in range(8): p(f'v_accvgpr_read_b32 v{x+r}, a{c+r}')
                for r in range(4): p(f'v_cvt_pk_bf16_f32 v{d+r}, v{x+2*r}, v{x+2*r+1}')
            so = '0' if gemm == 0 else f's{sT+4}'
            p(f'buffer_store_dwordx4 v[{d}:{d+3}], v{25 + i//4}, s[{S_P}:{S_P+3}], {so} offen offset:{1024*(i%4)} sc1', ('Pst', 1, gemm, 0))
    def flag_store(lbl, va):
        return f's_cmp_eq_u32 s{sW}, 1\ns_cbranch_scc0 {lbl}\nbuffer_store_dwordx2 v[2:3], v{va}, s[{S_FL}:{S_FL+3}], 0 offen sc1 ;cond\n{lbl}:'
    mf = []; hi = {}; lo = {}
    ST = 128; TM = cfg.tm
    order = [(sg, s, t) for sg in range(NS - TM) for s in range(4) for t in range(8)]
    order += [(sg, s, t) for t in (2, 3, 4, 5, 6, 7, 0, 1) for sg in range(NS - TM, NS) for s in range(4)]
    assert TM in (0, 1, 2) and (TM < 2 or ad == 7)
    def ctr(G):
        sg, s, t = order[G]
        r = cA + 4*(G % 8); off = (sg % 2)*SLOT + s*8192
        a = cTr + t
        if TM == 2 and sg == NS - 1: a = 32 + t % 2
        return [(f'ds_read_b64_tr_b16 v[{r}:{r+1}], v{a} offset:{off}', ('C', 4, sg, 0)),
                (f'ds_read_b64_tr_b16 v[{r+2}:{r+3}], v{a} offset:{off + 4096}', ('C', 4, sg, 0))]
    obar = math.ceil(cfg.oe) + 1; dbar = 7 + math.ceil(cfg.de) + 1
    def bar(p, sgn):
        p.need(('C', 4, sgn, 0))
        if TM == 2 and sgn == NS - 2: p.need(('C', 4, NS - 1, 0))
        if sgn == obar: p.need(('Ost', 1, 0, 0))
        if sgn == dbar: p.need(('Pst', 1, 0, 0))
        p('s_barrier')
    for G in range(32*NS):
        sg, s, t = order[G]; sub = 4*sg + s
        for b in range(4):
            ra = cA + 4*(G % 8); rb = 128 + 16*(sub % 8) + 4*b; c = (t*4+b)*4
            acc_ = f'v[{cC+c}:{cC+c+3}]' if kind(sg) == 'd' else f'a[{c}:{c+3}]'
            mf.append(f'v_mfma_f32_16x16x32_bf16 {acc_}, v[{ra}:{ra+3}], a[{rb}:{rb+3}], {"0" if sub in (0, 28) else acc_}')
        i0 = 4*G; Gn = G + P
        if Gn < 32*NS:
            if Gn % 32 == 0 and not (TM == 2 and Gn // 32 == NS - 1):
                H(i0-1, lambda p, sgn=Gn//32: bar(p, sgn))
            r0, r1 = ctr(Gn)
            if TM == 2 and order[Gn][0] == NS - 2 and order[Gn][1] == 2:
                H(i0+2, f'v_xor_b32 v{32 + order[Gn][2] % 2}, s{cTG}, v{cTr + order[Gn][2]}')
            H(i0, r0); H(i0+1, r1)
            if Gn % 64 >= 56 and not (TM == 2 and Gn // 32 == NS - 2): H(i0+2, f'v_xor_b32 v{cTr + Gn % 8}, s{cTG}, v{cTr + Gn % 8}')
        sgc, g = divmod(G, 32); subc = 4*sgc + g // 8
        if g % 2 == 0 and subc + ad < 4*NS:
            for x in cact(subc + ad, (g % 8) // 2): L(i0, x)
        dstr = 2 if (TM == 2 and sgc + 2 == NS - 1) else cfg.cdstr
        if g % dstr == 1 and g // dstr < 8 and sgc + 2 < NS:
            for x in cdma(g // dstr, sgc + 2): L(i0, x)
    n = len(mf)
    fill = spread(hi, lo, n, cfg.cap, 16, cost=lambda i: 1 if i % 4 == 3 else 0)
    fix_m0(fill, n)
    def ride(items, g0, g1):
        q_ = list(items); per = len(q_) / (g1 - g0); acc_ = 0.0
        for i in range(g0, g1):
            acc_ += per
            while q_ and acc_ >= 1: fill[i].append(q_.pop(0)); acc_ -= 1
        fill[g1-1] += q_
    ride(collect(o_epi), 2, int(cfg.oe*ST))
    ride(collect(s_setup), int(cfg.oe*ST), int(cfg.oe*ST) + ST - 20)
    fill[obar*ST - 4*P + 2].append(flag_store('C_of', vFO))
    first_o = (28 - ad)*32
    assert first_o - 2 > int(cfg.oe*ST) + ST - 20 and 5*ST > int(cfg.oe*ST) + ST - 20
    fill[first_o - cfg.fl].append(f'buffer_load_dwordx2 v[62:63], v{vFH}, s[{S_FL}:{S_FL+3}], 0 offen sc1')
    fill[first_o - 2].append('\n'.join(flagchk('L_o', vFH, 62)))
    ride(collect(lambda: send(0)), 7*ST + 8, 7*ST + int(cfg.de*ST))
    fill[dbar*ST - 4*P + 2].append(flag_store('C_df', vFD))
    xl = [f'buffer_load_dwordx4 v[{vX+4*b}:{vX+4*b+3}], v{vO+b}, s[{S_X}:{S_X+3}], 0 offen' for b in range(4)]
    ride(xl, (60 - ad)*32 + 4, (60 - ad)*32 + 36)
    vR = 192
    def recv(gemm):
        p(f's_add_u32 s{sT+2}, s{sPR}, {gemm*256*3*16384}')
        for q_ in range(3):
            for i in range(4):
                r = vR + 16*q_ + 4*i
                p(f'buffer_load_dwordx4 v[{r}:{r+3}], v24, s[{S_P}:{S_P+3}], s{sT+2} offen offset:{1024*i} sc1')
            if q_ < 2: p(f's_add_u32 s{sT+2}, s{sT+2}, 16384')
    dchk = cfg.dchk
    fill[int(dchk*ST) - cfg.fl].append(f'buffer_load_dwordx2 v[62:63], v{vFQ}, s[{S_FL}:{S_FL+3}], 0 offen sc1')
    fill[int(dchk*ST)].append('\n'.join(flagchk('L_d', vFQ, 62)))
    ride(collect(lambda: recv(0)), int(dchk*ST) + 2, int(dchk*ST) + 50)
    fill[12*ST].append(f's_mov_b32 s{sT+4}, {256*3*16384}')
    sent = 0
    if TM:
        pairlen = TM*32
        base = (NS - TM)*ST; plen = 2*4*TM*4
        for q_ in range(3):
            g0 = base + (q_ + 1)*plen + 3
            ride(collect(lambda: send(1, range(4*q_, 4*q_ + 4))), g0, min(n, g0 + plen - 3))
        sent = 12
    ts.stamp(p, 3)
    for k in range(1, 15):
        if k in (1, 2, 3, 4, 5, 6, 7, 8, 9, 11, 13):
            t_ = ts.text(2)
            if t_: fill[k*ST - 1].append(t_)
    interleave(p, mf, fill)
    p(f's_mov_b32 s{sT+3}, 0xffff0000\nv_add_u32 v{vFQ}, {256*128}, v{vFQ}\ns_nop 4')
    ts.stamp(p, 3)
    send(1, range(sent, 12))
    pk = lambda r: f'v[{r}:{r+1}]'
    def addparts(dst, i):
        for q_ in range(3):
            rr = vR + 16*q_ + 4*i; tt = 32 + 8*(q_ % 2)
            for r in range(4): p(f'v_lshlrev_b32 v{tt+2*r}, 16, v{rr+r}\nv_and_b32 v{tt+2*r+1}, s{sT+3}, v{rr+r}')
            for r in range(0, 8, 2): p(f'v_pk_add_f32 {pk(dst+r)}, {pk(dst+r)}, {pk(tt+r)}')
    p(f'v_mov_b32 v28, {f2u(-math.log2(math.e)):#x}\nv_mov_b32 v29, v28')
    for i in range(4):
        c = cC + 8*i; B = 48
        addparts(c, i)
        for r in range(0, 8, 2): p(f'v_pk_mul_f32 {pk(B+r)}, {pk(c+r)}, v[28:29]')
        for r in range(8): p(f'v_exp_f32 v{B+r}, v{B+r}')
        p('s_nop 0')
        for r in range(0, 8, 2): p(f'v_pk_add_f32 {pk(B+r)}, {pk(B+r)}, 1.0 op_sel_hi:[1,0]')
        for r in range(8): p(f'v_rcp_f32 v{B+r}, v{B+r}')
        p('s_nop 0')
        for r in range(0, 8, 2): p(f'v_pk_mul_f32 {pk(c+r)}, {pk(c+r)}, {pk(B+r)}')
    vSs = 64
    for i in range(32): p(f'v_accvgpr_read_b32 v{vSs+i}, a{i}')
    p('s_waitcnt vmcnt(0)\ns_barrier')
    ts.stamp(p)
    p(f's_cmp_eq_u32 s{sW}, 1\ns_cbranch_scc0 C_got')
    p.cond(True)
    p(f'buffer_store_dwordx2 v[2:3], v{vFS}, s[{S_FL}:{S_FL+3}], 0 offen sc1')
    poll('C_poll', vFQ, 'C_got')
    p.cond(False)
    p('C_got:\ns_barrier')
    ts.stamp(p)
    recv(1)
    E = 160
    for b in range(4):
        for q in range(4): p(f'v_lshlrev_b32 v{E+8*b+2*q}, 16, v{vX+4*b+q}\nv_and_b32 v{E+8*b+2*q+1}, s{sT+3}, v{vX+4*b+q}')
    for i in (0, 2, 1, 3): addparts(vSs + 8*i, i)
    for b in range(4):
        c0 = vSs + 4*b; c1 = vSs + 16 + 4*b; o = 112 + 4*b
        for r in (0, 2):
            p(f'v_pk_mul_f32 {pk(c0+r)}, {pk(c0+r)}, {pk(cC+4*b+r)}\nv_pk_mul_f32 {pk(c1+r)}, {pk(c1+r)}, {pk(cC+16+4*b+r)}')
        p('s_nop 0')
        for r in range(4): p(f'v_permlane16_swap_b32 v{c0+r}, v{c1+r}')
        p('s_nop 0')
        for q in range(4):
            c = (c0, c0+2, c1, c1+2)[q]
            p(f'v_pk_add_f32 {pk(E+8*b+2*q)}, {pk(E+8*b+2*q)}, {pk(c)}')
        for q in range(4): p(f'v_cvt_pk_bf16_f32 v{o+q}, v{E+8*b+2*q}, v{E+8*b+2*q+1}')
        p(f'buffer_store_dwordx4 v[{o}:{o+3}], v{vO+b}, s[{S_OUT}:{S_OUT+3}], 0 offen {cfg.osc}')
    p('C_fin:')
    ts.stamp(p)
    ts.dump(p, pWS)
    p('K_end:\ns_endpgm')
    autowait(p); check(p, 'main')

    z = Prog(); main = p; p = z
    p('A_slow:')
    p('s_waitcnt vmcnt(0) lgkmcnt(0)')
    srd(p, S_K, pK, 0, 2 << 20); srd(p, S_V, pV, 0, 2 << 20)
    zK, zD, zV = 13, 14, 21
    zKV, zN = sT, sT+1
    p(f's_lshr_b32 s{zKV}, s{sCB}, 3\ns_lshl_b32 s{zKV}, s{zKV}, 19\ns_add_u32 s{zKV}, s{zKV}, {1536*256}')
    p(f'v_and_b32 v{zK}, 31, v1\nv_lshlrev_b32 v{zK}, 8, v{zK}\nv_lshrrev_b32 v36, 5, v1\nv_lshl_add_u32 v{zK}, v36, 4, v{zK}')
    p(f'v_lshrrev_b32 v36, 4, v1\nv_and_b32 v37, 15, v1\nv_lshlrev_b32 v38, 2, v36\nv_xor_b32 v37, v37, v38\nv_lshlrev_b32 v36, 8, v36\nv_lshl_add_u32 v{zD}, v37, 4, v36\nv_add_u32 v{zD+1}, 0x1000, v{zD}')
    t = 36
    p(f'v_lshrrev_b32 v{t}, 5, v1\nv_lshlrev_b32 v{t}, 2, v{t}\nv_bfe_u32 v{t+1}, v1, 2, 2\nv_add_u32 v{t}, v{t}, v{t+1}\nv_lshlrev_b32 v{t}, 8, v{t}')
    p(f'v_bfe_u32 v{t+2}, v1, 4, 1\nv_lshlrev_b32 v{t+2}, 5, v{t+2}\nv_and_b32 v{t+3}, 3, v1\nv_lshlrev_b32 v{t+3}, 3, v{t+3}\nv_add3_u32 v{t}, v{t}, v{t+2}, v{t+3}')
    p(f's_lshl_b32 s{sT+2}, s{sW}, 13\ns_add_u32 s{sT+2}, s{sT+2}, 0x20000\nv_add_u32 v{t}, s{sT+2}, v{t}')
    for dt in range(4): p(f'v_xor_b32 v{t+2}, {dt}, v{t+1}\nv_lshl_add_u32 v{zV+dt}, v{t+2}, 6, v{t}')
    def kglob():
        for s in range(8): p(f'buffer_load_dwordx4 a[{aF+4*s}:{aF+4*s+3}], v{zK}, s[{S_K}:{S_K+3}], s{zN} offen offset:{32*s}')
    p(f'v_mov_b32 v32, 0xff800000\nv_mov_b32 v34, 0xff800000\ns_mov_b32 s{zN}, s{zKV}\ns_mov_b32 s{sT+3}, 16')
    p.loop_begin('Z1_loop', 16, align=False)
    kglob()
    for s in range(8):
        for qt in range(2): p(qk(0, s, qt, zero))
    p('s_nop 7\ns_nop 3')
    rowmax(0, False)
    p(f's_add_u32 s{zN}, s{zN}, 8192\ns_sub_u32 s{sT+3}, s{sT+3}, 1\ns_cmp_lg_u32 s{sT+3}, 0\ns_cbranch_scc1 Z1_loop')
    p.loop_end()
    set_negm()
    for i in range(128): p(f'v_accvgpr_write_b32 a{i}, 0')
    for i in range(4): p(f'v_mov_b32 v{vL+i}, 0')
    p(f's_mov_b32 s{zN}, s{zKV}\ns_mov_b32 s{sT+3}, 16')
    p.loop_begin('Z2_loop', 16, align=False)
    kglob()
    for j in range(8):
        if j % 4 == 0: p(f's_add_u32 m0, s{sT+2}, {1024*j}\ns_nop 0')
        p(f'buffer_load_dwordx4 v{zD + j//4}, s[{S_V}:{S_V+3}], s{zN} offen offset:{1024*(j%4)} lds')
    for s in range(8):
        for qt in range(2): p(qk(0, s, qt, negm))
    p('s_nop 7\ns_nop 3')
    for ops in softmax_ops(0):
        for o in ops: p(o)
    p('s_waitcnt vmcnt(0)')
    for f in range(8):
        for r in vread(0, f, None, base=zV, off0=0): emit(p, r)
    for f in range(8):
        for qt in range(2): p(pv(0, f, qt))
    p(f's_add_u32 s{zN}, s{zN}, 8192\ns_sub_u32 s{sT+3}, s{sT+3}, 1\ns_cmp_lg_u32 s{sT+3}, 0\ns_cbranch_scc1 Z2_loop')
    p.loop_end()
    p('s_nop 7\ns_nop 7')
    for qt in range(2):
        l = vL + 2*qt
        p(f'v_add_f32 v{l}, v{l}, v{l+1}\nv_mov_b32 v{l+1}, v{l}\ns_nop 1\nv_permlane32_swap_b32 v{l}, v{l+1}\ns_nop 1\nv_add_f32 v{l}, v{l}, v{l+1}')
    p('s_branch A_done')
    autowait(z); check(z, 'slow')
    return main.text() + '\n' + z.text() + '\nK_last:'

def main():
    cfg = Cfg()
    cfg.ts = 1; cfg.xmap = 'b'; cfg.stag = 0; cfg.P = 4; cfg.late1 = 1; cfg.w0 = 0; cfg.cw0 = 8
    cfg.d0 = 0; cfg.dstr = 4; cfg.a0 = 1; cfg.astr = 2; cfg.ad = 3; cfg.PF = 3; cfg.cap = 2
    cfg.cad = 5; cfg.cdstr = 4; cfg.cP = 4; cfg.thr = 30; cfg.tail0 = 4; cfg.opad = 256; cfg.xpad = 256; cfg.hpad = 0; cfg.oe = 3; cfg.de = 4; cfg.tm = 0; cfg.fl = 128; cfg.dchk = 14; cfg.dbg = 0; cfg.cpf = 1; cfg.tlb = 0; cfg.osc = ''; cfg.slp = 1; cfg.late0 = 2
    for a in sys.argv[2:]:
        k, v = a.split('='); setattr(cfg, k, int(v) if v.lstrip('-').isdigit() else float(v) if v.replace('.','').isdigit() else v)
    kn = NAME + '_kernel'
    hdr = (f'; opad={cfg.opad} hoff={WS_H} xpad={cfg.xpad} hpad={cfg.hpad} ooff={WS_O}\n; @launch grid=(256,1,1) block=(256,1,1) lds={LDS_TOT}\n'
           '.amdgcn_target "amdgcn-amd-amdhsa--gfx950"\n')
    s = hdr + kernel_head(kn) + gen(cfg) + '\n' + kernel_desc(kn, 512, 256)
    open(sys.argv[1], 'w').write(s)
if __name__ == '__main__': main()
```

```python
import re

TRANS = ('v_exp_f32','v_log_f32','v_rcp_f32','v_rsq_f32','v_sqrt_f32','v_sin_f32','v_cos_f32')

def expand(op):
    op = op.strip()
    op = op.lstrip('-')
    if op.startswith('abs(') : op = op[4:-1]
    if op.startswith('|'): op = op.strip('|')
    m = re.fullmatch(r'([vas])\[(\d+):(\d+)\]', op)
    if m: return [f"{m.group(1)}{i}" for i in range(int(m.group(2)), int(m.group(3))+1)]
    m = re.fullmatch(r'([vas])(\d+)', op)
    if m: return [op]
    if op in ('vcc',): return ['vcc']
    if op in ('vcc_lo','vcc_hi'): return ['vcc']
    if op == 'exec': return ['exec']
    if op == 'm0': return ['m0']
    return []

class I:
    __slots__ = ('text','op','kind','rd','wr','tag','passes','cregs','abregs','wait','skip')
    def __init__(self, text, tag=None):
        self.text = text; self.tag = tag; self.skip = False
        t = text.split(';')[0].strip()
        parts = t.split(None, 1)
        op = parts[0]; self.op = op
        args = [a.strip() for a in parts[1].split(',')] if len(parts) > 1 else []
        mods = []
        if args:
            la = args[-1].split()
            args[-1] = la[0] if la else ''
            mods = la[1:]
        self.rd = set(); self.wr = set(); self.passes = 0; self.cregs = set(); self.abregs = set(); self.wait = None
        E = lambda i: set(expand(args[i])) if i < len(args) else set()
        allargs = lambda lo: set().union(*[E(i) for i in range(lo, len(args))]) if len(args) > lo else set()
        if op.endswith(':'): self.kind = 'label'
        elif op.startswith('.'): self.kind = 'dir'
        elif op.startswith('v_mfma'):
            self.kind = 'mfma'; self.wr = E(0); self.abregs = E(1) | E(2); self.cregs = E(3); self.rd = self.abregs | self.cregs
            self.passes = 8 if '32x32x16' in op else 4
        elif op == 's_waitcnt':
            self.kind = 'wait'; w = {}
            for m in re.finditer(r'(vmcnt|lgkmcnt)\((\d+)\)', t): w[m.group(1)] = int(m.group(2))
            self.wait = w
        elif op == 's_barrier': self.kind = 'barrier'
        elif op == 's_nop': self.kind = 'nop'; self.passes = int(args[0], 0) + 1
        elif op in ('s_endpgm','s_setprio','s_sleep'): self.kind = 'salu'
        elif op.startswith('s_cbranch') or op == 's_branch':
            self.kind = 'branch'
            if 'scc' in op: self.rd = {'scc'}
            if 'vcc' in op: self.rd = {'vcc'}
            if 'exec' in op: self.rd = {'exec'}
        elif op.startswith('s_load') or op.startswith('s_memtime') or op.startswith('s_memrealtime') or op.startswith('s_atomic'):
            self.kind = 'smem'; self.wr = E(0); self.rd = allargs(1)
        elif op.startswith('s_cmp'):
            self.kind = 'salu'; self.rd = allargs(0); self.wr = {'scc'}
        elif op.startswith('s_'):
            self.kind = 'salu'; self.wr = E(0); self.rd = allargs(1)
            if op.split('_')[1] in ('add','sub','addc','subb','lshl','lshr','and','or','xor','andn2','ashr','min','max','not','addk','bfe'): self.wr |= {'scc'}
            if op.startswith('s_cselect') or op.startswith('s_addc') or op.startswith('s_subb'): self.rd |= {'scc'}
            if op.startswith('s_addk') or op.startswith('s_mulk'): self.rd |= E(0)
            if 'saveexec' in op: self.wr |= {'exec','scc'}; self.rd |= {'exec'}
            if op.startswith('s_getreg') or op.startswith('s_getpc'): self.rd = set()
        elif op.startswith('ds_read') or op.startswith('ds_bpermute') or op.startswith('ds_swizzle') or op.startswith('ds_permute'):
            self.kind = 'dsr'; self.wr = E(0); self.rd = allargs(1)
        elif op.startswith('ds_write') :
            self.kind = 'dsw'; self.rd = allargs(0)
        elif op.startswith('ds_'):
            if '_rtn' in op: self.kind = 'dsr'; self.wr = E(0); self.rd = allargs(1)
            else: self.kind = 'dsw'; self.rd = allargs(0)
        elif op.startswith('buffer_load') or op.startswith('global_load'):
            if 'lds' in mods or op.startswith('global_load_lds'):
                self.kind = 'dma'; self.rd = allargs(0) | {'m0'}
            else:
                self.kind = 'vld'; self.wr = E(0); self.rd = allargs(1)
        elif op.startswith('buffer_store') or op.startswith('global_store'):
            self.kind = 'vst'; self.rd = allargs(0)
            self.cregs = E(0) if op.startswith('buffer_store') else E(1)
            self.passes = 4 if op.endswith('x4') or op.endswith('x3') else 0
        elif op.startswith('buffer_atomic') or op.startswith('global_atomic'):
            ret = 'sc0' in mods
            self.kind = 'vld' if ret else 'vst'
            self.rd = allargs(0)
            if ret: self.wr = E(0)
        elif op.startswith('buffer_inv') or op.startswith('buffer_wbl2'):
            self.kind = 'vst'
        elif op.startswith('v_'):
            self.kind = 'trans' if op.replace('_e32','').replace('_e64','') in TRANS else 'valu'
            self.wr = E(0); self.rd = allargs(1)
            if op.startswith('v_permlane') and 'swap' in op:
                self.wr = E(0) | E(1); self.rd = E(0) | E(1)
            if op.startswith('v_fmac') or op.startswith('v_pk_fmac') or op.startswith('v_dot2c') or op.startswith('v_writelane'): self.rd |= E(0)
            if op.startswith('v_add_co') or op.startswith('v_addc_co') or op.startswith('v_sub_co'):
                self.wr = E(0) | E(1); self.rd = allargs(2)
            if op.startswith('v_cmpx'): self.wr |= {'exec'}
            if op.startswith('v_cndmask') and len(args) == 3: self.rd |= {'vcc'}
        else:
            raise ValueError('unknown op ' + text)

class Loop:
    def __init__(self, name, count, body): self.name = name; self.count = count; self.body = body

class Ref:
    def __init__(self, loop, count): self.loop = loop; self.count = count

class Prog:
    def __init__(self): self.items = []; self.stack = [self.items]; self.skipping = False
    def __call__(self, text, tag=None):
        for ln in text.split('\n'):
            ln = ln.strip()
            if not ln: continue
            if ln.startswith(';'):
                c = I('.comment'); c.text = ln; self.stack[-1].append(c); continue
            ins = I(ln, tag); ins.skip = self.skipping or ln.endswith(';cond'); self.stack[-1].append(ins)
    def cond(self, on): self.skipping = on
    def add(self, inst): self.stack[-1].append(inst)
    def loop_begin(self, name, count, align=True):
        L = Loop(name, count, [])
        if align: self('.p2align 6')
        self.stack[-1].append(L); self.stack.append(L.body)
        self(f'{name}:')
        return L
    def again(self, loop, count): self.stack[-1].append(Ref(loop, count))
    def loop_end(self): self.stack.pop()
    def text(self):
        out = []
        def w(items):
            for it in items:
                if isinstance(it, Loop): w(it.body)
                elif isinstance(it, Ref): pass
                else: out.append(it.text if it.kind in ('label','dir') else '  ' + it.text)
        w(self.items); return '\n'.join(out)
    def trace(self, maxiter=10**9):
        def w(items, itn):
            for it in items:
                if isinstance(it, Loop):
                    for n in range(min(it.count, maxiter)): yield from w(it.body, n)
                elif isinstance(it, Ref):
                    for n in range(min(it.count, maxiter)): yield from w(it.loop.body, n + 1000)
                elif not it.skip: yield it, itn
        return w(self.items, 0)
    def need(self, tag):
        c = I('.need'); c.text = '; need ' + str(tag); c.kind = 'need'; c.tag = tag; self.stack[-1].append(c)
    def touch(self, opnd):
        c = I('.need'); c.text = '; touch ' + opnd; c.kind = 'touch'; c.rd = set(expand(opnd)); self.stack[-1].append(c)
    def needrd(self, tag):
        c = I('.need'); c.text = '; needrd ' + str(tag); c.kind = 'needrd'; c.tag = tag; self.stack[-1].append(c)

def rtag(tag, itn):
    name, ring, v0, stride = tag
    ver = v0 + itn * stride
    return (name, ver % ring), ver

def autowait(prog, maxiter=10**9):
    need_vm = {}; need_lg = {}
    vm = []; lg = []
    for ins, itn in prog.trace(maxiter):
        k = ins.kind
        if k in ('label','dir','barrier','nop'): continue
        if k == 'wait':
            if 'vmcnt' in ins.wait: del vm[:max(0, len(vm) - ins.wait['vmcnt'])]
            if 'lgkmcnt' in ins.wait: del lg[:max(0, len(lg) - ins.wait['lgkmcnt'])]
            continue
        regs = ins.rd | ins.wr
        def dep(o):
            oi, ot = o
            if k == 'need': return ot is not None and oi.kind in ('dma','dsw','vst') and ot == rtag(ins.tag, itn)
            if k == 'needrd': return ot is not None and oi.kind == 'dsr' and ot[0] == rtag(ins.tag, itn)[0]
            return bool(oi.wr & regs)
        for q, nd, cap in ((vm, need_vm, 63), (lg, need_lg, 15)):
            last = -1
            for i, o in enumerate(q):
                if dep(o): last = i
            if id(ins) in nd:
                n0 = nd[id(ins)]
                del q[:max(0, len(q) - n0)]
                last = -1
                for i, o in enumerate(q):
                    if dep(o): last = i
            if last >= 0:
                n = min(len(q) - 1 - last, cap)
                if q is lg and any(o[0].kind == 'smem' for o in q): n = 0
                nd[id(ins)] = min(nd.get(id(ins), 99), n)
                del q[:len(q) - n]
        tg = rtag(ins.tag, itn) if ins.tag and k in ('dma','dsw','dsr','vst') else None
        if k in ('vld','vst','dma'): vm.append((ins, tg))
        if k in ('dsr','dsw','smem'): lg.append((ins, tg))
    def w(items):
        out = []
        for it in items:
            if isinstance(it, Loop): it.body[:] = w(it.body); out.append(it); continue
            if isinstance(it, Ref): out.append(it); continue
            s = []
            if id(it) in need_vm: s.append(f'vmcnt({need_vm[id(it)]})')
            if id(it) in need_lg: s.append(f'lgkmcnt({need_lg[id(it)]})')
            if s: out.append(I('s_waitcnt ' + ' '.join(s)))
            out.append(it)
        return out
    prog.items[:] = w(prog.items)

def check(prog, name='', maxiter=10**9, verbose=True):
    probs = []
    vm = []
    lg = []
    pend = {}
    state = 0
    last_valu_wr = {}; last_trans_wr = {}; last_mfma_wr = {}; last_mfma_c = {}; last_salu_wr = {}; last_store_data = {}
    valu_sgpr_wr = {}
    reg_state = {}
    nbar = 0
    dma_done_bar = {}
    dma_out = {}
    rd_out = {}
    rd_done_bar = {}
    cur_ver = {}
    seq = 0
    def P(msg, ins): probs.append(f"{name}: {msg}: [{ins.text}] (seq {seq})")
    for ins, itn in prog.trace(maxiter):
        seq += 1
        k = ins.kind
        if k in ('label','dir','need','needrd','touch'): continue
        if k == 'wait':
            if 'vmcnt' in ins.wait:
                n = ins.wait['vmcnt']
                while len(vm) > n:
                    o, s = vm.pop(0)
                    for r in o.wr:
                        if pend.get(r, (None,None,None))[2] == s: del pend[r]
                    if o.kind == 'dma' and o.tag:
                        key = dma_out.pop(s);
                        dma_done_bar[key] = max(dma_done_bar.get(key, -1), nbar)
            if 'lgkmcnt' in ins.wait:
                n = ins.wait['lgkmcnt']
                if n > 0 and any(o.kind == 'smem' for o, s in lg): P('counted lgkmcnt with smem outstanding', ins)
                while len(lg) > n:
                    o, s = lg.pop(0)
                    for r in o.wr:
                        if pend.get(r, (None,None,None))[2] == s: del pend[r]
                    if s in rd_out:
                        rg = rd_out.pop(s); rd_done_bar[rg] = max(rd_done_bar.get(rg, -1), nbar)
                    if s in dma_out:
                        key = dma_out.pop(s); dma_done_bar[key] = max(dma_done_bar.get(key, -1), nbar)
            state += 1; continue
        if k == 'barrier': nbar += 1; state += 1; continue
        if k == 'nop': state += ins.passes; continue
        for r in ins.rd | ins.wr:
            if r in pend: P(f'reg {r} has pending load [{pend[r][1].text}]', ins)
        def dist(tbl, r): return state - tbl[r][0] - 1 if r in tbl else 1000
        isvalu = k in ('valu','trans')
        if k == 'mfma':
            for r in ins.rd:
                if dist(last_valu_wr, r) < 2: P(f'VALU->MFMA {r} needs 2', ins)
            for r in ins.abregs:
                if r in last_mfma_wr:
                    need = {4: 8, 8: 12}[last_mfma_wr[r][1].passes]
                    if dist(last_mfma_wr, r) < need: P(f'MFMA D->MFMA AB {r} needs {need}', ins)
            for r in ins.cregs:
                if r in last_mfma_wr:
                    p = last_mfma_wr[r][1]
                    if p.wr == ins.cregs and p.passes == ins.passes: pass
                    else:
                        need = {4: 6, 8: 10}[p.passes]
                        if dist(last_mfma_wr, r) < need: P(f'MFMA D->MFMA C partial {r} needs {need}', ins)
            for r in ins.wr - ins.cregs:
                if r in last_mfma_wr:
                    need = {4: 8, 8: 12}[last_mfma_wr[r][1].passes]
                    if dist(last_mfma_wr, r) < need: P(f'MFMA D->MFMA D WAW {r} needs {need}(conservative)', ins)
                if r in last_mfma_c:
                    need = {4: 3, 8: 7}[last_mfma_c[r][1].passes]
                    if dist(last_mfma_c, r) < need: P(f'MFMA C read -> MFMA write {r} needs {need}(conservative)', ins)
            if dist(last_valu_wr, 'exec') < 4: P('exec write -> mfma', ins)
        else:
            for r in ins.rd | ins.wr:
                if r in last_mfma_wr:
                    need = {4: 8, 8: 12}[last_mfma_wr[r][1].passes]
                    if dist(last_mfma_wr, r) < need: P(f'MFMA D->use {r} needs {need}', ins)
            if isvalu or k in ('vld','dsr'):
                for r in ins.wr:
                    if r in last_mfma_c and isvalu:
                        need = {4: 3, 8: 7}[last_mfma_c[r][1].passes]
                        if dist(last_mfma_c, r) < need: P(f'MFMA C read -> VALU write {r} needs {need}', ins)
                    if r in last_store_data and dist(last_store_data, r) < 2: P(f'store data WAR {r}', ins)
        if isvalu:
            if k == 'valu':
                for r in ins.rd:
                    if dist(last_trans_wr, r) < 1: P(f'trans->valu {r}', ins)
            if ins.op.startswith('v_permlane'):
                for r in ins.rd:
                    if dist(last_valu_wr, r) < 2: P(f'VALU->permlane {r} needs 2', ins)
            if ins.op.startswith('v_readfirstlane') or ins.op.startswith('v_readlane'):
                for r in ins.rd:
                    if r[0] == 'v' and r != 'vcc' and dist(last_valu_wr, r) < 1: P(f'VALU->readlane {r} needs 1', ins)
            if 'dpp' in ins.text or 'row_' in ins.text or 'quad_perm' in ins.text:
                for r in ins.rd:
                    if dist(last_valu_wr, r) < 2: P(f'VALU->DPP {r} needs 2', ins)
            for r in ins.rd:
                if (r[0] == 's' or r == 'vcc') and dist(valu_sgpr_wr, r) < 2: P(f'VALU sgpr wr->VALU rd {r} needs 2', ins)
        if k in ('vld','vst','dma'):
            for r in ins.rd:
                if r[0] == 's' and dist(valu_sgpr_wr, r) < 5: P(f'VALU sgpr->VMEM {r} needs 5', ins)
            if k == 'dma' and dist(last_salu_wr, 'm0') < 1: P('m0 write -> dma needs 1', ins)
        if k in ('salu','branch','smem'):
            for r in ins.rd:
                if dist(valu_sgpr_wr, r) < 1 and r != 'scc': P(f'VALU sgpr wr->SALU rd {r} (pad 1)', ins)
        if 'scc' in ins.rd:
            lw = last_salu_wr.get('scc', (0, None))[1]
            if ins.op == 's_subb_u32': pass
            elif ins.op == 's_addc_u32':
                lo_ = 's%d' % (int(sorted(ins.wr - {'scc'})[0][1:]) - 1)
                if lw is None or lw.op != 's_add_u32' or lo_ not in lw.wr: P('s_addc without its s_add', ins)
            elif lw is None or not lw.op.startswith('s_cmp'): P('scc read not fed by s_cmp (last writer %s)' % (lw.text if lw else None), ins)
        if ins.tag and k in ('dma','dsw'):
            rg, ver = rtag(ins.tag, itn)
            if cur_ver.get(rg) != ver:
                if any(v == rg for v in rd_out.values()): P(f'LDS WAR: reads of {rg} still outstanding', ins)
                elif rd_done_bar.get(rg, -1) >= nbar: P(f'LDS WAR: no barrier since last read of {rg} completed', ins)
                cur_ver[rg] = ver
            dma_out[seq] = (rg, ver)
        if ins.tag and k == 'dsr':
            rg, ver = rtag(ins.tag, itn)
            if cur_ver.get(rg) != ver: P(f'LDS read of {rg} ver {ver} but current {cur_ver.get(rg)}', ins)
            if any(v == (rg, ver) for v in dma_out.values()): P(f'LDS RAW: write to {rg} outstanding', ins)
            elif dma_done_bar.get((rg, ver), -1) >= nbar: P(f'LDS RAW: no barrier after write to {rg} done', ins)
            rd_out[seq] = rg
        if k in ('vld','vst','dma'):
            vm.append((ins, seq))
            if len(vm) > 63: P('vmcnt overflow', ins)
            for r in ins.wr: pend[r] = ('vm', ins, seq)
            if k == 'vst' and ins.passes:
                for r in ins.cregs: last_store_data[r] = (state, ins)
        if k in ('dsr','dsw','smem'):
            lg.append((ins, seq))
            for r in ins.wr: pend[r] = ('lg', ins, seq)
        if k == 'mfma':
            for r in ins.wr: last_mfma_wr[r] = (state, ins); last_valu_wr.pop(r, None)
            for r in ins.cregs: last_mfma_c[r] = (state, ins)
        if isvalu:
            for r in ins.wr:
                last_valu_wr[r] = (state, ins); last_mfma_wr.pop(r, None)
                if k == 'trans': last_trans_wr[r] = (state, ins)
                else: last_trans_wr.pop(r, None)
                if r[0] == 's' or r == 'vcc': valu_sgpr_wr[r] = (state, ins)
        if k == 'salu':
            for r in ins.wr: last_salu_wr[r] = (state, ins); valu_sgpr_wr.pop(r, None)
        if k in ('vld','dsr'):
            for r in ins.wr: last_mfma_wr.pop(r, None); last_valu_wr.pop(r, None)
        state += 1
    if verbose:
        seen = set()
        for p in probs:
            key = p.split('(seq')[0]
            if key in seen: continue
            seen.add(key); print('CHECK', p)
            if len(seen) > 40: break
    return probs
```

```python
import sys, struct, math
from dsl import *
from gen2 import (f2u, srd, kernel_head, kernel_desc, emit, interleave, spread, m0gap, fix_m0, chk_tail, Cfg)

NAME = 'recurrent_scan__sliding_block_cached__geglu_ffn__prompt'
WS_XN = 0
WS_O  = 5 << 20
WS_H  = 23 << 20
WS_G  = 36 << 20
WS_FL = 40 << 20
WS_TS = 48 << 20
WS_P  = 64 << 20
HS = 22528; NHS = 7
LDS_SCR = NHS*HS
LDS_TOT = 163840

class TS:
    def __init__(self, on): self.on = on; self.n = 0
    def text(self, grp):
        if not self.on & grp or self.n >= 14: return None
        s = 88 + self.n; self.n += 1
        clk = 's_memtime' if self.on & 8 else 's_memrealtime'
        return f's_waitcnt lgkmcnt(0)\n{clk} s[4:5]\ns_waitcnt lgkmcnt(0)\ns_mov_b32 s{s}, s4'
    def stamp(self, p, grp=1):
        t = self.text(grp)
        if t: p(t)
    def old(self, p):
        if not self.on: return
        s = 88 + self.n; self.n += 1;
        if s >= 102: return
        p(f's_waitcnt lgkmcnt(0)\ns_memrealtime s[4:5]\ns_waitcnt lgkmcnt(0)\ns_mov_b32 s{s}, s4')
    def dump(self, p, wsptr):
        if not self.on: return
        srd(p, 12, wsptr, WS_TS, 1 << 20)
        p('s_lshl_b32 s3, s2, 8\ns_lshl_b32 s4, s36, 6\ns_add_u32 s3, s3, s4\nv_mov_b32 v8, s3')
        for i in range(min(self.n, 14)):
            p(f'v_mov_b32 v4, s{88+i}\nbuffer_store_dword v4, v8, s[12:15], 0 offen offset:{4*i}\ns_nop 1')

def gen(cfg):
    OST = 131072 + cfg.opad; XST = 32768 + cfg.xpad; HST = 112*1024 + cfg.hpad
    p = Prog(); ts = TS(cfg.ts)
    SC = ' sc1'; LS = '' if cfg.loc else ' sc1'
    assert cfg.xmap == 'c' or not cfg.loc
    pX, pK, pV, pWQ, pWO, pWG, pWU, pWD, pOUT, pDBG, pWS = 64, 66, 68, 70, 72, 76, 78, 80, 82, 84, 86
    S_W, S_Q, S_XN, S_H, S_K, S_V, S_O = 8, 12, 16, 20, 24, 28, 32
    S_FL, S_DB = 56, 60
    sW, sRB, sCB, sKW, sKQ, sKA, sCNT = 36, 37, 38, 39, 40, 41, 42
    sMW, sMQ, sRD, sDL, sLEFT, sLEFA, sRW, sRQ = 43, 44, 45, 46, 47, 48, 49, 3
    sT = 50
    p('s_cmp_ge_u32 s2, 256\ns_cbranch_scc1 K_end')
    p('s_load_dwordx16 s[64:79], s[0:1], 0\ns_load_dwordx8 s[80:87], s[0:1], 64')
    p(f'v_lshrrev_b32 v2, 6, v0\nv_and_b32 v1, 63, v0\nv_readfirstlane_b32 s{sW}, v2')
    p(f's_and_b32 s{sT}, s2, 7\ns_lshr_b32 s{sT+1}, s2, 3')
    if cfg.xmap == 'c':
        p(f's_and_b32 s{sRB}, s{sT}, 1\ns_lshl_b32 s{sRB}, s{sRB}, 2\ns_and_b32 s{sT+2}, s{sT+1}, 3\ns_add_u32 s{sRB}, s{sRB}, s{sT+2}')
        p(f's_lshr_b32 s{sCB}, s{sT}, 1\ns_lshl_b32 s{sCB}, s{sCB}, 3\ns_lshr_b32 s{sT+2}, s{sT+1}, 2\ns_add_u32 s{sCB}, s{sCB}, s{sT+2}')
    else:
        p(f's_and_b32 s{sRB}, s{sT+1}, 7\ns_lshl_b32 s{sCB}, s{sT}, 2\ns_lshr_b32 s{sT+2}, s{sT+1}, 3\ns_add_u32 s{sCB}, s{sCB}, s{sT+2}')
    vAct, vDW, vDQ, vTr, vTq, vT = 4, 8, 15, 19, 20, 28
    vA, RA = 32, 8
    vB, RB = 64, 4
    def acc(t, b):
        if t < 16: c = (t*4+b)*4; return f'a[{c}:{c+3}]'
        c = 160 + ((t-16)*4+b)*4; return f'v[{c}:{c+3}]'
    def accr(t, b, r):
        if t < 16: return f'a{(t*4+b)*4+r}'
        return f'v{160+((t-16)*4+b)*4+r}'
    vLX, vLO, vLS = 128, 129, 130
    t = 132
    p(f's_lshl_b32 s{sT}, s{sRB}, 8\ns_lshl_b32 s{sT+1}, s{sCB}, 3\ns_add_u32 s{sT}, s{sT}, s{sT+1}\ns_lshl_b32 s{sT}, s{sT}, 11\ns_lshl_b32 s{sT+1}, s{sW}, 9\ns_add_u32 s{sT}, s{sT}, s{sT+1}')
    p(f'v_and_b32 v{t}, 7, v1\nv_bfe_u32 v{t+1}, v1, 3, 1\nv_lshrrev_b32 v{t+2}, 4, v1')
    p(f'v_lshlrev_b32 v{t+3}, 11, v{t}\nv_lshlrev_b32 v{t+4}, 8, v{t+1}\nv_lshlrev_b32 v{t+5}, 4, v{t+2}\nv_add3_u32 v{t+3}, v{t+3}, v{t+4}, v{t+5}\nv_add_u32 v{vLX}, s{sT}, v{t+3}')
    p(f's_lshl_b32 s{sT}, s{sRB}, 4\ns_lshr_b32 s{sT+1}, s{sCB}, 1\ns_add_u32 s{sT}, s{sT}, s{sT+1}\ns_mul_i32 s{sT}, s{sT}, {XST}\ns_lshl_b32 s{sT+1}, s{sW}, 13\ns_add_u32 s{sT}, s{sT}, s{sT+1}')
    p(f's_and_b32 s{sT+1}, s{sCB}, 1\ns_lshl_b32 s{sT+1}, s{sT+1}, 7\ns_add_u32 s{sT}, s{sT}, s{sT+1}')
    p(f'v_lshlrev_b32 v{t+3}, 4, v{t}\nv_lshlrev_b32 v{t+4}, 12, v{t+1}\nv_lshlrev_b32 v{t+5}, 8, v{t+2}\nv_add3_u32 v{t+4}, v{t+3}, v{t+4}, v{t+5}\nv_add_u32 v{vLO}, s{sT}, v{t+4}')
    p(f'v_add_u32 v{vLS}, {LDS_SCR}, v{t+3}\nv_lshl_add_u32 v{vLS+1}, v2, 2, v{vLS}')
    p(f's_and_b32 s{sT}, s{sW}, 1\ns_mul_i32 s{sT}, s{sT}, {32*7168}\ns_mul_i32 s{sT+1}, s{sCB}, 224\ns_add_u32 s{sT}, s{sT}, s{sT+1}')
    p(f's_mov_b32 s{sT+1}, 4682\ns_mov_b32 s{sT+2}, 7168')
    for n in range(448): assert (n*4682) >> 16 == n // 14
    t = 32
    for pc in range(7):
        p(f'v_add_u32 v{t}, {64*pc}, v1')
        p(f'v_mul_u32_u24 v{t+1}, s{sT+1}, v{t}\nv_lshrrev_b32 v{t+1}, 16, v{t+1}')
        p(f'v_mul_u32_u24 v{t+2}, 14, v{t+1}\nv_sub_u32 v{t+2}, v{t}, v{t+2}')
        p(f'v_and_b32 v{t+3}, 0x13, v{t+1}\nv_and_b32 v{t+4}, 4, v{t+1}\nv_lshl_or_b32 v{t+3}, v{t+4}, 1, v{t+3}')
        p(f'v_bfe_u32 v{t+4}, v{t+1}, 3, 1\nv_lshl_or_b32 v{t+3}, v{t+4}, 2, v{t+3}')
        p(f'v_mul_u32_u24 v{t+3}, s{sT+2}, v{t+3}\nv_lshlrev_b32 v{t+2}, 4, v{t+2}\nv_add3_u32 v{vDW+pc}, v{t+3}, v{t+2}, s{sT}')
        if pc % 4: p(f'v_subrev_u32 v{vDW+pc}, {1024*(pc%4)}, v{vDW+pc}')
    p(f's_lshl_b32 s{sT}, s{sW}, 17\ns_lshl_b32 s{sT+1}, s{sCB}, 8\ns_add_u32 s{sT}, s{sT}, s{sT+1}')
    p(f'v_lshrrev_b32 v{t}, 4, v1\nv_and_b32 v{t+1}, 15, v1\nv_lshlrev_b32 v{t+2}, 1, v{t}\nv_xor_b32 v{t+1}, v{t+1}, v{t+2}')
    p(f'v_lshlrev_b32 v{t}, 13, v{t}\nv_add_u32 v{t}, s{sT}, v{t}')
    for j in range(4):
        p(f'v_xor_b32 v{t+2}, {8*(j>>1)}, v{t+1}\nv_lshl_add_u32 v{t+2}, v{t+2}, 4, v{t}')
        p(f'v_add_u32 v{vDQ+j}, {j*(4*8192-1024)}, v{t+2}')
    p(f's_and_b32 s{sT}, s{sW}, 1\ns_lshr_b32 s{sT+1}, s{sW}, 1')
    p(f's_mul_i32 s{sMW}, s{sT}, {HS}\ns_mul_i32 s{sRW}, s{sT+1}, 7168')
    p(f's_mul_i32 s{sMQ}, s{sT+1}, {HS}\ns_lshl_b32 s{sRQ}, s{sT}, 12\ns_add_u32 s{sRQ}, s{sRQ}, 14336')
    KW, KQ, KA, NT = 64*7168, 64*8192, 2048, 16
    if cfg.stag:
        p(f's_lshl_b32 s{sT}, s{sRB}, 1\ns_mul_i32 s{sKW}, s{sT}, {KW}\ns_mul_i32 s{sKQ}, s{sT}, {KQ}\ns_mul_i32 s{sKA}, s{sT}, {KA}')
    else:
        p(f's_mov_b32 s{sKW}, 0\ns_mov_b32 s{sKQ}, 0\ns_mov_b32 s{sKA}, 0')
    p(f's_mov_b32 s{sLEFT}, {NT}\ns_mov_b32 s{sLEFA}, {NT}\ns_mov_b32 s{sRD}, 0')
    def c_role(sGM, sKH, sRC, sCC, tmp):
        p(f's_bfe_u32 s{sGM}, s2, 0x10002\ns_bfe_u32 s{sKH}, s2, 0x10001\ns_and_b32 s{sRC}, s2, 1\ns_lshl_b32 s{sRC}, s{sRC}, 2\ns_bfe_u32 s{tmp}, s2, 0x20003\ns_add_u32 s{sRC}, s{sRC}, s{tmp}\ns_lshr_b32 s{sCC}, s2, 5')
    sNO = 6
    p('s_waitcnt lgkmcnt(0)')
    ts.stamp(p)
    S_X0 = S_H
    srd(p, S_X0, pX, 0, 4 << 20)
    vLD = 144
    for i in range(4): p(f'buffer_load_dwordx4 v[{vLD+4*i}:{vLD+4*i+3}], v{vLX}, s[{S_X0}:{S_X0+3}], 0 offen offset:{64*i}')
    p(f's_cmp_ge_u32 s{sW}, 2\ns_cselect_b32 s{S_W}, s{pWU}, s{pWG}\ns_cselect_b32 s{S_W+1}, s{pWU+1}, s{pWG+1}')
    p(f's_mov_b32 s{S_W+2}, {1024*7168:#x}\ns_mov_b32 s{S_W+3}, 0x20000')
    srd(p, S_Q, pWQ, 0, 8 << 20)
    srd(p, S_FL, pWS, WS_FL, 1280*128)
    srd(p, S_XN, pWS, WS_XN, 5 << 20)
    srd(p, S_DB, pDBG, 0, 256)
    if cfg.tlb:
        p(f'v_lshlrev_b32 v140, 17, v1')
        if cfg.tlb == 2: p(f's_lshl_b32 s{sT+1}, s{sW}, 15\nv_add_u32 v140, s{sT+1}, v140')
        p(f'buffer_load_dword v141, v140, s[{S_W}:{S_W+3}], 0 offen\nbuffer_load_dword v142, v140, s[{S_Q}:{S_Q+3}], 0 offen')
        if cfg.tlb == 2:
            p(f's_cmp_ge_u32 s{sW}, 2\ns_cselect_b32 s{S_K}, s{pWG}, s{pWU}\ns_cselect_b32 s{S_K+1}, s{pWG+1}, s{pWU+1}\ns_mov_b32 s{S_K+2}, {1024*7168:#x}\ns_mov_b32 s{S_K+3}, 0x20000')
            p(f'buffer_load_dword v143, v140, s[{S_K}:{S_K+3}], 0 offen')
    def adv_w():
        return [f's_add_u32 s{sKW}, s{sKW}, {KW}', f's_cmp_eq_u32 s{sKW}, {NT*KW}', f's_cselect_b32 s{sKW}, 0, s{sKW}',
                f's_add_u32 s{sMW}, s{sMW}, {2*HS}', f's_cmp_ge_u32 s{sMW}, {NHS*HS}', f's_cselect_b32 s{sT}, {NHS*HS}, 0', f's_sub_u32 s{sMW}, s{sMW}, s{sT}']
    def adv_q():
        return [f's_add_u32 s{sKQ}, s{sKQ}, {KQ}', f's_and_b32 s{sKQ}, s{sKQ}, {NT*KQ-1}',
                f's_add_u32 s{sMQ}, s{sMQ}, {2*HS}', f's_cmp_ge_u32 s{sMQ}, {NHS*HS}', f's_cselect_b32 s{sT}, {NHS*HS}, 0', f's_sub_u32 s{sMQ}, s{sMQ}, s{sT}',
                f's_sub_u32 s{sLEFT}, s{sLEFT}, 1', f's_cmp_eq_u32 s{sLEFT}, 0',
                f's_cselect_b32 s{S_W+2}, 0, s{S_W+2}', f's_cselect_b32 s{S_Q+2}, 0, s{S_Q+2}']
    def adv_a():
        return [f's_add_u32 s{sKA}, s{sKA}, {KA}', f's_and_b32 s{sKA}, s{sKA}, {NT*KA-1}',
                f's_sub_u32 s{sLEFA}, s{sLEFA}, 1', f's_cmp_eq_u32 s{sLEFA}, 0', f's_cselect_b32 s{S_XN+2}, 0, s{S_XN+2}']
    def adv_rd():
        return [f's_add_u32 s{sRD}, s{sRD}, {HS}', f's_cmp_eq_u32 s{sRD}, {NHS*HS}', f's_mov_b32 s{sDL}, {HS}',
                f's_cselect_b32 s{sDL}, {-(NHS-1)*HS}, s{sDL}', f's_cselect_b32 s{sRD}, 0, s{sRD}']
    def dma(pc, tile, stride):
        tag = ('W', NHS, 2*tile + 1, 2*stride)
        if pc < 7: return (f'buffer_load_dwordx4 v{vDW+pc}, s[{S_W}:{S_W+3}], s{sKW} offen offset:{1024*(pc%4)} lds', tag)
        return (f'buffer_load_dwordx4 v{vDQ+pc-7}, s[{S_Q}:{S_Q+3}], s{sKQ} offen offset:{1024*(pc-7)} lds', tag)
    def m0set(pc):
        if pc == 0: return [f's_add_u32 m0, s{sMW}, s{sRW}']
        if pc == 4: return [f's_add_u32 s{sT}, s{sMW}, s{sRW}', f's_add_u32 m0, s{sT}, 4096']
        if pc == 7: return [f's_add_u32 m0, s{sMQ}, s{sRQ}']
        return []
    def dma_tile(tile):
        for d in range(11):
            for x in m0set(d): p(x)
            if m0set(d): p('s_nop 0')
            emit(p, dma(d, tile, 0))
            if d == 6:
                for x in adv_w(): p(x)
            if d == 10:
                for x in adv_q(): p(x)
    p(f's_lshl_b32 s{sT}, s2, 2\ns_add_u32 s{sT}, s{sT}, s{sW}\ns_cmp_eq_u32 s{sT}, 1\ns_cbranch_scc0 L_no_nonce')
    p.cond(True)
    p(f's_memrealtime s[{sNO}:{sNO+1}]\nv_mov_b32 v34, 0\ns_waitcnt lgkmcnt(0)\ns_and_b32 s{sNO}, s{sNO}, 0xffffffe0\ns_or_b32 s{sNO}, s{sNO}, 1\nv_mov_b32 v32, s{sNO}\nv_mov_b32 v33, s{sNO+1}')
    p(f'buffer_store_dwordx2 v[32:33], v34, s[{S_DB}:{S_DB+3}], 0 offen sc1')
    p.cond(False)
    p('L_no_nonce:')
    if cfg.late0 == 0: dma_tile(0)
    if not cfg.late1: dma_tile(1)
    if cfg.cpf:
        p(f's_getpc_b64 s[{S_K}:{S_K+1}]\nL_pc:\ns_mov_b32 s{S_K+2}, K_last-L_pc\ns_mov_b32 s{S_K+3}, 0x20000')
        p(f's_lshr_b32 s{sT}, s2, 3\ns_lshl_b32 s{sT}, s{sT}, 12\nv_lshlrev_b32 v140, 4, v0')
        p(f'buffer_load_dwordx4 v[140:143], v140, s[{S_K}:{S_K+3}], s{sT} offen')
    p(f's_lshl_b32 s{sT}, s{sRB}, 4\ns_lshl_b32 s{sT+1}, s{sW}, 2\ns_add_u32 s{sT}, s{sT}, s{sT+1}\ns_mul_i32 s{sT}, s{sT}, {XST}')
    p(f'v_lshlrev_b32 v{vT}, 4, v1\nv_add_u32 v{vAct}, s{sT}, v{vT}')
    for b in range(1, 4): p(f'v_add_u32 v{vAct+b}, {b*XST:#x}, v{vAct}')
    t = 32
    p(f'v_lshrrev_b32 v{t}, 5, v1\nv_lshlrev_b32 v{t}, 4, v{t}\nv_bfe_u32 v{t+1}, v1, 4, 1\nv_lshlrev_b32 v{t+1}, 2, v{t+1}\nv_bfe_u32 v{t+2}, v1, 2, 2')
    p(f'v_add3_u32 v{t}, v{t}, v{t+1}, v{t+2}\nv_mul_u32_u24 v{t}, 224, v{t}\nv_and_b32 v{t+3}, 3, v1\nv_lshlrev_b32 v{t+3}, 3, v{t+3}\nv_add_u32 v{vTr}, v{t}, v{t+3}')
    p(f'v_or_b32 v{t+1}, v{t+1}, v{t+2}')
    p(f'v_lshrrev_b32 v{t}, 4, v1\nv_lshlrev_b32 v{t}, 3, v{t}\nv_add_u32 v{t}, v{t}, v{t+2}\nv_lshlrev_b32 v{t}, 8, v{t}')
    p(f'v_add_u32 v{t}, 14336, v{t}\nv_add_u32 v{t}, v{t}, v{t+3}')
    for tt in range(8):
        p(f'v_xor_b32 v{t+2}, {tt}, v{t+1}\nv_lshl_add_u32 v{vTq+tt}, v{t+2}, 5, v{t}')
    for i in range(256): p(f'v_accvgpr_write_b32 a{i}, 0')
    if cfg.dbg & 4: p('s_waitcnt vmcnt(%d)' % (0 if cfg.late0 else 11 if cfg.late1 else 22)); ts.stamp(p)
    X = 64; sM = sT + 4
    p(f's_mov_b32 s{sM}, 0xffff0000')
    for i in range(16): p(f'v_lshlrev_b32 v{X+2*i}, 16, v{vLD+i}\nv_and_b32 v{X+2*i+1}, s{sM}, v{vLD+i}')
    if cfg.late0 == 1: dma_tile(0)
    def red(v, tt, off):
        p(f's_nop 1\nv_add_f32_dpp v{v}, v{v}, v{v} row_ror:8 row_mask:0xf bank_mask:0xf')
        p(f'v_mov_b32 v{tt}, v{v}\ns_nop 1\nv_permlane16_swap_b32 v{v}, v{tt}\ns_nop 1\nv_add_f32 v{v}, v{v}, v{tt}')
        p(f'v_mov_b32 v{tt}, v{v}\ns_nop 1\nv_permlane32_swap_b32 v{v}, v{tt}\ns_nop 1\nv_add_f32 v{v}, v{v}, v{tt}')
        p(f'ds_write_b32 v{vLS+1}, v{v} offset:{off}\ns_waitcnt lgkmcnt(0)\ns_barrier')
        p(f'ds_read_b128 v[40:43], v{vLS} offset:{off}')
        p(f'v_add_f32 v40, v40, v41\nv_add_f32 v42, v42, v43\nv_add_f32 v{v}, v40, v42\nv_mul_f32 v{v}, {f2u(1/1024):#x}, v{v}')
    for a in range(0, 4, 2): p(f'v_pk_add_f32 v[{32+a}:{33+a}], v[{X+a}:{X+a+1}], v[{X+4+a}:{X+5+a}]')
    for i in range(8, 32, 2): p(f'v_pk_add_f32 v[{32+i%4}:{33+i%4}], v[{32+i%4}:{33+i%4}], v[{X+i}:{X+i+1}]')
    p('v_pk_add_f32 v[32:33], v[32:33], v[34:35]\nv_add_f32 v32, v32, v33')
    red(32, 33, 0)
    for i in range(32): p(f'v_sub_f32 v{X+32+i}, v{X+i}, v32')
    for a in range(0, 4, 2): p(f'v_pk_mul_f32 v[{36+a}:{37+a}], v[{X+32+a}:{X+33+a}], v[{X+32+a}:{X+33+a}]')
    for i in range(4, 32, 2): p(f'v_pk_fma_f32 v[{36+i%4}:{37+i%4}], v[{X+32+i}:{X+33+i}], v[{X+32+i}:{X+33+i}], v[{36+i%4}:{37+i%4}]')
    p('v_pk_add_f32 v[36:37], v[36:37], v[38:39]\nv_add_f32 v36, v36, v37')
    p(f'v_mov_b32 v44, 0\nbuffer_load_dwordx2 v[2:3], v44, s[{S_DB}:{S_DB+3}], 0 offen sc1')
    red(36, 37, 128)
    def rnd(v): p(f'v_cvt_pk_bf16_f32 v{v}, v{v}, v{v}\nv_lshlrev_b32 v{v}, 16, v{v}')
    rnd(32); rnd(36)
    p(f'v_add_f32 v36, {f2u(1e-5):#x}, v36'); rnd(36)
    p('v_sqrt_f32 v36, v36\ns_nop 0'); rnd(36)
    p('v_rcp_f32 v36, v36\nv_mov_b32 v33, v32\nv_mov_b32 v37, v36')
    for i in range(16):
        a, b = X+2*i, X+2*i+1
        p(f'v_pk_add_f32 v[{a}:{b}], v[{a}:{b}], v[32:33] neg_lo:[0,1] neg_hi:[0,1]\nv_cvt_pk_bf16_f32 v{a}, v{a}, v{b}')
        p(f'v_and_b32 v{b}, s{sM}, v{a}\nv_lshlrev_b32 v{a}, 16, v{a}')
        p(f'v_pk_mul_f32 v[{a}:{b}], v[{a}:{b}], v[36:37]\nv_cvt_pk_bf16_f32 v{vLD+i}, v{a}, v{b}')
        if i % 4 == 3:
            r = vLD + i - 3
            p(f'buffer_store_dwordx4 v[{r}:{r+3}], v{vLO}, s[{S_XN}:{S_XN+3}], 0 offen offset:{1024*(i//4)} sc1')
    if cfg.dbg & 4: ts.stamp(p)
    if cfg.late0 == 2:
        p(f's_cmp_eq_u32 s{sW}, 1\ns_cbranch_scc1 L_t0_w1')
        p(f's_cmp_eq_u32 s{sW}, 0\ns_cbranch_scc0 L_t0_own')
        p.cond(True)
        p(f's_add_u32 s{sT+1}, s{sKW}, {32*7168}\ns_add_u32 s{sT+2}, s{sKQ}, {16*8192}')
        for d in range(11):
            if d in (0, 4): p(f's_mov_b32 m0, {HS + 1024*d}\ns_nop 0')
            if d == 7: p(f's_mov_b32 m0, {14336 + 4096}\ns_nop 0')
            t_ = dma(d, 0, 0)[0].replace(f's{sKW} offen', f's{sT+1} offen').replace(f's{sKQ} offen', f's{sT+2} offen')
            p(t_)
        p.cond(False)
        p('L_t0_own:')
        dma_tile(0)
        for i in range(160, 208): p(f'v_mov_b32 v{i}, 0')
        p(f's_cmp_eq_u32 s{sW}, 0\ns_cbranch_scc0 L_t0_w23')
        p.cond(True)
        p('s_waitcnt vmcnt(22)\ns_branch L_t0_done')
        p('L_t0_w1:')
        for x in adv_w() + adv_q(): p(x)
        for i in range(160, 208): p(f'v_mov_b32 v{i}, 0')
        p('s_waitcnt vmcnt(0)\ns_branch L_t0_done')
        p.cond(False)
        p('L_t0_w23:\ns_waitcnt vmcnt(11)\nL_t0_done:')
    else:
        for i in range(160, 208): p(f'v_mov_b32 v{i}, 0')
        p('s_waitcnt vmcnt(0)')
    sXC, sREM = 75, 74
    p(f's_getreg_b32 s{sXC}, hwreg(HW_REG_XCC_ID, 0, 4)\ns_lshl_b32 s{sXC}, s{sXC}, 1')
    if cfg.fremote: p(f's_lshr_b32 s{sXC}, s2, 4\ns_and_b32 s{sXC}, s{sXC}, 0x1e')
    p(f's_and_b32 s{sT}, s{sCB}, 24\ns_lshl_b32 s{sT+1}, s{sRB}, 5\ns_add_u32 s{sT}, s{sT}, s{sT+1}\ns_lshl_b32 s{sT}, s{sT}, 7')
    p(f'v_and_b32 v45, 7, v1\nv_lshl_add_u32 v45, v45, 7, s{sT}')
    vHF = 27
    p(f's_lshl_b32 s{sT}, s{sRB}, 12\ns_lshl_b32 s{sT+1}, s{sCB}, 7\ns_add_u32 s{sT+1}, s{sT}, s{sT+1}\nv_mov_b32 v32, s{sT+1}')
    p(f'v_and_b32 v34, 31, v1\nv_lshl_add_u32 v34, v34, 7, s{sT}')
    p('s_barrier')
    ts.stamp(p)
    def poll(lbl, vaddr, done, mask=False):
        p(f'{lbl}:')
        p(f'buffer_load_dwordx2 v[36:37], v{vaddr}, s[{S_FL}:{S_FL+3}], 0 offen sc1\ns_waitcnt vmcnt(0)')
        if mask: p('v_and_b32 v36, 0xffffffe1, v36')
        p(f'v_cmp_ne_u64 vcc, s[{sNO}:{sNO+1}], v[36:37]\ns_nop 1\ns_cbranch_vccz {done}\ns_sleep {cfg.slp}\ns_branch {lbl}')
    p(f's_cmp_eq_u32 s{sW}, 1\ns_cbranch_scc0 L_xn_got')
    p.cond(True)
    p('L_no_retry:')
    p(f'v_readfirstlane_b32 s{sNO}, v2\nv_readfirstlane_b32 s{sNO+1}, v3\ns_nop 0\ns_cmp_lg_u32 s{sNO}, 0\ns_cbranch_scc1 L_no_ok')
    p(f'buffer_load_dwordx2 v[2:3], v44, s[{S_DB}:{S_DB+3}], 0 offen sc1\ns_waitcnt vmcnt(0)\ns_branch L_no_retry')
    p('L_no_ok:')
    p(f'v_or_b32 v38, s{sXC}, v2\nv_mov_b32 v39, v3\nbuffer_store_dwordx2 v[38:39], v32, s[{S_FL}:{S_FL+3}], 0 offen sc1')
    poll('L_xn_poll', 34, 'L_xn_got', True)
    p.cond(False)
    p('L_xn_got:\ns_barrier')
    ts.stamp(p)
    p(f'buffer_load_dwordx2 v[2:3], v44, s[{S_DB}:{S_DB+3}], 0 offen sc1')
    p(f'buffer_load_dword v28, v45, s[{S_FL}:{S_FL+3}], 0 offen sc1')
    def act(sub, b):
        r = vB + 16*(sub % RB) + 4*b
        return f'buffer_load_dwordx4 v[{r}:{r+3}], v{vAct+b}, s[{S_XN}:{S_XN+3}], s{sKA} offen offset:{1024*(sub % 2)}{SC}'
    NG = 22
    def vm_sched(step, g2):
        s, t = divmod(g2, NG); sub = 2*step + s
        d = None; a = None
        if cfg.d0 <= g2 < cfg.d0 + 11*cfg.dstr and (g2 - cfg.d0) % cfg.dstr == 0: d = (g2 - cfg.d0)//cfg.dstr
        if cfg.a0 <= t < cfg.a0 + 4*cfg.astr and (t - cfg.a0) % cfg.astr == 0: a = (sub + cfg.ad, (t - cfg.a0)//cfg.astr)
        return d, a
    for sub in range(cfg.ad):
        for b in range(4): p(act(sub, b))
        if sub % 2 == 1:
            for x in adv_a(): p(x)
    if cfg.late1: dma_tile(1)
    srd(p, S_H, pWS, WS_H, 15 << 20)
    srd(p, S_K, pK, 0, 2 << 20)
    srd(p, S_V, pV, 0, 2 << 20)
    srd(p, S_O, pWS, WS_O, 17 << 20)
    for i in range(208, 256): p(f'v_mov_b32 v{i}, 0')
    if cfg.late0 == 2: p.need(('W', NHS, 1, 0)); p('s_barrier')
    P = cfg.P
    def trr(G, tile0, stride):
        step, g2 = divmod(G, 2*NG); s, t = divmod(g2, NG)
        r = vA + 4*(G % RA)
        tag = ('W', NHS, 2*(tile0 + step) + 1, 2*stride) if s == 1 else None
        if t < 14: off = (t // 7)*7168 + (t % 7)*32; a = vTr; hh = 8*224
        else: off = 0; a = vTq + t - 14; hh = 1024
        return [(f'ds_read_b64_tr_b16 v[{r}:{r+1}], v{a} offset:{off}', tag),
                (f'ds_read_b64_tr_b16 v[{r+2}:{r+3}], v{a} offset:{off + hh}', tag)]
    for G in range(P):
        for f in trr(G, 0, 0): emit(p, f)
    UN = 2
    p(f's_mov_b32 s{sDL}, 0\ns_mov_b32 s{sCNT}, {NT//UN}')
    p(f's_waitcnt vmcnt({4*(cfg.ad-1) + (11 if cfg.late1 else 0)})')
    def code_srd(q, lbl):
        return [f's_getpc_b64 s[{q}:{q+1}]\n{lbl}:\ns_sub_u32 s{q}, s{q}, {lbl}-L_pc\ns_subb_u32 s{q+1}, s{q+1}, 0', f's_mov_b32 s{q+2}, K_last-L_pc', f's_mov_b32 s{q+3}, 0x20000']
    def code_pf(q, m0v):
        return [f's_add_u32 m0, s{sCP}, {m0v}', m0gap, f'buffer_load_dwordx4 v0, s[{q}:{q+3}], 0 offen lds']
    sCP = 84
    if cfg.cpf2:
        for x in code_srd(S_DB, 'L_pc2'): p(x)
        p(f's_lshr_b32 s{sT}, s2, 3\ns_lshl_b32 s{sT}, s{sT}, 12\nv_lshlrev_b32 v0, 4, v0\nv_add_u32 v0, s{sT}, v0\ns_lshl_b32 s{sCP}, s{sW}, 10')
    p(f'v_readfirstlane_b32 s{sNO}, v2\nv_readfirstlane_b32 s{sNO+1}, v3')
    p(f'v_and_b32 v28, 0x1e, v28\nv_cmp_ne_u32 vcc, s{sXC}, v28\ns_nop 1\ns_cmp_lg_u64 vcc, 0\ns_cselect_b32 s{sREM}, 1, 0')
    ts.stamp(p)
    p.loop_begin('G_loop', NT//UN)
    mf = []; hi = {}; lo = {}
    def H(i, x): hi.setdefault(i, []).append(x)
    def L(i, x): lo.setdefault(i, []).append(x)
    NGB = 2*NG*UN
    for G in range(NGB):
        step, g2 = divmod(G, 2*NG); s, t = divmod(g2, NG)
        sub = 2*step + s
        for b in range(4):
            ra = vA + 4*(G % RA); rb = vB + 16*(sub % RB) + 4*b
            mf.append(f'v_mfma_f32_16x16x32_bf16 {acc(t,b)}, v[{ra}:{ra+3}], v[{rb}:{rb+3}], {acc(t,b)}')
        i0 = 4*G; Gn = G + P; tn = Gn % NG
        if Gn % (2*NG) == 0:
            stepn = Gn // (2*NG)
            H(i0-1, lambda p, stepn=stepn: (p.need(('W', NHS, 2*stepn + 1, 2*UN)), p('s_barrier')))
        if tn == 0: H(i0-2, f'v_add_u32 v{vTr}, s{sDL}, v{vTr}')
        r0, r1 = trr(Gn % NGB, (Gn // NGB)*UN, UN)
        H(i0, r0); H(i0+1, r1)
        if 1 <= tn <= 8: L(i0, f'v_add_u32 v{vTq+tn-1}, s{sDL}, v{vTq+tn-1}')
        if tn == 9:
            for x in adv_rd(): L(i0, x)
        pc, a = vm_sched(step, g2)
        if a is not None:
            L(i0, act(*a))
            if a[1] == 3 and a[0] % 2 == 1:
                for x in adv_a(): L(i0, x)
        if pc is not None:
            for x in m0set(pc): L(i0, x)
            if m0set(pc): L(i0, m0gap)
            L(i0, dma(pc, step + 2, UN))
            if pc == 6:
                for x in adv_w(): L(i0, x)
            if pc == 10:
                for x in adv_q(): L(i0, x)
    if cfg.cpf2:
        for x in code_pf(S_DB, LDS_SCR + 1024): L(4*(cfg.d0 + 10*cfg.dstr) + 1, x)
    H(len(mf)-3, f's_sub_u32 s{sCNT}, s{sCNT}, 1'); H(len(mf)-2, f's_cmp_lg_u32 s{sCNT}, 0')
    H(len(mf)-1, 's_cbranch_scc1 G_loop')
    fill = spread(hi, lo, len(mf), cfg.cap, 16, cost=lambda i: 1 if i % 4 == 3 else 0)
    fix_m0(fill, len(mf)); chk_tail(fill, len(mf))
    interleave(p, mf, fill)
    p.loop_end()
    p('s_waitcnt vmcnt(0) lgkmcnt(0)\ns_barrier')
    ts.stamp(p, 5)

    vDK, vDV, vK, vV = 8, 12, 13, 21
    sKV, sMK, sAD, sPF = 39, 40, 43, 44
    t = 128
    p(f'v_lshrrev_b32 v{t}, 4, v1\nv_and_b32 v{t+1}, 15, v1')
    p(f's_lshl_b32 s{sMK}, s{sW}, 12')
    p(f'v_lshlrev_b32 v{t+2}, 8, v{t}\nv_add_u32 v{t+2}, s{sMK}, v{t+2}')
    for j in range(4):
        p(f'v_add_u32 v{t+3}, {4*j}, v{t}\nv_xor_b32 v{t+3}, v{t+3}, v{t+1}\nv_lshl_add_u32 v{vDK+j}, v{t+3}, 4, v{t+2}')
    p(f'v_lshlrev_b32 v{t+3}, 2, v{t}\nv_xor_b32 v{t+3}, v{t+3}, v{t+1}\nv_lshl_add_u32 v{vDV}, v{t+3}, 4, v{t+2}')
    p(f's_lshr_b32 s{sKV}, s{sCB}, 3\ns_lshl_b32 s{sKV}, s{sKV}, 19\ns_add_u32 s{sKV}, s{sKV}, {1536*256}')
    def kdma(j, soff, tag): return (f'buffer_load_dwordx4 v{vDK+j}, s[{S_K}:{S_K+3}], s{soff} offen offset:{1024*j} lds', tag)
    def vdma(j, soff, tag): return (f'buffer_load_dwordx4 v{vDV}, s[{S_V}:{S_V+3}], s{soff} offen offset:{1024*j} lds', tag)
    kvq = []
    for (kind, tl) in (('K', 0), ('K', 1), ('V', 0), ('K', 2), ('V', 1)):
        g = [f's_add_u32 s{sT+5}, s{sKV}, {tl*16384}', f's_add_u32 m0, s{sMK}, {tl*16384 + (65536 if kind == "V" else 0)}', 's_nop 0']
        for j in range(4):
            kvq.append(g + [(kdma if kind == 'K' else vdma)(j, sT+5, (kind, 4, tl, 0))]); g = []
    k1 = -2*math.sqrt(2/math.pi)*math.log2(math.e); k2 = k1*0.044715
    vC = 28
    p(f'v_mov_b32 v{vC}, {f2u(k1):#x}\nv_mov_b32 v{vC+1}, {f2u(k1):#x}\nv_mov_b32 v{vC+2}, {f2u(k2):#x}\nv_mov_b32 v{vC+3}, {f2u(k2):#x}')
    p(f's_lshl_b32 s{sT+2}, s{sRB}, 4\ns_lshl_b32 s{sT+3}, s{sW}, 2\ns_add_u32 s{sT+2}, s{sT+2}, s{sT+3}\ns_mul_i32 s{sT+2}, s{sT+2}, {HST}')
    p(f's_mul_i32 s{sT+3}, s{sCB}, 7\ns_add_u32 s{sT+3}, s{sT+3}, 1\ns_lshr_b32 s{sT+3}, s{sT+3}, 1\ns_lshl_b32 s{sT+3}, s{sT+3}, 10')
    p(f's_add_u32 s{sT+2}, s{sT+2}, s{sT+3}')
    p(f'v_lshlrev_b32 v{t}, 4, v1\nv_add_u32 v{vAct}, s{sT+2}, v{t}')
    for b in range(1, 4): p(f'v_add_u32 v{vAct+b}, {b*HST:#x}, v{vAct}')
    p(f's_and_b32 s{sT+3}, s{sCB}, 1\ns_cmp_eq_u32 s{sT+3}, 0\ns_mov_b32 s{sT+4}, 3072\ns_cselect_b32 s{sT+4}, s{sT+4}, -1016')
    vHs = 132
    for b in range(4): p(f'v_add_u32 v{vHs+b}, s{sT+4}, v{vAct+b}')
    def gelu_tiles(tiles):
        n = len(tiles)
        Xs = [32 + 12*i for i in range(n)]
        pk = lambda r: f'v[{r}:{r+1}]'
        for (t, b, d), X in zip(tiles, Xs):
            for r in range(4): p(f'v_accvgpr_read_b32 v{X+r}, {accr(t,b,r)}')
        for X in Xs:
            for r in (0, 2): p(f'v_pk_mul_f32 {pk(X+8+r)}, {pk(X+r)}, {pk(X+r)}')
        for X in Xs:
            for r in (0, 2): p(f'v_pk_fma_f32 {pk(X+8+r)}, {pk(X+8+r)}, {pk(vC+2)}, {pk(vC)}')
        for X in Xs:
            for r in (0, 2): p(f'v_pk_mul_f32 {pk(X+8+r)}, {pk(X+8+r)}, {pk(X+r)}')
        for (t, b, d), X in zip(tiles, Xs):
            for r in range(4): p(f'v_exp_f32 v{X+8+r}, v{X+8+r}')
            for r in range(4): p(f'v_accvgpr_read_b32 v{X+4+r}, {accr(t+7,b,r)}')
        for X in Xs:
            for r in (0, 2): p(f'v_pk_add_f32 {pk(X+8+r)}, {pk(X+8+r)}, 1.0 op_sel_hi:[1,0]')
        for X in Xs:
            for r in range(4): p(f'v_rcp_f32 v{X+8+r}, v{X+8+r}')
            for r in (0, 2): p(f'v_pk_mul_f32 {pk(X+4+r)}, {pk(X+4+r)}, {pk(X+r)}')
        for X in Xs:
            for r in (0, 2): p(f'v_pk_mul_f32 {pk(X+4+r)}, {pk(X+4+r)}, {pk(X+8+r)}')
        for (t, b, d), X in zip(tiles, Xs):
            p(f'v_cvt_pk_bf16_f32 v{d}, v{X+4}, v{X+5}\nv_cvt_pk_bf16_f32 v{d+1}, v{X+6}, v{X+7}')
    for par in range(2):
        if par == 0: p('s_cbranch_scc0 B_epi_odd')
        else: p.cond(True); p('B_epi_odd:')
        n = 0; kq = list(kvq)
        for b in range(4):
            for pr in range(3):
                d = 64 + 4*(n % 8); n += 1
                for _ in range(2):
                    if kq:
                        for x in kq.pop(0): emit(p, x)
                gelu_tiles([(2*pr + par, b, d), (2*pr + 1 + par, b, d + 2)])
                p(f'buffer_store_dwordx4 v[{d}:{d+3}], v{vAct+b}, s[{S_H}:{S_H+3}], 0 offen offset:{1024*pr}{LS}', ('Hst', 1, 0, 0))
        for b in range(0, 4, 2):
            d = 64 + 4*(n % 8); n += 1
            gelu_tiles([(6 if par == 0 else 0, b, d), (6 if par == 0 else 0, b+1, d+2)])
            p(f'buffer_store_dwordx2 v[{d}:{d+1}], v{vHs+b}, s[{S_H}:{S_H+3}], 0 offen{LS}', ('Hst', 1, 0, 0))
            p(f'buffer_store_dwordx2 v[{d+2}:{d+3}], v{vHs+b+1}, s[{S_H}:{S_H+3}], 0 offen{LS}', ('Hst', 1, 0, 0))
        if par == 0: p('s_branch B_epi_done')
    p.cond(False)
    p('B_epi_done:')
    ts.stamp(p, 5)
    vQ = 64
    qs = math.log2(math.e)/math.sqrt(128)
    def qconv(qt, s):
        d = vQ + (qt*8+s)*4
        for half in range(2):
            b = 2*qt + half; x = 32 + 4*half
            src = accr(14+s, b, 0)
            if src[0] == 'a':
                for r in range(4): p(f'v_accvgpr_read_b32 v{x+r}, {accr(14+s, b, r)}')
                s0 = x
            else: s0 = int(src[1:])
            for r in (0, 2): p(f'v_pk_mul_f32 v[{x+r}:{x+r+1}], v[{s0+r}:{s0+r+1}], v[{vC}:{vC+1}]')
            p(f'v_cvt_pk_bf16_f32 v{d+2*half}, v{x}, v{x+1}\nv_cvt_pk_bf16_f32 v{d+2*half+1}, v{x+2}, v{x+3}')
    def qswap(qt, s):
        d = vQ + (qt*8+s)*4
        p(f'v_permlane16_swap_b32 v{d}, v{d+2}\nv_permlane16_swap_b32 v{d+1}, v{d+3}')
    t = 32
    p(f'v_and_b32 v{t}, 31, v1\nv_lshrrev_b32 v{t+1}, 5, v1\nv_and_b32 v{t+2}, 15, v1\nv_xor_b32 v{t+1}, v{t+1}, v{t+2}\nv_lshlrev_b32 v{t}, 8, v{t}')
    for s in range(8):
        p(f'v_xor_b32 v{t+2}, {2*s}, v{t+1}\nv_lshl_add_u32 v{vK+s}, v{t+2}, 4, v{t}')
    p(f'v_mov_b32 v{vC}, {f2u(qs):#x}\nv_mov_b32 v{vC+1}, {f2u(qs):#x}')
    vS = [128, 160]; vP = [192, 208]; vN = 224; vL = 28
    aF = 192
    def Sreg(n, qt): return vS[n % 2] + 16*qt
    def Preg(n, qt, ks): return vP[n % 2] + 8*qt + 4*ks
    def kread(n, s, tag):
        r = aF + 4*s
        return [(f'ds_read_b128 a[{r}:{r+3}], v{vK+s} offset:{(n % 8)*8192}', ('K', 4, n//2, 0))]
    def vread(n, f, tag, base=None, off0=None):
        ks, dt = divmod(f, 4); r = aF + 32 + 4*f
        off = (32*(n % 8) + 16*ks)*256 if off0 is None else off0 + 16*ks*256
        b = vV if base is None else base
        return [(f'ds_read_b64_tr_b16 a[{r}:{r+1}], v{b+dt} offset:{off}', tag),
                (f'ds_read_b64_tr_b16 a[{r+2}:{r+3}], v{b+dt} offset:{off+2048}', tag)]
    def qk(n, s, qt, c0):
        S = Sreg(n, qt); c = f'v[{S}:{S+15}]' if s else c0(qt)
        return f'v_mfma_f32_32x32x16_bf16 v[{S}:{S+15}], a[{aF+4*s}:{aF+4*s+3}], v[{vQ+(qt*8+s)*4}:{vQ+(qt*8+s)*4+3}], {c}'
    def pv(n, f, qt, first=False):
        ks, dt = divmod(f, 4); o = (dt*2+qt)*16; P_ = Preg(n, qt, ks)
        c = '0' if first and ks == 0 else f'a[{o}:{o+15}]'
        return f'v_mfma_f32_32x32x16_bf16 a[{o}:{o+15}], a[{aF+32+4*f}:{aF+32+4*f+3}], v[{P_}:{P_+3}], {c}'
    negm = lambda qt: f'v[{vN+16*qt}:{vN+16*qt+15}]'
    zero = lambda qt: '0'
    def softmax_ops(n):
        sl = [[] for _ in range(33)]
        for e in range(32):
            qt, i = divmod(e, 16); S = Sreg(n, qt); Pr = Preg(n, qt, i>>3)+((i&7)>>1)
            sl[e].insert(0, f'v_exp_f32 v{S+i}, v{S+i}')
            if cfg.sum == 'add': sl[e+1].append(f'v_add_f32 v{vL+2*qt+(i&1)}, v{vL+2*qt+(i&1)}, v{S+i}')
            if i & 1:
                if e == 31 and cfg.sum != 'add': sl[e+1].append('s_nop 0')
                sl[e+1].append(f'v_cvt_pk_bf16_f32 v{Pr}, v{S+i-1}, v{S+i}')
                k = min(32, e+2)
                if cfg.sum == 'pk': sl[k].append(f'v_pk_add_f32 v[{vL+2*qt}:{vL+2*qt+1}], v[{vL+2*qt}:{vL+2*qt+1}], v[{S+i-1}:{S+i}]')
                if cfg.sum == 'dot': sl[k].append(f'v_dot2_f32_bf16 v{vL+2*qt+((i>>1)&1)}, v{Pr}, v39, v{vL+2*qt+((i>>1)&1)}')
        return sl
    if cfg.sum == 'dot': p('v_mov_b32 v39, 0x3f803f80')
    p.need(('K', 4, 0, 0)); p('s_barrier')
    for s in range(8): emit(p, kread(0, s, None)[0])
    ts.stamp(p, 5)
    qconv(0, 0); qconv(1, 0)
    for s in range(8):
        if s < 7: qconv(0, s+1)
        qswap(0, s); qswap(1, s)
        if s < 7: qconv(1, s+1)
        else: p('s_nop 1')
        for qt in range(2): p(qk(0, s, qt, zero))
        emit(p, kread(1, s, None)[0])
    t = 36
    p(f'v_lshrrev_b32 v{t}, 5, v1\nv_lshlrev_b32 v{t}, 2, v{t}\nv_bfe_u32 v{t+1}, v1, 2, 2\nv_add_u32 v{t}, v{t}, v{t+1}\nv_lshlrev_b32 v{t}, 8, v{t}')
    p(f'v_bfe_u32 v{t+2}, v1, 4, 1\nv_lshlrev_b32 v{t+2}, 5, v{t+2}\nv_and_b32 v{t+3}, 3, v1\nv_lshlrev_b32 v{t+3}, 3, v{t+3}\nv_add3_u32 v{t}, v{t}, v{t+2}, v{t+3}')
    p(f'v_add_u32 v{t}, 0x10000, v{t}')
    for dt in range(4):
        p(f'v_xor_b32 v{t+2}, {dt}, v{t+1}\nv_lshl_add_u32 v{vV+dt}, v{t+2}, 6, v{t}')
    for i in range(4): p(f'v_mov_b32 v{vL+i}, 0')
    def rowmax(n, first):
        for qt in range(2):
            S = Sreg(n, qt); m = 32 + 2*qt
            if first: p(f'v_max3_f32 v{m}, v{S}, v{S+1}, v{S+2}')
            else: p(f'v_max3_f32 v{m}, v{m}, v{S+1}, v{S+2}\nv_max_f32 v{m}, v{m}, v{S}')
            for i in range(3, 15, 2): p(f'v_max3_f32 v{m}, v{m}, v{S+i}, v{S+i+1}')
            p(f'v_max_f32 v{m}, v{m}, v{S+15}')
    def set_negm():
        p('v_mov_b32 v33, v32\nv_mov_b32 v35, v34\ns_nop 0\nv_permlane32_swap_b32 v32, v33\nv_permlane32_swap_b32 v34, v35\ns_nop 0')
        for qt in range(2):
            m = 32 + 2*qt
            p(f'v_max_f32 v{m}, v{m}, v{m+1}\nv_sub_f32 v{vN+16*qt}, 0, v{m}\nv_mov_b32 v{vN+16*qt+1}, v{vN+16*qt}')
            for i in range(2, 16, 2): p(f'v_pk_mul_f32 v[{vN+16*qt+i}:{vN+16*qt+i+1}], v[{vN+16*qt}:{vN+16*qt+1}], 1.0 op_sel_hi:[1,0]')
    ts.stamp(p, 4)
    rowmax(0, True); set_negm()
    for qt in range(2):
        S = Sreg(0, qt)
        for i in range(0, 16, 2): p(f'v_pk_add_f32 v[{S+i}:{S+i+1}], v[{S+i}:{S+i+1}], v[{vN+16*qt}:{vN+16*qt+1}]')
    ts.stamp(p, 4)
    S_WD, S_WO, S_AH, S_AO, S_X, S_OUT, S_P = 12, 8, 16, 20, 24, 28, 60
    sJ, sRC, sCC = 70, 71, 76
    kWD, kWO, kAH, kAO, cMW, cTG = 77, 75, 78, 42, 79, 49
    dD, dO, aH, aO, cTr, cA, cC = 40, 8, 48, 4, 52, 64, 128
    vFH = 60
    SLOT = 32768
    k_h = lambda pc: 4*pc
    k_o = lambda pc: 4*((pc & 1) | ((pc & 2) << 1) | ((pc & 4) >> 1))
    def x_dma_addr(dst, kmap):
        t = 36
        p(f's_lshl_b32 s{sT+2}, s{sW}, 16\ns_lshl_b32 s{sT+3}, s{sCC}, 8\ns_add_u32 s{sT+2}, s{sT+2}, s{sT+3}')
        p(f'v_lshrrev_b32 v{t}, 4, v1\nv_and_b32 v{t+1}, 15, v1\nv_lshlrev_b32 v{t+2}, 1, v{t}\nv_xor_b32 v{t+1}, v{t+1}, v{t+2}')
        p(f'v_lshlrev_b32 v{t}, 11, v{t}\nv_add_u32 v{t}, s{sT+2}, v{t}')
        for pc in range(8):
            p(f'v_xor_b32 v{t+2}, {8*(pc & 1)}, v{t+1}\nv_lshl_add_u32 v{t+2}, v{t+2}, 4, v{t}\nv_add_u32 v{dst+pc}, {(kmap(pc) << 11) - 1024*(pc % 4)}, v{t+2}')
    NS = 15; kind = lambda sg: 'd' if sg < 7 else 's'
    def cdma(pc, sg):
        D_, S_, K_ = (dD, S_WD, kWD) if kind(sg) == 'd' else (dO, S_WO, kWO)
        g = []
        if pc % 4 == 0: g += [f's_add_u32 m0, s{cMW}, {(sg % 4)*SLOT + 1024*pc}', m0gap]
        g.append((f'buffer_load_dwordx4 v{D_+pc}, s[{S_}:{S_+3}], s{K_} offen offset:{1024*(pc%4)} lds', ('C', 4, sg, 0)))
        if pc == 7: g.append(f's_add_u32 s{K_}, s{K_}, {128*2048}')
        return g
    def cact(sub, b):
        A_, S_, K_ = (aH, S_AH, kAH) if kind(sub // 4) == 'd' else (aO, S_AO, kAO)
        r = 128 + 16*(sub % 8) + 4*b
        g = [f'buffer_load_dwordx4 a[{r}:{r+3}], v{A_+b}, s[{S_}:{S_+3}], s{K_} offen offset:{1024*(sub % 4)}{SC}']
        if b == 3 and sub % 4 == 3: g.append(f's_add_u32 s{K_}, s{K_}, 4096')
        return g
    def flagchk(lbl, vaddr, vd, acq=False):
        l = [f'v_cmp_ne_u64 vcc, s[{sNO}:{sNO+1}], v[{vd}:{vd+1}]', 's_nop 0', 's_nop 0', f's_cbranch_vccz {lbl}_ok',
             f'{lbl}_spin: ;cond', f'buffer_load_dwordx2 v[{vd}:{vd+1}], v{vaddr}, s[{S_FL}:{S_FL+3}], 0 offen sc1 ;cond', 's_waitcnt vmcnt(0) ;cond',
             f'v_cmp_ne_u64 vcc, s[{sNO}:{sNO+1}], v[{vd}:{vd+1}] ;cond', 's_nop 1 ;cond', f's_cbranch_vccnz {lbl}_spin ;cond', f'{lbl}_ok:']
        if acq and cfg.loc:
            l += [f's_cmp_eq_u32 s{sREM}, 0', f's_cbranch_scc1 {lbl}_na', 'buffer_inv sc1 ;cond', 's_waitcnt vmcnt(0) ;cond', f'{lbl}_na:']
        return l
    def collect(fn):
        nonlocal p
        w = Prog(); q = p; p = w; fn(); p = q
        out = []
        for it in w.items:
            if it.op == 's_addc_u32': out[-1] = (out[-1][0] + '\n' + it.text, None)
            else: out.append((it.text, it.tag))
        return out
    PF = cfg.PF; vPF = 25; sDM = 55; sPF = 44
    pairs = []; sm = []; start = {}
    for n in range(17):
        st = len(pairs); start[n] = st
        if n <= 14:
            for s_ in range(8): pairs.append((qk(n+1, s_, 0, negm), qk(n+1, s_, 1, negm), kread(n+1, s_, None) if n else []))
        if n >= 1:
            for f in range(8): pairs.append((pv(n-1, f, 0, n == 1), pv(n-1, f, 1, n == 1), vread(n-1, f, ('V', 4, (n-1)//2, 0))))
        if n <= 15: sm.append((st, len(pairs), softmax_ops(n)))
    mf = []; hi = {}; lo = {}
    for a_, b_, _ in pairs: mf += [a_, b_]
    n_ = len(mf)
    bargap = {}
    for j in range(8):
        g = 2*(start[2*j+1] - PF) - 1; bargap[j] = g
        def bar_(p, j=j):
            if j < 7: p.need(('K', 4, j+1, 0))
            p.need(('V', 4, j, 0))
            if j == cfg.hbar: p.need(('Hst', 1, 0, 0))
            p('s_barrier')
        H(g, bar_)
    for i in range(len(pairs) - PF):
        for k, r in enumerate(pairs[i + PF][2]): H(2*i + k, r)
    for (st, en, sl) in sm:
        ng = 2*(en - st)
        for e, ops in enumerate(sl):
            for o in ops: H(2*st + min(ng - 1, e*ng//32), o)
    def setup1():
        p(f's_lshl_b32 s{sT}, s2, 2\ns_add_u32 s{sT}, s{sT}, s{sW}\ns_lshl_b32 s{sT+1}, s{sT}, 13\ns_mul_i32 s{sT}, s{sT}, 7168')
        p(f'v_lshlrev_b32 v{vPF}, 4, v1\nv_add_u32 v{vPF+1}, s{sT}, v{vPF}\nv_add_u32 v{vPF}, s{sT+1}, v{vPF}')
        srd(p, S_WO, pWO, 0, 8 << 20); srd(p, S_WD, pWD, 0, 7 << 20)
        p(f's_lshl_b32 s{sDM}, s{sMK}, 1\ns_add_u32 s{sDM}, s{sDM}, 0x20000\ns_mov_b32 s{sPF}, 0')
        p(f's_lshl_b32 s{sT}, s{sRB}, 12\ns_lshl_b32 s{sT+1}, s{sCB}, 7\ns_add_u32 s{sT}, s{sT}, s{sT+1}\ns_add_u32 s{sT}, s{sT}, {256*128}\nv_mov_b32 v{vHF}, s{sT}')
    def setup2():
        p(f's_bfe_u32 s{sJ}, s2, 0x20001\ns_and_b32 s{sRC}, s2, 1\ns_lshl_b32 s{sRC}, s{sRC}, 2\ns_bfe_u32 s{sT}, s2, 0x20003\ns_add_u32 s{sRC}, s{sRC}, s{sT}\ns_lshr_b32 s{sCC}, s2, 5')
        p(f's_lshl_b32 s{sT}, s{sRC}, 5\ns_lshl_b32 s{sT+1}, s{sJ}, 3\ns_add_u32 s{sT}, s{sT}, s{sT+1}\ns_add_u32 s{sT}, s{sT}, 256\ns_lshl_b32 s{sT}, s{sT}, 7')
        p(f'v_and_b32 v{vFH}, 7, v1\nv_lshl_add_u32 v{vFH}, v{vFH}, 7, s{sT}')
        x_dma_addr(dD, k_h)
        p(f's_mul_i32 s{kWD}, s{sJ}, {896*2048}\ns_lshl_b32 s{cMW}, s{sW}, 13')
        srd(p, S_AH, pWS, WS_H, 15 << 20)
        p(f's_lshl_b32 s{sT}, s{sRC}, 4\ns_lshl_b32 s{sT+2}, s{sW}, 2\ns_add_u32 s{sT}, s{sT}, s{sT+2}\ns_mul_i32 s{sT+2}, s{sT}, {HST}\ns_mul_i32 s{kAH}, s{sJ}, {28*1024}')
        p(f'v_lshlrev_b32 v36, 4, v1\nv_add_u32 v{aH}, s{sT+2}, v36')
        for b in range(1, 4): p(f'v_add_u32 v{aH+b}, {HST}, v{aH+b-1}')
        t = 36
        p(f's_lshl_b32 s{sT+3}, s{sJ}, 1')
        p(f'v_lshrrev_b32 v{t}, 2, v1\nv_and_b32 v{t+1}, 7, v{t}\nv_xor_b32 v{t+1}, s{sT+3}, v{t+1}\nv_lshlrev_b32 v{t}, 8, v{t}\nv_and_b32 v{t+2}, 3, v1\nv_lshl_add_u32 v{t}, v{t+2}, 3, v{t}')
        for tt in range(8):
            p(f'v_xor_b32 v{t+2}, {tt}, v{t+1}\nv_lshl_add_u32 v{cTr+tt}, v{t+2}, 5, v{t}')
        p(f's_mov_b32 s{cTG}, 0x10000')
    def flag_store(lbl, va, rel=False):
        t_ = f's_cmp_eq_u32 s{sW}, 1\ns_cbranch_scc0 {lbl}\n'
        if rel and cfg.loc:
            t_ += f's_cmp_eq_u32 s{sREM}, 0 ;cond\ns_cbranch_scc1 {lbl}_f ;cond\nbuffer_wbl2 sc1 ;cond\ns_waitcnt vmcnt(0) ;cond\n{lbl}_f: ;cond\n'
        return t_ + f'buffer_store_dwordx2 v[2:3], v{va}, s[{S_FL}:{S_FL+3}], 0 offen sc1 ;cond\n{lbl}:'
    s2q = collect(setup2); s2per = -(-len(s2q) // 4)
    for x in collect(setup1): L(16, x)
    npf = 0
    for j in range(7):
        g = bargap[j] + 1
        if j + 3 <= 7:
            L(g, f's_add_u32 s{sT+5}, s{sKV}, {(j+3)*16384}') if False else None
            L(g, f's_add_u32 s{sT+4}, s{sKV}, {(j+3)*16384}'); L(g, f's_add_u32 m0, s{sMK}, {((j+3) % 4)*16384}'); L(g, m0gap)
            for k in range(4): L(g + 3*k, kdma(k, sT+4, ('K', 4, j+3, 0)))
        if j + 2 <= 7:
            L(g + 12, f's_add_u32 s{sT+4}, s{sKV}, {(j+2)*16384}'); L(g + 12, f's_add_u32 m0, s{sMK}, {0x10000 + ((j+2) % 4)*16384}'); L(g + 12, m0gap)
            for k in range(4): L(g + 12 + 3*k, vdma(k, sT+4, ('V', 4, j+2, 0)))
        if j < 5:
            L(g + 24, f's_mov_b32 m0, s{sDM}'); L(g + 24, m0gap)
            for k in range(3):
                wo_ = npf % 2 == 0
                L(g + 24 + 4*k, f'buffer_load_dwordx4 v{vPF if wo_ else vPF+1}, s[{S_WO if wo_ else S_WD}:{(S_WO if wo_ else S_WD)+3}], s{sPF} offen lds')
                if not wo_: L(g + 24 + 4*k, f's_add_u32 s{sPF}, s{sPF}, 1024')
                npf += 1
        if cfg.cpf2 and j in (1, 4):
            for x in code_pf(S_DB, LDS_SCR + 1024): L(g + 35, x)
        if j < 4:
            for x in s2q[j*s2per:(j+1)*s2per]: L(g + 36, x)
        if j == cfg.hbar: H(g, flag_store('A_hf', vHF, True))
        if j == 4: L(g + 40, f'buffer_load_dwordx2 v[62:63], v{vFH}, s[{S_FL}:{S_FL+3}], 0 offen sc1')
        if j == 5:
            for pc in range(8):
                for x in cdma(pc, 0): L(g + 24 + 3*pc, x)
            L(g + 50, '\n'.join(flagchk('L_h', vFH, 62, True)))
        if j == 6:
            for sub in range(4):
                for b in range(4):
                    for x in cact(sub, b): L(g + 3*(4*sub + b), x)
    for pc in range(8):
        for x in cdma(pc, 1): L(bargap[7] + 1 + 3*pc, x)
    def cyc(x):
        t_ = x[0] if isinstance(x, tuple) else x
        if callable(t_): return 8
        o = t_.split()[0]
        if o in TRANS: return 8
        if o.startswith('v_cvt_pk'): return 5
        if o.startswith('buffer_'): return cfg.vmc
        return 4*len(t_.split('\n')) if '\n' in t_ and ';cond' not in t_ else 4
    fill = {}; q_ = []
    for i in range(-1, n_):
        cur = list(hi.get(i, [])); used = sum(cyc(x) for x in cur) + (4 if i % 2 == 1 else 0)
        for x in lo.get(i, []): q_.append((i, x))
        while q_ and (used + cyc(q_[0][1]) <= cfg.acap or i == n_ - 1 or i - q_[0][0] >= cfg.amax):
            x = q_.pop(0)[1]; cur.append(x); used += cyc(x)
        fill[i] = cur
    fix_m0(fill, n_)
    for n in (1, 3, 7, 11, 15):
        t_ = ts.text(4)
        if t_: fill[2*start[n] - 1].append(t_)
    interleave(p, mf, fill)
    ts.stamp(p, 5)
    for qt in range(2):
        l = vL + 2*qt
        p(f'v_add_f32 v{l}, v{l}, v{l+1}\nv_mov_b32 v{l+1}, v{l}\ns_nop 1\nv_permlane32_swap_b32 v{l}, v{l+1}\ns_nop 1\nv_add_f32 v{l}, v{l}, v{l+1}')
    p(f'v_max_f32 v33, v{vL}, v{vL+2}\nv_add_f32 v33, v33, v{vL}\nv_add_f32 v33, v33, v{vL+2}')
    p(f's_mov_b32 s{sT}, {f2u(2.0**cfg.thr):#x}\nv_cmp_nlt_f32 vcc, v33, s{sT}\ns_nop 1\ns_cbranch_vccnz A_slow')
    p('A_done:')
    ad = cfg.cad; P = cfg.cP
    for sub in range(4, ad):
        for b in range(4):
            for x in cact(sub, b): emit(p, x)
    p(f'v_rcp_f32 v{vL}, v{vL}\nv_rcp_f32 v{vL+2}, v{vL+2}')
    p.need(('C', 4, 0, 0)); p('s_barrier')
    for G in range(P):
        r = cA + 4*G
        p(f'ds_read_b64_tr_b16 v[{r}:{r+1}], v{cTr+G} offset:0', ('C', 4, 0, 0)); p(f'ds_read_b64_tr_b16 v[{r+2}:{r+3}], v{cTr+G} offset:4096', ('C', 4, 0, 0))
    vO, vX, vFO, vFD, vFS, vFQ = 16, 96, 20, 21, 22, 23
    sPS, sPR = 32, 33
    def o_epi(packed):
        t = 32
        p(f'v_mov_b32 v{vL+1}, v{vL}\nv_mov_b32 v{vL+3}, v{vL+2}')
        p(f's_lshl_b32 s{sT}, s{sRB}, 4\ns_lshl_b32 s{sT+1}, s{sW}, 2\ns_add_u32 s{sT}, s{sT}, s{sT+1}\ns_mul_i32 s{sT}, s{sT}, {OST}\ns_lshl_b32 s{sT+1}, s{sCB}, 12\ns_add_u32 s{sT}, s{sT}, s{sT+1}')
        p(f'v_bfe_u32 v{t}, v1, 4, 1\nv_mul_u32_u24 v{t}, {OST}, v{t}\nv_lshrrev_b32 v{t+1}, 5, v1\nv_lshlrev_b32 v{t+1}, 8, v{t+1}\nv_and_b32 v{t+2}, 15, v1\nv_lshlrev_b32 v{t+2}, 4, v{t+2}')
        p(f'v_add3_u32 v{t}, v{t}, v{t+1}, v{t+2}\nv_add_u32 v34, s{sT}, v{t}\nv_add_u32 v35, {2*OST}, v34')
        n = 0
        for dt in range(4):
            for qt in range(2):
                o = (dt*2+qt)*16
                for half in range(2):
                    x = 96 + 8*(n % 2); d = 112 + 4*(n % 4); n += 1
                    for i in range(8): p(f'v_accvgpr_read_b32 v{x+i}, a{o+8*half+i}')
                    if packed:
                        for i in range(0, 8, 2): p(f'v_pk_mul_f32 v[{x+i}:{x+i+1}], v[{x+i}:{x+i+1}], v[{vL+2*qt}:{vL+2*qt+1}]')
                    else:
                        for i in range(8): p(f'v_mul_f32{cfg.e64} v{x+i}, v{x+i}, v{vL+2*qt}')
                        for i in range(cfg.xs): p(f's_mov_b32 s{sT+5}, {cfg.xl}')
                    for i in range(0, 8, 2): p(f'v_cvt_pk_bf16_f32 v{d+i//2}, v{x+i}, v{x+i+1}')
                    p(f'buffer_store_dwordx4 v[{d}:{d+3}], v{34+qt}, s[{S_O}:{S_O+3}], 0 offen offset:{dt*1024 + half*512}{LS}', ('Ost', 1, 0, 0))
    def s_setup():
        x_dma_addr(dO, k_o)
        srd(p, S_AO, pWS, WS_O, 17 << 20)
        p(f's_lshl_b32 s{kWO}, s{sJ}, 21\ns_lshl_b32 s{kAO}, s{sJ}, 15')
        p(f's_lshl_b32 s{sT}, s{sRC}, 4\ns_lshl_b32 s{sT+2}, s{sW}, 2\ns_add_u32 s{sT}, s{sT}, s{sT+2}\ns_mul_i32 s{sT+2}, s{sT}, {OST}')
        p(f'v_lshlrev_b32 v24, 4, v1\nv_add_u32 v{aO}, s{sT+2}, v24')
        for b in range(1, 4): p(f'v_add_u32 v{aO+b}, {OST}, v{aO+b-1}')
        p(f'v_add_u32 v{vFO}, {256*128}, v{vHF}\nv_add_u32 v{vFH}, {256*128}, v{vFH}')
        srd(p, S_X, pX, 0, 4 << 20); srd(p, S_OUT, pOUT, 0, 4 << 20); srd(p, S_P, pWS, WS_P, 24 << 20)
        p(f's_lshl_b32 s{sT}, s{sRC}, 3\ns_add_u32 s{sT}, s{sT}, s{sCC}\ns_lshl_b32 s{sT}, s{sT}, 2\ns_add_u32 s{sT+1}, s{sT}, s{sJ}')
        p(f's_add_u32 s{sT+2}, s{sT+1}, 768\ns_lshl_b32 s{sT+2}, s{sT+2}, 7\nv_mov_b32 v{vFD}, s{sT+2}\nv_add_u32 v{vFS}, {256*128}, v{vFD}')
        p(f's_add_u32 s{sT+2}, s{sT}, 768\ns_lshl_b32 s{sT+2}, s{sT+2}, 7\nv_and_b32 v{vFQ}, 3, v1\nv_lshl_add_u32 v{vFQ}, v{vFQ}, 7, s{sT+2}')
        p(f's_lshl_b32 s{sT+3}, s{sW}, 12\ns_mul_i32 s{sPR}, s{sT+1}, {3*16384}\ns_add_u32 s{sPR}, s{sPR}, s{sT+3}')
        for q_ in (1, 2, 3):
            p(f's_xor_b32 s{sT+2}, s{sT+1}, {q_}\ns_mul_i32 s{sT+2}, s{sT+2}, {3*16384}\ns_add_u32 s{sT+2}, s{sT+2}, s{sT+3}\ns_add_u32 s{sT+2}, s{sT+2}, {(q_-1)*16384}\nv_add_u32 v{24+q_}, s{sT+2}, v24')
        p(f's_lshl_b32 s{sT+2}, s{sRC}, 8\ns_lshl_b32 s{sT+3}, s{sW}, 6\ns_add_u32 s{sT+2}, s{sT+2}, s{sT+3}\ns_lshl_b32 s{sT+2}, s{sT+2}, 11')
        p(f's_lshl_b32 s{sT+3}, s{sCC}, 8\ns_add_u32 s{sT+2}, s{sT+2}, s{sT+3}\ns_lshl_b32 s{sT+3}, s{sJ}, 6\ns_add_u32 s{sT+2}, s{sT+2}, s{sT+3}')
        t = 36
        p(f'v_and_b32 v{t}, 15, v1\nv_lshlrev_b32 v{t}, 11, v{t}\nv_add_u32 v{t}, s{sT+2}, v{t}\nv_lshrrev_b32 v{t+1}, 4, v1')
        p(f'v_and_b32 v{vO}, 1, v{t+1}\nv_lshlrev_b32 v{vO}, 5, v{vO}\nv_lshrrev_b32 v{vO+1}, 1, v{t+1}\nv_lshlrev_b32 v{vO+1}, 4, v{vO+1}\nv_add3_u32 v{vO}, v{vO}, v{vO+1}, v{t}')
        for b in range(1, 4): p(f'v_add_u32 v{vO+b}, 0x8000, v{vO+b-1}')
    def send(gemm, quads=range(12)):
        for i in quads:
            c = 32 + 8*i; d = 112 + 4*(i % 4)
            if gemm == 0:
                for r in range(4): p(f'v_cvt_pk_bf16_f32 v{d+r}, v{cC+c+2*r}, v{cC+c+2*r+1}')
            else:
                x = 160 + 8*(i % 4)
                for r in range(8): p(f'v_accvgpr_read_b32 v{x+r}, a{c+r}')
                for r in range(4): p(f'v_cvt_pk_bf16_f32 v{d+r}, v{x+2*r}, v{x+2*r+1}')
            so = '0' if gemm == 0 else f's{sT+4}'
            p(f'buffer_store_dwordx4 v[{d}:{d+3}], v{25 + i//4}, s[{S_P}:{S_P+3}], {so} offen offset:{1024*(i%4)} sc1', ('Pst', 1, gemm, 0))
    mf = []; hi = {}; lo = {}
    ST = 128; TM = cfg.tm
    order = [(sg, s, t) for sg in range(NS - TM) for s in range(4) for t in range(8)]
    order += [(sg, s, t) for t in (2, 3, 4, 5, 6, 7, 0, 1) for sg in range(NS - TM, NS) for s in range(4)]
    assert TM in (0, 1, 2) and (TM < 2 or ad == 7)
    def ctr(G):
        sg, s, t = order[G]
        r = cA + 4*(G % 8); off = (sg % 2)*SLOT + s*8192
        a = cTr + t
        if TM == 2 and sg == NS - 1: a = 32 + t % 2
        return [(f'ds_read_b64_tr_b16 v[{r}:{r+1}], v{a} offset:{off}', ('C', 4, sg, 0)),
                (f'ds_read_b64_tr_b16 v[{r+2}:{r+3}], v{a} offset:{off + 4096}', ('C', 4, sg, 0))]
    obar = math.ceil(cfg.oe) + 1; dbar = 7 + math.ceil(cfg.de) + 1
    def bar(p, sgn):
        p.need(('C', 4, sgn, 0))
        if TM == 2 and sgn == NS - 2: p.need(('C', 4, NS - 1, 0))
        if sgn == obar: p.need(('Ost', 1, 0, 0))
        if sgn == dbar: p.need(('Pst', 1, 0, 0))
        p('s_barrier')
    for G in range(32*NS):
        sg, s, t = order[G]; sub = 4*sg + s
        for b in range(4):
            ra = cA + 4*(G % 8); rb = 128 + 16*(sub % 8) + 4*b; c = (t*4+b)*4
            acc_ = f'v[{cC+c}:{cC+c+3}]' if kind(sg) == 'd' else f'a[{c}:{c+3}]'
            mf.append(f'v_mfma_f32_16x16x32_bf16 {acc_}, v[{ra}:{ra+3}], a[{rb}:{rb+3}], {"0" if sub in (0, 28) else acc_}')
        i0 = 4*G; Gn = G + P
        if Gn < 32*NS:
            if Gn % 32 == 0 and not (TM == 2 and Gn // 32 == NS - 1):
                H(i0-1, lambda p, sgn=Gn//32: bar(p, sgn))
            r0, r1 = ctr(Gn)
            if TM == 2 and order[Gn][0] == NS - 2 and order[Gn][1] == 2:
                H(i0+2, f'v_xor_b32 v{32 + order[Gn][2] % 2}, s{cTG}, v{cTr + order[Gn][2]}')
            H(i0, r0); H(i0+1, r1)
            if Gn % 64 >= 56 and not (TM == 2 and Gn // 32 == NS - 2): H(i0+2, f'v_xor_b32 v{cTr + Gn % 8}, s{cTG}, v{cTr + Gn % 8}')
        sgc, g = divmod(G, 32); subc = 4*sgc + g // 8
        dstr = 2 if (TM == 2 and sgc + 2 == NS - 1) else cfg.cdstr
        if g % dstr == 1 and g // dstr < 8 and sgc + 2 < NS:
            for x in cdma(g // dstr, sgc + 2): L(i0, x)
    last_act = 0
    for sub in range(ad, 4*NS):
        t0 = max((sub - 7)*32, min((sub - ad)*32, 52*32 - (59 - sub)*cfg.ramp)) if TM == 1 else (sub - ad)*32
        t1 = max((sub - 6)*32, min((sub + 1 - ad)*32, 52*32 - (58 - sub)*cfg.ramp)) if TM == 1 else t0 + 32
        for b in range(4):
            last_act = t0 + b*min(8, (t1 - t0)//4)
            for x in cact(sub, b): L(last_act, x)
    if cfg.cpf2:
        for x in code_pf(S_DB, LDS_SCR + 1024): L(1*ST + 4*30, x)
        for x in code_srd(S_AH, 'L_pc3'): L(7*ST, x)
        for k in (7, 10):
            for x in code_pf(S_AH, LDS_SCR + 1024): L(k*ST + 4*30, x)
    lo = {k: lo[k] for k in sorted(lo)}
    n = len(mf)
    fill = spread(hi, lo, n, cfg.cap, 16, cost=lambda i: 1 if i % 4 == 3 else 0)
    fix_m0(fill, n)
    def ride(items, g0, g1):
        q_ = list(items); per = len(q_) / (g1 - g0); due = 0.0; done = 0
        for i in range(g0, g1):
            due += per
            used = len(fill[i]) + (1 if i % 4 == 3 else 0)
            while q_ and done < due + 2 and (used < cfg.cap or done < due - cfg.lag):
                fill[i].append(q_.pop(0)); used += 1; done += 1
        fill[g1-1] += q_
    oq = collect(lambda: o_epi(cfg.ox > 0))
    nx = 0
    if cfg.ox:
        idx = [i for i, x in enumerate(oq) if x[0].startswith('buffer_store')]
        nx = idx[cfg.ox - 1] + 1
        fill[-1] = oq[:nx] + fill[-1]
        oq2 = collect(lambda: o_epi(False))
        idx2 = [i for i, x in enumerate(oq2) if x[0].startswith('buffer_store')]
        oq = oq2[idx2[cfg.ox - 1] + 1:]
    if oq: ride(oq, 2, int(cfg.oe*ST))
    ride(collect(s_setup), int(cfg.oe*ST), int(cfg.oe*ST) + ST - 20)
    fill[obar*ST - 4*P + 2].append(flag_store('C_of', vFO, True))
    first_o = (28 - ad)*32
    assert first_o - 2 > int(cfg.oe*ST) + ST - 20 and 5*ST > int(cfg.oe*ST) + ST - 20
    fill[first_o - cfg.fl].append(f'buffer_load_dwordx2 v[62:63], v{vFH}, s[{S_FL}:{S_FL+3}], 0 offen sc1')
    fill[first_o - 2].append('\n'.join(flagchk('L_o', vFH, 62, True)))
    ride(collect(lambda: send(0)), 7*ST + 8, 7*ST + int(cfg.de*ST))
    fill[dbar*ST - 4*P + 2].append(flag_store('C_df', vFD))
    xl = [f'buffer_load_dwordx4 v[{vX+4*b}:{vX+4*b+3}], v{vO+b}, s[{S_X}:{S_X+3}], 0 offen' for b in range(4)]
    ride(xl, max(last_act + 20, int(cfg.dchk*ST) + 52), max(last_act + 20, int(cfg.dchk*ST) + 52) + 16)
    vR = 192
    def recv(gemm):
        p(f's_add_u32 s{sT+2}, s{sPR}, {gemm*256*3*16384}')
        for q_ in range(3):
            for i in range(4):
                r = vR + 16*q_ + 4*i
                p(f'buffer_load_dwordx4 v[{r}:{r+3}], v24, s[{S_P}:{S_P+3}], s{sT+2} offen offset:{1024*i} sc1')
            if q_ < 2: p(f's_add_u32 s{sT+2}, s{sT+2}, 16384')
    dchk = cfg.dchk; assert dchk*ST > last_act + 16
    fill[int(dchk*ST) - cfg.fl].append(f'buffer_load_dwordx2 v[62:63], v{vFQ}, s[{S_FL}:{S_FL+3}], 0 offen sc1')
    fill[int(dchk*ST)].append('\n'.join(flagchk('L_d', vFQ, 62)))
    ride(collect(lambda: recv(0)), int(dchk*ST) + 2, int(dchk*ST) + 50)
    fill[12*ST].append(f's_mov_b32 s{sT+4}, {256*3*16384}')
    sent = 0
    if TM:
        pairlen = TM*32
        base = (NS - TM)*ST; plen = 2*4*TM*4
        for q_ in range(3):
            g0 = base + (q_ + 1)*plen + 3
            ride(collect(lambda: send(1, range(4*q_, 4*q_ + 4))), g0, min(n, g0 + plen - 3))
        sent = 12
    ts.stamp(p, 7)
    for k in range(1, 15):
        if k in (1, 2, 3, 4, 5, 6, 7, 8, 9, 11, 13):
            t_ = ts.text(2)
            if t_: fill[k*ST - 1].append(t_)
    interleave(p, mf, fill)
    p(f's_mov_b32 s{sT+3}, 0xffff0000\nv_add_u32 v{vFQ}, {256*128}, v{vFQ}\ns_nop 4')
    ts.stamp(p, 3)
    send(1, range(sent, 12))
    pk = lambda r: f'v[{r}:{r+1}]'
    def addparts(dst, i):
        for q_ in range(3):
            rr = vR + 16*q_ + 4*i; tt = 32 + 8*(q_ % 2)
            for r in range(4): p(f'v_lshlrev_b32 v{tt+2*r}, 16, v{rr+r}\nv_and_b32 v{tt+2*r+1}, s{sT+3}, v{rr+r}')
            for r in range(0, 8, 2): p(f'v_pk_add_f32 {pk(dst+r)}, {pk(dst+r)}, {pk(tt+r)}')
    p(f'v_mov_b32 v28, {f2u(-math.log2(math.e)):#x}\nv_mov_b32 v29, v28')
    for i in range(4):
        c = cC + 8*i; B = 48
        addparts(c, i)
        for r in range(0, 8, 2): p(f'v_pk_mul_f32 {pk(B+r)}, {pk(c+r)}, v[28:29]')
        for r in range(8): p(f'v_exp_f32 v{B+r}, v{B+r}')
        p('s_nop 0')
        for r in range(0, 8, 2): p(f'v_pk_add_f32 {pk(B+r)}, {pk(B+r)}, 1.0 op_sel_hi:[1,0]')
        for r in range(8): p(f'v_rcp_f32 v{B+r}, v{B+r}')
        p('s_nop 0')
        for r in range(0, 8, 2): p(f'v_pk_mul_f32 {pk(c+r)}, {pk(c+r)}, {pk(B+r)}')
    vSs = 64
    for i in range(32): p(f'v_accvgpr_read_b32 v{vSs+i}, a{i}')
    p('s_waitcnt vmcnt(0)\ns_barrier')
    ts.stamp(p)
    p(f's_cmp_eq_u32 s{sW}, 1\ns_cbranch_scc0 C_got')
    p.cond(True)
    p(f'buffer_store_dwordx2 v[2:3], v{vFS}, s[{S_FL}:{S_FL+3}], 0 offen sc1')
    poll('C_poll', vFQ, 'C_got')
    p.cond(False)
    p('C_got:\ns_barrier')
    ts.stamp(p)
    recv(1)
    E = 160
    for b in range(4):
        for q in range(4): p(f'v_lshlrev_b32 v{E+8*b+2*q}, 16, v{vX+4*b+q}\nv_and_b32 v{E+8*b+2*q+1}, s{sT+3}, v{vX+4*b+q}')
    for i in (0, 2, 1, 3): addparts(vSs + 8*i, i)
    for b in range(4):
        c0 = vSs + 4*b; c1 = vSs + 16 + 4*b; o = 112 + 4*b
        for r in (0, 2):
            p(f'v_pk_mul_f32 {pk(c0+r)}, {pk(c0+r)}, {pk(cC+4*b+r)}\nv_pk_mul_f32 {pk(c1+r)}, {pk(c1+r)}, {pk(cC+16+4*b+r)}')
        p('s_nop 0')
        for r in range(4): p(f'v_permlane16_swap_b32 v{c0+r}, v{c1+r}')
        p('s_nop 0')
        for q in range(4):
            c = (c0, c0+2, c1, c1+2)[q]
            p(f'v_pk_add_f32 {pk(E+8*b+2*q)}, {pk(E+8*b+2*q)}, {pk(c)}')
        for q in range(4): p(f'v_cvt_pk_bf16_f32 v{o+q}, v{E+8*b+2*q}, v{E+8*b+2*q+1}')
        p(f'buffer_store_dwordx4 v[{o}:{o+3}], v{vO+b}, s[{S_OUT}:{S_OUT+3}], 0 offen {cfg.osc}')
    p('C_fin:')
    ts.stamp(p)
    ts.dump(p, pWS)
    p('K_end:\ns_endpgm')
    autowait(p); check(p, 'main')

    z = Prog(); main = p; p = z
    p('A_slow:')
    p('s_waitcnt vmcnt(0) lgkmcnt(0)')
    srd(p, S_K, pK, 0, 2 << 20); srd(p, S_V, pV, 0, 2 << 20)
    zK, zD, zV = 13, 14, 21
    zKV, zN = sT, sT+1
    p(f's_lshr_b32 s{zKV}, s{sCB}, 3\ns_lshl_b32 s{zKV}, s{zKV}, 19\ns_add_u32 s{zKV}, s{zKV}, {1536*256}')
    p(f'v_and_b32 v{zK}, 31, v1\nv_lshlrev_b32 v{zK}, 8, v{zK}\nv_lshrrev_b32 v36, 5, v1\nv_lshl_add_u32 v{zK}, v36, 4, v{zK}')
    p(f'v_lshrrev_b32 v36, 4, v1\nv_and_b32 v37, 15, v1\nv_lshlrev_b32 v38, 2, v36\nv_xor_b32 v37, v37, v38\nv_lshlrev_b32 v36, 8, v36\nv_lshl_add_u32 v{zD}, v37, 4, v36\nv_add_u32 v{zD+1}, 0x1000, v{zD}')
    t = 36
    p(f'v_lshrrev_b32 v{t}, 5, v1\nv_lshlrev_b32 v{t}, 2, v{t}\nv_bfe_u32 v{t+1}, v1, 2, 2\nv_add_u32 v{t}, v{t}, v{t+1}\nv_lshlrev_b32 v{t}, 8, v{t}')
    p(f'v_bfe_u32 v{t+2}, v1, 4, 1\nv_lshlrev_b32 v{t+2}, 5, v{t+2}\nv_and_b32 v{t+3}, 3, v1\nv_lshlrev_b32 v{t+3}, 3, v{t+3}\nv_add3_u32 v{t}, v{t}, v{t+2}, v{t+3}')
    p(f's_lshl_b32 s{sT+2}, s{sW}, 13\ns_add_u32 s{sT+2}, s{sT+2}, 0x20000\nv_add_u32 v{t}, s{sT+2}, v{t}')
    for dt in range(4): p(f'v_xor_b32 v{t+2}, {dt}, v{t+1}\nv_lshl_add_u32 v{zV+dt}, v{t+2}, 6, v{t}')
    def kglob():
        for s in range(8): p(f'buffer_load_dwordx4 a[{aF+4*s}:{aF+4*s+3}], v{zK}, s[{S_K}:{S_K+3}], s{zN} offen offset:{32*s}')
    p(f'v_mov_b32 v32, 0xff800000\nv_mov_b32 v34, 0xff800000\ns_mov_b32 s{zN}, s{zKV}\ns_mov_b32 s{sT+3}, 16')
    p.loop_begin('Z1_loop', 16, align=False)
    kglob()
    for s in range(8):
        for qt in range(2): p(qk(0, s, qt, zero))
    p('s_nop 7\ns_nop 3')
    rowmax(0, False)
    p(f's_add_u32 s{zN}, s{zN}, 8192\ns_sub_u32 s{sT+3}, s{sT+3}, 1\ns_cmp_lg_u32 s{sT+3}, 0\ns_cbranch_scc1 Z1_loop')
    p.loop_end()
    set_negm()
    for i in range(128): p(f'v_accvgpr_write_b32 a{i}, 0')
    for i in range(4): p(f'v_mov_b32 v{vL+i}, 0')
    p(f's_mov_b32 s{zN}, s{zKV}\ns_mov_b32 s{sT+3}, 16')
    p.loop_begin('Z2_loop', 16, align=False)
    kglob()
    for j in range(8):
        if j % 4 == 0: p(f's_add_u32 m0, s{sT+2}, {1024*j}\ns_nop 0')
        p(f'buffer_load_dwordx4 v{zD + j//4}, s[{S_V}:{S_V+3}], s{zN} offen offset:{1024*(j%4)} lds')
    for s in range(8):
        for qt in range(2): p(qk(0, s, qt, negm))
    p('s_nop 7\ns_nop 3')
    for ops in softmax_ops(0):
        for o in ops: p(o)
    p('s_waitcnt vmcnt(0)')
    for f in range(8):
        for r in vread(0, f, None, base=zV, off0=0): emit(p, r)
    for f in range(8):
        for qt in range(2): p(pv(0, f, qt))
    p(f's_add_u32 s{zN}, s{zN}, 8192\ns_sub_u32 s{sT+3}, s{sT+3}, 1\ns_cmp_lg_u32 s{sT+3}, 0\ns_cbranch_scc1 Z2_loop')
    p.loop_end()
    p('s_nop 7\ns_nop 7')
    for qt in range(2):
        l = vL + 2*qt
        p(f'v_add_f32 v{l}, v{l}, v{l+1}\nv_mov_b32 v{l+1}, v{l}\ns_nop 1\nv_permlane32_swap_b32 v{l}, v{l+1}\ns_nop 1\nv_add_f32 v{l}, v{l}, v{l+1}')
    p('s_branch A_done')
    autowait(z); check(z, 'slow')
    return main.text() + '\n' + z.text() + '\nK_last:'

def main():
    cfg = Cfg()
    cfg.ts = 1; cfg.xmap = 'b'; cfg.stag = 0; cfg.P = 4; cfg.late1 = 1; cfg.w0 = 0; cfg.cw0 = 8
    cfg.d0 = 0; cfg.dstr = 4; cfg.a0 = 1; cfg.astr = 2; cfg.ad = 3; cfg.PF = 3; cfg.cap = 2
    cfg.cad = 5; cfg.cdstr = 4; cfg.cP = 4; cfg.thr = 30; cfg.tail0 = 4; cfg.sum = 'add'; cfg.hbar = 2; cfg.e64 = ''; cfg.xs = 0; cfg.xl = 1; cfg.cpf2 = 1; cfg.loc = 0; cfg.fremote = 0; cfg.ox = 0; cfg.ramp = 20; cfg.lag = 3; cfg.vmc = 8; cfg.acap = 24; cfg.amax = 40; cfg.wb = 0; cfg.opad = 256; cfg.xpad = 256; cfg.hpad = 0; cfg.oe = 3; cfg.de = 4; cfg.tm = 1; cfg.fl = 128; cfg.dchk = 13.5; cfg.dbg = 0; cfg.cpf = 1; cfg.tlb = 0; cfg.osc = 'sc1'; cfg.slp = 1; cfg.late0 = 2
    for a in sys.argv[2:]:
        k, v = a.split('='); setattr(cfg, k, int(v) if v.lstrip('-').isdigit() else float(v) if v.replace('.','').isdigit() else v)
    kn = NAME + '_kernel'
    hdr = (f'; opad={cfg.opad} hoff={WS_H} xpad={cfg.xpad} hpad={cfg.hpad} ooff={WS_O}\n; @launch grid=(256,1,1) block=(256,1,1) lds={LDS_TOT}\n'
           '.amdgcn_target "amdgcn-amd-amdhsa--gfx950"\n')
    s = hdr + kernel_head(kn) + gen(cfg) + '\n' + kernel_desc(kn, 512, 256)
    open(sys.argv[1], 'w').write(s)
if __name__ == '__main__': main()
```

```python
import re

TRANS = ('v_exp_f32','v_log_f32','v_rcp_f32','v_rsq_f32','v_sqrt_f32','v_sin_f32','v_cos_f32')

def expand(op):
    op = op.strip()
    op = op.lstrip('-')
    if op.startswith('abs(') : op = op[4:-1]
    if op.startswith('|'): op = op.strip('|')
    m = re.fullmatch(r'([vas])\[(\d+):(\d+)\]', op)
    if m: return [f"{m.group(1)}{i}" for i in range(int(m.group(2)), int(m.group(3))+1)]
    m = re.fullmatch(r'([vas])(\d+)', op)
    if m: return [op]
    if op in ('vcc',): return ['vcc']
    if op in ('vcc_lo','vcc_hi'): return ['vcc']
    if op == 'exec': return ['exec']
    if op == 'm0': return ['m0']
    return []

class I:
    __slots__ = ('text','op','kind','rd','wr','tag','passes','cregs','abregs','wait','skip')
    def __init__(self, text, tag=None):
        self.text = text; self.tag = tag; self.skip = False
        t = text.split(';')[0].strip()
        parts = t.split(None, 1)
        op = parts[0]; self.op = op
        args = [a.strip() for a in parts[1].split(',')] if len(parts) > 1 else []
        mods = []
        if args:
            la = args[-1].split()
            args[-1] = la[0] if la else ''
            mods = la[1:]
        self.rd = set(); self.wr = set(); self.passes = 0; self.cregs = set(); self.abregs = set(); self.wait = None
        E = lambda i: set(expand(args[i])) if i < len(args) else set()
        allargs = lambda lo: set().union(*[E(i) for i in range(lo, len(args))]) if len(args) > lo else set()
        if op.endswith(':'): self.kind = 'label'
        elif op.startswith('.'): self.kind = 'dir'
        elif op.startswith('v_mfma'):
            self.kind = 'mfma'; self.wr = E(0); self.abregs = E(1) | E(2); self.cregs = E(3); self.rd = self.abregs | self.cregs
            self.passes = 8 if '32x32x16' in op else 4
        elif op == 's_waitcnt':
            self.kind = 'wait'; w = {}
            for m in re.finditer(r'(vmcnt|lgkmcnt)\((\d+)\)', t): w[m.group(1)] = int(m.group(2))
            self.wait = w
        elif op == 's_barrier': self.kind = 'barrier'
        elif op == 's_nop': self.kind = 'nop'; self.passes = int(args[0], 0) + 1
        elif op in ('s_endpgm','s_setprio','s_sleep'): self.kind = 'salu'
        elif op.startswith('s_cbranch') or op == 's_branch':
            self.kind = 'branch'
            if 'scc' in op: self.rd = {'scc'}
            if 'vcc' in op: self.rd = {'vcc'}
            if 'exec' in op: self.rd = {'exec'}
        elif op.startswith('s_load') or op.startswith('s_memtime') or op.startswith('s_memrealtime') or op.startswith('s_atomic'):
            self.kind = 'smem'; self.wr = E(0); self.rd = allargs(1)
        elif op.startswith('s_cmp'):
            self.kind = 'salu'; self.rd = allargs(0); self.wr = {'scc'}
        elif op.startswith('s_'):
            self.kind = 'salu'; self.wr = E(0); self.rd = allargs(1)
            if op.split('_')[1] in ('add','sub','addc','subb','lshl','lshr','and','or','xor','andn2','ashr','min','max','not','addk','bfe'): self.wr |= {'scc'}
            if op.startswith('s_cselect') or op.startswith('s_addc') or op.startswith('s_subb'): self.rd |= {'scc'}
            if op.startswith('s_addk') or op.startswith('s_mulk'): self.rd |= E(0)
            if 'saveexec' in op: self.wr |= {'exec','scc'}; self.rd |= {'exec'}
            if op.startswith('s_getreg') or op.startswith('s_getpc'): self.rd = set()
        elif op.startswith('ds_read') or op.startswith('ds_bpermute') or op.startswith('ds_swizzle') or op.startswith('ds_permute'):
            self.kind = 'dsr'; self.wr = E(0); self.rd = allargs(1)
        elif op.startswith('ds_write') :
            self.kind = 'dsw'; self.rd = allargs(0)
        elif op.startswith('ds_'):
            if '_rtn' in op: self.kind = 'dsr'; self.wr = E(0); self.rd = allargs(1)
            else: self.kind = 'dsw'; self.rd = allargs(0)
        elif op.startswith('buffer_load') or op.startswith('global_load'):
            if text.rstrip().endswith(';pf'):
                self.kind = 'dma'; self.rd = allargs(1)
            elif 'lds' in mods or op.startswith('global_load_lds'):
                self.kind = 'dma'; self.rd = allargs(0) | {'m0'}
            else:
                self.kind = 'vld'; self.wr = E(0); self.rd = allargs(1)
        elif op.startswith('buffer_store') or op.startswith('global_store'):
            self.kind = 'vst'; self.rd = allargs(0)
            self.cregs = E(0) if op.startswith('buffer_store') else E(1)
            self.passes = 4 if op.endswith('x4') or op.endswith('x3') else 0
        elif op.startswith('buffer_atomic') or op.startswith('global_atomic'):
            ret = 'sc0' in mods
            self.kind = 'vld' if ret else 'vst'
            self.rd = allargs(0)
            if ret: self.wr = E(0)
        elif op.startswith('buffer_inv') or op.startswith('buffer_wbl2'):
            self.kind = 'vst'
        elif op.startswith('v_'):
            self.kind = 'trans' if op.replace('_e32','').replace('_e64','') in TRANS else 'valu'
            self.wr = E(0); self.rd = allargs(1)
            if op.startswith('v_permlane') and 'swap' in op:
                self.wr = E(0) | E(1); self.rd = E(0) | E(1)
            if op.endswith('_dpp') or op.startswith('v_fmac') or op.startswith('v_pk_fmac') or op.startswith('v_dot2c') or op.startswith('v_writelane'): self.rd |= E(0)
            if op.startswith('v_add_co') or op.startswith('v_addc_co') or op.startswith('v_sub_co'):
                self.wr = E(0) | E(1); self.rd = allargs(2)
            if op.startswith('v_cmpx'): self.wr |= {'exec'}
            if op.startswith('v_cndmask') and len(args) == 3: self.rd |= {'vcc'}
        else:
            raise ValueError('unknown op ' + text)

class Loop:
    def __init__(self, name, count, body): self.name = name; self.count = count; self.body = body

class Ref:
    def __init__(self, loop, count): self.loop = loop; self.count = count

class Prog:
    def __init__(self): self.items = []; self.stack = [self.items]; self.skipping = False
    def __call__(self, text, tag=None):
        for ln in text.split('\n'):
            ln = ln.strip()
            if not ln: continue
            if ln.startswith(';'):
                c = I('.comment'); c.text = ln; self.stack[-1].append(c); continue
            ins = I(ln, tag); ins.skip = self.skipping or ln.endswith(';cond'); self.stack[-1].append(ins)
    def cond(self, on): self.skipping = on
    def add(self, inst): self.stack[-1].append(inst)
    def loop_begin(self, name, count, align=True):
        L = Loop(name, count, [])
        if align: self('.p2align 6')
        self.stack[-1].append(L); self.stack.append(L.body)
        self(f'{name}:')
        return L
    def again(self, loop, count): self.stack[-1].append(Ref(loop, count))
    def loop_end(self): self.stack.pop()
    def text(self):
        out = []
        def w(items):
            for it in items:
                if isinstance(it, Loop): w(it.body)
                elif isinstance(it, Ref): pass
                else: out.append(it.text if it.kind in ('label','dir') else '  ' + it.text)
        w(self.items); return '\n'.join(out)
    def trace(self, maxiter=10**9):
        def w(items, itn):
            for it in items:
                if isinstance(it, Loop):
                    for n in range(min(it.count, maxiter)): yield from w(it.body, n)
                elif isinstance(it, Ref):
                    for n in range(min(it.count, maxiter)): yield from w(it.loop.body, n + 1000)
                elif not it.skip: yield it, itn
        return w(self.items, 0)
    def need(self, tag):
        c = I('.need'); c.text = '; need ' + str(tag); c.kind = 'need'; c.tag = tag; self.stack[-1].append(c)
    def touch(self, opnd):
        c = I('.need'); c.text = '; touch ' + opnd; c.kind = 'touch'; c.rd = set(expand(opnd)); self.stack[-1].append(c)
    def needrd(self, tag):
        c = I('.need'); c.text = '; needrd ' + str(tag); c.kind = 'needrd'; c.tag = tag; self.stack[-1].append(c)

def rtag(tag, itn):
    name, ring, v0, stride = tag
    ver = v0 + itn * stride
    return (name, ver % ring), ver

def autowait(prog, maxiter=10**9):
    need_vm = {}; need_lg = {}
    vm = []; lg = []
    for ins, itn in prog.trace(maxiter):
        k = ins.kind
        if k in ('label','dir','barrier','nop'): continue
        if k == 'wait':
            if 'vmcnt' in ins.wait: del vm[:max(0, len(vm) - ins.wait['vmcnt'])]
            if 'lgkmcnt' in ins.wait: del lg[:max(0, len(lg) - ins.wait['lgkmcnt'])]
            continue
        regs = ins.rd | ins.wr
        def dep(o):
            oi, ot = o
            if k == 'need': return ot is not None and oi.kind in ('dma','dsw','vst') and ot == rtag(ins.tag, itn)
            if k == 'needrd': return ot is not None and oi.kind == 'dsr' and ot[0] == rtag(ins.tag, itn)[0]
            return bool(oi.wr & regs)
        for q, nd, cap in ((vm, need_vm, 63), (lg, need_lg, 15)):
            last = -1
            for i, o in enumerate(q):
                if dep(o): last = i
            if id(ins) in nd:
                n0 = nd[id(ins)]
                del q[:max(0, len(q) - n0)]
                last = -1
                for i, o in enumerate(q):
                    if dep(o): last = i
            if last >= 0:
                n = min(len(q) - 1 - last, cap)
                if q is lg and any(o[0].kind == 'smem' for o in q): n = 0
                nd[id(ins)] = min(nd.get(id(ins), 99), n)
                del q[:len(q) - n]
        tg = rtag(ins.tag, itn) if ins.tag and k in ('dma','dsw','dsr','vst') else None
        if k in ('vld','vst','dma'): vm.append((ins, tg))
        if k in ('dsr','dsw','smem'): lg.append((ins, tg))
    def w(items):
        out = []
        for it in items:
            if isinstance(it, Loop): it.body[:] = w(it.body); out.append(it); continue
            if isinstance(it, Ref): out.append(it); continue
            s = []
            if id(it) in need_vm: s.append(f'vmcnt({need_vm[id(it)]})')
            if id(it) in need_lg: s.append(f'lgkmcnt({need_lg[id(it)]})')
            if s: out.append(I('s_waitcnt ' + ' '.join(s)))
            out.append(it)
        return out
    prog.items[:] = w(prog.items)

def check(prog, name='', maxiter=10**9, verbose=True):
    probs = []
    vm = []
    lg = []
    pend = {}
    state = 0
    last_valu_wr = {}; last_trans_wr = {}; last_mfma_wr = {}; last_mfma_c = {}; last_salu_wr = {}; last_store_data = {}
    valu_sgpr_wr = {}
    reg_state = {}
    nbar = 0
    dma_done_bar = {}
    dma_out = {}
    rd_out = {}
    rd_done_bar = {}
    cur_ver = {}
    seq = 0
    def P(msg, ins): probs.append(f"{name}: {msg}: [{ins.text}] (seq {seq})")
    for ins, itn in prog.trace(maxiter):
        seq += 1
        k = ins.kind
        if k in ('label','dir','need','needrd','touch'): continue
        if k == 'wait':
            if 'vmcnt' in ins.wait:
                n = ins.wait['vmcnt']
                while len(vm) > n:
                    o, s = vm.pop(0)
                    for r in o.wr:
                        if pend.get(r, (None,None,None))[2] == s: del pend[r]
                    if o.kind == 'dma' and o.tag:
                        key = dma_out.pop(s);
                        dma_done_bar[key] = max(dma_done_bar.get(key, -1), nbar)
            if 'lgkmcnt' in ins.wait:
                n = ins.wait['lgkmcnt']
                if n > 0 and any(o.kind == 'smem' for o, s in lg): P('counted lgkmcnt with smem outstanding', ins)
                while len(lg) > n:
                    o, s = lg.pop(0)
                    for r in o.wr:
                        if pend.get(r, (None,None,None))[2] == s: del pend[r]
                    if s in rd_out:
                        rg = rd_out.pop(s); rd_done_bar[rg] = max(rd_done_bar.get(rg, -1), nbar)
                    if s in dma_out:
                        key = dma_out.pop(s); dma_done_bar[key] = max(dma_done_bar.get(key, -1), nbar)
            state += 1; continue
        if k == 'barrier': nbar += 1; state += 1; continue
        if k == 'nop': state += ins.passes; continue
        for r in ins.rd | ins.wr:
            if r in pend: P(f'reg {r} has pending load [{pend[r][1].text}]', ins)
        def dist(tbl, r): return state - tbl[r][0] - 1 if r in tbl else 1000
        isvalu = k in ('valu','trans')
        if k == 'mfma':
            for r in ins.rd:
                if dist(last_valu_wr, r) < 2: P(f'VALU->MFMA {r} needs 2', ins)
            for r in ins.abregs:
                if r in last_mfma_wr:
                    need = {4: 8, 8: 12}[last_mfma_wr[r][1].passes]
                    if dist(last_mfma_wr, r) < need: P(f'MFMA D->MFMA AB {r} needs {need}', ins)
            for r in ins.cregs:
                if r in last_mfma_wr:
                    p = last_mfma_wr[r][1]
                    if p.wr == ins.cregs and p.passes == ins.passes: pass
                    else:
                        need = {4: 6, 8: 10}[p.passes]
                        if dist(last_mfma_wr, r) < need: P(f'MFMA D->MFMA C partial {r} needs {need}', ins)
            for r in ins.wr - ins.cregs:
                if r in last_mfma_wr:
                    need = {4: 8, 8: 12}[last_mfma_wr[r][1].passes]
                    if dist(last_mfma_wr, r) < need: P(f'MFMA D->MFMA D WAW {r} needs {need}(conservative)', ins)
                if r in last_mfma_c:
                    need = {4: 3, 8: 7}[last_mfma_c[r][1].passes]
                    if dist(last_mfma_c, r) < need: P(f'MFMA C read -> MFMA write {r} needs {need}(conservative)', ins)
            if dist(last_valu_wr, 'exec') < 4: P('exec write -> mfma', ins)
        else:
            for r in ins.rd | ins.wr:
                if r in last_mfma_wr:
                    need = {4: 8, 8: 12}[last_mfma_wr[r][1].passes]
                    if dist(last_mfma_wr, r) < need: P(f'MFMA D->use {r} needs {need}', ins)
            if isvalu or k in ('vld','dsr'):
                for r in ins.wr:
                    if r in last_mfma_c and isvalu:
                        need = {4: 3, 8: 7}[last_mfma_c[r][1].passes]
                        if dist(last_mfma_c, r) < need: P(f'MFMA C read -> VALU write {r} needs {need}', ins)
                    if r in last_store_data and dist(last_store_data, r) < 2: P(f'store data WAR {r}', ins)
        if isvalu:
            if k == 'valu':
                for r in ins.rd:
                    if dist(last_trans_wr, r) < 1: P(f'trans->valu {r}', ins)
            if ins.op.startswith('v_permlane'):
                for r in ins.rd:
                    if dist(last_valu_wr, r) < 2: P(f'VALU->permlane {r} needs 2', ins)
            if ins.op.startswith('v_readfirstlane') or ins.op.startswith('v_readlane'):
                for r in ins.rd:
                    if r[0] == 'v' and r != 'vcc' and dist(last_valu_wr, r) < 1: P(f'VALU->readlane {r} needs 1', ins)
            if 'dpp' in ins.text or 'row_' in ins.text or 'quad_perm' in ins.text:
                for r in ins.rd:
                    if dist(last_valu_wr, r) < 2: P(f'VALU->DPP {r} needs 2', ins)
            for r in ins.rd:
                if (r[0] == 's' or r == 'vcc') and dist(valu_sgpr_wr, r) < 2: P(f'VALU sgpr wr->VALU rd {r} needs 2', ins)
        if k in ('vld','vst','dma'):
            for r in ins.rd:
                if r[0] == 's' and dist(valu_sgpr_wr, r) < 5: P(f'VALU sgpr->VMEM {r} needs 5', ins)
            if k == 'dma' and 'm0' in ins.rd and dist(last_salu_wr, 'm0') < 1: P('m0 write -> dma needs 1', ins)
        if k in ('salu','branch','smem'):
            for r in ins.rd:
                if dist(valu_sgpr_wr, r) < 1 and r != 'scc': P(f'VALU sgpr wr->SALU rd {r} (pad 1)', ins)
        if 'scc' in ins.rd:
            lw = last_salu_wr.get('scc', (0, None))[1]
            if ins.op == 's_subb_u32': pass
            elif ins.op == 's_addc_u32':
                lo_ = 's%d' % (int(sorted(ins.wr - {'scc'})[0][1:]) - 1)
                if lw is None or lw.op != 's_add_u32' or lo_ not in lw.wr: P('s_addc without its s_add', ins)
            elif lw is None or not lw.op.startswith('s_cmp'): P('scc read not fed by s_cmp (last writer %s)' % (lw.text if lw else None), ins)
        if ins.tag and k in ('dma','dsw'):
            rg, ver = rtag(ins.tag, itn)
            if cur_ver.get(rg) != ver:
                if any(v == rg for v in rd_out.values()): P(f'LDS WAR: reads of {rg} still outstanding', ins)
                elif rd_done_bar.get(rg, -1) >= nbar: P(f'LDS WAR: no barrier since last read of {rg} completed', ins)
                cur_ver[rg] = ver
            dma_out[seq] = (rg, ver)
        if ins.tag and k == 'dsr':
            rg, ver = rtag(ins.tag, itn)
            if cur_ver.get(rg) != ver: P(f'LDS read of {rg} ver {ver} but current {cur_ver.get(rg)}', ins)
            if any(v == (rg, ver) for v in dma_out.values()): P(f'LDS RAW: write to {rg} outstanding', ins)
            elif dma_done_bar.get((rg, ver), -1) >= nbar: P(f'LDS RAW: no barrier after write to {rg} done', ins)
            rd_out[seq] = rg
        if k in ('vld','vst','dma'):
            vm.append((ins, seq))
            if len(vm) > 63: P('vmcnt overflow', ins)
            for r in ins.wr: pend[r] = ('vm', ins, seq)
            if k == 'vst' and ins.passes:
                for r in ins.cregs: last_store_data[r] = (state, ins)
        if k in ('dsr','dsw','smem'):
            lg.append((ins, seq))
            for r in ins.wr: pend[r] = ('lg', ins, seq)
        if k == 'mfma':
            for r in ins.wr: last_mfma_wr[r] = (state, ins); last_valu_wr.pop(r, None)
            for r in ins.cregs: last_mfma_c[r] = (state, ins)
        if isvalu:
            for r in ins.wr:
                last_valu_wr[r] = (state, ins); last_mfma_wr.pop(r, None)
                if k == 'trans': last_trans_wr[r] = (state, ins)
                else: last_trans_wr.pop(r, None)
                if r[0] == 's' or r == 'vcc': valu_sgpr_wr[r] = (state, ins)
        if k == 'salu':
            for r in ins.wr: last_salu_wr[r] = (state, ins); valu_sgpr_wr.pop(r, None)
        if k in ('vld','dsr'):
            for r in ins.wr: last_mfma_wr.pop(r, None); last_valu_wr.pop(r, None)
        state += 1
    if verbose:
        seen = set()
        for p in probs:
            key = p.split('(seq')[0]
            if key in seen: continue
            seen.add(key); print('CHECK', p)
            if len(seen) > 40: break
    return probs
```

```python
import sys, struct, math
from dsl import *
from gen2 import (f2u, srd, kernel_head, kernel_desc, emit, interleave, spread, m0gap, fix_m0, chk_tail, Cfg)

NAME = 'recurrent_scan__sliding_block_cached__geglu_ffn__prompt'
WS_XN = 0
WS_O  = 5 << 20
WS_H  = 23 << 20
WS_G  = 36 << 20
WS_FL = 40 << 20
WS_TS = 48 << 20
WS_P  = 64 << 20
HS = 22528; NHS = 7
LDS_SCR = NHS*HS
LDS_TOT = 163840

class TS:
    def __init__(self, on): self.on = on; self.n = 0
    def text(self, grp):
        if not self.on & grp or self.n >= 14: return None
        s = 88 + self.n; self.n += 1
        clk = 's_memtime' if self.on & 8 else 's_memrealtime'
        return f's_waitcnt lgkmcnt(0)\n{clk} s[4:5]\ns_waitcnt lgkmcnt(0)\ns_mov_b32 s{s}, s4'
    def stamp(self, p, grp=1):
        t = self.text(grp)
        if t: p(t)
    def old(self, p):
        if not self.on: return
        s = 88 + self.n; self.n += 1;
        if s >= 102: return
        p(f's_waitcnt lgkmcnt(0)\ns_memrealtime s[4:5]\ns_waitcnt lgkmcnt(0)\ns_mov_b32 s{s}, s4')
    def dump(self, p, wsptr):
        if not self.on: return
        if self.on & 16:
            p('s_load_dwordx2 s[12:13], s[0:1], 80\ns_waitcnt lgkmcnt(0)\ns_mov_b32 s14, 256\ns_mov_b32 s15, 0x20000\nv_mov_b32 v8, 0\ns_mov_b64 exec, 1')
            for i in range(min(self.n, 14)):
                p(f's_sub_u32 s4, s{88+i}, s6\nv_mov_b32 v4, s4\nbuffer_atomic_smax v4, v8, s[12:15], 0 offen offset:{8+4*i}\ns_nop 1')
            return
        srd(p, 12, wsptr, WS_TS, 1 << 20)
        p('s_lshl_b32 s3, s2, 8\ns_lshl_b32 s4, s36, 6\ns_add_u32 s3, s3, s4\nv_mov_b32 v8, s3')
        p('s_getreg_b32 s4, hwreg(HW_REG_XCC_ID, 0, 4)\nv_mov_b32 v4, s4\nbuffer_store_dword v4, v8, s[12:15], 0 offen offset:60\ns_nop 1')
        for i in range(min(self.n, 14)):
            p(f'v_mov_b32 v4, s{88+i}\nbuffer_store_dword v4, v8, s[12:15], 0 offen offset:{4*i}\ns_nop 1')

def gen(cfg, ND):
    SFX = f'_{ND}'
    OST = 131072 + cfg.opad; XST = 32768 + cfg.xpad; HST = 112*1024 + cfg.hpad
    p = Prog(); ts = TS(cfg.ts)
    SC = ' sc1'; LS = '' if cfg.loc else ' sc1'
    assert cfg.xmap == 'c' or not cfg.loc
    pX, pK, pV, pWQ, pWO, pWG, pWU, pWD, pOUT, pDBG, pWS = 64, 66, 68, 70, 72, 76, 78, 80, 82, 84, 86
    S_W, S_Q, S_XN, S_H, S_K, S_V, S_O = 8, 12, 16, 20, 24, 28, 32
    S_FL, S_DB = 56, 60
    sW, sRB, sCB, sKW, sKQ, sKA, sCNT = 36, 37, 38, 39, 40, 41, 42
    sMW, sMQ, sRD, sDL, sLEFT, sLEFA, sRW, sRQ = 43, 44, 45, 46, 47, 48, 49, 3
    sT = 50
    p('s_cmp_ge_u32 s2, 256\ns_cbranch_scc1 K_end')
    p('s_load_dwordx16 s[64:79], s[0:1], 0\ns_load_dwordx8 s[80:87], s[0:1], 64')
    p(f'v_lshrrev_b32 v2, 6, v0\nv_and_b32 v1, 63, v0\nv_readfirstlane_b32 s{sW}, v2')
    p(f's_and_b32 s{sT}, s2, 7\ns_lshr_b32 s{sT+1}, s2, 3')
    if cfg.xmap == 'c':
        p(f's_and_b32 s{sRB}, s{sT}, 1\ns_lshl_b32 s{sRB}, s{sRB}, 2\ns_and_b32 s{sT+2}, s{sT+1}, 3\ns_add_u32 s{sRB}, s{sRB}, s{sT+2}')
        p(f's_lshr_b32 s{sCB}, s{sT}, 1\ns_lshl_b32 s{sCB}, s{sCB}, 3\ns_lshr_b32 s{sT+2}, s{sT+1}, 2\ns_add_u32 s{sCB}, s{sCB}, s{sT+2}')
    else:
        p(f's_and_b32 s{sRB}, s{sT+1}, 7\ns_lshl_b32 s{sCB}, s{sT}, 2\ns_lshr_b32 s{sT+2}, s{sT+1}, 3\ns_add_u32 s{sCB}, s{sCB}, s{sT+2}')
    vAct, vDW, vDQ, vTr, vTq, vT = 4, 8, 15, 19, 20, 28
    vA, RA = 32, 8
    vB, RB = 64, 4
    def acc(t, b):
        if t < 16: c = (t*4+b)*4; return f'a[{c}:{c+3}]'
        c = 160 + ((t-16)*4+b)*4; return f'v[{c}:{c+3}]'
    def accr(t, b, r):
        if t < 16: return f'a{(t*4+b)*4+r}'
        return f'v{160+((t-16)*4+b)*4+r}'
    vLX, vLO, vLS = 128, 129, 130
    t = 132
    p(f's_lshl_b32 s{sT}, s{sRB}, 8\ns_lshl_b32 s{sT+1}, s{sCB}, 3\ns_add_u32 s{sT}, s{sT}, s{sT+1}\ns_lshl_b32 s{sT}, s{sT}, 11\ns_lshl_b32 s{sT+1}, s{sW}, 9\ns_add_u32 s{sT}, s{sT}, s{sT+1}')
    p(f'v_and_b32 v{t}, 7, v1\nv_bfe_u32 v{t+1}, v1, 3, 1\nv_lshrrev_b32 v{t+2}, 4, v1')
    p(f'v_lshlrev_b32 v{t+3}, 11, v{t}\nv_lshlrev_b32 v{t+4}, 8, v{t+1}\nv_lshlrev_b32 v{t+5}, 4, v{t+2}\nv_add3_u32 v{t+3}, v{t+3}, v{t+4}, v{t+5}\nv_add_u32 v{vLX}, s{sT}, v{t+3}')
    p(f's_lshl_b32 s{sT}, s{sRB}, 4\ns_lshr_b32 s{sT+1}, s{sCB}, 1\ns_add_u32 s{sT}, s{sT}, s{sT+1}\ns_mul_i32 s{sT}, s{sT}, {XST}\ns_lshl_b32 s{sT+1}, s{sW}, 13\ns_add_u32 s{sT}, s{sT}, s{sT+1}')
    p(f's_and_b32 s{sT+1}, s{sCB}, 1\ns_lshl_b32 s{sT+1}, s{sT+1}, 7\ns_add_u32 s{sT}, s{sT}, s{sT+1}')
    p(f'v_lshlrev_b32 v{t+3}, 4, v{t}\nv_lshlrev_b32 v{t+4}, 12, v{t+1}\nv_lshlrev_b32 v{t+5}, 8, v{t+2}\nv_add3_u32 v{t+4}, v{t+3}, v{t+4}, v{t+5}\nv_add_u32 v{vLO}, s{sT}, v{t+4}')
    p(f'v_add_u32 v{vLS}, {LDS_SCR}, v{t+3}\nv_lshl_add_u32 v{vLS+1}, v2, 2, v{vLS}')
    p(f's_and_b32 s{sT}, s{sW}, 1\ns_mul_i32 s{sT}, s{sT}, {32*7168}\ns_mul_i32 s{sT+1}, s{sCB}, 224\ns_add_u32 s{sT}, s{sT}, s{sT+1}')
    p(f's_mov_b32 s{sT+1}, 4682\ns_mov_b32 s{sT+2}, 7168')
    for n in range(448): assert (n*4682) >> 16 == n // 14
    t = 32
    for pc in range(7):
        p(f'v_add_u32 v{t}, {64*pc}, v1')
        p(f'v_mul_u32_u24 v{t+1}, s{sT+1}, v{t}\nv_lshrrev_b32 v{t+1}, 16, v{t+1}')
        p(f'v_mul_u32_u24 v{t+2}, 14, v{t+1}\nv_sub_u32 v{t+2}, v{t}, v{t+2}')
        p(f'v_and_b32 v{t+3}, 0x13, v{t+1}\nv_and_b32 v{t+4}, 4, v{t+1}\nv_lshl_or_b32 v{t+3}, v{t+4}, 1, v{t+3}')
        p(f'v_bfe_u32 v{t+4}, v{t+1}, 3, 1\nv_lshl_or_b32 v{t+3}, v{t+4}, 2, v{t+3}')
        p(f'v_mul_u32_u24 v{t+3}, s{sT+2}, v{t+3}\nv_lshlrev_b32 v{t+2}, 4, v{t+2}\nv_add3_u32 v{vDW+pc}, v{t+3}, v{t+2}, s{sT}')
        if pc % 4: p(f'v_subrev_u32 v{vDW+pc}, {1024*(pc%4)}, v{vDW+pc}')
    p(f's_lshl_b32 s{sT}, s{sW}, 17\ns_lshl_b32 s{sT+1}, s{sCB}, 8\ns_add_u32 s{sT}, s{sT}, s{sT+1}')
    p(f'v_lshrrev_b32 v{t}, 4, v1\nv_and_b32 v{t+1}, 15, v1\nv_lshlrev_b32 v{t+2}, 1, v{t}\nv_xor_b32 v{t+1}, v{t+1}, v{t+2}')
    p(f'v_lshlrev_b32 v{t}, 13, v{t}\nv_add_u32 v{t}, s{sT}, v{t}')
    for j in range(4):
        p(f'v_xor_b32 v{t+2}, {8*(j>>1)}, v{t+1}\nv_lshl_add_u32 v{t+2}, v{t+2}, 4, v{t}')
        p(f'v_add_u32 v{vDQ+j}, {j*(4*8192-1024)}, v{t+2}')
    p(f's_and_b32 s{sT}, s{sW}, 1\ns_lshr_b32 s{sT+1}, s{sW}, 1')
    p(f's_mul_i32 s{sMW}, s{sT}, {HS}\ns_mul_i32 s{sRW}, s{sT+1}, 7168')
    p(f's_mul_i32 s{sMQ}, s{sT+1}, {HS}\ns_lshl_b32 s{sRQ}, s{sT}, 12\ns_add_u32 s{sRQ}, s{sRQ}, 14336')
    KW, KQ, KA, NT = 64*7168, 64*8192, 2048, 16
    if cfg.stag:
        p(f's_lshl_b32 s{sT}, s{sRB}, 1\ns_mul_i32 s{sKW}, s{sT}, {KW}\ns_mul_i32 s{sKQ}, s{sT}, {KQ}\ns_mul_i32 s{sKA}, s{sT}, {KA}')
    else:
        p(f's_mov_b32 s{sKW}, 0\ns_mov_b32 s{sKQ}, 0\ns_mov_b32 s{sKA}, 0')
    p(f's_mov_b32 s{sLEFT}, {NT}\ns_mov_b32 s{sLEFA}, {NT}\ns_mov_b32 s{sRD}, 0')
    def c_role(sGM, sKH, sRC, sCC, tmp):
        p(f's_bfe_u32 s{sGM}, s2, 0x10002\ns_bfe_u32 s{sKH}, s2, 0x10001\ns_and_b32 s{sRC}, s2, 1\ns_lshl_b32 s{sRC}, s{sRC}, 2\ns_bfe_u32 s{tmp}, s2, 0x20003\ns_add_u32 s{sRC}, s{sRC}, s{tmp}\ns_lshr_b32 s{sCC}, s2, 5')
    sNO = 6
    p('s_waitcnt lgkmcnt(0)')
    ts.stamp(p)
    S_X0 = S_H
    srd(p, S_X0, pX, 0, 4 << 20)
    vLD = 144
    for i in range(4): p(f'buffer_load_dwordx4 v[{vLD+4*i}:{vLD+4*i+3}], v{vLX}, s[{S_X0}:{S_X0+3}], 0 offen offset:{64*i}')
    p(f's_cmp_ge_u32 s{sW}, 2\ns_cselect_b32 s{S_W}, s{pWU}, s{pWG}\ns_cselect_b32 s{S_W+1}, s{pWU+1}, s{pWG+1}')
    p(f's_mov_b32 s{S_W+2}, {1024*7168:#x}\ns_mov_b32 s{S_W+3}, 0x20000')
    srd(p, S_Q, pWQ, 0, 8 << 20)
    srd(p, S_FL, pWS, WS_FL, 1280*128)
    srd(p, S_XN, pWS, WS_XN, 5 << 20)
    srd(p, S_DB, pDBG, 0, 256)
    if cfg.tlb:
        p(f'v_lshlrev_b32 v140, 17, v1')
        if cfg.tlb == 2: p(f's_lshl_b32 s{sT+1}, s{sW}, 15\nv_add_u32 v140, s{sT+1}, v140')
        p(f'buffer_load_dword v141, v140, s[{S_W}:{S_W+3}], 0 offen\nbuffer_load_dword v142, v140, s[{S_Q}:{S_Q+3}], 0 offen')
        if cfg.tlb == 2:
            p(f's_cmp_ge_u32 s{sW}, 2\ns_cselect_b32 s{S_K}, s{pWG}, s{pWU}\ns_cselect_b32 s{S_K+1}, s{pWG+1}, s{pWU+1}\ns_mov_b32 s{S_K+2}, {1024*7168:#x}\ns_mov_b32 s{S_K+3}, 0x20000')
            p(f'buffer_load_dword v143, v140, s[{S_K}:{S_K+3}], 0 offen')
    def adv_w():
        return [f's_add_u32 s{sKW}, s{sKW}, {KW}', f's_cmp_eq_u32 s{sKW}, {NT*KW}', f's_cselect_b32 s{sKW}, 0, s{sKW}',
                f's_add_u32 s{sMW}, s{sMW}, {2*HS}', f's_cmp_ge_u32 s{sMW}, {NHS*HS}', f's_cselect_b32 s{sT}, {NHS*HS}, 0', f's_sub_u32 s{sMW}, s{sMW}, s{sT}']
    def adv_q():
        return [f's_add_u32 s{sKQ}, s{sKQ}, {KQ}', f's_and_b32 s{sKQ}, s{sKQ}, {NT*KQ-1}',
                f's_add_u32 s{sMQ}, s{sMQ}, {2*HS}', f's_cmp_ge_u32 s{sMQ}, {NHS*HS}', f's_cselect_b32 s{sT}, {NHS*HS}, 0', f's_sub_u32 s{sMQ}, s{sMQ}, s{sT}',
                f's_sub_u32 s{sLEFT}, s{sLEFT}, 1', f's_cmp_eq_u32 s{sLEFT}, 0',
                f's_cselect_b32 s{S_W+2}, 0, s{S_W+2}', f's_cselect_b32 s{S_Q+2}, 0, s{S_Q+2}']
    def adv_a():
        return [f's_add_u32 s{sKA}, s{sKA}, {KA}', f's_and_b32 s{sKA}, s{sKA}, {NT*KA-1}',
                f's_sub_u32 s{sLEFA}, s{sLEFA}, 1', f's_cmp_eq_u32 s{sLEFA}, 0', f's_cselect_b32 s{S_XN+2}, 0, s{S_XN+2}']
    def adv_rd():
        return [f's_add_u32 s{sRD}, s{sRD}, {HS}', f's_cmp_eq_u32 s{sRD}, {NHS*HS}', f's_mov_b32 s{sDL}, {HS}',
                f's_cselect_b32 s{sDL}, {-(NHS-1)*HS}, s{sDL}', f's_cselect_b32 s{sRD}, 0, s{sRD}']
    def dma(pc, tile, stride):
        tag = ('W', NHS, 2*tile + 1, 2*stride)
        if pc < 7: return (f'buffer_load_dwordx4 v{vDW+pc}, s[{S_W}:{S_W+3}], s{sKW} offen offset:{1024*(pc%4)} lds', tag)
        return (f'buffer_load_dwordx4 v{vDQ+pc-7}, s[{S_Q}:{S_Q+3}], s{sKQ} offen offset:{1024*(pc-7)} lds', tag)
    def m0set(pc):
        if pc == 0: return [f's_add_u32 m0, s{sMW}, s{sRW}']
        if pc == 4: return [f's_add_u32 s{sT}, s{sMW}, s{sRW}', f's_add_u32 m0, s{sT}, 4096']
        if pc == 7: return [f's_add_u32 m0, s{sMQ}, s{sRQ}']
        return []
    def dma_tile(tile):
        for d in range(11):
            for x in m0set(d): p(x)
            if m0set(d): p('s_nop 0')
            emit(p, dma(d, tile, 0))
            if d == 6:
                for x in adv_w(): p(x)
            if d == 10:
                for x in adv_q(): p(x)
    p(f's_lshl_b32 s{sT}, s2, 2\ns_add_u32 s{sT}, s{sT}, s{sW}\ns_cmp_eq_u32 s{sT}, 1\ns_cbranch_scc0 L_no_nonce')
    p.cond(True)
    p(f's_memrealtime s[{sNO}:{sNO+1}]\nv_mov_b32 v34, 0\ns_waitcnt lgkmcnt(0)\ns_and_b32 s{sNO}, s{sNO}, 0xffffffc0\ns_or_b32 s{sNO}, s{sNO}, 1\ns_getreg_b32 s{sT}, hwreg(HW_REG_XCC_ID, 0, 1)\ns_lshl_b32 s{sT}, s{sT}, 5\ns_or_b32 s{sNO}, s{sNO}, s{sT}\nv_mov_b32 v32, s{sNO}\nv_mov_b32 v33, s{sNO+1}')
    p(f'buffer_store_dwordx2 v[32:33], v34, s[{S_DB}:{S_DB+3}], 0 offen sc1')
    p.cond(False)
    p('L_no_nonce:')
    if cfg.late0 == 0: dma_tile(0)
    if not cfg.late1: dma_tile(1)
    if cfg.cpf:
        p(f's_getpc_b64 s[{S_K}:{S_K+1}]\nL_pc:\ns_mov_b32 s{S_K+2}, K_last-L_pc\ns_mov_b32 s{S_K+3}, 0x20000')
        p(f's_lshr_b32 s{sT}, s2, 3\ns_lshl_b32 s{sT}, s{sT}, 12\nv_lshlrev_b32 v140, 4, v0')
        p(f'buffer_load_dwordx4 v[140:143], v140, s[{S_K}:{S_K+3}], s{sT} offen')
    p(f's_lshl_b32 s{sT}, s{sRB}, 4\ns_lshl_b32 s{sT+1}, s{sW}, 2\ns_add_u32 s{sT}, s{sT}, s{sT+1}\ns_mul_i32 s{sT}, s{sT}, {XST}')
    p(f'v_lshlrev_b32 v{vT}, 4, v1\nv_add_u32 v{vAct}, s{sT}, v{vT}')
    for b in range(1, 4): p(f'v_add_u32 v{vAct+b}, {b*XST:#x}, v{vAct}')
    t = 32
    p(f'v_lshrrev_b32 v{t}, 5, v1\nv_lshlrev_b32 v{t}, 4, v{t}\nv_bfe_u32 v{t+1}, v1, 4, 1\nv_lshlrev_b32 v{t+1}, 2, v{t+1}\nv_bfe_u32 v{t+2}, v1, 2, 2')
    p(f'v_add3_u32 v{t}, v{t}, v{t+1}, v{t+2}\nv_mul_u32_u24 v{t}, 224, v{t}\nv_and_b32 v{t+3}, 3, v1\nv_lshlrev_b32 v{t+3}, 3, v{t+3}\nv_add_u32 v{vTr}, v{t}, v{t+3}')
    p(f'v_or_b32 v{t+1}, v{t+1}, v{t+2}')
    p(f'v_lshrrev_b32 v{t}, 4, v1\nv_lshlrev_b32 v{t}, 3, v{t}\nv_add_u32 v{t}, v{t}, v{t+2}\nv_lshlrev_b32 v{t}, 8, v{t}')
    p(f'v_add_u32 v{t}, 14336, v{t}\nv_add_u32 v{t}, v{t}, v{t+3}')
    for tt in range(8):
        p(f'v_xor_b32 v{t+2}, {tt}, v{t+1}\nv_lshl_add_u32 v{vTq+tt}, v{t+2}, 5, v{t}')
    vP1, vP2, vPD = 136, 137, 138
    if cfg.trk:
        p(f'v_lshrrev_b32 v32, 3, v1\nv_and_b32 v33, 7, v1\ns_lshl_b32 s{sT}, s{sRB}, 3\ns_add_u32 s{sT}, s{sT}, {64*cfg.trk}\nv_add_u32 v32, s{sT}, v32\nv_lshlrev_b32 v35, 6, v33')
        p(f's_mul_i32 s{sT+1}, s{sCB}, 224\ns_add_u32 s{sT+2}, s{sT+1}, {224+127}\ns_and_b32 s{sT+1}, s{sT+1}, -128\ns_and_b32 s{sT+2}, s{sT+2}, -128\ns_sub_u32 s{sT+2}, s{sT+2}, s{sT+1}')
        p(f'v_mul_u32_u24 v34, 7168, v32\nv_add3_u32 v{vP1}, v34, v35, s{sT+1}')
        p(f'v_lshlrev_b32 v34, 13, v32\ns_lshl_b32 s{sT+1}, s{sCB}, 8\nv_add3_u32 v{vP2}, v34, v35, s{sT+1}')
        p(f'v_cmp_gt_u32 vcc, s{sT+2}, v35\ns_and_b32 s{sT}, s{sW}, 1\ns_cmp_eq_u32 s{sT}, 0\ns_cselect_b64 vcc, vcc, 0\nv_mov_b32 v34, 0xf0000000\ns_nop 1\nv_cndmask_b32 v{vP1}, v34, v{vP1}, vcc')
        p(f'v_cmp_gt_u32 vcc, 4, v33\ns_cmp_eq_u32 s{sW}, 1\ns_cselect_b64 vcc, vcc, 0\ns_nop 1\nv_cndmask_b32 v{vP2}, v34, v{vP2}, vcc')
        if cfg.trk0 >= 0:
            p(f'v_subrev_u32 v34, {64*cfg.trk*7168}, v{vP1}\nv_subrev_u32 v35, {64*cfg.trk*8192}, v{vP2}')
            for tl in range(cfg.trk0, cfg.trk + 2):
                p(f's_mov_b32 s{sT}, {tl*KW}\ns_mov_b32 s{sT+1}, {tl*KQ}')
                p(f'buffer_load_dword v{vPD}, v34, s[{S_W}:{S_W+3}], s{sT} offen ;pf\nbuffer_load_dword v{vPD}, v35, s[{S_Q}:{S_Q+3}], s{sT+1} offen ;pf')
    for i in range(256): p(f'v_accvgpr_write_b32 a{i}, 0')
    if cfg.dbg & 4: p('s_waitcnt vmcnt(%d)' % (0 if cfg.late0 else 11 if cfg.late1 else 22)); ts.stamp(p)
    X = 64; sM = sT + 4
    p(f's_mov_b32 s{sM}, 0xffff0000')
    for i in range(16): p(f'v_lshlrev_b32 v{X+2*i}, 16, v{vLD+i}\nv_and_b32 v{X+2*i+1}, s{sM}, v{vLD+i}')
    if cfg.late0 == 1: dma_tile(0)
    def red(v, tt, off):
        p(f's_nop 1\nv_add_f32_dpp v{v}, v{v}, v{v} row_ror:8 row_mask:0xf bank_mask:0xf')
        p(f'v_mov_b32 v{tt}, v{v}\ns_nop 1\nv_permlane16_swap_b32 v{v}, v{tt}\ns_nop 1\nv_add_f32 v{v}, v{v}, v{tt}')
        p(f'v_mov_b32 v{tt}, v{v}\ns_nop 1\nv_permlane32_swap_b32 v{v}, v{tt}\ns_nop 1\nv_add_f32 v{v}, v{v}, v{tt}')
        p(f'ds_write_b32 v{vLS+1}, v{v} offset:{off}\ns_waitcnt lgkmcnt(0)\ns_barrier')
        p(f'ds_read_b128 v[40:43], v{vLS} offset:{off}')
        p(f'v_add_f32 v40, v40, v41\nv_add_f32 v42, v42, v43\nv_add_f32 v{v}, v40, v42\nv_mul_f32 v{v}, {f2u(1/1024):#x}, v{v}')
    for a in range(0, 4, 2): p(f'v_pk_add_f32 v[{32+a}:{33+a}], v[{X+a}:{X+a+1}], v[{X+4+a}:{X+5+a}]')
    for i in range(8, 32, 2): p(f'v_pk_add_f32 v[{32+i%4}:{33+i%4}], v[{32+i%4}:{33+i%4}], v[{X+i}:{X+i+1}]')
    p('v_pk_add_f32 v[32:33], v[32:33], v[34:35]\nv_add_f32 v32, v32, v33')
    red(32, 33, 0)
    for i in range(32): p(f'v_sub_f32 v{X+32+i}, v{X+i}, v32')
    for a in range(0, 4, 2): p(f'v_pk_mul_f32 v[{36+a}:{37+a}], v[{X+32+a}:{X+33+a}], v[{X+32+a}:{X+33+a}]')
    for i in range(4, 32, 2): p(f'v_pk_fma_f32 v[{36+i%4}:{37+i%4}], v[{X+32+i}:{X+33+i}], v[{X+32+i}:{X+33+i}], v[{36+i%4}:{37+i%4}]')
    p('v_pk_add_f32 v[36:37], v[36:37], v[38:39]\nv_add_f32 v36, v36, v37')
    p(f'v_mov_b32 v44, 0\nbuffer_load_dwordx2 v[2:3], v44, s[{S_DB}:{S_DB+3}], 0 offen sc1')
    red(36, 37, 128)
    def rnd(v): p(f'v_cvt_pk_bf16_f32 v{v}, v{v}, v{v}\nv_lshlrev_b32 v{v}, 16, v{v}')
    rnd(32); rnd(36)
    p(f'v_add_f32 v36, {f2u(1e-5):#x}, v36'); rnd(36)
    p('v_sqrt_f32 v36, v36\ns_nop 0'); rnd(36)
    p('v_rcp_f32 v36, v36\nv_mov_b32 v33, v32\nv_mov_b32 v37, v36')
    for i in range(16):
        a, b = X+2*i, X+2*i+1
        p(f'v_pk_add_f32 v[{a}:{b}], v[{a}:{b}], v[32:33] neg_lo:[0,1] neg_hi:[0,1]\nv_cvt_pk_bf16_f32 v{a}, v{a}, v{b}')
        p(f'v_and_b32 v{b}, s{sM}, v{a}\nv_lshlrev_b32 v{a}, 16, v{a}')
        p(f'v_pk_mul_f32 v[{a}:{b}], v[{a}:{b}], v[36:37]\nv_cvt_pk_bf16_f32 v{vLD+i}, v{a}, v{b}')
        if i % 4 == 3:
            r = vLD + i - 3
            p(f'buffer_store_dwordx4 v[{r}:{r+3}], v{vLO}, s[{S_XN}:{S_XN+3}], 0 offen offset:{1024*(i//4)} sc1')
    if cfg.dbg & 4: ts.stamp(p)
    if cfg.late0 == 2:
        p(f's_cmp_eq_u32 s{sW}, 1\ns_cbranch_scc1 L_t0_w1')
        p(f's_cmp_eq_u32 s{sW}, 0\ns_cbranch_scc0 L_t0_own')
        p.cond(True)
        p(f's_add_u32 s{sT+1}, s{sKW}, {32*7168}\ns_add_u32 s{sT+2}, s{sKQ}, {16*8192}')
        for d in range(11):
            if d in (0, 4): p(f's_mov_b32 m0, {HS + 1024*d}\ns_nop 0')
            if d == 7: p(f's_mov_b32 m0, {14336 + 4096}\ns_nop 0')
            t_ = dma(d, 0, 0)[0].replace(f's{sKW} offen', f's{sT+1} offen').replace(f's{sKQ} offen', f's{sT+2} offen')
            p(t_)
        p.cond(False)
        p('L_t0_own:')
        dma_tile(0)
        for i in range(160, 208): p(f'v_mov_b32 v{i}, 0')
        p(f's_cmp_eq_u32 s{sW}, 0\ns_cbranch_scc0 L_t0_w23')
        p.cond(True)
        p('s_waitcnt vmcnt(22)\ns_branch L_t0_done')
        p('L_t0_w1:')
        for x in adv_w() + adv_q(): p(x)
        for i in range(160, 208): p(f'v_mov_b32 v{i}, 0')
        p('s_waitcnt vmcnt(0)\ns_branch L_t0_done')
        p.cond(False)
        p('L_t0_w23:\ns_waitcnt vmcnt(11)\nL_t0_done:')
    elif cfg.pf3:
        p(f's_cmp_eq_u32 s{sW}, 1\ns_cbranch_scc1 L_p3_w1')
        p(f's_add_u32 s{sT}, s{sRB}, {cfg.pf3}\ns_mul_i32 s{sT+1}, s{sT}, {KW}\ns_mul_i32 s{sT+2}, s{sT}, {KQ}\ns_mul_i32 s{sT}, s{sW}, 4096\ns_add_u32 m0, s{sT}, {4*HS}\ns_nop 0')
        for d in range(11):
            p(dma(d, 0, 0)[0].replace(f's{sKW} offen', f's{sT+1} offen').replace(f's{sKQ} offen', f's{sT+2} offen'))
        for i in range(160, 208): p(f'v_mov_b32 v{i}, 0')
        p('s_waitcnt vmcnt(11)')
        p.cond(True)
        p('s_branch L_p3_done\nL_p3_w1:')
        for i in range(160, 208): p(f'v_mov_b32 v{i}, 0')
        p('s_waitcnt vmcnt(0)')
        p.cond(False)
        p('L_p3_done:')
    else:
        for i in range(160, 208): p(f'v_mov_b32 v{i}, 0')
        p('s_waitcnt vmcnt(0)')
    sXC, sREM = 75, 74
    p(f's_getreg_b32 s{sXC}, hwreg(HW_REG_XCC_ID, 0, 4)\ns_lshl_b32 s{sXC}, s{sXC}, 1')
    if cfg.fremote: p(f's_lshr_b32 s{sXC}, s2, 4\ns_and_b32 s{sXC}, s{sXC}, 0x1e')
    p(f's_and_b32 s{sT}, s{sCB}, 24\ns_lshl_b32 s{sT+1}, s{sRB}, 5\ns_add_u32 s{sT}, s{sT}, s{sT+1}\ns_lshl_b32 s{sT}, s{sT}, 7')
    p(f'v_and_b32 v45, 7, v1\nv_lshl_add_u32 v45, v45, 7, s{sT}')
    vHF = 27
    p(f's_lshl_b32 s{sT}, s{sRB}, 12\ns_lshl_b32 s{sT+1}, s{sCB}, 7\ns_add_u32 s{sT+1}, s{sT}, s{sT+1}\nv_mov_b32 v32, s{sT+1}')
    p(f'v_and_b32 v34, 31, v1\nv_lshl_add_u32 v34, v34, 7, s{sT}')
    p('s_barrier')
    ts.stamp(p)
    def poll(lbl, vaddr, done, mask=False):
        p(f'{lbl}:')
        p(f'buffer_load_dwordx2 v[36:37], v{vaddr}, s[{S_FL}:{S_FL+3}], 0 offen sc1\ns_waitcnt vmcnt(0)')
        if mask: p('v_and_b32 v36, 0xffffffe1, v36')
        p(f'v_cmp_ne_u64 vcc, s[{sNO}:{sNO+1}], v[36:37]\ns_nop 1\ns_cbranch_vccz {done}\ns_sleep {cfg.slp}\ns_branch {lbl}')
    p(f's_cmp_eq_u32 s{sW}, 1\ns_cbranch_scc0 L_xn_got')
    p.cond(True)
    p('L_no_retry:')
    p(f'v_readfirstlane_b32 s{sNO}, v2\nv_readfirstlane_b32 s{sNO+1}, v3\ns_nop 0\ns_cmp_lg_u32 s{sNO}, 0\ns_cbranch_scc1 L_no_ok')
    p(f'buffer_load_dwordx2 v[2:3], v44, s[{S_DB}:{S_DB+3}], 0 offen sc1\ns_waitcnt vmcnt(0)\ns_branch L_no_retry')
    p('L_no_ok:')
    p(f'v_or_b32 v38, s{sXC}, v2\nv_mov_b32 v39, v3\nbuffer_store_dwordx2 v[38:39], v32, s[{S_FL}:{S_FL+3}], 0 offen sc1')
    poll('L_xn_poll', 34, 'L_xn_got', True)
    p.cond(False)
    p('L_xn_got:\ns_barrier')
    ts.stamp(p)
    def act(sub, b):
        r = vB + 16*(sub % RB) + 4*b
        return f'buffer_load_dwordx4 v[{r}:{r+3}], v{vAct+b}, s[{S_XN}:{S_XN+3}], s{sKA} offen offset:{1024*(sub % 2)}{SC}'
    NG = 22
    def vm_sched(step, g2):
        s, t = divmod(g2, NG); sub = 2*step + s
        d = None; a = None
        if cfg.d0 <= g2 < cfg.d0 + 11*cfg.dstr and (g2 - cfg.d0) % cfg.dstr == 0: d = (g2 - cfg.d0)//cfg.dstr
        if cfg.a0 <= t < cfg.a0 + 4*cfg.astr and (t - cfg.a0) % cfg.astr == 0: a = (sub + cfg.ad, (t - cfg.a0)//cfg.astr)
        return d, a
    for sub in range(cfg.ad):
        for b in range(4): p(act(sub, b))
        if sub % 2 == 1:
            for x in adv_a(): p(x)
    if cfg.late1: dma_tile(1)
    p(f'buffer_load_dwordx2 v[2:3], v44, s[{S_DB}:{S_DB+3}], 0 offen sc1')
    if cfg.loc: p(f'buffer_load_dword v28, v45, s[{S_FL}:{S_FL+3}], 0 offen sc1')
    if cfg.pf4:
        sh = 0 if cfg.pf4n == 8 else 1
        p(f's_lshr_b32 s{sT}, s{sRB}, {sh}\ns_add_u32 s{sT}, s{sT}, {cfg.pf4}\ns_mul_i32 s{sT+1}, s{sT}, {KW}\ns_mul_i32 s{sT+2}, s{sT}, {KQ}\ns_mul_i32 s{sT}, s{sW}, 4096\ns_add_u32 m0, s{sT}, {6*HS}\ns_nop 0')
        for d in range(11):
            p(dma(d, 0, 0)[0].replace(f's{sKW} offen', f's{sT+1} offen').replace(f's{sKQ} offen', f's{sT+2} offen'))
    S_CL, sCL = S_O, 85
    if cfg.sent:
        p(f's_and_b32 s{sT}, s2, 1\ns_lshl_b32 s{sT}, s{sT}, 2\ns_bfe_u32 s{sT+1}, s2, 0x20003\ns_add_u32 s{sT}, s{sT}, s{sT+1}\ns_lshl_b32 s{sT}, s{sT}, 3\ns_lshr_b32 s{sT+1}, s2, 5\ns_add_u32 s{sT}, s{sT}, s{sT+1}')
        p(f's_lshl_b32 s{sT}, s{sT}, 2\ns_bfe_u32 s{sT+1}, s2, 0x20001\ns_add_u32 s{sT}, s{sT}, s{sT+1}\ns_lshl_b32 s{sT}, s{sT}, 2\ns_add_u32 s{sT}, s{sT}, s{sW}\ns_mul_i32 s{sCL}, s{sT}, 12288')
        srd(p, S_CL, pWS, WS_P + 256*3*16384, 0)
        p(f's_add_u32 s{S_CL+2}, s{sCL}, 12288\nv_lshlrev_b32 v139, 4, v1')
        for i in range(4): p(f'v_mov_b32 v{132+i}, -1')
    srd(p, S_H, pWS, WS_H, 15 << 20)
    srd(p, S_K, pK, 0, 2 << 20)
    srd(p, S_V, pV, 0, 2 << 20)
    if cfg.kvp:
        p(f's_lshr_b32 s{sT}, s2, 3\ns_lshl_b32 s{sT}, s{sT}, 2\ns_add_u32 s{sT}, s{sT}, s{sW}\ns_lshl_b32 s{sT}, s{sT}, 10')
        p(f's_lshr_b32 s{sT+1}, s{sCB}, 3\ns_lshl_b32 s{sT+1}, s{sT+1}, 19\ns_add_u32 s{sT}, s{sT}, s{sT+1}\ns_add_u32 s{sT}, s{sT}, {1536*256}')
        p(f'v_and_b32 v29, 15, v1\nv_lshlrev_b32 v29, 6, v29')
        p(f'buffer_load_dword v{vPD}, v29, s[{S_K}:{S_K+3}], s{sT} offen ;pf\nbuffer_load_dword v{vPD}, v29, s[{S_V}:{S_V+3}], s{sT} offen ;pf')
    for i in range(208, 256): p(f'v_mov_b32 v{i}, 0')
    if cfg.late0 == 2: p.need(('W', NHS, 1, 0)); p('s_barrier')
    P = cfg.P
    def trr(G, tile0, stride):
        step, g2 = divmod(G, 2*NG); s, t = divmod(g2, NG)
        r = vA + 4*(G % RA)
        tag = ('W', NHS, 2*(tile0 + step) + 1, 2*stride) if s == 1 else None
        if t < 14: off = (t // 7)*7168 + (t % 7)*32; a = vTr; hh = 8*224
        else: off = 0; a = vTq + t - 14; hh = 1024
        return [(f'ds_read_b64_tr_b16 v[{r}:{r+1}], v{a} offset:{off}', tag),
                (f'ds_read_b64_tr_b16 v[{r+2}:{r+3}], v{a} offset:{off + hh}', tag)]
    for G in range(P):
        for f in trr(G, 0, 0): emit(p, f)
    UN = 2
    p(f's_mov_b32 s{sDL}, 0\ns_mov_b32 s{sCNT}, {NT//UN}')
    p(f's_waitcnt vmcnt({4*(cfg.ad-1) + (11 if cfg.late1 else 0) + (11 if cfg.pf4 else 0) + (2 if cfg.kvp else 0) + 1 + cfg.loc})')
    def code_srd(q, lbl):
        return [f's_getpc_b64 s[{q}:{q+1}]\n{lbl}:\ns_sub_u32 s{q}, s{q}, {lbl}-L_pc\ns_subb_u32 s{q+1}, s{q+1}, 0', f's_mov_b32 s{q+2}, K_last-L_pc', f's_mov_b32 s{q+3}, 0x20000']
    def code_pf(q, m0v):
        return [f's_add_u32 m0, s{sCP}, {m0v}', m0gap, f'buffer_load_dwordx4 v0, s[{q}:{q+3}], 0 offen lds']
    sCP = 84
    if cfg.cpf2:
        for x in code_srd(S_DB, 'L_pc2'): p(x)
        p(f's_lshr_b32 s{sT}, s2, 3\ns_lshl_b32 s{sT}, s{sT}, 12\nv_lshlrev_b32 v0, 4, v0\nv_add_u32 v0, s{sT}, v0\ns_lshl_b32 s{sCP}, s{sW}, 10')
    ts.stamp(p)
    p.loop_begin('G_loop', NT//UN)
    mf = []; hi = {}; lo = {}
    def H(i, x): hi.setdefault(i, []).append(x)
    def L(i, x): lo.setdefault(i, []).append(x)
    NGB = 2*NG*UN
    for G in range(NGB):
        step, g2 = divmod(G, 2*NG); s, t = divmod(g2, NG)
        sub = 2*step + s
        for b in range(4):
            ra = vA + 4*(G % RA); rb = vB + 16*(sub % RB) + 4*b
            mf.append(f'v_mfma_f32_16x16x32_bf16 {acc(t,b)}, v[{ra}:{ra+3}], v[{rb}:{rb+3}], {acc(t,b)}')
        i0 = 4*G; Gn = G + P; tn = Gn % NG
        if Gn % (2*NG) == 0:
            stepn = Gn // (2*NG)
            H(i0-1, lambda p, stepn=stepn: (p.need(('W', NHS, 2*stepn + 1, 2*UN)), p('s_barrier')))
        if tn == 0: H(i0-2, f'v_add_u32 v{vTr}, s{sDL}, v{vTr}')
        r0, r1 = trr(Gn % NGB, (Gn // NGB)*UN, UN)
        H(i0, r0); H(i0+1, r1)
        if 1 <= tn <= 8: L(i0, f'v_add_u32 v{vTq+tn-1}, s{sDL}, v{vTq+tn-1}')
        if tn == 9:
            for x in adv_rd(): L(i0, x)
        pc, a = vm_sched(step, g2)
        if a is not None:
            L(i0, act(*a))
            if a[1] == 3 and a[0] % 2 == 1:
                for x in adv_a(): L(i0, x)
        if cfg.trk and pc == 0:
            L(i0, f'buffer_load_dword v{vPD}, v{vP1}, s[{S_W}:{S_W+3}], s{sKW} offen ;pf')
            L(i0, f'buffer_load_dword v{vPD}, v{vP2}, s[{S_Q}:{S_Q+3}], s{sKQ} offen ;pf')
        if pc is not None:
            for x in m0set(pc): L(i0, x)
            if m0set(pc): L(i0, m0gap)
            L(i0, dma(pc, step + 2, UN))
            if pc == 6:
                for x in adv_w(): L(i0, x)
            if pc == 10:
                for x in adv_q(): L(i0, x)
    if cfg.sent:
        for k in range(2):
            L(4*(2*NG*k + 30) + 2, f'buffer_store_dwordx4 v[132:135], v139, s[{S_CL}:{S_CL+3}], s{sCL} offen sc1'); L(4*(2*NG*k + 30) + 2, f's_add_u32 s{sCL}, s{sCL}, 1024')
    if cfg.cpf2:
        for x in code_pf(S_DB, LDS_SCR + 1024): L(4*(cfg.d0 + 10*cfg.dstr) + 1, x)
    H(len(mf)-3, f's_sub_u32 s{sCNT}, s{sCNT}, 1'); H(len(mf)-2, f's_cmp_lg_u32 s{sCNT}, 0')
    H(len(mf)-1, 's_cbranch_scc1 G_loop')
    fill = spread(hi, lo, len(mf), cfg.cap, 16, cost=lambda i: 1 if i % 4 == 3 else 0)
    fix_m0(fill, len(mf)); chk_tail(fill, len(mf))
    interleave(p, mf, fill)
    p.loop_end()
    p('s_waitcnt vmcnt(0) lgkmcnt(0)\ns_barrier')
    ts.stamp(p, 5)

    p(f'v_readfirstlane_b32 s{sNO}, v2\nv_readfirstlane_b32 s{sNO+1}, v3')
    if cfg.loc: p(f'v_and_b32 v28, 0x1e, v28\nv_cmp_ne_u32 vcc, s{sXC}, v28\ns_nop 1\ns_cmp_lg_u64 vcc, 0\ns_cselect_b32 s{sREM}, 1, 0')
    srd(p, S_O, pWS, WS_O, 17 << 20)
    vDK, vDV, vK, vV = 8, 12, 13, 21
    sKV, sMK, sAD, sPF = 39, 40, 43, 44
    t = 128
    p(f'v_lshrrev_b32 v{t}, 4, v1\nv_and_b32 v{t+1}, 15, v1')
    p(f's_lshl_b32 s{sMK}, s{sW}, 12')
    p(f'v_lshlrev_b32 v{t+2}, 8, v{t}\nv_add_u32 v{t+2}, s{sMK}, v{t+2}')
    for j in range(4):
        p(f'v_add_u32 v{t+3}, {4*j}, v{t}\nv_xor_b32 v{t+3}, v{t+3}, v{t+1}\nv_lshl_add_u32 v{vDK+j}, v{t+3}, 4, v{t+2}')
    p(f'v_lshlrev_b32 v{t+3}, 2, v{t}\nv_xor_b32 v{t+3}, v{t+3}, v{t+1}\nv_lshl_add_u32 v{vDV}, v{t+3}, 4, v{t+2}')
    p(f's_lshr_b32 s{sKV}, s{sCB}, 3\ns_lshl_b32 s{sKV}, s{sKV}, 19\ns_add_u32 s{sKV}, s{sKV}, {1536*256}')
    def kdma(j, soff, tag): return (f'buffer_load_dwordx4 v{vDK+j}, s[{S_K}:{S_K+3}], s{soff} offen offset:{1024*j} lds', tag)
    def vdma(j, soff, tag): return (f'buffer_load_dwordx4 v{vDV}, s[{S_V}:{S_V+3}], s{soff} offen offset:{1024*j} lds', tag)
    kvq = []
    for (kind, tl) in (('K', 0), ('K', 1), ('V', 0), ('K', 2), ('V', 1)):
        g = [f's_add_u32 s{sT+5}, s{sKV}, {tl*16384}', f's_add_u32 m0, s{sMK}, {tl*16384 + (65536 if kind == "V" else 0)}', 's_nop 0']
        for j in range(4):
            kvq.append(g + [(kdma if kind == 'K' else vdma)(j, sT+5, (kind, 4, tl, 0))]); g = []
    k1 = -2*math.sqrt(2/math.pi)*math.log2(math.e); k2 = k1*0.044715
    vC = 28
    p(f'v_mov_b32 v{vC}, {f2u(k1):#x}\nv_mov_b32 v{vC+1}, {f2u(k1):#x}\nv_mov_b32 v{vC+2}, {f2u(k2):#x}\nv_mov_b32 v{vC+3}, {f2u(k2):#x}')
    p(f's_lshl_b32 s{sT+2}, s{sRB}, 4\ns_lshl_b32 s{sT+3}, s{sW}, 2\ns_add_u32 s{sT+2}, s{sT+2}, s{sT+3}\ns_mul_i32 s{sT+2}, s{sT+2}, {HST}')
    p(f's_mul_i32 s{sT+3}, s{sCB}, 7\ns_add_u32 s{sT+3}, s{sT+3}, 1\ns_lshr_b32 s{sT+3}, s{sT+3}, 1\ns_lshl_b32 s{sT+3}, s{sT+3}, 10')
    p(f's_add_u32 s{sT+2}, s{sT+2}, s{sT+3}')
    p(f'v_lshlrev_b32 v{t}, 4, v1\nv_add_u32 v{vAct}, s{sT+2}, v{t}')
    for b in range(1, 4): p(f'v_add_u32 v{vAct+b}, {b*HST:#x}, v{vAct}')
    p(f's_and_b32 s{sT+3}, s{sCB}, 1\ns_cmp_eq_u32 s{sT+3}, 0\ns_mov_b32 s{sT+4}, 3072\ns_cselect_b32 s{sT+4}, s{sT+4}, -1016')
    vHs = 132
    for b in range(4): p(f'v_add_u32 v{vHs+b}, s{sT+4}, v{vAct+b}')
    def gelu_tiles(tiles):
        n = len(tiles)
        Xs = [32 + 12*i for i in range(n)]
        pk = lambda r: f'v[{r}:{r+1}]'
        for (t, b, d), X in zip(tiles, Xs):
            for r in range(4): p(f'v_accvgpr_read_b32 v{X+r}, {accr(t,b,r)}')
        for X in Xs:
            for r in (0, 2): p(f'v_pk_mul_f32 {pk(X+8+r)}, {pk(X+r)}, {pk(X+r)}')
        for X in Xs:
            for r in (0, 2): p(f'v_pk_fma_f32 {pk(X+8+r)}, {pk(X+8+r)}, {pk(vC+2)}, {pk(vC)}')
        for X in Xs:
            for r in (0, 2): p(f'v_pk_mul_f32 {pk(X+8+r)}, {pk(X+8+r)}, {pk(X+r)}')
        for (t, b, d), X in zip(tiles, Xs):
            for r in range(4): p(f'v_exp_f32 v{X+8+r}, v{X+8+r}')
            for r in range(4): p(f'v_accvgpr_read_b32 v{X+4+r}, {accr(t+7,b,r)}')
        for X in Xs:
            for r in (0, 2): p(f'v_pk_add_f32 {pk(X+8+r)}, {pk(X+8+r)}, 1.0 op_sel_hi:[1,0]')
        for X in Xs:
            for r in range(4): p(f'v_rcp_f32 v{X+8+r}, v{X+8+r}')
            for r in (0, 2): p(f'v_pk_mul_f32 {pk(X+4+r)}, {pk(X+4+r)}, {pk(X+r)}')
        for X in Xs:
            for r in (0, 2): p(f'v_pk_mul_f32 {pk(X+4+r)}, {pk(X+4+r)}, {pk(X+8+r)}')
        for (t, b, d), X in zip(tiles, Xs):
            p(f'v_cvt_pk_bf16_f32 v{d}, v{X+4}, v{X+5}\nv_cvt_pk_bf16_f32 v{d+1}, v{X+6}, v{X+7}')
    for par in range(2):
        if par == 0: p('s_cbranch_scc0 B_epi_odd')
        else: p.cond(True); p('B_epi_odd:')
        n = 0; kq = list(kvq)
        for b in range(4):
            for pr in range(3):
                d = 64 + 4*(n % 8); n += 1
                for _ in range(2):
                    if kq:
                        for x in kq.pop(0): emit(p, x)
                gelu_tiles([(2*pr + par, b, d), (2*pr + 1 + par, b, d + 2)])
                p(f'buffer_store_dwordx4 v[{d}:{d+3}], v{vAct+b}, s[{S_H}:{S_H+3}], 0 offen offset:{1024*pr}{LS}', ('Hst', 1, 0, 0))
        for b in range(0, 4, 2):
            d = 64 + 4*(n % 8); n += 1
            gelu_tiles([(6 if par == 0 else 0, b, d), (6 if par == 0 else 0, b+1, d+2)])
            p(f'buffer_store_dwordx2 v[{d}:{d+1}], v{vHs+b}, s[{S_H}:{S_H+3}], 0 offen{LS}', ('Hst', 1, 0, 0))
            p(f'buffer_store_dwordx2 v[{d+2}:{d+3}], v{vHs+b+1}, s[{S_H}:{S_H+3}], 0 offen{LS}', ('Hst', 1, 0, 0))
        if par == 0: p('s_branch B_epi_done')
    p.cond(False)
    p('B_epi_done:')
    ts.stamp(p, 5)
    vQ = 64
    qs = math.log2(math.e)/math.sqrt(128)
    def qconv(qt, s):
        d = vQ + (qt*8+s)*4
        for half in range(2):
            b = 2*qt + half; x = 32 + 4*half
            src = accr(14+s, b, 0)
            if src[0] == 'a':
                for r in range(4): p(f'v_accvgpr_read_b32 v{x+r}, {accr(14+s, b, r)}')
                s0 = x
            else: s0 = int(src[1:])
            for r in (0, 2): p(f'v_pk_mul_f32 v[{x+r}:{x+r+1}], v[{s0+r}:{s0+r+1}], v[{vC}:{vC+1}]')
            p(f'v_cvt_pk_bf16_f32 v{d+2*half}, v{x}, v{x+1}\nv_cvt_pk_bf16_f32 v{d+2*half+1}, v{x+2}, v{x+3}')
    def qswap(qt, s):
        d = vQ + (qt*8+s)*4
        p(f'v_permlane16_swap_b32 v{d}, v{d+2}\nv_permlane16_swap_b32 v{d+1}, v{d+3}')
    t = 32
    p(f'v_and_b32 v{t}, 31, v1\nv_lshrrev_b32 v{t+1}, 5, v1\nv_and_b32 v{t+2}, 15, v1\nv_xor_b32 v{t+1}, v{t+1}, v{t+2}\nv_lshlrev_b32 v{t}, 8, v{t}')
    for s in range(8):
        p(f'v_xor_b32 v{t+2}, {2*s}, v{t+1}\nv_lshl_add_u32 v{vK+s}, v{t+2}, 4, v{t}')
    p(f'v_mov_b32 v{vC}, {f2u(qs):#x}\nv_mov_b32 v{vC+1}, {f2u(qs):#x}')
    vS = [128, 160]; vP = [192, 208]; vN = 224; vL = 28
    aF = 192
    def Sreg(n, qt): return vS[n % 2] + 16*qt
    def Preg(n, qt, ks): return vP[n % 2] + 8*qt + 4*ks
    def kread(n, s, tag):
        r = aF + 4*s
        return [(f'ds_read_b128 a[{r}:{r+3}], v{vK+s} offset:{(n % 8)*8192}', ('K', 4, n//2, 0))]
    def vread(n, f, tag, base=None, off0=None):
        ks, dt = divmod(f, 4); r = aF + 32 + 4*f
        off = (32*(n % 8) + 16*ks)*256 if off0 is None else off0 + 16*ks*256
        b = vV if base is None else base
        return [(f'ds_read_b64_tr_b16 a[{r}:{r+1}], v{b+dt} offset:{off}', tag),
                (f'ds_read_b64_tr_b16 a[{r+2}:{r+3}], v{b+dt} offset:{off+2048}', tag)]
    def qk(n, s, qt, c0):
        S = Sreg(n, qt); c = f'v[{S}:{S+15}]' if s else c0(qt)
        return f'v_mfma_f32_32x32x16_bf16 v[{S}:{S+15}], a[{aF+4*s}:{aF+4*s+3}], v[{vQ+(qt*8+s)*4}:{vQ+(qt*8+s)*4+3}], {c}'
    def pv(n, f, qt, first=False):
        ks, dt = divmod(f, 4); o = (dt*2+qt)*16; P_ = Preg(n, qt, ks)
        c = '0' if first and ks == 0 else f'a[{o}:{o+15}]'
        return f'v_mfma_f32_32x32x16_bf16 a[{o}:{o+15}], a[{aF+32+4*f}:{aF+32+4*f+3}], v[{P_}:{P_+3}], {c}'
    negm = lambda qt: f'v[{vN+16*qt}:{vN+16*qt+15}]'
    zero = lambda qt: '0'
    def softmax_ops(n):
        sl = [[] for _ in range(33)]
        for e in range(32):
            qt, i = divmod(e, 16); S = Sreg(n, qt); Pr = Preg(n, qt, i>>3)+((i&7)>>1)
            sl[e].insert(0, f'v_exp_f32 v{S+i}, v{S+i}')
            if cfg.sum == 'add': sl[e+1].append(f'v_add_f32 v{vL+2*qt+(i&1)}, v{vL+2*qt+(i&1)}, v{S+i}')
            if i & 1:
                if e == 31 and cfg.sum != 'add': sl[e+1].append('s_nop 0')
                sl[e+1].append(f'v_cvt_pk_bf16_f32 v{Pr}, v{S+i-1}, v{S+i}')
                k = min(32, e+2)
                if cfg.sum == 'pk': sl[k].append(f'v_pk_add_f32 v[{vL+2*qt}:{vL+2*qt+1}], v[{vL+2*qt}:{vL+2*qt+1}], v[{S+i-1}:{S+i}]')
                if cfg.sum == 'dot': sl[k].append(f'v_dot2_f32_bf16 v{vL+2*qt+((i>>1)&1)}, v{Pr}, v39, v{vL+2*qt+((i>>1)&1)}')
        return sl
    if cfg.sum == 'dot': p('v_mov_b32 v39, 0x3f803f80')
    p.need(('K', 4, 0, 0)); p('s_barrier')
    for s in range(8): emit(p, kread(0, s, None)[0])
    ts.stamp(p, 5)
    qconv(0, 0); qconv(1, 0)
    for s in range(8):
        if s < 7: qconv(0, s+1)
        qswap(0, s); qswap(1, s)
        if s < 7: qconv(1, s+1)
        else: p('s_nop 1')
        for qt in range(2): p(qk(0, s, qt, zero))
        emit(p, kread(1, s, None)[0])
    t = 36
    p(f'v_lshrrev_b32 v{t}, 5, v1\nv_lshlrev_b32 v{t}, 2, v{t}\nv_bfe_u32 v{t+1}, v1, 2, 2\nv_add_u32 v{t}, v{t}, v{t+1}\nv_lshlrev_b32 v{t}, 8, v{t}')
    p(f'v_bfe_u32 v{t+2}, v1, 4, 1\nv_lshlrev_b32 v{t+2}, 5, v{t+2}\nv_and_b32 v{t+3}, 3, v1\nv_lshlrev_b32 v{t+3}, 3, v{t+3}\nv_add3_u32 v{t}, v{t}, v{t+2}, v{t+3}')
    p(f'v_add_u32 v{t}, 0x10000, v{t}')
    for dt in range(4):
        p(f'v_xor_b32 v{t+2}, {dt}, v{t+1}\nv_lshl_add_u32 v{vV+dt}, v{t+2}, 6, v{t}')
    for i in range(4): p(f'v_mov_b32 v{vL+i}, 0')
    def rowmax(n, first):
        for qt in range(2):
            S = Sreg(n, qt); m = 32 + 2*qt
            if first: p(f'v_max3_f32 v{m}, v{S}, v{S+1}, v{S+2}')
            else: p(f'v_max3_f32 v{m}, v{m}, v{S+1}, v{S+2}\nv_max_f32 v{m}, v{m}, v{S}')
            for i in range(3, 15, 2): p(f'v_max3_f32 v{m}, v{m}, v{S+i}, v{S+i+1}')
            p(f'v_max_f32 v{m}, v{m}, v{S+15}')
    def set_negm():
        p('v_mov_b32 v33, v32\nv_mov_b32 v35, v34\ns_nop 0\nv_permlane32_swap_b32 v32, v33\nv_permlane32_swap_b32 v34, v35\ns_nop 0')
        for qt in range(2):
            m = 32 + 2*qt
            p(f'v_max_f32 v{m}, v{m}, v{m+1}\nv_sub_f32 v{vN+16*qt}, 0, v{m}\nv_mov_b32 v{vN+16*qt+1}, v{vN+16*qt}')
            for i in range(2, 16, 2): p(f'v_pk_mul_f32 v[{vN+16*qt+i}:{vN+16*qt+i+1}], v[{vN+16*qt}:{vN+16*qt+1}], 1.0 op_sel_hi:[1,0]')
    ts.stamp(p, 4)
    rowmax(0, True); set_negm()
    for qt in range(2):
        S = Sreg(0, qt)
        for i in range(0, 16, 2): p(f'v_pk_add_f32 v[{S+i}:{S+i+1}], v[{S+i}:{S+i+1}], v[{vN+16*qt}:{vN+16*qt+1}]')
    ts.stamp(p, 4)
    S_WD, S_WO, S_AH, S_AO, S_X, S_OUT, S_P = 12, 8, 16, 20, 24, 28, 60
    sJ, sRC, sCC = 70, 71, 76
    kWD, kWO, kAH, kAO, cMW, cTG = 77, 75, 78, 42, 79, 49
    dD, dO, aH, aO, cTr, cA, cC = 40, 8, 48, 4, 52, 64, 128
    vFH = 60
    SLOT = 32768
    k_h = lambda pc: 4*pc
    k_o = lambda pc: 4*((pc & 1) | ((pc & 2) << 1) | ((pc & 4) >> 1))
    def x_dma_addr(dst, kmap):
        t = 36
        p(f's_lshl_b32 s{sT+2}, s{sW}, 16\ns_lshl_b32 s{sT+3}, s{sCC}, 8\ns_add_u32 s{sT+2}, s{sT+2}, s{sT+3}')
        p(f'v_lshrrev_b32 v{t}, 4, v1\nv_and_b32 v{t+1}, 15, v1\nv_lshlrev_b32 v{t+2}, 1, v{t}\nv_xor_b32 v{t+1}, v{t+1}, v{t+2}')
        p(f'v_lshlrev_b32 v{t}, 11, v{t}\nv_add_u32 v{t}, s{sT+2}, v{t}')
        for pc in range(8):
            p(f'v_xor_b32 v{t+2}, {8*(pc & 1)}, v{t+1}\nv_lshl_add_u32 v{t+2}, v{t+2}, 4, v{t}\nv_add_u32 v{dst+pc}, {(kmap(pc) << 11) - 1024*(pc % 4)}, v{t+2}')
    NS = ND + 8; kind = lambda sg: 'd' if sg < ND else 's'
    def cdma(pc, sg):
        D_, S_, K_ = (dD, S_WD, kWD) if kind(sg) == 'd' else (dO, S_WO, kWO)
        g = []
        if pc % 4 == 0: g += [f's_add_u32 m0, s{cMW}, {(sg % 4)*SLOT + 1024*pc}', m0gap]
        g.append((f'buffer_load_dwordx4 v{D_+pc}, s[{S_}:{S_+3}], s{K_} offen offset:{1024*(pc%4)} lds', ('C', 4, sg, 0)))
        if pc == 7: g.append(f's_add_u32 s{K_}, s{K_}, {128*2048}')
        return g
    def cact(sub, b):
        A_, S_, K_ = (aH, S_AH, kAH) if kind(sub // 4) == 'd' else (aO, S_AO, kAO)
        r = 128 + 16*(sub % 8) + 4*b
        g = [f'buffer_load_dwordx4 a[{r}:{r+3}], v{A_+b}, s[{S_}:{S_+3}], s{K_} offen offset:{1024*(sub % 4)}{SC}']
        if b == 3 and sub % 4 == 3: g.append(f's_add_u32 s{K_}, s{K_}, 4096')
        return g
    def flagchk(lbl, vaddr, vd, acq=False):
        l = [f'v_cmp_ne_u64 vcc, s[{sNO}:{sNO+1}], v[{vd}:{vd+1}]', 's_nop 0', 's_nop 0', f's_cbranch_vccz {lbl}_ok',
             f'{lbl}_spin: ;cond', f'buffer_load_dwordx2 v[{vd}:{vd+1}], v{vaddr}, s[{S_FL}:{S_FL+3}], 0 offen sc1 ;cond', 's_waitcnt vmcnt(0) ;cond',
             f'v_cmp_ne_u64 vcc, s[{sNO}:{sNO+1}], v[{vd}:{vd+1}] ;cond', 's_nop 1 ;cond', f's_cbranch_vccnz {lbl}_spin ;cond', f'{lbl}_ok:']
        if acq and cfg.loc:
            l += [f's_cmp_eq_u32 s{sREM}, 0', f's_cbranch_scc1 {lbl}_na', 'buffer_inv sc1 ;cond', 's_waitcnt vmcnt(0) ;cond', f'{lbl}_na:']
        return l
    def collect(fn):
        nonlocal p
        w = Prog(); q = p; p = w; fn(); p = q
        out = []
        for it in w.items:
            if it.op == 's_addc_u32': out[-1] = (out[-1][0] + '\n' + it.text, None)
            else: out.append((it.text, it.tag))
        return out
    PF = cfg.PF; vPF = 25; sDM = 55; sPF = 44
    pairs = []; sm = []; start = {}
    for n in range(17):
        st = len(pairs); start[n] = st
        if n <= 14:
            for s_ in range(8): pairs.append((qk(n+1, s_, 0, negm), qk(n+1, s_, 1, negm), kread(n+1, s_, None) if n else []))
        if n >= 1:
            for f in range(8): pairs.append((pv(n-1, f, 0, n == 1), pv(n-1, f, 1, n == 1), vread(n-1, f, ('V', 4, (n-1)//2, 0))))
        if n <= 15: sm.append((st, len(pairs), softmax_ops(n)))
    mf = []; hi = {}; lo = {}
    for a_, b_, _ in pairs: mf += [a_, b_]
    n_ = len(mf)
    bargap = {}
    for j in range(8):
        g = 2*(start[2*j+1] - PF) - 1; bargap[j] = g
        def bar_(p, j=j):
            if j < 7: p.need(('K', 4, j+1, 0))
            p.need(('V', 4, j, 0))
            if j == cfg.hbar: p.need(('Hst', 1, 0, 0))
            p('s_barrier')
        H(g, bar_)
    for i in range(len(pairs) - PF):
        for k, r in enumerate(pairs[i + PF][2]): H(2*i + k, r)
    for (st, en, sl) in sm:
        ng = 2*(en - st)
        for e, ops in enumerate(sl):
            for o in ops: H(2*st + min(ng - 1, e*ng//32), o)
    def setup1():
        p(f's_lshl_b32 s{sT}, s2, 2\ns_add_u32 s{sT}, s{sT}, s{sW}\ns_lshl_b32 s{sT+1}, s{sT}, 13\ns_mul_i32 s{sT}, s{sT}, 7168')
        p(f'v_lshlrev_b32 v{vPF}, 4, v1\nv_add_u32 v{vPF+1}, s{sT}, v{vPF}\nv_add_u32 v{vPF}, s{sT+1}, v{vPF}')
        srd(p, S_WO, pWO, 0, 8 << 20); srd(p, S_WD, pWD, 0, 7 << 20)
        p(f's_lshl_b32 s{sDM}, s{sMK}, 1\ns_add_u32 s{sDM}, s{sDM}, 0x20000\ns_mov_b32 s{sPF}, 0')
        p(f's_lshl_b32 s{sT}, s{sRB}, 12\ns_lshl_b32 s{sT+1}, s{sCB}, 7\ns_add_u32 s{sT}, s{sT}, s{sT+1}\ns_add_u32 s{sT}, s{sT}, {256*128}\nv_mov_b32 v{vHF}, s{sT}')
    def setup2():
        if cfg.fs:
            p(f's_lshr_b32 s{sT}, s{sNO}, 5\ns_xor_b32 s{sT}, s{sT}, s2\ns_and_b32 s{sT}, s{sT}, 1\ns_and_b32 s{sJ}, s2, 2\ns_or_b32 s{sJ}, s{sJ}, s{sT}')
            p(f's_and_b32 s{sRC}, s2, 4\ns_bfe_u32 s{sT+1}, s2, 0x20003\ns_add_u32 s{sRC}, s{sRC}, s{sT+1}\ns_lshr_b32 s{sCC}, s2, 5')
            p(f's_lshr_b32 s{sT+1}, s{sJ}, 1\ns_mul_i32 s{kAH}, s{sT+1}, 14\ns_lshl_b32 s{sT+2}, s{sT}, 3\ns_add_u32 s{kAH}, s{kAH}, s{sT+2}')
            p(f's_lshl_b32 s{sT+1}, s{sT+1}, 4\ns_mul_i32 s{sT+2}, s{sT}, 9\ns_add_u32 s{sT+1}, s{sT+1}, s{sT+2}\ns_mul_i32 s{sT}, s{sT}, 3\ns_sub_u32 s{sT}, 9, s{sT}')
            p(f'v_and_b32 v{vFH}, 15, v1\nv_min_u32 v{vFH}, s{sT}, v{vFH}\ns_lshl_b32 s{sT}, s{sRC}, 5\ns_add_u32 s{sT}, s{sT}, s{sT+1}\ns_add_u32 s{sT}, s{sT}, 256\ns_lshl_b32 s{sT}, s{sT}, 7')
            p(f'v_lshl_add_u32 v{vFH}, v{vFH}, 7, s{sT}')
            p(f's_lshl_b32 s{kWD}, s{kAH}, 18\ns_lshl_b32 s{kAH}, s{kAH}, 12')
        else:
            p(f's_bfe_u32 s{sJ}, s2, 0x20001\ns_and_b32 s{sRC}, s2, 1\ns_lshl_b32 s{sRC}, s{sRC}, 2\ns_bfe_u32 s{sT}, s2, 0x20003\ns_add_u32 s{sRC}, s{sRC}, s{sT}\ns_lshr_b32 s{sCC}, s2, 5')
            p(f's_lshl_b32 s{sT}, s{sRC}, 5\ns_lshl_b32 s{sT+1}, s{sJ}, 3\ns_add_u32 s{sT}, s{sT}, s{sT+1}\ns_add_u32 s{sT}, s{sT}, 256\ns_lshl_b32 s{sT}, s{sT}, 7')
            p(f'v_and_b32 v{vFH}, 7, v1\nv_lshl_add_u32 v{vFH}, v{vFH}, 7, s{sT}')
            p(f's_mul_i32 s{kWD}, s{sJ}, {896*2048}\ns_mul_i32 s{kAH}, s{sJ}, {28*1024}')
        x_dma_addr(dD, k_h)
        p(f's_lshl_b32 s{cMW}, s{sW}, 13')
        srd(p, S_AH, pWS, WS_H, 15 << 20)
        p(f's_lshl_b32 s{sT}, s{sRC}, 4\ns_lshl_b32 s{sT+2}, s{sW}, 2\ns_add_u32 s{sT}, s{sT}, s{sT+2}\ns_mul_i32 s{sT+2}, s{sT}, {HST}')
        p(f'v_lshlrev_b32 v36, 4, v1\nv_add_u32 v{aH}, s{sT+2}, v36')
        for b in range(1, 4): p(f'v_add_u32 v{aH+b}, {HST}, v{aH+b-1}')
        t = 36
        p(f's_lshl_b32 s{sT+3}, s{sJ}, 1')
        p(f'v_lshrrev_b32 v{t}, 2, v1\nv_and_b32 v{t+1}, 7, v{t}\nv_xor_b32 v{t+1}, s{sT+3}, v{t+1}\nv_lshlrev_b32 v{t}, 8, v{t}\nv_and_b32 v{t+2}, 3, v1\nv_lshl_add_u32 v{t}, v{t+2}, 3, v{t}')
        for tt in range(8):
            p(f'v_xor_b32 v{t+2}, {tt}, v{t+1}\nv_lshl_add_u32 v{cTr+tt}, v{t+2}, 5, v{t}')
        p(f's_mov_b32 s{cTG}, 0x10000')
    def flag_store(lbl, va, rel=False):
        t_ = f's_cmp_eq_u32 s{sW}, 1\ns_cbranch_scc0 {lbl}\n'
        if rel and cfg.loc:
            t_ += f's_cmp_eq_u32 s{sREM}, 0 ;cond\ns_cbranch_scc1 {lbl}_f ;cond\nbuffer_wbl2 sc1 ;cond\ns_waitcnt vmcnt(0) ;cond\n{lbl}_f: ;cond\n'
        return t_ + f'buffer_store_dwordx2 v[2:3], v{va}, s[{S_FL}:{S_FL+3}], 0 offen sc1 ;cond\n{lbl}:'
    s2q = collect(setup2); s2per = -(-len(s2q) // 4)
    for x in collect(setup1): L(16, x)
    npf = 0
    for j in range(7):
        g = bargap[j] + 1
        if j + 3 <= 7:
            L(g, f's_add_u32 s{sT+5}, s{sKV}, {(j+3)*16384}') if False else None
            L(g, f's_add_u32 s{sT+4}, s{sKV}, {(j+3)*16384}'); L(g, f's_add_u32 m0, s{sMK}, {((j+3) % 4)*16384}'); L(g, m0gap)
            for k in range(4): L(g + 3*k, kdma(k, sT+4, ('K', 4, j+3, 0)))
        if j + 2 <= 7:
            L(g + 12, f's_add_u32 s{sT+4}, s{sKV}, {(j+2)*16384}'); L(g + 12, f's_add_u32 m0, s{sMK}, {0x10000 + ((j+2) % 4)*16384}'); L(g + 12, m0gap)
            for k in range(4): L(g + 12 + 3*k, vdma(k, sT+4, ('V', 4, j+2, 0)))
        if j < 5:
            L(g + 24, f's_mov_b32 m0, s{sDM}'); L(g + 24, m0gap)
            for k in range(3):
                wo_ = npf % 2 == 0
                L(g + 24 + 4*k, f'buffer_load_dwordx4 v{vPF if wo_ else vPF+1}, s[{S_WO if wo_ else S_WD}:{(S_WO if wo_ else S_WD)+3}], s{sPF} offen lds')
                if not wo_: L(g + 24 + 4*k, f's_add_u32 s{sPF}, s{sPF}, 1024')
                npf += 1
        if cfg.cpf2 and j in (1, 4):
            for x in code_pf(S_DB, LDS_SCR + 1024): L(g + 35, x)
        if j < 4:
            for x in s2q[j*s2per:(j+1)*s2per]: L(g + 36, x)
        if j == cfg.hbar: H(g, flag_store('A_hf', vHF, True))
        if j == 4: L(g + 40, f'buffer_load_dwordx2 v[62:63], v{vFH}, s[{S_FL}:{S_FL+3}], 0 offen sc1')
        if j == 5:
            for pc in range(8):
                for x in cdma(pc, 0): L(g + 24 + 3*pc, x)
            L(g + 50, '\n'.join(flagchk('L_h', vFH, 62, True)))
        if j == 6:
            for sub in range(4):
                for b in range(4):
                    for x in cact(sub, b): L(g + 3*(4*sub + b), x)
    for pc in range(8):
        for x in cdma(pc, 1): L(bargap[7] + 1 + 3*pc, x)
    def cyc(x):
        t_ = x[0] if isinstance(x, tuple) else x
        if callable(t_): return 8
        o = t_.split()[0]
        if o in TRANS: return 8
        if o.startswith('v_cvt_pk'): return 5
        if o.startswith('buffer_'): return cfg.vmc
        return 4*len(t_.split('\n')) if '\n' in t_ and ';cond' not in t_ else 4
    fill = {}; q_ = []
    for i in range(-1, n_):
        cur = list(hi.get(i, [])); used = sum(cyc(x) for x in cur) + (4 if i % 2 == 1 else 0)
        for x in lo.get(i, []): q_.append((i, x))
        while q_ and (used + cyc(q_[0][1]) <= cfg.acap or i == n_ - 1 or i - q_[0][0] >= cfg.amax):
            x = q_.pop(0)[1]; cur.append(x); used += cyc(x)
        fill[i] = cur
    fix_m0(fill, n_)
    if cfg.aab:
        tx = lambda x: x[0] if isinstance(x, tuple) else x
        for i in fill:
            if 2*start[3] <= i < 2*start[11]:
                if cfg.aab & 1: fill[i] = [x for x in fill[i] if callable(tx(x)) or not tx(x).startswith('buffer_load')]
                if cfg.aab & 2: fill[i] = [x for x in fill[i] if callable(tx(x)) or x in hi.get(i, []) or tx(x).startswith('buffer_load') or 'm0' in tx(x) or 's54' in tx(x)]
                if cfg.aab & 4: fill[i] = [x for x in fill[i] if not callable(tx(x))]
    for n in (1, 3, 7, 11, 15):
        t_ = ts.text(4)
        if t_: fill[2*start[n] - 1].append(t_)
    interleave(p, mf, fill)
    ts.stamp(p, 5)
    for qt in range(2):
        l = vL + 2*qt
        p(f'v_add_f32 v{l}, v{l}, v{l+1}\nv_mov_b32 v{l+1}, v{l}\ns_nop 1\nv_permlane32_swap_b32 v{l}, v{l+1}\ns_nop 1\nv_add_f32 v{l}, v{l}, v{l+1}')
    p(f'v_max_f32 v33, v{vL}, v{vL+2}\nv_add_f32 v33, v33, v{vL}\nv_add_f32 v33, v33, v{vL+2}')
    p(f's_mov_b32 s{sT}, {f2u(2.0**cfg.thr):#x}\nv_cmp_nlt_f32 vcc, v33, s{sT}\ns_nop 1\ns_cbranch_vccnz A_slow')
    p('A_done:')
    ad = cfg.cad; P = cfg.cP
    for sub in range(4, ad):
        for b in range(4):
            for x in cact(sub, b): emit(p, x)
    p(f'v_rcp_f32 v{vL}, v{vL}\nv_rcp_f32 v{vL+2}, v{vL+2}')
    p.need(('C', 4, 0, 0)); p('s_barrier')
    for G in range(P):
        r = cA + 4*G
        p(f'ds_read_b64_tr_b16 v[{r}:{r+1}], v{cTr+G} offset:0', ('C', 4, 0, 0)); p(f'ds_read_b64_tr_b16 v[{r+2}:{r+3}], v{cTr+G} offset:4096', ('C', 4, 0, 0))
    p(';SPLIT')
    OE = cfg.oe if ND >= 7 else cfg.oes
    vO, vX, vFO, vFD, vFS, vFQ = 16, 96, 20, 21, 22, 23
    sPS, sPR = 32, 33
    def o_epi(packed):
        t = 32
        p(f'v_mov_b32 v{vL+1}, v{vL}\nv_mov_b32 v{vL+3}, v{vL+2}')
        p(f's_lshl_b32 s{sT}, s{sRB}, 4\ns_lshl_b32 s{sT+1}, s{sW}, 2\ns_add_u32 s{sT}, s{sT}, s{sT+1}\ns_mul_i32 s{sT}, s{sT}, {OST}\ns_lshl_b32 s{sT+1}, s{sCB}, 12\ns_add_u32 s{sT}, s{sT}, s{sT+1}')
        p(f'v_bfe_u32 v{t}, v1, 4, 1\nv_mul_u32_u24 v{t}, {OST}, v{t}\nv_lshrrev_b32 v{t+1}, 5, v1\nv_lshlrev_b32 v{t+1}, 8, v{t+1}\nv_and_b32 v{t+2}, 15, v1\nv_lshlrev_b32 v{t+2}, 4, v{t+2}')
        p(f'v_add3_u32 v{t}, v{t}, v{t+1}, v{t+2}\nv_add_u32 v34, s{sT}, v{t}\nv_add_u32 v35, {2*OST}, v34')
        n = 0
        for dt in range(4):
            for qt in range(2):
                o = (dt*2+qt)*16
                for half in range(2):
                    x = 96 + 8*(n % 2); d = 112 + 4*(n % 4); n += 1
                    for i in range(8): p(f'v_accvgpr_read_b32 v{x+i}, a{o+8*half+i}')
                    if packed:
                        for i in range(0, 8, 2): p(f'v_pk_mul_f32 v[{x+i}:{x+i+1}], v[{x+i}:{x+i+1}], v[{vL+2*qt}:{vL+2*qt+1}]')
                    else:
                        for i in range(8): p(f'v_mul_f32{cfg.e64} v{x+i}, v{x+i}, v{vL+2*qt}')
                        for i in range(cfg.xs): p(f's_mov_b32 s{sT+5}, {cfg.xl}')
                    for i in range(0, 8, 2): p(f'v_cvt_pk_bf16_f32 v{d+i//2}, v{x+i}, v{x+i+1}')
                    p(f'buffer_store_dwordx4 v[{d}:{d+3}], v{34+qt}, s[{S_O}:{S_O+3}], 0 offen offset:{dt*1024 + half*512}{LS}', ('Ost', 1, 0, 0))
    def s_setup():
        x_dma_addr(dO, k_o)
        srd(p, S_AO, pWS, WS_O, 17 << 20)
        p(f's_lshl_b32 s{kWO}, s{sJ}, 21\ns_lshl_b32 s{kAO}, s{sJ}, 15')
        p(f's_lshl_b32 s{sT}, s{sRC}, 4\ns_lshl_b32 s{sT+2}, s{sW}, 2\ns_add_u32 s{sT}, s{sT}, s{sT+2}\ns_mul_i32 s{sT+2}, s{sT}, {OST}')
        p(f'v_lshlrev_b32 v24, 4, v1\nv_add_u32 v{aO}, s{sT+2}, v24')
        for b in range(1, 4): p(f'v_add_u32 v{aO+b}, {OST}, v{aO+b-1}')
        p(f'v_add_u32 v{vFO}, {256*128}, v{vHF}')
        p(f's_lshl_b32 s{sT}, s{sRC}, 5\ns_lshl_b32 s{sT+1}, s{sJ}, 3\ns_add_u32 s{sT}, s{sT}, s{sT+1}\ns_add_u32 s{sT}, s{sT}, 512\ns_lshl_b32 s{sT}, s{sT}, 7')
        p(f'v_and_b32 v{vFH}, 7, v1\nv_lshl_add_u32 v{vFH}, v{vFH}, 7, s{sT}')
        srd(p, S_X, pX, 0, 4 << 20); srd(p, S_OUT, pOUT, 0, 4 << 20); srd(p, S_P, pWS, WS_P, 24 << 20)
        p(f's_lshl_b32 s{sT}, s{sRC}, 3\ns_add_u32 s{sT}, s{sT}, s{sCC}\ns_lshl_b32 s{sT}, s{sT}, 2\ns_add_u32 s{sT+1}, s{sT}, s{sJ}')
        p(f's_add_u32 s{sT+2}, s{sT+1}, 768\ns_lshl_b32 s{sT+2}, s{sT+2}, 7\nv_mov_b32 v{vFD}, s{sT+2}\nv_add_u32 v{vFS}, {256*128}, v{vFD}')
        p(f's_add_u32 s{sT+2}, s{sT}, 768\ns_lshl_b32 s{sT+2}, s{sT+2}, 7\nv_and_b32 v{vFQ}, 3, v1\nv_lshl_add_u32 v{vFQ}, v{vFQ}, 7, s{sT+2}')
        p(f's_mul_i32 s{sT+3}, s{sW}, 12288\ns_mul_i32 s{sPR}, s{sT+1}, {3*16384}\ns_add_u32 s{sPR}, s{sPR}, s{sT+3}')
        for q_ in (1, 2, 3):
            p(f's_xor_b32 s{sT+2}, s{sT+1}, {q_}\ns_mul_i32 s{sT+2}, s{sT+2}, {3*16384}\ns_add_u32 s{sT+2}, s{sT+2}, s{sT+3}\ns_add_u32 s{sT+2}, s{sT+2}, {(q_-1)*4096}\nv_add_u32 v{24+q_}, s{sT+2}, v24')
        p(f's_lshl_b32 s{sT+2}, s{sRC}, 8\ns_lshl_b32 s{sT+3}, s{sW}, 6\ns_add_u32 s{sT+2}, s{sT+2}, s{sT+3}\ns_lshl_b32 s{sT+2}, s{sT+2}, 11')
        p(f's_lshl_b32 s{sT+3}, s{sCC}, 8\ns_add_u32 s{sT+2}, s{sT+2}, s{sT+3}\ns_lshl_b32 s{sT+3}, s{sJ}, 6\ns_add_u32 s{sT+2}, s{sT+2}, s{sT+3}')
        t = 36
        p(f'v_and_b32 v{t}, 15, v1\nv_lshlrev_b32 v{t}, 11, v{t}\nv_add_u32 v{t}, s{sT+2}, v{t}\nv_lshrrev_b32 v{t+1}, 4, v1')
        p(f'v_and_b32 v{vO}, 1, v{t+1}\nv_lshlrev_b32 v{vO}, 5, v{vO}\nv_lshrrev_b32 v{vO+1}, 1, v{t+1}\nv_lshlrev_b32 v{vO+1}, 4, v{vO+1}\nv_add3_u32 v{vO}, v{vO}, v{vO+1}, v{t}')
        for b in range(1, 4): p(f'v_add_u32 v{vO+b}, 0x8000, v{vO+b-1}')
    def send(gemm, quads=range(12)):
        for i in quads:
            c = 32 + 8*i; d = 112 + 4*(i % 4)
            if gemm == 0:
                for r in range(4): p(f'v_cvt_pk_bf16_f32 v{d+r}, v{cC+c+2*r}, v{cC+c+2*r+1}')
            else:
                x = 160 + 8*(i % 4)
                for r in range(8): p(f'v_accvgpr_read_b32 v{x+r}, a{c+r}')
                for r in range(4): p(f'v_cvt_pk_bf16_f32 v{d+r}, v{x+2*r}, v{x+2*r+1}')
                if cfg.sent:
                    for r in range(4): p(f'v_min_u32 v{d+r}, -2, v{d+r}')
            so = '0' if gemm == 0 else f's{sT+4}'
            p(f'buffer_store_dwordx4 v[{d}:{d+3}], v{25 + i//4}, s[{S_P}:{S_P+3}], {so} offen offset:{1024*(i%4)} sc1', ('Pst', 1, gemm, 0))
    mf = []; hi = {}; lo = {}
    ST = 128; TMS = cfg.tms
    NSUB = 4*NS
    order = [(sub // 4, sub % 4, t) for sub in range(NSUB - TMS) for t in range(8)]
    order += [(sub // 4, sub % 4, t) for t in (2, 3, 4, 5, 6, 7, 0, 1) for sub in range(NSUB - TMS, NSUB)]
    assert not cfg.sent and (TMS <= 4 or NS % 2 == 0)
    def ctr(G):
        sg, s, t = order[G]
        r = cA + 4*(G % 8); off = (sg % 2)*SLOT + s*8192
        a = cTr + t
        return [(f'ds_read_b64_tr_b16 v[{r}:{r+1}], v{a} offset:{off}', ('C', 4, sg, 0)),
                (f'ds_read_b64_tr_b16 v[{r+2}:{r+3}], v{a} offset:{off + 4096}', ('C', 4, sg, 0))]
    obar = math.ceil(OE) + 1; dbar = ND + math.ceil(cfg.de) + 1
    def bar(p, sgn):
        p.need(('C', 4, sgn, 0))
        if sgn == obar: p.need(('Ost', 1, 0, 0))
        if sgn == dbar: p.need(('Pst', 1, 0, 0))
        p('s_barrier')
    firstG = {}
    for G, (sg, s, t) in enumerate(order): firstG.setdefault(sg, G)
    for G in range(32*NS):
        sg, s, t = order[G]; sub = 4*sg + s
        for b in range(4):
            ra = cA + 4*(G % 8); rb = 128 + 16*(sub % 8) + 4*b; c = (t*4+b)*4
            acc_ = f'v[{cC+c}:{cC+c+3}]' if kind(sg) == 'd' else f'a[{c}:{c+3}]'
            mf.append(f'v_mfma_f32_16x16x32_bf16 {acc_}, v[{ra}:{ra+3}], a[{rb}:{rb+3}], {"0" if sub in (0, 4*ND) else acc_}')
        i0 = 4*G; Gn = G + P
        if Gn < 32*NS:
            if firstG[order[Gn][0]] == Gn: H(i0-1, lambda p, sgn=order[Gn][0]: bar(p, sgn))
            r0, r1 = ctr(Gn)
            H(i0, r0); H(i0+1, r1)
            if Gn % 64 >= 56 and Gn // 32 < NS - 1: H(i0+2, f'v_xor_b32 v{cTr + Gn % 8}, s{cTG}, v{cTr + Gn % 8}')
        sgc, g = divmod(G, 32)
        dstr = 2 if (TMS > 4 and sgc + 2 == NS - 1) else cfg.cdstr
        if g % dstr == 1 and g // dstr < 8 and sgc + 2 < NS:
            for x in cdma(g // dstr, sgc + 2): L(i0, x)
    last_act = 0
    for sub in range(ad, 4*NS):
        t0 = max((sub - 7)*32, min((sub - ad)*32, (4*NS - 8)*32 - (4*NS - 1 - sub)*cfg.ramp)) if TMS else (sub - ad)*32
        t1 = max((sub - 6)*32, min((sub + 1 - ad)*32, (4*NS - 8)*32 - (4*NS - 2 - sub)*cfg.ramp)) if TMS else t0 + 32
        for b in range(4):
            last_act = t0 + b*min(8, (t1 - t0)//4)
            for x in cact(sub, b): L(last_act, x)
    if cfg.cpf2:
        for x in code_pf(S_DB, LDS_SCR + 1024): L(1*ST + 4*30, x)
        for x in code_srd(S_AH, 'L_pc3' + SFX): L(ND*ST, x)
        for k in (ND, ND + 3):
            for x in code_pf(S_AH, LDS_SCR + 1024): L(k*ST + 4*30, x)
    lo = {k: lo[k] for k in sorted(lo)}
    n = len(mf)
    fill = spread(hi, lo, n, cfg.cap, 16, cost=lambda i: 1 if i % 4 == 3 else 0)
    fix_m0(fill, n)
    def ride(items, g0, g1):
        q_ = list(items); per = len(q_) / (g1 - g0); due = 0.0; done = 0
        for i in range(g0, g1):
            due += per
            used = len(fill[i]) + (1 if i % 4 == 3 else 0)
            while q_ and done < due + 2 and (used < cfg.cap or done < due - cfg.lag):
                fill[i].append(q_.pop(0)); used += 1; done += 1
        fill[g1-1] += q_
    oq = collect(lambda: o_epi(cfg.ox > 0))
    nx = 0
    if cfg.ox:
        idx = [i for i, x in enumerate(oq) if x[0].startswith('buffer_store')]
        nx = idx[cfg.ox - 1] + 1
        fill[-1] = oq[:nx] + fill[-1]
        oq2 = collect(lambda: o_epi(False))
        idx2 = [i for i, x in enumerate(oq2) if x[0].startswith('buffer_store')]
        oq = oq2[idx2[cfg.ox - 1] + 1:]
    if oq: ride(oq, 2, int(OE*ST))
    ride(collect(s_setup), int(OE*ST), int(OE*ST) + ST - 20)
    fill[obar*ST - 4*P + 2].append(flag_store('C_of' + SFX, vFO, True))
    first_o = (4*ND - ad)*32
    assert first_o - 2 > int(OE*ST) + ST - 20 and (ND - 2)*ST > int(OE*ST) + ST - 20
    fill[first_o - cfg.fl].append(f'buffer_load_dwordx2 v[62:63], v{vFH}, s[{S_FL}:{S_FL+3}], 0 offen sc1')
    fill[first_o - 2].append('\n'.join(flagchk('L_o' + SFX, vFH, 62, True)))
    ride(collect(lambda: send(0)), ND*ST + 8, ND*ST + int(cfg.de*ST))
    fill[dbar*ST - 4*P + 2].append(flag_store('C_df' + SFX, vFD))
    xl = [f'buffer_load_dwordx4 v[{vX+4*b}:{vX+4*b+3}], v{vO+b}, s[{S_X}:{S_X+3}], 0 offen' for b in range(4)]
    ride(xl, max(last_act + 20, int((NS - cfg.dchk)*ST) + 52), max(last_act + 20, int((NS - cfg.dchk)*ST) + 52) + 16)
    vR = 192
    def recv(gemm):
        p(f's_add_u32 s{sT+2}, s{sPR}, {gemm*256*3*16384}')
        for q_ in range(3):
            for i in range(4):
                r = vR + 16*q_ + 4*i
                p(f'buffer_load_dwordx4 v[{r}:{r+3}], v24, s[{S_P}:{S_P+3}], s{sT+2} offen offset:{1024*i} sc1')
            if q_ < 2: p(f's_add_u32 s{sT+2}, s{sT+2}, 4096')
    dchk = NS - cfg.dchk; assert dchk*ST > last_act + 16
    fill[int(dchk*ST) - cfg.fl].append(f'buffer_load_dwordx2 v[62:63], v{vFQ}, s[{S_FL}:{S_FL+3}], 0 offen sc1')
    fill[int(dchk*ST)].append('\n'.join(flagchk('L_d' + SFX, vFQ, 62)))
    ride(collect(lambda: recv(0)), int(dchk*ST) + 2, int(dchk*ST) + 50)
    fill[(NS - 3)*ST].append(f's_mov_b32 s{sT+4}, {256*3*16384}')
    sent = 0
    if TMS:
        base = (NSUB - TMS)*32; plen = 2*TMS*4
        for q_ in range(3):
            g0 = base + (q_ + 1)*plen + 3
            ride(collect(lambda: send(1, range(4*q_, 4*q_ + 4))), g0, min(n, g0 + plen - 3))
        sent = 12
    ts.stamp(p, 7)
    for k in range(1, 15):
        if k in (1, 2, 3, 4, 5, 6, 7, 8, 9, 11, 13):
            t_ = ts.text(2)
            if t_: fill[k*ST - 1].append(t_)
    interleave(p, mf, fill)
    p(f's_mov_b32 s{sT+3}, 0xffff0000\nv_add_u32 v{vFQ}, {256*128}, v{vFQ}\ns_nop 4')
    ts.stamp(p, 3)
    send(1, range(sent, 12))
    RS = (160, 176, 240)
    def recv_s(q_, cond=''):
        for i in range(4):
            p(f'buffer_load_dwordx4 v[{RS[q_]+4*i}:{RS[q_]+4*i+3}], v24, s[{S_P}:{S_P+3}], s{44+q_} offen offset:{1024*i} sc1{cond}')
    if cfg.sent:
        p(f's_add_u32 s44, s{sPR}, {256*3*16384}\ns_add_u32 s45, s44, 4096\ns_add_u32 s46, s45, 4096')
        for q_ in range(3): recv_s(q_)
    pk = lambda r: f'v[{r}:{r+1}]'
    def addparts(dst, i, src):
        for q_ in range(3):
            rr = src[q_] + 4*i; tt = 32 + 8*(q_ % 2)
            for r in range(4): p(f'v_lshlrev_b32 v{tt+2*r}, 16, v{rr+r}\nv_and_b32 v{tt+2*r+1}, s{sT+3}, v{rr+r}')
            for r in range(0, 8, 2): p(f'v_pk_add_f32 {pk(dst+r)}, {pk(dst+r)}, {pk(tt+r)}')
    p(f'v_mov_b32 v28, {f2u(-math.log2(math.e)):#x}\nv_mov_b32 v29, v28')
    RD = (vR, vR + 16, vR + 32)
    for i in range(4):
        c = cC + 8*i; B = 48
        addparts(c, i, RD)
        for r in range(0, 8, 2): p(f'v_pk_mul_f32 {pk(B+r)}, {pk(c+r)}, v[28:29]')
        for r in range(8): p(f'v_exp_f32 v{B+r}, v{B+r}')
        p('s_nop 0')
        for r in range(0, 8, 2): p(f'v_pk_add_f32 {pk(B+r)}, {pk(B+r)}, 1.0 op_sel_hi:[1,0]')
        for r in range(8): p(f'v_rcp_f32 v{B+r}, v{B+r}')
        p('s_nop 0')
        for r in range(0, 8, 2): p(f'v_pk_mul_f32 {pk(c+r)}, {pk(c+r)}, {pk(B+r)}')
    vSs = 64
    for i in range(32): p(f'v_accvgpr_read_b32 v{vSs+i}, a{i}')
    E = 192 if cfg.sent else 160
    def xunpack():
        for b in range(4):
            for q in range(4): p(f'v_lshlrev_b32 v{E+8*b+2*q}, 16, v{vX+4*b+q}\nv_and_b32 v{E+8*b+2*q+1}, s{sT+3}, v{vX+4*b+q}')
    if cfg.sent:
        xunpack()
        ts.stamp(p)
        p('C_chk:\ns_waitcnt vmcnt(0)\ns_mov_b32 s47, 0')
        for q_ in range(3):
            r = RS[q_]
            p(f'v_max3_u32 v32, v{r}, v{r+1}, v{r+2}')
            for k in range(3, 15, 2): p(f'v_max3_u32 v32, v32, v{r+k}, v{r+k+1}')
            p(f'v_max_u32 v32, v32, v{r+15}\nv_cmp_eq_u32 vcc, -1, v32\ns_nop 1\ns_cbranch_vccz C_ok{q_}')
            p.cond(True)
            p(f's_sleep {cfg.slp2}\ns_mov_b32 s47, 1'); recv_s(q_)
            p.cond(False)
            p(f'C_ok{q_}:')
        p('s_cmp_lg_u32 s47, 0\ns_cbranch_scc1 C_chk')
        ts.stamp(p)
        src = RS
    else:
        p('s_waitcnt vmcnt(0)\ns_barrier')
        ts.stamp(p)
        p(f's_cmp_eq_u32 s{sW}, 1\ns_cbranch_scc0 C_got{SFX}')
        p.cond(True)
        p(f'buffer_store_dwordx2 v[2:3], v{vFS}, s[{S_FL}:{S_FL+3}], 0 offen sc1')
        poll('C_poll' + SFX, vFQ, 'C_got' + SFX)
        p.cond(False)
        p(f'C_got{SFX}:\ns_barrier')
        ts.stamp(p)
        recv(1)
        xunpack()
        src = RD
    for i in (0, 2, 1, 3): addparts(vSs + 8*i, i, src)
    for b in range(4):
        c0 = vSs + 4*b; c1 = vSs + 16 + 4*b; o = 112 + 4*b
        for r in (0, 2):
            p(f'v_pk_mul_f32 {pk(c0+r)}, {pk(c0+r)}, {pk(cC+4*b+r)}\nv_pk_mul_f32 {pk(c1+r)}, {pk(c1+r)}, {pk(cC+16+4*b+r)}')
        p('s_nop 0')
        for r in range(4): p(f'v_permlane16_swap_b32 v{c0+r}, v{c1+r}')
        p('s_nop 0')
        for q in range(4):
            c = (c0, c0+2, c1, c1+2)[q]
            p(f'v_pk_add_f32 {pk(E+8*b+2*q)}, {pk(E+8*b+2*q)}, {pk(c)}')
        for q in range(4): p(f'v_cvt_pk_bf16_f32 v{o+q}, v{E+8*b+2*q}, v{E+8*b+2*q+1}')
        p(f'buffer_store_dwordx4 v[{o}:{o+3}], v{vO+b}, s[{S_OUT}:{S_OUT+3}], 0 offen {cfg.osc}')
    ts.stamp(p)
    ts.dump(p, pWS)
    p('s_endpgm')
    autowait(p)
    if not cfg.aab: check(p, 'main')

    z = Prog(); main = p; p = z
    p('A_slow:')
    p('s_waitcnt vmcnt(0) lgkmcnt(0)')
    srd(p, S_K, pK, 0, 2 << 20); srd(p, S_V, pV, 0, 2 << 20)
    zK, zD, zV = 13, 14, 21
    zKV, zN = sT, sT+1
    p(f's_lshr_b32 s{zKV}, s{sCB}, 3\ns_lshl_b32 s{zKV}, s{zKV}, 19\ns_add_u32 s{zKV}, s{zKV}, {1536*256}')
    p(f'v_and_b32 v{zK}, 31, v1\nv_lshlrev_b32 v{zK}, 8, v{zK}\nv_lshrrev_b32 v36, 5, v1\nv_lshl_add_u32 v{zK}, v36, 4, v{zK}')
    p(f'v_lshrrev_b32 v36, 4, v1\nv_and_b32 v37, 15, v1\nv_lshlrev_b32 v38, 2, v36\nv_xor_b32 v37, v37, v38\nv_lshlrev_b32 v36, 8, v36\nv_lshl_add_u32 v{zD}, v37, 4, v36\nv_add_u32 v{zD+1}, 0x1000, v{zD}')
    t = 36
    p(f'v_lshrrev_b32 v{t}, 5, v1\nv_lshlrev_b32 v{t}, 2, v{t}\nv_bfe_u32 v{t+1}, v1, 2, 2\nv_add_u32 v{t}, v{t}, v{t+1}\nv_lshlrev_b32 v{t}, 8, v{t}')
    p(f'v_bfe_u32 v{t+2}, v1, 4, 1\nv_lshlrev_b32 v{t+2}, 5, v{t+2}\nv_and_b32 v{t+3}, 3, v1\nv_lshlrev_b32 v{t+3}, 3, v{t+3}\nv_add3_u32 v{t}, v{t}, v{t+2}, v{t+3}')
    p(f's_lshl_b32 s{sT+2}, s{sW}, 13\ns_add_u32 s{sT+2}, s{sT+2}, 0x20000\nv_add_u32 v{t}, s{sT+2}, v{t}')
    for dt in range(4): p(f'v_xor_b32 v{t+2}, {dt}, v{t+1}\nv_lshl_add_u32 v{zV+dt}, v{t+2}, 6, v{t}')
    def kglob():
        for s in range(8): p(f'buffer_load_dwordx4 a[{aF+4*s}:{aF+4*s+3}], v{zK}, s[{S_K}:{S_K+3}], s{zN} offen offset:{32*s}')
    p(f'v_mov_b32 v32, 0xff800000\nv_mov_b32 v34, 0xff800000\ns_mov_b32 s{zN}, s{zKV}\ns_mov_b32 s{sT+3}, 16')
    p.loop_begin('Z1_loop', 16, align=False)
    kglob()
    for s in range(8):
        for qt in range(2): p(qk(0, s, qt, zero))
    p('s_nop 7\ns_nop 3')
    rowmax(0, False)
    p(f's_add_u32 s{zN}, s{zN}, 8192\ns_sub_u32 s{sT+3}, s{sT+3}, 1\ns_cmp_lg_u32 s{sT+3}, 0\ns_cbranch_scc1 Z1_loop')
    p.loop_end()
    set_negm()
    for i in range(128): p(f'v_accvgpr_write_b32 a{i}, 0')
    for i in range(4): p(f'v_mov_b32 v{vL+i}, 0')
    p(f's_mov_b32 s{zN}, s{zKV}\ns_mov_b32 s{sT+3}, 16')
    p.loop_begin('Z2_loop', 16, align=False)
    kglob()
    for j in range(8):
        if j % 4 == 0: p(f's_add_u32 m0, s{sT+2}, {1024*j}\ns_nop 0')
        p(f'buffer_load_dwordx4 v{zD + j//4}, s[{S_V}:{S_V+3}], s{zN} offen offset:{1024*(j%4)} lds')
    for s in range(8):
        for qt in range(2): p(qk(0, s, qt, negm))
    p('s_nop 7\ns_nop 3')
    for ops in softmax_ops(0):
        for o in ops: p(o)
    p('s_waitcnt vmcnt(0)')
    for f in range(8):
        for r in vread(0, f, None, base=zV, off0=0): emit(p, r)
    for f in range(8):
        for qt in range(2): p(pv(0, f, qt))
    p(f's_add_u32 s{zN}, s{zN}, 8192\ns_sub_u32 s{sT+3}, s{sT+3}, 1\ns_cmp_lg_u32 s{sT+3}, 0\ns_cbranch_scc1 Z2_loop')
    p.loop_end()
    p('s_nop 7\ns_nop 7')
    for qt in range(2):
        l = vL + 2*qt
        p(f'v_add_f32 v{l}, v{l}, v{l+1}\nv_mov_b32 v{l+1}, v{l}\ns_nop 1\nv_permlane32_swap_b32 v{l}, v{l+1}\ns_nop 1\nv_add_f32 v{l}, v{l}, v{l+1}')
    p('s_branch A_done')
    autowait(z); check(z, 'slow')
    pre_, c_ = main.text().split(';SPLIT')
    return pre_, c_, z.text(), sJ

def main():
    cfg = Cfg()
    cfg.ts = 1; cfg.xmap = 'b'; cfg.stag = 0; cfg.P = 4; cfg.late1 = 1; cfg.w0 = 0; cfg.cw0 = 8
    cfg.d0 = 0; cfg.dstr = 4; cfg.a0 = 1; cfg.astr = 2; cfg.ad = 3; cfg.PF = 3; cfg.cap = 2
    cfg.cad = 5; cfg.cdstr = 4; cfg.cP = 4; cfg.thr = 30; cfg.tail0 = 4; cfg.sum = 'add'; cfg.hbar = 2; cfg.fs = 1; cfg.oes = 2; cfg.sent = 0; cfg.slp2 = 4; cfg.trk = 2; cfg.kvp = 1; cfg.trk0 = 1; cfg.pf4 = 0; cfg.pf4n = 8; cfg.pf3 = 0; cfg.aab = 0; cfg.e64 = ''; cfg.xs = 0; cfg.xl = 1; cfg.cpf2 = 1; cfg.loc = 0; cfg.fremote = 0; cfg.ox = 0; cfg.ramp = 20; cfg.lag = 3; cfg.vmc = 8; cfg.acap = 24; cfg.amax = 40; cfg.wb = 0; cfg.opad = 256; cfg.xpad = 256; cfg.hpad = 0; cfg.oe = 3; cfg.de = 3; cfg.tms = 6; cfg.fl = 128; cfg.dchk = 1.65; cfg.dbg = 0; cfg.cpf = 1; cfg.tlb = 0; cfg.osc = 'sc1'; cfg.slp = 1; cfg.late0 = 2
    for a in sys.argv[2:]:
        k, v = a.split('='); setattr(cfg, k, int(v) if v.lstrip('-').isdigit() else float(v) if v.replace('.','').isdigit() else v)
    kn = NAME + '_kernel'
    hdr = (f'; opad={cfg.opad} hoff={WS_H} xpad={cfg.xpad} hpad={cfg.hpad} ooff={WS_O}\n; @launch grid=(256,1,1) block=(256,1,1) lds={LDS_TOT}\n'
           '.amdgcn_target "amdgcn-amd-amdhsa--gfx950"\n')
    if cfg.fs:
        a, c8, z, sJ = gen(cfg, 8); a6, c6, _, _ = gen(cfg, 6)
        assert a == a6
        body = a + f'  s_bitcmp1_b32 s{sJ}, 0\n  s_cbranch_scc1 C_short\n' + c8 + '\nC_short:\n' + c6
    else:
        a, c7, z, _ = gen(cfg, 7); body = a + c7
    s = hdr + kernel_head(kn) + body + '\nK_end:\n  s_endpgm\n' + z + '\nK_last:\n' + kernel_desc(kn, 512, 256)
    open(sys.argv[1], 'w').write(s)
if __name__ == '__main__': main()
```

```python
import sys, struct, math
from dsl import *
from gen2 import (f2u, srd, kernel_head, kernel_desc, emit, interleave, spread, m0gap, fix_m0, chk_tail, Cfg)

NAME = 'recurrent_scan__sliding_block_cached__geglu_ffn__prompt'
WS_XN = 0
WS_O  = 5 << 20
WS_H  = 23 << 20
WS_G  = 36 << 20
WS_FL = 40 << 20
WS_TS = 48 << 20
WS_P  = 64 << 20
HS = 22528; NHS = 7
LDS_SCR = NHS*HS
LDS_TOT = 163840

class TS:
    def __init__(self, on): self.on = on; self.n = 0
    def text(self, grp):
        if not self.on & grp or self.n >= 14: return None
        s = 88 + self.n; self.n += 1
        clk = 's_memtime' if self.on & 8 else 's_memrealtime'
        return f's_waitcnt lgkmcnt(0)\n{clk} s[4:5]\ns_waitcnt lgkmcnt(0)\ns_mov_b32 s{s}, s4'
    def stamp(self, p, grp=1):
        t = self.text(grp)
        if t: p(t)
    def old(self, p):
        if not self.on: return
        s = 88 + self.n; self.n += 1;
        if s >= 102: return
        p(f's_waitcnt lgkmcnt(0)\ns_memrealtime s[4:5]\ns_waitcnt lgkmcnt(0)\ns_mov_b32 s{s}, s4')
    def dump(self, p, wsptr):
        if not self.on: return
        if self.on & 16:
            p('s_load_dwordx2 s[12:13], s[0:1], 80\ns_waitcnt lgkmcnt(0)\ns_mov_b32 s14, 256\ns_mov_b32 s15, 0x20000\nv_mov_b32 v8, 0\ns_mov_b64 exec, 1')
            for i in range(min(self.n, 14)):
                p(f's_sub_u32 s4, s{88+i}, s6\nv_mov_b32 v4, s4\nbuffer_atomic_smax v4, v8, s[12:15], 0 offen offset:{8+4*i}\ns_nop 1')
            return
        srd(p, 12, wsptr, WS_TS, 1 << 20)
        p('s_lshl_b32 s3, s2, 8\ns_lshl_b32 s4, s36, 6\ns_add_u32 s3, s3, s4\nv_mov_b32 v8, s3')
        p('s_getreg_b32 s4, hwreg(HW_REG_XCC_ID, 0, 4)\nv_mov_b32 v4, s4\nbuffer_store_dword v4, v8, s[12:15], 0 offen offset:60\ns_nop 1')
        for i in range(min(self.n, 14)):
            p(f'v_mov_b32 v4, s{88+i}\nbuffer_store_dword v4, v8, s[12:15], 0 offen offset:{4*i}\ns_nop 1')

def gen(cfg, ND):
    SFX = f'_{ND}'
    OST = 131072 + cfg.opad; XST = 32768 + cfg.xpad; HST = 112*1024 + cfg.hpad
    p = Prog(); ts = TS(cfg.ts)
    SC = ' sc1'; LS = '' if cfg.loc else ' sc1'
    assert cfg.xmap == 'c' or not cfg.loc
    pX, pK, pV, pWQ, pWO, pWG, pWU, pWD, pOUT, pDBG, pWS = 64, 66, 68, 70, 72, 76, 78, 80, 82, 84, 86
    S_W, S_Q, S_XN, S_H, S_K, S_V, S_O = 8, 12, 16, 20, 24, 28, 32
    S_FL, S_DB = 56, 60
    sW, sRB, sCB, sKW, sKQ, sKA, sCNT = 36, 37, 38, 39, 40, 41, 42
    sMW, sMQ, sRD, sDL, sLEFT, sLEFA, sRW, sRQ = 43, 44, 45, 46, 47, 48, 49, 3
    sT = 50
    p('s_cmp_ge_u32 s2, 256\ns_cbranch_scc1 K_end')
    p('s_load_dwordx16 s[64:79], s[0:1], 0\ns_load_dwordx8 s[80:87], s[0:1], 64')
    p(f'v_lshrrev_b32 v2, 6, v0\nv_and_b32 v1, 63, v0\nv_readfirstlane_b32 s{sW}, v2')
    p(f's_and_b32 s{sT}, s2, 7\ns_lshr_b32 s{sT+1}, s2, 3')
    if cfg.xmap == 'c':
        p(f's_and_b32 s{sRB}, s{sT}, 1\ns_lshl_b32 s{sRB}, s{sRB}, 2\ns_and_b32 s{sT+2}, s{sT+1}, 3\ns_add_u32 s{sRB}, s{sRB}, s{sT+2}')
        p(f's_lshr_b32 s{sCB}, s{sT}, 1\ns_lshl_b32 s{sCB}, s{sCB}, 3\ns_lshr_b32 s{sT+2}, s{sT+1}, 2\ns_add_u32 s{sCB}, s{sCB}, s{sT+2}')
    else:
        p(f's_and_b32 s{sRB}, s{sT+1}, 7\ns_lshl_b32 s{sCB}, s{sT}, 2\ns_lshr_b32 s{sT+2}, s{sT+1}, 3\ns_add_u32 s{sCB}, s{sCB}, s{sT+2}')
    vAct, vDW, vDQ, vTr, vTq, vT = 4, 8, 15, 19, 20, 28
    vA, RA = 32, 8
    vB, RB = 64, 4
    def acc(t, b):
        if t < 16: c = (t*4+b)*4; return f'a[{c}:{c+3}]'
        c = 160 + ((t-16)*4+b)*4; return f'v[{c}:{c+3}]'
    def accr(t, b, r):
        if t < 16: return f'a{(t*4+b)*4+r}'
        return f'v{160+((t-16)*4+b)*4+r}'
    vLX, vLO, vLS = 128, 129, 130
    t = 132
    p(f's_lshl_b32 s{sT}, s{sRB}, 8\ns_lshl_b32 s{sT+1}, s{sCB}, 3\ns_add_u32 s{sT}, s{sT}, s{sT+1}\ns_lshl_b32 s{sT}, s{sT}, 11\ns_lshl_b32 s{sT+1}, s{sW}, 9\ns_add_u32 s{sT}, s{sT}, s{sT+1}')
    p(f'v_and_b32 v{t}, 7, v1\nv_bfe_u32 v{t+1}, v1, 3, 1\nv_lshrrev_b32 v{t+2}, 4, v1')
    p(f'v_lshlrev_b32 v{t+3}, 11, v{t}\nv_lshlrev_b32 v{t+4}, 8, v{t+1}\nv_lshlrev_b32 v{t+5}, 4, v{t+2}\nv_add3_u32 v{t+3}, v{t+3}, v{t+4}, v{t+5}\nv_add_u32 v{vLX}, s{sT}, v{t+3}')
    p(f's_lshl_b32 s{sT}, s{sRB}, 4\ns_lshr_b32 s{sT+1}, s{sCB}, 1\ns_add_u32 s{sT}, s{sT}, s{sT+1}\ns_mul_i32 s{sT}, s{sT}, {XST}\ns_lshl_b32 s{sT+1}, s{sW}, 13\ns_add_u32 s{sT}, s{sT}, s{sT+1}')
    p(f's_and_b32 s{sT+1}, s{sCB}, 1\ns_lshl_b32 s{sT+1}, s{sT+1}, 7\ns_add_u32 s{sT}, s{sT}, s{sT+1}')
    p(f'v_lshlrev_b32 v{t+3}, 4, v{t}\nv_lshlrev_b32 v{t+4}, 12, v{t+1}\nv_lshlrev_b32 v{t+5}, 8, v{t+2}\nv_add3_u32 v{t+4}, v{t+3}, v{t+4}, v{t+5}\nv_add_u32 v{vLO}, s{sT}, v{t+4}')
    p(f'v_add_u32 v{vLS}, {LDS_SCR}, v{t+3}\nv_lshl_add_u32 v{vLS+1}, v2, 2, v{vLS}')
    p(f's_and_b32 s{sT}, s{sW}, 1\ns_mul_i32 s{sT}, s{sT}, {32*7168}\ns_mul_i32 s{sT+1}, s{sCB}, 224\ns_add_u32 s{sT}, s{sT}, s{sT+1}')
    p(f's_mov_b32 s{sT+1}, 4682\ns_mov_b32 s{sT+2}, 7168')
    for n in range(448): assert (n*4682) >> 16 == n // 14
    t = 32
    for pc in range(7):
        p(f'v_add_u32 v{t}, {64*pc}, v1')
        p(f'v_mul_u32_u24 v{t+1}, s{sT+1}, v{t}\nv_lshrrev_b32 v{t+1}, 16, v{t+1}')
        p(f'v_mul_u32_u24 v{t+2}, 14, v{t+1}\nv_sub_u32 v{t+2}, v{t}, v{t+2}')
        p(f'v_and_b32 v{t+3}, 0x13, v{t+1}\nv_and_b32 v{t+4}, 4, v{t+1}\nv_lshl_or_b32 v{t+3}, v{t+4}, 1, v{t+3}')
        p(f'v_bfe_u32 v{t+4}, v{t+1}, 3, 1\nv_lshl_or_b32 v{t+3}, v{t+4}, 2, v{t+3}')
        p(f'v_mul_u32_u24 v{t+3}, s{sT+2}, v{t+3}\nv_lshlrev_b32 v{t+2}, 4, v{t+2}\nv_add3_u32 v{vDW+pc}, v{t+3}, v{t+2}, s{sT}')
        if pc % 4: p(f'v_subrev_u32 v{vDW+pc}, {1024*(pc%4)}, v{vDW+pc}')
    p(f's_lshl_b32 s{sT}, s{sW}, 17\ns_lshl_b32 s{sT+1}, s{sCB}, 8\ns_add_u32 s{sT}, s{sT}, s{sT+1}')
    p(f'v_lshrrev_b32 v{t}, 4, v1\nv_and_b32 v{t+1}, 15, v1\nv_lshlrev_b32 v{t+2}, 1, v{t}\nv_xor_b32 v{t+1}, v{t+1}, v{t+2}')
    p(f'v_lshlrev_b32 v{t}, 13, v{t}\nv_add_u32 v{t}, s{sT}, v{t}')
    for j in range(4):
        p(f'v_xor_b32 v{t+2}, {8*(j>>1)}, v{t+1}\nv_lshl_add_u32 v{t+2}, v{t+2}, 4, v{t}')
        p(f'v_add_u32 v{vDQ+j}, {j*(4*8192-1024)}, v{t+2}')
    p(f's_and_b32 s{sT}, s{sW}, 1\ns_lshr_b32 s{sT+1}, s{sW}, 1')
    p(f's_mul_i32 s{sMW}, s{sT}, {HS}\ns_mul_i32 s{sRW}, s{sT+1}, 7168')
    p(f's_mul_i32 s{sMQ}, s{sT+1}, {HS}\ns_lshl_b32 s{sRQ}, s{sT}, 12\ns_add_u32 s{sRQ}, s{sRQ}, 14336')
    KW, KQ, KA, NT = 64*7168, 64*8192, 2048, 16
    if cfg.stag:
        p(f's_lshl_b32 s{sT}, s{sRB}, 1\ns_mul_i32 s{sKW}, s{sT}, {KW}\ns_mul_i32 s{sKQ}, s{sT}, {KQ}\ns_mul_i32 s{sKA}, s{sT}, {KA}')
    else:
        p(f's_mov_b32 s{sKW}, 0\ns_mov_b32 s{sKQ}, 0\ns_mov_b32 s{sKA}, 0')
    p(f's_mov_b32 s{sLEFT}, {NT}\ns_mov_b32 s{sLEFA}, {NT}\ns_mov_b32 s{sRD}, 0')
    def c_role(sGM, sKH, sRC, sCC, tmp):
        p(f's_bfe_u32 s{sGM}, s2, 0x10002\ns_bfe_u32 s{sKH}, s2, 0x10001\ns_and_b32 s{sRC}, s2, 1\ns_lshl_b32 s{sRC}, s{sRC}, 2\ns_bfe_u32 s{tmp}, s2, 0x20003\ns_add_u32 s{sRC}, s{sRC}, s{tmp}\ns_lshr_b32 s{sCC}, s2, 5')
    sNO = 6
    p('s_waitcnt lgkmcnt(0)')
    ts.stamp(p)
    S_X0 = S_H
    srd(p, S_X0, pX, 0, 4 << 20)
    vLD = 144
    for i in range(4): p(f'buffer_load_dwordx4 v[{vLD+4*i}:{vLD+4*i+3}], v{vLX}, s[{S_X0}:{S_X0+3}], 0 offen offset:{64*i}')
    p(f's_cmp_ge_u32 s{sW}, 2\ns_cselect_b32 s{S_W}, s{pWU}, s{pWG}\ns_cselect_b32 s{S_W+1}, s{pWU+1}, s{pWG+1}')
    p(f's_mov_b32 s{S_W+2}, {1024*7168:#x}\ns_mov_b32 s{S_W+3}, 0x20000')
    srd(p, S_Q, pWQ, 0, 8 << 20)
    srd(p, S_FL, pWS, WS_FL, 1280*128)
    srd(p, S_XN, pWS, WS_XN, 5 << 20)
    srd(p, S_DB, pDBG, 0, 256)
    if cfg.tlb:
        p(f'v_lshlrev_b32 v140, 17, v1')
        if cfg.tlb == 2: p(f's_lshl_b32 s{sT+1}, s{sW}, 15\nv_add_u32 v140, s{sT+1}, v140')
        p(f'buffer_load_dword v141, v140, s[{S_W}:{S_W+3}], 0 offen\nbuffer_load_dword v142, v140, s[{S_Q}:{S_Q+3}], 0 offen')
        if cfg.tlb == 2:
            p(f's_cmp_ge_u32 s{sW}, 2\ns_cselect_b32 s{S_K}, s{pWG}, s{pWU}\ns_cselect_b32 s{S_K+1}, s{pWG+1}, s{pWU+1}\ns_mov_b32 s{S_K+2}, {1024*7168:#x}\ns_mov_b32 s{S_K+3}, 0x20000')
            p(f'buffer_load_dword v143, v140, s[{S_K}:{S_K+3}], 0 offen')
    def adv_w():
        return [f's_add_u32 s{sKW}, s{sKW}, {KW}', f's_cmp_eq_u32 s{sKW}, {NT*KW}', f's_cselect_b32 s{sKW}, 0, s{sKW}',
                f's_add_u32 s{sMW}, s{sMW}, {2*HS}', f's_cmp_ge_u32 s{sMW}, {NHS*HS}', f's_cselect_b32 s{sT}, {NHS*HS}, 0', f's_sub_u32 s{sMW}, s{sMW}, s{sT}']
    def adv_q():
        return [f's_add_u32 s{sKQ}, s{sKQ}, {KQ}', f's_and_b32 s{sKQ}, s{sKQ}, {NT*KQ-1}',
                f's_add_u32 s{sMQ}, s{sMQ}, {2*HS}', f's_cmp_ge_u32 s{sMQ}, {NHS*HS}', f's_cselect_b32 s{sT}, {NHS*HS}, 0', f's_sub_u32 s{sMQ}, s{sMQ}, s{sT}',
                f's_sub_u32 s{sLEFT}, s{sLEFT}, 1', f's_cmp_eq_u32 s{sLEFT}, 0',
                f's_cselect_b32 s{S_W+2}, 0, s{S_W+2}', f's_cselect_b32 s{S_Q+2}, 0, s{S_Q+2}']
    def adv_a():
        return [f's_add_u32 s{sKA}, s{sKA}, {KA}', f's_and_b32 s{sKA}, s{sKA}, {NT*KA-1}',
                f's_sub_u32 s{sLEFA}, s{sLEFA}, 1', f's_cmp_eq_u32 s{sLEFA}, 0', f's_cselect_b32 s{S_XN+2}, 0, s{S_XN+2}']
    def adv_rd():
        return [f's_add_u32 s{sRD}, s{sRD}, {HS}', f's_cmp_eq_u32 s{sRD}, {NHS*HS}', f's_mov_b32 s{sDL}, {HS}',
                f's_cselect_b32 s{sDL}, {-(NHS-1)*HS}, s{sDL}', f's_cselect_b32 s{sRD}, 0, s{sRD}']
    def dma(pc, tile, stride):
        tag = ('W', NHS, 2*tile + 1, 2*stride)
        if pc < 7: return (f'buffer_load_dwordx4 v{vDW+pc}, s[{S_W}:{S_W+3}], s{sKW} offen offset:{1024*(pc%4)} lds', tag)
        return (f'buffer_load_dwordx4 v{vDQ+pc-7}, s[{S_Q}:{S_Q+3}], s{sKQ} offen offset:{1024*(pc-7)} lds', tag)
    def m0set(pc):
        if pc == 0: return [f's_add_u32 m0, s{sMW}, s{sRW}']
        if pc == 4: return [f's_add_u32 s{sT}, s{sMW}, s{sRW}', f's_add_u32 m0, s{sT}, 4096']
        if pc == 7: return [f's_add_u32 m0, s{sMQ}, s{sRQ}']
        return []
    def dma_tile(tile):
        for d in range(11):
            for x in m0set(d): p(x)
            if m0set(d): p('s_nop 0')
            emit(p, dma(d, tile, 0))
            if d == 6:
                for x in adv_w(): p(x)
            if d == 10:
                for x in adv_q(): p(x)
    p(f's_lshl_b32 s{sT}, s2, 2\ns_add_u32 s{sT}, s{sT}, s{sW}\ns_cmp_eq_u32 s{sT}, 1\ns_cbranch_scc0 L_no_nonce')
    p.cond(True)
    p(f's_memrealtime s[{sNO}:{sNO+1}]\nv_mov_b32 v34, 0\ns_waitcnt lgkmcnt(0)\ns_and_b32 s{sNO}, s{sNO}, 0xffffffc0\ns_or_b32 s{sNO}, s{sNO}, 1\ns_getreg_b32 s{sT}, hwreg(HW_REG_XCC_ID, 0, 1)\ns_lshl_b32 s{sT}, s{sT}, 5\ns_or_b32 s{sNO}, s{sNO}, s{sT}\nv_mov_b32 v32, s{sNO}\nv_mov_b32 v33, s{sNO+1}')
    p(f'buffer_store_dwordx2 v[32:33], v34, s[{S_DB}:{S_DB+3}], 0 offen sc1')
    p.cond(False)
    p('L_no_nonce:')
    if cfg.late0 == 0: dma_tile(0)
    if not cfg.late1: dma_tile(1)
    if cfg.cpf:
        p(f's_getpc_b64 s[{S_K}:{S_K+1}]\nL_pc:\ns_mov_b32 s{S_K+2}, K_last-L_pc\ns_mov_b32 s{S_K+3}, 0x20000')
        p(f's_lshr_b32 s{sT}, s2, 3\ns_lshl_b32 s{sT}, s{sT}, 12\nv_lshlrev_b32 v140, 4, v0')
        p(f'buffer_load_dwordx4 v[140:143], v140, s[{S_K}:{S_K+3}], s{sT} offen')
    p(f's_lshl_b32 s{sT}, s{sRB}, 4\ns_lshl_b32 s{sT+1}, s{sW}, 2\ns_add_u32 s{sT}, s{sT}, s{sT+1}\ns_mul_i32 s{sT}, s{sT}, {XST}')
    p(f'v_lshlrev_b32 v{vT}, 4, v1\nv_add_u32 v{vAct}, s{sT}, v{vT}')
    for b in range(1, 4): p(f'v_add_u32 v{vAct+b}, {b*XST:#x}, v{vAct}')
    t = 32
    p(f'v_lshrrev_b32 v{t}, 5, v1\nv_lshlrev_b32 v{t}, 4, v{t}\nv_bfe_u32 v{t+1}, v1, 4, 1\nv_lshlrev_b32 v{t+1}, 2, v{t+1}\nv_bfe_u32 v{t+2}, v1, 2, 2')
    p(f'v_add3_u32 v{t}, v{t}, v{t+1}, v{t+2}\nv_mul_u32_u24 v{t}, 224, v{t}\nv_and_b32 v{t+3}, 3, v1\nv_lshlrev_b32 v{t+3}, 3, v{t+3}\nv_add_u32 v{vTr}, v{t}, v{t+3}')
    p(f'v_or_b32 v{t+1}, v{t+1}, v{t+2}')
    p(f'v_lshrrev_b32 v{t}, 4, v1\nv_lshlrev_b32 v{t}, 3, v{t}\nv_add_u32 v{t}, v{t}, v{t+2}\nv_lshlrev_b32 v{t}, 8, v{t}')
    p(f'v_add_u32 v{t}, 14336, v{t}\nv_add_u32 v{t}, v{t}, v{t+3}')
    for tt in range(8):
        p(f'v_xor_b32 v{t+2}, {tt}, v{t+1}\nv_lshl_add_u32 v{vTq+tt}, v{t+2}, 5, v{t}')
    vP1, vP2, vPD = 136, 137, 138
    if cfg.trk:
        p(f'v_lshrrev_b32 v32, 3, v1\nv_and_b32 v33, 7, v1\ns_lshl_b32 s{sT}, s{sRB}, 3\ns_add_u32 s{sT}, s{sT}, {64*cfg.trk}\nv_add_u32 v32, s{sT}, v32\nv_lshlrev_b32 v35, 6, v33')
        p(f's_mul_i32 s{sT+1}, s{sCB}, 224\ns_add_u32 s{sT+2}, s{sT+1}, {224+127}\ns_and_b32 s{sT+1}, s{sT+1}, -128\ns_and_b32 s{sT+2}, s{sT+2}, -128\ns_sub_u32 s{sT+2}, s{sT+2}, s{sT+1}')
        p(f'v_mul_u32_u24 v34, 7168, v32\nv_add3_u32 v{vP1}, v34, v35, s{sT+1}')
        p(f'v_lshlrev_b32 v34, 13, v32\ns_lshl_b32 s{sT+1}, s{sCB}, 8\nv_add3_u32 v{vP2}, v34, v35, s{sT+1}')
        p(f'v_cmp_gt_u32 vcc, s{sT+2}, v35\ns_and_b32 s{sT}, s{sW}, 1\ns_cmp_eq_u32 s{sT}, 0\ns_cselect_b64 vcc, vcc, 0\nv_mov_b32 v34, 0xf0000000\ns_nop 1\nv_cndmask_b32 v{vP1}, v34, v{vP1}, vcc')
        p(f'v_cmp_gt_u32 vcc, 4, v33\ns_cmp_eq_u32 s{sW}, 1\ns_cselect_b64 vcc, vcc, 0\ns_nop 1\nv_cndmask_b32 v{vP2}, v34, v{vP2}, vcc')
        if cfg.trk0 >= 0:
            p(f'v_subrev_u32 v34, {64*cfg.trk*7168}, v{vP1}\nv_subrev_u32 v35, {64*cfg.trk*8192}, v{vP2}')
            for tl in range(cfg.trk0, cfg.trk + 2):
                p(f's_mov_b32 s{sT}, {tl*KW}\ns_mov_b32 s{sT+1}, {tl*KQ}')
                p(f'buffer_load_dword v{vPD}, v34, s[{S_W}:{S_W+3}], s{sT} offen ;pf\nbuffer_load_dword v{vPD}, v35, s[{S_Q}:{S_Q+3}], s{sT+1} offen ;pf')
    for i in range(256): p(f'v_accvgpr_write_b32 a{i}, 0')
    if cfg.dbg & 4: p('s_waitcnt vmcnt(%d)' % (0 if cfg.late0 else 11 if cfg.late1 else 22)); ts.stamp(p)
    X = 64; sM = sT + 4
    p(f's_mov_b32 s{sM}, 0xffff0000')
    for i in range(16): p(f'v_lshlrev_b32 v{X+2*i}, 16, v{vLD+i}\nv_and_b32 v{X+2*i+1}, s{sM}, v{vLD+i}')
    if cfg.late0 == 1: dma_tile(0)
    def red(v, tt, off):
        p(f's_nop 1\nv_add_f32_dpp v{v}, v{v}, v{v} row_ror:8 row_mask:0xf bank_mask:0xf')
        p(f'v_mov_b32 v{tt}, v{v}\ns_nop 1\nv_permlane16_swap_b32 v{v}, v{tt}\ns_nop 1\nv_add_f32 v{v}, v{v}, v{tt}')
        p(f'v_mov_b32 v{tt}, v{v}\ns_nop 1\nv_permlane32_swap_b32 v{v}, v{tt}\ns_nop 1\nv_add_f32 v{v}, v{v}, v{tt}')
        p(f'ds_write_b32 v{vLS+1}, v{v} offset:{off}\ns_waitcnt lgkmcnt(0)\ns_barrier')
        p(f'ds_read_b128 v[40:43], v{vLS} offset:{off}')
        p(f'v_add_f32 v40, v40, v41\nv_add_f32 v42, v42, v43\nv_add_f32 v{v}, v40, v42\nv_mul_f32 v{v}, {f2u(1/1024):#x}, v{v}')
    for a in range(0, 4, 2): p(f'v_pk_add_f32 v[{32+a}:{33+a}], v[{X+a}:{X+a+1}], v[{X+4+a}:{X+5+a}]')
    for i in range(8, 32, 2): p(f'v_pk_add_f32 v[{32+i%4}:{33+i%4}], v[{32+i%4}:{33+i%4}], v[{X+i}:{X+i+1}]')
    p('v_pk_add_f32 v[32:33], v[32:33], v[34:35]\nv_add_f32 v32, v32, v33')
    red(32, 33, 0)
    for i in range(32): p(f'v_sub_f32 v{X+32+i}, v{X+i}, v32')
    for a in range(0, 4, 2): p(f'v_pk_mul_f32 v[{36+a}:{37+a}], v[{X+32+a}:{X+33+a}], v[{X+32+a}:{X+33+a}]')
    for i in range(4, 32, 2): p(f'v_pk_fma_f32 v[{36+i%4}:{37+i%4}], v[{X+32+i}:{X+33+i}], v[{X+32+i}:{X+33+i}], v[{36+i%4}:{37+i%4}]')
    p('v_pk_add_f32 v[36:37], v[36:37], v[38:39]\nv_add_f32 v36, v36, v37')
    p(f'v_mov_b32 v44, 0\nbuffer_load_dwordx2 v[2:3], v44, s[{S_DB}:{S_DB+3}], 0 offen sc1')
    red(36, 37, 128)
    def rnd(v): p(f'v_cvt_pk_bf16_f32 v{v}, v{v}, v{v}\nv_lshlrev_b32 v{v}, 16, v{v}')
    rnd(32); rnd(36)
    p(f'v_add_f32 v36, {f2u(1e-5):#x}, v36'); rnd(36)
    p('v_sqrt_f32 v36, v36\ns_nop 0'); rnd(36)
    p('v_rcp_f32 v36, v36\nv_mov_b32 v33, v32\nv_mov_b32 v37, v36')
    for i in range(16):
        a, b = X+2*i, X+2*i+1
        p(f'v_pk_add_f32 v[{a}:{b}], v[{a}:{b}], v[32:33] neg_lo:[0,1] neg_hi:[0,1]\nv_cvt_pk_bf16_f32 v{a}, v{a}, v{b}')
        p(f'v_and_b32 v{b}, s{sM}, v{a}\nv_lshlrev_b32 v{a}, 16, v{a}')
        p(f'v_pk_mul_f32 v[{a}:{b}], v[{a}:{b}], v[36:37]\nv_cvt_pk_bf16_f32 v{vLD+i}, v{a}, v{b}')
        if i % 4 == 3:
            r = vLD + i - 3
            p(f'buffer_store_dwordx4 v[{r}:{r+3}], v{vLO}, s[{S_XN}:{S_XN+3}], 0 offen offset:{1024*(i//4)} sc1')
    if cfg.dbg & 4: ts.stamp(p)
    if cfg.late0 == 2:
        p(f's_cmp_eq_u32 s{sW}, 1\ns_cbranch_scc1 L_t0_w1')
        p(f's_cmp_eq_u32 s{sW}, 0\ns_cbranch_scc0 L_t0_own')
        p.cond(True)
        p(f's_add_u32 s{sT+1}, s{sKW}, {32*7168}\ns_add_u32 s{sT+2}, s{sKQ}, {16*8192}')
        for d in range(11):
            if d in (0, 4): p(f's_mov_b32 m0, {HS + 1024*d}\ns_nop 0')
            if d == 7: p(f's_mov_b32 m0, {14336 + 4096}\ns_nop 0')
            t_ = dma(d, 0, 0)[0].replace(f's{sKW} offen', f's{sT+1} offen').replace(f's{sKQ} offen', f's{sT+2} offen')
            p(t_)
        p.cond(False)
        p('L_t0_own:')
        dma_tile(0)
        for i in range(160, 208): p(f'v_mov_b32 v{i}, 0')
        p(f's_cmp_eq_u32 s{sW}, 0\ns_cbranch_scc0 L_t0_w23')
        p.cond(True)
        p('s_waitcnt vmcnt(22)\ns_branch L_t0_done')
        p('L_t0_w1:')
        for x in adv_w() + adv_q(): p(x)
        for i in range(160, 208): p(f'v_mov_b32 v{i}, 0')
        p('s_waitcnt vmcnt(0)\ns_branch L_t0_done')
        p.cond(False)
        p('L_t0_w23:\ns_waitcnt vmcnt(11)\nL_t0_done:')
    elif cfg.pf3:
        p(f's_cmp_eq_u32 s{sW}, 1\ns_cbranch_scc1 L_p3_w1')
        p(f's_add_u32 s{sT}, s{sRB}, {cfg.pf3}\ns_mul_i32 s{sT+1}, s{sT}, {KW}\ns_mul_i32 s{sT+2}, s{sT}, {KQ}\ns_mul_i32 s{sT}, s{sW}, 4096\ns_add_u32 m0, s{sT}, {4*HS}\ns_nop 0')
        for d in range(11):
            p(dma(d, 0, 0)[0].replace(f's{sKW} offen', f's{sT+1} offen').replace(f's{sKQ} offen', f's{sT+2} offen'))
        for i in range(160, 208): p(f'v_mov_b32 v{i}, 0')
        p('s_waitcnt vmcnt(11)')
        p.cond(True)
        p('s_branch L_p3_done\nL_p3_w1:')
        for i in range(160, 208): p(f'v_mov_b32 v{i}, 0')
        p('s_waitcnt vmcnt(0)')
        p.cond(False)
        p('L_p3_done:')
    else:
        for i in range(160, 208): p(f'v_mov_b32 v{i}, 0')
        p('s_waitcnt vmcnt(0)')
    sXC, sREM = 75, 74
    p(f's_getreg_b32 s{sXC}, hwreg(HW_REG_XCC_ID, 0, 4)\ns_lshl_b32 s{sXC}, s{sXC}, 1')
    if cfg.fremote: p(f's_lshr_b32 s{sXC}, s2, 4\ns_and_b32 s{sXC}, s{sXC}, 0x1e')
    p(f's_and_b32 s{sT}, s{sCB}, 24\ns_lshl_b32 s{sT+1}, s{sRB}, 5\ns_add_u32 s{sT}, s{sT}, s{sT+1}\ns_lshl_b32 s{sT}, s{sT}, 7')
    p(f'v_and_b32 v45, 7, v1\nv_lshl_add_u32 v45, v45, 7, s{sT}')
    vHF = 27
    p(f's_lshl_b32 s{sT}, s{sRB}, 12\ns_lshl_b32 s{sT+1}, s{sCB}, 7\ns_add_u32 s{sT+1}, s{sT}, s{sT+1}\nv_mov_b32 v32, s{sT+1}')
    p(f'v_and_b32 v34, 31, v1\nv_lshl_add_u32 v34, v34, 7, s{sT}')
    p('s_barrier')
    ts.stamp(p)
    def poll(lbl, vaddr, done, mask=False):
        p(f'{lbl}:')
        p(f'buffer_load_dwordx2 v[36:37], v{vaddr}, s[{S_FL}:{S_FL+3}], 0 offen sc1\ns_waitcnt vmcnt(0)')
        if mask: p('v_and_b32 v36, 0xffffffe1, v36')
        p(f'v_cmp_ne_u64 vcc, s[{sNO}:{sNO+1}], v[36:37]\ns_nop 1\ns_cbranch_vccz {done}\ns_sleep {cfg.slp}\ns_branch {lbl}')
    p(f's_cmp_eq_u32 s{sW}, 1\ns_cbranch_scc0 L_xn_got')
    p.cond(True)
    p('L_no_retry:')
    p(f'v_readfirstlane_b32 s{sNO}, v2\nv_readfirstlane_b32 s{sNO+1}, v3\ns_nop 0\ns_cmp_lg_u32 s{sNO}, 0\ns_cbranch_scc1 L_no_ok')
    p(f'buffer_load_dwordx2 v[2:3], v44, s[{S_DB}:{S_DB+3}], 0 offen sc1\ns_waitcnt vmcnt(0)\ns_branch L_no_retry')
    p('L_no_ok:')
    p(f'v_or_b32 v38, s{sXC}, v2\nv_mov_b32 v39, v3\nbuffer_store_dwordx2 v[38:39], v32, s[{S_FL}:{S_FL+3}], 0 offen sc1')
    poll('L_xn_poll', 34, 'L_xn_got', True)
    p.cond(False)
    p('L_xn_got:\ns_barrier')
    ts.stamp(p)
    def act(sub, b):
        r = vB + 16*(sub % RB) + 4*b
        return f'buffer_load_dwordx4 v[{r}:{r+3}], v{vAct+b}, s[{S_XN}:{S_XN+3}], s{sKA} offen offset:{1024*(sub % 2)}{SC}'
    NG = 22
    def vm_sched(step, g2):
        s, t = divmod(g2, NG); sub = 2*step + s
        d = None; a = None
        if cfg.d0 <= g2 < cfg.d0 + 11*cfg.dstr and (g2 - cfg.d0) % cfg.dstr == 0: d = (g2 - cfg.d0)//cfg.dstr
        if cfg.a0 <= t < cfg.a0 + 4*cfg.astr and (t - cfg.a0) % cfg.astr == 0: a = (sub + cfg.ad, (t - cfg.a0)//cfg.astr)
        return d, a
    for sub in range(cfg.ad):
        for b in range(4): p(act(sub, b))
        if sub % 2 == 1:
            for x in adv_a(): p(x)
    if cfg.late1: dma_tile(1)
    p(f'buffer_load_dwordx2 v[2:3], v44, s[{S_DB}:{S_DB+3}], 0 offen sc1')
    if cfg.loc: p(f'buffer_load_dword v28, v45, s[{S_FL}:{S_FL+3}], 0 offen sc1')
    if cfg.pf4:
        sh = 0 if cfg.pf4n == 8 else 1
        p(f's_lshr_b32 s{sT}, s{sRB}, {sh}\ns_add_u32 s{sT}, s{sT}, {cfg.pf4}\ns_mul_i32 s{sT+1}, s{sT}, {KW}\ns_mul_i32 s{sT+2}, s{sT}, {KQ}\ns_mul_i32 s{sT}, s{sW}, 4096\ns_add_u32 m0, s{sT}, {6*HS}\ns_nop 0')
        for d in range(11):
            p(dma(d, 0, 0)[0].replace(f's{sKW} offen', f's{sT+1} offen').replace(f's{sKQ} offen', f's{sT+2} offen'))
    S_CL, sCL = S_O, 85
    if cfg.sent:
        p(f's_and_b32 s{sT}, s2, 1\ns_lshl_b32 s{sT}, s{sT}, 2\ns_bfe_u32 s{sT+1}, s2, 0x20003\ns_add_u32 s{sT}, s{sT}, s{sT+1}\ns_lshl_b32 s{sT}, s{sT}, 3\ns_lshr_b32 s{sT+1}, s2, 5\ns_add_u32 s{sT}, s{sT}, s{sT+1}')
        p(f's_lshl_b32 s{sT}, s{sT}, 2\ns_bfe_u32 s{sT+1}, s2, 0x20001\ns_add_u32 s{sT}, s{sT}, s{sT+1}\ns_lshl_b32 s{sT}, s{sT}, 2\ns_add_u32 s{sT}, s{sT}, s{sW}\ns_mul_i32 s{sCL}, s{sT}, 12288')
        srd(p, S_CL, pWS, WS_P + 256*3*16384, 0)
        p(f's_add_u32 s{S_CL+2}, s{sCL}, 12288\nv_lshlrev_b32 v139, 4, v1')
        for i in range(4): p(f'v_mov_b32 v{132+i}, -1')
    srd(p, S_H, pWS, WS_H, 15 << 20)
    srd(p, S_K, pK, 0, 2 << 20)
    srd(p, S_V, pV, 0, 2 << 20)
    if cfg.kvp:
        p(f's_lshr_b32 s{sT}, s2, 3\ns_lshl_b32 s{sT}, s{sT}, 2\ns_add_u32 s{sT}, s{sT}, s{sW}\ns_lshl_b32 s{sT}, s{sT}, 10')
        p(f's_lshr_b32 s{sT+1}, s{sCB}, 3\ns_lshl_b32 s{sT+1}, s{sT+1}, 19\ns_add_u32 s{sT}, s{sT}, s{sT+1}\ns_add_u32 s{sT}, s{sT}, {1536*256}')
        p(f'v_and_b32 v29, 15, v1\nv_lshlrev_b32 v29, 6, v29')
        p(f'buffer_load_dword v{vPD}, v29, s[{S_K}:{S_K+3}], s{sT} offen ;pf\nbuffer_load_dword v{vPD}, v29, s[{S_V}:{S_V+3}], s{sT} offen ;pf')
    for i in range(208, 256): p(f'v_mov_b32 v{i}, 0')
    if cfg.late0 == 2: p.need(('W', NHS, 1, 0)); p('s_barrier')
    P = cfg.P
    def trr(G, tile0, stride):
        step, g2 = divmod(G, 2*NG); s, t = divmod(g2, NG)
        r = vA + 4*(G % RA)
        tag = ('W', NHS, 2*(tile0 + step) + 1, 2*stride) if s == 1 else None
        if t < 14: off = (t // 7)*7168 + (t % 7)*32; a = vTr; hh = 8*224
        else: off = 0; a = vTq + t - 14; hh = 1024
        return [(f'ds_read_b64_tr_b16 v[{r}:{r+1}], v{a} offset:{off}', tag),
                (f'ds_read_b64_tr_b16 v[{r+2}:{r+3}], v{a} offset:{off + hh}', tag)]
    for G in range(P):
        for f in trr(G, 0, 0): emit(p, f)
    UN = 2
    p(f's_mov_b32 s{sDL}, 0\ns_mov_b32 s{sCNT}, {NT//UN}')
    p(f's_waitcnt vmcnt({4*(cfg.ad-1) + (11 if cfg.late1 else 0) + (11 if cfg.pf4 else 0) + (2 if cfg.kvp else 0) + 1 + cfg.loc})')
    def code_srd(q, lbl):
        return [f's_getpc_b64 s[{q}:{q+1}]\n{lbl}:\ns_sub_u32 s{q}, s{q}, {lbl}-L_pc\ns_subb_u32 s{q+1}, s{q+1}, 0', f's_mov_b32 s{q+2}, K_last-L_pc', f's_mov_b32 s{q+3}, 0x20000']
    def code_pf(q, m0v):
        return [f's_add_u32 m0, s{sCP}, {m0v}', m0gap, f'buffer_load_dwordx4 v0, s[{q}:{q+3}], 0 offen lds']
    sCP = 84
    if cfg.cpf2:
        for x in code_srd(S_DB, 'L_pc2'): p(x)
        p(f's_lshr_b32 s{sT}, s2, 3\ns_lshl_b32 s{sT}, s{sT}, 12\nv_lshlrev_b32 v0, 4, v0\nv_add_u32 v0, s{sT}, v0\ns_lshl_b32 s{sCP}, s{sW}, 10')
    ts.stamp(p)
    p.loop_begin('G_loop', NT//UN)
    mf = []; hi = {}; lo = {}
    def H(i, x): hi.setdefault(i, []).append(x)
    def L(i, x): lo.setdefault(i, []).append(x)
    NGB = 2*NG*UN
    for G in range(NGB):
        step, g2 = divmod(G, 2*NG); s, t = divmod(g2, NG)
        sub = 2*step + s
        for b in range(4):
            ra = vA + 4*(G % RA); rb = vB + 16*(sub % RB) + 4*b
            mf.append(f'v_mfma_f32_16x16x32_bf16 {acc(t,b)}, v[{ra}:{ra+3}], v[{rb}:{rb+3}], {acc(t,b)}')
        i0 = 4*G; Gn = G + P; tn = Gn % NG
        if Gn % (2*NG) == 0:
            stepn = Gn // (2*NG)
            H(i0-1, lambda p, stepn=stepn: (p.need(('W', NHS, 2*stepn + 1, 2*UN)), p('s_barrier')))
        if tn == 0: H(i0-2, f'v_add_u32 v{vTr}, s{sDL}, v{vTr}')
        r0, r1 = trr(Gn % NGB, (Gn // NGB)*UN, UN)
        H(i0, r0); H(i0+1, r1)
        if 1 <= tn <= 8: L(i0, f'v_add_u32 v{vTq+tn-1}, s{sDL}, v{vTq+tn-1}')
        if tn == 9:
            for x in adv_rd(): L(i0, x)
        pc, a = vm_sched(step, g2)
        if a is not None:
            L(i0, act(*a))
            if a[1] == 3 and a[0] % 2 == 1:
                for x in adv_a(): L(i0, x)
        if cfg.trk and pc == 0:
            L(i0, f'buffer_load_dword v{vPD}, v{vP1}, s[{S_W}:{S_W+3}], s{sKW} offen ;pf')
            L(i0, f'buffer_load_dword v{vPD}, v{vP2}, s[{S_Q}:{S_Q+3}], s{sKQ} offen ;pf')
        if pc is not None:
            for x in m0set(pc): L(i0, x)
            if m0set(pc): L(i0, m0gap)
            L(i0, dma(pc, step + 2, UN))
            if pc == 6:
                for x in adv_w(): L(i0, x)
            if pc == 10:
                for x in adv_q(): L(i0, x)
    if cfg.sent:
        for k in range(2):
            L(4*(2*NG*k + 30) + 2, f'buffer_store_dwordx4 v[132:135], v139, s[{S_CL}:{S_CL+3}], s{sCL} offen sc1'); L(4*(2*NG*k + 30) + 2, f's_add_u32 s{sCL}, s{sCL}, 1024')
    if cfg.cpf2:
        for x in code_pf(S_DB, LDS_SCR + 1024): L(4*(cfg.d0 + 10*cfg.dstr) + 1, x)
    H(len(mf)-3, f's_sub_u32 s{sCNT}, s{sCNT}, 1'); H(len(mf)-2, f's_cmp_lg_u32 s{sCNT}, 0')
    H(len(mf)-1, 's_cbranch_scc1 G_loop')
    fill = spread(hi, lo, len(mf), cfg.cap, 16, cost=lambda i: 1 if i % 4 == 3 else 0)
    fix_m0(fill, len(mf)); chk_tail(fill, len(mf))
    interleave(p, mf, fill)
    p.loop_end()
    p('s_waitcnt vmcnt(0) lgkmcnt(0)\ns_barrier')
    ts.stamp(p, 5)

    p(f'v_readfirstlane_b32 s{sNO}, v2\nv_readfirstlane_b32 s{sNO+1}, v3')
    if cfg.loc: p(f'v_and_b32 v28, 0x1e, v28\nv_cmp_ne_u32 vcc, s{sXC}, v28\ns_nop 1\ns_cmp_lg_u64 vcc, 0\ns_cselect_b32 s{sREM}, 1, 0')
    srd(p, S_O, pWS, WS_O, 17 << 20)
    vDK, vDV, vK, vV = 8, 12, 13, 21
    sKV, sMK, sAD, sPF = 39, 40, 43, 44
    t = 128
    p(f'v_lshrrev_b32 v{t}, 4, v1\nv_and_b32 v{t+1}, 15, v1')
    p(f's_lshl_b32 s{sMK}, s{sW}, 12')
    p(f'v_lshlrev_b32 v{t+2}, 8, v{t}\nv_add_u32 v{t+2}, s{sMK}, v{t+2}')
    for j in range(4):
        p(f'v_add_u32 v{t+3}, {4*j}, v{t}\nv_xor_b32 v{t+3}, v{t+3}, v{t+1}\nv_lshl_add_u32 v{vDK+j}, v{t+3}, 4, v{t+2}')
    p(f'v_lshlrev_b32 v{t+3}, 2, v{t}\nv_xor_b32 v{t+3}, v{t+3}, v{t+1}\nv_lshl_add_u32 v{vDV}, v{t+3}, 4, v{t+2}')
    p(f's_lshr_b32 s{sKV}, s{sCB}, 3\ns_lshl_b32 s{sKV}, s{sKV}, 19\ns_add_u32 s{sKV}, s{sKV}, {1536*256}')
    def kdma(j, soff, tag): return (f'buffer_load_dwordx4 v{vDK+j}, s[{S_K}:{S_K+3}], s{soff} offen offset:{1024*j} lds', tag)
    def vdma(j, soff, tag): return (f'buffer_load_dwordx4 v{vDV}, s[{S_V}:{S_V+3}], s{soff} offen offset:{1024*j} lds', tag)
    kvq = []
    for (kind, tl) in (('K', 0), ('K', 1), ('V', 0), ('K', 2), ('V', 1)):
        g = [f's_add_u32 s{sT+5}, s{sKV}, {tl*16384}', f's_add_u32 m0, s{sMK}, {tl*16384 + (65536 if kind == "V" else 0)}', 's_nop 0']
        for j in range(4):
            kvq.append(g + [(kdma if kind == 'K' else vdma)(j, sT+5, (kind, 4, tl, 0))]); g = []
    k1 = -2*math.sqrt(2/math.pi)*math.log2(math.e); k2 = k1*0.044715
    vC = 28
    p(f'v_mov_b32 v{vC}, {f2u(k1):#x}\nv_mov_b32 v{vC+1}, {f2u(k1):#x}\nv_mov_b32 v{vC+2}, {f2u(k2):#x}\nv_mov_b32 v{vC+3}, {f2u(k2):#x}')
    p(f's_lshl_b32 s{sT+2}, s{sRB}, 4\ns_lshl_b32 s{sT+3}, s{sW}, 2\ns_add_u32 s{sT+2}, s{sT+2}, s{sT+3}\ns_mul_i32 s{sT+2}, s{sT+2}, {HST}')
    p(f's_mul_i32 s{sT+3}, s{sCB}, 7\ns_add_u32 s{sT+3}, s{sT+3}, 1\ns_lshr_b32 s{sT+3}, s{sT+3}, 1\ns_lshl_b32 s{sT+3}, s{sT+3}, 10')
    p(f's_add_u32 s{sT+2}, s{sT+2}, s{sT+3}')
    p(f'v_lshlrev_b32 v{t}, 4, v1\nv_add_u32 v{vAct}, s{sT+2}, v{t}')
    for b in range(1, 4): p(f'v_add_u32 v{vAct+b}, {b*HST:#x}, v{vAct}')
    p(f's_and_b32 s{sT+3}, s{sCB}, 1\ns_cmp_eq_u32 s{sT+3}, 0\ns_mov_b32 s{sT+4}, 3072\ns_cselect_b32 s{sT+4}, s{sT+4}, -1016')
    vHs = 132
    for b in range(4): p(f'v_add_u32 v{vHs+b}, s{sT+4}, v{vAct+b}')
    def gelu_tiles(tiles):
        n = len(tiles)
        Xs = [32 + 12*i for i in range(n)]
        pk = lambda r: f'v[{r}:{r+1}]'
        for (t, b, d), X in zip(tiles, Xs):
            for r in range(4): p(f'v_accvgpr_read_b32 v{X+r}, {accr(t,b,r)}')
        for X in Xs:
            for r in (0, 2): p(f'v_pk_mul_f32 {pk(X+8+r)}, {pk(X+r)}, {pk(X+r)}')
        for X in Xs:
            for r in (0, 2): p(f'v_pk_fma_f32 {pk(X+8+r)}, {pk(X+8+r)}, {pk(vC+2)}, {pk(vC)}')
        for X in Xs:
            for r in (0, 2): p(f'v_pk_mul_f32 {pk(X+8+r)}, {pk(X+8+r)}, {pk(X+r)}')
        for (t, b, d), X in zip(tiles, Xs):
            for r in range(4): p(f'v_exp_f32 v{X+8+r}, v{X+8+r}')
            for r in range(4): p(f'v_accvgpr_read_b32 v{X+4+r}, {accr(t+7,b,r)}')
        for X in Xs:
            for r in (0, 2): p(f'v_pk_add_f32 {pk(X+8+r)}, {pk(X+8+r)}, 1.0 op_sel_hi:[1,0]')
        for X in Xs:
            for r in range(4): p(f'v_rcp_f32 v{X+8+r}, v{X+8+r}')
            for r in (0, 2): p(f'v_pk_mul_f32 {pk(X+4+r)}, {pk(X+4+r)}, {pk(X+r)}')
        for X in Xs:
            for r in (0, 2): p(f'v_pk_mul_f32 {pk(X+4+r)}, {pk(X+4+r)}, {pk(X+8+r)}')
        for (t, b, d), X in zip(tiles, Xs):
            p(f'v_cvt_pk_bf16_f32 v{d}, v{X+4}, v{X+5}\nv_cvt_pk_bf16_f32 v{d+1}, v{X+6}, v{X+7}')
    for par in range(2):
        if par == 0: p('s_cbranch_scc0 B_epi_odd')
        else: p.cond(True); p('B_epi_odd:')
        n = 0; kq = list(kvq)
        for b in range(4):
            for pr in range(3):
                d = 64 + 4*(n % 8); n += 1
                for _ in range(2):
                    if kq:
                        for x in kq.pop(0): emit(p, x)
                gelu_tiles([(2*pr + par, b, d), (2*pr + 1 + par, b, d + 2)])
                p(f'buffer_store_dwordx4 v[{d}:{d+3}], v{vAct+b}, s[{S_H}:{S_H+3}], 0 offen offset:{1024*pr}{LS}', ('Hst', 1, 0, 0))
        for b in range(0, 4, 2):
            d = 64 + 4*(n % 8); n += 1
            gelu_tiles([(6 if par == 0 else 0, b, d), (6 if par == 0 else 0, b+1, d+2)])
            p(f'buffer_store_dwordx2 v[{d}:{d+1}], v{vHs+b}, s[{S_H}:{S_H+3}], 0 offen{LS}', ('Hst', 1, 0, 0))
            p(f'buffer_store_dwordx2 v[{d+2}:{d+3}], v{vHs+b+1}, s[{S_H}:{S_H+3}], 0 offen{LS}', ('Hst', 1, 0, 0))
        if par == 0: p('s_branch B_epi_done')
    p.cond(False)
    p('B_epi_done:')
    ts.stamp(p, 5)
    vQ = 64
    qs = math.log2(math.e)/math.sqrt(128)
    def qconv(qt, s):
        d = vQ + (qt*8+s)*4
        for half in range(2):
            b = 2*qt + half; x = 32 + 4*half
            src = accr(14+s, b, 0)
            if src[0] == 'a':
                for r in range(4): p(f'v_accvgpr_read_b32 v{x+r}, {accr(14+s, b, r)}')
                s0 = x
            else: s0 = int(src[1:])
            for r in (0, 2): p(f'v_pk_mul_f32 v[{x+r}:{x+r+1}], v[{s0+r}:{s0+r+1}], v[{vC}:{vC+1}]')
            p(f'v_cvt_pk_bf16_f32 v{d+2*half}, v{x}, v{x+1}\nv_cvt_pk_bf16_f32 v{d+2*half+1}, v{x+2}, v{x+3}')
    def qswap(qt, s):
        d = vQ + (qt*8+s)*4
        p(f'v_permlane16_swap_b32 v{d}, v{d+2}\nv_permlane16_swap_b32 v{d+1}, v{d+3}')
    t = 32
    p(f'v_and_b32 v{t}, 31, v1\nv_lshrrev_b32 v{t+1}, 5, v1\nv_and_b32 v{t+2}, 15, v1\nv_xor_b32 v{t+1}, v{t+1}, v{t+2}\nv_lshlrev_b32 v{t}, 8, v{t}')
    for s in range(8):
        p(f'v_xor_b32 v{t+2}, {2*s}, v{t+1}\nv_lshl_add_u32 v{vK+s}, v{t+2}, 4, v{t}')
    p(f'v_mov_b32 v{vC}, {f2u(qs):#x}\nv_mov_b32 v{vC+1}, {f2u(qs):#x}')
    vS = [128, 160]; vP = [192, 208]; vN = 224; vL = 28
    aF = 192
    def Sreg(n, qt): return vS[n % 2] + 16*qt
    def Preg(n, qt, ks): return vP[n % 2] + 8*qt + 4*ks
    def kread(n, s, tag):
        r = aF + 4*s
        return [(f'ds_read_b128 a[{r}:{r+3}], v{vK+s} offset:{(n % 8)*8192}', ('K', 4, n//2, 0))]
    def vread(n, f, tag, base=None, off0=None):
        ks, dt = divmod(f, 4); r = aF + 32 + 4*f
        off = (32*(n % 8) + 16*ks)*256 if off0 is None else off0 + 16*ks*256
        b = vV if base is None else base
        return [(f'ds_read_b64_tr_b16 a[{r}:{r+1}], v{b+dt} offset:{off}', tag),
                (f'ds_read_b64_tr_b16 a[{r+2}:{r+3}], v{b+dt} offset:{off+2048}', tag)]
    def qk(n, s, qt, c0):
        S = Sreg(n, qt); c = f'v[{S}:{S+15}]' if s else c0(qt)
        return f'v_mfma_f32_32x32x16_bf16 v[{S}:{S+15}], a[{aF+4*s}:{aF+4*s+3}], v[{vQ+(qt*8+s)*4}:{vQ+(qt*8+s)*4+3}], {c}'
    def pv(n, f, qt, first=False):
        ks, dt = divmod(f, 4); o = (dt*2+qt)*16; P_ = Preg(n, qt, ks)
        c = '0' if first and ks == 0 else f'a[{o}:{o+15}]'
        return f'v_mfma_f32_32x32x16_bf16 a[{o}:{o+15}], a[{aF+32+4*f}:{aF+32+4*f+3}], v[{P_}:{P_+3}], {c}'
    negm = lambda qt: f'v[{vN+16*qt}:{vN+16*qt+15}]'
    zero = lambda qt: '0'
    def softmax_ops(n):
        sl = [[] for _ in range(33)]
        for e in range(32):
            qt, i = divmod(e, 16); S = Sreg(n, qt); Pr = Preg(n, qt, i>>3)+((i&7)>>1)
            sl[e].insert(0, f'v_exp_f32 v{S+i}, v{S+i}')
            if cfg.sum == 'add': sl[e+1].append(f'v_add_f32 v{vL+2*qt+(i&1)}, v{vL+2*qt+(i&1)}, v{S+i}')
            if i & 1:
                if e == 31 and cfg.sum != 'add': sl[e+1].append('s_nop 0')
                sl[e+1].append(f'v_cvt_pk_bf16_f32 v{Pr}, v{S+i-1}, v{S+i}')
                k = min(32, e+2)
                if cfg.sum == 'pk': sl[k].append(f'v_pk_add_f32 v[{vL+2*qt}:{vL+2*qt+1}], v[{vL+2*qt}:{vL+2*qt+1}], v[{S+i-1}:{S+i}]')
                if cfg.sum == 'dot': sl[k].append(f'v_dot2_f32_bf16 v{vL+2*qt+((i>>1)&1)}, v{Pr}, v39, v{vL+2*qt+((i>>1)&1)}')
        return sl
    if cfg.sum == 'dot': p('v_mov_b32 v39, 0x3f803f80')
    p.need(('K', 4, 0, 0)); p('s_barrier')
    for s in range(8): emit(p, kread(0, s, None)[0])
    ts.stamp(p, 5)
    qconv(0, 0); qconv(1, 0)
    for s in range(8):
        if s < 7: qconv(0, s+1)
        qswap(0, s); qswap(1, s)
        if s < 7: qconv(1, s+1)
        else: p('s_nop 1')
        for qt in range(2): p(qk(0, s, qt, zero))
        emit(p, kread(1, s, None)[0])
    t = 36
    p(f'v_lshrrev_b32 v{t}, 5, v1\nv_lshlrev_b32 v{t}, 2, v{t}\nv_bfe_u32 v{t+1}, v1, 2, 2\nv_add_u32 v{t}, v{t}, v{t+1}\nv_lshlrev_b32 v{t}, 8, v{t}')
    p(f'v_bfe_u32 v{t+2}, v1, 4, 1\nv_lshlrev_b32 v{t+2}, 5, v{t+2}\nv_and_b32 v{t+3}, 3, v1\nv_lshlrev_b32 v{t+3}, 3, v{t+3}\nv_add3_u32 v{t}, v{t}, v{t+2}, v{t+3}')
    p(f'v_add_u32 v{t}, 0x10000, v{t}')
    for dt in range(4):
        p(f'v_xor_b32 v{t+2}, {dt}, v{t+1}\nv_lshl_add_u32 v{vV+dt}, v{t+2}, 6, v{t}')
    for i in range(4): p(f'v_mov_b32 v{vL+i}, 0')
    def rowmax(n, first):
        for qt in range(2):
            S = Sreg(n, qt); m = 32 + 2*qt
            if first: p(f'v_max3_f32 v{m}, v{S}, v{S+1}, v{S+2}')
            else: p(f'v_max3_f32 v{m}, v{m}, v{S+1}, v{S+2}\nv_max_f32 v{m}, v{m}, v{S}')
            for i in range(3, 15, 2): p(f'v_max3_f32 v{m}, v{m}, v{S+i}, v{S+i+1}')
            p(f'v_max_f32 v{m}, v{m}, v{S+15}')
    def set_negm():
        p('v_mov_b32 v33, v32\nv_mov_b32 v35, v34\ns_nop 0\nv_permlane32_swap_b32 v32, v33\nv_permlane32_swap_b32 v34, v35\ns_nop 0')
        for qt in range(2):
            m = 32 + 2*qt
            p(f'v_max_f32 v{m}, v{m}, v{m+1}\nv_sub_f32 v{vN+16*qt}, 0, v{m}\nv_mov_b32 v{vN+16*qt+1}, v{vN+16*qt}')
            for i in range(2, 16, 2): p(f'v_pk_mul_f32 v[{vN+16*qt+i}:{vN+16*qt+i+1}], v[{vN+16*qt}:{vN+16*qt+1}], 1.0 op_sel_hi:[1,0]')
    ts.stamp(p, 4)
    rowmax(0, True); set_negm()
    for qt in range(2):
        S = Sreg(0, qt)
        for i in range(0, 16, 2): p(f'v_pk_add_f32 v[{S+i}:{S+i+1}], v[{S+i}:{S+i+1}], v[{vN+16*qt}:{vN+16*qt+1}]')
    ts.stamp(p, 4)
    S_WD, S_WO, S_AH, S_AO, S_X, S_OUT, S_P = 12, 8, 16, 20, 24, 28, 60
    sJ, sRC, sCC = 70, 71, 76
    kWD, kWO, kAH, kAO, cMW, cTG = 77, 75, 78, 42, 79, 49
    dD, dO, aH, aO, cTr, cA, cC = 40, 8, 48, 4, 52, 64, 128
    vFH = 60
    SLOT = 32768
    k_h = lambda pc: 4*pc
    k_o = lambda pc: 4*((pc & 1) | ((pc & 2) << 1) | ((pc & 4) >> 1))
    def x_dma_addr(dst, kmap):
        t = 36
        p(f's_lshl_b32 s{sT+2}, s{sW}, 16\ns_lshl_b32 s{sT+3}, s{sCC}, 8\ns_add_u32 s{sT+2}, s{sT+2}, s{sT+3}')
        p(f'v_lshrrev_b32 v{t}, 4, v1\nv_and_b32 v{t+1}, 15, v1\nv_lshlrev_b32 v{t+2}, 1, v{t}\nv_xor_b32 v{t+1}, v{t+1}, v{t+2}')
        p(f'v_lshlrev_b32 v{t}, 11, v{t}\nv_add_u32 v{t}, s{sT+2}, v{t}')
        for pc in range(8):
            p(f'v_xor_b32 v{t+2}, {8*(pc & 1)}, v{t+1}\nv_lshl_add_u32 v{t+2}, v{t+2}, 4, v{t}\nv_add_u32 v{dst+pc}, {(kmap(pc) << 11) - 1024*(pc % 4)}, v{t+2}')
    NS = ND + 8; kind = lambda sg: 'd' if sg < ND else 's'
    def cdma(pc, sg):
        D_, S_, K_ = (dD, S_WD, kWD) if kind(sg) == 'd' else (dO, S_WO, kWO)
        g = []
        if pc % 4 == 0: g += [f's_add_u32 m0, s{cMW}, {(sg % 4)*SLOT + 1024*pc}', m0gap]
        g.append((f'buffer_load_dwordx4 v{D_+pc}, s[{S_}:{S_+3}], s{K_} offen offset:{1024*(pc%4)} lds', ('C', 4, sg, 0)))
        if pc == 7: g.append(f's_add_u32 s{K_}, s{K_}, {128*2048}')
        return g
    def cact(sub, b):
        A_, S_, K_ = (aH, S_AH, kAH) if kind(sub // 4) == 'd' else (aO, S_AO, kAO)
        r = 128 + 16*(sub % 8) + 4*b
        g = [f'buffer_load_dwordx4 a[{r}:{r+3}], v{A_+b}, s[{S_}:{S_+3}], s{K_} offen offset:{1024*(sub % 4)}{SC}']
        if b == 3 and sub % 4 == 3: g.append(f's_add_u32 s{K_}, s{K_}, 4096')
        return g
    def flagchk(lbl, vaddr, vd, acq=False):
        l = [f'v_cmp_ne_u64 vcc, s[{sNO}:{sNO+1}], v[{vd}:{vd+1}]', 's_nop 0', 's_nop 0', f's_cbranch_vccz {lbl}_ok',
             f'{lbl}_spin: ;cond', f'buffer_load_dwordx2 v[{vd}:{vd+1}], v{vaddr}, s[{S_FL}:{S_FL+3}], 0 offen sc1 ;cond', 's_waitcnt vmcnt(0) ;cond',
             f'v_cmp_ne_u64 vcc, s[{sNO}:{sNO+1}], v[{vd}:{vd+1}] ;cond', 's_nop 1 ;cond', f's_cbranch_vccnz {lbl}_spin ;cond', f'{lbl}_ok:']
        if acq and cfg.loc:
            l += [f's_cmp_eq_u32 s{sREM}, 0', f's_cbranch_scc1 {lbl}_na', 'buffer_inv sc1 ;cond', 's_waitcnt vmcnt(0) ;cond', f'{lbl}_na:']
        return l
    def collect(fn):
        nonlocal p
        w = Prog(); q = p; p = w; fn(); p = q
        out = []
        for it in w.items:
            if it.op == 's_addc_u32': out[-1] = (out[-1][0] + '\n' + it.text, None)
            else: out.append((it.text, it.tag))
        return out
    PF = cfg.PF; vPF = 25; sDM = 55; sPF = 44
    pairs = []; sm = []; start = {}
    for n in range(17):
        st = len(pairs); start[n] = st
        if n <= 14:
            for s_ in range(8): pairs.append((qk(n+1, s_, 0, negm), qk(n+1, s_, 1, negm), kread(n+1, s_, None) if n else []))
        if n >= 1:
            for f in range(8): pairs.append((pv(n-1, f, 0, n == 1), pv(n-1, f, 1, n == 1), vread(n-1, f, ('V', 4, (n-1)//2, 0))))
        if n <= 15: sm.append((st, len(pairs), softmax_ops(n)))
    mf = []; hi = {}; lo = {}
    for a_, b_, _ in pairs: mf += [a_, b_]
    n_ = len(mf)
    bargap = {}
    for j in range(8):
        g = 2*(start[2*j+1] - PF) - 1; bargap[j] = g
        def bar_(p, j=j):
            if j < 7: p.need(('K', 4, j+1, 0))
            p.need(('V', 4, j, 0))
            if j == cfg.hbar: p.need(('Hst', 1, 0, 0))
            p('s_barrier')
        H(g, bar_)
    for i in range(len(pairs) - PF):
        for k, r in enumerate(pairs[i + PF][2]): H(2*i + k, r)
    for (st, en, sl) in sm:
        ng = 2*(en - st)
        for e, ops in enumerate(sl):
            for o in ops: H(2*st + min(ng - 1, e*ng//32), o)
    def setup1():
        p(f's_lshl_b32 s{sT}, s2, 2\ns_add_u32 s{sT}, s{sT}, s{sW}\ns_lshl_b32 s{sT+1}, s{sT}, 13\ns_mul_i32 s{sT}, s{sT}, 7168')
        p(f'v_lshlrev_b32 v{vPF}, 4, v1\nv_add_u32 v{vPF+1}, s{sT}, v{vPF}\nv_add_u32 v{vPF}, s{sT+1}, v{vPF}')
        srd(p, S_WO, pWO, 0, 8 << 20); srd(p, S_WD, pWD, 0, 7 << 20)
        p(f's_lshl_b32 s{sDM}, s{sMK}, 1\ns_add_u32 s{sDM}, s{sDM}, 0x20000\ns_mov_b32 s{sPF}, 0')
        p(f's_lshl_b32 s{sT}, s{sRB}, 12\ns_lshl_b32 s{sT+1}, s{sCB}, 7\ns_add_u32 s{sT}, s{sT}, s{sT+1}\ns_add_u32 s{sT}, s{sT}, {256*128}\nv_mov_b32 v{vHF}, s{sT}')
    def setup2():
        if cfg.fs:
            p(f's_lshr_b32 s{sT}, s{sNO}, 5\ns_xor_b32 s{sT}, s{sT}, s2\ns_and_b32 s{sT}, s{sT}, 1\ns_and_b32 s{sJ}, s2, 2\ns_or_b32 s{sJ}, s{sJ}, s{sT}')
            p(f's_and_b32 s{sRC}, s2, 4\ns_bfe_u32 s{sT+1}, s2, 0x20003\ns_add_u32 s{sRC}, s{sRC}, s{sT+1}\ns_lshr_b32 s{sCC}, s2, 5')
            p(f's_lshr_b32 s{sT+1}, s{sJ}, 1\ns_mul_i32 s{kAH}, s{sT+1}, 14\ns_lshl_b32 s{sT+2}, s{sT}, 3\ns_add_u32 s{kAH}, s{kAH}, s{sT+2}')
            p(f's_lshl_b32 s{sT+1}, s{sT+1}, 4\ns_mul_i32 s{sT+2}, s{sT}, 9\ns_add_u32 s{sT+1}, s{sT+1}, s{sT+2}\ns_mul_i32 s{sT}, s{sT}, 3\ns_sub_u32 s{sT}, 9, s{sT}')
            p(f'v_and_b32 v{vFH}, 15, v1\nv_min_u32 v{vFH}, s{sT}, v{vFH}\ns_lshl_b32 s{sT}, s{sRC}, 5\ns_add_u32 s{sT}, s{sT}, s{sT+1}\ns_add_u32 s{sT}, s{sT}, 256\ns_lshl_b32 s{sT}, s{sT}, 7')
            p(f'v_lshl_add_u32 v{vFH}, v{vFH}, 7, s{sT}')
            p(f's_lshl_b32 s{kWD}, s{kAH}, 18\ns_lshl_b32 s{kAH}, s{kAH}, 12')
        else:
            p(f's_bfe_u32 s{sJ}, s2, 0x20001\ns_and_b32 s{sRC}, s2, 1\ns_lshl_b32 s{sRC}, s{sRC}, 2\ns_bfe_u32 s{sT}, s2, 0x20003\ns_add_u32 s{sRC}, s{sRC}, s{sT}\ns_lshr_b32 s{sCC}, s2, 5')
            p(f's_lshl_b32 s{sT}, s{sRC}, 5\ns_lshl_b32 s{sT+1}, s{sJ}, 3\ns_add_u32 s{sT}, s{sT}, s{sT+1}\ns_add_u32 s{sT}, s{sT}, 256\ns_lshl_b32 s{sT}, s{sT}, 7')
            p(f'v_and_b32 v{vFH}, 7, v1\nv_lshl_add_u32 v{vFH}, v{vFH}, 7, s{sT}')
            p(f's_mul_i32 s{kWD}, s{sJ}, {896*2048}\ns_mul_i32 s{kAH}, s{sJ}, {28*1024}')
        x_dma_addr(dD, k_h)
        p(f's_lshl_b32 s{cMW}, s{sW}, 13')
        srd(p, S_AH, pWS, WS_H, 15 << 20)
        p(f's_lshl_b32 s{sT}, s{sRC}, 4\ns_lshl_b32 s{sT+2}, s{sW}, 2\ns_add_u32 s{sT}, s{sT}, s{sT+2}\ns_mul_i32 s{sT+2}, s{sT}, {HST}')
        p(f'v_lshlrev_b32 v36, 4, v1\nv_add_u32 v{aH}, s{sT+2}, v36')
        for b in range(1, 4): p(f'v_add_u32 v{aH+b}, {HST}, v{aH+b-1}')
        t = 36
        p(f's_lshl_b32 s{sT+3}, s{sJ}, 1')
        p(f'v_lshrrev_b32 v{t}, 2, v1\nv_and_b32 v{t+1}, 7, v{t}\nv_xor_b32 v{t+1}, s{sT+3}, v{t+1}\nv_lshlrev_b32 v{t}, 8, v{t}\nv_and_b32 v{t+2}, 3, v1\nv_lshl_add_u32 v{t}, v{t+2}, 3, v{t}')
        for tt in range(8):
            p(f'v_xor_b32 v{t+2}, {tt}, v{t+1}\nv_lshl_add_u32 v{cTr+tt}, v{t+2}, 5, v{t}')
        p(f's_mov_b32 s{cTG}, 0x10000')
    def flag_store(lbl, va, rel=False):
        t_ = f's_cmp_eq_u32 s{sW}, 1\ns_cbranch_scc0 {lbl}\n'
        if rel and cfg.loc:
            t_ += f's_cmp_eq_u32 s{sREM}, 0 ;cond\ns_cbranch_scc1 {lbl}_f ;cond\nbuffer_wbl2 sc1 ;cond\ns_waitcnt vmcnt(0) ;cond\n{lbl}_f: ;cond\n'
        return t_ + f'buffer_store_dwordx2 v[2:3], v{va}, s[{S_FL}:{S_FL+3}], 0 offen sc1 ;cond\n{lbl}:'
    s2q = collect(setup2); s2per = -(-len(s2q) // 4)
    for x in collect(setup1): L(16, x)
    npf = 0
    for j in range(7):
        g = bargap[j] + 1
        if j + 3 <= 7:
            L(g, f's_add_u32 s{sT+5}, s{sKV}, {(j+3)*16384}') if False else None
            L(g, f's_add_u32 s{sT+4}, s{sKV}, {(j+3)*16384}'); L(g, f's_add_u32 m0, s{sMK}, {((j+3) % 4)*16384}'); L(g, m0gap)
            for k in range(4): L(g + 3*k, kdma(k, sT+4, ('K', 4, j+3, 0)))
        if j + 2 <= 7:
            L(g + 12, f's_add_u32 s{sT+4}, s{sKV}, {(j+2)*16384}'); L(g + 12, f's_add_u32 m0, s{sMK}, {0x10000 + ((j+2) % 4)*16384}'); L(g + 12, m0gap)
            for k in range(4): L(g + 12 + 3*k, vdma(k, sT+4, ('V', 4, j+2, 0)))
        if j < 5:
            L(g + 24, f's_mov_b32 m0, s{sDM}'); L(g + 24, m0gap)
            for k in range(3):
                wo_ = npf % 2 == 0
                L(g + 24 + 4*k, f'buffer_load_dwordx4 v{vPF if wo_ else vPF+1}, s[{S_WO if wo_ else S_WD}:{(S_WO if wo_ else S_WD)+3}], s{sPF} offen lds')
                if not wo_: L(g + 24 + 4*k, f's_add_u32 s{sPF}, s{sPF}, 1024')
                npf += 1
        if cfg.cpf2 and (j in (1, 4) or cfg.cpf2 >= 2):
            for x in code_pf(S_DB, LDS_SCR + 1024): L(g + 35, x)
        if j < 4:
            for x in s2q[j*s2per:(j+1)*s2per]: L(g + 36, x)
        if j == cfg.hbar: H(g, flag_store('A_hf', vHF, True))
        if j == 4: L(g + 40, f'buffer_load_dwordx2 v[62:63], v{vFH}, s[{S_FL}:{S_FL+3}], 0 offen sc1')
        if j == 5:
            for pc in range(8):
                for x in cdma(pc, 0): L(g + 24 + 3*pc, x)
            L(g + 50, '\n'.join(flagchk('L_h', vFH, 62, True)))
        if j == 6:
            for sub in range(4):
                for b in range(4):
                    for x in cact(sub, b): L(g + 3*(4*sub + b), x)
    for pc in range(8):
        for x in cdma(pc, 1): L(bargap[7] + 1 + 3*pc, x)
    def cyc(x):
        t_ = x[0] if isinstance(x, tuple) else x
        if callable(t_): return 8
        o = t_.split()[0]
        if o in TRANS: return 8
        if o.startswith('v_cvt_pk'): return 5
        if o.startswith('buffer_'): return cfg.vmc
        return 4*len(t_.split('\n')) if '\n' in t_ and ';cond' not in t_ else 4
    fill = {}; q_ = []
    for i in range(-1, n_):
        cur = list(hi.get(i, [])); used = sum(cyc(x) for x in cur) + (4 if i % 2 == 1 else 0)
        for x in lo.get(i, []): q_.append((i, x))
        while q_ and (used + cyc(q_[0][1]) <= cfg.acap or i == n_ - 1 or i - q_[0][0] >= cfg.amax):
            x = q_.pop(0)[1]; cur.append(x); used += cyc(x)
        fill[i] = cur
    fix_m0(fill, n_)
    if cfg.aab:
        tx = lambda x: x[0] if isinstance(x, tuple) else x
        for i in fill:
            if 2*start[3] <= i < 2*start[11]:
                if cfg.aab & 1: fill[i] = [x for x in fill[i] if callable(tx(x)) or not tx(x).startswith('buffer_load')]
                if cfg.aab & 2: fill[i] = [x for x in fill[i] if callable(tx(x)) or x in hi.get(i, []) or tx(x).startswith('buffer_load') or 'm0' in tx(x) or 's54' in tx(x)]
                if cfg.aab & 4: fill[i] = [x for x in fill[i] if not callable(tx(x))]
    for n in (1, 3, 7, 11, 15):
        t_ = ts.text(4)
        if t_: fill[2*start[n] - 1].append(t_)
    interleave(p, mf, fill)
    ts.stamp(p, 5)
    for qt in range(2):
        l = vL + 2*qt
        p(f'v_add_f32 v{l}, v{l}, v{l+1}\nv_mov_b32 v{l+1}, v{l}\ns_nop 1\nv_permlane32_swap_b32 v{l}, v{l+1}\ns_nop 1\nv_add_f32 v{l}, v{l}, v{l+1}')
    p(f'v_max_f32 v33, v{vL}, v{vL+2}\nv_add_f32 v33, v33, v{vL}\nv_add_f32 v33, v33, v{vL+2}')
    p(f's_mov_b32 s{sT}, {f2u(2.0**cfg.thr):#x}\nv_cmp_nlt_f32 vcc, v33, s{sT}\ns_nop 1\ns_cbranch_vccnz A_slow')
    p('A_done:')
    ad = cfg.cad; P = cfg.cP
    for sub in range(4, ad):
        for b in range(4):
            for x in cact(sub, b): emit(p, x)
    p(f'v_rcp_f32 v{vL}, v{vL}\nv_rcp_f32 v{vL+2}, v{vL+2}')
    p.need(('C', 4, 0, 0)); p('s_barrier')
    for G in range(P):
        r = cA + 4*G
        p(f'ds_read_b64_tr_b16 v[{r}:{r+1}], v{cTr+G} offset:0', ('C', 4, 0, 0)); p(f'ds_read_b64_tr_b16 v[{r+2}:{r+3}], v{cTr+G} offset:4096', ('C', 4, 0, 0))
    p(';SPLIT')
    OE = cfg.oe if ND >= 7 else cfg.oes
    vO, vX, vFO, vFD, vFS, vFQ = 16, 96, 20, 21, 22, 23
    sPS, sPR = 32, 33
    def o_epi(packed):
        t = 32
        p(f'v_mov_b32 v{vL+1}, v{vL}\nv_mov_b32 v{vL+3}, v{vL+2}')
        p(f's_lshl_b32 s{sT}, s{sRB}, 4\ns_lshl_b32 s{sT+1}, s{sW}, 2\ns_add_u32 s{sT}, s{sT}, s{sT+1}\ns_mul_i32 s{sT}, s{sT}, {OST}\ns_lshl_b32 s{sT+1}, s{sCB}, 12\ns_add_u32 s{sT}, s{sT}, s{sT+1}')
        p(f'v_bfe_u32 v{t}, v1, 4, 1\nv_mul_u32_u24 v{t}, {OST}, v{t}\nv_lshrrev_b32 v{t+1}, 5, v1\nv_lshlrev_b32 v{t+1}, 8, v{t+1}\nv_and_b32 v{t+2}, 15, v1\nv_lshlrev_b32 v{t+2}, 4, v{t+2}')
        p(f'v_add3_u32 v{t}, v{t}, v{t+1}, v{t+2}\nv_add_u32 v34, s{sT}, v{t}\nv_add_u32 v35, {2*OST}, v34')
        n = 0
        for dt in range(4):
            for qt in range(2):
                o = (dt*2+qt)*16
                for half in range(2):
                    x = 96 + 8*(n % 2); d = 112 + 4*(n % 4); n += 1
                    for i in range(8): p(f'v_accvgpr_read_b32 v{x+i}, a{o+8*half+i}')
                    if packed:
                        for i in range(0, 8, 2): p(f'v_pk_mul_f32 v[{x+i}:{x+i+1}], v[{x+i}:{x+i+1}], v[{vL+2*qt}:{vL+2*qt+1}]')
                    else:
                        for i in range(8): p(f'v_mul_f32{cfg.e64} v{x+i}, v{x+i}, v{vL+2*qt}')
                        for i in range(cfg.xs): p(f's_mov_b32 s{sT+5}, {cfg.xl}')
                    for i in range(0, 8, 2): p(f'v_cvt_pk_bf16_f32 v{d+i//2}, v{x+i}, v{x+i+1}')
                    p(f'buffer_store_dwordx4 v[{d}:{d+3}], v{34+qt}, s[{S_O}:{S_O+3}], 0 offen offset:{dt*1024 + half*512}{LS}', ('Ost', 1, 0, 0))
    def s_setup():
        x_dma_addr(dO, k_o)
        srd(p, S_AO, pWS, WS_O, 17 << 20)
        p(f's_lshl_b32 s{kWO}, s{sJ}, 21\ns_lshl_b32 s{kAO}, s{sJ}, 15')
        p(f's_lshl_b32 s{sT}, s{sRC}, 4\ns_lshl_b32 s{sT+2}, s{sW}, 2\ns_add_u32 s{sT}, s{sT}, s{sT+2}\ns_mul_i32 s{sT+2}, s{sT}, {OST}')
        p(f'v_lshlrev_b32 v24, 4, v1\nv_add_u32 v{aO}, s{sT+2}, v24')
        for b in range(1, 4): p(f'v_add_u32 v{aO+b}, {OST}, v{aO+b-1}')
        p(f'v_add_u32 v{vFO}, {256*128}, v{vHF}')
        p(f's_lshl_b32 s{sT}, s{sRC}, 5\ns_lshl_b32 s{sT+1}, s{sJ}, 3\ns_add_u32 s{sT}, s{sT}, s{sT+1}\ns_add_u32 s{sT}, s{sT}, 512\ns_lshl_b32 s{sT}, s{sT}, 7')
        p(f'v_and_b32 v{vFH}, 7, v1\nv_lshl_add_u32 v{vFH}, v{vFH}, 7, s{sT}')
        srd(p, S_X, pX, 0, 4 << 20); srd(p, S_OUT, pOUT, 0, 4 << 20); srd(p, S_P, pWS, WS_P, 24 << 20)
        p(f's_lshl_b32 s{sT}, s{sRC}, 3\ns_add_u32 s{sT}, s{sT}, s{sCC}\ns_lshl_b32 s{sT}, s{sT}, 2\ns_add_u32 s{sT+1}, s{sT}, s{sJ}')
        p(f's_add_u32 s{sT+2}, s{sT+1}, 768\ns_lshl_b32 s{sT+2}, s{sT+2}, 7\nv_mov_b32 v{vFD}, s{sT+2}\nv_add_u32 v{vFS}, {256*128}, v{vFD}')
        p(f's_add_u32 s{sT+2}, s{sT}, 768\ns_lshl_b32 s{sT+2}, s{sT+2}, 7\nv_and_b32 v{vFQ}, 3, v1\nv_lshl_add_u32 v{vFQ}, v{vFQ}, 7, s{sT+2}')
        p(f's_mul_i32 s{sT+3}, s{sW}, 12288\ns_mul_i32 s{sPR}, s{sT+1}, {3*16384}\ns_add_u32 s{sPR}, s{sPR}, s{sT+3}')
        for q_ in (1, 2, 3):
            p(f's_xor_b32 s{sT+2}, s{sT+1}, {q_}\ns_mul_i32 s{sT+2}, s{sT+2}, {3*16384}\ns_add_u32 s{sT+2}, s{sT+2}, s{sT+3}\ns_add_u32 s{sT+2}, s{sT+2}, {(q_-1)*4096}\nv_add_u32 v{24+q_}, s{sT+2}, v24')
        p(f's_lshl_b32 s{sT+2}, s{sRC}, 8\ns_lshl_b32 s{sT+3}, s{sW}, 6\ns_add_u32 s{sT+2}, s{sT+2}, s{sT+3}\ns_lshl_b32 s{sT+2}, s{sT+2}, 11')
        p(f's_lshl_b32 s{sT+3}, s{sCC}, 8\ns_add_u32 s{sT+2}, s{sT+2}, s{sT+3}\ns_lshl_b32 s{sT+3}, s{sJ}, 6\ns_add_u32 s{sT+2}, s{sT+2}, s{sT+3}')
        t = 36
        p(f'v_and_b32 v{t}, 15, v1\nv_lshlrev_b32 v{t}, 11, v{t}\nv_add_u32 v{t}, s{sT+2}, v{t}\nv_lshrrev_b32 v{t+1}, 4, v1')
        p(f'v_and_b32 v{vO}, 1, v{t+1}\nv_lshlrev_b32 v{vO}, 5, v{vO}\nv_lshrrev_b32 v{vO+1}, 1, v{t+1}\nv_lshlrev_b32 v{vO+1}, 4, v{vO+1}\nv_add3_u32 v{vO}, v{vO}, v{vO+1}, v{t}')
        for b in range(1, 4): p(f'v_add_u32 v{vO+b}, 0x8000, v{vO+b-1}')
    def send(gemm, quads=range(12)):
        for i in quads:
            c = 32 + 8*i; d = 112 + 4*(i % 4)
            if gemm == 0:
                for r in range(4): p(f'v_cvt_pk_bf16_f32 v{d+r}, v{cC+c+2*r}, v{cC+c+2*r+1}')
            else:
                x = 160 + 8*(i % 4)
                for r in range(8): p(f'v_accvgpr_read_b32 v{x+r}, a{c+r}')
                for r in range(4): p(f'v_cvt_pk_bf16_f32 v{d+r}, v{x+2*r}, v{x+2*r+1}')
                if cfg.sent:
                    for r in range(4): p(f'v_min_u32 v{d+r}, -2, v{d+r}')
            so = '0' if gemm == 0 else f's{sT+4}'
            p(f'buffer_store_dwordx4 v[{d}:{d+3}], v{25 + i//4}, s[{S_P}:{S_P+3}], {so} offen offset:{1024*(i%4)} sc1', ('Pst', 1, gemm, 0))
    mf = []; hi = {}; lo = {}
    ST = 128; TMS = cfg.tms
    NSUB = 4*NS
    order = [(sub // 4, sub % 4, t) for sub in range(NSUB - TMS) for t in range(8)]
    order += [(sub // 4, sub % 4, t) for t in (2, 3, 4, 5, 6, 7, 0, 1) for sub in range(NSUB - TMS, NSUB)]
    assert not cfg.sent and (TMS <= 4 or NS % 2 == 0)
    def ctr(G):
        sg, s, t = order[G]
        r = cA + 4*(G % 8); off = (sg % 2)*SLOT + s*8192
        a = cTr + t
        return [(f'ds_read_b64_tr_b16 v[{r}:{r+1}], v{a} offset:{off}', ('C', 4, sg, 0)),
                (f'ds_read_b64_tr_b16 v[{r+2}:{r+3}], v{a} offset:{off + 4096}', ('C', 4, sg, 0))]
    obar = math.ceil(OE) + 1; dbar = ND + math.ceil(cfg.de) + 1
    def bar(p, sgn):
        p.need(('C', 4, sgn, 0))
        if sgn == obar: p.need(('Ost', 1, 0, 0))
        if sgn == dbar: p.need(('Pst', 1, 0, 0))
        p('s_barrier')
    firstG = {}
    for G, (sg, s, t) in enumerate(order): firstG.setdefault(sg, G)
    for G in range(32*NS):
        sg, s, t = order[G]; sub = 4*sg + s
        for b in range(4):
            ra = cA + 4*(G % 8); rb = 128 + 16*(sub % 8) + 4*b; c = (t*4+b)*4
            acc_ = f'v[{cC+c}:{cC+c+3}]' if kind(sg) == 'd' else f'a[{c}:{c+3}]'
            mf.append(f'v_mfma_f32_16x16x32_bf16 {acc_}, v[{ra}:{ra+3}], a[{rb}:{rb+3}], {"0" if sub in (0, 4*ND) else acc_}')
        i0 = 4*G; Gn = G + P
        if Gn < 32*NS:
            if firstG[order[Gn][0]] == Gn: H(i0-1, lambda p, sgn=order[Gn][0]: bar(p, sgn))
            r0, r1 = ctr(Gn)
            H(i0, r0); H(i0+1, r1)
            if Gn % 64 >= 56 and Gn // 32 < NS - 1: H(i0+2, f'v_xor_b32 v{cTr + Gn % 8}, s{cTG}, v{cTr + Gn % 8}')
        sgc, g = divmod(G, 32)
        dstr = 2 if (TMS > 4 and sgc + 2 == NS - 1) else cfg.cdstr
        if g % dstr == 1 and g // dstr < 8 and sgc + 2 < NS:
            for x in cdma(g // dstr, sgc + 2): L(i0, x)
    last_act = 0
    for sub in range(ad, 4*NS):
        t0 = max((sub - 7)*32, min((sub - ad)*32, (4*NS - 8)*32 - (4*NS - 1 - sub)*cfg.ramp)) if TMS else (sub - ad)*32
        t1 = max((sub - 6)*32, min((sub + 1 - ad)*32, (4*NS - 8)*32 - (4*NS - 2 - sub)*cfg.ramp)) if TMS else t0 + 32
        for b in range(4):
            last_act = t0 + b*min(8, (t1 - t0)//4)
            for x in cact(sub, b): L(last_act, x)
    if cfg.cpf2:
        for k in ((1,) if cfg.cpf2 < 2 else range(0, math.floor(OE))):
            for x in code_pf(S_DB, LDS_SCR + 1024): L(k*ST + 4*30, x)
        for x in code_srd(S_AH, 'L_pc3' + SFX): L(ND*ST, x)
        for k in ((ND, ND + 3) if cfg.cpf2 < 2 else range(ND, NS - 2)):
            for x in code_pf(S_AH, LDS_SCR + 1024): L(k*ST + 4*30, x)
    lo = {k: lo[k] for k in sorted(lo)}
    n = len(mf)
    fill = spread(hi, lo, n, cfg.cap, 16, cost=lambda i: 1 if i % 4 == 3 else 0)
    fix_m0(fill, n)
    def ride(items, g0, g1):
        q_ = list(items); per = len(q_) / (g1 - g0); due = 0.0; done = 0
        for i in range(g0, g1):
            due += per
            used = len(fill[i]) + (1 if i % 4 == 3 else 0)
            while q_ and done < due + 2 and (used < cfg.cap or done < due - cfg.lag):
                fill[i].append(q_.pop(0)); used += 1; done += 1
        fill[g1-1] += q_
    oq = collect(lambda: o_epi(cfg.ox > 0))
    nx = 0
    if cfg.ox:
        idx = [i for i, x in enumerate(oq) if x[0].startswith('buffer_store')]
        nx = idx[cfg.ox - 1] + 1
        fill[-1] = oq[:nx] + fill[-1]
        oq2 = collect(lambda: o_epi(False))
        idx2 = [i for i, x in enumerate(oq2) if x[0].startswith('buffer_store')]
        oq = oq2[idx2[cfg.ox - 1] + 1:]
    if oq: ride(oq, 2, int(OE*ST))
    ride(collect(s_setup), int(OE*ST), int(OE*ST) + ST - 20)
    fill[obar*ST - 4*P + 2].append(flag_store('C_of' + SFX, vFO, True))
    first_o = (4*ND - ad)*32
    assert first_o - 2 > int(OE*ST) + ST - 20 and (ND - 2)*ST > int(OE*ST) + ST - 20
    fill[first_o - cfg.fl].append(f'buffer_load_dwordx2 v[62:63], v{vFH}, s[{S_FL}:{S_FL+3}], 0 offen sc1')
    fill[first_o - 2].append('\n'.join(flagchk('L_o' + SFX, vFH, 62, True)))
    ride(collect(lambda: send(0)), ND*ST + 8, ND*ST + int(cfg.de*ST))
    fill[dbar*ST - 4*P + 2].append(flag_store('C_df' + SFX, vFD))
    xl = [f'buffer_load_dwordx4 v[{vX+4*b}:{vX+4*b+3}], v{vO+b}, s[{S_X}:{S_X+3}], 0 offen' for b in range(4)]
    ride(xl, max(last_act + 20, int((NS - cfg.dchk)*ST) + 52), max(last_act + 20, int((NS - cfg.dchk)*ST) + 52) + 16)
    vR = 192
    def recv(gemm):
        p(f's_add_u32 s{sT+2}, s{sPR}, {gemm*256*3*16384}')
        for q_ in range(3):
            for i in range(4):
                r = vR + 16*q_ + 4*i
                p(f'buffer_load_dwordx4 v[{r}:{r+3}], v24, s[{S_P}:{S_P+3}], s{sT+2} offen offset:{1024*i} sc1')
            if q_ < 2: p(f's_add_u32 s{sT+2}, s{sT+2}, 4096')
    dchk = NS - cfg.dchk; assert dchk*ST > last_act + 16
    fill[int(dchk*ST) - cfg.fl].append(f'buffer_load_dwordx2 v[62:63], v{vFQ}, s[{S_FL}:{S_FL+3}], 0 offen sc1')
    fill[int(dchk*ST)].append('\n'.join(flagchk('L_d' + SFX, vFQ, 62)))
    ride(collect(lambda: recv(0)), int(dchk*ST) + 2, int(dchk*ST) + 50)
    fill[(NS - 3)*ST].append(f's_mov_b32 s{sT+4}, {256*3*16384}')
    sent = 0
    if TMS:
        base = (NSUB - TMS)*32; plen = 2*TMS*4
        for q_ in range(3):
            g0 = base + (q_ + 1)*plen + 3
            ride(collect(lambda: send(1, range(4*q_, 4*q_ + 4))), g0, min(n, g0 + plen - 3))
        sent = 12
    ts.stamp(p, 7)
    for k in range(1, 15):
        if k in (1, 2, 3, 4, 5, 6, 7, 8, 9, 11, 13):
            t_ = ts.text(2)
            if t_: fill[k*ST - 1].append(t_)
    interleave(p, mf, fill)
    p(f's_mov_b32 s{sT+3}, 0xffff0000\nv_add_u32 v{vFQ}, {256*128}, v{vFQ}\ns_nop 4')
    ts.stamp(p, 3)
    send(1, range(sent, 12))
    RS = (160, 176, 240)
    def recv_s(q_, cond=''):
        for i in range(4):
            p(f'buffer_load_dwordx4 v[{RS[q_]+4*i}:{RS[q_]+4*i+3}], v24, s[{S_P}:{S_P+3}], s{44+q_} offen offset:{1024*i} sc1{cond}')
    if cfg.sent:
        p(f's_add_u32 s44, s{sPR}, {256*3*16384}\ns_add_u32 s45, s44, 4096\ns_add_u32 s46, s45, 4096')
        for q_ in range(3): recv_s(q_)
    pk = lambda r: f'v[{r}:{r+1}]'
    def addparts(dst, i, src):
        for q_ in range(3):
            rr = src[q_] + 4*i; tt = 32 + 8*(q_ % 2)
            for r in range(4): p(f'v_lshlrev_b32 v{tt+2*r}, 16, v{rr+r}\nv_and_b32 v{tt+2*r+1}, s{sT+3}, v{rr+r}')
            for r in range(0, 8, 2): p(f'v_pk_add_f32 {pk(dst+r)}, {pk(dst+r)}, {pk(tt+r)}')
    p(f'v_mov_b32 v28, {f2u(-math.log2(math.e)):#x}\nv_mov_b32 v29, v28')
    RD = (vR, vR + 16, vR + 32)
    for i in range(4):
        c = cC + 8*i; B = 48
        addparts(c, i, RD)
        for r in range(0, 8, 2): p(f'v_pk_mul_f32 {pk(B+r)}, {pk(c+r)}, v[28:29]')
        for r in range(8): p(f'v_exp_f32 v{B+r}, v{B+r}')
        p('s_nop 0')
        for r in range(0, 8, 2): p(f'v_pk_add_f32 {pk(B+r)}, {pk(B+r)}, 1.0 op_sel_hi:[1,0]')
        for r in range(8): p(f'v_rcp_f32 v{B+r}, v{B+r}')
        p('s_nop 0')
        for r in range(0, 8, 2): p(f'v_pk_mul_f32 {pk(c+r)}, {pk(c+r)}, {pk(B+r)}')
    vSs = 64
    for i in range(32): p(f'v_accvgpr_read_b32 v{vSs+i}, a{i}')
    E = 192 if cfg.sent else 160
    def xunpack():
        for b in range(4):
            for q in range(4): p(f'v_lshlrev_b32 v{E+8*b+2*q}, 16, v{vX+4*b+q}\nv_and_b32 v{E+8*b+2*q+1}, s{sT+3}, v{vX+4*b+q}')
    if cfg.sent:
        xunpack()
        ts.stamp(p)
        p('C_chk:\ns_waitcnt vmcnt(0)\ns_mov_b32 s47, 0')
        for q_ in range(3):
            r = RS[q_]
            p(f'v_max3_u32 v32, v{r}, v{r+1}, v{r+2}')
            for k in range(3, 15, 2): p(f'v_max3_u32 v32, v32, v{r+k}, v{r+k+1}')
            p(f'v_max_u32 v32, v32, v{r+15}\nv_cmp_eq_u32 vcc, -1, v32\ns_nop 1\ns_cbranch_vccz C_ok{q_}')
            p.cond(True)
            p(f's_sleep {cfg.slp2}\ns_mov_b32 s47, 1'); recv_s(q_)
            p.cond(False)
            p(f'C_ok{q_}:')
        p('s_cmp_lg_u32 s47, 0\ns_cbranch_scc1 C_chk')
        ts.stamp(p)
        src = RS
    else:
        p('s_waitcnt vmcnt(0)\ns_barrier')
        ts.stamp(p)
        p(f's_cmp_eq_u32 s{sW}, 1\ns_cbranch_scc0 C_got{SFX}')
        p.cond(True)
        p(f'buffer_store_dwordx2 v[2:3], v{vFS}, s[{S_FL}:{S_FL+3}], 0 offen sc1')
        poll('C_poll' + SFX, vFQ, 'C_got' + SFX)
        p.cond(False)
        p(f'C_got{SFX}:\ns_barrier')
        ts.stamp(p)
        recv(1)
        xunpack()
        src = RD
    for i in (0, 2, 1, 3): addparts(vSs + 8*i, i, src)
    for b in range(4):
        c0 = vSs + 4*b; c1 = vSs + 16 + 4*b; o = 112 + 4*b
        for r in (0, 2):
            p(f'v_pk_mul_f32 {pk(c0+r)}, {pk(c0+r)}, {pk(cC+4*b+r)}\nv_pk_mul_f32 {pk(c1+r)}, {pk(c1+r)}, {pk(cC+16+4*b+r)}')
        p('s_nop 0')
        for r in range(4): p(f'v_permlane16_swap_b32 v{c0+r}, v{c1+r}')
        p('s_nop 0')
        for q in range(4):
            c = (c0, c0+2, c1, c1+2)[q]
            p(f'v_pk_add_f32 {pk(E+8*b+2*q)}, {pk(E+8*b+2*q)}, {pk(c)}')
        for q in range(4): p(f'v_cvt_pk_bf16_f32 v{o+q}, v{E+8*b+2*q}, v{E+8*b+2*q+1}')
        p(f'buffer_store_dwordx4 v[{o}:{o+3}], v{vO+b}, s[{S_OUT}:{S_OUT+3}], 0 offen {cfg.osc}')
    ts.stamp(p)
    ts.dump(p, pWS)
    p('s_endpgm')
    autowait(p)
    if not cfg.aab: check(p, 'main')

    z = Prog(); main = p; p = z
    p('A_slow:')
    p('s_waitcnt vmcnt(0) lgkmcnt(0)')
    srd(p, S_K, pK, 0, 2 << 20); srd(p, S_V, pV, 0, 2 << 20)
    zK, zD, zV = 13, 14, 21
    zKV, zN = sT, sT+1
    p(f's_lshr_b32 s{zKV}, s{sCB}, 3\ns_lshl_b32 s{zKV}, s{zKV}, 19\ns_add_u32 s{zKV}, s{zKV}, {1536*256}')
    p(f'v_and_b32 v{zK}, 31, v1\nv_lshlrev_b32 v{zK}, 8, v{zK}\nv_lshrrev_b32 v36, 5, v1\nv_lshl_add_u32 v{zK}, v36, 4, v{zK}')
    p(f'v_lshrrev_b32 v36, 4, v1\nv_and_b32 v37, 15, v1\nv_lshlrev_b32 v38, 2, v36\nv_xor_b32 v37, v37, v38\nv_lshlrev_b32 v36, 8, v36\nv_lshl_add_u32 v{zD}, v37, 4, v36\nv_add_u32 v{zD+1}, 0x1000, v{zD}')
    t = 36
    p(f'v_lshrrev_b32 v{t}, 5, v1\nv_lshlrev_b32 v{t}, 2, v{t}\nv_bfe_u32 v{t+1}, v1, 2, 2\nv_add_u32 v{t}, v{t}, v{t+1}\nv_lshlrev_b32 v{t}, 8, v{t}')
    p(f'v_bfe_u32 v{t+2}, v1, 4, 1\nv_lshlrev_b32 v{t+2}, 5, v{t+2}\nv_and_b32 v{t+3}, 3, v1\nv_lshlrev_b32 v{t+3}, 3, v{t+3}\nv_add3_u32 v{t}, v{t}, v{t+2}, v{t+3}')
    p(f's_lshl_b32 s{sT+2}, s{sW}, 13\ns_add_u32 s{sT+2}, s{sT+2}, 0x20000\nv_add_u32 v{t}, s{sT+2}, v{t}')
    for dt in range(4): p(f'v_xor_b32 v{t+2}, {dt}, v{t+1}\nv_lshl_add_u32 v{zV+dt}, v{t+2}, 6, v{t}')
    def kglob():
        for s in range(8): p(f'buffer_load_dwordx4 a[{aF+4*s}:{aF+4*s+3}], v{zK}, s[{S_K}:{S_K+3}], s{zN} offen offset:{32*s}')
    p(f'v_mov_b32 v32, 0xff800000\nv_mov_b32 v34, 0xff800000\ns_mov_b32 s{zN}, s{zKV}\ns_mov_b32 s{sT+3}, 16')
    p.loop_begin('Z1_loop', 16, align=False)
    kglob()
    for s in range(8):
        for qt in range(2): p(qk(0, s, qt, zero))
    p('s_nop 7\ns_nop 3')
    rowmax(0, False)
    p(f's_add_u32 s{zN}, s{zN}, 8192\ns_sub_u32 s{sT+3}, s{sT+3}, 1\ns_cmp_lg_u32 s{sT+3}, 0\ns_cbranch_scc1 Z1_loop')
    p.loop_end()
    set_negm()
    for i in range(128): p(f'v_accvgpr_write_b32 a{i}, 0')
    for i in range(4): p(f'v_mov_b32 v{vL+i}, 0')
    p(f's_mov_b32 s{zN}, s{zKV}\ns_mov_b32 s{sT+3}, 16')
    p.loop_begin('Z2_loop', 16, align=False)
    kglob()
    for j in range(8):
        if j % 4 == 0: p(f's_add_u32 m0, s{sT+2}, {1024*j}\ns_nop 0')
        p(f'buffer_load_dwordx4 v{zD + j//4}, s[{S_V}:{S_V+3}], s{zN} offen offset:{1024*(j%4)} lds')
    for s in range(8):
        for qt in range(2): p(qk(0, s, qt, negm))
    p('s_nop 7\ns_nop 3')
    for ops in softmax_ops(0):
        for o in ops: p(o)
    p('s_waitcnt vmcnt(0)')
    for f in range(8):
        for r in vread(0, f, None, base=zV, off0=0): emit(p, r)
    for f in range(8):
        for qt in range(2): p(pv(0, f, qt))
    p(f's_add_u32 s{zN}, s{zN}, 8192\ns_sub_u32 s{sT+3}, s{sT+3}, 1\ns_cmp_lg_u32 s{sT+3}, 0\ns_cbranch_scc1 Z2_loop')
    p.loop_end()
    p('s_nop 7\ns_nop 7')
    for qt in range(2):
        l = vL + 2*qt
        p(f'v_add_f32 v{l}, v{l}, v{l+1}\nv_mov_b32 v{l+1}, v{l}\ns_nop 1\nv_permlane32_swap_b32 v{l}, v{l+1}\ns_nop 1\nv_add_f32 v{l}, v{l}, v{l+1}')
    p('s_branch A_done')
    autowait(z); check(z, 'slow')
    pre_, c_ = main.text().split(';SPLIT')
    return pre_, c_, z.text(), sJ

def main():
    cfg = Cfg()
    cfg.ts = 1; cfg.xmap = 'b'; cfg.stag = 0; cfg.P = 4; cfg.late1 = 1; cfg.w0 = 0; cfg.cw0 = 8
    cfg.d0 = 0; cfg.dstr = 4; cfg.a0 = 1; cfg.astr = 2; cfg.ad = 3; cfg.PF = 3; cfg.cap = 2
    cfg.cad = 5; cfg.cdstr = 4; cfg.cP = 4; cfg.thr = 30; cfg.tail0 = 4; cfg.sum = 'add'; cfg.hbar = 2; cfg.fs = 1; cfg.oes = 2; cfg.sent = 0; cfg.slp2 = 4; cfg.trk = 2; cfg.kvp = 1; cfg.trk0 = 1; cfg.pf4 = 0; cfg.pf4n = 8; cfg.pf3 = 0; cfg.aab = 0; cfg.e64 = ''; cfg.xs = 0; cfg.xl = 1; cfg.cpf2 = 1; cfg.loc = 0; cfg.fremote = 0; cfg.ox = 0; cfg.ramp = 20; cfg.lag = 3; cfg.vmc = 8; cfg.acap = 24; cfg.amax = 40; cfg.wb = 0; cfg.opad = 256; cfg.xpad = 256; cfg.hpad = 0; cfg.oe = 3; cfg.de = 3; cfg.tms = 6; cfg.fl = 128; cfg.dchk = 1.65; cfg.dbg = 0; cfg.cpf = 1; cfg.tlb = 0; cfg.osc = 'sc1'; cfg.slp = 1; cfg.late0 = 2
    for a in sys.argv[2:]:
        k, v = a.split('='); setattr(cfg, k, int(v) if v.lstrip('-').isdigit() else float(v) if v.replace('.','').isdigit() else v)
    kn = NAME + '_kernel'
    hdr = (f'; opad={cfg.opad} hoff={WS_H} xpad={cfg.xpad} hpad={cfg.hpad} ooff={WS_O}\n; @launch grid=(256,1,1) block=(256,1,1) lds={LDS_TOT}\n'
           '.amdgcn_target "amdgcn-amd-amdhsa--gfx950"\n')
    if cfg.fs:
        a, c8, z, sJ = gen(cfg, 8); a6, c6, _, _ = gen(cfg, 6)
        assert a == a6
        body = a + f'  s_bitcmp1_b32 s{sJ}, 0\n  s_cbranch_scc1 C_short\n' + c8 + '\nC_short:\n' + c6
    else:
        a, c7, z, _ = gen(cfg, 7); body = a + c7
    s = hdr + kernel_head(kn) + body + '\nK_end:\n  s_endpgm\n' + z + '\nK_last:\n' + kernel_desc(kn, 512, 256)
    open(sys.argv[1], 'w').write(s)
if __name__ == '__main__': main()
```

```python
import sys, struct, math
from dsl import *
from gen2 import (f2u, srd, kernel_head, kernel_desc, emit, interleave, spread, m0gap, fix_m0, chk_tail, Cfg)

NAME = 'recurrent_scan__sliding_block_cached__geglu_ffn__prompt'
WS_XN = 0
WS_O  = 5 << 20
WS_H  = 23 << 20
WS_G  = 36 << 20
WS_FL = 40 << 20
WS_ST = 41 << 20
WS_TS = 48 << 20
WS_P  = 64 << 20
HS = 22528; NHS = 7
LDS_SCR = NHS*HS
LDS_TOT = 163840

class TS:
    def __init__(self, on): self.on = on; self.n = 0
    def text(self, grp):
        if not self.on & grp or self.n >= 14: return None
        s = 88 + self.n; self.n += 1
        clk = 's_memtime' if self.on & 8 else 's_memrealtime'
        return f's_waitcnt lgkmcnt(0)\n{clk} s[4:5]\ns_waitcnt lgkmcnt(0)\ns_mov_b32 s{s}, s4'
    def stamp(self, p, grp=1):
        t = self.text(grp)
        if t: p(t)
    def old(self, p):
        if not self.on: return
        s = 88 + self.n; self.n += 1;
        if s >= 102: return
        p(f's_waitcnt lgkmcnt(0)\ns_memrealtime s[4:5]\ns_waitcnt lgkmcnt(0)\ns_mov_b32 s{s}, s4')
    def dump(self, p, wsptr):
        if not self.on: return
        if self.on & 16:
            p('s_load_dwordx2 s[12:13], s[0:1], 80\ns_waitcnt lgkmcnt(0)\ns_mov_b32 s14, 256\ns_mov_b32 s15, 0x20000\nv_mov_b32 v8, 0\ns_mov_b64 exec, 1')
            for i in range(min(self.n, 14)):
                p(f's_sub_u32 s4, s{88+i}, s6\nv_mov_b32 v4, s4\nbuffer_atomic_smax v4, v8, s[12:15], 0 offen offset:{8+4*i}\ns_nop 1')
            return
        srd(p, 12, wsptr, WS_TS, 1 << 20)
        p('s_lshl_b32 s3, s2, 8\ns_lshl_b32 s4, s36, 6\ns_add_u32 s3, s3, s4\nv_mov_b32 v8, s3')
        p('s_getreg_b32 s4, hwreg(HW_REG_XCC_ID, 0, 4)\nv_mov_b32 v4, s4\nbuffer_store_dword v4, v8, s[12:15], 0 offen offset:60\ns_nop 1')
        for i in range(min(self.n, 14)):
            p(f'v_mov_b32 v4, s{88+i}\nbuffer_store_dword v4, v8, s[12:15], 0 offen offset:{4*i}\ns_nop 1')

def gen(cfg, ND):
    SFX = f'_{ND}'
    OST = 131072 + cfg.opad; XST = 32768 + cfg.xpad; HST = 112*1024 + cfg.hpad
    p = Prog(); ts = TS(cfg.ts)
    SC = ' sc1'; LS = '' if cfg.loc else ' sc1'
    assert cfg.xmap == 'c' or not cfg.loc
    pX, pK, pV, pWQ, pWO, pWG, pWU, pWD, pOUT, pDBG, pWS = 64, 66, 68, 70, 72, 76, 78, 80, 82, 84, 86
    S_W, S_Q, S_XN, S_H, S_K, S_V, S_O = 8, 12, 16, 20, 24, 28, 32
    S_FL, S_DB = 56, 60
    sW, sRB, sCB, sKW, sKQ, sKA, sCNT = 36, 37, 38, 39, 40, 41, 42
    sMW, sMQ, sRD, sDL, sLEFT, sLEFA, sRW, sRQ = 43, 44, 45, 46, 47, 48, 49, 3
    sT = 50
    p('K_first:\ns_cmp_ge_u32 s2, 256\ns_cbranch_scc1 K_end')
    p('s_load_dwordx16 s[64:79], s[0:1], 0\ns_load_dwordx8 s[80:87], s[0:1], 64')
    p(f'v_lshrrev_b32 v2, 6, v0\nv_and_b32 v1, 63, v0\nv_readfirstlane_b32 s{sW}, v2')
    p(f's_and_b32 s{sT}, s2, 7\ns_lshr_b32 s{sT+1}, s2, 3')
    if cfg.xmap == 'c':
        p(f's_and_b32 s{sRB}, s{sT}, 1\ns_lshl_b32 s{sRB}, s{sRB}, 2\ns_and_b32 s{sT+2}, s{sT+1}, 3\ns_add_u32 s{sRB}, s{sRB}, s{sT+2}')
        p(f's_lshr_b32 s{sCB}, s{sT}, 1\ns_lshl_b32 s{sCB}, s{sCB}, 3\ns_lshr_b32 s{sT+2}, s{sT+1}, 2\ns_add_u32 s{sCB}, s{sCB}, s{sT+2}')
    else:
        p(f's_and_b32 s{sRB}, s{sT+1}, 7\ns_lshl_b32 s{sCB}, s{sT}, 2\ns_lshr_b32 s{sT+2}, s{sT+1}, 3\ns_add_u32 s{sCB}, s{sCB}, s{sT+2}')
    vAct, vDW, vDQ, vTr, vTq, vT = 4, 8, 15, 19, 20, 28
    vA, RA = 32, 8
    vB, RB = 64, 4
    def acc(t, b):
        if t < 16: c = (t*4+b)*4; return f'a[{c}:{c+3}]'
        c = 160 + ((t-16)*4+b)*4; return f'v[{c}:{c+3}]'
    def accr(t, b, r):
        if t < 16: return f'a{(t*4+b)*4+r}'
        return f'v{160+((t-16)*4+b)*4+r}'
    vLX, vLO, vLS = 128, 129, 130
    t = 132
    p(f's_lshl_b32 s{sT}, s{sRB}, 8\ns_lshl_b32 s{sT+1}, s{sCB}, 3\ns_add_u32 s{sT}, s{sT}, s{sT+1}\ns_lshl_b32 s{sT}, s{sT}, 11\ns_lshl_b32 s{sT+1}, s{sW}, 9\ns_add_u32 s{sT}, s{sT}, s{sT+1}')
    p(f'v_and_b32 v{t}, 7, v1\nv_bfe_u32 v{t+1}, v1, 3, 1\nv_lshrrev_b32 v{t+2}, 4, v1')
    p(f'v_lshlrev_b32 v{t+3}, 11, v{t}\nv_lshlrev_b32 v{t+4}, 8, v{t+1}\nv_lshlrev_b32 v{t+5}, 4, v{t+2}\nv_add3_u32 v{t+3}, v{t+3}, v{t+4}, v{t+5}\nv_add_u32 v{vLX}, s{sT}, v{t+3}')
    p(f's_lshl_b32 s{sT}, s{sRB}, 4\ns_lshr_b32 s{sT+1}, s{sCB}, 1\ns_add_u32 s{sT}, s{sT}, s{sT+1}\ns_mul_i32 s{sT}, s{sT}, {XST}\ns_lshl_b32 s{sT+1}, s{sW}, 13\ns_add_u32 s{sT}, s{sT}, s{sT+1}')
    p(f's_and_b32 s{sT+1}, s{sCB}, 1\ns_lshl_b32 s{sT+1}, s{sT+1}, 7\ns_add_u32 s{sT}, s{sT}, s{sT+1}')
    p(f'v_lshlrev_b32 v{t+3}, 4, v{t}\nv_lshlrev_b32 v{t+4}, 12, v{t+1}\nv_lshlrev_b32 v{t+5}, 8, v{t+2}\nv_add3_u32 v{t+4}, v{t+3}, v{t+4}, v{t+5}\nv_add_u32 v{vLO}, s{sT}, v{t+4}')
    p(f'v_add_u32 v{vLS}, {LDS_SCR}, v{t+3}\nv_lshl_add_u32 v{vLS+1}, v2, 2, v{vLS}')
    p(f's_and_b32 s{sT}, s{sW}, 1\ns_mul_i32 s{sT}, s{sT}, {32*7168}\ns_mul_i32 s{sT+1}, s{sCB}, 224\ns_add_u32 s{sT}, s{sT}, s{sT+1}')
    p(f's_mov_b32 s{sT+1}, 4682\ns_mov_b32 s{sT+2}, 7168')
    for n in range(448): assert (n*4682) >> 16 == n // 14
    t = 32
    for pc in range(7):
        p(f'v_add_u32 v{t}, {64*pc}, v1')
        p(f'v_mul_u32_u24 v{t+1}, s{sT+1}, v{t}\nv_lshrrev_b32 v{t+1}, 16, v{t+1}')
        p(f'v_mul_u32_u24 v{t+2}, 14, v{t+1}\nv_sub_u32 v{t+2}, v{t}, v{t+2}')
        p(f'v_and_b32 v{t+3}, 0x13, v{t+1}\nv_and_b32 v{t+4}, 4, v{t+1}\nv_lshl_or_b32 v{t+3}, v{t+4}, 1, v{t+3}')
        p(f'v_bfe_u32 v{t+4}, v{t+1}, 3, 1\nv_lshl_or_b32 v{t+3}, v{t+4}, 2, v{t+3}')
        p(f'v_mul_u32_u24 v{t+3}, s{sT+2}, v{t+3}\nv_lshlrev_b32 v{t+2}, 4, v{t+2}\nv_add3_u32 v{vDW+pc}, v{t+3}, v{t+2}, s{sT}')
        if pc % 4: p(f'v_subrev_u32 v{vDW+pc}, {1024*(pc%4)}, v{vDW+pc}')
    p(f's_lshl_b32 s{sT}, s{sW}, 17\ns_lshl_b32 s{sT+1}, s{sCB}, 8\ns_add_u32 s{sT}, s{sT}, s{sT+1}')
    p(f'v_lshrrev_b32 v{t}, 4, v1\nv_and_b32 v{t+1}, 15, v1\nv_lshlrev_b32 v{t+2}, 1, v{t}\nv_xor_b32 v{t+1}, v{t+1}, v{t+2}')
    p(f'v_lshlrev_b32 v{t}, 13, v{t}\nv_add_u32 v{t}, s{sT}, v{t}')
    for j in range(4):
        p(f'v_xor_b32 v{t+2}, {8*(j>>1)}, v{t+1}\nv_lshl_add_u32 v{t+2}, v{t+2}, 4, v{t}')
        p(f'v_add_u32 v{vDQ+j}, {j*(4*8192-1024)}, v{t+2}')
    p(f's_and_b32 s{sT}, s{sW}, 1\ns_lshr_b32 s{sT+1}, s{sW}, 1')
    p(f's_mul_i32 s{sMW}, s{sT}, {HS}\ns_mul_i32 s{sRW}, s{sT+1}, 7168')
    p(f's_mul_i32 s{sMQ}, s{sT+1}, {HS}\ns_lshl_b32 s{sRQ}, s{sT}, 12\ns_add_u32 s{sRQ}, s{sRQ}, 14336')
    KW, KQ, KA, NT = 64*7168, 64*8192, 2048, 16
    p(f's_mov_b32 s{sKW}, 0\ns_mov_b32 s{sKQ}, 0\ns_mov_b32 s{sKA}, {2*KA}')
    p(f's_mov_b32 s{sRD}, 0')
    sNO = 6
    vRX = 140; RAWL = 4*HS
    p(f's_lshl_b32 s{sT}, s{sRB}, 8\ns_lshl_b32 s{sT+1}, s{sW}, 6\ns_add_u32 s{sT+5}, s{sT}, s{sT+1}\ns_lshl_b32 s{sT}, s{sT+5}, 11')
    p(f'v_and_b32 v32, 15, v1\nv_lshrrev_b32 v34, 4, v1')
    for j in range(4):
        p(f'v_add_u32 v33, {4*j}, v34\nv_xor_b32 v35, v33, v32\nv_lshlrev_b32 v33, 11, v33\nv_lshl_add_u32 v33, v35, 4, v33\ns_sub_u32 s{sT+1}, s{sT}, {1024*j}\nv_add_u32 v{vRX+j}, s{sT+1}, v33')
    vSR = 139
    p(f's_lshl_b32 s{sT}, s{sT+5}, 4\nv_lshl_add_u32 v{vSR}, v32, 4, s{sT}')
    p('s_waitcnt lgkmcnt(0)')
    ts.stamp(p, 33)
    S_X0 = S_H
    srd(p, S_X0, pX, 0, 4 << 20)
    vLD = 144
    for i in range(4): p(f'buffer_load_dwordx4 v[{vLD+4*i}:{vLD+4*i+3}], v{vLX}, s[{S_X0}:{S_X0+3}], 0 offen offset:{64*i}')
    def raw(q):
        p(f's_lshl_b32 s{sT}, s{sW}, 14\ns_add_u32 m0, s{sT}, {RAWL + 4096*q}\ns_mov_b32 s{sT}, {32768*q}')
        for j in range(4): p(f'buffer_load_dwordx4 v{vRX+j}, s[{S_X0}:{S_X0+3}], s{sT} offen offset:{1024*j} lds', ('R', 1, 0, 0))
    srd(p, S_DB, pDBG, 0, 256)
    p(f's_lshl_b32 s{sT}, s2, 2\ns_add_u32 s{sT}, s{sT}, s{sW}\ns_cmp_eq_u32 s{sT}, 1\ns_cbranch_scc0 L_no_nonce')
    p.cond(True)
    p(f's_memrealtime s[{sNO}:{sNO+1}]\nv_mov_b32 v34, 0\ns_waitcnt lgkmcnt(0)\ns_and_b32 s{sNO}, s{sNO}, 0xffffffc0\ns_or_b32 s{sNO}, s{sNO}, 1\ns_getreg_b32 s{sT}, hwreg(HW_REG_XCC_ID, 0, 1)\ns_lshl_b32 s{sT}, s{sT}, 5\ns_or_b32 s{sNO}, s{sNO}, s{sT}\nv_mov_b32 v32, s{sNO}\nv_mov_b32 v33, s{sNO+1}')
    p(f'buffer_store_dwordx2 v[32:33], v34, s[{S_DB}:{S_DB+3}], 0 offen sc1')
    p.cond(False)
    p('L_no_nonce:')
    p(f's_cmp_ge_u32 s{sW}, 2\ns_cselect_b32 s{S_W}, s{pWU}, s{pWG}\ns_cselect_b32 s{S_W+1}, s{pWU+1}, s{pWG+1}')
    p(f's_mov_b32 s{S_W+2}, {1024*7168:#x}\ns_mov_b32 s{S_W+3}, 0x20000')
    srd(p, S_Q, pWQ, 0, 8 << 20)
    def adv_w():
        return [f's_add_u32 s{sKW}, s{sKW}, {KW}',
                f's_add_u32 s{sMW}, s{sMW}, {2*HS}', f's_cmp_ge_u32 s{sMW}, {NHS*HS}\ns_cselect_b32 s{sT}, {NHS*HS}, 0\ns_sub_u32 s{sMW}, s{sMW}, s{sT}']
    def adv_q():
        return [f's_add_u32 s{sKQ}, s{sKQ}, {KQ}',
                f's_add_u32 s{sMQ}, s{sMQ}, {2*HS}', f's_cmp_ge_u32 s{sMQ}, {NHS*HS}\ns_cselect_b32 s{sT}, {NHS*HS}, 0\ns_sub_u32 s{sMQ}, s{sMQ}, s{sT}']
    def adv_a():
        return [f's_add_u32 s{sKA}, s{sKA}, {KA}',
                f's_cmp_eq_u32 s{sKA}, {NT*KA}\ns_cselect_b32 s{S_XN+2}, 0, s{S_XN+2}']
    def adv_rd():
        return [f's_add_u32 s{sRD}, s{sRD}, {HS}', f's_mov_b32 s{sDL}, {HS}',
                f's_cmp_eq_u32 s{sRD}, {NHS*HS}\ns_cselect_b32 s{sDL}, {-(NHS-1)*HS}, s{sDL}\ns_cselect_b32 s{sRD}, 0, s{sRD}']
    def dma(pc, tile, stride):
        tag = ('W', NHS, 2*tile + 1, 2*stride)
        if pc < 7: return (f'buffer_load_dwordx4 v{vDW+pc}, s[{S_W}:{S_W+3}], s{sKW} offen offset:{1024*(pc%4)} lds', tag)
        return (f'buffer_load_dwordx4 v{vDQ+pc-7}, s[{S_Q}:{S_Q+3}], s{sKQ} offen offset:{1024*(pc-7)} lds', tag)
    def m0set(pc):
        if pc == 0: return [f's_add_u32 m0, s{sMW}, s{sRW}']
        if pc == 4: return [f's_add_u32 m0, m0, 4096']
        if pc == 7: return [f's_add_u32 m0, s{sMQ}, s{sRQ}']
        return []
    def dma_tile(tile):
        for d in range(11):
            for x in m0set(d): p(x)
            if m0set(d): p('s_nop 0')
            emit(p, dma(d, tile, 0))
            if d == 6:
                for x in adv_w(): p(x)
            if d == 10:
                for x in adv_q(): p(x)
    if cfg.t0e:
        dma_tile(0)
        for q in range(4): raw(q)
    srd(p, S_FL, pWS, WS_FL, 2304*128)
    srd(p, S_XN, pWS, WS_XN, 5 << 20)
    vP1, vP2, vPD = 136, 137, 138
    def code_srd(q, lbl):
        return [f's_getpc_b64 s[{q}:{q+1}]\n{lbl}:\ns_sub_u32 s{q}, s{q}, {lbl}-K_first\ns_subb_u32 s{q+1}, s{q+1}, 0', f's_mov_b32 s{q+2}, K_last-K_first', f's_mov_b32 s{q+3}, 0x20000']
    def code_pf(q, dst):
        return [f'buffer_load_dword v{dst}, v0, s[{q}:{q+3}], 0 offen ;pf']
    for x in code_srd(S_O, 'L_pc1'): p(x)
    p(f's_lshr_b32 s{sT}, s2, 3\ns_lshl_b32 s{sT}, s{sT}, 2\ns_add_u32 s{sT}, s{sT}, s{sW}\ns_lshl_b32 s{sT}, s{sT}, 10\nv_and_b32 v32, 15, v1\nv_mov_b32 v44, v0\nv_lshl_add_u32 v0, v32, 6, s{sT}')
    for x in code_pf(S_O, vPD): p(x)
    p(f's_lshl_b32 s{sT}, s{sRB}, 4\ns_lshl_b32 s{sT+1}, s{sW}, 2\ns_add_u32 s{sT}, s{sT}, s{sT+1}\ns_mul_i32 s{sT}, s{sT}, {XST}')
    p(f'v_lshlrev_b32 v{vT}, 4, v1\nv_add_u32 v{vAct}, s{sT}, v{vT}')
    for b in range(1, 4): p(f'v_add_u32 v{vAct+b}, {b*XST:#x}, v{vAct}')
    t = 32
    p(f'v_lshrrev_b32 v{t}, 5, v1\nv_lshlrev_b32 v{t}, 4, v{t}\nv_bfe_u32 v{t+1}, v1, 4, 1\nv_lshlrev_b32 v{t+1}, 2, v{t+1}\nv_bfe_u32 v{t+2}, v1, 2, 2')
    p(f'v_add3_u32 v{t}, v{t}, v{t+1}, v{t+2}\nv_mul_u32_u24 v{t}, 224, v{t}\nv_and_b32 v{t+3}, 3, v1\nv_lshlrev_b32 v{t+3}, 3, v{t+3}\nv_add_u32 v{vTr}, v{t}, v{t+3}')
    p(f'v_or_b32 v{t+1}, v{t+1}, v{t+2}')
    p(f'v_lshrrev_b32 v{t}, 4, v1\nv_lshlrev_b32 v{t}, 3, v{t}\nv_add_u32 v{t}, v{t}, v{t+2}\nv_lshlrev_b32 v{t}, 8, v{t}')
    p(f'v_add_u32 v{t}, 14336, v{t}\nv_add_u32 v{t}, v{t}, v{t+3}')
    for tt in range(8):
        p(f'v_xor_b32 v{t+2}, {tt}, v{t+1}\nv_lshl_add_u32 v{vTq+tt}, v{t+2}, 5, v{t}')
    if cfg.trk:
        p(f'v_lshrrev_b32 v32, 3, v1\nv_and_b32 v33, 7, v1\ns_lshl_b32 s{sT}, s{sRB}, 3\ns_add_u32 s{sT}, s{sT}, {64*cfg.trk}\nv_add_u32 v32, s{sT}, v32\nv_lshlrev_b32 v35, 6, v33')
        p(f's_mul_i32 s{sT+1}, s{sCB}, 224\ns_add_u32 s{sT+2}, s{sT+1}, {224+127}\ns_and_b32 s{sT+1}, s{sT+1}, -128\ns_and_b32 s{sT+2}, s{sT+2}, -128\ns_sub_u32 s{sT+2}, s{sT+2}, s{sT+1}')
        p(f'v_mul_u32_u24 v34, 7168, v32\nv_add3_u32 v{vP1}, v34, v35, s{sT+1}')
        p(f'v_lshlrev_b32 v34, 13, v32\ns_lshl_b32 s{sT+1}, s{sCB}, 8\nv_add3_u32 v{vP2}, v34, v35, s{sT+1}')
        p(f'v_cmp_gt_u32 vcc, s{sT+2}, v35\ns_and_b32 s{sT}, s{sW}, 1\ns_cmp_eq_u32 s{sT}, 0\ns_cselect_b64 vcc, vcc, 0\nv_mov_b32 v34, 0xf0000000\ns_nop 1\nv_cndmask_b32 v{vP1}, v34, v{vP1}, vcc')
        p(f'v_cmp_gt_u32 vcc, 4, v33\ns_cmp_eq_u32 s{sW}, 1\ns_cselect_b64 vcc, vcc, 0\ns_nop 1\nv_cndmask_b32 v{vP2}, v34, v{vP2}, vcc')
    def touch_tiles(tiles):
        p(f'v_subrev_u32 v34, {64*cfg.trk*7168}, v{vP1}\nv_subrev_u32 v35, {64*cfg.trk*8192}, v{vP2}')
        for tl in tiles:
            p(f's_mov_b32 s{sT}, {tl*KW}\ns_mov_b32 s{sT+1}, {tl*KQ}')
            p(f'buffer_load_dword v{vPD}, v34, s[{S_W}:{S_W+3}], s{sT} offen ;pf\nbuffer_load_dword v{vPD}, v35, s[{S_Q}:{S_Q+3}], s{sT+1} offen ;pf')
    if cfg.trk: touch_tiles(([] if cfg.t0e else [0]) + ([1] if cfg.t1e else []))
    ts.stamp(p, 32)
    X = 160; sM = sT + 4
    p(f's_mov_b32 s{sM}, 0xffff0000')
    p(f's_lshl_b32 s{sT}, s{sRB}, 5\ns_add_u32 s{sT+1}, s{sT}, s{sCB}\ns_lshl_b32 s{sT+1}, s{sT+1}, 7\nv_mov_b32 v45, s{sT+1}')
    p(f's_lshl_b32 s{sT+3}, s{sT+1}, 2\ns_lshl_b32 s{sT+2}, s{sW}, 7\ns_add_u32 s{sT+3}, s{sT+3}, s{sT+2}\ns_add_u32 s{sT+3}, s{sT+3}, {1280*128}\nv_mov_b32 v31, s{sT+3}')
    p(f's_lshl_b32 s{sT+2}, s{sW}, 3\ns_add_u32 s{sT}, s{sT}, s{sT+2}\ns_lshl_b32 s{sT}, s{sT}, 9\ns_add_u32 s{sT}, s{sT}, {1280*128}\nv_and_b32 v30, 31, v1\nv_lshl_add_u32 v30, v30, 7, s{sT}')
    p(f'v_lshl_add_u32 v46, v1, 4, v45\nv_cmp_gt_u32 vcc, 8, v1\nv_mov_b32 v47, -1\ns_nop 0\nv_cndmask_b32 v46, v47, v46, vcc\nv_mov_b32 v44, 0')
    for i in range(16): p(f'v_lshlrev_b32 v{X+2*i}, 16, v{vLD+i}\nv_and_b32 v{X+2*i+1}, s{sM}, v{vLD+i}')
    def red(v, tt, off):
        p(f's_nop 1\nv_add_f32_dpp v{v}, v{v}, v{v} row_ror:8 row_mask:0xf bank_mask:0xf')
        p(f'v_mov_b32 v{tt}, v{v}\ns_nop 1\nv_permlane16_swap_b32 v{v}, v{tt}\ns_nop 1\nv_add_f32 v{v}, v{v}, v{tt}')
        p(f'v_mov_b32 v{tt}, v{v}\ns_nop 1\nv_permlane32_swap_b32 v{v}, v{tt}\ns_nop 1\nv_add_f32 v{v}, v{v}, v{tt}')
        p(f'ds_write_b32 v{vLS+1}, v{v} offset:{off}\ns_waitcnt lgkmcnt(0)\ns_barrier')
        p(f'ds_read_b128 v[40:43], v{vLS} offset:{off}')
        p(f'v_add_f32 v40, v40, v41\nv_add_f32 v42, v42, v43\nv_add_f32 v{v}, v40, v42\nv_mul_f32 v{v}, {f2u(1/1024):#x}, v{v}')
    ts.stamp(p, 32)
    p(f'buffer_load_dwordx2 v[2:3], v44, s[{S_DB}:{S_DB+3}], 0 offen sc1')
    for a in range(0, 4, 2): p(f'v_pk_add_f32 v[{32+a}:{33+a}], v[{X+a}:{X+a+1}], v[{X+4+a}:{X+5+a}]')
    for i in range(8, 32, 2): p(f'v_pk_add_f32 v[{32+i%4}:{33+i%4}], v[{32+i%4}:{33+i%4}], v[{X+i}:{X+i+1}]')
    p('v_pk_add_f32 v[32:33], v[32:33], v[34:35]\nv_add_f32 v32, v32, v33')
    red(32, 33, 0)
    p('v_mov_b32 v33, v32')
    for i in range(0, 32, 2): p(f'v_pk_add_f32 v[{X+32+i}:{X+33+i}], v[{X+i}:{X+i+1}], v[32:33] neg_lo:[0,1] neg_hi:[0,1]')
    for a in range(0, 4, 2): p(f'v_pk_mul_f32 v[{36+a}:{37+a}], v[{X+32+a}:{X+33+a}], v[{X+32+a}:{X+33+a}]')
    for i in range(4, 32, 2): p(f'v_pk_fma_f32 v[{36+i%4}:{37+i%4}], v[{X+32+i}:{X+33+i}], v[{X+32+i}:{X+33+i}], v[{36+i%4}:{37+i%4}]')
    p('v_pk_add_f32 v[36:37], v[36:37], v[38:39]\nv_add_f32 v36, v36, v37')
    red(36, 37, 128)
    def rnd(v): p(f'v_cvt_pk_bf16_f32 v{v}, v{v}, v{v}\nv_lshlrev_b32 v{v}, 16, v{v}')
    rnd(32); rnd(36)
    p(f'v_add_f32 v36, {f2u(1e-5):#x}, v36'); rnd(36)
    p('v_sqrt_f32 v36, v36\ns_nop 0'); rnd(36)
    p('v_rcp_f32 v36, v36')
    S_ST = S_V
    srd(p, S_ST, pWS, WS_ST, 2048*16)
    ts.stamp(p, 32)
    p.touch('v[2:3]')
    p('L_no_retry:')
    p(f'v_readfirstlane_b32 s{sNO}, v2\nv_readfirstlane_b32 s{sNO+1}, v3\ns_nop 0\ns_cmp_lg_u32 s{sNO}, 0\ns_cbranch_scc1 L_no_ok')
    p.cond(True)
    p(f'buffer_load_dwordx2 v[2:3], v44, s[{S_DB}:{S_DB+3}], 0 offen sc1\ns_waitcnt vmcnt(0)\ns_branch L_no_retry')
    p.cond(False)
    p('L_no_ok:')
    p(f's_cmp_eq_u32 s{sW}, 1\ns_cbranch_scc0 L_st_skip')
    p.cond(True)
    p(f'v_mov_b32 v40, v32\nv_mov_b32 v41, v36\nv_mov_b32 v42, v2\nv_mov_b32 v43, v3\nbuffer_store_dwordx4 v[40:43], v46, s[{S_ST}:{S_ST+3}], 0 offen sc1')
    p.cond(False)
    p('L_st_skip:')
    ts.stamp(p, 33)
    p('v_mov_b32 v33, v32\nv_mov_b32 v37, v36')
    if not cfg.t0e: dma_tile(0)
    for i in range(16):
        if i % 4 == 0 and not cfg.t0e: raw(i // 4)
        a, b = X+2*i, X+2*i+1
        p(f'v_pk_add_f32 v[{a}:{b}], v[{a}:{b}], v[32:33] neg_lo:[0,1] neg_hi:[0,1]\nv_cvt_pk_bf16_f32 v{a}, v{a}, v{b}')
        p(f'v_and_b32 v{b}, s{sM}, v{a}\nv_lshlrev_b32 v{a}, 16, v{a}')
        p(f'v_pk_mul_f32 v[{a}:{b}], v[{a}:{b}], v[36:37]\nv_cvt_pk_bf16_f32 v{vLD+i}, v{a}, v{b}')
    RC = 224
    def rec_loads():
        for b in range(4): p(f'buffer_load_dwordx4 v[{RC+4*b}:{RC+4*b+3}], v{vSR}, s[{S_ST}:{S_ST+3}], 0 offen offset:{256*b} sc1')
    rec_loads()
    xst = [(f'buffer_store_dwordx4 v[{vLD+4*i}:{vLD+4*i+3}], v{vLO}, s[{S_XN}:{S_XN+3}], 0 offen offset:{1024*i} sc1', ('Xst', 1, 0, 0)) for i in range(4)]
    if cfg.xe:
        for x in xst: emit(p, x)
    p(f'v_and_b32 v32, 15, v1\nv_lshrrev_b32 v33, 4, v1\nv_xor_b32 v33, v33, v32\nv_lshlrev_b32 v32, 8, v32\ns_lshl_b32 s{sT}, s{sW}, 14\ns_add_u32 s{sT}, s{sT}, {RAWL}\nv_add_u32 v32, s{sT}, v32')
    for u in range(4): p(f'v_xor_b32 v34, {4*u}, v33\nv_lshl_add_u32 v{36+u}, v34, 4, v32')
    p.need(('R', 1, 0, 0))
    for u in range(4):
        for b in range(4): p(f'ds_read_b128 v[{vB+16*u+4*b}:{vB+16*u+4*b+3}], v{36+u} offset:{4096*b}')
    ts.stamp(p, 32)
    p.touch(f'v[{RC}:{RC+15}]')
    ts.stamp(p, 32)
    p('L_rec_chk:')
    p(f'v_cmp_ne_u64 vcc, s[{sNO}:{sNO+1}], v[{RC+2}:{RC+3}]')
    for b in range(1, 4): p(f'v_cmp_ne_u64 s[{sT+2}:{sT+3}], s[{sNO}:{sNO+1}], v[{RC+4*b+2}:{RC+4*b+3}]\ns_nop 0\ns_or_b64 vcc, vcc, s[{sT+2}:{sT+3}]')
    p('s_cbranch_vccz L_rec_ok')
    p.cond(True)
    rec_loads(); p('s_waitcnt vmcnt(0)\ns_branch L_rec_chk')
    p.cond(False)
    p('L_rec_ok:')
    ts.stamp(p, 33)
    srd(p, S_K, pK, 0, 2 << 20); srd(p, S_V, pV, 0, 2 << 20)
    if cfg.trk: touch_tiles(range(2, cfg.trk + 2))
    if cfg.kvp:
        p(f's_lshr_b32 s{sT}, s2, 3\ns_lshl_b32 s{sT}, s{sT}, 2\ns_add_u32 s{sT}, s{sT}, s{sW}\ns_lshl_b32 s{sT}, s{sT}, 10')
        p(f's_lshr_b32 s{sT+1}, s{sCB}, 3\ns_lshl_b32 s{sT+1}, s{sT+1}, 19\ns_add_u32 s{sT}, s{sT}, s{sT+1}\ns_add_u32 s{sT}, s{sT}, {1536*256}')
        p(f'v_and_b32 v33, 15, v1\nv_lshlrev_b32 v33, 6, v33')
        p(f'buffer_load_dword v{vPD}, v33, s[{S_K}:{S_K+3}], s{sT} offen ;pf\nbuffer_load_dword v{vPD}, v33, s[{S_V}:{S_V+3}], s{sT} offen ;pf')
    vRI = 132; vMR = [128, 130, 131, 139]
    for b in range(4): p(f'v_mov_b32 v{vRI+b}, v{RC+4*b+1}\nv_mul_f32 v{vMR[b]}, v{RC+4*b}, v{RC+4*b+1}')
    NT0 = 140
    def norm(sub):
        out = []
        for b in range(4):
            for r in range(4):
                q = vB + 16*sub + 4*b + r; t0 = NT0 + 2*((4*b + r) % 2)
                out += [f'v_lshlrev_b32 v{t0}, 16, v{q}', f'v_and_b32 v{t0+1}, s{sM}, v{q}',
                        f'v_fma_f32 v{t0}, v{t0}, v{vRI+b}, -v{vMR[b]}', f'v_fma_f32 v{t0+1}, v{t0+1}, v{vRI+b}, -v{vMR[b]}',
                        f'v_cvt_pk_bf16_f32 v{q}, v{t0}, v{t0+1}']
        return out
    ts.stamp(p, 32)
    p('s_nop 0')
    def norm_pk(sub):
        for b in range(4):
            p(f'v_mov_b32 v32, v{vRI+b}\nv_mov_b32 v33, v{vRI+b}\nv_sub_f32 v34, 0, v{vMR[b]}\nv_sub_f32 v35, 0, v{vMR[b]}')
            for r in range(4):
                q = vB + 16*sub + 4*b + r
                p(f'v_lshlrev_b32 v{36+2*r}, 16, v{q}\nv_and_b32 v{37+2*r}, s{sM}, v{q}')
            for r in range(4): p(f'v_pk_fma_f32 v[{36+2*r}:{37+2*r}], v[{36+2*r}:{37+2*r}], v[32:33], v[34:35]')
            for r in range(4): p(f'v_cvt_pk_bf16_f32 v{vB + 16*sub + 4*b + r}, v{36+2*r}, v{37+2*r}')
    for sub in range(cfg.npre): norm_pk(sub)
    ts.stamp(p, 32)
    def act(sub, b):
        r = vB + 16*(sub % RB) + 4*b
        return f'buffer_load_dwordx4 v[{r}:{r+3}], v{vAct+b}, s[{S_XN}:{S_XN+3}], s{sKA} offen offset:{1024*(sub % 2)}{SC}'
    NG = 22
    def vm_sched(step, g2):
        s, t = divmod(g2, NG); sub = 2*step + s
        d = None; a = None
        if cfg.d0 <= g2 < cfg.d0 + 11*cfg.dstr and (g2 - cfg.d0) % cfg.dstr == 0: d = (g2 - cfg.d0)//cfg.dstr
        if cfg.a0 <= t < cfg.a0 + 4*cfg.astr and (t - cfg.a0) % cfg.astr == 0: a = (sub + cfg.ad, (t - cfg.a0)//cfg.astr)
        return d, a
    def flagchk(lbl, vaddr, vd):
        return [f'v_cmp_ne_u64 vcc, s[{sNO}:{sNO+1}], v[{vd}:{vd+1}]', 's_nop 0', 's_nop 0', f's_cbranch_vccz {lbl}_ok',
                f'{lbl}_spin: ;cond', f'buffer_load_dwordx2 v[{vd}:{vd+1}], v{vaddr}, s[{S_FL}:{S_FL+3}], 0 offen sc1 ;cond', 's_waitcnt vmcnt(0) ;cond',
                f'v_cmp_ne_u64 vcc, s[{sNO}:{sNO+1}], v[{vd}:{vd+1}] ;cond', 's_nop 1 ;cond', f's_cbranch_vccnz {lbl}_spin ;cond', f'{lbl}_ok:']
    def flag_store(lbl, va):
        return f's_cmp_eq_u32 s{sW}, 1\ns_cbranch_scc0 {lbl}\nbuffer_store_dwordx2 v[2:3], v{va}, s[{S_FL}:{S_FL+3}], 0 offen sc1 ;cond\n{lbl}:'
    def poll(lbl, vaddr, done):
        p(f'{lbl}:')
        p(f'buffer_load_dwordx2 v[36:37], v{vaddr}, s[{S_FL}:{S_FL+3}], 0 offen sc1\ns_waitcnt vmcnt(0)')
        p(f'v_cmp_ne_u64 vcc, s[{sNO}:{sNO+1}], v[36:37]\ns_nop 1\ns_cbranch_vccz {done}\ns_sleep {cfg.slp}\ns_branch {lbl}')
    vHF = 27
    srd(p, S_H, pWS, WS_H, 15 << 20)
    for q_ in range(4): p(f's_mov_b32 s{S_DB+q_}, s{S_O+q_}') if q_ < 3 else p(f's_mov_b32 s{S_DB+3}, 0x20000')
    p.need(('W', NHS, 1, 0))
    xflag = f'buffer_store_dwordx2 v[2:3], v31, s[{S_FL}:{S_FL+3}], 0 offen sc1'
    p('s_waitcnt lgkmcnt(0)\ns_barrier')
    P = cfg.P
    def trr(G, tile0, stride):
        step, g2 = divmod(G, 2*NG); s, t = divmod(g2, NG)
        r = vA + 4*(G % RA)
        tag = ('W', NHS, 2*(tile0 + step) + 1, 2*stride) if s == 1 else None
        if t < 14: off = (t // 7)*7168 + (t % 7)*32; a = vTr; hh = 8*224
        else: off = 0; a = vTq + t - 14; hh = 1024
        return [(f'ds_read_b64_tr_b16 v[{r}:{r+1}], v{a} offset:{off}', tag),
                (f'ds_read_b64_tr_b16 v[{r+2}:{r+3}], v{a} offset:{off + hh}', tag)]
    for G in range(P):
        for f in trr(G, 0, 0): emit(p, f)
    UN = 2
    p(f's_mov_b32 s{sDL}, 0\ns_mov_b32 s{sCNT}, {NT//UN - 1}')
    hi = {}; lo = {}
    def H(i, x): hi.setdefault(i, []).append(x)
    def L(i, x): lo.setdefault(i, []).append(x)
    NGB = 2*NG*UN
    def g_body(first):
        hi.clear(); lo.clear(); mf = []
        t0_, st_ = (0, 0) if first else (UN, UN)
        if first:
            if not cfg.xe:
                for k, x in enumerate(xst): L(2 + cfg.fs1*2*k, x)
            H(cfg.xbar, lambda p: (p.need(('Xst', 1, 0, 0)), p(xflag)))
            for d in range(11):
                g_ = 2 + cfg.fs1*(2*d + 1 if d < 4 else d + 4)
                for x in m0set(d): L(g_, x)
                if m0set(d): L(g_, m0gap)
                L(g_, dma(d, 1, 0))
                if d == 6:
                    for x in adv_w(): L(g_, x)
                if d == 10:
                    for x in adv_q(): L(g_, x)
        for G in range(NGB):
            step, g2 = divmod(G, 2*NG); s, t = divmod(g2, NG)
            sub = 2*step + s
            for b in range(4):
                ra = vA + 4*(G % RA); rb = vB + 16*(sub % RB) + 4*b
                mf.append(f'v_mfma_f32_16x16x32_bf16 {acc(t,b)}, v[{ra}:{ra+3}], v[{rb}:{rb+3}], {"0" if first and sub == 0 else acc(t,b)}')
            i0 = 4*G; Gn = G + P; tn = Gn % NG
            if Gn % (2*NG) == 0:
                stepn = Gn // (2*NG)
                def bar_(p, stepn=stepn):
                    p.need(('W', NHS, 2*(t0_ + stepn) + 1, 2*st_))
                    p('s_barrier')
                H(i0-1, bar_)
            if tn == 0: H(i0-2, f'v_add_u32 v{vTr}, s{sDL}, v{vTr}')
            r0, r1 = trr(Gn % NGB, t0_ + (Gn // NGB)*UN, st_)
            H(i0, r0); H(i0+1, r1)
            if 1 <= tn <= 8: L(i0, f'v_add_u32 v{vTq+tn-1}, s{sDL}, v{vTq+tn-1}')
            if tn == 9:
                for x in adv_rd(): L(i0, x)
            pc, a = vm_sched(step, g2)
            if a is not None and not (first and a[0] < 4):
                g_ = max(i0, cfg.xchk + 4 + 8*(4*(a[0] - 4) + a[1])) if first else i0
                assert g_ < 88*(a[0] - 4 + 3) + 60 or not first
                L(g_, act(*a))
                if a[1] == 3 and a[0] % 2 == 1:
                    for x in adv_a(): L(g_, x)
            if pc is not None:
                g_ = max(i0, 2 + cfg.fs1*(15 + pc)) if first and step == 0 else i0
                if cfg.trk and pc == 0:
                    L(g_, f'buffer_load_dword v{vPD}, v{vP1}, s[{S_W}:{S_W+3}], s{sKW} offen ;pf')
                    L(g_, f'buffer_load_dword v{vPD}, v{vP2}, s[{S_Q}:{S_Q+3}], s{sKQ} offen ;pf')
                for x in m0set(pc): L(g_, x)
                if m0set(pc): L(g_, m0gap)
                L(g_, dma(pc, t0_ + step + 2, st_))
                if pc == 6:
                    for x in adv_w(): L(g_, x)
                if pc == 10:
                    for x in adv_q(): L(g_, x)
        for x in code_pf(S_DB, vPD): L(4*(cfg.d0 + 10*cfg.dstr) + 1, x)
        if first:
            H(cfg.xchk - cfg.xfl, f'buffer_load_dwordx2 v[28:29], v30, s[{S_FL}:{S_FL+3}], 0 offen sc1')
            H(cfg.xchk, '\n'.join(flagchk('L_x', 30, 28)))
        else:
            H(len(mf)-3, f's_sub_u32 s{sCNT}, s{sCNT}, 1'); H(len(mf)-2, f's_cmp_lg_u32 s{sCNT}, 0')
            H(len(mf)-1, 's_cbranch_scc1 G_loop')
        lo_ = {k: lo[k] for k in sorted(lo)}
        fill = spread(hi, lo_, len(mf), cfg.cap, 16 if not first else 60, cost=lambda i: 1 if i % 4 == 3 else 2 if i == -1 else 0)
        fix_m0(fill, len(mf))
        if first:
            edges = [0] + [88*sub - 3 if sub == 3 or cfg.npre == 1 else (261*(sub - cfg.npre + 1))//(4 - cfg.npre) for sub in range(cfg.npre, 4)]
            for k, sub in enumerate(range(cfg.npre, 4)):
                g0, g1 = edges[k], min(edges[k+1], 88*sub - 3)
                q_ = norm(sub); per = len(q_)/(g1 - g0); due = 0.0; done = 0
                for i in range(g0, g1):
                    due += per; used = len(fill[i]) + (1 if i % 4 == 3 else 0)
                    while q_ and done < due + 2 and (used < cfg.cap or done < due - cfg.lag):
                        fill[i].append(q_.pop(0)); used += 1; done += 1
                fill[g1 - 1] += q_
        else: chk_tail(fill, len(mf))
        if first:
            for i in (43, 87, 131, 175, 219, 263, 307):
                t_ = ts.text(64)
                if t_: fill[i].append(t_)
        interleave(p, mf, fill)
    ts.stamp(p, 97)
    g_body(True)
    if cfg.xt: p.touch(f'v[{vB}:{vB+16*cfg.xt-1}]')
    ts.stamp(p, 96)
    p.loop_begin('G_loop', NT//UN - 1)
    g_body(False)
    p.loop_end()
    p('s_waitcnt vmcnt(0) lgkmcnt(0)\ns_barrier')
    ts.stamp(p, 5)

    srd(p, S_O, pWS, WS_O, 17 << 20)
    vDK, vDV, vK, vV = 8, 12, 13, 21
    sKV, sMK, sAD, sPF = 39, 40, 43, 44
    t = 128
    p(f'v_lshrrev_b32 v{t}, 4, v1\nv_and_b32 v{t+1}, 15, v1')
    p(f's_lshl_b32 s{sMK}, s{sW}, 12')
    p(f'v_lshlrev_b32 v{t+2}, 8, v{t}\nv_add_u32 v{t+2}, s{sMK}, v{t+2}')
    for j in range(4):
        p(f'v_add_u32 v{t+3}, {4*j}, v{t}\nv_xor_b32 v{t+3}, v{t+3}, v{t+1}\nv_lshl_add_u32 v{vDK+j}, v{t+3}, 4, v{t+2}')
    p(f'v_lshlrev_b32 v{t+3}, 2, v{t}\nv_xor_b32 v{t+3}, v{t+3}, v{t+1}\nv_lshl_add_u32 v{vDV}, v{t+3}, 4, v{t+2}')
    p(f's_lshr_b32 s{sKV}, s{sCB}, 3\ns_lshl_b32 s{sKV}, s{sKV}, 19\ns_add_u32 s{sKV}, s{sKV}, {1536*256}')
    def kdma(j, soff, tag): return (f'buffer_load_dwordx4 v{vDK+j}, s[{S_K}:{S_K+3}], s{soff} offen offset:{1024*j} lds', tag)
    def vdma(j, soff, tag): return (f'buffer_load_dwordx4 v{vDV}, s[{S_V}:{S_V+3}], s{soff} offen offset:{1024*j} lds', tag)
    kvq = []
    for (kind, tl) in (('K', 0), ('K', 1), ('V', 0), ('K', 2), ('V', 1)):
        g = [f's_add_u32 s{sT+5}, s{sKV}, {tl*16384}', f's_add_u32 m0, s{sMK}, {tl*16384 + (65536 if kind == "V" else 0)}', 's_nop 0']
        for j in range(4):
            kvq.append(g + [(kdma if kind == 'K' else vdma)(j, sT+5, (kind, 4, tl, 0))]); g = []
    k1 = -2*math.sqrt(2/math.pi)*math.log2(math.e); k2 = k1*0.044715
    vC = 28
    p(f'v_mov_b32 v{vC}, {f2u(k1):#x}\nv_mov_b32 v{vC+1}, {f2u(k1):#x}\nv_mov_b32 v{vC+2}, {f2u(k2):#x}\nv_mov_b32 v{vC+3}, {f2u(k2):#x}')
    p(f's_lshl_b32 s{sT+2}, s{sRB}, 4\ns_lshl_b32 s{sT+3}, s{sW}, 2\ns_add_u32 s{sT+2}, s{sT+2}, s{sT+3}\ns_mul_i32 s{sT+2}, s{sT+2}, {HST}')
    p(f's_mul_i32 s{sT+3}, s{sCB}, 7\ns_add_u32 s{sT+3}, s{sT+3}, 1\ns_lshr_b32 s{sT+3}, s{sT+3}, 1\ns_lshl_b32 s{sT+3}, s{sT+3}, 10')
    p(f's_add_u32 s{sT+2}, s{sT+2}, s{sT+3}')
    p(f'v_lshlrev_b32 v{t}, 4, v1\nv_add_u32 v{vAct}, s{sT+2}, v{t}')
    for b in range(1, 4): p(f'v_add_u32 v{vAct+b}, {b*HST:#x}, v{vAct}')
    p(f's_and_b32 s{sT+3}, s{sCB}, 1\ns_cmp_eq_u32 s{sT+3}, 0\ns_mov_b32 s{sT+4}, 3072\ns_cselect_b32 s{sT+4}, s{sT+4}, -1016')
    vHs = 132
    for b in range(4): p(f'v_add_u32 v{vHs+b}, s{sT+4}, v{vAct+b}')
    def gelu_tiles(tiles):
        n = len(tiles)
        Xs = [32 + 12*i for i in range(n)]
        pk = lambda r: f'v[{r}:{r+1}]'
        for (t, b, d), X in zip(tiles, Xs):
            for r in range(4): p(f'v_accvgpr_read_b32 v{X+r}, {accr(t,b,r)}')
        for X in Xs:
            for r in (0, 2): p(f'v_pk_mul_f32 {pk(X+8+r)}, {pk(X+r)}, {pk(X+r)}')
        for X in Xs:
            for r in (0, 2): p(f'v_pk_fma_f32 {pk(X+8+r)}, {pk(X+8+r)}, {pk(vC+2)}, {pk(vC)}')
        for X in Xs:
            for r in (0, 2): p(f'v_pk_mul_f32 {pk(X+8+r)}, {pk(X+8+r)}, {pk(X+r)}')
        for (t, b, d), X in zip(tiles, Xs):
            for r in range(4): p(f'v_exp_f32 v{X+8+r}, v{X+8+r}')
            for r in range(4): p(f'v_accvgpr_read_b32 v{X+4+r}, {accr(t+7,b,r)}')
        for X in Xs:
            for r in (0, 2): p(f'v_pk_add_f32 {pk(X+8+r)}, {pk(X+8+r)}, 1.0 op_sel_hi:[1,0]')
        for X in Xs:
            for r in range(4): p(f'v_rcp_f32 v{X+8+r}, v{X+8+r}')
            for r in (0, 2): p(f'v_pk_mul_f32 {pk(X+4+r)}, {pk(X+4+r)}, {pk(X+r)}')
        for X in Xs:
            for r in (0, 2): p(f'v_pk_mul_f32 {pk(X+4+r)}, {pk(X+4+r)}, {pk(X+8+r)}')
        for (t, b, d), X in zip(tiles, Xs):
            p(f'v_cvt_pk_bf16_f32 v{d}, v{X+4}, v{X+5}\nv_cvt_pk_bf16_f32 v{d+1}, v{X+6}, v{X+7}')
    for par in range(2):
        if par == 0: p('s_cbranch_scc0 B_epi_odd')
        else: p.cond(True); p('B_epi_odd:')
        n = 0; kq = list(kvq)
        for b in range(4):
            for pr in range(3):
                d = 64 + 4*(n % 8); n += 1
                for _ in range(2):
                    if kq:
                        for x in kq.pop(0): emit(p, x)
                gelu_tiles([(2*pr + par, b, d), (2*pr + 1 + par, b, d + 2)])
                p(f'buffer_store_dwordx4 v[{d}:{d+3}], v{vAct+b}, s[{S_H}:{S_H+3}], 0 offen offset:{1024*pr}{LS}', ('Hst', 1, 0, 0))
        for b in range(0, 4, 2):
            d = 64 + 4*(n % 8); n += 1
            gelu_tiles([(6 if par == 0 else 0, b, d), (6 if par == 0 else 0, b+1, d+2)])
            p(f'buffer_store_dwordx2 v[{d}:{d+1}], v{vHs+b}, s[{S_H}:{S_H+3}], 0 offen{LS}', ('Hst', 1, 0, 0))
            p(f'buffer_store_dwordx2 v[{d+2}:{d+3}], v{vHs+b+1}, s[{S_H}:{S_H+3}], 0 offen{LS}', ('Hst', 1, 0, 0))
        if par == 0: p('s_branch B_epi_done')
    p.cond(False)
    p('B_epi_done:')
    ts.stamp(p, 5)
    vQ = 64
    qs = math.log2(math.e)/math.sqrt(128)
    def qconv(qt, s):
        d = vQ + (qt*8+s)*4
        for half in range(2):
            b = 2*qt + half; x = 32 + 4*half
            src = accr(14+s, b, 0)
            if src[0] == 'a':
                for r in range(4): p(f'v_accvgpr_read_b32 v{x+r}, {accr(14+s, b, r)}')
                s0 = x
            else: s0 = int(src[1:])
            for r in (0, 2): p(f'v_pk_mul_f32 v[{x+r}:{x+r+1}], v[{s0+r}:{s0+r+1}], v[{vC}:{vC+1}]')
            p(f'v_cvt_pk_bf16_f32 v{d+2*half}, v{x}, v{x+1}\nv_cvt_pk_bf16_f32 v{d+2*half+1}, v{x+2}, v{x+3}')
    def qswap(qt, s):
        d = vQ + (qt*8+s)*4
        p(f'v_permlane16_swap_b32 v{d}, v{d+2}\nv_permlane16_swap_b32 v{d+1}, v{d+3}')
    t = 32
    p(f'v_and_b32 v{t}, 31, v1\nv_lshrrev_b32 v{t+1}, 5, v1\nv_and_b32 v{t+2}, 15, v1\nv_xor_b32 v{t+1}, v{t+1}, v{t+2}\nv_lshlrev_b32 v{t}, 8, v{t}')
    for s in range(8):
        p(f'v_xor_b32 v{t+2}, {2*s}, v{t+1}\nv_lshl_add_u32 v{vK+s}, v{t+2}, 4, v{t}')
    p(f'v_mov_b32 v{vC}, {f2u(qs):#x}\nv_mov_b32 v{vC+1}, {f2u(qs):#x}')
    vS = [128, 160]; vP = [192, 208]; vN = 224; vL = 28
    aF = 192
    def Sreg(n, qt): return vS[n % 2] + 16*qt
    def Preg(n, qt, ks): return vP[n % 2] + 8*qt + 4*ks
    def kread(n, s, tag):
        r = aF + 4*s
        return [(f'ds_read_b128 a[{r}:{r+3}], v{vK+s} offset:{(n % 8)*8192}', ('K', 4, n//2, 0))]
    def vread(n, f, tag, base=None, off0=None):
        ks, dt = divmod(f, 4); r = aF + 32 + 4*f
        off = (32*(n % 8) + 16*ks)*256 if off0 is None else off0 + 16*ks*256
        b = vV if base is None else base
        return [(f'ds_read_b64_tr_b16 a[{r}:{r+1}], v{b+dt} offset:{off}', tag),
                (f'ds_read_b64_tr_b16 a[{r+2}:{r+3}], v{b+dt} offset:{off+2048}', tag)]
    def qk(n, s, qt, c0):
        S = Sreg(n, qt); c = f'v[{S}:{S+15}]' if s else c0(qt)
        return f'v_mfma_f32_32x32x16_bf16 v[{S}:{S+15}], a[{aF+4*s}:{aF+4*s+3}], v[{vQ+(qt*8+s)*4}:{vQ+(qt*8+s)*4+3}], {c}'
    def pv(n, f, qt, first=False):
        ks, dt = divmod(f, 4); o = (dt*2+qt)*16; P_ = Preg(n, qt, ks)
        c = '0' if first and ks == 0 else f'a[{o}:{o+15}]'
        return f'v_mfma_f32_32x32x16_bf16 a[{o}:{o+15}], a[{aF+32+4*f}:{aF+32+4*f+3}], v[{P_}:{P_+3}], {c}'
    negm = lambda qt: f'v[{vN+16*qt}:{vN+16*qt+15}]'
    zero = lambda qt: '0'
    def softmax_ops(n):
        sl = [[] for _ in range(33)]
        for e in range(32):
            qt, i = divmod(e, 16); S = Sreg(n, qt); Pr = Preg(n, qt, i>>3)+((i&7)>>1)
            sl[e].insert(0, f'v_exp_f32 v{S+i}, v{S+i}')
            if cfg.sum == 'add': sl[e+1].append(f'v_add_f32 v{vL+2*qt+(i&1)}, v{vL+2*qt+(i&1)}, v{S+i}')
            if i & 1:
                if e == 31 and cfg.sum != 'add': sl[e+1].append('s_nop 0')
                sl[e+1].append(f'v_cvt_pk_bf16_f32 v{Pr}, v{S+i-1}, v{S+i}')
                k = min(32, e+2)
                if cfg.sum == 'pk': sl[k].append(f'v_pk_add_f32 v[{vL+2*qt}:{vL+2*qt+1}], v[{vL+2*qt}:{vL+2*qt+1}], v[{S+i-1}:{S+i}]')
                if cfg.sum == 'dot': sl[k].append(f'v_dot2_f32_bf16 v{vL+2*qt+((i>>1)&1)}, v{Pr}, v39, v{vL+2*qt+((i>>1)&1)}')
        return sl
    if cfg.sum == 'dot': p('v_mov_b32 v39, 0x3f803f80')
    p.need(('K', 4, 0, 0)); p('s_barrier')
    for s in range(8): emit(p, kread(0, s, None)[0])
    ts.stamp(p, 5)
    qconv(0, 0); qconv(1, 0)
    for s in range(8):
        if s < 7: qconv(0, s+1)
        qswap(0, s); qswap(1, s)
        if s < 7: qconv(1, s+1)
        else: p('s_nop 1')
        for qt in range(2): p(qk(0, s, qt, zero))
        emit(p, kread(1, s, None)[0])
    t = 36
    p(f'v_lshrrev_b32 v{t}, 5, v1\nv_lshlrev_b32 v{t}, 2, v{t}\nv_bfe_u32 v{t+1}, v1, 2, 2\nv_add_u32 v{t}, v{t}, v{t+1}\nv_lshlrev_b32 v{t}, 8, v{t}')
    p(f'v_bfe_u32 v{t+2}, v1, 4, 1\nv_lshlrev_b32 v{t+2}, 5, v{t+2}\nv_and_b32 v{t+3}, 3, v1\nv_lshlrev_b32 v{t+3}, 3, v{t+3}\nv_add3_u32 v{t}, v{t}, v{t+2}, v{t+3}')
    p(f'v_add_u32 v{t}, 0x10000, v{t}')
    for dt in range(4):
        p(f'v_xor_b32 v{t+2}, {dt}, v{t+1}\nv_lshl_add_u32 v{vV+dt}, v{t+2}, 6, v{t}')
    for i in range(4): p(f'v_mov_b32 v{vL+i}, 0')
    def rowmax(n, first):
        for qt in range(2):
            S = Sreg(n, qt); m = 32 + 2*qt
            if first: p(f'v_max3_f32 v{m}, v{S}, v{S+1}, v{S+2}')
            else: p(f'v_max3_f32 v{m}, v{m}, v{S+1}, v{S+2}\nv_max_f32 v{m}, v{m}, v{S}')
            for i in range(3, 15, 2): p(f'v_max3_f32 v{m}, v{m}, v{S+i}, v{S+i+1}')
            p(f'v_max_f32 v{m}, v{m}, v{S+15}')
    def set_negm():
        p('v_mov_b32 v33, v32\nv_mov_b32 v35, v34\ns_nop 0\nv_permlane32_swap_b32 v32, v33\nv_permlane32_swap_b32 v34, v35\ns_nop 0')
        for qt in range(2):
            m = 32 + 2*qt
            p(f'v_max_f32 v{m}, v{m}, v{m+1}\nv_sub_f32 v{vN+16*qt}, 0, v{m}\nv_mov_b32 v{vN+16*qt+1}, v{vN+16*qt}')
            for i in range(2, 16, 2): p(f'v_pk_mul_f32 v[{vN+16*qt+i}:{vN+16*qt+i+1}], v[{vN+16*qt}:{vN+16*qt+1}], 1.0 op_sel_hi:[1,0]')
    ts.stamp(p, 4)
    rowmax(0, True); set_negm()
    for qt in range(2):
        S = Sreg(0, qt)
        for i in range(0, 16, 2): p(f'v_pk_add_f32 v[{S+i}:{S+i+1}], v[{S+i}:{S+i+1}], v[{vN+16*qt}:{vN+16*qt+1}]')
    ts.stamp(p, 4)
    S_WD, S_WO, S_AH, S_AO, S_X, S_OUT, S_P = 12, 8, 16, 20, 24, 28, 60
    sJ, sRC, sCC = 70, 71, 76
    kWD, kWO, kAH, kAO, cMW, cTG = 77, 75, 78, 42, 79, 49
    dD, dO, aH, aO, cTr, cA, cC = 40, 8, 48, 4, 52, 64, 128
    vFH = 60
    SLOT = 32768
    k_h = lambda pc: 4*pc
    k_o = lambda pc: 4*((pc & 1) | ((pc & 2) << 1) | ((pc & 4) >> 1))
    def x_dma_addr(dst, kmap):
        t = 36
        p(f's_lshl_b32 s{sT+2}, s{sW}, 16\ns_lshl_b32 s{sT+3}, s{sCC}, 8\ns_add_u32 s{sT+2}, s{sT+2}, s{sT+3}')
        p(f'v_lshrrev_b32 v{t}, 4, v1\nv_and_b32 v{t+1}, 15, v1\nv_lshlrev_b32 v{t+2}, 1, v{t}\nv_xor_b32 v{t+1}, v{t+1}, v{t+2}')
        p(f'v_lshlrev_b32 v{t}, 11, v{t}\nv_add_u32 v{t}, s{sT+2}, v{t}')
        for pc in range(8):
            p(f'v_xor_b32 v{t+2}, {8*(pc & 1)}, v{t+1}\nv_lshl_add_u32 v{t+2}, v{t+2}, 4, v{t}\nv_add_u32 v{dst+pc}, {(kmap(pc) << 11) - 1024*(pc % 4)}, v{t+2}')
    NS = ND + 8; kind = lambda sg: 'd' if sg < ND else 's'
    def cdma(pc, sg):
        D_, S_, K_ = (dD, S_WD, kWD) if kind(sg) == 'd' else (dO, S_WO, kWO)
        g = []
        if pc % 4 == 0: g += [f's_add_u32 m0, s{cMW}, {(sg % 4)*SLOT + 1024*pc}', m0gap]
        g.append((f'buffer_load_dwordx4 v{D_+pc}, s[{S_}:{S_+3}], s{K_} offen offset:{1024*(pc%4)} lds', ('C', 4, sg, 0)))
        if pc == 7: g.append(f's_add_u32 s{K_}, s{K_}, {128*2048}')
        return g
    def cact(sub, b):
        A_, S_, K_ = (aH, S_AH, kAH) if kind(sub // 4) == 'd' else (aO, S_AO, kAO)
        r = 128 + 16*(sub % 8) + 4*b
        g = [f'buffer_load_dwordx4 a[{r}:{r+3}], v{A_+b}, s[{S_}:{S_+3}], s{K_} offen offset:{1024*(sub % 4)}{SC}']
        if b == 3 and sub % 4 == 3: g.append(f's_add_u32 s{K_}, s{K_}, 4096')
        return g
    def collect(fn):
        nonlocal p
        w = Prog(); q = p; p = w; fn(); p = q
        out = []
        for it in w.items:
            if it.op == 's_addc_u32': out[-1] = (out[-1][0] + '\n' + it.text, None)
            else: out.append((it.text, it.tag))
        return out
    PF = cfg.PF; vPF = 25; sDM = 55; sPF = 44
    pairs = []; sm = []; start = {}
    for n in range(17):
        st = len(pairs); start[n] = st
        if n <= 14:
            for s_ in range(8): pairs.append((qk(n+1, s_, 0, negm), qk(n+1, s_, 1, negm), kread(n+1, s_, None) if n else []))
        if n >= 1:
            for f in range(8): pairs.append((pv(n-1, f, 0, n == 1), pv(n-1, f, 1, n == 1), vread(n-1, f, ('V', 4, (n-1)//2, 0))))
        if n <= 15: sm.append((st, len(pairs), softmax_ops(n)))
    mf = []; hi.clear(); lo.clear()
    for a_, b_, _ in pairs: mf += [a_, b_]
    n_ = len(mf)
    bargap = {}
    for j in range(8):
        g = 2*(start[2*j+1] - PF) - 1; bargap[j] = g
        def bar_(p, j=j):
            if j < 7: p.need(('K', 4, j+1, 0))
            p.need(('V', 4, j, 0))
            if j == cfg.hbar: p.need(('Hst', 1, 0, 0))
            p('s_barrier')
        H(g, bar_)
    for i in range(len(pairs) - PF):
        for k, r in enumerate(pairs[i + PF][2]): H(2*i + k, r)
    for (st, en, sl) in sm:
        ng = 2*(en - st)
        for e, ops in enumerate(sl):
            for o in ops: H(2*st + min(ng - 1, e*ng//32), o)
    def setup1():
        p(f's_lshl_b32 s{sT}, s2, 2\ns_add_u32 s{sT}, s{sT}, s{sW}\ns_lshl_b32 s{sT+1}, s{sT}, 13\ns_mul_i32 s{sT}, s{sT}, 7168')
        p(f'v_lshlrev_b32 v{vPF}, 4, v1\nv_add_u32 v{vPF+1}, s{sT}, v{vPF}\nv_add_u32 v{vPF}, s{sT+1}, v{vPF}')
        srd(p, S_WO, pWO, 0, 8 << 20); srd(p, S_WD, pWD, 0, 7 << 20)
        p(f's_lshl_b32 s{sDM}, s{sMK}, 1\ns_add_u32 s{sDM}, s{sDM}, 0x20000\ns_mov_b32 s{sPF}, 0')
        p(f's_lshl_b32 s{sT}, s{sRB}, 12\ns_lshl_b32 s{sT+1}, s{sCB}, 7\ns_add_u32 s{sT}, s{sT}, s{sT+1}\ns_add_u32 s{sT}, s{sT}, {256*128}\nv_mov_b32 v{vHF}, s{sT}')
    def setup2():
        if cfg.fs:
            p(f's_lshr_b32 s{sT}, s{sNO}, 5\ns_xor_b32 s{sT}, s{sT}, s2\ns_and_b32 s{sT}, s{sT}, 1\ns_and_b32 s{sJ}, s2, 2\ns_or_b32 s{sJ}, s{sJ}, s{sT}')
            p(f's_and_b32 s{sRC}, s2, 4\ns_bfe_u32 s{sT+1}, s2, 0x20003\ns_add_u32 s{sRC}, s{sRC}, s{sT+1}\ns_lshr_b32 s{sCC}, s2, 5')
            p(f's_lshr_b32 s{sT+1}, s{sJ}, 1\ns_mul_i32 s{kAH}, s{sT+1}, 14\ns_lshl_b32 s{sT+2}, s{sT}, 3\ns_add_u32 s{kAH}, s{kAH}, s{sT+2}')
            p(f's_lshl_b32 s{sT+1}, s{sT+1}, 4\ns_mul_i32 s{sT+2}, s{sT}, 9\ns_add_u32 s{sT+1}, s{sT+1}, s{sT+2}\ns_mul_i32 s{sT}, s{sT}, 3\ns_sub_u32 s{sT}, 9, s{sT}')
            p(f'v_and_b32 v{vFH}, 15, v1\nv_min_u32 v{vFH}, s{sT}, v{vFH}\ns_lshl_b32 s{sT}, s{sRC}, 5\ns_add_u32 s{sT}, s{sT}, s{sT+1}\ns_add_u32 s{sT}, s{sT}, 256\ns_lshl_b32 s{sT}, s{sT}, 7')
            p(f'v_lshl_add_u32 v{vFH}, v{vFH}, 7, s{sT}')
            p(f's_lshl_b32 s{kWD}, s{kAH}, 18\ns_lshl_b32 s{kAH}, s{kAH}, 12')
        else:
            p(f's_bfe_u32 s{sJ}, s2, 0x20001\ns_and_b32 s{sRC}, s2, 1\ns_lshl_b32 s{sRC}, s{sRC}, 2\ns_bfe_u32 s{sT}, s2, 0x20003\ns_add_u32 s{sRC}, s{sRC}, s{sT}\ns_lshr_b32 s{sCC}, s2, 5')
            p(f's_lshl_b32 s{sT}, s{sRC}, 5\ns_lshl_b32 s{sT+1}, s{sJ}, 3\ns_add_u32 s{sT}, s{sT}, s{sT+1}\ns_add_u32 s{sT}, s{sT}, 256\ns_lshl_b32 s{sT}, s{sT}, 7')
            p(f'v_and_b32 v{vFH}, 7, v1\nv_lshl_add_u32 v{vFH}, v{vFH}, 7, s{sT}')
            p(f's_mul_i32 s{kWD}, s{sJ}, {896*2048}\ns_mul_i32 s{kAH}, s{sJ}, {28*1024}')
        x_dma_addr(dD, k_h)
        p(f's_lshl_b32 s{cMW}, s{sW}, 13')
        srd(p, S_AH, pWS, WS_H, 15 << 20)
        p(f's_lshl_b32 s{sT}, s{sRC}, 4\ns_lshl_b32 s{sT+2}, s{sW}, 2\ns_add_u32 s{sT}, s{sT}, s{sT+2}\ns_mul_i32 s{sT+2}, s{sT}, {HST}')
        p(f'v_lshlrev_b32 v36, 4, v1\nv_add_u32 v{aH}, s{sT+2}, v36')
        for b in range(1, 4): p(f'v_add_u32 v{aH+b}, {HST}, v{aH+b-1}')
        t = 36
        p(f's_lshl_b32 s{sT+3}, s{sJ}, 1')
        p(f'v_lshrrev_b32 v{t}, 2, v1\nv_and_b32 v{t+1}, 7, v{t}\nv_xor_b32 v{t+1}, s{sT+3}, v{t+1}\nv_lshlrev_b32 v{t}, 8, v{t}\nv_and_b32 v{t+2}, 3, v1\nv_lshl_add_u32 v{t}, v{t+2}, 3, v{t}')
        for tt in range(8):
            p(f'v_xor_b32 v{t+2}, {tt}, v{t+1}\nv_lshl_add_u32 v{cTr+tt}, v{t+2}, 5, v{t}')
        p(f's_mov_b32 s{cTG}, 0x10000')
    s2q = collect(setup2); s2per = -(-len(s2q) // 4)
    for x in collect(setup1): L(16, x)
    npf = 0
    for j in range(7):
        g = bargap[j] + 1
        if j + 3 <= 7:
            L(g, f's_add_u32 s{sT+5}, s{sKV}, {(j+3)*16384}') if False else None
            L(g, f's_add_u32 s{sT+4}, s{sKV}, {(j+3)*16384}'); L(g, f's_add_u32 m0, s{sMK}, {((j+3) % 4)*16384}'); L(g, m0gap)
            for k in range(4): L(g + 3*k, kdma(k, sT+4, ('K', 4, j+3, 0)))
        if j + 2 <= 7:
            L(g + 12, f's_add_u32 s{sT+4}, s{sKV}, {(j+2)*16384}'); L(g + 12, f's_add_u32 m0, s{sMK}, {0x10000 + ((j+2) % 4)*16384}'); L(g + 12, m0gap)
            for k in range(4): L(g + 12 + 3*k, vdma(k, sT+4, ('V', 4, j+2, 0)))
        if j < 5:
            L(g + 24, f's_mov_b32 m0, s{sDM}'); L(g + 24, m0gap)
            for k in range(3):
                wo_ = npf % 2 == 0
                L(g + 24 + 4*k, f'buffer_load_dwordx4 v{vPF if wo_ else vPF+1}, s[{S_WO if wo_ else S_WD}:{(S_WO if wo_ else S_WD)+3}], s{sPF} offen lds')
                if not wo_: L(g + 24 + 4*k, f's_add_u32 s{sPF}, s{sPF}, 1024')
                npf += 1
        if cfg.cpf2 and (j in (1, 4) or cfg.cpf2 >= 2):
            for x in code_pf(S_DB, 61): L(g + 35, x)
        if j < 4:
            for x in s2q[j*s2per:(j+1)*s2per]: L(g + 36, x)
        if j == cfg.hbar: H(g, flag_store('A_hf', vHF))
        if j == 4: L(g + 40, f'buffer_load_dwordx2 v[62:63], v{vFH}, s[{S_FL}:{S_FL+3}], 0 offen sc1')
        if j == 5:
            for pc in range(8):
                for x in cdma(pc, 0): L(g + 24 + 3*pc, x)
            L(g + 50, '\n'.join(flagchk('L_h', vFH, 62)))
        if j == 6:
            for sub in range(4):
                for b in range(4):
                    for x in cact(sub, b): L(g + 3*(4*sub + b), x)
    for pc in range(8):
        for x in cdma(pc, 1): L(bargap[7] + 1 + 3*pc, x)
    def cyc(x):
        t_ = x[0] if isinstance(x, tuple) else x
        if callable(t_): return 8
        o = t_.split()[0]
        if o in TRANS: return 8
        if o.startswith('v_cvt_pk'): return 5
        if o.startswith('buffer_'): return cfg.vmc
        return 4*len(t_.split('\n')) if '\n' in t_ and ';cond' not in t_ else 4
    fill = {}; q_ = []
    for i in range(-1, n_):
        cur = list(hi.get(i, [])); used = sum(cyc(x) for x in cur) + (4 if i % 2 == 1 else 0)
        for x in lo.get(i, []): q_.append((i, x))
        while q_ and (used + cyc(q_[0][1]) <= cfg.acap or i == n_ - 1 or i - q_[0][0] >= cfg.amax):
            x = q_.pop(0)[1]; cur.append(x); used += cyc(x)
        fill[i] = cur
    fix_m0(fill, n_)
    if cfg.aab:
        tx = lambda x: x[0] if isinstance(x, tuple) else x
        for i in fill:
            if 2*start[3] <= i < 2*start[11]:
                if cfg.aab & 1: fill[i] = [x for x in fill[i] if callable(tx(x)) or not tx(x).startswith('buffer_load')]
                if cfg.aab & 2: fill[i] = [x for x in fill[i] if callable(tx(x)) or x in hi.get(i, []) or tx(x).startswith('buffer_load') or 'm0' in tx(x) or 's54' in tx(x)]
                if cfg.aab & 4: fill[i] = [x for x in fill[i] if not callable(tx(x))]
    for n in (1, 3, 7, 11, 15):
        t_ = ts.text(4)
        if t_: fill[2*start[n] - 1].append(t_)
    interleave(p, mf, fill)
    ts.stamp(p, 5)
    for qt in range(2):
        l = vL + 2*qt
        p(f'v_add_f32 v{l}, v{l}, v{l+1}\nv_mov_b32 v{l+1}, v{l}\ns_nop 1\nv_permlane32_swap_b32 v{l}, v{l+1}\ns_nop 1\nv_add_f32 v{l}, v{l}, v{l+1}')
    p(f'v_max_f32 v33, v{vL}, v{vL+2}\nv_add_f32 v33, v33, v{vL}\nv_add_f32 v33, v33, v{vL+2}')
    p(f's_mov_b32 s{sT}, {f2u(2.0**cfg.thr):#x}\nv_cmp_nlt_f32 vcc, v33, s{sT}\ns_nop 1\ns_cbranch_vccnz A_slow')
    p('A_done:')
    ad = cfg.cad; P = cfg.cP
    for sub in range(4, ad):
        for b in range(4):
            for x in cact(sub, b): emit(p, x)
    p(f'v_rcp_f32 v{vL}, v{vL}\nv_rcp_f32 v{vL+2}, v{vL+2}')
    p.need(('C', 4, 0, 0)); p('s_barrier')
    for G in range(P):
        r = cA + 4*G
        p(f'ds_read_b64_tr_b16 v[{r}:{r+1}], v{cTr+G} offset:0', ('C', 4, 0, 0)); p(f'ds_read_b64_tr_b16 v[{r+2}:{r+3}], v{cTr+G} offset:4096', ('C', 4, 0, 0))
    p(';SPLIT')
    OE = cfg.oe if ND >= 7 else cfg.oes
    vO, vX, vFO, vFD, vFS, vFQ = 16, 96, 20, 21, 22, 23
    sPS, sPR = 32, 33
    def o_epi(packed):
        t = 32
        p(f'v_mov_b32 v{vL+1}, v{vL}\nv_mov_b32 v{vL+3}, v{vL+2}')
        p(f's_lshl_b32 s{sT}, s{sRB}, 4\ns_lshl_b32 s{sT+1}, s{sW}, 2\ns_add_u32 s{sT}, s{sT}, s{sT+1}\ns_mul_i32 s{sT}, s{sT}, {OST}\ns_lshl_b32 s{sT+1}, s{sCB}, 12\ns_add_u32 s{sT}, s{sT}, s{sT+1}')
        p(f'v_bfe_u32 v{t}, v1, 4, 1\nv_mul_u32_u24 v{t}, {OST}, v{t}\nv_lshrrev_b32 v{t+1}, 5, v1\nv_lshlrev_b32 v{t+1}, 8, v{t+1}\nv_and_b32 v{t+2}, 15, v1\nv_lshlrev_b32 v{t+2}, 4, v{t+2}')
        p(f'v_add3_u32 v{t}, v{t}, v{t+1}, v{t+2}\nv_add_u32 v34, s{sT}, v{t}\nv_add_u32 v35, {2*OST}, v34')
        n = 0
        for dt in range(4):
            for qt in range(2):
                o = (dt*2+qt)*16
                for half in range(2):
                    x = 96 + 8*(n % 2); d = 112 + 4*(n % 4); n += 1
                    for i in range(8): p(f'v_accvgpr_read_b32 v{x+i}, a{o+8*half+i}')
                    if packed:
                        for i in range(0, 8, 2): p(f'v_pk_mul_f32 v[{x+i}:{x+i+1}], v[{x+i}:{x+i+1}], v[{vL+2*qt}:{vL+2*qt+1}]')
                    else:
                        for i in range(8): p(f'v_mul_f32{cfg.e64} v{x+i}, v{x+i}, v{vL+2*qt}')
                        for i in range(cfg.xs): p(f's_mov_b32 s{sT+5}, {cfg.xl}')
                    for i in range(0, 8, 2): p(f'v_cvt_pk_bf16_f32 v{d+i//2}, v{x+i}, v{x+i+1}')
                    p(f'buffer_store_dwordx4 v[{d}:{d+3}], v{34+qt}, s[{S_O}:{S_O+3}], 0 offen offset:{dt*1024 + half*512}{LS}', ('Ost', 1, 0, 0))
    def s_setup():
        x_dma_addr(dO, k_o)
        srd(p, S_AO, pWS, WS_O, 17 << 20)
        p(f's_lshl_b32 s{kWO}, s{sJ}, 21\ns_lshl_b32 s{kAO}, s{sJ}, 15')
        p(f's_lshl_b32 s{sT}, s{sRC}, 4\ns_lshl_b32 s{sT+2}, s{sW}, 2\ns_add_u32 s{sT}, s{sT}, s{sT+2}\ns_mul_i32 s{sT+2}, s{sT}, {OST}')
        p(f'v_lshlrev_b32 v24, 4, v1\nv_add_u32 v{aO}, s{sT+2}, v24')
        for b in range(1, 4): p(f'v_add_u32 v{aO+b}, {OST}, v{aO+b-1}')
        p(f'v_add_u32 v{vFO}, {256*128}, v{vHF}')
        p(f's_lshl_b32 s{sT}, s{sRC}, 5\ns_lshl_b32 s{sT+1}, s{sJ}, 3\ns_add_u32 s{sT}, s{sT}, s{sT+1}\ns_add_u32 s{sT}, s{sT}, 512\ns_lshl_b32 s{sT}, s{sT}, 7')
        p(f'v_and_b32 v{vFH}, 7, v1\nv_lshl_add_u32 v{vFH}, v{vFH}, 7, s{sT}')
        srd(p, S_X, pX, 0, 4 << 20); srd(p, S_OUT, pOUT, 0, 4 << 20); srd(p, S_P, pWS, WS_P, 24 << 20)
        p(f's_lshl_b32 s{sT}, s{sRC}, 3\ns_add_u32 s{sT}, s{sT}, s{sCC}\ns_lshl_b32 s{sT}, s{sT}, 2\ns_add_u32 s{sT+1}, s{sT}, s{sJ}')
        p(f's_add_u32 s{sT+2}, s{sT+1}, 768\ns_lshl_b32 s{sT+2}, s{sT+2}, 7\nv_mov_b32 v{vFD}, s{sT+2}\nv_add_u32 v{vFS}, {256*128}, v{vFD}')
        p(f's_add_u32 s{sT+2}, s{sT}, 768\ns_lshl_b32 s{sT+2}, s{sT+2}, 7\nv_and_b32 v{vFQ}, 3, v1\nv_lshl_add_u32 v{vFQ}, v{vFQ}, 7, s{sT+2}')
        p(f's_mul_i32 s{sT+3}, s{sW}, 12288\ns_mul_i32 s{sPR}, s{sT+1}, {3*16384}\ns_add_u32 s{sPR}, s{sPR}, s{sT+3}')
        for q_ in (1, 2, 3):
            p(f's_xor_b32 s{sT+2}, s{sT+1}, {q_}\ns_mul_i32 s{sT+2}, s{sT+2}, {3*16384}\ns_add_u32 s{sT+2}, s{sT+2}, s{sT+3}\ns_add_u32 s{sT+2}, s{sT+2}, {(q_-1)*4096}\nv_add_u32 v{24+q_}, s{sT+2}, v24')
        p(f's_lshl_b32 s{sT+2}, s{sRC}, 8\ns_lshl_b32 s{sT+3}, s{sW}, 6\ns_add_u32 s{sT+2}, s{sT+2}, s{sT+3}\ns_lshl_b32 s{sT+2}, s{sT+2}, 11')
        p(f's_lshl_b32 s{sT+3}, s{sCC}, 8\ns_add_u32 s{sT+2}, s{sT+2}, s{sT+3}\ns_lshl_b32 s{sT+3}, s{sJ}, 6\ns_add_u32 s{sT+2}, s{sT+2}, s{sT+3}')
        t = 36
        p(f'v_and_b32 v{t}, 15, v1\nv_lshlrev_b32 v{t}, 11, v{t}\nv_add_u32 v{t}, s{sT+2}, v{t}\nv_lshrrev_b32 v{t+1}, 4, v1')
        p(f'v_and_b32 v{vO}, 1, v{t+1}\nv_lshlrev_b32 v{vO}, 5, v{vO}\nv_lshrrev_b32 v{vO+1}, 1, v{t+1}\nv_lshlrev_b32 v{vO+1}, 4, v{vO+1}\nv_add3_u32 v{vO}, v{vO}, v{vO+1}, v{t}')
        for b in range(1, 4): p(f'v_add_u32 v{vO+b}, 0x8000, v{vO+b-1}')
    def send(gemm, quads=range(12)):
        for i in quads:
            c = 32 + 8*i; d = 112 + 4*(i % 4)
            if gemm == 0:
                for r in range(4): p(f'v_cvt_pk_bf16_f32 v{d+r}, v{cC+c+2*r}, v{cC+c+2*r+1}')
            else:
                x = 160 + 8*(i % 4)
                for r in range(8): p(f'v_accvgpr_read_b32 v{x+r}, a{c+r}')
                for r in range(4): p(f'v_cvt_pk_bf16_f32 v{d+r}, v{x+2*r}, v{x+2*r+1}')
                if cfg.sent:
                    for r in range(4): p(f'v_min_u32 v{d+r}, -2, v{d+r}')
            so = '0' if gemm == 0 else f's{sT+4}'
            p(f'buffer_store_dwordx4 v[{d}:{d+3}], v{25 + i//4}, s[{S_P}:{S_P+3}], {so} offen offset:{1024*(i%4)} sc1', ('Pst', 1, gemm, 0))
    mf = []; hi.clear(); lo.clear()
    ST = 128; TMS = cfg.tms
    NSUB = 4*NS
    order = [(sub // 4, sub % 4, t) for sub in range(NSUB - TMS) for t in range(8)]
    order += [(sub // 4, sub % 4, t) for t in (2, 3, 4, 5, 6, 7, 0, 1) for sub in range(NSUB - TMS, NSUB)]
    assert not cfg.sent and (TMS <= 4 or NS % 2 == 0)
    def ctr(G):
        sg, s, t = order[G]
        r = cA + 4*(G % 8); off = (sg % 2)*SLOT + s*8192
        a = cTr + t
        return [(f'ds_read_b64_tr_b16 v[{r}:{r+1}], v{a} offset:{off}', ('C', 4, sg, 0)),
                (f'ds_read_b64_tr_b16 v[{r+2}:{r+3}], v{a} offset:{off + 4096}', ('C', 4, sg, 0))]
    obar = math.ceil(OE) + 1; dbar = ND + math.ceil(cfg.de) + 1
    def bar(p, sgn):
        p.need(('C', 4, sgn, 0))
        if sgn == obar: p.need(('Ost', 1, 0, 0))
        if sgn == dbar: p.need(('Pst', 1, 0, 0))
        p('s_barrier')
    firstG = {}
    for G, (sg, s, t) in enumerate(order): firstG.setdefault(sg, G)
    for G in range(32*NS):
        sg, s, t = order[G]; sub = 4*sg + s
        for b in range(4):
            ra = cA + 4*(G % 8); rb = 128 + 16*(sub % 8) + 4*b; c = (t*4+b)*4
            acc_ = f'v[{cC+c}:{cC+c+3}]' if kind(sg) == 'd' else f'a[{c}:{c+3}]'
            mf.append(f'v_mfma_f32_16x16x32_bf16 {acc_}, v[{ra}:{ra+3}], a[{rb}:{rb+3}], {"0" if sub in (0, 4*ND) else acc_}')
        i0 = 4*G; Gn = G + P
        if Gn < 32*NS:
            if firstG[order[Gn][0]] == Gn: H(i0-1, lambda p, sgn=order[Gn][0]: bar(p, sgn))
            r0, r1 = ctr(Gn)
            H(i0, r0); H(i0+1, r1)
            if Gn % 64 >= 56 and Gn // 32 < NS - 1: H(i0+2, f'v_xor_b32 v{cTr + Gn % 8}, s{cTG}, v{cTr + Gn % 8}')
        sgc, g = divmod(G, 32)
        dstr = 2 if (TMS > 4 and sgc + 2 == NS - 1) else cfg.cdstr
        if g % dstr == 1 and g // dstr < 8 and sgc + 2 < NS:
            for x in cdma(g // dstr, sgc + 2): L(i0, x)
    last_act = 0
    for sub in range(ad, 4*NS):
        t0 = max((sub - 7)*32, min((sub - ad)*32, (4*NS - 8)*32 - (4*NS - 1 - sub)*cfg.ramp)) if TMS else (sub - ad)*32
        t1 = max((sub - 6)*32, min((sub + 1 - ad)*32, (4*NS - 8)*32 - (4*NS - 2 - sub)*cfg.ramp)) if TMS else t0 + 32
        for b in range(4):
            last_act = t0 + b*min(8, (t1 - t0)//4)
            for x in cact(sub, b): L(last_act, x)
    if cfg.cpf2:
        for k in ((1,) if cfg.cpf2 < 2 else range(0, math.floor(OE))):
            for x in code_pf(S_DB, 61): L(k*ST + 4*30, x)
        for x in code_srd(S_AH, 'L_pc3' + SFX): L(ND*ST, x)
        for k in ((ND, ND + 3) if cfg.cpf2 < 2 else range(ND, NS - 2)):
            for x in code_pf(S_AH, 61): L(k*ST + 4*30, x)
    n = len(mf)
    fill = spread(hi, {k: lo[k] for k in sorted(lo)}, n, cfg.cap, 16, cost=lambda i: 1 if i % 4 == 3 else 0)
    fix_m0(fill, n)
    def ride(items, g0, g1):
        q_ = list(items); per = len(q_) / (g1 - g0); due = 0.0; done = 0
        for i in range(g0, g1):
            due += per
            used = len(fill[i]) + (1 if i % 4 == 3 else 0)
            while q_ and done < due + 2 and (used < cfg.cap or done < due - cfg.lag):
                fill[i].append(q_.pop(0)); used += 1; done += 1
        fill[g1-1] += q_
    oq = collect(lambda: o_epi(cfg.ox > 0))
    nx = 0
    if cfg.ox:
        idx = [i for i, x in enumerate(oq) if x[0].startswith('buffer_store')]
        nx = idx[cfg.ox - 1] + 1
        fill[-1] = oq[:nx] + fill[-1]
        oq2 = collect(lambda: o_epi(False))
        idx2 = [i for i, x in enumerate(oq2) if x[0].startswith('buffer_store')]
        oq = oq2[idx2[cfg.ox - 1] + 1:]
    if oq: ride(oq, 2, int(OE*ST))
    ride(collect(s_setup), int(OE*ST), int(OE*ST) + ST - 20)
    fill[obar*ST - 4*P + 2].append(flag_store('C_of' + SFX, vFO))
    first_o = (4*ND - ad)*32
    assert first_o - 2 > int(OE*ST) + ST - 20 and (ND - 2)*ST > int(OE*ST) + ST - 20
    fill[first_o - cfg.fl].append(f'buffer_load_dwordx2 v[62:63], v{vFH}, s[{S_FL}:{S_FL+3}], 0 offen sc1')
    fill[first_o - 2].append('\n'.join(flagchk('L_o' + SFX, vFH, 62)))
    ride(collect(lambda: send(0)), ND*ST + 8, ND*ST + int(cfg.de*ST))
    fill[dbar*ST - 4*P + 2].append(flag_store('C_df' + SFX, vFD))
    xl = [f'buffer_load_dwordx4 v[{vX+4*b}:{vX+4*b+3}], v{vO+b}, s[{S_X}:{S_X+3}], 0 offen' for b in range(4)]
    ride(xl, max(last_act + 20, int((NS - cfg.dchk)*ST) + 52), max(last_act + 20, int((NS - cfg.dchk)*ST) + 52) + 16)
    vR = 192
    def recv(gemm):
        p(f's_add_u32 s{sT+2}, s{sPR}, {gemm*256*3*16384}')
        for q_ in range(3):
            for i in range(4):
                r = vR + 16*q_ + 4*i
                p(f'buffer_load_dwordx4 v[{r}:{r+3}], v24, s[{S_P}:{S_P+3}], s{sT+2} offen offset:{1024*i} sc1')
            if q_ < 2: p(f's_add_u32 s{sT+2}, s{sT+2}, 4096')
    dchk = NS - cfg.dchk; assert dchk*ST > last_act + 16
    fill[int(dchk*ST) - cfg.fl].append(f'buffer_load_dwordx2 v[62:63], v{vFQ}, s[{S_FL}:{S_FL+3}], 0 offen sc1')
    fill[int(dchk*ST)].append('\n'.join(flagchk('L_d' + SFX, vFQ, 62)))
    ride(collect(lambda: recv(0)), int(dchk*ST) + 2, int(dchk*ST) + 50)
    fill[(NS - 3)*ST].append(f's_mov_b32 s{sT+4}, {256*3*16384}')
    sent = 0
    if TMS:
        base = (NSUB - TMS)*32; plen = 2*TMS*4
        for q_ in range(3):
            g0 = base + (q_ + 1)*plen + 3
            ride(collect(lambda: send(1, range(4*q_, 4*q_ + 4))), g0, min(n, g0 + plen - 3))
        sent = 12
    ts.stamp(p, 7)
    for k in range(1, 15):
        if k in (1, 2, 3, 4, 5, 6, 7, 8, 9, 11, 13):
            t_ = ts.text(2)
            if t_: fill[k*ST - 1].append(t_)
    interleave(p, mf, fill)
    p(f's_mov_b32 s{sT+3}, 0xffff0000\nv_add_u32 v{vFQ}, {256*128}, v{vFQ}\ns_nop 4')
    ts.stamp(p, 3)
    send(1, range(sent, 12))
    RS = (160, 176, 240)
    def recv_s(q_, cond=''):
        for i in range(4):
            p(f'buffer_load_dwordx4 v[{RS[q_]+4*i}:{RS[q_]+4*i+3}], v24, s[{S_P}:{S_P+3}], s{44+q_} offen offset:{1024*i} sc1{cond}')
    if cfg.sent:
        p(f's_add_u32 s44, s{sPR}, {256*3*16384}\ns_add_u32 s45, s44, 4096\ns_add_u32 s46, s45, 4096')
        for q_ in range(3): recv_s(q_)
    pk = lambda r: f'v[{r}:{r+1}]'
    def addparts(dst, i, src):
        for q_ in range(3):
            rr = src[q_] + 4*i; tt = 32 + 8*(q_ % 2)
            for r in range(4): p(f'v_lshlrev_b32 v{tt+2*r}, 16, v{rr+r}\nv_and_b32 v{tt+2*r+1}, s{sT+3}, v{rr+r}')
            for r in range(0, 8, 2): p(f'v_pk_add_f32 {pk(dst+r)}, {pk(dst+r)}, {pk(tt+r)}')
    p(f'v_mov_b32 v28, {f2u(-math.log2(math.e)):#x}\nv_mov_b32 v29, v28')
    RD = (vR, vR + 16, vR + 32)
    for i in range(4):
        c = cC + 8*i; B = 48
        addparts(c, i, RD)
        for r in range(0, 8, 2): p(f'v_pk_mul_f32 {pk(B+r)}, {pk(c+r)}, v[28:29]')
        for r in range(8): p(f'v_exp_f32 v{B+r}, v{B+r}')
        p('s_nop 0')
        for r in range(0, 8, 2): p(f'v_pk_add_f32 {pk(B+r)}, {pk(B+r)}, 1.0 op_sel_hi:[1,0]')
        for r in range(8): p(f'v_rcp_f32 v{B+r}, v{B+r}')
        p('s_nop 0')
        for r in range(0, 8, 2): p(f'v_pk_mul_f32 {pk(c+r)}, {pk(c+r)}, {pk(B+r)}')
    vSs = 64
    for i in range(32): p(f'v_accvgpr_read_b32 v{vSs+i}, a{i}')
    E = 192 if cfg.sent else 160
    def xunpack():
        for b in range(4):
            for q in range(4): p(f'v_lshlrev_b32 v{E+8*b+2*q}, 16, v{vX+4*b+q}\nv_and_b32 v{E+8*b+2*q+1}, s{sT+3}, v{vX+4*b+q}')
    if cfg.sent:
        xunpack()
        ts.stamp(p)
        p('C_chk:\ns_waitcnt vmcnt(0)\ns_mov_b32 s47, 0')
        for q_ in range(3):
            r = RS[q_]
            p(f'v_max3_u32 v32, v{r}, v{r+1}, v{r+2}')
            for k in range(3, 15, 2): p(f'v_max3_u32 v32, v32, v{r+k}, v{r+k+1}')
            p(f'v_max_u32 v32, v32, v{r+15}\nv_cmp_eq_u32 vcc, -1, v32\ns_nop 1\ns_cbranch_vccz C_ok{q_}')
            p.cond(True)
            p(f's_sleep {cfg.slp2}\ns_mov_b32 s47, 1'); recv_s(q_)
            p.cond(False)
            p(f'C_ok{q_}:')
        p('s_cmp_lg_u32 s47, 0\ns_cbranch_scc1 C_chk')
        ts.stamp(p)
        src = RS
    else:
        p('s_waitcnt vmcnt(0)\ns_barrier')
        ts.stamp(p)
        p(f's_cmp_eq_u32 s{sW}, 1\ns_cbranch_scc0 C_got{SFX}')
        p.cond(True)
        p(f'buffer_store_dwordx2 v[2:3], v{vFS}, s[{S_FL}:{S_FL+3}], 0 offen sc1')
        poll('C_poll' + SFX, vFQ, 'C_got' + SFX)
        p.cond(False)
        p(f'C_got{SFX}:\ns_barrier')
        ts.stamp(p)
        recv(1)
        xunpack()
        src = RD
    for i in (0, 2, 1, 3): addparts(vSs + 8*i, i, src)
    for b in range(4):
        c0 = vSs + 4*b; c1 = vSs + 16 + 4*b; o = 112 + 4*b
        for r in (0, 2):
            p(f'v_pk_mul_f32 {pk(c0+r)}, {pk(c0+r)}, {pk(cC+4*b+r)}\nv_pk_mul_f32 {pk(c1+r)}, {pk(c1+r)}, {pk(cC+16+4*b+r)}')
        p('s_nop 0')
        for r in range(4): p(f'v_permlane16_swap_b32 v{c0+r}, v{c1+r}')
        p('s_nop 0')
        for q in range(4):
            c = (c0, c0+2, c1, c1+2)[q]
            p(f'v_pk_add_f32 {pk(E+8*b+2*q)}, {pk(E+8*b+2*q)}, {pk(c)}')
        for q in range(4): p(f'v_cvt_pk_bf16_f32 v{o+q}, v{E+8*b+2*q}, v{E+8*b+2*q+1}')
        p(f'buffer_store_dwordx4 v[{o}:{o+3}], v{vO+b}, s[{S_OUT}:{S_OUT+3}], 0 offen {cfg.osc}')
    ts.stamp(p)
    ts.dump(p, pWS)
    p('s_endpgm')
    autowait(p)
    if not cfg.aab: check(p, 'main')

    z = Prog(); main = p; p = z
    p('A_slow:')
    p('s_waitcnt vmcnt(0) lgkmcnt(0)')
    srd(p, S_K, pK, 0, 2 << 20); srd(p, S_V, pV, 0, 2 << 20)
    zK, zD, zV = 13, 14, 21
    zKV, zN = sT, sT+1
    p(f's_lshr_b32 s{zKV}, s{sCB}, 3\ns_lshl_b32 s{zKV}, s{zKV}, 19\ns_add_u32 s{zKV}, s{zKV}, {1536*256}')
    p(f'v_and_b32 v{zK}, 31, v1\nv_lshlrev_b32 v{zK}, 8, v{zK}\nv_lshrrev_b32 v36, 5, v1\nv_lshl_add_u32 v{zK}, v36, 4, v{zK}')
    p(f'v_lshrrev_b32 v36, 4, v1\nv_and_b32 v37, 15, v1\nv_lshlrev_b32 v38, 2, v36\nv_xor_b32 v37, v37, v38\nv_lshlrev_b32 v36, 8, v36\nv_lshl_add_u32 v{zD}, v37, 4, v36\nv_add_u32 v{zD+1}, 0x1000, v{zD}')
    t = 36
    p(f'v_lshrrev_b32 v{t}, 5, v1\nv_lshlrev_b32 v{t}, 2, v{t}\nv_bfe_u32 v{t+1}, v1, 2, 2\nv_add_u32 v{t}, v{t}, v{t+1}\nv_lshlrev_b32 v{t}, 8, v{t}')
    p(f'v_bfe_u32 v{t+2}, v1, 4, 1\nv_lshlrev_b32 v{t+2}, 5, v{t+2}\nv_and_b32 v{t+3}, 3, v1\nv_lshlrev_b32 v{t+3}, 3, v{t+3}\nv_add3_u32 v{t}, v{t}, v{t+2}, v{t+3}')
    p(f's_lshl_b32 s{sT+2}, s{sW}, 13\ns_add_u32 s{sT+2}, s{sT+2}, 0x20000\nv_add_u32 v{t}, s{sT+2}, v{t}')
    for dt in range(4): p(f'v_xor_b32 v{t+2}, {dt}, v{t+1}\nv_lshl_add_u32 v{zV+dt}, v{t+2}, 6, v{t}')
    def kglob():
        for s in range(8): p(f'buffer_load_dwordx4 a[{aF+4*s}:{aF+4*s+3}], v{zK}, s[{S_K}:{S_K+3}], s{zN} offen offset:{32*s}')
    p(f'v_mov_b32 v32, 0xff800000\nv_mov_b32 v34, 0xff800000\ns_mov_b32 s{zN}, s{zKV}\ns_mov_b32 s{sT+3}, 16')
    p.loop_begin('Z1_loop', 16, align=False)
    kglob()
    for s in range(8):
        for qt in range(2): p(qk(0, s, qt, zero))
    p('s_nop 7\ns_nop 3')
    rowmax(0, False)
    p(f's_add_u32 s{zN}, s{zN}, 8192\ns_sub_u32 s{sT+3}, s{sT+3}, 1\ns_cmp_lg_u32 s{sT+3}, 0\ns_cbranch_scc1 Z1_loop')
    p.loop_end()
    set_negm()
    for i in range(128): p(f'v_accvgpr_write_b32 a{i}, 0')
    for i in range(4): p(f'v_mov_b32 v{vL+i}, 0')
    p(f's_mov_b32 s{zN}, s{zKV}\ns_mov_b32 s{sT+3}, 16')
    p.loop_begin('Z2_loop', 16, align=False)
    kglob()
    for j in range(8):
        if j % 4 == 0: p(f's_add_u32 m0, s{sT+2}, {1024*j}\ns_nop 0')
        p(f'buffer_load_dwordx4 v{zD + j//4}, s[{S_V}:{S_V+3}], s{zN} offen offset:{1024*(j%4)} lds')
    for s in range(8):
        for qt in range(2): p(qk(0, s, qt, negm))
    p('s_nop 7\ns_nop 3')
    for ops in softmax_ops(0):
        for o in ops: p(o)
    p('s_waitcnt vmcnt(0)')
    for f in range(8):
        for r in vread(0, f, None, base=zV, off0=0): emit(p, r)
    for f in range(8):
        for qt in range(2): p(pv(0, f, qt))
    p(f's_add_u32 s{zN}, s{zN}, 8192\ns_sub_u32 s{sT+3}, s{sT+3}, 1\ns_cmp_lg_u32 s{sT+3}, 0\ns_cbranch_scc1 Z2_loop')
    p.loop_end()
    p('s_nop 7\ns_nop 7')
    for qt in range(2):
        l = vL + 2*qt
        p(f'v_add_f32 v{l}, v{l}, v{l+1}\nv_mov_b32 v{l+1}, v{l}\ns_nop 1\nv_permlane32_swap_b32 v{l}, v{l+1}\ns_nop 1\nv_add_f32 v{l}, v{l}, v{l+1}')
    p('s_branch A_done')
    autowait(z); check(z, 'slow')
    pre_, c_ = main.text().split(';SPLIT')
    return pre_, c_, z.text(), sJ

def main():
    cfg = Cfg()
    cfg.ts = 1; cfg.xmap = 'b'; cfg.stag = 0; cfg.P = 4; cfg.late1 = 1; cfg.w0 = 0; cfg.cw0 = 8
    cfg.d0 = 0; cfg.dstr = 4; cfg.a0 = 1; cfg.astr = 2; cfg.ad = 3; cfg.PF = 3; cfg.cap = 2
    cfg.cad = 5; cfg.cdstr = 4; cfg.cP = 4; cfg.thr = 30; cfg.tail0 = 4; cfg.sum = 'add'; cfg.hbar = 2; cfg.t1e = 1; cfg.t0e = 0; cfg.npre = 2; cfg.xbar = 90; cfg.fs1 = 6; cfg.xe = 0; cfg.xchk = 230; cfg.xfl = 60; cfg.xt = 0; cfg.fs = 1; cfg.oes = 2; cfg.sent = 0; cfg.slp2 = 4; cfg.trk = 2; cfg.kvp = 1; cfg.trk0 = 1; cfg.pf4 = 0; cfg.pf4n = 8; cfg.pf3 = 0; cfg.aab = 0; cfg.e64 = ''; cfg.xs = 0; cfg.xl = 1; cfg.cpf2 = 2; cfg.loc = 0; cfg.fremote = 0; cfg.ox = 0; cfg.ramp = 20; cfg.lag = 3; cfg.vmc = 8; cfg.acap = 24; cfg.amax = 40; cfg.wb = 0; cfg.opad = 256; cfg.xpad = 256; cfg.hpad = 0; cfg.oe = 3; cfg.de = 3; cfg.tms = 6; cfg.fl = 128; cfg.dchk = 1.65; cfg.dbg = 0; cfg.cpf = 1; cfg.tlb = 0; cfg.osc = 'sc1'; cfg.slp = 1; cfg.late0 = 2
    for a in sys.argv[2:]:
        k, v = a.split('='); setattr(cfg, k, int(v) if v.lstrip('-').isdigit() else float(v) if v.replace('.','').isdigit() else v)
    kn = NAME + '_kernel'
    hdr = (f'; opad={cfg.opad} hoff={WS_H} xpad={cfg.xpad} hpad={cfg.hpad} ooff={WS_O}\n; @launch grid=(256,1,1) block=(256,1,1) lds={LDS_TOT}\n'
           '.amdgcn_target "amdgcn-amd-amdhsa--gfx950"\n')
    if cfg.fs:
        a, c8, z, sJ = gen(cfg, 8); a6, c6, _, _ = gen(cfg, 6)
        assert a == a6
        body = a + f'  s_bitcmp1_b32 s{sJ}, 0\n  s_cbranch_scc1 C_short\n' + c8 + '\nC_short:\n' + c6
    else:
        a, c7, z, _ = gen(cfg, 7); body = a + c7
    s = hdr + kernel_head(kn) + body + '\nK_end:\n  s_endpgm\n' + z + '\nK_last:\n' + kernel_desc(kn, 512, 256)
    open(sys.argv[1], 'w').write(s)
if __name__ == '__main__': main()
```

```python
import sys, struct, math
from dsl import *
from gen2 import (f2u, srd, kernel_head, kernel_desc, emit, interleave, spread, m0gap, fix_m0, chk_tail, Cfg)

NAME = 'recurrent_scan__sliding_block_cached__geglu_ffn__prompt'
WS_XN = 0
WS_O  = 5 << 20
WS_H  = 23 << 20
WS_G  = 36 << 20
WS_FL = 40 << 20
WS_ST = 41 << 20
WS_TS = 48 << 20
WS_P  = 64 << 20
HS = 22528; NHS = 7
LDS_SCR = NHS*HS
LDS_TOT = 163840

class TS:
    def __init__(self, on): self.on = on; self.n = 0
    def text(self, grp):
        if not self.on & grp or self.n >= 14: return None
        s = 88 + self.n; self.n += 1
        clk = 's_memtime' if self.on & 8 else 's_memrealtime'
        return f's_waitcnt lgkmcnt(0)\n{clk} s[4:5]\ns_waitcnt lgkmcnt(0)\ns_mov_b32 s{s}, s4'
    def stamp(self, p, grp=1):
        t = self.text(grp)
        if t: p(t)
    def old(self, p):
        if not self.on: return
        s = 88 + self.n; self.n += 1;
        if s >= 102: return
        p(f's_waitcnt lgkmcnt(0)\ns_memrealtime s[4:5]\ns_waitcnt lgkmcnt(0)\ns_mov_b32 s{s}, s4')
    def dump(self, p, wsptr):
        if not self.on: return
        if self.on & 16:
            p('s_load_dwordx2 s[12:13], s[0:1], 80\ns_waitcnt lgkmcnt(0)\ns_mov_b32 s14, 256\ns_mov_b32 s15, 0x20000\nv_mov_b32 v8, 0\ns_mov_b64 exec, 1')
            for i in range(min(self.n, 14)):
                p(f's_sub_u32 s4, s{88+i}, s6\nv_mov_b32 v4, s4\nbuffer_atomic_smax v4, v8, s[12:15], 0 offen offset:{8+4*i}\ns_nop 1')
            return
        srd(p, 12, wsptr, WS_TS, 1 << 20)
        p('s_lshl_b32 s3, s2, 8\ns_lshl_b32 s4, s36, 6\ns_add_u32 s3, s3, s4\nv_mov_b32 v8, s3')
        p('s_getreg_b32 s4, hwreg(HW_REG_XCC_ID, 0, 4)\nv_mov_b32 v4, s4\nbuffer_store_dword v4, v8, s[12:15], 0 offen offset:60\ns_nop 1')
        for i in range(min(self.n, 14)):
            p(f'v_mov_b32 v4, s{88+i}\nbuffer_store_dword v4, v8, s[12:15], 0 offen offset:{4*i}\ns_nop 1')

def gen(cfg, ND):
    SFX = f'_{ND}'
    OST = 131072 + cfg.opad; XST = 32768 + cfg.xpad; HST = 112*1024 + cfg.hpad
    p = Prog(); ts = TS(cfg.ts)
    SC = ' sc1'; LS = '' if cfg.loc else ' sc1'
    assert cfg.xmap == 'c' or not cfg.loc
    pX, pK, pV, pWQ, pWO, pWG, pWU, pWD, pOUT, pDBG, pWS = 64, 66, 68, 70, 72, 76, 78, 80, 82, 84, 86
    S_W, S_Q, S_XN, S_H, S_K, S_V, S_O = 8, 12, 16, 20, 24, 28, 32
    S_FL, S_DB = 56, 60
    sW, sRB, sCB, sKW, sKQ, sKA, sCNT = 36, 37, 38, 39, 40, 41, 42
    sMW, sMQ, sRD, sDL, sLEFT, sLEFA, sRW, sRQ = 43, 44, 45, 46, 47, 48, 49, 3
    sT = 50
    p('K_first:\ns_cmp_ge_u32 s2, 256\ns_cbranch_scc1 K_end')
    p('s_load_dwordx16 s[64:79], s[0:1], 0\ns_load_dwordx8 s[80:87], s[0:1], 64')
    p(f'v_lshrrev_b32 v2, 6, v0\nv_and_b32 v1, 63, v0\nv_readfirstlane_b32 s{sW}, v2')
    p(f's_and_b32 s{sT}, s2, 7\ns_lshr_b32 s{sT+1}, s2, 3')
    if cfg.xmap == 'c':
        p(f's_and_b32 s{sRB}, s{sT}, 1\ns_lshl_b32 s{sRB}, s{sRB}, 2\ns_and_b32 s{sT+2}, s{sT+1}, 3\ns_add_u32 s{sRB}, s{sRB}, s{sT+2}')
        p(f's_lshr_b32 s{sCB}, s{sT}, 1\ns_lshl_b32 s{sCB}, s{sCB}, 3\ns_lshr_b32 s{sT+2}, s{sT+1}, 2\ns_add_u32 s{sCB}, s{sCB}, s{sT+2}')
    else:
        p(f's_and_b32 s{sRB}, s{sT+1}, 7\ns_lshl_b32 s{sCB}, s{sT}, 2\ns_lshr_b32 s{sT+2}, s{sT+1}, 3\ns_add_u32 s{sCB}, s{sCB}, s{sT+2}')
    vAct, vDW, vDQ, vTr, vTq, vT = 4, 8, 15, 19, 20, 28
    vA, RA = 32, 8
    vB, RB = 64, 4
    def acc(t, b):
        if t < 16: c = (t*4+b)*4; return f'a[{c}:{c+3}]'
        c = 160 + ((t-16)*4+b)*4; return f'v[{c}:{c+3}]'
    def accr(t, b, r):
        if t < 16: return f'a{(t*4+b)*4+r}'
        return f'v{160+((t-16)*4+b)*4+r}'
    vLX, vLO, vLS = 128, 129, 130
    t = 132
    p(f's_lshl_b32 s{sT}, s{sRB}, 8\ns_lshl_b32 s{sT+1}, s{sCB}, 3\ns_add_u32 s{sT}, s{sT}, s{sT+1}\ns_lshl_b32 s{sT}, s{sT}, 11\ns_lshl_b32 s{sT+1}, s{sW}, 9\ns_add_u32 s{sT}, s{sT}, s{sT+1}')
    p(f'v_and_b32 v{t}, 7, v1\nv_bfe_u32 v{t+1}, v1, 3, 1\nv_lshrrev_b32 v{t+2}, 4, v1')
    p(f'v_lshlrev_b32 v{t+3}, 11, v{t}\nv_lshlrev_b32 v{t+4}, 8, v{t+1}\nv_lshlrev_b32 v{t+5}, 4, v{t+2}\nv_add3_u32 v{t+3}, v{t+3}, v{t+4}, v{t+5}\nv_add_u32 v{vLX}, s{sT}, v{t+3}')
    p(f's_lshl_b32 s{sT}, s{sRB}, 4\ns_lshr_b32 s{sT+1}, s{sCB}, 1\ns_add_u32 s{sT}, s{sT}, s{sT+1}\ns_mul_i32 s{sT}, s{sT}, {XST}\ns_lshl_b32 s{sT+1}, s{sW}, 13\ns_add_u32 s{sT}, s{sT}, s{sT+1}')
    p(f's_and_b32 s{sT+1}, s{sCB}, 1\ns_lshl_b32 s{sT+1}, s{sT+1}, 7\ns_add_u32 s{sT}, s{sT}, s{sT+1}')
    p(f'v_lshlrev_b32 v{t+3}, 4, v{t}\nv_lshlrev_b32 v{t+4}, 12, v{t+1}\nv_lshlrev_b32 v{t+5}, 8, v{t+2}\nv_add3_u32 v{t+4}, v{t+3}, v{t+4}, v{t+5}\nv_add_u32 v{vLO}, s{sT}, v{t+4}')
    p(f'v_add_u32 v{vLS}, {LDS_SCR}, v{t+3}\nv_lshl_add_u32 v{vLS+1}, v2, 2, v{vLS}')
    p(f's_and_b32 s{sT}, s{sW}, 1\ns_mul_i32 s{sT}, s{sT}, {32*7168}\ns_mul_i32 s{sT+1}, s{sCB}, 224\ns_add_u32 s{sT}, s{sT}, s{sT+1}')
    p(f's_mov_b32 s{sT+1}, 4682\ns_mov_b32 s{sT+2}, 7168')
    for n in range(448): assert (n*4682) >> 16 == n // 14
    t = 32
    for pc in range(7):
        p(f'v_add_u32 v{t}, {64*pc}, v1')
        p(f'v_mul_u32_u24 v{t+1}, s{sT+1}, v{t}\nv_lshrrev_b32 v{t+1}, 16, v{t+1}')
        p(f'v_mul_u32_u24 v{t+2}, 14, v{t+1}\nv_sub_u32 v{t+2}, v{t}, v{t+2}')
        p(f'v_and_b32 v{t+3}, 0x13, v{t+1}\nv_and_b32 v{t+4}, 4, v{t+1}\nv_lshl_or_b32 v{t+3}, v{t+4}, 1, v{t+3}')
        p(f'v_bfe_u32 v{t+4}, v{t+1}, 3, 1\nv_lshl_or_b32 v{t+3}, v{t+4}, 2, v{t+3}')
        p(f'v_mul_u32_u24 v{t+3}, s{sT+2}, v{t+3}\nv_lshlrev_b32 v{t+2}, 4, v{t+2}\nv_add3_u32 v{vDW+pc}, v{t+3}, v{t+2}, s{sT}')
        if pc % 4: p(f'v_subrev_u32 v{vDW+pc}, {1024*(pc%4)}, v{vDW+pc}')
    p(f's_lshl_b32 s{sT}, s{sW}, 17\ns_lshl_b32 s{sT+1}, s{sCB}, 8\ns_add_u32 s{sT}, s{sT}, s{sT+1}')
    p(f'v_lshrrev_b32 v{t}, 4, v1\nv_and_b32 v{t+1}, 15, v1\nv_lshlrev_b32 v{t+2}, 1, v{t}\nv_xor_b32 v{t+1}, v{t+1}, v{t+2}')
    p(f'v_lshlrev_b32 v{t}, 13, v{t}\nv_add_u32 v{t}, s{sT}, v{t}')
    for j in range(4):
        p(f'v_xor_b32 v{t+2}, {8*(j>>1)}, v{t+1}\nv_lshl_add_u32 v{t+2}, v{t+2}, 4, v{t}')
        p(f'v_add_u32 v{vDQ+j}, {j*(4*8192-1024)}, v{t+2}')
    p(f's_and_b32 s{sT}, s{sW}, 1\ns_lshr_b32 s{sT+1}, s{sW}, 1')
    p(f's_mul_i32 s{sMW}, s{sT}, {HS}\ns_mul_i32 s{sRW}, s{sT+1}, 7168')
    p(f's_mul_i32 s{sMQ}, s{sT+1}, {HS}\ns_lshl_b32 s{sRQ}, s{sT}, 12\ns_add_u32 s{sRQ}, s{sRQ}, 14336')
    KW, KQ, KA, NT = 64*7168, 64*8192, 2048, 16
    p(f's_mov_b32 s{sKW}, 0\ns_mov_b32 s{sKQ}, 0\ns_mov_b32 s{sKA}, {2*KA}')
    p(f's_mov_b32 s{sRD}, 0')
    sNO = 6
    vRX = 140; RAWL = 4*HS
    p(f's_lshl_b32 s{sT}, s{sRB}, 8\ns_lshl_b32 s{sT+1}, s{sW}, 6\ns_add_u32 s{sT+5}, s{sT}, s{sT+1}\ns_lshl_b32 s{sT}, s{sT+5}, 11')
    p(f'v_and_b32 v32, 15, v1\nv_lshrrev_b32 v34, 4, v1')
    for j in range(4):
        p(f'v_add_u32 v33, {4*j}, v34\nv_xor_b32 v35, v33, v32\nv_lshlrev_b32 v33, 11, v33\nv_lshl_add_u32 v33, v35, 4, v33\ns_sub_u32 s{sT+1}, s{sT}, {1024*j}\nv_add_u32 v{vRX+j}, s{sT+1}, v33')
    vSR = 139
    p(f's_lshl_b32 s{sT}, s{sT+5}, 4\nv_lshl_add_u32 v{vSR}, v32, 4, s{sT}')
    p('s_waitcnt lgkmcnt(0)')
    ts.stamp(p, 33)
    S_X0 = S_H
    srd(p, S_X0, pX, 0, 4 << 20)
    vLD = 144
    for i in range(4): p(f'buffer_load_dwordx4 v[{vLD+4*i}:{vLD+4*i+3}], v{vLX}, s[{S_X0}:{S_X0+3}], 0 offen offset:{64*i}')
    def raw(q):
        p(f's_lshl_b32 s{sT}, s{sW}, 14\ns_add_u32 m0, s{sT}, {RAWL + 4096*q}\ns_mov_b32 s{sT}, {32768*q}')
        for j in range(4): p(f'buffer_load_dwordx4 v{vRX+j}, s[{S_X0}:{S_X0+3}], s{sT} offen offset:{1024*j} lds', ('R', 1, 0, 0))
    srd(p, S_DB, pDBG, 0, 256)
    p(f's_lshl_b32 s{sT}, s2, 2\ns_add_u32 s{sT}, s{sT}, s{sW}\ns_cmp_eq_u32 s{sT}, 1\ns_cbranch_scc0 L_no_nonce')
    p.cond(True)
    p(f's_memrealtime s[{sNO}:{sNO+1}]\nv_mov_b32 v34, 0\ns_waitcnt lgkmcnt(0)\ns_and_b32 s{sNO}, s{sNO}, 0xffffffc0\ns_or_b32 s{sNO}, s{sNO}, 1\ns_getreg_b32 s{sT}, hwreg(HW_REG_XCC_ID, 0, 1)\ns_lshl_b32 s{sT}, s{sT}, 5\ns_or_b32 s{sNO}, s{sNO}, s{sT}\nv_mov_b32 v32, s{sNO}\nv_mov_b32 v33, s{sNO+1}')
    p(f'buffer_store_dwordx2 v[32:33], v34, s[{S_DB}:{S_DB+3}], 0 offen sc1')
    p.cond(False)
    p('L_no_nonce:')
    p(f's_cmp_ge_u32 s{sW}, 2\ns_cselect_b32 s{S_W}, s{pWU}, s{pWG}\ns_cselect_b32 s{S_W+1}, s{pWU+1}, s{pWG+1}')
    p(f's_mov_b32 s{S_W+2}, {1024*7168:#x}\ns_mov_b32 s{S_W+3}, 0x20000')
    srd(p, S_Q, pWQ, 0, 8 << 20)
    def adv_w():
        return [f's_add_u32 s{sKW}, s{sKW}, {KW}',
                f's_add_u32 s{sMW}, s{sMW}, {2*HS}', f's_cmp_ge_u32 s{sMW}, {NHS*HS}\ns_cselect_b32 s{sT}, {NHS*HS}, 0\ns_sub_u32 s{sMW}, s{sMW}, s{sT}']
    def adv_q():
        return [f's_add_u32 s{sKQ}, s{sKQ}, {KQ}',
                f's_add_u32 s{sMQ}, s{sMQ}, {2*HS}', f's_cmp_ge_u32 s{sMQ}, {NHS*HS}\ns_cselect_b32 s{sT}, {NHS*HS}, 0\ns_sub_u32 s{sMQ}, s{sMQ}, s{sT}']
    def adv_a():
        return [f's_add_u32 s{sKA}, s{sKA}, {KA}',
                f's_cmp_eq_u32 s{sKA}, {NT*KA}\ns_cselect_b32 s{S_XN+2}, 0, s{S_XN+2}']
    def adv_rd():
        return [f's_add_u32 s{sRD}, s{sRD}, {HS}', f's_mov_b32 s{sDL}, {HS}',
                f's_cmp_eq_u32 s{sRD}, {NHS*HS}\ns_cselect_b32 s{sDL}, {-(NHS-1)*HS}, s{sDL}\ns_cselect_b32 s{sRD}, 0, s{sRD}']
    def dma(pc, tile, stride):
        tag = ('W', NHS, 2*tile + 1, 2*stride)
        if pc < 7: return (f'buffer_load_dwordx4 v{vDW+pc}, s[{S_W}:{S_W+3}], s{sKW} offen offset:{1024*(pc%4)} {cfg.gsc} lds', tag)
        return (f'buffer_load_dwordx4 v{vDQ+pc-7}, s[{S_Q}:{S_Q+3}], s{sKQ} offen offset:{1024*(pc-7)} {cfg.gsc} lds', tag)
    def m0set(pc):
        if pc == 0: return [f's_add_u32 m0, s{sMW}, s{sRW}']
        if pc == 4: return [f's_add_u32 m0, m0, 4096']
        if pc == 7: return [f's_add_u32 m0, s{sMQ}, s{sRQ}']
        return []
    def dma_tile(tile):
        for d in range(11):
            for x in m0set(d): p(x)
            if m0set(d): p('s_nop 0')
            emit(p, dma(d, tile, 0))
            if d == 6:
                for x in adv_w(): p(x)
            if d == 10:
                for x in adv_q(): p(x)
    if cfg.t0e & 1: dma_tile(0)
    if cfg.t0e & 2:
        for q in range(4): raw(q)
    srd(p, S_FL, pWS, WS_FL, 2304*128)
    srd(p, S_XN, pWS, WS_XN, 5 << 20)
    vP1, vP2, vPD = 136, 137, 138
    def code_srd(q, lbl):
        return [f's_getpc_b64 s[{q}:{q+1}]\n{lbl}:\ns_sub_u32 s{q}, s{q}, {lbl}-K_first\ns_subb_u32 s{q+1}, s{q+1}, 0', f's_mov_b32 s{q+2}, K_last-K_first', f's_mov_b32 s{q+3}, 0x20000']
    def code_pf(q, dst):
        return [f'buffer_load_dword v{dst}, v0, s[{q}:{q+3}], 0 offen ;pf']
    for x in code_srd(S_O, 'L_pc1'): p(x)
    p(f's_lshr_b32 s{sT}, s2, 3\ns_lshl_b32 s{sT}, s{sT}, 2\ns_add_u32 s{sT}, s{sT}, s{sW}\ns_lshl_b32 s{sT}, s{sT}, 10\nv_and_b32 v32, 15, v1\nv_mov_b32 v44, v0\nv_lshl_add_u32 v0, v32, 6, s{sT}')
    for x in code_pf(S_O, vPD): p(x)
    p(f's_lshl_b32 s{sT}, s{sRB}, 4\ns_lshl_b32 s{sT+1}, s{sW}, 2\ns_add_u32 s{sT}, s{sT}, s{sT+1}\ns_mul_i32 s{sT}, s{sT}, {XST}')
    p(f'v_lshlrev_b32 v{vT}, 4, v1\nv_add_u32 v{vAct}, s{sT}, v{vT}')
    for b in range(1, 4): p(f'v_add_u32 v{vAct+b}, {b*XST:#x}, v{vAct}')
    t = 32
    p(f'v_lshrrev_b32 v{t}, 5, v1\nv_lshlrev_b32 v{t}, 4, v{t}\nv_bfe_u32 v{t+1}, v1, 4, 1\nv_lshlrev_b32 v{t+1}, 2, v{t+1}\nv_bfe_u32 v{t+2}, v1, 2, 2')
    p(f'v_add3_u32 v{t}, v{t}, v{t+1}, v{t+2}\nv_mul_u32_u24 v{t}, 224, v{t}\nv_and_b32 v{t+3}, 3, v1\nv_lshlrev_b32 v{t+3}, 3, v{t+3}\nv_add_u32 v{vTr}, v{t}, v{t+3}')
    p(f'v_or_b32 v{t+1}, v{t+1}, v{t+2}')
    p(f'v_lshrrev_b32 v{t}, 4, v1\nv_lshlrev_b32 v{t}, 3, v{t}\nv_add_u32 v{t}, v{t}, v{t+2}\nv_lshlrev_b32 v{t}, 8, v{t}')
    p(f'v_add_u32 v{t}, 14336, v{t}\nv_add_u32 v{t}, v{t}, v{t+3}')
    for tt in range(8):
        p(f'v_xor_b32 v{t+2}, {tt}, v{t+1}\nv_lshl_add_u32 v{vTq+tt}, v{t+2}, 5, v{t}')
    if cfg.trk:
        p(f'v_lshrrev_b32 v32, 3, v1\nv_and_b32 v33, 7, v1\ns_lshl_b32 s{sT}, s{sRB}, 3\ns_add_u32 s{sT}, s{sT}, {64*cfg.trk}\nv_add_u32 v32, s{sT}, v32\nv_lshlrev_b32 v35, 6, v33')
        p(f's_mul_i32 s{sT+1}, s{sCB}, 224\ns_add_u32 s{sT+2}, s{sT+1}, {224+127}\ns_and_b32 s{sT+1}, s{sT+1}, -128\ns_and_b32 s{sT+2}, s{sT+2}, -128\ns_sub_u32 s{sT+2}, s{sT+2}, s{sT+1}')
        p(f'v_mul_u32_u24 v34, 7168, v32\nv_add3_u32 v{vP1}, v34, v35, s{sT+1}')
        p(f'v_lshlrev_b32 v34, 13, v32\ns_lshl_b32 s{sT+1}, s{sCB}, 8\nv_add3_u32 v{vP2}, v34, v35, s{sT+1}')
        p(f'v_cmp_gt_u32 vcc, s{sT+2}, v35\ns_and_b32 s{sT}, s{sW}, 1\ns_cmp_eq_u32 s{sT}, 0\ns_cselect_b64 vcc, vcc, 0\nv_mov_b32 v34, 0xf0000000\ns_nop 1\nv_cndmask_b32 v{vP1}, v34, v{vP1}, vcc')
        p(f'v_cmp_gt_u32 vcc, 4, v33\ns_cmp_eq_u32 s{sW}, 1\ns_cselect_b64 vcc, vcc, 0\ns_nop 1\nv_cndmask_b32 v{vP2}, v34, v{vP2}, vcc')
    def touch_tiles(tiles):
        p(f'v_subrev_u32 v34, {64*cfg.trk*7168}, v{vP1}\nv_subrev_u32 v35, {64*cfg.trk*8192}, v{vP2}')
        for tl in tiles:
            p(f's_mov_b32 s{sT}, {tl*KW}\ns_mov_b32 s{sT+1}, {tl*KQ}')
            p(f'buffer_load_dword v{vPD}, v34, s[{S_W}:{S_W+3}], s{sT} offen ;pf\nbuffer_load_dword v{vPD}, v35, s[{S_Q}:{S_Q+3}], s{sT+1} offen ;pf')
    if cfg.trk: touch_tiles(([] if cfg.t0e & 1 else [0]) + ([1] if cfg.t1e else []))
    ts.stamp(p, 32)
    X = 160; sM = sT + 4
    p(f's_mov_b32 s{sM}, 0xffff0000')
    p(f's_lshl_b32 s{sT}, s{sRB}, 5\ns_add_u32 s{sT+1}, s{sT}, s{sCB}\ns_lshl_b32 s{sT+1}, s{sT+1}, 7\nv_mov_b32 v45, s{sT+1}')
    p(f's_lshl_b32 s{sT+3}, s{sT+1}, 2\ns_lshl_b32 s{sT+2}, s{sW}, 7\ns_add_u32 s{sT+3}, s{sT+3}, s{sT+2}\ns_add_u32 s{sT+3}, s{sT+3}, {1280*128}\nv_mov_b32 v31, s{sT+3}')
    p(f's_lshl_b32 s{sT+2}, s{sW}, 3\ns_add_u32 s{sT}, s{sT}, s{sT+2}\ns_lshl_b32 s{sT}, s{sT}, 9\ns_add_u32 s{sT}, s{sT}, {1280*128}\nv_and_b32 v30, 31, v1\nv_lshl_add_u32 v30, v30, 7, s{sT}')
    p(f'v_lshl_add_u32 v46, v1, 4, v45\nv_cmp_gt_u32 vcc, 8, v1\nv_mov_b32 v47, -1\ns_nop 0\nv_cndmask_b32 v46, v47, v46, vcc\nv_mov_b32 v44, 0')
    for i in range(16): p(f'v_lshlrev_b32 v{X+2*i}, 16, v{vLD+i}\nv_and_b32 v{X+2*i+1}, s{sM}, v{vLD+i}')
    def red(v, tt, off):
        p(f's_nop 1\nv_add_f32_dpp v{v}, v{v}, v{v} row_ror:8 row_mask:0xf bank_mask:0xf')
        p(f'v_mov_b32 v{tt}, v{v}\ns_nop 1\nv_permlane16_swap_b32 v{v}, v{tt}\ns_nop 1\nv_add_f32 v{v}, v{v}, v{tt}')
        p(f'v_mov_b32 v{tt}, v{v}\ns_nop 1\nv_permlane32_swap_b32 v{v}, v{tt}\ns_nop 1\nv_add_f32 v{v}, v{v}, v{tt}')
        p(f'ds_write_b32 v{vLS+1}, v{v} offset:{off}\ns_waitcnt lgkmcnt(0)\ns_barrier')
        p(f'ds_read_b128 v[40:43], v{vLS} offset:{off}')
        p(f'v_add_f32 v40, v40, v41\nv_add_f32 v42, v42, v43\nv_add_f32 v{v}, v40, v42\nv_mul_f32 v{v}, {f2u(1/1024):#x}, v{v}')
    ts.stamp(p, 32)
    p(f'buffer_load_dwordx2 v[2:3], v44, s[{S_DB}:{S_DB+3}], 0 offen sc1')
    for a in range(0, 4, 2): p(f'v_pk_add_f32 v[{32+a}:{33+a}], v[{X+a}:{X+a+1}], v[{X+4+a}:{X+5+a}]')
    for i in range(8, 32, 2): p(f'v_pk_add_f32 v[{32+i%4}:{33+i%4}], v[{32+i%4}:{33+i%4}], v[{X+i}:{X+i+1}]')
    p('v_pk_add_f32 v[32:33], v[32:33], v[34:35]\nv_add_f32 v32, v32, v33')
    red(32, 33, 0)
    p('v_mov_b32 v33, v32')
    for i in range(0, 32, 2): p(f'v_pk_add_f32 v[{X+32+i}:{X+33+i}], v[{X+i}:{X+i+1}], v[32:33] neg_lo:[0,1] neg_hi:[0,1]')
    for a in range(0, 4, 2): p(f'v_pk_mul_f32 v[{36+a}:{37+a}], v[{X+32+a}:{X+33+a}], v[{X+32+a}:{X+33+a}]')
    for i in range(4, 32, 2): p(f'v_pk_fma_f32 v[{36+i%4}:{37+i%4}], v[{X+32+i}:{X+33+i}], v[{X+32+i}:{X+33+i}], v[{36+i%4}:{37+i%4}]')
    p('v_pk_add_f32 v[36:37], v[36:37], v[38:39]\nv_add_f32 v36, v36, v37')
    red(36, 37, 128)
    def rnd(v): p(f'v_cvt_pk_bf16_f32 v{v}, v{v}, v{v}\nv_lshlrev_b32 v{v}, 16, v{v}')
    rnd(32); rnd(36)
    p(f'v_add_f32 v36, {f2u(1e-5):#x}, v36'); rnd(36)
    p('v_sqrt_f32 v36, v36\ns_nop 0'); rnd(36)
    p('v_rcp_f32 v36, v36')
    S_ST = S_V
    srd(p, S_ST, pWS, WS_ST, 2048*16)
    ts.stamp(p, 32)
    p.touch('v[2:3]')
    p('L_no_retry:')
    p(f'v_readfirstlane_b32 s{sNO}, v2\nv_readfirstlane_b32 s{sNO+1}, v3\ns_nop 0\ns_cmp_lg_u32 s{sNO}, 0\ns_cbranch_scc1 L_no_ok')
    p.cond(True)
    p(f'buffer_load_dwordx2 v[2:3], v44, s[{S_DB}:{S_DB+3}], 0 offen sc1\ns_waitcnt vmcnt(0)\ns_branch L_no_retry')
    p.cond(False)
    p('L_no_ok:')
    p(f's_cmp_eq_u32 s{sW}, 1\ns_cbranch_scc0 L_st_skip')
    p.cond(True)
    p(f'v_mov_b32 v40, v32\nv_mov_b32 v41, v36\nv_mov_b32 v42, v2\nv_mov_b32 v43, v3\nbuffer_store_dwordx4 v[40:43], v46, s[{S_ST}:{S_ST+3}], 0 offen sc1')
    p.cond(False)
    p('L_st_skip:')
    ts.stamp(p, 33)
    p('v_mov_b32 v33, v32\nv_mov_b32 v37, v36')
    if not cfg.t0e & 1: dma_tile(0)
    for i in range(16):
        if i % 4 == 0 and not cfg.t0e & 2: raw(i // 4)
        a, b = X+2*i, X+2*i+1
        p(f'v_pk_add_f32 v[{a}:{b}], v[{a}:{b}], v[32:33] neg_lo:[0,1] neg_hi:[0,1]\nv_cvt_pk_bf16_f32 v{a}, v{a}, v{b}')
        p(f'v_and_b32 v{b}, s{sM}, v{a}\nv_lshlrev_b32 v{a}, 16, v{a}')
        p(f'v_pk_mul_f32 v[{a}:{b}], v[{a}:{b}], v[36:37]\nv_cvt_pk_bf16_f32 v{vLD+i}, v{a}, v{b}')
    RC = 224
    def rec_loads():
        for b in range(4): p(f'buffer_load_dwordx4 v[{RC+4*b}:{RC+4*b+3}], v{vSR}, s[{S_ST}:{S_ST+3}], 0 offen offset:{256*b} sc1')
    rec_loads()
    xst = [(f'buffer_store_dwordx4 v[{vLD+4*i}:{vLD+4*i+3}], v{vLO}, s[{S_XN}:{S_XN+3}], 0 offen offset:{1024*i} sc1', ('Xst', 1, 0, 0)) for i in range(4)]
    if cfg.xe:
        for x in xst: emit(p, x)
    p(f'v_and_b32 v32, 15, v1\nv_lshrrev_b32 v33, 4, v1\nv_xor_b32 v33, v33, v32\nv_lshlrev_b32 v32, 8, v32\ns_lshl_b32 s{sT}, s{sW}, 14\ns_add_u32 s{sT}, s{sT}, {RAWL}\nv_add_u32 v32, s{sT}, v32')
    for u in range(4): p(f'v_xor_b32 v34, {4*u}, v33\nv_lshl_add_u32 v{36+u}, v34, 4, v32')
    p.need(('R', 1, 0, 0))
    for u in range(4):
        for b in range(4): p(f'ds_read_b128 v[{vB+16*u+4*b}:{vB+16*u+4*b+3}], v{36+u} offset:{4096*b}')
    ts.stamp(p, 32)
    p.touch(f'v[{RC}:{RC+15}]')
    ts.stamp(p, 32)
    p('L_rec_chk:')
    p(f'v_cmp_ne_u64 vcc, s[{sNO}:{sNO+1}], v[{RC+2}:{RC+3}]')
    for b in range(1, 4): p(f'v_cmp_ne_u64 s[{sT+2}:{sT+3}], s[{sNO}:{sNO+1}], v[{RC+4*b+2}:{RC+4*b+3}]\ns_nop 0\ns_or_b64 vcc, vcc, s[{sT+2}:{sT+3}]')
    p('s_cbranch_vccz L_rec_ok')
    p.cond(True)
    rec_loads(); p('s_waitcnt vmcnt(0)\ns_branch L_rec_chk')
    p.cond(False)
    p('L_rec_ok:')
    ts.stamp(p, 33)
    srd(p, S_K, pK, 0, 2 << 20); srd(p, S_V, pV, 0, 2 << 20)
    if cfg.trk: touch_tiles(range(2, cfg.trk + 2))
    if cfg.kvp:
        p(f's_lshr_b32 s{sT}, s2, 3\ns_lshl_b32 s{sT}, s{sT}, 2\ns_add_u32 s{sT}, s{sT}, s{sW}\ns_lshl_b32 s{sT}, s{sT}, 10')
        p(f's_lshr_b32 s{sT+1}, s{sCB}, 3\ns_lshl_b32 s{sT+1}, s{sT+1}, 19\ns_add_u32 s{sT}, s{sT}, s{sT+1}\ns_add_u32 s{sT}, s{sT}, {1536*256}')
        p(f'v_and_b32 v33, 15, v1\nv_lshlrev_b32 v33, 6, v33')
        p(f'buffer_load_dword v{vPD}, v33, s[{S_K}:{S_K+3}], s{sT} offen ;pf\nbuffer_load_dword v{vPD}, v33, s[{S_V}:{S_V+3}], s{sT} offen ;pf')
    vRI = 132; vMR = [128, 130, 131, 139]
    for b in range(4): p(f'v_mov_b32 v{vRI+b}, v{RC+4*b+1}\nv_mul_f32 v{vMR[b]}, v{RC+4*b}, v{RC+4*b+1}')
    NT0 = 140
    def norm(sub):
        out = []
        for b in range(4):
            for r in range(4):
                q = vB + 16*sub + 4*b + r; t0 = NT0 + 2*((4*b + r) % 2)
                out += [f'v_lshlrev_b32 v{t0}, 16, v{q}', f'v_and_b32 v{t0+1}, s{sM}, v{q}',
                        f'v_fma_f32 v{t0}, v{t0}, v{vRI+b}, -v{vMR[b]}', f'v_fma_f32 v{t0+1}, v{t0+1}, v{vRI+b}, -v{vMR[b]}',
                        f'v_cvt_pk_bf16_f32 v{q}, v{t0}, v{t0+1}']
        return out
    ts.stamp(p, 32)
    p('s_nop 0')
    def norm_pk(sub):
        for b in range(4):
            p(f'v_mov_b32 v32, v{vRI+b}\nv_mov_b32 v33, v{vRI+b}\nv_sub_f32 v34, 0, v{vMR[b]}\nv_sub_f32 v35, 0, v{vMR[b]}')
            for r in range(4):
                q = vB + 16*sub + 4*b + r
                p(f'v_lshlrev_b32 v{36+2*r}, 16, v{q}\nv_and_b32 v{37+2*r}, s{sM}, v{q}')
            for r in range(4): p(f'v_pk_fma_f32 v[{36+2*r}:{37+2*r}], v[{36+2*r}:{37+2*r}], v[32:33], v[34:35]')
            for r in range(4): p(f'v_cvt_pk_bf16_f32 v{vB + 16*sub + 4*b + r}, v{36+2*r}, v{37+2*r}')
    for sub in range(cfg.npre): norm_pk(sub)
    ts.stamp(p, 32)
    def act(sub, b):
        r = vB + 16*(sub % RB) + 4*b
        return f'buffer_load_dwordx4 v[{r}:{r+3}], v{vAct+b}, s[{S_XN}:{S_XN+3}], s{sKA} offen offset:{1024*(sub % 2)}{SC}'
    NG = 22
    def vm_sched(step, g2):
        s, t = divmod(g2, NG); sub = 2*step + s
        d = None; a = None
        if cfg.d0 <= g2 < cfg.d0 + 11*cfg.dstr and (g2 - cfg.d0) % cfg.dstr == 0: d = (g2 - cfg.d0)//cfg.dstr
        if cfg.a0 <= t < cfg.a0 + 4*cfg.astr and (t - cfg.a0) % cfg.astr == 0: a = (sub + cfg.ad, (t - cfg.a0)//cfg.astr)
        return d, a
    def flagchk(lbl, vaddr, vd):
        return [f'v_cmp_ne_u64 vcc, s[{sNO}:{sNO+1}], v[{vd}:{vd+1}]', 's_nop 0', 's_nop 0', f's_cbranch_vccz {lbl}_ok',
                f'{lbl}_spin: ;cond', f'buffer_load_dwordx2 v[{vd}:{vd+1}], v{vaddr}, s[{S_FL}:{S_FL+3}], 0 offen sc1 ;cond', 's_waitcnt vmcnt(0) ;cond',
                f'v_cmp_ne_u64 vcc, s[{sNO}:{sNO+1}], v[{vd}:{vd+1}] ;cond', 's_nop 1 ;cond', f's_cbranch_vccnz {lbl}_spin ;cond', f'{lbl}_ok:']
    def flag_store(lbl, va):
        return f's_cmp_eq_u32 s{sW}, 1\ns_cbranch_scc0 {lbl}\nbuffer_store_dwordx2 v[2:3], v{va}, s[{S_FL}:{S_FL+3}], 0 offen sc1 ;cond\n{lbl}:'
    def poll(lbl, vaddr, done):
        p(f'{lbl}:')
        p(f'buffer_load_dwordx2 v[36:37], v{vaddr}, s[{S_FL}:{S_FL+3}], 0 offen sc1\ns_waitcnt vmcnt(0)')
        p(f'v_cmp_ne_u64 vcc, s[{sNO}:{sNO+1}], v[36:37]\ns_nop 1\ns_cbranch_vccz {done}\ns_sleep {cfg.slp}\ns_branch {lbl}')
    vHF = 27
    srd(p, S_H, pWS, WS_H, 15 << 20)
    for q_ in range(4): p(f's_mov_b32 s{S_DB+q_}, s{S_O+q_}') if q_ < 3 else p(f's_mov_b32 s{S_DB+3}, 0x20000')
    p.need(('W', NHS, 1, 0))
    xflag = f'buffer_store_dwordx2 v[2:3], v31, s[{S_FL}:{S_FL+3}], 0 offen sc1'
    p('s_waitcnt lgkmcnt(0)\ns_barrier')
    P = cfg.P
    def trr(G, tile0, stride):
        step, g2 = divmod(G, 2*NG); s, t = divmod(g2, NG)
        r = vA + 4*(G % RA)
        tag = ('W', NHS, 2*(tile0 + step) + 1, 2*stride) if s == 1 else None
        if t < 14: off = (t // 7)*7168 + (t % 7)*32; a = vTr; hh = 8*224
        else: off = 0; a = vTq + t - 14; hh = 1024
        return [(f'ds_read_b64_tr_b16 v[{r}:{r+1}], v{a} offset:{off}', tag),
                (f'ds_read_b64_tr_b16 v[{r+2}:{r+3}], v{a} offset:{off + hh}', tag)]
    for G in range(P):
        for f in trr(G, 0, 0): emit(p, f)
    UN = 2
    p(f's_mov_b32 s{sDL}, 0\ns_mov_b32 s{sCNT}, {NT//UN - 1}')
    hi = {}; lo = {}
    def H(i, x): hi.setdefault(i, []).append(x)
    def L(i, x): lo.setdefault(i, []).append(x)
    NGB = 2*NG*UN
    def g_body(first):
        hi.clear(); lo.clear(); mf = []
        t0_, st_ = (0, 0) if first else (UN, UN)
        if first:
            if not cfg.xe:
                for k, x in enumerate(xst): L(2 + cfg.fs1*2*k, x)
            H(cfg.xbar, lambda p: (p.need(('Xst', 1, 0, 0)), p(xflag)))
            for d in range(11):
                g_ = 2 + cfg.fs1*(2*d + 1 if d < 4 else d + 4)
                for x in m0set(d): L(g_, x)
                if m0set(d): L(g_, m0gap)
                L(g_, dma(d, 1, 0))
                if d == 6:
                    for x in adv_w(): L(g_, x)
                if d == 10:
                    for x in adv_q(): L(g_, x)
        for G in range(NGB):
            step, g2 = divmod(G, 2*NG); s, t = divmod(g2, NG)
            sub = 2*step + s
            for b in range(4):
                ra = vA + 4*(G % RA); rb = vB + 16*(sub % RB) + 4*b
                mf.append(f'v_mfma_f32_16x16x32_bf16 {acc(t,b)}, v[{ra}:{ra+3}], v[{rb}:{rb+3}], {"0" if first and sub == 0 else acc(t,b)}')
            i0 = 4*G; Gn = G + P; tn = Gn % NG
            if Gn % (2*NG) == 0:
                stepn = Gn // (2*NG)
                def bar_(p, stepn=stepn):
                    p.need(('W', NHS, 2*(t0_ + stepn) + 1, 2*st_))
                    p('s_barrier')
                H(i0-1, bar_)
            if tn == 0: H(i0-2, f'v_add_u32 v{vTr}, s{sDL}, v{vTr}')
            r0, r1 = trr(Gn % NGB, t0_ + (Gn // NGB)*UN, st_)
            H(i0, r0); H(i0+1, r1)
            if 1 <= tn <= 8: L(i0, f'v_add_u32 v{vTq+tn-1}, s{sDL}, v{vTq+tn-1}')
            if tn == 9:
                for x in adv_rd(): L(i0, x)
            pc, a = vm_sched(step, g2)
            if a is not None and not (first and a[0] < 4):
                g_ = max(i0, cfg.xchk + 4 + 8*(4*(a[0] - 4) + a[1])) if first else i0
                assert g_ < 88*(a[0] - 4 + 3) + 60 or not first
                L(g_, act(*a))
                if a[1] == 3 and a[0] % 2 == 1:
                    for x in adv_a(): L(g_, x)
            if pc is not None:
                g_ = max(i0, 2 + cfg.fs1*(15 + pc)) if first and step == 0 else i0
                if cfg.trk and pc == 0:
                    L(g_, f'buffer_load_dword v{vPD}, v{vP1}, s[{S_W}:{S_W+3}], s{sKW} offen ;pf')
                    L(g_, f'buffer_load_dword v{vPD}, v{vP2}, s[{S_Q}:{S_Q+3}], s{sKQ} offen ;pf')
                for x in m0set(pc): L(g_, x)
                if m0set(pc): L(g_, m0gap)
                L(g_, dma(pc, t0_ + step + 2, st_))
                if pc == 6:
                    for x in adv_w(): L(g_, x)
                if pc == 10:
                    for x in adv_q(): L(g_, x)
        for x in code_pf(S_DB, vPD): L(4*(cfg.d0 + 10*cfg.dstr) + 1, x)
        if first:
            H(cfg.xchk - cfg.xfl, f'buffer_load_dwordx2 v[28:29], v30, s[{S_FL}:{S_FL+3}], 0 offen sc1')
            H(cfg.xchk, '\n'.join(flagchk('L_x', 30, 28)))
        else:
            H(len(mf)-3, f's_sub_u32 s{sCNT}, s{sCNT}, 1'); H(len(mf)-2, f's_cmp_lg_u32 s{sCNT}, 0')
            H(len(mf)-1, 's_cbranch_scc1 G_loop')
        lo_ = {k: lo[k] for k in sorted(lo)}
        fill = spread(hi, lo_, len(mf), cfg.cap, 16 if not first else 60, cost=lambda i: 1 if i % 4 == 3 else 2 if i == -1 else 0)
        fix_m0(fill, len(mf))
        if first:
            edges = [0] + [88*sub - 3 if sub == 3 or cfg.npre == 1 else (261*(sub - cfg.npre + 1))//(4 - cfg.npre) for sub in range(cfg.npre, 4)]
            for k, sub in enumerate(range(cfg.npre, 4)):
                g0, g1 = edges[k], min(edges[k+1], 88*sub - 3)
                q_ = norm(sub); per = len(q_)/(g1 - g0); due = 0.0; done = 0
                for i in range(g0, g1):
                    due += per; used = len(fill[i]) + (1 if i % 4 == 3 else 0)
                    while q_ and done < due + 2 and (used < cfg.cap or done < due - cfg.lag):
                        fill[i].append(q_.pop(0)); used += 1; done += 1
                fill[g1 - 1] += q_
        else: chk_tail(fill, len(mf))
        if first:
            for i in (43, 87, 131, 175, 219, 263, 307):
                t_ = ts.text(64)
                if t_: fill[i].append(t_)
        interleave(p, mf, fill)
    ts.stamp(p, 97)
    g_body(True)
    if cfg.xt: p.touch(f'v[{vB}:{vB+16*cfg.xt-1}]')
    ts.stamp(p, 96)
    p.loop_begin('G_loop', NT//UN - 1)
    g_body(False)
    p.loop_end()
    p('s_waitcnt vmcnt(0) lgkmcnt(0)\ns_barrier')
    ts.stamp(p, 5)

    srd(p, S_O, pWS, WS_O, 17 << 20)
    vDK, vDV, vK, vV = 8, 12, 13, 21
    sKV, sMK, sAD, sPF = 39, 40, 43, 44
    t = 128
    p(f'v_lshrrev_b32 v{t}, 4, v1\nv_and_b32 v{t+1}, 15, v1')
    p(f's_lshl_b32 s{sMK}, s{sW}, 12')
    p(f'v_lshlrev_b32 v{t+2}, 8, v{t}\nv_add_u32 v{t+2}, s{sMK}, v{t+2}')
    for j in range(4):
        p(f'v_add_u32 v{t+3}, {4*j}, v{t}\nv_xor_b32 v{t+3}, v{t+3}, v{t+1}\nv_lshl_add_u32 v{vDK+j}, v{t+3}, 4, v{t+2}')
    p(f'v_lshlrev_b32 v{t+3}, 2, v{t}\nv_xor_b32 v{t+3}, v{t+3}, v{t+1}\nv_lshl_add_u32 v{vDV}, v{t+3}, 4, v{t+2}')
    p(f's_lshr_b32 s{sKV}, s{sCB}, 3\ns_lshl_b32 s{sKV}, s{sKV}, 19\ns_add_u32 s{sKV}, s{sKV}, {1536*256}')
    def kdma(j, soff, tag): return (f'buffer_load_dwordx4 v{vDK+j}, s[{S_K}:{S_K+3}], s{soff} offen offset:{1024*j} lds', tag)
    def vdma(j, soff, tag): return (f'buffer_load_dwordx4 v{vDV}, s[{S_V}:{S_V+3}], s{soff} offen offset:{1024*j} lds', tag)
    kvq = []
    for (kind, tl) in (('K', 0), ('K', 1), ('V', 0), ('K', 2), ('V', 1)):
        g = [f's_add_u32 s{sT+5}, s{sKV}, {tl*16384}', f's_add_u32 m0, s{sMK}, {tl*16384 + (65536 if kind == "V" else 0)}', 's_nop 0']
        for j in range(4):
            kvq.append(g + [(kdma if kind == 'K' else vdma)(j, sT+5, (kind, 4, tl, 0))]); g = []
    k1 = -2*math.sqrt(2/math.pi)*math.log2(math.e); k2 = k1*0.044715
    vC = 28
    p(f'v_mov_b32 v{vC}, {f2u(k1):#x}\nv_mov_b32 v{vC+1}, {f2u(k1):#x}\nv_mov_b32 v{vC+2}, {f2u(k2):#x}\nv_mov_b32 v{vC+3}, {f2u(k2):#x}')
    p(f's_lshl_b32 s{sT+2}, s{sRB}, 4\ns_lshl_b32 s{sT+3}, s{sW}, 2\ns_add_u32 s{sT+2}, s{sT+2}, s{sT+3}\ns_mul_i32 s{sT+2}, s{sT+2}, {HST}')
    p(f's_mul_i32 s{sT+3}, s{sCB}, 7\ns_add_u32 s{sT+3}, s{sT+3}, 1\ns_lshr_b32 s{sT+3}, s{sT+3}, 1\ns_lshl_b32 s{sT+3}, s{sT+3}, 10')
    p(f's_add_u32 s{sT+2}, s{sT+2}, s{sT+3}')
    p(f'v_lshlrev_b32 v{t}, 4, v1\nv_add_u32 v{vAct}, s{sT+2}, v{t}')
    for b in range(1, 4): p(f'v_add_u32 v{vAct+b}, {b*HST:#x}, v{vAct}')
    p(f's_and_b32 s{sT+3}, s{sCB}, 1\ns_cmp_eq_u32 s{sT+3}, 0\ns_mov_b32 s{sT+4}, 3072\ns_cselect_b32 s{sT+4}, s{sT+4}, -1016')
    vHs = 132
    for b in range(4): p(f'v_add_u32 v{vHs+b}, s{sT+4}, v{vAct+b}')
    def gelu_tiles(tiles):
        n = len(tiles)
        Xs = [32 + 12*i for i in range(n)]
        pk = lambda r: f'v[{r}:{r+1}]'
        for (t, b, d), X in zip(tiles, Xs):
            for r in range(4): p(f'v_accvgpr_read_b32 v{X+r}, {accr(t,b,r)}')
        for X in Xs:
            for r in (0, 2): p(f'v_pk_mul_f32 {pk(X+8+r)}, {pk(X+r)}, {pk(X+r)}')
        for X in Xs:
            for r in (0, 2): p(f'v_pk_fma_f32 {pk(X+8+r)}, {pk(X+8+r)}, {pk(vC+2)}, {pk(vC)}')
        for X in Xs:
            for r in (0, 2): p(f'v_pk_mul_f32 {pk(X+8+r)}, {pk(X+8+r)}, {pk(X+r)}')
        for (t, b, d), X in zip(tiles, Xs):
            for r in range(4): p(f'v_exp_f32 v{X+8+r}, v{X+8+r}')
            for r in range(4): p(f'v_accvgpr_read_b32 v{X+4+r}, {accr(t+7,b,r)}')
        for X in Xs:
            for r in (0, 2): p(f'v_pk_add_f32 {pk(X+8+r)}, {pk(X+8+r)}, 1.0 op_sel_hi:[1,0]')
        for X in Xs:
            for r in range(4): p(f'v_rcp_f32 v{X+8+r}, v{X+8+r}')
            for r in (0, 2): p(f'v_pk_mul_f32 {pk(X+4+r)}, {pk(X+4+r)}, {pk(X+r)}')
        for X in Xs:
            for r in (0, 2): p(f'v_pk_mul_f32 {pk(X+4+r)}, {pk(X+4+r)}, {pk(X+8+r)}')
        for (t, b, d), X in zip(tiles, Xs):
            p(f'v_cvt_pk_bf16_f32 v{d}, v{X+4}, v{X+5}\nv_cvt_pk_bf16_f32 v{d+1}, v{X+6}, v{X+7}')
    for par in range(2):
        if par == 0: p('s_cbranch_scc0 B_epi_odd')
        else: p.cond(True); p('B_epi_odd:')
        n = 0; kq = list(kvq)
        for b in range(4):
            for pr in range(3):
                d = 64 + 4*(n % 8); n += 1
                for _ in range(2):
                    if kq:
                        for x in kq.pop(0): emit(p, x)
                gelu_tiles([(2*pr + par, b, d), (2*pr + 1 + par, b, d + 2)])
                p(f'buffer_store_dwordx4 v[{d}:{d+3}], v{vAct+b}, s[{S_H}:{S_H+3}], 0 offen offset:{1024*pr}{LS}', ('Hst', 1, 0, 0))
        for b in range(0, 4, 2):
            d = 64 + 4*(n % 8); n += 1
            gelu_tiles([(6 if par == 0 else 0, b, d), (6 if par == 0 else 0, b+1, d+2)])
            p(f'buffer_store_dwordx2 v[{d}:{d+1}], v{vHs+b}, s[{S_H}:{S_H+3}], 0 offen{LS}', ('Hst', 1, 0, 0))
            p(f'buffer_store_dwordx2 v[{d+2}:{d+3}], v{vHs+b+1}, s[{S_H}:{S_H+3}], 0 offen{LS}', ('Hst', 1, 0, 0))
        if par == 0: p('s_branch B_epi_done')
    p.cond(False)
    p('B_epi_done:')
    ts.stamp(p, 5)
    vQ = 64
    qs = math.log2(math.e)/math.sqrt(128)
    def qconv(qt, s):
        d = vQ + (qt*8+s)*4
        for half in range(2):
            b = 2*qt + half; x = 32 + 4*half
            src = accr(14+s, b, 0)
            if src[0] == 'a':
                for r in range(4): p(f'v_accvgpr_read_b32 v{x+r}, {accr(14+s, b, r)}')
                s0 = x
            else: s0 = int(src[1:])
            for r in (0, 2): p(f'v_pk_mul_f32 v[{x+r}:{x+r+1}], v[{s0+r}:{s0+r+1}], v[{vC}:{vC+1}]')
            p(f'v_cvt_pk_bf16_f32 v{d+2*half}, v{x}, v{x+1}\nv_cvt_pk_bf16_f32 v{d+2*half+1}, v{x+2}, v{x+3}')
    def qswap(qt, s):
        d = vQ + (qt*8+s)*4
        p(f'v_permlane16_swap_b32 v{d}, v{d+2}\nv_permlane16_swap_b32 v{d+1}, v{d+3}')
    t = 32
    p(f'v_and_b32 v{t}, 31, v1\nv_lshrrev_b32 v{t+1}, 5, v1\nv_and_b32 v{t+2}, 15, v1\nv_xor_b32 v{t+1}, v{t+1}, v{t+2}\nv_lshlrev_b32 v{t}, 8, v{t}')
    for s in range(8):
        p(f'v_xor_b32 v{t+2}, {2*s}, v{t+1}\nv_lshl_add_u32 v{vK+s}, v{t+2}, 4, v{t}')
    p(f'v_mov_b32 v{vC}, {f2u(qs):#x}\nv_mov_b32 v{vC+1}, {f2u(qs):#x}')
    vS = [128, 160]; vP = [192, 208]; vN = 224; vL = 28
    aF = 192
    def Sreg(n, qt): return vS[n % 2] + 16*qt
    def Preg(n, qt, ks): return vP[n % 2] + 8*qt + 4*ks
    def kread(n, s, tag):
        r = aF + 4*s
        return [(f'ds_read_b128 a[{r}:{r+3}], v{vK+s} offset:{(n % 8)*8192}', ('K', 4, n//2, 0))]
    def vread(n, f, tag, base=None, off0=None):
        ks, dt = divmod(f, 4); r = aF + 32 + 4*f
        off = (32*(n % 8) + 16*ks)*256 if off0 is None else off0 + 16*ks*256
        b = vV if base is None else base
        return [(f'ds_read_b64_tr_b16 a[{r}:{r+1}], v{b+dt} offset:{off}', tag),
                (f'ds_read_b64_tr_b16 a[{r+2}:{r+3}], v{b+dt} offset:{off+2048}', tag)]
    def qk(n, s, qt, c0):
        S = Sreg(n, qt); c = f'v[{S}:{S+15}]' if s else c0(qt)
        return f'v_mfma_f32_32x32x16_bf16 v[{S}:{S+15}], a[{aF+4*s}:{aF+4*s+3}], v[{vQ+(qt*8+s)*4}:{vQ+(qt*8+s)*4+3}], {c}'
    def pv(n, f, qt, first=False):
        ks, dt = divmod(f, 4); o = (dt*2+qt)*16; P_ = Preg(n, qt, ks)
        c = '0' if first and ks == 0 else f'a[{o}:{o+15}]'
        return f'v_mfma_f32_32x32x16_bf16 a[{o}:{o+15}], a[{aF+32+4*f}:{aF+32+4*f+3}], v[{P_}:{P_+3}], {c}'
    negm = lambda qt: f'v[{vN+16*qt}:{vN+16*qt+15}]'
    zero = lambda qt: '0'
    def softmax_ops(n):
        sl = [[] for _ in range(33)]
        for e in range(32):
            qt, i = divmod(e, 16); S = Sreg(n, qt); Pr = Preg(n, qt, i>>3)+((i&7)>>1)
            sl[e].insert(0, f'v_exp_f32 v{S+i}, v{S+i}')
            if cfg.sum == 'add': sl[e+1].append(f'v_add_f32 v{vL+2*qt+(i&1)}, v{vL+2*qt+(i&1)}, v{S+i}')
            if i & 1:
                if e == 31 and cfg.sum != 'add': sl[e+1].append('s_nop 0')
                sl[e+1].append(f'v_cvt_pk_bf16_f32 v{Pr}, v{S+i-1}, v{S+i}')
                k = min(32, e+2)
                if cfg.sum == 'pk': sl[k].append(f'v_pk_add_f32 v[{vL+2*qt}:{vL+2*qt+1}], v[{vL+2*qt}:{vL+2*qt+1}], v[{S+i-1}:{S+i}]')
                if cfg.sum == 'dot': sl[k].append(f'v_dot2_f32_bf16 v{vL+2*qt+((i>>1)&1)}, v{Pr}, v39, v{vL+2*qt+((i>>1)&1)}')
        return sl
    if cfg.sum == 'dot': p('v_mov_b32 v39, 0x3f803f80')
    p.need(('K', 4, 0, 0)); p('s_barrier')
    for s in range(8): emit(p, kread(0, s, None)[0])
    ts.stamp(p, 5)
    qconv(0, 0); qconv(1, 0)
    for s in range(8):
        if s < 7: qconv(0, s+1)
        qswap(0, s); qswap(1, s)
        if s < 7: qconv(1, s+1)
        else: p('s_nop 1')
        for qt in range(2): p(qk(0, s, qt, zero))
        emit(p, kread(1, s, None)[0])
    t = 36
    p(f'v_lshrrev_b32 v{t}, 5, v1\nv_lshlrev_b32 v{t}, 2, v{t}\nv_bfe_u32 v{t+1}, v1, 2, 2\nv_add_u32 v{t}, v{t}, v{t+1}\nv_lshlrev_b32 v{t}, 8, v{t}')
    p(f'v_bfe_u32 v{t+2}, v1, 4, 1\nv_lshlrev_b32 v{t+2}, 5, v{t+2}\nv_and_b32 v{t+3}, 3, v1\nv_lshlrev_b32 v{t+3}, 3, v{t+3}\nv_add3_u32 v{t}, v{t}, v{t+2}, v{t+3}')
    p(f'v_add_u32 v{t}, 0x10000, v{t}')
    for dt in range(4):
        p(f'v_xor_b32 v{t+2}, {dt}, v{t+1}\nv_lshl_add_u32 v{vV+dt}, v{t+2}, 6, v{t}')
    for i in range(4): p(f'v_mov_b32 v{vL+i}, 0')
    def rowmax(n, first):
        for qt in range(2):
            S = Sreg(n, qt); m = 32 + 2*qt
            if first: p(f'v_max3_f32 v{m}, v{S}, v{S+1}, v{S+2}')
            else: p(f'v_max3_f32 v{m}, v{m}, v{S+1}, v{S+2}\nv_max_f32 v{m}, v{m}, v{S}')
            for i in range(3, 15, 2): p(f'v_max3_f32 v{m}, v{m}, v{S+i}, v{S+i+1}')
            p(f'v_max_f32 v{m}, v{m}, v{S+15}')
    def set_negm():
        p('v_mov_b32 v33, v32\nv_mov_b32 v35, v34\ns_nop 0\nv_permlane32_swap_b32 v32, v33\nv_permlane32_swap_b32 v34, v35\ns_nop 0')
        for qt in range(2):
            m = 32 + 2*qt
            p(f'v_max_f32 v{m}, v{m}, v{m+1}\nv_sub_f32 v{vN+16*qt}, 0, v{m}\nv_mov_b32 v{vN+16*qt+1}, v{vN+16*qt}')
            for i in range(2, 16, 2): p(f'v_pk_mul_f32 v[{vN+16*qt+i}:{vN+16*qt+i+1}], v[{vN+16*qt}:{vN+16*qt+1}], 1.0 op_sel_hi:[1,0]')
    ts.stamp(p, 4)
    rowmax(0, True); set_negm()
    for qt in range(2):
        S = Sreg(0, qt)
        for i in range(0, 16, 2): p(f'v_pk_add_f32 v[{S+i}:{S+i+1}], v[{S+i}:{S+i+1}], v[{vN+16*qt}:{vN+16*qt+1}]')
    ts.stamp(p, 4)
    S_WD, S_WO, S_AH, S_AO, S_X, S_OUT, S_P = 12, 8, 16, 20, 24, 28, 60
    sJ, sRC, sCC = 70, 71, 76
    kWD, kWO, kAH, kAO, cMW, cTG = 77, 75, 78, 42, 79, 49
    dD, dO, aH, aO, cTr, cA, cC = 40, 8, 48, 4, 52, 64, 128
    vFH = 60
    SLOT = 32768
    k_h = lambda pc: 4*pc
    k_o = lambda pc: 4*((pc & 1) | ((pc & 2) << 1) | ((pc & 4) >> 1))
    sDE = 85
    def x_dma_addr(dst, kmap):
        t = 36
        p(f's_lshl_b32 s{sT+2}, s{sW}, 16\ns_lshl_b32 s{sT+3}, s{sCC}, 8\ns_add_u32 s{sT+2}, s{sT+2}, s{sT+3}')
        p(f'v_lshrrev_b32 v{t}, 4, v1\nv_and_b32 v{t+1}, 15, v1\nv_lshlrev_b32 v{t+2}, 1, v{t}\nv_xor_b32 v{t+1}, v{t+1}, v{t+2}')
        p(f'v_lshlrev_b32 v{t}, 11, v{t}\nv_add_u32 v{t}, s{sT+2}, v{t}')
        for e in range(2):
            p(f'v_xor_b32 v{t+2}, {8*e}, v{t+1}\nv_lshl_add_u32 v{dst+e}, v{t+2}, 4, v{t}')
            if cfg.cdel: p(f'v_lshrrev_b32 v{t+2}, 3, v{t+2}\nv_mad_i32_i24 v{dst+e}, v{t+2}, s{sDE}, v{dst+e}')
        for pc in range(7, -1, -1):
            o = (kmap(pc) << 11) - 1024*(pc % 4)
            if o or pc > 1: p(f'v_add_u32 v{dst+pc}, {o}, v{dst + (pc & 1)}')
    NS = ND + 8; kind = lambda sg: 'd' if sg < ND else 's'
    def cdma(pc, sg):
        D_, S_, K_ = (dD, S_WD, kWD) if kind(sg) == 'd' else (dO, S_WO, kWO)
        g = []
        if pc % 4 == 0: g += [f's_add_u32 m0, s{cMW}, {(sg % 4)*SLOT + 1024*pc}', m0gap]
        g.append((f'buffer_load_dwordx4 v{D_+pc}, s[{S_}:{S_+3}], s{K_} offen offset:{1024*(pc%4)} {cfg.wsc} lds', ('C', 4, sg, 0)))
        if pc == 7: g.append(f's_add_u32 s{K_}, s{K_}, {128*2048}')
        return g
    def cact(sub, b):
        A_, S_, K_ = (aH, S_AH, kAH) if kind(sub // 4) == 'd' else (aO, S_AO, kAO)
        r = 128 + 16*(sub % 8) + 4*b
        g = [f'buffer_load_dwordx4 a[{r}:{r+3}], v{A_+b}, s[{S_}:{S_+3}], s{K_} offen offset:{1024*(sub % 4)}{SC}']
        if b == 3 and sub % 4 == 3: g.append(f's_add_u32 s{K_}, s{K_}, 4096')
        return g
    def collect(fn):
        nonlocal p
        w = Prog(); q = p; p = w; fn(); p = q
        out = []
        for it in w.items:
            if it.op == 's_addc_u32': out[-1] = (out[-1][0] + '\n' + it.text, None)
            else: out.append((it.text, it.tag))
        return out
    PF = cfg.PF; vPF = 25; sDM = 55; sPF = 44
    pairs = []; sm = []; start = {}
    for n in range(17):
        st = len(pairs); start[n] = st
        if n <= 14:
            for s_ in range(8): pairs.append((qk(n+1, s_, 0, negm), qk(n+1, s_, 1, negm), kread(n+1, s_, None) if n else []))
        if n >= 1:
            for f in range(8): pairs.append((pv(n-1, f, 0, n == 1), pv(n-1, f, 1, n == 1), vread(n-1, f, ('V', 4, (n-1)//2, 0))))
        if n <= 15: sm.append((st, len(pairs), softmax_ops(n)))
    mf = []; hi.clear(); lo.clear()
    for a_, b_, _ in pairs: mf += [a_, b_]
    n_ = len(mf)
    bargap = {}
    for j in range(8):
        g = 2*(start[2*j+1] - PF) - 1; bargap[j] = g
        def bar_(p, j=j):
            if j < 7: p.need(('K', 4, j+1, 0))
            p.need(('V', 4, j, 0))
            if j == cfg.hbar: p.need(('Hst', 1, 0, 0))
            p('s_barrier')
        H(g, bar_)
    for i in range(len(pairs) - PF):
        for k, r in enumerate(pairs[i + PF][2]): H(2*i + k, r)
    for (st, en, sl) in sm:
        ng = 2*(en - st)
        for e, ops in enumerate(sl):
            for o in ops: H(2*st + min(ng - 1, e*ng//32), o)
    def out_addr(dst):
        p(f's_lshl_b32 s{sT+2}, s{sRC}, 8\ns_lshl_b32 s{sT+3}, s{sW}, 6\ns_add_u32 s{sT+2}, s{sT+2}, s{sT+3}\ns_lshl_b32 s{sT+2}, s{sT+2}, 11')
        p(f's_lshl_b32 s{sT+3}, s{sCC}, 8\ns_add_u32 s{sT+2}, s{sT+2}, s{sT+3}\ns_lshl_b32 s{sT+3}, s{sJ}, 6\ns_add_u32 s{sT+2}, s{sT+2}, s{sT+3}')
        p(f's_lshr_b32 s{sT+3}, s{sJ}, 1\ns_mul_i32 s{sT+3}, s{sT+3}, s{sDE}\ns_add_u32 s{sT+2}, s{sT+2}, s{sT+3}')
        t = 36
        p(f'v_and_b32 v{t}, 15, v1\nv_lshlrev_b32 v{t}, 11, v{t}\nv_add_u32 v{t}, s{sT+2}, v{t}\nv_lshrrev_b32 v{t+1}, 4, v1')
        p(f'v_and_b32 v{dst}, 1, v{t+1}\nv_lshlrev_b32 v{dst}, 5, v{dst}\nv_lshrrev_b32 v38, 1, v{t+1}\nv_lshlrev_b32 v38, 4, v38\nv_add3_u32 v{dst}, v{dst}, v38, v{t}')
    XL = 0x20000 + 4096
    def x_stage():
        out_addr(39)
        srd(p, S_H, pX, 0, 4 << 20)
        for b in range(4):
            p(f's_add_u32 m0, s{sDM}, {4096 + 1024*b}\ns_mov_b32 s{sT+2}, {b*0x8000}')
            p(f'buffer_load_dwordx4 v39, s[{S_H}:{S_H+3}], s{sT+2} offen lds')
    def setup1():
        p(f's_lshl_b32 s{sT}, s2, 2\ns_add_u32 s{sT}, s{sT}, s{sW}\ns_lshl_b32 s{sT+1}, s{sT}, 13\ns_mul_i32 s{sT}, s{sT}, 7168')
        p(f'v_lshlrev_b32 v{vPF}, 4, v1\nv_add_u32 v{vPF+1}, s{sT}, v{vPF}\nv_add_u32 v{vPF}, s{sT+1}, v{vPF}')
        srd(p, S_WO, pWO, 0, 8 << 20); srd(p, S_WD, pWD, 0, 7 << 20)
        p(f's_lshl_b32 s{sDM}, s{sMK}, 1\ns_add_u32 s{sDM}, s{sDM}, 0x20000\ns_mov_b32 s{sPF}, 0')
        p(f's_lshl_b32 s{sT}, s{sRB}, 12\ns_lshl_b32 s{sT+1}, s{sCB}, 7\ns_add_u32 s{sT}, s{sT}, s{sT+1}\ns_add_u32 s{sT}, s{sT}, {256*128}\nv_mov_b32 v{vHF}, s{sT}')
    def setup2():
        if cfg.fs:
            p(f's_lshr_b32 s{sT}, s{sNO}, 5\ns_xor_b32 s{sT}, s{sT}, s2\ns_and_b32 s{sT}, s{sT}, 1\ns_and_b32 s{sJ}, s2, 2\ns_or_b32 s{sJ}, s{sJ}, s{sT}')
            p(f's_and_b32 s{sRC}, s2, 4\ns_bfe_u32 s{sT+1}, s2, 0x20003\ns_add_u32 s{sRC}, s{sRC}, s{sT+1}\ns_lshr_b32 s{sCC}, s2, 5\ns_xor_b32 s{sCC}, s{sCC}, {cfg.ccx}')
            p(f's_lshr_b32 s{sT+1}, s{sJ}, 1\ns_mul_i32 s{kAH}, s{sT+1}, 14\ns_lshl_b32 s{sT+2}, s{sT}, 3\ns_add_u32 s{kAH}, s{kAH}, s{sT+2}')
            p(f's_lshl_b32 s{sT+1}, s{sT+1}, 4\ns_mul_i32 s{sT+2}, s{sT}, 9\ns_add_u32 s{sT+1}, s{sT+1}, s{sT+2}\ns_mul_i32 s{sT}, s{sT}, 3\ns_sub_u32 s{sT}, 9, s{sT}')
            p(f'v_and_b32 v{vFH}, 15, v1\nv_min_u32 v{vFH}, s{sT}, v{vFH}\ns_lshl_b32 s{sT}, s{sRC}, 5\ns_add_u32 s{sT}, s{sT}, s{sT+1}\ns_add_u32 s{sT}, s{sT}, 256\ns_lshl_b32 s{sT}, s{sT}, 7')
            p(f'v_lshl_add_u32 v{vFH}, v{vFH}, 7, s{sT}')
            p(f's_lshl_b32 s{kWD}, s{kAH}, 18\ns_lshl_b32 s{kAH}, s{kAH}, 12')
        else:
            p(f's_bfe_u32 s{sJ}, s2, 0x20001\ns_and_b32 s{sRC}, s2, 1\ns_lshl_b32 s{sRC}, s{sRC}, 2\ns_bfe_u32 s{sT}, s2, 0x20003\ns_add_u32 s{sRC}, s{sRC}, s{sT}\ns_lshr_b32 s{sCC}, s2, 5')
            p(f's_lshl_b32 s{sT}, s{sRC}, 5\ns_lshl_b32 s{sT+1}, s{sJ}, 3\ns_add_u32 s{sT}, s{sT}, s{sT+1}\ns_add_u32 s{sT}, s{sT}, 256\ns_lshl_b32 s{sT}, s{sT}, 7')
            p(f'v_and_b32 v{vFH}, 7, v1\nv_lshl_add_u32 v{vFH}, v{vFH}, 7, s{sT}')
            p(f's_mul_i32 s{kWD}, s{sJ}, {896*2048}\ns_mul_i32 s{kAH}, s{sJ}, {28*1024}')
        p(f's_lshl_b32 s{sT}, s{sCC}, 8\ns_add_u32 s{sT}, s{sT}, 128\ns_add_u32 s{sDE}, s{sT}, {cfg.cdel}\ns_and_b32 s{sDE}, s{sDE}, 2047\ns_sub_u32 s{sDE}, s{sDE}, s{sT}')
        x_dma_addr(dD, k_h)
        p(f's_lshl_b32 s{cMW}, s{sW}, 13')
        srd(p, S_AH, pWS, WS_H, 15 << 20)
        p(f's_lshl_b32 s{sT}, s{sRC}, 4\ns_lshl_b32 s{sT+2}, s{sW}, 2\ns_add_u32 s{sT}, s{sT}, s{sT+2}\ns_mul_i32 s{sT+2}, s{sT}, {HST}')
        p(f'v_lshlrev_b32 v36, 4, v1\nv_add_u32 v{aH}, s{sT+2}, v36')
        for b in range(1, 4): p(f'v_add_u32 v{aH+b}, {HST}, v{aH+b-1}')
        t = 36
        p(f's_lshl_b32 s{sT+3}, s{sJ}, 1')
        p(f'v_lshrrev_b32 v{t}, 2, v1\nv_and_b32 v{t+1}, 7, v{t}\nv_xor_b32 v{t+1}, s{sT+3}, v{t+1}\nv_lshlrev_b32 v{t}, 8, v{t}\nv_and_b32 v{t+2}, 3, v1\nv_lshl_add_u32 v{t}, v{t+2}, 3, v{t}')
        for tt in range(8):
            p(f'v_xor_b32 v{t+2}, {tt}, v{t+1}\nv_lshl_add_u32 v{cTr+tt}, v{t+2}, 5, v{t}')
        p(f's_mov_b32 s{cTG}, 0x10000')
        if cfg.c3:
            p(f's_lshr_b32 s{sT}, s2, 3\ns_lshl_b32 s{sT}, s{sT}, 2\ns_add_u32 s{sT}, s{sT}, s{sW}\ns_lshl_b32 s{sT}, s{sT}, 11\ns_add_u32 s{sT}, s{sT}, {cfg.c3l*128}')
            p(f'v_bfe_u32 v36, v1, 2, 2\nv_lshlrev_b32 v36, 18, v36\nv_bfe_u32 v37, v1, 1, 1\nv_lshl_add_u32 v36, v37, 10, v36\nv_and_b32 v37, 1, v1\nv_lshl_add_u32 v36, v37, 6, v36\nv_add_u32 v39, s{sT}, v36')
    s2q = collect(setup2); s2per = -(-len(s2q) // 4)
    for x in collect(setup1): L(16, x)
    npf = 0
    for j in range(7):
        g = bargap[j] + 1
        if j + 3 <= 7:
            L(g, f's_add_u32 s{sT+5}, s{sKV}, {(j+3)*16384}') if False else None
            L(g, f's_add_u32 s{sT+4}, s{sKV}, {(j+3)*16384}'); L(g, f's_add_u32 m0, s{sMK}, {((j+3) % 4)*16384}'); L(g, m0gap)
            for k in range(4): L(g + 3*k, kdma(k, sT+4, ('K', 4, j+3, 0)))
        if j + 2 <= 7:
            L(g + 12, f's_add_u32 s{sT+4}, s{sKV}, {(j+2)*16384}'); L(g + 12, f's_add_u32 m0, s{sMK}, {0x10000 + ((j+2) % 4)*16384}'); L(g + 12, m0gap)
            for k in range(4): L(g + 12 + 3*k, vdma(k, sT+4, ('V', 4, j+2, 0)))
        if j < 5:
            L(g + 24, f's_mov_b32 m0, s{sDM}'); L(g + 24, m0gap)
            for k in range(3):
                wo_ = npf % 2 == 0
                L(g + 24 + 4*k, f'buffer_load_dwordx4 v{vPF if wo_ else vPF+1}, s[{S_WO if wo_ else S_WD}:{(S_WO if wo_ else S_WD)+3}], s{sPF} offen lds')
                if not wo_: L(g + 24 + 4*k, f's_add_u32 s{sPF}, s{sPF}, 1024')
                npf += 1
        if cfg.cpf2 and (j in (1, 4) or cfg.cpf2 >= 2):
            for x in code_pf(S_DB, 61): L(g + 35, x)
        if j < 4:
            for x in s2q[j*s2per:(j+1)*s2per]: L(g + 36, x)
        if j == cfg.hbar: H(g, flag_store('A_hf', vHF))
        if j == 4:
            for k, x in enumerate(collect(x_stage)): L(g + 36 + k//2, x)
        if j == 4: L(g + 40, f'buffer_load_dwordx2 v[62:63], v{vFH}, s[{S_FL}:{S_FL+3}], 0 offen sc1')
        if j == 5:
            for pc in range(8):
                for x in cdma(pc, 0): L(g + 24 + 3*pc, x)
            L(g + 50, '\n'.join(flagchk('L_h', vFH, 62)))
        if j == 6:
            for sub in range(4):
                for b in range(4):
                    for x in cact(sub, b): L(g + 3*(4*sub + b), x)
    for pc in range(8):
        for x in cdma(pc, 1): L(bargap[7] + 1 + 3*pc, x)
    if cfg.c3:
        L(bargap[6] - 4, f's_add_u32 s{sT+4}, s{kWD}, {128*2048}'); L(bargap[6] - 4, f'buffer_load_dword v61, v39, s[{S_WD}:{S_WD+3}], s{sT+4} offen ;pf')
    def cyc(x):
        t_ = x[0] if isinstance(x, tuple) else x
        if callable(t_): return 8
        o = t_.split()[0]
        if o in TRANS: return 8
        if o.startswith('v_cvt_pk'): return 5
        if o.startswith('buffer_'): return cfg.vmc
        return 4*len(t_.split('\n')) if '\n' in t_ and ';cond' not in t_ else 4
    fill = {}; q_ = []
    for i in range(-1, n_):
        cur = list(hi.get(i, [])); used = sum(cyc(x) for x in cur) + (4 if i % 2 == 1 else 0)
        for x in lo.get(i, []): q_.append((i, x))
        while q_ and (used + cyc(q_[0][1]) <= cfg.acap or i == n_ - 1 or i - q_[0][0] >= cfg.amax):
            x = q_.pop(0)[1]; cur.append(x); used += cyc(x)
        fill[i] = cur
    fix_m0(fill, n_)
    if cfg.aab:
        tx = lambda x: x[0] if isinstance(x, tuple) else x
        for i in fill:
            if 2*start[3] <= i < 2*start[11]:
                if cfg.aab & 1: fill[i] = [x for x in fill[i] if callable(tx(x)) or not tx(x).startswith('buffer_load')]
                if cfg.aab & 2: fill[i] = [x for x in fill[i] if callable(tx(x)) or x in hi.get(i, []) or tx(x).startswith('buffer_load') or 'm0' in tx(x) or 's54' in tx(x)]
                if cfg.aab & 4: fill[i] = [x for x in fill[i] if not callable(tx(x))]
    for n in (1, 3, 7, 11, 15):
        t_ = ts.text(4)
        if t_: fill[2*start[n] - 1].append(t_)
    interleave(p, mf, fill)
    ts.stamp(p, 5)
    for qt in range(2):
        l = vL + 2*qt
        p(f'v_add_f32 v{l}, v{l}, v{l+1}\nv_mov_b32 v{l+1}, v{l}\ns_nop 1\nv_permlane32_swap_b32 v{l}, v{l+1}\ns_nop 1\nv_add_f32 v{l}, v{l}, v{l+1}')
    p(f'v_max_f32 v33, v{vL}, v{vL+2}\nv_add_f32 v33, v33, v{vL}\nv_add_f32 v33, v33, v{vL+2}')
    p(f's_mov_b32 s{sT}, {f2u(2.0**cfg.thr):#x}\nv_cmp_nlt_f32 vcc, v33, s{sT}\ns_nop 1\ns_cbranch_vccnz A_slow')
    p('A_done:')
    ad = cfg.cad; P = cfg.cP
    for sub in range(4, ad):
        for b in range(4):
            for x in cact(sub, b): emit(p, x)
    p(f'v_rcp_f32 v{vL}, v{vL}\nv_rcp_f32 v{vL+2}, v{vL+2}')
    p.need(('C', 4, 0, 0)); p('s_barrier')
    for G in range(P):
        r = cA + 4*G
        p(f'ds_read_b64_tr_b16 v[{r}:{r+1}], v{cTr+G} offset:0', ('C', 4, 0, 0)); p(f'ds_read_b64_tr_b16 v[{r+2}:{r+3}], v{cTr+G} offset:4096', ('C', 4, 0, 0))
    p(';SPLIT')
    OE = cfg.oe if ND >= 7 else cfg.oes
    vO, vX, vFO, vFD, vFS, vFQ = 16, 96, 20, 21, 22, 23
    sPS, sPR = 32, 33
    def o_epi(packed):
        t = 32
        p(f'v_mov_b32 v{vL+1}, v{vL}\nv_mov_b32 v{vL+3}, v{vL+2}')
        p(f's_lshl_b32 s{sT}, s{sRB}, 4\ns_lshl_b32 s{sT+1}, s{sW}, 2\ns_add_u32 s{sT}, s{sT}, s{sT+1}\ns_mul_i32 s{sT}, s{sT}, {OST}\ns_lshl_b32 s{sT+1}, s{sCB}, 12\ns_add_u32 s{sT}, s{sT}, s{sT+1}')
        p(f'v_bfe_u32 v{t}, v1, 4, 1\nv_mul_u32_u24 v{t}, {OST}, v{t}\nv_lshrrev_b32 v{t+1}, 5, v1\nv_lshlrev_b32 v{t+1}, 8, v{t+1}\nv_and_b32 v{t+2}, 15, v1\nv_lshlrev_b32 v{t+2}, 4, v{t+2}')
        p(f'v_add3_u32 v{t}, v{t}, v{t+1}, v{t+2}\nv_add_u32 v34, s{sT}, v{t}\nv_add_u32 v35, {2*OST}, v34')
        n = 0
        for dt in range(4):
            for qt in range(2):
                o = (dt*2+qt)*16
                for half in range(2):
                    x = 96 + 8*(n % 2); d = 112 + 4*(n % 4); n += 1
                    for i in range(8): p(f'v_accvgpr_read_b32 v{x+i}, a{o+8*half+i}')
                    if packed:
                        for i in range(0, 8, 2): p(f'v_pk_mul_f32 v[{x+i}:{x+i+1}], v[{x+i}:{x+i+1}], v[{vL+2*qt}:{vL+2*qt+1}]')
                    else:
                        for i in range(8): p(f'v_mul_f32{cfg.e64} v{x+i}, v{x+i}, v{vL+2*qt}')
                        for i in range(cfg.xs): p(f's_mov_b32 s{sT+5}, {cfg.xl}')
                    for i in range(0, 8, 2): p(f'v_cvt_pk_bf16_f32 v{d+i//2}, v{x+i}, v{x+i+1}')
                    p(f'buffer_store_dwordx4 v[{d}:{d+3}], v{34+qt}, s[{S_O}:{S_O+3}], 0 offen offset:{dt*1024 + half*512}{LS}', ('Ost', 1, 0, 0))
    def s_setup():
        x_dma_addr(dO, k_o)
        srd(p, S_AO, pWS, WS_O, 17 << 20)
        p(f's_lshl_b32 s{kWO}, s{sJ}, 21\ns_lshl_b32 s{kAO}, s{sJ}, 15')
        p(f's_lshl_b32 s{sT}, s{sRC}, 4\ns_lshl_b32 s{sT+2}, s{sW}, 2\ns_add_u32 s{sT}, s{sT}, s{sT+2}\ns_mul_i32 s{sT+2}, s{sT}, {OST}')
        p(f'v_lshlrev_b32 v24, 4, v1\nv_add_u32 v{aO}, s{sT+2}, v24')
        for b in range(1, 4): p(f'v_add_u32 v{aO+b}, {OST}, v{aO+b-1}')
        p(f'v_add_u32 v{vFO}, {256*128}, v{vHF}')
        p(f's_lshl_b32 s{sT}, s{sRC}, 5\ns_lshl_b32 s{sT+1}, s{sJ}, 3\ns_add_u32 s{sT}, s{sT}, s{sT+1}\ns_add_u32 s{sT}, s{sT}, 512\ns_lshl_b32 s{sT}, s{sT}, 7')
        p(f'v_and_b32 v{vFH}, 7, v1\nv_lshl_add_u32 v{vFH}, v{vFH}, 7, s{sT}')
        srd(p, S_OUT, pOUT, 0, 4 << 20); srd(p, S_P, pWS, WS_P, 24 << 20)
        p(f's_lshl_b32 s{sT}, s{sRC}, 3\ns_add_u32 s{sT}, s{sT}, s{sCC}\ns_lshl_b32 s{sT}, s{sT}, 2\ns_add_u32 s{sT+1}, s{sT}, s{sJ}')
        p(f's_add_u32 s{sT+2}, s{sT+1}, 768\ns_lshl_b32 s{sT+2}, s{sT+2}, 7\nv_mov_b32 v{vFD}, s{sT+2}\nv_add_u32 v{vFS}, {256*128}, v{vFD}')
        p(f's_add_u32 s{sT+2}, s{sT}, 768\ns_lshl_b32 s{sT+2}, s{sT+2}, 7\nv_and_b32 v{vFQ}, 3, v1\nv_lshl_add_u32 v{vFQ}, v{vFQ}, 7, s{sT+2}')
        p(f's_mul_i32 s{sT+3}, s{sW}, 12288\ns_mul_i32 s{sPR}, s{sT+1}, {3*16384}\ns_add_u32 s{sPR}, s{sPR}, s{sT+3}')
        for q_ in (1, 2, 3):
            p(f's_xor_b32 s{sT+2}, s{sT+1}, {q_}\ns_mul_i32 s{sT+2}, s{sT+2}, {3*16384}\ns_add_u32 s{sT+2}, s{sT+2}, s{sT+3}\ns_add_u32 s{sT+2}, s{sT+2}, {(q_-1)*4096}\nv_add_u32 v{24+q_}, s{sT+2}, v24')
        out_addr(vO)
        for b in range(1, 4): p(f'v_add_u32 v{vO+b}, 0x8000, v{vO+b-1}')
    def send(gemm, quads=range(12)):
        for i in quads:
            c = 32 + 8*i; d = 112 + 4*(i % 4)
            if gemm == 0:
                for r in range(4): p(f'v_cvt_pk_bf16_f32 v{d+r}, v{cC+c+2*r}, v{cC+c+2*r+1}')
            else:
                x = 160 + 8*(i % 4)
                for r in range(8): p(f'v_accvgpr_read_b32 v{x+r}, a{c+r}')
                for r in range(4): p(f'v_cvt_pk_bf16_f32 v{d+r}, v{x+2*r}, v{x+2*r+1}')
                if cfg.sent:
                    for r in range(4): p(f'v_min_u32 v{d+r}, -2, v{d+r}')
            so = '0' if gemm == 0 else f's{sT+4}'
            p(f'buffer_store_dwordx4 v[{d}:{d+3}], v{25 + i//4}, s[{S_P}:{S_P+3}], {so} offen offset:{1024*(i%4)} sc1', ('Pst', 1, gemm, 0))
    mf = []; hi.clear(); lo.clear()
    ST = 128; TMS = cfg.tms
    NSUB = 4*NS
    order = [(sub // 4, sub % 4, t) for sub in range(NSUB - TMS) for t in range(8)]
    order += [(sub // 4, sub % 4, t) for t in (2, 3, 4, 5, 6, 7, 0, 1) for sub in range(NSUB - TMS, NSUB)]
    assert not cfg.sent and (TMS <= 4 or NS % 2 == 0)
    def ctr(G):
        sg, s, t = order[G]
        r = cA + 4*(G % 8); off = (sg % 2)*SLOT + s*8192
        a = cTr + t
        return [(f'ds_read_b64_tr_b16 v[{r}:{r+1}], v{a} offset:{off}', ('C', 4, sg, 0)),
                (f'ds_read_b64_tr_b16 v[{r+2}:{r+3}], v{a} offset:{off + 4096}', ('C', 4, sg, 0))]
    obar = math.ceil(OE) + 1; dbar = ND + math.ceil(cfg.de) + 1
    def bar(p, sgn):
        p.need(('C', 4, sgn, 0))
        if sgn == obar: p.need(('Ost', 1, 0, 0))
        if sgn == dbar: p.need(('Pst', 1, 0, 0))
        p('s_barrier')
    firstG = {}
    for G, (sg, s, t) in enumerate(order): firstG.setdefault(sg, G)
    for G in range(32*NS):
        sg, s, t = order[G]; sub = 4*sg + s
        for b in range(4):
            ra = cA + 4*(G % 8); rb = 128 + 16*(sub % 8) + 4*b; c = (t*4+b)*4
            acc_ = f'v[{cC+c}:{cC+c+3}]' if kind(sg) == 'd' else f'a[{c}:{c+3}]'
            mf.append(f'v_mfma_f32_16x16x32_bf16 {acc_}, v[{ra}:{ra+3}], a[{rb}:{rb+3}], {"0" if sub in (0, 4*ND) else acc_}')
        i0 = 4*G; Gn = G + P
        if Gn < 32*NS:
            if firstG[order[Gn][0]] == Gn: H(i0-1, lambda p, sgn=order[Gn][0]: bar(p, sgn))
            r0, r1 = ctr(Gn)
            H(i0, r0); H(i0+1, r1)
            if Gn % 64 >= 56 and Gn // 32 < NS - 1: H(i0+2, f'v_xor_b32 v{cTr + Gn % 8}, s{cTG}, v{cTr + Gn % 8}')
        sgc, g = divmod(G, 32)
        dstr = 2 if (TMS > 4 and sgc + 2 == NS - 1) else cfg.cdstr
        if g % dstr == 1 and g // dstr < 8 and sgc + 2 < NS:
            for x in cdma(g // dstr, sgc + 2): L(i0, x)
    last_act = 0
    for sub in range(ad, 4*NS):
        t0 = max((sub - 7)*32, min((sub - ad)*32, (4*NS - 8)*32 - (4*NS - 1 - sub)*cfg.ramp)) if TMS else (sub - ad)*32
        t1 = max((sub - 6)*32, min((sub + 1 - ad)*32, (4*NS - 8)*32 - (4*NS - 2 - sub)*cfg.ramp)) if TMS else t0 + 32
        for b in range(4):
            last_act = t0 + b*min(8, (t1 - t0)//4)
            for x in cact(sub, b): L(last_act, x)
    if cfg.cpf2:
        for k in ((1,) if cfg.cpf2 < 2 else range(0, math.floor(OE))):
            for x in code_pf(S_DB, 61): L(k*ST + 4*30, x)
        for x in code_srd(S_AH, 'L_pc3' + SFX): L(ND*ST, x)
        for k in ((ND, ND + 3) if cfg.cpf2 < 2 else range(ND, NS - 2)):
            for x in code_pf(S_AH, 61): L(k*ST + 4*30, x)
    if cfg.c3:
        L((ND - 2)*ST, f's_add_u32 s{sT+4}, s{kWO}, {cfg.c3s*128*2048}'); L((ND - 2)*ST, f'buffer_load_dword v61, v39, s[{S_WO}:{S_WO+3}], s{sT+4} offen ;pf')
    n = len(mf)
    fill = spread(hi, {k: lo[k] for k in sorted(lo)}, n, cfg.cap, 16, cost=lambda i: 1 if i % 4 == 3 else 0)
    fix_m0(fill, n)
    def ride(items, g0, g1):
        q_ = list(items); per = len(q_) / (g1 - g0); due = 0.0; done = 0
        for i in range(g0, g1):
            due += per
            used = len(fill[i]) + (1 if i % 4 == 3 else 0)
            while q_ and done < due + 2 and (used < cfg.cap or done < due - cfg.lag):
                fill[i].append(q_.pop(0)); used += 1; done += 1
        fill[g1-1] += q_
    oq = collect(lambda: o_epi(cfg.ox > 0))
    nx = 0
    if cfg.ox:
        idx = [i for i, x in enumerate(oq) if x[0].startswith('buffer_store')]
        nx = idx[cfg.ox - 1] + 1
        fill[-1] = oq[:nx] + fill[-1]
        oq2 = collect(lambda: o_epi(False))
        idx2 = [i for i, x in enumerate(oq2) if x[0].startswith('buffer_store')]
        oq = oq2[idx2[cfg.ox - 1] + 1:]
    if oq: ride(oq, 2, int(OE*ST))
    ride(collect(s_setup), int(OE*ST), int(OE*ST) + ST - 20)
    fill[obar*ST - 4*P + 2].append(flag_store('C_of' + SFX, vFO))
    first_o = (4*ND - ad)*32
    assert first_o - 2 > int(OE*ST) + ST - 20 and (ND - 2)*ST > int(OE*ST) + ST - 20
    fill[first_o - cfg.fl].append(f'buffer_load_dwordx2 v[62:63], v{vFH}, s[{S_FL}:{S_FL+3}], 0 offen sc1')
    fill[first_o - 2].append('\n'.join(flagchk('L_o' + SFX, vFH, 62)))
    ride(collect(lambda: send(0)), ND*ST + 8, ND*ST + int(cfg.de*ST))
    fill[dbar*ST - 4*P + 2].append(flag_store('C_df' + SFX, vFD))
    xl = [f's_lshl_b32 s{sT+2}, s{sW}, 13', f's_add_u32 s{sT+2}, s{sT+2}, {XL}', f'v_add_u32 v39, s{sT+2}, v24'] + [f'ds_read_b128 v[{vX+4*b}:{vX+4*b+3}], v39 offset:{1024*b}' for b in range(4)]
    vR = 192
    def recv(gemm):
        p(f's_add_u32 s{sT+2}, s{sPR}, {gemm*256*3*16384}')
        for q_ in range(3):
            for i in range(4):
                r = vR + 16*q_ + 4*i
                p(f'buffer_load_dwordx4 v[{r}:{r+3}], v24, s[{S_P}:{S_P+3}], s{sT+2} offen offset:{1024*i} sc1')
            if q_ < 2: p(f's_add_u32 s{sT+2}, s{sT+2}, 4096')
    dchk = NS - cfg.dchk; assert dchk*ST > last_act + 16
    fill[int(dchk*ST) - cfg.fl].append(f'buffer_load_dwordx2 v[62:63], v{vFQ}, s[{S_FL}:{S_FL+3}], 0 offen sc1')
    fill[int(dchk*ST)].append('\n'.join(flagchk('L_d' + SFX, vFQ, 62)))
    ride(collect(lambda: recv(0)), int(dchk*ST) + 2, int(dchk*ST) + 50)
    fill[(NS - 3)*ST].append(f's_mov_b32 s{sT+4}, {256*3*16384}')
    sent = 0
    if TMS:
        base = (NSUB - TMS)*32; plen = 2*TMS*4
        for q_ in range(3):
            g0 = base + (q_ + 1)*plen + 3
            ride(collect(lambda: send(1, range(4*q_, 4*q_ + 4))), g0, min(n, g0 + plen - 3))
        sent = 12
    ts.stamp(p, 7)
    for k in range(1, 15):
        if k in (1, 2, 3, 4, 5, 6, 7, 8, 9, 11, 13):
            t_ = ts.text(2)
            if t_: fill[k*ST - 1].append(t_)
    interleave(p, mf, fill)
    p(f's_mov_b32 s{sT+3}, 0xffff0000\nv_add_u32 v{vFQ}, {256*128}, v{vFQ}\ns_nop 4')
    ts.stamp(p, 3)
    for x in xl: p(x)
    send(1, range(sent, 12))
    RS = (160, 176, 240)
    def recv_s(q_, cond=''):
        for i in range(4):
            p(f'buffer_load_dwordx4 v[{RS[q_]+4*i}:{RS[q_]+4*i+3}], v24, s[{S_P}:{S_P+3}], s{44+q_} offen offset:{1024*i} sc1{cond}')
    if cfg.sent:
        p(f's_add_u32 s44, s{sPR}, {256*3*16384}\ns_add_u32 s45, s44, 4096\ns_add_u32 s46, s45, 4096')
        for q_ in range(3): recv_s(q_)
    pk = lambda r: f'v[{r}:{r+1}]'
    def addparts(dst, i, src):
        for q_ in range(3):
            rr = src[q_] + 4*i; tt = 32 + 8*(q_ % 2)
            for r in range(4): p(f'v_lshlrev_b32 v{tt+2*r}, 16, v{rr+r}\nv_and_b32 v{tt+2*r+1}, s{sT+3}, v{rr+r}')
            for r in range(0, 8, 2): p(f'v_pk_add_f32 {pk(dst+r)}, {pk(dst+r)}, {pk(tt+r)}')
    p(f'v_mov_b32 v28, {f2u(-math.log2(math.e)):#x}\nv_mov_b32 v29, v28')
    RD = (vR, vR + 16, vR + 32)
    for i in range(4):
        c = cC + 8*i; B = 48
        addparts(c, i, RD)
        for r in range(0, 8, 2): p(f'v_pk_mul_f32 {pk(B+r)}, {pk(c+r)}, v[28:29]')
        for r in range(8): p(f'v_exp_f32 v{B+r}, v{B+r}')
        p('s_nop 0')
        for r in range(0, 8, 2): p(f'v_pk_add_f32 {pk(B+r)}, {pk(B+r)}, 1.0 op_sel_hi:[1,0]')
        for r in range(8): p(f'v_rcp_f32 v{B+r}, v{B+r}')
        p('s_nop 0')
        for r in range(0, 8, 2): p(f'v_pk_mul_f32 {pk(c+r)}, {pk(c+r)}, {pk(B+r)}')
    vSs = 64
    for i in range(32): p(f'v_accvgpr_read_b32 v{vSs+i}, a{i}')
    E = 192 if cfg.sent else 160
    def xunpack():
        for b in range(4):
            for q in range(4): p(f'v_lshlrev_b32 v{E+8*b+2*q}, 16, v{vX+4*b+q}\nv_and_b32 v{E+8*b+2*q+1}, s{sT+3}, v{vX+4*b+q}')
    if cfg.sent:
        xunpack()
        ts.stamp(p)
        p('C_chk:\ns_waitcnt vmcnt(0)\ns_mov_b32 s47, 0')
        for q_ in range(3):
            r = RS[q_]
            p(f'v_max3_u32 v32, v{r}, v{r+1}, v{r+2}')
            for k in range(3, 15, 2): p(f'v_max3_u32 v32, v32, v{r+k}, v{r+k+1}')
            p(f'v_max_u32 v32, v32, v{r+15}\nv_cmp_eq_u32 vcc, -1, v32\ns_nop 1\ns_cbranch_vccz C_ok{q_}')
            p.cond(True)
            p(f's_sleep {cfg.slp2}\ns_mov_b32 s47, 1'); recv_s(q_)
            p.cond(False)
            p(f'C_ok{q_}:')
        p('s_cmp_lg_u32 s47, 0\ns_cbranch_scc1 C_chk')
        ts.stamp(p)
        src = RS
    else:
        p('s_waitcnt vmcnt(0)\ns_barrier')
        ts.stamp(p)
        p(f's_cmp_eq_u32 s{sW}, 1\ns_cbranch_scc0 C_got{SFX}')
        p.cond(True)
        p(f'buffer_store_dwordx2 v[2:3], v{vFS}, s[{S_FL}:{S_FL+3}], 0 offen sc1')
        poll('C_poll' + SFX, vFQ, 'C_got' + SFX)
        p.cond(False)
        p(f'C_got{SFX}:\ns_barrier')
        ts.stamp(p)
        recv(1)
        xunpack()
        src = RD
    for i in (0, 2, 1, 3): addparts(vSs + 8*i, i, src)
    for b in range(4):
        c0 = vSs + 4*b; c1 = vSs + 16 + 4*b; o = 112 + 4*b
        for r in (0, 2):
            p(f'v_pk_mul_f32 {pk(c0+r)}, {pk(c0+r)}, {pk(cC+4*b+r)}\nv_pk_mul_f32 {pk(c1+r)}, {pk(c1+r)}, {pk(cC+16+4*b+r)}')
        p('s_nop 0')
        for r in range(4): p(f'v_permlane16_swap_b32 v{c0+r}, v{c1+r}')
        p('s_nop 0')
        for q in range(4):
            c = (c0, c0+2, c1, c1+2)[q]
            p(f'v_pk_add_f32 {pk(E+8*b+2*q)}, {pk(E+8*b+2*q)}, {pk(c)}')
        for q in range(4): p(f'v_cvt_pk_bf16_f32 v{o+q}, v{E+8*b+2*q}, v{E+8*b+2*q+1}')
        p(f'buffer_store_dwordx4 v[{o}:{o+3}], v{vO+b}, s[{S_OUT}:{S_OUT+3}], 0 offen {cfg.osc}')
    ts.stamp(p)
    if cfg.ts: p('s_waitcnt vmcnt(0)')
    ts.stamp(p)
    ts.dump(p, pWS)
    p('s_endpgm')
    autowait(p)
    if not cfg.aab: check(p, 'main')

    z = Prog(); main = p; p = z
    p('A_slow:')
    p('s_waitcnt vmcnt(0) lgkmcnt(0)')
    srd(p, S_K, pK, 0, 2 << 20); srd(p, S_V, pV, 0, 2 << 20)
    zK, zD, zV = 13, 14, 21
    zKV, zN = sT, sT+1
    p(f's_lshr_b32 s{zKV}, s{sCB}, 3\ns_lshl_b32 s{zKV}, s{zKV}, 19\ns_add_u32 s{zKV}, s{zKV}, {1536*256}')
    p(f'v_and_b32 v{zK}, 31, v1\nv_lshlrev_b32 v{zK}, 8, v{zK}\nv_lshrrev_b32 v36, 5, v1\nv_lshl_add_u32 v{zK}, v36, 4, v{zK}')
    p(f'v_lshrrev_b32 v36, 4, v1\nv_and_b32 v37, 15, v1\nv_lshlrev_b32 v38, 2, v36\nv_xor_b32 v37, v37, v38\nv_lshlrev_b32 v36, 8, v36\nv_lshl_add_u32 v{zD}, v37, 4, v36\nv_add_u32 v{zD+1}, 0x1000, v{zD}')
    t = 36
    p(f'v_lshrrev_b32 v{t}, 5, v1\nv_lshlrev_b32 v{t}, 2, v{t}\nv_bfe_u32 v{t+1}, v1, 2, 2\nv_add_u32 v{t}, v{t}, v{t+1}\nv_lshlrev_b32 v{t}, 8, v{t}')
    p(f'v_bfe_u32 v{t+2}, v1, 4, 1\nv_lshlrev_b32 v{t+2}, 5, v{t+2}\nv_and_b32 v{t+3}, 3, v1\nv_lshlrev_b32 v{t+3}, 3, v{t+3}\nv_add3_u32 v{t}, v{t}, v{t+2}, v{t+3}')
    p(f's_lshl_b32 s{sT+2}, s{sW}, 13\ns_add_u32 s{sT+2}, s{sT+2}, 0x10000\nv_add_u32 v{t}, s{sT+2}, v{t}')
    for dt in range(4): p(f'v_xor_b32 v{t+2}, {dt}, v{t+1}\nv_lshl_add_u32 v{zV+dt}, v{t+2}, 6, v{t}')
    def kglob():
        for s in range(8): p(f'buffer_load_dwordx4 a[{aF+4*s}:{aF+4*s+3}], v{zK}, s[{S_K}:{S_K+3}], s{zN} offen offset:{32*s}')
    p(f'v_mov_b32 v32, 0xff800000\nv_mov_b32 v34, 0xff800000\ns_mov_b32 s{zN}, s{zKV}\ns_mov_b32 s{sT+3}, 16')
    p.loop_begin('Z1_loop', 16, align=False)
    kglob()
    for s in range(8):
        for qt in range(2): p(qk(0, s, qt, zero))
    p('s_nop 7\ns_nop 3')
    rowmax(0, False)
    p(f's_add_u32 s{zN}, s{zN}, 8192\ns_sub_u32 s{sT+3}, s{sT+3}, 1\ns_cmp_lg_u32 s{sT+3}, 0\ns_cbranch_scc1 Z1_loop')
    p.loop_end()
    set_negm()
    for i in range(128): p(f'v_accvgpr_write_b32 a{i}, 0')
    for i in range(4): p(f'v_mov_b32 v{vL+i}, 0')
    p(f's_mov_b32 s{zN}, s{zKV}\ns_mov_b32 s{sT+3}, 16')
    p.loop_begin('Z2_loop', 16, align=False)
    kglob()
    for j in range(8):
        if j % 4 == 0: p(f's_add_u32 m0, s{sT+2}, {1024*j}\ns_nop 0')
        p(f'buffer_load_dwordx4 v{zD + j//4}, s[{S_V}:{S_V+3}], s{zN} offen offset:{1024*(j%4)} lds')
    for s in range(8):
        for qt in range(2): p(qk(0, s, qt, negm))
    p('s_nop 7\ns_nop 3')
    for ops in softmax_ops(0):
        for o in ops: p(o)
    p('s_waitcnt vmcnt(0)')
    for f in range(8):
        for r in vread(0, f, None, base=zV, off0=0): emit(p, r)
    for f in range(8):
        for qt in range(2): p(pv(0, f, qt))
    p(f's_add_u32 s{zN}, s{zN}, 8192\ns_sub_u32 s{sT+3}, s{sT+3}, 1\ns_cmp_lg_u32 s{sT+3}, 0\ns_cbranch_scc1 Z2_loop')
    p.loop_end()
    p('s_nop 7\ns_nop 7')
    for qt in range(2):
        l = vL + 2*qt
        p(f'v_add_f32 v{l}, v{l}, v{l+1}\nv_mov_b32 v{l+1}, v{l}\ns_nop 1\nv_permlane32_swap_b32 v{l}, v{l+1}\ns_nop 1\nv_add_f32 v{l}, v{l}, v{l+1}')
    p('s_branch A_done')
    autowait(z); check(z, 'slow')
    pre_, c_ = main.text().split(';SPLIT')
    return pre_, c_, z.text(), sJ

def main():
    cfg = Cfg()
    cfg.ts = 1; cfg.xmap = 'b'; cfg.stag = 0; cfg.P = 4; cfg.late1 = 1; cfg.w0 = 0; cfg.cw0 = 8
    cfg.d0 = 0; cfg.dstr = 4; cfg.a0 = 1; cfg.astr = 2; cfg.ad = 3; cfg.PF = 3; cfg.cap = 2
    cfg.cad = 5; cfg.cdstr = 4; cfg.cP = 4; cfg.thr = 30; cfg.tail0 = 4; cfg.sum = 'add'; cfg.hbar = 2; cfg.t1e = 1; cfg.t0e = 0; cfg.npre = 2; cfg.c3 = 0; cfg.xat = -1; cfg.c3l = 3; cfg.c3s = 2; cfg.wsc = ''; cfg.gsc = ''; cfg.cdel = 0; cfg.ccx = 0; cfg.xbar = 90; cfg.fs1 = 6; cfg.xe = 0; cfg.xchk = 230; cfg.xfl = 60; cfg.xt = 0; cfg.fs = 1; cfg.oes = 2; cfg.sent = 0; cfg.slp2 = 4; cfg.trk = 2; cfg.kvp = 1; cfg.trk0 = 1; cfg.pf4 = 0; cfg.pf4n = 8; cfg.pf3 = 0; cfg.aab = 0; cfg.e64 = ''; cfg.xs = 0; cfg.xl = 1; cfg.cpf2 = 2; cfg.loc = 0; cfg.fremote = 0; cfg.ox = 0; cfg.ramp = 20; cfg.lag = 3; cfg.vmc = 8; cfg.acap = 24; cfg.amax = 40; cfg.wb = 0; cfg.opad = 256; cfg.xpad = 256; cfg.hpad = 0; cfg.oe = 3; cfg.de = 3; cfg.tms = 6; cfg.fl = 128; cfg.dchk = 1.65; cfg.dbg = 0; cfg.cpf = 1; cfg.tlb = 0; cfg.osc = 'sc1'; cfg.slp = 1; cfg.late0 = 2
    for a in sys.argv[2:]:
        k, v = a.split('='); setattr(cfg, k, int(v) if v.lstrip('-').isdigit() else float(v) if v.replace('.','').isdigit() else v)
    kn = NAME + '_kernel'
    hdr = (f'; opad={cfg.opad} hoff={WS_H} xpad={cfg.xpad} hpad={cfg.hpad} ooff={WS_O}\n; @launch grid=(256,1,1) block=(256,1,1) lds={LDS_TOT}\n'
           '.amdgcn_target "amdgcn-amd-amdhsa--gfx950"\n')
    if cfg.fs:
        a, c8, z, sJ = gen(cfg, 8); a6, c6, _, _ = gen(cfg, 6)
        assert a == a6
        body = a + f'  s_bitcmp1_b32 s{sJ}, 0\n  s_cbranch_scc1 C_short\n' + c8 + '\nC_short:\n' + c6
    else:
        a, c7, z, _ = gen(cfg, 7); body = a + c7
    s = hdr + kernel_head(kn) + body + '\nK_end:\n  s_endpgm\n' + z + '\nK_last:\n' + kernel_desc(kn, 512, 256)
    open(sys.argv[1], 'w').write(s)
if __name__ == '__main__': main()
```

```python
import sys, struct, math
from dsl import *
from gen2 import (f2u, srd, kernel_head, kernel_desc, emit, interleave, spread, m0gap, fix_m0, chk_tail, Cfg)

NAME = 'recurrent_scan__sliding_block_cached__geglu_ffn__prompt'
WS_XN = 0
WS_O  = 5 << 20
WS_H  = 23 << 20
WS_G  = 36 << 20
WS_FL = 40 << 20
WS_ST = 41 << 20
WS_TS = 48 << 20
WS_P  = 64 << 20
HS = 22528; NHS = 7
LDS_SCR = NHS*HS
LDS_TOT = 163840

class TS:
    def __init__(self, on): self.on = on; self.n = 0
    def text(self, grp):
        if not self.on & grp or self.n >= 14: return None
        s = 88 + self.n; self.n += 1
        clk = 's_memtime' if self.on & 8 else 's_memrealtime'
        return f's_waitcnt lgkmcnt(0)\n{clk} s[4:5]\ns_waitcnt lgkmcnt(0)\ns_mov_b32 s{s}, s4'
    def stamp(self, p, grp=1):
        t = self.text(grp)
        if t: p(t)
    def old(self, p):
        if not self.on: return
        s = 88 + self.n; self.n += 1;
        if s >= 102: return
        p(f's_waitcnt lgkmcnt(0)\ns_memrealtime s[4:5]\ns_waitcnt lgkmcnt(0)\ns_mov_b32 s{s}, s4')
    def dump(self, p, wsptr):
        if not self.on: return
        if self.on & 16:
            p('s_load_dwordx2 s[12:13], s[0:1], 80\ns_waitcnt lgkmcnt(0)\ns_mov_b32 s14, 256\ns_mov_b32 s15, 0x20000\nv_mov_b32 v8, 0\ns_mov_b64 exec, 1')
            for i in range(min(self.n, 14)):
                p(f's_sub_u32 s4, s{88+i}, s6\nv_mov_b32 v4, s4\nbuffer_atomic_smax v4, v8, s[12:15], 0 offen offset:{8+4*i}\ns_nop 1')
            return
        srd(p, 12, wsptr, WS_TS, 1 << 20)
        p('s_lshl_b32 s3, s2, 8\ns_lshl_b32 s4, s36, 6\ns_add_u32 s3, s3, s4\nv_mov_b32 v8, s3')
        p('s_getreg_b32 s4, hwreg(HW_REG_XCC_ID, 0, 4)\nv_mov_b32 v4, s4\nbuffer_store_dword v4, v8, s[12:15], 0 offen offset:60\ns_nop 1')
        for i in range(min(self.n, 14)):
            p(f'v_mov_b32 v4, s{88+i}\nbuffer_store_dword v4, v8, s[12:15], 0 offen offset:{4*i}\ns_nop 1')

def gen(cfg, ND):
    SFX = f'_{ND}'
    OST = 131072 + cfg.opad; XST = 32768 + cfg.xpad; HST = 112*1024 + cfg.hpad
    p = Prog(); ts = TS(cfg.ts)
    SC = ' sc1'; LS = '' if cfg.loc else ' sc1'
    assert cfg.xmap == 'c' or not cfg.loc
    pX, pK, pV, pWQ, pWO, pWG, pWU, pWD, pOUT, pDBG, pWS = 64, 66, 68, 70, 72, 76, 78, 80, 82, 84, 86
    S_W, S_Q, S_XN, S_H, S_K, S_V, S_O = 8, 12, 16, 20, 24, 28, 32
    S_FL, S_DB = 56, 60
    sW, sRB, sCB, sKW, sKQ, sKA, sCNT = 36, 37, 38, 39, 40, 41, 42
    sMW, sMQ, sRD, sDL, sLEFT, sLEFA, sRW, sRQ = 43, 44, 45, 46, 47, 48, 49, 3
    sT = 50
    p('K_first:\ns_cmp_ge_u32 s2, 256\ns_cbranch_scc1 K_end')
    p('s_load_dwordx16 s[64:79], s[0:1], 0\ns_load_dwordx8 s[80:87], s[0:1], 64')
    p(f'v_lshrrev_b32 v2, 6, v0\nv_and_b32 v1, 63, v0\nv_readfirstlane_b32 s{sW}, v2')
    p(f's_and_b32 s{sT}, s2, 7\ns_lshr_b32 s{sT+1}, s2, 3')
    if cfg.xmap == 'c':
        p(f's_and_b32 s{sRB}, s{sT}, 1\ns_lshl_b32 s{sRB}, s{sRB}, 2\ns_and_b32 s{sT+2}, s{sT+1}, 3\ns_add_u32 s{sRB}, s{sRB}, s{sT+2}')
        p(f's_lshr_b32 s{sCB}, s{sT}, 1\ns_lshl_b32 s{sCB}, s{sCB}, 3\ns_lshr_b32 s{sT+2}, s{sT+1}, 2\ns_add_u32 s{sCB}, s{sCB}, s{sT+2}')
    else:
        p(f's_and_b32 s{sRB}, s{sT+1}, 7\ns_lshl_b32 s{sCB}, s{sT}, 2\ns_lshr_b32 s{sT+2}, s{sT+1}, 3\ns_add_u32 s{sCB}, s{sCB}, s{sT+2}')
    vAct, vDW, vDQ, vTr, vTq, vT = 4, 8, 15, 19, 20, 28
    vA, RA = 32, 8
    vB, RB = 64, 4
    def acc(t, b):
        if t < 16: c = (t*4+b)*4; return f'a[{c}:{c+3}]'
        c = 160 + ((t-16)*4+b)*4; return f'v[{c}:{c+3}]'
    def accr(t, b, r):
        if t < 16: return f'a{(t*4+b)*4+r}'
        return f'v{160+((t-16)*4+b)*4+r}'
    vLX, vLO, vLS = 128, 129, 130
    t = 132
    p(f's_lshl_b32 s{sT}, s{sRB}, 8\ns_lshl_b32 s{sT+1}, s{sCB}, 3\ns_add_u32 s{sT}, s{sT}, s{sT+1}\ns_lshl_b32 s{sT}, s{sT}, 11\ns_lshl_b32 s{sT+1}, s{sW}, 9\ns_add_u32 s{sT}, s{sT}, s{sT+1}')
    p(f'v_and_b32 v{t}, 7, v1\nv_bfe_u32 v{t+1}, v1, 3, 1\nv_lshrrev_b32 v{t+2}, 4, v1')
    p(f'v_lshlrev_b32 v{t+3}, 11, v{t}\nv_lshlrev_b32 v{t+4}, 8, v{t+1}\nv_lshlrev_b32 v{t+5}, 4, v{t+2}\nv_add3_u32 v{t+3}, v{t+3}, v{t+4}, v{t+5}\nv_add_u32 v{vLX}, s{sT}, v{t+3}')
    p(f's_lshl_b32 s{sT}, s{sRB}, 4\ns_lshr_b32 s{sT+1}, s{sCB}, 1\ns_add_u32 s{sT}, s{sT}, s{sT+1}\ns_mul_i32 s{sT}, s{sT}, {XST}\ns_lshl_b32 s{sT+1}, s{sW}, 13\ns_add_u32 s{sT}, s{sT}, s{sT+1}')
    p(f's_and_b32 s{sT+1}, s{sCB}, 1\ns_lshl_b32 s{sT+1}, s{sT+1}, 7\ns_add_u32 s{sT}, s{sT}, s{sT+1}')
    p(f'v_lshlrev_b32 v{t+3}, 4, v{t}\nv_lshlrev_b32 v{t+4}, 12, v{t+1}\nv_lshlrev_b32 v{t+5}, 8, v{t+2}\nv_add3_u32 v{t+4}, v{t+3}, v{t+4}, v{t+5}\nv_add_u32 v{vLO}, s{sT}, v{t+4}')
    p(f'v_add_u32 v{vLS}, {LDS_SCR}, v{t+3}\nv_lshl_add_u32 v{vLS+1}, v2, 2, v{vLS}')
    p(f's_and_b32 s{sT}, s{sW}, 1\ns_mul_i32 s{sT}, s{sT}, {32*7168}\ns_mul_i32 s{sT+1}, s{sCB}, 224\ns_add_u32 s{sT}, s{sT}, s{sT+1}')
    p(f's_mov_b32 s{sT+1}, 4682\ns_mov_b32 s{sT+2}, 7168')
    for n in range(448): assert (n*4682) >> 16 == n // 14
    t = 32
    for pc in range(7):
        p(f'v_add_u32 v{t}, {64*pc}, v1')
        p(f'v_mul_u32_u24 v{t+1}, s{sT+1}, v{t}\nv_lshrrev_b32 v{t+1}, 16, v{t+1}')
        p(f'v_mul_u32_u24 v{t+2}, 14, v{t+1}\nv_sub_u32 v{t+2}, v{t}, v{t+2}')
        p(f'v_and_b32 v{t+3}, 0x13, v{t+1}\nv_and_b32 v{t+4}, 4, v{t+1}\nv_lshl_or_b32 v{t+3}, v{t+4}, 1, v{t+3}')
        p(f'v_bfe_u32 v{t+4}, v{t+1}, 3, 1\nv_lshl_or_b32 v{t+3}, v{t+4}, 2, v{t+3}')
        p(f'v_mul_u32_u24 v{t+3}, s{sT+2}, v{t+3}\nv_lshlrev_b32 v{t+2}, 4, v{t+2}\nv_add3_u32 v{vDW+pc}, v{t+3}, v{t+2}, s{sT}')
        if pc % 4: p(f'v_subrev_u32 v{vDW+pc}, {1024*(pc%4)}, v{vDW+pc}')
    p(f's_lshl_b32 s{sT}, s{sW}, 17\ns_lshl_b32 s{sT+1}, s{sCB}, 8\ns_add_u32 s{sT}, s{sT}, s{sT+1}')
    p(f'v_lshrrev_b32 v{t}, 4, v1\nv_and_b32 v{t+1}, 15, v1\nv_lshlrev_b32 v{t+2}, 1, v{t}\nv_xor_b32 v{t+1}, v{t+1}, v{t+2}')
    p(f'v_lshlrev_b32 v{t}, 13, v{t}\nv_add_u32 v{t}, s{sT}, v{t}')
    for j in range(4):
        p(f'v_xor_b32 v{t+2}, {8*(j>>1)}, v{t+1}\nv_lshl_add_u32 v{t+2}, v{t+2}, 4, v{t}')
        p(f'v_add_u32 v{vDQ+j}, {j*(4*8192-1024)}, v{t+2}')
    p(f's_and_b32 s{sT}, s{sW}, 1\ns_lshr_b32 s{sT+1}, s{sW}, 1')
    p(f's_mul_i32 s{sMW}, s{sT}, {HS}\ns_mul_i32 s{sRW}, s{sT+1}, 7168')
    p(f's_mul_i32 s{sMQ}, s{sT+1}, {HS}\ns_lshl_b32 s{sRQ}, s{sT}, 12\ns_add_u32 s{sRQ}, s{sRQ}, 14336')
    KW, KQ, KA, NT = 64*7168, 64*8192, 2048, 16
    p(f's_mov_b32 s{sKW}, 0\ns_mov_b32 s{sKQ}, 0\ns_mov_b32 s{sKA}, {2*KA}')
    p(f's_mov_b32 s{sRD}, 0')
    sNO = 6
    vRX = 140; RAWL = 4*HS
    p(f's_lshl_b32 s{sT}, s{sRB}, 8\ns_lshl_b32 s{sT+1}, s{sW}, 6\ns_add_u32 s{sT+5}, s{sT}, s{sT+1}\ns_lshl_b32 s{sT}, s{sT+5}, 11')
    p(f'v_and_b32 v32, 15, v1\nv_lshrrev_b32 v34, 4, v1')
    for j in range(4):
        p(f'v_add_u32 v33, {4*j}, v34\nv_xor_b32 v35, v33, v32\nv_lshlrev_b32 v33, 11, v33\nv_lshl_add_u32 v33, v35, 4, v33\ns_sub_u32 s{sT+1}, s{sT}, {1024*j}\nv_add_u32 v{vRX+j}, s{sT+1}, v33')
    vSR = 139
    p(f's_lshl_b32 s{sT}, s{sT+5}, 4\nv_lshl_add_u32 v{vSR}, v32, 4, s{sT}')
    p('s_waitcnt lgkmcnt(0)')
    ts.stamp(p, 33)
    S_X0 = S_H
    srd(p, S_X0, pX, 0, 4 << 20)
    vLD = 144
    for i in range(4): p(f'buffer_load_dwordx4 v[{vLD+4*i}:{vLD+4*i+3}], v{vLX}, s[{S_X0}:{S_X0+3}], 0 offen offset:{64*i}')
    def raw(q):
        p(f's_lshl_b32 s{sT}, s{sW}, 14\ns_add_u32 m0, s{sT}, {RAWL + 4096*q}\ns_mov_b32 s{sT}, {32768*q}')
        for j in range(4): p(f'buffer_load_dwordx4 v{vRX+j}, s[{S_X0}:{S_X0+3}], s{sT} offen offset:{1024*j} lds', ('R', 1, 0, 0))
    srd(p, S_DB, pDBG, 0, 256)
    p(f's_lshl_b32 s{sT}, s2, 2\ns_add_u32 s{sT}, s{sT}, s{sW}\ns_cmp_eq_u32 s{sT}, 1\ns_cbranch_scc0 L_no_nonce')
    p.cond(True)
    p(f's_memrealtime s[{sNO}:{sNO+1}]\nv_mov_b32 v34, 0\ns_waitcnt lgkmcnt(0)\ns_and_b32 s{sNO}, s{sNO}, 0xffffffc0\ns_or_b32 s{sNO}, s{sNO}, 1\ns_getreg_b32 s{sT}, hwreg(HW_REG_XCC_ID, 0, 1)\ns_lshl_b32 s{sT}, s{sT}, 5\ns_or_b32 s{sNO}, s{sNO}, s{sT}\nv_mov_b32 v32, s{sNO}\nv_mov_b32 v33, s{sNO+1}')
    p(f'buffer_store_dwordx2 v[32:33], v34, s[{S_DB}:{S_DB+3}], 0 offen sc1')
    p.cond(False)
    p('L_no_nonce:')
    p(f's_cmp_ge_u32 s{sW}, 2\ns_cselect_b32 s{S_W}, s{pWU}, s{pWG}\ns_cselect_b32 s{S_W+1}, s{pWU+1}, s{pWG+1}')
    p(f's_mov_b32 s{S_W+2}, {1024*7168:#x}\ns_mov_b32 s{S_W+3}, 0x20000')
    srd(p, S_Q, pWQ, 0, 8 << 20)
    def adv_w():
        return [f's_add_u32 s{sKW}, s{sKW}, {KW}',
                f's_add_u32 s{sMW}, s{sMW}, {2*HS}', f's_cmp_ge_u32 s{sMW}, {NHS*HS}\ns_cselect_b32 s{sT}, {NHS*HS}, 0\ns_sub_u32 s{sMW}, s{sMW}, s{sT}']
    def adv_q():
        return [f's_add_u32 s{sKQ}, s{sKQ}, {KQ}',
                f's_add_u32 s{sMQ}, s{sMQ}, {2*HS}', f's_cmp_ge_u32 s{sMQ}, {NHS*HS}\ns_cselect_b32 s{sT}, {NHS*HS}, 0\ns_sub_u32 s{sMQ}, s{sMQ}, s{sT}']
    def adv_a():
        return [f's_add_u32 s{sKA}, s{sKA}, {KA}',
                f's_cmp_eq_u32 s{sKA}, {NT*KA}\ns_cselect_b32 s{S_XN+2}, 0, s{S_XN+2}']
    def adv_rd():
        return [f's_add_u32 s{sRD}, s{sRD}, {HS}', f's_mov_b32 s{sDL}, {HS}',
                f's_cmp_eq_u32 s{sRD}, {NHS*HS}\ns_cselect_b32 s{sDL}, {-(NHS-1)*HS}, s{sDL}\ns_cselect_b32 s{sRD}, 0, s{sRD}']
    def dma(pc, tile, stride):
        tag = ('W', NHS, 2*tile + 1, 2*stride)
        if pc < 7: return (f'buffer_load_dwordx4 v{vDW+pc}, s[{S_W}:{S_W+3}], s{sKW} offen offset:{1024*(pc%4)} {cfg.gsc} lds', tag)
        return (f'buffer_load_dwordx4 v{vDQ+pc-7}, s[{S_Q}:{S_Q+3}], s{sKQ} offen offset:{1024*(pc-7)} {cfg.gsc} lds', tag)
    def m0set(pc):
        if pc == 0: return [f's_add_u32 m0, s{sMW}, s{sRW}']
        if pc == 4: return [f's_add_u32 m0, m0, 4096']
        if pc == 7: return [f's_add_u32 m0, s{sMQ}, s{sRQ}']
        return []
    def dma_tile(tile):
        for d in range(11):
            for x in m0set(d): p(x)
            if m0set(d): p('s_nop 0')
            emit(p, dma(d, tile, 0))
            if d == 6:
                for x in adv_w(): p(x)
            if d == 10:
                for x in adv_q(): p(x)
    if cfg.t0e & 1: dma_tile(0)
    if cfg.t0e & 2:
        for q in range(4): raw(q)
    srd(p, S_FL, pWS, WS_FL, 2304*128)
    srd(p, S_XN, pWS, WS_XN, 5 << 20)
    vP1, vP2, vPD = 136, 137, 138
    def code_srd(q, lbl):
        return [f's_getpc_b64 s[{q}:{q+1}]\n{lbl}:\ns_sub_u32 s{q}, s{q}, {lbl}-K_first\ns_subb_u32 s{q+1}, s{q+1}, 0', f's_mov_b32 s{q+2}, K_last-K_first', f's_mov_b32 s{q+3}, 0x20000']
    def code_pf(q, dst):
        return [f'buffer_load_dword v{dst}, v0, s[{q}:{q+3}], 0 offen ;pf']
    for x in code_srd(S_O, 'L_pc1'): p(x)
    p(f's_lshr_b32 s{sT}, s2, 3\ns_lshl_b32 s{sT}, s{sT}, 2\ns_add_u32 s{sT}, s{sT}, s{sW}\ns_lshl_b32 s{sT}, s{sT}, 10\nv_and_b32 v32, 15, v1\nv_mov_b32 v44, v0\nv_lshl_add_u32 v0, v32, 6, s{sT}')
    for x in code_pf(S_O, vPD): p(x)
    p(f's_lshl_b32 s{sT}, s{sRB}, 4\ns_lshl_b32 s{sT+1}, s{sW}, 2\ns_add_u32 s{sT}, s{sT}, s{sT+1}\ns_mul_i32 s{sT}, s{sT}, {XST}')
    p(f'v_lshlrev_b32 v{vT}, 4, v1\nv_add_u32 v{vAct}, s{sT}, v{vT}')
    for b in range(1, 4): p(f'v_add_u32 v{vAct+b}, {b*XST:#x}, v{vAct}')
    t = 32
    p(f'v_lshrrev_b32 v{t}, 5, v1\nv_lshlrev_b32 v{t}, 4, v{t}\nv_bfe_u32 v{t+1}, v1, 4, 1\nv_lshlrev_b32 v{t+1}, 2, v{t+1}\nv_bfe_u32 v{t+2}, v1, 2, 2')
    p(f'v_add3_u32 v{t}, v{t}, v{t+1}, v{t+2}\nv_mul_u32_u24 v{t}, 224, v{t}\nv_and_b32 v{t+3}, 3, v1\nv_lshlrev_b32 v{t+3}, 3, v{t+3}\nv_add_u32 v{vTr}, v{t}, v{t+3}')
    p(f'v_or_b32 v{t+1}, v{t+1}, v{t+2}')
    p(f'v_lshrrev_b32 v{t}, 4, v1\nv_lshlrev_b32 v{t}, 3, v{t}\nv_add_u32 v{t}, v{t}, v{t+2}\nv_lshlrev_b32 v{t}, 8, v{t}')
    p(f'v_add_u32 v{t}, 14336, v{t}\nv_add_u32 v{t}, v{t}, v{t+3}')
    for tt in range(8):
        p(f'v_xor_b32 v{t+2}, {tt}, v{t+1}\nv_lshl_add_u32 v{vTq+tt}, v{t+2}, 5, v{t}')
    if cfg.trk:
        p(f'v_lshrrev_b32 v32, 3, v1\nv_and_b32 v33, 7, v1\ns_lshl_b32 s{sT}, s{sRB}, 3\ns_add_u32 s{sT}, s{sT}, {64*cfg.trk}\nv_add_u32 v32, s{sT}, v32\nv_lshlrev_b32 v35, 6, v33')
        p(f's_mul_i32 s{sT+1}, s{sCB}, 224\ns_add_u32 s{sT+2}, s{sT+1}, {224+127}\ns_and_b32 s{sT+1}, s{sT+1}, -128\ns_and_b32 s{sT+2}, s{sT+2}, -128\ns_sub_u32 s{sT+2}, s{sT+2}, s{sT+1}')
        p(f'v_mul_u32_u24 v34, 7168, v32\nv_add3_u32 v{vP1}, v34, v35, s{sT+1}')
        p(f'v_lshlrev_b32 v34, 13, v32\ns_lshl_b32 s{sT+1}, s{sCB}, 8\nv_add3_u32 v{vP2}, v34, v35, s{sT+1}')
        p(f'v_cmp_gt_u32 vcc, s{sT+2}, v35\ns_and_b32 s{sT}, s{sW}, 1\ns_cmp_eq_u32 s{sT}, 0\ns_cselect_b64 vcc, vcc, 0\nv_mov_b32 v34, 0xf0000000\ns_nop 1\nv_cndmask_b32 v{vP1}, v34, v{vP1}, vcc')
        p(f'v_cmp_gt_u32 vcc, 4, v33\ns_cmp_eq_u32 s{sW}, 1\ns_cselect_b64 vcc, vcc, 0\ns_nop 1\nv_cndmask_b32 v{vP2}, v34, v{vP2}, vcc')
    def touch_tiles(tiles):
        p(f'v_subrev_u32 v34, {64*cfg.trk*7168}, v{vP1}\nv_subrev_u32 v35, {64*cfg.trk*8192}, v{vP2}')
        for tl in tiles:
            p(f's_mov_b32 s{sT}, {tl*KW}\ns_mov_b32 s{sT+1}, {tl*KQ}')
            p(f'buffer_load_dword v{vPD}, v34, s[{S_W}:{S_W+3}], s{sT} offen ;pf\nbuffer_load_dword v{vPD}, v35, s[{S_Q}:{S_Q+3}], s{sT+1} offen ;pf')
    if cfg.trk: touch_tiles(([] if cfg.t0e & 1 else [0]) + ([1] if cfg.t1e else []))
    ts.stamp(p, 32)
    X = 160; sM = sT + 4
    p(f's_mov_b32 s{sM}, 0xffff0000')
    p(f's_lshl_b32 s{sT}, s{sRB}, 5\ns_add_u32 s{sT+1}, s{sT}, s{sCB}\ns_lshl_b32 s{sT+1}, s{sT+1}, 7\nv_mov_b32 v45, s{sT+1}')
    p(f's_lshl_b32 s{sT+3}, s{sT+1}, 2\ns_lshl_b32 s{sT+2}, s{sW}, 7\ns_add_u32 s{sT+3}, s{sT+3}, s{sT+2}\ns_add_u32 s{sT+3}, s{sT+3}, {1280*128}\nv_mov_b32 v31, s{sT+3}')
    p(f's_lshl_b32 s{sT+2}, s{sW}, 3\ns_add_u32 s{sT}, s{sT}, s{sT+2}\ns_lshl_b32 s{sT}, s{sT}, 9\ns_add_u32 s{sT}, s{sT}, {1280*128}\nv_and_b32 v30, 31, v1\nv_lshl_add_u32 v30, v30, 7, s{sT}')
    p(f'v_lshl_add_u32 v46, v1, 4, v45\nv_cmp_gt_u32 vcc, 8, v1\nv_mov_b32 v47, -1\ns_nop 0\nv_cndmask_b32 v46, v47, v46, vcc\nv_mov_b32 v44, 0')
    for i in range(16): p(f'v_lshlrev_b32 v{X+2*i}, 16, v{vLD+i}\nv_and_b32 v{X+2*i+1}, s{sM}, v{vLD+i}')
    def red(v, tt, off):
        p(f's_nop 1\nv_add_f32_dpp v{v}, v{v}, v{v} row_ror:8 row_mask:0xf bank_mask:0xf')
        p(f'v_mov_b32 v{tt}, v{v}\ns_nop 1\nv_permlane16_swap_b32 v{v}, v{tt}\ns_nop 1\nv_add_f32 v{v}, v{v}, v{tt}')
        p(f'v_mov_b32 v{tt}, v{v}\ns_nop 1\nv_permlane32_swap_b32 v{v}, v{tt}\ns_nop 1\nv_add_f32 v{v}, v{v}, v{tt}')
        p(f'ds_write_b32 v{vLS+1}, v{v} offset:{off}\ns_waitcnt lgkmcnt(0)\ns_barrier')
        p(f'ds_read_b128 v[40:43], v{vLS} offset:{off}')
        p(f'v_add_f32 v40, v40, v41\nv_add_f32 v42, v42, v43\nv_add_f32 v{v}, v40, v42\nv_mul_f32 v{v}, {f2u(1/1024):#x}, v{v}')
    ts.stamp(p, 32)
    p(f'buffer_load_dwordx2 v[2:3], v44, s[{S_DB}:{S_DB+3}], 0 offen sc1')
    for a in range(0, 4, 2): p(f'v_pk_add_f32 v[{32+a}:{33+a}], v[{X+a}:{X+a+1}], v[{X+4+a}:{X+5+a}]')
    for i in range(8, 32, 2): p(f'v_pk_add_f32 v[{32+i%4}:{33+i%4}], v[{32+i%4}:{33+i%4}], v[{X+i}:{X+i+1}]')
    p('v_pk_add_f32 v[32:33], v[32:33], v[34:35]\nv_add_f32 v32, v32, v33')
    red(32, 33, 0)
    p('v_mov_b32 v33, v32')
    for i in range(0, 32, 2): p(f'v_pk_add_f32 v[{X+32+i}:{X+33+i}], v[{X+i}:{X+i+1}], v[32:33] neg_lo:[0,1] neg_hi:[0,1]')
    for a in range(0, 4, 2): p(f'v_pk_mul_f32 v[{36+a}:{37+a}], v[{X+32+a}:{X+33+a}], v[{X+32+a}:{X+33+a}]')
    for i in range(4, 32, 2): p(f'v_pk_fma_f32 v[{36+i%4}:{37+i%4}], v[{X+32+i}:{X+33+i}], v[{X+32+i}:{X+33+i}], v[{36+i%4}:{37+i%4}]')
    p('v_pk_add_f32 v[36:37], v[36:37], v[38:39]\nv_add_f32 v36, v36, v37')
    red(36, 37, 128)
    def rnd(v): p(f'v_cvt_pk_bf16_f32 v{v}, v{v}, v{v}\nv_lshlrev_b32 v{v}, 16, v{v}')
    rnd(32); rnd(36)
    p(f'v_add_f32 v36, {f2u(1e-5):#x}, v36'); rnd(36)
    p('v_sqrt_f32 v36, v36\ns_nop 0'); rnd(36)
    p('v_rcp_f32 v36, v36')
    S_ST = S_V
    srd(p, S_ST, pWS, WS_ST, 2048*16)
    ts.stamp(p, 32)
    p.touch('v[2:3]')
    p('L_no_retry:')
    p(f'v_readfirstlane_b32 s{sNO}, v2\nv_readfirstlane_b32 s{sNO+1}, v3\ns_nop 0\ns_cmp_lg_u32 s{sNO}, 0\ns_cbranch_scc1 L_no_ok')
    p.cond(True)
    p(f'buffer_load_dwordx2 v[2:3], v44, s[{S_DB}:{S_DB+3}], 0 offen sc1\ns_waitcnt vmcnt(0)\ns_branch L_no_retry')
    p.cond(False)
    p('L_no_ok:')
    p(f's_cmp_eq_u32 s{sW}, 1\ns_cbranch_scc0 L_st_skip')
    p.cond(True)
    p(f'v_mov_b32 v40, v32\nv_mov_b32 v41, v36\nv_mov_b32 v42, v2\nv_mov_b32 v43, v3\nbuffer_store_dwordx4 v[40:43], v46, s[{S_ST}:{S_ST+3}], 0 offen sc1')
    p.cond(False)
    p('L_st_skip:')
    ts.stamp(p, 33)
    p('v_mov_b32 v33, v32\nv_mov_b32 v37, v36')
    if not cfg.t0e & 1: dma_tile(0)
    for i in range(16):
        if i % 4 == 0 and not cfg.t0e & 2: raw(i // 4)
        a, b = X+2*i, X+2*i+1
        p(f'v_pk_add_f32 v[{a}:{b}], v[{a}:{b}], v[32:33] neg_lo:[0,1] neg_hi:[0,1]\nv_cvt_pk_bf16_f32 v{a}, v{a}, v{b}')
        p(f'v_and_b32 v{b}, s{sM}, v{a}\nv_lshlrev_b32 v{a}, 16, v{a}')
        p(f'v_pk_mul_f32 v[{a}:{b}], v[{a}:{b}], v[36:37]\nv_cvt_pk_bf16_f32 v{vLD+i}, v{a}, v{b}')
    RC = 224
    def rec_loads():
        for b in range(4): p(f'buffer_load_dwordx4 v[{RC+4*b}:{RC+4*b+3}], v{vSR}, s[{S_ST}:{S_ST+3}], 0 offen offset:{256*b} sc1')
    rec_loads()
    xst = [(f'buffer_store_dwordx4 v[{vLD+4*i}:{vLD+4*i+3}], v{vLO}, s[{S_XN}:{S_XN+3}], 0 offen offset:{1024*i} sc1', ('Xst', 1, 0, 0)) for i in range(4)]
    if cfg.xe:
        for x in xst: emit(p, x)
    p(f'v_and_b32 v32, 15, v1\nv_lshrrev_b32 v33, 4, v1\nv_xor_b32 v33, v33, v32\nv_lshlrev_b32 v32, 8, v32\ns_lshl_b32 s{sT}, s{sW}, 14\ns_add_u32 s{sT}, s{sT}, {RAWL}\nv_add_u32 v32, s{sT}, v32')
    for u in range(4): p(f'v_xor_b32 v34, {4*u}, v33\nv_lshl_add_u32 v{36+u}, v34, 4, v32')
    p.need(('R', 1, 0, 0))
    for u in range(4):
        for b in range(4): p(f'ds_read_b128 v[{vB+16*u+4*b}:{vB+16*u+4*b+3}], v{36+u} offset:{4096*b}')
    ts.stamp(p, 32)
    p.touch(f'v[{RC}:{RC+15}]')
    ts.stamp(p, 32)
    p('L_rec_chk:')
    p(f'v_cmp_ne_u64 vcc, s[{sNO}:{sNO+1}], v[{RC+2}:{RC+3}]')
    for b in range(1, 4): p(f'v_cmp_ne_u64 s[{sT+2}:{sT+3}], s[{sNO}:{sNO+1}], v[{RC+4*b+2}:{RC+4*b+3}]\ns_nop 0\ns_or_b64 vcc, vcc, s[{sT+2}:{sT+3}]')
    p('s_cbranch_vccz L_rec_ok')
    p.cond(True)
    rec_loads(); p('s_waitcnt vmcnt(0)\ns_branch L_rec_chk')
    p.cond(False)
    p('L_rec_ok:')
    ts.stamp(p, 33)
    srd(p, S_K, pK, 0, 2 << 20); srd(p, S_V, pV, 0, 2 << 20)
    if cfg.trk: touch_tiles(range(2, cfg.trk + 2))
    if cfg.kvp:
        p(f's_lshr_b32 s{sT}, s2, 3\ns_lshl_b32 s{sT}, s{sT}, 2\ns_add_u32 s{sT}, s{sT}, s{sW}\ns_lshl_b32 s{sT}, s{sT}, 10')
        p(f's_lshr_b32 s{sT+1}, s{sCB}, 3\ns_lshl_b32 s{sT+1}, s{sT+1}, 19\ns_add_u32 s{sT}, s{sT}, s{sT+1}\ns_add_u32 s{sT}, s{sT}, {1536*256}')
        p(f'v_and_b32 v33, 15, v1\nv_lshlrev_b32 v33, 6, v33')
        p(f'buffer_load_dword v{vPD}, v33, s[{S_K}:{S_K+3}], s{sT} offen ;pf\nbuffer_load_dword v{vPD}, v33, s[{S_V}:{S_V+3}], s{sT} offen ;pf')
    vRI = 132; vMR = [128, 130, 131, 139]
    for b in range(4): p(f'v_mov_b32 v{vRI+b}, v{RC+4*b+1}\nv_mul_f32 v{vMR[b]}, v{RC+4*b}, v{RC+4*b+1}')
    NT0 = 140
    def norm(sub):
        out = []
        for b in range(4):
            for r in range(4):
                q = vB + 16*sub + 4*b + r; t0 = NT0 + 2*((4*b + r) % 2)
                out += [f'v_lshlrev_b32 v{t0}, 16, v{q}', f'v_and_b32 v{t0+1}, s{sM}, v{q}',
                        f'v_fma_f32 v{t0}, v{t0}, v{vRI+b}, -v{vMR[b]}', f'v_fma_f32 v{t0+1}, v{t0+1}, v{vRI+b}, -v{vMR[b]}',
                        f'v_cvt_pk_bf16_f32 v{q}, v{t0}, v{t0+1}']
        return out
    ts.stamp(p, 32)
    p('s_nop 0')
    def norm_pk(sub):
        for b in range(4):
            p(f'v_mov_b32 v32, v{vRI+b}\nv_mov_b32 v33, v{vRI+b}\nv_sub_f32 v34, 0, v{vMR[b]}\nv_sub_f32 v35, 0, v{vMR[b]}')
            for r in range(4):
                q = vB + 16*sub + 4*b + r
                p(f'v_lshlrev_b32 v{36+2*r}, 16, v{q}\nv_and_b32 v{37+2*r}, s{sM}, v{q}')
            for r in range(4): p(f'v_pk_fma_f32 v[{36+2*r}:{37+2*r}], v[{36+2*r}:{37+2*r}], v[32:33], v[34:35]')
            for r in range(4): p(f'v_cvt_pk_bf16_f32 v{vB + 16*sub + 4*b + r}, v{36+2*r}, v{37+2*r}')
    for sub in range(cfg.npre): norm_pk(sub)
    ts.stamp(p, 32)
    def act(sub, b):
        r = vB + 16*(sub % RB) + 4*b
        return f'buffer_load_dwordx4 v[{r}:{r+3}], v{vAct+b}, s[{S_XN}:{S_XN+3}], s{sKA} offen offset:{1024*(sub % 2)}{SC}'
    NG = 22
    def vm_sched(step, g2):
        s, t = divmod(g2, NG); sub = 2*step + s
        d = None; a = None
        if cfg.d0 <= g2 < cfg.d0 + 11*cfg.dstr and (g2 - cfg.d0) % cfg.dstr == 0: d = (g2 - cfg.d0)//cfg.dstr
        if cfg.a0 <= t < cfg.a0 + 4*cfg.astr and (t - cfg.a0) % cfg.astr == 0: a = (sub + cfg.ad, (t - cfg.a0)//cfg.astr)
        return d, a
    def flagchk(lbl, vaddr, vd):
        return [f'v_cmp_ne_u64 vcc, s[{sNO}:{sNO+1}], v[{vd}:{vd+1}]', 's_nop 0', 's_nop 0', f's_cbranch_vccz {lbl}_ok',
                f'{lbl}_spin: ;cond', f'buffer_load_dwordx2 v[{vd}:{vd+1}], v{vaddr}, s[{S_FL}:{S_FL+3}], 0 offen sc1 ;cond', 's_waitcnt vmcnt(0) ;cond',
                f'v_cmp_ne_u64 vcc, s[{sNO}:{sNO+1}], v[{vd}:{vd+1}] ;cond', 's_nop 1 ;cond', f's_cbranch_vccnz {lbl}_spin ;cond', f'{lbl}_ok:']
    def flag_store(lbl, va):
        return f's_cmp_eq_u32 s{sW}, 1\ns_cbranch_scc0 {lbl}\nbuffer_store_dwordx2 v[2:3], v{va}, s[{S_FL}:{S_FL+3}], 0 offen sc1 ;cond\n{lbl}:'
    def poll(lbl, vaddr, done):
        p(f'{lbl}:')
        p(f'buffer_load_dwordx2 v[36:37], v{vaddr}, s[{S_FL}:{S_FL+3}], 0 offen sc1\ns_waitcnt vmcnt(0)')
        p(f'v_cmp_ne_u64 vcc, s[{sNO}:{sNO+1}], v[36:37]\ns_nop 1\ns_cbranch_vccz {done}\ns_sleep {cfg.slp}\ns_branch {lbl}')
    vHF = 27
    srd(p, S_H, pWS, WS_H, 15 << 20)
    for q_ in range(4): p(f's_mov_b32 s{S_DB+q_}, s{S_O+q_}') if q_ < 3 else p(f's_mov_b32 s{S_DB+3}, 0x20000')
    p.need(('W', NHS, 1, 0))
    xflag = f'buffer_store_dwordx2 v[2:3], v31, s[{S_FL}:{S_FL+3}], 0 offen sc1'
    p('s_waitcnt lgkmcnt(0)\ns_barrier')
    P = cfg.P
    def trr(G, tile0, stride):
        step, g2 = divmod(G, 2*NG); s, t = divmod(g2, NG)
        r = vA + 4*(G % RA)
        tag = ('W', NHS, 2*(tile0 + step) + 1, 2*stride) if s == 1 else None
        if t < 14: off = (t // 7)*7168 + (t % 7)*32; a = vTr; hh = 8*224
        else: off = 0; a = vTq + t - 14; hh = 1024
        return [(f'ds_read_b64_tr_b16 v[{r}:{r+1}], v{a} offset:{off}', tag),
                (f'ds_read_b64_tr_b16 v[{r+2}:{r+3}], v{a} offset:{off + hh}', tag)]
    for G in range(P):
        for f in trr(G, 0, 0): emit(p, f)
    UN = 2
    p(f's_mov_b32 s{sDL}, 0\ns_mov_b32 s{sCNT}, {NT//UN - 1}')
    hi = {}; lo = {}
    def H(i, x): hi.setdefault(i, []).append(x)
    def L(i, x): lo.setdefault(i, []).append(x)
    NGB = 2*NG*UN
    def g_body(first):
        hi.clear(); lo.clear(); mf = []
        t0_, st_ = (0, 0) if first else (UN, UN)
        if first:
            if not cfg.xe:
                for k, x in enumerate(xst): L(2 + cfg.fs1*2*k, x)
            H(cfg.xbar, lambda p: (p.need(('Xst', 1, 0, 0)), p(xflag)))
            for d in range(11):
                g_ = 2 + cfg.fs1*(2*d + 1 if d < 4 else d + 4)
                for x in m0set(d): L(g_, x)
                if m0set(d): L(g_, m0gap)
                L(g_, dma(d, 1, 0))
                if d == 6:
                    for x in adv_w(): L(g_, x)
                if d == 10:
                    for x in adv_q(): L(g_, x)
        for G in range(NGB):
            step, g2 = divmod(G, 2*NG); s, t = divmod(g2, NG)
            sub = 2*step + s
            for b in range(4):
                ra = vA + 4*(G % RA); rb = vB + 16*(sub % RB) + 4*b
                mf.append(f'v_mfma_f32_16x16x32_bf16 {acc(t,b)}, v[{ra}:{ra+3}], v[{rb}:{rb+3}], {"0" if first and sub == 0 else acc(t,b)}')
            i0 = 4*G; Gn = G + P; tn = Gn % NG
            if Gn % (2*NG) == 0:
                stepn = Gn // (2*NG)
                def bar_(p, stepn=stepn):
                    p.need(('W', NHS, 2*(t0_ + stepn) + 1, 2*st_))
                    p('s_barrier')
                H(i0-1, bar_)
            if tn == 0: H(i0-2, f'v_add_u32 v{vTr}, s{sDL}, v{vTr}')
            r0, r1 = trr(Gn % NGB, t0_ + (Gn // NGB)*UN, st_)
            H(i0, r0); H(i0+1, r1)
            if 1 <= tn <= 8: L(i0, f'v_add_u32 v{vTq+tn-1}, s{sDL}, v{vTq+tn-1}')
            if tn == 9:
                for x in adv_rd(): L(i0, x)
            pc, a = vm_sched(step, g2)
            if a is not None and not (first and a[0] < 4):
                g_ = max(i0, cfg.xchk + 4 + 8*(4*(a[0] - 4) + a[1])) if first else i0
                assert g_ < 88*(a[0] - 4 + 3) + 60 or not first
                L(g_, act(*a))
                if a[1] == 3 and a[0] % 2 == 1:
                    for x in adv_a(): L(g_, x)
            if pc is not None:
                g_ = max(i0, 2 + cfg.fs1*(15 + pc)) if first and step == 0 else i0
                if cfg.trk and pc == 0:
                    L(g_, f'buffer_load_dword v{vPD}, v{vP1}, s[{S_W}:{S_W+3}], s{sKW} offen ;pf')
                    L(g_, f'buffer_load_dword v{vPD}, v{vP2}, s[{S_Q}:{S_Q+3}], s{sKQ} offen ;pf')
                for x in m0set(pc): L(g_, x)
                if m0set(pc): L(g_, m0gap)
                L(g_, dma(pc, t0_ + step + 2, st_))
                if pc == 6:
                    for x in adv_w(): L(g_, x)
                if pc == 10:
                    for x in adv_q(): L(g_, x)
        for x in code_pf(S_DB, vPD): L(4*(cfg.d0 + 10*cfg.dstr) + 1, x)
        if first:
            H(cfg.xchk - cfg.xfl, f'buffer_load_dwordx2 v[28:29], v30, s[{S_FL}:{S_FL+3}], 0 offen sc1')
            H(cfg.xchk, '\n'.join(flagchk('L_x', 30, 28)))
        else:
            H(len(mf)-3, f's_sub_u32 s{sCNT}, s{sCNT}, 1'); H(len(mf)-2, f's_cmp_lg_u32 s{sCNT}, 0')
            H(len(mf)-1, 's_cbranch_scc1 G_loop')
        lo_ = {k: lo[k] for k in sorted(lo)}
        fill = spread(hi, lo_, len(mf), cfg.cap, 16 if not first else 60, cost=lambda i: 1 if i % 4 == 3 else 2 if i == -1 else 0)
        fix_m0(fill, len(mf))
        if first:
            edges = [0] + [88*sub - 3 if sub == 3 or cfg.npre == 1 else (261*(sub - cfg.npre + 1))//(4 - cfg.npre) for sub in range(cfg.npre, 4)]
            for k, sub in enumerate(range(cfg.npre, 4)):
                g0, g1 = edges[k], min(edges[k+1], 88*sub - 3)
                q_ = norm(sub); per = len(q_)/(g1 - g0); due = 0.0; done = 0
                for i in range(g0, g1):
                    due += per; used = len(fill[i]) + (1 if i % 4 == 3 else 0)
                    while q_ and done < due + 2 and (used < cfg.cap or done < due - cfg.lag):
                        fill[i].append(q_.pop(0)); used += 1; done += 1
                fill[g1 - 1] += q_
        else: chk_tail(fill, len(mf))
        if first:
            for i in (43, 87, 131, 175, 219, 263, 307):
                t_ = ts.text(64)
                if t_: fill[i].append(t_)
        interleave(p, mf, fill)
    ts.stamp(p, 97)
    g_body(True)
    if cfg.xt: p.touch(f'v[{vB}:{vB+16*cfg.xt-1}]')
    ts.stamp(p, 96)
    p.loop_begin('G_loop', NT//UN - 1)
    g_body(False)
    p.loop_end()
    p('s_waitcnt vmcnt(0) lgkmcnt(0)\ns_barrier')
    ts.stamp(p, 5)

    srd(p, S_O, pWS, WS_O, 17 << 20)
    vDK, vDV, vK, vV = 8, 12, 13, 21
    sKV, sMK, sAD, sPF = 39, 40, 43, 44
    t = 128
    p(f'v_lshrrev_b32 v{t}, 4, v1\nv_and_b32 v{t+1}, 15, v1')
    p(f's_lshl_b32 s{sMK}, s{sW}, 12')
    p(f'v_lshlrev_b32 v{t+2}, 8, v{t}\nv_add_u32 v{t+2}, s{sMK}, v{t+2}')
    for j in range(4):
        p(f'v_add_u32 v{t+3}, {4*j}, v{t}\nv_xor_b32 v{t+3}, v{t+3}, v{t+1}\nv_lshl_add_u32 v{vDK+j}, v{t+3}, 4, v{t+2}')
    p(f'v_lshlrev_b32 v{t+3}, 2, v{t}\nv_xor_b32 v{t+3}, v{t+3}, v{t+1}\nv_lshl_add_u32 v{vDV}, v{t+3}, 4, v{t+2}')
    p(f's_lshr_b32 s{sKV}, s{sCB}, 3\ns_lshl_b32 s{sKV}, s{sKV}, 19\ns_add_u32 s{sKV}, s{sKV}, {1536*256}')
    def kdma(j, soff, tag): return (f'buffer_load_dwordx4 v{vDK+j}, s[{S_K}:{S_K+3}], s{soff} offen offset:{1024*j} lds', tag)
    def vdma(j, soff, tag): return (f'buffer_load_dwordx4 v{vDV}, s[{S_V}:{S_V+3}], s{soff} offen offset:{1024*j} lds', tag)
    kvq = []
    for (kind, tl) in (('K', 0), ('K', 1), ('V', 0), ('K', 2), ('V', 1)):
        g = [f's_add_u32 s{sT+5}, s{sKV}, {tl*16384}', f's_add_u32 m0, s{sMK}, {tl*16384 + (65536 if kind == "V" else 0)}', 's_nop 0']
        for j in range(4):
            kvq.append(g + [(kdma if kind == 'K' else vdma)(j, sT+5, (kind, 4, tl, 0))]); g = []
    k1 = -2*math.sqrt(2/math.pi)*math.log2(math.e); k2 = k1*0.044715
    vC = 28
    p(f'v_mov_b32 v{vC}, {f2u(k1):#x}\nv_mov_b32 v{vC+1}, {f2u(k1):#x}\nv_mov_b32 v{vC+2}, {f2u(k2):#x}\nv_mov_b32 v{vC+3}, {f2u(k2):#x}')
    p(f's_lshl_b32 s{sT+2}, s{sRB}, 4\ns_lshl_b32 s{sT+3}, s{sW}, 2\ns_add_u32 s{sT+2}, s{sT+2}, s{sT+3}\ns_mul_i32 s{sT+2}, s{sT+2}, {HST}')
    p(f's_mul_i32 s{sT+3}, s{sCB}, 7\ns_add_u32 s{sT+3}, s{sT+3}, 1\ns_lshr_b32 s{sT+3}, s{sT+3}, 1\ns_lshl_b32 s{sT+3}, s{sT+3}, 10')
    p(f's_add_u32 s{sT+2}, s{sT+2}, s{sT+3}')
    p(f'v_lshlrev_b32 v{t}, 4, v1\nv_add_u32 v{vAct}, s{sT+2}, v{t}')
    for b in range(1, 4): p(f'v_add_u32 v{vAct+b}, {b*HST:#x}, v{vAct}')
    p(f's_and_b32 s{sT+3}, s{sCB}, 1\ns_cmp_eq_u32 s{sT+3}, 0\ns_mov_b32 s{sT+4}, 3072\ns_cselect_b32 s{sT+4}, s{sT+4}, -1016')
    vHs = 132
    for b in range(4): p(f'v_add_u32 v{vHs+b}, s{sT+4}, v{vAct+b}')
    def gelu_tiles(tiles):
        n = len(tiles)
        Xs = [32 + 12*i for i in range(n)]
        pk = lambda r: f'v[{r}:{r+1}]'
        for (t, b, d), X in zip(tiles, Xs):
            for r in range(4): p(f'v_accvgpr_read_b32 v{X+r}, {accr(t,b,r)}')
        for X in Xs:
            for r in (0, 2): p(f'v_pk_mul_f32 {pk(X+8+r)}, {pk(X+r)}, {pk(X+r)}')
        for X in Xs:
            for r in (0, 2): p(f'v_pk_fma_f32 {pk(X+8+r)}, {pk(X+8+r)}, {pk(vC+2)}, {pk(vC)}')
        for X in Xs:
            for r in (0, 2): p(f'v_pk_mul_f32 {pk(X+8+r)}, {pk(X+8+r)}, {pk(X+r)}')
        for (t, b, d), X in zip(tiles, Xs):
            for r in range(4): p(f'v_exp_f32 v{X+8+r}, v{X+8+r}')
            for r in range(4): p(f'v_accvgpr_read_b32 v{X+4+r}, {accr(t+7,b,r)}')
        for X in Xs:
            for r in (0, 2): p(f'v_pk_add_f32 {pk(X+8+r)}, {pk(X+8+r)}, 1.0 op_sel_hi:[1,0]')
        for X in Xs:
            for r in range(4): p(f'v_rcp_f32 v{X+8+r}, v{X+8+r}')
            for r in (0, 2): p(f'v_pk_mul_f32 {pk(X+4+r)}, {pk(X+4+r)}, {pk(X+r)}')
        for X in Xs:
            for r in (0, 2): p(f'v_pk_mul_f32 {pk(X+4+r)}, {pk(X+4+r)}, {pk(X+8+r)}')
        for (t, b, d), X in zip(tiles, Xs):
            p(f'v_cvt_pk_bf16_f32 v{d}, v{X+4}, v{X+5}\nv_cvt_pk_bf16_f32 v{d+1}, v{X+6}, v{X+7}')
    for par in range(2):
        if par == 0: p('s_cbranch_scc0 B_epi_odd')
        else: p.cond(True); p('B_epi_odd:')
        n = 0; kq = list(kvq)
        for b in range(4):
            for pr in range(3):
                d = 64 + 4*(n % 8); n += 1
                for _ in range(2):
                    if kq:
                        for x in kq.pop(0): emit(p, x)
                gelu_tiles([(2*pr + par, b, d), (2*pr + 1 + par, b, d + 2)])
                p(f'buffer_store_dwordx4 v[{d}:{d+3}], v{vAct+b}, s[{S_H}:{S_H+3}], 0 offen offset:{1024*pr}{LS}', ('Hst', 1, 0, 0))
        for b in range(0, 4, 2):
            d = 64 + 4*(n % 8); n += 1
            gelu_tiles([(6 if par == 0 else 0, b, d), (6 if par == 0 else 0, b+1, d+2)])
            p(f'buffer_store_dwordx2 v[{d}:{d+1}], v{vHs+b}, s[{S_H}:{S_H+3}], 0 offen{LS}', ('Hst', 1, 0, 0))
            p(f'buffer_store_dwordx2 v[{d+2}:{d+3}], v{vHs+b+1}, s[{S_H}:{S_H+3}], 0 offen{LS}', ('Hst', 1, 0, 0))
        if par == 0: p('s_branch B_epi_done')
    p.cond(False)
    p('B_epi_done:')
    ts.stamp(p, 5)
    vQ = 64
    qs = math.log2(math.e)/math.sqrt(128)
    def qconv(qt, s):
        d = vQ + (qt*8+s)*4
        for half in range(2):
            b = 2*qt + half; x = 32 + 4*half
            src = accr(14+s, b, 0)
            if src[0] == 'a':
                for r in range(4): p(f'v_accvgpr_read_b32 v{x+r}, {accr(14+s, b, r)}')
                s0 = x
            else: s0 = int(src[1:])
            for r in (0, 2): p(f'v_pk_mul_f32 v[{x+r}:{x+r+1}], v[{s0+r}:{s0+r+1}], v[{vC}:{vC+1}]')
            p(f'v_cvt_pk_bf16_f32 v{d+2*half}, v{x}, v{x+1}\nv_cvt_pk_bf16_f32 v{d+2*half+1}, v{x+2}, v{x+3}')
    def qswap(qt, s):
        d = vQ + (qt*8+s)*4
        p(f'v_permlane16_swap_b32 v{d}, v{d+2}\nv_permlane16_swap_b32 v{d+1}, v{d+3}')
    t = 32
    p(f'v_and_b32 v{t}, 31, v1\nv_lshrrev_b32 v{t+1}, 5, v1\nv_and_b32 v{t+2}, 15, v1\nv_xor_b32 v{t+1}, v{t+1}, v{t+2}\nv_lshlrev_b32 v{t}, 8, v{t}')
    for s in range(8):
        p(f'v_xor_b32 v{t+2}, {2*s}, v{t+1}\nv_lshl_add_u32 v{vK+s}, v{t+2}, 4, v{t}')
    p(f'v_mov_b32 v{vC}, {f2u(qs):#x}\nv_mov_b32 v{vC+1}, {f2u(qs):#x}')
    vS = [128, 160]; vP = [192, 208]; vN = 224; vL = 28
    aF = 192
    def Sreg(n, qt): return vS[n % 2] + 16*qt
    def Preg(n, qt, ks): return vP[n % 2] + 8*qt + 4*ks
    def kread(n, s, tag):
        r = aF + 4*s
        return [(f'ds_read_b128 a[{r}:{r+3}], v{vK+s} offset:{(n % 8)*8192}', ('K', 4, n//2, 0))]
    def vread(n, f, tag, base=None, off0=None):
        ks, dt = divmod(f, 4); r = aF + 32 + 4*f
        off = (32*(n % 8) + 16*ks)*256 if off0 is None else off0 + 16*ks*256
        b = vV if base is None else base
        return [(f'ds_read_b64_tr_b16 a[{r}:{r+1}], v{b+dt} offset:{off}', tag),
                (f'ds_read_b64_tr_b16 a[{r+2}:{r+3}], v{b+dt} offset:{off+2048}', tag)]
    def qk(n, s, qt, c0):
        S = Sreg(n, qt); c = f'v[{S}:{S+15}]' if s else c0(qt)
        return f'v_mfma_f32_32x32x16_bf16 v[{S}:{S+15}], a[{aF+4*s}:{aF+4*s+3}], v[{vQ+(qt*8+s)*4}:{vQ+(qt*8+s)*4+3}], {c}'
    def pv(n, f, qt, first=False):
        ks, dt = divmod(f, 4); o = (dt*2+qt)*16; P_ = Preg(n, qt, ks)
        c = '0' if first and ks == 0 else f'a[{o}:{o+15}]'
        return f'v_mfma_f32_32x32x16_bf16 a[{o}:{o+15}], a[{aF+32+4*f}:{aF+32+4*f+3}], v[{P_}:{P_+3}], {c}'
    negm = lambda qt: f'v[{vN+16*qt}:{vN+16*qt+15}]'
    zero = lambda qt: '0'
    def softmax_ops(n):
        sl = [[] for _ in range(33)]
        for e in range(32):
            qt, i = divmod(e, 16); S = Sreg(n, qt); Pr = Preg(n, qt, i>>3)+((i&7)>>1)
            sl[e].insert(0, f'v_exp_f32 v{S+i}, v{S+i}')
            if cfg.sum == 'add': sl[e+1].append(f'v_add_f32 v{vL+2*qt+(i&1)}, v{vL+2*qt+(i&1)}, v{S+i}')
            if i & 1:
                if e == 31 and cfg.sum != 'add': sl[e+1].append('s_nop 0')
                sl[e+1].append(f'v_cvt_pk_bf16_f32 v{Pr}, v{S+i-1}, v{S+i}')
                k = min(32, e+2)
                if cfg.sum == 'pk': sl[k].append(f'v_pk_add_f32 v[{vL+2*qt}:{vL+2*qt+1}], v[{vL+2*qt}:{vL+2*qt+1}], v[{S+i-1}:{S+i}]')
                if cfg.sum == 'dot': sl[k].append(f'v_dot2_f32_bf16 v{vL+2*qt+((i>>1)&1)}, v{Pr}, v39, v{vL+2*qt+((i>>1)&1)}')
        return sl
    if cfg.sum == 'dot': p('v_mov_b32 v39, 0x3f803f80')
    p.need(('K', 4, 0, 0)); p('s_barrier')
    for s in range(8): emit(p, kread(0, s, None)[0])
    ts.stamp(p, 5)
    qconv(0, 0); qconv(1, 0)
    for s in range(8):
        if s < 7: qconv(0, s+1)
        qswap(0, s); qswap(1, s)
        if s < 7: qconv(1, s+1)
        else: p('s_nop 1')
        for qt in range(2): p(qk(0, s, qt, zero))
        emit(p, kread(1, s, None)[0])
    t = 36
    p(f'v_lshrrev_b32 v{t}, 5, v1\nv_lshlrev_b32 v{t}, 2, v{t}\nv_bfe_u32 v{t+1}, v1, 2, 2\nv_add_u32 v{t}, v{t}, v{t+1}\nv_lshlrev_b32 v{t}, 8, v{t}')
    p(f'v_bfe_u32 v{t+2}, v1, 4, 1\nv_lshlrev_b32 v{t+2}, 5, v{t+2}\nv_and_b32 v{t+3}, 3, v1\nv_lshlrev_b32 v{t+3}, 3, v{t+3}\nv_add3_u32 v{t}, v{t}, v{t+2}, v{t+3}')
    p(f'v_add_u32 v{t}, 0x10000, v{t}')
    for dt in range(4):
        p(f'v_xor_b32 v{t+2}, {dt}, v{t+1}\nv_lshl_add_u32 v{vV+dt}, v{t+2}, 6, v{t}')
    for i in range(4): p(f'v_mov_b32 v{vL+i}, 0')
    def rowmax(n, first):
        for qt in range(2):
            S = Sreg(n, qt); m = 32 + 2*qt
            if first: p(f'v_max3_f32 v{m}, v{S}, v{S+1}, v{S+2}')
            else: p(f'v_max3_f32 v{m}, v{m}, v{S+1}, v{S+2}\nv_max_f32 v{m}, v{m}, v{S}')
            for i in range(3, 15, 2): p(f'v_max3_f32 v{m}, v{m}, v{S+i}, v{S+i+1}')
            p(f'v_max_f32 v{m}, v{m}, v{S+15}')
    def set_negm():
        p('v_mov_b32 v33, v32\nv_mov_b32 v35, v34\ns_nop 0\nv_permlane32_swap_b32 v32, v33\nv_permlane32_swap_b32 v34, v35\ns_nop 0')
        for qt in range(2):
            m = 32 + 2*qt
            p(f'v_max_f32 v{m}, v{m}, v{m+1}\nv_sub_f32 v{vN+16*qt}, 0, v{m}\nv_mov_b32 v{vN+16*qt+1}, v{vN+16*qt}')
            for i in range(2, 16, 2): p(f'v_pk_mul_f32 v[{vN+16*qt+i}:{vN+16*qt+i+1}], v[{vN+16*qt}:{vN+16*qt+1}], 1.0 op_sel_hi:[1,0]')
    ts.stamp(p, 4)
    c0 = zero
    if not cfg.m0:
        c0 = negm
        rowmax(0, True); set_negm()
        for qt in range(2):
            S = Sreg(0, qt)
            for i in range(0, 16, 2): p(f'v_pk_add_f32 v[{S+i}:{S+i+1}], v[{S+i}:{S+i+1}], v[{vN+16*qt}:{vN+16*qt+1}]')
    ts.stamp(p, 4)
    S_WD, S_WO, S_AH, S_AO, S_X, S_OUT, S_P = 12, 8, 16, 20, 24, 28, 60
    sJ, sRC, sCC = 70, 71, 76
    kWD, kWO, kAH, kAO, cMW, cTG = 77, 75, 78, 42, 79, 49
    dD, dO, aH, aO, cTr, cA, cC = 40, 8, 48, 4, 52, 64, 128
    vFH = 60
    SLOT = 32768
    k_h = lambda pc: 4*pc
    k_o = lambda pc: 4*((pc & 1) | ((pc & 2) << 1) | ((pc & 4) >> 1))
    sDE = 85
    def x_dma_addr(dst, kmap):
        t = 36
        p(f's_lshl_b32 s{sT+2}, s{sW}, 16\ns_lshl_b32 s{sT+3}, s{sCC}, 8\ns_add_u32 s{sT+2}, s{sT+2}, s{sT+3}')
        p(f'v_lshrrev_b32 v{t}, 4, v1\nv_and_b32 v{t+1}, 15, v1\nv_lshlrev_b32 v{t+2}, 1, v{t}\nv_xor_b32 v{t+1}, v{t+1}, v{t+2}')
        p(f'v_lshlrev_b32 v{t}, 11, v{t}\nv_add_u32 v{t}, s{sT+2}, v{t}')
        for e in range(2):
            p(f'v_xor_b32 v{t+2}, {8*e}, v{t+1}\nv_lshl_add_u32 v{dst+e}, v{t+2}, 4, v{t}')
            if cfg.cdel: p(f'v_lshrrev_b32 v{t+2}, 3, v{t+2}\nv_mad_i32_i24 v{dst+e}, v{t+2}, s{sDE}, v{dst+e}')
        for pc in range(7, -1, -1):
            o = (kmap(pc) << 11) - 1024*(pc % 4)
            if o or pc > 1: p(f'v_add_u32 v{dst+pc}, {o}, v{dst + (pc & 1)}')
    NS = ND + 8; kind = lambda sg: 'd' if sg < ND else 's'
    def cdma(pc, sg):
        D_, S_, K_ = (dD, S_WD, kWD) if kind(sg) == 'd' else (dO, S_WO, kWO)
        g = []
        if pc % 4 == 0: g += [f's_add_u32 m0, s{cMW}, {(sg % 4)*SLOT + 1024*pc}', m0gap]
        g.append((f'buffer_load_dwordx4 v{D_+pc}, s[{S_}:{S_+3}], s{K_} offen offset:{1024*(pc%4)} {cfg.wsc} lds', ('C', 4, sg, 0)))
        if pc == 7: g.append(f's_add_u32 s{K_}, s{K_}, {128*2048}')
        return g
    def cact(sub, b):
        A_, S_, K_ = (aH, S_AH, kAH) if kind(sub // 4) == 'd' else (aO, S_AO, kAO)
        r = 128 + 16*(sub % 8) + 4*b
        g = [f'buffer_load_dwordx4 a[{r}:{r+3}], v{A_+b}, s[{S_}:{S_+3}], s{K_} offen offset:{1024*(sub % 4)}{SC}']
        if b == 3 and sub % 4 == 3: g.append(f's_add_u32 s{K_}, s{K_}, 4096')
        return g
    def collect(fn):
        nonlocal p
        w = Prog(); q = p; p = w; fn(); p = q
        out = []
        for it in w.items:
            if it.op == 's_addc_u32': out[-1] = (out[-1][0] + '\n' + it.text, None)
            else: out.append((it.text, it.tag))
        return out
    PF = cfg.PF; vPF = 25; sDM = 55; sPF = 44
    pairs = []; sm = []; start = {}
    for n in range(17):
        st = len(pairs); start[n] = st
        if n <= 14:
            for s_ in range(8): pairs.append((qk(n+1, s_, 0, c0), qk(n+1, s_, 1, c0), kread(n+1, s_, None) if n else []))
        if n >= 1:
            for f in range(8): pairs.append((pv(n-1, f, 0, n == 1), pv(n-1, f, 1, n == 1), vread(n-1, f, ('V', 4, (n-1)//2, 0))))
        if n <= 15: sm.append((st, len(pairs), softmax_ops(n)))
    mf = []; hi.clear(); lo.clear()
    for a_, b_, _ in pairs: mf += [a_, b_]
    n_ = len(mf)
    bargap = {}
    for j in range(8):
        g = 2*(start[2*j+1] - PF) - 1; bargap[j] = g
        def bar_(p, j=j):
            if j < 7: p.need(('K', 4, j+1, 0))
            p.need(('V', 4, j, 0))
            if j == cfg.hbar: p.need(('Hst', 1, 0, 0))
            p('s_barrier')
        H(g, bar_)
    for i in range(len(pairs) - PF):
        for k, r in enumerate(pairs[i + PF][2]): H(2*i + k, r)
    for (st, en, sl) in sm:
        ng = 2*(en - st)
        for e, ops in enumerate(sl):
            for o in ops: H(2*st + min(ng - 1, e*ng//32), o)
    def act_addr(dst, stride, tmp):
        p(f's_and_b32 s{sT+3}, s{sJ}, 1\ns_mul_i32 s{sT+3}, s{sT+3}, {2*stride}\nv_lshlrev_b32 v{tmp}, 4, v1\nv_add_u32 v{dst+2}, s{sT+2}, v{tmp}')
        p(f'v_add_u32 v{dst}, s{sT+3}, v{dst+2}\nv_add_u32 v{dst+1}, {stride}, v{dst}\ns_sub_u32 s{sT+3}, {2*stride}, s{sT+3}\nv_add_u32 v{dst+2}, s{sT+3}, v{dst+2}\nv_add_u32 v{dst+3}, {stride}, v{dst+2}')
    def out_addr(dst):
        p(f's_lshl_b32 s{sT+2}, s{sRC}, 8\ns_lshl_b32 s{sT+3}, s{sW}, 6\ns_add_u32 s{sT+2}, s{sT+2}, s{sT+3}\ns_and_b32 s{sT+3}, s{sJ}, 1\ns_lshl_b32 s{sT+3}, s{sT+3}, 5\ns_add_u32 s{sT+2}, s{sT+2}, s{sT+3}\ns_lshl_b32 s{sT+2}, s{sT+2}, 11')
        p(f's_lshl_b32 s{sT+3}, s{sCC}, 8\ns_add_u32 s{sT+2}, s{sT+2}, s{sT+3}\ns_lshr_b32 s{sT+3}, s{sJ}, 1\ns_lshl_b32 s{sT+3}, s{sT+3}, 7\ns_add_u32 s{sT+2}, s{sT+2}, s{sT+3}')
        t = 36
        p(f'v_and_b32 v{t}, 7, v1\nv_lshlrev_b32 v{t}, 11, v{t}\nv_bfe_u32 v{t+1}, v1, 3, 1\nv_lshl_add_u32 v{t}, v{t+1}, 6, v{t}\nv_bfe_u32 v{t+1}, v1, 4, 1\nv_lshl_add_u32 v{t}, v{t+1}, 5, v{t}')
        p(f'v_lshrrev_b32 v{t+1}, 5, v1\nv_lshl_add_u32 v{t}, v{t+1}, 4, v{t}\nv_add_u32 v{dst}, s{sT+2}, v{t}')
    XL = 0x20000 + 4096
    def x_stage():
        out_addr(39)
        srd(p, S_H, pX, 0, 4 << 20)
        for b in range(4):
            p(f's_add_u32 m0, s{sDM}, {4096 + 1024*b}\ns_mov_b32 s{sT+2}, {b*0x4000}')
            p(f'buffer_load_dwordx4 v39, s[{S_H}:{S_H+3}], s{sT+2} offen lds')
    def setup1():
        p(f's_lshl_b32 s{sT}, s2, 2\ns_add_u32 s{sT}, s{sT}, s{sW}\ns_lshl_b32 s{sT+1}, s{sT}, 13\ns_mul_i32 s{sT}, s{sT}, 7168')
        p(f'v_lshlrev_b32 v{vPF}, 4, v1\nv_add_u32 v{vPF+1}, s{sT}, v{vPF}\nv_add_u32 v{vPF}, s{sT+1}, v{vPF}')
        srd(p, S_WO, pWO, 0, 8 << 20); srd(p, S_WD, pWD, 0, 7 << 20)
        p(f's_lshl_b32 s{sDM}, s{sMK}, 1\ns_add_u32 s{sDM}, s{sDM}, 0x20000\ns_mov_b32 s{sPF}, 0')
        p(f's_lshl_b32 s{sT}, s{sRB}, 12\ns_lshl_b32 s{sT+1}, s{sCB}, 7\ns_add_u32 s{sT}, s{sT}, s{sT+1}\ns_add_u32 s{sT}, s{sT}, {256*128}\nv_mov_b32 v{vHF}, s{sT}')
    def setup2():
        if cfg.fs:
            p(f's_lshr_b32 s{sT}, s{sNO}, 5\ns_xor_b32 s{sT}, s{sT}, s2\ns_and_b32 s{sT}, s{sT}, 1\ns_and_b32 s{sJ}, s2, 2\ns_or_b32 s{sJ}, s{sJ}, s{sT}')
            p(f's_and_b32 s{sRC}, s2, 4\ns_bfe_u32 s{sT+1}, s2, 0x20003\ns_add_u32 s{sRC}, s{sRC}, s{sT+1}\ns_lshr_b32 s{sCC}, s2, 5\ns_xor_b32 s{sCC}, s{sCC}, {cfg.ccx}')
            p(f's_lshr_b32 s{sT+1}, s{sJ}, 1\ns_mul_i32 s{kAH}, s{sT+1}, 14\ns_lshl_b32 s{sT+2}, s{sT}, 3\ns_add_u32 s{kAH}, s{kAH}, s{sT+2}')
            p(f's_lshl_b32 s{sT+1}, s{sT+1}, 4\ns_mul_i32 s{sT+2}, s{sT}, 9\ns_add_u32 s{sT+1}, s{sT+1}, s{sT+2}\ns_mul_i32 s{sT}, s{sT}, 3\ns_sub_u32 s{sT}, 9, s{sT}')
            p(f'v_and_b32 v{vFH}, 15, v1\nv_min_u32 v{vFH}, s{sT}, v{vFH}\ns_lshl_b32 s{sT}, s{sRC}, 5\ns_add_u32 s{sT}, s{sT}, s{sT+1}\ns_add_u32 s{sT}, s{sT}, 256\ns_lshl_b32 s{sT}, s{sT}, 7')
            p(f'v_lshl_add_u32 v{vFH}, v{vFH}, 7, s{sT}')
            p(f's_lshl_b32 s{kWD}, s{kAH}, 18\ns_lshl_b32 s{kAH}, s{kAH}, 12')
        else:
            p(f's_bfe_u32 s{sJ}, s2, 0x20001\ns_and_b32 s{sRC}, s2, 1\ns_lshl_b32 s{sRC}, s{sRC}, 2\ns_bfe_u32 s{sT}, s2, 0x20003\ns_add_u32 s{sRC}, s{sRC}, s{sT}\ns_lshr_b32 s{sCC}, s2, 5')
            p(f's_lshl_b32 s{sT}, s{sRC}, 5\ns_lshl_b32 s{sT+1}, s{sJ}, 3\ns_add_u32 s{sT}, s{sT}, s{sT+1}\ns_add_u32 s{sT}, s{sT}, 256\ns_lshl_b32 s{sT}, s{sT}, 7')
            p(f'v_and_b32 v{vFH}, 7, v1\nv_lshl_add_u32 v{vFH}, v{vFH}, 7, s{sT}')
            p(f's_mul_i32 s{kWD}, s{sJ}, {896*2048}\ns_mul_i32 s{kAH}, s{sJ}, {28*1024}')
        p(f's_lshl_b32 s{sT}, s{sCC}, 8\ns_add_u32 s{sT}, s{sT}, 128\ns_add_u32 s{sDE}, s{sT}, {cfg.cdel}\ns_and_b32 s{sDE}, s{sDE}, 2047\ns_sub_u32 s{sDE}, s{sDE}, s{sT}')
        x_dma_addr(dD, k_h)
        p(f's_lshl_b32 s{cMW}, s{sW}, 13')
        srd(p, S_AH, pWS, WS_H, 15 << 20)
        p(f's_lshl_b32 s{sT}, s{sRC}, 4\ns_lshl_b32 s{sT+2}, s{sW}, 2\ns_add_u32 s{sT}, s{sT}, s{sT+2}\ns_mul_i32 s{sT+2}, s{sT}, {HST}')
        act_addr(aH, HST, 36)
        t = 36
        p(f's_and_b32 s{sT+3}, s{sJ}, 2\ns_lshl_b32 s{sT+3}, s{sT+3}, 1')
        p(f'v_lshrrev_b32 v{t}, 2, v1\nv_and_b32 v{t+1}, 7, v{t}\nv_xor_b32 v{t+1}, s{sT+3}, v{t+1}\nv_lshlrev_b32 v{t}, 8, v{t}\nv_and_b32 v{t+2}, 3, v1\nv_lshl_add_u32 v{t}, v{t+2}, 3, v{t}')
        for tt in range(8):
            p(f'v_xor_b32 v{t+2}, {tt}, v{t+1}\nv_lshl_add_u32 v{cTr+tt}, v{t+2}, 5, v{t}')
        p(f's_mov_b32 s{cTG}, 0x10000')
        if cfg.c3:
            p(f's_lshr_b32 s{sT}, s2, 3\ns_lshl_b32 s{sT}, s{sT}, 2\ns_add_u32 s{sT}, s{sT}, s{sW}\ns_lshl_b32 s{sT}, s{sT}, 11\ns_add_u32 s{sT}, s{sT}, {cfg.c3l*128}')
            p(f'v_bfe_u32 v36, v1, 2, 2\nv_lshlrev_b32 v36, 18, v36\nv_bfe_u32 v37, v1, 1, 1\nv_lshl_add_u32 v36, v37, 10, v36\nv_and_b32 v37, 1, v1\nv_lshl_add_u32 v36, v37, 6, v36\nv_add_u32 v39, s{sT}, v36')
    s2q = collect(setup2); s2per = -(-len(s2q) // 4)
    for x in collect(setup1): L(16, x)
    npf = 0
    for j in range(7):
        g = bargap[j] + 1
        if j + 3 <= 7:
            L(g, f's_add_u32 s{sT+5}, s{sKV}, {(j+3)*16384}') if False else None
            L(g, f's_add_u32 s{sT+4}, s{sKV}, {(j+3)*16384}'); L(g, f's_add_u32 m0, s{sMK}, {((j+3) % 4)*16384}'); L(g, m0gap)
            for k in range(4): L(g + 3*k, kdma(k, sT+4, ('K', 4, j+3, 0)))
        if j + 2 <= 7:
            L(g + 12, f's_add_u32 s{sT+4}, s{sKV}, {(j+2)*16384}'); L(g + 12, f's_add_u32 m0, s{sMK}, {0x10000 + ((j+2) % 4)*16384}'); L(g + 12, m0gap)
            for k in range(4): L(g + 12 + 3*k, vdma(k, sT+4, ('V', 4, j+2, 0)))
        if j < 5:
            L(g + 24, f's_mov_b32 m0, s{sDM}'); L(g + 24, m0gap)
            for k in range(3):
                wo_ = npf % 2 == 0
                L(g + 24 + 4*k, f'buffer_load_dwordx4 v{vPF if wo_ else vPF+1}, s[{S_WO if wo_ else S_WD}:{(S_WO if wo_ else S_WD)+3}], s{sPF} offen lds')
                if not wo_: L(g + 24 + 4*k, f's_add_u32 s{sPF}, s{sPF}, 1024')
                npf += 1
        if cfg.cpf2 and (j in (1, 4) or cfg.cpf2 >= 2):
            for x in code_pf(S_DB, 61): L(g + 35, x)
        if j < 4:
            for x in s2q[j*s2per:(j+1)*s2per]: L(g + 36, x)
        if j == cfg.hbar: H(g, flag_store('A_hf', vHF))
        if j == 4:
            for k, x in enumerate(collect(x_stage)): L(g + 36 + k//2, x)
        if j == 4: L(g + 40, f'buffer_load_dwordx2 v[62:63], v{vFH}, s[{S_FL}:{S_FL+3}], 0 offen sc1')
        if j == 5:
            for pc in range(8):
                for x in cdma(pc, 0): L(g + 24 + 3*pc, x)
            L(g + 50, '\n'.join(flagchk('L_h', vFH, 62)))
        if j == 6:
            for sub in range(4):
                for b in range(4):
                    for x in cact(sub, b): L(g + 3*(4*sub + b), x)
    for pc in range(8):
        for x in cdma(pc, 1): L(bargap[7] + 1 + 3*pc, x)
    if cfg.c3:
        L(bargap[6] - 4, f's_add_u32 s{sT+4}, s{kWD}, {128*2048}'); L(bargap[6] - 4, f'buffer_load_dword v61, v39, s[{S_WD}:{S_WD+3}], s{sT+4} offen ;pf')
    g = 2*start[16]
    lchk = []
    for qt in range(2):
        l = vL + 2*qt
        lchk += [f'v_add_f32 v{l}, v{l}, v{l+1}', f'v_mov_b32 v{l+1}, v{l}']
    lchk += [None, f'v_permlane32_swap_b32 v{vL}, v{vL+1}', f'v_permlane32_swap_b32 v{vL+2}, v{vL+3}', None,
             f'v_add_f32 v{vL}, v{vL}, v{vL+1}', f'v_add_f32 v{vL+2}, v{vL+2}, v{vL+3}',
             f's_mov_b32 s{sT+2}, {f2u(2.0**cfg.thr):#x}', f's_mov_b32 s{sT+3}, {f2u(2.0**-cfg.thr):#x}',
             f'v_cmp_nlt_f32 vcc, v{vL}, s{sT+2}', f'v_cmp_nlt_f32 s[{sT}:{sT+1}], v{vL+2}, s{sT+2}', None, f's_or_b64 vcc, vcc, s[{sT}:{sT+1}]',
             f'v_cmp_ngt_f32 s[{sT}:{sT+1}], v{vL}, s{sT+3}', None, f's_or_b64 vcc, vcc, s[{sT}:{sT+1}]',
             f'v_cmp_ngt_f32 s[{sT}:{sT+1}], v{vL+2}, s{sT+3}', None, f's_or_b64 vcc, vcc, s[{sT}:{sT+1}]']
    k = 0
    for x in lchk:
        if x is None: g += 1; k = 0; continue
        H(g, x); k += 1
        if k == 3: g += 1; k = 0
    assert g < n_ - 1
    def cyc(x):
        t_ = x[0] if isinstance(x, tuple) else x
        if callable(t_): return 8
        o = t_.split()[0]
        if o in TRANS: return 8
        if o.startswith('v_cvt_pk'): return 5
        if o.startswith('buffer_'): return cfg.vmc
        return 4*len(t_.split('\n')) if '\n' in t_ and ';cond' not in t_ else 4
    fill = {}; q_ = []
    for i in range(-1, n_):
        cur = list(hi.get(i, [])); used = sum(cyc(x) for x in cur) + (4 if i % 2 == 1 else 0)
        for x in lo.get(i, []): q_.append((i, x))
        while q_ and (used + cyc(q_[0][1]) <= cfg.acap or i == n_ - 1 or i - q_[0][0] >= cfg.amax):
            x = q_.pop(0)[1]; cur.append(x); used += cyc(x)
        fill[i] = cur
    fix_m0(fill, n_)
    if cfg.aab:
        tx = lambda x: x[0] if isinstance(x, tuple) else x
        for i in fill:
            if 2*start[3] <= i < 2*start[11]:
                if cfg.aab & 1: fill[i] = [x for x in fill[i] if callable(tx(x)) or not tx(x).startswith('buffer_load')]
                if cfg.aab & 2: fill[i] = [x for x in fill[i] if callable(tx(x)) or x in hi.get(i, []) or tx(x).startswith('buffer_load') or 'm0' in tx(x) or 's54' in tx(x)]
                if cfg.aab & 4: fill[i] = [x for x in fill[i] if not callable(tx(x))]
    for n in (1, 3, 7, 11, 15):
        t_ = ts.text(4)
        if t_: fill[2*start[n] - 1].append(t_)
    interleave(p, mf, fill)
    ts.stamp(p, 5)
    p('s_cbranch_vccnz A_slow')
    p('A_done:')
    ad = cfg.cad; P = cfg.cP
    for sub in range(4, ad):
        for b in range(4):
            for x in cact(sub, b): emit(p, x)
    p(f'v_rcp_f32 v{vL}, v{vL}\nv_rcp_f32 v{vL+2}, v{vL+2}')
    p.need(('C', 4, 0, 0)); p('s_barrier')
    for G in range(P):
        r = cA + 4*G
        p(f'ds_read_b64_tr_b16 v[{r}:{r+1}], v{cTr+G} offset:0', ('C', 4, 0, 0)); p(f'ds_read_b64_tr_b16 v[{r+2}:{r+3}], v{cTr+G} offset:4096', ('C', 4, 0, 0))
    p(';SPLIT')
    OE = cfg.oe if ND >= 7 else cfg.oes
    vO, vX, vFO, vFD, vFS, vFQ = 16, 96, 20, 21, 22, 23
    sPS, sPR = 32, 33
    def o_epi(packed):
        t = 32
        p(f'v_mov_b32 v{vL+1}, v{vL}\nv_mov_b32 v{vL+3}, v{vL+2}')
        p(f's_lshl_b32 s{sT}, s{sRB}, 4\ns_lshl_b32 s{sT+1}, s{sW}, 2\ns_add_u32 s{sT}, s{sT}, s{sT+1}\ns_mul_i32 s{sT}, s{sT}, {OST}\ns_lshl_b32 s{sT+1}, s{sCB}, 12\ns_add_u32 s{sT}, s{sT}, s{sT+1}')
        p(f'v_bfe_u32 v{t}, v1, 4, 1\nv_mul_u32_u24 v{t}, {OST}, v{t}\nv_lshrrev_b32 v{t+1}, 5, v1\nv_lshlrev_b32 v{t+1}, 8, v{t+1}\nv_and_b32 v{t+2}, 15, v1\nv_lshlrev_b32 v{t+2}, 4, v{t+2}')
        p(f'v_add3_u32 v{t}, v{t}, v{t+1}, v{t+2}\nv_add_u32 v34, s{sT}, v{t}\nv_add_u32 v35, {2*OST}, v34')
        n = 0
        for dt in range(4):
            for qt in range(2):
                o = (dt*2+qt)*16
                for half in range(2):
                    x = 96 + 8*(n % 2); d = 112 + 4*(n % 4); n += 1
                    for i in range(8): p(f'v_accvgpr_read_b32 v{x+i}, a{o+8*half+i}')
                    if packed:
                        for i in range(0, 8, 2): p(f'v_pk_mul_f32 v[{x+i}:{x+i+1}], v[{x+i}:{x+i+1}], v[{vL+2*qt}:{vL+2*qt+1}]')
                    else:
                        for i in range(8): p(f'v_mul_f32{cfg.e64} v{x+i}, v{x+i}, v{vL+2*qt}')
                        for i in range(cfg.xs): p(f's_mov_b32 s{sT+5}, {cfg.xl}')
                    for i in range(0, 8, 2): p(f'v_cvt_pk_bf16_f32 v{d+i//2}, v{x+i}, v{x+i+1}')
                    p(f'buffer_store_dwordx4 v[{d}:{d+3}], v{34+qt}, s[{S_O}:{S_O+3}], 0 offen offset:{dt*1024 + half*512} {cfg.ost}', ('Ost', 1, 0, 0))
    def s_setup():
        x_dma_addr(dO, k_o)
        srd(p, S_AO, pWS, WS_O, 17 << 20)
        p(f's_lshl_b32 s{kWO}, s{sJ}, 21\ns_lshl_b32 s{kAO}, s{sJ}, 15')
        p(f's_lshl_b32 s{sT}, s{sRC}, 4\ns_lshl_b32 s{sT+2}, s{sW}, 2\ns_add_u32 s{sT}, s{sT}, s{sT+2}\ns_mul_i32 s{sT+2}, s{sT}, {OST}')
        act_addr(aO, OST, 24)
        p(f'v_add_u32 v{vFO}, {256*128}, v{vHF}')
        p(f's_lshl_b32 s{sT}, s{sRC}, 5\ns_lshl_b32 s{sT+1}, s{sJ}, 3\ns_add_u32 s{sT}, s{sT}, s{sT+1}\ns_add_u32 s{sT}, s{sT}, 512\ns_lshl_b32 s{sT}, s{sT}, 7')
        p(f'v_and_b32 v{vFH}, 7, v1\nv_lshl_add_u32 v{vFH}, v{vFH}, 7, s{sT}')
        srd(p, S_OUT, pOUT, 0, 4 << 20); srd(p, S_P, pWS, WS_P, 24 << 20)
        p(f's_lshl_b32 s{sT}, s{sRC}, 3\ns_add_u32 s{sT}, s{sT}, s{sCC}\ns_lshl_b32 s{sT}, s{sT}, 2\ns_add_u32 s{sT+1}, s{sT}, s{sJ}')
        p(f's_add_u32 s{sT+2}, s{sT+1}, 768\ns_lshl_b32 s{sT+2}, s{sT+2}, 7\nv_mov_b32 v{vFD}, s{sT+2}\nv_add_u32 v{vFS}, {256*128}, v{vFD}')
        p(f's_add_u32 s{sT+2}, s{sT}, 768\ns_lshl_b32 s{sT+2}, s{sT+2}, 7\nv_and_b32 v{vFQ}, 3, v1\nv_lshl_add_u32 v{vFQ}, v{vFQ}, 7, s{sT+2}')
        p(f's_mul_i32 s{sT+3}, s{sW}, 12288\ns_mul_i32 s{sPR}, s{sT+1}, {3*16384}\ns_add_u32 s{sPR}, s{sPR}, s{sT+3}')
        for q_ in (1, 2, 3):
            p(f's_xor_b32 s{sT+2}, s{sT+1}, {q_}\ns_mul_i32 s{sT+2}, s{sT+2}, {3*16384}\ns_add_u32 s{sT+2}, s{sT+2}, s{sT+3}\ns_add_u32 s{sT+2}, s{sT+2}, {(q_-1)*4096}\nv_add_u32 v{24+q_}, s{sT+2}, v24')
        out_addr(vO)
    QUADS = [(t_, bp) for t_ in (4, 5, 6, 7) for bp in (0, 1)] + [(t_, 1) for t_ in range(4)]
    nsent = [0]
    def send(gemm, quads):
        for (t_, bp) in quads:
            c = 16*t_ + 8*bp; k = nsent[0]; nsent[0] += 1; d = 112 + 4*(k % 4); q_ = 2*(t_ >> 2) + bp
            if gemm == 0:
                for r in range(4): p(f'v_cvt_pk_bf16_f32 v{d+r}, v{cC+c+2*r}, v{cC+c+2*r+1}')
            else:
                x = 160 + 8*(k % 4)
                for r in range(8): p(f'v_accvgpr_read_b32 v{x+r}, a{c+r}')
                for r in range(4): p(f'v_cvt_pk_bf16_f32 v{d+r}, v{x+2*r}, v{x+2*r+1}')
            so = '0' if gemm == 0 else f's{sT+4}'
            p(f'buffer_store_dwordx4 v[{d}:{d+3}], v{24 + q_}, s[{S_P}:{S_P+3}], {so} offen offset:{1024*(t_ & 3)} {cfg.pst}', ('Pst', 1, gemm, 0))
    def send_d():
        send(0, QUADS)
        for i in (1, 2, 3):
            for r in range(8): p(f'v_mov_b32 v{cC+8*i+r}, v{cC+16*i+r}')
    mf = []; hi.clear(); lo.clear()
    ST = 128; TMS = cfg.tms
    NSUB = 4*NS
    order = [(sub // 4, sub % 4, t) for sub in range(NSUB - TMS) for t in range(8)]
    order += [(sub // 4, sub % 4, t) for t in (4, 5, 6, 7, 0, 1, 2, 3) for sub in range(NSUB - TMS, NSUB)]
    assert not cfg.sent and (TMS <= 4 or NS % 2 == 0)
    def ctr(G):
        sg, s, t = order[G]
        r = cA + 4*(G % 8); off = (sg % 2)*SLOT + s*8192
        a = cTr + t
        return [(f'ds_read_b64_tr_b16 v[{r}:{r+1}], v{a} offset:{off}', ('C', 4, sg, 0)),
                (f'ds_read_b64_tr_b16 v[{r+2}:{r+3}], v{a} offset:{off + 4096}', ('C', 4, sg, 0))]
    obar = math.ceil(OE) + 1; dbar = ND + math.ceil(cfg.de) + 1
    def bar(p, sgn):
        p.need(('C', 4, sgn, 0))
        if sgn == obar: p.need(('Ost', 1, 0, 0))
        if sgn == dbar: p.need(('Pst', 1, 0, 0))
        p('s_barrier')
    firstG = {}
    for G, (sg, s, t) in enumerate(order): firstG.setdefault(sg, G)
    for G in range(32*NS):
        sg, s, t = order[G]; sub = 4*sg + s
        for b in range(4):
            ra = cA + 4*(G % 8); rb = 128 + 16*(sub % 8) + 4*b; c = (t*4+b)*4
            acc_ = f'v[{cC+c}:{cC+c+3}]' if kind(sg) == 'd' else f'a[{c}:{c+3}]'
            mf.append(f'v_mfma_f32_16x16x32_bf16 {acc_}, v[{ra}:{ra+3}], a[{rb}:{rb+3}], {"0" if sub in (0, 4*ND) else acc_}')
        i0 = 4*G; Gn = G + P
        if Gn < 32*NS:
            if firstG[order[Gn][0]] == Gn: H(i0-1, lambda p, sgn=order[Gn][0]: bar(p, sgn))
            r0, r1 = ctr(Gn)
            H(i0, r0); H(i0+1, r1)
            if Gn % 64 >= 56 and Gn // 32 < NS - 1: H(i0+2, f'v_xor_b32 v{cTr + Gn % 8}, s{cTG}, v{cTr + Gn % 8}')
        sgc, g = divmod(G, 32)
        dstr = 2 if (TMS > 4 and sgc + 2 == NS - 1) else cfg.cdstr
        if g % dstr == 1 and g // dstr < 8 and sgc + 2 < NS:
            for x in cdma(g // dstr, sgc + 2): L(i0, x)
    last_act = 0
    for sub in range(ad, 4*NS):
        t0 = max((sub - 7)*32, min((sub - ad)*32, (4*NS - 8)*32 - (4*NS - 1 - sub)*cfg.ramp)) if TMS else (sub - ad)*32
        t1 = max((sub - 6)*32, min((sub + 1 - ad)*32, (4*NS - 8)*32 - (4*NS - 2 - sub)*cfg.ramp)) if TMS else t0 + 32
        for b in range(4):
            last_act = t0 + b*min(8, (t1 - t0)//4)
            for x in cact(sub, b): L(last_act, x)
    if cfg.cpf2:
        for k in ((1,) if cfg.cpf2 < 2 else range(0, math.floor(OE))):
            for x in code_pf(S_DB, 61): L(k*ST + 4*30, x)
        for x in code_srd(S_AH, 'L_pc3' + SFX): L(ND*ST, x)
        for k in ((ND, ND + 3) if cfg.cpf2 < 2 else range(ND, NS - 2)):
            for x in code_pf(S_AH, 61): L(k*ST + 4*30, x)
    if cfg.c3:
        L((ND - 2)*ST, f's_add_u32 s{sT+4}, s{kWO}, {cfg.c3s*128*2048}'); L((ND - 2)*ST, f'buffer_load_dword v61, v39, s[{S_WO}:{S_WO+3}], s{sT+4} offen ;pf')
    n = len(mf)
    fill = spread(hi, {k: lo[k] for k in sorted(lo)}, n, cfg.cap, 16, cost=lambda i: 1 if i % 4 == 3 else 0)
    fix_m0(fill, n)
    def ride(items, g0, g1):
        q_ = list(items); per = len(q_) / (g1 - g0); due = 0.0; done = 0
        for i in range(g0, g1):
            due += per
            used = len(fill[i]) + (1 if i % 4 == 3 else 0)
            while q_ and done < due + 2 and (used < cfg.cap or done < due - cfg.lag):
                fill[i].append(q_.pop(0)); used += 1; done += 1
        fill[g1-1] += q_
    oq = collect(lambda: o_epi(cfg.ox > 0))
    nx = 0
    if cfg.ox:
        idx = [i for i, x in enumerate(oq) if x[0].startswith('buffer_store')]
        nx = idx[cfg.ox - 1] + 1
        fill[-1] = oq[:nx] + fill[-1]
        oq2 = collect(lambda: o_epi(False))
        idx2 = [i for i, x in enumerate(oq2) if x[0].startswith('buffer_store')]
        oq = oq2[idx2[cfg.ox - 1] + 1:]
    if oq: ride(oq, 2, int(OE*ST))
    ride(collect(s_setup), int(OE*ST), int(OE*ST) + ST - 20)
    fill[obar*ST - 4*P + 2].append(flag_store('C_of' + SFX, vFO))
    first_o = (4*ND - ad)*32
    assert first_o - 2 > int(OE*ST) + ST - 20 and (ND - 2)*ST > int(OE*ST) + ST - 20
    fill[first_o - cfg.fl].append(f'buffer_load_dwordx2 v[62:63], v{vFH}, s[{S_FL}:{S_FL+3}], 0 offen sc1')
    fill[first_o - 2].append('\n'.join(flagchk('L_o' + SFX, vFH, 62)))
    ride(collect(send_d), ND*ST + 8, ND*ST + int(cfg.de*ST))
    fill[dbar*ST - 4*P + 2].append(flag_store('C_df' + SFX, vFD))
    xl = [f's_lshl_b32 s{sT+2}, s{sW}, 13', f's_add_u32 s{sT+2}, s{sT+2}, {XL}', 'v_and_b32 v36, 0x37, v1', 'v_lshlrev_b32 v36, 4, v36', 'v_bfe_u32 v37, v1, 3, 1', 'v_lshl_add_u32 v36, v37, 10, v36', f'v_add_u32 v39, s{sT+2}, v36']
    xl += [f'ds_read_b128 v[{vX+8*b+4*pr}:{vX+8*b+4*pr+3}], v39 offset:{2048*b + 128*pr}' for b in range(2) for pr in range(2)]
    vR = 192
    def recv(gemm):
        p(f's_add_u32 s{sT+2}, s{sPR}, {gemm*256*3*16384}')
        for q_ in range(3):
            for i in range(4):
                r = vR + 16*q_ + 4*i
                p(f'buffer_load_dwordx4 v[{r}:{r+3}], v24, s[{S_P}:{S_P+3}], s{sT+2} offen offset:{1024*i} sc1')
            if q_ < 2: p(f's_add_u32 s{sT+2}, s{sT+2}, 4096')
    dchk = NS - cfg.dchk; assert dchk*ST > last_act + 16
    fill[int(dchk*ST) - cfg.fl].append(f'buffer_load_dwordx2 v[62:63], v{vFQ}, s[{S_FL}:{S_FL+3}], 0 offen sc1')
    fill[int(dchk*ST)].append('\n'.join(flagchk('L_d' + SFX, vFQ, 62)))
    ride(collect(lambda: recv(0)), int(dchk*ST) + 2, int(dchk*ST) + 50)
    fill[(NS - 3)*ST].append(f's_mov_b32 s{sT+4}, {256*3*16384}')
    left = list(QUADS)
    if TMS:
        base = (NSUB - TMS)*32; plen = TMS*4
        for k, t_ in enumerate((4, 5, 6, 7, 0, 1, 2)):
            qs_ = [x for x in QUADS if x[0] == t_]; left = [x for x in left if x[0] != t_]
            g0 = base + (k + 1)*plen + 3
            ride(collect(lambda: send(1, qs_)), g0, min(n, g0 + plen))
    ts.stamp(p, 7)
    for k in range(1, 15):
        if k in (1, 2, 3, 4, 5, 6, 7, 8, 9, 11, 13):
            t_ = ts.text(2)
            if t_: fill[k*ST - 1].append(t_)
    interleave(p, mf, fill)
    p(f's_mov_b32 s{sT+3}, 0xffff0000\nv_add_u32 v{vFQ}, {256*128}, v{vFQ}\ns_nop 4')
    ts.stamp(p, 3)
    for x in xl: p(x)
    send(1, left)
    RS = (160, 176, 240)
    def recv_s(q_, cond=''):
        for i in range(4):
            p(f'buffer_load_dwordx4 v[{RS[q_]+4*i}:{RS[q_]+4*i+3}], v24, s[{S_P}:{S_P+3}], s{44+q_} offen offset:{1024*i} sc1{cond}')
    if cfg.sent:
        p(f's_add_u32 s44, s{sPR}, {256*3*16384}\ns_add_u32 s45, s44, 4096\ns_add_u32 s46, s45, 4096')
        for q_ in range(3): recv_s(q_)
    pk = lambda r: f'v[{r}:{r+1}]'
    def addparts(dst, i, src):
        for q_ in range(3):
            rr = src[q_] + 4*i; tt = 32 + 8*(q_ % 2)
            for r in range(4): p(f'v_lshlrev_b32 v{tt+2*r}, 16, v{rr+r}\nv_and_b32 v{tt+2*r+1}, s{sT+3}, v{rr+r}')
            for r in range(0, 8, 2): p(f'v_pk_add_f32 {pk(dst+r)}, {pk(dst+r)}, {pk(tt+r)}')
    p(f'v_mov_b32 v28, {f2u(-math.log2(math.e)):#x}\nv_mov_b32 v29, v28')
    RD = (vR, vR + 16, vR + 32)
    for i in range(4):
        c = cC + 8*i; B = 48
        addparts(c, i, RD)
        for r in range(0, 8, 2): p(f'v_pk_mul_f32 {pk(B+r)}, {pk(c+r)}, v[28:29]')
        for r in range(8): p(f'v_exp_f32 v{B+r}, v{B+r}')
        p('s_nop 0')
        for r in range(0, 8, 2): p(f'v_pk_add_f32 {pk(B+r)}, {pk(B+r)}, 1.0 op_sel_hi:[1,0]')
        for r in range(8): p(f'v_rcp_f32 v{B+r}, v{B+r}')
        p('s_nop 0')
        for r in range(0, 8, 2): p(f'v_pk_mul_f32 {pk(c+r)}, {pk(c+r)}, {pk(B+r)}')
    vSs = 64
    for i in range(32): p(f'v_accvgpr_read_b32 v{vSs+i}, a{16*(i//8) + i % 8}')
    E = 192 if cfg.sent else 160
    def xunpack():
        for b in range(4):
            for q in range(4): p(f'v_lshlrev_b32 v{E+8*b+2*q}, 16, v{vX+4*b+q}\nv_and_b32 v{E+8*b+2*q+1}, s{sT+3}, v{vX+4*b+q}')
    if cfg.sent:
        xunpack()
        ts.stamp(p)
        p('C_chk:\ns_waitcnt vmcnt(0)\ns_mov_b32 s47, 0')
        for q_ in range(3):
            r = RS[q_]
            p(f'v_max3_u32 v32, v{r}, v{r+1}, v{r+2}')
            for k in range(3, 15, 2): p(f'v_max3_u32 v32, v32, v{r+k}, v{r+k+1}')
            p(f'v_max_u32 v32, v32, v{r+15}\nv_cmp_eq_u32 vcc, -1, v32\ns_nop 1\ns_cbranch_vccz C_ok{q_}')
            p.cond(True)
            p(f's_sleep {cfg.slp2}\ns_mov_b32 s47, 1'); recv_s(q_)
            p.cond(False)
            p(f'C_ok{q_}:')
        p('s_cmp_lg_u32 s47, 0\ns_cbranch_scc1 C_chk')
        ts.stamp(p)
        src = RS
    else:
        p('s_waitcnt vmcnt(0)\ns_barrier')
        ts.stamp(p)
        p(f's_cmp_eq_u32 s{sW}, 1\ns_cbranch_scc0 C_got{SFX}')
        p.cond(True)
        p(f'buffer_store_dwordx2 v[2:3], v{vFS}, s[{S_FL}:{S_FL+3}], 0 offen sc1')
        poll('C_poll' + SFX, vFQ, 'C_got' + SFX)
        p.cond(False)
        p(f'C_got{SFX}:\ns_barrier')
        ts.stamp(p)
        recv(1)
        xunpack()
        src = RD
    for i in range(4): addparts(vSs + 8*i, i, src)
    for i in range(0, 32, 2): p(f'v_pk_mul_f32 {pk(vSs+i)}, {pk(vSs+i)}, {pk(cC+i)}')
    for b in range(2):
        P0, P1, T_ = 112 + 8*b, 116 + 8*b, 32
        for pr in range(2):
            c0 = vSs + 16*pr + 4*b; c1 = c0 + 8
            for r in range(4): p(f'v_permlane16_swap_b32 v{c0+r}, v{c1+r}')
        for pr in range(2):
            c0 = vSs + 16*pr + 4*b; c1 = c0 + 8; e = E + 16*b + 8*pr
            for q in range(4):
                c = (c0, c0+2, c1, c1+2)[q]
                p(f'v_pk_add_f32 {pk(e+2*q)}, {pk(e+2*q)}, {pk(c)}')
            for q in range(4): p(f'v_cvt_pk_bf16_f32 v{(P0, P1)[pr]+q}, v{e+2*q}, v{e+2*q+1}')
        for q in range(4): p(f'v_mov_b32 v{T_+q}, v{P1+q}')
        for q in range(4): p(f'v_mov_b32_dpp v{P1+q}, v{P0+q} row_ror:8 row_mask:0xf bank_mask:0x3')
        for q in range(4): p(f'v_mov_b32_dpp v{P0+q}, v{T_+q} row_ror:8 row_mask:0xf bank_mask:0xc')
        p(f's_mov_b32 s{sT}, {2*b*0x4000}\ns_mov_b32 s{sT+1}, {(2*b+1)*0x4000}')
        p(f'buffer_store_dwordx4 v[{P0}:{P0+3}], v{vO}, s[{S_OUT}:{S_OUT+3}], s{sT} offen {cfg.osc}')
        p(f'buffer_store_dwordx4 v[{P1}:{P1+3}], v{vO}, s[{S_OUT}:{S_OUT+3}], s{sT+1} offen {cfg.osc}')
    ts.stamp(p)
    if cfg.ts: p('s_waitcnt vmcnt(0)')
    ts.stamp(p)
    ts.dump(p, pWS)
    p('s_endpgm')
    autowait(p)
    if not cfg.aab: check(p, 'main')

    z = Prog(); main = p; p = z
    p('A_slow:')
    p('s_waitcnt vmcnt(0) lgkmcnt(0)')
    srd(p, S_K, pK, 0, 2 << 20); srd(p, S_V, pV, 0, 2 << 20)
    zK, zD, zV = 13, 14, 21
    zKV, zN = sT, sT+1
    p(f's_lshr_b32 s{zKV}, s{sCB}, 3\ns_lshl_b32 s{zKV}, s{zKV}, 19\ns_add_u32 s{zKV}, s{zKV}, {1536*256}')
    p(f'v_and_b32 v{zK}, 31, v1\nv_lshlrev_b32 v{zK}, 8, v{zK}\nv_lshrrev_b32 v36, 5, v1\nv_lshl_add_u32 v{zK}, v36, 4, v{zK}')
    p(f'v_lshrrev_b32 v36, 4, v1\nv_and_b32 v37, 15, v1\nv_lshlrev_b32 v38, 2, v36\nv_xor_b32 v37, v37, v38\nv_lshlrev_b32 v36, 8, v36\nv_lshl_add_u32 v{zD}, v37, 4, v36\nv_add_u32 v{zD+1}, 0x1000, v{zD}')
    t = 36
    p(f'v_lshrrev_b32 v{t}, 5, v1\nv_lshlrev_b32 v{t}, 2, v{t}\nv_bfe_u32 v{t+1}, v1, 2, 2\nv_add_u32 v{t}, v{t}, v{t+1}\nv_lshlrev_b32 v{t}, 8, v{t}')
    p(f'v_bfe_u32 v{t+2}, v1, 4, 1\nv_lshlrev_b32 v{t+2}, 5, v{t+2}\nv_and_b32 v{t+3}, 3, v1\nv_lshlrev_b32 v{t+3}, 3, v{t+3}\nv_add3_u32 v{t}, v{t}, v{t+2}, v{t+3}')
    p(f's_lshl_b32 s{sT+2}, s{sW}, 13\ns_add_u32 s{sT+2}, s{sT+2}, 0x10000\nv_add_u32 v{t}, s{sT+2}, v{t}')
    for dt in range(4): p(f'v_xor_b32 v{t+2}, {dt}, v{t+1}\nv_lshl_add_u32 v{zV+dt}, v{t+2}, 6, v{t}')
    def kglob():
        for s in range(8): p(f'buffer_load_dwordx4 a[{aF+4*s}:{aF+4*s+3}], v{zK}, s[{S_K}:{S_K+3}], s{zN} offen offset:{32*s}')
    p(f'v_mov_b32 v32, 0xff800000\nv_mov_b32 v34, 0xff800000\ns_mov_b32 s{zN}, s{zKV}\ns_mov_b32 s{sT+3}, 16')
    p.loop_begin('Z1_loop', 16, align=False)
    kglob()
    for s in range(8):
        for qt in range(2): p(qk(0, s, qt, zero))
    p('s_nop 7\ns_nop 3')
    rowmax(0, False)
    p(f's_add_u32 s{zN}, s{zN}, 8192\ns_sub_u32 s{sT+3}, s{sT+3}, 1\ns_cmp_lg_u32 s{sT+3}, 0\ns_cbranch_scc1 Z1_loop')
    p.loop_end()
    set_negm()
    for i in range(128): p(f'v_accvgpr_write_b32 a{i}, 0')
    for i in range(4): p(f'v_mov_b32 v{vL+i}, 0')
    p(f's_mov_b32 s{zN}, s{zKV}\ns_mov_b32 s{sT+3}, 16')
    p.loop_begin('Z2_loop', 16, align=False)
    kglob()
    for j in range(8):
        if j % 4 == 0: p(f's_add_u32 m0, s{sT+2}, {1024*j}\ns_nop 0')
        p(f'buffer_load_dwordx4 v{zD + j//4}, s[{S_V}:{S_V+3}], s{zN} offen offset:{1024*(j%4)} lds')
    for s in range(8):
        for qt in range(2): p(qk(0, s, qt, negm))
    p('s_nop 7\ns_nop 3')
    for ops in softmax_ops(0):
        for o in ops: p(o)
    p('s_waitcnt vmcnt(0)')
    for f in range(8):
        for r in vread(0, f, None, base=zV, off0=0): emit(p, r)
    for f in range(8):
        for qt in range(2): p(pv(0, f, qt))
    p(f's_add_u32 s{zN}, s{zN}, 8192\ns_sub_u32 s{sT+3}, s{sT+3}, 1\ns_cmp_lg_u32 s{sT+3}, 0\ns_cbranch_scc1 Z2_loop')
    p.loop_end()
    p('s_nop 7\ns_nop 7')
    for qt in range(2):
        l = vL + 2*qt
        p(f'v_add_f32 v{l}, v{l}, v{l+1}\nv_mov_b32 v{l+1}, v{l}\ns_nop 1\nv_permlane32_swap_b32 v{l}, v{l+1}\ns_nop 1\nv_add_f32 v{l}, v{l}, v{l+1}')
    p('s_branch A_done')
    autowait(z); check(z, 'slow')
    txt = main.text()
    if cfg.jit:
        n_ = [0]
        def jit(m):
            n_[0] += 1
            if n_[0] % cfg.jit: return m.group(0)
            l = f'J{SFX if ";SPLIT" in txt[:m.start()] else ""}_{n_[0]}'
            return (f'  s_mul_i32 s98, s2, {7 + 2*n_[0]}\n  s_mul_i32 s99, s36, {13 + n_[0]}\n  s_add_u32 s98, s98, s99\n  s_getreg_b32 s99, hwreg(HW_REG_SHADER_CYCLES, 0, 8)\n'
                    if False else
                    f'  s_mov_b32 s99, scc\n' if False else '') + f'  s_cselect_b32 s97, 1, 0\n  s_mul_i32 s98, s2, {7 + 2*n_[0]}\n  s_mul_i32 s99, s36, {13 + n_[0]}\n  s_add_u32 s98, s98, s99\n  s_and_b32 s98, s98, 7\n{l}:\n  s_sleep 8\n  s_sub_u32 s98, s98, 1\n  s_cmp_ge_i32 s98, 0\n  s_cbranch_scc1 {l}\n  s_cmp_eq_u32 s97, 1\n' + m.group(0)
        import re
        txt = re.sub(r'  s_barrier', jit, txt)
    pre_, c_ = txt.split(';SPLIT')
    return pre_, c_, z.text(), sJ

def main():
    cfg = Cfg()
    cfg.ts = 1; cfg.xmap = 'b'; cfg.stag = 0; cfg.P = 4; cfg.late1 = 1; cfg.w0 = 0; cfg.cw0 = 8
    cfg.d0 = 0; cfg.dstr = 4; cfg.a0 = 1; cfg.astr = 2; cfg.ad = 3; cfg.PF = 3; cfg.cap = 2
    cfg.cad = 5; cfg.cdstr = 4; cfg.cP = 4; cfg.thr = 40; cfg.tail0 = 4; cfg.sum = 'add'; cfg.hbar = 2; cfg.t1e = 1; cfg.t0e = 0; cfg.npre = 2; cfg.jit = 0; cfg.ost = 'sc1'; cfg.pst = 'sc1'; cfg.m0 = 0; cfg.c3 = 0; cfg.xat = -1; cfg.c3l = 3; cfg.c3s = 2; cfg.wsc = ''; cfg.gsc = ''; cfg.cdel = 0; cfg.ccx = 0; cfg.xbar = 90; cfg.fs1 = 6; cfg.xe = 0; cfg.xchk = 230; cfg.xfl = 60; cfg.xt = 0; cfg.fs = 1; cfg.oes = 2; cfg.sent = 0; cfg.slp2 = 4; cfg.trk = 2; cfg.kvp = 1; cfg.trk0 = 1; cfg.pf4 = 0; cfg.pf4n = 8; cfg.pf3 = 0; cfg.aab = 0; cfg.e64 = ''; cfg.xs = 0; cfg.xl = 1; cfg.cpf2 = 2; cfg.loc = 0; cfg.fremote = 0; cfg.ox = 0; cfg.ramp = 20; cfg.lag = 3; cfg.vmc = 8; cfg.acap = 24; cfg.amax = 40; cfg.wb = 0; cfg.opad = 256; cfg.xpad = 256; cfg.hpad = 0; cfg.oe = 3; cfg.de = 3; cfg.tms = 8; cfg.fl = 128; cfg.dchk = 1.65; cfg.dbg = 0; cfg.cpf = 1; cfg.tlb = 0; cfg.osc = 'sc1'; cfg.slp = 1; cfg.late0 = 2
    for a in sys.argv[2:]:
        k, v = a.split('='); setattr(cfg, k, int(v) if v.lstrip('-').isdigit() else float(v) if v.replace('.','').isdigit() else v)
    kn = NAME + '_kernel'
    hdr = (f'; opad={cfg.opad} hoff={WS_H} xpad={cfg.xpad} hpad={cfg.hpad} ooff={WS_O}\n; @launch grid=(256,1,1) block=(256,1,1) lds={LDS_TOT}\n'
           '.amdgcn_target "amdgcn-amd-amdhsa--gfx950"\n')
    if cfg.fs:
        a, c8, z, sJ = gen(cfg, 8); a6, c6, _, _ = gen(cfg, 6)
        assert a == a6
        body = a + f'  s_bitcmp1_b32 s{sJ}, 0\n  s_cbranch_scc1 C_short\n' + c8 + '\nC_short:\n' + c6
    else:
        a, c7, z, _ = gen(cfg, 7); body = a + c7
    s = hdr + kernel_head(kn) + body + '\nK_end:\n  s_endpgm\n' + z + '\nK_last:\n' + kernel_desc(kn, 512, 256)
    open(sys.argv[1], 'w').write(s)
if __name__ == '__main__': main()
```

```python
import re

TRANS = ('v_exp_f32','v_log_f32','v_rcp_f32','v_rsq_f32','v_sqrt_f32','v_sin_f32','v_cos_f32')

def expand(op):
    op = op.strip()
    op = op.lstrip('-')
    if op.startswith('abs(') : op = op[4:-1]
    if op.startswith('|'): op = op.strip('|')
    m = re.fullmatch(r'([vas])\[(\d+):(\d+)\]', op)
    if m: return [f"{m.group(1)}{i}" for i in range(int(m.group(2)), int(m.group(3))+1)]
    m = re.fullmatch(r'([vas])(\d+)', op)
    if m: return [op]
    if op in ('vcc',): return ['vcc']
    if op in ('vcc_lo','vcc_hi'): return ['vcc']
    if op == 'exec': return ['exec']
    if op == 'm0': return ['m0']
    return []

class I:
    __slots__ = ('text','op','kind','rd','wr','tag','passes','cregs','abregs','wait','skip')
    def __init__(self, text, tag=None):
        self.text = text; self.tag = tag; self.skip = False
        t = text.split(';')[0].strip()
        parts = t.split(None, 1)
        op = parts[0]; self.op = op
        args = [a.strip() for a in parts[1].split(',')] if len(parts) > 1 else []
        mods = []
        if args:
            la = args[-1].split()
            args[-1] = la[0] if la else ''
            mods = la[1:]
        self.rd = set(); self.wr = set(); self.passes = 0; self.cregs = set(); self.abregs = set(); self.wait = None
        E = lambda i: set(expand(args[i])) if i < len(args) else set()
        allargs = lambda lo: set().union(*[E(i) for i in range(lo, len(args))]) if len(args) > lo else set()
        if op.endswith(':'): self.kind = 'label'
        elif op.startswith('.'): self.kind = 'dir'
        elif op.startswith('v_mfma'):
            self.kind = 'mfma'; self.wr = E(0); self.abregs = E(1) | E(2); self.cregs = E(3); self.rd = self.abregs | self.cregs
            self.passes = 8 if '32x32x16' in op else 4
        elif op == 's_waitcnt':
            self.kind = 'wait'; w = {}
            for m in re.finditer(r'(vmcnt|lgkmcnt)\((\d+)\)', t): w[m.group(1)] = int(m.group(2))
            self.wait = w
        elif op == 's_barrier': self.kind = 'barrier'
        elif op == 's_nop': self.kind = 'nop'; self.passes = int(args[0], 0) + 1
        elif op in ('s_endpgm','s_setprio','s_sleep'): self.kind = 'salu'
        elif op.startswith('s_cbranch') or op == 's_branch':
            self.kind = 'branch'
            if 'scc' in op: self.rd = {'scc'}
            if 'vcc' in op: self.rd = {'vcc'}
            if 'exec' in op: self.rd = {'exec'}
        elif op.startswith('s_load') or op.startswith('s_memtime') or op.startswith('s_memrealtime') or op.startswith('s_atomic'):
            self.kind = 'smem'; self.wr = E(0); self.rd = allargs(1)
        elif op.startswith('s_cmp') or op.startswith('s_bitcmp'):
            self.kind = 'salu'; self.rd = allargs(0); self.wr = {'scc'}
        elif op.startswith('s_'):
            self.kind = 'salu'; self.wr = E(0); self.rd = allargs(1)
            if op.split('_')[1] in ('add','sub','addc','subb','lshl','lshr','and','or','xor','andn2','ashr','min','max','not','addk','bfe'): self.wr |= {'scc'}
            if op.startswith('s_cselect') or op.startswith('s_addc') or op.startswith('s_subb'): self.rd |= {'scc'}
            if op.startswith('s_addk') or op.startswith('s_mulk'): self.rd |= E(0)
            if 'saveexec' in op: self.wr |= {'exec','scc'}; self.rd |= {'exec'}
            if op.startswith('s_getreg') or op.startswith('s_getpc'): self.rd = set()
        elif op.startswith('ds_read') or op.startswith('ds_bpermute') or op.startswith('ds_swizzle') or op.startswith('ds_permute'):
            self.kind = 'dsr'; self.wr = E(0); self.rd = allargs(1)
        elif op.startswith('ds_write') :
            self.kind = 'dsw'; self.rd = allargs(0)
        elif op.startswith('ds_'):
            if '_rtn' in op: self.kind = 'dsr'; self.wr = E(0); self.rd = allargs(1)
            else: self.kind = 'dsw'; self.rd = allargs(0)
        elif op.startswith('buffer_load') or op.startswith('global_load'):
            if text.rstrip().endswith(';pf'):
                self.kind = 'dma'; self.rd = allargs(1)
            elif 'lds' in mods or op.startswith('global_load_lds'):
                self.kind = 'dma'; self.rd = allargs(0) | {'m0'}
            else:
                self.kind = 'vld'; self.wr = E(0); self.rd = allargs(1)
        elif op.startswith('buffer_store') or op.startswith('global_store'):
            self.kind = 'vst'; self.rd = allargs(0)
            self.cregs = E(0) if op.startswith('buffer_store') else E(1)
            self.passes = 4 if op.endswith('x4') or op.endswith('x3') else 0
        elif op.startswith('buffer_atomic') or op.startswith('global_atomic'):
            ret = 'sc0' in mods
            self.kind = 'vld' if ret else 'vst'
            self.rd = allargs(0)
            if ret: self.wr = E(0)
        elif op.startswith('buffer_inv') or op.startswith('buffer_wbl2'):
            self.kind = 'vst'
        elif op.startswith('v_'):
            self.kind = 'trans' if op.replace('_e32','').replace('_e64','') in TRANS else 'valu'
            self.wr = E(0); self.rd = allargs(1)
            if op.startswith('v_permlane') and 'swap' in op:
                self.wr = E(0) | E(1); self.rd = E(0) | E(1)
            if op.endswith('_dpp') or op.startswith('v_fmac') or op.startswith('v_pk_fmac') or op.startswith('v_dot2c') or op.startswith('v_writelane'): self.rd |= E(0)
            if op.startswith('v_add_co') or op.startswith('v_addc_co') or op.startswith('v_sub_co'):
                self.wr = E(0) | E(1); self.rd = allargs(2)
            if op.startswith('v_cmpx'): self.wr |= {'exec'}
            if op.startswith('v_cndmask') and len(args) == 3: self.rd |= {'vcc'}
        else:
            raise ValueError('unknown op ' + text)

class Loop:
    def __init__(self, name, count, body): self.name = name; self.count = count; self.body = body

class Ref:
    def __init__(self, loop, count): self.loop = loop; self.count = count

class Prog:
    def __init__(self): self.items = []; self.stack = [self.items]; self.skipping = False
    def __call__(self, text, tag=None):
        for ln in text.split('\n'):
            ln = ln.strip()
            if not ln: continue
            if ln.startswith(';'):
                c = I('.comment'); c.text = ln; self.stack[-1].append(c); continue
            ins = I(ln, tag); ins.skip = self.skipping or ln.endswith(';cond'); self.stack[-1].append(ins)
    def cond(self, on): self.skipping = on
    def add(self, inst): self.stack[-1].append(inst)
    def loop_begin(self, name, count, align=True):
        L = Loop(name, count, [])
        if align: self('.p2align 6')
        self.stack[-1].append(L); self.stack.append(L.body)
        self(f'{name}:')
        return L
    def again(self, loop, count): self.stack[-1].append(Ref(loop, count))
    def loop_end(self): self.stack.pop()
    def text(self):
        out = []
        def w(items):
            for it in items:
                if isinstance(it, Loop): w(it.body)
                elif isinstance(it, Ref): pass
                else: out.append(it.text if it.kind in ('label','dir') else '  ' + it.text)
        w(self.items); return '\n'.join(out)
    def trace(self, maxiter=10**9):
        def w(items, itn):
            for it in items:
                if isinstance(it, Loop):
                    for n in range(min(it.count, maxiter)): yield from w(it.body, n)
                elif isinstance(it, Ref):
                    for n in range(min(it.count, maxiter)): yield from w(it.loop.body, n + 1000)
                elif not it.skip: yield it, itn
        return w(self.items, 0)
    def need(self, tag):
        c = I('.need'); c.text = '; need ' + str(tag); c.kind = 'need'; c.tag = tag; self.stack[-1].append(c)
    def touch(self, opnd):
        c = I('.need'); c.text = '; touch ' + opnd; c.kind = 'touch'; c.rd = set(expand(opnd)); self.stack[-1].append(c)
    def needrd(self, tag):
        c = I('.need'); c.text = '; needrd ' + str(tag); c.kind = 'needrd'; c.tag = tag; self.stack[-1].append(c)

def rtag(tag, itn):
    name, ring, v0, stride = tag
    ver = v0 + itn * stride
    return (name, ver % ring), ver

def autowait(prog, maxiter=10**9):
    need_vm = {}; need_lg = {}
    vm = []; lg = []
    for ins, itn in prog.trace(maxiter):
        k = ins.kind
        if k in ('label','dir','barrier','nop'): continue
        if k == 'wait':
            if 'vmcnt' in ins.wait: del vm[:max(0, len(vm) - ins.wait['vmcnt'])]
            if 'lgkmcnt' in ins.wait: del lg[:max(0, len(lg) - ins.wait['lgkmcnt'])]
            continue
        regs = ins.rd | ins.wr
        def dep(o):
            oi, ot = o
            if k == 'need': return ot is not None and oi.kind in ('dma','dsw','vst') and ot == rtag(ins.tag, itn)
            if k == 'needrd': return ot is not None and oi.kind == 'dsr' and ot[0] == rtag(ins.tag, itn)[0]
            return bool(oi.wr & regs)
        for q, nd, cap in ((vm, need_vm, 63), (lg, need_lg, 15)):
            last = -1
            for i, o in enumerate(q):
                if dep(o): last = i
            if id(ins) in nd:
                n0 = nd[id(ins)]
                del q[:max(0, len(q) - n0)]
                last = -1
                for i, o in enumerate(q):
                    if dep(o): last = i
            if last >= 0:
                n = min(len(q) - 1 - last, cap)
                if q is lg and any(o[0].kind == 'smem' for o in q): n = 0
                nd[id(ins)] = min(nd.get(id(ins), 99), n)
                del q[:len(q) - n]
        tg = rtag(ins.tag, itn) if ins.tag and k in ('dma','dsw','dsr','vst') else None
        if k in ('vld','vst','dma'): vm.append((ins, tg))
        if k in ('dsr','dsw','smem'): lg.append((ins, tg))
    def w(items):
        out = []
        for it in items:
            if isinstance(it, Loop): it.body[:] = w(it.body); out.append(it); continue
            if isinstance(it, Ref): out.append(it); continue
            s = []
            if id(it) in need_vm: s.append(f'vmcnt({need_vm[id(it)]})')
            if id(it) in need_lg: s.append(f'lgkmcnt({need_lg[id(it)]})')
            if s: out.append(I('s_waitcnt ' + ' '.join(s)))
            out.append(it)
        return out
    prog.items[:] = w(prog.items)

def check(prog, name='', maxiter=10**9, verbose=True):
    probs = []
    vm = []
    lg = []
    pend = {}
    state = 0
    last_valu_wr = {}; last_trans_wr = {}; last_mfma_wr = {}; last_mfma_c = {}; last_salu_wr = {}; last_store_data = {}
    valu_sgpr_wr = {}
    reg_state = {}
    nbar = 0
    dma_done_bar = {}
    dma_out = {}
    rd_out = {}
    rd_done_bar = {}
    cur_ver = {}
    seq = 0
    def P(msg, ins): probs.append(f"{name}: {msg}: [{ins.text}] (seq {seq})")
    for ins, itn in prog.trace(maxiter):
        seq += 1
        k = ins.kind
        if k in ('label','dir','need','needrd','touch'): continue
        if k == 'wait':
            if 'vmcnt' in ins.wait:
                n = ins.wait['vmcnt']
                while len(vm) > n:
                    o, s = vm.pop(0)
                    for r in o.wr:
                        if pend.get(r, (None,None,None))[2] == s: del pend[r]
                    if o.kind == 'dma' and o.tag:
                        key = dma_out.pop(s);
                        dma_done_bar[key] = max(dma_done_bar.get(key, -1), nbar)
            if 'lgkmcnt' in ins.wait:
                n = ins.wait['lgkmcnt']
                if n > 0 and any(o.kind == 'smem' for o, s in lg): P('counted lgkmcnt with smem outstanding', ins)
                while len(lg) > n:
                    o, s = lg.pop(0)
                    for r in o.wr:
                        if pend.get(r, (None,None,None))[2] == s: del pend[r]
                    if s in rd_out:
                        rg = rd_out.pop(s); rd_done_bar[rg] = max(rd_done_bar.get(rg, -1), nbar)
                    if s in dma_out:
                        key = dma_out.pop(s); dma_done_bar[key] = max(dma_done_bar.get(key, -1), nbar)
            state += 1; continue
        if k == 'barrier': nbar += 1; state += 1; continue
        if k == 'nop': state += ins.passes; continue
        for r in ins.rd | ins.wr:
            if r in pend: P(f'reg {r} has pending load [{pend[r][1].text}]', ins)
        def dist(tbl, r): return state - tbl[r][0] - 1 if r in tbl else 1000
        isvalu = k in ('valu','trans')
        if k == 'mfma':
            for r in ins.rd:
                if dist(last_valu_wr, r) < 2: P(f'VALU->MFMA {r} needs 2', ins)
            for r in ins.abregs:
                if r in last_mfma_wr:
                    need = {4: 8, 8: 12}[last_mfma_wr[r][1].passes]
                    if dist(last_mfma_wr, r) < need: P(f'MFMA D->MFMA AB {r} needs {need}', ins)
            for r in ins.cregs:
                if r in last_mfma_wr:
                    p = last_mfma_wr[r][1]
                    if p.wr == ins.cregs and p.passes == ins.passes: pass
                    else:
                        need = {4: 6, 8: 10}[p.passes]
                        if dist(last_mfma_wr, r) < need: P(f'MFMA D->MFMA C partial {r} needs {need}', ins)
            for r in ins.wr - ins.cregs:
                if r in last_mfma_wr:
                    need = {4: 8, 8: 12}[last_mfma_wr[r][1].passes]
                    if dist(last_mfma_wr, r) < need: P(f'MFMA D->MFMA D WAW {r} needs {need}(conservative)', ins)
                if r in last_mfma_c:
                    need = {4: 3, 8: 7}[last_mfma_c[r][1].passes]
                    if dist(last_mfma_c, r) < need: P(f'MFMA C read -> MFMA write {r} needs {need}(conservative)', ins)
            if dist(last_valu_wr, 'exec') < 4: P('exec write -> mfma', ins)
        else:
            for r in ins.rd | ins.wr:
                if r in last_mfma_wr:
                    need = {4: 8, 8: 12}[last_mfma_wr[r][1].passes]
                    if dist(last_mfma_wr, r) < need: P(f'MFMA D->use {r} needs {need}', ins)
            if isvalu or k in ('vld','dsr'):
                for r in ins.wr:
                    if r in last_mfma_c and isvalu:
                        need = {4: 3, 8: 7}[last_mfma_c[r][1].passes]
                        if dist(last_mfma_c, r) < need: P(f'MFMA C read -> VALU write {r} needs {need}', ins)
                    if r in last_store_data and dist(last_store_data, r) < 2: P(f'store data WAR {r}', ins)
        if isvalu:
            if k == 'valu':
                for r in ins.rd:
                    if dist(last_trans_wr, r) < 1: P(f'trans->valu {r}', ins)
            if ins.op.startswith('v_permlane'):
                for r in ins.rd:
                    if dist(last_valu_wr, r) < 2: P(f'VALU->permlane {r} needs 2', ins)
            if ins.op.startswith('v_readfirstlane') or ins.op.startswith('v_readlane'):
                for r in ins.rd:
                    if r[0] == 'v' and r != 'vcc' and dist(last_valu_wr, r) < 1: P(f'VALU->readlane {r} needs 1', ins)
            if 'dpp' in ins.text or 'row_' in ins.text or 'quad_perm' in ins.text:
                for r in ins.rd:
                    if dist(last_valu_wr, r) < 2: P(f'VALU->DPP {r} needs 2', ins)
            for r in ins.rd:
                if (r[0] == 's' or r == 'vcc') and dist(valu_sgpr_wr, r) < 2: P(f'VALU sgpr wr->VALU rd {r} needs 2', ins)
        if k in ('vld','vst','dma'):
            for r in ins.rd:
                if r[0] == 's' and dist(valu_sgpr_wr, r) < 5: P(f'VALU sgpr->VMEM {r} needs 5', ins)
            if k == 'dma' and 'm0' in ins.rd and dist(last_salu_wr, 'm0') < 1: P('m0 write -> dma needs 1', ins)
        if k in ('salu','branch','smem'):
            for r in ins.rd:
                if dist(valu_sgpr_wr, r) < 1 and r != 'scc': P(f'VALU sgpr wr->SALU rd {r} (pad 1)', ins)
        if 'scc' in ins.rd:
            lw = last_salu_wr.get('scc', (0, None))[1]
            if ins.op == 's_subb_u32': pass
            elif ins.op == 's_addc_u32':
                lo_ = 's%d' % (int(sorted(ins.wr - {'scc'})[0][1:]) - 1)
                if lw is None or lw.op != 's_add_u32' or lo_ not in lw.wr: P('s_addc without its s_add', ins)
            elif lw is None or not lw.op.startswith(('s_cmp', 's_bitcmp')): P('scc read not fed by s_cmp (last writer %s)' % (lw.text if lw else None), ins)
        if ins.tag and k in ('dma','dsw'):
            rg, ver = rtag(ins.tag, itn)
            if cur_ver.get(rg) != ver:
                if any(v == rg for v in rd_out.values()): P(f'LDS WAR: reads of {rg} still outstanding', ins)
                elif rd_done_bar.get(rg, -1) >= nbar: P(f'LDS WAR: no barrier since last read of {rg} completed', ins)
                cur_ver[rg] = ver
            dma_out[seq] = (rg, ver)
        if ins.tag and k == 'dsr' and ins.tag[0].endswith('!'): pass
        elif ins.tag and k == 'dsr':
            rg, ver = rtag(ins.tag, itn)
            if cur_ver.get(rg) != ver: P(f'LDS read of {rg} ver {ver} but current {cur_ver.get(rg)}', ins)
            if any(v == (rg, ver) for v in dma_out.values()): P(f'LDS RAW: write to {rg} outstanding', ins)
            elif dma_done_bar.get((rg, ver), -1) >= nbar: P(f'LDS RAW: no barrier after write to {rg} done', ins)
            rd_out[seq] = rg
        if k in ('vld','vst','dma'):
            vm.append((ins, seq))
            if len(vm) > 63: P('vmcnt overflow', ins)
            for r in ins.wr: pend[r] = ('vm', ins, seq)
            if k == 'vst' and ins.passes:
                for r in ins.cregs: last_store_data[r] = (state, ins)
        if k in ('dsr','dsw','smem'):
            lg.append((ins, seq))
            for r in ins.wr: pend[r] = ('lg', ins, seq)
        if k == 'mfma':
            for r in ins.wr: last_mfma_wr[r] = (state, ins); last_valu_wr.pop(r, None)
            for r in ins.cregs: last_mfma_c[r] = (state, ins)
        if isvalu:
            for r in ins.wr:
                last_valu_wr[r] = (state, ins); last_mfma_wr.pop(r, None)
                if k == 'trans': last_trans_wr[r] = (state, ins)
                else: last_trans_wr.pop(r, None)
                if r[0] == 's' or r == 'vcc': valu_sgpr_wr[r] = (state, ins)
        if k == 'salu':
            for r in ins.wr: last_salu_wr[r] = (state, ins); valu_sgpr_wr.pop(r, None)
        if k in ('vld','dsr'):
            for r in ins.wr: last_mfma_wr.pop(r, None); last_valu_wr.pop(r, None)
        state += 1
    if verbose:
        seen = set()
        for p in probs:
            key = p.split('(seq')[0]
            if key in seen: continue
            seen.add(key); print('CHECK', p)
            if len(seen) > 40: break
    return probs

def hoist(prog, kinds=('wait', 'salu', 'dsr', 'dma', 'vld', 'vst'), past_trans=True):
    def indep(a, b):
        return not (a.wr & (b.rd | b.wr) or b.wr & a.rd)
    n = [0]
    def w(items):
        out = []
        for it in items:
            if isinstance(it, Loop): w2 = w(it.body); it.body[:] = w2; out.append(it); continue
            if isinstance(it, Ref) or it.skip or it.kind not in kinds or it.op in ('s_endpgm', 's_sleep'):
                out.append(it); continue
            j = len(out)
            while j > 0:
                pv = out[j-1]
                if isinstance(pv, (Loop, Ref)) or pv.skip: break
                if pv.kind in ('touch', 'need', 'needrd') : j -= 1; continue
                if pv.kind == 'valu' or (pv.kind == 'trans' and past_trans):
                    if not indep(pv, it): break
                    if it.kind == 'vst' and pv.wr & it.rd: break
                    j -= 1; continue
                break
            k = j
            while k > 0 and not isinstance(out[k-1], (Loop, Ref)) and out[k-1].kind in kinds + ('touch', 'need', 'needrd', 'barrier') and not out[k-1].skip: k -= 1
            if j < len(out) and k > 0 and not isinstance(out[k-1], (Loop, Ref)) and out[k-1].kind == 'mfma' and any(x.kind in ('valu', 'trans') for x in out[j:]):
                out.insert(j, it); n[0] += 1
            else: out.append(it)
        return out
    prog.items[:] = w(prog.items)
    return n[0]
```

```python
import sys, struct, math
from dsl import *
from gen2 import (f2u, srd, kernel_head, kernel_desc, emit, interleave, spread, m0gap, fix_m0, chk_tail, Cfg)

NAME = 'recurrent_scan__sliding_block_cached__geglu_ffn__prompt'
WS_XN = 0
WS_O  = 5 << 20
WS_H  = 23 << 20
WS_G  = 36 << 20
WS_FL = 40 << 20
WS_ST = 41 << 20
WS_TS = 48 << 20
WS_P  = 64 << 20
HS = 22528; NHS = 7
LDS_SCR = NHS*HS
LDS_TOT = 163840

class TS:
    def __init__(self, on): self.on = on; self.n = 0
    def text(self, grp):
        if not self.on & grp or self.n >= 14: return None
        s = 88 + self.n; self.n += 1
        clk = 's_memtime' if self.on & 8 else 's_memrealtime'
        return f's_waitcnt lgkmcnt(0)\n{clk} s[4:5]\ns_waitcnt lgkmcnt(0)\ns_mov_b32 s{s}, s4'
    def stamp(self, p, grp=1):
        t = self.text(grp)
        if t: p(t)
    def old(self, p):
        if not self.on: return
        s = 88 + self.n; self.n += 1;
        if s >= 102: return
        p(f's_waitcnt lgkmcnt(0)\ns_memrealtime s[4:5]\ns_waitcnt lgkmcnt(0)\ns_mov_b32 s{s}, s4')
    def dump(self, p, wsptr):
        if not self.on: return
        if self.on & 16:
            p('s_load_dwordx2 s[12:13], s[0:1], 80\ns_waitcnt lgkmcnt(0)\ns_mov_b32 s14, 256\ns_mov_b32 s15, 0x20000\nv_mov_b32 v8, 0\ns_mov_b64 exec, 1')
            for i in range(min(self.n, 14)):
                p(f's_sub_u32 s4, s{88+i}, s6\nv_mov_b32 v4, s4\nbuffer_atomic_smax v4, v8, s[12:15], 0 offen offset:{8+4*i}\ns_nop 1')
            return
        srd(p, 12, wsptr, WS_TS, 1 << 20)
        p('s_lshl_b32 s3, s2, 8\ns_lshl_b32 s4, s36, 6\ns_add_u32 s3, s3, s4\nv_mov_b32 v8, s3')
        p('s_getreg_b32 s4, hwreg(HW_REG_XCC_ID, 0, 4)\nv_mov_b32 v4, s4\nbuffer_store_dword v4, v8, s[12:15], 0 offen offset:60\ns_nop 1')
        for i in range(min(self.n, 14)):
            p(f'v_mov_b32 v4, s{88+i}\nbuffer_store_dword v4, v8, s[12:15], 0 offen offset:{4*i}\ns_nop 1')

def gen(cfg, ND):
    SFX = f'_{ND}'
    OST = 131072 + cfg.opad; XST = 32768 + cfg.xpad; HST = 112*1024 + cfg.hpad
    p = Prog(); ts = TS(cfg.ts)
    SC = ' sc1'; LS = '' if cfg.loc else ' sc1'
    assert cfg.xmap == 'c' or not cfg.loc
    pX, pK, pV, pWQ, pWO, pWG, pWU, pWD, pOUT, pDBG, pWS = 64, 66, 68, 70, 72, 76, 78, 80, 82, 84, 86
    S_W, S_Q, S_XN, S_H, S_K, S_V, S_O = 8, 12, 16, 20, 24, 28, 32
    S_FL, S_DB = 56, 60
    sW, sRB, sCB, sKW, sKQ, sKA, sCNT = 36, 37, 38, 39, 40, 41, 42
    sMW, sMQ, sRD, sDL, sLEFT, sLEFA, sRW, sRQ = 43, 44, 45, 46, 47, 48, 49, 3
    sT = 50
    p('K_first:\ns_cmp_ge_u32 s2, 256\ns_cbranch_scc1 K_end')
    p('s_load_dwordx16 s[64:79], s[0:1], 0\ns_load_dwordx8 s[80:87], s[0:1], 64')
    p(f'v_lshrrev_b32 v2, 6, v0\nv_and_b32 v1, 63, v0\nv_readfirstlane_b32 s{sW}, v2')
    p(f's_and_b32 s{sT}, s2, 7\ns_lshr_b32 s{sT+1}, s2, 3')
    if cfg.xmap == 'c':
        p(f's_and_b32 s{sRB}, s{sT}, 1\ns_lshl_b32 s{sRB}, s{sRB}, 2\ns_and_b32 s{sT+2}, s{sT+1}, 3\ns_add_u32 s{sRB}, s{sRB}, s{sT+2}')
        p(f's_lshr_b32 s{sCB}, s{sT}, 1\ns_lshl_b32 s{sCB}, s{sCB}, 3\ns_lshr_b32 s{sT+2}, s{sT+1}, 2\ns_add_u32 s{sCB}, s{sCB}, s{sT+2}')
    else:
        p(f's_and_b32 s{sRB}, s{sT+1}, 7\ns_lshl_b32 s{sCB}, s{sT}, 2\ns_lshr_b32 s{sT+2}, s{sT+1}, 3\ns_add_u32 s{sCB}, s{sCB}, s{sT+2}')
    vAct, vDW, vDQ, vTr, vTq, vT = 4, 8, 15, 19, 20, 28
    vA, RA = 32, 8
    vB, RB = 64, 4
    def acc(t, b):
        if t < 16: c = (t*4+b)*4; return f'a[{c}:{c+3}]'
        c = 160 + ((t-16)*4+b)*4; return f'v[{c}:{c+3}]'
    def accr(t, b, r):
        if t < 16: return f'a{(t*4+b)*4+r}'
        return f'v{160+((t-16)*4+b)*4+r}'
    vLX, vLO, vLS = 128, 129, 130
    t = 132
    p(f's_lshl_b32 s{sT}, s{sRB}, 8\ns_lshl_b32 s{sT+1}, s{sCB}, 3\ns_add_u32 s{sT}, s{sT}, s{sT+1}\ns_lshl_b32 s{sT}, s{sT}, 11\ns_lshl_b32 s{sT+1}, s{sW}, 9\ns_add_u32 s{sT}, s{sT}, s{sT+1}')
    p(f'v_and_b32 v{t}, 7, v1\nv_bfe_u32 v{t+1}, v1, 3, 1\nv_lshrrev_b32 v{t+2}, 4, v1')
    p(f'v_lshlrev_b32 v{t+3}, 11, v{t}\nv_lshlrev_b32 v{t+4}, 8, v{t+1}\nv_lshlrev_b32 v{t+5}, 4, v{t+2}\nv_add3_u32 v{t+3}, v{t+3}, v{t+4}, v{t+5}\nv_add_u32 v{vLX}, s{sT}, v{t+3}')
    p(f's_lshl_b32 s{sT}, s{sRB}, 4\ns_lshr_b32 s{sT+1}, s{sCB}, 1\ns_add_u32 s{sT}, s{sT}, s{sT+1}\ns_mul_i32 s{sT}, s{sT}, {XST}\ns_lshl_b32 s{sT+1}, s{sW}, 13\ns_add_u32 s{sT}, s{sT}, s{sT+1}')
    p(f's_and_b32 s{sT+1}, s{sCB}, 1\ns_lshl_b32 s{sT+1}, s{sT+1}, 7\ns_add_u32 s{sT}, s{sT}, s{sT+1}')
    p(f'v_lshlrev_b32 v{t+3}, 4, v{t}\nv_lshlrev_b32 v{t+4}, 12, v{t+1}\nv_lshlrev_b32 v{t+5}, 8, v{t+2}\nv_add3_u32 v{t+4}, v{t+3}, v{t+4}, v{t+5}\nv_add_u32 v{vLO}, s{sT}, v{t+4}')
    p(f'v_add_u32 v{vLS}, {LDS_SCR}, v{t+3}\nv_lshl_add_u32 v{vLS+1}, v2, 2, v{vLS}')
    p(f's_and_b32 s{sT}, s{sW}, 1\ns_mul_i32 s{sT}, s{sT}, {32*7168}\ns_mul_i32 s{sT+1}, s{sCB}, 224\ns_add_u32 s{sT}, s{sT}, s{sT+1}')
    p(f's_mov_b32 s{sT+1}, 4682\ns_mov_b32 s{sT+2}, 7168')
    for n in range(448): assert (n*4682) >> 16 == n // 14
    t = 32
    for pc in range(7):
        p(f'v_add_u32 v{t}, {64*pc}, v1')
        p(f'v_mul_u32_u24 v{t+1}, s{sT+1}, v{t}\nv_lshrrev_b32 v{t+1}, 16, v{t+1}')
        p(f'v_mul_u32_u24 v{t+2}, 14, v{t+1}\nv_sub_u32 v{t+2}, v{t}, v{t+2}')
        p(f'v_and_b32 v{t+3}, 0x13, v{t+1}\nv_and_b32 v{t+4}, 4, v{t+1}\nv_lshl_or_b32 v{t+3}, v{t+4}, 1, v{t+3}')
        p(f'v_bfe_u32 v{t+4}, v{t+1}, 3, 1\nv_lshl_or_b32 v{t+3}, v{t+4}, 2, v{t+3}')
        p(f'v_mul_u32_u24 v{t+3}, s{sT+2}, v{t+3}\nv_lshlrev_b32 v{t+2}, 4, v{t+2}\nv_add3_u32 v{vDW+pc}, v{t+3}, v{t+2}, s{sT}')
        if pc % 4: p(f'v_subrev_u32 v{vDW+pc}, {1024*(pc%4)}, v{vDW+pc}')
    p(f's_lshl_b32 s{sT}, s{sW}, 17\ns_lshl_b32 s{sT+1}, s{sCB}, 8\ns_add_u32 s{sT}, s{sT}, s{sT+1}')
    p(f'v_lshrrev_b32 v{t}, 4, v1\nv_and_b32 v{t+1}, 15, v1\nv_lshlrev_b32 v{t+2}, 1, v{t}\nv_xor_b32 v{t+1}, v{t+1}, v{t+2}')
    p(f'v_lshlrev_b32 v{t}, 13, v{t}\nv_add_u32 v{t}, s{sT}, v{t}')
    for j in range(4):
        p(f'v_xor_b32 v{t+2}, {8*(j>>1)}, v{t+1}\nv_lshl_add_u32 v{t+2}, v{t+2}, 4, v{t}')
        p(f'v_add_u32 v{vDQ+j}, {j*(4*8192-1024)}, v{t+2}')
    p(f's_and_b32 s{sT}, s{sW}, 1\ns_lshr_b32 s{sT+1}, s{sW}, 1')
    p(f's_mul_i32 s{sMW}, s{sT}, {HS}\ns_mul_i32 s{sRW}, s{sT+1}, 7168')
    p(f's_mul_i32 s{sMQ}, s{sT+1}, {HS}\ns_lshl_b32 s{sRQ}, s{sT}, 12\ns_add_u32 s{sRQ}, s{sRQ}, 14336')
    KW, KQ, KA, NT = 64*7168, 64*8192, 2048, 16
    p(f's_mov_b32 s{sKW}, 0\ns_mov_b32 s{sKQ}, 0\ns_mov_b32 s{sKA}, {2*KA}')
    p(f's_mov_b32 s{sRD}, 0')
    sNO = 6
    vRX = 140; RAWL = 4*HS
    p(f's_lshl_b32 s{sT}, s{sRB}, 8\ns_lshl_b32 s{sT+1}, s{sW}, 6\ns_add_u32 s{sT+5}, s{sT}, s{sT+1}\ns_lshl_b32 s{sT}, s{sT+5}, 11')
    p(f'v_and_b32 v32, 15, v1\nv_lshrrev_b32 v34, 4, v1')
    for j in range(4):
        p(f'v_add_u32 v33, {4*j}, v34\nv_xor_b32 v35, v33, v32\nv_lshlrev_b32 v33, 11, v33\nv_lshl_add_u32 v33, v35, 4, v33\ns_sub_u32 s{sT+1}, s{sT}, {1024*j}\nv_add_u32 v{vRX+j}, s{sT+1}, v33')
    vSR = 139
    p(f's_lshl_b32 s{sT}, s{sT+5}, 4\nv_lshl_add_u32 v{vSR}, v32, 4, s{sT}')
    p('s_waitcnt lgkmcnt(0)')
    ts.stamp(p, 33)
    S_X0 = S_H
    srd(p, S_X0, pX, 0, 4 << 20)
    vLD = 144
    for i in range(4): p(f'buffer_load_dwordx4 v[{vLD+4*i}:{vLD+4*i+3}], v{vLX}, s[{S_X0}:{S_X0+3}], 0 offen offset:{64*i}')
    def raw(q):
        p(f's_lshl_b32 s{sT}, s{sW}, 14\ns_add_u32 m0, s{sT}, {RAWL + 4096*q}\ns_mov_b32 s{sT}, {32768*q}')
        for j in range(4): p(f'buffer_load_dwordx4 v{vRX+j}, s[{S_X0}:{S_X0+3}], s{sT} offen offset:{1024*j} lds', ('R', 1, 0, 0))
    srd(p, S_DB, pDBG, 0, 256)
    p(f's_lshl_b32 s{sT}, s2, 2\ns_add_u32 s{sT}, s{sT}, s{sW}\ns_cmp_eq_u32 s{sT}, 1\ns_cbranch_scc0 L_no_nonce')
    p.cond(True)
    p(f's_memrealtime s[{sNO}:{sNO+1}]\nv_mov_b32 v34, 0\ns_waitcnt lgkmcnt(0)\ns_and_b32 s{sNO}, s{sNO}, 0xffffffc0\ns_or_b32 s{sNO}, s{sNO}, 1\ns_getreg_b32 s{sT}, hwreg(HW_REG_XCC_ID, 0, 1)\ns_lshl_b32 s{sT}, s{sT}, 5\ns_or_b32 s{sNO}, s{sNO}, s{sT}\nv_mov_b32 v32, s{sNO}\nv_mov_b32 v33, s{sNO+1}')
    p(f'buffer_store_dwordx2 v[32:33], v34, s[{S_DB}:{S_DB+3}], 0 offen sc1')
    p.cond(False)
    p('L_no_nonce:')
    p(f's_cmp_ge_u32 s{sW}, 2\ns_cselect_b32 s{S_W}, s{pWU}, s{pWG}\ns_cselect_b32 s{S_W+1}, s{pWU+1}, s{pWG+1}')
    p(f's_mov_b32 s{S_W+2}, {1024*7168:#x}\ns_mov_b32 s{S_W+3}, 0x20000')
    srd(p, S_Q, pWQ, 0, 8 << 20)
    def adv_w():
        return [f's_add_u32 s{sKW}, s{sKW}, {KW}',
                f's_add_u32 s{sMW}, s{sMW}, {2*HS}', f's_cmp_ge_u32 s{sMW}, {NHS*HS}\ns_cselect_b32 s{sT}, {NHS*HS}, 0\ns_sub_u32 s{sMW}, s{sMW}, s{sT}']
    def adv_q():
        return [f's_add_u32 s{sKQ}, s{sKQ}, {KQ}',
                f's_add_u32 s{sMQ}, s{sMQ}, {2*HS}', f's_cmp_ge_u32 s{sMQ}, {NHS*HS}\ns_cselect_b32 s{sT}, {NHS*HS}, 0\ns_sub_u32 s{sMQ}, s{sMQ}, s{sT}']
    def adv_a():
        return [f's_add_u32 s{sKA}, s{sKA}, {KA}',
                f's_cmp_eq_u32 s{sKA}, {NT*KA}\ns_cselect_b32 s{S_XN+2}, 0, s{S_XN+2}']
    def adv_rd():
        return [f's_add_u32 s{sRD}, s{sRD}, {HS}', f's_mov_b32 s{sDL}, {HS}',
                f's_cmp_eq_u32 s{sRD}, {NHS*HS}\ns_cselect_b32 s{sDL}, {-(NHS-1)*HS}, s{sDL}\ns_cselect_b32 s{sRD}, 0, s{sRD}']
    def dma(pc, tile, stride):
        tag = ('W', NHS, 2*tile + 1, 2*stride)
        if pc < 7: return (f'buffer_load_dwordx4 v{vDW+pc}, s[{S_W}:{S_W+3}], s{sKW} offen offset:{1024*(pc%4)} {cfg.gsc} lds', tag)
        return (f'buffer_load_dwordx4 v{vDQ+pc-7}, s[{S_Q}:{S_Q+3}], s{sKQ} offen offset:{1024*(pc-7)} {cfg.gsc} lds', tag)
    def m0set(pc):
        if pc == 0: return [f's_add_u32 m0, s{sMW}, s{sRW}']
        if pc == 4: return [f's_add_u32 m0, m0, 4096']
        if pc == 7: return [f's_add_u32 m0, s{sMQ}, s{sRQ}']
        return []
    def dma_tile(tile):
        for d in range(11):
            for x in m0set(d): p(x)
            if m0set(d): p('s_nop 0')
            emit(p, dma(d, tile, 0))
            if d == 6:
                for x in adv_w(): p(x)
            if d == 10:
                for x in adv_q(): p(x)
    if cfg.t0e & 1: dma_tile(0)
    if cfg.t0e & 2:
        for q in range(4): raw(q)
    srd(p, S_FL, pWS, WS_FL, 2304*128)
    srd(p, S_XN, pWS, WS_XN, 5 << 20)
    vP1, vP2, vPD = 136, 137, 138
    def code_srd(q, lbl):
        return [f's_getpc_b64 s[{q}:{q+1}]\n{lbl}:\ns_sub_u32 s{q}, s{q}, {lbl}-K_first\ns_subb_u32 s{q+1}, s{q+1}, 0', f's_mov_b32 s{q+2}, K_last-K_first', f's_mov_b32 s{q+3}, 0x20000']
    def code_pf(q, dst):
        return [f'buffer_load_dword v{dst}, v0, s[{q}:{q+3}], 0 offen ;pf']
    for x in code_srd(S_O, 'L_pc1'): p(x)
    p(f's_lshr_b32 s{sT}, s2, 3\ns_lshl_b32 s{sT}, s{sT}, 2\ns_add_u32 s{sT}, s{sT}, s{sW}\ns_lshl_b32 s{sT}, s{sT}, 10\nv_and_b32 v32, 15, v1\nv_mov_b32 v44, v0\nv_lshl_add_u32 v0, v32, 6, s{sT}')
    for x in code_pf(S_O, vPD): p(x)
    p(f's_lshl_b32 s{sT}, s{sRB}, 4\ns_lshl_b32 s{sT+1}, s{sW}, 2\ns_add_u32 s{sT}, s{sT}, s{sT+1}\ns_mul_i32 s{sT}, s{sT}, {XST}')
    p(f'v_lshlrev_b32 v{vT}, 4, v1\nv_add_u32 v{vAct}, s{sT}, v{vT}')
    for b in range(1, 4): p(f'v_add_u32 v{vAct+b}, {b*XST:#x}, v{vAct}')
    t = 32
    p(f'v_lshrrev_b32 v{t}, 5, v1\nv_lshlrev_b32 v{t}, 4, v{t}\nv_bfe_u32 v{t+1}, v1, 4, 1\nv_lshlrev_b32 v{t+1}, 2, v{t+1}\nv_bfe_u32 v{t+2}, v1, 2, 2')
    p(f'v_add3_u32 v{t}, v{t}, v{t+1}, v{t+2}\nv_mul_u32_u24 v{t}, 224, v{t}\nv_and_b32 v{t+3}, 3, v1\nv_lshlrev_b32 v{t+3}, 3, v{t+3}\nv_add_u32 v{vTr}, v{t}, v{t+3}')
    p(f'v_or_b32 v{t+1}, v{t+1}, v{t+2}')
    p(f'v_lshrrev_b32 v{t}, 4, v1\nv_lshlrev_b32 v{t}, 3, v{t}\nv_add_u32 v{t}, v{t}, v{t+2}\nv_lshlrev_b32 v{t}, 8, v{t}')
    p(f'v_add_u32 v{t}, 14336, v{t}\nv_add_u32 v{t}, v{t}, v{t+3}')
    for tt in range(8):
        p(f'v_xor_b32 v{t+2}, {tt}, v{t+1}\nv_lshl_add_u32 v{vTq+tt}, v{t+2}, 5, v{t}')
    if cfg.trk:
        p(f'v_lshrrev_b32 v32, 3, v1\nv_and_b32 v33, 7, v1\ns_lshl_b32 s{sT}, s{sRB}, 3\ns_add_u32 s{sT}, s{sT}, {64*cfg.trk}\nv_add_u32 v32, s{sT}, v32\nv_lshlrev_b32 v35, 6, v33')
        p(f's_mul_i32 s{sT+1}, s{sCB}, 224\ns_add_u32 s{sT+2}, s{sT+1}, {224+127}\ns_and_b32 s{sT+1}, s{sT+1}, -128\ns_and_b32 s{sT+2}, s{sT+2}, -128\ns_sub_u32 s{sT+2}, s{sT+2}, s{sT+1}')
        p(f'v_mul_u32_u24 v34, 7168, v32\nv_add3_u32 v{vP1}, v34, v35, s{sT+1}')
        p(f'v_lshlrev_b32 v34, 13, v32\ns_lshl_b32 s{sT+1}, s{sCB}, 8\nv_add3_u32 v{vP2}, v34, v35, s{sT+1}')
        p(f'v_cmp_gt_u32 vcc, s{sT+2}, v35\ns_and_b32 s{sT}, s{sW}, 1\ns_cmp_eq_u32 s{sT}, 0\ns_cselect_b64 vcc, vcc, 0\nv_mov_b32 v34, 0xf0000000\ns_nop 1\nv_cndmask_b32 v{vP1}, v34, v{vP1}, vcc')
        p(f'v_cmp_gt_u32 vcc, 4, v33\ns_cmp_eq_u32 s{sW}, 1\ns_cselect_b64 vcc, vcc, 0\ns_nop 1\nv_cndmask_b32 v{vP2}, v34, v{vP2}, vcc')
    def touch_tiles(tiles):
        p(f'v_subrev_u32 v34, {64*cfg.trk*7168}, v{vP1}\nv_subrev_u32 v35, {64*cfg.trk*8192}, v{vP2}')
        for tl in tiles:
            p(f's_mov_b32 s{sT}, {tl*KW}\ns_mov_b32 s{sT+1}, {tl*KQ}')
            p(f'buffer_load_dword v{vPD}, v34, s[{S_W}:{S_W+3}], s{sT} offen ;pf\nbuffer_load_dword v{vPD}, v35, s[{S_Q}:{S_Q+3}], s{sT+1} offen ;pf')
    if cfg.trk: touch_tiles(([] if cfg.t0e & 1 else [0]) + ([1] if cfg.t1e else []))
    ts.stamp(p, 32)
    X = 160; sM = sT + 4
    p(f's_mov_b32 s{sM}, 0xffff0000')
    p(f's_lshl_b32 s{sT}, s{sRB}, 5\ns_add_u32 s{sT+1}, s{sT}, s{sCB}\ns_lshl_b32 s{sT+1}, s{sT+1}, 7\nv_mov_b32 v45, s{sT+1}')
    p(f's_lshl_b32 s{sT+3}, s{sT+1}, 2\ns_lshl_b32 s{sT+2}, s{sW}, 7\ns_add_u32 s{sT+3}, s{sT+3}, s{sT+2}\ns_add_u32 s{sT+3}, s{sT+3}, {1280*128}\nv_mov_b32 v31, s{sT+3}')
    p(f's_lshl_b32 s{sT+2}, s{sW}, 3\ns_add_u32 s{sT}, s{sT}, s{sT+2}\ns_lshl_b32 s{sT}, s{sT}, 9\ns_add_u32 s{sT}, s{sT}, {1280*128}\nv_and_b32 v30, 31, v1\nv_lshl_add_u32 v30, v30, 7, s{sT}')
    p(f'v_lshl_add_u32 v46, v1, 4, v45\nv_cmp_gt_u32 vcc, 8, v1\nv_mov_b32 v47, -1\ns_nop 0\nv_cndmask_b32 v46, v47, v46, vcc\nv_mov_b32 v44, 0')
    for i in range(16): p(f'v_lshlrev_b32 v{X+2*i}, 16, v{vLD+i}\nv_and_b32 v{X+2*i+1}, s{sM}, v{vLD+i}')
    def red(v, tt, off):
        p(f's_nop 1\nv_add_f32_dpp v{v}, v{v}, v{v} row_ror:8 row_mask:0xf bank_mask:0xf')
        p(f'v_mov_b32 v{tt}, v{v}\ns_nop 1\nv_permlane16_swap_b32 v{v}, v{tt}\ns_nop 1\nv_add_f32 v{v}, v{v}, v{tt}')
        p(f'v_mov_b32 v{tt}, v{v}\ns_nop 1\nv_permlane32_swap_b32 v{v}, v{tt}\ns_nop 1\nv_add_f32 v{v}, v{v}, v{tt}')
        p(f'ds_write_b32 v{vLS+1}, v{v} offset:{off}\ns_waitcnt lgkmcnt(0)\ns_barrier')
        p(f'ds_read_b128 v[40:43], v{vLS} offset:{off}')
        p(f'v_add_f32 v40, v40, v41\nv_add_f32 v42, v42, v43\nv_add_f32 v{v}, v40, v42\nv_mul_f32 v{v}, {f2u(1/1024):#x}, v{v}')
    ts.stamp(p, 32)
    p(f'buffer_load_dwordx2 v[2:3], v44, s[{S_DB}:{S_DB+3}], 0 offen sc1')
    for a in range(0, 4, 2): p(f'v_pk_add_f32 v[{32+a}:{33+a}], v[{X+a}:{X+a+1}], v[{X+4+a}:{X+5+a}]')
    for i in range(8, 32, 2): p(f'v_pk_add_f32 v[{32+i%4}:{33+i%4}], v[{32+i%4}:{33+i%4}], v[{X+i}:{X+i+1}]')
    p('v_pk_add_f32 v[32:33], v[32:33], v[34:35]\nv_add_f32 v32, v32, v33')
    red(32, 33, 0)
    p('v_mov_b32 v33, v32')
    for i in range(0, 32, 2): p(f'v_pk_add_f32 v[{X+32+i}:{X+33+i}], v[{X+i}:{X+i+1}], v[32:33] neg_lo:[0,1] neg_hi:[0,1]')
    for a in range(0, 4, 2): p(f'v_pk_mul_f32 v[{36+a}:{37+a}], v[{X+32+a}:{X+33+a}], v[{X+32+a}:{X+33+a}]')
    for i in range(4, 32, 2): p(f'v_pk_fma_f32 v[{36+i%4}:{37+i%4}], v[{X+32+i}:{X+33+i}], v[{X+32+i}:{X+33+i}], v[{36+i%4}:{37+i%4}]')
    p('v_pk_add_f32 v[36:37], v[36:37], v[38:39]\nv_add_f32 v36, v36, v37')
    red(36, 37, 128)
    def rnd(v): p(f'v_cvt_pk_bf16_f32 v{v}, v{v}, v{v}\nv_lshlrev_b32 v{v}, 16, v{v}')
    rnd(32); rnd(36)
    p(f'v_add_f32 v36, {f2u(1e-5):#x}, v36'); rnd(36)
    p('v_sqrt_f32 v36, v36\ns_nop 0'); rnd(36)
    p('v_rcp_f32 v36, v36')
    S_ST = S_V
    srd(p, S_ST, pWS, WS_ST, 2048*16)
    ts.stamp(p, 32)
    p.touch('v[2:3]')
    p('L_no_retry:')
    p(f'v_readfirstlane_b32 s{sNO}, v2\nv_readfirstlane_b32 s{sNO+1}, v3\ns_nop 0\ns_cmp_lg_u32 s{sNO}, 0\ns_cbranch_scc1 L_no_ok')
    p.cond(True)
    p(f'buffer_load_dwordx2 v[2:3], v44, s[{S_DB}:{S_DB+3}], 0 offen sc1\ns_waitcnt vmcnt(0)\ns_branch L_no_retry')
    p.cond(False)
    p('L_no_ok:')
    p(f's_cmp_eq_u32 s{sW}, 1\ns_cbranch_scc0 L_st_skip')
    p.cond(True)
    p(f'v_mov_b32 v40, v32\nv_mov_b32 v41, v36\nv_mov_b32 v42, v2\nv_mov_b32 v43, v3\nbuffer_store_dwordx4 v[40:43], v46, s[{S_ST}:{S_ST+3}], 0 offen sc1')
    p.cond(False)
    p('L_st_skip:')
    ts.stamp(p, 33)
    p('v_mov_b32 v33, v32\nv_mov_b32 v37, v36')
    if not cfg.t0e & 1: dma_tile(0)
    for i in range(16):
        if i % 4 == 0 and not cfg.t0e & 2: raw(i // 4)
        a, b = X+2*i, X+2*i+1
        p(f'v_pk_add_f32 v[{a}:{b}], v[{a}:{b}], v[32:33] neg_lo:[0,1] neg_hi:[0,1]\nv_cvt_pk_bf16_f32 v{a}, v{a}, v{b}')
        p(f'v_and_b32 v{b}, s{sM}, v{a}\nv_lshlrev_b32 v{a}, 16, v{a}')
        p(f'v_pk_mul_f32 v[{a}:{b}], v[{a}:{b}], v[36:37]\nv_cvt_pk_bf16_f32 v{vLD+i}, v{a}, v{b}')
    RC = 224
    def rec_loads():
        for b in range(4): p(f'buffer_load_dwordx4 v[{RC+4*b}:{RC+4*b+3}], v{vSR}, s[{S_ST}:{S_ST+3}], 0 offen offset:{256*b} sc1')
    rec_loads()
    xst = [(f'buffer_store_dwordx4 v[{vLD+4*i}:{vLD+4*i+3}], v{vLO}, s[{S_XN}:{S_XN+3}], 0 offen offset:{1024*i} sc1', ('Xst', 1, 0, 0)) for i in range(4)]
    if cfg.xe:
        for x in xst: emit(p, x)
    p(f'v_and_b32 v32, 15, v1\nv_lshrrev_b32 v33, 4, v1\nv_xor_b32 v33, v33, v32\nv_lshlrev_b32 v32, 8, v32\ns_lshl_b32 s{sT}, s{sW}, 14\ns_add_u32 s{sT}, s{sT}, {RAWL}\nv_add_u32 v32, s{sT}, v32')
    for u in range(4): p(f'v_xor_b32 v34, {4*u}, v33\nv_lshl_add_u32 v{36+u}, v34, 4, v32')
    p.need(('R', 1, 0, 0))
    for u in range(4):
        for b in range(4): p(f'ds_read_b128 v[{vB+16*u+4*b}:{vB+16*u+4*b+3}], v{36+u} offset:{4096*b}')
    ts.stamp(p, 32)
    p.touch(f'v[{RC}:{RC+15}]')
    ts.stamp(p, 32)
    p('L_rec_chk:')
    p(f'v_cmp_ne_u64 vcc, s[{sNO}:{sNO+1}], v[{RC+2}:{RC+3}]')
    for b in range(1, 4): p(f'v_cmp_ne_u64 s[{sT+2}:{sT+3}], s[{sNO}:{sNO+1}], v[{RC+4*b+2}:{RC+4*b+3}]\ns_nop 0\ns_or_b64 vcc, vcc, s[{sT+2}:{sT+3}]')
    p('s_cbranch_vccz L_rec_ok')
    p.cond(True)
    rec_loads(); p('s_waitcnt vmcnt(0)\ns_branch L_rec_chk')
    p.cond(False)
    p('L_rec_ok:')
    ts.stamp(p, 33)
    srd(p, S_K, pK, 0, 2 << 20); srd(p, S_V, pV, 0, 2 << 20)
    if cfg.trk: touch_tiles(range(2, cfg.trk + 2))
    if cfg.kvp:
        p(f's_lshr_b32 s{sT}, s2, 3\ns_lshl_b32 s{sT}, s{sT}, 2\ns_add_u32 s{sT}, s{sT}, s{sW}\ns_lshl_b32 s{sT}, s{sT}, 10')
        p(f's_lshr_b32 s{sT+1}, s{sCB}, 3\ns_lshl_b32 s{sT+1}, s{sT+1}, 19\ns_add_u32 s{sT}, s{sT}, s{sT+1}\ns_add_u32 s{sT}, s{sT}, {1536*256}')
        p(f'v_and_b32 v33, 15, v1\nv_lshlrev_b32 v33, 6, v33')
        p(f'buffer_load_dword v{vPD}, v33, s[{S_K}:{S_K+3}], s{sT} offen ;pf\nbuffer_load_dword v{vPD}, v33, s[{S_V}:{S_V+3}], s{sT} offen ;pf')
    vRI = 132; vMR = [128, 130, 131, 139]
    for b in range(4): p(f'v_mov_b32 v{vRI+b}, v{RC+4*b+1}\nv_mul_f32 v{vMR[b]}, v{RC+4*b}, v{RC+4*b+1}')
    NT0 = 140
    def norm(sub):
        out = []
        for b in range(4):
            for r in range(4):
                q = vB + 16*sub + 4*b + r; t0 = NT0 + 2*((4*b + r) % 2)
                out += [f'v_lshlrev_b32 v{t0}, 16, v{q}', f'v_and_b32 v{t0+1}, s{sM}, v{q}',
                        f'v_fma_f32 v{t0}, v{t0}, v{vRI+b}, -v{vMR[b]}', f'v_fma_f32 v{t0+1}, v{t0+1}, v{vRI+b}, -v{vMR[b]}',
                        f'v_cvt_pk_bf16_f32 v{q}, v{t0}, v{t0+1}']
        return out
    ts.stamp(p, 32)
    p('s_nop 0')
    def norm_pk(sub):
        for b in range(4):
            p(f'v_mov_b32 v32, v{vRI+b}\nv_mov_b32 v33, v{vRI+b}\nv_sub_f32 v34, 0, v{vMR[b]}\nv_sub_f32 v35, 0, v{vMR[b]}')
            for r in range(4):
                q = vB + 16*sub + 4*b + r
                p(f'v_lshlrev_b32 v{36+2*r}, 16, v{q}\nv_and_b32 v{37+2*r}, s{sM}, v{q}')
            for r in range(4): p(f'v_pk_fma_f32 v[{36+2*r}:{37+2*r}], v[{36+2*r}:{37+2*r}], v[32:33], v[34:35]')
            for r in range(4): p(f'v_cvt_pk_bf16_f32 v{vB + 16*sub + 4*b + r}, v{36+2*r}, v{37+2*r}')
    for sub in range(cfg.npre): norm_pk(sub)
    ts.stamp(p, 32)
    def act(sub, b):
        r = vB + 16*(sub % RB) + 4*b
        return f'buffer_load_dwordx4 v[{r}:{r+3}], v{vAct+b}, s[{S_XN}:{S_XN+3}], s{sKA} offen offset:{1024*(sub % 2)}{SC}'
    NG = 22
    def vm_sched(step, g2):
        s, t = divmod(g2, NG); sub = 2*step + s
        d = None; a = None
        if cfg.d0 <= g2 < cfg.d0 + 11*cfg.dstr and (g2 - cfg.d0) % cfg.dstr == 0: d = (g2 - cfg.d0)//cfg.dstr
        if cfg.a0 <= t < cfg.a0 + 4*cfg.astr and (t - cfg.a0) % cfg.astr == 0: a = (sub + cfg.ad, (t - cfg.a0)//cfg.astr)
        return d, a
    def flagchk(lbl, vaddr, vd):
        return [f'v_cmp_ne_u64 vcc, s[{sNO}:{sNO+1}], v[{vd}:{vd+1}]', 's_nop 0', 's_nop 0', f's_cbranch_vccz {lbl}_ok',
                f'{lbl}_spin: ;cond', f'buffer_load_dwordx2 v[{vd}:{vd+1}], v{vaddr}, s[{S_FL}:{S_FL+3}], 0 offen sc1 ;cond', 's_waitcnt vmcnt(0) ;cond',
                f'v_cmp_ne_u64 vcc, s[{sNO}:{sNO+1}], v[{vd}:{vd+1}] ;cond', 's_nop 1 ;cond', f's_cbranch_vccnz {lbl}_spin ;cond', f'{lbl}_ok:']
    def flag_store(lbl, va):
        return f's_cmp_eq_u32 s{sW}, 1\ns_cbranch_scc0 {lbl}\nbuffer_store_dwordx2 v[2:3], v{va}, s[{S_FL}:{S_FL+3}], 0 offen sc1 ;cond\n{lbl}:'
    def poll(lbl, vaddr, done):
        p(f'{lbl}:')
        p(f'buffer_load_dwordx2 v[36:37], v{vaddr}, s[{S_FL}:{S_FL+3}], 0 offen sc1\ns_waitcnt vmcnt(0)')
        p(f'v_cmp_ne_u64 vcc, s[{sNO}:{sNO+1}], v[36:37]\ns_nop 1\ns_cbranch_vccz {done}\ns_sleep {cfg.slp}\ns_branch {lbl}')
    vHF = 27
    srd(p, S_H, pWS, WS_H, 15 << 20)
    for q_ in range(4): p(f's_mov_b32 s{S_DB+q_}, s{S_O+q_}') if q_ < 3 else p(f's_mov_b32 s{S_DB+3}, 0x20000')
    p.need(('W', NHS, 1, 0))
    xflag = f'buffer_store_dwordx2 v[2:3], v31, s[{S_FL}:{S_FL+3}], 0 offen sc1'
    p('s_waitcnt lgkmcnt(0)\ns_barrier')
    P = cfg.P
    def trr(G, tile0, stride):
        step, g2 = divmod(G, 2*NG); s, t = divmod(g2, NG)
        r = vA + 4*(G % RA)
        tag = ('W', NHS, 2*(tile0 + step) + 1, 2*stride) if s == 1 else None
        if t < 14: off = (t // 7)*7168 + (t % 7)*32; a = vTr; hh = 8*224
        else: off = 0; a = vTq + t - 14; hh = 1024
        return [(f'ds_read_b64_tr_b16 v[{r}:{r+1}], v{a} offset:{off}', tag),
                (f'ds_read_b64_tr_b16 v[{r+2}:{r+3}], v{a} offset:{off + hh}', tag)]
    for G in range(P):
        for f in trr(G, 0, 0): emit(p, f)
    UN = 2
    p(f's_mov_b32 s{sDL}, 0\ns_mov_b32 s{sCNT}, {NT//UN - 1}')
    hi = {}; lo = {}
    def H(i, x): hi.setdefault(i, []).append(x)
    def L(i, x): lo.setdefault(i, []).append(x)
    NGB = 2*NG*UN
    def g_body(first):
        hi.clear(); lo.clear(); mf = []
        t0_, st_ = (0, 0) if first else (UN, UN)
        if first:
            if not cfg.xe:
                for k, x in enumerate(xst): L(2 + cfg.fs1*2*k, x)
            H(cfg.xbar, lambda p: (p.need(('Xst', 1, 0, 0)), p(xflag)))
            for d in range(11):
                g_ = 2 + cfg.fs1*(2*d + 1 if d < 4 else d + 4)
                for x in m0set(d): L(g_, x)
                if m0set(d): L(g_, m0gap)
                L(g_, dma(d, 1, 0))
                if d == 6:
                    for x in adv_w(): L(g_, x)
                if d == 10:
                    for x in adv_q(): L(g_, x)
        for G in range(NGB):
            step, g2 = divmod(G, 2*NG); s, t = divmod(g2, NG)
            sub = 2*step + s
            for b in range(4):
                ra = vA + 4*(G % RA); rb = vB + 16*(sub % RB) + 4*b
                mf.append(f'v_mfma_f32_16x16x32_bf16 {acc(t,b)}, v[{ra}:{ra+3}], v[{rb}:{rb+3}], {"0" if first and sub == 0 else acc(t,b)}')
            i0 = 4*G; Gn = G + P; tn = Gn % NG
            if Gn % (2*NG) == 0:
                stepn = Gn // (2*NG)
                def bar_(p, stepn=stepn):
                    p.need(('W', NHS, 2*(t0_ + stepn) + 1, 2*st_))
                    p('s_barrier')
                H(i0-1, bar_)
            if tn == 0: H(i0-2, f'v_add_u32 v{vTr}, s{sDL}, v{vTr}')
            r0, r1 = trr(Gn % NGB, t0_ + (Gn // NGB)*UN, st_)
            H(i0, r0); H(i0+1, r1)
            if 1 <= tn <= 8: L(i0, f'v_add_u32 v{vTq+tn-1}, s{sDL}, v{vTq+tn-1}')
            if tn == 9:
                for x in adv_rd(): L(i0, x)
            pc, a = vm_sched(step, g2)
            if a is not None and not (first and a[0] < 4):
                g_ = max(i0, cfg.xchk + 4 + 8*(4*(a[0] - 4) + a[1])) if first else i0
                assert g_ < 88*(a[0] - 4 + 3) + 60 or not first
                L(g_, act(*a))
                if a[1] == 3 and a[0] % 2 == 1:
                    for x in adv_a(): L(g_, x)
            if pc is not None:
                g_ = max(i0, 2 + cfg.fs1*(15 + pc)) if first and step == 0 else i0
                if cfg.trk and pc == 0:
                    L(g_, f'buffer_load_dword v{vPD}, v{vP1}, s[{S_W}:{S_W+3}], s{sKW} offen ;pf')
                    L(g_, f'buffer_load_dword v{vPD}, v{vP2}, s[{S_Q}:{S_Q+3}], s{sKQ} offen ;pf')
                for x in m0set(pc): L(g_, x)
                if m0set(pc): L(g_, m0gap)
                L(g_, dma(pc, t0_ + step + 2, st_))
                if pc == 6:
                    for x in adv_w(): L(g_, x)
                if pc == 10:
                    for x in adv_q(): L(g_, x)
        for x in code_pf(S_DB, vPD): L(4*(cfg.d0 + 10*cfg.dstr) + 1, x)
        if first:
            H(cfg.xchk - cfg.xfl, f'buffer_load_dwordx2 v[28:29], v30, s[{S_FL}:{S_FL+3}], 0 offen sc1')
            H(cfg.xchk, '\n'.join(flagchk('L_x', 30, 28)))
        else:
            H(len(mf)-3, f's_sub_u32 s{sCNT}, s{sCNT}, 1'); H(len(mf)-2, f's_cmp_lg_u32 s{sCNT}, 0')
            H(len(mf)-1, 's_cbranch_scc1 G_loop')
        lo_ = {k: lo[k] for k in sorted(lo)}
        fill = spread(hi, lo_, len(mf), cfg.cap, 16 if not first else 60, cost=lambda i: 1 if i % 4 == 3 else 2 if i == -1 else 0)
        fix_m0(fill, len(mf))
        if first:
            edges = [0] + [88*sub - 3 if sub == 3 or cfg.npre == 1 else (261*(sub - cfg.npre + 1))//(4 - cfg.npre) for sub in range(cfg.npre, 4)]
            for k, sub in enumerate(range(cfg.npre, 4)):
                g0, g1 = edges[k], min(edges[k+1], 88*sub - 3)
                q_ = norm(sub); per = len(q_)/(g1 - g0); due = 0.0; done = 0
                for i in range(g0, g1):
                    due += per; used = len(fill[i]) + (1 if i % 4 == 3 else 0)
                    while q_ and done < due + 2 and (used < cfg.cap or done < due - cfg.lag):
                        fill[i].append(q_.pop(0)); used += 1; done += 1
                fill[g1 - 1] += q_
        else: chk_tail(fill, len(mf))
        if first:
            for i in (43, 87, 131, 175, 219, 263, 307):
                t_ = ts.text(64)
                if t_: fill[i].append(t_)
        interleave(p, mf, fill)
    ts.stamp(p, 97)
    g_body(True)
    if cfg.xt: p.touch(f'v[{vB}:{vB+16*cfg.xt-1}]')
    ts.stamp(p, 96)
    p.loop_begin('G_loop', NT//UN - 1)
    g_body(False)
    p.loop_end()
    p('s_waitcnt vmcnt(0) lgkmcnt(0)\ns_barrier')
    ts.stamp(p, 5)

    srd(p, S_O, pWS, WS_O, 17 << 20)
    vDK, vDV, vK, vV = 8, 12, 13, 21
    sKV, sMK, sAD, sPF = 39, 40, 43, 44
    t = 128
    p(f'v_lshrrev_b32 v{t}, 4, v1\nv_and_b32 v{t+1}, 15, v1')
    p(f's_lshl_b32 s{sMK}, s{sW}, 12')
    p(f'v_lshlrev_b32 v{t+2}, 8, v{t}\nv_add_u32 v{t+2}, s{sMK}, v{t+2}')
    for j in range(4):
        p(f'v_add_u32 v{t+3}, {4*j}, v{t}\nv_xor_b32 v{t+3}, v{t+3}, v{t+1}\nv_lshl_add_u32 v{vDK+j}, v{t+3}, 4, v{t+2}')
    p(f'v_lshlrev_b32 v{t+3}, 2, v{t}\nv_xor_b32 v{t+3}, v{t+3}, v{t+1}\nv_lshl_add_u32 v{vDV}, v{t+3}, 4, v{t+2}')
    p(f's_lshr_b32 s{sKV}, s{sCB}, 3\ns_lshl_b32 s{sKV}, s{sKV}, 19\ns_add_u32 s{sKV}, s{sKV}, {1536*256}')
    def kdma(j, soff, tag): return (f'buffer_load_dwordx4 v{vDK+j}, s[{S_K}:{S_K+3}], s{soff} offen offset:{1024*j} lds', tag)
    def vdma(j, soff, tag): return (f'buffer_load_dwordx4 v{vDV}, s[{S_V}:{S_V+3}], s{soff} offen offset:{1024*j} lds', tag)
    kvq = []
    for (kind, tl) in (('K', 0), ('K', 1), ('V', 0), ('K', 2), ('V', 1)):
        g = [f's_add_u32 s{sT+5}, s{sKV}, {tl*16384}', f's_add_u32 m0, s{sMK}, {tl*16384 + (65536 if kind == "V" else 0)}', 's_nop 0']
        for j in range(4):
            kvq.append(g + [(kdma if kind == 'K' else vdma)(j, sT+5, (kind, 4, tl, 0))]); g = []
    k1 = -2*math.sqrt(2/math.pi)*math.log2(math.e); k2 = k1*0.044715
    vC = 28
    p(f'v_mov_b32 v{vC}, {f2u(k1):#x}\nv_mov_b32 v{vC+1}, {f2u(k1):#x}\nv_mov_b32 v{vC+2}, {f2u(k2):#x}\nv_mov_b32 v{vC+3}, {f2u(k2):#x}')
    p(f's_lshl_b32 s{sT+2}, s{sRB}, 4\ns_lshl_b32 s{sT+3}, s{sW}, 2\ns_add_u32 s{sT+2}, s{sT+2}, s{sT+3}\ns_mul_i32 s{sT+2}, s{sT+2}, {HST}')
    p(f's_mul_i32 s{sT+3}, s{sCB}, 7\ns_add_u32 s{sT+3}, s{sT+3}, 1\ns_lshr_b32 s{sT+3}, s{sT+3}, 1\ns_lshl_b32 s{sT+3}, s{sT+3}, 10')
    p(f's_add_u32 s{sT+2}, s{sT+2}, s{sT+3}')
    p(f'v_lshlrev_b32 v{t}, 4, v1\nv_add_u32 v{vAct}, s{sT+2}, v{t}')
    for b in range(1, 4): p(f'v_add_u32 v{vAct+b}, {b*HST:#x}, v{vAct}')
    p(f's_and_b32 s{sT+3}, s{sCB}, 1\ns_cmp_eq_u32 s{sT+3}, 0\ns_mov_b32 s{sT+4}, 3072\ns_cselect_b32 s{sT+4}, s{sT+4}, -1016')
    vHs = 132
    for b in range(4): p(f'v_add_u32 v{vHs+b}, s{sT+4}, v{vAct+b}')
    def gelu_tiles(tiles):
        n = len(tiles)
        Xs = [32 + 12*i for i in range(n)]
        pk = lambda r: f'v[{r}:{r+1}]'
        for (t, b, d), X in zip(tiles, Xs):
            for r in range(4): p(f'v_accvgpr_read_b32 v{X+r}, {accr(t,b,r)}')
        for X in Xs:
            for r in (0, 2): p(f'v_pk_mul_f32 {pk(X+8+r)}, {pk(X+r)}, {pk(X+r)}')
        for X in Xs:
            for r in (0, 2): p(f'v_pk_fma_f32 {pk(X+8+r)}, {pk(X+8+r)}, {pk(vC+2)}, {pk(vC)}')
        for X in Xs:
            for r in (0, 2): p(f'v_pk_mul_f32 {pk(X+8+r)}, {pk(X+8+r)}, {pk(X+r)}')
        for (t, b, d), X in zip(tiles, Xs):
            for r in range(4): p(f'v_exp_f32 v{X+8+r}, v{X+8+r}')
            for r in range(4): p(f'v_accvgpr_read_b32 v{X+4+r}, {accr(t+7,b,r)}')
        for X in Xs:
            for r in (0, 2): p(f'v_pk_add_f32 {pk(X+8+r)}, {pk(X+8+r)}, 1.0 op_sel_hi:[1,0]')
        for X in Xs:
            for r in range(4): p(f'v_rcp_f32 v{X+8+r}, v{X+8+r}')
            for r in (0, 2): p(f'v_pk_mul_f32 {pk(X+4+r)}, {pk(X+4+r)}, {pk(X+r)}')
        for X in Xs:
            for r in (0, 2): p(f'v_pk_mul_f32 {pk(X+4+r)}, {pk(X+4+r)}, {pk(X+8+r)}')
        for (t, b, d), X in zip(tiles, Xs):
            p(f'v_cvt_pk_bf16_f32 v{d}, v{X+4}, v{X+5}\nv_cvt_pk_bf16_f32 v{d+1}, v{X+6}, v{X+7}')
    for par in range(2):
        if par == 0: p('s_cbranch_scc0 B_epi_odd')
        else: p.cond(True); p('B_epi_odd:')
        n = 0; kq = list(kvq)
        for b in range(4):
            for pr in range(3):
                d = 64 + 4*(n % 8); n += 1
                for _ in range(2):
                    if kq:
                        for x in kq.pop(0): emit(p, x)
                gelu_tiles([(2*pr + par, b, d), (2*pr + 1 + par, b, d + 2)])
                p(f'buffer_store_dwordx4 v[{d}:{d+3}], v{vAct+b}, s[{S_H}:{S_H+3}], 0 offen offset:{1024*pr}{LS}', ('Hst', 1, 0, 0))
        for b in range(0, 4, 2):
            d = 64 + 4*(n % 8); n += 1
            gelu_tiles([(6 if par == 0 else 0, b, d), (6 if par == 0 else 0, b+1, d+2)])
            p(f'buffer_store_dwordx2 v[{d}:{d+1}], v{vHs+b}, s[{S_H}:{S_H+3}], 0 offen{LS}', ('Hst', 1, 0, 0))
            p(f'buffer_store_dwordx2 v[{d+2}:{d+3}], v{vHs+b+1}, s[{S_H}:{S_H+3}], 0 offen{LS}', ('Hst', 1, 0, 0))
        if par == 0: p('s_branch B_epi_done')
    p.cond(False)
    p('B_epi_done:')
    ts.stamp(p, 5)
    vQ = 64
    qs = math.log2(math.e)/math.sqrt(128)
    def qconv(qt, s):
        d = vQ + (qt*8+s)*4
        for half in range(2):
            b = 2*qt + half; x = 32 + 4*half
            src = accr(14+s, b, 0)
            if src[0] == 'a':
                for r in range(4): p(f'v_accvgpr_read_b32 v{x+r}, {accr(14+s, b, r)}')
                s0 = x
            else: s0 = int(src[1:])
            for r in (0, 2): p(f'v_pk_mul_f32 v[{x+r}:{x+r+1}], v[{s0+r}:{s0+r+1}], v[{vC}:{vC+1}]')
            p(f'v_cvt_pk_bf16_f32 v{d+2*half}, v{x}, v{x+1}\nv_cvt_pk_bf16_f32 v{d+2*half+1}, v{x+2}, v{x+3}')
    def qswap(qt, s):
        d = vQ + (qt*8+s)*4
        p(f'v_permlane16_swap_b32 v{d}, v{d+2}\nv_permlane16_swap_b32 v{d+1}, v{d+3}')
    t = 32
    p(f'v_and_b32 v{t}, 31, v1\nv_lshrrev_b32 v{t+1}, 5, v1\nv_and_b32 v{t+2}, 15, v1\nv_xor_b32 v{t+1}, v{t+1}, v{t+2}\nv_lshlrev_b32 v{t}, 8, v{t}')
    for s in range(8):
        p(f'v_xor_b32 v{t+2}, {2*s}, v{t+1}\nv_lshl_add_u32 v{vK+s}, v{t+2}, 4, v{t}')
    p(f'v_mov_b32 v{vC}, {f2u(qs):#x}\nv_mov_b32 v{vC+1}, {f2u(qs):#x}')
    vS = [128, 160]; vP = [192, 208]; vN = 224; vL = 28
    aF = 192
    def Sreg(n, qt): return vS[n % 2] + 16*qt
    def Preg(n, qt, ks): return vP[n % 2] + 8*qt + 4*ks
    def kread(n, s, tag):
        r = aF + 4*s
        return [(f'ds_read_b128 a[{r}:{r+3}], v{vK+s} offset:{(n % 8)*8192}', ('K', 4, n//2, 0))]
    def vread(n, f, tag, base=None, off0=None):
        ks, dt = divmod(f, 4); r = aF + 32 + 4*f
        off = (32*(n % 8) + 16*ks)*256 if off0 is None else off0 + 16*ks*256
        b = vV if base is None else base
        return [(f'ds_read_b64_tr_b16 a[{r}:{r+1}], v{b+dt} offset:{off}', tag),
                (f'ds_read_b64_tr_b16 a[{r+2}:{r+3}], v{b+dt} offset:{off+2048}', tag)]
    def qk(n, s, qt, c0):
        S = Sreg(n, qt); c = f'v[{S}:{S+15}]' if s else c0(qt)
        return f'v_mfma_f32_32x32x16_bf16 v[{S}:{S+15}], a[{aF+4*s}:{aF+4*s+3}], v[{vQ+(qt*8+s)*4}:{vQ+(qt*8+s)*4+3}], {c}'
    def pv(n, f, qt, first=False):
        ks, dt = divmod(f, 4); o = (dt*2+qt)*16; P_ = Preg(n, qt, ks)
        c = '0' if first and ks == 0 else f'a[{o}:{o+15}]'
        return f'v_mfma_f32_32x32x16_bf16 a[{o}:{o+15}], a[{aF+32+4*f}:{aF+32+4*f+3}], v[{P_}:{P_+3}], {c}'
    negm = lambda qt: f'v[{vN+16*qt}:{vN+16*qt+15}]'
    zero = lambda qt: '0'
    def softmax_ops(n):
        sl = [[] for _ in range(33)]
        for e in range(32):
            qt, i = divmod(e, 16); S = Sreg(n, qt); Pr = Preg(n, qt, i>>3)+((i&7)>>1)
            sl[e].insert(0, f'v_exp_f32 v{S+i}, v{S+i}')
            if cfg.sum == 'add': sl[e+1].append(f'v_add_f32 v{vL+2*qt+(i&1)}, v{vL+2*qt+(i&1)}, v{S+i}')
            if i & 1:
                if e == 31 and cfg.sum != 'add': sl[e+1].append('s_nop 0')
                sl[e+1].append(f'v_cvt_pk_bf16_f32 v{Pr}, v{S+i-1}, v{S+i}')
                k = min(32, e+2)
                if cfg.sum == 'pk': sl[k].append(f'v_pk_add_f32 v[{vL+2*qt}:{vL+2*qt+1}], v[{vL+2*qt}:{vL+2*qt+1}], v[{S+i-1}:{S+i}]')
                if cfg.sum == 'dot': sl[k].append(f'v_dot2_f32_bf16 v{vL+2*qt+((i>>1)&1)}, v{Pr}, v39, v{vL+2*qt+((i>>1)&1)}')
        return sl
    if cfg.sum == 'dot': p('v_mov_b32 v39, 0x3f803f80')
    p.need(('K', 4, 0, 0)); p('s_barrier')
    for s in range(8): emit(p, kread(0, s, None)[0])
    ts.stamp(p, 5)
    qconv(0, 0); qconv(1, 0)
    for s in range(8):
        if s < 7: qconv(0, s+1)
        qswap(0, s); qswap(1, s)
        if s < 7: qconv(1, s+1)
        else: p('s_nop 1')
        for qt in range(2): p(qk(0, s, qt, zero))
        emit(p, kread(1, s, None)[0])
    t = 36
    p(f'v_lshrrev_b32 v{t}, 5, v1\nv_lshlrev_b32 v{t}, 2, v{t}\nv_bfe_u32 v{t+1}, v1, 2, 2\nv_add_u32 v{t}, v{t}, v{t+1}\nv_lshlrev_b32 v{t}, 8, v{t}')
    p(f'v_bfe_u32 v{t+2}, v1, 4, 1\nv_lshlrev_b32 v{t+2}, 5, v{t+2}\nv_and_b32 v{t+3}, 3, v1\nv_lshlrev_b32 v{t+3}, 3, v{t+3}\nv_add3_u32 v{t}, v{t}, v{t+2}, v{t+3}')
    p(f'v_add_u32 v{t}, 0x10000, v{t}')
    for dt in range(4):
        p(f'v_xor_b32 v{t+2}, {dt}, v{t+1}\nv_lshl_add_u32 v{vV+dt}, v{t+2}, 6, v{t}')
    for i in range(4): p(f'v_mov_b32 v{vL+i}, 0')
    def rowmax(n, first):
        for qt in range(2):
            S = Sreg(n, qt); m = 32 + 2*qt
            if first: p(f'v_max3_f32 v{m}, v{S}, v{S+1}, v{S+2}')
            else: p(f'v_max3_f32 v{m}, v{m}, v{S+1}, v{S+2}\nv_max_f32 v{m}, v{m}, v{S}')
            for i in range(3, 15, 2): p(f'v_max3_f32 v{m}, v{m}, v{S+i}, v{S+i+1}')
            p(f'v_max_f32 v{m}, v{m}, v{S+15}')
    def set_negm():
        p('v_mov_b32 v33, v32\nv_mov_b32 v35, v34\ns_nop 0\nv_permlane32_swap_b32 v32, v33\nv_permlane32_swap_b32 v34, v35\ns_nop 0')
        for qt in range(2):
            m = 32 + 2*qt
            p(f'v_max_f32 v{m}, v{m}, v{m+1}\nv_sub_f32 v{vN+16*qt}, 0, v{m}\nv_mov_b32 v{vN+16*qt+1}, v{vN+16*qt}')
            for i in range(2, 16, 2): p(f'v_pk_mul_f32 v[{vN+16*qt+i}:{vN+16*qt+i+1}], v[{vN+16*qt}:{vN+16*qt+1}], 1.0 op_sel_hi:[1,0]')
    ts.stamp(p, 4)
    c0 = zero
    if not cfg.m0:
        c0 = negm
        rowmax(0, True); set_negm()
        for qt in range(2):
            S = Sreg(0, qt)
            for i in range(0, 16, 2): p(f'v_pk_add_f32 v[{S+i}:{S+i+1}], v[{S+i}:{S+i+1}], v[{vN+16*qt}:{vN+16*qt+1}]')
    ts.stamp(p, 4)
    S_WD, S_WO, S_AH, S_AO, S_X, S_OUT, S_P = 12, 8, 16, 20, 24, 28, 60
    sJ, sRC, sCC = 70, 71, 76
    kWD, kWO, kAH, kAO, cMW, cTG = 77, 75, 78, 42, 79, 49
    dD, dO, aH, aO, cTr, cA, cC = 40, 8, 48, 4, 52, 64, 128
    vFH = 60
    SLOT = 32768
    k_h = lambda pc: 4*pc
    k_o = lambda pc: 4*((pc & 1) | ((pc & 2) << 1) | ((pc & 4) >> 1))
    sDE = 85
    def x_dma_addr(dst, kmap):
        t = 36
        p(f's_lshl_b32 s{sT+2}, s{sW}, 16\ns_lshl_b32 s{sT+3}, s{sCC}, 8\ns_add_u32 s{sT+2}, s{sT+2}, s{sT+3}')
        p(f'v_lshrrev_b32 v{t}, 4, v1\nv_and_b32 v{t+1}, 15, v1\nv_lshlrev_b32 v{t+2}, 1, v{t}\nv_xor_b32 v{t+1}, v{t+1}, v{t+2}')
        p(f'v_lshlrev_b32 v{t}, 11, v{t}\nv_add_u32 v{t}, s{sT+2}, v{t}')
        for e in range(2):
            p(f'v_xor_b32 v{t+2}, {8*e}, v{t+1}\nv_lshl_add_u32 v{dst+e}, v{t+2}, 4, v{t}')
            if cfg.cdel: p(f'v_lshrrev_b32 v{t+2}, 3, v{t+2}\nv_mad_i32_i24 v{dst+e}, v{t+2}, s{sDE}, v{dst+e}')
        for pc in range(7, -1, -1):
            o = (kmap(pc) << 11) - 1024*(pc % 4)
            if o or pc > 1: p(f'v_add_u32 v{dst+pc}, {o}, v{dst + (pc & 1)}')
    NS = ND + 8; kind = lambda sg: 'd' if sg < ND else 's'
    def cdma(pc, sg):
        D_, S_, K_ = (dD, S_WD, kWD) if kind(sg) == 'd' else (dO, S_WO, kWO)
        g = []
        if pc % 4 == 0: g += [f's_add_u32 m0, s{cMW}, {(sg % 4)*SLOT + 1024*pc}', m0gap]
        g.append((f'buffer_load_dwordx4 v{D_+pc}, s[{S_}:{S_+3}], s{K_} offen offset:{1024*(pc%4)} {cfg.wsc} lds', ('C', 4, sg, 0)))
        if pc == 7: g.append(f's_add_u32 s{K_}, s{K_}, {128*2048}')
        return g
    def cact(sub, b):
        A_, S_, K_ = (aH, S_AH, kAH) if kind(sub // 4) == 'd' else (aO, S_AO, kAO)
        r = 128 + 16*(sub % 8) + 4*b
        g = [f'buffer_load_dwordx4 a[{r}:{r+3}], v{A_+b}, s[{S_}:{S_+3}], s{K_} offen offset:{1024*(sub % 4)}{SC}']
        if b == 3 and sub % 4 == 3: g.append(f's_add_u32 s{K_}, s{K_}, 4096')
        return g
    def collect(fn):
        nonlocal p
        w = Prog(); q = p; p = w; fn(); p = q
        out = []
        for it in w.items:
            if it.op == 's_addc_u32': out[-1] = (out[-1][0] + '\n' + it.text, None)
            else: out.append((it.text, it.tag))
        return out
    PF = cfg.PF; vPF = 25; sDM = 55; sPF = 44
    pairs = []; sm = []; start = {}
    for n in range(17):
        st = len(pairs); start[n] = st
        if n <= 14:
            for s_ in range(8): pairs.append((qk(n+1, s_, 0, c0), qk(n+1, s_, 1, c0), kread(n+1, s_, None) if n else []))
        if n >= 1:
            for f in range(8): pairs.append((pv(n-1, f, 0, n == 1), pv(n-1, f, 1, n == 1), vread(n-1, f, ('V', 4, (n-1)//2, 0))))
        if n <= 15: sm.append((st, len(pairs), softmax_ops(n)))
    mf = []; hi.clear(); lo.clear()
    for a_, b_, _ in pairs: mf += [a_, b_]
    n_ = len(mf)
    bargap = {}
    for j in range(8):
        g = 2*(start[2*j+1] - PF) - 1; bargap[j] = g
        def bar_(p, j=j):
            if j < 7: p.need(('K', 4, j+1, 0))
            p.need(('V', 4, j, 0))
            if j == cfg.hbar: p.need(('Hst', 1, 0, 0))
            p('s_barrier')
        H(g, bar_)
    for i in range(len(pairs) - PF):
        for k, r in enumerate(pairs[i + PF][2]): H(2*i + k, r)
    for (st, en, sl) in sm:
        ng = 2*(en - st)
        for e, ops in enumerate(sl):
            for o in ops: H(2*st + min(ng - 1, e*ng//32), o)
    def act_addr(dst, stride, tmp):
        p(f's_and_b32 s{sT+3}, s{sJ}, 1\ns_mul_i32 s{sT+3}, s{sT+3}, {2*stride}\nv_lshlrev_b32 v{tmp}, 4, v1\nv_add_u32 v{dst+2}, s{sT+2}, v{tmp}')
        p(f'v_add_u32 v{dst}, s{sT+3}, v{dst+2}\nv_add_u32 v{dst+1}, {stride}, v{dst}\ns_sub_u32 s{sT+3}, {2*stride}, s{sT+3}\nv_add_u32 v{dst+2}, s{sT+3}, v{dst+2}\nv_add_u32 v{dst+3}, {stride}, v{dst+2}')
    def out_addr(dst):
        p(f's_lshl_b32 s{sT+2}, s{sRC}, 8\ns_lshl_b32 s{sT+3}, s{sW}, 6\ns_add_u32 s{sT+2}, s{sT+2}, s{sT+3}\ns_and_b32 s{sT+3}, s{sJ}, 1\ns_lshl_b32 s{sT+3}, s{sT+3}, 5\ns_add_u32 s{sT+2}, s{sT+2}, s{sT+3}\ns_lshl_b32 s{sT+2}, s{sT+2}, 11')
        p(f's_lshl_b32 s{sT+3}, s{sCC}, 8\ns_add_u32 s{sT+2}, s{sT+2}, s{sT+3}\ns_lshr_b32 s{sT+3}, s{sJ}, 1\ns_lshl_b32 s{sT+3}, s{sT+3}, 7\ns_add_u32 s{sT+2}, s{sT+2}, s{sT+3}')
        t = 36
        p(f'v_and_b32 v{t}, 7, v1\nv_lshlrev_b32 v{t}, 11, v{t}\nv_bfe_u32 v{t+1}, v1, 3, 1\nv_lshl_add_u32 v{t}, v{t+1}, 6, v{t}\nv_bfe_u32 v{t+1}, v1, 4, 1\nv_lshl_add_u32 v{t}, v{t+1}, 5, v{t}')
        p(f'v_lshrrev_b32 v{t+1}, 5, v1\nv_lshl_add_u32 v{t}, v{t+1}, 4, v{t}\nv_add_u32 v{dst}, s{sT+2}, v{t}')
    XL = 0x20000 + 4096
    def x_stage():
        out_addr(39)
        srd(p, S_H, pX, 0, 4 << 20)
        for b in range(4):
            p(f's_add_u32 m0, s{sDM}, {4096 + 1024*b}\ns_mov_b32 s{sT+2}, {b*0x4000}')
            p(f'buffer_load_dwordx4 v39, s[{S_H}:{S_H+3}], s{sT+2} offen lds')
    def setup1():
        p(f's_lshl_b32 s{sT}, s2, 2\ns_add_u32 s{sT}, s{sT}, s{sW}\ns_lshl_b32 s{sT+1}, s{sT}, 13\ns_mul_i32 s{sT}, s{sT}, 7168')
        p(f'v_lshlrev_b32 v{vPF}, 4, v1\nv_add_u32 v{vPF+1}, s{sT}, v{vPF}\nv_add_u32 v{vPF}, s{sT+1}, v{vPF}')
        srd(p, S_WO, pWO, 0, 8 << 20); srd(p, S_WD, pWD, 0, 7 << 20)
        p(f's_lshl_b32 s{sDM}, s{sMK}, 1\ns_add_u32 s{sDM}, s{sDM}, 0x20000\ns_mov_b32 s{sPF}, 0')
        p(f's_lshl_b32 s{sT}, s{sRB}, 12\ns_lshl_b32 s{sT+1}, s{sCB}, 7\ns_add_u32 s{sT}, s{sT}, s{sT+1}\ns_add_u32 s{sT}, s{sT}, {256*128}\nv_mov_b32 v{vHF}, s{sT}')
    def setup2():
        if cfg.fs:
            p(f's_lshr_b32 s{sT}, s{sNO}, 5\ns_xor_b32 s{sT}, s{sT}, s2\ns_and_b32 s{sT}, s{sT}, 1\ns_and_b32 s{sJ}, s2, 2\ns_or_b32 s{sJ}, s{sJ}, s{sT}')
            p(f's_and_b32 s{sRC}, s2, 4\ns_bfe_u32 s{sT+1}, s2, 0x20003\ns_add_u32 s{sRC}, s{sRC}, s{sT+1}\ns_lshr_b32 s{sCC}, s2, 5\ns_xor_b32 s{sCC}, s{sCC}, {cfg.ccx}')
            p(f's_lshr_b32 s{sT+1}, s{sJ}, 1\ns_mul_i32 s{kAH}, s{sT+1}, 14\ns_lshl_b32 s{sT+2}, s{sT}, 3\ns_add_u32 s{kAH}, s{kAH}, s{sT+2}')
            p(f's_lshl_b32 s{sT+1}, s{sT+1}, 4\ns_mul_i32 s{sT+2}, s{sT}, 9\ns_add_u32 s{sT+1}, s{sT+1}, s{sT+2}\ns_mul_i32 s{sT}, s{sT}, 3\ns_sub_u32 s{sT}, 9, s{sT}')
            p(f'v_and_b32 v{vFH}, 15, v1\nv_min_u32 v{vFH}, s{sT}, v{vFH}\ns_lshl_b32 s{sT}, s{sRC}, 5\ns_add_u32 s{sT}, s{sT}, s{sT+1}\ns_add_u32 s{sT}, s{sT}, 256\ns_lshl_b32 s{sT}, s{sT}, 7')
            p(f'v_lshl_add_u32 v{vFH}, v{vFH}, 7, s{sT}')
            p(f's_lshl_b32 s{kWD}, s{kAH}, 18\ns_lshl_b32 s{kAH}, s{kAH}, 12')
        else:
            p(f's_bfe_u32 s{sJ}, s2, 0x20001\ns_and_b32 s{sRC}, s2, 1\ns_lshl_b32 s{sRC}, s{sRC}, 2\ns_bfe_u32 s{sT}, s2, 0x20003\ns_add_u32 s{sRC}, s{sRC}, s{sT}\ns_lshr_b32 s{sCC}, s2, 5')
            p(f's_lshl_b32 s{sT}, s{sRC}, 5\ns_lshl_b32 s{sT+1}, s{sJ}, 3\ns_add_u32 s{sT}, s{sT}, s{sT+1}\ns_add_u32 s{sT}, s{sT}, 256\ns_lshl_b32 s{sT}, s{sT}, 7')
            p(f'v_and_b32 v{vFH}, 7, v1\nv_lshl_add_u32 v{vFH}, v{vFH}, 7, s{sT}')
            p(f's_mul_i32 s{kWD}, s{sJ}, {896*2048}\ns_mul_i32 s{kAH}, s{sJ}, {28*1024}')
        p(f's_lshl_b32 s{sT}, s{sCC}, 8\ns_add_u32 s{sT}, s{sT}, 128\ns_add_u32 s{sDE}, s{sT}, {cfg.cdel}\ns_and_b32 s{sDE}, s{sDE}, 2047\ns_sub_u32 s{sDE}, s{sDE}, s{sT}')
        x_dma_addr(dD, k_h)
        p(f's_lshl_b32 s{cMW}, s{sW}, 13')
        srd(p, S_AH, pWS, WS_H, 15 << 20)
        p(f's_lshl_b32 s{sT}, s{sRC}, 4\ns_lshl_b32 s{sT+2}, s{sW}, 2\ns_add_u32 s{sT}, s{sT}, s{sT+2}\ns_mul_i32 s{sT+2}, s{sT}, {HST}')
        act_addr(aH, HST, 36)
        t = 36
        p(f's_and_b32 s{sT+3}, s{sJ}, 2\ns_lshl_b32 s{sT+3}, s{sT+3}, 1')
        p(f'v_lshrrev_b32 v{t}, 2, v1\nv_and_b32 v{t+1}, 7, v{t}\nv_xor_b32 v{t+1}, s{sT+3}, v{t+1}\nv_lshlrev_b32 v{t}, 8, v{t}\nv_and_b32 v{t+2}, 3, v1\nv_lshl_add_u32 v{t}, v{t+2}, 3, v{t}')
        for tt in range(8):
            p(f'v_xor_b32 v{t+2}, {tt}, v{t+1}\nv_lshl_add_u32 v{cTr+tt}, v{t+2}, 5, v{t}')
        p(f's_mov_b32 s{cTG}, 0x10000')
        if cfg.c3:
            p(f's_lshr_b32 s{sT}, s2, 3\ns_lshl_b32 s{sT}, s{sT}, 2\ns_add_u32 s{sT}, s{sT}, s{sW}\ns_lshl_b32 s{sT}, s{sT}, 11\ns_add_u32 s{sT}, s{sT}, {cfg.c3l*128}')
            p(f'v_bfe_u32 v36, v1, 2, 2\nv_lshlrev_b32 v36, 18, v36\nv_bfe_u32 v37, v1, 1, 1\nv_lshl_add_u32 v36, v37, 10, v36\nv_and_b32 v37, 1, v1\nv_lshl_add_u32 v36, v37, 6, v36\nv_add_u32 v39, s{sT}, v36')
    s2q = collect(setup2); s2per = -(-len(s2q) // 4)
    if cfg.apre:
        setup1(); setup2(); s2q = []
    else:
        for x in collect(setup1): L(16, x)
    npf = 0
    for j in range(7):
        g = bargap[j] + 1
        if j + 3 <= 7:
            L(g, f's_add_u32 s{sT+5}, s{sKV}, {(j+3)*16384}') if False else None
            L(g, f's_add_u32 s{sT+4}, s{sKV}, {(j+3)*16384}'); L(g, f's_add_u32 m0, s{sMK}, {((j+3) % 4)*16384}'); L(g, m0gap)
            for k in range(4): L(g + 3*k, kdma(k, sT+4, ('K', 4, j+3, 0)))
        if j + 2 <= 7:
            L(g + 12, f's_add_u32 s{sT+4}, s{sKV}, {(j+2)*16384}'); L(g + 12, f's_add_u32 m0, s{sMK}, {0x10000 + ((j+2) % 4)*16384}'); L(g + 12, m0gap)
            for k in range(4): L(g + 12 + 3*k, vdma(k, sT+4, ('V', 4, j+2, 0)))
        if j < 5:
            L(g + 24, f's_mov_b32 m0, s{sDM}'); L(g + 24, m0gap)
            for k in range(3):
                wo_ = npf % 2 == 0
                L(g + 24 + 4*k, f'buffer_load_dwordx4 v{vPF if wo_ else vPF+1}, s[{S_WO if wo_ else S_WD}:{(S_WO if wo_ else S_WD)+3}], s{sPF} offen lds')
                if not wo_: L(g + 24 + 4*k, f's_add_u32 s{sPF}, s{sPF}, 1024')
                npf += 1
        if cfg.cpf2 and (j in (1, 4) or cfg.cpf2 >= 2):
            for x in code_pf(S_DB, 61): L(g + 35, x)
        if j < 4:
            for x in s2q[j*s2per:(j+1)*s2per]: L(g + 36, x)
        if j == cfg.hbar: H(g, flag_store('A_hf', vHF))
        if j == 4:
            for k, x in enumerate(collect(x_stage)): L(g + 36 + k//2, x)
        if j == 4: L(g + 40, f'buffer_load_dwordx2 v[62:63], v{vFH}, s[{S_FL}:{S_FL+3}], 0 offen sc1')
        if j == 5:
            for pc in range(8):
                for x in cdma(pc, 0): L(g + 24 + 3*pc, x)
            L(g + 50, '\n'.join(flagchk('L_h', vFH, 62)))
        if j == 6:
            for sub in range(4):
                for b in range(4):
                    for x in cact(sub, b): L(g + 3*(4*sub + b), x)
    for pc in range(8):
        for x in cdma(pc, 1): L(bargap[7] + 1 + 3*pc, x)
    if cfg.c3:
        L(bargap[6] - 4, f's_add_u32 s{sT+4}, s{kWD}, {128*2048}'); L(bargap[6] - 4, f'buffer_load_dword v61, v39, s[{S_WD}:{S_WD+3}], s{sT+4} offen ;pf')
    g = 2*start[16]
    lchk = []
    for qt in range(2):
        l = vL + 2*qt
        lchk += [f'v_add_f32 v{l}, v{l}, v{l+1}', f'v_mov_b32 v{l+1}, v{l}']
    lchk += [None, f'v_permlane32_swap_b32 v{vL}, v{vL+1}', f'v_permlane32_swap_b32 v{vL+2}, v{vL+3}', None,
             f'v_add_f32 v{vL}, v{vL}, v{vL+1}', f'v_add_f32 v{vL+2}, v{vL+2}, v{vL+3}',
             f's_mov_b32 s{sT+2}, {f2u(2.0**cfg.thr):#x}', f's_mov_b32 s{sT+3}, {f2u(2.0**-cfg.thr):#x}',
             f'v_cmp_nlt_f32 vcc, v{vL}, s{sT+2}', f'v_cmp_nlt_f32 s[{sT}:{sT+1}], v{vL+2}, s{sT+2}', None, f's_or_b64 vcc, vcc, s[{sT}:{sT+1}]',
             f'v_cmp_ngt_f32 s[{sT}:{sT+1}], v{vL}, s{sT+3}', None, f's_or_b64 vcc, vcc, s[{sT}:{sT+1}]',
             f'v_cmp_ngt_f32 s[{sT}:{sT+1}], v{vL+2}, s{sT+3}', None, f's_or_b64 vcc, vcc, s[{sT}:{sT+1}]']
    k = 0
    for x in lchk:
        if x is None: g += 1; k = 0; continue
        H(g, x); k += 1
        if k == 3: g += 1; k = 0
    assert g < n_ - 1
    def cyc(x):
        t_ = x[0] if isinstance(x, tuple) else x
        if callable(t_): return 8
        o = t_.split()[0]
        if o in TRANS: return 8
        if o.startswith('v_cvt_pk'): return 5
        if o.startswith('buffer_'): return cfg.vmc
        return 4*len(t_.split('\n')) if '\n' in t_ and ';cond' not in t_ else 4
    def cls(x):
        t_ = x[0] if isinstance(x, tuple) else x
        if callable(t_): return 'x'
        o = t_.split()[0]
        return 'm' if o.startswith('buffer_') else 'd' if o.startswith('ds_') else 'v' if o.startswith('v_') else 's'
    fill = {}; q_ = []
    for i in range(-1, n_):
        cur = list(hi.get(i, [])); cc_ = [cls(x) for x in cur]
        nd_ = cc_.count('d'); nv = nd_ + cc_.count('s') + 2*cc_.count('x') + (1 if i % 2 == 1 else 0); mem = nd_
        vroom = (cfg.av1 if nd_ else cfg.av0) - max(0, cc_.count('v') - 3); tookv = False
        for x in lo.get(i, []): q_.append((i, x))
        while q_:
            x = q_[0][1]; c_ = cls(x); force = i == n_ - 1 or i - q_[0][0] >= cfg.amax
            if c_ == 'v':
                if vroom <= 0 and not force: break
                vroom -= 1; tookv = True
            else:
                w_ = len((x[0] if isinstance(x, tuple) else x).split('\n')) if c_ == 's' else 1
                if (tookv or nv + min(w_, 2) > cfg.anv or (c_ == 'm' and mem >= cfg.amem)) and not force: break
                nv += w_; mem += c_ == 'm'
            cur.append(q_.pop(0)[1])
        fill[i] = cur
    fix_m0(fill, n_)
    if cfg.aab:
        tx = lambda x: x[0] if isinstance(x, tuple) else x
        for i in fill:
            if 2*start[3] <= i < 2*start[11]:
                if cfg.aab & 1: fill[i] = [x for x in fill[i] if callable(tx(x)) or not tx(x).startswith('buffer_load')]
                if cfg.aab & 2: fill[i] = [x for x in fill[i] if callable(tx(x)) or x in hi.get(i, []) or tx(x).startswith('buffer_load') or 'm0' in tx(x) or 's54' in tx(x)]
                if cfg.aab & 4: fill[i] = [x for x in fill[i] if not callable(tx(x))]
    for n in (1, 3, 7, 11, 15):
        t_ = ts.text(4)
        if t_: fill[2*start[n] - 1].append(t_)
    interleave(p, mf, fill)
    ts.stamp(p, 5)
    p('s_cbranch_vccnz A_slow')
    p('A_done:')
    ad = cfg.cad; P = cfg.cP
    for sub in range(4, ad):
        for b in range(4):
            for x in cact(sub, b): emit(p, x)
    p(f'v_rcp_f32 v{vL}, v{vL}\nv_rcp_f32 v{vL+2}, v{vL+2}')
    p.need(('C', 4, 0, 0)); p('s_barrier')
    for G in range(P):
        r = cA + 4*G
        p(f'ds_read_b64_tr_b16 v[{r}:{r+1}], v{cTr+G} offset:0', ('C', 4, 0, 0)); p(f'ds_read_b64_tr_b16 v[{r+2}:{r+3}], v{cTr+G} offset:4096', ('C', 4, 0, 0))
    p(';SPLIT')
    OE = cfg.oe if ND >= 7 else cfg.oes
    vO, vX, vFO, vFD, vFS, vFQ = 16, 96, 20, 21, 22, 23
    sPS, sPR = 32, 33
    def o_epi(packed):
        t = 32
        p(f'v_mov_b32 v{vL+1}, v{vL}\nv_mov_b32 v{vL+3}, v{vL+2}')
        p(f's_lshl_b32 s{sT}, s{sRB}, 4\ns_lshl_b32 s{sT+1}, s{sW}, 2\ns_add_u32 s{sT}, s{sT}, s{sT+1}\ns_mul_i32 s{sT}, s{sT}, {OST}\ns_lshl_b32 s{sT+1}, s{sCB}, 12\ns_add_u32 s{sT}, s{sT}, s{sT+1}')
        p(f'v_bfe_u32 v{t}, v1, 4, 1\nv_mul_u32_u24 v{t}, {OST}, v{t}\nv_lshrrev_b32 v{t+1}, 5, v1\nv_lshlrev_b32 v{t+1}, 8, v{t+1}\nv_and_b32 v{t+2}, 15, v1\nv_lshlrev_b32 v{t+2}, 4, v{t+2}')
        p(f'v_add3_u32 v{t}, v{t}, v{t+1}, v{t+2}\nv_add_u32 v34, s{sT}, v{t}\nv_add_u32 v35, {2*OST}, v34')
        n = 0
        for dt in range(4):
            for qt in range(2):
                o = (dt*2+qt)*16
                for half in range(2):
                    x = 96 + 8*(n % 2); d = 112 + 4*(n % 4); n += 1
                    for i in range(8): p(f'v_accvgpr_read_b32 v{x+i}, a{o+8*half+i}')
                    if packed:
                        for i in range(0, 8, 2): p(f'v_pk_mul_f32 v[{x+i}:{x+i+1}], v[{x+i}:{x+i+1}], v[{vL+2*qt}:{vL+2*qt+1}]')
                    else:
                        for i in range(8): p(f'v_mul_f32{cfg.e64} v{x+i}, v{x+i}, v{vL+2*qt}')
                        for i in range(cfg.xs): p(f's_mov_b32 s{sT+5}, {cfg.xl}')
                    for i in range(0, 8, 2): p(f'v_cvt_pk_bf16_f32 v{d+i//2}, v{x+i}, v{x+i+1}')
                    p(f'buffer_store_dwordx4 v[{d}:{d+3}], v{34+qt}, s[{S_O}:{S_O+3}], 0 offen offset:{dt*1024 + half*512} {cfg.ost}', ('Ost', 1, 0, 0))
    def s_setup():
        x_dma_addr(dO, k_o)
        srd(p, S_AO, pWS, WS_O, 17 << 20)
        p(f's_lshl_b32 s{kWO}, s{sJ}, 21\ns_lshl_b32 s{kAO}, s{sJ}, 15')
        p(f's_lshl_b32 s{sT}, s{sRC}, 4\ns_lshl_b32 s{sT+2}, s{sW}, 2\ns_add_u32 s{sT}, s{sT}, s{sT+2}\ns_mul_i32 s{sT+2}, s{sT}, {OST}')
        act_addr(aO, OST, 24)
        p(f'v_add_u32 v{vFO}, {256*128}, v{vHF}')
        p(f's_lshl_b32 s{sT}, s{sRC}, 5\ns_lshl_b32 s{sT+1}, s{sJ}, 3\ns_add_u32 s{sT}, s{sT}, s{sT+1}\ns_add_u32 s{sT}, s{sT}, 512\ns_lshl_b32 s{sT}, s{sT}, 7')
        p(f'v_and_b32 v{vFH}, 7, v1\nv_lshl_add_u32 v{vFH}, v{vFH}, 7, s{sT}')
        srd(p, S_OUT, pOUT, 0, 4 << 20); srd(p, S_P, pWS, WS_P, 24 << 20)
        p(f's_lshl_b32 s{sT}, s{sRC}, 3\ns_add_u32 s{sT}, s{sT}, s{sCC}\ns_lshl_b32 s{sT}, s{sT}, 2\ns_add_u32 s{sT+1}, s{sT}, s{sJ}')
        p(f's_add_u32 s{sT+2}, s{sT+1}, 768\ns_lshl_b32 s{sT+2}, s{sT+2}, 7\nv_mov_b32 v{vFD}, s{sT+2}\nv_add_u32 v{vFS}, {256*128}, v{vFD}')
        p(f's_add_u32 s{sT+2}, s{sT}, 768\ns_lshl_b32 s{sT+2}, s{sT+2}, 7\nv_and_b32 v{vFQ}, 3, v1\nv_lshl_add_u32 v{vFQ}, v{vFQ}, 7, s{sT+2}')
        p(f's_mul_i32 s{sT+3}, s{sW}, 12288\ns_mul_i32 s{sPR}, s{sT+1}, {3*16384}\ns_add_u32 s{sPR}, s{sPR}, s{sT+3}')
        for q_ in (1, 2, 3):
            p(f's_xor_b32 s{sT+2}, s{sT+1}, {q_}\ns_mul_i32 s{sT+2}, s{sT+2}, {3*16384}\ns_add_u32 s{sT+2}, s{sT+2}, s{sT+3}\ns_add_u32 s{sT+2}, s{sT+2}, {(q_-1)*4096}\nv_add_u32 v{24+q_}, s{sT+2}, v24')
        out_addr(vO)
    QUADS = [(t_, bp) for t_ in (4, 5, 6, 7) for bp in (0, 1)] + [(t_, 1) for t_ in range(4)]
    nsent = [0]
    def send(gemm, quads):
        for (t_, bp) in quads:
            c = 16*t_ + 8*bp; k = nsent[0]; nsent[0] += 1; d = 112 + 4*(k % 4); q_ = 2*(t_ >> 2) + bp
            if gemm == 0:
                for r in range(4): p(f'v_cvt_pk_bf16_f32 v{d+r}, v{cC+c+2*r}, v{cC+c+2*r+1}')
            else:
                x = 160 + 8*(k % 4)
                for r in range(8): p(f'v_accvgpr_read_b32 v{x+r}, a{c+r}')
                for r in range(4): p(f'v_cvt_pk_bf16_f32 v{d+r}, v{x+2*r}, v{x+2*r+1}')
            so = '0' if gemm == 0 else f's{sT+4}'
            p(f'buffer_store_dwordx4 v[{d}:{d+3}], v{24 + q_}, s[{S_P}:{S_P+3}], {so} offen offset:{1024*(t_ & 3)} {cfg.pst}', ('Pst', 1, gemm, 0))
    def send_d():
        send(0, QUADS)
        for i in (1, 2, 3):
            for r in range(8): p(f'v_mov_b32 v{cC+8*i+r}, v{cC+16*i+r}')
    mf = []; hi.clear(); lo.clear()
    ST = 128; TMS = cfg.tms
    NSUB = 4*NS
    order = [(sub // 4, sub % 4, t) for sub in range(NSUB - TMS) for t in range(8)]
    order += [(sub // 4, sub % 4, t) for t in (4, 5, 6, 7, 0, 1, 2, 3) for sub in range(NSUB - TMS, NSUB)]
    assert not cfg.sent and (TMS <= 4 or NS % 2 == 0)
    def ctr(G):
        sg, s, t = order[G]
        r = cA + 4*(G % 8); off = (sg % 2)*SLOT + s*8192
        a = cTr + t
        return [(f'ds_read_b64_tr_b16 v[{r}:{r+1}], v{a} offset:{off}', ('C', 4, sg, 0)),
                (f'ds_read_b64_tr_b16 v[{r+2}:{r+3}], v{a} offset:{off + 4096}', ('C', 4, sg, 0))]
    obar = math.ceil(OE) + 1; dbar = ND + math.ceil(cfg.de) + 1
    def bar(p, sgn):
        p.need(('C', 4, sgn, 0))
        if sgn == obar: p.need(('Ost', 1, 0, 0))
        if sgn == dbar: p.need(('Pst', 1, 0, 0))
        p('s_barrier')
    firstG = {}
    for G, (sg, s, t) in enumerate(order): firstG.setdefault(sg, G)
    for G in range(32*NS):
        sg, s, t = order[G]; sub = 4*sg + s
        for b in range(4):
            ra = cA + 4*(G % 8); rb = 128 + 16*(sub % 8) + 4*b; c = (t*4+b)*4
            acc_ = f'v[{cC+c}:{cC+c+3}]' if kind(sg) == 'd' else f'a[{c}:{c+3}]'
            mf.append(f'v_mfma_f32_16x16x32_bf16 {acc_}, v[{ra}:{ra+3}], a[{rb}:{rb+3}], {"0" if sub in (0, 4*ND) else acc_}')
        i0 = 4*G; Gn = G + P
        if Gn < 32*NS:
            if firstG[order[Gn][0]] == Gn: H(i0-1, lambda p, sgn=order[Gn][0]: bar(p, sgn))
            r0, r1 = ctr(Gn)
            H(i0, r0); H(i0+1, r1)
            if Gn % 64 >= 56 and Gn // 32 < NS - 1: H(i0+2, f'v_xor_b32 v{cTr + Gn % 8}, s{cTG}, v{cTr + Gn % 8}')
        sgc, g = divmod(G, 32)
        dstr = 2 if (TMS > 4 and sgc + 2 == NS - 1) else cfg.cdstr
        if g % dstr == 1 and g // dstr < 8 and sgc + 2 < NS:
            for x in cdma(g // dstr, sgc + 2): L(i0, x)
    last_act = 0
    for sub in range(ad, 4*NS):
        t0 = max((sub - 7)*32, min((sub - ad)*32, (4*NS - 8)*32 - (4*NS - 1 - sub)*cfg.ramp)) if TMS else (sub - ad)*32
        t1 = max((sub - 6)*32, min((sub + 1 - ad)*32, (4*NS - 8)*32 - (4*NS - 2 - sub)*cfg.ramp)) if TMS else t0 + 32
        for b in range(4):
            last_act = t0 + b*min(8, (t1 - t0)//4)
            for x in cact(sub, b): L(last_act, x)
    if cfg.cpf2:
        for k in ((1,) if cfg.cpf2 < 2 else range(0, math.floor(OE))):
            for x in code_pf(S_DB, 61): L(k*ST + 4*30, x)
        for x in code_srd(S_AH, 'L_pc3' + SFX): L(ND*ST, x)
        for k in ((ND, ND + 3) if cfg.cpf2 < 2 else range(ND, NS - 2)):
            for x in code_pf(S_AH, 61): L(k*ST + 4*30, x)
    if cfg.c3:
        L((ND - 2)*ST, f's_add_u32 s{sT+4}, s{kWO}, {cfg.c3s*128*2048}'); L((ND - 2)*ST, f'buffer_load_dword v61, v39, s[{S_WO}:{S_WO+3}], s{sT+4} offen ;pf')
    n = len(mf)
    fill = spread(hi, {k: lo[k] for k in sorted(lo)}, n, cfg.cap, 16, cost=lambda i: 1 if i % 4 == 3 else 0)
    fix_m0(fill, n)
    def ride(items, g0, g1):
        q_ = list(items); per = len(q_) / (g1 - g0); due = 0.0; done = 0
        for i in range(g0, g1):
            due += per
            used = len(fill[i]) + (1 if i % 4 == 3 else 0)
            while q_ and done < due + 2 and (used < cfg.cap or done < due - cfg.lag):
                fill[i].append(q_.pop(0)); used += 1; done += 1
        fill[g1-1] += q_
    oq = collect(lambda: o_epi(cfg.ox > 0))
    nx = 0
    if cfg.ox:
        idx = [i for i, x in enumerate(oq) if x[0].startswith('buffer_store')]
        nx = idx[cfg.ox - 1] + 1
        fill[-1] = oq[:nx] + fill[-1]
        oq2 = collect(lambda: o_epi(False))
        idx2 = [i for i, x in enumerate(oq2) if x[0].startswith('buffer_store')]
        oq = oq2[idx2[cfg.ox - 1] + 1:]
    if oq: ride(oq, 2, int(OE*ST))
    ride(collect(s_setup), int(OE*ST), int(OE*ST) + ST - 20)
    fill[obar*ST - 4*P + 2].append(flag_store('C_of' + SFX, vFO))
    first_o = (4*ND - ad)*32
    assert first_o - 2 > int(OE*ST) + ST - 20 and (ND - 2)*ST > int(OE*ST) + ST - 20
    fill[first_o - cfg.fl].append(f'buffer_load_dwordx2 v[62:63], v{vFH}, s[{S_FL}:{S_FL+3}], 0 offen sc1')
    fill[first_o - 2].append('\n'.join(flagchk('L_o' + SFX, vFH, 62)))
    ride(collect(send_d), ND*ST + 8, ND*ST + int(cfg.de*ST))
    fill[dbar*ST - 4*P + 2].append(flag_store('C_df' + SFX, vFD))
    xl = [f's_lshl_b32 s{sT+2}, s{sW}, 13', f's_add_u32 s{sT+2}, s{sT+2}, {XL}', 'v_and_b32 v36, 0x37, v1', 'v_lshlrev_b32 v36, 4, v36', 'v_bfe_u32 v37, v1, 3, 1', 'v_lshl_add_u32 v36, v37, 10, v36', f'v_add_u32 v39, s{sT+2}, v36']
    xl += [f'ds_read_b128 v[{vX+8*b+4*pr}:{vX+8*b+4*pr+3}], v39 offset:{2048*b + 128*pr}' for b in range(2) for pr in range(2)]
    vR = 192
    def recv(gemm):
        p(f's_add_u32 s{sT+2}, s{sPR}, {gemm*256*3*16384}')
        for q_ in range(3):
            for i in range(4):
                r = vR + 16*q_ + 4*i
                p(f'buffer_load_dwordx4 v[{r}:{r+3}], v24, s[{S_P}:{S_P+3}], s{sT+2} offen offset:{1024*i} sc1')
            if q_ < 2: p(f's_add_u32 s{sT+2}, s{sT+2}, 4096')
    dchk = NS - cfg.dchk; assert dchk*ST > last_act + 16
    fill[int(dchk*ST) - cfg.fl].append(f'buffer_load_dwordx2 v[62:63], v{vFQ}, s[{S_FL}:{S_FL+3}], 0 offen sc1')
    fill[int(dchk*ST)].append('\n'.join(flagchk('L_d' + SFX, vFQ, 62)))
    ride(collect(lambda: recv(0)), int(dchk*ST) + 2, int(dchk*ST) + 50)
    fill[(NS - 3)*ST].append(f's_mov_b32 s{sT+4}, {256*3*16384}')
    left = list(QUADS)
    if TMS:
        base = (NSUB - TMS)*32; plen = TMS*4
        for k, t_ in enumerate((4, 5, 6, 7, 0, 1, 2)):
            qs_ = [x for x in QUADS if x[0] == t_]; left = [x for x in left if x[0] != t_]
            g0 = base + (k + 1)*plen + 3
            ride(collect(lambda: send(1, qs_)), g0, min(n, g0 + plen))
    ts.stamp(p, 7)
    for k in range(1, 15):
        if k in (1, 2, 3, 4, 5, 6, 7, 8, 9, 11, 13):
            t_ = ts.text(2)
            if t_: fill[k*ST - 1].append(t_)
    interleave(p, mf, fill)
    p(f's_mov_b32 s{sT+3}, 0xffff0000\nv_add_u32 v{vFQ}, {256*128}, v{vFQ}\ns_nop 4')
    ts.stamp(p, 3)
    for x in xl: p(x)
    send(1, left)
    RS = (160, 176, 240)
    def recv_s(q_, cond=''):
        for i in range(4):
            p(f'buffer_load_dwordx4 v[{RS[q_]+4*i}:{RS[q_]+4*i+3}], v24, s[{S_P}:{S_P+3}], s{44+q_} offen offset:{1024*i} sc1{cond}')
    if cfg.sent:
        p(f's_add_u32 s44, s{sPR}, {256*3*16384}\ns_add_u32 s45, s44, 4096\ns_add_u32 s46, s45, 4096')
        for q_ in range(3): recv_s(q_)
    pk = lambda r: f'v[{r}:{r+1}]'
    def addparts(dst, i, src):
        for q_ in range(3):
            rr = src[q_] + 4*i; tt = 32 + 8*(q_ % 2)
            for r in range(4): p(f'v_lshlrev_b32 v{tt+2*r}, 16, v{rr+r}\nv_and_b32 v{tt+2*r+1}, s{sT+3}, v{rr+r}')
            for r in range(0, 8, 2): p(f'v_pk_add_f32 {pk(dst+r)}, {pk(dst+r)}, {pk(tt+r)}')
    p(f'v_mov_b32 v28, {f2u(-math.log2(math.e)):#x}\nv_mov_b32 v29, v28')
    RD = (vR, vR + 16, vR + 32)
    for i in range(4):
        c = cC + 8*i; B = 48
        addparts(c, i, RD)
        for r in range(0, 8, 2): p(f'v_pk_mul_f32 {pk(B+r)}, {pk(c+r)}, v[28:29]')
        for r in range(8): p(f'v_exp_f32 v{B+r}, v{B+r}')
        p('s_nop 0')
        for r in range(0, 8, 2): p(f'v_pk_add_f32 {pk(B+r)}, {pk(B+r)}, 1.0 op_sel_hi:[1,0]')
        for r in range(8): p(f'v_rcp_f32 v{B+r}, v{B+r}')
        p('s_nop 0')
        for r in range(0, 8, 2): p(f'v_pk_mul_f32 {pk(c+r)}, {pk(c+r)}, {pk(B+r)}')
    vSs = 64
    for i in range(32): p(f'v_accvgpr_read_b32 v{vSs+i}, a{16*(i//8) + i % 8}')
    E = 192 if cfg.sent else 160
    def xunpack():
        for b in range(4):
            for q in range(4): p(f'v_lshlrev_b32 v{E+8*b+2*q}, 16, v{vX+4*b+q}\nv_and_b32 v{E+8*b+2*q+1}, s{sT+3}, v{vX+4*b+q}')
    if cfg.sent:
        xunpack()
        ts.stamp(p)
        p('C_chk:\ns_waitcnt vmcnt(0)\ns_mov_b32 s47, 0')
        for q_ in range(3):
            r = RS[q_]
            p(f'v_max3_u32 v32, v{r}, v{r+1}, v{r+2}')
            for k in range(3, 15, 2): p(f'v_max3_u32 v32, v32, v{r+k}, v{r+k+1}')
            p(f'v_max_u32 v32, v32, v{r+15}\nv_cmp_eq_u32 vcc, -1, v32\ns_nop 1\ns_cbranch_vccz C_ok{q_}')
            p.cond(True)
            p(f's_sleep {cfg.slp2}\ns_mov_b32 s47, 1'); recv_s(q_)
            p.cond(False)
            p(f'C_ok{q_}:')
        p('s_cmp_lg_u32 s47, 0\ns_cbranch_scc1 C_chk')
        ts.stamp(p)
        src = RS
    else:
        p('s_waitcnt vmcnt(0)\ns_barrier')
        ts.stamp(p)
        p(f's_cmp_eq_u32 s{sW}, 1\ns_cbranch_scc0 C_got{SFX}')
        p.cond(True)
        p(f'buffer_store_dwordx2 v[2:3], v{vFS}, s[{S_FL}:{S_FL+3}], 0 offen sc1')
        poll('C_poll' + SFX, vFQ, 'C_got' + SFX)
        p.cond(False)
        p(f'C_got{SFX}:\ns_barrier')
        ts.stamp(p)
        recv(1)
        xunpack()
        src = RD
    for i in range(4): addparts(vSs + 8*i, i, src)
    for i in range(0, 32, 2): p(f'v_pk_mul_f32 {pk(vSs+i)}, {pk(vSs+i)}, {pk(cC+i)}')
    for b in range(2):
        P0, P1, T_ = 112 + 8*b, 116 + 8*b, 32
        for pr in range(2):
            c0 = vSs + 16*pr + 4*b; c1 = c0 + 8
            for r in range(4): p(f'v_permlane16_swap_b32 v{c0+r}, v{c1+r}')
        for pr in range(2):
            c0 = vSs + 16*pr + 4*b; c1 = c0 + 8; e = E + 16*b + 8*pr
            for q in range(4):
                c = (c0, c0+2, c1, c1+2)[q]
                p(f'v_pk_add_f32 {pk(e+2*q)}, {pk(e+2*q)}, {pk(c)}')
            for q in range(4): p(f'v_cvt_pk_bf16_f32 v{(P0, P1)[pr]+q}, v{e+2*q}, v{e+2*q+1}')
        for q in range(4): p(f'v_mov_b32 v{T_+q}, v{P1+q}')
        for q in range(4): p(f'v_mov_b32_dpp v{P1+q}, v{P0+q} row_ror:8 row_mask:0xf bank_mask:0x3')
        for q in range(4): p(f'v_mov_b32_dpp v{P0+q}, v{T_+q} row_ror:8 row_mask:0xf bank_mask:0xc')
        p(f's_mov_b32 s{sT}, {2*b*0x4000}\ns_mov_b32 s{sT+1}, {(2*b+1)*0x4000}')
        p(f'buffer_store_dwordx4 v[{P0}:{P0+3}], v{vO}, s[{S_OUT}:{S_OUT+3}], s{sT} offen {cfg.osc}')
        p(f'buffer_store_dwordx4 v[{P1}:{P1+3}], v{vO}, s[{S_OUT}:{S_OUT+3}], s{sT+1} offen {cfg.osc}')
    ts.stamp(p)
    if cfg.ts: p('s_waitcnt vmcnt(0)')
    ts.stamp(p)
    ts.dump(p, pWS)
    p('s_endpgm')
    autowait(p)
    if cfg.hoist: hoist(p)
    if not cfg.aab: check(p, 'main')

    z = Prog(); main = p; p = z
    p('A_slow:')
    p('s_waitcnt vmcnt(0) lgkmcnt(0)')
    srd(p, S_K, pK, 0, 2 << 20); srd(p, S_V, pV, 0, 2 << 20)
    zK, zD, zV = 13, 14, 21
    zKV, zN = sT, sT+1
    p(f's_lshr_b32 s{zKV}, s{sCB}, 3\ns_lshl_b32 s{zKV}, s{zKV}, 19\ns_add_u32 s{zKV}, s{zKV}, {1536*256}')
    p(f'v_and_b32 v{zK}, 31, v1\nv_lshlrev_b32 v{zK}, 8, v{zK}\nv_lshrrev_b32 v36, 5, v1\nv_lshl_add_u32 v{zK}, v36, 4, v{zK}')
    p(f'v_lshrrev_b32 v36, 4, v1\nv_and_b32 v37, 15, v1\nv_lshlrev_b32 v38, 2, v36\nv_xor_b32 v37, v37, v38\nv_lshlrev_b32 v36, 8, v36\nv_lshl_add_u32 v{zD}, v37, 4, v36\nv_add_u32 v{zD+1}, 0x1000, v{zD}')
    t = 36
    p(f'v_lshrrev_b32 v{t}, 5, v1\nv_lshlrev_b32 v{t}, 2, v{t}\nv_bfe_u32 v{t+1}, v1, 2, 2\nv_add_u32 v{t}, v{t}, v{t+1}\nv_lshlrev_b32 v{t}, 8, v{t}')
    p(f'v_bfe_u32 v{t+2}, v1, 4, 1\nv_lshlrev_b32 v{t+2}, 5, v{t+2}\nv_and_b32 v{t+3}, 3, v1\nv_lshlrev_b32 v{t+3}, 3, v{t+3}\nv_add3_u32 v{t}, v{t}, v{t+2}, v{t+3}')
    p(f's_lshl_b32 s{sT+2}, s{sW}, 13\ns_add_u32 s{sT+2}, s{sT+2}, 0x10000\nv_add_u32 v{t}, s{sT+2}, v{t}')
    for dt in range(4): p(f'v_xor_b32 v{t+2}, {dt}, v{t+1}\nv_lshl_add_u32 v{zV+dt}, v{t+2}, 6, v{t}')
    def kglob():
        for s in range(8): p(f'buffer_load_dwordx4 a[{aF+4*s}:{aF+4*s+3}], v{zK}, s[{S_K}:{S_K+3}], s{zN} offen offset:{32*s}')
    p(f'v_mov_b32 v32, 0xff800000\nv_mov_b32 v34, 0xff800000\ns_mov_b32 s{zN}, s{zKV}\ns_mov_b32 s{sT+3}, 16')
    p.loop_begin('Z1_loop', 16, align=False)
    kglob()
    for s in range(8):
        for qt in range(2): p(qk(0, s, qt, zero))
    p('s_nop 7\ns_nop 3')
    rowmax(0, False)
    p(f's_add_u32 s{zN}, s{zN}, 8192\ns_sub_u32 s{sT+3}, s{sT+3}, 1\ns_cmp_lg_u32 s{sT+3}, 0\ns_cbranch_scc1 Z1_loop')
    p.loop_end()
    set_negm()
    for i in range(128): p(f'v_accvgpr_write_b32 a{i}, 0')
    for i in range(4): p(f'v_mov_b32 v{vL+i}, 0')
    p(f's_mov_b32 s{zN}, s{zKV}\ns_mov_b32 s{sT+3}, 16')
    p.loop_begin('Z2_loop', 16, align=False)
    kglob()
    for j in range(8):
        if j % 4 == 0: p(f's_add_u32 m0, s{sT+2}, {1024*j}\ns_nop 0')
        p(f'buffer_load_dwordx4 v{zD + j//4}, s[{S_V}:{S_V+3}], s{zN} offen offset:{1024*(j%4)} lds')
    for s in range(8):
        for qt in range(2): p(qk(0, s, qt, negm))
    p('s_nop 7\ns_nop 3')
    for ops in softmax_ops(0):
        for o in ops: p(o)
    p('s_waitcnt vmcnt(0)')
    for f in range(8):
        for r in vread(0, f, None, base=zV, off0=0): emit(p, r)
    for f in range(8):
        for qt in range(2): p(pv(0, f, qt))
    p(f's_add_u32 s{zN}, s{zN}, 8192\ns_sub_u32 s{sT+3}, s{sT+3}, 1\ns_cmp_lg_u32 s{sT+3}, 0\ns_cbranch_scc1 Z2_loop')
    p.loop_end()
    p('s_nop 7\ns_nop 7')
    for qt in range(2):
        l = vL + 2*qt
        p(f'v_add_f32 v{l}, v{l}, v{l+1}\nv_mov_b32 v{l+1}, v{l}\ns_nop 1\nv_permlane32_swap_b32 v{l}, v{l+1}\ns_nop 1\nv_add_f32 v{l}, v{l}, v{l+1}')
    p('s_branch A_done')
    autowait(z); check(z, 'slow')
    txt = main.text()
    if cfg.jit:
        n_ = [0]
        def jit(m):
            n_[0] += 1
            if n_[0] % cfg.jit: return m.group(0)
            l = f'J{SFX if ";SPLIT" in txt[:m.start()] else ""}_{n_[0]}'
            return (f'  s_mul_i32 s98, s2, {7 + 2*n_[0]}\n  s_mul_i32 s99, s36, {13 + n_[0]}\n  s_add_u32 s98, s98, s99\n  s_getreg_b32 s99, hwreg(HW_REG_SHADER_CYCLES, 0, 8)\n'
                    if False else
                    f'  s_mov_b32 s99, scc\n' if False else '') + f'  s_cselect_b32 s97, 1, 0\n  s_mul_i32 s98, s2, {7 + 2*n_[0]}\n  s_mul_i32 s99, s36, {13 + n_[0]}\n  s_add_u32 s98, s98, s99\n  s_and_b32 s98, s98, 7\n{l}:\n  s_sleep 8\n  s_sub_u32 s98, s98, 1\n  s_cmp_ge_i32 s98, 0\n  s_cbranch_scc1 {l}\n  s_cmp_eq_u32 s97, 1\n' + m.group(0)
        import re
        txt = re.sub(r'  s_barrier', jit, txt)
    pre_, c_ = txt.split(';SPLIT')
    return pre_, c_, z.text(), sJ

def main():
    cfg = Cfg()
    cfg.ts = 1; cfg.xmap = 'b'; cfg.stag = 0; cfg.P = 4; cfg.late1 = 1; cfg.w0 = 0; cfg.cw0 = 8
    cfg.d0 = 0; cfg.dstr = 4; cfg.a0 = 1; cfg.astr = 2; cfg.ad = 3; cfg.PF = 3; cfg.cap = 2
    cfg.cad = 5; cfg.cdstr = 4; cfg.cP = 4; cfg.thr = 40; cfg.tail0 = 4; cfg.sum = 'add'; cfg.hbar = 2; cfg.t1e = 1; cfg.t0e = 0; cfg.npre = 2; cfg.av0 = 2; cfg.av1 = 1; cfg.anv = 2; cfg.amem = 2; cfg.hoist = 1; cfg.apre = 0; cfg.jit = 0; cfg.ost = 'sc1'; cfg.pst = 'sc1'; cfg.m0 = 0; cfg.c3 = 0; cfg.xat = -1; cfg.c3l = 3; cfg.c3s = 2; cfg.wsc = ''; cfg.gsc = ''; cfg.cdel = 0; cfg.ccx = 0; cfg.xbar = 90; cfg.fs1 = 6; cfg.xe = 0; cfg.xchk = 230; cfg.xfl = 60; cfg.xt = 0; cfg.fs = 1; cfg.oes = 2; cfg.sent = 0; cfg.slp2 = 4; cfg.trk = 2; cfg.kvp = 1; cfg.trk0 = 1; cfg.pf4 = 0; cfg.pf4n = 8; cfg.pf3 = 0; cfg.aab = 0; cfg.e64 = ''; cfg.xs = 0; cfg.xl = 1; cfg.cpf2 = 2; cfg.loc = 0; cfg.fremote = 0; cfg.ox = 0; cfg.ramp = 20; cfg.lag = 3; cfg.vmc = 8; cfg.acap = 24; cfg.amax = 40; cfg.wb = 0; cfg.opad = 256; cfg.xpad = 256; cfg.hpad = 0; cfg.oe = 3; cfg.de = 3; cfg.tms = 8; cfg.fl = 128; cfg.dchk = 1.65; cfg.dbg = 0; cfg.cpf = 1; cfg.tlb = 0; cfg.osc = 'sc1'; cfg.slp = 1; cfg.late0 = 2
    for a in sys.argv[2:]:
        k, v = a.split('='); setattr(cfg, k, int(v) if v.lstrip('-').isdigit() else float(v) if v.replace('.','').isdigit() else v)
    kn = NAME + '_kernel'
    hdr = (f'; opad={cfg.opad} hoff={WS_H} xpad={cfg.xpad} hpad={cfg.hpad} ooff={WS_O}\n; @launch grid=(256,1,1) block=(256,1,1) lds={LDS_TOT}\n'
           '.amdgcn_target "amdgcn-amd-amdhsa--gfx950"\n')
    if cfg.fs:
        a, c8, z, sJ = gen(cfg, 8); a6, c6, _, _ = gen(cfg, 6)
        assert a == a6
        body = a + f'  s_bitcmp1_b32 s{sJ}, 0\n  s_cbranch_scc1 C_short\n' + c8 + '\nC_short:\n' + c6
    else:
        a, c7, z, _ = gen(cfg, 7); body = a + c7
    s = hdr + kernel_head(kn) + body + '\nK_end:\n  s_endpgm\n' + z + '\nK_last:\n' + kernel_desc(kn, 512, 256)
    open(sys.argv[1], 'w').write(s)
if __name__ == '__main__': main()
```

```python
import sys, struct, math
from dsl import *
from gen2 import (f2u, srd, kernel_head, kernel_desc, emit, interleave, spread, m0gap, fix_m0, chk_tail, Cfg)

NAME = 'recurrent_scan__sliding_block_cached__geglu_ffn__prompt'
WS_XN = 0
WS_O  = 4 << 20
WS_H  = 20 << 20
WS_G  = 36 << 20
WS_FL = 40 << 20
WS_TS = 48 << 20
WS_P  = 64 << 20
HS = 22528; NHS = 7
LDS_SCR = NHS*HS
LDS_TOT = 163840

class TS:
    def __init__(self, on): self.on = on; self.n = 0
    def stamp(self, p):
        if not self.on: return
        s = 88 + self.n; self.n += 1;
        if s >= 102: return
        p(f's_waitcnt lgkmcnt(0)\ns_memrealtime s[4:5]\ns_waitcnt lgkmcnt(0)\ns_mov_b32 s{s}, s4')
    def dump(self, p, wsptr):
        if not self.on: return
        srd(p, 12, wsptr, WS_TS, 1 << 20)
        p('v_lshrrev_b32 v8, 6, v0\nv_lshlrev_b32 v8, 6, v8\ns_lshl_b32 s3, s2, 8\nv_add_u32 v8, s3, v8')
        for i in range(min(self.n, 14)):
            p(f'v_mov_b32 v4, s{88+i}\nbuffer_store_dword v4, v8, s[12:15], 0 offen offset:{4*i}\ns_nop 1')

def gen(cfg):
    p = Prog(); ts = TS(cfg.ts)
    SC = ' sc1'
    pX, pK, pV, pWQ, pWO, pWG, pWU, pWD, pOUT, pDBG, pWS = 64, 66, 68, 70, 72, 76, 78, 80, 82, 84, 86
    S_W, S_Q, S_XN, S_H, S_K, S_V, S_O = 8, 12, 16, 20, 24, 28, 32
    S_FL, S_DB = 56, 60
    sW, sRB, sCB, sKW, sKQ, sKA, sCNT = 36, 37, 38, 39, 40, 41, 42
    sMW, sMQ, sRD, sDL, sLEFT, sLEFA, sRW, sRQ = 43, 44, 45, 46, 47, 48, 49, 3
    sT = 50
    p('s_cmp_ge_u32 s2, 256\ns_cbranch_scc1 K_end')
    p('s_load_dwordx16 s[64:79], s[0:1], 0\ns_load_dwordx8 s[80:87], s[0:1], 64')
    p(f'v_lshrrev_b32 v2, 6, v0\nv_and_b32 v1, 63, v0\nv_readfirstlane_b32 s{sW}, v2')
    p(f's_and_b32 s{sT}, s2, 7\ns_lshr_b32 s{sT+1}, s2, 3')
    if cfg.xmap == 'c':
        p(f's_and_b32 s{sRB}, s{sT}, 1\ns_lshl_b32 s{sRB}, s{sRB}, 2\ns_and_b32 s{sT+2}, s{sT+1}, 3\ns_add_u32 s{sRB}, s{sRB}, s{sT+2}')
        p(f's_lshr_b32 s{sCB}, s{sT}, 1\ns_lshl_b32 s{sCB}, s{sCB}, 3\ns_lshr_b32 s{sT+2}, s{sT+1}, 2\ns_add_u32 s{sCB}, s{sCB}, s{sT+2}')
    else:
        p(f's_and_b32 s{sRB}, s{sT+1}, 7\ns_lshl_b32 s{sCB}, s{sT}, 2\ns_lshr_b32 s{sT+2}, s{sT+1}, 3\ns_add_u32 s{sCB}, s{sCB}, s{sT+2}')
    vAct, vDW, vDQ, vTr, vTq, vT = 4, 8, 15, 19, 20, 28
    vA, RA = 32, 8
    vB, RB = 64, 4
    def acc(t, b):
        if t < 16: c = (t*4+b)*4; return f'a[{c}:{c+3}]'
        c = 160 + ((t-16)*4+b)*4; return f'v[{c}:{c+3}]'
    def accr(t, b, r):
        if t < 16: return f'a{(t*4+b)*4+r}'
        return f'v{160+((t-16)*4+b)*4+r}'
    vLX, vLO, vLS = 128, 129, 130
    t = 132
    p(f's_lshl_b32 s{sT}, s{sRB}, 8\ns_lshl_b32 s{sT+1}, s{sCB}, 3\ns_add_u32 s{sT}, s{sT}, s{sT+1}\ns_lshl_b32 s{sT}, s{sT}, 11\ns_lshl_b32 s{sT+1}, s{sW}, 9\ns_add_u32 s{sT}, s{sT}, s{sT+1}')
    p(f'v_and_b32 v{t}, 7, v1\nv_bfe_u32 v{t+1}, v1, 3, 1\nv_lshrrev_b32 v{t+2}, 4, v1')
    p(f'v_lshlrev_b32 v{t+3}, 11, v{t}\nv_lshlrev_b32 v{t+4}, 8, v{t+1}\nv_lshlrev_b32 v{t+5}, 4, v{t+2}\nv_add3_u32 v{t+3}, v{t+3}, v{t+4}, v{t+5}\nv_add_u32 v{vLX}, s{sT}, v{t+3}')
    p(f's_lshl_b32 s{sT}, s{sRB}, 4\ns_lshr_b32 s{sT+1}, s{sCB}, 1\ns_add_u32 s{sT}, s{sT}, s{sT+1}\ns_lshl_b32 s{sT}, s{sT}, 15\ns_lshl_b32 s{sT+1}, s{sW}, 13\ns_add_u32 s{sT}, s{sT}, s{sT+1}')
    p(f's_and_b32 s{sT+1}, s{sCB}, 1\ns_lshl_b32 s{sT+1}, s{sT+1}, 7\ns_add_u32 s{sT}, s{sT}, s{sT+1}')
    p(f'v_lshlrev_b32 v{t+3}, 4, v{t}\nv_lshlrev_b32 v{t+4}, 12, v{t+1}\nv_lshlrev_b32 v{t+5}, 8, v{t+2}\nv_add3_u32 v{t+4}, v{t+3}, v{t+4}, v{t+5}\nv_add_u32 v{vLO}, s{sT}, v{t+4}')
    p(f'v_add_u32 v{vLS}, {LDS_SCR}, v{t+3}\nv_lshl_add_u32 v{vLS+1}, v2, 2, v{vLS}')
    p(f's_and_b32 s{sT}, s{sW}, 1\ns_mul_i32 s{sT}, s{sT}, {32*7168}\ns_mul_i32 s{sT+1}, s{sCB}, 224\ns_add_u32 s{sT}, s{sT}, s{sT+1}')
    p(f's_mov_b32 s{sT+1}, 4682\ns_mov_b32 s{sT+2}, 7168')
    for n in range(448): assert (n*4682) >> 16 == n // 14
    t = 32
    for pc in range(7):
        p(f'v_add_u32 v{t}, {64*pc}, v1')
        p(f'v_mul_u32_u24 v{t+1}, s{sT+1}, v{t}\nv_lshrrev_b32 v{t+1}, 16, v{t+1}')
        p(f'v_mul_u32_u24 v{t+2}, 14, v{t+1}\nv_sub_u32 v{t+2}, v{t}, v{t+2}')
        p(f'v_and_b32 v{t+3}, 0x13, v{t+1}\nv_and_b32 v{t+4}, 4, v{t+1}\nv_lshl_or_b32 v{t+3}, v{t+4}, 1, v{t+3}')
        p(f'v_bfe_u32 v{t+4}, v{t+1}, 3, 1\nv_lshl_or_b32 v{t+3}, v{t+4}, 2, v{t+3}')
        p(f'v_mul_u32_u24 v{t+3}, s{sT+2}, v{t+3}\nv_lshlrev_b32 v{t+2}, 4, v{t+2}\nv_add3_u32 v{vDW+pc}, v{t+3}, v{t+2}, s{sT}')
        if pc % 4: p(f'v_subrev_u32 v{vDW+pc}, {1024*(pc%4)}, v{vDW+pc}')
    p(f's_lshl_b32 s{sT}, s{sW}, 17\ns_lshl_b32 s{sT+1}, s{sCB}, 8\ns_add_u32 s{sT}, s{sT}, s{sT+1}')
    p(f'v_lshrrev_b32 v{t}, 4, v1\nv_and_b32 v{t+1}, 15, v1\nv_lshlrev_b32 v{t+2}, 1, v{t}\nv_xor_b32 v{t+1}, v{t+1}, v{t+2}')
    p(f'v_lshlrev_b32 v{t}, 13, v{t}\nv_add_u32 v{t}, s{sT}, v{t}')
    for j in range(4):
        p(f'v_xor_b32 v{t+2}, {8*(j>>1)}, v{t+1}\nv_lshl_add_u32 v{t+2}, v{t+2}, 4, v{t}')
        p(f'v_add_u32 v{vDQ+j}, {j*(4*8192-1024)}, v{t+2}')
    p(f's_and_b32 s{sT}, s{sW}, 1\ns_lshr_b32 s{sT+1}, s{sW}, 1')
    p(f's_mul_i32 s{sMW}, s{sT}, {HS}\ns_mul_i32 s{sRW}, s{sT+1}, 7168')
    p(f's_mul_i32 s{sMQ}, s{sT+1}, {HS}\ns_lshl_b32 s{sRQ}, s{sT}, 12\ns_add_u32 s{sRQ}, s{sRQ}, 14336')
    KW, KQ, KA, NT = 64*7168, 64*8192, 2048, 16
    if cfg.stag:
        p(f's_lshl_b32 s{sT}, s{sRB}, 1\ns_mul_i32 s{sKW}, s{sT}, {KW}\ns_mul_i32 s{sKQ}, s{sT}, {KQ}\ns_mul_i32 s{sKA}, s{sT}, {KA}')
    else:
        p(f's_mov_b32 s{sKW}, 0\ns_mov_b32 s{sKQ}, 0\ns_mov_b32 s{sKA}, 0')
    p(f's_mov_b32 s{sLEFT}, {NT}\ns_mov_b32 s{sLEFA}, {NT}\ns_mov_b32 s{sRD}, 0')
    def c_role(sGM, sKH, sRC, sCC, tmp):
        p(f's_bfe_u32 s{sGM}, s2, 0x10002\ns_bfe_u32 s{sKH}, s2, 0x10001\ns_and_b32 s{sRC}, s2, 1\ns_lshl_b32 s{sRC}, s{sRC}, 2\ns_bfe_u32 s{tmp}, s2, 0x20003\ns_add_u32 s{sRC}, s{sRC}, s{tmp}\ns_lshr_b32 s{sCC}, s2, 5')
    sNO = 6
    p('s_waitcnt lgkmcnt(0)')
    ts.stamp(p)
    S_X0 = S_H
    srd(p, S_X0, pX, 0, 4 << 20)
    vLD = 144
    for i in range(4): p(f'buffer_load_dwordx4 v[{vLD+4*i}:{vLD+4*i+3}], v{vLX}, s[{S_X0}:{S_X0+3}], 0 offen offset:{64*i}')
    p(f's_cmp_ge_u32 s{sW}, 2\ns_cselect_b32 s{S_W}, s{pWU}, s{pWG}\ns_cselect_b32 s{S_W+1}, s{pWU+1}, s{pWG+1}')
    p(f's_mov_b32 s{S_W+2}, {1024*7168:#x}\ns_mov_b32 s{S_W+3}, 0x20000')
    srd(p, S_Q, pWQ, 0, 8 << 20)
    srd(p, S_FL, pWS, WS_FL, 1152*128)
    srd(p, S_XN, pWS, WS_XN, 4 << 20)
    srd(p, S_DB, pDBG, 0, 256)
    if cfg.tlb:
        p(f'v_lshlrev_b32 v140, 17, v1')
        if cfg.tlb == 2: p(f's_lshl_b32 s{sT+1}, s{sW}, 15\nv_add_u32 v140, s{sT+1}, v140')
        p(f'buffer_load_dword v141, v140, s[{S_W}:{S_W+3}], 0 offen\nbuffer_load_dword v142, v140, s[{S_Q}:{S_Q+3}], 0 offen')
        if cfg.tlb == 2:
            p(f's_cmp_ge_u32 s{sW}, 2\ns_cselect_b32 s{S_K}, s{pWG}, s{pWU}\ns_cselect_b32 s{S_K+1}, s{pWG+1}, s{pWU+1}\ns_mov_b32 s{S_K+2}, {1024*7168:#x}\ns_mov_b32 s{S_K+3}, 0x20000')
            p(f'buffer_load_dword v143, v140, s[{S_K}:{S_K+3}], 0 offen')
    def adv_w():
        return [f's_add_u32 s{sKW}, s{sKW}, {KW}', f's_cmp_eq_u32 s{sKW}, {NT*KW}', f's_cselect_b32 s{sKW}, 0, s{sKW}',
                f's_add_u32 s{sMW}, s{sMW}, {2*HS}', f's_cmp_ge_u32 s{sMW}, {NHS*HS}', f's_cselect_b32 s{sT}, {NHS*HS}, 0', f's_sub_u32 s{sMW}, s{sMW}, s{sT}']
    def adv_q():
        return [f's_add_u32 s{sKQ}, s{sKQ}, {KQ}', f's_and_b32 s{sKQ}, s{sKQ}, {NT*KQ-1}',
                f's_add_u32 s{sMQ}, s{sMQ}, {2*HS}', f's_cmp_ge_u32 s{sMQ}, {NHS*HS}', f's_cselect_b32 s{sT}, {NHS*HS}, 0', f's_sub_u32 s{sMQ}, s{sMQ}, s{sT}',
                f's_sub_u32 s{sLEFT}, s{sLEFT}, 1', f's_cmp_eq_u32 s{sLEFT}, 0',
                f's_cselect_b32 s{S_W+2}, 0, s{S_W+2}', f's_cselect_b32 s{S_Q+2}, 0, s{S_Q+2}']
    def adv_a():
        return [f's_add_u32 s{sKA}, s{sKA}, {KA}', f's_and_b32 s{sKA}, s{sKA}, {NT*KA-1}',
                f's_sub_u32 s{sLEFA}, s{sLEFA}, 1', f's_cmp_eq_u32 s{sLEFA}, 0', f's_cselect_b32 s{S_XN+2}, 0, s{S_XN+2}']
    def adv_rd():
        return [f's_add_u32 s{sRD}, s{sRD}, {HS}', f's_cmp_eq_u32 s{sRD}, {NHS*HS}', f's_mov_b32 s{sDL}, {HS}',
                f's_cselect_b32 s{sDL}, {-(NHS-1)*HS}, s{sDL}', f's_cselect_b32 s{sRD}, 0, s{sRD}']
    def dma(pc, tile, stride):
        tag = ('W', NHS, 2*tile + 1, 2*stride)
        if pc < 7: return (f'buffer_load_dwordx4 v{vDW+pc}, s[{S_W}:{S_W+3}], s{sKW} offen offset:{1024*(pc%4)} lds', tag)
        return (f'buffer_load_dwordx4 v{vDQ+pc-7}, s[{S_Q}:{S_Q+3}], s{sKQ} offen offset:{1024*(pc-7)} lds', tag)
    def m0set(pc):
        if pc == 0: return [f's_add_u32 m0, s{sMW}, s{sRW}']
        if pc == 4: return [f's_add_u32 s{sT}, s{sMW}, s{sRW}', f's_add_u32 m0, s{sT}, 4096']
        if pc == 7: return [f's_add_u32 m0, s{sMQ}, s{sRQ}']
        return []
    def dma_tile(tile):
        for d in range(11):
            for x in m0set(d): p(x)
            if m0set(d): p('s_nop 0')
            emit(p, dma(d, tile, 0))
            if d == 6:
                for x in adv_w(): p(x)
            if d == 10:
                for x in adv_q(): p(x)
    p(f's_lshl_b32 s{sT}, s2, 2\ns_add_u32 s{sT}, s{sT}, s{sW}\ns_cmp_eq_u32 s{sT}, 1\ns_cbranch_scc0 L_no_nonce')
    p.cond(True)
    p(f's_memrealtime s[{sNO}:{sNO+1}]\nv_mov_b32 v34, 0\ns_waitcnt lgkmcnt(0)\ns_or_b32 s{sNO}, s{sNO}, 1\nv_mov_b32 v32, s{sNO}\nv_mov_b32 v33, s{sNO+1}')
    p(f'buffer_store_dwordx2 v[32:33], v34, s[{S_DB}:{S_DB+3}], 0 offen sc1')
    p.cond(False)
    p('L_no_nonce:')
    if cfg.late0 == 0: dma_tile(0)
    if not cfg.late1: dma_tile(1)
    if cfg.cpf:
        p(f's_getpc_b64 s[{S_K}:{S_K+1}]\nL_pc:\ns_mov_b32 s{S_K+2}, K_last-L_pc\ns_mov_b32 s{S_K+3}, 0x20000')
        p(f's_bfe_u32 s{sT}, s2, 0x40003\ns_lshl_b32 s{sT}, s{sT}, 12\nv_lshlrev_b32 v140, 4, v0')
        p(f'buffer_load_dwordx4 v[140:143], v140, s[{S_K}:{S_K+3}], s{sT} offen')
    p(f's_lshl_b32 s{sT}, s{sRB}, 4\ns_lshl_b32 s{sT+1}, s{sW}, 2\ns_add_u32 s{sT}, s{sT}, s{sT+1}\ns_lshl_b32 s{sT}, s{sT}, 15')
    p(f'v_lshlrev_b32 v{vT}, 4, v1\nv_add_u32 v{vAct}, s{sT}, v{vT}')
    for b in range(1, 4): p(f'v_add_u32 v{vAct+b}, {b*32768:#x}, v{vAct}')
    t = 32
    p(f'v_lshrrev_b32 v{t}, 5, v1\nv_lshlrev_b32 v{t}, 4, v{t}\nv_bfe_u32 v{t+1}, v1, 4, 1\nv_lshlrev_b32 v{t+1}, 2, v{t+1}\nv_bfe_u32 v{t+2}, v1, 2, 2')
    p(f'v_add3_u32 v{t}, v{t}, v{t+1}, v{t+2}\nv_mul_u32_u24 v{t}, 224, v{t}\nv_and_b32 v{t+3}, 3, v1\nv_lshlrev_b32 v{t+3}, 3, v{t+3}\nv_add_u32 v{vTr}, v{t}, v{t+3}')
    p(f'v_or_b32 v{t+1}, v{t+1}, v{t+2}')
    p(f'v_lshrrev_b32 v{t}, 4, v1\nv_lshlrev_b32 v{t}, 3, v{t}\nv_add_u32 v{t}, v{t}, v{t+2}\nv_lshlrev_b32 v{t}, 8, v{t}')
    p(f'v_add_u32 v{t}, 14336, v{t}\nv_add_u32 v{t}, v{t}, v{t+3}')
    for tt in range(8):
        p(f'v_xor_b32 v{t+2}, {tt}, v{t+1}\nv_lshl_add_u32 v{vTq+tt}, v{t+2}, 5, v{t}')
    for i in range(256): p(f'v_accvgpr_write_b32 a{i}, 0')
    if cfg.dbg & 4: p('s_waitcnt vmcnt(%d)' % (0 if cfg.late0 else 11 if cfg.late1 else 22)); ts.stamp(p)
    X = 64; sM = sT + 4
    p(f's_mov_b32 s{sM}, 0xffff0000')
    for i in range(16): p(f'v_lshlrev_b32 v{X+2*i}, 16, v{vLD+i}\nv_and_b32 v{X+2*i+1}, s{sM}, v{vLD+i}')
    if cfg.late0 == 1: dma_tile(0)
    def red(v, tt, off):
        p(f's_nop 1\nv_add_f32_dpp v{v}, v{v}, v{v} row_ror:8 row_mask:0xf bank_mask:0xf')
        p(f'v_mov_b32 v{tt}, v{v}\ns_nop 1\nv_permlane16_swap_b32 v{v}, v{tt}\ns_nop 1\nv_add_f32 v{v}, v{v}, v{tt}')
        p(f'v_mov_b32 v{tt}, v{v}\ns_nop 1\nv_permlane32_swap_b32 v{v}, v{tt}\ns_nop 1\nv_add_f32 v{v}, v{v}, v{tt}')
        p(f'ds_write_b32 v{vLS+1}, v{v} offset:{off}\ns_waitcnt lgkmcnt(0)\ns_barrier')
        p(f'ds_read_b128 v[40:43], v{vLS} offset:{off}')
        p(f'v_add_f32 v40, v40, v41\nv_add_f32 v42, v42, v43\nv_add_f32 v{v}, v40, v42\nv_mul_f32 v{v}, {f2u(1/1024):#x}, v{v}')
    for a in range(0, 4, 2): p(f'v_pk_add_f32 v[{32+a}:{33+a}], v[{X+a}:{X+a+1}], v[{X+4+a}:{X+5+a}]')
    for i in range(8, 32, 2): p(f'v_pk_add_f32 v[{32+i%4}:{33+i%4}], v[{32+i%4}:{33+i%4}], v[{X+i}:{X+i+1}]')
    p('v_pk_add_f32 v[32:33], v[32:33], v[34:35]\nv_add_f32 v32, v32, v33')
    red(32, 33, 0)
    for i in range(32): p(f'v_sub_f32 v{X+32+i}, v{X+i}, v32')
    for a in range(0, 4, 2): p(f'v_pk_mul_f32 v[{36+a}:{37+a}], v[{X+32+a}:{X+33+a}], v[{X+32+a}:{X+33+a}]')
    for i in range(4, 32, 2): p(f'v_pk_fma_f32 v[{36+i%4}:{37+i%4}], v[{X+32+i}:{X+33+i}], v[{X+32+i}:{X+33+i}], v[{36+i%4}:{37+i%4}]')
    p('v_pk_add_f32 v[36:37], v[36:37], v[38:39]\nv_add_f32 v36, v36, v37')
    p(f'v_mov_b32 v44, 0\nbuffer_load_dwordx2 v[2:3], v44, s[{S_DB}:{S_DB+3}], 0 offen sc1')
    red(36, 37, 128)
    def rnd(v): p(f'v_cvt_pk_bf16_f32 v{v}, v{v}, v{v}\nv_lshlrev_b32 v{v}, 16, v{v}')
    rnd(32); rnd(36)
    p(f'v_add_f32 v36, {f2u(1e-5):#x}, v36'); rnd(36)
    p('v_sqrt_f32 v36, v36\ns_nop 0'); rnd(36)
    p('v_rcp_f32 v36, v36\nv_mov_b32 v33, v32\nv_mov_b32 v37, v36')
    for i in range(16):
        a, b = X+2*i, X+2*i+1
        p(f'v_pk_add_f32 v[{a}:{b}], v[{a}:{b}], v[32:33] neg_lo:[0,1] neg_hi:[0,1]\nv_cvt_pk_bf16_f32 v{a}, v{a}, v{b}')
        p(f'v_and_b32 v{b}, s{sM}, v{a}\nv_lshlrev_b32 v{a}, 16, v{a}')
        p(f'v_pk_mul_f32 v[{a}:{b}], v[{a}:{b}], v[36:37]\nv_cvt_pk_bf16_f32 v{vLD+i}, v{a}, v{b}')
        if i % 4 == 3:
            r = vLD + i - 3
            p(f'buffer_store_dwordx4 v[{r}:{r+3}], v{vLO}, s[{S_XN}:{S_XN+3}], 0 offen offset:{1024*(i//4)} sc1')
    if cfg.dbg & 4: ts.stamp(p)
    if cfg.late0 == 2:
        p(f's_cmp_eq_u32 s{sW}, 1\ns_cbranch_scc1 L_t0_w1')
        p(f's_cmp_eq_u32 s{sW}, 0\ns_cbranch_scc0 L_t0_own')
        p.cond(True)
        p(f's_add_u32 s{sT+1}, s{sKW}, {32*7168}\ns_add_u32 s{sT+2}, s{sKQ}, {16*8192}')
        for d in range(11):
            if d in (0, 4): p(f's_mov_b32 m0, {HS + 1024*d}\ns_nop 0')
            if d == 7: p(f's_mov_b32 m0, {14336 + 4096}\ns_nop 0')
            t_ = dma(d, 0, 0)[0].replace(f's{sKW} offen', f's{sT+1} offen').replace(f's{sKQ} offen', f's{sT+2} offen')
            p(t_)
        p.cond(False)
        p('L_t0_own:')
        dma_tile(0)
        for i in range(160, 208): p(f'v_mov_b32 v{i}, 0')
        p(f's_cmp_eq_u32 s{sW}, 0\ns_cbranch_scc0 L_t0_w23')
        p.cond(True)
        p('s_waitcnt vmcnt(22)\ns_branch L_t0_done')
        p('L_t0_w1:')
        for x in adv_w() + adv_q(): p(x)
        for i in range(160, 208): p(f'v_mov_b32 v{i}, 0')
        p('s_waitcnt vmcnt(0)\ns_branch L_t0_done')
        p.cond(False)
        p('L_t0_w23:\ns_waitcnt vmcnt(11)\nL_t0_done:')
    else:
        for i in range(160, 208): p(f'v_mov_b32 v{i}, 0')
        p('s_waitcnt vmcnt(0)')
    vHF = 27
    p(f's_lshl_b32 s{sT}, s{sRB}, 12\ns_lshl_b32 s{sT+1}, s{sCB}, 7\ns_add_u32 s{sT+1}, s{sT}, s{sT+1}\nv_mov_b32 v32, s{sT+1}')
    p(f'v_and_b32 v34, 31, v1\nv_lshl_add_u32 v34, v34, 7, s{sT}')
    p('s_barrier')
    ts.stamp(p)
    def poll(lbl, vaddr, done):
        p(f'{lbl}:')
        p(f'buffer_load_dwordx2 v[36:37], v{vaddr}, s[{S_FL}:{S_FL+3}], 0 offen sc1\ns_waitcnt vmcnt(0)')
        p(f'v_cmp_ne_u64 vcc, s[{sNO}:{sNO+1}], v[36:37]\ns_nop 1\ns_cbranch_vccz {done}\ns_sleep {cfg.slp}\ns_branch {lbl}')
    p(f's_cmp_eq_u32 s{sW}, 1\ns_cbranch_scc0 L_xn_got')
    p.cond(True)
    p('L_no_retry:')
    p(f'v_readfirstlane_b32 s{sNO}, v2\nv_readfirstlane_b32 s{sNO+1}, v3\ns_nop 0\ns_cmp_lg_u32 s{sNO}, 0\ns_cbranch_scc1 L_no_ok')
    p(f'buffer_load_dwordx2 v[2:3], v44, s[{S_DB}:{S_DB+3}], 0 offen sc1\ns_waitcnt vmcnt(0)\ns_branch L_no_retry')
    p('L_no_ok:')
    p(f'buffer_store_dwordx2 v[2:3], v32, s[{S_FL}:{S_FL+3}], 0 offen sc1')
    poll('L_xn_poll', 34, 'L_xn_got')
    p.cond(False)
    p('L_xn_got:\ns_barrier')
    ts.stamp(p)
    def act(sub, b):
        r = vB + 16*(sub % RB) + 4*b
        return f'buffer_load_dwordx4 v[{r}:{r+3}], v{vAct+b}, s[{S_XN}:{S_XN+3}], s{sKA} offen offset:{1024*(sub % 2)}{SC}'
    NG = 22
    def vm_sched(step, g2):
        s, t = divmod(g2, NG); sub = 2*step + s
        d = None; a = None
        if cfg.d0 <= g2 < cfg.d0 + 11*cfg.dstr and (g2 - cfg.d0) % cfg.dstr == 0: d = (g2 - cfg.d0)//cfg.dstr
        if cfg.a0 <= t < cfg.a0 + 4*cfg.astr and (t - cfg.a0) % cfg.astr == 0: a = (sub + cfg.ad, (t - cfg.a0)//cfg.astr)
        return d, a
    for sub in range(cfg.ad):
        for b in range(4): p(act(sub, b))
        if sub % 2 == 1:
            for x in adv_a(): p(x)
    if cfg.late1: dma_tile(1)
    srd(p, S_H, pWS, WS_H, 14 << 20)
    srd(p, S_K, pK, 0, 2 << 20)
    srd(p, S_V, pV, 0, 2 << 20)
    srd(p, S_O, pWS, WS_O, 16 << 20)
    for i in range(208, 256): p(f'v_mov_b32 v{i}, 0')
    if cfg.late0 == 2: p.need(('W', NHS, 1, 0)); p('s_barrier')
    P = cfg.P
    def trr(G, tile0, stride):
        step, g2 = divmod(G, 2*NG); s, t = divmod(g2, NG)
        r = vA + 4*(G % RA)
        tag = ('W', NHS, 2*(tile0 + step) + 1, 2*stride) if s == 1 else None
        if t < 14: off = (t // 7)*7168 + (t % 7)*32; a = vTr; hh = 8*224
        else: off = 0; a = vTq + t - 14; hh = 1024
        return [(f'ds_read_b64_tr_b16 v[{r}:{r+1}], v{a} offset:{off}', tag),
                (f'ds_read_b64_tr_b16 v[{r+2}:{r+3}], v{a} offset:{off + hh}', tag)]
    for G in range(P):
        for f in trr(G, 0, 0): emit(p, f)
    UN = 2
    p(f's_mov_b32 s{sDL}, 0\ns_mov_b32 s{sCNT}, {NT//UN}')
    p(f's_waitcnt vmcnt({4*(cfg.ad-1) + (11 if cfg.late1 else 0)})')
    ts.stamp(p)
    p.loop_begin('G_loop', NT//UN)
    mf = []; hi = {}; lo = {}
    def H(i, x): hi.setdefault(i, []).append(x)
    def L(i, x): lo.setdefault(i, []).append(x)
    NGB = 2*NG*UN
    for G in range(NGB):
        step, g2 = divmod(G, 2*NG); s, t = divmod(g2, NG)
        sub = 2*step + s
        for b in range(4):
            ra = vA + 4*(G % RA); rb = vB + 16*(sub % RB) + 4*b
            mf.append(f'v_mfma_f32_16x16x32_bf16 {acc(t,b)}, v[{ra}:{ra+3}], v[{rb}:{rb+3}], {acc(t,b)}')
        i0 = 4*G; Gn = G + P; tn = Gn % NG
        if Gn % (2*NG) == 0:
            stepn = Gn // (2*NG)
            H(i0-1, lambda p, stepn=stepn: (p.need(('W', NHS, 2*stepn + 1, 2*UN)), p('s_barrier')))
        if tn == 0: H(i0-2, f'v_add_u32 v{vTr}, s{sDL}, v{vTr}')
        r0, r1 = trr(Gn % NGB, (Gn // NGB)*UN, UN)
        H(i0, r0); H(i0+1, r1)
        if 1 <= tn <= 8: L(i0, f'v_add_u32 v{vTq+tn-1}, s{sDL}, v{vTq+tn-1}')
        if tn == 9:
            for x in adv_rd(): L(i0, x)
        pc, a = vm_sched(step, g2)
        if a is not None:
            L(i0, act(*a))
            if a[1] == 3 and a[0] % 2 == 1:
                for x in adv_a(): L(i0, x)
        if pc is not None:
            for x in m0set(pc): L(i0, x)
            if m0set(pc): L(i0, m0gap)
            L(i0, dma(pc, step + 2, UN))
            if pc == 6:
                for x in adv_w(): L(i0, x)
            if pc == 10:
                for x in adv_q(): L(i0, x)
    H(len(mf)-3, f's_sub_u32 s{sCNT}, s{sCNT}, 1'); H(len(mf)-2, f's_cmp_lg_u32 s{sCNT}, 0')
    H(len(mf)-1, 's_cbranch_scc1 G_loop')
    fill = spread(hi, lo, len(mf), cfg.cap, 16, cost=lambda i: 1 if i % 4 == 3 else 0)
    fix_m0(fill, len(mf)); chk_tail(fill, len(mf))
    interleave(p, mf, fill)
    p.loop_end()
    p('s_waitcnt vmcnt(0) lgkmcnt(0)\ns_barrier')
    ts.stamp(p)

    vDK, vDV, vK, vV = 8, 12, 13, 21
    sKV, sMK, sAD, sPF = 39, 40, 43, 44
    t = 128
    p(f'v_lshrrev_b32 v{t}, 4, v1\nv_and_b32 v{t+1}, 15, v1')
    p(f's_lshl_b32 s{sMK}, s{sW}, 12')
    p(f'v_lshlrev_b32 v{t+2}, 8, v{t}\nv_add_u32 v{t+2}, s{sMK}, v{t+2}')
    for j in range(4):
        p(f'v_add_u32 v{t+3}, {4*j}, v{t}\nv_xor_b32 v{t+3}, v{t+3}, v{t+1}\nv_lshl_add_u32 v{vDK+j}, v{t+3}, 4, v{t+2}')
    p(f'v_lshlrev_b32 v{t+3}, 2, v{t}\nv_xor_b32 v{t+3}, v{t+3}, v{t+1}\nv_lshl_add_u32 v{vDV}, v{t+3}, 4, v{t+2}')
    p(f's_lshr_b32 s{sKV}, s{sCB}, 3\ns_lshl_b32 s{sKV}, s{sKV}, 19\ns_add_u32 s{sKV}, s{sKV}, {1536*256}')
    def kdma(j, soff, tag): return (f'buffer_load_dwordx4 v{vDK+j}, s[{S_K}:{S_K+3}], s{soff} offen offset:{1024*j} lds', tag)
    def vdma(j, soff, tag): return (f'buffer_load_dwordx4 v{vDV}, s[{S_V}:{S_V+3}], s{soff} offen offset:{1024*j} lds', tag)
    for (kind, tl) in (('K', 0), ('K', 1), ('V', 0), ('K', 2), ('V', 1)):
        p(f's_add_u32 s{sT}, s{sKV}, {tl*16384}\ns_add_u32 m0, s{sMK}, {tl*16384 + (65536 if kind == "V" else 0)}\ns_nop 0')
        for j in range(4): emit(p, (kdma if kind == 'K' else vdma)(j, sT, (kind, 4, tl, 0)))
    k1 = -2*math.sqrt(2/math.pi)*math.log2(math.e); k2 = k1*0.044715
    vC = 28
    p(f'v_mov_b32 v{vC}, {f2u(k1):#x}\nv_mov_b32 v{vC+1}, {f2u(k1):#x}\nv_mov_b32 v{vC+2}, {f2u(k2):#x}\nv_mov_b32 v{vC+3}, {f2u(k2):#x}')
    p(f's_lshl_b32 s{sT+2}, s{sRB}, 4\ns_lshl_b32 s{sT+3}, s{sW}, 2\ns_add_u32 s{sT+2}, s{sT+2}, s{sT+3}\ns_mul_i32 s{sT+2}, s{sT+2}, {112*1024}')
    p(f's_mul_i32 s{sT+3}, s{sCB}, 7\ns_add_u32 s{sT+3}, s{sT+3}, 1\ns_lshr_b32 s{sT+3}, s{sT+3}, 1\ns_lshl_b32 s{sT+3}, s{sT+3}, 10')
    p(f's_add_u32 s{sT+2}, s{sT+2}, s{sT+3}')
    p(f'v_lshlrev_b32 v{t}, 4, v1\nv_add_u32 v{vAct}, s{sT+2}, v{t}')
    for b in range(1, 4): p(f'v_add_u32 v{vAct+b}, {b*112*1024:#x}, v{vAct}')
    p(f's_and_b32 s{sT+3}, s{sCB}, 1\ns_cmp_eq_u32 s{sT+3}, 0\ns_mov_b32 s{sT+4}, 3072\ns_cselect_b32 s{sT+4}, s{sT+4}, -1016')
    vHs = 132
    for b in range(4): p(f'v_add_u32 v{vHs+b}, s{sT+4}, v{vAct+b}')
    def gelu_tiles(tiles):
        n = len(tiles)
        Xs = [32 + 12*i for i in range(n)]
        pk = lambda r: f'v[{r}:{r+1}]'
        for (t, b, d), X in zip(tiles, Xs):
            for r in range(4): p(f'v_accvgpr_read_b32 v{X+r}, {accr(t,b,r)}')
        for X in Xs:
            for r in (0, 2): p(f'v_pk_mul_f32 {pk(X+8+r)}, {pk(X+r)}, {pk(X+r)}')
        for X in Xs:
            for r in (0, 2): p(f'v_pk_fma_f32 {pk(X+8+r)}, {pk(X+8+r)}, {pk(vC+2)}, {pk(vC)}')
        for X in Xs:
            for r in (0, 2): p(f'v_pk_mul_f32 {pk(X+8+r)}, {pk(X+8+r)}, {pk(X+r)}')
        for (t, b, d), X in zip(tiles, Xs):
            for r in range(4): p(f'v_exp_f32 v{X+8+r}, v{X+8+r}')
            for r in range(4): p(f'v_accvgpr_read_b32 v{X+4+r}, {accr(t+7,b,r)}')
        for X in Xs:
            for r in (0, 2): p(f'v_pk_add_f32 {pk(X+8+r)}, {pk(X+8+r)}, 1.0 op_sel_hi:[1,0]')
        for X in Xs:
            for r in range(4): p(f'v_rcp_f32 v{X+8+r}, v{X+8+r}')
            for r in (0, 2): p(f'v_pk_mul_f32 {pk(X+4+r)}, {pk(X+4+r)}, {pk(X+r)}')
        for X in Xs:
            for r in (0, 2): p(f'v_pk_mul_f32 {pk(X+4+r)}, {pk(X+4+r)}, {pk(X+8+r)}')
        for (t, b, d), X in zip(tiles, Xs):
            p(f'v_cvt_pk_bf16_f32 v{d}, v{X+4}, v{X+5}\nv_cvt_pk_bf16_f32 v{d+1}, v{X+6}, v{X+7}')
    for par in range(2):
        if par == 0: p('s_cbranch_scc0 B_epi_odd')
        else: p.cond(True); p('B_epi_odd:')
        n = 0
        for b in range(4):
            for pr in range(3):
                d = 64 + 4*(n % 8); n += 1
                gelu_tiles([(2*pr + par, b, d), (2*pr + 1 + par, b, d + 2)])
                p(f'buffer_store_dwordx4 v[{d}:{d+3}], v{vAct+b}, s[{S_H}:{S_H+3}], 0 offen offset:{1024*pr}{SC}')
        for b in range(0, 4, 2):
            d = 64 + 4*(n % 8); n += 1
            gelu_tiles([(6 if par == 0 else 0, b, d), (6 if par == 0 else 0, b+1, d+2)])
            p(f'buffer_store_dwordx2 v[{d}:{d+1}], v{vHs+b}, s[{S_H}:{S_H+3}], 0 offen{SC}')
            p(f'buffer_store_dwordx2 v[{d+2}:{d+3}], v{vHs+b+1}, s[{S_H}:{S_H+3}], 0 offen{SC}')
        if par == 0: p('s_branch B_epi_done')
    p.cond(False)
    p('B_epi_done:')
    ts.stamp(p)
    vQ = 64
    qs = math.log2(math.e)/math.sqrt(128)
    p(f'v_mov_b32 v{vC}, {f2u(qs):#x}\nv_mov_b32 v{vC+1}, {f2u(qs):#x}')
    for qt in range(2):
        for s in range(8):
            d = vQ + (qt*8+s)*4
            for half in range(2):
                b = 2*qt + half; x = 32 + 4*half
                src = accr(14+s, b, 0)
                if src[0] == 'a':
                    for r in range(4): p(f'v_accvgpr_read_b32 v{x+r}, {accr(14+s, b, r)}')
                    s0 = x
                else: s0 = int(src[1:])
                for r in (0, 2): p(f'v_pk_mul_f32 v[{x+r}:{x+r+1}], v[{s0+r}:{s0+r+1}], v[{vC}:{vC+1}]')
                p(f'v_cvt_pk_bf16_f32 v{d+2*half}, v{x}, v{x+1}\nv_cvt_pk_bf16_f32 v{d+2*half+1}, v{x+2}, v{x+3}')
            if (qt, s) != (0, 0):
                dp = d - 4
                p(f'v_permlane16_swap_b32 v{dp}, v{dp+2}\nv_permlane16_swap_b32 v{dp+1}, v{dp+3}')
    t = 32
    p(f'v_and_b32 v{t}, 31, v1\nv_lshrrev_b32 v{t+1}, 5, v1\nv_and_b32 v{t+2}, 15, v1\nv_xor_b32 v{t+1}, v{t+1}, v{t+2}\nv_lshlrev_b32 v{t}, 8, v{t}')
    p(f'v_permlane16_swap_b32 v124, v126\nv_permlane16_swap_b32 v125, v127')
    for s in range(8):
        p(f'v_xor_b32 v{t+2}, {2*s}, v{t+1}\nv_lshl_add_u32 v{vK+s}, v{t+2}, 4, v{t}')
    p(f'v_lshrrev_b32 v{t}, 5, v1\nv_lshlrev_b32 v{t}, 2, v{t}\nv_bfe_u32 v{t+1}, v1, 2, 2\nv_add_u32 v{t}, v{t}, v{t+1}\nv_lshlrev_b32 v{t}, 8, v{t}')
    p(f'v_bfe_u32 v{t+2}, v1, 4, 1\nv_lshlrev_b32 v{t+2}, 5, v{t+2}\nv_and_b32 v{t+3}, 3, v1\nv_lshlrev_b32 v{t+3}, 3, v{t+3}\nv_add3_u32 v{t}, v{t}, v{t+2}, v{t+3}')
    p(f'v_add_u32 v{t}, 0x10000, v{t}')
    for dt in range(4):
        p(f'v_xor_b32 v{t+2}, {dt}, v{t+1}\nv_lshl_add_u32 v{vV+dt}, v{t+2}, 6, v{t}')
    vS = [128, 160]; vP = [192, 208]; vN = 224; vL = 28
    aF = 192
    def Sreg(n, qt): return vS[n % 2] + 16*qt
    def Preg(n, qt, ks): return vP[n % 2] + 8*qt + 4*ks
    def kread(n, s, tag):
        r = aF + 4*s
        return [(f'ds_read_b128 a[{r}:{r+3}], v{vK+s} offset:{(n % 2)*8192}', tag)]
    def vread(n, f, tag, base=None, off0=None):
        ks, dt = divmod(f, 4); r = aF + 32 + 4*f
        off = (32*(n % 2) + 16*ks)*256 if off0 is None else off0 + 16*ks*256
        b = vV if base is None else base
        return [(f'ds_read_b64_tr_b16 a[{r}:{r+1}], v{b+dt} offset:{off}', tag),
                (f'ds_read_b64_tr_b16 a[{r+2}:{r+3}], v{b+dt} offset:{off+2048}', tag)]
    def qk(n, s, qt, c0):
        S = Sreg(n, qt); c = f'v[{S}:{S+15}]' if s else c0(qt)
        return f'v_mfma_f32_32x32x16_bf16 v[{S}:{S+15}], a[{aF+4*s}:{aF+4*s+3}], v[{vQ+(qt*8+s)*4}:{vQ+(qt*8+s)*4+3}], {c}'
    def pv(n, f, qt):
        ks, dt = divmod(f, 4); o = (dt*2+qt)*16; P_ = Preg(n, qt, ks)
        return f'v_mfma_f32_32x32x16_bf16 a[{o}:{o+15}], a[{aF+32+4*f}:{aF+32+4*f+3}], v[{P_}:{P_+3}], a[{o}:{o+15}]'
    negm = lambda qt: f'v[{vN+16*qt}:{vN+16*qt+15}]'
    zero = lambda qt: '0'
    def softmax_ops(n):
        sl = [[] for _ in range(33)]
        for e in range(32):
            qt, i = divmod(e, 16); S = Sreg(n, qt)
            sl[e].insert(0, f'v_exp_f32 v{S+i}, v{S+i}')
            sl[e+1].append(f'v_add_f32 v{vL+2*qt+(i&1)}, v{vL+2*qt+(i&1)}, v{S+i}')
            if i & 1: sl[e+1].append(f'v_cvt_pk_bf16_f32 v{Preg(n, qt, i>>3)+((i&7)>>1)}, v{S+i-1}, v{S+i}')
        return sl
    p.need(('K', 4, 0, 0)); p('s_barrier')
    for s in range(8): emit(p, kread(0, s, ('K', 4, 0, 0))[0])
    for i in range(128): p(f'v_accvgpr_write_b32 a{i}, 0')
    for i in range(4): p(f'v_mov_b32 v{vL+i}, 0')
    p(f's_mov_b32 s{sAD}, 0')
    vPF = 25
    p(f's_lshl_b32 s{sT}, s2, 2\ns_add_u32 s{sT}, s{sT}, s{sW}\ns_lshl_b32 s{sT+1}, s{sT}, 13\ns_mul_i32 s{sT}, s{sT}, 7168')
    p(f'v_lshlrev_b32 v{vPF}, 4, v1\nv_add_u32 v{vPF+1}, s{sT}, v{vPF}\nv_add_u32 v{vPF}, s{sT+1}, v{vPF}')
    srd(p, S_W, pWO, 0, 8 << 20); srd(p, S_Q, pWD, 0, 7 << 20)
    p(f's_lshl_b32 s{sT}, s{sRB}, 12\ns_lshl_b32 s{sT+1}, s{sCB}, 7\ns_add_u32 s{sT}, s{sT}, s{sT+1}\ns_add_u32 s{sT}, s{sT}, {256*128}\nv_mov_b32 v{vHF}, s{sT}')
    sHW = 48; sDM = 55
    p(f's_add_u32 s{sDM}, s{sMK}, 0x20000')
    p(f's_cmp_eq_u32 s{sW}, 1\ns_cselect_b32 s{sHW}, 5, -1')
    ts.stamp(p)
    for s in range(8):
        for qt in range(2): p(qk(0, s, qt, zero))
        emit(p, kread(1, s, ('K', 4, 0, 0))[0])
    p(f's_mov_b32 s{sPF}, 7168\ns_add_u32 m0, s{sMK}, s{sDM}\ns_nop 0')
    p(f'buffer_load_dwordx4 v{vPF}, s[{S_W}:{S_W+3}], s{sPF} offen lds\ns_mov_b32 s{sPF}, 0')
    p('s_nop 6')
    def rowmax(n, first):
        for qt in range(2):
            S = Sreg(n, qt); m = 32 + 2*qt
            if first: p(f'v_max3_f32 v{m}, v{S}, v{S+1}, v{S+2}')
            else: p(f'v_max3_f32 v{m}, v{m}, v{S+1}, v{S+2}\nv_max_f32 v{m}, v{m}, v{S}')
            for i in range(3, 15, 2): p(f'v_max3_f32 v{m}, v{m}, v{S+i}, v{S+i+1}')
            p(f'v_max_f32 v{m}, v{m}, v{S+15}')
    def set_negm():
        for qt in range(2):
            m = 32 + 2*qt
            p(f'v_mov_b32 v{m+1}, v{m}\ns_nop 1\nv_permlane32_swap_b32 v{m}, v{m+1}\ns_nop 1\nv_max_f32 v{m}, v{m}, v{m+1}')
            p(f'v_sub_f32 v{vN+16*qt}, 0, v{m}')
            for i in range(1, 16): p(f'v_mov_b32 v{vN+16*qt+i}, v{vN+16*qt}')
    rowmax(0, True); set_negm()
    for qt in range(2):
        S = Sreg(0, qt)
        for i in range(0, 16, 2): p(f'v_pk_add_f32 v[{S+i}:{S+i+1}], v[{S+i}:{S+i+1}], v[{vN+16*qt}:{vN+16*qt+1}]')
    PF = cfg.PF
    def build(its, tile_tagK, tile_tagV, nxt, extra=None):
        pairs = []; sm = []
        for (nq, ns, npv) in its:
            st = len(pairs)
            if nq is not None:
                for s in range(8): pairs.append((qk(nq, s, 0, negm), qk(nq, s, 1, negm), kread(nq, s, tile_tagK(nq))))
            if npv is not None:
                for f in range(8): pairs.append((pv(npv, f, 0), pv(npv, f, 1), vread(npv, f, tile_tagV(npv))))
            if ns is not None: sm.append((st, len(pairs), softmax_ops(ns)))
        mf = []; fill = {}
        def F(i, x): fill.setdefault(i, []).append(x)
        for i, (a, b, _) in enumerate(pairs): mf += [a, b]
        if extra: extra(F, len(mf))
        for i in range(len(pairs)):
            j = i + PF
            rds = pairs[j][2] if j < len(pairs) else nxt(j - len(pairs))
            for k, r in enumerate(rds): F(2*i + k, r)
        for (st, en, sl) in sm:
            ng = 2*(en - st)
            for e, ops in enumerate(sl):
                g = 2*st + min(ng - 1, e*ng//32)
                for o in ops: F(g, o)
        return mf, fill
    def nxt0(k): return kread(2, k, ('K', 4, 1, 0))
    def extra0(F, n):
        pos = 2*(8 - PF)
        F(pos - 1, lambda p: (p.need(('K', 4, 1, 0)), p.need(('V', 4, 0, 0)), p('s_barrier')))
        for s in range(8): F(s, f'v_add_u32 v{vK+s}, 0x4000, v{vK+s}')
    mf, fill = build([(1, 0, None)], lambda n: None, None, nxt0, extra0)
    fill = {k: [x for x in v if not (isinstance(x, tuple) and x[1] is None)] for k, v in fill.items()}
    interleave(p, mf, fill)
    p(f's_mov_b32 s{sLEFT}, 7\ns_add_u32 s{sKA}, s{sKV}, {2*16384}\ns_mov_b32 s{sRD}, {2*16384}')
    p.loop_begin('A_loop', 7)
    def extra(F, n):
        pos = n - 2*PF
        F(pos - 1, lambda p: (p.need(('K', 4, 2, 1)), p.need(('V', 4, 1, 1)), p('s_barrier')))
        g0 = 2*(24-PF)
        for k, x in enumerate([f's_add_u32 s{sAD}, s{sAD}, 1', f's_and_b32 s{sT}, s{sAD}, 3', f's_cmp_eq_u32 s{sT}, 3', f's_mov_b32 s{sDL}, 0x4000', f's_cselect_b32 s{sDL}, -0xc000, s{sDL}',
                               f's_cmp_eq_u32 s{sT}, 0', f's_mov_b32 s{sT+1}, 0x4000', f's_cselect_b32 s{sT+1}, -0xc000, s{sT+1}']):
            F(g0 - 8 + k, x)
        for s in range(8): F(g0 + s, f'v_add_u32 v{vK+s}, s{sDL}, v{vK+s}')
        for dt in range(4): F(n - 2*PF + 1 + dt, f'v_add_u32 v{vV+dt}, s{sT+1}, v{vV+dt}')
        F(0, f's_add_u32 s{sT+2}, s{sRD}, 0x4000'); F(0, f's_and_b32 s{sT+2}, s{sT+2}, 0xffff')
        F(1, f's_cmp_le_u32 s{sLEFT}, 2'); F(1, f's_cselect_b32 s{sT+2}, s{sDM}, s{sT+2}')
        F(2, f's_cselect_b32 s{S_K+2}, 0, s{S_K+2}'); F(2, f's_add_u32 m0, s{sT+2}, s{sMK}')
        F(3, f's_add_u32 s{sT+3}, s{sKA}, 0x4000')
        for j in range(4): F(4 + 3*j, kdma(j, sT+3, ('K', 4, 3, 1)))
        F(14, f's_add_u32 s{sT+2}, s{sRD}, 0x10000'); F(14, f's_cmp_le_u32 s{sLEFT}, 1')
        F(15, f's_cselect_b32 s{sT+2}, s{sDM}, s{sT+2}'); F(15, f's_cselect_b32 s{S_V+2}, 0, s{S_V+2}')
        F(16, f's_add_u32 m0, s{sT+2}, s{sMK}')
        for j in range(4): F(17 + 3*j, vdma(j, sKA, ('V', 4, 2, 1)))
        F(27, f's_add_u32 s{sKA}, s{sKA}, 0x4000'); F(28, f's_add_u32 s{sRD}, s{sRD}, 0x4000'); F(29, f's_and_b32 s{sRD}, s{sRD}, 0xffff')
        F(30, f's_add_u32 m0, s{sMK}, s{sDM}')
        F(31, f'buffer_load_dwordx4 v{vPF}, s[{S_W}:{S_W+3}], s{sPF} offen lds')
        F(33, f'buffer_load_dwordx4 v{vPF+1}, s[{S_Q}:{S_Q+3}], s{sPF} offen lds')
        F(33, f's_add_u32 s{sPF}, s{sPF}, 1024')
        F(50, f's_cmp_eq_u32 s{sLEFT}, s{sHW}'); F(50, 's_cbranch_scc0 A_noflag')
        F(50, f'buffer_store_dwordx2 v[2:3], v{vHF}, s[{S_FL}:{S_FL+3}], 0 offen sc1 ;cond'); F(50, 'A_noflag:')
        F(n-3, f's_sub_u32 s{sLEFT}, s{sLEFT}, 1'); F(n-2, f's_cmp_lg_u32 s{sLEFT}, 0')
    mf, fill = build([(2, 1, 0), (3, 2, 1)], lambda n: ('K', 4, 1, 1), lambda n: ('V', 4, 0, 1),
                     lambda k: kread(2, k, None), extra)
    fill.setdefault(len(mf)-1, []).append('s_cbranch_scc1 A_loop')
    interleave(p, mf, fill)
    p.loop_end()
    S_A, S_CW, S_X, S_OUT, S_G, S_P = 16, 8, 12, 20, 24, 28
    sGM, sKH, sRC, sCC = 39, 41, 43, 44
    cKW, cKA, cCNT, cMW, cTG, cST = 45, 46, 42, 47, 48, 49
    cAct, cD, cTr, cA, cC = 48, 40, 52, 64, 128
    for f in range(PF):
        for r in vread(14, f, ('V', 4, 7, 0)): emit(p, r)
    pre = Prog(); q = p; p = pre
    c_role(sGM, sKH, sRC, sCC, sT)
    p(f's_cmp_eq_u32 s{sGM}, 1')
    p(f's_cselect_b32 s{S_CW}, s{pWO}, s{pWD}\ns_cselect_b32 s{S_CW+1}, s{pWO+1}, s{pWD+1}')
    p(f's_mov_b32 s{sT}, {8<<20}\ns_cselect_b32 s{S_CW+2}, s{sT}, {7<<20}')
    p(f's_mov_b32 s{cST}, {128*1024}\ns_cselect_b32 s{cST}, s{cST}, {112*1024}')
    p(f's_cselect_b32 s{cCNT}, 8, 7')
    p(f's_mul_i32 s{cKA}, s{sKH}, s{cST}\ns_lshl_b32 s{cKW}, s{cKA}, 5\ns_lshr_b32 s{cKA}, s{cKA}, 1')
    t = 36
    p(f's_lshl_b32 s{sT+2}, s{sW}, 16\ns_lshl_b32 s{sT+3}, s{sCC}, 8\ns_add_u32 s{sT+2}, s{sT+2}, s{sT+3}')
    p(f'v_lshrrev_b32 v{t}, 4, v1\nv_and_b32 v{t+1}, 15, v1\nv_lshlrev_b32 v{t+2}, 1, v{t}\nv_xor_b32 v{t+1}, v{t+1}, v{t+2}')
    p(f'v_lshlrev_b32 v{t}, 11, v{t}\nv_add_u32 v{t}, s{sT+2}, v{t}')
    p(f's_lshl_b32 s{cMW}, s{sW}, 13')
    SLOT = 32768; D = 2
    def cdma(pc, tile, stride): return (f'buffer_load_dwordx4 v{cD+pc}, s[{S_CW}:{S_CW+3}], s{cKW} offen offset:{1024*(pc%4)} lds', ('C', 4, tile, stride))
    p(f's_cmp_eq_u32 s{sGM}, 1')
    for pc in range(8):
        sw = (pc & 1) | ((pc & 2) << 1) | ((pc & 4) >> 1)
        ko = 4*sw*2048 - 1024*(pc % 4); kh = 4*pc*2048 - 1024*(pc % 4)
        if ko != kh: p(f's_mov_b32 s{sT+3}, {ko}\ns_cselect_b32 s{sT+3}, s{sT+3}, {kh}')
        else: p(f's_mov_b32 s{sT+3}, {ko}')
        p(f'v_xor_b32 v{t+2}, {8*(pc & 1)}, v{t+1}\nv_lshl_add_u32 v{t+2}, v{t+2}, 4, v{t}\nv_add_u32 v{cD+pc}, s{sT+3}, v{t+2}')
    for tile in range(2):
        for d in range(8):
            if d % 4 == 0: p(f's_add_u32 m0, s{cMW}, {tile*SLOT + 1024*d}\ns_nop 0')
            emit(p, cdma(d, tile, 0))
        p(f's_add_u32 s{cKW}, s{cKW}, {128*2048}')
    p = q
    pre_items = [(it.text, it.tag) for it in pre.items]
    def extraT(F, n):
        for k, x in enumerate(pre_items): F(min(n - 1, 12 + k*20//len(pre_items)), x)
    mf, fill = build([(None, 15, 14), (None, None, 15)], None, lambda n: ('V', 4, 7, 0), lambda k: [], extraT)
    interleave(p, mf, fill)
    ts.stamp(p)
    for qt in range(2):
        l = vL + 2*qt
        p(f'v_add_f32 v{l}, v{l}, v{l+1}\nv_mov_b32 v{l+1}, v{l}\ns_nop 1\nv_permlane32_swap_b32 v{l}, v{l+1}\ns_nop 1\nv_add_f32 v{l}, v{l}, v{l+1}')
    p(f'v_max_f32 v33, v{vL}, v{vL+2}\nv_add_f32 v33, v33, v{vL}\nv_add_f32 v33, v33, v{vL+2}')
    p(f's_mov_b32 s{sT}, {f2u(2.0**cfg.thr):#x}\nv_cmp_nlt_f32 vcc, v33, s{sT}\ns_nop 1\ns_cbranch_vccnz A_slow')
    p('A_done:')
    p(f'v_rcp_f32 v{vL}, v{vL}\nv_rcp_f32 v{vL+2}, v{vL+2}')
    t = 32
    p(f's_lshl_b32 s{sT}, s{sRB}, 4\ns_lshl_b32 s{sT+1}, s{sW}, 2\ns_add_u32 s{sT}, s{sT}, s{sT+1}\ns_lshl_b32 s{sT}, s{sT}, 17\ns_lshl_b32 s{sT+1}, s{sCB}, 12\ns_add_u32 s{sT}, s{sT}, s{sT+1}')
    p(f'v_bfe_u32 v{t}, v1, 4, 1\nv_lshlrev_b32 v{t}, 17, v{t}\nv_lshrrev_b32 v{t+1}, 5, v1\nv_lshlrev_b32 v{t+1}, 8, v{t+1}\nv_and_b32 v{t+2}, 15, v1\nv_lshlrev_b32 v{t+2}, 4, v{t+2}')
    p(f'v_add3_u32 v{t}, v{t}, v{t+1}, v{t+2}\nv_add_u32 v4, s{sT}, v{t}\nv_add_u32 v5, 0x40000, v4')
    p(f'v_mov_b32 v{vL+1}, v{vL}\nv_mov_b32 v{vL+3}, v{vL+2}')
    n = 0
    for dt in range(4):
        for qt in range(2):
            o = (dt*2+qt)*16
            for half in range(2):
                x = 128 + 8*(n % 4); d = 64 + 4*(n % 8); n += 1
                for i in range(8): p(f'v_accvgpr_read_b32 v{x+i}, a{o+8*half+i}')
                for i in range(0, 8, 2): p(f'v_pk_mul_f32 v[{x+i}:{x+i+1}], v[{x+i}:{x+i+1}], v[{vL+2*qt}:{vL+2*qt+1}]')
                for i in range(0, 8, 2): p(f'v_cvt_pk_bf16_f32 v{d+i//2}, v{x+i}, v{x+i+1}')
                p(f'buffer_store_dwordx4 v[{d}:{d+3}], v{4+qt}, s[{S_O}:{S_O+3}], 0 offen offset:{dt*1024 + half*512}{SC}')
    p(f's_cmp_eq_u32 s{sGM}, 1')
    p(f's_mov_b32 s{sT}, {WS_O}\ns_cselect_b32 s{sT}, s{sT}, {WS_H}')
    p(f's_mov_b32 s{sT+1}, {16<<20}\ns_cselect_b32 s{S_A+2}, s{sT+1}, {14<<20}')
    p(f's_add_u32 s{S_A}, s{pWS}, s{sT}\ns_addc_u32 s{S_A+1}, s{pWS+1}, 0\ns_mov_b32 s{S_A+3}, 0x20000')
    srd(p, S_X, pX, 0, 4 << 20); srd(p, S_OUT, pOUT, 0, 4 << 20)
    srd(p, S_G, pWS, WS_G, 4 << 20); srd(p, S_P, pWS, WS_P, 8 << 20)
    t = 32
    p(f's_lshl_b32 s{sT}, s{sRC}, 4\ns_lshl_b32 s{sT+2}, s{sW}, 2\ns_add_u32 s{sT}, s{sT}, s{sT+2}\ns_mul_i32 s{sT+2}, s{sT}, s{cST}')
    p(f'v_lshlrev_b32 v24, 4, v1\nv_add_u32 v25, 0x1000, v24\nv_add_u32 v{cAct}, s{sT+2}, v24')
    for b in range(1, 4): p(f'v_add_u32 v{cAct+b}, s{cST}, v{cAct+b-1}')
    p(f's_lshl_b32 s{sT+3}, s{sKH}, 2')
    p(f'v_lshrrev_b32 v{t}, 2, v1\nv_and_b32 v{t+1}, 7, v{t}\nv_xor_b32 v{t+1}, s{sT+3}, v{t+1}\nv_lshlrev_b32 v{t}, 8, v{t}\nv_and_b32 v{t+2}, 3, v1\nv_lshl_add_u32 v{t}, v{t+2}, 3, v{t}')
    for tt in range(8):
        p(f'v_xor_b32 v{t+2}, {tt}, v{t+1}\nv_lshl_add_u32 v{cTr+tt}, v{t+2}, 5, v{t}')
    sPS, sPR, sGO = 32, 33, 34
    vX, vG, vR, vO = 96, 64, 224, 60
    sID, sME = sT, sT+1
    p(f's_lshl_b32 s{sID}, s{sRC}, 3\ns_add_u32 s{sID}, s{sID}, s{sCC}\ns_lshl_b32 s{sID}, s{sID}, 1\ns_add_u32 s{sID}, s{sID}, s{sKH}')
    p(f's_lshl_b32 s{sME}, s{sGM}, 7\ns_add_u32 s{sME}, s{sME}, s{sID}')
    p(f's_lshl_b32 s{sT+3}, s{sW}, 13\ns_lshl_b32 s{sPS}, s{sME}, 15\ns_add_u32 s{sPS}, s{sPS}, s{sT+3}\ns_xor_b32 s{sPR}, s{sPS}, 0x8000')
    p(f's_lshl_b32 s{sGO}, s{sID}, 15\ns_add_u32 s{sGO}, s{sGO}, s{sT+3}')
    vFP, vFQ, vFG, vFO, vFW = 8, 9, 10, 11, 12
    p(f's_add_u32 s{sT+2}, s{sME}, 768\ns_lshl_b32 s{sT+2}, s{sT+2}, 7\nv_mov_b32 v{vFP}, s{sT+2}\ns_xor_b32 s{sT+2}, s{sT+2}, 128\nv_mov_b32 v{vFQ}, s{sT+2}')
    p(f's_add_u32 s{sT+3}, s{sID}, 1024\ns_lshl_b32 s{sT+3}, s{sT+3}, 7\nv_mov_b32 v{vFG}, s{sT+3}')
    p(f's_cmp_eq_u32 s{sGM}, 1\ns_cselect_b32 s{sT+2}, s{sT+3}, s{sT+2}\ns_cselect_b32 s{S_X+2}, s{S_X+2}, 0')
    p(f'v_writelane_b32 v{vFQ}, s{sT+2}, 1\nv_add_u32 v{vFO}, {256*128}, v{vHF}')
    p(f's_lshl_b32 s{sT+2}, s{sGM}, 3\ns_add_u32 s{sT+2}, s{sT+2}, s{sRC}\ns_add_u32 s{sT+2}, s{sT+2}, 8\ns_lshl_b32 s{sT+2}, s{sT+2}, 12')
    p(f'v_and_b32 v{vFW}, 31, v1\nv_lshl_add_u32 v{vFW}, v{vFW}, 7, s{sT+2}')
    p(f's_lshl_b32 s{sT+2}, s{sRC}, 8\ns_lshl_b32 s{sT+3}, s{sW}, 6\ns_add_u32 s{sT+2}, s{sT+2}, s{sT+3}\ns_lshl_b32 s{sT+2}, s{sT+2}, 11')
    p(f's_lshl_b32 s{sT+3}, s{sCC}, 8\ns_add_u32 s{sT+2}, s{sT+2}, s{sT+3}\ns_lshl_b32 s{sT+3}, s{sKH}, 7\ns_add_u32 s{sT+2}, s{sT+2}, s{sT+3}')
    p(f'v_and_b32 v{t}, 15, v1\nv_lshlrev_b32 v{t}, 11, v{t}\nv_add_u32 v{t}, s{sT+2}, v{t}\nv_lshrrev_b32 v{t+1}, 4, v1')
    p(f'v_and_b32 v{vO}, 1, v{t+1}\nv_lshlrev_b32 v{vO}, 5, v{vO}\nv_lshrrev_b32 v{vO+1}, 1, v{t+1}\nv_lshlrev_b32 v{vO+1}, 4, v{vO+1}\nv_add3_u32 v{vO}, v{vO}, v{vO+1}, v{t}')
    for b in range(1, 4): p(f'v_add_u32 v{vO+b}, 0x8000, v{vO+b-1}')
    for i in range(128): p(f'v_mov_b32 v{cC+i}, 0')
    p('s_waitcnt vmcnt(0)\ns_barrier')
    ts.stamp(p)
    p(f's_cmp_eq_u32 s{sW}, 1\ns_cbranch_scc0 L_oh_got')
    p.cond(True)
    p(f'buffer_store_dwordx2 v[2:3], v{vFO}, s[{S_FL}:{S_FL+3}], 0 offen sc1')
    poll('L_oh_poll', vFW, 'L_oh_got')
    p.cond(False)
    p('L_oh_got:\ns_barrier')
    ts.stamp(p)
    RA, RB = 8, 8
    def cact(sub, b):
        r = 128 + 16*(sub % RB) + 4*b
        return f'buffer_load_dwordx4 a[{r}:{r+3}], v{cAct+b}, s[{S_A}:{S_A+3}], s{cKA} offen offset:{1024*(sub % 4)}{SC}'
    ad = cfg.cad
    def cvm(step, g):
        s, t = divmod(g, 8); sub = 4*step + s
        d = None; a = None
        if g % cfg.cdstr == 1 and g // cfg.cdstr < 8: d = g // cfg.cdstr
        if t % 2 == 0: a = (sub + ad, t // 2)
        return d, a
    for sub in range(ad):
        for b in range(4): p(cact(sub, b))
        if sub % 4 == 3: p(f's_add_u32 s{cKA}, s{cKA}, 4096')
    for m in range(2):
        for b in range(4):
            r = vX + (m*4+b)*4
            p(f'buffer_load_dwordx4 v[{r}:{r+3}], v{vO+b}, s[{S_X}:{S_X+3}], 0 offen offset:{64*m}')
    p(f's_add_u32 s{cMW}, s{cMW}, 0x10000')
    P = cfg.cP
    NGB = 64
    def ctr(G, tile0, stride):
        step, g = divmod(G, 32); s, t = divmod(g, 8)
        r = cA + 4*(G % RA); a = cTr + t
        off = (step % 2)*SLOT + s*8192
        tag = ('C', 4, tile0 + step, stride)
        return [(f'ds_read_b64_tr_b16 v[{r}:{r+1}], v{a} offset:{off}', tag),
                (f'ds_read_b64_tr_b16 v[{r+2}:{r+3}], v{a} offset:{off + 4096}', tag)]
    for G in range(P):
        for f in ctr(G, 0, 0): emit(p, f)
    p(f's_mov_b32 s{cTG}, 0x10000')
    p(f's_waitcnt vmcnt({4*(ad-1) + 8})')
    ts.stamp(p)
    p.loop_begin('C_loop', 8)
    mf = []; hi = {}; lo = {}
    for G in range(NGB):
        step, g = divmod(G, 32); s, t = divmod(g, 8); sub = 4*step + s
        for b in range(4):
            ra = cA + 4*(G % RA); rb = 128 + 16*(sub % RB) + 4*b; c = cC + (t*4+b)*4
            mf.append(f'v_mfma_f32_16x16x32_bf16 v[{c}:{c+3}], v[{ra}:{ra+3}], a[{rb}:{rb+3}], v[{c}:{c+3}]')
        i0 = 4*G; Gn = G + P
        if Gn % 32 == 0:
            stepn = Gn // 32
            H(i0-1, lambda p, stepn=stepn: (p.need(('C', 4, stepn, 2)), p('s_barrier')))
        r0, r1 = ctr(Gn % NGB, (Gn // NGB)*2, 2)
        H(i0, r0); H(i0+1, r1)
        if NGB - 8 <= Gn < NGB: H(i0+2, f'v_xor_b32 v{cTr + Gn % 8}, s{cTG}, v{cTr + Gn % 8}')
        d, a = cvm(step, g)
        if a is not None:
            L(i0, cact(*a))
            if a[1] == 3 and a[0] % 4 == 3: L(i0, f's_add_u32 s{cKA}, s{cKA}, 4096')
        if d is not None:
            if d % 4 == 0: L(i0, f's_add_u32 m0, s{cMW}, {(step % 2)*SLOT + 1024*d}'); L(i0, m0gap)
            L(i0, cdma(d, step + D, 2))
            if d == 7:
                L(i0, f's_add_u32 s{cKW}, s{cKW}, {128*2048}')
                if step == 1: L(i0, f's_xor_b32 s{cMW}, s{cMW}, 0x10000')
    H(len(mf)-3, f's_sub_u32 s{cCNT}, s{cCNT}, 1'); H(len(mf)-2, f's_cmp_lg_u32 s{cCNT}, 0')
    H(len(mf)-1, 's_cbranch_scc1 C_loop')
    fill = spread(hi, lo, len(mf), cfg.cap, 16, cost=lambda i: 1 if i % 4 == 3 else 0)
    fix_m0(fill, len(mf)); chk_tail(fill, len(mf))
    interleave(p, mf, fill)
    p.loop_end()
    p('s_waitcnt lgkmcnt(0)\ns_nop 4')
    ts.stamp(p)
    vC = cC
    for i in range(8):
        c = vC + 64 + 8*i; d = vC + 64 + 4*i
        for r in range(4): p(f'v_cvt_pk_bf16_f32 v{d+r}, v{c+2*r}, v{c+2*r+1}')
        p(f'buffer_store_dwordx4 v[{d}:{d+3}], v{24 + i//4}, s[{S_P}:{S_P+3}], s{sPS} offen offset:{1024*(i%4)} sc1')
    p('s_waitcnt vmcnt(0)\ns_barrier')
    p(f's_cmp_eq_u32 s{sW}, 1\ns_cbranch_scc0 C_got')
    p.cond(True)
    p(f'buffer_store_dwordx2 v[2:3], v{vFP}, s[{S_FL}:{S_FL+3}], 0 offen sc1')
    poll('C_poll', vFQ, 'C_got')
    p.cond(False)
    p('C_got:\ns_barrier')
    ts.stamp(p)
    for i in range(8):
        c = vR + 4*i
        p(f'buffer_load_dwordx4 v[{c}:{c+3}], v{24 + i//4}, s[{S_P}:{S_P+3}], s{sPR} offen offset:{1024*(i%4)} sc1')
    p(f's_mov_b32 s{sT+3}, 0xffff0000')
    p(f's_cmp_eq_u32 s{sGM}, 1\ns_cbranch_scc1 C_s_epi')
    p(f's_mov_b32 s{sT+4}, {f2u(-math.log2(math.e)):#x}')
    def addpart(i2):
        c = vC + 8*i2; rr = vR + 4*i2; tt = 32 + 8*(i2 % 2)
        for r in range(4): p(f'v_lshlrev_b32 v{tt+2*r}, 16, v{rr+r}\nv_and_b32 v{tt+2*r+1}, s{sT+3}, v{rr+r}')
        for r in range(0, 8, 2): p(f'v_pk_add_f32 v[{c+r}:{c+r+1}], v[{c+r}:{c+r+1}], v[{tt+r}:{tt+r+1}]')
    for i2 in range(8):
        c = vC + 8*i2; tt = 32 + 8*(i2 % 2); d = vG + 4*i2
        addpart(i2)
        for r in range(8): p(f'v_mul_f32 v{tt+r}, s{sT+4}, v{c+r}')
        for r in range(8): p(f'v_exp_f32 v{tt+r}, v{tt+r}')
        for r in range(0, 8, 2): p(f'v_pk_add_f32 v[{tt+r}:{tt+r+1}], v[{tt+r}:{tt+r+1}], 1.0 op_sel_hi:[1,0]')
        for r in range(8): p(f'v_rcp_f32 v{tt+r}, v{tt+r}')
        for r in range(0, 8, 2): p(f'v_pk_mul_f32 v[{tt+r}:{tt+r+1}], v[{tt+r}:{tt+r+1}], v[{c+r}:{c+r+1}]')
        for r in range(4): p(f'v_cvt_pk_bf16_f32 v{d+r}, v{tt+2*r}, v{tt+2*r+1}')
        p(f'buffer_store_dwordx4 v[{d}:{d+3}], v{24 + i2//4}, s[{S_G}:{S_G+3}], s{sGO} offen offset:{1024*(i2 % 4)} sc1')
    p('s_waitcnt vmcnt(0)\ns_barrier')
    p(f's_cmp_eq_u32 s{sW}, 1\ns_cbranch_scc0 C_fin')
    p(f'buffer_store_dwordx2 v[2:3], v{vFG}, s[{S_FL}:{S_FL+3}], 0 offen sc1')
    p('s_branch C_fin')
    p('C_s_epi:')
    for i2 in range(8):
        d = vG + 4*i2
        p(f'buffer_load_dwordx4 v[{d}:{d+3}], v{24 + i2//4}, s[{S_G}:{S_G+3}], s{sGO} offen offset:{1024*(i2 % 4)} sc1')
    p('s_waitcnt vmcnt(8)')
    for i2 in range(8): addpart(i2)
    for m in range(2):
        for b in range(4):
            o = 48 + 4*((m*4+b) % 3); xr = vX + (m*4+b)*4
            c0 = vC + ((2*m)*4+b)*4; c1 = vC + ((2*m+1)*4+b)*4
            for h in range(2):
                c = (c0, c1)[h]; gr = vG + ((2*m+h)*4+b)*2
                for q in range(2):
                    p(f'v_lshlrev_b32 v{32+4*h+2*q}, 16, v{gr+q}\nv_and_b32 v{33+4*h+2*q}, s{sT+3}, v{gr+q}')
                for q in range(2):
                    p(f'v_pk_mul_f32 v[{c+2*q}:{c+2*q+1}], v[{32+4*h+2*q}:{33+4*h+2*q}], v[{c+2*q}:{c+2*q+1}]')
            for q in range(4): p(f'v_lshlrev_b32 v{40+2*q}, 16, v{xr+q}\nv_and_b32 v{41+2*q}, s{sT+3}, v{xr+q}')
            for r in range(4): p(f'v_permlane16_swap_b32 v{c0+r}, v{c1+r}')
            p('s_nop 0')
            for q in range(4):
                c = (c0, c0+2, c1, c1+2)[q]
                p(f'v_pk_add_f32 v[{40+2*q}:{41+2*q}], v[{40+2*q}:{41+2*q}], v[{c}:{c+1}]')
            for q in range(4): p(f'v_cvt_pk_bf16_f32 v{o+q}, v{40+2*q}, v{41+2*q}')
            p(f'buffer_store_dwordx4 v[{o}:{o+3}], v{vO+b}, s[{S_OUT}:{S_OUT+3}], 0 offen offset:{64*m} {cfg.osc}')
    p('C_fin:')
    ts.stamp(p)
    ts.dump(p, pWS)
    p('K_end:\ns_endpgm')
    autowait(p); check(p, 'main')

    z = Prog(); main = p; p = z
    p('A_slow:')
    p('s_waitcnt vmcnt(0) lgkmcnt(0)')
    srd(p, S_K, pK, 0, 2 << 20); srd(p, S_V, pV, 0, 2 << 20)
    zK, zD, zV = 13, 14, 21
    zKV, zN = sT, sT+1
    p(f's_lshr_b32 s{zKV}, s{sCB}, 3\ns_lshl_b32 s{zKV}, s{zKV}, 19\ns_add_u32 s{zKV}, s{zKV}, {1536*256}')
    p(f'v_and_b32 v{zK}, 31, v1\nv_lshlrev_b32 v{zK}, 8, v{zK}\nv_lshrrev_b32 v36, 5, v1\nv_lshl_add_u32 v{zK}, v36, 4, v{zK}')
    p(f'v_lshrrev_b32 v36, 4, v1\nv_and_b32 v37, 15, v1\nv_lshlrev_b32 v38, 2, v36\nv_xor_b32 v37, v37, v38\nv_lshlrev_b32 v36, 8, v36\nv_lshl_add_u32 v{zD}, v37, 4, v36\nv_add_u32 v{zD+1}, 0x1000, v{zD}')
    t = 36
    p(f'v_lshrrev_b32 v{t}, 5, v1\nv_lshlrev_b32 v{t}, 2, v{t}\nv_bfe_u32 v{t+1}, v1, 2, 2\nv_add_u32 v{t}, v{t}, v{t+1}\nv_lshlrev_b32 v{t}, 8, v{t}')
    p(f'v_bfe_u32 v{t+2}, v1, 4, 1\nv_lshlrev_b32 v{t+2}, 5, v{t+2}\nv_and_b32 v{t+3}, 3, v1\nv_lshlrev_b32 v{t+3}, 3, v{t+3}\nv_add3_u32 v{t}, v{t}, v{t+2}, v{t+3}')
    p(f's_lshl_b32 s{sT+2}, s{sW}, 13\ns_add_u32 s{sT+2}, s{sT+2}, 0x20000\nv_add_u32 v{t}, s{sT+2}, v{t}')
    for dt in range(4): p(f'v_xor_b32 v{t+2}, {dt}, v{t+1}\nv_lshl_add_u32 v{zV+dt}, v{t+2}, 6, v{t}')
    def kglob():
        for s in range(8): p(f'buffer_load_dwordx4 a[{aF+4*s}:{aF+4*s+3}], v{zK}, s[{S_K}:{S_K+3}], s{zN} offen offset:{32*s}')
    p(f'v_mov_b32 v32, 0xff800000\nv_mov_b32 v34, 0xff800000\ns_mov_b32 s{zN}, s{zKV}\ns_mov_b32 s{sT+3}, 16')
    p.loop_begin('Z1_loop', 16, align=False)
    kglob()
    for s in range(8):
        for qt in range(2): p(qk(0, s, qt, zero))
    p('s_nop 7\ns_nop 3')
    rowmax(0, False)
    p(f's_add_u32 s{zN}, s{zN}, 8192\ns_sub_u32 s{sT+3}, s{sT+3}, 1\ns_cmp_lg_u32 s{sT+3}, 0\ns_cbranch_scc1 Z1_loop')
    p.loop_end()
    set_negm()
    for i in range(128): p(f'v_accvgpr_write_b32 a{i}, 0')
    for i in range(4): p(f'v_mov_b32 v{vL+i}, 0')
    p(f's_mov_b32 s{zN}, s{zKV}\ns_mov_b32 s{sT+3}, 16')
    p.loop_begin('Z2_loop', 16, align=False)
    kglob()
    for j in range(8):
        if j % 4 == 0: p(f's_add_u32 m0, s{sT+2}, {1024*j}\ns_nop 0')
        p(f'buffer_load_dwordx4 v{zD + j//4}, s[{S_V}:{S_V+3}], s{zN} offen offset:{1024*(j%4)} lds')
    for s in range(8):
        for qt in range(2): p(qk(0, s, qt, negm))
    p('s_nop 7\ns_nop 3')
    for ops in softmax_ops(0):
        for o in ops: p(o)
    p('s_waitcnt vmcnt(0)')
    for f in range(8):
        for r in vread(0, f, None, base=zV, off0=0): emit(p, r)
    for f in range(8):
        for qt in range(2): p(pv(0, f, qt))
    p(f's_add_u32 s{zN}, s{zN}, 8192\ns_sub_u32 s{sT+3}, s{sT+3}, 1\ns_cmp_lg_u32 s{sT+3}, 0\ns_cbranch_scc1 Z2_loop')
    p.loop_end()
    p('s_nop 7\ns_nop 7')
    for qt in range(2):
        l = vL + 2*qt
        p(f'v_add_f32 v{l}, v{l}, v{l+1}\nv_mov_b32 v{l+1}, v{l}\ns_nop 1\nv_permlane32_swap_b32 v{l}, v{l+1}\ns_nop 1\nv_add_f32 v{l}, v{l}, v{l+1}')
    p('s_branch A_done')
    autowait(z); check(z, 'slow')
    return main.text() + '\n' + z.text() + '\nK_last:'

def main():
    cfg = Cfg()
    cfg.ts = 1; cfg.xmap = 'b'; cfg.stag = 0; cfg.P = 4; cfg.late1 = 1; cfg.w0 = 0; cfg.cw0 = 8
    cfg.d0 = 0; cfg.dstr = 4; cfg.a0 = 1; cfg.astr = 2; cfg.ad = 3; cfg.PF = 3; cfg.cap = 2
    cfg.cad = 5; cfg.cdstr = 4; cfg.cP = 4; cfg.thr = 30; cfg.dbg = 0; cfg.cpf = 1; cfg.tlb = 0; cfg.osc = ''; cfg.slp = 1; cfg.late0 = 0
    for a in sys.argv[2:]:
        k, v = a.split('='); setattr(cfg, k, int(v) if v.lstrip('-').isdigit() else v)
    kn = NAME + '_kernel'
    hdr = (f'; @launch grid=(256,1,1) block=(256,1,1) lds={LDS_TOT}\n'
           '.amdgcn_target "amdgcn-amd-amdhsa--gfx950"\n')
    s = hdr + kernel_head(kn) + gen(cfg) + '\n' + kernel_desc(kn, 512, 256)
    open(sys.argv[1], 'w').write(s)
if __name__ == '__main__': main()
```

```python
import sys, struct, math
from dsl import *
from gen2 import (f2u, srd, kernel_head, kernel_desc, emit, interleave, spread, m0gap, fix_m0, chk_tail, Cfg)
from gen3 import TS

NAME = 'recurrent_scan__sliding_block_cached__geglu_ffn__prompt'
WS_XN = 0
WS_O  = 4 << 20
WS_H  = 20 << 20
WS_FL = 40 << 20
WS_P  = 64 << 20
LDS_SCR = 0x26000
LDS_TOT = 163840

def gen(cfg):
    p = Prog(); ts = TS(cfg.ts)
    SC = ' sc1'
    pX, pK, pV, pWQ, pWO, pWG, pWU, pWD, pOUT, pDBG, pWS = 64, 66, 68, 70, 72, 76, 78, 80, 82, 84, 86
    S_CW, S_2, S_A, S_3, S_K, S_V, S_O, S_FL, S_DB = 8, 12, 16, 20, 24, 28, 32, 56, 60
    sPH, sNO, sW, sRB, sCB = 3, 6, 36, 37, 38
    cCNT, cKW, cKA, cMW, cTG, cKS = 42, 45, 46, 47, 48, 49
    sT = 50
    cD, cAct, cTr, cA, cC = 40, 48, 52, 64, 128
    bDW = [4, 5, 6, 7, 60, 61, 62]; bTr = 63
    hi = {}; lo = {}
    def H(i, x): hi.setdefault(i, []).append(x)
    def L(i, x): lo.setdefault(i, []).append(x)

    p('s_cmp_ge_u32 s2, 256\ns_cbranch_scc1 K_end')
    p('s_load_dwordx16 s[64:79], s[0:1], 0\ns_load_dwordx8 s[80:87], s[0:1], 64')
    p(f'v_lshrrev_b32 v2, 6, v0\nv_and_b32 v1, 63, v0\nv_readfirstlane_b32 s{sW}, v2')
    p(f's_and_b32 s{sT}, s2, 7\ns_lshr_b32 s{sT+1}, s2, 3')
    p(f's_and_b32 s{sRB}, s{sT+1}, 7\ns_lshl_b32 s{sCB}, s{sT}, 2\ns_lshr_b32 s{sT+2}, s{sT+1}, 3\ns_add_u32 s{sCB}, s{sCB}, s{sT+2}')
    vLX, vLO, vLS = 8, 9, 10
    t = 12
    p(f's_lshl_b32 s{sT}, s{sRB}, 8\ns_lshl_b32 s{sT+1}, s{sCB}, 3\ns_add_u32 s{sT}, s{sT}, s{sT+1}\ns_lshl_b32 s{sT}, s{sT}, 11\ns_lshl_b32 s{sT+1}, s{sW}, 9\ns_add_u32 s{sT}, s{sT}, s{sT+1}')
    p(f'v_and_b32 v{t}, 7, v1\nv_bfe_u32 v{t+1}, v1, 3, 1\nv_lshrrev_b32 v{t+2}, 4, v1')
    p(f'v_lshlrev_b32 v{t+3}, 11, v{t}\nv_lshlrev_b32 v{t+4}, 8, v{t+1}\nv_lshlrev_b32 v{t+5}, 4, v{t+2}\nv_add3_u32 v{t+3}, v{t+3}, v{t+4}, v{t+5}\nv_add_u32 v{vLX}, s{sT}, v{t+3}')
    p(f's_lshl_b32 s{sT}, s{sRB}, 4\ns_lshr_b32 s{sT+1}, s{sCB}, 1\ns_add_u32 s{sT}, s{sT}, s{sT+1}\ns_lshl_b32 s{sT}, s{sT}, 15\ns_lshl_b32 s{sT+1}, s{sW}, 13\ns_add_u32 s{sT}, s{sT}, s{sT+1}')
    p(f's_and_b32 s{sT+1}, s{sCB}, 1\ns_lshl_b32 s{sT+1}, s{sT+1}, 7\ns_add_u32 s{sT}, s{sT}, s{sT+1}')
    p(f'v_lshlrev_b32 v{t+3}, 4, v{t}\nv_lshlrev_b32 v{t+4}, 12, v{t+1}\nv_lshlrev_b32 v{t+5}, 8, v{t+2}\nv_add3_u32 v{t+4}, v{t+3}, v{t+4}, v{t+5}\nv_add_u32 v{vLO}, s{sT}, v{t+4}')
    p(f'v_add_u32 v{vLS}, {LDS_SCR}, v{t+3}\nv_lshl_add_u32 v{vLS+1}, v2, 2, v{vLS}')
    def x_dma_addr(shift, colreg, kmaps, sel):
        t = 36
        p(f's_lshl_b32 s{sT+2}, s{sW}, {shift+5}\ns_lshl_b32 s{sT+3}, s{colreg}, 8\ns_add_u32 s{sT+2}, s{sT+2}, s{sT+3}')
        p(f'v_lshrrev_b32 v{t}, 4, v1\nv_and_b32 v{t+1}, 15, v1\nv_lshlrev_b32 v{t+2}, 1, v{t}\nv_xor_b32 v{t+1}, v{t+1}, v{t+2}')
        p(f'v_lshlrev_b32 v{t}, {shift}, v{t}\nv_add_u32 v{t}, s{sT+2}, v{t}')
        if sel: p(sel)
        for pc in range(8):
            o = [(m(pc) << shift) - 1024*(pc % 4) for m in kmaps]
            p(f'v_xor_b32 v{t+2}, {8*(pc & 1)}, v{t+1}\nv_lshl_add_u32 v{t+2}, v{t+2}, 4, v{t}')
            if len(set(o)) == 1: p(f'v_add_u32 v{cD+pc}, {o[0]}, v{t+2}')
            else: p(f's_mov_b32 s{sT+3}, {o[0]}\ns_cselect_b32 s{sT+3}, s{sT+3}, {o[1]}\nv_add_u32 v{cD+pc}, s{sT+3}, v{t+2}')
    def x_tr_addr(xs):
        t = 36
        p(f'v_lshrrev_b32 v{t}, 2, v1\nv_and_b32 v{t+1}, 7, v{t}')
        if xs: p(f'v_xor_b32 v{t+1}, s{xs}, v{t+1}')
        p(f'v_lshlrev_b32 v{t}, 8, v{t}\nv_and_b32 v{t+2}, 3, v1\nv_lshl_add_u32 v{t}, v{t+2}, 3, v{t}')
        for tt in range(8): p(f'v_xor_b32 v{t+2}, {tt}, v{t+1}\nv_lshl_add_u32 v{cTr+tt}, v{t+2}, 5, v{t}')
    k_nat = lambda pc: 8*(pc & 3) + 4*(pc >> 2)
    k_h = lambda pc: 4*pc
    k_o = lambda pc: 4*((pc & 1) | ((pc & 2) << 1) | ((pc & 4) >> 1))
    x_dma_addr(13, sCB, [k_nat], None)
    p(f's_lshl_b32 s{cMW}, s{sW}, 13\ns_mov_b32 s{cKW}, 0\ns_mov_b32 s{cKA}, 0\ns_mov_b32 s{cKS}, {128*8192}\ns_mov_b32 s{cCNT}, 4\ns_mov_b32 s{sPH}, 0')
    p('s_waitcnt lgkmcnt(0)')
    ts.stamp(p)
    srd(p, S_3, pX, 0, 4 << 20)
    vLD = 16
    for i in range(4): p(f'buffer_load_dwordx4 v[{vLD+4*i}:{vLD+4*i+3}], v{vLX}, s[{S_3}:{S_3+3}], 0 offen offset:{64*i}')
    srd(p, S_CW, pWQ, 0, 8 << 20)
    srd(p, S_DB, pDBG, 0, 256)
    p(f's_lshl_b32 s{sT}, s2, 2\ns_add_u32 s{sT}, s{sT}, s{sW}\ns_cmp_eq_u32 s{sT}, 1\ns_cbranch_scc0 L_no_nonce')
    p.cond(True)
    p(f's_memrealtime s[{sNO}:{sNO+1}]\nv_mov_b32 v34, 0\ns_waitcnt lgkmcnt(0)\ns_or_b32 s{sNO}, s{sNO}, 1\nv_mov_b32 v32, s{sNO}\nv_mov_b32 v33, s{sNO+1}')
    p(f'buffer_store_dwordx2 v[32:33], v34, s[{S_DB}:{S_DB+3}], 0 offen sc1')
    p.cond(False)
    p('L_no_nonce:')
    SLOT = 32768; D = 2
    def cdma(pc, tile, stride): return (f'buffer_load_dwordx4 v{cD+pc}, s[{S_CW}:{S_CW+3}], s{cKW} offen offset:{1024*(pc%4)} lds', ('C', 4, tile, stride))
    def x_first(tile, ver0):
        for d in range(8):
            if d % 4 == 0: p(f's_add_u32 m0, s{cMW}, {tile*SLOT + 1024*d}\ns_nop 0')
            emit(p, cdma(d, ver0 + tile, 0))
        p(f's_add_u32 s{cKW}, s{cKW}, s{cKS}')
    x_first(0, 0)
    if not cfg.late1: x_first(1, 0)
    p(f's_getpc_b64 s[{S_K}:{S_K+1}]\nL_pc:\ns_mov_b32 s{S_K+2}, K_last-L_pc\ns_mov_b32 s{S_K+3}, 0x20000')
    p(f's_bfe_u32 s{sT}, s2, 0x40003\ns_lshl_b32 s{sT}, s{sT}, 12\nv_lshlrev_b32 v96, 4, v0')
    p(f'buffer_load_dwordx4 v[96:99], v96, s[{S_K}:{S_K+3}], s{sT} offen')
    srd(p, S_FL, pWS, WS_FL, 1024*128)
    srd(p, S_A, pWS, WS_XN, 4 << 20)
    p(f's_lshl_b32 s{sT}, s{sRB}, 4\ns_lshl_b32 s{sT+1}, s{sW}, 2\ns_add_u32 s{sT}, s{sT}, s{sT+1}\ns_lshl_b32 s{sT}, s{sT}, 15')
    p(f'v_lshlrev_b32 v36, 4, v1\nv_add_u32 v{cAct}, s{sT}, v36')
    for b in range(1, 4): p(f'v_add_u32 v{cAct+b}, {b*32768:#x}, v{cAct}')
    x_tr_addr(None)
    p(f's_and_b32 s{sT}, s{sW}, 1\ns_mul_i32 s{sT}, s{sT}, {32*7168}\ns_mul_i32 s{sT+1}, s{sCB}, 224\ns_add_u32 s{sT}, s{sT}, s{sT+1}')
    p(f's_mov_b32 s{sT+1}, 4682\ns_mov_b32 s{sT+2}, 7168')
    for n in range(448): assert (n*4682) >> 16 == n // 14
    t = 32
    for pc in range(7):
        p(f'v_add_u32 v{t}, {64*pc}, v1')
        p(f'v_mul_u32_u24 v{t+1}, s{sT+1}, v{t}\nv_lshrrev_b32 v{t+1}, 16, v{t+1}')
        p(f'v_mul_u32_u24 v{t+2}, 14, v{t+1}\nv_sub_u32 v{t+2}, v{t}, v{t+2}')
        p(f'v_and_b32 v{t+3}, 0x13, v{t+1}\nv_and_b32 v{t+4}, 4, v{t+1}\nv_lshl_or_b32 v{t+3}, v{t+4}, 1, v{t+3}')
        p(f'v_bfe_u32 v{t+4}, v{t+1}, 3, 1\nv_lshl_or_b32 v{t+3}, v{t+4}, 2, v{t+3}')
        p(f'v_mul_u32_u24 v{t+3}, s{sT+2}, v{t+3}\nv_lshlrev_b32 v{t+2}, 4, v{t+2}\nv_add3_u32 v{bDW[pc]}, v{t+3}, v{t+2}, s{sT}')
        if pc % 4: p(f'v_subrev_u32 v{bDW[pc]}, {1024*(pc%4)}, v{bDW[pc]}')
    p(f'v_lshrrev_b32 v{t}, 5, v1\nv_lshlrev_b32 v{t}, 4, v{t}\nv_bfe_u32 v{t+1}, v1, 4, 1\nv_lshlrev_b32 v{t+1}, 2, v{t+1}\nv_bfe_u32 v{t+2}, v1, 2, 2')
    p(f'v_add3_u32 v{t}, v{t}, v{t+1}, v{t+2}\nv_mul_u32_u24 v{t}, 224, v{t}\nv_and_b32 v{t+3}, 3, v1\nv_lshlrev_b32 v{t+3}, 3, v{t+3}\nv_add_u32 v{bTr}, v{t}, v{t+3}')
    for i in range(128): p(f'v_mov_b32 v{cC+i}, 0')
    for i in range(128): p(f'v_accvgpr_write_b32 a{i}, 0')
    X = 64; sM = sT + 4
    p(f's_mov_b32 s{sM}, 0xffff0000')
    for i in range(16): p(f'v_lshlrev_b32 v{X+2*i}, 16, v{vLD+i}\nv_and_b32 v{X+2*i+1}, s{sM}, v{vLD+i}')
    def red(v, tt, off):
        p(f's_nop 1\nv_add_f32_dpp v{v}, v{v}, v{v} row_ror:8 row_mask:0xf bank_mask:0xf')
        p(f'v_mov_b32 v{tt}, v{v}\ns_nop 1\nv_permlane16_swap_b32 v{v}, v{tt}\ns_nop 1\nv_add_f32 v{v}, v{v}, v{tt}')
        p(f'v_mov_b32 v{tt}, v{v}\ns_nop 1\nv_permlane32_swap_b32 v{v}, v{tt}\ns_nop 1\nv_add_f32 v{v}, v{v}, v{tt}')
        p(f'ds_write_b32 v{vLS+1}, v{v} offset:{off}\ns_waitcnt lgkmcnt(0)\ns_barrier')
        p(f'ds_read_b128 v[12:15], v{vLS} offset:{off}')
        p(f'v_add_f32 v12, v12, v13\nv_add_f32 v14, v14, v15\nv_add_f32 v{v}, v12, v14\nv_mul_f32 v{v}, {f2u(1/1024):#x}, v{v}')
    for a in range(0, 4, 2): p(f'v_pk_add_f32 v[{32+a}:{33+a}], v[{X+a}:{X+a+1}], v[{X+4+a}:{X+5+a}]')
    for i in range(8, 32, 2): p(f'v_pk_add_f32 v[{32+i%4}:{33+i%4}], v[{32+i%4}:{33+i%4}], v[{X+i}:{X+i+1}]')
    p('v_pk_add_f32 v[32:33], v[32:33], v[34:35]\nv_add_f32 v32, v32, v33')
    red(32, 33, 0)
    p('v_mov_b32 v33, v32\nv_mov_b32 v8, 0')
    p(f'buffer_load_dwordx2 v[2:3], v8, s[{S_DB}:{S_DB+3}], 0 offen sc1')
    Y = 100
    for i in range(0, 28, 2): p(f'v_pk_add_f32 v[{Y+i}:{Y+i+1}], v[{X+i}:{X+i+1}], v[32:33] neg_lo:[0,1] neg_hi:[0,1]')
    for i in range(28, 32, 2): p(f'v_pk_add_f32 v[{vLD+i-28}:{vLD+i-27}], v[{X+i}:{X+i+1}], v[32:33] neg_lo:[0,1] neg_hi:[0,1]')
    yy = lambda i: Y + i if i < 28 else vLD + i - 28
    for a in range(0, 4, 2): p(f'v_pk_mul_f32 v[{36+a}:{37+a}], v[{yy(a)}:{yy(a)+1}], v[{yy(a)}:{yy(a)+1}]')
    for i in range(4, 32, 2): p(f'v_pk_fma_f32 v[{36+i%4}:{37+i%4}], v[{yy(i)}:{yy(i)+1}], v[{yy(i)}:{yy(i)+1}], v[{36+i%4}:{37+i%4}]')
    p('v_pk_add_f32 v[36:37], v[36:37], v[38:39]\nv_add_f32 v36, v36, v37')
    red(36, 37, 128)
    def rnd(v): p(f'v_cvt_pk_bf16_f32 v{v}, v{v}, v{v}\nv_lshlrev_b32 v{v}, 16, v{v}')
    rnd(32); rnd(36)
    p(f'v_add_f32 v36, {f2u(1e-5):#x}, v36'); rnd(36)
    p('v_sqrt_f32 v36, v36\ns_nop 0'); rnd(36)
    p('v_rcp_f32 v36, v36\nv_mov_b32 v33, v32\nv_mov_b32 v37, v36')
    for i in range(16):
        a, b = X+2*i, X+2*i+1
        p(f'v_pk_add_f32 v[{a}:{b}], v[{a}:{b}], v[32:33] neg_lo:[0,1] neg_hi:[0,1]\nv_cvt_pk_bf16_f32 v{a}, v{a}, v{b}')
        p(f'v_and_b32 v{b}, s{sM}, v{a}\nv_lshlrev_b32 v{a}, 16, v{a}')
        p(f'v_pk_mul_f32 v[{a}:{b}], v[{a}:{b}], v[36:37]\nv_cvt_pk_bf16_f32 v{vLD+i}, v{a}, v{b}')
        if i % 4 == 3:
            r = vLD + i - 3
            p(f'buffer_store_dwordx4 v[{r}:{r+3}], v{vLO}, s[{S_A}:{S_A+3}], 0 offen offset:{1024*(i//4)} sc1')
    vHF = 27
    p(f's_lshl_b32 s{sT}, s{sRB}, 12\ns_lshl_b32 s{sT+1}, s{sCB}, 7\ns_add_u32 s{sT+1}, s{sT}, s{sT+1}\nv_mov_b32 v32, s{sT+1}')
    p(f'v_and_b32 v34, 31, v1\nv_lshl_add_u32 v34, v34, 7, s{sT}')
    p('s_waitcnt vmcnt(0)\ns_barrier')
    def poll(lbl, vaddr, done):
        p(f'{lbl}:')
        p(f'buffer_load_dwordx2 v[36:37], v{vaddr}, s[{S_FL}:{S_FL+3}], 0 offen sc1\ns_waitcnt vmcnt(0)')
        p(f'v_cmp_ne_u64 vcc, s[{sNO}:{sNO+1}], v[36:37]\ns_nop 1\ns_cbranch_vccz {done}\ns_sleep {cfg.slp}\ns_branch {lbl}')
    p(f's_cmp_eq_u32 s{sW}, 1\ns_cbranch_scc0 L_xn_got')
    p.cond(True)
    p('L_no_retry:')
    p(f'v_readfirstlane_b32 s{sNO}, v2\nv_readfirstlane_b32 s{sNO+1}, v3\ns_nop 0\ns_cmp_lg_u32 s{sNO}, 0\ns_cbranch_scc1 L_no_ok')
    p(f'buffer_load_dwordx2 v[2:3], v8, s[{S_DB}:{S_DB+3}], 0 offen sc1\ns_waitcnt vmcnt(0)\ns_branch L_no_retry')
    p('L_no_ok:')
    p(f'buffer_store_dwordx2 v[2:3], v32, s[{S_FL}:{S_FL+3}], 0 offen sc1')
    poll('L_xn_poll', 34, 'L_xn_got')
    p.cond(False)
    p('L_xn_got:\ns_barrier')
    ts.stamp(p)
    RA, RBX = 8, 8
    def cact(sub, b, base=None):
        r = 128 + 16*(sub % RBX) + 4*b
        return f'buffer_load_dwordx4 a[{r}:{r+3}], v{cAct+b}, s[{S_A}:{S_A+3}], s{cKA} offen offset:{1024*(sub % 4)}{SC}'
    ad = cfg.cad
    def cvm(step, g):
        s, t = divmod(g, 8); sub = 4*step + s
        d = None; a = None
        if g % cfg.cdstr == 1 and g // cfg.cdstr < 8: d = g // cfg.cdstr
        if t % 2 == 0: a = (sub + ad, t // 2)
        return d, a
    P = cfg.cP
    NGB = 64
    def ctr(G, tile0, stride):
        step, g = divmod(G, 32); s, t = divmod(g, 8)
        r = cA + 4*(G % RA); a = cTr + t
        off = (step % 2)*SLOT + s*8192
        tag = ('C', 4, tile0 + step, stride)
        return [(f'ds_read_b64_tr_b16 v[{r}:{r+1}], v{a} offset:{off}', tag),
                (f'ds_read_b64_tr_b16 v[{r+2}:{r+3}], v{a} offset:{off + 4096}', tag)]
    def x_enter(ver0, extra_after=None, nafter=0):
        for sub in range(ad):
            for b in range(4): p(cact(sub, b))
            if sub % 4 == 3: p(f's_add_u32 s{cKA}, s{cKA}, 4096')
        if extra_after: extra_after()
        p(f's_add_u32 s{cMW}, s{cMW}, 0x10000')
        for G in range(P):
            for f in ctr(G, ver0, 0): emit(p, f)
        p(f's_mov_b32 s{cTG}, 0x10000')
        p(f's_waitcnt vmcnt({4*(ad-1) + nafter})')
    x_enter(0, (lambda: x_first(1, 0)) if cfg.late1 else None, 8 if cfg.late1 else 0)
    ts.stamp(p)
    XL = p.loop_begin('X_loop', 4)
    mf = []
    for G in range(NGB):
        step, g = divmod(G, 32); s, t = divmod(g, 8); sub = 4*step + s
        for b in range(4):
            ra = cA + 4*(G % RA); rb = 128 + 16*(sub % RBX) + 4*b; c = cC + (t*4+b)*4
            mf.append(f'v_mfma_f32_16x16x32_bf16 v[{c}:{c+3}], v[{ra}:{ra+3}], a[{rb}:{rb+3}], v[{c}:{c+3}]')
        i0 = 4*G; Gn = G + P
        if Gn % 32 == 0:
            stepn = Gn // 32
            H(i0-1, lambda p, stepn=stepn: (p.need(('C', 4, stepn, 2)), p('s_barrier')))
        r0, r1 = ctr(Gn % NGB, (Gn // NGB)*2, 2)
        H(i0, r0); H(i0+1, r1)
        if NGB - 8 <= Gn < NGB: H(i0+2, f'v_xor_b32 v{cTr + Gn % 8}, s{cTG}, v{cTr + Gn % 8}')
        d, a = cvm(step, g)
        if a is not None:
            L(i0, cact(*a))
            if a[1] == 3 and a[0] % 4 == 3: L(i0, f's_add_u32 s{cKA}, s{cKA}, 4096')
        if d is not None:
            if d % 4 == 0: L(i0, f's_add_u32 m0, s{cMW}, {(step % 2)*SLOT + 1024*d}'); L(i0, m0gap)
            L(i0, cdma(d, step + D, 2))
            if d == 7:
                L(i0, f's_add_u32 s{cKW}, s{cKW}, s{cKS}')
                if step == 1: L(i0, f's_xor_b32 s{cMW}, s{cMW}, 0x10000')
    H(len(mf)-3, f's_sub_u32 s{cCNT}, s{cCNT}, 1'); H(len(mf)-2, f's_cmp_lg_u32 s{cCNT}, 0')
    H(len(mf)-1, 's_cbranch_scc1 X_loop')
    fill = spread(hi, lo, len(mf), cfg.cap, 16, cost=lambda i: 1 if i % 4 == 3 else 0)
    fix_m0(fill, len(mf)); chk_tail(fill, len(mf))
    interleave(p, mf, fill)
    p.loop_end()
    p(f's_cmp_lg_u32 s{sPH}, 0\ns_cbranch_scc1 C_epi')
    p('s_waitcnt vmcnt(0) lgkmcnt(0)\ns_barrier')
    ts.stamp(p)

    vDK, vDV, vK, vV, vPF = 8, 12, 13, 21, 25
    sKV, sMK, sKA, sAD, sPF, sRD, sDL, sLEFT, sDM = 39, 40, 41, 43, 44, 45, 46, 47, 55
    t = 32
    p(f'v_lshrrev_b32 v{t}, 4, v1\nv_and_b32 v{t+1}, 15, v1')
    p(f's_lshl_b32 s{sMK}, s{sW}, 12')
    p(f'v_lshlrev_b32 v{t+2}, 8, v{t}\nv_add_u32 v{t+2}, s{sMK}, v{t+2}')
    for j in range(4):
        p(f'v_add_u32 v{t+3}, {4*j}, v{t}\nv_xor_b32 v{t+3}, v{t+3}, v{t+1}\nv_lshl_add_u32 v{vDK+j}, v{t+3}, 4, v{t+2}')
    p(f'v_lshlrev_b32 v{t+3}, 2, v{t}\nv_xor_b32 v{t+3}, v{t+3}, v{t+1}\nv_lshl_add_u32 v{vDV}, v{t+3}, 4, v{t+2}')
    p(f's_lshr_b32 s{sKV}, s{sCB}, 3\ns_lshl_b32 s{sKV}, s{sKV}, 19\ns_add_u32 s{sKV}, s{sKV}, {1536*256}')
    srd(p, S_K, pK, 0, 2 << 20); srd(p, S_V, pV, 0, 2 << 20)
    def kdma(j, soff, tag): return (f'buffer_load_dwordx4 v{vDK+j}, s[{S_K}:{S_K+3}], s{soff} offen offset:{1024*j} lds', tag)
    def vdma(j, soff, tag): return (f'buffer_load_dwordx4 v{vDV}, s[{S_V}:{S_V+3}], s{soff} offen offset:{1024*j} lds', tag)
    kvq = []
    for (kind, tl) in (('K', 0), ('K', 1), ('V', 0), ('K', 2), ('V', 1)):
        g = [f's_add_u32 s{sT}, s{sKV}, {tl*16384}', f's_add_u32 m0, s{sMK}, {tl*16384 + (65536 if kind == "V" else 0)}', 's_nop 0']
        for j in range(4):
            kvq.append(g + [(kdma if kind == 'K' else vdma)(j, sT, (kind, 4, tl, 0))]); g = []
    def kv_next(n=1):
        for _ in range(n):
            if kvq:
                for x in kvq.pop(0): emit(p, x)
    kv_next(4)
    vQ = 64; vC = 28
    qs = math.log2(math.e)/math.sqrt(128)
    p(f'v_mov_b32 v{vC}, {f2u(qs):#x}\nv_mov_b32 v{vC+1}, {f2u(qs):#x}')
    for qt in range(2):
        for s in range(8):
            d = vQ + (qt*8+s)*4
            for half in range(2):
                s0 = cC + (s*4 + 2*qt + half)*4
                for r in (0, 2): p(f'v_pk_mul_f32 v[{s0+r}:{s0+r+1}], v[{s0+r}:{s0+r+1}], v[{vC}:{vC+1}]')
            for half in range(2):
                s0 = cC + (s*4 + 2*qt + half)*4
                p(f'v_cvt_pk_bf16_f32 v{d+2*half}, v{s0}, v{s0+1}\nv_cvt_pk_bf16_f32 v{d+2*half+1}, v{s0+2}, v{s0+3}')
            if (qt, s) != (0, 0):
                dp = d - 4
                p(f'v_permlane16_swap_b32 v{dp}, v{dp+2}\nv_permlane16_swap_b32 v{dp+1}, v{dp+3}')
            kv_next()
    p(f'v_and_b32 v{t}, 31, v1\nv_lshrrev_b32 v{t+1}, 5, v1\nv_and_b32 v{t+2}, 15, v1\nv_xor_b32 v{t+1}, v{t+1}, v{t+2}\nv_lshlrev_b32 v{t}, 8, v{t}')
    p(f'v_permlane16_swap_b32 v124, v126\nv_permlane16_swap_b32 v125, v127')
    for s in range(8):
        p(f'v_xor_b32 v{t+2}, {2*s}, v{t+1}\nv_lshl_add_u32 v{vK+s}, v{t+2}, 4, v{t}')
    p.need(('K', 4, 0, 0)); p('s_barrier')
    vS = [128, 160]; vP = [192, 208]; vN = 224; vL = 28
    aF = 192
    def Sreg(n, qt): return vS[n % 2] + 16*qt
    def Preg(n, qt, ks): return vP[n % 2] + 8*qt + 4*ks
    def kread(n, s, tag):
        r = aF + 4*s
        return [(f'ds_read_b128 a[{r}:{r+3}], v{vK+s} offset:{(n % 2)*8192}', tag)]
    def vread(n, f, tag, base=None, off0=None):
        ks, dt = divmod(f, 4); r = aF + 32 + 4*f
        off = (32*(n % 2) + 16*ks)*256 if off0 is None else off0 + 16*ks*256
        b = vV if base is None else base
        return [(f'ds_read_b64_tr_b16 a[{r}:{r+1}], v{b+dt} offset:{off}', tag),
                (f'ds_read_b64_tr_b16 a[{r+2}:{r+3}], v{b+dt} offset:{off+2048}', tag)]
    def qk(n, s, qt, c0):
        S = Sreg(n, qt); c = f'v[{S}:{S+15}]' if s else c0(qt)
        return f'v_mfma_f32_32x32x16_bf16 v[{S}:{S+15}], a[{aF+4*s}:{aF+4*s+3}], v[{vQ+(qt*8+s)*4}:{vQ+(qt*8+s)*4+3}], {c}'
    def pv(n, f, qt):
        ks, dt = divmod(f, 4); o = (dt*2+qt)*16; P_ = Preg(n, qt, ks)
        return f'v_mfma_f32_32x32x16_bf16 a[{o}:{o+15}], a[{aF+32+4*f}:{aF+32+4*f+3}], v[{P_}:{P_+3}], a[{o}:{o+15}]'
    negm = lambda qt: f'v[{vN+16*qt}:{vN+16*qt+15}]'
    zero = lambda qt: '0'
    def softmax_ops(n):
        sl = [[] for _ in range(33)]
        for e in range(32):
            qt, i = divmod(e, 16); S = Sreg(n, qt)
            sl[e].insert(0, f'v_exp_f32 v{S+i}, v{S+i}')
            sl[e+1].append(f'v_add_f32 v{vL+2*qt+(i&1)}, v{vL+2*qt+(i&1)}, v{S+i}')
            if i & 1: sl[e+1].append(f'v_cvt_pk_bf16_f32 v{Preg(n, qt, i>>3)+((i&7)>>1)}, v{S+i-1}, v{S+i}')
        return sl
    for s in range(8): emit(p, kread(0, s, ('K', 4, 0, 0))[0])
    ts.stamp(p)
    pre = Prog(); q = p; p = pre
    p(f'v_lshrrev_b32 v{t}, 5, v1\nv_lshlrev_b32 v{t}, 2, v{t}\nv_bfe_u32 v{t+1}, v1, 2, 2\nv_add_u32 v{t}, v{t}, v{t+1}\nv_lshlrev_b32 v{t}, 8, v{t}')
    p(f'v_bfe_u32 v{t+2}, v1, 4, 1\nv_lshlrev_b32 v{t+2}, 5, v{t+2}\nv_and_b32 v{t+3}, 3, v1\nv_lshlrev_b32 v{t+3}, 3, v{t+3}\nv_add3_u32 v{t}, v{t}, v{t+2}, v{t+3}')
    p(f'v_add_u32 v{t}, 0x10000, v{t}')
    for dt in range(4):
        p(f'v_xor_b32 v{t+2}, {dt}, v{t+1}\nv_lshl_add_u32 v{vV+dt}, v{t+2}, 6, v{t}')
    for i in range(4): p(f'v_mov_b32 v{vL+i}, 0')
    p(f's_mov_b32 s{sAD}, 0')
    p(f's_lshl_b32 s{sT}, s2, 2\ns_add_u32 s{sT}, s{sT}, s{sW}\ns_lshl_b32 s{sT+1}, s{sT}, 13\ns_mul_i32 s{sT}, s{sT}, 7168')
    p(f'v_lshlrev_b32 v{vPF}, 4, v1\nv_add_u32 v{vPF+1}, s{sT}, v{vPF}\nv_add_u32 v{vPF}, s{sT+1}, v{vPF}')
    srd(p, S_CW, pWG, 0, 7 << 20); srd(p, S_2, pWU, 0, 7 << 20); srd(p, S_3, pWD, 0, 7 << 20); srd(p, S_O, pWO, 0, 8 << 20)
    p(f's_lshl_b32 s{sT}, s{sRB}, 12\ns_lshl_b32 s{sT+1}, s{sCB}, 7\ns_add_u32 s{sT}, s{sT}, s{sT+1}\ns_add_u32 s{sT}, s{sT}, {256*128}\nv_mov_b32 v{vHF}, s{sT}')
    p(f's_add_u32 s{sDM}, s{sMK}, 0x20000')
    p(f's_mov_b32 s{sPF}, 7168\ns_add_u32 m0, s{sMK}, s{sDM}\ns_nop 0')
    p(f'buffer_load_dwordx4 v{vPF}, s[{S_O}:{S_O+3}], s{sPF} offen lds\ns_mov_b32 s{sPF}, 0')
    p = q
    items = [(it.text, it.tag) for it in pre.items]
    mf = []; fill = {}
    for s in range(8):
        mf += [qk(0, s, 0, zero), qk(0, s, 1, zero)]
        fill.setdefault(2*s+1, []).append(kread(1, s, ('K', 4, 0, 0))[0])
    for k, x in enumerate(items): fill.setdefault(k*16//len(items), []).append(x)
    interleave(p, mf, fill)
    for i in range(128, 140): p(f'v_accvgpr_write_b32 a{i}, 0')
    def rowmax(n, first):
        for qt in range(2):
            S = Sreg(n, qt); m = 32 + 2*qt
            if first: p(f'v_max3_f32 v{m}, v{S}, v{S+1}, v{S+2}')
            else: p(f'v_max3_f32 v{m}, v{m}, v{S+1}, v{S+2}\nv_max_f32 v{m}, v{m}, v{S}')
            for i in range(3, 15, 2): p(f'v_max3_f32 v{m}, v{m}, v{S+i}, v{S+i+1}')
            p(f'v_max_f32 v{m}, v{m}, v{S+15}')
    def set_negm():
        p('v_mov_b32 v33, v32\nv_mov_b32 v35, v34\ns_nop 0\nv_permlane32_swap_b32 v32, v33\nv_permlane32_swap_b32 v34, v35\ns_nop 0')
        for qt in range(2):
            m = 32 + 2*qt
            p(f'v_max_f32 v{m}, v{m}, v{m+1}\nv_sub_f32 v{vN+16*qt}, 0, v{m}\nv_mov_b32 v{vN+16*qt+1}, v{vN+16*qt}')
            for i in range(2, 16, 2): p(f'v_pk_mul_f32 v[{vN+16*qt+i}:{vN+16*qt+i+1}], v[{vN+16*qt}:{vN+16*qt+1}], 1.0 op_sel_hi:[1,0]')
    rowmax(0, True); set_negm()
    for qt in range(2):
        S = Sreg(0, qt)
        for i in range(0, 16, 2): p(f'v_pk_add_f32 v[{S+i}:{S+i+1}], v[{S+i}:{S+i+1}], v[{vN+16*qt}:{vN+16*qt+1}]')
    PF = cfg.PF
    def build(its, tile_tagK, tile_tagV, nxt, extra=None):
        pairs = []; sm = []
        for (nq, ns, npv) in its:
            st = len(pairs)
            if nq is not None:
                for s in range(8): pairs.append((qk(nq, s, 0, negm), qk(nq, s, 1, negm), kread(nq, s, tile_tagK(nq))))
            if npv is not None:
                for f in range(8): pairs.append((pv(npv, f, 0), pv(npv, f, 1), vread(npv, f, tile_tagV(npv))))
            if ns is not None: sm.append((st, len(pairs), softmax_ops(ns)))
        mf = []; fill = {}
        def F(i, x): fill.setdefault(i, []).append(x)
        for i, (a, b, _) in enumerate(pairs): mf += [a, b]
        if extra: extra(F, len(mf))
        for i in range(len(pairs)):
            j = i + PF
            rds = pairs[j][2] if j < len(pairs) else nxt(j - len(pairs))
            for k, r in enumerate(rds): F(2*i + k, r)
        for (st, en, sl) in sm:
            ng = 2*(en - st)
            for e, ops in enumerate(sl):
                g = 2*st + min(ng - 1, e*ng//32)
                for o in ops: F(g, o)
        return mf, fill
    def nxt0(k): return kread(2, k, ('K', 4, 1, 0))
    def extra0(F, n):
        pos = 2*(8 - PF)
        F(pos - 1, lambda p: (p.need(('K', 4, 1, 0)), p.need(('V', 4, 0, 0)), p('s_barrier')))
        for s in range(8): F(s, f'v_add_u32 v{vK+s}, 0x4000, v{vK+s}')
    mf, fill = build([(1, 0, None)], lambda n: None, None, nxt0, extra0)
    fill = {k: [x for x in v if not (isinstance(x, tuple) and x[1] is None)] for k, v in fill.items()}
    interleave(p, mf, fill)
    p(f's_mov_b32 s{sLEFT}, 7\ns_add_u32 s{sKA}, s{sKV}, {2*16384}\ns_mov_b32 s{sRD}, {2*16384}')
    p.loop_begin('A_loop', 7)
    def extra(F, n):
        pos = n - 2*PF
        F(pos - 1, lambda p: (p.need(('K', 4, 2, 1)), p.need(('V', 4, 1, 1)), p('s_barrier')))
        g0 = 2*(24-PF)
        for k, x in enumerate([f's_add_u32 s{sAD}, s{sAD}, 1', f's_and_b32 s{sT}, s{sAD}, 3', f's_cmp_eq_u32 s{sT}, 3', f's_mov_b32 s{sDL}, 0x4000', f's_cselect_b32 s{sDL}, -0xc000, s{sDL}',
                               f's_cmp_eq_u32 s{sT}, 0', f's_mov_b32 s{sT+1}, 0x4000', f's_cselect_b32 s{sT+1}, -0xc000, s{sT+1}']):
            F(g0 - 8 + k, x)
        for s in range(8): F(g0 + s, f'v_add_u32 v{vK+s}, s{sDL}, v{vK+s}')
        for dt in range(4): F(n - 2*PF + 1 + dt, f'v_add_u32 v{vV+dt}, s{sT+1}, v{vV+dt}')
        F(0, f's_add_u32 s{sT+2}, s{sRD}, 0x4000'); F(0, f's_and_b32 s{sT+2}, s{sT+2}, 0xffff')
        F(1, f's_cmp_le_u32 s{sLEFT}, 2'); F(1, f's_cselect_b32 s{sT+2}, s{sDM}, s{sT+2}')
        F(2, f's_cselect_b32 s{S_K+2}, 0, s{S_K+2}'); F(2, f's_add_u32 m0, s{sT+2}, s{sMK}')
        F(3, f's_add_u32 s{sT+3}, s{sKA}, 0x4000')
        for j in range(4): F(4 + 3*j, kdma(j, sT+3, ('K', 4, 3, 1)))
        F(14, f's_add_u32 s{sT+2}, s{sRD}, 0x10000'); F(14, f's_cmp_le_u32 s{sLEFT}, 1')
        F(15, f's_cselect_b32 s{sT+2}, s{sDM}, s{sT+2}'); F(15, f's_cselect_b32 s{S_V+2}, 0, s{S_V+2}')
        F(16, f's_add_u32 m0, s{sT+2}, s{sMK}')
        for j in range(4): F(17 + 3*j, vdma(j, sKA, ('V', 4, 2, 1)))
        F(27, f's_add_u32 s{sKA}, s{sKA}, 0x4000'); F(28, f's_add_u32 s{sRD}, s{sRD}, 0x4000'); F(29, f's_and_b32 s{sRD}, s{sRD}, 0xffff')
        F(30, f's_add_u32 m0, s{sMK}, s{sDM}')
        F(31, f'buffer_load_dwordx4 v{vPF+1}, s[{S_CW}:{S_CW+3}], s{sPF} offen lds')
        F(33, f'buffer_load_dwordx4 v{vPF+1}, s[{S_2}:{S_2+3}], s{sPF} offen lds')
        F(51, f'buffer_load_dwordx4 v{vPF+1}, s[{S_3}:{S_3+3}], s{sPF} offen lds')
        F(54, f'buffer_load_dwordx4 v{vPF}, s[{S_O}:{S_O+3}], s{sPF} offen lds')
        F(55, f's_add_u32 s{sPF}, s{sPF}, 1024')
        F(n-3, f's_sub_u32 s{sLEFT}, s{sLEFT}, 1'); F(n-2, f's_cmp_lg_u32 s{sLEFT}, 0')
    mf, fill = build([(2, 1, 0), (3, 2, 1)], lambda n: ('K', 4, 1, 1), lambda n: ('V', 4, 0, 1),
                     lambda k: kread(2, k, None), extra)
    fill.setdefault(len(mf)-1, []).append('s_cbranch_scc1 A_loop')
    interleave(p, mf, fill)
    p.loop_end()
    S_W = S_CW
    bKW, bKA, bCNT, bMB, bDL, bMS, bFW = 39, 41, 42, 43, 44, 45, 46
    vA, vB, RB = 128, 64, 4
    BSLOT = 28672
    def bdma(pc, tile, stride): return (f'buffer_load_dwordx4 v{bDW[pc]}, s[{S_W}:{S_W+3}], s{bKW} offen offset:{1024*(pc%4)} lds', ('B', 4, tile, stride))
    def bact(sub, b):
        r = vB + 16*(sub % RB) + 4*b
        return f'buffer_load_dwordx4 v[{r}:{r+3}], v{cAct+b}, s[{S_A}:{S_A+3}], s{bKA} offen offset:{1024*(sub % 2)}{SC}'
    for f in range(PF):
        for r in vread(14, f, ('V', 4, 7, 0)): emit(p, r)
    pre = Prog(); q = p; p = pre
    p(f's_cmp_ge_u32 s{sW}, 2\ns_cselect_b32 s{S_W}, s{pWU}, s{pWG}\ns_cselect_b32 s{S_W+1}, s{pWU+1}, s{pWG+1}')
    p(f's_mul_i32 s{bMB}, s{sW}, 7168\ns_mov_b32 s{bKW}, 0\ns_mov_b32 s{bKA}, 0')
    for tile in range(2):
        for d in range(7):
            if d % 4 == 0: p(f's_add_u32 m0, s{bMB}, {tile*BSLOT + 1024*d}\ns_nop 0')
            emit(p, bdma(d, tile, 0))
        p(f's_add_u32 s{bKW}, s{bKW}, {64*7168}')
    p = q
    pre_items = [(it.text, it.tag) for it in pre.items]
    def extraT(F, n):
        for k, x in enumerate(pre_items): F(min(n - 1, cfg.tail0 + k*(n - cfg.tail0)//len(pre_items)), x)
    mf, fill = build([(None, 15, 14), (None, None, 15)], None, lambda n: ('V', 4, 7, 0), lambda k: [], extraT)
    interleave(p, mf, fill)
    ts.stamp(p)
    for qt in range(2):
        l = vL + 2*qt
        p(f'v_add_f32 v{l}, v{l}, v{l+1}\nv_mov_b32 v{l+1}, v{l}\ns_nop 1\nv_permlane32_swap_b32 v{l}, v{l+1}\ns_nop 1\nv_add_f32 v{l}, v{l}, v{l+1}')
    p(f'v_max_f32 v33, v{vL}, v{vL+2}\nv_add_f32 v33, v33, v{vL}\nv_add_f32 v33, v33, v{vL+2}')
    p(f's_mov_b32 s{sT}, {f2u(2.0**cfg.thr):#x}\nv_cmp_nlt_f32 vcc, v33, s{sT}\ns_nop 1\ns_cbranch_vccnz A_slow')
    p('A_done:')
    for sub in range(cfg.ad):
        for b in range(4): p(bact(sub, b))
        if sub % 2 == 1: p(f's_add_u32 s{bKA}, s{bKA}, 2048')
    p(f'v_rcp_f32 v{vL}, v{vL}\nv_rcp_f32 v{vL+2}, v{vL+2}')
    srd(p, S_O, pWS, WS_O, 16 << 20)
    t = 32
    p(f's_lshl_b32 s{sT}, s{sRB}, 4\ns_lshl_b32 s{sT+1}, s{sW}, 2\ns_add_u32 s{sT}, s{sT}, s{sT+1}\ns_lshl_b32 s{sT}, s{sT}, 17\ns_lshl_b32 s{sT+1}, s{sCB}, 12\ns_add_u32 s{sT}, s{sT}, s{sT+1}')
    p(f'v_bfe_u32 v{t}, v1, 4, 1\nv_lshlrev_b32 v{t}, 17, v{t}\nv_lshrrev_b32 v{t+1}, 5, v1\nv_lshlrev_b32 v{t+1}, 8, v{t+1}\nv_and_b32 v{t+2}, 15, v1\nv_lshlrev_b32 v{t+2}, 4, v{t+2}')
    p(f'v_add3_u32 v{t}, v{t}, v{t+1}, v{t+2}\nv_add_u32 v8, s{sT}, v{t}\nv_add_u32 v9, 0x40000, v8')
    p(f'v_mov_b32 v{vL+1}, v{vL}\nv_mov_b32 v{vL+3}, v{vL+2}')
    n = 0
    for dt in range(4):
        for qt in range(2):
            o = (dt*2+qt)*16
            for half in range(2):
                x = 160 + 8*(n % 4); d = 192 + 4*(n % 8); n += 1
                for i in range(8): p(f'v_accvgpr_read_b32 v{x+i}, a{o+8*half+i}')
                for i in range(0, 8, 2): p(f'v_pk_mul_f32 v[{x+i}:{x+i+1}], v[{x+i}:{x+i+1}], v[{vL+2*qt}:{vL+2*qt+1}]')
                for i in range(0, 8, 2): p(f'v_cvt_pk_bf16_f32 v{d+i//2}, v{x+i}, v{x+i+1}')
                p(f'buffer_store_dwordx4 v[{d}:{d+3}], v{8+qt}, s[{S_O}:{S_O+3}], 0 offen offset:{dt*1024 + half*512}{SC}')
    ts.stamp(p)
    def bacc(t, b): c = (t*4+b)*4; return f'a[{c}:{c+3}]'
    P = cfg.P; NG = 14; UN = 2; NT = 16
    def btr(G, tile0, stride):
        step, g2 = divmod(G, 2*NG); s, t = divmod(g2, NG)
        off = (step % 2)*BSLOT + (t // 7)*14336 + s*32*224 + (t % 7)*32
        r = vA + 4*(G % RA)
        tag = ('B', 4, tile0 + step, stride)
        return [(f'ds_read_b64_tr_b16 v[{r}:{r+1}], v{bTr} offset:{off}', tag),
                (f'ds_read_b64_tr_b16 v[{r+2}:{r+3}], v{bTr} offset:{off + 8*224}', tag)]
    p.need(('B', 4, 0, 0)); p('s_barrier')
    for G in range(P):
        for f in btr(G, 0, 0): emit(p, f)
    for i in list(range(128)) + list(range(140, 224)): p(f'v_accvgpr_write_b32 a{i}, 0')
    p(f's_lshl_b32 s{bMS}, s{bMB}, 1\ns_add_u32 s{bMS}, s{bMS}, {2*BSLOT}\ns_add_u32 s{bMB}, s{bMB}, {2*BSLOT}')
    p(f's_mov_b32 s{bDL}, {2*BSLOT}\ns_mov_b32 s{bCNT}, {NT//UN}')
    p(f's_cmp_eq_u32 s{sW}, 1\ns_cselect_b32 s{bFW}, 7, -1\nv_add_u32 v10, {256*128}, v{vHF}')
    p('s_waitcnt vmcnt(16)')
    p.loop_begin('B_loop', NT//UN)
    mf = []; hi.clear(); lo.clear()
    def bvm(step, g2):
        s, t = divmod(g2, NG); sub = 2*step + s
        d = None; a = None
        if cfg.d0 <= g2 < cfg.d0 + 7*cfg.dstr and (g2 - cfg.d0) % cfg.dstr == 0: d = (g2 - cfg.d0)//cfg.dstr
        if cfg.a0 <= t < cfg.a0 + 4*cfg.astr and (t - cfg.a0) % cfg.astr == 0: a = (sub + cfg.ad, (t - cfg.a0)//cfg.astr)
        return d, a
    NGB = 2*NG*UN
    for G in range(NGB):
        step, g2 = divmod(G, 2*NG); s, t = divmod(g2, NG); sub = 2*step + s
        for b in range(4):
            ra = vA + 4*(G % RA); rb = vB + 16*(sub % RB) + 4*b
            mf.append(f'v_mfma_f32_16x16x32_bf16 {bacc(t,b)}, v[{ra}:{ra+3}], v[{rb}:{rb+3}], {bacc(t,b)}')
        i0 = 4*G; Gn = G + P
        if Gn % (2*NG) == 0:
            stepn = Gn // (2*NG)
            H(i0-1, lambda p, stepn=stepn: (p.need(('B', 4, stepn, UN)), p('s_barrier')))
            if stepn % 2 == 0:
                H(i0-2, f'v_add_u32 v{bTr}, s{bDL}, v{bTr}'); H(i0+2, f's_sub_u32 s{bDL}, 0, s{bDL}')
        r0, r1 = btr(Gn % NGB, (Gn // NGB)*UN, UN)
        H(i0, r0); H(i0+1, r1)
        pc, a = bvm(step, g2)
        if a is not None:
            L(i0, bact(*a))
            if a[1] == 3 and a[0] % 2 == 1: L(i0, f's_add_u32 s{bKA}, s{bKA}, 2048')
        if pc is not None:
            if pc % 4 == 0: L(i0, f's_add_u32 m0, s{bMB}, {(step % 2)*BSLOT + 1024*pc}'); L(i0, m0gap)
            L(i0, bdma(pc, step + 2, UN))
            if pc == 6:
                L(i0, f's_add_u32 s{bKW}, s{bKW}, {64*7168}')
                if step == 1: L(i0, f's_sub_u32 s{bMB}, s{bMS}, s{bMB}')
    H(10, f's_cmp_eq_u32 s{bCNT}, s{bFW}\ns_cbranch_scc0 B_noflag\nbuffer_store_dwordx2 v[2:3], v10, s[{S_FL}:{S_FL+3}], 0 offen sc1 ;cond\nB_noflag:')
    H(len(mf)-3, f's_sub_u32 s{bCNT}, s{bCNT}, 1'); H(len(mf)-2, f's_cmp_lg_u32 s{bCNT}, 0')
    H(len(mf)-1, 's_cbranch_scc1 B_loop')
    fill = spread(hi, lo, len(mf), cfg.cap, 16, cost=lambda i: 1 if i % 4 == 3 else 0)
    fix_m0(fill, len(mf)); chk_tail(fill, len(mf))
    interleave(p, mf, fill)
    p.loop_end()
    sGM, sKH, sRC, sCC, cST = 39, 41, 43, 44, 40
    p(f's_bfe_u32 s{sGM}, s2, 0x10002\ns_bfe_u32 s{sKH}, s2, 0x10001\ns_and_b32 s{sRC}, s2, 1\ns_lshl_b32 s{sRC}, s{sRC}, 2\ns_bfe_u32 s{sT}, s2, 0x20003\ns_add_u32 s{sRC}, s{sRC}, s{sT}\ns_lshr_b32 s{sCC}, s2, 5')
    x_dma_addr(11, sCC, [k_o, k_h], f's_cmp_eq_u32 s{sGM}, 1')
    p(f's_cmp_eq_u32 s{sGM}, 1')
    p(f's_mov_b32 s{cST}, {128*1024}\ns_cselect_b32 s{cST}, s{cST}, {112*1024}\ns_cselect_b32 s{cCNT}, 8, 7')
    p('s_waitcnt vmcnt(0) lgkmcnt(0)\ns_barrier')
    ts.stamp(p)
    p(f's_cselect_b32 s{S_CW}, s{pWO}, s{pWD}\ns_cselect_b32 s{S_CW+1}, s{pWO+1}, s{pWD+1}')
    p(f's_mul_i32 s{cKA}, s{sKH}, s{cST}\ns_lshl_b32 s{cKW}, s{cKA}, 5\ns_lshr_b32 s{cKA}, s{cKA}, 1')
    p(f's_lshl_b32 s{sT}, s{cST}, 5\ns_add_u32 s{S_CW+2}, s{cKW}, s{sT}')
    p(f's_lshl_b32 s{cMW}, s{sW}, 13\ns_mov_b32 s{cKS}, {128*2048}\ns_mov_b32 s{sPH}, 1')
    cq = []
    for tile in range(2):
        for d in range(8):
            g = []
            if d % 4 == 0: g += [f's_add_u32 m0, s{cMW}, {tile*SLOT + 1024*d}', 's_nop 0']
            g.append(cdma(d, 2000 + tile, 0))
            if d == 7: g.append(f's_add_u32 s{cKW}, s{cKW}, s{cKS}')
            cq.append(g)
    S_H = S_2
    srd(p, S_H, pWS, WS_H, 14 << 20)
    k1 = -2*math.sqrt(2/math.pi)*math.log2(math.e); k2 = k1*0.044715
    vC = 28; vHa = 12; vHs = 16
    p(f'v_mov_b32 v{vC}, {f2u(k1):#x}\nv_mov_b32 v{vC+1}, {f2u(k1):#x}\nv_mov_b32 v{vC+2}, {f2u(k2):#x}\nv_mov_b32 v{vC+3}, {f2u(k2):#x}')
    p(f's_lshl_b32 s{sT+2}, s{sRB}, 4\ns_lshl_b32 s{sT+3}, s{sW}, 2\ns_add_u32 s{sT+2}, s{sT+2}, s{sT+3}\ns_mul_i32 s{sT+2}, s{sT+2}, {112*1024}')
    p(f's_mul_i32 s{sT+3}, s{sCB}, 7\ns_add_u32 s{sT+3}, s{sT+3}, 1\ns_lshr_b32 s{sT+3}, s{sT+3}, 1\ns_lshl_b32 s{sT+3}, s{sT+3}, 10')
    p(f's_add_u32 s{sT+2}, s{sT+2}, s{sT+3}')
    p(f'v_lshlrev_b32 v24, 4, v1\nv_add_u32 v25, 0x1000, v24\nv_add_u32 v{vHa}, s{sT+2}, v24')
    for b in range(1, 4): p(f'v_add_u32 v{vHa+b}, {b*112*1024:#x}, v{vHa}')
    p(f's_and_b32 s{sT+3}, s{sCB}, 1\ns_cmp_eq_u32 s{sT+3}, 0\ns_mov_b32 s{sT+4}, 3072\ns_cselect_b32 s{sT+4}, s{sT+4}, -1016')
    for b in range(4): p(f'v_add_u32 v{vHs+b}, s{sT+4}, v{vHa+b}')
    accr = lambda t, b, r: f'a{(t*4+b)*4+r}'
    def gelu_tiles(tiles):
        Xs = [96 + 12*i for i in range(len(tiles))]
        pk = lambda r: f'v[{r}:{r+1}]'
        for (t, b, d), X in zip(tiles, Xs):
            for r in range(4): p(f'v_accvgpr_read_b32 v{X+r}, {accr(t,b,r)}')
        for X in Xs:
            for r in (0, 2): p(f'v_pk_mul_f32 {pk(X+8+r)}, {pk(X+r)}, {pk(X+r)}')
        for X in Xs:
            for r in (0, 2): p(f'v_pk_fma_f32 {pk(X+8+r)}, {pk(X+8+r)}, {pk(vC+2)}, {pk(vC)}')
        for X in Xs:
            for r in (0, 2): p(f'v_pk_mul_f32 {pk(X+8+r)}, {pk(X+8+r)}, {pk(X+r)}')
        for (t, b, d), X in zip(tiles, Xs):
            for r in range(4): p(f'v_exp_f32 v{X+8+r}, v{X+8+r}')
            for r in range(4): p(f'v_accvgpr_read_b32 v{X+4+r}, {accr(t+7,b,r)}')
        for X in Xs:
            for r in (0, 2): p(f'v_pk_add_f32 {pk(X+8+r)}, {pk(X+8+r)}, 1.0 op_sel_hi:[1,0]')
        for X in Xs:
            for r in range(4): p(f'v_rcp_f32 v{X+8+r}, v{X+8+r}')
            for r in (0, 2): p(f'v_pk_mul_f32 {pk(X+4+r)}, {pk(X+4+r)}, {pk(X+r)}')
        for X in Xs:
            for r in (0, 2): p(f'v_pk_mul_f32 {pk(X+4+r)}, {pk(X+4+r)}, {pk(X+8+r)}')
        for (t, b, d), X in zip(tiles, Xs):
            p(f'v_cvt_pk_bf16_f32 v{d}, v{X+4}, v{X+5}\nv_cvt_pk_bf16_f32 v{d+1}, v{X+6}, v{X+7}')
    for par in range(2):
        if par == 0: p('s_cbranch_scc0 B_epi_odd')
        else: p.cond(True); p('B_epi_odd:')
        n = 0; cqq = list(cq)
        def cnext(k):
            for _ in range(k):
                if cqq:
                    for x in cqq.pop(0): emit(p, x)
        for b in range(4):
            for pr in range(3):
                d = 64 + 4*(n % 8); n += 1
                cnext(2)
                gelu_tiles([(2*pr + par, b, d), (2*pr + 1 + par, b, d + 2)])
                p(f'buffer_store_dwordx4 v[{d}:{d+3}], v{vHa+b}, s[{S_H}:{S_H+3}], 0 offen offset:{1024*pr}{SC}')
        for b in range(0, 4, 2):
            d = 64 + 4*(n % 8); n += 1
            gelu_tiles([(6 if par == 0 else 0, b, d), (6 if par == 0 else 0, b+1, d+2)])
            p(f'buffer_store_dwordx2 v[{d}:{d+1}], v{vHs+b}, s[{S_H}:{S_H+3}], 0 offen{SC}')
            p(f'buffer_store_dwordx2 v[{d+2}:{d+3}], v{vHs+b+1}, s[{S_H}:{S_H+3}], 0 offen{SC}')
        if par == 0: p('s_branch B_epi_done')
    p.cond(False)
    p('B_epi_done:')
    ts.stamp(p)
    S_X, S_OUT, S_P = S_K, S_3, S_V
    p(f's_cmp_eq_u32 s{sGM}, 1')
    p(f's_mov_b32 s{sT}, {WS_O}\ns_cselect_b32 s{sT}, s{sT}, {WS_H}')
    p(f's_mov_b32 s{sT+1}, {16<<20}\ns_cselect_b32 s{S_A+2}, s{sT+1}, {14<<20}')
    p(f's_add_u32 s{S_A}, s{pWS}, s{sT}\ns_addc_u32 s{S_A+1}, s{pWS+1}, 0')
    srd(p, S_X, pX, 0, 4 << 20); srd(p, S_OUT, pOUT, 0, 4 << 20); srd(p, S_P, pWS, WS_P, 12 << 20)
    p(f's_lshl_b32 s{sT}, s{sRC}, 4\ns_lshl_b32 s{sT+2}, s{sW}, 2\ns_add_u32 s{sT}, s{sT}, s{sT+2}\ns_mul_i32 s{sT+2}, s{sT}, s{cST}')
    p(f'v_add_u32 v{cAct}, s{sT+2}, v24')
    for b in range(1, 4): p(f'v_add_u32 v{cAct+b}, s{cST}, v{cAct+b-1}')
    p(f's_and_b32 s{sT+4}, s{sKH}, s{sGM}\ns_lshl_b32 s{sT+4}, s{sT+4}, 2')
    x_tr_addr(sT+4)
    sPS, sPR, sD0 = 32, 33, 34
    vX, vO = 96, 60
    sID = sT
    p(f's_lshl_b32 s{sID}, s{sRC}, 3\ns_add_u32 s{sID}, s{sID}, s{sCC}\ns_lshl_b32 s{sID}, s{sID}, 1')
    p(f's_lshl_b32 s{sT+3}, s{sW}, 13\ns_add_u32 s{sT+1}, s{sID}, s{sKH}')
    p(f's_lshl_b32 s{sPS}, s{sT+1}, 15\ns_add_u32 s{sPS}, s{sPS}, s{sT+3}\ns_xor_b32 s{sPR}, s{sPS}, 0x8000')
    p(f's_lshl_b32 s{sD0}, s{sID}, 16\ns_add_u32 s{sD0}, s{sD0}, s{sT+3}\ns_add_u32 s{sD0}, s{sD0}, {4<<20}')
    p(f's_lshl_b32 s{sT+2}, s{sKH}, 16\ns_lshl_b32 s{sT+4}, s{sKH}, 15\ns_cmp_eq_u32 s{sGM}, 1\ns_cselect_b32 s{sT+2}, s{sT+4}, s{sT+2}\ns_add_u32 s{sD0}, s{sD0}, s{sT+2}')
    vFP, vFQ, vFD, vFW = 8, 9, 10, 11
    p(f's_lshl_b32 s{sT+2}, s{sGM}, 7\ns_add_u32 s{sT+2}, s{sT+2}, s{sT+1}\ns_add_u32 s{sT+2}, s{sT+2}, 768\ns_lshl_b32 s{sT+2}, s{sT+2}, 7')
    p(f'v_mov_b32 v{vFP}, s{sT+2}\ns_xor_b32 s{sT+2}, s{sT+2}, 128\nv_mov_b32 v{vFQ}, s{sT+2}')
    p(f's_add_u32 s{sT+2}, s{sID}, 768\ns_lshl_b32 s{sT+2}, s{sT+2}, 7\nv_and_b32 v{vFD}, 1, v1\nv_lshl_add_u32 v{vFD}, v{vFD}, 7, s{sT+2}')
    p(f's_cmp_eq_u32 s{sGM}, 1\ns_cselect_b32 s{S_X+2}, s{S_X+2}, 0')
    p(f's_lshl_b32 s{sT+2}, s{sGM}, 3\ns_add_u32 s{sT+2}, s{sT+2}, s{sRC}\ns_add_u32 s{sT+2}, s{sT+2}, 8\ns_lshl_b32 s{sT+2}, s{sT+2}, 12\ns_lshl_b32 s{sT+3}, s{sKH}, 11\ns_add_u32 s{sT+2}, s{sT+2}, s{sT+3}')
    p(f'v_and_b32 v{vFW}, 15, v1\nv_lshl_add_u32 v{vFW}, v{vFW}, 7, s{sT+2}')
    p(f's_lshl_b32 s{sT+2}, s{sRC}, 8\ns_lshl_b32 s{sT+3}, s{sW}, 6\ns_add_u32 s{sT+2}, s{sT+2}, s{sT+3}\ns_lshl_b32 s{sT+2}, s{sT+2}, 11')
    p(f's_lshl_b32 s{sT+3}, s{sCC}, 8\ns_add_u32 s{sT+2}, s{sT+2}, s{sT+3}\ns_lshl_b32 s{sT+3}, s{sKH}, 7\ns_add_u32 s{sT+2}, s{sT+2}, s{sT+3}')
    t = 32
    p(f'v_and_b32 v{t}, 15, v1\nv_lshlrev_b32 v{t}, 11, v{t}\nv_add_u32 v{t}, s{sT+2}, v{t}\nv_lshrrev_b32 v{t+1}, 4, v1')
    p(f'v_and_b32 v{vO}, 1, v{t+1}\nv_lshlrev_b32 v{vO}, 5, v{vO}\nv_lshrrev_b32 v{vO+1}, 1, v{t+1}\nv_lshlrev_b32 v{vO+1}, 4, v{vO+1}\nv_add3_u32 v{vO}, v{vO}, v{vO+1}, v{t}')
    for b in range(1, 4): p(f'v_add_u32 v{vO+b}, 0x8000, v{vO+b-1}')
    for i in range(64): p(f'v_mov_b32 v{cC+i}, 0')
    p('s_waitcnt vmcnt(0)\ns_barrier')
    ts.stamp(p)
    p(f's_cmp_eq_u32 s{sW}, 1\ns_cbranch_scc0 L_oh_got')
    p.cond(True)
    p(f'buffer_store_dwordx2 v[2:3], v{vHF}, s[{S_FL}:{S_FL+3}], 0 offen sc1')
    poll('L_oh_poll', vFW, 'L_oh_got')
    p.cond(False)
    p('L_oh_got:\ns_barrier')
    def xloads():
        for m in range(2):
            for b in range(4):
                r = vX + (m*4+b)*4
                p(f'buffer_load_dwordx4 v[{r}:{r+3}], v{vO+b}, s[{S_X}:{S_X+3}], 0 offen offset:{64*m}')
        for i in range(64, 128): p(f'v_mov_b32 v{cC+i}, 0')
    P = cfg.cP
    x_enter(2000, xloads, 8)
    ts.stamp(p)
    p('s_branch X_loop')
    p.again(XL, 8)
    p('C_epi:')
    p('s_waitcnt lgkmcnt(0)\ns_nop 4')
    ts.stamp(p)
    vC = cC; vR = 224; vD0 = 192; vD1 = 224
    p(f's_cmp_eq_u32 s{sGM}, 1\ns_cbranch_scc1 C_s_epi')
    p.cond(True)
    for i in range(16):
        c = vC + 8*i; d = 64 + 4*(i % 8)
        for r in range(4): p(f'v_cvt_pk_bf16_f32 v{d+r}, v{c+2*r}, v{c+2*r+1}')
        if i == 8: p(f's_add_u32 s{sD0}, s{sD0}, 0x8000')
        p(f'buffer_store_dwordx4 v[{d}:{d+3}], v{24 + (i%8)//4}, s[{S_P}:{S_P+3}], s{sD0} offen offset:{1024*(i%4)} sc1')
    p('s_waitcnt vmcnt(0)\ns_barrier')
    ts.stamp(p); ts.n -= 1 if cfg.ts else 0
    p(f's_cmp_eq_u32 s{sW}, 1\ns_cbranch_scc0 C_fin')
    p(f'buffer_store_dwordx2 v[2:3], v{vFP}, s[{S_FL}:{S_FL+3}], 0 offen sc1')
    p('s_branch C_fin')
    p.cond(False)
    p('C_s_epi:')
    for i in range(8):
        c = vC + 64 + 8*i; d = vC + 64 + 4*i
        for r in range(4): p(f'v_cvt_pk_bf16_f32 v{d+r}, v{c+2*r}, v{c+2*r+1}')
        p(f'buffer_store_dwordx4 v[{d}:{d+3}], v{24 + i//4}, s[{S_P}:{S_P+3}], s{sPS} offen offset:{1024*(i%4)} sc1')
    p('s_waitcnt vmcnt(0)\ns_barrier')
    p(f's_cmp_eq_u32 s{sW}, 1\ns_cbranch_scc0 C_got')
    p.cond(True)
    p(f'buffer_store_dwordx2 v[2:3], v{vFP}, s[{S_FL}:{S_FL+3}], 0 offen sc1')
    poll('C_poll', vFQ, 'C_got')
    p.cond(False)
    p('C_got:\ns_barrier')
    for i in range(8):
        c = vR + 4*i
        p(f'buffer_load_dwordx4 v[{c}:{c+3}], v{24 + i//4}, s[{S_P}:{S_P+3}], s{sPR} offen offset:{1024*(i%4)} sc1')
    sMK_ = sT + 3
    p(f's_mov_b32 s{sMK_}, 0xffff0000')
    for i2 in range(8):
        c = vC + 8*i2; rr = vR + 4*i2; tt = 32 + 8*(i2 % 2)
        for r in range(4): p(f'v_lshlrev_b32 v{tt+2*r}, 16, v{rr+r}\nv_and_b32 v{tt+2*r+1}, s{sMK_}, v{rr+r}')
        for r in range(0, 8, 2): p(f'v_pk_add_f32 v[{c+r}:{c+r+1}], v[{c+r}:{c+r+1}], v[{tt+r}:{tt+r+1}]')
    p(f's_cmp_eq_u32 s{sW}, 1\ns_cbranch_scc0 C_got2')
    p.cond(True)
    poll('C_poll2', vFD, 'C_got2')
    p.cond(False)
    p('C_got2:\ns_barrier')
    ts.stamp(p)
    order = []
    for m in range(2):
        for bp in range(2):
            for h in range(2): order.append((2*m+h)*2 + bp)
    p(f's_add_u32 s{sT+4}, s{sD0}, 0x10000')
    for i in order:
        p(f'buffer_load_dwordx4 v[{vD0+4*i}:{vD0+4*i+3}], v{24 + i//4}, s[{S_P}:{S_P+3}], s{sD0} offen offset:{1024*(i%4)} sc1')
        p(f'buffer_load_dwordx4 v[{vD1+4*i}:{vD1+4*i+3}], v{24 + i//4}, s[{S_P}:{S_P+3}], s{sT+4} offen offset:{1024*(i%4)} sc1')
    p(f'v_mov_b32 v28, {f2u(-math.log2(math.e)):#x}\nv_mov_b32 v29, v28')
    pk = lambda r: f'v[{r}:{r+1}]'
    for m in range(2):
        for b in range(4):
            o = 64 + 4*((m*4+b) % 4); xr = vX + (m*4+b)*4
            c0 = vC + ((2*m)*4+b)*4; c1 = vC + ((2*m+1)*4+b)*4
            A, B, E = 32, 40, 48
            for h in range(2):
                k = ((2*m+h)*4+b)*2
                for q in range(2):
                    p(f'v_lshlrev_b32 v{A+4*h+2*q}, 16, v{vD0+k+q}\nv_and_b32 v{A+4*h+2*q+1}, s{sMK_}, v{vD0+k+q}')
                    p(f'v_lshlrev_b32 v{B+4*h+2*q}, 16, v{vD1+k+q}\nv_and_b32 v{B+4*h+2*q+1}, s{sMK_}, v{vD1+k+q}')
            for r in range(0, 8, 2): p(f'v_pk_add_f32 {pk(A+r)}, {pk(A+r)}, {pk(B+r)}')
            for r in range(0, 8, 2): p(f'v_pk_mul_f32 {pk(B+r)}, {pk(A+r)}, v[28:29]')
            for r in range(8): p(f'v_exp_f32 v{B+r}, v{B+r}')
            for r in range(0, 8, 2):
                c = (c0, c1)[r//4] + r % 4
                p(f'v_pk_mul_f32 {pk(A+r)}, {pk(A+r)}, {pk(c)}')
            for r in range(0, 8, 2): p(f'v_pk_add_f32 {pk(B+r)}, {pk(B+r)}, 1.0 op_sel_hi:[1,0]')
            for r in range(8): p(f'v_rcp_f32 v{B+r}, v{B+r}')
            for q in range(4): p(f'v_lshlrev_b32 v{E+2*q}, 16, v{xr+q}\nv_and_b32 v{E+2*q+1}, s{sMK_}, v{xr+q}')
            for r in range(0, 8, 2): p(f'v_pk_mul_f32 {pk(A+r)}, {pk(A+r)}, {pk(B+r)}')
            p('s_nop 1')
            for r in range(4): p(f'v_permlane16_swap_b32 v{A+r}, v{A+4+r}')
            p('s_nop 0')
            for r in range(0, 8, 2): p(f'v_pk_add_f32 {pk(E+r)}, {pk(E+r)}, {pk(A+r)}')
            for q in range(4): p(f'v_cvt_pk_bf16_f32 v{o+q}, v{E+2*q}, v{E+2*q+1}')
            p(f'buffer_store_dwordx4 v[{o}:{o+3}], v{vO+b}, s[{S_OUT}:{S_OUT+3}], 0 offen offset:{64*m} {cfg.osc}')
    p('C_fin:')
    ts.stamp(p)
    ts.dump(p, pWS)
    p('K_end:\ns_endpgm')
    autowait(p); check(p, 'main')

    z = Prog(); main = p; p = z
    p('A_slow:')
    p('s_waitcnt vmcnt(0) lgkmcnt(0)')
    srd(p, S_K, pK, 0, 2 << 20); srd(p, S_V, pV, 0, 2 << 20)
    zK, zD, zV = 13, 14, 21
    zKV, zN = sT, sT+1
    p(f's_lshr_b32 s{zKV}, s{sCB}, 3\ns_lshl_b32 s{zKV}, s{zKV}, 19\ns_add_u32 s{zKV}, s{zKV}, {1536*256}')
    p(f'v_and_b32 v{zK}, 31, v1\nv_lshlrev_b32 v{zK}, 8, v{zK}\nv_lshrrev_b32 v36, 5, v1\nv_lshl_add_u32 v{zK}, v36, 4, v{zK}')
    p(f'v_lshrrev_b32 v36, 4, v1\nv_and_b32 v37, 15, v1\nv_lshlrev_b32 v38, 2, v36\nv_xor_b32 v37, v37, v38\nv_lshlrev_b32 v36, 8, v36\nv_lshl_add_u32 v{zD}, v37, 4, v36\nv_add_u32 v{zD+1}, 0x1000, v{zD}')
    t = 36
    p(f'v_lshrrev_b32 v{t}, 5, v1\nv_lshlrev_b32 v{t}, 2, v{t}\nv_bfe_u32 v{t+1}, v1, 2, 2\nv_add_u32 v{t}, v{t}, v{t+1}\nv_lshlrev_b32 v{t}, 8, v{t}')
    p(f'v_bfe_u32 v{t+2}, v1, 4, 1\nv_lshlrev_b32 v{t+2}, 5, v{t+2}\nv_and_b32 v{t+3}, 3, v1\nv_lshlrev_b32 v{t+3}, 3, v{t+3}\nv_add3_u32 v{t}, v{t}, v{t+2}, v{t+3}')
    p(f's_lshl_b32 s{sT+2}, s{sW}, 13\ns_add_u32 s{sT+2}, s{sT+2}, 0x20000\nv_add_u32 v{t}, s{sT+2}, v{t}')
    for dt in range(4): p(f'v_xor_b32 v{t+2}, {dt}, v{t+1}\nv_lshl_add_u32 v{zV+dt}, v{t+2}, 6, v{t}')
    def kglob():
        for s in range(8): p(f'buffer_load_dwordx4 a[{aF+4*s}:{aF+4*s+3}], v{zK}, s[{S_K}:{S_K+3}], s{zN} offen offset:{32*s}')
    p(f'v_mov_b32 v32, 0xff800000\nv_mov_b32 v34, 0xff800000\ns_mov_b32 s{zN}, s{zKV}\ns_mov_b32 s{sT+3}, 16')
    p.loop_begin('Z1_loop', 16, align=False)
    kglob()
    for s in range(8):
        for qt in range(2): p(qk(0, s, qt, zero))
    p('s_nop 7\ns_nop 3')
    rowmax(0, False)
    p(f's_add_u32 s{zN}, s{zN}, 8192\ns_sub_u32 s{sT+3}, s{sT+3}, 1\ns_cmp_lg_u32 s{sT+3}, 0\ns_cbranch_scc1 Z1_loop')
    p.loop_end()
    set_negm()
    for i in range(128): p(f'v_accvgpr_write_b32 a{i}, 0')
    for i in range(4): p(f'v_mov_b32 v{vL+i}, 0')
    p(f's_mov_b32 s{zN}, s{zKV}\ns_mov_b32 s{sT+3}, 16')
    p.loop_begin('Z2_loop', 16, align=False)
    kglob()
    for j in range(8):
        if j % 4 == 0: p(f's_add_u32 m0, s{sT+2}, {1024*j}\ns_nop 0')
        p(f'buffer_load_dwordx4 v{zD + j//4}, s[{S_V}:{S_V+3}], s{zN} offen offset:{1024*(j%4)} lds')
    for s in range(8):
        for qt in range(2): p(qk(0, s, qt, negm))
    p('s_nop 7\ns_nop 3')
    for ops in softmax_ops(0):
        for o in ops: p(o)
    p('s_waitcnt vmcnt(0)')
    for f in range(8):
        for r in vread(0, f, None, base=zV, off0=0): emit(p, r)
    for f in range(8):
        for qt in range(2): p(pv(0, f, qt))
    p(f's_add_u32 s{zN}, s{zN}, 8192\ns_sub_u32 s{sT+3}, s{sT+3}, 1\ns_cmp_lg_u32 s{sT+3}, 0\ns_cbranch_scc1 Z2_loop')
    p.loop_end()
    p('s_nop 7\ns_nop 7')
    for qt in range(2):
        l = vL + 2*qt
        p(f'v_add_f32 v{l}, v{l}, v{l+1}\nv_mov_b32 v{l+1}, v{l}\ns_nop 1\nv_permlane32_swap_b32 v{l}, v{l+1}\ns_nop 1\nv_add_f32 v{l}, v{l}, v{l+1}')
    p('s_branch A_done')
    autowait(z); check(z, 'slow')
    return main.text() + '\n' + z.text() + '\nK_last:'

def main():
    cfg = Cfg()
    cfg.ts = 1; cfg.P = 4; cfg.late1 = 1
    cfg.d0 = 0; cfg.dstr = 3; cfg.a0 = 1; cfg.astr = 3; cfg.ad = 3; cfg.PF = 3; cfg.cap = 2
    cfg.cad = 5; cfg.cdstr = 4; cfg.cP = 4; cfg.thr = 30; cfg.slp = 1; cfg.osc = ''; cfg.tail0 = 8
    for a in sys.argv[2:]:
        k, v = a.split('='); setattr(cfg, k, int(v) if v.lstrip('-').isdigit() else v)
    kn = NAME + '_kernel'
    hdr = (f'; @launch grid=(256,1,1) block=(256,1,1) lds={LDS_TOT}\n'
           '.amdgcn_target "amdgcn-amd-amdhsa--gfx950"\n')
    s = hdr + kernel_head(kn) + gen(cfg) + '\n' + kernel_desc(kn, 512, 256)
    open(sys.argv[1], 'w').write(s)
if __name__ == '__main__': main()
```

```python
import sys, struct, math
from dsl import *
from gen2 import (f2u, srd, kernel_head, kernel_desc, emit, interleave, spread, m0gap, fix_m0, chk_tail, Cfg)

NAME = 'recurrent_scan__sliding_block_cached__geglu_ffn__prompt'
WS_XN = 0
WS_O  = 5 << 20
WS_H  = 23 << 20
WS_G  = 36 << 20
WS_FL = 40 << 20
WS_ST = 41 << 20
WS_TS = 48 << 20
WS_P  = 64 << 20
HS = 22528; NHS = 7
LDS_SCR = NHS*HS
LDS_TOT = 163840

class TS:
    def __init__(self, on): self.on = on; self.n = 0
    def text(self, grp):
        if not self.on & grp or self.n >= 14: return None
        s = 88 + self.n; self.n += 1
        clk = 's_memtime' if self.on & 8 else 's_memrealtime'
        return f's_waitcnt lgkmcnt(0)\n{clk} s[4:5]\ns_waitcnt lgkmcnt(0)\ns_mov_b32 s{s}, s4'
    def stamp(self, p, grp=1):
        t = self.text(grp)
        if t: p(t)
    def old(self, p):
        if not self.on: return
        s = 88 + self.n; self.n += 1;
        if s >= 102: return
        p(f's_waitcnt lgkmcnt(0)\ns_memrealtime s[4:5]\ns_waitcnt lgkmcnt(0)\ns_mov_b32 s{s}, s4')
    def dump(self, p, wsptr):
        if not self.on: return
        if self.on & 16:
            p('s_load_dwordx2 s[12:13], s[0:1], 80\ns_waitcnt lgkmcnt(0)\ns_mov_b32 s14, 256\ns_mov_b32 s15, 0x20000\nv_mov_b32 v8, 0\ns_mov_b64 exec, 1')
            for i in range(min(self.n, 14)):
                p(f's_sub_u32 s4, s{88+i}, s6\nv_mov_b32 v4, s4\nbuffer_atomic_smax v4, v8, s[12:15], 0 offen offset:{8+4*i}\ns_nop 1')
            return
        srd(p, 12, wsptr, WS_TS, 1 << 20)
        p('s_lshl_b32 s3, s2, 8\ns_lshl_b32 s4, s36, 6\ns_add_u32 s3, s3, s4\nv_mov_b32 v8, s3')
        p('s_getreg_b32 s4, hwreg(HW_REG_XCC_ID, 0, 4)\nv_mov_b32 v4, s4\nbuffer_store_dword v4, v8, s[12:15], 0 offen offset:60\ns_nop 1')
        for i in range(min(self.n, 14)):
            p(f'v_mov_b32 v4, s{88+i}\nbuffer_store_dword v4, v8, s[12:15], 0 offen offset:{4*i}\ns_nop 1')

def gen(cfg, ND, NSS=8):
    SFX = f'_{ND}{NSS}'
    OST = 131072 + cfg.opad; XST = 32768 + cfg.xpad; HST = 112*1024 + cfg.hpad
    p = Prog(); ts = TS(cfg.ts)
    SC = ' sc1'; LS = '' if cfg.loc else ' sc1'
    assert cfg.xmap == 'c' or not cfg.loc
    pX, pK, pV, pWQ, pWO, pWG, pWU, pWD, pOUT, pDBG, pWS = 64, 66, 68, 70, 72, 76, 78, 80, 82, 84, 86
    S_W, S_Q, S_XN, S_H, S_K, S_V, S_O = 8, 12, 16, 20, 24, 28, 32
    S_FL, S_DB = 56, 60
    sW, sRB, sCB, sKW, sKQ, sKA, sCNT = 36, 37, 38, 39, 40, 41, 42
    sMW, sMQ, sRD, sDL, sLEFT, sLEFA, sRW, sRQ = 43, 44, 45, 46, 47, 48, 49, 3
    sT = 50
    p('K_first:\ns_cmp_ge_u32 s2, 256\ns_cbranch_scc1 K_end')
    if cfg.perm: p(f's_lshr_b32 s3, s2, 3\ns_and_b32 s3, s3, 7\ns_mul_i32 s3, s3, {cfg.perm}\ns_and_b32 s3, s3, 7\ns_xor_b32 s2, s2, s3')
    p('s_load_dwordx16 s[64:79], s[0:1], 0\ns_load_dwordx8 s[80:87], s[0:1], 64')
    p(f'v_lshrrev_b32 v2, 6, v0\nv_and_b32 v1, 63, v0\nv_readfirstlane_b32 s{sW}, v2')
    p(f's_and_b32 s{sT}, s2, 7\ns_lshr_b32 s{sT+1}, s2, 3')
    if cfg.xmap == 'c':
        p(f's_and_b32 s{sRB}, s{sT}, 1\ns_lshl_b32 s{sRB}, s{sRB}, 2\ns_and_b32 s{sT+2}, s{sT+1}, 3\ns_add_u32 s{sRB}, s{sRB}, s{sT+2}')
        p(f's_lshr_b32 s{sCB}, s{sT}, 1\ns_lshl_b32 s{sCB}, s{sCB}, 3\ns_lshr_b32 s{sT+2}, s{sT+1}, 2\ns_add_u32 s{sCB}, s{sCB}, s{sT+2}')
    else:
        p(f's_and_b32 s{sRB}, s{sT+1}, 7\ns_lshl_b32 s{sCB}, s{sT}, 2\ns_lshr_b32 s{sT+2}, s{sT+1}, 3\ns_add_u32 s{sCB}, s{sCB}, s{sT+2}')
    vAct, vDW, vDQ, vTr, vTq, vT = 4, 8, 15, 19, 20, 28
    vA, RA = 32, 8
    vB, RB = 64, 4
    def acc(t, b):
        if t < 16: c = (t*4+b)*4; return f'a[{c}:{c+3}]'
        c = 160 + ((t-16)*4+b)*4; return f'v[{c}:{c+3}]'
    def accr(t, b, r):
        if t < 16: return f'a{(t*4+b)*4+r}'
        return f'v{160+((t-16)*4+b)*4+r}'
    vLX, vLO, vLS = 128, 129, 130
    t = 132
    p(f's_lshl_b32 s{sT}, s{sRB}, 8\ns_lshl_b32 s{sT+1}, s{sCB}, 3\ns_add_u32 s{sT}, s{sT}, s{sT+1}\ns_lshl_b32 s{sT}, s{sT}, 11\ns_lshl_b32 s{sT+1}, s{sW}, 9\ns_add_u32 s{sT}, s{sT}, s{sT+1}')
    p(f'v_and_b32 v{t}, 7, v1\nv_bfe_u32 v{t+1}, v1, 3, 1\nv_lshrrev_b32 v{t+2}, 4, v1')
    p(f'v_lshlrev_b32 v{t+3}, 11, v{t}\nv_lshlrev_b32 v{t+4}, 8, v{t+1}\nv_lshlrev_b32 v{t+5}, 4, v{t+2}\nv_add3_u32 v{t+3}, v{t+3}, v{t+4}, v{t+5}\nv_add_u32 v{vLX}, s{sT}, v{t+3}')
    KW, KQ, KA, NT = 64*7168, 64*8192, 2048, 16
    sNO = 6
    vRX = 140; RAWL = 4*HS
    vSR = 139
    def late_addr():
        t = 132
        p(f's_lshl_b32 s{sT}, s{sRB}, 4\ns_lshr_b32 s{sT+1}, s{sCB}, 1\ns_add_u32 s{sT}, s{sT}, s{sT+1}\ns_mul_i32 s{sT}, s{sT}, {XST}\ns_lshl_b32 s{sT+1}, s{sW}, 13\ns_add_u32 s{sT}, s{sT}, s{sT+1}')
        p(f's_and_b32 s{sT+1}, s{sCB}, 1\ns_lshl_b32 s{sT+1}, s{sT+1}, 7\ns_add_u32 s{sT}, s{sT}, s{sT+1}')
        p(f'v_lshlrev_b32 v{t+3}, 4, v{t}\nv_lshlrev_b32 v{t+4}, 12, v{t+1}\nv_lshlrev_b32 v{t+5}, 8, v{t+2}\nv_add3_u32 v{t+4}, v{t+3}, v{t+4}, v{t+5}\nv_add_u32 v{vLO}, s{sT}, v{t+4}')
        p(f'v_add_u32 v{vLS}, {LDS_SCR}, v{t+3}\nv_lshl_add_u32 v{vLS+1}, v2, 2, v{vLS}')
        p(f's_and_b32 s{sT}, s{sW}, 1\ns_mul_i32 s{sT}, s{sT}, {32*7168}\ns_mul_i32 s{sT+1}, s{sCB}, 224\ns_add_u32 s{sT}, s{sT}, s{sT+1}')
        p(f's_mov_b32 s{sT+1}, 4682\ns_mov_b32 s{sT+2}, 7168')
        for n in range(448): assert (n*4682) >> 16 == n // 14
        t = 32
        for pc in range(7):
            p(f'v_add_u32 v{t}, {64*pc}, v1')
            p(f'v_mul_u32_u24 v{t+1}, s{sT+1}, v{t}\nv_lshrrev_b32 v{t+1}, 16, v{t+1}')
            p(f'v_mul_u32_u24 v{t+2}, 14, v{t+1}\nv_sub_u32 v{t+2}, v{t}, v{t+2}')
            p(f'v_and_b32 v{t+3}, 0x13, v{t+1}\nv_and_b32 v{t+4}, 4, v{t+1}\nv_lshl_or_b32 v{t+3}, v{t+4}, 1, v{t+3}')
            p(f'v_bfe_u32 v{t+4}, v{t+1}, 3, 1\nv_lshl_or_b32 v{t+3}, v{t+4}, 2, v{t+3}')
            p(f'v_mul_u32_u24 v{t+3}, s{sT+2}, v{t+3}\nv_lshlrev_b32 v{t+2}, 4, v{t+2}\nv_add3_u32 v{vDW+pc}, v{t+3}, v{t+2}, s{sT}')
            if pc % 4: p(f'v_subrev_u32 v{vDW+pc}, {1024*(pc%4)}, v{vDW+pc}')
        p(f's_lshl_b32 s{sT}, s{sW}, 17\ns_lshl_b32 s{sT+1}, s{sCB}, 8\ns_add_u32 s{sT}, s{sT}, s{sT+1}')
        p(f'v_lshrrev_b32 v{t}, 4, v1\nv_and_b32 v{t+1}, 15, v1\nv_lshlrev_b32 v{t+2}, 1, v{t}\nv_xor_b32 v{t+1}, v{t+1}, v{t+2}')
        p(f'v_lshlrev_b32 v{t}, 13, v{t}\nv_add_u32 v{t}, s{sT}, v{t}')
        for j in range(4):
            p(f'v_xor_b32 v{t+2}, {8*(j>>1)}, v{t+1}\nv_lshl_add_u32 v{t+2}, v{t+2}, 4, v{t}')
            p(f'v_add_u32 v{vDQ+j}, {j*(4*8192-1024)}, v{t+2}')
        p(f's_and_b32 s{sT}, s{sW}, 1\ns_lshr_b32 s{sT+1}, s{sW}, 1')
        p(f's_mul_i32 s{sMW}, s{sT}, {HS}\ns_mul_i32 s{sRW}, s{sT+1}, 7168')
        p(f's_mul_i32 s{sMQ}, s{sT+1}, {HS}\ns_lshl_b32 s{sRQ}, s{sT}, 12\ns_add_u32 s{sRQ}, s{sRQ}, 14336')
        p(f's_mov_b32 s{sKW}, 0\ns_mov_b32 s{sKQ}, 0\ns_mov_b32 s{sKA}, {2*KA}')
        p(f's_mov_b32 s{sRD}, 0')
        p(f's_lshl_b32 s{sT}, s{sRB}, 8\ns_lshl_b32 s{sT+1}, s{sW}, 6\ns_add_u32 s{sT+5}, s{sT}, s{sT+1}\ns_lshl_b32 s{sT}, s{sT+5}, 11')
        p(f'v_and_b32 v32, 15, v1\nv_lshrrev_b32 v34, 4, v1')
        for j in range(4):
            p(f'v_add_u32 v33, {4*j}, v34\nv_xor_b32 v35, v33, v32\nv_lshlrev_b32 v33, 11, v33\nv_lshl_add_u32 v33, v35, 4, v33\ns_sub_u32 s{sT+1}, s{sT}, {1024*j}\nv_add_u32 v{vRX+j}, s{sT+1}, v33')
        p(f's_lshl_b32 s{sT}, s{sT+5}, 4\nv_lshl_add_u32 v{vSR}, v32, 4, s{sT}')

    if not cfg.lad: late_addr()
    p('s_waitcnt lgkmcnt(0)')
    ts.stamp(p, 33)
    S_X0 = S_H
    srd(p, S_X0, pX, 0, 4 << 20)
    vLD = 144
    for i in range(4): p(f'buffer_load_dwordx4 v[{vLD+4*i}:{vLD+4*i+3}], v{vLX}, s[{S_X0}:{S_X0+3}], 0 offen offset:{64*i}')
    vP1, vP2, vPD = 136, 137, 138
    def code_srd(q, lbl):
        return [f's_getpc_b64 s[{q}:{q+1}]\n{lbl}:\ns_sub_u32 s{q}, s{q}, {lbl}-K_first\ns_subb_u32 s{q+1}, s{q+1}, 0', f's_mov_b32 s{q+2}, K_last-K_first', f's_mov_b32 s{q+3}, 0x20000']
    def code_pf(q, dst):
        return [f'buffer_load_dword v{dst}, v0, s[{q}:{q+3}], 0 offen ;pf']
    for x in code_srd(S_O, 'L_pc1'): p(x)
    p(f's_lshr_b32 s{sT}, s2, 3\ns_lshl_b32 s{sT}, s{sT}, 2\ns_add_u32 s{sT}, s{sT}, s{sW}\ns_lshl_b32 s{sT}, s{sT}, 10\nv_and_b32 v32, 15, v1\nv_lshl_add_u32 v0, v32, 6, s{sT}')
    for x in code_pf(S_O, vPD): p(x)
    def raw(q):
        p(f's_lshl_b32 s{sT}, s{sW}, 14\ns_add_u32 m0, s{sT}, {RAWL + 4096*q}\ns_mov_b32 s{sT}, {32768*q}')
        for j in range(4): p(f'buffer_load_dwordx4 v{vRX+j}, s[{S_X0}:{S_X0+3}], s{sT} offen offset:{1024*j} lds', ('R', 1, 0, 0))
    srd(p, S_DB, pDBG, 0, 256)
    p(f's_lshl_b32 s{sT}, s2, 2\ns_add_u32 s{sT}, s{sT}, s{sW}\ns_cmp_eq_u32 s{sT}, 1\ns_cbranch_scc0 L_no_nonce')
    p.cond(True)
    p(f's_memrealtime s[{sNO}:{sNO+1}]\nv_mov_b32 v34, 0\ns_waitcnt lgkmcnt(0)\ns_and_b32 s{sNO}, s{sNO}, 0xffffffc0\ns_or_b32 s{sNO}, s{sNO}, 1\ns_getreg_b32 s{sT}, hwreg(HW_REG_XCC_ID, 0, 1)\ns_lshl_b32 s{sT}, s{sT}, 5\ns_or_b32 s{sNO}, s{sNO}, s{sT}\nv_mov_b32 v32, s{sNO}\nv_mov_b32 v33, s{sNO+1}')
    p(f'buffer_store_dwordx2 v[32:33], v34, s[{S_DB}:{S_DB+3}], 0 offen sc1')
    p.cond(False)
    p('L_no_nonce:')
    if cfg.lad == 1: late_addr()
    p(f's_cmp_ge_u32 s{sW}, 2\ns_cselect_b32 s{S_W}, s{pWU}, s{pWG}\ns_cselect_b32 s{S_W+1}, s{pWU+1}, s{pWG+1}')
    p(f's_mov_b32 s{S_W+2}, {1024*7168:#x}\ns_mov_b32 s{S_W+3}, 0x20000')
    srd(p, S_Q, pWQ, 0, 8 << 20)
    def adv_w():
        return [f's_add_u32 s{sKW}, s{sKW}, {KW}',
                f's_add_u32 s{sMW}, s{sMW}, {2*HS}', f's_cmp_ge_u32 s{sMW}, {NHS*HS}\ns_cselect_b32 s{sT}, {NHS*HS}, 0\ns_sub_u32 s{sMW}, s{sMW}, s{sT}']
    def adv_q():
        return [f's_add_u32 s{sKQ}, s{sKQ}, {KQ}',
                f's_add_u32 s{sMQ}, s{sMQ}, {2*HS}', f's_cmp_ge_u32 s{sMQ}, {NHS*HS}\ns_cselect_b32 s{sT}, {NHS*HS}, 0\ns_sub_u32 s{sMQ}, s{sMQ}, s{sT}']
    def adv_a():
        return [f's_add_u32 s{sKA}, s{sKA}, {KA}',
                f's_cmp_eq_u32 s{sKA}, {NT*KA}\ns_cselect_b32 s{S_XN+2}, 0, s{S_XN+2}']
    def adv_rd():
        return [f's_add_u32 s{sRD}, s{sRD}, {HS}', f's_mov_b32 s{sDL}, {HS}',
                f's_cmp_eq_u32 s{sRD}, {NHS*HS}\ns_cselect_b32 s{sDL}, {-(NHS-1)*HS}, s{sDL}\ns_cselect_b32 s{sRD}, 0, s{sRD}']
    def dma(pc, tile, stride):
        tag = ('W', NHS, 2*tile + 1, 2*stride)
        if pc < 7: return (f'buffer_load_dwordx4 v{vDW+pc}, s[{S_W}:{S_W+3}], s{sKW} offen offset:{1024*(pc%4)} {cfg.gsc} lds', tag)
        return (f'buffer_load_dwordx4 v{vDQ+pc-7}, s[{S_Q}:{S_Q+3}], s{sKQ} offen offset:{1024*(pc-7)} {cfg.gsc} lds', tag)
    def m0set(pc):
        if pc == 0: return [f's_add_u32 m0, s{sMW}, s{sRW}']
        if pc == 4: return [f's_add_u32 m0, m0, 4096']
        if pc == 7: return [f's_add_u32 m0, s{sMQ}, s{sRQ}']
        return []
    def dma_tile(tile):
        for d in range(11):
            for x in m0set(d): p(x)
            if m0set(d): p('s_nop 0')
            emit(p, dma(d, tile, 0))
            if d == 6:
                for x in adv_w(): p(x)
            if d == 10:
                for x in adv_q(): p(x)
    if cfg.t0e & 1: dma_tile(0)
    if cfg.t0e & 2:
        for q in range(4): raw(q)
    srd(p, S_FL, pWS, WS_FL, 3328*128)
    srd(p, S_XN, pWS, WS_XN, 5 << 20)
    p(f's_lshl_b32 s{sT}, s{sRB}, 4\ns_lshl_b32 s{sT+1}, s{sW}, 2\ns_add_u32 s{sT}, s{sT}, s{sT+1}\ns_mul_i32 s{sT}, s{sT}, {XST}')
    p(f'v_lshlrev_b32 v{vT}, 4, v1\nv_add_u32 v{vAct}, s{sT}, v{vT}')
    for b in range(1, 4): p(f'v_add_u32 v{vAct+b}, {b*XST:#x}, v{vAct}')
    t = 32
    p(f'v_lshrrev_b32 v{t}, 5, v1\nv_lshlrev_b32 v{t}, 4, v{t}\nv_bfe_u32 v{t+1}, v1, 4, 1\nv_lshlrev_b32 v{t+1}, 2, v{t+1}\nv_bfe_u32 v{t+2}, v1, 2, 2')
    p(f'v_add3_u32 v{t}, v{t}, v{t+1}, v{t+2}\nv_mul_u32_u24 v{t}, 224, v{t}\nv_and_b32 v{t+3}, 3, v1\nv_lshlrev_b32 v{t+3}, 3, v{t+3}\nv_add_u32 v{vTr}, v{t}, v{t+3}')
    p(f'v_or_b32 v{t+1}, v{t+1}, v{t+2}')
    p(f'v_lshrrev_b32 v{t}, 4, v1\nv_lshlrev_b32 v{t}, 3, v{t}\nv_add_u32 v{t}, v{t}, v{t+2}\nv_lshlrev_b32 v{t}, 8, v{t}')
    p(f'v_add_u32 v{t}, 14336, v{t}\nv_add_u32 v{t}, v{t}, v{t+3}')
    for tt in range(8):
        p(f'v_xor_b32 v{t+2}, {tt}, v{t+1}\nv_lshl_add_u32 v{vTq+tt}, v{t+2}, 5, v{t}')
    if cfg.trk:
        p(f'v_lshrrev_b32 v32, 3, v1\nv_and_b32 v33, 7, v1\ns_lshl_b32 s{sT}, s{sRB}, 3\ns_add_u32 s{sT}, s{sT}, {64*cfg.trk}\nv_add_u32 v32, s{sT}, v32\nv_lshlrev_b32 v35, 6, v33')
        p(f's_mul_i32 s{sT+1}, s{sCB}, 224\ns_add_u32 s{sT+2}, s{sT+1}, {224+127}\ns_and_b32 s{sT+1}, s{sT+1}, -128\ns_and_b32 s{sT+2}, s{sT+2}, -128\ns_sub_u32 s{sT+2}, s{sT+2}, s{sT+1}')
        p(f'v_mul_u32_u24 v34, 7168, v32\nv_add3_u32 v{vP1}, v34, v35, s{sT+1}')
        p(f'v_lshlrev_b32 v34, 13, v32\ns_lshl_b32 s{sT+1}, s{sCB}, 8\nv_add3_u32 v{vP2}, v34, v35, s{sT+1}')
        p(f'v_cmp_gt_u32 vcc, s{sT+2}, v35\ns_and_b32 s{sT}, s{sW}, 1\ns_cmp_eq_u32 s{sT}, 0\ns_cselect_b64 vcc, vcc, 0\nv_mov_b32 v34, 0xf0000000\ns_nop 1\nv_cndmask_b32 v{vP1}, v34, v{vP1}, vcc')
        p(f'v_cmp_gt_u32 vcc, 4, v33\ns_cmp_eq_u32 s{sW}, 1\ns_cselect_b64 vcc, vcc, 0\ns_nop 1\nv_cndmask_b32 v{vP2}, v34, v{vP2}, vcc')
    def touch_tiles(tiles):
        p(f'v_subrev_u32 v34, {64*cfg.trk*7168}, v{vP1}\nv_subrev_u32 v35, {64*cfg.trk*8192}, v{vP2}')
        for tl in tiles:
            p(f's_mov_b32 s{sT}, {tl*KW}\ns_mov_b32 s{sT+1}, {tl*KQ}')
            p(f'buffer_load_dword v{vPD}, v34, s[{S_W}:{S_W+3}], s{sT} offen ;pf\nbuffer_load_dword v{vPD}, v35, s[{S_Q}:{S_Q+3}], s{sT+1} offen ;pf')
    if cfg.trk: touch_tiles(([] if cfg.t0e & 1 else [0]) + ([1] if cfg.t1e else []))
    ts.stamp(p, 32)
    X = 160; sM = sT + 4
    p(f's_mov_b32 s{sM}, 0xffff0000')
    p(f's_lshl_b32 s{sT}, s{sRB}, 5\ns_add_u32 s{sT+1}, s{sT}, s{sCB}\ns_lshl_b32 s{sT+1}, s{sT+1}, 7\nv_mov_b32 v45, s{sT+1}')
    p(f's_lshl_b32 s{sT+3}, s{sT+1}, 2\ns_lshl_b32 s{sT+2}, s{sW}, 7\ns_add_u32 s{sT+3}, s{sT+3}, s{sT+2}\ns_add_u32 s{sT+3}, s{sT+3}, {1280*128}\nv_mov_b32 v31, s{sT+3}')
    p(f's_lshl_b32 s{sT+2}, s{sW}, 3\ns_add_u32 s{sT}, s{sT}, s{sT+2}\ns_lshl_b32 s{sT}, s{sT}, 9\ns_add_u32 s{sT}, s{sT}, {1280*128}\nv_and_b32 v30, 31, v1\nv_lshl_add_u32 v30, v30, 7, s{sT}')
    p(f'v_lshl_add_u32 v46, v1, 4, v45\nv_cmp_gt_u32 vcc, 8, v1\nv_mov_b32 v47, -1\ns_nop 0\nv_cndmask_b32 v46, v47, v46, vcc\nv_mov_b32 v44, 0')
    for i in range(16): p(f'v_lshlrev_b32 v{X+2*i}, 16, v{vLD+i}\nv_and_b32 v{X+2*i+1}, s{sM}, v{vLD+i}')
    def red(v, tt, off):
        p(f's_nop 1\nv_add_f32_dpp v{v}, v{v}, v{v} row_ror:8 row_mask:0xf bank_mask:0xf')
        p(f'v_mov_b32 v{tt}, v{v}\ns_nop 1\nv_permlane16_swap_b32 v{v}, v{tt}\ns_nop 1\nv_add_f32 v{v}, v{v}, v{tt}')
        p(f'v_mov_b32 v{tt}, v{v}\ns_nop 1\nv_permlane32_swap_b32 v{v}, v{tt}\ns_nop 1\nv_add_f32 v{v}, v{v}, v{tt}')
        p(f'ds_write_b32 v{vLS+1}, v{v} offset:{off}\ns_waitcnt lgkmcnt(0)\ns_barrier')
        p(f'ds_read_b128 v[40:43], v{vLS} offset:{off}')
        p(f'v_add_f32 v40, v40, v41\nv_add_f32 v42, v42, v43\nv_add_f32 v{v}, v40, v42\nv_mul_f32 v{v}, {f2u(1/1024):#x}, v{v}')
    ts.stamp(p, 32)
    p(f'buffer_load_dwordx2 v[2:3], v44, s[{S_DB}:{S_DB+3}], 0 offen sc1')
    for a in range(0, 4, 2): p(f'v_pk_add_f32 v[{32+a}:{33+a}], v[{X+a}:{X+a+1}], v[{X+4+a}:{X+5+a}]')
    for i in range(8, 32, 2): p(f'v_pk_add_f32 v[{32+i%4}:{33+i%4}], v[{32+i%4}:{33+i%4}], v[{X+i}:{X+i+1}]')
    p('v_pk_add_f32 v[32:33], v[32:33], v[34:35]\nv_add_f32 v32, v32, v33')
    red(32, 33, 0)
    p('v_mov_b32 v33, v32')
    for i in range(0, 32, 2): p(f'v_pk_add_f32 v[{X+32+i}:{X+33+i}], v[{X+i}:{X+i+1}], v[32:33] neg_lo:[0,1] neg_hi:[0,1]')
    for a in range(0, 4, 2): p(f'v_pk_mul_f32 v[{36+a}:{37+a}], v[{X+32+a}:{X+33+a}], v[{X+32+a}:{X+33+a}]')
    for i in range(4, 32, 2): p(f'v_pk_fma_f32 v[{36+i%4}:{37+i%4}], v[{X+32+i}:{X+33+i}], v[{X+32+i}:{X+33+i}], v[{36+i%4}:{37+i%4}]')
    p('v_pk_add_f32 v[36:37], v[36:37], v[38:39]\nv_add_f32 v36, v36, v37')
    red(36, 37, 128)
    def rnd(v): p(f'v_cvt_pk_bf16_f32 v{v}, v{v}, v{v}\nv_lshlrev_b32 v{v}, 16, v{v}')
    rnd(32); rnd(36)
    p(f'v_add_f32 v36, {f2u(1e-5):#x}, v36'); rnd(36)
    p('v_sqrt_f32 v36, v36\ns_nop 0'); rnd(36)
    p('v_rcp_f32 v36, v36')
    S_ST = S_V
    srd(p, S_ST, pWS, WS_ST, 2048*16)
    ts.stamp(p, 32)
    p.touch('v[2:3]')
    p('L_no_retry:')
    p(f'v_readfirstlane_b32 s{sNO}, v2\nv_readfirstlane_b32 s{sNO+1}, v3\ns_nop 0\ns_cmp_lg_u32 s{sNO}, 0\ns_cbranch_scc1 L_no_ok')
    p.cond(True)
    p(f'buffer_load_dwordx2 v[2:3], v44, s[{S_DB}:{S_DB+3}], 0 offen sc1\ns_waitcnt vmcnt(0)\ns_branch L_no_retry')
    p.cond(False)
    p('L_no_ok:')
    p(f's_cmp_eq_u32 s{sW}, 1\ns_cbranch_scc0 L_st_skip')
    p.cond(True)
    p(f'v_mov_b32 v40, v32\nv_mov_b32 v41, v36\nv_mov_b32 v42, v2\nv_mov_b32 v43, v3\nbuffer_store_dwordx4 v[40:43], v46, s[{S_ST}:{S_ST+3}], 0 offen sc1')
    p.cond(False)
    p('L_st_skip:')
    ts.stamp(p, 33)
    p('v_mov_b32 v33, v32\nv_mov_b32 v37, v36')
    if not cfg.t0e & 1: dma_tile(0)
    for i in range(16):
        if i % 4 == 0 and not cfg.t0e & 2: raw(i // 4)
        a, b = X+2*i, X+2*i+1
        p(f'v_pk_add_f32 v[{a}:{b}], v[{a}:{b}], v[32:33] neg_lo:[0,1] neg_hi:[0,1]\nv_cvt_pk_bf16_f32 v{a}, v{a}, v{b}')
        p(f'v_and_b32 v{b}, s{sM}, v{a}\nv_lshlrev_b32 v{a}, 16, v{a}')
        p(f'v_pk_mul_f32 v[{a}:{b}], v[{a}:{b}], v[36:37]\nv_cvt_pk_bf16_f32 v{vLD+i}, v{a}, v{b}')
    RC = 224
    def rec_loads():
        for b in range(4): p(f'buffer_load_dwordx4 v[{RC+4*b}:{RC+4*b+3}], v{vSR}, s[{S_ST}:{S_ST+3}], 0 offen offset:{256*b} sc1')
    rec_loads()
    xst = [(f'buffer_store_dwordx4 v[{vLD+4*i}:{vLD+4*i+3}], v{vLO}, s[{S_XN}:{S_XN+3}], 0 offen offset:{1024*i} sc1', ('Xst', 1, 0, 0)) for i in range(4)]
    if cfg.xe:
        for x in xst: emit(p, x)
    p(f'v_and_b32 v32, 15, v1\nv_lshrrev_b32 v33, 4, v1\nv_xor_b32 v33, v33, v32\nv_lshlrev_b32 v32, 8, v32\ns_lshl_b32 s{sT}, s{sW}, 14\ns_add_u32 s{sT}, s{sT}, {RAWL}\nv_add_u32 v32, s{sT}, v32')
    for u in range(4): p(f'v_xor_b32 v34, {4*u}, v33\nv_lshl_add_u32 v{36+u}, v34, 4, v32')
    p.need(('R', 1, 0, 0))
    for u in range(4):
        for b in range(4): p(f'ds_read_b128 v[{vB+16*u+4*b}:{vB+16*u+4*b+3}], v{36+u} offset:{4096*b}')
    ts.stamp(p, 32)
    p.touch(f'v[{RC}:{RC+15}]')
    ts.stamp(p, 32)
    p('L_rec_chk:')
    p(f'v_cmp_ne_u64 vcc, s[{sNO}:{sNO+1}], v[{RC+2}:{RC+3}]')
    for b in range(1, 4): p(f'v_cmp_ne_u64 s[{sT+2}:{sT+3}], s[{sNO}:{sNO+1}], v[{RC+4*b+2}:{RC+4*b+3}]\ns_nop 0\ns_or_b64 vcc, vcc, s[{sT+2}:{sT+3}]')
    p('s_cbranch_vccz L_rec_ok')
    p.cond(True)
    rec_loads(); p('s_waitcnt vmcnt(0)\ns_branch L_rec_chk')
    p.cond(False)
    p('L_rec_ok:')
    ts.stamp(p, 33)
    srd(p, S_K, pK, 0, 2 << 20); srd(p, S_V, pV, 0, 2 << 20)
    if cfg.trk: touch_tiles(range(2, cfg.trk + 2))
    if cfg.kvp:
        p(f's_lshr_b32 s{sT}, s2, 3\ns_lshl_b32 s{sT}, s{sT}, 2\ns_add_u32 s{sT}, s{sT}, s{sW}\ns_lshl_b32 s{sT}, s{sT}, 10')
        p(f's_lshr_b32 s{sT+1}, s{sCB}, 3\ns_lshl_b32 s{sT+1}, s{sT+1}, 19\ns_add_u32 s{sT}, s{sT}, s{sT+1}\ns_add_u32 s{sT}, s{sT}, {1536*256}')
        p(f'v_and_b32 v33, 15, v1\nv_lshlrev_b32 v33, 6, v33')
        p(f'buffer_load_dword v{vPD}, v33, s[{S_K}:{S_K+3}], s{sT} offen ;pf\nbuffer_load_dword v{vPD}, v33, s[{S_V}:{S_V+3}], s{sT} offen ;pf')
    vRI = 132; vMR = [128, 130, 131, 139]
    for b in range(4): p(f'v_mov_b32 v{vRI+b}, v{RC+4*b+1}\nv_mul_f32 v{vMR[b]}, v{RC+4*b}, v{RC+4*b+1}')
    NT0 = 140
    def norm(sub):
        out = []
        for b in range(4):
            for r in range(4):
                q = vB + 16*sub + 4*b + r; t0 = NT0 + 2*((4*b + r) % 2)
                out += [f'v_lshlrev_b32 v{t0}, 16, v{q}', f'v_and_b32 v{t0+1}, s{sM}, v{q}',
                        f'v_fma_f32 v{t0}, v{t0}, v{vRI+b}, -v{vMR[b]}', f'v_fma_f32 v{t0+1}, v{t0+1}, v{vRI+b}, -v{vMR[b]}',
                        f'v_cvt_pk_bf16_f32 v{q}, v{t0}, v{t0+1}']
        return out
    ts.stamp(p, 32)
    p('s_nop 0')
    def norm_pk(sub):
        for b in range(4):
            p(f'v_mov_b32 v32, v{vRI+b}\nv_mov_b32 v33, v{vRI+b}\nv_sub_f32 v34, 0, v{vMR[b]}\nv_sub_f32 v35, 0, v{vMR[b]}')
            for r in range(4):
                q = vB + 16*sub + 4*b + r
                p(f'v_lshlrev_b32 v{36+2*r}, 16, v{q}\nv_and_b32 v{37+2*r}, s{sM}, v{q}')
            for r in range(4): p(f'v_pk_fma_f32 v[{36+2*r}:{37+2*r}], v[{36+2*r}:{37+2*r}], v[32:33], v[34:35]')
            for r in range(4): p(f'v_cvt_pk_bf16_f32 v{vB + 16*sub + 4*b + r}, v{36+2*r}, v{37+2*r}')
    for sub in range(cfg.npre): norm_pk(sub)
    ts.stamp(p, 32)
    def act(sub, b):
        r = vB + 16*(sub % RB) + 4*b
        return f'buffer_load_dwordx4 v[{r}:{r+3}], v{vAct+b}, s[{S_XN}:{S_XN+3}], s{sKA} offen offset:{1024*(sub % 2)}{SC}'
    NG = 22
    def vm_sched(step, g2):
        s, t = divmod(g2, NG); sub = 2*step + s
        d = None; a = None
        if cfg.d0 <= g2 < cfg.d0 + 11*cfg.dstr and (g2 - cfg.d0) % cfg.dstr == 0: d = (g2 - cfg.d0)//cfg.dstr
        if cfg.a0 <= t < cfg.a0 + 4*cfg.astr and (t - cfg.a0) % cfg.astr == 0: a = (sub + cfg.ad, (t - cfg.a0)//cfg.astr)
        return d, a
    def flagchk(lbl, vaddr, vd):
        return [f'v_cmp_ne_u64 vcc, s[{sNO}:{sNO+1}], v[{vd}:{vd+1}]', 's_nop 0', 's_nop 0', f's_cbranch_vccz {lbl}_ok',
                f'{lbl}_spin: ;cond', f'buffer_load_dwordx2 v[{vd}:{vd+1}], v{vaddr}, s[{S_FL}:{S_FL+3}], 0 offen sc1 ;cond', 's_waitcnt vmcnt(0) ;cond',
                f'v_cmp_ne_u64 vcc, s[{sNO}:{sNO+1}], v[{vd}:{vd+1}] ;cond', 's_nop 1 ;cond', f's_cbranch_vccnz {lbl}_spin ;cond', f'{lbl}_ok:']
    def flag_store(lbl, va):
        return f's_cmp_eq_u32 s{sW}, 1\ns_cbranch_scc0 {lbl}\nbuffer_store_dwordx2 v[2:3], v{va}, s[{S_FL}:{S_FL+3}], 0 offen sc1 ;cond\n{lbl}:'
    def poll(lbl, vaddr, done):
        p(f'{lbl}:')
        p(f'buffer_load_dwordx2 v[36:37], v{vaddr}, s[{S_FL}:{S_FL+3}], 0 offen sc1\ns_waitcnt vmcnt(0)')
        p(f'v_cmp_ne_u64 vcc, s[{sNO}:{sNO+1}], v[36:37]\ns_nop 1\ns_cbranch_vccz {done}\ns_sleep {cfg.slp}\ns_branch {lbl}')
    vHF = 27
    srd(p, S_H, pWS, WS_H, 15 << 20)
    for q_ in range(4): p(f's_mov_b32 s{S_DB+q_}, s{S_O+q_}') if q_ < 3 else p(f's_mov_b32 s{S_DB+3}, 0x20000')
    p.need(('W', NHS, 1, 0))
    xflag = f'buffer_store_dwordx2 v[2:3], v31, s[{S_FL}:{S_FL+3}], 0 offen sc1'
    p('s_waitcnt lgkmcnt(0)\ns_barrier')
    P = cfg.P
    def trr(G, tile0, stride):
        step, g2 = divmod(G, 2*NG); s, t = divmod(g2, NG)
        r = vA + 4*(G % RA)
        tag = ('W', NHS, 2*(tile0 + step) + 1, 2*stride) if s == 1 else None
        if t < 14: off = (t // 7)*7168 + (t % 7)*32; a = vTr; hh = 8*224
        else: off = 0; a = vTq + t - 14; hh = 1024
        return [(f'ds_read_b64_tr_b16 v[{r}:{r+1}], v{a} offset:{off}', tag),
                (f'ds_read_b64_tr_b16 v[{r+2}:{r+3}], v{a} offset:{off + hh}', tag)]
    for G in range(P):
        for f in trr(G, 0, 0): emit(p, f)
    UN = 2
    p(f's_mov_b32 s{sDL}, 0\ns_mov_b32 s{sCNT}, {NT//UN - 1 - cfg.gl}')
    hi = {}; lo = {}
    def H(i, x): hi.setdefault(i, []).append(x)
    def L(i, x): lo.setdefault(i, []).append(x)
    NGB = 2*NG*UN
    vDK, vDV, vK, vV = 8, 12, 13, 21
    sKV, sMK, sAD, sPF = 39, 40, 43, 44
    k1 = -2*math.sqrt(2/math.pi)*math.log2(math.e); k2 = k1*0.044715
    vC = 28; vHs = 132
    def post_g():
        t = 128
        srd(p, S_O, pWS, WS_O, 17 << 20)
        p(f'v_lshrrev_b32 v{t}, 4, v1\nv_and_b32 v{t+1}, 15, v1')
        p(f's_lshl_b32 s{sMK}, s{sW}, 12')
        p(f'v_lshlrev_b32 v{t+2}, 8, v{t}\nv_add_u32 v{t+2}, s{sMK}, v{t+2}')
        for j in range(4):
            p(f'v_add_u32 v{t+3}, {4*j}, v{t}\nv_xor_b32 v{t+3}, v{t+3}, v{t+1}\nv_lshl_add_u32 v{vDK+j}, v{t+3}, 4, v{t+2}')
        p(f'v_lshlrev_b32 v{t+3}, 2, v{t}\nv_xor_b32 v{t+3}, v{t+3}, v{t+1}\nv_lshl_add_u32 v{vDV}, v{t+3}, 4, v{t+2}')
        p(f's_lshr_b32 s{sKV}, s{sCB}, 3\ns_lshl_b32 s{sKV}, s{sKV}, 19\ns_add_u32 s{sKV}, s{sKV}, {1536*256}')
        p(f'v_mov_b32 v{vC}, {f2u(k1):#x}\nv_mov_b32 v{vC+1}, {f2u(k1):#x}\nv_mov_b32 v{vC+2}, {f2u(k2):#x}\nv_mov_b32 v{vC+3}, {f2u(k2):#x}')
        p(f's_lshl_b32 s{sT+2}, s{sRB}, 4\ns_lshl_b32 s{sT+3}, s{sW}, 2\ns_add_u32 s{sT+2}, s{sT+2}, s{sT+3}\ns_mul_i32 s{sT+2}, s{sT+2}, {HST}')
        p(f's_mul_i32 s{sT+3}, s{sCB}, 7\ns_add_u32 s{sT+3}, s{sT+3}, 1\ns_lshr_b32 s{sT+3}, s{sT+3}, 1\ns_lshl_b32 s{sT+3}, s{sT+3}, 10')
        p(f's_add_u32 s{sT+2}, s{sT+2}, s{sT+3}')
        p(f'v_lshlrev_b32 v{t}, 4, v1\nv_add_u32 v{vAct}, s{sT+2}, v{t}')
        for b in range(1, 4): p(f'v_add_u32 v{vAct+b}, {b*HST:#x}, v{vAct}')
        p(f's_and_b32 s{sT+3}, s{sCB}, 1\ns_mul_i32 s{sT+4}, s{sT+3}, {-1016-3072}\ns_add_u32 s{sT+4}, s{sT+4}, 3072')
        for b in range(4): p(f'v_add_u32 v{vHs+b}, s{sT+4}, v{vAct+b}')
    def collect(fn):
        nonlocal p
        w = Prog(); q = p; p = w; fn(); p = q
        out = []
        for it in w.items:
            if it.op == 's_addc_u32': out[-1] = (out[-1][0] + '\n' + it.text, None)
            else: out.append((it.text, it.tag))
        return out
    def g_body(first, last=False):
        hi.clear(); lo.clear(); mf = []
        t0_, st_ = (0, 0) if first else (NT - UN, 0) if last else (UN, UN)
        if first:
            if not cfg.xe:
                for k, x in enumerate(xst): L(2 + cfg.fs1*2*k, x)
            H(cfg.xbar, lambda p: (p.need(('Xst', 1, 0, 0)), p(xflag)))
            for d in range(11):
                g_ = 2 + cfg.fs1*(2*d + 1 if d < 4 else d + 4)
                for x in m0set(d): L(g_, x)
                if m0set(d): L(g_, m0gap)
                L(g_, dma(d, 1, 0))
                if d == 6:
                    for x in adv_w(): L(g_, x)
                if d == 10:
                    for x in adv_q(): L(g_, x)
        for G in range(NGB):
            step, g2 = divmod(G, 2*NG); s, t = divmod(g2, NG)
            sub = 2*step + s
            for b in range(4):
                ra = vA + 4*(G % RA); rb = vB + 16*(sub % RB) + 4*b
                mf.append(f'v_mfma_f32_16x16x32_bf16 {acc(t,b)}, v[{ra}:{ra+3}], v[{rb}:{rb+3}], {"0" if first and sub == 0 else acc(t,b)}')
            i0 = 4*G; Gn = G + P; tn = Gn % NG
            if last and Gn >= NGB: continue
            if Gn % (2*NG) == 0:
                stepn = Gn // (2*NG)
                def bar_(p, stepn=stepn):
                    p.need(('W', NHS, 2*(t0_ + stepn) + 1, 2*st_))
                    p('s_barrier')
                H(i0-1, bar_)
            if tn == 0: H(i0-2, f'v_add_u32 v{vTr}, s{sDL}, v{vTr}')
            r0, r1 = trr(Gn % NGB, t0_ + (Gn // NGB)*UN, st_)
            H(i0, r0); H(i0+1, r1)
            if 1 <= tn <= 8: L(i0, f'v_add_u32 v{vTq+tn-1}, s{sDL}, v{vTq+tn-1}')
            if tn == 9:
                for x in adv_rd(): L(i0, x)
            pc, a = vm_sched(step, g2)
            if last: pc = None
            if a is not None and not (first and a[0] < 4) and not (last and a[0] >= 4):
                g_ = max(i0, cfg.xchk + 4 + 8*(4*(a[0] - 4) + a[1])) if first else i0
                assert g_ < 88*(a[0] - 4 + 3) + 60 or not first
                L(g_, act(*a))
                if a[1] == 3 and a[0] % 2 == 1:
                    for x in adv_a(): L(g_, x)
            if pc is not None:
                g_ = max(i0, 2 + cfg.fs1*(15 + pc)) if first and step == 0 else i0
                if cfg.trk and pc == 0:
                    L(g_, f'buffer_load_dword v{vPD}, v{vP1}, s[{S_W}:{S_W+3}], s{sKW} offen ;pf')
                    L(g_, f'buffer_load_dword v{vPD}, v{vP2}, s[{S_Q}:{S_Q+3}], s{sKQ} offen ;pf')
                for x in m0set(pc): L(g_, x)
                if m0set(pc): L(g_, m0gap)
                L(g_, dma(pc, t0_ + step + 2, st_))
                if pc == 6:
                    for x in adv_w(): L(g_, x)
                if pc == 10:
                    for x in adv_q(): L(g_, x)
        for x in code_pf(S_DB, vPD): L(4*(cfg.d0 + 10*cfg.dstr) + 1, x)
        if first:
            H(cfg.xchk - cfg.xfl, f'buffer_load_dwordx2 v[28:29], v30, s[{S_FL}:{S_FL+3}], 0 offen sc1')
            H(cfg.xchk, '\n'.join(flagchk('L_x', 30, 28)))
        elif last:
            for x in collect(post_g): L(112, x)
            H(len(mf)-6, 's_waitcnt lgkmcnt(0)\ns_barrier')
        else:
            H(len(mf)-3, f's_sub_u32 s{sCNT}, s{sCNT}, 1'); H(len(mf)-2, f's_cmp_lg_u32 s{sCNT}, 0')
            H(len(mf)-1, 's_cbranch_scc1 G_loop')
        lo_ = {k: lo[k] for k in sorted(lo)}
        fill = spread(hi, lo_, len(mf), cfg.cap, 60 if first else 200 if last else 16, cost=lambda i: 1 if i % 4 == 3 else 2 if i == -1 else 0)
        fix_m0(fill, len(mf))
        if first:
            edges = [0] + [88*sub - 3 if sub == 3 or cfg.npre == 1 else (261*(sub - cfg.npre + 1))//(4 - cfg.npre) for sub in range(cfg.npre, 4)]
            for k, sub in enumerate(range(cfg.npre, 4)):
                g0, g1 = edges[k], min(edges[k+1], 88*sub - 3)
                q_ = norm(sub); per = len(q_)/(g1 - g0); due = 0.0; done = 0
                for i in range(g0, g1):
                    due += per; used = len(fill[i]) + (1 if i % 4 == 3 else 0)
                    while q_ and done < due + 2 and (used < cfg.cap or done < due - cfg.lag):
                        fill[i].append(q_.pop(0)); used += 1; done += 1
                fill[g1 - 1] += q_
        elif not last: chk_tail(fill, len(mf))
        if first:
            for i in (43, 87, 131, 175, 219, 263, 307):
                t_ = ts.text(64)
                if t_: fill[i].append(t_)
        interleave(p, mf, fill)
    ts.stamp(p, 97)
    g_body(True)
    if cfg.xt: p.touch(f'v[{vB}:{vB+16*cfg.xt-1}]')
    ts.stamp(p, 96)
    p.loop_begin('G_loop', NT//UN - 1 - cfg.gl)
    g_body(False)
    p.loop_end()
    if cfg.gl: g_body(False, True); p('s_nop 3')
    else:
        p('s_waitcnt vmcnt(0) lgkmcnt(0)\ns_barrier'); post_g()
    ts.stamp(p, 5)

    def kdma(j, soff, tag): return (f'buffer_load_dwordx4 v{vDK+j}, s[{S_K}:{S_K+3}], s{soff} offen offset:{1024*j} lds', tag)
    def vdma(j, soff, tag): return (f'buffer_load_dwordx4 v{vDV}, s[{S_V}:{S_V+3}], s{soff} offen offset:{1024*j} lds', tag)
    kvq = []
    for (kind, tl) in (('K', 0), ('K', 1), ('V', 0), ('K', 2), ('V', 1)):
        g = [f's_add_u32 s{sT+5}, s{sKV}, {tl*16384}', f's_add_u32 m0, s{sMK}, {tl*16384 + (65536 if kind == "V" else 0)}', 's_nop 0']
        for j in range(4):
            kvq.append(g + [(kdma if kind == 'K' else vdma)(j, sT+5, (kind, 4, tl, 0))]); g = []
    p(f's_bitcmp0_b32 s{sCB}, 0')
    def gelu_tiles(tiles):
        n = len(tiles)
        Xs = [32 + 12*i for i in range(n)]
        pk = lambda r: f'v[{r}:{r+1}]'
        for (t, b, d), X in zip(tiles, Xs):
            for r in range(4): p(f'v_accvgpr_read_b32 v{X+r}, {accr(t,b,r)}')
        for X in Xs:
            for r in (0, 2): p(f'v_pk_mul_f32 {pk(X+8+r)}, {pk(X+r)}, {pk(X+r)}')
        for X in Xs:
            for r in (0, 2): p(f'v_pk_fma_f32 {pk(X+8+r)}, {pk(X+8+r)}, {pk(vC+2)}, {pk(vC)}')
        for X in Xs:
            for r in (0, 2): p(f'v_pk_mul_f32 {pk(X+8+r)}, {pk(X+8+r)}, {pk(X+r)}')
        for (t, b, d), X in zip(tiles, Xs):
            for r in range(4): p(f'v_exp_f32 v{X+8+r}, v{X+8+r}')
            for r in range(4): p(f'v_accvgpr_read_b32 v{X+4+r}, {accr(t+7,b,r)}')
        for X in Xs:
            for r in (0, 2): p(f'v_pk_add_f32 {pk(X+8+r)}, {pk(X+8+r)}, 1.0 op_sel_hi:[1,0]')
        for X in Xs:
            for r in range(4): p(f'v_rcp_f32 v{X+8+r}, v{X+8+r}')
            for r in (0, 2): p(f'v_pk_mul_f32 {pk(X+4+r)}, {pk(X+4+r)}, {pk(X+r)}')
        for X in Xs:
            for r in (0, 2): p(f'v_pk_mul_f32 {pk(X+4+r)}, {pk(X+4+r)}, {pk(X+8+r)}')
        for (t, b, d), X in zip(tiles, Xs):
            p(f'v_cvt_pk_bf16_f32 v{d}, v{X+4}, v{X+5}\nv_cvt_pk_bf16_f32 v{d+1}, v{X+6}, v{X+7}')
    for par in range(2):
        if par == 0: p('s_cbranch_scc0 B_epi_odd')
        else: p.cond(True); p('B_epi_odd:')
        n = 0; kq = list(kvq)
        for b in range(4):
            for pr in range(3):
                d = 64 + 4*(n % 8); n += 1
                for _ in range(2):
                    if kq:
                        for x in kq.pop(0): emit(p, x)
                gelu_tiles([(2*pr + par, b, d), (2*pr + 1 + par, b, d + 2)])
                p(f'buffer_store_dwordx4 v[{d}:{d+3}], v{vAct+b}, s[{S_H}:{S_H+3}], 0 offen offset:{1024*pr}{LS}', ('Hst', 1, 0, 0))
        for b in range(0, 4, 2):
            d = 64 + 4*(n % 8); n += 1
            gelu_tiles([(6 if par == 0 else 0, b, d), (6 if par == 0 else 0, b+1, d+2)])
            p(f'buffer_store_dwordx2 v[{d}:{d+1}], v{vHs+b}, s[{S_H}:{S_H+3}], 0 offen{LS}', ('Hst', 1, 0, 0))
            p(f'buffer_store_dwordx2 v[{d+2}:{d+3}], v{vHs+b+1}, s[{S_H}:{S_H+3}], 0 offen{LS}', ('Hst', 1, 0, 0))
        if par == 0: p('s_branch B_epi_done')
    p.cond(False)
    p('B_epi_done:')
    ts.stamp(p, 5)
    vQ = 64
    qs = math.log2(math.e)/math.sqrt(128)
    def qconv(qt, s):
        d = vQ + (qt*8+s)*4
        for half in range(2):
            b = 2*qt + half; x = 32 + 4*half
            src = accr(14+s, b, 0)
            if src[0] == 'a':
                for r in range(4): p(f'v_accvgpr_read_b32 v{x+r}, {accr(14+s, b, r)}')
                s0 = x
            else: s0 = int(src[1:])
            for r in (0, 2): p(f'v_pk_mul_f32 v[{x+r}:{x+r+1}], v[{s0+r}:{s0+r+1}], v[{vC}:{vC+1}]')
            p(f'v_cvt_pk_bf16_f32 v{d+2*half}, v{x}, v{x+1}\nv_cvt_pk_bf16_f32 v{d+2*half+1}, v{x+2}, v{x+3}')
    def qswap(qt, s):
        d = vQ + (qt*8+s)*4
        p(f'v_permlane16_swap_b32 v{d}, v{d+2}\nv_permlane16_swap_b32 v{d+1}, v{d+3}')
    t = 32
    p(f'v_and_b32 v{t}, 31, v1\nv_lshrrev_b32 v{t+1}, 5, v1\nv_and_b32 v{t+2}, 15, v1\nv_xor_b32 v{t+1}, v{t+1}, v{t+2}\nv_lshlrev_b32 v{t}, 8, v{t}')
    for s in range(8):
        p(f'v_xor_b32 v{t+2}, {2*s}, v{t+1}\nv_lshl_add_u32 v{vK+s}, v{t+2}, 4, v{t}')
    p(f'v_mov_b32 v{vC}, {f2u(qs):#x}\nv_mov_b32 v{vC+1}, {f2u(qs):#x}')
    vS = [128, 160]; vP = [192, 208]; vN = 224; vL = 28
    aF = 192
    def Sreg(n, qt): return vS[n % 2] + 16*qt
    def Preg(n, qt, ks): return vP[n % 2] + 8*qt + 4*ks
    def kread(n, s, tag):
        r = aF + 4*s
        return [(f'ds_read_b128 a[{r}:{r+3}], v{vK+s} offset:{(n % 8)*8192}', ('K', 4, n//2, 0))]
    def vread(n, f, tag, base=None, off0=None):
        ks, dt = divmod(f, 4); r = aF + 32 + 4*f
        off = (32*(n % 8) + 16*ks)*256 if off0 is None else off0 + 16*ks*256
        b = vV if base is None else base
        return [(f'ds_read_b64_tr_b16 a[{r}:{r+1}], v{b+dt} offset:{off}', tag),
                (f'ds_read_b64_tr_b16 a[{r+2}:{r+3}], v{b+dt} offset:{off+2048}', tag)]
    def qk(n, s, qt, c0):
        S = Sreg(n, qt); c = f'v[{S}:{S+15}]' if s else c0(qt)
        return f'v_mfma_f32_32x32x16_bf16 v[{S}:{S+15}], a[{aF+4*s}:{aF+4*s+3}], v[{vQ+(qt*8+s)*4}:{vQ+(qt*8+s)*4+3}], {c}'
    def pv(n, f, qt, first=False):
        ks, dt = divmod(f, 4); o = (dt*2+qt)*16; P_ = Preg(n, qt, ks)
        c = '0' if first and ks == 0 else f'a[{o}:{o+15}]'
        return f'v_mfma_f32_32x32x16_bf16 a[{o}:{o+15}], a[{aF+32+4*f}:{aF+32+4*f+3}], v[{P_}:{P_+3}], {c}'
    negm = lambda qt: f'v[{vN+16*qt}:{vN+16*qt+15}]'
    zero = lambda qt: '0'
    def softmax_ops(n):
        sl = [[] for _ in range(33)]
        for e in range(32):
            qt, i = divmod(e, 16); S = Sreg(n, qt); Pr = Preg(n, qt, i>>3)+((i&7)>>1)
            sl[e].insert(0, f'v_exp_f32 v{S+i}, v{S+i}')
            if cfg.sum == 'add': sl[e+1].append(f'v_add_f32 v{vL+2*qt+(i&1)}, v{vL+2*qt+(i&1)}, v{S+i}')
            if i & 1:
                if e == 31 and cfg.sum != 'add': sl[e+1].append('s_nop 0')
                sl[e+1].append(f'v_cvt_pk_bf16_f32 v{Pr}, v{S+i-1}, v{S+i}')
                k = min(32, e+2)
                if cfg.sum == 'pk': sl[k].append(f'v_pk_add_f32 v[{vL+2*qt}:{vL+2*qt+1}], v[{vL+2*qt}:{vL+2*qt+1}], v[{S+i-1}:{S+i}]')
                if cfg.sum == 'dot': sl[k].append(f'v_dot2_f32_bf16 v{vL+2*qt+((i>>1)&1)}, v{Pr}, v39, v{vL+2*qt+((i>>1)&1)}')
        return sl
    if cfg.sum == 'dot': p('v_mov_b32 v39, 0x3f803f80')
    p.need(('K', 4, 0, 0)); p('s_barrier')
    for s in range(8): emit(p, kread(0, s, None)[0])
    ts.stamp(p, 5)
    qconv(0, 0); qconv(1, 0)
    for s in range(8):
        if s < 7: qconv(0, s+1)
        qswap(0, s); qswap(1, s)
        if s < 7: qconv(1, s+1)
        else: p('s_nop 1')
        for qt in range(2): p(qk(0, s, qt, zero))
        emit(p, kread(1, s, None)[0])
    t = 36
    p(f'v_lshrrev_b32 v{t}, 5, v1\nv_lshlrev_b32 v{t}, 2, v{t}\nv_bfe_u32 v{t+1}, v1, 2, 2\nv_add_u32 v{t}, v{t}, v{t+1}\nv_lshlrev_b32 v{t}, 8, v{t}')
    p(f'v_bfe_u32 v{t+2}, v1, 4, 1\nv_lshlrev_b32 v{t+2}, 5, v{t+2}\nv_and_b32 v{t+3}, 3, v1\nv_lshlrev_b32 v{t+3}, 3, v{t+3}\nv_add3_u32 v{t}, v{t}, v{t+2}, v{t+3}')
    p(f'v_add_u32 v{t}, 0x10000, v{t}')
    for dt in range(4):
        p(f'v_xor_b32 v{t+2}, {dt}, v{t+1}\nv_lshl_add_u32 v{vV+dt}, v{t+2}, 6, v{t}')
    for i in range(4): p(f'v_mov_b32 v{vL+i}, 0')
    def rowmax(n, first):
        for qt in range(2):
            S = Sreg(n, qt); m = 32 + 2*qt
            if first: p(f'v_max3_f32 v{m}, v{S}, v{S+1}, v{S+2}')
            else: p(f'v_max3_f32 v{m}, v{m}, v{S+1}, v{S+2}\nv_max_f32 v{m}, v{m}, v{S}')
            for i in range(3, 15, 2): p(f'v_max3_f32 v{m}, v{m}, v{S+i}, v{S+i+1}')
            p(f'v_max_f32 v{m}, v{m}, v{S+15}')
    def set_negm():
        p('v_mov_b32 v33, v32\nv_mov_b32 v35, v34\ns_nop 0\nv_permlane32_swap_b32 v32, v33\nv_permlane32_swap_b32 v34, v35\ns_nop 0')
        for qt in range(2):
            m = 32 + 2*qt
            p(f'v_max_f32 v{m}, v{m}, v{m+1}\nv_sub_f32 v{vN+16*qt}, 0, v{m}\nv_mov_b32 v{vN+16*qt+1}, v{vN+16*qt}')
            for i in range(2, 16, 2): p(f'v_pk_mul_f32 v[{vN+16*qt+i}:{vN+16*qt+i+1}], v[{vN+16*qt}:{vN+16*qt+1}], 1.0 op_sel_hi:[1,0]')
    ts.stamp(p, 4)
    c0 = zero
    if not cfg.m0:
        c0 = negm
        rowmax(0, True); set_negm()
        for qt in range(2):
            S = Sreg(0, qt)
            for i in range(0, 16, 2): p(f'v_pk_add_f32 v[{S+i}:{S+i+1}], v[{S+i}:{S+i+1}], v[{vN+16*qt}:{vN+16*qt+1}]')
    ts.stamp(p, 4)
    S_WD, S_WO, S_AH, S_AO, S_X, S_OUT, S_P = 12, 8, 16, 20, 24, 28, 60
    sJ, sRC, sCC = 70, 71, 76
    kWD, kWO, kAH, kAO, cMW, cTG = 77, 75, 78, 42, 79, 49
    dD, dO, aH, aO, cTr, cA, cC = 40, 8, 48, 4, 52, 64, 128
    vFH = 60
    SLOT = 32768
    k_h = lambda pc: 4*pc
    k_o = lambda pc: 4*((pc & 1) | ((pc & 2) << 1) | ((pc & 4) >> 1))
    sDE = 85
    def x_dma_addr(dst, kmap):
        t = 36
        p(f's_lshl_b32 s{sT+2}, s{sW}, 16\ns_lshl_b32 s{sT+3}, s{sCC}, 8\ns_add_u32 s{sT+2}, s{sT+2}, s{sT+3}')
        p(f'v_lshrrev_b32 v{t}, 4, v1\nv_and_b32 v{t+1}, 15, v1\nv_lshlrev_b32 v{t+2}, 1, v{t}\nv_xor_b32 v{t+1}, v{t+1}, v{t+2}')
        p(f'v_lshlrev_b32 v{t}, 11, v{t}\nv_add_u32 v{t}, s{sT+2}, v{t}')
        for e in range(2):
            p(f'v_xor_b32 v{t+2}, {8*e}, v{t+1}\nv_lshl_add_u32 v{dst+e}, v{t+2}, 4, v{t}')
            if cfg.cdel: p(f'v_lshrrev_b32 v{t+2}, 3, v{t+2}\nv_mad_i32_i24 v{dst+e}, v{t+2}, s{sDE}, v{dst+e}')
        for pc in range(7, -1, -1):
            o = (kmap(pc) << 11) - 1024*(pc % 4)
            if o or pc > 1: p(f'v_add_u32 v{dst+pc}, {o}, v{dst + (pc & 1)}')
    NS = ND + NSS; kind = lambda sg: 'd' if sg < ND else 's'
    def cdma(pc, sg):
        D_, S_, K_ = (dD, S_WD, kWD) if kind(sg) == 'd' else (dO, S_WO, kWO)
        g = []
        if pc % 4 == 0: g += [f's_add_u32 m0, s{cMW}, {(sg % 4)*SLOT + 1024*pc}', m0gap]
        g.append((f'buffer_load_dwordx4 v{D_+pc}, s[{S_}:{S_+3}], s{K_} offen offset:{1024*(pc%4)} {cfg.wsc} lds', ('C', 4, sg, 0)))
        if pc == 7: g.append(f's_add_u32 s{K_}, s{K_}, {128*2048}')
        return g
    def cact(sub, b):
        A_, S_, K_ = (aH, S_AH, kAH) if kind(sub // 4) == 'd' else (aO, S_AO, kAO)
        r = 128 + 16*(sub % 8) + 4*b
        g = [f'buffer_load_dwordx4 a[{r}:{r+3}], v{A_+b}, s[{S_}:{S_+3}], s{K_} offen offset:{1024*(sub % 4)}{SC}']
        if b == 3 and sub % 4 == 3: g.append(f's_add_u32 s{K_}, s{K_}, 4096')
        return g
    PF = cfg.PF; vPF = 25; sDM = 55; sPF = 44
    pairs = []; sm = []; start = {}
    for n in range(17):
        st = len(pairs); start[n] = st
        if n <= 14:
            for s_ in range(8): pairs.append((qk(n+1, s_, 0, c0), qk(n+1, s_, 1, c0), kread(n+1, s_, None) if n else []))
        if n >= 1:
            for f in range(8): pairs.append((pv(n-1, f, 0, n == 1), pv(n-1, f, 1, n == 1), vread(n-1, f, ('V', 4, (n-1)//2, 0))))
        if n <= 15: sm.append((st, len(pairs), softmax_ops(n)))
    mf = []; hi.clear(); lo.clear()
    for a_, b_, _ in pairs: mf += [a_, b_]
    n_ = len(mf)
    bargap = {}
    for j in range(8):
        g = 2*(start[2*j+1] - PF) - 1; bargap[j] = g
        def bar_(p, j=j):
            if j < 7: p.need(('K', 4, j+1, 0))
            p.need(('V', 4, j, 0))
            if j == cfg.hbar: p.need(('Hst', 1, 0, 0))
            p('s_barrier')
        H(g, bar_)
    for i in range(len(pairs) - PF):
        for k, r in enumerate(pairs[i + PF][2]): H(2*i + k, r)
    for (st, en, sl) in sm:
        ng = 2*(en - st)
        for e, ops in enumerate(sl):
            for o in ops: H(2*st + min(ng - 1, e*ng//32), o)
    def act_addr(dst, stride, tmp):
        p(f's_and_b32 s{sT+3}, s{sJ}, 1\ns_mul_i32 s{sT+3}, s{sT+3}, {2*stride}\nv_lshlrev_b32 v{tmp}, 4, v1\nv_add_u32 v{dst+2}, s{sT+2}, v{tmp}')
        p(f'v_add_u32 v{dst}, s{sT+3}, v{dst+2}\nv_add_u32 v{dst+1}, {stride}, v{dst}\ns_sub_u32 s{sT+3}, {2*stride}, s{sT+3}\nv_add_u32 v{dst+2}, s{sT+3}, v{dst+2}\nv_add_u32 v{dst+3}, {stride}, v{dst+2}')
    def out_addr(dst):
        p(f's_lshl_b32 s{sT+2}, s{sRC}, 8\ns_lshl_b32 s{sT+3}, s{sW}, 6\ns_add_u32 s{sT+2}, s{sT+2}, s{sT+3}\ns_and_b32 s{sT+3}, s{sJ}, 1\ns_lshl_b32 s{sT+3}, s{sT+3}, 5\ns_add_u32 s{sT+2}, s{sT+2}, s{sT+3}\ns_lshl_b32 s{sT+2}, s{sT+2}, 11')
        p(f's_lshl_b32 s{sT+3}, s{sCC}, 8\ns_add_u32 s{sT+2}, s{sT+2}, s{sT+3}\ns_lshr_b32 s{sT+3}, s{sJ}, 1\ns_lshl_b32 s{sT+3}, s{sT+3}, 7\ns_add_u32 s{sT+2}, s{sT+2}, s{sT+3}')
        t = 36
        p(f'v_and_b32 v{t}, 7, v1\nv_lshlrev_b32 v{t}, 11, v{t}\nv_bfe_u32 v{t+1}, v1, 3, 1\nv_lshl_add_u32 v{t}, v{t+1}, 6, v{t}\nv_bfe_u32 v{t+1}, v1, 4, 1\nv_lshl_add_u32 v{t}, v{t+1}, 5, v{t}')
        p(f'v_lshrrev_b32 v{t+1}, 5, v1\nv_lshl_add_u32 v{t}, v{t+1}, 4, v{t}\nv_add_u32 v{dst}, s{sT+2}, v{t}')
    XL = 0x20000 + 4096
    def x_stage():
        out_addr(39)
        srd(p, S_H, pX, 0, 4 << 20)
        for b in range(4):
            p(f's_add_u32 m0, s{sDM}, {4096 + 1024*b}\ns_mov_b32 s{sT+2}, {b*0x4000}')
            p(f'buffer_load_dwordx4 v39, s[{S_H}:{S_H+3}], s{sT+2} offen lds')
    def setup1():
        p(f's_lshl_b32 s{sT}, s2, 2\ns_add_u32 s{sT}, s{sT}, s{sW}\ns_lshl_b32 s{sT+1}, s{sT}, 13\ns_mul_i32 s{sT}, s{sT}, 7168')
        p(f'v_lshlrev_b32 v{vPF}, 4, v1\nv_add_u32 v{vPF+1}, s{sT}, v{vPF}\nv_add_u32 v{vPF}, s{sT+1}, v{vPF}')
        srd(p, S_WO, pWO, 0, 8 << 20); srd(p, S_WD, pWD, 0, 7 << 20)
        p(f's_lshl_b32 s{sDM}, s{sMK}, 1\ns_add_u32 s{sDM}, s{sDM}, 0x20000\ns_mov_b32 s{sPF}, 0')
        p(f's_lshl_b32 s{sT}, s{sRB}, 12\ns_lshl_b32 s{sT+1}, s{sCB}, 7\ns_add_u32 s{sT}, s{sT}, s{sT+1}\ns_add_u32 s{sT}, s{sT}, {256*128}\nv_mov_b32 v{vHF}, s{sT}')
    def setup2():
        if cfg.fs:
            p(f's_lshr_b32 s{sT}, s{sNO}, 5\ns_xor_b32 s{sT}, s{sT}, s2\ns_and_b32 s{sT}, s{sT}, 1\ns_and_b32 s{sJ}, s2, 2\ns_or_b32 s{sJ}, s{sJ}, s{sT}')
            p(f's_and_b32 s{sRC}, s2, 4\ns_bfe_u32 s{sT+1}, s2, 0x20003\ns_add_u32 s{sRC}, s{sRC}, s{sT+1}\ns_lshr_b32 s{sCC}, s2, 5\ns_xor_b32 s{sCC}, s{sCC}, {cfg.ccx}')
            if cfg.fs == 1:
                p(f's_lshr_b32 s{sT+1}, s{sJ}, 1\ns_mul_i32 s{kAH}, s{sT+1}, 14\ns_lshl_b32 s{sT+2}, s{sT}, 3\ns_add_u32 s{kAH}, s{kAH}, s{sT+2}')
                p(f's_lshl_b32 s{sT+1}, s{sT+1}, 4\ns_mul_i32 s{sT+2}, s{sT}, 9\ns_add_u32 s{sT+1}, s{sT+1}, s{sT+2}\ns_mul_i32 s{sT}, s{sT}, 3\ns_sub_u32 s{sT}, 9, s{sT}')
                p(f'v_and_b32 v{vFH}, 15, v1\nv_min_u32 v{vFH}, s{sT}, v{vFH}\ns_lshl_b32 s{sT}, s{sRC}, 5\ns_add_u32 s{sT}, s{sT}, s{sT+1}\ns_add_u32 s{sT}, s{sT}, 256\ns_lshl_b32 s{sT}, s{sT}, 7')
                p(f'v_lshl_add_u32 v{vFH}, v{vFH}, 7, s{sT}')
                p(f's_lshl_b32 s{kWD}, s{kAH}, 18\ns_lshl_b32 s{kAH}, s{kAH}, 12')
            else:
                p(f's_lshl_b32 s{sT}, s{sRC}, 5\ns_lshl_b32 s{sT+1}, s{sJ}, 3\ns_add_u32 s{sT}, s{sT}, s{sT+1}\ns_add_u32 s{sT}, s{sT}, 256\ns_lshl_b32 s{sT}, s{sT}, 7')
                p(f'v_and_b32 v{vFH}, 7, v1\nv_lshl_add_u32 v{vFH}, v{vFH}, 7, s{sT}')
                p(f's_mul_i32 s{kWD}, s{sJ}, {896*2048}\ns_mul_i32 s{kAH}, s{sJ}, {28*1024}')
        else:
            p(f's_bfe_u32 s{sJ}, s2, 0x20001\ns_and_b32 s{sRC}, s2, 1\ns_lshl_b32 s{sRC}, s{sRC}, 2\ns_bfe_u32 s{sT}, s2, 0x20003\ns_add_u32 s{sRC}, s{sRC}, s{sT}\ns_lshr_b32 s{sCC}, s2, 5')
            p(f's_lshl_b32 s{sT}, s{sRC}, 5\ns_lshl_b32 s{sT+1}, s{sJ}, 3\ns_add_u32 s{sT}, s{sT}, s{sT+1}\ns_add_u32 s{sT}, s{sT}, 256\ns_lshl_b32 s{sT}, s{sT}, 7')
            p(f'v_and_b32 v{vFH}, 7, v1\nv_lshl_add_u32 v{vFH}, v{vFH}, 7, s{sT}')
            p(f's_mul_i32 s{kWD}, s{sJ}, {896*2048}\ns_mul_i32 s{kAH}, s{sJ}, {28*1024}')
        p(f's_lshl_b32 s{sT}, s{sCC}, 8\ns_add_u32 s{sT}, s{sT}, 128\ns_add_u32 s{sDE}, s{sT}, {cfg.cdel}\ns_and_b32 s{sDE}, s{sDE}, 2047\ns_sub_u32 s{sDE}, s{sDE}, s{sT}')
        x_dma_addr(dD, k_h)
        p(f's_lshl_b32 s{cMW}, s{sW}, 13')
        srd(p, S_AH, pWS, WS_H, 15 << 20)
        p(f's_lshl_b32 s{sT}, s{sRC}, 4\ns_lshl_b32 s{sT+2}, s{sW}, 2\ns_add_u32 s{sT}, s{sT}, s{sT+2}\ns_mul_i32 s{sT+2}, s{sT}, {HST}')
        act_addr(aH, HST, 36)
        t = 36
        p(f's_and_b32 s{sT+3}, s{sJ}, 2\ns_lshl_b32 s{sT+3}, s{sT+3}, 1')
        p(f'v_lshrrev_b32 v{t}, 2, v1\nv_and_b32 v{t+1}, 7, v{t}\nv_xor_b32 v{t+1}, s{sT+3}, v{t+1}\nv_lshlrev_b32 v{t}, 8, v{t}\nv_and_b32 v{t+2}, 3, v1\nv_lshl_add_u32 v{t}, v{t+2}, 3, v{t}')
        for tt in range(8):
            p(f'v_xor_b32 v{t+2}, {tt}, v{t+1}\nv_lshl_add_u32 v{cTr+tt}, v{t+2}, 5, v{t}')
        p(f's_mov_b32 s{cTG}, 0x10000')
        if cfg.c3:
            p(f's_lshr_b32 s{sT}, s2, 3\ns_lshl_b32 s{sT}, s{sT}, 2\ns_add_u32 s{sT}, s{sT}, s{sW}\ns_lshl_b32 s{sT}, s{sT}, 11\ns_add_u32 s{sT}, s{sT}, {cfg.c3l*128}')
            p(f'v_bfe_u32 v36, v1, 2, 2\nv_lshlrev_b32 v36, 18, v36\nv_bfe_u32 v37, v1, 1, 1\nv_lshl_add_u32 v36, v37, 10, v36\nv_and_b32 v37, 1, v1\nv_lshl_add_u32 v36, v37, 6, v36\nv_add_u32 v39, s{sT}, v36')
    def clear_setup():
        srd(p, S_H, pWS, WS_P + 256*3*16384, 12 << 20)
        p(f's_lshl_b32 s45, s{sRC}, 3\ns_add_u32 s45, s45, s{sCC}\ns_lshl_b32 s45, s45, 2\ns_add_u32 s45, s45, s{sJ}\ns_lshl_b32 s45, s45, 2\ns_add_u32 s45, s45, s{sW}\ns_mul_i32 s45, s45, 12288')
        p('v_lshlrev_b32 v39, 4, v1')
        for i in range(4): p(f'v_mov_b32 v{32+i}, -1')
    s2q = collect(setup2); s2per = -(-len(s2q) // 4)
    if cfg.apre:
        setup1(); setup2(); s2q = []
    else:
        for x in collect(setup1): L(16, x)
    npf = 0
    for j in range(7):
        g = bargap[j] + 1
        if j + 3 <= 7:
            L(g, f's_add_u32 s{sT+5}, s{sKV}, {(j+3)*16384}') if False else None
            L(g, f's_add_u32 s{sT+4}, s{sKV}, {(j+3)*16384}'); L(g, f's_add_u32 m0, s{sMK}, {((j+3) % 4)*16384}'); L(g, m0gap)
            for k in range(4): L(g + 3*k, kdma(k, sT+4, ('K', 4, j+3, 0)))
        if j + 2 <= 7:
            L(g + 12, f's_add_u32 s{sT+4}, s{sKV}, {(j+2)*16384}'); L(g + 12, f's_add_u32 m0, s{sMK}, {0x10000 + ((j+2) % 4)*16384}'); L(g + 12, m0gap)
            for k in range(4): L(g + 12 + 3*k, vdma(k, sT+4, ('V', 4, j+2, 0)))
        if j < 5:
            L(g + 24, f's_mov_b32 m0, s{sDM}'); L(g + 24, m0gap)
            for k in range(3):
                wo_ = npf % 2 == 0
                L(g + 24 + 4*k, f'buffer_load_dwordx4 v{vPF if wo_ else vPF+1}, s[{S_WO if wo_ else S_WD}:{(S_WO if wo_ else S_WD)+3}], s{sPF} offen lds')
                if not wo_: L(g + 24 + 4*k, f's_add_u32 s{sPF}, s{sPF}, 1024')
                npf += 1
        if cfg.cpf2 and (j in (1, 4) or cfg.cpf2 >= 2):
            for x in code_pf(S_DB, 61): L(g + 35, x)
        if j < 4:
            for x in s2q[j*s2per:(j+1)*s2per]: L(g + 36, x)
        if cfg.sent and j == 0:
            for x in collect(clear_setup): L(g + 60, x)
        if cfg.sent and 1 <= j <= 3:
            for k in range(4): L(g + 4 + 14*k, f'buffer_store_dwordx4 v[32:35], v39, s[{S_H}:{S_H+3}], s45 offen offset:{1024*k} sc1')
            L(g + 50, 's_add_u32 s45, s45, 4096')
        if j == cfg.hbar: H(g, flag_store('A_hf', vHF))
        if j == 4:
            for k, x in enumerate(collect(x_stage)): L(g + 36 + k//2, x)
        if j == 4: L(g + 40, f'buffer_load_dwordx2 v[62:63], v{vFH}, s[{S_FL}:{S_FL+3}], 0 offen sc1')
        if j == 5:
            for pc in range(8):
                for x in cdma(pc, 0): L(g + 24 + 3*pc, x)
            L(g + 50, '\n'.join(flagchk('L_h', vFH, 62)))
        if j == 6:
            for sub in range(4):
                for b in range(4):
                    for x in cact(sub, b): L(g + 3*(4*sub + b), x)
    for pc in range(8):
        for x in cdma(pc, 1): L(bargap[7] + 1 + 3*pc, x)
    if cfg.c3:
        L(bargap[6] - 4, f's_add_u32 s{sT+4}, s{kWD}, {128*2048}'); L(bargap[6] - 4, f'buffer_load_dword v61, v39, s[{S_WD}:{S_WD+3}], s{sT+4} offen ;pf')
    g = 2*start[16]
    lchk = []
    for qt in range(2):
        l = vL + 2*qt
        lchk += [f'v_add_f32 v{l}, v{l}, v{l+1}', f'v_mov_b32 v{l+1}, v{l}']
    lchk += [None, f'v_permlane32_swap_b32 v{vL}, v{vL+1}', f'v_permlane32_swap_b32 v{vL+2}, v{vL+3}', None,
             f'v_add_f32 v{vL}, v{vL}, v{vL+1}', f'v_add_f32 v{vL+2}, v{vL+2}, v{vL+3}',
             f's_mov_b32 s{sT+2}, {f2u(2.0**cfg.thr):#x}', f's_mov_b32 s{sT+3}, {f2u(2.0**-cfg.thr):#x}',
             f'v_cmp_nlt_f32 vcc, v{vL}, s{sT+2}', f'v_cmp_nlt_f32 s[{sT}:{sT+1}], v{vL+2}, s{sT+2}', None, f's_or_b64 vcc, vcc, s[{sT}:{sT+1}]',
             f'v_cmp_ngt_f32 s[{sT}:{sT+1}], v{vL}, s{sT+3}', None, f's_or_b64 vcc, vcc, s[{sT}:{sT+1}]',
             f'v_cmp_ngt_f32 s[{sT}:{sT+1}], v{vL+2}, s{sT+3}', None, f's_or_b64 vcc, vcc, s[{sT}:{sT+1}]']
    k = 0
    for x in lchk:
        if x is None: g += 1; k = 0; continue
        H(g, x); k += 1
        if k == 3: g += 1; k = 0
    assert g < n_ - 1
    def cyc(x):
        t_ = x[0] if isinstance(x, tuple) else x
        if callable(t_): return 8
        o = t_.split()[0]
        if o in TRANS: return 8
        if o.startswith('v_cvt_pk'): return 5
        if o.startswith('buffer_'): return cfg.vmc
        return 4*len(t_.split('\n')) if '\n' in t_ and ';cond' not in t_ else 4
    def cls(x):
        t_ = x[0] if isinstance(x, tuple) else x
        if callable(t_): return 'x'
        o = t_.split()[0]
        return 'm' if o.startswith('buffer_') else 'd' if o.startswith('ds_') else 'v' if o.startswith('v_') else 's'
    fill = {}; q_ = []
    for i in range(-1, n_):
        cur = list(hi.get(i, [])); cc_ = [cls(x) for x in cur]
        nd_ = cc_.count('d'); nv = nd_ + cc_.count('s') + 2*cc_.count('x') + (1 if i % 2 == 1 else 0); mem = nd_
        vroom = (cfg.av1 if nd_ else cfg.av0) - max(0, cc_.count('v') - 3); tookv = False
        for x in lo.get(i, []): q_.append((i, x))
        while q_:
            x = q_[0][1]; c_ = cls(x); force = i == n_ - 1 or i - q_[0][0] >= cfg.amax
            if c_ == 'v':
                if vroom <= 0 and not force: break
                vroom -= 1; tookv = True
            else:
                w_ = len((x[0] if isinstance(x, tuple) else x).split('\n')) if c_ == 's' else 1
                if (tookv or nv + min(w_, 2) > cfg.anv or (c_ == 'm' and mem >= cfg.amem)) and not force: break
                nv += w_; mem += c_ == 'm'
            cur.append(q_.pop(0)[1])
        fill[i] = cur
    fix_m0(fill, n_)
    if cfg.aab:
        tx = lambda x: x[0] if isinstance(x, tuple) else x
        for i in fill:
            if 2*start[3] <= i < 2*start[11]:
                if cfg.aab & 1: fill[i] = [x for x in fill[i] if callable(tx(x)) or not tx(x).startswith('buffer_load')]
                if cfg.aab & 2: fill[i] = [x for x in fill[i] if callable(tx(x)) or x in hi.get(i, []) or tx(x).startswith('buffer_load') or 'm0' in tx(x) or 's54' in tx(x)]
                if cfg.aab & 4: fill[i] = [x for x in fill[i] if not callable(tx(x))]
    for n in (1, 3, 7, 11, 15):
        t_ = ts.text(4)
        if t_: fill[2*start[n] - 1].append(t_)
    interleave(p, mf, fill)
    ts.stamp(p, 5)
    p('s_cbranch_vccnz A_slow')
    p('A_done:')
    ad = cfg.cad; P = cfg.cP
    for sub in range(4, ad):
        for b in range(4):
            for x in cact(sub, b): emit(p, x)
    p(f'v_rcp_f32 v{vL}, v{vL}\nv_rcp_f32 v{vL+2}, v{vL+2}')
    p.need(('C', 4, 0, 0)); p('s_barrier')
    for G in range(P):
        r = cA + 4*G
        p(f'ds_read_b64_tr_b16 v[{r}:{r+1}], v{cTr+G} offset:0', ('C', 4, 0, 0)); p(f'ds_read_b64_tr_b16 v[{r+2}:{r+3}], v{cTr+G} offset:4096', ('C', 4, 0, 0))
    p(';SPLIT')
    OE = cfg.oe if ND >= 7 else cfg.oes
    vO, vX, vFO, vFD, vFS, vFQ = 16, 96, 20, 21, 22, 23
    sPS, sPR = 32, 33
    def o_epi(packed):
        t = 32
        p(f'v_mov_b32 v{vL+1}, v{vL}\nv_mov_b32 v{vL+3}, v{vL+2}')
        p(f's_lshl_b32 s{sT}, s{sRB}, 4\ns_lshl_b32 s{sT+1}, s{sW}, 2\ns_add_u32 s{sT}, s{sT}, s{sT+1}\ns_mul_i32 s{sT}, s{sT}, {OST}\ns_lshl_b32 s{sT+1}, s{sCB}, 12\ns_add_u32 s{sT}, s{sT}, s{sT+1}')
        p(f'v_bfe_u32 v{t}, v1, 4, 1\nv_mul_u32_u24 v{t}, {OST}, v{t}\nv_lshrrev_b32 v{t+1}, 5, v1\nv_lshlrev_b32 v{t+1}, 8, v{t+1}\nv_and_b32 v{t+2}, 15, v1\nv_lshlrev_b32 v{t+2}, 4, v{t+2}')
        p(f'v_add3_u32 v{t}, v{t}, v{t+1}, v{t+2}\nv_add_u32 v34, s{sT}, v{t}\nv_add_u32 v35, {2*OST}, v34')
        n = 0
        for dt in range(4):
            for qt in range(2):
                o = (dt*2+qt)*16
                for half in range(2):
                    x = 96 + 8*(n % 2); d = 112 + 4*(n % 4); n += 1
                    for i in range(8): p(f'v_accvgpr_read_b32 v{x+i}, a{o+8*half+i}')
                    if packed:
                        for i in range(0, 8, 2): p(f'v_pk_mul_f32 v[{x+i}:{x+i+1}], v[{x+i}:{x+i+1}], v[{vL+2*qt}:{vL+2*qt+1}]')
                    else:
                        for i in range(8): p(f'v_mul_f32{cfg.e64} v{x+i}, v{x+i}, v{vL+2*qt}')
                        for i in range(cfg.xs): p(f's_mov_b32 s{sT+5}, {cfg.xl}')
                    for i in range(0, 8, 2): p(f'v_cvt_pk_bf16_f32 v{d+i//2}, v{x+i}, v{x+i+1}')
                    p(f'buffer_store_dwordx4 v[{d}:{d+3}], v{34+qt}, s[{S_O}:{S_O+3}], 0 offen offset:{dt*1024 + half*512} {cfg.ost}', ('Ost', 1, 0, 0))
    def s_setup():
        x_dma_addr(dO, k_o)
        srd(p, S_AO, pWS, WS_O, 17 << 20)
        p(f's_lshl_b32 s{kAO}, s{sJ}, 3')
        if NSS == 7 and cfg.fs == 2: p(f's_add_u32 s{kAO}, s{kAO}, 1')
        p(f's_lshl_b32 s{sT}, s{sRC}, 5\ns_add_u32 s{sT}, s{sT}, s{kAO}\ns_add_u32 s{sT}, s{sT}, 512\ns_lshl_b32 s{sT}, s{sT}, 7')
        p(f'v_and_b32 v{vFH}, 15, v1\nv_min_u32 v{vFH}, {NSS-1}, v{vFH}\nv_lshl_add_u32 v{vFH}, v{vFH}, 7, s{sT}')
        p(f's_lshl_b32 s{kWO}, s{kAO}, 18\ns_lshl_b32 s{kAO}, s{kAO}, 12')
        p(f's_lshl_b32 s{sT}, s{sRC}, 4\ns_lshl_b32 s{sT+2}, s{sW}, 2\ns_add_u32 s{sT}, s{sT}, s{sT+2}\ns_mul_i32 s{sT+2}, s{sT}, {OST}')
        act_addr(aO, OST, 24)
        p(f'v_add_u32 v{vFO}, {256*128}, v{vHF}')
        srd(p, S_OUT, pOUT, 0, 4 << 20); srd(p, S_P, pWS, WS_P, 24 << 20)
        p(f's_lshl_b32 s{sT}, s{sRC}, 3\ns_add_u32 s{sT}, s{sT}, s{sCC}\ns_lshl_b32 s{sT}, s{sT}, 2\ns_add_u32 s{sT+1}, s{sT}, s{sJ}')
        p(f's_add_u32 s{sT+2}, s{sT+1}, 768\ns_lshl_b32 s{sT+2}, s{sT+2}, 7\nv_mov_b32 v{vFD}, s{sT+2}\nv_add_u32 v{vFS}, {256*128}, v{vFD}')
        p(f's_add_u32 s{sT+2}, s{sT}, 768\ns_lshl_b32 s{sT+2}, s{sT+2}, 7\nv_and_b32 v{vFQ}, 3, v1\nv_lshl_add_u32 v{vFQ}, v{vFQ}, 7, s{sT+2}')
        p(f's_mul_i32 s{sT+3}, s{sW}, 12288\ns_mul_i32 s{sPR}, s{sT+1}, {3*16384}\ns_add_u32 s{sPR}, s{sPR}, s{sT+3}')
        for q_ in (1, 2, 3):
            p(f's_xor_b32 s{sT+2}, s{sT+1}, {q_}\ns_mul_i32 s{sT+2}, s{sT+2}, {3*16384}\ns_add_u32 s{sT+2}, s{sT+2}, s{sT+3}\ns_add_u32 s{sT+2}, s{sT+2}, {(q_-1)*4096}\nv_add_u32 v{24+q_}, s{sT+2}, v24')
        out_addr(vO)
    QUADS = [(t_, bp) for t_ in (4, 5, 6, 7) for bp in (0, 1)] + [(t_, 1) for t_ in range(4)]
    nsent = [0]
    def send(gemm, quads):
        for (t_, bp) in quads:
            c = 16*t_ + 8*bp; k = nsent[0]; nsent[0] += 1; d = 112 + 4*(k % 4); q_ = 2*(t_ >> 2) + bp
            if gemm == 0:
                for r in range(4): p(f'v_cvt_pk_bf16_f32 v{d+r}, v{cC+c+2*r}, v{cC+c+2*r+1}')
            else:
                x = 160 + 8*(k % 4)
                for r in range(8): p(f'v_accvgpr_read_b32 v{x+r}, a{c+r}')
                for r in range(4): p(f'v_cvt_pk_bf16_f32 v{d+r}, v{x+2*r}, v{x+2*r+1}')
                if cfg.sent:
                    for r in range(4): p(f'v_min_u32 v{d+r}, -2, v{d+r}')
            so = '0' if gemm == 0 else f's{sT+4}'
            p(f'buffer_store_dwordx4 v[{d}:{d+3}], v{24 + q_}, s[{S_P}:{S_P+3}], {so} offen offset:{1024*(t_ & 3)} {cfg.pst}', ('Pst', 1, gemm, 0))
    def send_d():
        send(0, QUADS)
        for i in (1, 2, 3):
            for r in range(8): p(f'v_mov_b32 v{cC+8*i+r}, v{cC+16*i+r}')
    mf = []; hi.clear(); lo.clear()
    ST = 128; TMS = cfg.tms
    NSUB = 4*NS
    order = [(sub // 4, sub % 4, t) for sub in range(NSUB - TMS) for t in range(8)]
    order += [(sub // 4, sub % 4, t) for t in (4, 5, 6, 7, 0, 1, 2, 3) for sub in range(NSUB - TMS, NSUB)]
    assert TMS <= 4 or NS % 2 == 0
    def ctr(G):
        sg, s, t = order[G]
        r = cA + 4*(G % 8); off = (sg % 2)*SLOT + s*8192
        a = cTr + t
        return [(f'ds_read_b64_tr_b16 v[{r}:{r+1}], v{a} offset:{off}', ('C', 4, sg, 0)),
                (f'ds_read_b64_tr_b16 v[{r+2}:{r+3}], v{a} offset:{off + 4096}', ('C', 4, sg, 0))]
    obar = math.ceil(OE) + 1; dbar = ND + math.ceil(cfg.de) + 1
    def bar(p, sgn):
        p.need(('C', 4, sgn, 0))
        if sgn == obar: p.need(('Ost', 1, 0, 0))
        if sgn == dbar: p.need(('Pst', 1, 0, 0))
        p('s_barrier')
    firstG = {}
    for G, (sg, s, t) in enumerate(order): firstG.setdefault(sg, G)
    for G in range(32*NS):
        sg, s, t = order[G]; sub = 4*sg + s
        for b in range(4):
            ra = cA + 4*(G % 8); rb = 128 + 16*(sub % 8) + 4*b; c = (t*4+b)*4
            acc_ = f'v[{cC+c}:{cC+c+3}]' if kind(sg) == 'd' else f'a[{c}:{c+3}]'
            mf.append(f'v_mfma_f32_16x16x32_bf16 {acc_}, v[{ra}:{ra+3}], a[{rb}:{rb+3}], {"0" if sub in (0, 4*ND) else acc_}')
        i0 = 4*G; Gn = G + P
        if Gn < 32*NS:
            if firstG[order[Gn][0]] == Gn: H(i0-1, lambda p, sgn=order[Gn][0]: bar(p, sgn))
            r0, r1 = ctr(Gn)
            H(i0, r0); H(i0+1, r1)
            if Gn % 64 >= 56 and Gn // 32 < NS - 1: H(i0+2, f'v_xor_b32 v{cTr + Gn % 8}, s{cTG}, v{cTr + Gn % 8}')
        sgc, g = divmod(G, 32)
        dstr = 2 if (TMS > 4 and sgc + 2 == NS - 1) else cfg.cdstr
        if g % dstr == 1 and g // dstr < 8 and sgc + 2 < NS:
            for x in cdma(g // dstr, sgc + 2): L(i0, x)
    last_act = 0
    for sub in range(ad, 4*NS):
        t0 = max((sub - 7)*32, min((sub - ad)*32, (4*NS - 8)*32 - (4*NS - 1 - sub)*cfg.ramp)) if TMS else (sub - ad)*32
        t1 = max((sub - 6)*32, min((sub + 1 - ad)*32, (4*NS - 8)*32 - (4*NS - 2 - sub)*cfg.ramp)) if TMS else t0 + 32
        for b in range(4):
            last_act = t0 + b*min(8, (t1 - t0)//4)
            for x in cact(sub, b): L(last_act, x)
    if cfg.cpf2:
        for k in ((1,) if cfg.cpf2 < 2 else range(0, math.floor(OE))):
            for x in code_pf(S_DB, 61): L(k*ST + 4*30, x)
        for x in code_srd(S_AH, 'L_pc3' + SFX): L(ND*ST, x)
        for k in ((ND, ND + 3) if cfg.cpf2 < 2 else range(ND, NS - 2)):
            for x in code_pf(S_AH, 61): L(k*ST + 4*30, x)
    if cfg.c3:
        L((ND - 2)*ST, f's_add_u32 s{sT+4}, s{kWO}, {cfg.c3s*128*2048}'); L((ND - 2)*ST, f'buffer_load_dword v61, v39, s[{S_WO}:{S_WO+3}], s{sT+4} offen ;pf')
    n = len(mf)
    fill = spread(hi, {k: lo[k] for k in sorted(lo)}, n, cfg.cap, 16, cost=lambda i: 1 if i % 4 == 3 else 0)
    fix_m0(fill, n)
    def ride(items, g0, g1):
        q_ = list(items); per = len(q_) / (g1 - g0); due = 0.0; done = 0
        for i in range(g0, g1):
            due += per
            used = len(fill[i]) + (1 if i % 4 == 3 else 0)
            while q_ and done < due + 2 and (used < cfg.cap or done < due - cfg.lag):
                fill[i].append(q_.pop(0)); used += 1; done += 1
        fill[g1-1] += q_
    oq = collect(lambda: o_epi(cfg.ox > 0))
    nx = 0
    if cfg.ox:
        idx = [i for i, x in enumerate(oq) if x[0].startswith('buffer_store')]
        nx = idx[cfg.ox - 1] + 1
        fill[-1] = oq[:nx] + fill[-1]
        oq2 = collect(lambda: o_epi(False))
        idx2 = [i for i, x in enumerate(oq2) if x[0].startswith('buffer_store')]
        oq = oq2[idx2[cfg.ox - 1] + 1:]
    if oq: ride(oq, 2, int(OE*ST))
    ride(collect(s_setup), int(OE*ST), int(OE*ST) + ST - 20)
    fill[obar*ST - 4*P + 2].append(flag_store('C_of' + SFX, vFO))
    first_o = (4*ND - ad)*32
    assert first_o - 2 > int(OE*ST) + ST - 20 and (ND - 2)*ST > int(OE*ST) + ST - 20
    fill[first_o - cfg.fl].append(f'buffer_load_dwordx2 v[62:63], v{vFH}, s[{S_FL}:{S_FL+3}], 0 offen sc1')
    fill[first_o - 2].append('\n'.join(flagchk('L_o' + SFX, vFH, 62)))
    ride(collect(send_d), ND*ST + 8, ND*ST + int(cfg.de*ST))
    fill[dbar*ST - 4*P + 2].append(flag_store('C_df' + SFX, vFD))
    xl = [f's_lshl_b32 s{sT+2}, s{sW}, 13', f's_add_u32 s{sT+2}, s{sT+2}, {XL}', 'v_and_b32 v36, 0x37, v1', 'v_lshlrev_b32 v36, 4, v36', 'v_bfe_u32 v37, v1, 3, 1', 'v_lshl_add_u32 v36, v37, 10, v36', f'v_add_u32 v39, s{sT+2}, v36']
    xl += [f'ds_read_b128 v[{vX+8*b+4*pr}:{vX+8*b+4*pr+3}], v39 offset:{2048*b + 128*pr}' for b in range(2) for pr in range(2)]
    vR = 192
    def recv(gemm):
        p(f's_add_u32 s{sT+2}, s{sPR}, {gemm*256*3*16384}')
        for q_ in range(3):
            for i in range(4):
                r = vR + 16*q_ + 4*i
                p(f'buffer_load_dwordx4 v[{r}:{r+3}], v24, s[{S_P}:{S_P+3}], s{sT+2} offen offset:{1024*i} sc1')
            if q_ < 2: p(f's_add_u32 s{sT+2}, s{sT+2}, 4096')
    dchk = NS - cfg.dchk
    assert not cfg.sent or int(dchk*ST) < (NSUB - TMS)*32 + TMS*4
    fill[int(dchk*ST) - cfg.fl].append(f'buffer_load_dwordx2 v[62:63], v{vFQ}, s[{S_FL}:{S_FL+3}], 0 offen sc1')
    fill[int(dchk*ST)].append('\n'.join(flagchk('L_d' + SFX, vFQ, 62)))
    r0_ = max(int(dchk*ST) + 2, last_act + 18)
    ride(collect(lambda: recv(0)), r0_, r0_ + 48)
    fill[(NS - 3)*ST].append(f's_mov_b32 s{sT+4}, {256*3*16384}')
    left = list(QUADS)
    if TMS:
        base = (NSUB - TMS)*32; plen = TMS*4
        for k, t_ in enumerate((4, 5, 6, 7, 0, 1, 2)):
            qs_ = [x for x in QUADS if x[0] == t_]; left = [x for x in left if x[0] != t_]
            g0 = base + (k + 1)*plen + 3
            ride(collect(lambda: send(1, qs_)), g0, min(n, g0 + plen))
    ts.stamp(p, 7)
    for k in range(1, 15):
        if k in (1, 2, 3, 4, 5, 6, 7, 8, 9, 11, 13):
            t_ = ts.text(2)
            if t_: fill[k*ST - 1].append(t_)
    interleave(p, mf, fill)
    if cfg.pw:
        p(f's_lshl_b32 s{sT+2}, s{sW}, 7\ns_add_u32 s{sT+2}, s{sT+2}, {(2304 - 4*768)*128}\nv_lshl_add_u32 v{vFS}, v{vFD}, 2, s{sT+2}\nv_lshl_add_u32 v{vFQ}, v{vFQ}, 2, s{sT+2}')
        p(f's_mov_b32 s{sT+3}, 0xffff0000\ns_nop 2')
    else:
        p(f's_mov_b32 s{sT+3}, 0xffff0000\nv_add_u32 v{vFQ}, {256*128}, v{vFQ}\ns_nop 4')
    ts.stamp(p, 3)
    for x in xl: p(x)
    send(1, left)
    RS = (160, 176, 240)
    def recv_s(q_, cond=''):
        for i in range(4):
            p(f'buffer_load_dwordx4 v[{RS[q_]+4*i}:{RS[q_]+4*i+3}], v24, s[{S_P}:{S_P+3}], s{44+q_} offen offset:{1024*i} sc1{cond}')
    if cfg.sent:
        p(f's_add_u32 s44, s{sPR}, {256*3*16384}\ns_add_u32 s45, s44, 4096\ns_add_u32 s46, s45, 4096')
        for q_ in range(3): recv_s(q_)
    pk = lambda r: f'v[{r}:{r+1}]'
    def addparts(dst, i, src):
        for q_ in range(3):
            rr = src[q_] + 4*i; tt = 32 + 8*(q_ % 2)
            for r in range(4): p(f'v_lshlrev_b32 v{tt+2*r}, 16, v{rr+r}\nv_and_b32 v{tt+2*r+1}, s{sT+3}, v{rr+r}')
            for r in range(0, 8, 2): p(f'v_pk_add_f32 {pk(dst+r)}, {pk(dst+r)}, {pk(tt+r)}')
    p(f'v_mov_b32 v28, {f2u(-math.log2(math.e)):#x}\nv_mov_b32 v29, v28')
    RD = (vR, vR + 16, vR + 32)
    for i in range(4):
        c = cC + 8*i; B = 48
        addparts(c, i, RD)
        for r in range(0, 8, 2): p(f'v_pk_mul_f32 {pk(B+r)}, {pk(c+r)}, v[28:29]')
        for r in range(8): p(f'v_exp_f32 v{B+r}, v{B+r}')
        p('s_nop 0')
        for r in range(0, 8, 2): p(f'v_pk_add_f32 {pk(B+r)}, {pk(B+r)}, 1.0 op_sel_hi:[1,0]')
        for r in range(8): p(f'v_rcp_f32 v{B+r}, v{B+r}')
        p('s_nop 0')
        for r in range(0, 8, 2): p(f'v_pk_mul_f32 {pk(c+r)}, {pk(c+r)}, {pk(B+r)}')
    vSs = 64
    for i in range(32): p(f'v_accvgpr_read_b32 v{vSs+i}, a{16*(i//8) + i % 8}')
    E = 192 if cfg.sent else 160
    def xunpack():
        for b in range(4):
            for q in range(4): p(f'v_lshlrev_b32 v{E+8*b+2*q}, 16, v{vX+4*b+q}\nv_and_b32 v{E+8*b+2*q+1}, s{sT+3}, v{vX+4*b+q}')
    if cfg.sent:
        xunpack()
        ts.stamp(p)
        p(f'C_chk{SFX}:\ns_waitcnt vmcnt(0)\ns_mov_b32 s47, 0')
        for q_ in range(3):
            r = RS[q_]
            p(f'v_max3_u32 v32, v{r}, v{r+1}, v{r+2}')
            for k in range(3, 15, 2): p(f'v_max3_u32 v32, v32, v{r+k}, v{r+k+1}')
            p(f'v_max_u32 v32, v32, v{r+15}\nv_cmp_eq_u32 vcc, -1, v32\ns_nop 1\ns_cbranch_vccz C_ok{q_}{SFX}')
            p.cond(True)
            p(f's_sleep {cfg.slp2}\ns_mov_b32 s47, 1'); recv_s(q_)
            p.cond(False)
            p(f'C_ok{q_}{SFX}:')
        p(f's_cmp_lg_u32 s47, 0\ns_cbranch_scc1 C_chk{SFX}')
        ts.stamp(p)
        src = RS
    else:
        if cfg.pw:
            xunpack()
            p('s_waitcnt vmcnt(0)')
            ts.stamp(p)
            p(f'buffer_store_dwordx2 v[2:3], v{vFS}, s[{S_FL}:{S_FL+3}], 0 offen sc1')
            p.cond(True)
            poll('C_poll' + SFX, vFQ, 'C_got' + SFX)
            p.cond(False)
            p(f'C_got{SFX}:')
            ts.stamp(p)
        else:
            p('s_waitcnt vmcnt(0)\ns_barrier')
            ts.stamp(p)
            p(f's_cmp_eq_u32 s{sW}, 1\ns_cbranch_scc0 C_got{SFX}')
            p.cond(True)
            p(f'buffer_store_dwordx2 v[2:3], v{vFS}, s[{S_FL}:{S_FL+3}], 0 offen sc1')
            poll('C_poll' + SFX, vFQ, 'C_got' + SFX)
            p.cond(False)
            p(f'C_got{SFX}:\ns_barrier')
            ts.stamp(p)
        recv(1)
        if not cfg.pw: xunpack()
        src = RD
    for i in range(4): addparts(vSs + 8*i, i, src)
    for i in range(0, 32, 2): p(f'v_pk_mul_f32 {pk(vSs+i)}, {pk(vSs+i)}, {pk(cC+i)}')
    for b in range(2):
        P0, P1, T_ = 112 + 8*b, 116 + 8*b, 32
        for pr in range(2):
            c0 = vSs + 16*pr + 4*b; c1 = c0 + 8
            for r in range(4): p(f'v_permlane16_swap_b32 v{c0+r}, v{c1+r}')
        for pr in range(2):
            c0 = vSs + 16*pr + 4*b; c1 = c0 + 8; e = E + 16*b + 8*pr
            for q in range(4):
                c = (c0, c0+2, c1, c1+2)[q]
                p(f'v_pk_add_f32 {pk(e+2*q)}, {pk(e+2*q)}, {pk(c)}')
            for q in range(4): p(f'v_cvt_pk_bf16_f32 v{(P0, P1)[pr]+q}, v{e+2*q}, v{e+2*q+1}')
        for q in range(4): p(f'v_mov_b32 v{T_+q}, v{P1+q}')
        for q in range(4): p(f'v_mov_b32_dpp v{P1+q}, v{P0+q} row_ror:8 row_mask:0xf bank_mask:0x3')
        for q in range(4): p(f'v_mov_b32_dpp v{P0+q}, v{T_+q} row_ror:8 row_mask:0xf bank_mask:0xc')
        p(f's_mov_b32 s{sT}, {2*b*0x4000}\ns_mov_b32 s{sT+1}, {(2*b+1)*0x4000}')
        p(f'buffer_store_dwordx4 v[{P0}:{P0+3}], v{vO}, s[{S_OUT}:{S_OUT+3}], s{sT} offen {cfg.osc}')
        p(f'buffer_store_dwordx4 v[{P1}:{P1+3}], v{vO}, s[{S_OUT}:{S_OUT+3}], s{sT+1} offen {cfg.osc}')
    ts.stamp(p)
    if cfg.ts: p('s_waitcnt vmcnt(0)')
    ts.stamp(p)
    ts.dump(p, pWS)
    p('s_endpgm')
    autowait(p)
    if cfg.hoist: hoist(p)
    if not cfg.aab: check(p, 'main')

    z = Prog(); main = p; p = z
    p('A_slow:')
    p('s_waitcnt vmcnt(0) lgkmcnt(0)')
    srd(p, S_K, pK, 0, 2 << 20); srd(p, S_V, pV, 0, 2 << 20)
    zK, zD, zV = 13, 14, 21
    zKV, zN = sT, sT+1
    p(f's_lshr_b32 s{zKV}, s{sCB}, 3\ns_lshl_b32 s{zKV}, s{zKV}, 19\ns_add_u32 s{zKV}, s{zKV}, {1536*256}')
    p(f'v_and_b32 v{zK}, 31, v1\nv_lshlrev_b32 v{zK}, 8, v{zK}\nv_lshrrev_b32 v36, 5, v1\nv_lshl_add_u32 v{zK}, v36, 4, v{zK}')
    p(f'v_lshrrev_b32 v36, 4, v1\nv_and_b32 v37, 15, v1\nv_lshlrev_b32 v38, 2, v36\nv_xor_b32 v37, v37, v38\nv_lshlrev_b32 v36, 8, v36\nv_lshl_add_u32 v{zD}, v37, 4, v36\nv_add_u32 v{zD+1}, 0x1000, v{zD}')
    t = 36
    p(f'v_lshrrev_b32 v{t}, 5, v1\nv_lshlrev_b32 v{t}, 2, v{t}\nv_bfe_u32 v{t+1}, v1, 2, 2\nv_add_u32 v{t}, v{t}, v{t+1}\nv_lshlrev_b32 v{t}, 8, v{t}')
    p(f'v_bfe_u32 v{t+2}, v1, 4, 1\nv_lshlrev_b32 v{t+2}, 5, v{t+2}\nv_and_b32 v{t+3}, 3, v1\nv_lshlrev_b32 v{t+3}, 3, v{t+3}\nv_add3_u32 v{t}, v{t}, v{t+2}, v{t+3}')
    p(f's_lshl_b32 s{sT+2}, s{sW}, 13\ns_add_u32 s{sT+2}, s{sT+2}, 0x10000\nv_add_u32 v{t}, s{sT+2}, v{t}')
    for dt in range(4): p(f'v_xor_b32 v{t+2}, {dt}, v{t+1}\nv_lshl_add_u32 v{zV+dt}, v{t+2}, 6, v{t}')
    def kglob():
        for s in range(8): p(f'buffer_load_dwordx4 a[{aF+4*s}:{aF+4*s+3}], v{zK}, s[{S_K}:{S_K+3}], s{zN} offen offset:{32*s}')
    p(f'v_mov_b32 v32, 0xff800000\nv_mov_b32 v34, 0xff800000\ns_mov_b32 s{zN}, s{zKV}\ns_mov_b32 s{sT+3}, 16')
    p.loop_begin('Z1_loop', 16, align=False)
    kglob()
    for s in range(8):
        for qt in range(2): p(qk(0, s, qt, zero))
    p('s_nop 7\ns_nop 3')
    rowmax(0, False)
    p(f's_add_u32 s{zN}, s{zN}, 8192\ns_sub_u32 s{sT+3}, s{sT+3}, 1\ns_cmp_lg_u32 s{sT+3}, 0\ns_cbranch_scc1 Z1_loop')
    p.loop_end()
    set_negm()
    for i in range(128): p(f'v_accvgpr_write_b32 a{i}, 0')
    for i in range(4): p(f'v_mov_b32 v{vL+i}, 0')
    p(f's_mov_b32 s{zN}, s{zKV}\ns_mov_b32 s{sT+3}, 16')
    p.loop_begin('Z2_loop', 16, align=False)
    kglob()
    for j in range(8):
        if j % 4 == 0: p(f's_add_u32 m0, s{sT+2}, {1024*j}\ns_nop 0')
        p(f'buffer_load_dwordx4 v{zD + j//4}, s[{S_V}:{S_V+3}], s{zN} offen offset:{1024*(j%4)} lds')
    for s in range(8):
        for qt in range(2): p(qk(0, s, qt, negm))
    p('s_nop 7\ns_nop 3')
    for ops in softmax_ops(0):
        for o in ops: p(o)
    p('s_waitcnt vmcnt(0)')
    for f in range(8):
        for r in vread(0, f, None, base=zV, off0=0): emit(p, r)
    for f in range(8):
        for qt in range(2): p(pv(0, f, qt))
    p(f's_add_u32 s{zN}, s{zN}, 8192\ns_sub_u32 s{sT+3}, s{sT+3}, 1\ns_cmp_lg_u32 s{sT+3}, 0\ns_cbranch_scc1 Z2_loop')
    p.loop_end()
    p('s_nop 7\ns_nop 7')
    for qt in range(2):
        l = vL + 2*qt
        p(f'v_add_f32 v{l}, v{l}, v{l+1}\nv_mov_b32 v{l+1}, v{l}\ns_nop 1\nv_permlane32_swap_b32 v{l}, v{l+1}\ns_nop 1\nv_add_f32 v{l}, v{l}, v{l+1}')
    p('s_branch A_done')
    autowait(z); check(z, 'slow')
    txt = main.text()
    if cfg.jit:
        n_ = [0]
        def jit(m):
            n_[0] += 1
            if n_[0] % cfg.jit: return m.group(0)
            l = f'J{SFX if ";SPLIT" in txt[:m.start()] else ""}_{n_[0]}'
            return (f'  s_mul_i32 s98, s2, {7 + 2*n_[0]}\n  s_mul_i32 s99, s36, {13 + n_[0]}\n  s_add_u32 s98, s98, s99\n  s_getreg_b32 s99, hwreg(HW_REG_SHADER_CYCLES, 0, 8)\n'
                    if False else
                    f'  s_mov_b32 s99, scc\n' if False else '') + f'  s_cselect_b32 s97, 1, 0\n  s_mul_i32 s98, s2, {7 + 2*n_[0]}\n  s_mul_i32 s99, s36, {13 + n_[0]}\n  s_add_u32 s98, s98, s99\n  s_and_b32 s98, s98, 7\n{l}:\n  s_sleep 8\n  s_sub_u32 s98, s98, 1\n  s_cmp_ge_i32 s98, 0\n  s_cbranch_scc1 {l}\n  s_cmp_eq_u32 s97, 1\n' + m.group(0)
        import re
        txt = re.sub(r'  s_barrier', jit, txt)
    pre_, c_ = txt.split(';SPLIT')
    return pre_, c_, z.text(), sJ

def main():
    cfg = Cfg()
    cfg.ts = 1; cfg.xmap = 'b'; cfg.stag = 0; cfg.P = 4; cfg.late1 = 1; cfg.w0 = 0; cfg.cw0 = 8
    cfg.d0 = 0; cfg.dstr = 4; cfg.a0 = 1; cfg.astr = 2; cfg.ad = 3; cfg.PF = 3; cfg.cap = 2
    cfg.cad = 5; cfg.cdstr = 4; cfg.cP = 4; cfg.thr = 40; cfg.tail0 = 4; cfg.sum = 'add'; cfg.hbar = 2; cfg.t1e = 1; cfg.t0e = 0; cfg.npre = 2; cfg.gl = 1; cfg.perm = 0; cfg.lad = 1; cfg.pw = 0; cfg.av0 = 2; cfg.av1 = 1; cfg.anv = 2; cfg.amem = 2; cfg.hoist = 1; cfg.apre = 0; cfg.jit = 0; cfg.ost = 'sc1'; cfg.pst = 'sc1'; cfg.m0 = 0; cfg.c3 = 0; cfg.xat = -1; cfg.c3l = 3; cfg.c3s = 2; cfg.wsc = ''; cfg.gsc = ''; cfg.cdel = 0; cfg.ccx = 0; cfg.xbar = 90; cfg.fs1 = 6; cfg.xe = 0; cfg.xchk = 230; cfg.xfl = 60; cfg.xt = 0; cfg.fs = 1; cfg.oes = 2; cfg.sent = 0; cfg.slp2 = 4; cfg.trk = 2; cfg.kvp = 1; cfg.trk0 = 1; cfg.pf4 = 0; cfg.pf4n = 8; cfg.pf3 = 0; cfg.aab = 0; cfg.e64 = ''; cfg.xs = 0; cfg.xl = 1; cfg.cpf2 = 2; cfg.loc = 0; cfg.fremote = 0; cfg.ox = 0; cfg.ramp = 20; cfg.lag = 3; cfg.vmc = 8; cfg.acap = 24; cfg.amax = 40; cfg.wb = 0; cfg.opad = 256; cfg.xpad = 256; cfg.hpad = 0; cfg.oe = 3; cfg.de = 3; cfg.tms = 8; cfg.fl = 128; cfg.dchk = 1.65; cfg.dbg = 0; cfg.cpf = 1; cfg.tlb = 0; cfg.osc = 'sc1'; cfg.slp = 1; cfg.late0 = 2
    for a in sys.argv[2:]:
        k, v = a.split('='); setattr(cfg, k, int(v) if v.lstrip('-').isdigit() else float(v) if v.replace('.','').isdigit() else v)
    kn = NAME + '_kernel'
    doc = """; out = x + (attn(LN(x) wq, K, V) wo) * silu((gelu(LN(x) wg) * (LN(x) wu)) wd)      bf16 in/out, fp32 accumulation
; Kernarg: 0 x, 8 k_cache, 16 v_cache, 24 wq, 32 wo, 40 (unused), 48 w_gate, 56 w_up, 64 w_down, 72 out, 80 debug, 88 workspace
;  0  LayerNorm statistics of 8 tokens -> {mean, 1/std} records and normalised rows (MFMA B-fragment order) in the workspace
"""
    hdr = (f'; opad={cfg.opad} hoff={WS_H} xpad={cfg.xpad} hpad={cfg.hpad} ooff={WS_O}\n' + doc + f'; @launch grid=(256,1,1) block=(256,1,1) lds={LDS_TOT}\n'
           '.amdgcn_target "amdgcn-amd-amdhsa--gfx950"\n')
    if cfg.fs:
        (a, c8, z, sJ), (a6, c6, _, _) = (gen(cfg, 8), gen(cfg, 6)) if cfg.fs == 1 else (gen(cfg, 7, 9), gen(cfg, 7, 7))
        assert a == a6
        body = a + f'  s_bitcmp1_b32 s{sJ}, 0\n  s_cbranch_scc1 C_short\n' + c8 + '\nC_short:\n' + c6
    else:
        a, c7, z, _ = gen(cfg, 7); body = a + c7
    s = hdr + kernel_head(kn) + body + '\nK_end:\n  s_endpgm\n' + z + '\nK_last:\n' + kernel_desc(kn, 512, 256)
    s = '\n'.join(l for l in s.split('\n') if not l.strip().startswith(('; need', '; touch'))).replace(' offset:0 ', ' ').replace(' offset:0\n', '\n').replace('\n  ', '\n ')
    open(sys.argv[1], 'w').write(s)
if __name__ == '__main__': main()
```

```python
import sys, struct, math
from dsl import *
from gen2 import (f2u, srd, kernel_head, kernel_desc, emit, interleave, spread, m0gap, fix_m0, chk_tail, Cfg)

NAME = 'recurrent_scan__sliding_block_cached__geglu_ffn__prompt'
WS_XN = 0
WS_O  = 5 << 20
WS_H  = 23 << 20
WS_G  = 36 << 20
WS_FL = 40 << 20
WS_ST = 41 << 20
WS_TS = 48 << 20
WS_P  = 64 << 20
HS = 22528; NHS = 7
LDS_SCR = NHS*HS
LDS_TOT = 163840

class TS:
    def __init__(self, on): self.on = on; self.n = 0
    def text(self, grp):
        if not self.on & grp or self.n >= 14: return None
        s = 88 + self.n; self.n += 1
        clk = 's_memtime' if self.on & 8 else 's_memrealtime'
        return f's_waitcnt lgkmcnt(0)\n{clk} s[4:5]\ns_waitcnt lgkmcnt(0)\ns_mov_b32 s{s}, s4'
    def stamp(self, p, grp=1):
        t = self.text(grp)
        if t: p(t)
    def old(self, p):
        if not self.on: return
        s = 88 + self.n; self.n += 1;
        if s >= 102: return
        p(f's_waitcnt lgkmcnt(0)\ns_memrealtime s[4:5]\ns_waitcnt lgkmcnt(0)\ns_mov_b32 s{s}, s4')
    def dump(self, p, wsptr):
        if not self.on: return
        if self.on & 16:
            p('s_load_dwordx2 s[12:13], s[0:1], 80\ns_waitcnt lgkmcnt(0)\ns_mov_b32 s14, 256\ns_mov_b32 s15, 0x20000\nv_mov_b32 v8, 0\ns_mov_b64 exec, 1')
            for i in range(min(self.n, 14)):
                p(f's_sub_u32 s4, s{88+i}, s6\nv_mov_b32 v4, s4\nbuffer_atomic_smax v4, v8, s[12:15], 0 offen offset:{8+4*i}\ns_nop 1')
            return
        srd(p, 12, wsptr, WS_TS, 1 << 20)
        p('s_lshl_b32 s3, s2, 8\ns_lshl_b32 s4, s36, 6\ns_add_u32 s3, s3, s4\nv_mov_b32 v8, s3')
        p('s_getreg_b32 s4, hwreg(HW_REG_XCC_ID, 0, 4)\nv_mov_b32 v4, s4\nbuffer_store_dword v4, v8, s[12:15], 0 offen offset:60\ns_nop 1')
        for i in range(min(self.n, 14)):
            p(f'v_mov_b32 v4, s{88+i}\nbuffer_store_dword v4, v8, s[12:15], 0 offen offset:{4*i}\ns_nop 1')

def gen(cfg, ND, NSS=8):
    SFX = f'_{ND}{NSS}'
    OST = 131072 + cfg.opad; XST = 32768 + cfg.xpad; HST = 112*1024 + cfg.hpad
    p = Prog(); ts = TS(cfg.ts)
    SC = ' sc1'; LS = '' if cfg.loc else ' sc1'
    assert cfg.xmap == 'c' or not cfg.loc
    pX, pK, pV, pWQ, pWO, pWG, pWU, pWD, pOUT, pDBG, pWS = 64, 66, 68, 70, 72, 76, 78, 80, 82, 84, 86
    S_W, S_Q, S_XN, S_H, S_K, S_V, S_O = 8, 12, 16, 20, 24, 28, 32
    S_FL, S_DB = 56, 60
    sW, sRB, sCB, sKW, sKQ, sKA, sCNT = 36, 37, 38, 39, 40, 41, 42
    sMW, sMQ, sRD, sDL, sLEFT, sLEFA, sRW, sRQ = 43, 44, 45, 46, 47, 48, 49, 3
    sT = 50
    p('K_first:\ns_cmp_ge_u32 s2, 256\ns_cbranch_scc1 K_end')
    if cfg.perm: p(f's_lshr_b32 s3, s2, 3\ns_and_b32 s3, s3, 7\ns_mul_i32 s3, s3, {cfg.perm}\ns_and_b32 s3, s3, 7\ns_xor_b32 s2, s2, s3')
    p('s_load_dwordx16 s[64:79], s[0:1], 0\ns_load_dwordx8 s[80:87], s[0:1], 64')
    p(f'v_lshrrev_b32 v2, 6, v0\nv_and_b32 v1, 63, v0\nv_readfirstlane_b32 s{sW}, v2')
    p(f's_and_b32 s{sT}, s2, 7\ns_lshr_b32 s{sT+1}, s2, 3')
    if cfg.xmap == 'c':
        p(f's_and_b32 s{sRB}, s{sT}, 1\ns_lshl_b32 s{sRB}, s{sRB}, 2\ns_and_b32 s{sT+2}, s{sT+1}, 3\ns_add_u32 s{sRB}, s{sRB}, s{sT+2}')
        p(f's_lshr_b32 s{sCB}, s{sT}, 1\ns_lshl_b32 s{sCB}, s{sCB}, 3\ns_lshr_b32 s{sT+2}, s{sT+1}, 2\ns_add_u32 s{sCB}, s{sCB}, s{sT+2}')
    else:
        p(f's_and_b32 s{sRB}, s{sT+1}, 7\ns_lshl_b32 s{sCB}, s{sT}, 2\ns_lshr_b32 s{sT+2}, s{sT+1}, 3\ns_add_u32 s{sCB}, s{sCB}, s{sT+2}')
    vAct, vDW, vDQ, vTr, vTq, vT = 4, 8, 15, 19, 20, 28
    vA, RA = 32, 8
    vB, RB = 64, 4
    def acc(t, b):
        if t < 16: c = (t*4+b)*4; return f'a[{c}:{c+3}]'
        c = 160 + ((t-16)*4+b)*4; return f'v[{c}:{c+3}]'
    def accr(t, b, r):
        if t < 16: return f'a{(t*4+b)*4+r}'
        return f'v{160+((t-16)*4+b)*4+r}'
    vLX, vLO, vLS = 128, 129, 130
    t = 132
    p(f's_lshl_b32 s{sT}, s{sRB}, 8\ns_lshl_b32 s{sT+1}, s{sCB}, 3\ns_add_u32 s{sT}, s{sT}, s{sT+1}\ns_lshl_b32 s{sT}, s{sT}, 11\ns_lshl_b32 s{sT+1}, s{sW}, 9\ns_add_u32 s{sT}, s{sT}, s{sT+1}')
    p(f'v_and_b32 v{t}, 7, v1\nv_bfe_u32 v{t+1}, v1, 3, 1\nv_lshrrev_b32 v{t+2}, 4, v1')
    p(f'v_lshlrev_b32 v{t+3}, 11, v{t}\nv_lshlrev_b32 v{t+4}, 8, v{t+1}\nv_lshlrev_b32 v{t+5}, 4, v{t+2}\nv_add3_u32 v{t+3}, v{t+3}, v{t+4}, v{t+5}\nv_add_u32 v{vLX}, s{sT}, v{t+3}')
    KW, KQ, KA, NT = 64*7168, 64*8192, 2048, 16
    sNO = 6
    vRX = 140; RAWL = 4*HS
    vSR = 139
    def late_addr():
        t = 132
        p(f's_lshl_b32 s{sT}, s{sRB}, 4\ns_lshr_b32 s{sT+1}, s{sCB}, 1\ns_add_u32 s{sT}, s{sT}, s{sT+1}\ns_mul_i32 s{sT}, s{sT}, {XST}\ns_lshl_b32 s{sT+1}, s{sW}, 13\ns_add_u32 s{sT}, s{sT}, s{sT+1}')
        p(f's_and_b32 s{sT+1}, s{sCB}, 1\ns_lshl_b32 s{sT+1}, s{sT+1}, 7\ns_add_u32 s{sT}, s{sT}, s{sT+1}')
        p(f'v_lshlrev_b32 v{t+3}, 4, v{t}\nv_lshlrev_b32 v{t+4}, 12, v{t+1}\nv_lshlrev_b32 v{t+5}, 8, v{t+2}\nv_add3_u32 v{t+4}, v{t+3}, v{t+4}, v{t+5}\nv_add_u32 v{vLO}, s{sT}, v{t+4}')
        p(f'v_add_u32 v{vLS}, {LDS_SCR}, v{t+3}\nv_lshl_add_u32 v{vLS+1}, v2, 2, v{vLS}')
        p(f's_and_b32 s{sT}, s{sW}, 1\ns_mul_i32 s{sT}, s{sT}, {32*7168}\ns_mul_i32 s{sT+1}, s{sCB}, 224\ns_add_u32 s{sT}, s{sT}, s{sT+1}')
        p(f's_mov_b32 s{sT+1}, 4682\ns_mov_b32 s{sT+2}, 7168')
        for n in range(448): assert (n*4682) >> 16 == n // 14
        t = 32
        for pc in range(7):
            p(f'v_add_u32 v{t}, {64*pc}, v1')
            p(f'v_mul_u32_u24 v{t+1}, s{sT+1}, v{t}\nv_lshrrev_b32 v{t+1}, 16, v{t+1}')
            p(f'v_mul_u32_u24 v{t+2}, 14, v{t+1}\nv_sub_u32 v{t+2}, v{t}, v{t+2}')
            p(f'v_and_b32 v{t+3}, 0x13, v{t+1}\nv_and_b32 v{t+4}, 4, v{t+1}\nv_lshl_or_b32 v{t+3}, v{t+4}, 1, v{t+3}')
            p(f'v_bfe_u32 v{t+4}, v{t+1}, 3, 1\nv_lshl_or_b32 v{t+3}, v{t+4}, 2, v{t+3}')
            p(f'v_mul_u32_u24 v{t+3}, s{sT+2}, v{t+3}\nv_lshlrev_b32 v{t+2}, 4, v{t+2}\nv_add3_u32 v{vDW+pc}, v{t+3}, v{t+2}, s{sT}')
            if pc % 4: p(f'v_subrev_u32 v{vDW+pc}, {1024*(pc%4)}, v{vDW+pc}')
        p(f's_lshl_b32 s{sT}, s{sW}, 17\ns_lshl_b32 s{sT+1}, s{sCB}, 8\ns_add_u32 s{sT}, s{sT}, s{sT+1}')
        p(f'v_lshrrev_b32 v{t}, 4, v1\nv_and_b32 v{t+1}, 15, v1\nv_lshlrev_b32 v{t+2}, 1, v{t}\nv_xor_b32 v{t+1}, v{t+1}, v{t+2}')
        p(f'v_lshlrev_b32 v{t}, 13, v{t}\nv_add_u32 v{t}, s{sT}, v{t}')
        for j in range(4):
            p(f'v_xor_b32 v{t+2}, {8*(j>>1)}, v{t+1}\nv_lshl_add_u32 v{t+2}, v{t+2}, 4, v{t}')
            p(f'v_add_u32 v{vDQ+j}, {j*(4*8192-1024)}, v{t+2}')
        p(f's_and_b32 s{sT}, s{sW}, 1\ns_lshr_b32 s{sT+1}, s{sW}, 1')
        p(f's_mul_i32 s{sMW}, s{sT}, {HS}\ns_mul_i32 s{sRW}, s{sT+1}, 7168')
        p(f's_mul_i32 s{sMQ}, s{sT+1}, {HS}\ns_lshl_b32 s{sRQ}, s{sT}, 12\ns_add_u32 s{sRQ}, s{sRQ}, 14336')
        p(f's_mov_b32 s{sKW}, 0\ns_mov_b32 s{sKQ}, 0\ns_mov_b32 s{sKA}, {2*KA}')
        p(f's_mov_b32 s{sRD}, 0')
        p(f's_lshl_b32 s{sT}, s{sRB}, 8\ns_lshl_b32 s{sT+1}, s{sW}, 6\ns_add_u32 s{sT+5}, s{sT}, s{sT+1}\ns_lshl_b32 s{sT}, s{sT+5}, 11')
        p(f'v_and_b32 v32, 15, v1\nv_lshrrev_b32 v34, 4, v1')
        for j in range(4):
            p(f'v_add_u32 v33, {4*j}, v34\nv_xor_b32 v35, v33, v32\nv_lshlrev_b32 v33, 11, v33\nv_lshl_add_u32 v33, v35, 4, v33\ns_sub_u32 s{sT+1}, s{sT}, {1024*j}\nv_add_u32 v{vRX+j}, s{sT+1}, v33')
        p(f's_lshl_b32 s{sT}, s{sT+5}, 4\nv_lshl_add_u32 v{vSR}, v32, 4, s{sT}')

    if not cfg.lad: late_addr()
    p('s_waitcnt lgkmcnt(0)')
    ts.stamp(p, 33)
    S_X0 = S_H
    srd(p, S_X0, pX, 0, 4 << 20)
    vLD = 144
    for i in range(4): p(f'buffer_load_dwordx4 v[{vLD+4*i}:{vLD+4*i+3}], v{vLX}, s[{S_X0}:{S_X0+3}], 0 offen offset:{64*i}')
    vP1, vP2, vPD = 136, 137, 138
    def code_srd(q, lbl):
        return [f's_getpc_b64 s[{q}:{q+1}]\n{lbl}:\ns_sub_u32 s{q}, s{q}, {lbl}-K_first\ns_subb_u32 s{q+1}, s{q+1}, 0', f's_mov_b32 s{q+2}, K_last-K_first', f's_mov_b32 s{q+3}, 0x20000']
    def code_pf(q, dst):
        return [f'buffer_load_dword v{dst}, v0, s[{q}:{q+3}], 0 offen ;pf']
    for x in code_srd(S_O, 'L_pc1'): p(x)
    p(f's_lshr_b32 s{sT}, s2, 3\ns_lshl_b32 s{sT}, s{sT}, 2\ns_add_u32 s{sT}, s{sT}, s{sW}\ns_lshl_b32 s{sT}, s{sT}, 10\nv_and_b32 v32, 15, v1\nv_lshl_add_u32 v0, v32, 6, s{sT}')
    for x in code_pf(S_O, vPD): p(x)
    def raw(q):
        p(f's_lshl_b32 s{sT}, s{sW}, 14\ns_add_u32 m0, s{sT}, {RAWL + 4096*q}\ns_mov_b32 s{sT}, {32768*q}')
        for j in range(4): p(f'buffer_load_dwordx4 v{vRX+j}, s[{S_X0}:{S_X0+3}], s{sT} offen offset:{1024*j} lds', ('R', 1, 0, 0))
    srd(p, S_DB, pDBG, 0, 256)
    p(f's_lshl_b32 s{sT}, s2, 2\ns_add_u32 s{sT}, s{sT}, s{sW}\ns_cmp_eq_u32 s{sT}, 1\ns_cbranch_scc0 L_no_nonce')
    p.cond(True)
    p(f's_memrealtime s[{sNO}:{sNO+1}]\nv_mov_b32 v34, 0\ns_waitcnt lgkmcnt(0)\ns_and_b32 s{sNO}, s{sNO}, 0xffffffc0\ns_or_b32 s{sNO}, s{sNO}, 1\ns_getreg_b32 s{sT}, hwreg(HW_REG_XCC_ID, 0, 1)\ns_lshl_b32 s{sT}, s{sT}, 5\ns_or_b32 s{sNO}, s{sNO}, s{sT}\nv_mov_b32 v32, s{sNO}\nv_mov_b32 v33, s{sNO+1}')
    p(f'buffer_store_dwordx2 v[32:33], v34, s[{S_DB}:{S_DB+3}], 0 offen sc1')
    p.cond(False)
    p('L_no_nonce:')
    if cfg.lad == 1: late_addr()
    p(f's_cmp_ge_u32 s{sW}, 2\ns_cselect_b32 s{S_W}, s{pWU}, s{pWG}\ns_cselect_b32 s{S_W+1}, s{pWU+1}, s{pWG+1}')
    p(f's_mov_b32 s{S_W+2}, {1024*7168:#x}\ns_mov_b32 s{S_W+3}, 0x20000')
    srd(p, S_Q, pWQ, 0, 8 << 20)
    def adv_w():
        return [f's_add_u32 s{sKW}, s{sKW}, {KW}',
                f's_add_u32 s{sMW}, s{sMW}, {2*HS}', f's_cmp_ge_u32 s{sMW}, {NHS*HS}\ns_cselect_b32 s{sT}, {NHS*HS}, 0\ns_sub_u32 s{sMW}, s{sMW}, s{sT}']
    def adv_q():
        return [f's_add_u32 s{sKQ}, s{sKQ}, {KQ}',
                f's_add_u32 s{sMQ}, s{sMQ}, {2*HS}', f's_cmp_ge_u32 s{sMQ}, {NHS*HS}\ns_cselect_b32 s{sT}, {NHS*HS}, 0\ns_sub_u32 s{sMQ}, s{sMQ}, s{sT}']
    def adv_a():
        return [f's_add_u32 s{sKA}, s{sKA}, {KA}',
                f's_cmp_eq_u32 s{sKA}, {NT*KA}\ns_cselect_b32 s{S_XN+2}, 0, s{S_XN+2}']
    def adv_rd():
        return [f's_add_u32 s{sRD}, s{sRD}, {HS}', f's_mov_b32 s{sDL}, {HS}',
                f's_cmp_eq_u32 s{sRD}, {NHS*HS}\ns_cselect_b32 s{sDL}, {-(NHS-1)*HS}, s{sDL}\ns_cselect_b32 s{sRD}, 0, s{sRD}']
    def dma(pc, tile, stride):
        tag = ('W', NHS, 2*tile + 1, 2*stride)
        if pc < 7: return (f'buffer_load_dwordx4 v{vDW+pc}, s[{S_W}:{S_W+3}], s{sKW} offen offset:{1024*(pc%4)} {cfg.gsc} lds', tag)
        return (f'buffer_load_dwordx4 v{vDQ+pc-7}, s[{S_Q}:{S_Q+3}], s{sKQ} offen offset:{1024*(pc-7)} {cfg.gsc} lds', tag)
    def m0set(pc):
        if pc == 0: return [f's_add_u32 m0, s{sMW}, s{sRW}']
        if pc == 4: return [f's_add_u32 m0, m0, 4096']
        if pc == 7: return [f's_add_u32 m0, s{sMQ}, s{sRQ}']
        return []
    def dma_tile(tile):
        for d in range(11):
            for x in m0set(d): p(x)
            if m0set(d): p('s_nop 0')
            emit(p, dma(d, tile, 0))
            if d == 6:
                for x in adv_w(): p(x)
            if d == 10:
                for x in adv_q(): p(x)
    if cfg.t0e & 1: dma_tile(0)
    if cfg.t0e & 2:
        for q in range(4): raw(q)
    srd(p, S_FL, pWS, WS_FL, 3328*128)
    srd(p, S_XN, pWS, WS_XN, 5 << 20)
    p(f's_lshl_b32 s{sT}, s{sRB}, 4\ns_lshl_b32 s{sT+1}, s{sW}, 2\ns_add_u32 s{sT}, s{sT}, s{sT+1}\ns_mul_i32 s{sT}, s{sT}, {XST}')
    p(f'v_lshlrev_b32 v{vT}, 4, v1\nv_add_u32 v{vAct}, s{sT}, v{vT}')
    for b in range(1, 4): p(f'v_add_u32 v{vAct+b}, {b*XST:#x}, v{vAct}')
    t = 32
    p(f'v_lshrrev_b32 v{t}, 5, v1\nv_lshlrev_b32 v{t}, 4, v{t}\nv_bfe_u32 v{t+1}, v1, 4, 1\nv_lshlrev_b32 v{t+1}, 2, v{t+1}\nv_bfe_u32 v{t+2}, v1, 2, 2')
    p(f'v_add3_u32 v{t}, v{t}, v{t+1}, v{t+2}\nv_mul_u32_u24 v{t}, 224, v{t}\nv_and_b32 v{t+3}, 3, v1\nv_lshlrev_b32 v{t+3}, 3, v{t+3}\nv_add_u32 v{vTr}, v{t}, v{t+3}')
    p(f'v_or_b32 v{t+1}, v{t+1}, v{t+2}')
    p(f'v_lshrrev_b32 v{t}, 4, v1\nv_lshlrev_b32 v{t}, 3, v{t}\nv_add_u32 v{t}, v{t}, v{t+2}\nv_lshlrev_b32 v{t}, 8, v{t}')
    p(f'v_add_u32 v{t}, 14336, v{t}\nv_add_u32 v{t}, v{t}, v{t+3}')
    for tt in range(8):
        p(f'v_xor_b32 v{t+2}, {tt}, v{t+1}\nv_lshl_add_u32 v{vTq+tt}, v{t+2}, 5, v{t}')
    if cfg.trk:
        p(f'v_lshrrev_b32 v32, 3, v1\nv_and_b32 v33, 7, v1\ns_lshl_b32 s{sT}, s{sRB}, 3\ns_add_u32 s{sT}, s{sT}, {64*cfg.trk}\nv_add_u32 v32, s{sT}, v32\nv_lshlrev_b32 v35, 6, v33')
        p(f's_mul_i32 s{sT+1}, s{sCB}, 224\ns_add_u32 s{sT+2}, s{sT+1}, {224+127}\ns_and_b32 s{sT+1}, s{sT+1}, -128\ns_and_b32 s{sT+2}, s{sT+2}, -128\ns_sub_u32 s{sT+2}, s{sT+2}, s{sT+1}')
        p(f'v_mul_u32_u24 v34, 7168, v32\nv_add3_u32 v{vP1}, v34, v35, s{sT+1}')
        p(f'v_lshlrev_b32 v34, 13, v32\ns_lshl_b32 s{sT+1}, s{sCB}, 8\nv_add3_u32 v{vP2}, v34, v35, s{sT+1}')
        p(f'v_cmp_gt_u32 vcc, s{sT+2}, v35\ns_and_b32 s{sT}, s{sW}, 1\ns_cmp_eq_u32 s{sT}, 0\ns_cselect_b64 vcc, vcc, 0\nv_mov_b32 v34, 0xf0000000\ns_nop 1\nv_cndmask_b32 v{vP1}, v34, v{vP1}, vcc')
        p(f'v_cmp_gt_u32 vcc, 4, v33\ns_cmp_eq_u32 s{sW}, 1\ns_cselect_b64 vcc, vcc, 0\ns_nop 1\nv_cndmask_b32 v{vP2}, v34, v{vP2}, vcc')
    def touch_tiles(tiles):
        p(f'v_subrev_u32 v34, {64*cfg.trk*7168}, v{vP1}\nv_subrev_u32 v35, {64*cfg.trk*8192}, v{vP2}')
        for tl in tiles:
            p(f's_mov_b32 s{sT}, {tl*KW}\ns_mov_b32 s{sT+1}, {tl*KQ}')
            p(f'buffer_load_dword v{vPD}, v34, s[{S_W}:{S_W+3}], s{sT} offen ;pf\nbuffer_load_dword v{vPD}, v35, s[{S_Q}:{S_Q+3}], s{sT+1} offen ;pf')
    if cfg.trk: touch_tiles(([] if cfg.t0e & 1 else [0]) + ([1] if cfg.t1e else []))
    ts.stamp(p, 32)
    X = 160; sM = sT + 4
    p(f's_mov_b32 s{sM}, 0xffff0000')
    p(f's_lshl_b32 s{sT}, s{sRB}, 5\ns_add_u32 s{sT+1}, s{sT}, s{sCB}\ns_lshl_b32 s{sT+1}, s{sT+1}, 7\nv_mov_b32 v45, s{sT+1}')
    p(f's_lshl_b32 s{sT+3}, s{sT+1}, 2\ns_lshl_b32 s{sT+2}, s{sW}, 7\ns_add_u32 s{sT+3}, s{sT+3}, s{sT+2}\ns_add_u32 s{sT+3}, s{sT+3}, {1280*128}\nv_mov_b32 v31, s{sT+3}')
    p(f's_lshl_b32 s{sT+2}, s{sW}, 3\ns_add_u32 s{sT}, s{sT}, s{sT+2}\ns_lshl_b32 s{sT}, s{sT}, 9\ns_add_u32 s{sT}, s{sT}, {1280*128}\nv_and_b32 v30, 31, v1\nv_lshl_add_u32 v30, v30, 7, s{sT}')
    p(f'v_lshl_add_u32 v46, v1, 4, v45\nv_cmp_gt_u32 vcc, 8, v1\nv_mov_b32 v47, -1\ns_nop 0\nv_cndmask_b32 v46, v47, v46, vcc\nv_mov_b32 v44, 0')
    for i in range(16): p(f'v_lshlrev_b32 v{X+2*i}, 16, v{vLD+i}\nv_and_b32 v{X+2*i+1}, s{sM}, v{vLD+i}')
    def red(v, tt, off):
        p(f's_nop 1\nv_add_f32_dpp v{v}, v{v}, v{v} row_ror:8 row_mask:0xf bank_mask:0xf')
        p(f'v_mov_b32 v{tt}, v{v}\ns_nop 1\nv_permlane16_swap_b32 v{v}, v{tt}\ns_nop 1\nv_add_f32 v{v}, v{v}, v{tt}')
        p(f'v_mov_b32 v{tt}, v{v}\ns_nop 1\nv_permlane32_swap_b32 v{v}, v{tt}\ns_nop 1\nv_add_f32 v{v}, v{v}, v{tt}')
        p(f'ds_write_b32 v{vLS+1}, v{v} offset:{off}\ns_waitcnt lgkmcnt(0)\ns_barrier')
        p(f'ds_read_b128 v[40:43], v{vLS} offset:{off}')
        p(f'v_add_f32 v40, v40, v41\nv_add_f32 v42, v42, v43\nv_add_f32 v{v}, v40, v42\nv_mul_f32 v{v}, {f2u(1/1024):#x}, v{v}')
    ts.stamp(p, 32)
    p(f'buffer_load_dwordx2 v[2:3], v44, s[{S_DB}:{S_DB+3}], 0 offen sc1')
    for a in range(0, 4, 2): p(f'v_pk_add_f32 v[{32+a}:{33+a}], v[{X+a}:{X+a+1}], v[{X+4+a}:{X+5+a}]')
    for i in range(8, 32, 2): p(f'v_pk_add_f32 v[{32+i%4}:{33+i%4}], v[{32+i%4}:{33+i%4}], v[{X+i}:{X+i+1}]')
    p('v_pk_add_f32 v[32:33], v[32:33], v[34:35]\nv_add_f32 v32, v32, v33')
    red(32, 33, 0)
    p('v_mov_b32 v33, v32')
    for i in range(0, 32, 2): p(f'v_pk_add_f32 v[{X+32+i}:{X+33+i}], v[{X+i}:{X+i+1}], v[32:33] neg_lo:[0,1] neg_hi:[0,1]')
    for a in range(0, 4, 2): p(f'v_pk_mul_f32 v[{36+a}:{37+a}], v[{X+32+a}:{X+33+a}], v[{X+32+a}:{X+33+a}]')
    for i in range(4, 32, 2): p(f'v_pk_fma_f32 v[{36+i%4}:{37+i%4}], v[{X+32+i}:{X+33+i}], v[{X+32+i}:{X+33+i}], v[{36+i%4}:{37+i%4}]')
    p('v_pk_add_f32 v[36:37], v[36:37], v[38:39]\nv_add_f32 v36, v36, v37')
    red(36, 37, 128)
    def rnd(v): p(f'v_cvt_pk_bf16_f32 v{v}, v{v}, v{v}\nv_lshlrev_b32 v{v}, 16, v{v}')
    rnd(32); rnd(36)
    p(f'v_add_f32 v36, {f2u(1e-5):#x}, v36'); rnd(36)
    p('v_sqrt_f32 v36, v36\ns_nop 0'); rnd(36)
    p('v_rcp_f32 v36, v36')
    S_ST = S_V
    srd(p, S_ST, pWS, WS_ST, 2048*16)
    ts.stamp(p, 32)
    p.touch('v[2:3]')
    p('L_no_retry:')
    p(f'v_readfirstlane_b32 s{sNO}, v2\nv_readfirstlane_b32 s{sNO+1}, v3\ns_nop 0\ns_cmp_lg_u32 s{sNO}, 0\ns_cbranch_scc1 L_no_ok')
    p.cond(True)
    p(f'buffer_load_dwordx2 v[2:3], v44, s[{S_DB}:{S_DB+3}], 0 offen sc1\ns_waitcnt vmcnt(0)\ns_branch L_no_retry')
    p.cond(False)
    p('L_no_ok:')
    p(f's_cmp_eq_u32 s{sW}, 1\ns_cbranch_scc0 L_st_skip')
    p.cond(True)
    p(f'v_mov_b32 v40, v32\nv_mov_b32 v41, v36\nv_mov_b32 v42, v2\nv_mov_b32 v43, v3\nbuffer_store_dwordx4 v[40:43], v46, s[{S_ST}:{S_ST+3}], 0 offen sc1')
    p.cond(False)
    p('L_st_skip:')
    ts.stamp(p, 33)
    p('v_mov_b32 v33, v32\nv_mov_b32 v37, v36')
    if not cfg.t0e & 1: dma_tile(0)
    for i in range(16):
        if i % 4 == 0 and not cfg.t0e & 2: raw(i // 4)
        a, b = X+2*i, X+2*i+1
        p(f'v_pk_add_f32 v[{a}:{b}], v[{a}:{b}], v[32:33] neg_lo:[0,1] neg_hi:[0,1]\nv_cvt_pk_bf16_f32 v{a}, v{a}, v{b}')
        p(f'v_and_b32 v{b}, s{sM}, v{a}\nv_lshlrev_b32 v{a}, 16, v{a}')
        p(f'v_pk_mul_f32 v[{a}:{b}], v[{a}:{b}], v[36:37]\nv_cvt_pk_bf16_f32 v{vLD+i}, v{a}, v{b}')
    RC = 224
    def rec_loads():
        for b in range(4): p(f'buffer_load_dwordx4 v[{RC+4*b}:{RC+4*b+3}], v{vSR}, s[{S_ST}:{S_ST+3}], 0 offen offset:{256*b} sc1')
    rec_loads()
    xst = [(f'buffer_store_dwordx4 v[{vLD+4*i}:{vLD+4*i+3}], v{vLO}, s[{S_XN}:{S_XN+3}], 0 offen offset:{1024*i} sc1', ('Xst', 1, 0, 0)) for i in range(4)]
    if cfg.xe:
        for x in xst: emit(p, x)
    p(f'v_and_b32 v32, 15, v1\nv_lshrrev_b32 v33, 4, v1\nv_xor_b32 v33, v33, v32\nv_lshlrev_b32 v32, 8, v32\ns_lshl_b32 s{sT}, s{sW}, 14\ns_add_u32 s{sT}, s{sT}, {RAWL}\nv_add_u32 v32, s{sT}, v32')
    for u in range(4): p(f'v_xor_b32 v34, {4*u}, v33\nv_lshl_add_u32 v{36+u}, v34, 4, v32')
    p.need(('R', 1, 0, 0))
    for u in range(4):
        for b in range(4): p(f'ds_read_b128 v[{vB+16*u+4*b}:{vB+16*u+4*b+3}], v{36+u} offset:{4096*b}')
    ts.stamp(p, 32)
    p.touch(f'v[{RC}:{RC+15}]')
    ts.stamp(p, 32)
    p('L_rec_chk:')
    p(f'v_cmp_ne_u64 vcc, s[{sNO}:{sNO+1}], v[{RC+2}:{RC+3}]')
    for b in range(1, 4): p(f'v_cmp_ne_u64 s[{sT+2}:{sT+3}], s[{sNO}:{sNO+1}], v[{RC+4*b+2}:{RC+4*b+3}]\ns_nop 0\ns_or_b64 vcc, vcc, s[{sT+2}:{sT+3}]')
    p('s_cbranch_vccz L_rec_ok')
    p.cond(True)
    rec_loads(); p('s_waitcnt vmcnt(0)\ns_branch L_rec_chk')
    p.cond(False)
    p('L_rec_ok:')
    ts.stamp(p, 33)
    srd(p, S_K, pK, 0, 2 << 20); srd(p, S_V, pV, 0, 2 << 20)
    if cfg.trk: touch_tiles(range(2, cfg.trk + 2))
    if cfg.kvp:
        p(f's_lshr_b32 s{sT}, s2, 3\ns_lshl_b32 s{sT}, s{sT}, 2\ns_add_u32 s{sT}, s{sT}, s{sW}\ns_lshl_b32 s{sT}, s{sT}, 10')
        p(f's_lshr_b32 s{sT+1}, s{sCB}, 3\ns_lshl_b32 s{sT+1}, s{sT+1}, 19\ns_add_u32 s{sT}, s{sT}, s{sT+1}\ns_add_u32 s{sT}, s{sT}, {1536*256}')
        p(f'v_and_b32 v33, 15, v1\nv_lshlrev_b32 v33, 6, v33')
        p(f'buffer_load_dword v{vPD}, v33, s[{S_K}:{S_K+3}], s{sT} offen ;pf\nbuffer_load_dword v{vPD}, v33, s[{S_V}:{S_V+3}], s{sT} offen ;pf')
    vRI = 132; vMR = [128, 130, 131, 139]
    for b in range(4): p(f'v_mov_b32 v{vRI+b}, v{RC+4*b+1}\nv_mul_f32 v{vMR[b]}, v{RC+4*b}, v{RC+4*b+1}')
    NT0 = 140
    def norm(sub):
        out = []
        for b in range(4):
            for r in range(4):
                q = vB + 16*sub + 4*b + r; t0 = NT0 + 2*((4*b + r) % 2)
                out += [f'v_lshlrev_b32 v{t0}, 16, v{q}', f'v_and_b32 v{t0+1}, s{sM}, v{q}',
                        f'v_fma_f32 v{t0}, v{t0}, v{vRI+b}, -v{vMR[b]}', f'v_fma_f32 v{t0+1}, v{t0+1}, v{vRI+b}, -v{vMR[b]}',
                        f'v_cvt_pk_bf16_f32 v{q}, v{t0}, v{t0+1}']
        return out
    ts.stamp(p, 32)
    p('s_nop 0')
    def norm_pk(sub):
        for b in range(4):
            p(f'v_mov_b32 v32, v{vRI+b}\nv_mov_b32 v33, v{vRI+b}\nv_sub_f32 v34, 0, v{vMR[b]}\nv_sub_f32 v35, 0, v{vMR[b]}')
            for r in range(4):
                q = vB + 16*sub + 4*b + r
                p(f'v_lshlrev_b32 v{36+2*r}, 16, v{q}\nv_and_b32 v{37+2*r}, s{sM}, v{q}')
            for r in range(4): p(f'v_pk_fma_f32 v[{36+2*r}:{37+2*r}], v[{36+2*r}:{37+2*r}], v[32:33], v[34:35]')
            for r in range(4): p(f'v_cvt_pk_bf16_f32 v{vB + 16*sub + 4*b + r}, v{36+2*r}, v{37+2*r}')
    for sub in range(cfg.npre): norm_pk(sub)
    ts.stamp(p, 32)
    def act(sub, b):
        r = vB + 16*(sub % RB) + 4*b
        return f'buffer_load_dwordx4 v[{r}:{r+3}], v{vAct+b}, s[{S_XN}:{S_XN+3}], s{sKA} offen offset:{1024*(sub % 2)}{SC}'
    NG = 22
    def vm_sched(step, g2):
        s, t = divmod(g2, NG); sub = 2*step + s
        d = None; a = None
        if cfg.d0 <= g2 < cfg.d0 + 11*cfg.dstr and (g2 - cfg.d0) % cfg.dstr == 0: d = (g2 - cfg.d0)//cfg.dstr
        if cfg.a0 <= t < cfg.a0 + 4*cfg.astr and (t - cfg.a0) % cfg.astr == 0: a = (sub + cfg.ad, (t - cfg.a0)//cfg.astr)
        return d, a
    def flagchk(lbl, vaddr, vd):
        return [f'v_cmp_ne_u64 vcc, s[{sNO}:{sNO+1}], v[{vd}:{vd+1}]', 's_nop 0', 's_nop 0', f's_cbranch_vccz {lbl}_ok',
                f'{lbl}_spin: ;cond', f'buffer_load_dwordx2 v[{vd}:{vd+1}], v{vaddr}, s[{S_FL}:{S_FL+3}], 0 offen sc1 ;cond', 's_waitcnt vmcnt(0) ;cond',
                f'v_cmp_ne_u64 vcc, s[{sNO}:{sNO+1}], v[{vd}:{vd+1}] ;cond', 's_nop 1 ;cond', f's_cbranch_vccnz {lbl}_spin ;cond', f'{lbl}_ok:']
    def flag_store(lbl, va):
        return f's_cmp_eq_u32 s{sW}, 1\ns_cbranch_scc0 {lbl}\nbuffer_store_dwordx2 v[2:3], v{va}, s[{S_FL}:{S_FL+3}], 0 offen sc1 ;cond\n{lbl}:'
    def poll(lbl, vaddr, done):
        p(f'{lbl}:')
        p(f'buffer_load_dwordx2 v[36:37], v{vaddr}, s[{S_FL}:{S_FL+3}], 0 offen sc1\ns_waitcnt vmcnt(0)')
        p(f'v_cmp_ne_u64 vcc, s[{sNO}:{sNO+1}], v[36:37]\ns_nop 1\ns_cbranch_vccz {done}\ns_sleep {cfg.slp}\ns_branch {lbl}')
    vHF = 27
    srd(p, S_H, pWS, WS_H, 15 << 20)
    for q_ in range(4): p(f's_mov_b32 s{S_DB+q_}, s{S_O+q_}') if q_ < 3 else p(f's_mov_b32 s{S_DB+3}, 0x20000')
    p.need(('W', NHS, 1, 0))
    xflag = f'buffer_store_dwordx2 v[2:3], v31, s[{S_FL}:{S_FL+3}], 0 offen sc1'
    p('s_waitcnt lgkmcnt(0)\ns_barrier')
    P = cfg.P
    def trr(G, tile0, stride):
        step, g2 = divmod(G, 2*NG); s, t = divmod(g2, NG)
        r = vA + 4*(G % RA)
        tag = ('W', NHS, 2*(tile0 + step) + 1, 2*stride) if s == 1 else None
        if t < 14: off = (t // 7)*7168 + (t % 7)*32; a = vTr; hh = 8*224
        else: off = 0; a = vTq + t - 14; hh = 1024
        return [(f'ds_read_b64_tr_b16 v[{r}:{r+1}], v{a} offset:{off}', tag),
                (f'ds_read_b64_tr_b16 v[{r+2}:{r+3}], v{a} offset:{off + hh}', tag)]
    for G in range(P):
        for f in trr(G, 0, 0): emit(p, f)
    UN = 2
    p(f's_mov_b32 s{sDL}, 0\ns_mov_b32 s{sCNT}, {NT//UN - 1 - cfg.gl}')
    hi = {}; lo = {}
    def H(i, x): hi.setdefault(i, []).append(x)
    def L(i, x): lo.setdefault(i, []).append(x)
    NGB = 2*NG*UN
    vDK, vDV, vK, vV = 8, 12, 13, 21
    sKV, sMK, sAD, sPF = 39, 40, 43, 44
    k1 = -2*math.sqrt(2/math.pi)*math.log2(math.e); k2 = k1*0.044715
    vC = 28; vHs = 132
    def post_g():
        t = 128
        srd(p, S_O, pWS, WS_O, 17 << 20)
        p(f'v_lshrrev_b32 v{t}, 4, v1\nv_and_b32 v{t+1}, 15, v1')
        p(f's_lshl_b32 s{sMK}, s{sW}, 12')
        p(f'v_lshlrev_b32 v{t+2}, 8, v{t}\nv_add_u32 v{t+2}, s{sMK}, v{t+2}')
        for j in range(4):
            p(f'v_add_u32 v{t+3}, {4*j}, v{t}\nv_xor_b32 v{t+3}, v{t+3}, v{t+1}\nv_lshl_add_u32 v{vDK+j}, v{t+3}, 4, v{t+2}')
        p(f'v_lshlrev_b32 v{t+3}, 2, v{t}\nv_xor_b32 v{t+3}, v{t+3}, v{t+1}\nv_lshl_add_u32 v{vDV}, v{t+3}, 4, v{t+2}')
        p(f's_lshr_b32 s{sKV}, s{sCB}, 3\ns_lshl_b32 s{sKV}, s{sKV}, 19\ns_add_u32 s{sKV}, s{sKV}, {1536*256}')
        p(f'v_mov_b32 v{vC}, {f2u(k1):#x}\nv_mov_b32 v{vC+1}, {f2u(k1):#x}\nv_mov_b32 v{vC+2}, {f2u(k2):#x}\nv_mov_b32 v{vC+3}, {f2u(k2):#x}')
        p(f's_lshl_b32 s{sT+2}, s{sRB}, 4\ns_lshl_b32 s{sT+3}, s{sW}, 2\ns_add_u32 s{sT+2}, s{sT+2}, s{sT+3}\ns_mul_i32 s{sT+2}, s{sT+2}, {HST}')
        p(f's_mul_i32 s{sT+3}, s{sCB}, 7\ns_add_u32 s{sT+3}, s{sT+3}, 1\ns_lshr_b32 s{sT+3}, s{sT+3}, 1\ns_lshl_b32 s{sT+3}, s{sT+3}, 10')
        p(f's_add_u32 s{sT+2}, s{sT+2}, s{sT+3}')
        p(f'v_lshlrev_b32 v{t}, 4, v1\nv_add_u32 v{vAct}, s{sT+2}, v{t}')
        for b in range(1, 4): p(f'v_add_u32 v{vAct+b}, {b*HST:#x}, v{vAct}')
        p(f's_and_b32 s{sT+3}, s{sCB}, 1\ns_mul_i32 s{sT+4}, s{sT+3}, {-1016-3072}\ns_add_u32 s{sT+4}, s{sT+4}, 3072')
        for b in range(4): p(f'v_add_u32 v{vHs+b}, s{sT+4}, v{vAct+b}')
    def collect(fn):
        nonlocal p
        w = Prog(); q = p; p = w; fn(); p = q
        out = []
        for it in w.items:
            if it.op == 's_addc_u32': out[-1] = (out[-1][0] + '\n' + it.text, None)
            else: out.append((it.text, it.tag))
        return out
    def g_body(first, last=False):
        hi.clear(); lo.clear(); mf = []
        t0_, st_ = (0, 0) if first else (NT - UN, 0) if last else (UN, UN)
        if first:
            if not cfg.xe:
                for k, x in enumerate(xst): L(2 + cfg.fs1*2*k, x)
            H(cfg.xbar, lambda p: (p.need(('Xst', 1, 0, 0)), p(xflag)))
            for d in range(11):
                g_ = 2 + cfg.fs1*(2*d + 1 if d < 4 else d + 4)
                for x in m0set(d): L(g_, x)
                if m0set(d): L(g_, m0gap)
                L(g_, dma(d, 1, 0))
                if d == 6:
                    for x in adv_w(): L(g_, x)
                if d == 10:
                    for x in adv_q(): L(g_, x)
        for G in range(NGB):
            step, g2 = divmod(G, 2*NG); s, t = divmod(g2, NG)
            sub = 2*step + s
            for b in range(4):
                ra = vA + 4*(G % RA); rb = vB + 16*(sub % RB) + 4*b
                mf.append(f'v_mfma_f32_16x16x32_bf16 {acc(t,b)}, v[{ra}:{ra+3}], v[{rb}:{rb+3}], {"0" if first and sub == 0 else acc(t,b)}')
            i0 = 4*G; Gn = G + P; tn = Gn % NG
            if last and Gn >= NGB: continue
            if Gn % (2*NG) == 0:
                stepn = Gn // (2*NG)
                def bar_(p, stepn=stepn):
                    p.need(('W', NHS, 2*(t0_ + stepn) + 1, 2*st_))
                    p('s_barrier')
                H(i0-1, bar_)
            if tn == 0: H(i0-2, f'v_add_u32 v{vTr}, s{sDL}, v{vTr}')
            r0, r1 = trr(Gn % NGB, t0_ + (Gn // NGB)*UN, st_)
            H(i0, r0); H(i0+1, r1)
            if 1 <= tn <= 8: L(i0, f'v_add_u32 v{vTq+tn-1}, s{sDL}, v{vTq+tn-1}')
            if tn == 9:
                for x in adv_rd(): L(i0, x)
            pc, a = vm_sched(step, g2)
            if last: pc = None
            if a is not None and not (first and a[0] < 4) and not (last and a[0] >= 4):
                g_ = max(i0, cfg.xchk + 4 + 8*(4*(a[0] - 4) + a[1])) if first else i0
                assert g_ < 88*(a[0] - 4 + 3) + 60 or not first
                L(g_, act(*a))
                if a[1] == 3 and a[0] % 2 == 1:
                    for x in adv_a(): L(g_, x)
            if pc is not None:
                g_ = max(i0, 2 + cfg.fs1*(15 + pc)) if first and step == 0 else i0
                if cfg.trk and pc == 0:
                    L(g_, f'buffer_load_dword v{vPD}, v{vP1}, s[{S_W}:{S_W+3}], s{sKW} offen ;pf')
                    L(g_, f'buffer_load_dword v{vPD}, v{vP2}, s[{S_Q}:{S_Q+3}], s{sKQ} offen ;pf')
                for x in m0set(pc): L(g_, x)
                if m0set(pc): L(g_, m0gap)
                L(g_, dma(pc, t0_ + step + 2, st_))
                if pc == 6:
                    for x in adv_w(): L(g_, x)
                if pc == 10:
                    for x in adv_q(): L(g_, x)
        for x in code_pf(S_DB, vPD): L(4*(cfg.d0 + 10*cfg.dstr) + 1, x)
        if first:
            H(cfg.xchk - cfg.xfl, f'buffer_load_dwordx2 v[28:29], v30, s[{S_FL}:{S_FL+3}], 0 offen sc1')
            H(cfg.xchk, '\n'.join(flagchk('L_x', 30, 28)))
        elif last:
            for x in collect(post_g): L(112, x)
            H(len(mf)-6, 's_waitcnt lgkmcnt(0)\ns_barrier')
        else:
            H(len(mf)-3, f's_sub_u32 s{sCNT}, s{sCNT}, 1'); H(len(mf)-2, f's_cmp_lg_u32 s{sCNT}, 0')
            H(len(mf)-1, 's_cbranch_scc1 G_loop')
        lo_ = {k: lo[k] for k in sorted(lo)}
        fill = spread(hi, lo_, len(mf), cfg.cap, 60 if first else 200 if last else 16, cost=lambda i: 1 if i % 4 == 3 else 2 if i == -1 else 0)
        fix_m0(fill, len(mf))
        if first:
            edges = [0] + [88*sub - 3 if sub == 3 or cfg.npre == 1 else (261*(sub - cfg.npre + 1))//(4 - cfg.npre) for sub in range(cfg.npre, 4)]
            for k, sub in enumerate(range(cfg.npre, 4)):
                g0, g1 = edges[k], min(edges[k+1], 88*sub - 3)
                q_ = norm(sub); per = len(q_)/(g1 - g0); due = 0.0; done = 0
                for i in range(g0, g1):
                    due += per; used = len(fill[i]) + (1 if i % 4 == 3 else 0)
                    while q_ and done < due + 2 and (used < cfg.cap or done < due - cfg.lag):
                        fill[i].append(q_.pop(0)); used += 1; done += 1
                fill[g1 - 1] += q_
        elif not last: chk_tail(fill, len(mf))
        if first:
            for i in (43, 87, 131, 175, 219, 263, 307):
                t_ = ts.text(64)
                if t_: fill[i].append(t_)
        interleave(p, mf, fill)
    ts.stamp(p, 97)
    g_body(True)
    if cfg.xt: p.touch(f'v[{vB}:{vB+16*cfg.xt-1}]')
    ts.stamp(p, 96)
    p.loop_begin('G_loop', NT//UN - 1 - cfg.gl)
    g_body(False)
    p.loop_end()
    if cfg.gl: g_body(False, True); p('s_nop 3')
    else:
        p('s_waitcnt vmcnt(0) lgkmcnt(0)\ns_barrier'); post_g()
    ts.stamp(p, 5)

    def kdma(j, soff, tag): return (f'buffer_load_dwordx4 v{vDK+j}, s[{S_K}:{S_K+3}], s{soff} offen offset:{1024*j} lds', tag)
    def vdma(j, soff, tag): return (f'buffer_load_dwordx4 v{vDV}, s[{S_V}:{S_V+3}], s{soff} offen offset:{1024*j} lds', tag)
    kvq = []
    for (kind, tl) in (('K', 0), ('K', 1), ('V', 0), ('K', 2), ('V', 1)):
        g = [f's_add_u32 s{sT+5}, s{sKV}, {tl*16384}', f's_add_u32 m0, s{sMK}, {tl*16384 + (65536 if kind == "V" else 0)}', 's_nop 0']
        for j in range(4):
            kvq.append(g + [(kdma if kind == 'K' else vdma)(j, sT+5, (kind, 4, tl, 0))]); g = []
    p(f's_bitcmp0_b32 s{sCB}, 0')
    def gelu_tiles(tiles):
        n = len(tiles)
        Xs = [32 + 12*i for i in range(n)]
        pk = lambda r: f'v[{r}:{r+1}]'
        for (t, b, d), X in zip(tiles, Xs):
            for r in range(4): p(f'v_accvgpr_read_b32 v{X+r}, {accr(t,b,r)}')
        for X in Xs:
            for r in (0, 2): p(f'v_pk_mul_f32 {pk(X+8+r)}, {pk(X+r)}, {pk(X+r)}')
        for X in Xs:
            for r in (0, 2): p(f'v_pk_fma_f32 {pk(X+8+r)}, {pk(X+8+r)}, {pk(vC+2)}, {pk(vC)}')
        for X in Xs:
            for r in (0, 2): p(f'v_pk_mul_f32 {pk(X+8+r)}, {pk(X+8+r)}, {pk(X+r)}')
        for (t, b, d), X in zip(tiles, Xs):
            for r in range(4): p(f'v_exp_f32 v{X+8+r}, v{X+8+r}')
            for r in range(4): p(f'v_accvgpr_read_b32 v{X+4+r}, {accr(t+7,b,r)}')
        for X in Xs:
            for r in (0, 2): p(f'v_pk_add_f32 {pk(X+8+r)}, {pk(X+8+r)}, 1.0 op_sel_hi:[1,0]')
        for X in Xs:
            for r in range(4): p(f'v_rcp_f32 v{X+8+r}, v{X+8+r}')
            for r in (0, 2): p(f'v_pk_mul_f32 {pk(X+4+r)}, {pk(X+4+r)}, {pk(X+r)}')
        for X in Xs:
            for r in (0, 2): p(f'v_pk_mul_f32 {pk(X+4+r)}, {pk(X+4+r)}, {pk(X+8+r)}')
        for (t, b, d), X in zip(tiles, Xs):
            p(f'v_cvt_pk_bf16_f32 v{d}, v{X+4}, v{X+5}\nv_cvt_pk_bf16_f32 v{d+1}, v{X+6}, v{X+7}')
    for par in range(2):
        if par == 0: p('s_cbranch_scc0 B_epi_odd')
        else: p.cond(True); p('B_epi_odd:')
        n = 0; kq = list(kvq)
        for b in range(4):
            for pr in range(3):
                d = 64 + 4*(n % 8); n += 1
                for _ in range(2):
                    if kq:
                        for x in kq.pop(0): emit(p, x)
                gelu_tiles([(2*pr + par, b, d), (2*pr + 1 + par, b, d + 2)])
                p(f'buffer_store_dwordx4 v[{d}:{d+3}], v{vAct+b}, s[{S_H}:{S_H+3}], 0 offen offset:{1024*pr}{LS}', ('Hst', 1, 0, 0))
        for b in range(0, 4, 2):
            d = 64 + 4*(n % 8); n += 1
            gelu_tiles([(6 if par == 0 else 0, b, d), (6 if par == 0 else 0, b+1, d+2)])
            p(f'buffer_store_dwordx2 v[{d}:{d+1}], v{vHs+b}, s[{S_H}:{S_H+3}], 0 offen{LS}', ('Hst', 1, 0, 0))
            p(f'buffer_store_dwordx2 v[{d+2}:{d+3}], v{vHs+b+1}, s[{S_H}:{S_H+3}], 0 offen{LS}', ('Hst', 1, 0, 0))
        if par == 0: p('s_branch B_epi_done')
    p.cond(False)
    p('B_epi_done:')
    ts.stamp(p, 5)
    vQ = 64
    qs = math.log2(math.e)/math.sqrt(128)
    def qconv(qt, s):
        d = vQ + (qt*8+s)*4
        for half in range(2):
            b = 2*qt + half; x = 32 + 4*half
            src = accr(14+s, b, 0)
            if src[0] == 'a':
                for r in range(4): p(f'v_accvgpr_read_b32 v{x+r}, {accr(14+s, b, r)}')
                s0 = x
            else: s0 = int(src[1:])
            for r in (0, 2): p(f'v_pk_mul_f32 v[{x+r}:{x+r+1}], v[{s0+r}:{s0+r+1}], v[{vC}:{vC+1}]')
            p(f'v_cvt_pk_bf16_f32 v{d+2*half}, v{x}, v{x+1}\nv_cvt_pk_bf16_f32 v{d+2*half+1}, v{x+2}, v{x+3}')
    def qswap(qt, s):
        d = vQ + (qt*8+s)*4
        p(f'v_permlane16_swap_b32 v{d}, v{d+2}\nv_permlane16_swap_b32 v{d+1}, v{d+3}')
    t = 32
    p(f'v_and_b32 v{t}, 31, v1\nv_lshrrev_b32 v{t+1}, 5, v1\nv_and_b32 v{t+2}, 15, v1\nv_xor_b32 v{t+1}, v{t+1}, v{t+2}\nv_lshlrev_b32 v{t}, 8, v{t}')
    for s in range(8):
        p(f'v_xor_b32 v{t+2}, {2*s}, v{t+1}\nv_lshl_add_u32 v{vK+s}, v{t+2}, 4, v{t}')
    p(f'v_mov_b32 v{vC}, {f2u(qs):#x}\nv_mov_b32 v{vC+1}, {f2u(qs):#x}')
    vS = [128, 160]; vP = [192, 208]; vN = 224; vL = 28
    aF = 192
    def Sreg(n, qt): return vS[n % 2] + 16*qt
    def Preg(n, qt, ks): return vP[n % 2] + 8*qt + 4*ks
    def kread(n, s, tag):
        r = aF + 4*s
        return [(f'ds_read_b128 a[{r}:{r+3}], v{vK+s} offset:{(n % 8)*8192}', ('K', 4, n//2, 0))]
    def vread(n, f, tag, base=None, off0=None):
        ks, dt = divmod(f, 4); r = aF + 32 + 4*f
        off = (32*(n % 8) + 16*ks)*256 if off0 is None else off0 + 16*ks*256
        b = vV if base is None else base
        return [(f'ds_read_b64_tr_b16 a[{r}:{r+1}], v{b+dt} offset:{off}', tag),
                (f'ds_read_b64_tr_b16 a[{r+2}:{r+3}], v{b+dt} offset:{off+2048}', tag)]
    def qk(n, s, qt, c0):
        S = Sreg(n, qt); c = f'v[{S}:{S+15}]' if s else c0(qt)
        return f'v_mfma_f32_32x32x16_bf16 v[{S}:{S+15}], a[{aF+4*s}:{aF+4*s+3}], v[{vQ+(qt*8+s)*4}:{vQ+(qt*8+s)*4+3}], {c}'
    def pv(n, f, qt, first=False):
        ks, dt = divmod(f, 4); o = (dt*2+qt)*16; P_ = Preg(n, qt, ks)
        c = '0' if first and ks == 0 else f'a[{o}:{o+15}]'
        return f'v_mfma_f32_32x32x16_bf16 a[{o}:{o+15}], a[{aF+32+4*f}:{aF+32+4*f+3}], v[{P_}:{P_+3}], {c}'
    negm = lambda qt: f'v[{vN+16*qt}:{vN+16*qt+15}]'
    zero = lambda qt: '0'
    def softmax_ops(n):
        sl = [[] for _ in range(33)]
        for e in range(32):
            qt, i = divmod(e, 16); S = Sreg(n, qt); Pr = Preg(n, qt, i>>3)+((i&7)>>1)
            sl[e].insert(0, f'v_exp_f32 v{S+i}, v{S+i}')
            if cfg.sum == 'add': sl[e+1].append(f'v_add_f32 v{vL+2*qt+(i&1)}, v{vL+2*qt+(i&1)}, v{S+i}')
            if i & 1:
                if e == 31 and cfg.sum != 'add': sl[e+1].append('s_nop 0')
                sl[e+1].append(f'v_cvt_pk_bf16_f32 v{Pr}, v{S+i-1}, v{S+i}')
                k = min(32, e+2)
                if cfg.sum == 'pk': sl[k].append(f'v_pk_add_f32 v[{vL+2*qt}:{vL+2*qt+1}], v[{vL+2*qt}:{vL+2*qt+1}], v[{S+i-1}:{S+i}]')
                if cfg.sum == 'dot': sl[k].append(f'v_dot2_f32_bf16 v{vL+2*qt+((i>>1)&1)}, v{Pr}, v39, v{vL+2*qt+((i>>1)&1)}')
        return sl
    if cfg.sum == 'dot': p('v_mov_b32 v39, 0x3f803f80')
    p.need(('K', 4, 0, 0)); p('s_barrier')
    for s in range(8): emit(p, kread(0, s, None)[0])
    ts.stamp(p, 5)
    qconv(0, 0); qconv(1, 0)
    for s in range(8):
        if s < 7: qconv(0, s+1)
        qswap(0, s); qswap(1, s)
        if s < 7: qconv(1, s+1)
        else: p('s_nop 1')
        for qt in range(2): p(qk(0, s, qt, zero))
        emit(p, kread(1, s, None)[0])
    t = 36
    p(f'v_lshrrev_b32 v{t}, 5, v1\nv_lshlrev_b32 v{t}, 2, v{t}\nv_bfe_u32 v{t+1}, v1, 2, 2\nv_add_u32 v{t}, v{t}, v{t+1}\nv_lshlrev_b32 v{t}, 8, v{t}')
    p(f'v_bfe_u32 v{t+2}, v1, 4, 1\nv_lshlrev_b32 v{t+2}, 5, v{t+2}\nv_and_b32 v{t+3}, 3, v1\nv_lshlrev_b32 v{t+3}, 3, v{t+3}\nv_add3_u32 v{t}, v{t}, v{t+2}, v{t+3}')
    p(f'v_add_u32 v{t}, 0x10000, v{t}')
    for dt in range(4):
        p(f'v_xor_b32 v{t+2}, {dt}, v{t+1}\nv_lshl_add_u32 v{vV+dt}, v{t+2}, 6, v{t}')
    for i in range(4): p(f'v_mov_b32 v{vL+i}, 0')
    def rowmax(n, first):
        for qt in range(2):
            S = Sreg(n, qt); m = 32 + 2*qt
            if first: p(f'v_max3_f32 v{m}, v{S}, v{S+1}, v{S+2}')
            else: p(f'v_max3_f32 v{m}, v{m}, v{S+1}, v{S+2}\nv_max_f32 v{m}, v{m}, v{S}')
            for i in range(3, 15, 2): p(f'v_max3_f32 v{m}, v{m}, v{S+i}, v{S+i+1}')
            p(f'v_max_f32 v{m}, v{m}, v{S+15}')
    def set_negm():
        p('v_mov_b32 v33, v32\nv_mov_b32 v35, v34\ns_nop 0\nv_permlane32_swap_b32 v32, v33\nv_permlane32_swap_b32 v34, v35\ns_nop 0')
        for qt in range(2):
            m = 32 + 2*qt
            p(f'v_max_f32 v{m}, v{m}, v{m+1}\nv_sub_f32 v{vN+16*qt}, 0, v{m}\nv_mov_b32 v{vN+16*qt+1}, v{vN+16*qt}')
            for i in range(2, 16, 2): p(f'v_pk_mul_f32 v[{vN+16*qt+i}:{vN+16*qt+i+1}], v[{vN+16*qt}:{vN+16*qt+1}], 1.0 op_sel_hi:[1,0]')
    ts.stamp(p, 4)
    c0 = zero
    if not cfg.m0:
        c0 = negm
        rowmax(0, True); set_negm()
        for qt in range(2):
            S = Sreg(0, qt)
            for i in range(0, 16, 2): p(f'v_pk_add_f32 v[{S+i}:{S+i+1}], v[{S+i}:{S+i+1}], v[{vN+16*qt}:{vN+16*qt+1}]')
    ts.stamp(p, 4)
    S_WD, S_WO, S_AH, S_AO, S_X, S_OUT, S_P = 12, 8, 16, 20, 24, 28, 60
    sJ, sRC, sCC = 70, 71, 76
    kWD, kWO, kAH, kAO, cMW, cTG = 77, 75, 78, 42, 79, 49
    dD, dO, aH, aO, cTr, cA, cC = 40, 8, 48, 4, 52, 64, 128
    vFH = 60
    SLOT = 32768
    k_h = lambda pc: 4*pc
    k_o = lambda pc: 4*((pc & 1) | ((pc & 2) << 1) | ((pc & 4) >> 1))
    sDE = 85
    def x_dma_addr(dst, kmap):
        t = 36
        p(f's_lshl_b32 s{sT+2}, s{sW}, 16\ns_lshl_b32 s{sT+3}, s{sCC}, 8\ns_add_u32 s{sT+2}, s{sT+2}, s{sT+3}')
        p(f'v_lshrrev_b32 v{t}, 4, v1\nv_and_b32 v{t+1}, 15, v1\nv_lshlrev_b32 v{t+2}, 1, v{t}\nv_xor_b32 v{t+1}, v{t+1}, v{t+2}')
        p(f'v_lshlrev_b32 v{t}, 11, v{t}\nv_add_u32 v{t}, s{sT+2}, v{t}')
        for e in range(2):
            p(f'v_xor_b32 v{t+2}, {8*e}, v{t+1}\nv_lshl_add_u32 v{dst+e}, v{t+2}, 4, v{t}')
            if cfg.cdel: p(f'v_lshrrev_b32 v{t+2}, 3, v{t+2}\nv_mad_i32_i24 v{dst+e}, v{t+2}, s{sDE}, v{dst+e}')
        for pc in range(7, -1, -1):
            o = (kmap(pc) << 11) - 1024*(pc % 4)
            if o or pc > 1: p(f'v_add_u32 v{dst+pc}, {o}, v{dst + (pc & 1)}')
    NS = ND + NSS; kind = lambda sg: 'd' if sg < ND else 's'
    def cdma(pc, sg):
        D_, S_, K_ = (dD, S_WD, kWD) if kind(sg) == 'd' else (dO, S_WO, kWO)
        g = []
        if pc % 4 == 0: g += [f's_add_u32 m0, s{cMW}, {(sg % 4)*SLOT + 1024*pc}', m0gap]
        g.append((f'buffer_load_dwordx4 v{D_+pc}, s[{S_}:{S_+3}], s{K_} offen offset:{1024*(pc%4)} {cfg.wsc} lds', ('C', 4, sg, 0)))
        if pc == 7: g.append(f's_add_u32 s{K_}, s{K_}, {128*2048}')
        return g
    def cact(sub, b):
        A_, S_, K_ = (aH, S_AH, kAH) if kind(sub // 4) == 'd' else (aO, S_AO, kAO)
        r = 128 + 16*(sub % 8) + 4*b
        g = [f'buffer_load_dwordx4 a[{r}:{r+3}], v{A_+b}, s[{S_}:{S_+3}], s{K_} offen offset:{1024*(sub % 4)}{SC}']
        if b == 3 and sub % 4 == 3: g.append(f's_add_u32 s{K_}, s{K_}, 4096')
        return g
    PF = cfg.PF; vPF = 25; sDM = 55; sPF = 44
    pairs = []; sm = []; start = {}
    for n in range(17):
        st = len(pairs); start[n] = st
        if n <= 14:
            for s_ in range(8): pairs.append((qk(n+1, s_, 0, c0), qk(n+1, s_, 1, c0), kread(n+1, s_, None) if n else []))
        if n >= 1:
            for f in range(8): pairs.append((pv(n-1, f, 0, n == 1), pv(n-1, f, 1, n == 1), vread(n-1, f, ('V', 4, (n-1)//2, 0))))
        if n <= 15: sm.append((st, len(pairs), softmax_ops(n)))
    mf = []; hi.clear(); lo.clear()
    for a_, b_, _ in pairs: mf += [a_, b_]
    n_ = len(mf)
    bargap = {}
    for j in range(8):
        g = 2*(start[2*j+1] - PF) - 1; bargap[j] = g
        def bar_(p, j=j):
            if j < 7: p.need(('K', 4, j+1, 0))
            p.need(('V', 4, j, 0))
            if j == cfg.hbar: p.need(('Hst', 1, 0, 0))
            p('s_barrier')
        H(g, bar_)
    for i in range(len(pairs) - PF):
        for k, r in enumerate(pairs[i + PF][2]): H(2*i + k, r)
    for (st, en, sl) in sm:
        ng = 2*(en - st)
        for e, ops in enumerate(sl):
            for o in ops: H(2*st + min(ng - 1, e*ng//32), o)
    def act_addr(dst, stride, tmp):
        p(f's_and_b32 s{sT+3}, s{sJ}, 1\ns_mul_i32 s{sT+3}, s{sT+3}, {2*stride}\nv_lshlrev_b32 v{tmp}, 4, v1\nv_add_u32 v{dst+2}, s{sT+2}, v{tmp}')
        p(f'v_add_u32 v{dst}, s{sT+3}, v{dst+2}\nv_add_u32 v{dst+1}, {stride}, v{dst}\ns_sub_u32 s{sT+3}, {2*stride}, s{sT+3}\nv_add_u32 v{dst+2}, s{sT+3}, v{dst+2}\nv_add_u32 v{dst+3}, {stride}, v{dst+2}')
    def out_addr(dst):
        p(f's_lshl_b32 s{sT+2}, s{sRC}, 8\ns_lshl_b32 s{sT+3}, s{sW}, 6\ns_add_u32 s{sT+2}, s{sT+2}, s{sT+3}\ns_and_b32 s{sT+3}, s{sJ}, 1\ns_lshl_b32 s{sT+3}, s{sT+3}, 5\ns_add_u32 s{sT+2}, s{sT+2}, s{sT+3}\ns_lshl_b32 s{sT+2}, s{sT+2}, 11')
        p(f's_lshl_b32 s{sT+3}, s{sCC}, 8\ns_add_u32 s{sT+2}, s{sT+2}, s{sT+3}\ns_lshr_b32 s{sT+3}, s{sJ}, 1\ns_lshl_b32 s{sT+3}, s{sT+3}, 7\ns_add_u32 s{sT+2}, s{sT+2}, s{sT+3}')
        t = 36
        p(f'v_and_b32 v{t}, 7, v1\nv_lshlrev_b32 v{t}, 11, v{t}\nv_bfe_u32 v{t+1}, v1, 3, 1\nv_lshl_add_u32 v{t}, v{t+1}, 6, v{t}\nv_bfe_u32 v{t+1}, v1, 4, 1\nv_lshl_add_u32 v{t}, v{t+1}, 5, v{t}')
        p(f'v_lshrrev_b32 v{t+1}, 5, v1\nv_lshl_add_u32 v{t}, v{t+1}, 4, v{t}\nv_add_u32 v{dst}, s{sT+2}, v{t}')
    XL = 0x20000 + 4096
    def x_stage():
        out_addr(39)
        srd(p, S_H, pX, 0, 4 << 20)
        for b in range(4):
            p(f's_add_u32 m0, s{sDM}, {4096 + 1024*b}\ns_mov_b32 s{sT+2}, {b*0x4000}')
            p(f'buffer_load_dwordx4 v39, s[{S_H}:{S_H+3}], s{sT+2} offen lds')
    def setup1():
        p(f's_lshl_b32 s{sT}, s2, 2\ns_add_u32 s{sT}, s{sT}, s{sW}\ns_lshl_b32 s{sT+1}, s{sT}, 13\ns_mul_i32 s{sT}, s{sT}, 7168')
        p(f'v_lshlrev_b32 v{vPF}, 4, v1\nv_add_u32 v{vPF+1}, s{sT}, v{vPF}\nv_add_u32 v{vPF}, s{sT+1}, v{vPF}')
        srd(p, S_WO, pWO, 0, 8 << 20); srd(p, S_WD, pWD, 0, 7 << 20)
        p(f's_lshl_b32 s{sDM}, s{sMK}, 1\ns_add_u32 s{sDM}, s{sDM}, 0x20000\ns_mov_b32 s{sPF}, 0')
        p(f's_lshl_b32 s{sT}, s{sRB}, 12\ns_lshl_b32 s{sT+1}, s{sCB}, 7\ns_add_u32 s{sT}, s{sT}, s{sT+1}\ns_add_u32 s{sT}, s{sT}, {256*128}\nv_mov_b32 v{vHF}, s{sT}')
    def setup2():
        if cfg.fs:
            p(f's_lshr_b32 s{sT}, s{sNO}, 5\ns_xor_b32 s{sT}, s{sT}, s2\ns_and_b32 s{sT}, s{sT}, 1\ns_and_b32 s{sJ}, s2, 2\ns_or_b32 s{sJ}, s{sJ}, s{sT}')
            p(f's_and_b32 s{sRC}, s2, 4\ns_bfe_u32 s{sT+1}, s2, 0x20003\ns_add_u32 s{sRC}, s{sRC}, s{sT+1}\ns_lshr_b32 s{sCC}, s2, 5\ns_xor_b32 s{sCC}, s{sCC}, {cfg.ccx}')
            if cfg.fs == 1:
                p(f's_lshr_b32 s{sT+1}, s{sJ}, 1\ns_mul_i32 s{kAH}, s{sT+1}, 14\ns_lshl_b32 s{sT+2}, s{sT}, 3\ns_add_u32 s{kAH}, s{kAH}, s{sT+2}')
                p(f's_lshl_b32 s{sT+1}, s{sT+1}, 4\ns_mul_i32 s{sT+2}, s{sT}, 9\ns_add_u32 s{sT+1}, s{sT+1}, s{sT+2}\ns_mul_i32 s{sT}, s{sT}, 3\ns_sub_u32 s{sT}, 9, s{sT}')
                p(f'v_and_b32 v{vFH}, 15, v1\nv_min_u32 v{vFH}, s{sT}, v{vFH}\ns_lshl_b32 s{sT}, s{sRC}, 5\ns_add_u32 s{sT}, s{sT}, s{sT+1}\ns_add_u32 s{sT}, s{sT}, 256\ns_lshl_b32 s{sT}, s{sT}, 7')
                p(f'v_lshl_add_u32 v{vFH}, v{vFH}, 7, s{sT}')
                p(f's_lshl_b32 s{kWD}, s{kAH}, 18\ns_lshl_b32 s{kAH}, s{kAH}, 12')
            else:
                p(f's_lshl_b32 s{sT}, s{sRC}, 5\ns_lshl_b32 s{sT+1}, s{sJ}, 3\ns_add_u32 s{sT}, s{sT}, s{sT+1}\ns_add_u32 s{sT}, s{sT}, 256\ns_lshl_b32 s{sT}, s{sT}, 7')
                p(f'v_and_b32 v{vFH}, 7, v1\nv_lshl_add_u32 v{vFH}, v{vFH}, 7, s{sT}')
                p(f's_mul_i32 s{kWD}, s{sJ}, {896*2048}\ns_mul_i32 s{kAH}, s{sJ}, {28*1024}')
        else:
            p(f's_bfe_u32 s{sJ}, s2, 0x20001\ns_and_b32 s{sRC}, s2, 1\ns_lshl_b32 s{sRC}, s{sRC}, 2\ns_bfe_u32 s{sT}, s2, 0x20003\ns_add_u32 s{sRC}, s{sRC}, s{sT}\ns_lshr_b32 s{sCC}, s2, 5')
            p(f's_lshl_b32 s{sT}, s{sRC}, 5\ns_lshl_b32 s{sT+1}, s{sJ}, 3\ns_add_u32 s{sT}, s{sT}, s{sT+1}\ns_add_u32 s{sT}, s{sT}, 256\ns_lshl_b32 s{sT}, s{sT}, 7')
            p(f'v_and_b32 v{vFH}, 7, v1\nv_lshl_add_u32 v{vFH}, v{vFH}, 7, s{sT}')
            p(f's_mul_i32 s{kWD}, s{sJ}, {896*2048}\ns_mul_i32 s{kAH}, s{sJ}, {28*1024}')
        p(f's_lshl_b32 s{sT}, s{sCC}, 8\ns_add_u32 s{sT}, s{sT}, 128\ns_add_u32 s{sDE}, s{sT}, {cfg.cdel}\ns_and_b32 s{sDE}, s{sDE}, 2047\ns_sub_u32 s{sDE}, s{sDE}, s{sT}')
        x_dma_addr(dD, k_h)
        p(f's_lshl_b32 s{cMW}, s{sW}, 13')
        srd(p, S_AH, pWS, WS_H, 15 << 20)
        p(f's_lshl_b32 s{sT}, s{sRC}, 4\ns_lshl_b32 s{sT+2}, s{sW}, 2\ns_add_u32 s{sT}, s{sT}, s{sT+2}\ns_mul_i32 s{sT+2}, s{sT}, {HST}')
        act_addr(aH, HST, 36)
        t = 36
        p(f's_and_b32 s{sT+3}, s{sJ}, 2\ns_lshl_b32 s{sT+3}, s{sT+3}, 1')
        p(f'v_lshrrev_b32 v{t}, 2, v1\nv_and_b32 v{t+1}, 7, v{t}\nv_xor_b32 v{t+1}, s{sT+3}, v{t+1}\nv_lshlrev_b32 v{t}, 8, v{t}\nv_and_b32 v{t+2}, 3, v1\nv_lshl_add_u32 v{t}, v{t+2}, 3, v{t}')
        for tt in range(8):
            p(f'v_xor_b32 v{t+2}, {tt}, v{t+1}\nv_lshl_add_u32 v{cTr+tt}, v{t+2}, 5, v{t}')
        p(f's_mov_b32 s{cTG}, 0x10000')
        if cfg.c3:
            p(f's_lshr_b32 s{sT}, s2, 3\ns_lshl_b32 s{sT}, s{sT}, 2\ns_add_u32 s{sT}, s{sT}, s{sW}\ns_lshl_b32 s{sT}, s{sT}, 11\ns_add_u32 s{sT}, s{sT}, {cfg.c3l*128}')
            p(f'v_bfe_u32 v36, v1, 2, 2\nv_lshlrev_b32 v36, 18, v36\nv_bfe_u32 v37, v1, 1, 1\nv_lshl_add_u32 v36, v37, 10, v36\nv_and_b32 v37, 1, v1\nv_lshl_add_u32 v36, v37, 6, v36\nv_add_u32 v39, s{sT}, v36')
    def clear_setup():
        srd(p, S_H, pWS, WS_P + 256*3*16384, 12 << 20)
        p(f's_lshl_b32 s45, s{sRC}, 3\ns_add_u32 s45, s45, s{sCC}\ns_lshl_b32 s45, s45, 2\ns_add_u32 s45, s45, s{sJ}\ns_lshl_b32 s45, s45, 2\ns_add_u32 s45, s45, s{sW}\ns_mul_i32 s45, s45, 12288')
        p('v_lshlrev_b32 v39, 4, v1')
        for i in range(4): p(f'v_mov_b32 v{32+i}, -1')
    s2q = collect(setup2); s2per = -(-len(s2q) // 4)
    if cfg.apre:
        setup1(); setup2(); s2q = []
    else:
        for x in collect(setup1): L(16, x)
    npf = 0
    for j in range(7):
        g = bargap[j] + 1
        if j + 3 <= 7:
            L(g, f's_add_u32 s{sT+5}, s{sKV}, {(j+3)*16384}') if False else None
            L(g, f's_add_u32 s{sT+4}, s{sKV}, {(j+3)*16384}'); L(g, f's_add_u32 m0, s{sMK}, {((j+3) % 4)*16384}'); L(g, m0gap)
            for k in range(4): L(g + 3*k, kdma(k, sT+4, ('K', 4, j+3, 0)))
        if j + 2 <= 7:
            L(g + 12, f's_add_u32 s{sT+4}, s{sKV}, {(j+2)*16384}'); L(g + 12, f's_add_u32 m0, s{sMK}, {0x10000 + ((j+2) % 4)*16384}'); L(g + 12, m0gap)
            for k in range(4): L(g + 12 + 3*k, vdma(k, sT+4, ('V', 4, j+2, 0)))
        if j < 5:
            L(g + 24, f's_mov_b32 m0, s{sDM}'); L(g + 24, m0gap)
            for k in range(3):
                wo_ = npf % 2 == 0
                L(g + 24 + 4*k, f'buffer_load_dwordx4 v{vPF if wo_ else vPF+1}, s[{S_WO if wo_ else S_WD}:{(S_WO if wo_ else S_WD)+3}], s{sPF} offen lds')
                if not wo_: L(g + 24 + 4*k, f's_add_u32 s{sPF}, s{sPF}, 1024')
                npf += 1
        if cfg.cpf2 and (j in (1, 4) or cfg.cpf2 >= 2):
            for x in code_pf(S_DB, 61): L(g + 35, x)
        if j < 4:
            for x in s2q[j*s2per:(j+1)*s2per]: L(g + 36, x)
        if cfg.sent and j == 0:
            for x in collect(clear_setup): L(g + 60, x)
        if cfg.sent and 1 <= j <= 3:
            for k in range(4): L(g + 4 + 14*k, f'buffer_store_dwordx4 v[32:35], v39, s[{S_H}:{S_H+3}], s45 offen offset:{1024*k} sc1')
            L(g + 50, 's_add_u32 s45, s45, 4096')
        if j == cfg.hbar: H(g, flag_store('A_hf', vHF))
        if j == 4:
            for k, x in enumerate(collect(x_stage)): L(g + 36 + k//2, x)
        if j == 4: L(g + 40, f'buffer_load_dwordx2 v[62:63], v{vFH}, s[{S_FL}:{S_FL+3}], 0 offen sc1')
        if j == 5:
            for pc in range(8):
                for x in cdma(pc, 0): L(g + 24 + 3*pc, x)
            L(g + 50, '\n'.join(flagchk('L_h', vFH, 62)))
        if j == 6:
            for sub in range(4):
                for b in range(4):
                    for x in cact(sub, b): L(g + 3*(4*sub + b), x)
    for pc in range(8):
        for x in cdma(pc, 1): L(bargap[7] + 1 + 3*pc, x)
    if cfg.c3:
        L(bargap[6] - 4, f's_add_u32 s{sT+4}, s{kWD}, {128*2048}'); L(bargap[6] - 4, f'buffer_load_dword v61, v39, s[{S_WD}:{S_WD+3}], s{sT+4} offen ;pf')
    g = 2*start[16]
    lchk = []
    for qt in range(2):
        l = vL + 2*qt
        lchk += [f'v_add_f32 v{l}, v{l}, v{l+1}', f'v_mov_b32 v{l+1}, v{l}']
    lchk += [None, f'v_permlane32_swap_b32 v{vL}, v{vL+1}', f'v_permlane32_swap_b32 v{vL+2}, v{vL+3}', None,
             f'v_add_f32 v{vL}, v{vL}, v{vL+1}', f'v_add_f32 v{vL+2}, v{vL+2}, v{vL+3}',
             f's_mov_b32 s{sT+2}, {f2u(2.0**cfg.thr):#x}', f's_mov_b32 s{sT+3}, {f2u(2.0**-cfg.thr):#x}',
             f'v_cmp_nlt_f32 vcc, v{vL}, s{sT+2}', f'v_cmp_nlt_f32 s[{sT}:{sT+1}], v{vL+2}, s{sT+2}', None, f's_or_b64 vcc, vcc, s[{sT}:{sT+1}]',
             f'v_cmp_ngt_f32 s[{sT}:{sT+1}], v{vL}, s{sT+3}', None, f's_or_b64 vcc, vcc, s[{sT}:{sT+1}]',
             f'v_cmp_ngt_f32 s[{sT}:{sT+1}], v{vL+2}, s{sT+3}', None, f's_or_b64 vcc, vcc, s[{sT}:{sT+1}]']
    k = 0
    for x in lchk:
        if x is None: g += 1; k = 0; continue
        H(g, x); k += 1
        if k == 3: g += 1; k = 0
    assert g < n_ - 1
    def cyc(x):
        t_ = x[0] if isinstance(x, tuple) else x
        if callable(t_): return 8
        o = t_.split()[0]
        if o in TRANS: return 8
        if o.startswith('v_cvt_pk'): return 5
        if o.startswith('buffer_'): return cfg.vmc
        return 4*len(t_.split('\n')) if '\n' in t_ and ';cond' not in t_ else 4
    def cls(x):
        t_ = x[0] if isinstance(x, tuple) else x
        if callable(t_): return 'x'
        o = t_.split()[0]
        return 'm' if o.startswith('buffer_') else 'd' if o.startswith('ds_') else 'v' if o.startswith('v_') else 's'
    fill = {}; q_ = []
    for i in range(-1, n_):
        cur = list(hi.get(i, [])); cc_ = [cls(x) for x in cur]
        nd_ = cc_.count('d'); nv = nd_ + cc_.count('s') + 2*cc_.count('x') + (1 if i % 2 == 1 else 0); mem = nd_
        vroom = (cfg.av1 if nd_ else cfg.av0) - max(0, cc_.count('v') - 3); tookv = False
        for x in lo.get(i, []): q_.append((i, x))
        while q_:
            x = q_[0][1]; c_ = cls(x); force = i == n_ - 1 or i - q_[0][0] >= cfg.amax
            if c_ == 'v':
                if vroom <= 0 and not force: break
                vroom -= 1; tookv = True
            else:
                w_ = len((x[0] if isinstance(x, tuple) else x).split('\n')) if c_ == 's' else 1
                if (tookv or nv + min(w_, 2) > cfg.anv or (c_ == 'm' and mem >= cfg.amem)) and not force: break
                nv += w_; mem += c_ == 'm'
            cur.append(q_.pop(0)[1])
        fill[i] = cur
    fix_m0(fill, n_)
    if cfg.aab:
        tx = lambda x: x[0] if isinstance(x, tuple) else x
        for i in fill:
            if 2*start[3] <= i < 2*start[11]:
                if cfg.aab & 1: fill[i] = [x for x in fill[i] if callable(tx(x)) or not tx(x).startswith('buffer_load')]
                if cfg.aab & 2: fill[i] = [x for x in fill[i] if callable(tx(x)) or x in hi.get(i, []) or tx(x).startswith('buffer_load') or 'm0' in tx(x) or 's54' in tx(x)]
                if cfg.aab & 4: fill[i] = [x for x in fill[i] if not callable(tx(x))]
    for n in (1, 3, 7, 11, 15):
        t_ = ts.text(4)
        if t_: fill[2*start[n] - 1].append(t_)
    interleave(p, mf, fill)
    ts.stamp(p, 5)
    p('s_cbranch_vccnz A_slow')
    p('A_done:')
    ad = cfg.cad; P = cfg.cP
    for sub in range(4, ad):
        for b in range(4):
            for x in cact(sub, b): emit(p, x)
    p(f'v_rcp_f32 v{vL}, v{vL}\nv_rcp_f32 v{vL+2}, v{vL+2}')
    p.need(('C', 4, 0, 0)); p('s_barrier')
    for G in range(P):
        r = cA + 4*G
        p(f'ds_read_b64_tr_b16 v[{r}:{r+1}], v{cTr+G} offset:0', ('C', 4, 0, 0)); p(f'ds_read_b64_tr_b16 v[{r+2}:{r+3}], v{cTr+G} offset:4096', ('C', 4, 0, 0))
    p(';SPLIT')
    OE = cfg.oe if ND >= 7 else cfg.oes
    vO, vX, vFO, vFD, vFS, vFQ = 16, 96, 20, 21, 22, 23
    sPS, sPR = 32, 33
    def o_epi(packed):
        t = 32
        p(f'v_mov_b32 v{vL+1}, v{vL}\nv_mov_b32 v{vL+3}, v{vL+2}')
        p(f's_lshl_b32 s{sT}, s{sRB}, 4\ns_lshl_b32 s{sT+1}, s{sW}, 2\ns_add_u32 s{sT}, s{sT}, s{sT+1}\ns_mul_i32 s{sT}, s{sT}, {OST}\ns_lshl_b32 s{sT+1}, s{sCB}, 12\ns_add_u32 s{sT}, s{sT}, s{sT+1}')
        p(f'v_bfe_u32 v{t}, v1, 4, 1\nv_mul_u32_u24 v{t}, {OST}, v{t}\nv_lshrrev_b32 v{t+1}, 5, v1\nv_lshlrev_b32 v{t+1}, 8, v{t+1}\nv_and_b32 v{t+2}, 15, v1\nv_lshlrev_b32 v{t+2}, 4, v{t+2}')
        p(f'v_add3_u32 v{t}, v{t}, v{t+1}, v{t+2}\nv_add_u32 v34, s{sT}, v{t}\nv_add_u32 v35, {2*OST}, v34')
        n = 0
        for dt in range(4):
            for qt in range(2):
                o = (dt*2+qt)*16
                for half in range(2):
                    x = 96 + 8*(n % 2); d = 112 + 4*(n % 4); n += 1
                    for i in range(8): p(f'v_accvgpr_read_b32 v{x+i}, a{o+8*half+i}')
                    if packed:
                        for i in range(0, 8, 2): p(f'v_pk_mul_f32 v[{x+i}:{x+i+1}], v[{x+i}:{x+i+1}], v[{vL+2*qt}:{vL+2*qt+1}]')
                    else:
                        for i in range(8): p(f'v_mul_f32{cfg.e64} v{x+i}, v{x+i}, v{vL+2*qt}')
                        for i in range(cfg.xs): p(f's_mov_b32 s{sT+5}, {cfg.xl}')
                    for i in range(0, 8, 2): p(f'v_cvt_pk_bf16_f32 v{d+i//2}, v{x+i}, v{x+i+1}')
                    p(f'buffer_store_dwordx4 v[{d}:{d+3}], v{34+qt}, s[{S_O}:{S_O+3}], 0 offen offset:{dt*1024 + half*512} {cfg.ost}', ('Ost', 1, 0, 0))
    def s_setup():
        x_dma_addr(dO, k_o)
        srd(p, S_AO, pWS, WS_O, 17 << 20)
        p(f's_lshl_b32 s{kAO}, s{sJ}, 3')
        if NSS == 7 and cfg.fs == 2: p(f's_add_u32 s{kAO}, s{kAO}, 1')
        p(f's_lshl_b32 s{sT}, s{sRC}, 5\ns_add_u32 s{sT}, s{sT}, s{kAO}\ns_add_u32 s{sT}, s{sT}, 512\ns_lshl_b32 s{sT}, s{sT}, 7')
        p(f'v_and_b32 v{vFH}, 15, v1\nv_min_u32 v{vFH}, {NSS-1}, v{vFH}\nv_lshl_add_u32 v{vFH}, v{vFH}, 7, s{sT}')
        p(f's_lshl_b32 s{kWO}, s{kAO}, 18\ns_lshl_b32 s{kAO}, s{kAO}, 12')
        p(f's_lshl_b32 s{sT}, s{sRC}, 4\ns_lshl_b32 s{sT+2}, s{sW}, 2\ns_add_u32 s{sT}, s{sT}, s{sT+2}\ns_mul_i32 s{sT+2}, s{sT}, {OST}')
        act_addr(aO, OST, 24)
        p(f'v_add_u32 v{vFO}, {256*128}, v{vHF}')
        srd(p, S_OUT, pOUT, 0, 4 << 20); srd(p, S_P, pWS, WS_P, 24 << 20)
        p(f's_lshl_b32 s{sT}, s{sRC}, 3\ns_add_u32 s{sT}, s{sT}, s{sCC}\ns_lshl_b32 s{sT}, s{sT}, 2\ns_add_u32 s{sT+1}, s{sT}, s{sJ}')
        p(f's_add_u32 s{sT+2}, s{sT+1}, 768\ns_lshl_b32 s{sT+2}, s{sT+2}, 7\nv_mov_b32 v{vFD}, s{sT+2}\nv_add_u32 v{vFS}, {256*128}, v{vFD}')
        p(f's_add_u32 s{sT+2}, s{sT}, 768\ns_lshl_b32 s{sT+2}, s{sT+2}, 7\nv_and_b32 v{vFQ}, 3, v1\nv_lshl_add_u32 v{vFQ}, v{vFQ}, 7, s{sT+2}')
        p(f's_mul_i32 s{sT+3}, s{sW}, 12288\ns_mul_i32 s{sPR}, s{sT+1}, {3*16384}\ns_add_u32 s{sPR}, s{sPR}, s{sT+3}')
        for q_ in (1, 2, 3):
            p(f's_xor_b32 s{sT+2}, s{sT+1}, {q_}\ns_mul_i32 s{sT+2}, s{sT+2}, {3*16384}\ns_add_u32 s{sT+2}, s{sT+2}, s{sT+3}\ns_add_u32 s{sT+2}, s{sT+2}, {(q_-1)*4096}\nv_add_u32 v{24+q_}, s{sT+2}, v24')
        out_addr(vO)
    QUADS = [(t_, bp) for t_ in (4, 5, 6, 7) for bp in (0, 1)] + [(t_, 1) for t_ in range(4)]
    nsent = [0]
    def send(gemm, quads):
        for (t_, bp) in quads:
            c = 16*t_ + 8*bp; k = nsent[0]; nsent[0] += 1; d = 112 + 4*(k % 4); q_ = 2*(t_ >> 2) + bp
            if gemm == 0:
                for r in range(4): p(f'v_cvt_pk_bf16_f32 v{d+r}, v{cC+c+2*r}, v{cC+c+2*r+1}')
            else:
                x = 160 + 8*(k % 4)
                for r in range(8): p(f'v_accvgpr_read_b32 v{x+r}, a{c+r}')
                for r in range(4): p(f'v_cvt_pk_bf16_f32 v{d+r}, v{x+2*r}, v{x+2*r+1}')
                if cfg.sent:
                    for r in range(4): p(f'v_min_u32 v{d+r}, -2, v{d+r}')
            so = '0' if gemm == 0 else f's{sT+4}'
            p(f'buffer_store_dwordx4 v[{d}:{d+3}], v{24 + q_}, s[{S_P}:{S_P+3}], {so} offen offset:{1024*(t_ & 3)} {cfg.pst}', ('Pst', 1, gemm, 0))
    def send_d():
        send(0, QUADS)
        for i in (1, 2, 3):
            for r in range(8): p(f'v_mov_b32 v{cC+8*i+r}, v{cC+16*i+r}')
    mf = []; hi.clear(); lo.clear()
    ST = 128; TMS = cfg.tms
    NSUB = 4*NS
    order = [(sub // 4, sub % 4, t) for sub in range(NSUB - TMS) for t in range(8)]
    order += [(sub // 4, sub % 4, t) for t in (4, 5, 6, 7, 0, 1, 2, 3) for sub in range(NSUB - TMS, NSUB)]
    assert TMS <= 4 or NS % 2 == 0
    def ctr(G):
        sg, s, t = order[G]
        r = cA + 4*(G % 8); off = (sg % 2)*SLOT + s*8192
        a = cTr + t
        return [(f'ds_read_b64_tr_b16 v[{r}:{r+1}], v{a} offset:{off}', ('C', 4, sg, 0)),
                (f'ds_read_b64_tr_b16 v[{r+2}:{r+3}], v{a} offset:{off + 4096}', ('C', 4, sg, 0))]
    obar = math.ceil(OE) + 1; dbar = ND + math.ceil(cfg.de) + 1
    def bar(p, sgn):
        p.need(('C', 4, sgn, 0))
        if sgn == obar: p.need(('Ost', 1, 0, 0))
        if sgn == dbar: p.need(('Pst', 1, 0, 0))
        p('s_barrier')
    firstG = {}
    for G, (sg, s, t) in enumerate(order): firstG.setdefault(sg, G)
    for G in range(32*NS):
        sg, s, t = order[G]; sub = 4*sg + s
        for b in range(4):
            ra = cA + 4*(G % 8); rb = 128 + 16*(sub % 8) + 4*b; c = (t*4+b)*4
            acc_ = f'v[{cC+c}:{cC+c+3}]' if kind(sg) == 'd' else f'a[{c}:{c+3}]'
            mf.append(f'v_mfma_f32_16x16x32_bf16 {acc_}, v[{ra}:{ra+3}], a[{rb}:{rb+3}], {"0" if sub in (0, 4*ND) else acc_}')
        i0 = 4*G; Gn = G + P
        if Gn < 32*NS:
            if firstG[order[Gn][0]] == Gn: H(i0-1, lambda p, sgn=order[Gn][0]: bar(p, sgn))
            r0, r1 = ctr(Gn)
            H(i0, r0); H(i0+1, r1)
            if Gn % 64 >= 56 and Gn // 32 < NS - 1: H(i0+2, f'v_xor_b32 v{cTr + Gn % 8}, s{cTG}, v{cTr + Gn % 8}')
        sgc, g = divmod(G, 32)
        dstr = 2 if (TMS > 4 and sgc + 2 == NS - 1) else cfg.cdstr
        if g % dstr == 1 and g // dstr < 8 and sgc + 2 < NS:
            for x in cdma(g // dstr, sgc + 2): L(i0, x)
    last_act = 0
    def act_t(sub):
        t0 = max((sub - 7)*32, min((sub - ad)*32, (4*NS - 8)*32 - (4*NS - 1 - sub)*cfg.ramp)) if TMS else (sub - ad)*32
        if sub >= 4*ND: t0 = max(t0, (4*ND - cfg.odl)*32 + (sub - 4*ND)*cfg.ramp)
        return t0
    for sub in range(ad, 4*NS):
        t0 = act_t(sub); t1 = max(act_t(sub + 1), t0 + 12)
        for b in range(4):
            last_act = t0 + b*min(8, (t1 - t0)//4)
            for x in cact(sub, b): L(last_act, x)
    if cfg.cpf2:
        for k in ((1,) if cfg.cpf2 < 2 else range(0, math.floor(OE))):
            for x in code_pf(S_DB, 61): L(k*ST + 4*30, x)
        for x in code_srd(S_AH, 'L_pc3' + SFX): L(ND*ST, x)
        for k in ((ND, ND + 3) if cfg.cpf2 < 2 else range(ND, NS - 2)):
            for x in code_pf(S_AH, 61): L(k*ST + 4*30, x)
    if cfg.c3:
        L((ND - 2)*ST, f's_add_u32 s{sT+4}, s{kWO}, {cfg.c3s*128*2048}'); L((ND - 2)*ST, f'buffer_load_dword v61, v39, s[{S_WO}:{S_WO+3}], s{sT+4} offen ;pf')
    n = len(mf)
    fill = spread(hi, {k: lo[k] for k in sorted(lo)}, n, cfg.cap, 16, cost=lambda i: 1 if i % 4 == 3 else 0)
    fix_m0(fill, n)
    def ride(items, g0, g1):
        q_ = list(items); per = len(q_) / (g1 - g0); due = 0.0; done = 0
        for i in range(g0, g1):
            due += per
            used = len(fill[i]) + (1 if i % 4 == 3 else 0)
            while q_ and done < due + 2 and (used < cfg.cap or done < due - cfg.lag):
                fill[i].append(q_.pop(0)); used += 1; done += 1
        fill[g1-1] += q_
    oq = collect(lambda: o_epi(cfg.ox > 0))
    nx = 0
    if cfg.ox:
        idx = [i for i, x in enumerate(oq) if x[0].startswith('buffer_store')]
        nx = idx[cfg.ox - 1] + 1
        fill[-1] = oq[:nx] + fill[-1]
        oq2 = collect(lambda: o_epi(False))
        idx2 = [i for i, x in enumerate(oq2) if x[0].startswith('buffer_store')]
        oq = oq2[idx2[cfg.ox - 1] + 1:]
    if oq: ride(oq, 2, int(OE*ST))
    ride(collect(s_setup), int(OE*ST), int(OE*ST) + ST - 20)
    fill[obar*ST - 4*P + 2].append(flag_store('C_of' + SFX, vFO))
    first_o = act_t(4*ND)
    assert first_o - 2 > int(OE*ST) + ST - 20 and (ND - 2)*ST > int(OE*ST) + ST - 20
    fill[first_o - cfg.fl].append(f'buffer_load_dwordx2 v[62:63], v{vFH}, s[{S_FL}:{S_FL+3}], 0 offen sc1')
    fill[first_o - 2].append('\n'.join(flagchk('L_o' + SFX, vFH, 62)))
    ride(collect(send_d), ND*ST + 8, ND*ST + int(cfg.de*ST))
    fill[dbar*ST - 4*P + 2].append(flag_store('C_df' + SFX, vFD))
    xl = [f's_lshl_b32 s{sT+2}, s{sW}, 13', f's_add_u32 s{sT+2}, s{sT+2}, {XL}', 'v_and_b32 v36, 0x37, v1', 'v_lshlrev_b32 v36, 4, v36', 'v_bfe_u32 v37, v1, 3, 1', 'v_lshl_add_u32 v36, v37, 10, v36', f'v_add_u32 v39, s{sT+2}, v36']
    xl += [f'ds_read_b128 v[{vX+8*b+4*pr}:{vX+8*b+4*pr+3}], v39 offset:{2048*b + 128*pr}' for b in range(2) for pr in range(2)]
    vR = 192
    def recv(gemm):
        p(f's_add_u32 s{sT+2}, s{sPR}, {gemm*256*3*16384}')
        for q_ in range(3):
            for i in range(4):
                r = vR + 16*q_ + 4*i
                p(f'buffer_load_dwordx4 v[{r}:{r+3}], v24, s[{S_P}:{S_P+3}], s{sT+2} offen offset:{1024*i} sc1')
            if q_ < 2: p(f's_add_u32 s{sT+2}, s{sT+2}, 4096')
    dchk = NS - cfg.dchk
    assert not cfg.sent or int(dchk*ST) < (NSUB - TMS)*32 + TMS*4
    fill[int(dchk*ST) - cfg.fl].append(f'buffer_load_dwordx2 v[62:63], v{vFQ}, s[{S_FL}:{S_FL+3}], 0 offen sc1')
    fill[int(dchk*ST)].append('\n'.join(flagchk('L_d' + SFX, vFQ, 62)))
    r0_ = max(int(dchk*ST) + 2, last_act + 18)
    ride(collect(lambda: recv(0)), r0_, r0_ + 48)
    fill[(NS - 3)*ST].append(f's_mov_b32 s{sT+4}, {256*3*16384}')
    left = list(QUADS)
    if TMS:
        base = (NSUB - TMS)*32; plen = TMS*4
        for k, t_ in enumerate((4, 5, 6, 7, 0, 1, 2)):
            qs_ = [x for x in QUADS if x[0] == t_]; left = [x for x in left if x[0] != t_]
            g0 = base + (k + 1)*plen + 3
            ride(collect(lambda: send(1, qs_)), g0, min(n, g0 + plen))
    ts.stamp(p, 7)
    for k in range(1, 15):
        if k in (1, 2, 3, 4, 5, 6, 7, 8, 9, 11, 13):
            t_ = ts.text(2)
            if t_: fill[k*ST - 1].append(t_)
    interleave(p, mf, fill)
    if cfg.pw:
        p(f's_lshl_b32 s{sT+2}, s{sW}, 7\ns_add_u32 s{sT+2}, s{sT+2}, {(2304 - 4*768)*128}\nv_lshl_add_u32 v{vFS}, v{vFD}, 2, s{sT+2}\nv_lshl_add_u32 v{vFQ}, v{vFQ}, 2, s{sT+2}')
        p(f's_mov_b32 s{sT+3}, 0xffff0000\ns_nop 2')
    else:
        p(f's_mov_b32 s{sT+3}, 0xffff0000\nv_add_u32 v{vFQ}, {256*128}, v{vFQ}\ns_nop 4')
    ts.stamp(p, 3)
    for x in xl: p(x)
    send(1, left)
    RS = (160, 176, 240)
    def recv_s(q_, cond=''):
        for i in range(4):
            p(f'buffer_load_dwordx4 v[{RS[q_]+4*i}:{RS[q_]+4*i+3}], v24, s[{S_P}:{S_P+3}], s{44+q_} offen offset:{1024*i} sc1{cond}')
    if cfg.sent:
        p(f's_add_u32 s44, s{sPR}, {256*3*16384}\ns_add_u32 s45, s44, 4096\ns_add_u32 s46, s45, 4096')
        for q_ in range(3): recv_s(q_)
    pk = lambda r: f'v[{r}:{r+1}]'
    def addparts(dst, i, src):
        for q_ in range(3):
            rr = src[q_] + 4*i; tt = 32 + 8*(q_ % 2)
            for r in range(4): p(f'v_lshlrev_b32 v{tt+2*r}, 16, v{rr+r}\nv_and_b32 v{tt+2*r+1}, s{sT+3}, v{rr+r}')
            for r in range(0, 8, 2): p(f'v_pk_add_f32 {pk(dst+r)}, {pk(dst+r)}, {pk(tt+r)}')
    p(f'v_mov_b32 v28, {f2u(-math.log2(math.e)):#x}\nv_mov_b32 v29, v28')
    RD = (vR, vR + 16, vR + 32)
    for i in range(4):
        c = cC + 8*i; B = 48
        addparts(c, i, RD)
        for r in range(0, 8, 2): p(f'v_pk_mul_f32 {pk(B+r)}, {pk(c+r)}, v[28:29]')
        for r in range(8): p(f'v_exp_f32 v{B+r}, v{B+r}')
        p('s_nop 0')
        for r in range(0, 8, 2): p(f'v_pk_add_f32 {pk(B+r)}, {pk(B+r)}, 1.0 op_sel_hi:[1,0]')
        for r in range(8): p(f'v_rcp_f32 v{B+r}, v{B+r}')
        p('s_nop 0')
        for r in range(0, 8, 2): p(f'v_pk_mul_f32 {pk(c+r)}, {pk(c+r)}, {pk(B+r)}')
    vSs = 64
    for i in range(32): p(f'v_accvgpr_read_b32 v{vSs+i}, a{16*(i//8) + i % 8}')
    E = 192 if cfg.sent else 160
    def xunpack():
        for b in range(4):
            for q in range(4): p(f'v_lshlrev_b32 v{E+8*b+2*q}, 16, v{vX+4*b+q}\nv_and_b32 v{E+8*b+2*q+1}, s{sT+3}, v{vX+4*b+q}')
    if cfg.sent:
        xunpack()
        ts.stamp(p)
        p(f'C_chk{SFX}:\ns_waitcnt vmcnt(0)\ns_mov_b32 s47, 0')
        for q_ in range(3):
            r = RS[q_]
            p(f'v_max3_u32 v32, v{r}, v{r+1}, v{r+2}')
            for k in range(3, 15, 2): p(f'v_max3_u32 v32, v32, v{r+k}, v{r+k+1}')
            p(f'v_max_u32 v32, v32, v{r+15}\nv_cmp_eq_u32 vcc, -1, v32\ns_nop 1\ns_cbranch_vccz C_ok{q_}{SFX}')
            p.cond(True)
            p(f's_sleep {cfg.slp2}\ns_mov_b32 s47, 1'); recv_s(q_)
            p.cond(False)
            p(f'C_ok{q_}{SFX}:')
        p(f's_cmp_lg_u32 s47, 0\ns_cbranch_scc1 C_chk{SFX}')
        ts.stamp(p)
        src = RS
    else:
        if cfg.pw:
            xunpack()
            p('s_waitcnt vmcnt(0)')
            ts.stamp(p)
            p(f'buffer_store_dwordx2 v[2:3], v{vFS}, s[{S_FL}:{S_FL+3}], 0 offen sc1')
            p.cond(True)
            poll('C_poll' + SFX, vFQ, 'C_got' + SFX)
            p.cond(False)
            p(f'C_got{SFX}:')
            ts.stamp(p)
        else:
            p('s_waitcnt vmcnt(0)\ns_barrier')
            ts.stamp(p)
            p(f's_cmp_eq_u32 s{sW}, 1\ns_cbranch_scc0 C_got{SFX}')
            p.cond(True)
            p(f'buffer_store_dwordx2 v[2:3], v{vFS}, s[{S_FL}:{S_FL+3}], 0 offen sc1')
            poll('C_poll' + SFX, vFQ, 'C_got' + SFX)
            p.cond(False)
            p(f'C_got{SFX}:\ns_barrier')
            ts.stamp(p)
        recv(1)
        if not cfg.pw: xunpack()
        src = RD
    for i in range(4): addparts(vSs + 8*i, i, src)
    for i in range(0, 32, 2): p(f'v_pk_mul_f32 {pk(vSs+i)}, {pk(vSs+i)}, {pk(cC+i)}')
    for b in range(2):
        P0, P1, T_ = 112 + 8*b, 116 + 8*b, 32
        for pr in range(2):
            c0 = vSs + 16*pr + 4*b; c1 = c0 + 8
            for r in range(4): p(f'v_permlane16_swap_b32 v{c0+r}, v{c1+r}')
        for pr in range(2):
            c0 = vSs + 16*pr + 4*b; c1 = c0 + 8; e = E + 16*b + 8*pr
            for q in range(4):
                c = (c0, c0+2, c1, c1+2)[q]
                p(f'v_pk_add_f32 {pk(e+2*q)}, {pk(e+2*q)}, {pk(c)}')
            for q in range(4): p(f'v_cvt_pk_bf16_f32 v{(P0, P1)[pr]+q}, v{e+2*q}, v{e+2*q+1}')
        for q in range(4): p(f'v_mov_b32 v{T_+q}, v{P1+q}')
        for q in range(4): p(f'v_mov_b32_dpp v{P1+q}, v{P0+q} row_ror:8 row_mask:0xf bank_mask:0x3')
        for q in range(4): p(f'v_mov_b32_dpp v{P0+q}, v{T_+q} row_ror:8 row_mask:0xf bank_mask:0xc')
        p(f's_mov_b32 s{sT}, {2*b*0x4000}\ns_mov_b32 s{sT+1}, {(2*b+1)*0x4000}')
        p(f'buffer_store_dwordx4 v[{P0}:{P0+3}], v{vO}, s[{S_OUT}:{S_OUT+3}], s{sT} offen {cfg.osc}')
        p(f'buffer_store_dwordx4 v[{P1}:{P1+3}], v{vO}, s[{S_OUT}:{S_OUT+3}], s{sT+1} offen {cfg.osc}')
    ts.stamp(p)
    if cfg.ts: p('s_waitcnt vmcnt(0)')
    ts.stamp(p)
    ts.dump(p, pWS)
    p('s_endpgm')
    autowait(p)
    if cfg.hoist: hoist(p)
    if not cfg.aab: check(p, 'main')

    z = Prog(); main = p; p = z
    p('A_slow:')
    p('s_waitcnt vmcnt(0) lgkmcnt(0)')
    srd(p, S_K, pK, 0, 2 << 20); srd(p, S_V, pV, 0, 2 << 20)
    zK, zD, zV = 13, 14, 21
    zKV, zN = sT, sT+1
    p(f's_lshr_b32 s{zKV}, s{sCB}, 3\ns_lshl_b32 s{zKV}, s{zKV}, 19\ns_add_u32 s{zKV}, s{zKV}, {1536*256}')
    p(f'v_and_b32 v{zK}, 31, v1\nv_lshlrev_b32 v{zK}, 8, v{zK}\nv_lshrrev_b32 v36, 5, v1\nv_lshl_add_u32 v{zK}, v36, 4, v{zK}')
    p(f'v_lshrrev_b32 v36, 4, v1\nv_and_b32 v37, 15, v1\nv_lshlrev_b32 v38, 2, v36\nv_xor_b32 v37, v37, v38\nv_lshlrev_b32 v36, 8, v36\nv_lshl_add_u32 v{zD}, v37, 4, v36\nv_add_u32 v{zD+1}, 0x1000, v{zD}')
    t = 36
    p(f'v_lshrrev_b32 v{t}, 5, v1\nv_lshlrev_b32 v{t}, 2, v{t}\nv_bfe_u32 v{t+1}, v1, 2, 2\nv_add_u32 v{t}, v{t}, v{t+1}\nv_lshlrev_b32 v{t}, 8, v{t}')
    p(f'v_bfe_u32 v{t+2}, v1, 4, 1\nv_lshlrev_b32 v{t+2}, 5, v{t+2}\nv_and_b32 v{t+3}, 3, v1\nv_lshlrev_b32 v{t+3}, 3, v{t+3}\nv_add3_u32 v{t}, v{t}, v{t+2}, v{t+3}')
    p(f's_lshl_b32 s{sT+2}, s{sW}, 13\ns_add_u32 s{sT+2}, s{sT+2}, 0x10000\nv_add_u32 v{t}, s{sT+2}, v{t}')
    for dt in range(4): p(f'v_xor_b32 v{t+2}, {dt}, v{t+1}\nv_lshl_add_u32 v{zV+dt}, v{t+2}, 6, v{t}')
    def kglob():
        for s in range(8): p(f'buffer_load_dwordx4 a[{aF+4*s}:{aF+4*s+3}], v{zK}, s[{S_K}:{S_K+3}], s{zN} offen offset:{32*s}')
    p(f'v_mov_b32 v32, 0xff800000\nv_mov_b32 v34, 0xff800000\ns_mov_b32 s{zN}, s{zKV}\ns_mov_b32 s{sT+3}, 16')
    p.loop_begin('Z1_loop', 16, align=False)
    kglob()
    for s in range(8):
        for qt in range(2): p(qk(0, s, qt, zero))
    p('s_nop 7\ns_nop 3')
    rowmax(0, False)
    p(f's_add_u32 s{zN}, s{zN}, 8192\ns_sub_u32 s{sT+3}, s{sT+3}, 1\ns_cmp_lg_u32 s{sT+3}, 0\ns_cbranch_scc1 Z1_loop')
    p.loop_end()
    set_negm()
    for i in range(128): p(f'v_accvgpr_write_b32 a{i}, 0')
    for i in range(4): p(f'v_mov_b32 v{vL+i}, 0')
    p(f's_mov_b32 s{zN}, s{zKV}\ns_mov_b32 s{sT+3}, 16')
    p.loop_begin('Z2_loop', 16, align=False)
    kglob()
    for j in range(8):
        if j % 4 == 0: p(f's_add_u32 m0, s{sT+2}, {1024*j}\ns_nop 0')
        p(f'buffer_load_dwordx4 v{zD + j//4}, s[{S_V}:{S_V+3}], s{zN} offen offset:{1024*(j%4)} lds')
    for s in range(8):
        for qt in range(2): p(qk(0, s, qt, negm))
    p('s_nop 7\ns_nop 3')
    for ops in softmax_ops(0):
        for o in ops: p(o)
    p('s_waitcnt vmcnt(0)')
    for f in range(8):
        for r in vread(0, f, None, base=zV, off0=0): emit(p, r)
    for f in range(8):
        for qt in range(2): p(pv(0, f, qt))
    p(f's_add_u32 s{zN}, s{zN}, 8192\ns_sub_u32 s{sT+3}, s{sT+3}, 1\ns_cmp_lg_u32 s{sT+3}, 0\ns_cbranch_scc1 Z2_loop')
    p.loop_end()
    p('s_nop 7\ns_nop 7')
    for qt in range(2):
        l = vL + 2*qt
        p(f'v_add_f32 v{l}, v{l}, v{l+1}\nv_mov_b32 v{l+1}, v{l}\ns_nop 1\nv_permlane32_swap_b32 v{l}, v{l+1}\ns_nop 1\nv_add_f32 v{l}, v{l}, v{l+1}')
    p('s_branch A_done')
    autowait(z); check(z, 'slow')
    txt = main.text()
    if cfg.jit:
        n_ = [0]
        def jit(m):
            n_[0] += 1
            if n_[0] % cfg.jit: return m.group(0)
            l = f'J{SFX if ";SPLIT" in txt[:m.start()] else ""}_{n_[0]}'
            return (f'  s_mul_i32 s98, s2, {7 + 2*n_[0]}\n  s_mul_i32 s99, s36, {13 + n_[0]}\n  s_add_u32 s98, s98, s99\n  s_getreg_b32 s99, hwreg(HW_REG_SHADER_CYCLES, 0, 8)\n'
                    if False else
                    f'  s_mov_b32 s99, scc\n' if False else '') + f'  s_cselect_b32 s97, 1, 0\n  s_mul_i32 s98, s2, {7 + 2*n_[0]}\n  s_mul_i32 s99, s36, {13 + n_[0]}\n  s_add_u32 s98, s98, s99\n  s_and_b32 s98, s98, 7\n{l}:\n  s_sleep 8\n  s_sub_u32 s98, s98, 1\n  s_cmp_ge_i32 s98, 0\n  s_cbranch_scc1 {l}\n  s_cmp_eq_u32 s97, 1\n' + m.group(0)
        import re
        txt = re.sub(r'  s_barrier', jit, txt)
    pre_, c_ = txt.split(';SPLIT')
    return pre_, c_, z.text(), sJ

def main():
    cfg = Cfg()
    cfg.ts = 1; cfg.xmap = 'b'; cfg.stag = 0; cfg.P = 4; cfg.late1 = 1; cfg.w0 = 0; cfg.cw0 = 8
    cfg.d0 = 0; cfg.dstr = 4; cfg.a0 = 1; cfg.astr = 2; cfg.ad = 3; cfg.PF = 3; cfg.cap = 2
    cfg.cad = 5; cfg.cdstr = 4; cfg.cP = 4; cfg.thr = 40; cfg.tail0 = 4; cfg.sum = 'add'; cfg.hbar = 2; cfg.t1e = 1; cfg.t0e = 0; cfg.npre = 2; cfg.odl = 3; cfg.gl = 1; cfg.perm = 0; cfg.lad = 1; cfg.pw = 0; cfg.av0 = 2; cfg.av1 = 1; cfg.anv = 2; cfg.amem = 2; cfg.hoist = 1; cfg.apre = 0; cfg.jit = 0; cfg.ost = 'sc1'; cfg.pst = 'sc1'; cfg.m0 = 0; cfg.c3 = 0; cfg.xat = -1; cfg.c3l = 3; cfg.c3s = 2; cfg.wsc = ''; cfg.gsc = ''; cfg.cdel = 0; cfg.ccx = 0; cfg.xbar = 90; cfg.fs1 = 6; cfg.xe = 0; cfg.xchk = 230; cfg.xfl = 60; cfg.xt = 0; cfg.fs = 2; cfg.oes = 2; cfg.sent = 0; cfg.slp2 = 4; cfg.trk = 2; cfg.kvp = 1; cfg.trk0 = 1; cfg.pf4 = 0; cfg.pf4n = 8; cfg.pf3 = 0; cfg.aab = 0; cfg.e64 = ''; cfg.xs = 0; cfg.xl = 1; cfg.cpf2 = 2; cfg.loc = 0; cfg.fremote = 0; cfg.ox = 0; cfg.ramp = 20; cfg.lag = 3; cfg.vmc = 8; cfg.acap = 24; cfg.amax = 40; cfg.wb = 0; cfg.opad = 256; cfg.xpad = 256; cfg.hpad = 0; cfg.oe = 3; cfg.de = 3; cfg.tms = 8; cfg.fl = 128; cfg.dchk = 1.65; cfg.dbg = 0; cfg.cpf = 1; cfg.tlb = 0; cfg.osc = 'sc1'; cfg.slp = 1; cfg.late0 = 2
    for a in sys.argv[2:]:
        k, v = a.split('='); setattr(cfg, k, int(v) if v.lstrip('-').isdigit() else float(v) if v.replace('.','').isdigit() else v)
    kn = NAME + '_kernel'
    doc = """; out = x + (attn(LN(x) wq, K, V) wo) * silu((gelu(LN(x) wg) * (LN(x) wu)) wd)      bf16 in/out, fp32 accumulation
; Kernarg: 0 x, 8 k_cache, 16 v_cache, 24 wq, 32 wo, 40 (unused), 48 w_gate, 56 w_up, 64 w_down, 72 out, 80 debug, 88 workspace
;  0  LayerNorm statistics of 8 tokens -> {mean, 1/std} records and normalised rows (MFMA B-fragment order) in the workspace
"""
    hdr = (f'; opad={cfg.opad} hoff={WS_H} xpad={cfg.xpad} hpad={cfg.hpad} ooff={WS_O}\n' + doc + f'; @launch grid=(256,1,1) block=(256,1,1) lds={LDS_TOT}\n'
           '.amdgcn_target "amdgcn-amd-amdhsa--gfx950"\n')
    if cfg.fs:
        (a, c8, z, sJ), (a6, c6, _, _) = (gen(cfg, 8), gen(cfg, 6)) if cfg.fs == 1 else (gen(cfg, 7, 9), gen(cfg, 7, 7))
        assert a == a6
        body = a + f'  s_bitcmp1_b32 s{sJ}, 0\n  s_cbranch_scc1 C_short\n' + c8 + '\nC_short:\n' + c6
    else:
        a, c7, z, _ = gen(cfg, 7); body = a + c7
    s = hdr + kernel_head(kn) + body + '\nK_end:\n  s_endpgm\n' + z + '\nK_last:\n' + kernel_desc(kn, 512, 256)
    s = '\n'.join(l for l in s.split('\n') if not l.strip().startswith(('; need', '; touch'))).replace(' offset:0 ', ' ').replace(' offset:0\n', '\n').replace('\n  ', '\n ')
    open(sys.argv[1], 'w').write(s)
if __name__ == '__main__': main()
```

```python
import sys, struct, math
from dsl import *
from gen2 import (f2u, srd, kernel_head, kernel_desc, emit, interleave, spread, m0gap, fix_m0, chk_tail, Cfg)

NAME = 'recurrent_scan__sliding_block_cached__geglu_ffn__prompt'
WS_XN = 0
WS_O  = 5 << 20
WS_H  = 23 << 20
WS_G  = 36 << 20
WS_FL = 40 << 20
WS_ST = 41 << 20
WS_TS = 48 << 20
WS_P  = 64 << 20
HS = 22528; NHS = 7
LDS_SCR = NHS*HS
LDS_TOT = 163840

class TS:
    def __init__(self, on): self.on = on; self.n = 0
    def text(self, grp):
        if not self.on & grp or self.n >= 14: return None
        s = 88 + self.n; self.n += 1
        clk = 's_memtime' if self.on & 8 else 's_memrealtime'
        return f's_waitcnt lgkmcnt(0)\n{clk} s[4:5]\ns_waitcnt lgkmcnt(0)\ns_mov_b32 s{s}, s4'
    def stamp(self, p, grp=1):
        t = self.text(grp)
        if t: p(t)
    def old(self, p):
        if not self.on: return
        s = 88 + self.n; self.n += 1;
        if s >= 102: return
        p(f's_waitcnt lgkmcnt(0)\ns_memrealtime s[4:5]\ns_waitcnt lgkmcnt(0)\ns_mov_b32 s{s}, s4')
    def dump(self, p, wsptr):
        if not self.on: return
        if self.on & 16:
            p('s_load_dwordx2 s[12:13], s[0:1], 80\ns_waitcnt lgkmcnt(0)\ns_mov_b32 s14, 256\ns_mov_b32 s15, 0x20000\nv_mov_b32 v8, 0\ns_mov_b64 exec, 1')
            for i in range(min(self.n, 14)):
                p(f's_sub_u32 s4, s{88+i}, s6\nv_mov_b32 v4, s4\nbuffer_atomic_smax v4, v8, s[12:15], 0 offen offset:{8+4*i}\ns_nop 1')
            return
        srd(p, 12, wsptr, WS_TS, 1 << 20)
        p('s_lshl_b32 s3, s2, 8\ns_lshl_b32 s4, s36, 6\ns_add_u32 s3, s3, s4\nv_mov_b32 v8, s3')
        p('s_getreg_b32 s4, hwreg(HW_REG_XCC_ID, 0, 4)\nv_mov_b32 v4, s4\nbuffer_store_dword v4, v8, s[12:15], 0 offen offset:60\ns_nop 1')
        for i in range(min(self.n, 14)):
            p(f'v_mov_b32 v4, s{88+i}\nbuffer_store_dword v4, v8, s[12:15], 0 offen offset:{4*i}\ns_nop 1')

def gen(cfg, ND, NSS=8):
    SFX = f'_{ND}{NSS}'
    OST = 131072 + cfg.opad; XST = 32768 + cfg.xpad; HST = 112*1024 + cfg.hpad
    p = Prog(); ts = TS(cfg.ts)
    SC = ' sc1'; LS = '' if cfg.loc else ' sc1'
    assert cfg.xmap == 'c' or not cfg.loc
    pX, pK, pV, pWQ, pWO, pWG, pWU, pWD, pOUT, pDBG, pWS = 64, 66, 68, 70, 72, 76, 78, 80, 82, 84, 86
    S_W, S_Q, S_XN, S_H, S_K, S_V, S_O = 8, 12, 16, 20, 24, 28, 32
    S_FL, S_DB = 56, 60
    sW, sRB, sCB, sKW, sKQ, sKA, sCNT = 36, 37, 38, 39, 40, 41, 42
    sMW, sMQ, sRD, sDL, sLEFT, sLEFA, sRW, sRQ = 43, 44, 45, 46, 47, 48, 49, 3
    sT = 50
    p('K_first:\ns_cmp_ge_u32 s2, 256\ns_cbranch_scc1 K_end')
    if cfg.perm: p(f's_lshr_b32 s3, s2, 3\ns_and_b32 s3, s3, 7\ns_mul_i32 s3, s3, {cfg.perm}\ns_and_b32 s3, s3, 7\ns_xor_b32 s2, s2, s3')
    p('s_load_dwordx16 s[64:79], s[0:1], 0\ns_load_dwordx8 s[80:87], s[0:1], 64')
    p(f'v_lshrrev_b32 v2, 6, v0\nv_and_b32 v1, 63, v0\nv_readfirstlane_b32 s{sW}, v2')
    p(f's_and_b32 s{sT}, s2, 7\ns_lshr_b32 s{sT+1}, s2, 3')
    if cfg.xmap == 'c':
        p(f's_and_b32 s{sRB}, s{sT}, 1\ns_lshl_b32 s{sRB}, s{sRB}, 2\ns_and_b32 s{sT+2}, s{sT+1}, 3\ns_add_u32 s{sRB}, s{sRB}, s{sT+2}')
        p(f's_lshr_b32 s{sCB}, s{sT}, 1\ns_lshl_b32 s{sCB}, s{sCB}, 3\ns_lshr_b32 s{sT+2}, s{sT+1}, 2\ns_add_u32 s{sCB}, s{sCB}, s{sT+2}')
    else:
        p(f's_and_b32 s{sRB}, s{sT+1}, 7\ns_lshl_b32 s{sCB}, s{sT}, 2\ns_lshr_b32 s{sT+2}, s{sT+1}, 3\ns_add_u32 s{sCB}, s{sCB}, s{sT+2}')
    vAct, vDW, vDQ, vTr, vTq, vT = 4, 8, 15, 19, 20, 28
    vA, RA = 32, 8
    vB, RB = 64, 4
    def acc(t, b):
        if t < 16: c = (t*4+b)*4; return f'a[{c}:{c+3}]'
        c = 160 + ((t-16)*4+b)*4; return f'v[{c}:{c+3}]'
    def accr(t, b, r):
        if t < 16: return f'a{(t*4+b)*4+r}'
        return f'v{160+((t-16)*4+b)*4+r}'
    vLX, vLO, vLS = 128, 129, 130
    t = 132
    p(f's_lshl_b32 s{sT}, s{sRB}, 8\ns_lshl_b32 s{sT+1}, s{sCB}, 3\ns_add_u32 s{sT}, s{sT}, s{sT+1}\ns_lshl_b32 s{sT}, s{sT}, 11\ns_lshl_b32 s{sT+1}, s{sW}, 9\ns_add_u32 s{sT}, s{sT}, s{sT+1}')
    p(f'v_and_b32 v{t}, 7, v1\nv_bfe_u32 v{t+1}, v1, 3, 1\nv_lshrrev_b32 v{t+2}, 4, v1')
    p(f'v_lshlrev_b32 v{t+3}, 11, v{t}\nv_lshlrev_b32 v{t+4}, 8, v{t+1}\nv_lshlrev_b32 v{t+5}, 4, v{t+2}\nv_add3_u32 v{t+3}, v{t+3}, v{t+4}, v{t+5}\nv_add_u32 v{vLX}, s{sT}, v{t+3}')
    KW, KQ, KA, NT = 64*7168, 64*8192, 2048, 16
    sNO = 6
    vRX = 140; RAWL = 4*HS
    vSR = 139
    def late_addr():
        t = 132
        p(f's_lshl_b32 s{sT}, s{sRB}, 4\ns_lshr_b32 s{sT+1}, s{sCB}, 1\ns_add_u32 s{sT}, s{sT}, s{sT+1}\ns_mul_i32 s{sT}, s{sT}, {XST}\ns_lshl_b32 s{sT+1}, s{sW}, 13\ns_add_u32 s{sT}, s{sT}, s{sT+1}')
        p(f's_and_b32 s{sT+1}, s{sCB}, 1\ns_lshl_b32 s{sT+1}, s{sT+1}, 7\ns_add_u32 s{sT}, s{sT}, s{sT+1}')
        p(f'v_lshlrev_b32 v{t+3}, 4, v{t}\nv_lshlrev_b32 v{t+4}, 12, v{t+1}\nv_lshlrev_b32 v{t+5}, 8, v{t+2}\nv_add3_u32 v{t+4}, v{t+3}, v{t+4}, v{t+5}\nv_add_u32 v{vLO}, s{sT}, v{t+4}')
        p(f'v_add_u32 v{vLS}, {LDS_SCR}, v{t+3}\nv_lshl_add_u32 v{vLS+1}, v2, 2, v{vLS}')
        p(f's_and_b32 s{sT}, s{sW}, 1\ns_mul_i32 s{sT}, s{sT}, {32*7168}\ns_mul_i32 s{sT+1}, s{sCB}, 224\ns_add_u32 s{sT}, s{sT}, s{sT+1}')
        p(f's_mov_b32 s{sT+1}, 4682\ns_mov_b32 s{sT+2}, 7168')
        for n in range(448): assert (n*4682) >> 16 == n // 14
        t = 32
        for pc in range(7):
            p(f'v_add_u32 v{t}, {64*pc}, v1')
            p(f'v_mul_u32_u24 v{t+1}, s{sT+1}, v{t}\nv_lshrrev_b32 v{t+1}, 16, v{t+1}')
            p(f'v_mul_u32_u24 v{t+2}, 14, v{t+1}\nv_sub_u32 v{t+2}, v{t}, v{t+2}')
            p(f'v_and_b32 v{t+3}, 0x13, v{t+1}\nv_and_b32 v{t+4}, 4, v{t+1}\nv_lshl_or_b32 v{t+3}, v{t+4}, 1, v{t+3}')
            p(f'v_bfe_u32 v{t+4}, v{t+1}, 3, 1\nv_lshl_or_b32 v{t+3}, v{t+4}, 2, v{t+3}')
            p(f'v_mul_u32_u24 v{t+3}, s{sT+2}, v{t+3}\nv_lshlrev_b32 v{t+2}, 4, v{t+2}\nv_add3_u32 v{vDW+pc}, v{t+3}, v{t+2}, s{sT}')
            if pc % 4: p(f'v_subrev_u32 v{vDW+pc}, {1024*(pc%4)}, v{vDW+pc}')
        p(f's_lshl_b32 s{sT}, s{sW}, 17\ns_lshl_b32 s{sT+1}, s{sCB}, 8\ns_add_u32 s{sT}, s{sT}, s{sT+1}')
        p(f'v_lshrrev_b32 v{t}, 4, v1\nv_and_b32 v{t+1}, 15, v1\nv_lshlrev_b32 v{t+2}, 1, v{t}\nv_xor_b32 v{t+1}, v{t+1}, v{t+2}')
        p(f'v_lshlrev_b32 v{t}, 13, v{t}\nv_add_u32 v{t}, s{sT}, v{t}')
        for j in range(4):
            p(f'v_xor_b32 v{t+2}, {8*(j>>1)}, v{t+1}\nv_lshl_add_u32 v{t+2}, v{t+2}, 4, v{t}')
            p(f'v_add_u32 v{vDQ+j}, {j*(4*8192-1024)}, v{t+2}')
        p(f's_and_b32 s{sT}, s{sW}, 1\ns_lshr_b32 s{sT+1}, s{sW}, 1')
        p(f's_mul_i32 s{sMW}, s{sT}, {HS}\ns_mul_i32 s{sRW}, s{sT+1}, 7168')
        p(f's_mul_i32 s{sMQ}, s{sT+1}, {HS}\ns_lshl_b32 s{sRQ}, s{sT}, 12\ns_add_u32 s{sRQ}, s{sRQ}, 14336')
        p(f's_mov_b32 s{sKW}, 0\ns_mov_b32 s{sKQ}, 0\ns_mov_b32 s{sKA}, {2*KA}')
        p(f's_mov_b32 s{sRD}, 0')
        p(f's_lshl_b32 s{sT}, s{sRB}, 8\ns_lshl_b32 s{sT+1}, s{sW}, 6\ns_add_u32 s{sT+5}, s{sT}, s{sT+1}\ns_lshl_b32 s{sT}, s{sT+5}, 11')
        p(f'v_and_b32 v32, 15, v1\nv_lshrrev_b32 v34, 4, v1')
        for j in range(4):
            p(f'v_add_u32 v33, {4*j}, v34\nv_xor_b32 v35, v33, v32\nv_lshlrev_b32 v33, 11, v33\nv_lshl_add_u32 v33, v35, 4, v33\ns_sub_u32 s{sT+1}, s{sT}, {1024*j}\nv_add_u32 v{vRX+j}, s{sT+1}, v33')
        p(f's_lshl_b32 s{sT}, s{sT+5}, 4\nv_lshl_add_u32 v{vSR}, v32, 4, s{sT}')

    if not cfg.lad: late_addr()
    p('s_waitcnt lgkmcnt(0)')
    ts.stamp(p, 33)
    S_X0 = S_H
    srd(p, S_X0, pX, 0, 4 << 20)
    vLD = 144
    for i in range(4): p(f'buffer_load_dwordx4 v[{vLD+4*i}:{vLD+4*i+3}], v{vLX}, s[{S_X0}:{S_X0+3}], 0 offen offset:{64*i}')
    vP1, vP2, vPD = 136, 137, 138
    def code_srd(q, lbl):
        return [f's_getpc_b64 s[{q}:{q+1}]\n{lbl}:\ns_sub_u32 s{q}, s{q}, {lbl}-K_first\ns_subb_u32 s{q+1}, s{q+1}, 0', f's_mov_b32 s{q+2}, K_last-K_first', f's_mov_b32 s{q+3}, 0x20000']
    def code_pf(q, dst):
        return [f'buffer_load_dword v{dst}, v0, s[{q}:{q+3}], 0 offen ;pf']
    for x in code_srd(S_O, 'L_pc1'): p(x)
    p(f's_lshr_b32 s{sT}, s2, 3\ns_lshl_b32 s{sT}, s{sT}, 2\ns_add_u32 s{sT}, s{sT}, s{sW}\ns_lshl_b32 s{sT}, s{sT}, 10\nv_and_b32 v32, 15, v1\nv_lshl_add_u32 v0, v32, 6, s{sT}')
    for x in code_pf(S_O, vPD): p(x)
    def raw(q):
        p(f's_lshl_b32 s{sT}, s{sW}, 14\ns_add_u32 m0, s{sT}, {RAWL + 4096*q}\ns_mov_b32 s{sT}, {32768*q}')
        for j in range(4): p(f'buffer_load_dwordx4 v{vRX+j}, s[{S_X0}:{S_X0+3}], s{sT} offen offset:{1024*j} lds', ('R', 1, 0, 0))
    srd(p, S_DB, pDBG, 0, 256)
    p(f's_lshl_b32 s{sT}, s2, 2\ns_add_u32 s{sT}, s{sT}, s{sW}\ns_cmp_eq_u32 s{sT}, 1\ns_cbranch_scc0 L_no_nonce')
    p.cond(True)
    p(f's_memrealtime s[{sNO}:{sNO+1}]\nv_mov_b32 v34, 0\ns_waitcnt lgkmcnt(0)\ns_and_b32 s{sNO}, s{sNO}, 0xffffffc0\ns_or_b32 s{sNO}, s{sNO}, 1\ns_getreg_b32 s{sT}, hwreg(HW_REG_XCC_ID, 0, 1)\ns_lshl_b32 s{sT}, s{sT}, 5\ns_or_b32 s{sNO}, s{sNO}, s{sT}\nv_mov_b32 v32, s{sNO}\nv_mov_b32 v33, s{sNO+1}')
    p(f'buffer_store_dwordx2 v[32:33], v34, s[{S_DB}:{S_DB+3}], 0 offen sc1')
    p.cond(False)
    p('L_no_nonce:')
    if cfg.lad == 1: late_addr()
    p(f's_cmp_ge_u32 s{sW}, 2\ns_cselect_b32 s{S_W}, s{pWU}, s{pWG}\ns_cselect_b32 s{S_W+1}, s{pWU+1}, s{pWG+1}')
    p(f's_mov_b32 s{S_W+2}, {1024*7168:#x}\ns_mov_b32 s{S_W+3}, 0x20000')
    srd(p, S_Q, pWQ, 0, 8 << 20)
    def adv_w():
        return [f's_add_u32 s{sKW}, s{sKW}, {KW}',
                f's_add_u32 s{sMW}, s{sMW}, {2*HS}', f's_cmp_ge_u32 s{sMW}, {NHS*HS}\ns_cselect_b32 s{sT}, {NHS*HS}, 0\ns_sub_u32 s{sMW}, s{sMW}, s{sT}']
    def adv_q():
        return [f's_add_u32 s{sKQ}, s{sKQ}, {KQ}',
                f's_add_u32 s{sMQ}, s{sMQ}, {2*HS}', f's_cmp_ge_u32 s{sMQ}, {NHS*HS}\ns_cselect_b32 s{sT}, {NHS*HS}, 0\ns_sub_u32 s{sMQ}, s{sMQ}, s{sT}']
    def adv_a():
        return [f's_add_u32 s{sKA}, s{sKA}, {KA}',
                f's_cmp_eq_u32 s{sKA}, {NT*KA}\ns_cselect_b32 s{S_XN+2}, 0, s{S_XN+2}']
    sRD1, sDL1, vTr1 = 47, 48, 144
    def adv_rd(e):
        r_, d_ = (sRD, sDL) if e == 0 else (sRD1, sDL1)
        return [f's_add_u32 s{r_}, s{r_}, {2*HS}', f's_mov_b32 s{d_}, {2*HS}',
                f's_cmp_ge_u32 s{r_}, {NHS*HS}\ns_cselect_b32 s{d_}, {-(NHS-2)*HS}, s{d_}\ns_cselect_b32 s{sT}, {NHS*HS}, 0', f's_sub_u32 s{r_}, s{r_}, s{sT}']
    def dma(pc, tile, stride):
        tag = ('W', NHS, 2*tile + 1, 2*stride)
        if pc < 7: return (f'buffer_load_dwordx4 v{vDW+pc}, s[{S_W}:{S_W+3}], s{sKW} offen offset:{1024*(pc%4)} {cfg.gsc} lds', tag)
        return (f'buffer_load_dwordx4 v{vDQ+pc-7}, s[{S_Q}:{S_Q+3}], s{sKQ} offen offset:{1024*(pc-7)} {cfg.gsc} lds', tag)
    def m0set(pc):
        if pc == 0: return [f's_add_u32 m0, s{sMW}, s{sRW}']
        if pc == 4: return [f's_add_u32 m0, m0, 4096']
        if pc == 7: return [f's_add_u32 m0, s{sMQ}, s{sRQ}']
        return []
    def dma_tile(tile):
        for d in range(11):
            for x in m0set(d): p(x)
            if m0set(d): p('s_nop 0')
            emit(p, dma(d, tile, 0))
            if d == 6:
                for x in adv_w(): p(x)
            if d == 10:
                for x in adv_q(): p(x)
    if cfg.t0e & 1: dma_tile(0)
    if cfg.t0e & 2:
        for q in range(4): raw(q)
    srd(p, S_FL, pWS, WS_FL, 3328*128)
    srd(p, S_XN, pWS, WS_XN, 5 << 20)
    p(f's_lshl_b32 s{sT}, s{sRB}, 4\ns_lshl_b32 s{sT+1}, s{sW}, 2\ns_add_u32 s{sT}, s{sT}, s{sT+1}\ns_mul_i32 s{sT}, s{sT}, {XST}')
    p(f'v_lshlrev_b32 v{vT}, 4, v1\nv_add_u32 v{vAct}, s{sT}, v{vT}')
    for b in range(1, 4): p(f'v_add_u32 v{vAct+b}, {b*XST:#x}, v{vAct}')
    t = 32
    p(f'v_lshrrev_b32 v{t}, 5, v1\nv_lshlrev_b32 v{t}, 4, v{t}\nv_bfe_u32 v{t+1}, v1, 4, 1\nv_lshlrev_b32 v{t+1}, 2, v{t+1}\nv_bfe_u32 v{t+2}, v1, 2, 2')
    p(f'v_add3_u32 v{t}, v{t}, v{t+1}, v{t+2}\nv_mul_u32_u24 v{t}, 224, v{t}\nv_and_b32 v{t+3}, 3, v1\nv_lshlrev_b32 v{t+3}, 3, v{t+3}\nv_add_u32 v{vTr}, v{t}, v{t+3}')
    p(f'v_or_b32 v{t+1}, v{t+1}, v{t+2}')
    p(f'v_lshrrev_b32 v{t}, 4, v1\nv_lshlrev_b32 v{t}, 3, v{t}\nv_add_u32 v{t}, v{t}, v{t+2}\nv_lshlrev_b32 v{t}, 8, v{t}')
    p(f'v_add_u32 v{t}, 14336, v{t}\nv_add_u32 v{t}, v{t}, v{t+3}')
    for tt in range(8):
        p(f'v_xor_b32 v{t+2}, {tt}, v{t+1}\nv_lshl_add_u32 v{vTq+tt}, v{t+2}, 5, v{t}')
    if cfg.trk:
        p(f'v_lshrrev_b32 v32, 3, v1\nv_and_b32 v33, 7, v1\ns_lshl_b32 s{sT}, s{sRB}, 3\ns_add_u32 s{sT}, s{sT}, {64*cfg.trk}\nv_add_u32 v32, s{sT}, v32\nv_lshlrev_b32 v35, 6, v33')
        p(f's_mul_i32 s{sT+1}, s{sCB}, 224\ns_add_u32 s{sT+2}, s{sT+1}, {224+127}\ns_and_b32 s{sT+1}, s{sT+1}, -128\ns_and_b32 s{sT+2}, s{sT+2}, -128\ns_sub_u32 s{sT+2}, s{sT+2}, s{sT+1}')
        p(f'v_mul_u32_u24 v34, 7168, v32\nv_add3_u32 v{vP1}, v34, v35, s{sT+1}')
        p(f'v_lshlrev_b32 v34, 13, v32\ns_lshl_b32 s{sT+1}, s{sCB}, 8\nv_add3_u32 v{vP2}, v34, v35, s{sT+1}')
        p(f'v_cmp_gt_u32 vcc, s{sT+2}, v35\ns_and_b32 s{sT}, s{sW}, 1\ns_cmp_eq_u32 s{sT}, 0\ns_cselect_b64 vcc, vcc, 0\nv_mov_b32 v34, 0xf0000000\ns_nop 1\nv_cndmask_b32 v{vP1}, v34, v{vP1}, vcc')
        p(f'v_cmp_gt_u32 vcc, 4, v33\ns_cmp_eq_u32 s{sW}, 1\ns_cselect_b64 vcc, vcc, 0\ns_nop 1\nv_cndmask_b32 v{vP2}, v34, v{vP2}, vcc')
    def touch_tiles(tiles):
        p(f'v_subrev_u32 v34, {64*cfg.trk*7168}, v{vP1}\nv_subrev_u32 v35, {64*cfg.trk*8192}, v{vP2}')
        for tl in tiles:
            p(f's_mov_b32 s{sT}, {tl*KW}\ns_mov_b32 s{sT+1}, {tl*KQ}')
            p(f'buffer_load_dword v{vPD}, v34, s[{S_W}:{S_W+3}], s{sT} offen ;pf\nbuffer_load_dword v{vPD}, v35, s[{S_Q}:{S_Q+3}], s{sT+1} offen ;pf')
    if cfg.trk: touch_tiles(([] if cfg.t0e & 1 else [0]) + ([1] if cfg.t1e else []))
    ts.stamp(p, 32)
    X = 160; sM = sT + 4
    p(f's_mov_b32 s{sM}, 0xffff0000')
    p(f's_lshl_b32 s{sT}, s{sRB}, 5\ns_add_u32 s{sT+1}, s{sT}, s{sCB}\ns_lshl_b32 s{sT+1}, s{sT+1}, 7\nv_mov_b32 v45, s{sT+1}')
    p(f's_lshl_b32 s{sT+3}, s{sT+1}, 2\ns_lshl_b32 s{sT+2}, s{sW}, 7\ns_add_u32 s{sT+3}, s{sT+3}, s{sT+2}\ns_add_u32 s{sT+3}, s{sT+3}, {1280*128}\nv_mov_b32 v31, s{sT+3}')
    p(f's_lshl_b32 s{sT+2}, s{sW}, 3\ns_add_u32 s{sT}, s{sT}, s{sT+2}\ns_lshl_b32 s{sT}, s{sT}, 9\ns_add_u32 s{sT}, s{sT}, {1280*128}\nv_and_b32 v30, 31, v1\nv_lshl_add_u32 v30, v30, 7, s{sT}')
    p(f'v_lshl_add_u32 v46, v1, 4, v45\nv_cmp_gt_u32 vcc, 8, v1\nv_mov_b32 v47, -1\ns_nop 0\nv_cndmask_b32 v46, v47, v46, vcc\nv_mov_b32 v44, 0')
    for i in range(16): p(f'v_lshlrev_b32 v{X+2*i}, 16, v{vLD+i}\nv_and_b32 v{X+2*i+1}, s{sM}, v{vLD+i}')
    def red(v, tt, off):
        p(f's_nop 1\nv_add_f32_dpp v{v}, v{v}, v{v} row_ror:8 row_mask:0xf bank_mask:0xf')
        p(f'v_mov_b32 v{tt}, v{v}\ns_nop 1\nv_permlane16_swap_b32 v{v}, v{tt}\ns_nop 1\nv_add_f32 v{v}, v{v}, v{tt}')
        p(f'v_mov_b32 v{tt}, v{v}\ns_nop 1\nv_permlane32_swap_b32 v{v}, v{tt}\ns_nop 1\nv_add_f32 v{v}, v{v}, v{tt}')
        p(f'ds_write_b32 v{vLS+1}, v{v} offset:{off}\ns_waitcnt lgkmcnt(0)\ns_barrier')
        p(f'ds_read_b128 v[40:43], v{vLS} offset:{off}')
        p(f'v_add_f32 v40, v40, v41\nv_add_f32 v42, v42, v43\nv_add_f32 v{v}, v40, v42\nv_mul_f32 v{v}, {f2u(1/1024):#x}, v{v}')
    ts.stamp(p, 32)
    p(f'buffer_load_dwordx2 v[2:3], v44, s[{S_DB}:{S_DB+3}], 0 offen sc1')
    for a in range(0, 4, 2): p(f'v_pk_add_f32 v[{32+a}:{33+a}], v[{X+a}:{X+a+1}], v[{X+4+a}:{X+5+a}]')
    for i in range(8, 32, 2): p(f'v_pk_add_f32 v[{32+i%4}:{33+i%4}], v[{32+i%4}:{33+i%4}], v[{X+i}:{X+i+1}]')
    p('v_pk_add_f32 v[32:33], v[32:33], v[34:35]\nv_add_f32 v32, v32, v33')
    red(32, 33, 0)
    p('v_mov_b32 v33, v32')
    for i in range(0, 32, 2): p(f'v_pk_add_f32 v[{X+32+i}:{X+33+i}], v[{X+i}:{X+i+1}], v[32:33] neg_lo:[0,1] neg_hi:[0,1]')
    for a in range(0, 4, 2): p(f'v_pk_mul_f32 v[{36+a}:{37+a}], v[{X+32+a}:{X+33+a}], v[{X+32+a}:{X+33+a}]')
    for i in range(4, 32, 2): p(f'v_pk_fma_f32 v[{36+i%4}:{37+i%4}], v[{X+32+i}:{X+33+i}], v[{X+32+i}:{X+33+i}], v[{36+i%4}:{37+i%4}]')
    p('v_pk_add_f32 v[36:37], v[36:37], v[38:39]\nv_add_f32 v36, v36, v37')
    red(36, 37, 128)
    def rnd(v): p(f'v_cvt_pk_bf16_f32 v{v}, v{v}, v{v}\nv_lshlrev_b32 v{v}, 16, v{v}')
    rnd(32); rnd(36)
    p(f'v_add_f32 v36, {f2u(1e-5):#x}, v36'); rnd(36)
    p('v_sqrt_f32 v36, v36\ns_nop 0'); rnd(36)
    p('v_rcp_f32 v36, v36')
    S_ST = S_V
    srd(p, S_ST, pWS, WS_ST, 2048*16)
    ts.stamp(p, 32)
    p.touch('v[2:3]')
    p('L_no_retry:')
    p(f'v_readfirstlane_b32 s{sNO}, v2\nv_readfirstlane_b32 s{sNO+1}, v3\ns_nop 0\ns_cmp_lg_u32 s{sNO}, 0\ns_cbranch_scc1 L_no_ok')
    p.cond(True)
    p(f'buffer_load_dwordx2 v[2:3], v44, s[{S_DB}:{S_DB+3}], 0 offen sc1\ns_waitcnt vmcnt(0)\ns_branch L_no_retry')
    p.cond(False)
    p('L_no_ok:')
    p(f's_cmp_eq_u32 s{sW}, 1\ns_cbranch_scc0 L_st_skip')
    p.cond(True)
    p(f'v_mov_b32 v40, v32\nv_mov_b32 v41, v36\nv_mov_b32 v42, v2\nv_mov_b32 v43, v3\nbuffer_store_dwordx4 v[40:43], v46, s[{S_ST}:{S_ST+3}], 0 offen sc1')
    p.cond(False)
    p('L_st_skip:')
    ts.stamp(p, 33)
    p('v_mov_b32 v33, v32\nv_mov_b32 v37, v36')
    if not cfg.t0e & 1: dma_tile(0)
    for i in range(16):
        if i % 4 == 0 and not cfg.t0e & 2: raw(i // 4)
        a, b = X+2*i, X+2*i+1
        p(f'v_pk_add_f32 v[{a}:{b}], v[{a}:{b}], v[32:33] neg_lo:[0,1] neg_hi:[0,1]\nv_cvt_pk_bf16_f32 v{a}, v{a}, v{b}')
        p(f'v_and_b32 v{b}, s{sM}, v{a}\nv_lshlrev_b32 v{a}, 16, v{a}')
        p(f'v_pk_mul_f32 v[{a}:{b}], v[{a}:{b}], v[36:37]\nv_cvt_pk_bf16_f32 v{240+i}, v{a}, v{b}')
    RC = 224
    def rec_loads():
        for b in range(4): p(f'buffer_load_dwordx4 v[{RC+4*b}:{RC+4*b+3}], v{vSR}, s[{S_ST}:{S_ST+3}], 0 offen offset:{256*b} sc1')
    rec_loads()
    xst = [(f'buffer_store_dwordx4 v[{240+4*i}:{240+4*i+3}], v{vLO}, s[{S_XN}:{S_XN+3}], 0 offen offset:{1024*i} sc1', ('Xst', 1, 0, 0)) for i in range(4)]
    if cfg.xe:
        for x in xst: emit(p, x)
    p(f'v_and_b32 v32, 15, v1\nv_lshrrev_b32 v33, 4, v1\nv_xor_b32 v33, v33, v32\nv_lshlrev_b32 v32, 8, v32\ns_lshl_b32 s{sT}, s{sW}, 14\ns_add_u32 s{sT}, s{sT}, {RAWL}\nv_add_u32 v32, s{sT}, v32')
    for u in range(4): p(f'v_xor_b32 v34, {4*u}, v33\nv_lshl_add_u32 v{36+u}, v34, 4, v32')
    p.need(('R', 1, 0, 0))
    for u in range(4):
        for b in range(4): p(f'ds_read_b128 v[{vB+16*u+4*b}:{vB+16*u+4*b+3}], v{36+u} offset:{4096*b}')
    ts.stamp(p, 32)
    p.touch(f'v[{RC}:{RC+15}]')
    ts.stamp(p, 32)
    p('L_rec_chk:')
    p(f'v_cmp_ne_u64 vcc, s[{sNO}:{sNO+1}], v[{RC+2}:{RC+3}]')
    for b in range(1, 4): p(f'v_cmp_ne_u64 s[{sT+2}:{sT+3}], s[{sNO}:{sNO+1}], v[{RC+4*b+2}:{RC+4*b+3}]\ns_nop 0\ns_or_b64 vcc, vcc, s[{sT+2}:{sT+3}]')
    p('s_cbranch_vccz L_rec_ok')
    p.cond(True)
    rec_loads(); p('s_waitcnt vmcnt(0)\ns_branch L_rec_chk')
    p.cond(False)
    p('L_rec_ok:')
    ts.stamp(p, 33)
    srd(p, S_K, pK, 0, 2 << 20); srd(p, S_V, pV, 0, 2 << 20)
    if cfg.trk: touch_tiles(range(2, cfg.trk + 2))
    if cfg.kvp:
        p(f's_lshr_b32 s{sT}, s2, 3\ns_lshl_b32 s{sT}, s{sT}, 2\ns_add_u32 s{sT}, s{sT}, s{sW}\ns_lshl_b32 s{sT}, s{sT}, 10')
        p(f's_lshr_b32 s{sT+1}, s{sCB}, 3\ns_lshl_b32 s{sT+1}, s{sT+1}, 19\ns_add_u32 s{sT}, s{sT}, s{sT+1}\ns_add_u32 s{sT}, s{sT}, {1536*256}')
        p(f'v_and_b32 v33, 15, v1\nv_lshlrev_b32 v33, 6, v33')
        p(f'buffer_load_dword v{vPD}, v33, s[{S_K}:{S_K+3}], s{sT} offen ;pf\nbuffer_load_dword v{vPD}, v33, s[{S_V}:{S_V+3}], s{sT} offen ;pf')
    vRI = 132; vMR = [128, 130, 131, 139]
    for b in range(4): p(f'v_mov_b32 v{vRI+b}, v{RC+4*b+1}\nv_mul_f32 v{vMR[b]}, v{RC+4*b}, v{RC+4*b+1}')
    NT0 = 140
    def norm(sub):
        out = []
        for b in range(4):
            for r in range(4):
                q = vB + 16*sub + 4*b + r; t0 = NT0 + 2*((4*b + r) % 2)
                out += [f'v_lshlrev_b32 v{t0}, 16, v{q}', f'v_and_b32 v{t0+1}, s{sM}, v{q}',
                        f'v_fma_f32 v{t0}, v{t0}, v{vRI+b}, -v{vMR[b]}', f'v_fma_f32 v{t0+1}, v{t0+1}, v{vRI+b}, -v{vMR[b]}',
                        f'v_cvt_pk_bf16_f32 v{q}, v{t0}, v{t0+1}']
        return out
    ts.stamp(p, 32)
    p('s_nop 0')
    def norm_pk(sub):
        for b in range(4):
            p(f'v_mov_b32 v32, v{vRI+b}\nv_mov_b32 v33, v{vRI+b}\nv_sub_f32 v34, 0, v{vMR[b]}\nv_sub_f32 v35, 0, v{vMR[b]}')
            for r in range(4):
                q = vB + 16*sub + 4*b + r
                p(f'v_lshlrev_b32 v{36+2*r}, 16, v{q}\nv_and_b32 v{37+2*r}, s{sM}, v{q}')
            for r in range(4): p(f'v_pk_fma_f32 v[{36+2*r}:{37+2*r}], v[{36+2*r}:{37+2*r}], v[32:33], v[34:35]')
            for r in range(4): p(f'v_cvt_pk_bf16_f32 v{vB + 16*sub + 4*b + r}, v{36+2*r}, v{37+2*r}')
    for sub in range(cfg.npre): norm_pk(sub)
    ts.stamp(p, 32)
    def act(sub, b):
        r = vB + 16*(sub % RB) + 4*b
        return f'buffer_load_dwordx4 v[{r}:{r+3}], v{vAct+b}, s[{S_XN}:{S_XN+3}], s{sKA} offen offset:{1024*(sub % 2)}{SC}'
    NG = 22
    def vm_sched(step, g2):
        d = None; a = None
        if cfg.d0 <= g2 < cfg.d0 + 11*cfg.dstr and (g2 - cfg.d0) % cfg.dstr == 0: d = (g2 - cfg.d0)//cfg.dstr
        if cfg.a0 <= g2 < cfg.a0 + 8*cfg.astr and (g2 - cfg.a0) % cfg.astr == 0:
            k = (g2 - cfg.a0)//cfg.astr; a = (2*step + 2 + k // 4, k % 4)
        return d, a
    def flagchk(lbl, vaddr, vd):
        return [f'v_cmp_ne_u64 vcc, s[{sNO}:{sNO+1}], v[{vd}:{vd+1}]', 's_nop 0', 's_nop 0', f's_cbranch_vccz {lbl}_ok',
                f'{lbl}_spin: ;cond', f'buffer_load_dwordx2 v[{vd}:{vd+1}], v{vaddr}, s[{S_FL}:{S_FL+3}], 0 offen sc1 ;cond', 's_waitcnt vmcnt(0) ;cond',
                f'v_cmp_ne_u64 vcc, s[{sNO}:{sNO+1}], v[{vd}:{vd+1}] ;cond', 's_nop 1 ;cond', f's_cbranch_vccnz {lbl}_spin ;cond', f'{lbl}_ok:']
    def flag_store(lbl, va):
        return f's_cmp_eq_u32 s{sW}, 1\ns_cbranch_scc0 {lbl}\nbuffer_store_dwordx2 v[2:3], v{va}, s[{S_FL}:{S_FL+3}], 0 offen sc1 ;cond\n{lbl}:'
    def poll(lbl, vaddr, done):
        p(f'{lbl}:')
        p(f'buffer_load_dwordx2 v[36:37], v{vaddr}, s[{S_FL}:{S_FL+3}], 0 offen sc1\ns_waitcnt vmcnt(0)')
        p(f'v_cmp_ne_u64 vcc, s[{sNO}:{sNO+1}], v[36:37]\ns_nop 1\ns_cbranch_vccz {done}\ns_sleep {cfg.slp}\ns_branch {lbl}')
    vHF = 27
    srd(p, S_H, pWS, WS_H, 15 << 20)
    for q_ in range(4): p(f's_mov_b32 s{S_DB+q_}, s{S_O+q_}') if q_ < 3 else p(f's_mov_b32 s{S_DB+3}, 0x20000')
    p.need(('W', NHS, 1, 0))
    xflag = f'buffer_store_dwordx2 v[2:3], v31, s[{S_FL}:{S_FL+3}], 0 offen sc1'
    p('s_waitcnt lgkmcnt(0)\ns_barrier')
    P = cfg.P
    def trr(G, tile0, stride):
        step, g2 = divmod(G, 2*NG); t, s = divmod(g2, 2)
        r = vA + 4*(G % RA)
        tag = ('W', NHS, 2*(tile0 + step) + 1, 2*stride) if s == 1 else ('We!', 1, 0, 0)
        if t < 14: off = (t // 7)*7168 + (t % 7)*32; a = (vTr, vTr1)[s]; hh = 8*224
        else: off = 0; a = (vTq, vTr1 + 1)[s] + t - 14; hh = 1024
        return [(f'ds_read_b64_tr_b16 v[{r}:{r+1}], v{a} offset:{off}', tag),
                (f'ds_read_b64_tr_b16 v[{r+2}:{r+3}], v{a} offset:{off + hh}', tag)]
    for k in range(9): p(f'v_add_u32 v{vTr1+k}, {HS}, v{vTr+k}')
    for G in range(P):
        for f in trr(G, 0, 0): emit(p, f)
    UN = 2
    p(f's_mov_b32 s{sDL}, 0\ns_mov_b32 s{sDL1}, 0\ns_mov_b32 s{sRD1}, {HS}\ns_mov_b32 s{sCNT}, {NT//UN - 1 - cfg.gl}')
    hi = {}; lo = {}
    def H(i, x): hi.setdefault(i, []).append(x)
    def L(i, x): lo.setdefault(i, []).append(x)
    NGB = 2*NG*UN
    vDK, vDV, vK, vV = 8, 12, 13, 21
    sKV, sMK, sAD, sPF = 39, 40, 43, 44
    k1 = -2*math.sqrt(2/math.pi)*math.log2(math.e); k2 = k1*0.044715
    vC = 28; vHs = 132
    def post_g():
        t = 128
        srd(p, S_O, pWS, WS_O, 17 << 20)
        p(f'v_lshrrev_b32 v{t}, 4, v1\nv_and_b32 v{t+1}, 15, v1')
        p(f's_lshl_b32 s{sMK}, s{sW}, 12')
        p(f'v_lshlrev_b32 v{t+2}, 8, v{t}\nv_add_u32 v{t+2}, s{sMK}, v{t+2}')
        for j in range(4):
            p(f'v_add_u32 v{t+3}, {4*j}, v{t}\nv_xor_b32 v{t+3}, v{t+3}, v{t+1}\nv_lshl_add_u32 v{vDK+j}, v{t+3}, 4, v{t+2}')
        p(f'v_lshlrev_b32 v{t+3}, 2, v{t}\nv_xor_b32 v{t+3}, v{t+3}, v{t+1}\nv_lshl_add_u32 v{vDV}, v{t+3}, 4, v{t+2}')
        p(f's_lshr_b32 s{sKV}, s{sCB}, 3\ns_lshl_b32 s{sKV}, s{sKV}, 19\ns_add_u32 s{sKV}, s{sKV}, {1536*256}')
        p(f'v_mov_b32 v{vC}, {f2u(k1):#x}\nv_mov_b32 v{vC+1}, {f2u(k1):#x}\nv_mov_b32 v{vC+2}, {f2u(k2):#x}\nv_mov_b32 v{vC+3}, {f2u(k2):#x}')
        p(f's_lshl_b32 s{sT+2}, s{sRB}, 4\ns_lshl_b32 s{sT+3}, s{sW}, 2\ns_add_u32 s{sT+2}, s{sT+2}, s{sT+3}\ns_mul_i32 s{sT+2}, s{sT+2}, {HST}')
        p(f's_mul_i32 s{sT+3}, s{sCB}, 7\ns_add_u32 s{sT+3}, s{sT+3}, 1\ns_lshr_b32 s{sT+3}, s{sT+3}, 1\ns_lshl_b32 s{sT+3}, s{sT+3}, 10')
        p(f's_add_u32 s{sT+2}, s{sT+2}, s{sT+3}')
        p(f'v_lshlrev_b32 v{t}, 4, v1\nv_add_u32 v{vAct}, s{sT+2}, v{t}')
        for b in range(1, 4): p(f'v_add_u32 v{vAct+b}, {b*HST:#x}, v{vAct}')
        p(f's_and_b32 s{sT+3}, s{sCB}, 1\ns_mul_i32 s{sT+4}, s{sT+3}, {-1016-3072}\ns_add_u32 s{sT+4}, s{sT+4}, 3072')
        for b in range(4): p(f'v_add_u32 v{vHs+b}, s{sT+4}, v{vAct+b}')
    def collect(fn):
        nonlocal p
        w = Prog(); q = p; p = w; fn(); p = q
        out = []
        for it in w.items:
            if it.op == 's_addc_u32': out[-1] = (out[-1][0] + '\n' + it.text, None)
            else: out.append((it.text, it.tag))
        return out
    def g_body(first, last=False):
        hi.clear(); lo.clear(); mf = []
        t0_, st_ = (0, 0) if first else (NT - UN, 0) if last else (UN, UN)
        if first:
            if not cfg.xe:
                for k, x in enumerate(xst): L(2 + cfg.fs1*2*k, x)
            H(cfg.xbar, lambda p: (p.need(('Xst', 1, 0, 0)), p(xflag)))
            for d in range(11):
                g_ = 2 + cfg.fs1*(2*d + 1 if d < 4 else d + 4)
                for x in m0set(d): L(g_, x)
                if m0set(d): L(g_, m0gap)
                L(g_, dma(d, 1, 0))
                if d == 6:
                    for x in adv_w(): L(g_, x)
                if d == 10:
                    for x in adv_q(): L(g_, x)
        seen = set()
        for G in range(NGB):
            step, g2 = divmod(G, 2*NG)
            if G % 2 == 0:
                t = g2 // 2
                for k, b in enumerate(range(3, -1, -1) if t % 2 else range(4)):
                    for s in (k % 2, 1 - k % 2):
                        ra = vA + 4*((G + s) % RA); rb = vB + 16*((2*step + s) % RB) + 4*b
                        new_ = first and (t, b) not in seen; seen.add((t, b))
                        mf.append(f'v_mfma_f32_16x16x32_bf16 {acc(t,b)}, v[{ra}:{ra+3}], v[{rb}:{rb+3}], {"0" if new_ else acc(t,b)}')
            i0 = 4*G; Gn = G + P; fn = Gn % (2*NG)
            if cfg.ltouch and G % 2 == 1 and not (last and G + 2 >= NGB): H(i0+3, lambda p, r=vA + 4*((G + 2) % RA): p.touch(f'v[{r}:{r+3}]'))
            if last and Gn >= NGB: continue
            if fn == 0:
                stepn = Gn // (2*NG)
                def bar_(p, stepn=stepn):
                    p.need(('W', NHS, 2*(t0_ + stepn) + 1, 2*st_))
                    if cfg.btouch: p.touch(f'v[{vB + 32*(stepn % 2)}:{vB + 32*(stepn % 2) + 31}]')
                    p.needrd(('We!', 1, 0, 0))
                    p('s_barrier')
                H(i0-1, bar_)
            Gr = Gn + (1 if fn == 41 else -1 if fn == 42 else 0)
            r0, r1 = trr(Gr % NGB, t0_ + (Gr // NGB)*UN, st_)
            H(i0, r0); H(i0+1, r1)
            if 2 <= fn <= 9: L(i0, f'v_add_u32 v{vTq+fn-2}, s{sDL}, v{vTq+fn-2}')
            if 10 <= fn <= 17: L(i0, f'v_add_u32 v{vTr1+1+fn-10}, s{sDL1}, v{vTr1+1+fn-10}')
            if fn in (18, 20):
                for x in adv_rd((fn - 18)//2): L(i0, x)
            if fn == 29: H(i0+2, f'v_add_u32 v{vTr}, s{sDL}, v{vTr}')
            if fn == 30: H(i0+2, f'v_add_u32 v{vTr1}, s{sDL1}, v{vTr1}')
            pc, a = vm_sched(step, g2)
            if last: pc = None
            if a is not None and not (first and a[0] < 4) and not (last and a[0] >= 4):
                g_ = max(i0, cfg.xchk + 4 + 8*(4*(a[0] - 4) + a[1])) if first else i0
                assert g_ < 320 or not first
                L(g_, act(*a))
                if a[1] == 3 and a[0] % 2 == 1:
                    for x in adv_a(): L(g_, x)
            if pc is not None:
                g_ = max(i0, 2 + cfg.fs1*(15 + pc)) if first and step == 0 else i0
                if cfg.trk and pc == 0:
                    L(g_, f'buffer_load_dword v{vPD}, v{vP1}, s[{S_W}:{S_W+3}], s{sKW} offen ;pf')
                    L(g_, f'buffer_load_dword v{vPD}, v{vP2}, s[{S_Q}:{S_Q+3}], s{sKQ} offen ;pf')
                for x in m0set(pc): L(g_, x)
                if m0set(pc): L(g_, m0gap)
                L(g_, dma(pc, t0_ + step + 2, st_))
                if pc == 6:
                    for x in adv_w(): L(g_, x)
                if pc == 10:
                    for x in adv_q(): L(g_, x)
        for x in code_pf(S_DB, vPD): L(4*(cfg.d0 + 10*cfg.dstr) + 1, x)
        if first:
            H(cfg.xchk - cfg.xfl, f'buffer_load_dwordx2 v[28:29], v30, s[{S_FL}:{S_FL+3}], 0 offen sc1')
            H(cfg.xchk, '\n'.join(flagchk('L_x', 30, 28)))
        elif last:
            assert 4*(cfg.a0 + 7*cfg.astr) < 4*(22 - P) + 4
            for x in collect(post_g): L(4*(22 - P) + 4, x)
            H(len(mf)-6, 's_waitcnt lgkmcnt(0)\ns_barrier')
        else:
            H(len(mf)-3, f's_sub_u32 s{sCNT}, s{sCNT}, 1'); H(len(mf)-2, f's_cmp_lg_u32 s{sCNT}, 0')
            H(len(mf)-1, 's_cbranch_scc1 G_loop')
        lo_ = {k: lo[k] for k in sorted(lo)}
        fill = spread(hi, lo_, len(mf), cfg.cap, 60 if first else 200 if last else 16, cost=lambda i: 1 if i % 8 == 7 else 2 if i == -1 else 0)
        fix_m0(fill, len(mf))
        if first:
            nn = 4 - cfg.npre
            for k, sub in enumerate(range(cfg.npre, 4)):
                g0, g1 = 172*k//nn, 172*(k + 1)//nn
                q_ = norm(sub); per = len(q_)/(g1 - g0); due = 0.0; done = 0
                for i in range(g0, g1):
                    due += per; used = len(fill[i]) + (1 if i % 4 == 3 else 0)
                    while q_ and done < due + 2 and (used < cfg.cap or done < due - cfg.lag):
                        fill[i].append(q_.pop(0)); used += 1; done += 1
                fill[g1 - 1] += q_
        elif not last: chk_tail(fill, len(mf))
        if first:
            for i in (43, 87, 131, 175, 219, 263, 307):
                t_ = ts.text(64)
                if t_: fill[i].append(t_)
        interleave(p, mf, fill)
    ts.stamp(p, 97)
    g_body(True)
    if cfg.xt: p.touch(f'v[{vB}:{vB+16*cfg.xt-1}]')
    ts.stamp(p, 96)
    p.loop_begin('G_loop', NT//UN - 1 - cfg.gl)
    g_body(False)
    p.loop_end()
    if cfg.gl: g_body(False, True); p('s_nop 3')
    else:
        p('s_waitcnt vmcnt(0) lgkmcnt(0)\ns_barrier'); post_g()
    ts.stamp(p, 5)

    def kdma(j, soff, tag): return (f'buffer_load_dwordx4 v{vDK+j}, s[{S_K}:{S_K+3}], s{soff} offen offset:{1024*j} lds', tag)
    def vdma(j, soff, tag): return (f'buffer_load_dwordx4 v{vDV}, s[{S_V}:{S_V+3}], s{soff} offen offset:{1024*j} lds', tag)
    kvq = []
    for (kind, tl) in (('K', 0), ('K', 1), ('V', 0), ('K', 2), ('V', 1)):
        g = [f's_add_u32 s{sT+5}, s{sKV}, {tl*16384}', f's_add_u32 m0, s{sMK}, {tl*16384 + (65536 if kind == "V" else 0)}', 's_nop 0']
        for j in range(4):
            kvq.append(g + [(kdma if kind == 'K' else vdma)(j, sT+5, (kind, 4, tl, 0))]); g = []
    p(f's_bitcmp0_b32 s{sCB}, 0')
    def gelu_tiles(tiles):
        n = len(tiles)
        Xs = [32 + 12*i for i in range(n)]
        pk = lambda r: f'v[{r}:{r+1}]'
        for (t, b, d), X in zip(tiles, Xs):
            for r in range(4): p(f'v_accvgpr_read_b32 v{X+r}, {accr(t,b,r)}')
        for X in Xs:
            for r in (0, 2): p(f'v_pk_mul_f32 {pk(X+8+r)}, {pk(X+r)}, {pk(X+r)}')
        for X in Xs:
            for r in (0, 2): p(f'v_pk_fma_f32 {pk(X+8+r)}, {pk(X+8+r)}, {pk(vC+2)}, {pk(vC)}')
        for X in Xs:
            for r in (0, 2): p(f'v_pk_mul_f32 {pk(X+8+r)}, {pk(X+8+r)}, {pk(X+r)}')
        for (t, b, d), X in zip(tiles, Xs):
            for r in range(4): p(f'v_exp_f32 v{X+8+r}, v{X+8+r}')
            for r in range(4): p(f'v_accvgpr_read_b32 v{X+4+r}, {accr(t+7,b,r)}')
        for X in Xs:
            for r in (0, 2): p(f'v_pk_add_f32 {pk(X+8+r)}, {pk(X+8+r)}, 1.0 op_sel_hi:[1,0]')
        for X in Xs:
            for r in range(4): p(f'v_rcp_f32 v{X+8+r}, v{X+8+r}')
            for r in (0, 2): p(f'v_pk_mul_f32 {pk(X+4+r)}, {pk(X+4+r)}, {pk(X+r)}')
        for X in Xs:
            for r in (0, 2): p(f'v_pk_mul_f32 {pk(X+4+r)}, {pk(X+4+r)}, {pk(X+8+r)}')
        for (t, b, d), X in zip(tiles, Xs):
            p(f'v_cvt_pk_bf16_f32 v{d}, v{X+4}, v{X+5}\nv_cvt_pk_bf16_f32 v{d+1}, v{X+6}, v{X+7}')
    for par in range(2):
        if par == 0: p('s_cbranch_scc0 B_epi_odd')
        else: p.cond(True); p('B_epi_odd:')
        n = 0; kq = list(kvq)
        for b in range(4):
            for pr in range(3):
                d = 64 + 4*(n % 8); n += 1
                for _ in range(2):
                    if kq:
                        for x in kq.pop(0): emit(p, x)
                gelu_tiles([(2*pr + par, b, d), (2*pr + 1 + par, b, d + 2)])
                p(f'buffer_store_dwordx4 v[{d}:{d+3}], v{vAct+b}, s[{S_H}:{S_H+3}], 0 offen offset:{1024*pr}{LS}', ('Hst', 1, 0, 0))
        for b in range(0, 4, 2):
            d = 64 + 4*(n % 8); n += 1
            gelu_tiles([(6 if par == 0 else 0, b, d), (6 if par == 0 else 0, b+1, d+2)])
            p(f'buffer_store_dwordx2 v[{d}:{d+1}], v{vHs+b}, s[{S_H}:{S_H+3}], 0 offen{LS}', ('Hst', 1, 0, 0))
            p(f'buffer_store_dwordx2 v[{d+2}:{d+3}], v{vHs+b+1}, s[{S_H}:{S_H+3}], 0 offen{LS}', ('Hst', 1, 0, 0))
        if par == 0: p('s_branch B_epi_done')
    p.cond(False)
    p('B_epi_done:')
    ts.stamp(p, 5)
    vQ = 64
    qs = math.log2(math.e)/math.sqrt(128)
    def qconv(qt, s):
        d = vQ + (qt*8+s)*4
        for half in range(2):
            b = 2*qt + half; x = 32 + 4*half
            src = accr(14+s, b, 0)
            if src[0] == 'a':
                for r in range(4): p(f'v_accvgpr_read_b32 v{x+r}, {accr(14+s, b, r)}')
                s0 = x
            else: s0 = int(src[1:])
            for r in (0, 2): p(f'v_pk_mul_f32 v[{x+r}:{x+r+1}], v[{s0+r}:{s0+r+1}], v[{vC}:{vC+1}]')
            p(f'v_cvt_pk_bf16_f32 v{d+2*half}, v{x}, v{x+1}\nv_cvt_pk_bf16_f32 v{d+2*half+1}, v{x+2}, v{x+3}')
    def qswap(qt, s):
        d = vQ + (qt*8+s)*4
        p(f'v_permlane16_swap_b32 v{d}, v{d+2}\nv_permlane16_swap_b32 v{d+1}, v{d+3}')
    t = 32
    p(f'v_and_b32 v{t}, 31, v1\nv_lshrrev_b32 v{t+1}, 5, v1\nv_and_b32 v{t+2}, 15, v1\nv_xor_b32 v{t+1}, v{t+1}, v{t+2}\nv_lshlrev_b32 v{t}, 8, v{t}')
    for s in range(8):
        p(f'v_xor_b32 v{t+2}, {2*s}, v{t+1}\nv_lshl_add_u32 v{vK+s}, v{t+2}, 4, v{t}')
    p(f'v_mov_b32 v{vC}, {f2u(qs):#x}\nv_mov_b32 v{vC+1}, {f2u(qs):#x}')
    vS = [128, 160]; vP = [192, 208]; vN = 224; vL = 28
    aF = 192
    def Sreg(n, qt): return vS[n % 2] + 16*qt
    def Preg(n, qt, ks): return vP[n % 2] + 8*qt + 4*ks
    def kread(n, s, tag):
        r = aF + 4*s
        return [(f'ds_read_b128 a[{r}:{r+3}], v{vK+s} offset:{(n % 8)*8192}', ('K', 4, n//2, 0))]
    def vread(n, f, tag, base=None, off0=None):
        ks, dt = divmod(f, 4); r = aF + 32 + 4*f
        off = (32*(n % 8) + 16*ks)*256 if off0 is None else off0 + 16*ks*256
        b = vV if base is None else base
        return [(f'ds_read_b64_tr_b16 a[{r}:{r+1}], v{b+dt} offset:{off}', tag),
                (f'ds_read_b64_tr_b16 a[{r+2}:{r+3}], v{b+dt} offset:{off+2048}', tag)]
    def qk(n, s, qt, c0):
        S = Sreg(n, qt); c = f'v[{S}:{S+15}]' if s else c0(qt)
        return f'v_mfma_f32_32x32x16_bf16 v[{S}:{S+15}], a[{aF+4*s}:{aF+4*s+3}], v[{vQ+(qt*8+s)*4}:{vQ+(qt*8+s)*4+3}], {c}'
    def pv(n, f, qt, first=False):
        ks, dt = divmod(f, 4); o = (dt*2+qt)*16; P_ = Preg(n, qt, ks)
        c = '0' if first and ks == 0 else f'a[{o}:{o+15}]'
        return f'v_mfma_f32_32x32x16_bf16 a[{o}:{o+15}], a[{aF+32+4*f}:{aF+32+4*f+3}], v[{P_}:{P_+3}], {c}'
    negm = lambda qt: f'v[{vN+16*qt}:{vN+16*qt+15}]'
    zero = lambda qt: '0'
    def softmax_ops(n):
        sl = [[] for _ in range(33)]
        for e in range(32):
            qt, i = divmod(e, 16); S = Sreg(n, qt); Pr = Preg(n, qt, i>>3)+((i&7)>>1)
            sl[e].insert(0, f'v_exp_f32 v{S+i}, v{S+i}')
            if cfg.sum == 'add': sl[e+1].append(f'v_add_f32 v{vL+2*qt+(i&1)}, v{vL+2*qt+(i&1)}, v{S+i}')
            if i & 1:
                if e == 31 and cfg.sum != 'add': sl[e+1].append('s_nop 0')
                sl[e+1].append(f'v_cvt_pk_bf16_f32 v{Pr}, v{S+i-1}, v{S+i}')
                k = min(32, e+2)
                if cfg.sum == 'pk': sl[k].append(f'v_pk_add_f32 v[{vL+2*qt}:{vL+2*qt+1}], v[{vL+2*qt}:{vL+2*qt+1}], v[{S+i-1}:{S+i}]')
                if cfg.sum == 'dot': sl[k].append(f'v_dot2_f32_bf16 v{vL+2*qt+((i>>1)&1)}, v{Pr}, v39, v{vL+2*qt+((i>>1)&1)}')
        return sl
    if cfg.sum == 'dot': p('v_mov_b32 v39, 0x3f803f80')
    p.need(('K', 4, 0, 0)); p('s_barrier')
    for s in range(8): emit(p, kread(0, s, None)[0])
    ts.stamp(p, 5)
    qconv(0, 0); qconv(1, 0)
    for s in range(8):
        if s < 7: qconv(0, s+1)
        qswap(0, s); qswap(1, s)
        if s < 7: qconv(1, s+1)
        else: p('s_nop 1')
        for qt in range(2): p(qk(0, s, qt, zero))
        emit(p, kread(1, s, None)[0])
    t = 36
    p(f'v_lshrrev_b32 v{t}, 5, v1\nv_lshlrev_b32 v{t}, 2, v{t}\nv_bfe_u32 v{t+1}, v1, 2, 2\nv_add_u32 v{t}, v{t}, v{t+1}\nv_lshlrev_b32 v{t}, 8, v{t}')
    p(f'v_bfe_u32 v{t+2}, v1, 4, 1\nv_lshlrev_b32 v{t+2}, 5, v{t+2}\nv_and_b32 v{t+3}, 3, v1\nv_lshlrev_b32 v{t+3}, 3, v{t+3}\nv_add3_u32 v{t}, v{t}, v{t+2}, v{t+3}')
    p(f'v_add_u32 v{t}, 0x10000, v{t}')
    for dt in range(4):
        p(f'v_xor_b32 v{t+2}, {dt}, v{t+1}\nv_lshl_add_u32 v{vV+dt}, v{t+2}, 6, v{t}')
    for i in range(4): p(f'v_mov_b32 v{vL+i}, 0')
    def rowmax(n, first):
        for qt in range(2):
            S = Sreg(n, qt); m = 32 + 2*qt
            if first: p(f'v_max3_f32 v{m}, v{S}, v{S+1}, v{S+2}')
            else: p(f'v_max3_f32 v{m}, v{m}, v{S+1}, v{S+2}\nv_max_f32 v{m}, v{m}, v{S}')
            for i in range(3, 15, 2): p(f'v_max3_f32 v{m}, v{m}, v{S+i}, v{S+i+1}')
            p(f'v_max_f32 v{m}, v{m}, v{S+15}')
    def set_negm():
        p('v_mov_b32 v33, v32\nv_mov_b32 v35, v34\ns_nop 0\nv_permlane32_swap_b32 v32, v33\nv_permlane32_swap_b32 v34, v35\ns_nop 0')
        for qt in range(2):
            m = 32 + 2*qt
            p(f'v_max_f32 v{m}, v{m}, v{m+1}\nv_sub_f32 v{vN+16*qt}, 0, v{m}\nv_mov_b32 v{vN+16*qt+1}, v{vN+16*qt}')
            for i in range(2, 16, 2): p(f'v_pk_mul_f32 v[{vN+16*qt+i}:{vN+16*qt+i+1}], v[{vN+16*qt}:{vN+16*qt+1}], 1.0 op_sel_hi:[1,0]')
    ts.stamp(p, 4)
    c0 = zero
    if not cfg.m0:
        c0 = negm
        rowmax(0, True); set_negm()
        for qt in range(2):
            S = Sreg(0, qt)
            for i in range(0, 16, 2): p(f'v_pk_add_f32 v[{S+i}:{S+i+1}], v[{S+i}:{S+i+1}], v[{vN+16*qt}:{vN+16*qt+1}]')
    ts.stamp(p, 4)
    S_WD, S_WO, S_AH, S_AO, S_X, S_OUT, S_P = 12, 8, 16, 20, 24, 28, 60
    sJ, sRC, sCC = 70, 71, 76
    kWD, kWO, kAH, kAO, cMW, cTG = 77, 75, 78, 42, 79, 49
    dD, dO, aH, aO, cTr, cA, cC = 40, 8, 48, 4, 52, 64, 128
    vFH = 60
    SLOT = 32768
    k_h = lambda pc: 4*pc
    k_o = lambda pc: 4*((pc & 1) | ((pc & 2) << 1) | ((pc & 4) >> 1))
    sDE = 85
    def x_dma_addr(dst, kmap):
        t = 36
        p(f's_lshl_b32 s{sT+2}, s{sW}, 16\ns_lshl_b32 s{sT+3}, s{sCC}, 8\ns_add_u32 s{sT+2}, s{sT+2}, s{sT+3}')
        p(f'v_lshrrev_b32 v{t}, 4, v1\nv_and_b32 v{t+1}, 15, v1\nv_lshlrev_b32 v{t+2}, 1, v{t}\nv_xor_b32 v{t+1}, v{t+1}, v{t+2}')
        p(f'v_lshlrev_b32 v{t}, 11, v{t}\nv_add_u32 v{t}, s{sT+2}, v{t}')
        for e in range(2):
            p(f'v_xor_b32 v{t+2}, {8*e}, v{t+1}\nv_lshl_add_u32 v{dst+e}, v{t+2}, 4, v{t}')
            if cfg.cdel: p(f'v_lshrrev_b32 v{t+2}, 3, v{t+2}\nv_mad_i32_i24 v{dst+e}, v{t+2}, s{sDE}, v{dst+e}')
        for pc in range(7, -1, -1):
            o = (kmap(pc) << 11) - 1024*(pc % 4)
            if o or pc > 1: p(f'v_add_u32 v{dst+pc}, {o}, v{dst + (pc & 1)}')
    NS = ND + NSS; kind = lambda sg: 'd' if sg < ND else 's'
    def cdma(pc, sg):
        D_, S_, K_ = (dD, S_WD, kWD) if kind(sg) == 'd' else (dO, S_WO, kWO)
        g = []
        if pc % 4 == 0: g += [f's_add_u32 m0, s{cMW}, {(sg % 4)*SLOT + 1024*pc}', m0gap]
        g.append((f'buffer_load_dwordx4 v{D_+pc}, s[{S_}:{S_+3}], s{K_} offen offset:{1024*(pc%4)} {cfg.wsc} lds', ('C', 4, sg, 0)))
        if pc == 7: g.append(f's_add_u32 s{K_}, s{K_}, {128*2048}')
        return g
    def cact(sub, b):
        A_, S_, K_ = (aH, S_AH, kAH) if kind(sub // 4) == 'd' else (aO, S_AO, kAO)
        r = 128 + 16*(sub % 8) + 4*b
        g = [f'buffer_load_dwordx4 a[{r}:{r+3}], v{A_+b}, s[{S_}:{S_+3}], s{K_} offen offset:{1024*(sub % 4)}{SC}']
        if b == 3 and sub % 4 == 3: g.append(f's_add_u32 s{K_}, s{K_}, 4096')
        return g
    PF = cfg.PF; vPF = 25; sDM = 55; sPF = 44
    pairs = []; sm = []; start = {}
    for n in range(17):
        st = len(pairs); start[n] = st
        if n <= 14:
            for s_ in range(8): pairs.append((qk(n+1, s_, 0, c0), qk(n+1, s_, 1, c0), kread(n+1, s_, None) if n else []))
        if n >= 1:
            for f in range(8): pairs.append((pv(n-1, f, (f & 1)*cfg.snake, n == 1), pv(n-1, f, 1 - (f & 1)*cfg.snake, n == 1), vread(n-1, f, ('V', 4, (n-1)//2, 0))))
        if n <= 15: sm.append((st, len(pairs), softmax_ops(n)))
    mf = []; hi.clear(); lo.clear()
    for a_, b_, _ in pairs: mf += [a_, b_]
    n_ = len(mf)
    bargap = {}
    for j in range(8):
        g = 2*(start[2*j+1] - PF) - 1; bargap[j] = g
        def bar_(p, j=j):
            if j < 7: p.need(('K', 4, j+1, 0))
            p.need(('V', 4, j, 0))
            if j == cfg.hbar: p.need(('Hst', 1, 0, 0))
            p('s_barrier')
        H(g, bar_)
    for i in range(len(pairs) - PF):
        for k, r in enumerate(pairs[i + PF][2]): H(2*i + k, r)
    for (st, en, sl) in sm:
        ng = 2*(en - st)
        for e, ops in enumerate(sl):
            for o in ops: H(2*st + min(ng - 1, e*ng//32), o)
    def act_addr(dst, stride, tmp):
        p(f's_and_b32 s{sT+3}, s{sJ}, 1\ns_mul_i32 s{sT+3}, s{sT+3}, {2*stride}\nv_lshlrev_b32 v{tmp}, 4, v1\nv_add_u32 v{dst+2}, s{sT+2}, v{tmp}')
        p(f'v_add_u32 v{dst}, s{sT+3}, v{dst+2}\nv_add_u32 v{dst+1}, {stride}, v{dst}\ns_sub_u32 s{sT+3}, {2*stride}, s{sT+3}\nv_add_u32 v{dst+2}, s{sT+3}, v{dst+2}\nv_add_u32 v{dst+3}, {stride}, v{dst+2}')
    def out_addr(dst):
        p(f's_lshl_b32 s{sT+2}, s{sRC}, 8\ns_lshl_b32 s{sT+3}, s{sW}, 6\ns_add_u32 s{sT+2}, s{sT+2}, s{sT+3}\ns_and_b32 s{sT+3}, s{sJ}, 1\ns_lshl_b32 s{sT+3}, s{sT+3}, 5\ns_add_u32 s{sT+2}, s{sT+2}, s{sT+3}\ns_lshl_b32 s{sT+2}, s{sT+2}, 11')
        p(f's_lshl_b32 s{sT+3}, s{sCC}, 8\ns_add_u32 s{sT+2}, s{sT+2}, s{sT+3}\ns_lshr_b32 s{sT+3}, s{sJ}, 1\ns_lshl_b32 s{sT+3}, s{sT+3}, 7\ns_add_u32 s{sT+2}, s{sT+2}, s{sT+3}')
        t = 36
        p(f'v_and_b32 v{t}, 7, v1\nv_lshlrev_b32 v{t}, 11, v{t}\nv_bfe_u32 v{t+1}, v1, 3, 1\nv_lshl_add_u32 v{t}, v{t+1}, 6, v{t}\nv_bfe_u32 v{t+1}, v1, 4, 1\nv_lshl_add_u32 v{t}, v{t+1}, 5, v{t}')
        p(f'v_lshrrev_b32 v{t+1}, 5, v1\nv_lshl_add_u32 v{t}, v{t+1}, 4, v{t}\nv_add_u32 v{dst}, s{sT+2}, v{t}')
    XL = 0x20000 + 4096
    def x_stage():
        out_addr(39)
        srd(p, S_H, pX, 0, 4 << 20)
        for b in range(4):
            p(f's_add_u32 m0, s{sDM}, {4096 + 1024*b}\ns_mov_b32 s{sT+2}, {b*0x4000}')
            p(f'buffer_load_dwordx4 v39, s[{S_H}:{S_H+3}], s{sT+2} offen lds')
    def setup1():
        p(f's_lshl_b32 s{sT}, s2, 2\ns_add_u32 s{sT}, s{sT}, s{sW}\ns_lshl_b32 s{sT+1}, s{sT}, 13\ns_mul_i32 s{sT}, s{sT}, 7168')
        p(f'v_lshlrev_b32 v{vPF}, 4, v1\nv_add_u32 v{vPF+1}, s{sT}, v{vPF}\nv_add_u32 v{vPF}, s{sT+1}, v{vPF}')
        srd(p, S_WO, pWO, 0, 8 << 20); srd(p, S_WD, pWD, 0, 7 << 20)
        p(f's_lshl_b32 s{sDM}, s{sMK}, 1\ns_add_u32 s{sDM}, s{sDM}, 0x20000\ns_mov_b32 s{sPF}, 0')
        p(f's_lshl_b32 s{sT}, s{sRB}, 12\ns_lshl_b32 s{sT+1}, s{sCB}, 7\ns_add_u32 s{sT}, s{sT}, s{sT+1}\ns_add_u32 s{sT}, s{sT}, {256*128}\nv_mov_b32 v{vHF}, s{sT}')
    def setup2():
        if cfg.fs:
            p(f's_lshr_b32 s{sT}, s{sNO}, 5\ns_xor_b32 s{sT}, s{sT}, s2\ns_and_b32 s{sT}, s{sT}, 1\ns_and_b32 s{sJ}, s2, 2\ns_or_b32 s{sJ}, s{sJ}, s{sT}')
            p(f's_and_b32 s{sRC}, s2, 4\ns_bfe_u32 s{sT+1}, s2, 0x20003\ns_add_u32 s{sRC}, s{sRC}, s{sT+1}\ns_lshr_b32 s{sCC}, s2, 5\ns_xor_b32 s{sCC}, s{sCC}, {cfg.ccx}')
            if cfg.fs == 1:
                p(f's_lshr_b32 s{sT+1}, s{sJ}, 1\ns_mul_i32 s{kAH}, s{sT+1}, 14\ns_lshl_b32 s{sT+2}, s{sT}, 3\ns_add_u32 s{kAH}, s{kAH}, s{sT+2}')
                p(f's_lshl_b32 s{sT+1}, s{sT+1}, 4\ns_mul_i32 s{sT+2}, s{sT}, 9\ns_add_u32 s{sT+1}, s{sT+1}, s{sT+2}\ns_mul_i32 s{sT}, s{sT}, 3\ns_sub_u32 s{sT}, 9, s{sT}')
                p(f'v_and_b32 v{vFH}, 15, v1\nv_min_u32 v{vFH}, s{sT}, v{vFH}\ns_lshl_b32 s{sT}, s{sRC}, 5\ns_add_u32 s{sT}, s{sT}, s{sT+1}\ns_add_u32 s{sT}, s{sT}, 256\ns_lshl_b32 s{sT}, s{sT}, 7')
                p(f'v_lshl_add_u32 v{vFH}, v{vFH}, 7, s{sT}')
                p(f's_lshl_b32 s{kWD}, s{kAH}, 18\ns_lshl_b32 s{kAH}, s{kAH}, 12')
            else:
                p(f's_lshl_b32 s{sT}, s{sRC}, 5\ns_lshl_b32 s{sT+1}, s{sJ}, 3\ns_add_u32 s{sT}, s{sT}, s{sT+1}\ns_add_u32 s{sT}, s{sT}, 256\ns_lshl_b32 s{sT}, s{sT}, 7')
                p(f'v_and_b32 v{vFH}, 7, v1\nv_lshl_add_u32 v{vFH}, v{vFH}, 7, s{sT}')
                p(f's_mul_i32 s{kWD}, s{sJ}, {896*2048}\ns_mul_i32 s{kAH}, s{sJ}, {28*1024}')
        else:
            p(f's_bfe_u32 s{sJ}, s2, 0x20001\ns_and_b32 s{sRC}, s2, 1\ns_lshl_b32 s{sRC}, s{sRC}, 2\ns_bfe_u32 s{sT}, s2, 0x20003\ns_add_u32 s{sRC}, s{sRC}, s{sT}\ns_lshr_b32 s{sCC}, s2, 5')
            p(f's_lshl_b32 s{sT}, s{sRC}, 5\ns_lshl_b32 s{sT+1}, s{sJ}, 3\ns_add_u32 s{sT}, s{sT}, s{sT+1}\ns_add_u32 s{sT}, s{sT}, 256\ns_lshl_b32 s{sT}, s{sT}, 7')
            p(f'v_and_b32 v{vFH}, 7, v1\nv_lshl_add_u32 v{vFH}, v{vFH}, 7, s{sT}')
            p(f's_mul_i32 s{kWD}, s{sJ}, {896*2048}\ns_mul_i32 s{kAH}, s{sJ}, {28*1024}')
        p(f's_lshl_b32 s{sT}, s{sCC}, 8\ns_add_u32 s{sT}, s{sT}, 128\ns_add_u32 s{sDE}, s{sT}, {cfg.cdel}\ns_and_b32 s{sDE}, s{sDE}, 2047\ns_sub_u32 s{sDE}, s{sDE}, s{sT}')
        x_dma_addr(dD, k_h)
        p(f's_lshl_b32 s{cMW}, s{sW}, 13')
        srd(p, S_AH, pWS, WS_H, 15 << 20)
        p(f's_lshl_b32 s{sT}, s{sRC}, 4\ns_lshl_b32 s{sT+2}, s{sW}, 2\ns_add_u32 s{sT}, s{sT}, s{sT+2}\ns_mul_i32 s{sT+2}, s{sT}, {HST}')
        act_addr(aH, HST, 36)
        t = 36
        p(f's_and_b32 s{sT+3}, s{sJ}, 2\ns_lshl_b32 s{sT+3}, s{sT+3}, 1')
        p(f'v_lshrrev_b32 v{t}, 2, v1\nv_and_b32 v{t+1}, 7, v{t}\nv_xor_b32 v{t+1}, s{sT+3}, v{t+1}\nv_lshlrev_b32 v{t}, 8, v{t}\nv_and_b32 v{t+2}, 3, v1\nv_lshl_add_u32 v{t}, v{t+2}, 3, v{t}')
        for tt in range(8):
            p(f'v_xor_b32 v{t+2}, {tt}, v{t+1}\nv_lshl_add_u32 v{cTr+tt}, v{t+2}, 5, v{t}')
        p(f's_mov_b32 s{cTG}, 0x10000')
        if cfg.c3:
            p(f's_lshr_b32 s{sT}, s2, 3\ns_lshl_b32 s{sT}, s{sT}, 2\ns_add_u32 s{sT}, s{sT}, s{sW}\ns_lshl_b32 s{sT}, s{sT}, 11\ns_add_u32 s{sT}, s{sT}, {cfg.c3l*128}')
            p(f'v_bfe_u32 v36, v1, 2, 2\nv_lshlrev_b32 v36, 18, v36\nv_bfe_u32 v37, v1, 1, 1\nv_lshl_add_u32 v36, v37, 10, v36\nv_and_b32 v37, 1, v1\nv_lshl_add_u32 v36, v37, 6, v36\nv_add_u32 v39, s{sT}, v36')
    def clear_setup():
        srd(p, S_H, pWS, WS_P + 256*3*16384, 12 << 20)
        p(f's_lshl_b32 s45, s{sRC}, 3\ns_add_u32 s45, s45, s{sCC}\ns_lshl_b32 s45, s45, 2\ns_add_u32 s45, s45, s{sJ}\ns_lshl_b32 s45, s45, 2\ns_add_u32 s45, s45, s{sW}\ns_mul_i32 s45, s45, 12288')
        p('v_lshlrev_b32 v39, 4, v1')
        for i in range(4): p(f'v_mov_b32 v{32+i}, -1')
    s2q = collect(setup2); s2per = -(-len(s2q) // 4)
    if cfg.apre:
        setup1(); setup2(); s2q = []
    else:
        for x in collect(setup1): L(16, x)
    npf = 0
    for j in range(7):
        g = bargap[j] + 1
        if j + 3 <= 7:
            L(g, f's_add_u32 s{sT+5}, s{sKV}, {(j+3)*16384}') if False else None
            L(g, f's_add_u32 s{sT+4}, s{sKV}, {(j+3)*16384}'); L(g, f's_add_u32 m0, s{sMK}, {((j+3) % 4)*16384}'); L(g, m0gap)
            for k in range(4): L(g + 3*k, kdma(k, sT+4, ('K', 4, j+3, 0)))
        if j + 2 <= 7:
            L(g + 12, f's_add_u32 s{sT+4}, s{sKV}, {(j+2)*16384}'); L(g + 12, f's_add_u32 m0, s{sMK}, {0x10000 + ((j+2) % 4)*16384}'); L(g + 12, m0gap)
            for k in range(4): L(g + 12 + 3*k, vdma(k, sT+4, ('V', 4, j+2, 0)))
        if j < 5:
            L(g + 24, f's_mov_b32 m0, s{sDM}'); L(g + 24, m0gap)
            for k in range(3):
                wo_ = npf % 2 == 0
                L(g + 24 + 4*k, f'buffer_load_dwordx4 v{vPF if wo_ else vPF+1}, s[{S_WO if wo_ else S_WD}:{(S_WO if wo_ else S_WD)+3}], s{sPF} offen lds')
                if not wo_: L(g + 24 + 4*k, f's_add_u32 s{sPF}, s{sPF}, 1024')
                npf += 1
        if cfg.cpf2 and (j in (1, 4) or cfg.cpf2 >= 2):
            for x in code_pf(S_DB, 61): L(g + 35, x)
        if j < 4:
            for x in s2q[j*s2per:(j+1)*s2per]: L(g + 36, x)
        if cfg.sent and j == 0:
            for x in collect(clear_setup): L(g + 60, x)
        if cfg.sent and 1 <= j <= 3:
            for k in range(4): L(g + 4 + 14*k, f'buffer_store_dwordx4 v[32:35], v39, s[{S_H}:{S_H+3}], s45 offen offset:{1024*k} sc1')
            L(g + 50, 's_add_u32 s45, s45, 4096')
        if j == cfg.hbar: H(g, flag_store('A_hf', vHF))
        if j == 4:
            for k, x in enumerate(collect(x_stage)): L(g + 36 + k//2, x)
        if j == 4: L(g + 40, f'buffer_load_dwordx2 v[62:63], v{vFH}, s[{S_FL}:{S_FL+3}], 0 offen sc1')
        if j == 5:
            for pc in range(8):
                for x in cdma(pc, 0): L(g + 24 + 3*pc, x)
            L(g + 50, '\n'.join(flagchk('L_h', vFH, 62)))
        if j == 6:
            for sub in range(4):
                for b in range(4):
                    for x in cact(sub, b): L(g + 3*(4*sub + b), x)
    for pc in range(8):
        for x in cdma(pc, 1): L(bargap[7] + 1 + 3*pc, x)
    if cfg.c3:
        L(bargap[6] - 4, f's_add_u32 s{sT+4}, s{kWD}, {128*2048}'); L(bargap[6] - 4, f'buffer_load_dword v61, v39, s[{S_WD}:{S_WD+3}], s{sT+4} offen ;pf')
    g = 2*start[16]
    lchk = []
    for qt in range(2):
        l = vL + 2*qt
        lchk += [f'v_add_f32 v{l}, v{l}, v{l+1}', f'v_mov_b32 v{l+1}, v{l}']
    lchk += [None, f'v_permlane32_swap_b32 v{vL}, v{vL+1}', f'v_permlane32_swap_b32 v{vL+2}, v{vL+3}', None,
             f'v_add_f32 v{vL}, v{vL}, v{vL+1}', f'v_add_f32 v{vL+2}, v{vL+2}, v{vL+3}',
             f's_mov_b32 s{sT+2}, {f2u(2.0**cfg.thr):#x}', f's_mov_b32 s{sT+3}, {f2u(2.0**-cfg.thr):#x}',
             f'v_cmp_nlt_f32 vcc, v{vL}, s{sT+2}', f'v_cmp_nlt_f32 s[{sT}:{sT+1}], v{vL+2}, s{sT+2}', None, f's_or_b64 vcc, vcc, s[{sT}:{sT+1}]',
             f'v_cmp_ngt_f32 s[{sT}:{sT+1}], v{vL}, s{sT+3}', None, f's_or_b64 vcc, vcc, s[{sT}:{sT+1}]',
             f'v_cmp_ngt_f32 s[{sT}:{sT+1}], v{vL+2}, s{sT+3}', None, f's_or_b64 vcc, vcc, s[{sT}:{sT+1}]']
    k = 0
    for x in lchk:
        if x is None: g += 1; k = 0; continue
        H(g, x); k += 1
        if k == 3: g += 1; k = 0
    assert g < n_ - 1
    def cyc(x):
        t_ = x[0] if isinstance(x, tuple) else x
        if callable(t_): return 8
        o = t_.split()[0]
        if o in TRANS: return 8
        if o.startswith('v_cvt_pk'): return 5
        if o.startswith('buffer_'): return cfg.vmc
        return 4*len(t_.split('\n')) if '\n' in t_ and ';cond' not in t_ else 4
    def cls(x):
        t_ = x[0] if isinstance(x, tuple) else x
        if callable(t_): return 'x'
        o = t_.split()[0]
        return 'm' if o.startswith('buffer_') else 'd' if o.startswith('ds_') else 'v' if o.startswith('v_') else 's'
    fill = {}; q_ = []
    for i in range(-1, n_):
        cur = list(hi.get(i, [])); cc_ = [cls(x) for x in cur]
        nd_ = cc_.count('d'); nv = nd_ + cc_.count('s') + 2*cc_.count('x') + (1 if i % 2 == 1 else 0); mem = nd_
        vroom = (cfg.av1 if nd_ else cfg.av0) - max(0, cc_.count('v') - 3); tookv = False
        for x in lo.get(i, []): q_.append((i, x))
        while q_:
            x = q_[0][1]; c_ = cls(x); force = i == n_ - 1 or i - q_[0][0] >= cfg.amax
            if c_ == 'v':
                if vroom <= 0 and not force: break
                vroom -= 1; tookv = True
            else:
                w_ = len((x[0] if isinstance(x, tuple) else x).split('\n')) if c_ == 's' else 1
                if (tookv or nv + min(w_, 2) > cfg.anv or (c_ == 'm' and mem >= cfg.amem)) and not force: break
                nv += w_; mem += c_ == 'm'
            cur.append(q_.pop(0)[1])
        fill[i] = cur
    fix_m0(fill, n_)
    if cfg.aab:
        tx = lambda x: x[0] if isinstance(x, tuple) else x
        for i in fill:
            if 2*start[3] <= i < 2*start[11]:
                if cfg.aab & 1: fill[i] = [x for x in fill[i] if callable(tx(x)) or not tx(x).startswith('buffer_load')]
                if cfg.aab & 2: fill[i] = [x for x in fill[i] if callable(tx(x)) or x in hi.get(i, []) or tx(x).startswith('buffer_load') or 'm0' in tx(x) or 's54' in tx(x)]
                if cfg.aab & 4: fill[i] = [x for x in fill[i] if not callable(tx(x))]
    for n in (1, 3, 7, 11, 15):
        t_ = ts.text(4)
        if t_: fill[2*start[n] - 1].append(t_)
    interleave(p, mf, fill)
    ts.stamp(p, 5)
    p('s_cbranch_vccnz A_slow')
    p('A_done:')
    ad = cfg.cad; P = cfg.cP
    for sub in range(4, ad):
        for b in range(4):
            for x in cact(sub, b): emit(p, x)
    p(f'v_rcp_f32 v{vL}, v{vL}\nv_rcp_f32 v{vL+2}, v{vL+2}')
    p.need(('C', 4, 0, 0)); p('s_barrier')
    for G in range(P):
        r = cA + 4*G; t_, s_ = (G // 2, G % 2) if cfg.chain else (G, 0)
        p(f'ds_read_b64_tr_b16 v[{r}:{r+1}], v{cTr+t_} offset:{8192*s_}', ('C', 4, 0, 0)); p(f'ds_read_b64_tr_b16 v[{r+2}:{r+3}], v{cTr+t_} offset:{8192*s_+4096}', ('C', 4, 0, 0))
    p(';SPLIT')
    OE = cfg.oe if ND >= 7 else cfg.oes
    vO, vX, vFO, vFD, vFS, vFQ = 16, 96, 20, 21, 22, 23
    sPS, sPR = 32, 33
    def o_epi(packed):
        t = 32
        p(f'v_mov_b32 v{vL+1}, v{vL}\nv_mov_b32 v{vL+3}, v{vL+2}')
        p(f's_lshl_b32 s{sT}, s{sRB}, 4\ns_lshl_b32 s{sT+1}, s{sW}, 2\ns_add_u32 s{sT}, s{sT}, s{sT+1}\ns_mul_i32 s{sT}, s{sT}, {OST}\ns_lshl_b32 s{sT+1}, s{sCB}, 12\ns_add_u32 s{sT}, s{sT}, s{sT+1}')
        p(f'v_bfe_u32 v{t}, v1, 4, 1\nv_mul_u32_u24 v{t}, {OST}, v{t}\nv_lshrrev_b32 v{t+1}, 5, v1\nv_lshlrev_b32 v{t+1}, 8, v{t+1}\nv_and_b32 v{t+2}, 15, v1\nv_lshlrev_b32 v{t+2}, 4, v{t+2}')
        p(f'v_add3_u32 v{t}, v{t}, v{t+1}, v{t+2}\nv_add_u32 v34, s{sT}, v{t}\nv_add_u32 v35, {2*OST}, v34')
        n = 0
        for dt in range(4):
            for qt in range(2):
                o = (dt*2+qt)*16
                for half in range(2):
                    x = 96 + 8*(n % 2); d = 112 + 4*(n % 4); n += 1
                    for i in range(8): p(f'v_accvgpr_read_b32 v{x+i}, a{o+8*half+i}')
                    if packed:
                        for i in range(0, 8, 2): p(f'v_pk_mul_f32 v[{x+i}:{x+i+1}], v[{x+i}:{x+i+1}], v[{vL+2*qt}:{vL+2*qt+1}]')
                    else:
                        for i in range(8): p(f'v_mul_f32{cfg.e64} v{x+i}, v{x+i}, v{vL+2*qt}')
                        for i in range(cfg.xs): p(f's_mov_b32 s{sT+5}, {cfg.xl}')
                    for i in range(0, 8, 2): p(f'v_cvt_pk_bf16_f32 v{d+i//2}, v{x+i}, v{x+i+1}')
                    p(f'buffer_store_dwordx4 v[{d}:{d+3}], v{34+qt}, s[{S_O}:{S_O+3}], 0 offen offset:{dt*1024 + half*512} {cfg.ost}', ('Ost', 1, 0, 0))
    def s_setup():
        x_dma_addr(dO, k_o)
        srd(p, S_AO, pWS, WS_O, 17 << 20)
        p(f's_lshl_b32 s{kAO}, s{sJ}, 3')
        if NSS == 7 and cfg.fs == 2: p(f's_add_u32 s{kAO}, s{kAO}, 1')
        p(f's_lshl_b32 s{sT}, s{sRC}, 5\ns_add_u32 s{sT}, s{sT}, s{kAO}\ns_add_u32 s{sT}, s{sT}, 512\ns_lshl_b32 s{sT}, s{sT}, 7')
        p(f'v_and_b32 v{vFH}, 15, v1\nv_min_u32 v{vFH}, {NSS-1}, v{vFH}\nv_lshl_add_u32 v{vFH}, v{vFH}, 7, s{sT}')
        p(f's_lshl_b32 s{kWO}, s{kAO}, 18\ns_lshl_b32 s{kAO}, s{kAO}, 12')
        p(f's_lshl_b32 s{sT}, s{sRC}, 4\ns_lshl_b32 s{sT+2}, s{sW}, 2\ns_add_u32 s{sT}, s{sT}, s{sT+2}\ns_mul_i32 s{sT+2}, s{sT}, {OST}')
        act_addr(aO, OST, 24)
        p(f'v_add_u32 v{vFO}, {256*128}, v{vHF}')
        srd(p, S_OUT, pOUT, 0, 4 << 20); srd(p, S_P, pWS, WS_P, 24 << 20)
        p(f's_lshl_b32 s{sT}, s{sRC}, 3\ns_add_u32 s{sT}, s{sT}, s{sCC}\ns_lshl_b32 s{sT}, s{sT}, 2\ns_add_u32 s{sT+1}, s{sT}, s{sJ}')
        p(f's_add_u32 s{sT+2}, s{sT+1}, 768\ns_lshl_b32 s{sT+2}, s{sT+2}, 7\nv_mov_b32 v{vFD}, s{sT+2}\nv_add_u32 v{vFS}, {256*128}, v{vFD}')
        p(f's_add_u32 s{sT+2}, s{sT}, 768\ns_lshl_b32 s{sT+2}, s{sT+2}, 7\nv_and_b32 v{vFQ}, 3, v1\nv_lshl_add_u32 v{vFQ}, v{vFQ}, 7, s{sT+2}')
        p(f's_mul_i32 s{sT+3}, s{sW}, 12288\ns_mul_i32 s{sPR}, s{sT+1}, {3*16384}\ns_add_u32 s{sPR}, s{sPR}, s{sT+3}')
        for q_ in (1, 2, 3):
            p(f's_xor_b32 s{sT+2}, s{sT+1}, {q_}\ns_mul_i32 s{sT+2}, s{sT+2}, {3*16384}\ns_add_u32 s{sT+2}, s{sT+2}, s{sT+3}\ns_add_u32 s{sT+2}, s{sT+2}, {(q_-1)*4096}\nv_add_u32 v{24+q_}, s{sT+2}, v24')
        out_addr(vO)
    QUADS = [(t_, bp) for t_ in (4, 5, 6, 7) for bp in (0, 1)] + [(t_, 1) for t_ in range(4)]
    nsent = [0]
    def send(gemm, quads):
        for (t_, bp) in quads:
            c = 16*t_ + 8*bp; k = nsent[0]; nsent[0] += 1; d = 112 + 4*(k % 4); q_ = 2*(t_ >> 2) + bp
            if gemm == 0:
                for r in range(4): p(f'v_cvt_pk_bf16_f32 v{d+r}, v{cC+c+2*r}, v{cC+c+2*r+1}')
            else:
                x = 160 + 8*(k % 4)
                for r in range(8): p(f'v_accvgpr_read_b32 v{x+r}, a{c+r}')
                for r in range(4): p(f'v_cvt_pk_bf16_f32 v{d+r}, v{x+2*r}, v{x+2*r+1}')
                if cfg.sent:
                    for r in range(4): p(f'v_min_u32 v{d+r}, -2, v{d+r}')
            so = '0' if gemm == 0 else f's{sT+4}'
            p(f'buffer_store_dwordx4 v[{d}:{d+3}], v{24 + q_}, s[{S_P}:{S_P+3}], {so} offen offset:{1024*(t_ & 3)} {cfg.pst}', ('Pst', 1, gemm, 0))
    def send_d():
        send(0, QUADS)
        for i in (1, 2, 3):
            for r in range(8): p(f'v_mov_b32 v{cC+8*i+r}, v{cC+16*i+r}')
    mf = []; hi.clear(); lo.clear()
    ST = 128; TMS = cfg.tms
    NSUB = 4*NS
    CH = cfg.chain
    if CH: order = [((2*u + e) // 4, (2*u + e) % 4, t) for u in range((NSUB - TMS)//2) for t in range(8) for e in range(2)]
    else: order = [(sub // 4, sub % 4, t) for sub in range(NSUB - TMS) for t in range(8)]
    order += [(sub // 4, sub % 4, t) for t in (4, 5, 6, 7, 0, 1, 2, 3) for sub in range(NSUB - TMS, NSUB)]
    assert TMS <= 4 or NS % 2 == 0
    def ctr(G):
        sg, s, t = order[G]
        r = cA + 4*(G % 8); off = (sg % 2)*SLOT + s*8192
        a = cTr + t
        return [(f'ds_read_b64_tr_b16 v[{r}:{r+1}], v{a} offset:{off}', ('C', 4, sg, 0)),
                (f'ds_read_b64_tr_b16 v[{r+2}:{r+3}], v{a} offset:{off + 4096}', ('C', 4, sg, 0))]
    obar = math.ceil(OE) + 1; dbar = ND + math.ceil(cfg.de) + 1
    def bar(p, sgn):
        p.need(('C', 4, sgn, 0))
        if sgn == obar: p.need(('Ost', 1, 0, 0))
        if sgn == dbar: p.need(('Pst', 1, 0, 0))
        p('s_barrier')
    firstG = {}
    for G, (sg, s, t) in enumerate(order): firstG.setdefault(sg, G)
    seen = set()
    def c_mfma(G, b):
        sg, s, t = order[G]; sub = 4*sg + s
        ra = cA + 4*(G % 8); rb = 128 + 16*(sub % 8) + 4*b; c = (t*4+b)*4
        acc_ = f'v[{cC+c}:{cC+c+3}]' if kind(sg) == 'd' else f'a[{c}:{c+3}]'
        first = acc_ not in seen; seen.add(acc_)
        mf.append(f'v_mfma_f32_16x16x32_bf16 {acc_}, v[{ra}:{ra+3}], a[{rb}:{rb+3}], {"0" if first else acc_}')
    for G in range(32*NS):
        if CH:
            if G % 2 == 0:
                for k, b in enumerate(range(3, -1, -1) if (G // 2) % 2 else range(4)):
                    c_mfma(G + k % 2, b); c_mfma(G + 1 - k % 2, b)
        else:
            for b in (range(3, -1, -1) if cfg.snake and G % 2 else range(4)): c_mfma(G, b)
        i0 = 4*G; Gn = G + P
        if CH and cfg.ltouch and G % 2 == 1 and G + 2 < 32*NS: H(i0+3, lambda p, r=cA + 4*((G + 2) % 8): p.touch(f'v[{r}:{r+3}]'))
        if Gn < 32*NS:
            if firstG[order[Gn][0]] == Gn: H(i0-1, lambda p, sgn=order[Gn][0]: bar(p, sgn))
            r0, r1 = ctr(Gn)
            H(i0, r0); H(i0+1, r1)
            if order[Gn][1] == 3 and order[Gn][0] % 2 == 1 and order[Gn][0] < NS - 1: H(i0+2, f'v_xor_b32 v{cTr + order[Gn][2]}, s{cTG}, v{cTr + order[Gn][2]}')
        sgc, g = divmod(G, 32)
        dstr = 2 if (TMS > 4 and sgc + 2 == NS - 1) else cfg.cdstr
        if g % dstr == 1 and g // dstr < 8 and sgc + 2 < NS:
            for x in cdma(g // dstr, sgc + 2): L(i0, x)
    last_act = 0
    def act_t(sub):
        t0 = max((sub - (6 if CH and sub % 2 == 0 else 7))*32, min((sub - ad)*32, (4*NS - 8)*32 - (4*NS - 1 - sub)*cfg.ramp)) if TMS else (sub - ad)*32
        if sub >= 4*ND: t0 = max(t0, (4*ND - cfg.odl)*32 + (sub - 4*ND)*cfg.ramp)
        return t0
    for sub in range(ad, 4*NS):
        t0 = act_t(sub); t1 = max(act_t(sub + 1), t0 + 12)
        for b in range(4):
            last_act = t0 + b*min(8, (t1 - t0)//4)
            for x in cact(sub, b): L(last_act, x)
    if cfg.cpf2:
        for k in ((1,) if cfg.cpf2 < 2 else range(0, math.floor(OE))):
            for x in code_pf(S_DB, 61): L(k*ST + 4*30, x)
        for x in code_srd(S_AH, 'L_pc3' + SFX): L(ND*ST, x)
        for k in ((ND, ND + 3) if cfg.cpf2 < 2 else range(ND, NS - 2)):
            for x in code_pf(S_AH, 61): L(k*ST + 4*30, x)
    if cfg.c3:
        L((ND - 2)*ST, f's_add_u32 s{sT+4}, s{kWO}, {cfg.c3s*128*2048}'); L((ND - 2)*ST, f'buffer_load_dword v61, v39, s[{S_WO}:{S_WO+3}], s{sT+4} offen ;pf')
    n = len(mf)
    fill = spread(hi, {k: lo[k] for k in sorted(lo)}, n, cfg.cap, 16, cost=lambda i: 1 if i % 4 == 3 else 0)
    fix_m0(fill, n)
    def ride(items, g0, g1):
        q_ = list(items); per = len(q_) / (g1 - g0); due = 0.0; done = 0
        for i in range(g0, g1):
            due += per
            used = len(fill[i]) + (1 if i % 4 == 3 else 0)
            while q_ and done < due + 2 and (used < cfg.cap or done < due - cfg.lag):
                fill[i].append(q_.pop(0)); used += 1; done += 1
        fill[g1-1] += q_
    oq = collect(lambda: o_epi(cfg.ox > 0))
    nx = 0
    if cfg.ox:
        idx = [i for i, x in enumerate(oq) if x[0].startswith('buffer_store')]
        nx = idx[cfg.ox - 1] + 1
        fill[-1] = oq[:nx] + fill[-1]
        oq2 = collect(lambda: o_epi(False))
        idx2 = [i for i, x in enumerate(oq2) if x[0].startswith('buffer_store')]
        oq = oq2[idx2[cfg.ox - 1] + 1:]
    if oq: ride(oq, 2, int(OE*ST))
    ride(collect(s_setup), int(OE*ST), int(OE*ST) + ST - 20)
    fill[obar*ST - 4*P + 2].append(flag_store('C_of' + SFX, vFO))
    first_o = act_t(4*ND)
    assert first_o - 2 > int(OE*ST) + ST - 20 and (ND - 2)*ST > int(OE*ST) + ST - 20
    fill[first_o - cfg.fl].append(f'buffer_load_dwordx2 v[62:63], v{vFH}, s[{S_FL}:{S_FL+3}], 0 offen sc1')
    fill[first_o - 2].append('\n'.join(flagchk('L_o' + SFX, vFH, 62)))
    ride(collect(send_d), ND*ST + 8, ND*ST + int(cfg.de*ST))
    fill[dbar*ST - 4*P + 2].append(flag_store('C_df' + SFX, vFD))
    xl = [f's_lshl_b32 s{sT+2}, s{sW}, 13', f's_add_u32 s{sT+2}, s{sT+2}, {XL}', 'v_and_b32 v36, 0x37, v1', 'v_lshlrev_b32 v36, 4, v36', 'v_bfe_u32 v37, v1, 3, 1', 'v_lshl_add_u32 v36, v37, 10, v36', f'v_add_u32 v39, s{sT+2}, v36']
    xl += [f'ds_read_b128 v[{vX+8*b+4*pr}:{vX+8*b+4*pr+3}], v39 offset:{2048*b + 128*pr}' for b in range(2) for pr in range(2)]
    vR = 192
    def recv(gemm):
        p(f's_add_u32 s{sT+2}, s{sPR}, {gemm*256*3*16384}')
        for q_ in range(3):
            for i in range(4):
                r = vR + 16*q_ + 4*i
                p(f'buffer_load_dwordx4 v[{r}:{r+3}], v24, s[{S_P}:{S_P+3}], s{sT+2} offen offset:{1024*i} sc1')
            if q_ < 2: p(f's_add_u32 s{sT+2}, s{sT+2}, 4096')
    dchk = NS - cfg.dchk
    assert not cfg.sent or int(dchk*ST) < (NSUB - TMS)*32 + TMS*4
    fill[int(dchk*ST) - cfg.fl].append(f'buffer_load_dwordx2 v[62:63], v{vFQ}, s[{S_FL}:{S_FL+3}], 0 offen sc1')
    fill[int(dchk*ST)].append('\n'.join(flagchk('L_d' + SFX, vFQ, 62)))
    r0_ = max(int(dchk*ST) + 2, last_act + 18)
    ride(collect(lambda: recv(0)), r0_, r0_ + 48)
    fill[(NS - 3)*ST].append(f's_mov_b32 s{sT+4}, {256*3*16384}')
    left = list(QUADS)
    if TMS:
        base = (NSUB - TMS)*32; plen = TMS*4
        for k, t_ in enumerate((4, 5, 6, 7, 0, 1, 2)):
            qs_ = [x for x in QUADS if x[0] == t_]; left = [x for x in left if x[0] != t_]
            g0 = base + (k + 1)*plen + 3
            ride(collect(lambda: send(1, qs_)), g0, min(n, g0 + plen))
    ts.stamp(p, 7)
    for k in range(1, 15):
        if k in (1, 2, 3, 4, 5, 6, 7, 8, 9, 11, 13):
            t_ = ts.text(2)
            if t_: fill[k*ST - 1].append(t_)
    interleave(p, mf, fill)
    if cfg.pw:
        p(f's_lshl_b32 s{sT+2}, s{sW}, 7\ns_add_u32 s{sT+2}, s{sT+2}, {(2304 - 4*768)*128}\nv_lshl_add_u32 v{vFS}, v{vFD}, 2, s{sT+2}\nv_lshl_add_u32 v{vFQ}, v{vFQ}, 2, s{sT+2}')
        p(f's_mov_b32 s{sT+3}, 0xffff0000\ns_nop 2')
    else:
        p(f's_mov_b32 s{sT+3}, 0xffff0000\nv_add_u32 v{vFQ}, {256*128}, v{vFQ}\ns_nop 4')
    ts.stamp(p, 3)
    for x in xl: p(x)
    send(1, left)
    RS = (160, 176, 240)
    def recv_s(q_, cond=''):
        for i in range(4):
            p(f'buffer_load_dwordx4 v[{RS[q_]+4*i}:{RS[q_]+4*i+3}], v24, s[{S_P}:{S_P+3}], s{44+q_} offen offset:{1024*i} sc1{cond}')
    if cfg.sent:
        p(f's_add_u32 s44, s{sPR}, {256*3*16384}\ns_add_u32 s45, s44, 4096\ns_add_u32 s46, s45, 4096')
        for q_ in range(3): recv_s(q_)
    pk = lambda r: f'v[{r}:{r+1}]'
    def addparts(dst, i, src):
        for q_ in range(3):
            rr = src[q_] + 4*i; tt = 32 + 8*(q_ % 2)
            for r in range(4): p(f'v_lshlrev_b32 v{tt+2*r}, 16, v{rr+r}\nv_and_b32 v{tt+2*r+1}, s{sT+3}, v{rr+r}')
            for r in range(0, 8, 2): p(f'v_pk_add_f32 {pk(dst+r)}, {pk(dst+r)}, {pk(tt+r)}')
    p(f'v_mov_b32 v28, {f2u(-math.log2(math.e)):#x}\nv_mov_b32 v29, v28')
    RD = (vR, vR + 16, vR + 32)
    for i in range(4):
        c = cC + 8*i; B = 48
        addparts(c, i, RD)
        for r in range(0, 8, 2): p(f'v_pk_mul_f32 {pk(B+r)}, {pk(c+r)}, v[28:29]')
        for r in range(8): p(f'v_exp_f32 v{B+r}, v{B+r}')
        p('s_nop 0')
        for r in range(0, 8, 2): p(f'v_pk_add_f32 {pk(B+r)}, {pk(B+r)}, 1.0 op_sel_hi:[1,0]')
        for r in range(8): p(f'v_rcp_f32 v{B+r}, v{B+r}')
        p('s_nop 0')
        for r in range(0, 8, 2): p(f'v_pk_mul_f32 {pk(c+r)}, {pk(c+r)}, {pk(B+r)}')
    vSs = 64
    for i in range(32): p(f'v_accvgpr_read_b32 v{vSs+i}, a{16*(i//8) + i % 8}')
    E = 192 if cfg.sent else 160
    def xunpack():
        for b in range(4):
            for q in range(4): p(f'v_lshlrev_b32 v{E+8*b+2*q}, 16, v{vX+4*b+q}\nv_and_b32 v{E+8*b+2*q+1}, s{sT+3}, v{vX+4*b+q}')
    if cfg.sent:
        xunpack()
        ts.stamp(p)
        p(f'C_chk{SFX}:\ns_waitcnt vmcnt(0)\ns_mov_b32 s47, 0')
        for q_ in range(3):
            r = RS[q_]
            p(f'v_max3_u32 v32, v{r}, v{r+1}, v{r+2}')
            for k in range(3, 15, 2): p(f'v_max3_u32 v32, v32, v{r+k}, v{r+k+1}')
            p(f'v_max_u32 v32, v32, v{r+15}\nv_cmp_eq_u32 vcc, -1, v32\ns_nop 1\ns_cbranch_vccz C_ok{q_}{SFX}')
            p.cond(True)
            p(f's_sleep {cfg.slp2}\ns_mov_b32 s47, 1'); recv_s(q_)
            p.cond(False)
            p(f'C_ok{q_}{SFX}:')
        p(f's_cmp_lg_u32 s47, 0\ns_cbranch_scc1 C_chk{SFX}')
        ts.stamp(p)
        src = RS
    else:
        if cfg.pw:
            xunpack()
            p('s_waitcnt vmcnt(0)')
            ts.stamp(p)
            p(f'buffer_store_dwordx2 v[2:3], v{vFS}, s[{S_FL}:{S_FL+3}], 0 offen sc1')
            p.cond(True)
            poll('C_poll' + SFX, vFQ, 'C_got' + SFX)
            p.cond(False)
            p(f'C_got{SFX}:')
            ts.stamp(p)
        else:
            p('s_waitcnt vmcnt(0)\ns_barrier')
            ts.stamp(p)
            p(f's_cmp_eq_u32 s{sW}, 1\ns_cbranch_scc0 C_got{SFX}')
            p.cond(True)
            p(f'buffer_store_dwordx2 v[2:3], v{vFS}, s[{S_FL}:{S_FL+3}], 0 offen sc1')
            poll('C_poll' + SFX, vFQ, 'C_got' + SFX)
            p.cond(False)
            p(f'C_got{SFX}:\ns_barrier')
            ts.stamp(p)
        recv(1)
        if not cfg.pw: xunpack()
        src = RD
    for i in range(4): addparts(vSs + 8*i, i, src)
    for i in range(0, 32, 2): p(f'v_pk_mul_f32 {pk(vSs+i)}, {pk(vSs+i)}, {pk(cC+i)}')
    for b in range(2):
        P0, P1, T_ = 112 + 8*b, 116 + 8*b, 32
        for pr in range(2):
            c0 = vSs + 16*pr + 4*b; c1 = c0 + 8
            for r in range(4): p(f'v_permlane16_swap_b32 v{c0+r}, v{c1+r}')
        for pr in range(2):
            c0 = vSs + 16*pr + 4*b; c1 = c0 + 8; e = E + 16*b + 8*pr
            for q in range(4):
                c = (c0, c0+2, c1, c1+2)[q]
                p(f'v_pk_add_f32 {pk(e+2*q)}, {pk(e+2*q)}, {pk(c)}')
            for q in range(4): p(f'v_cvt_pk_bf16_f32 v{(P0, P1)[pr]+q}, v{e+2*q}, v{e+2*q+1}')
        for q in range(4): p(f'v_mov_b32 v{T_+q}, v{P1+q}')
        for q in range(4): p(f'v_mov_b32_dpp v{P1+q}, v{P0+q} row_ror:8 row_mask:0xf bank_mask:0x3')
        for q in range(4): p(f'v_mov_b32_dpp v{P0+q}, v{T_+q} row_ror:8 row_mask:0xf bank_mask:0xc')
        p(f's_mov_b32 s{sT}, {2*b*0x4000}\ns_mov_b32 s{sT+1}, {(2*b+1)*0x4000}')
        p(f'buffer_store_dwordx4 v[{P0}:{P0+3}], v{vO}, s[{S_OUT}:{S_OUT+3}], s{sT} offen {cfg.osc}')
        p(f'buffer_store_dwordx4 v[{P1}:{P1+3}], v{vO}, s[{S_OUT}:{S_OUT+3}], s{sT+1} offen {cfg.osc}')
    ts.stamp(p)
    if cfg.ts: p('s_waitcnt vmcnt(0)')
    ts.stamp(p)
    ts.dump(p, pWS)
    p('s_endpgm')
    autowait(p)
    if cfg.hoist: hoist(p)
    if not cfg.aab: check(p, 'main')

    z = Prog(); main = p; p = z
    p('A_slow:')
    p('s_waitcnt vmcnt(0) lgkmcnt(0)')
    srd(p, S_K, pK, 0, 2 << 20); srd(p, S_V, pV, 0, 2 << 20)
    zK, zD, zV = 13, 14, 21
    zKV, zN = sT, sT+1
    p(f's_lshr_b32 s{zKV}, s{sCB}, 3\ns_lshl_b32 s{zKV}, s{zKV}, 19\ns_add_u32 s{zKV}, s{zKV}, {1536*256}')
    p(f'v_and_b32 v{zK}, 31, v1\nv_lshlrev_b32 v{zK}, 8, v{zK}\nv_lshrrev_b32 v36, 5, v1\nv_lshl_add_u32 v{zK}, v36, 4, v{zK}')
    p(f'v_lshrrev_b32 v36, 4, v1\nv_and_b32 v37, 15, v1\nv_lshlrev_b32 v38, 2, v36\nv_xor_b32 v37, v37, v38\nv_lshlrev_b32 v36, 8, v36\nv_lshl_add_u32 v{zD}, v37, 4, v36\nv_add_u32 v{zD+1}, 0x1000, v{zD}')
    t = 36
    p(f'v_lshrrev_b32 v{t}, 5, v1\nv_lshlrev_b32 v{t}, 2, v{t}\nv_bfe_u32 v{t+1}, v1, 2, 2\nv_add_u32 v{t}, v{t}, v{t+1}\nv_lshlrev_b32 v{t}, 8, v{t}')
    p(f'v_bfe_u32 v{t+2}, v1, 4, 1\nv_lshlrev_b32 v{t+2}, 5, v{t+2}\nv_and_b32 v{t+3}, 3, v1\nv_lshlrev_b32 v{t+3}, 3, v{t+3}\nv_add3_u32 v{t}, v{t}, v{t+2}, v{t+3}')
    p(f's_lshl_b32 s{sT+2}, s{sW}, 13\ns_add_u32 s{sT+2}, s{sT+2}, 0x10000\nv_add_u32 v{t}, s{sT+2}, v{t}')
    for dt in range(4): p(f'v_xor_b32 v{t+2}, {dt}, v{t+1}\nv_lshl_add_u32 v{zV+dt}, v{t+2}, 6, v{t}')
    def kglob():
        for s in range(8): p(f'buffer_load_dwordx4 a[{aF+4*s}:{aF+4*s+3}], v{zK}, s[{S_K}:{S_K+3}], s{zN} offen offset:{32*s}')
    p(f'v_mov_b32 v32, 0xff800000\nv_mov_b32 v34, 0xff800000\ns_mov_b32 s{zN}, s{zKV}\ns_mov_b32 s{sT+3}, 16')
    p.loop_begin('Z1_loop', 16, align=False)
    kglob()
    for s in range(8):
        for qt in range(2): p(qk(0, s, qt, zero))
    p('s_nop 7\ns_nop 3')
    rowmax(0, False)
    p(f's_add_u32 s{zN}, s{zN}, 8192\ns_sub_u32 s{sT+3}, s{sT+3}, 1\ns_cmp_lg_u32 s{sT+3}, 0\ns_cbranch_scc1 Z1_loop')
    p.loop_end()
    set_negm()
    for i in range(128): p(f'v_accvgpr_write_b32 a{i}, 0')
    for i in range(4): p(f'v_mov_b32 v{vL+i}, 0')
    p(f's_mov_b32 s{zN}, s{zKV}\ns_mov_b32 s{sT+3}, 16')
    p.loop_begin('Z2_loop', 16, align=False)
    kglob()
    for j in range(8):
        if j % 4 == 0: p(f's_add_u32 m0, s{sT+2}, {1024*j}\ns_nop 0')
        p(f'buffer_load_dwordx4 v{zD + j//4}, s[{S_V}:{S_V+3}], s{zN} offen offset:{1024*(j%4)} lds')
    for s in range(8):
        for qt in range(2): p(qk(0, s, qt, negm))
    p('s_nop 7\ns_nop 3')
    for ops in softmax_ops(0):
        for o in ops: p(o)
    p('s_waitcnt vmcnt(0)')
    for f in range(8):
        for r in vread(0, f, None, base=zV, off0=0): emit(p, r)
    for f in range(8):
        for qt in range(2): p(pv(0, f, qt))
    p(f's_add_u32 s{zN}, s{zN}, 8192\ns_sub_u32 s{sT+3}, s{sT+3}, 1\ns_cmp_lg_u32 s{sT+3}, 0\ns_cbranch_scc1 Z2_loop')
    p.loop_end()
    p('s_nop 7\ns_nop 7')
    for qt in range(2):
        l = vL + 2*qt
        p(f'v_add_f32 v{l}, v{l}, v{l+1}\nv_mov_b32 v{l+1}, v{l}\ns_nop 1\nv_permlane32_swap_b32 v{l}, v{l+1}\ns_nop 1\nv_add_f32 v{l}, v{l}, v{l+1}')
    p('s_branch A_done')
    autowait(z); check(z, 'slow')
    txt = main.text()
    if cfg.jit:
        n_ = [0]
        def jit(m):
            n_[0] += 1
            if n_[0] % cfg.jit: return m.group(0)
            l = f'J{SFX if ";SPLIT" in txt[:m.start()] else ""}_{n_[0]}'
            return (f'  s_mul_i32 s98, s2, {7 + 2*n_[0]}\n  s_mul_i32 s99, s36, {13 + n_[0]}\n  s_add_u32 s98, s98, s99\n  s_getreg_b32 s99, hwreg(HW_REG_SHADER_CYCLES, 0, 8)\n'
                    if False else
                    f'  s_mov_b32 s99, scc\n' if False else '') + f'  s_cselect_b32 s97, 1, 0\n  s_mul_i32 s98, s2, {7 + 2*n_[0]}\n  s_mul_i32 s99, s36, {13 + n_[0]}\n  s_add_u32 s98, s98, s99\n  s_and_b32 s98, s98, 7\n{l}:\n  s_sleep 8\n  s_sub_u32 s98, s98, 1\n  s_cmp_ge_i32 s98, 0\n  s_cbranch_scc1 {l}\n  s_cmp_eq_u32 s97, 1\n' + m.group(0)
        import re
        txt = re.sub(r'  s_barrier', jit, txt)
    pre_, c_ = txt.split(';SPLIT')
    return pre_, c_, z.text(), sJ

def main():
    cfg = Cfg()
    cfg.ts = 1; cfg.xmap = 'b'; cfg.stag = 0; cfg.P = 4; cfg.late1 = 1; cfg.w0 = 0; cfg.cw0 = 8
    cfg.d0 = 8; cfg.dstr = 3; cfg.a0 = 0; cfg.astr = 1; cfg.ad = 3; cfg.PF = 3; cfg.cap = 2
    cfg.cad = 5; cfg.cdstr = 4; cfg.cP = 5; cfg.thr = 40; cfg.tail0 = 4; cfg.sum = 'add'; cfg.hbar = 2; cfg.t1e = 1; cfg.t0e = 0; cfg.npre = 2; cfg.btouch = 1; cfg.ltouch = 1; cfg.chain = 1; cfg.snake = 1; cfg.odl = 3; cfg.gl = 1; cfg.perm = 0; cfg.lad = 1; cfg.pw = 0; cfg.av0 = 2; cfg.av1 = 1; cfg.anv = 2; cfg.amem = 2; cfg.hoist = 1; cfg.apre = 0; cfg.jit = 0; cfg.ost = 'sc1'; cfg.pst = 'sc1'; cfg.m0 = 0; cfg.c3 = 0; cfg.xat = -1; cfg.c3l = 3; cfg.c3s = 2; cfg.wsc = ''; cfg.gsc = ''; cfg.cdel = 0; cfg.ccx = 0; cfg.xbar = 90; cfg.fs1 = 6; cfg.xe = 0; cfg.xchk = 230; cfg.xfl = 60; cfg.xt = 0; cfg.fs = 2; cfg.oes = 2; cfg.sent = 0; cfg.slp2 = 4; cfg.trk = 2; cfg.kvp = 1; cfg.trk0 = 1; cfg.pf4 = 0; cfg.pf4n = 8; cfg.pf3 = 0; cfg.aab = 0; cfg.e64 = ''; cfg.xs = 0; cfg.xl = 1; cfg.cpf2 = 2; cfg.loc = 0; cfg.fremote = 0; cfg.ox = 0; cfg.ramp = 20; cfg.lag = 3; cfg.vmc = 8; cfg.acap = 24; cfg.amax = 40; cfg.wb = 0; cfg.opad = 256; cfg.xpad = 256; cfg.hpad = 0; cfg.oe = 3; cfg.de = 3; cfg.tms = 6; cfg.fl = 128; cfg.dchk = 1.65; cfg.dbg = 0; cfg.cpf = 1; cfg.tlb = 0; cfg.osc = 'sc1'; cfg.slp = 1; cfg.late0 = 2
    for a in sys.argv[2:]:
        k, v = a.split('='); setattr(cfg, k, int(v) if v.lstrip('-').isdigit() else float(v) if v.replace('.','').isdigit() else v)
    kn = NAME + '_kernel'
    doc = """; out = x + (attn(LN(x) wq, K, V) wo) * silu((gelu(LN(x) wg) * (LN(x) wu)) wd)      bf16 in/out, fp32 accumulation
; Kernarg: 0 x, 8 k_cache, 16 v_cache, 24 wq, 32 wo, 40 (unused), 48 w_gate, 56 w_up, 64 w_down, 72 out, 80 debug, 88 workspace
;  0  LayerNorm statistics of 8 tokens -> {mean, 1/std} records and normalised rows (MFMA B-fragment order) in the workspace
"""
    hdr = (f'; opad={cfg.opad} hoff={WS_H} xpad={cfg.xpad} hpad={cfg.hpad} ooff={WS_O}\n' + doc + f'; @launch grid=(256,1,1) block=(256,1,1) lds={LDS_TOT}\n'
           '.amdgcn_target "amdgcn-amd-amdhsa--gfx950"\n')
    if cfg.fs:
        (a, c8, z, sJ), (a6, c6, _, _) = (gen(cfg, 8), gen(cfg, 6)) if cfg.fs == 1 else (gen(cfg, 7, 9), gen(cfg, 7, 7))
        assert a == a6
        body = a + f'  s_bitcmp1_b32 s{sJ}, 0\n  s_cbranch_scc1 C_short\n' + c8 + '\nC_short:\n' + c6
    else:
        a, c7, z, _ = gen(cfg, 7); body = a + c7
    s = hdr + kernel_head(kn) + body + '\nK_end:\n  s_endpgm\n' + z + '\nK_last:\n' + kernel_desc(kn, 512, 256)
    s = '\n'.join(l for l in s.split('\n') if not l.strip().startswith(('; need', '; touch'))).replace(' offset:0 ', ' ').replace(' offset:0\n', '\n').replace('\n  ', '\n ')
    open(sys.argv[1], 'w').write(s)
if __name__ == '__main__': main()
```

```python
import sys, struct, math
from dsl import *
from gen2 import (f2u, srd, kernel_head, kernel_desc, emit, interleave, spread, m0gap, fix_m0, chk_tail, Cfg)

NAME = 'recurrent_scan__sliding_block_cached__geglu_ffn__prompt'
WS_XN = 0
WS_O  = 5 << 20
WS_H  = 23 << 20
WS_G  = 36 << 20
WS_FL = 40 << 20
WS_ST = 41 << 20
WS_TS = 48 << 20
WS_P  = 64 << 20
HS = 22528; NHS = 7
LDS_SCR = NHS*HS
LDS_TOT = 163840

class TS:
    def __init__(self, on): self.on = on; self.n = 0
    def text(self, grp):
        if not self.on & grp or self.n >= 14: return None
        s = 88 + self.n; self.n += 1
        clk = 's_memtime' if self.on & 8 else 's_memrealtime'
        return f's_waitcnt lgkmcnt(0)\n{clk} s[4:5]\ns_waitcnt lgkmcnt(0)\ns_mov_b32 s{s}, s4'
    def stamp(self, p, grp=1):
        t = self.text(grp)
        if t: p(t)
    def old(self, p):
        if not self.on: return
        s = 88 + self.n; self.n += 1;
        if s >= 102: return
        p(f's_waitcnt lgkmcnt(0)\ns_memrealtime s[4:5]\ns_waitcnt lgkmcnt(0)\ns_mov_b32 s{s}, s4')
    def dump(self, p, wsptr):
        if not self.on: return
        if self.on & 16:
            p('s_load_dwordx2 s[12:13], s[0:1], 80\ns_waitcnt lgkmcnt(0)\ns_mov_b32 s14, 256\ns_mov_b32 s15, 0x20000\nv_mov_b32 v8, 0\ns_mov_b64 exec, 1')
            for i in range(min(self.n, 14)):
                p(f's_sub_u32 s4, s{88+i}, s6\nv_mov_b32 v4, s4\nbuffer_atomic_smax v4, v8, s[12:15], 0 offen offset:{8+4*i}\ns_nop 1')
            return
        srd(p, 12, wsptr, WS_TS, 1 << 20)
        p('s_lshl_b32 s3, s2, 8\ns_lshl_b32 s4, s36, 6\ns_add_u32 s3, s3, s4\nv_mov_b32 v8, s3')
        p('s_getreg_b32 s4, hwreg(HW_REG_XCC_ID, 0, 4)\nv_mov_b32 v4, s4\nbuffer_store_dword v4, v8, s[12:15], 0 offen offset:60\ns_nop 1')
        for i in range(min(self.n, 14)):
            p(f'v_mov_b32 v4, s{88+i}\nbuffer_store_dword v4, v8, s[12:15], 0 offen offset:{4*i}\ns_nop 1')

def gen(cfg, ND, NSS=8):
    SFX = f'_{ND}{NSS}'
    OST = 131072 + cfg.opad; XST = 32768 + cfg.xpad; HST = 112*1024 + cfg.hpad
    p = Prog(); ts = TS(cfg.ts)
    SC = ' sc1'; LS = '' if cfg.loc else ' sc1'
    assert cfg.xmap == 'c' or not cfg.loc
    pX, pK, pV, pWQ, pWO, pWG, pWU, pWD, pOUT, pDBG, pWS = 64, 66, 68, 70, 72, 76, 78, 80, 82, 84, 86
    S_W, S_Q, S_XN, S_H, S_K, S_V, S_O = 8, 12, 16, 20, 24, 28, 32
    S_FL, S_DB = 56, 60
    sW, sRB, sCB, sKW, sKQ, sKA, sCNT = 36, 37, 38, 39, 40, 41, 42
    sMW, sMQ, sRD, sDL, sLEFT, sLEFA, sRW, sRQ = 43, 44, 45, 46, 47, 48, 49, 3
    sT = 50
    p('K_first:\ns_cmp_ge_u32 s2, 256\ns_cbranch_scc1 K_end')
    if cfg.perm: p(f's_lshr_b32 s3, s2, 3\ns_and_b32 s3, s3, 7\ns_mul_i32 s3, s3, {cfg.perm}\ns_and_b32 s3, s3, 7\ns_xor_b32 s2, s2, s3')
    p('s_load_dwordx16 s[64:79], s[0:1], 0\ns_load_dwordx8 s[80:87], s[0:1], 64')
    p(f'v_lshrrev_b32 v2, 6, v0\nv_and_b32 v1, 63, v0\nv_readfirstlane_b32 s{sW}, v2')
    p(f's_and_b32 s{sT}, s2, 7\ns_lshr_b32 s{sT+1}, s2, 3')
    if cfg.xmap == 'c':
        p(f's_and_b32 s{sRB}, s{sT}, 1\ns_lshl_b32 s{sRB}, s{sRB}, 2\ns_and_b32 s{sT+2}, s{sT+1}, 3\ns_add_u32 s{sRB}, s{sRB}, s{sT+2}')
        p(f's_lshr_b32 s{sCB}, s{sT}, 1\ns_lshl_b32 s{sCB}, s{sCB}, 3\ns_lshr_b32 s{sT+2}, s{sT+1}, 2\ns_add_u32 s{sCB}, s{sCB}, s{sT+2}')
    else:
        p(f's_and_b32 s{sRB}, s{sT+1}, 7\ns_lshl_b32 s{sCB}, s{sT}, 2\ns_lshr_b32 s{sT+2}, s{sT+1}, 3\ns_add_u32 s{sCB}, s{sCB}, s{sT+2}')
    vAct, vDW, vDQ, vTr, vTq, vT = 4, 8, 15, 19, 20, 28
    vA, RA = 32, 8
    vB, RB = 64, 4
    def acc(t, b):
        if t < 16: c = (t*4+b)*4; return f'a[{c}:{c+3}]'
        c = 160 + ((t-16)*4+b)*4; return f'v[{c}:{c+3}]'
    def accr(t, b, r):
        if t < 16: return f'a{(t*4+b)*4+r}'
        return f'v{160+((t-16)*4+b)*4+r}'
    vLX, vLO, vLS = 128, 129, 130
    t = 132
    p(f's_lshl_b32 s{sT}, s{sRB}, 8\ns_lshl_b32 s{sT+1}, s{sCB}, 3\ns_add_u32 s{sT}, s{sT}, s{sT+1}\ns_lshl_b32 s{sT}, s{sT}, 11\ns_lshl_b32 s{sT+1}, s{sW}, 9\ns_add_u32 s{sT}, s{sT}, s{sT+1}')
    p(f'v_and_b32 v{t}, 7, v1\nv_bfe_u32 v{t+1}, v1, 3, 1\nv_lshrrev_b32 v{t+2}, 4, v1')
    p(f'v_lshlrev_b32 v{t+3}, 11, v{t}\nv_lshlrev_b32 v{t+4}, 8, v{t+1}\nv_lshlrev_b32 v{t+5}, 4, v{t+2}\nv_add3_u32 v{t+3}, v{t+3}, v{t+4}, v{t+5}\nv_add_u32 v{vLX}, s{sT}, v{t+3}')
    KW, KQ, KA, NT = 64*7168, 64*8192, 2048, 16
    sNO = 6
    vRX = 140; RAWL = 4*HS
    vSR = 139
    def late_addr():
        t = 132
        p(f's_lshl_b32 s{sT}, s{sRB}, 4\ns_lshr_b32 s{sT+1}, s{sCB}, 1\ns_add_u32 s{sT}, s{sT}, s{sT+1}\ns_mul_i32 s{sT}, s{sT}, {XST}\ns_lshl_b32 s{sT+1}, s{sW}, 13\ns_add_u32 s{sT}, s{sT}, s{sT+1}')
        p(f's_and_b32 s{sT+1}, s{sCB}, 1\ns_lshl_b32 s{sT+1}, s{sT+1}, 7\ns_add_u32 s{sT}, s{sT}, s{sT+1}')
        p(f'v_lshlrev_b32 v{t+3}, 4, v{t}\nv_lshlrev_b32 v{t+4}, 12, v{t+1}\nv_lshlrev_b32 v{t+5}, 8, v{t+2}\nv_add3_u32 v{t+4}, v{t+3}, v{t+4}, v{t+5}\nv_add_u32 v{vLO}, s{sT}, v{t+4}')
        p(f'v_add_u32 v{vLS}, {LDS_SCR}, v{t+3}\nv_lshl_add_u32 v{vLS+1}, v2, 2, v{vLS}')
        p(f's_and_b32 s{sT}, s{sW}, 1\ns_mul_i32 s{sT}, s{sT}, {32*7168}\ns_mul_i32 s{sT+1}, s{sCB}, 224\ns_add_u32 s{sT}, s{sT}, s{sT+1}')
        p(f's_mov_b32 s{sT+1}, 4682\ns_mov_b32 s{sT+2}, 7168')
        for n in range(448): assert (n*4682) >> 16 == n // 14
        t = 32
        for pc in range(7):
            p(f'v_add_u32 v{t}, {64*pc}, v1')
            p(f'v_mul_u32_u24 v{t+1}, s{sT+1}, v{t}\nv_lshrrev_b32 v{t+1}, 16, v{t+1}')
            p(f'v_mul_u32_u24 v{t+2}, 14, v{t+1}\nv_sub_u32 v{t+2}, v{t}, v{t+2}')
            p(f'v_and_b32 v{t+3}, 0x13, v{t+1}\nv_and_b32 v{t+4}, 4, v{t+1}\nv_lshl_or_b32 v{t+3}, v{t+4}, 1, v{t+3}')
            p(f'v_bfe_u32 v{t+4}, v{t+1}, 3, 1\nv_lshl_or_b32 v{t+3}, v{t+4}, 2, v{t+3}')
            p(f'v_mul_u32_u24 v{t+3}, s{sT+2}, v{t+3}\nv_lshlrev_b32 v{t+2}, 4, v{t+2}\nv_add3_u32 v{vDW+pc}, v{t+3}, v{t+2}, s{sT}')
            if pc % 4: p(f'v_subrev_u32 v{vDW+pc}, {1024*(pc%4)}, v{vDW+pc}')
        p(f's_lshl_b32 s{sT}, s{sW}, 17\ns_lshl_b32 s{sT+1}, s{sCB}, 8\ns_add_u32 s{sT}, s{sT}, s{sT+1}')
        p(f'v_lshrrev_b32 v{t}, 4, v1\nv_and_b32 v{t+1}, 15, v1\nv_lshlrev_b32 v{t+2}, 1, v{t}\nv_xor_b32 v{t+1}, v{t+1}, v{t+2}')
        p(f'v_lshlrev_b32 v{t}, 13, v{t}\nv_add_u32 v{t}, s{sT}, v{t}')
        for j in range(4):
            p(f'v_xor_b32 v{t+2}, {8*(j>>1)}, v{t+1}\nv_lshl_add_u32 v{t+2}, v{t+2}, 4, v{t}')
            p(f'v_add_u32 v{vDQ+j}, {j*(4*8192-1024)}, v{t+2}')
        p(f's_and_b32 s{sT}, s{sW}, 1\ns_lshr_b32 s{sT+1}, s{sW}, 1')
        p(f's_mul_i32 s{sMW}, s{sT}, {HS}\ns_mul_i32 s{sRW}, s{sT+1}, 7168')
        p(f's_mul_i32 s{sMQ}, s{sT+1}, {HS}\ns_lshl_b32 s{sRQ}, s{sT}, 12\ns_add_u32 s{sRQ}, s{sRQ}, 14336')
        p(f's_mov_b32 s{sKW}, 0\ns_mov_b32 s{sKQ}, 0\ns_mov_b32 s{sKA}, {2*KA}')
        p(f's_mov_b32 s{sRD}, 0')
        p(f's_lshl_b32 s{sT}, s{sRB}, 8\ns_lshl_b32 s{sT+1}, s{sW}, 6\ns_add_u32 s{sT+5}, s{sT}, s{sT+1}\ns_lshl_b32 s{sT}, s{sT+5}, 11')
        p(f'v_and_b32 v32, 15, v1\nv_lshrrev_b32 v34, 4, v1')
        for j in range(4):
            p(f'v_add_u32 v33, {4*j}, v34\nv_xor_b32 v35, v33, v32\nv_lshlrev_b32 v33, 11, v33\nv_lshl_add_u32 v33, v35, 4, v33\ns_sub_u32 s{sT+1}, s{sT}, {1024*j}\nv_add_u32 v{vRX+j}, s{sT+1}, v33')
        p(f's_lshl_b32 s{sT}, s{sT+5}, 4\nv_lshl_add_u32 v{vSR}, v32, 4, s{sT}')

    if not cfg.lad: late_addr()
    p('s_waitcnt lgkmcnt(0)')
    ts.stamp(p, 33)
    S_X0 = S_H
    srd(p, S_X0, pX, 0, 4 << 20)
    vLD = 144
    for i in range(4): p(f'buffer_load_dwordx4 v[{vLD+4*i}:{vLD+4*i+3}], v{vLX}, s[{S_X0}:{S_X0+3}], 0 offen offset:{64*i}')
    vP1, vP2, vPD = 136, 137, 138
    def code_srd(q, lbl):
        return [f's_getpc_b64 s[{q}:{q+1}]\n{lbl}:\ns_sub_u32 s{q}, s{q}, {lbl}-K_first\ns_subb_u32 s{q+1}, s{q+1}, 0', f's_mov_b32 s{q+2}, K_last-K_first', f's_mov_b32 s{q+3}, 0x20000']
    def code_pf(q, dst):
        return [f'buffer_load_dword v{dst}, v0, s[{q}:{q+3}], 0 offen ;pf']
    for x in code_srd(S_O, 'L_pc1'): p(x)
    p(f's_lshr_b32 s{sT}, s2, 3\ns_lshl_b32 s{sT}, s{sT}, 2\ns_add_u32 s{sT}, s{sT}, s{sW}\ns_lshl_b32 s{sT}, s{sT}, 10\nv_and_b32 v32, 15, v1\nv_lshl_add_u32 v0, v32, 6, s{sT}')
    for x in code_pf(S_O, vPD): p(x)
    def raw(q):
        p(f's_lshl_b32 s{sT}, s{sW}, 14\ns_add_u32 m0, s{sT}, {RAWL + 4096*q}\ns_mov_b32 s{sT}, {32768*q}')
        for j in range(4): p(f'buffer_load_dwordx4 v{vRX+j}, s[{S_X0}:{S_X0+3}], s{sT} offen offset:{1024*j} lds', ('R', 1, 0, 0))
    srd(p, S_DB, pDBG, 0, 256)
    p(f's_lshl_b32 s{sT}, s2, 2\ns_add_u32 s{sT}, s{sT}, s{sW}\ns_cmp_eq_u32 s{sT}, 1\ns_cbranch_scc0 L_no_nonce')
    p.cond(True)
    p(f's_memrealtime s[{sNO}:{sNO+1}]\nv_mov_b32 v34, 0\ns_waitcnt lgkmcnt(0)\ns_and_b32 s{sNO}, s{sNO}, 0xffffffc0\ns_or_b32 s{sNO}, s{sNO}, 1\ns_getreg_b32 s{sT}, hwreg(HW_REG_XCC_ID, 0, 1)\ns_lshl_b32 s{sT}, s{sT}, 5\ns_or_b32 s{sNO}, s{sNO}, s{sT}\nv_mov_b32 v32, s{sNO}\nv_mov_b32 v33, s{sNO+1}')
    p(f'buffer_store_dwordx2 v[32:33], v34, s[{S_DB}:{S_DB+3}], 0 offen sc1')
    p.cond(False)
    p('L_no_nonce:')
    if cfg.lad == 1: late_addr()
    p(f's_cmp_ge_u32 s{sW}, 2\ns_cselect_b32 s{S_W}, s{pWU}, s{pWG}\ns_cselect_b32 s{S_W+1}, s{pWU+1}, s{pWG+1}')
    p(f's_mov_b32 s{S_W+2}, {1024*7168:#x}\ns_mov_b32 s{S_W+3}, 0x20000')
    srd(p, S_Q, pWQ, 0, 8 << 20)
    def adv_w():
        return [f's_add_u32 s{sKW}, s{sKW}, {KW}',
                f's_add_u32 s{sMW}, s{sMW}, {2*HS}', f's_cmp_ge_u32 s{sMW}, {NHS*HS}\ns_cselect_b32 s{sT}, {NHS*HS}, 0\ns_sub_u32 s{sMW}, s{sMW}, s{sT}']
    def adv_q():
        return [f's_add_u32 s{sKQ}, s{sKQ}, {KQ}',
                f's_add_u32 s{sMQ}, s{sMQ}, {2*HS}', f's_cmp_ge_u32 s{sMQ}, {NHS*HS}\ns_cselect_b32 s{sT}, {NHS*HS}, 0\ns_sub_u32 s{sMQ}, s{sMQ}, s{sT}']
    def adv_a():
        return [f's_add_u32 s{sKA}, s{sKA}, {KA}',
                f's_cmp_eq_u32 s{sKA}, {NT*KA}\ns_cselect_b32 s{S_XN+2}, 0, s{S_XN+2}']
    sRD1, sDL1, vTr1 = 47, 48, 144
    def adv_rd(e):
        r_, d_ = (sRD, sDL) if e == 0 else (sRD1, sDL1)
        return [f's_add_u32 s{r_}, s{r_}, {2*HS}', f's_mov_b32 s{d_}, {2*HS}',
                f's_cmp_ge_u32 s{r_}, {NHS*HS}\ns_cselect_b32 s{d_}, {-(NHS-2)*HS}, s{d_}\ns_cselect_b32 s{sT}, {NHS*HS}, 0', f's_sub_u32 s{r_}, s{r_}, s{sT}']
    def dma(pc, tile, stride):
        tag = ('W', NHS, 2*tile + 1, 2*stride)
        if pc < 7: return (f'buffer_load_dwordx4 v{vDW+pc}, s[{S_W}:{S_W+3}], s{sKW} offen offset:{1024*(pc%4)} {cfg.gsc} lds', tag)
        return (f'buffer_load_dwordx4 v{vDQ+pc-7}, s[{S_Q}:{S_Q+3}], s{sKQ} offen offset:{1024*(pc-7)} {cfg.gsc} lds', tag)
    def m0set(pc):
        if pc == 0: return [f's_add_u32 m0, s{sMW}, s{sRW}']
        if pc == 4: return [f's_add_u32 m0, m0, 4096']
        if pc == 7: return [f's_add_u32 m0, s{sMQ}, s{sRQ}']
        return []
    def dma_tile(tile):
        for d in range(11):
            for x in m0set(d): p(x)
            if m0set(d): p('s_nop 0')
            emit(p, dma(d, tile, 0))
            if d == 6:
                for x in adv_w(): p(x)
            if d == 10:
                for x in adv_q(): p(x)
    if cfg.t0e & 1: dma_tile(0)
    if cfg.t0e & 2:
        for q in range(4): raw(q)
    srd(p, S_FL, pWS, WS_FL, 3328*128)
    srd(p, S_XN, pWS, WS_XN, 5 << 20)
    p(f's_lshl_b32 s{sT}, s{sRB}, 4\ns_lshl_b32 s{sT+1}, s{sW}, 2\ns_add_u32 s{sT}, s{sT}, s{sT+1}\ns_mul_i32 s{sT}, s{sT}, {XST}')
    p(f'v_lshlrev_b32 v{vT}, 4, v1\nv_add_u32 v{vAct}, s{sT}, v{vT}')
    for b in range(1, 4): p(f'v_add_u32 v{vAct+b}, {b*XST:#x}, v{vAct}')
    t = 32
    p(f'v_lshrrev_b32 v{t}, 5, v1\nv_lshlrev_b32 v{t}, 4, v{t}\nv_bfe_u32 v{t+1}, v1, 4, 1\nv_lshlrev_b32 v{t+1}, 2, v{t+1}\nv_bfe_u32 v{t+2}, v1, 2, 2')
    p(f'v_add3_u32 v{t}, v{t}, v{t+1}, v{t+2}\nv_mul_u32_u24 v{t}, 224, v{t}\nv_and_b32 v{t+3}, 3, v1\nv_lshlrev_b32 v{t+3}, 3, v{t+3}\nv_add_u32 v{vTr}, v{t}, v{t+3}')
    p(f'v_or_b32 v{t+1}, v{t+1}, v{t+2}')
    p(f'v_lshrrev_b32 v{t}, 4, v1\nv_lshlrev_b32 v{t}, 3, v{t}\nv_add_u32 v{t}, v{t}, v{t+2}\nv_lshlrev_b32 v{t}, 8, v{t}')
    p(f'v_add_u32 v{t}, 14336, v{t}\nv_add_u32 v{t}, v{t}, v{t+3}')
    for tt in range(8):
        p(f'v_xor_b32 v{t+2}, {tt}, v{t+1}\nv_lshl_add_u32 v{vTq+tt}, v{t+2}, 5, v{t}')
    if cfg.trk:
        p(f'v_lshrrev_b32 v32, 3, v1\nv_and_b32 v33, 7, v1\ns_lshl_b32 s{sT}, s{sRB}, 3\ns_add_u32 s{sT}, s{sT}, {64*cfg.trk}\nv_add_u32 v32, s{sT}, v32\nv_lshlrev_b32 v35, 6, v33')
        p(f's_mul_i32 s{sT+1}, s{sCB}, 224\ns_add_u32 s{sT+2}, s{sT+1}, {224+127}\ns_and_b32 s{sT+1}, s{sT+1}, -128\ns_and_b32 s{sT+2}, s{sT+2}, -128\ns_sub_u32 s{sT+2}, s{sT+2}, s{sT+1}')
        p(f'v_mul_u32_u24 v34, 7168, v32\nv_add3_u32 v{vP1}, v34, v35, s{sT+1}')
        p(f'v_lshlrev_b32 v34, 13, v32\ns_lshl_b32 s{sT+1}, s{sCB}, 8\nv_add3_u32 v{vP2}, v34, v35, s{sT+1}')
        p(f'v_cmp_gt_u32 vcc, s{sT+2}, v35\ns_and_b32 s{sT}, s{sW}, 1\ns_cmp_eq_u32 s{sT}, 0\ns_cselect_b64 vcc, vcc, 0\nv_mov_b32 v34, 0xf0000000\ns_nop 1\nv_cndmask_b32 v{vP1}, v34, v{vP1}, vcc')
        p(f'v_cmp_gt_u32 vcc, 4, v33\ns_cmp_eq_u32 s{sW}, 1\ns_cselect_b64 vcc, vcc, 0\ns_nop 1\nv_cndmask_b32 v{vP2}, v34, v{vP2}, vcc')
    def touch_tiles(tiles):
        p(f'v_subrev_u32 v34, {64*cfg.trk*7168}, v{vP1}\nv_subrev_u32 v35, {64*cfg.trk*8192}, v{vP2}')
        for tl in tiles:
            p(f's_mov_b32 s{sT}, {tl*KW}\ns_mov_b32 s{sT+1}, {tl*KQ}')
            p(f'buffer_load_dword v{vPD}, v34, s[{S_W}:{S_W+3}], s{sT} offen ;pf\nbuffer_load_dword v{vPD}, v35, s[{S_Q}:{S_Q+3}], s{sT+1} offen ;pf')
    if cfg.trk: touch_tiles(([] if cfg.t0e & 1 else [0]) + ([1] if cfg.t1e else []))
    ts.stamp(p, 32)
    X = 160; sM = sT + 4
    p(f's_mov_b32 s{sM}, 0xffff0000')
    p(f's_lshl_b32 s{sT}, s{sRB}, 5\ns_add_u32 s{sT+1}, s{sT}, s{sCB}\ns_lshl_b32 s{sT+1}, s{sT+1}, 7\nv_mov_b32 v45, s{sT+1}')
    p(f's_lshl_b32 s{sT+3}, s{sT+1}, 2\ns_lshl_b32 s{sT+2}, s{sW}, 7\ns_add_u32 s{sT+3}, s{sT+3}, s{sT+2}\ns_add_u32 s{sT+3}, s{sT+3}, {1280*128}\nv_mov_b32 v31, s{sT+3}')
    p(f's_lshl_b32 s{sT+2}, s{sW}, 3\ns_add_u32 s{sT}, s{sT}, s{sT+2}\ns_lshl_b32 s{sT}, s{sT}, 9\ns_add_u32 s{sT}, s{sT}, {1280*128}\nv_and_b32 v30, 31, v1\nv_lshl_add_u32 v30, v30, 7, s{sT}')
    p(f'v_lshl_add_u32 v46, v1, 4, v45\nv_cmp_gt_u32 vcc, 8, v1\nv_mov_b32 v47, -1\ns_nop 0\nv_cndmask_b32 v46, v47, v46, vcc\nv_mov_b32 v44, 0')
    for i in range(16): p(f'v_lshlrev_b32 v{X+2*i}, 16, v{vLD+i}\nv_and_b32 v{X+2*i+1}, s{sM}, v{vLD+i}')
    def red(v, tt, off):
        p(f's_nop 1\nv_add_f32_dpp v{v}, v{v}, v{v} row_ror:8 row_mask:0xf bank_mask:0xf')
        p(f'v_mov_b32 v{tt}, v{v}\ns_nop 1\nv_permlane16_swap_b32 v{v}, v{tt}\ns_nop 1\nv_add_f32 v{v}, v{v}, v{tt}')
        p(f'v_mov_b32 v{tt}, v{v}\ns_nop 1\nv_permlane32_swap_b32 v{v}, v{tt}\ns_nop 1\nv_add_f32 v{v}, v{v}, v{tt}')
        p(f'ds_write_b32 v{vLS+1}, v{v} offset:{off}\ns_waitcnt lgkmcnt(0)\ns_barrier')
        p(f'ds_read_b128 v[40:43], v{vLS} offset:{off}')
        p(f'v_add_f32 v40, v40, v41\nv_add_f32 v42, v42, v43\nv_add_f32 v{v}, v40, v42\nv_mul_f32 v{v}, {f2u(1/1024):#x}, v{v}')
    ts.stamp(p, 32)
    p(f'buffer_load_dwordx2 v[2:3], v44, s[{S_DB}:{S_DB+3}], 0 offen sc1')
    for a in range(0, 4, 2): p(f'v_pk_add_f32 v[{32+a}:{33+a}], v[{X+a}:{X+a+1}], v[{X+4+a}:{X+5+a}]')
    for i in range(8, 32, 2): p(f'v_pk_add_f32 v[{32+i%4}:{33+i%4}], v[{32+i%4}:{33+i%4}], v[{X+i}:{X+i+1}]')
    p('v_pk_add_f32 v[32:33], v[32:33], v[34:35]\nv_add_f32 v32, v32, v33')
    red(32, 33, 0)
    p('v_mov_b32 v33, v32')
    for i in range(0, 32, 2): p(f'v_pk_add_f32 v[{X+32+i}:{X+33+i}], v[{X+i}:{X+i+1}], v[32:33] neg_lo:[0,1] neg_hi:[0,1]')
    for a in range(0, 4, 2): p(f'v_pk_mul_f32 v[{36+a}:{37+a}], v[{X+32+a}:{X+33+a}], v[{X+32+a}:{X+33+a}]')
    for i in range(4, 32, 2): p(f'v_pk_fma_f32 v[{36+i%4}:{37+i%4}], v[{X+32+i}:{X+33+i}], v[{X+32+i}:{X+33+i}], v[{36+i%4}:{37+i%4}]')
    p('v_pk_add_f32 v[36:37], v[36:37], v[38:39]\nv_add_f32 v36, v36, v37')
    red(36, 37, 128)
    def rnd(v): p(f'v_cvt_pk_bf16_f32 v{v}, v{v}, v{v}\nv_lshlrev_b32 v{v}, 16, v{v}')
    rnd(32); rnd(36)
    p(f'v_add_f32 v36, {f2u(1e-5):#x}, v36'); rnd(36)
    p('v_sqrt_f32 v36, v36\ns_nop 0'); rnd(36)
    p('v_rcp_f32 v36, v36')
    S_ST = S_V
    srd(p, S_ST, pWS, WS_ST, 2048*16)
    ts.stamp(p, 32)
    p.touch('v[2:3]')
    p('L_no_retry:')
    p(f'v_readfirstlane_b32 s{sNO}, v2\nv_readfirstlane_b32 s{sNO+1}, v3\ns_nop 0\ns_cmp_lg_u32 s{sNO}, 0\ns_cbranch_scc1 L_no_ok')
    p.cond(True)
    p(f'buffer_load_dwordx2 v[2:3], v44, s[{S_DB}:{S_DB+3}], 0 offen sc1\ns_waitcnt vmcnt(0)\ns_branch L_no_retry')
    p.cond(False)
    p('L_no_ok:')
    p(f's_cmp_eq_u32 s{sW}, 1\ns_cbranch_scc0 L_st_skip')
    p.cond(True)
    p(f'v_mov_b32 v40, v32\nv_mov_b32 v41, v36\nv_mov_b32 v42, v2\nv_mov_b32 v43, v3\nbuffer_store_dwordx4 v[40:43], v46, s[{S_ST}:{S_ST+3}], 0 offen sc1')
    p.cond(False)
    p('L_st_skip:')
    ts.stamp(p, 33)
    p('v_mov_b32 v33, v32\nv_mov_b32 v37, v36')
    if not cfg.t0e & 1: dma_tile(0)
    for i in range(16):
        if i % 4 == 0 and not cfg.t0e & 2: raw(i // 4)
        a, b = X+2*i, X+2*i+1
        p(f'v_pk_add_f32 v[{a}:{b}], v[{a}:{b}], v[32:33] neg_lo:[0,1] neg_hi:[0,1]\nv_cvt_pk_bf16_f32 v{a}, v{a}, v{b}')
        p(f'v_and_b32 v{b}, s{sM}, v{a}\nv_lshlrev_b32 v{a}, 16, v{a}')
        p(f'v_pk_mul_f32 v[{a}:{b}], v[{a}:{b}], v[36:37]\nv_cvt_pk_bf16_f32 v{240+i}, v{a}, v{b}')
    RC = 224
    def rec_loads():
        for b in range(4): p(f'buffer_load_dwordx4 v[{RC+4*b}:{RC+4*b+3}], v{vSR}, s[{S_ST}:{S_ST+3}], 0 offen offset:{256*b} sc1')
    rec_loads()
    xst = [(f'buffer_store_dwordx4 v[{240+4*i}:{240+4*i+3}], v{vLO}, s[{S_XN}:{S_XN+3}], 0 offen offset:{1024*i} sc1', ('Xst', 1, 0, 0)) for i in range(4)]
    if cfg.xe:
        for x in xst: emit(p, x)
    p(f'v_and_b32 v32, 15, v1\nv_lshrrev_b32 v33, 4, v1\nv_xor_b32 v33, v33, v32\nv_lshlrev_b32 v32, 8, v32\ns_lshl_b32 s{sT}, s{sW}, 14\ns_add_u32 s{sT}, s{sT}, {RAWL}\nv_add_u32 v32, s{sT}, v32')
    for u in range(4): p(f'v_xor_b32 v34, {4*u}, v33\nv_lshl_add_u32 v{36+u}, v34, 4, v32')
    p.need(('R', 1, 0, 0))
    for u in range(4):
        for b in range(4): p(f'ds_read_b128 v[{vB+16*u+4*b}:{vB+16*u+4*b+3}], v{36+u} offset:{4096*b}')
    ts.stamp(p, 32)
    p.touch(f'v[{RC}:{RC+15}]')
    ts.stamp(p, 32)
    p('L_rec_chk:')
    p(f'v_cmp_ne_u64 vcc, s[{sNO}:{sNO+1}], v[{RC+2}:{RC+3}]')
    for b in range(1, 4): p(f'v_cmp_ne_u64 s[{sT+2}:{sT+3}], s[{sNO}:{sNO+1}], v[{RC+4*b+2}:{RC+4*b+3}]\ns_nop 0\ns_or_b64 vcc, vcc, s[{sT+2}:{sT+3}]')
    p('s_cbranch_vccz L_rec_ok')
    p.cond(True)
    rec_loads(); p('s_waitcnt vmcnt(0)\ns_branch L_rec_chk')
    p.cond(False)
    p('L_rec_ok:')
    ts.stamp(p, 33)
    srd(p, S_K, pK, 0, 2 << 20); srd(p, S_V, pV, 0, 2 << 20)
    if cfg.trk: touch_tiles(range(2, cfg.trk + 2))
    if cfg.kvp:
        p(f's_lshr_b32 s{sT}, s2, 3\ns_lshl_b32 s{sT}, s{sT}, 2\ns_add_u32 s{sT}, s{sT}, s{sW}\ns_lshl_b32 s{sT}, s{sT}, 10')
        p(f's_lshr_b32 s{sT+1}, s{sCB}, 3\ns_lshl_b32 s{sT+1}, s{sT+1}, 19\ns_add_u32 s{sT}, s{sT}, s{sT+1}\ns_add_u32 s{sT}, s{sT}, {1536*256}')
        p(f'v_and_b32 v33, 15, v1\nv_lshlrev_b32 v33, 6, v33')
        p(f'buffer_load_dword v{vPD}, v33, s[{S_K}:{S_K+3}], s{sT} offen ;pf\nbuffer_load_dword v{vPD}, v33, s[{S_V}:{S_V+3}], s{sT} offen ;pf')
    vRI = 132; vMR = [128, 130, 131, 139]
    for b in range(4): p(f'v_mov_b32 v{vRI+b}, v{RC+4*b+1}\nv_mul_f32 v{vMR[b]}, v{RC+4*b}, v{RC+4*b+1}')
    NT0 = 140
    def norm(sub):
        out = []
        for b in range(4):
            for r in range(4):
                q = vB + 16*sub + 4*b + r; t0 = NT0 + 2*((4*b + r) % 2)
                out += [f'v_lshlrev_b32 v{t0}, 16, v{q}', f'v_and_b32 v{t0+1}, s{sM}, v{q}',
                        f'v_fma_f32 v{t0}, v{t0}, v{vRI+b}, -v{vMR[b]}', f'v_fma_f32 v{t0+1}, v{t0+1}, v{vRI+b}, -v{vMR[b]}',
                        f'v_cvt_pk_bf16_f32 v{q}, v{t0}, v{t0+1}']
        return out
    ts.stamp(p, 32)
    p('s_nop 0')
    def norm_pk(sub):
        for b in range(4):
            p(f'v_mov_b32 v32, v{vRI+b}\nv_mov_b32 v33, v{vRI+b}\nv_sub_f32 v34, 0, v{vMR[b]}\nv_sub_f32 v35, 0, v{vMR[b]}')
            for r in range(4):
                q = vB + 16*sub + 4*b + r
                p(f'v_lshlrev_b32 v{36+2*r}, 16, v{q}\nv_and_b32 v{37+2*r}, s{sM}, v{q}')
            for r in range(4): p(f'v_pk_fma_f32 v[{36+2*r}:{37+2*r}], v[{36+2*r}:{37+2*r}], v[32:33], v[34:35]')
            for r in range(4): p(f'v_cvt_pk_bf16_f32 v{vB + 16*sub + 4*b + r}, v{36+2*r}, v{37+2*r}')
    for sub in range(cfg.npre): norm_pk(sub)
    ts.stamp(p, 32)
    def act(sub, b):
        r = vB + 16*(sub % RB) + 4*b
        return f'buffer_load_dwordx4 v[{r}:{r+3}], v{vAct+b}, s[{S_XN}:{S_XN+3}], s{sKA} offen offset:{1024*(sub % 2)}{SC}'
    NG = 22
    def vm_sched(step, g2):
        d = None; a = None
        if cfg.d0 <= g2 < cfg.d0 + 11*cfg.dstr and (g2 - cfg.d0) % cfg.dstr == 0: d = (g2 - cfg.d0)//cfg.dstr
        if cfg.a0 <= g2 < cfg.a0 + 8*cfg.astr and (g2 - cfg.a0) % cfg.astr == 0:
            k = (g2 - cfg.a0)//cfg.astr; a = (2*step + 2 + k // 4, k % 4)
        return d, a
    def flagchk(lbl, vaddr, vd):
        return [f'v_cmp_ne_u64 vcc, s[{sNO}:{sNO+1}], v[{vd}:{vd+1}]', 's_nop 0', 's_nop 0', f's_cbranch_vccz {lbl}_ok',
                f'{lbl}_spin: ;cond', f's_sleep {cfg.slp3} ;cond', f'buffer_load_dwordx2 v[{vd}:{vd+1}], v{vaddr}, s[{S_FL}:{S_FL+3}], 0 offen sc1 ;cond', 's_waitcnt vmcnt(0) ;cond',
                f'v_cmp_ne_u64 vcc, s[{sNO}:{sNO+1}], v[{vd}:{vd+1}] ;cond', 's_nop 1 ;cond', f's_cbranch_vccnz {lbl}_spin ;cond', f'{lbl}_ok:']
    def flag_store(lbl, va):
        return f's_cmp_eq_u32 s{sW}, 1\ns_cbranch_scc0 {lbl}\nbuffer_store_dwordx2 v[2:3], v{va}, s[{S_FL}:{S_FL+3}], 0 offen sc1 ;cond\n{lbl}:'
    def poll(lbl, vaddr, done):
        ld = lambda r: f'buffer_load_dwordx2 v[{r}:{r+1}], v{vaddr}, s[{S_FL}:{S_FL+3}], 0 offen sc1'
        if cfg.p2:
            p(f'{ld(36)}\ns_sleep {cfg.p2}\n{lbl}:\n{ld(38)}\ns_waitcnt vmcnt(1)\nv_cmp_ne_u64 vcc, s[{sNO}:{sNO+1}], v[36:37]\ns_nop 1\ns_cbranch_vccz {lbl}_x')
            p(f'{ld(36)}\ns_waitcnt vmcnt(1)\nv_cmp_ne_u64 vcc, s[{sNO}:{sNO+1}], v[38:39]\ns_nop 1\ns_cbranch_vccnz {lbl}\n{lbl}_x:')
            return
        p(f'{lbl}:')
        p(f'{ld(36)}\ns_waitcnt vmcnt(0)')
        p(f'v_cmp_ne_u64 vcc, s[{sNO}:{sNO+1}], v[36:37]\ns_nop 1\ns_cbranch_vccz {done}\ns_sleep {cfg.slp}\ns_branch {lbl}')
    vHF = 27
    srd(p, S_H, pWS, WS_H, 15 << 20)
    for q_ in range(4): p(f's_mov_b32 s{S_DB+q_}, s{S_O+q_}') if q_ < 3 else p(f's_mov_b32 s{S_DB+3}, 0x20000')
    p.need(('W', NHS, 1, 0))
    xflag = f'buffer_store_dwordx2 v[2:3], v31, s[{S_FL}:{S_FL+3}], 0 offen sc1'
    p('s_waitcnt lgkmcnt(0)\ns_barrier')
    P = cfg.P
    def trr(G, tile0, stride):
        step, g2 = divmod(G, 2*NG); t, s = divmod(g2, 2)
        r = vA + 4*(G % RA)
        tag = ('W', NHS, 2*(tile0 + step) + 1, 2*stride) if s == 1 else ('We!', 1, 0, 0)
        if t < 14: off = (t // 7)*7168 + (t % 7)*32; a = (vTr, vTr1)[s]; hh = 8*224
        else: off = 0; a = (vTq, vTr1 + 1)[s] + t - 14; hh = 1024
        return [(f'ds_read_b64_tr_b16 v[{r}:{r+1}], v{a} offset:{off}', tag),
                (f'ds_read_b64_tr_b16 v[{r+2}:{r+3}], v{a} offset:{off + hh}', tag)]
    for k in range(9): p(f'v_add_u32 v{vTr1+k}, {HS}, v{vTr+k}')
    for G in range(P):
        for f in trr(G, 0, 0): emit(p, f)
    UN = 2
    p(f's_mov_b32 s{sDL}, 0\ns_mov_b32 s{sDL1}, 0\ns_mov_b32 s{sRD1}, {HS}\ns_mov_b32 s{sCNT}, {NT//UN - 1 - cfg.gl}')
    hi = {}; lo = {}
    def H(i, x): hi.setdefault(i, []).append(x)
    def L(i, x): lo.setdefault(i, []).append(x)
    NGB = 2*NG*UN
    vDK, vDV, vK, vV = 8, 12, 13, 21
    sKV, sMK, sAD, sPF = 39, 40, 43, 44
    k1 = -2*math.sqrt(2/math.pi)*math.log2(math.e); k2 = k1*0.044715
    vC = 28; vHs = 132
    def post_g():
        t = 128
        srd(p, S_O, pWS, WS_O, 17 << 20)
        p(f'v_lshrrev_b32 v{t}, 4, v1\nv_and_b32 v{t+1}, 15, v1')
        p(f's_lshl_b32 s{sMK}, s{sW}, 12')
        p(f'v_lshlrev_b32 v{t+2}, 8, v{t}\nv_add_u32 v{t+2}, s{sMK}, v{t+2}')
        for j in range(4):
            p(f'v_add_u32 v{t+3}, {4*j}, v{t}\nv_xor_b32 v{t+3}, v{t+3}, v{t+1}\nv_lshl_add_u32 v{vDK+j}, v{t+3}, 4, v{t+2}')
        p(f'v_lshlrev_b32 v{t+3}, 2, v{t}\nv_xor_b32 v{t+3}, v{t+3}, v{t+1}\nv_lshl_add_u32 v{vDV}, v{t+3}, 4, v{t+2}')
        p(f's_lshr_b32 s{sKV}, s{sCB}, 3\ns_lshl_b32 s{sKV}, s{sKV}, 19\ns_add_u32 s{sKV}, s{sKV}, {1536*256}')
        p(f'v_mov_b32 v{vC}, {f2u(k1):#x}\nv_mov_b32 v{vC+1}, {f2u(k1):#x}\nv_mov_b32 v{vC+2}, {f2u(k2):#x}\nv_mov_b32 v{vC+3}, {f2u(k2):#x}')
        p(f's_lshl_b32 s{sT+2}, s{sRB}, 4\ns_lshl_b32 s{sT+3}, s{sW}, 2\ns_add_u32 s{sT+2}, s{sT+2}, s{sT+3}\ns_mul_i32 s{sT+2}, s{sT+2}, {HST}')
        p(f's_mul_i32 s{sT+3}, s{sCB}, 7\ns_add_u32 s{sT+3}, s{sT+3}, 1\ns_lshr_b32 s{sT+3}, s{sT+3}, 1\ns_lshl_b32 s{sT+3}, s{sT+3}, 10')
        p(f's_add_u32 s{sT+2}, s{sT+2}, s{sT+3}')
        p(f'v_lshlrev_b32 v{t}, 4, v1\nv_add_u32 v{vAct}, s{sT+2}, v{t}')
        for b in range(1, 4): p(f'v_add_u32 v{vAct+b}, {b*HST:#x}, v{vAct}')
        p(f's_and_b32 s{sT+3}, s{sCB}, 1\ns_mul_i32 s{sT+4}, s{sT+3}, {-1016-3072}\ns_add_u32 s{sT+4}, s{sT+4}, 3072')
        for b in range(4): p(f'v_add_u32 v{vHs+b}, s{sT+4}, v{vAct+b}')
    def collect(fn):
        nonlocal p
        w = Prog(); q = p; p = w; fn(); p = q
        out = []
        for it in w.items:
            if it.op == 's_addc_u32': out[-1] = (out[-1][0] + '\n' + it.text, None)
            else: out.append((it.text, it.tag))
        return out
    def g_body(first, last=False):
        hi.clear(); lo.clear(); mf = []
        t0_, st_ = (0, 0) if first else (NT - UN, 0) if last else (UN, UN)
        if first:
            if not cfg.xe:
                for k, x in enumerate(xst): L(2 + cfg.fs1*2*k, x)
            H(cfg.xbar, lambda p: (p.need(('Xst', 1, 0, 0)), p(xflag)))
            for d in range(11):
                g_ = 2 + cfg.fs1*(2*d + 1 if d < 4 else d + 4)
                for x in m0set(d): L(g_, x)
                if m0set(d): L(g_, m0gap)
                L(g_, dma(d, 1, 0))
                if d == 6:
                    for x in adv_w(): L(g_, x)
                if d == 10:
                    for x in adv_q(): L(g_, x)
        seen = set()
        for G in range(NGB):
            step, g2 = divmod(G, 2*NG)
            if G % 2 == 0:
                t = g2 // 2
                for k, b in enumerate(range(3, -1, -1) if t % 2 else range(4)):
                    for s in (k % 2, 1 - k % 2):
                        ra = vA + 4*((G + s) % RA); rb = vB + 16*((2*step + s) % RB) + 4*b
                        new_ = first and (t, b) not in seen; seen.add((t, b))
                        mf.append(f'v_mfma_f32_16x16x32_bf16 {acc(t,b)}, v[{ra}:{ra+3}], v[{rb}:{rb+3}], {"0" if new_ else acc(t,b)}')
            i0 = 4*G; Gn = G + P; fn = Gn % (2*NG)
            if cfg.ltouch and G % 2 == 1 and not (last and G + 2 >= NGB): H(i0+3, lambda p, r=vA + 4*((G + 2) % RA): p.touch(f'v[{r}:{r+3}]'))
            if last and Gn >= NGB: continue
            if fn == 0:
                stepn = Gn // (2*NG)
                def bar_(p, stepn=stepn):
                    p.need(('W', NHS, 2*(t0_ + stepn) + 1, 2*st_))
                    if cfg.btouch: p.touch(f'v[{vB + 32*(stepn % 2)}:{vB + 32*(stepn % 2) + 31}]')
                    p.needrd(('We!', 1, 0, 0))
                    p('s_barrier')
                H(i0-1, bar_)
            Gr = Gn + (1 if fn == 41 else -1 if fn == 42 else 0)
            r0, r1 = trr(Gr % NGB, t0_ + (Gr // NGB)*UN, st_)
            H(i0, r0); H(i0+1, r1)
            if 2 <= fn <= 9: L(i0, f'v_add_u32 v{vTq+fn-2}, s{sDL}, v{vTq+fn-2}')
            if 10 <= fn <= 17: L(i0, f'v_add_u32 v{vTr1+1+fn-10}, s{sDL1}, v{vTr1+1+fn-10}')
            if fn in (18, 20):
                for x in adv_rd((fn - 18)//2): L(i0, x)
            if fn == 29: H(i0+2, f'v_add_u32 v{vTr}, s{sDL}, v{vTr}')
            if fn == 30: H(i0+2, f'v_add_u32 v{vTr1}, s{sDL1}, v{vTr1}')
            pc, a = vm_sched(step, g2)
            if last: pc = None
            if a is not None and not (first and a[0] < 4) and not (last and a[0] >= 4):
                g_ = max(i0, cfg.xchk + 4 + 8*(4*(a[0] - 4) + a[1])) if first else i0
                assert g_ < 320 or not first
                L(g_, act(*a))
                if a[1] == 3 and a[0] % 2 == 1:
                    for x in adv_a(): L(g_, x)
            if pc is not None:
                g_ = max(i0, 2 + cfg.fs1*(15 + pc)) if first and step == 0 else i0
                if cfg.trk and pc == 0:
                    L(g_, f'buffer_load_dword v{vPD}, v{vP1}, s[{S_W}:{S_W+3}], s{sKW} offen ;pf')
                    L(g_, f'buffer_load_dword v{vPD}, v{vP2}, s[{S_Q}:{S_Q+3}], s{sKQ} offen ;pf')
                for x in m0set(pc): L(g_, x)
                if m0set(pc): L(g_, m0gap)
                L(g_, dma(pc, t0_ + step + 2, st_))
                if pc == 6:
                    for x in adv_w(): L(g_, x)
                if pc == 10:
                    for x in adv_q(): L(g_, x)
        for x in code_pf(S_DB, vPD): L(4*(cfg.d0 + 10*cfg.dstr) + 1, x)
        if first:
            H(cfg.xchk - cfg.xfl, f'buffer_load_dwordx2 v[28:29], v30, s[{S_FL}:{S_FL+3}], 0 offen sc1')
            H(cfg.xchk, '\n'.join(flagchk('L_x', 30, 28)))
        elif last:
            assert 4*(cfg.a0 + 7*cfg.astr) < 4*(22 - P) + 4
            for x in collect(post_g): L(4*(22 - P) + 4, x)
            H(len(mf)-6, 's_waitcnt lgkmcnt(0)\ns_barrier')
        else:
            H(len(mf)-3, f's_sub_u32 s{sCNT}, s{sCNT}, 1'); H(len(mf)-2, f's_cmp_lg_u32 s{sCNT}, 0')
            H(len(mf)-1, 's_cbranch_scc1 G_loop')
        lo_ = {k: lo[k] for k in sorted(lo)}
        fill = spread(hi, lo_, len(mf), cfg.cap, 60 if first else 200 if last else 16, cost=lambda i: 1 if i % 8 == 7 else 2 if i == -1 else 0)
        fix_m0(fill, len(mf))
        if first:
            nn = 4 - cfg.npre
            for k, sub in enumerate(range(cfg.npre, 4)):
                g0, g1 = 172*k//nn, 172*(k + 1)//nn
                q_ = norm(sub); per = len(q_)/(g1 - g0); due = 0.0; done = 0
                for i in range(g0, g1):
                    due += per; used = len(fill[i]) + (1 if i % 4 == 3 else 0)
                    while q_ and done < due + 2 and (used < cfg.cap or done < due - cfg.lag):
                        fill[i].append(q_.pop(0)); used += 1; done += 1
                fill[g1 - 1] += q_
        elif not last: chk_tail(fill, len(mf))
        if first:
            for i in (43, 87, 131, 175, 219, 263, 307):
                t_ = ts.text(64)
                if t_: fill[i].append(t_)
        interleave(p, mf, fill)
    ts.stamp(p, 97)
    g_body(True)
    if cfg.xt: p.touch(f'v[{vB}:{vB+16*cfg.xt-1}]')
    ts.stamp(p, 96)
    p.loop_begin('G_loop', NT//UN - 1 - cfg.gl)
    g_body(False)
    p.loop_end()
    if cfg.gl: g_body(False, True); p('s_nop 3')
    else:
        p('s_waitcnt vmcnt(0) lgkmcnt(0)\ns_barrier'); post_g()
    ts.stamp(p, 5)

    def kdma(j, soff, tag): return (f'buffer_load_dwordx4 v{vDK+j}, s[{S_K}:{S_K+3}], s{soff} offen offset:{1024*j} lds', tag)
    def vdma(j, soff, tag): return (f'buffer_load_dwordx4 v{vDV}, s[{S_V}:{S_V+3}], s{soff} offen offset:{1024*j} lds', tag)
    kvq = []
    for (kind, tl) in (('K', 0), ('K', 1), ('V', 0), ('K', 2), ('V', 1)):
        g = [f's_add_u32 s{sT+5}, s{sKV}, {tl*16384}', f's_add_u32 m0, s{sMK}, {tl*16384 + (65536 if kind == "V" else 0)}', 's_nop 0']
        for j in range(4):
            kvq.append(g + [(kdma if kind == 'K' else vdma)(j, sT+5, (kind, 4, tl, 0))]); g = []
    p(f's_bitcmp0_b32 s{sCB}, 0')
    def gelu_tiles(tiles):
        n = len(tiles)
        Xs = [32 + 12*i for i in range(n)]
        pk = lambda r: f'v[{r}:{r+1}]'
        for (t, b, d), X in zip(tiles, Xs):
            for r in range(4): p(f'v_accvgpr_read_b32 v{X+r}, {accr(t,b,r)}')
        for X in Xs:
            for r in (0, 2): p(f'v_pk_mul_f32 {pk(X+8+r)}, {pk(X+r)}, {pk(X+r)}')
        for X in Xs:
            for r in (0, 2): p(f'v_pk_fma_f32 {pk(X+8+r)}, {pk(X+8+r)}, {pk(vC+2)}, {pk(vC)}')
        for X in Xs:
            for r in (0, 2): p(f'v_pk_mul_f32 {pk(X+8+r)}, {pk(X+8+r)}, {pk(X+r)}')
        for (t, b, d), X in zip(tiles, Xs):
            for r in range(4): p(f'v_exp_f32 v{X+8+r}, v{X+8+r}')
            for r in range(4): p(f'v_accvgpr_read_b32 v{X+4+r}, {accr(t+7,b,r)}')
        for X in Xs:
            for r in (0, 2): p(f'v_pk_add_f32 {pk(X+8+r)}, {pk(X+8+r)}, 1.0 op_sel_hi:[1,0]')
        for X in Xs:
            for r in range(4): p(f'v_rcp_f32 v{X+8+r}, v{X+8+r}')
            for r in (0, 2): p(f'v_pk_mul_f32 {pk(X+4+r)}, {pk(X+4+r)}, {pk(X+r)}')
        for X in Xs:
            for r in (0, 2): p(f'v_pk_mul_f32 {pk(X+4+r)}, {pk(X+4+r)}, {pk(X+8+r)}')
        for (t, b, d), X in zip(tiles, Xs):
            p(f'v_cvt_pk_bf16_f32 v{d}, v{X+4}, v{X+5}\nv_cvt_pk_bf16_f32 v{d+1}, v{X+6}, v{X+7}')
    for par in range(2):
        if par == 0: p('s_cbranch_scc0 B_epi_odd')
        else: p.cond(True); p('B_epi_odd:')
        n = 0; kq = list(kvq)
        for b in range(4):
            for pr in range(3):
                d = 64 + 4*(n % 8); n += 1
                for _ in range(2):
                    if kq:
                        for x in kq.pop(0): emit(p, x)
                gelu_tiles([(2*pr + par, b, d), (2*pr + 1 + par, b, d + 2)])
                p(f'buffer_store_dwordx4 v[{d}:{d+3}], v{vAct+b}, s[{S_H}:{S_H+3}], 0 offen offset:{1024*pr}{LS}', ('Hst', 1, 0, 0))
        for b in range(0, 4, 2):
            d = 64 + 4*(n % 8); n += 1
            gelu_tiles([(6 if par == 0 else 0, b, d), (6 if par == 0 else 0, b+1, d+2)])
            p(f'buffer_store_dwordx2 v[{d}:{d+1}], v{vHs+b}, s[{S_H}:{S_H+3}], 0 offen{LS}', ('Hst', 1, 0, 0))
            p(f'buffer_store_dwordx2 v[{d+2}:{d+3}], v{vHs+b+1}, s[{S_H}:{S_H+3}], 0 offen{LS}', ('Hst', 1, 0, 0))
        if par == 0: p('s_branch B_epi_done')
    p.cond(False)
    p('B_epi_done:')
    ts.stamp(p, 5)
    vQ = 64
    qs = math.log2(math.e)/math.sqrt(128)
    def qconv(qt, s):
        d = vQ + (qt*8+s)*4
        for half in range(2):
            b = 2*qt + half; x = 32 + 4*half
            src = accr(14+s, b, 0)
            if src[0] == 'a':
                for r in range(4): p(f'v_accvgpr_read_b32 v{x+r}, {accr(14+s, b, r)}')
                s0 = x
            else: s0 = int(src[1:])
            for r in (0, 2): p(f'v_pk_mul_f32 v[{x+r}:{x+r+1}], v[{s0+r}:{s0+r+1}], v[{vC}:{vC+1}]')
            p(f'v_cvt_pk_bf16_f32 v{d+2*half}, v{x}, v{x+1}\nv_cvt_pk_bf16_f32 v{d+2*half+1}, v{x+2}, v{x+3}')
    def qswap(qt, s):
        d = vQ + (qt*8+s)*4
        p(f'v_permlane16_swap_b32 v{d}, v{d+2}\nv_permlane16_swap_b32 v{d+1}, v{d+3}')
    t = 32
    p(f'v_and_b32 v{t}, 31, v1\nv_lshrrev_b32 v{t+1}, 5, v1\nv_and_b32 v{t+2}, 15, v1\nv_xor_b32 v{t+1}, v{t+1}, v{t+2}\nv_lshlrev_b32 v{t}, 8, v{t}')
    for s in range(8):
        p(f'v_xor_b32 v{t+2}, {2*s}, v{t+1}\nv_lshl_add_u32 v{vK+s}, v{t+2}, 4, v{t}')
    p(f'v_mov_b32 v{vC}, {f2u(qs):#x}\nv_mov_b32 v{vC+1}, {f2u(qs):#x}')
    vS = [128, 160]; vP = [192, 208]; vN = 224; vL = 28
    aF = 192
    def Sreg(n, qt): return vS[n % 2] + 16*qt
    def Preg(n, qt, ks): return vP[n % 2] + 8*qt + 4*ks
    def kread(n, s, tag):
        r = aF + 4*s
        return [(f'ds_read_b128 a[{r}:{r+3}], v{vK+s} offset:{(n % 8)*8192}', ('K', 4, n//2, 0))]
    def vread(n, f, tag, base=None, off0=None):
        ks, dt = divmod(f, 4); r = aF + 32 + 4*f
        off = (32*(n % 8) + 16*ks)*256 if off0 is None else off0 + 16*ks*256
        b = vV if base is None else base
        return [(f'ds_read_b64_tr_b16 a[{r}:{r+1}], v{b+dt} offset:{off}', tag),
                (f'ds_read_b64_tr_b16 a[{r+2}:{r+3}], v{b+dt} offset:{off+2048}', tag)]
    def qk(n, s, qt, c0):
        S = Sreg(n, qt); c = f'v[{S}:{S+15}]' if s else c0(qt)
        return f'v_mfma_f32_32x32x16_bf16 v[{S}:{S+15}], a[{aF+4*s}:{aF+4*s+3}], v[{vQ+(qt*8+s)*4}:{vQ+(qt*8+s)*4+3}], {c}'
    def pv(n, f, qt, first=False):
        ks, dt = divmod(f, 4); o = (dt*2+qt)*16; P_ = Preg(n, qt, ks)
        c = '0' if first and ks == 0 else f'a[{o}:{o+15}]'
        return f'v_mfma_f32_32x32x16_bf16 a[{o}:{o+15}], a[{aF+32+4*f}:{aF+32+4*f+3}], v[{P_}:{P_+3}], {c}'
    negm = lambda qt: f'v[{vN+16*qt}:{vN+16*qt+15}]'
    zero = lambda qt: '0'
    def softmax_ops(n):
        sl = [[] for _ in range(33)]
        for e in range(32):
            qt, i = divmod(e, 16); S = Sreg(n, qt); Pr = Preg(n, qt, i>>3)+((i&7)>>1)
            sl[e].insert(0, f'v_exp_f32 v{S+i}, v{S+i}')
            if cfg.sum == 'add': sl[e+1].append(f'v_add_f32 v{vL+2*qt+(i&1)}, v{vL+2*qt+(i&1)}, v{S+i}')
            if i & 1:
                if e == 31 and cfg.sum != 'add': sl[e+1].append('s_nop 0')
                sl[e+1].append(f'v_cvt_pk_bf16_f32 v{Pr}, v{S+i-1}, v{S+i}')
                k = min(32, e+2)
                if cfg.sum == 'pk': sl[k].append(f'v_pk_add_f32 v[{vL+2*qt}:{vL+2*qt+1}], v[{vL+2*qt}:{vL+2*qt+1}], v[{S+i-1}:{S+i}]')
                if cfg.sum == 'dot': sl[k].append(f'v_dot2_f32_bf16 v{vL+2*qt+((i>>1)&1)}, v{Pr}, v39, v{vL+2*qt+((i>>1)&1)}')
        return sl
    if cfg.sum == 'dot': p('v_mov_b32 v39, 0x3f803f80')
    p.need(('K', 4, 0, 0)); p('s_barrier')
    for s in range(8): emit(p, kread(0, s, None)[0])
    ts.stamp(p, 5)
    qconv(0, 0); qconv(1, 0)
    for s in range(8):
        if s < 7: qconv(0, s+1)
        qswap(0, s); qswap(1, s)
        if s < 7: qconv(1, s+1)
        else: p('s_nop 1')
        for qt in range(2): p(qk(0, s, qt, zero))
        emit(p, kread(1, s, None)[0])
    t = 36
    p(f'v_lshrrev_b32 v{t}, 5, v1\nv_lshlrev_b32 v{t}, 2, v{t}\nv_bfe_u32 v{t+1}, v1, 2, 2\nv_add_u32 v{t}, v{t}, v{t+1}\nv_lshlrev_b32 v{t}, 8, v{t}')
    p(f'v_bfe_u32 v{t+2}, v1, 4, 1\nv_lshlrev_b32 v{t+2}, 5, v{t+2}\nv_and_b32 v{t+3}, 3, v1\nv_lshlrev_b32 v{t+3}, 3, v{t+3}\nv_add3_u32 v{t}, v{t}, v{t+2}, v{t+3}')
    p(f'v_add_u32 v{t}, 0x10000, v{t}')
    for dt in range(4):
        p(f'v_xor_b32 v{t+2}, {dt}, v{t+1}\nv_lshl_add_u32 v{vV+dt}, v{t+2}, 6, v{t}')
    for i in range(4): p(f'v_mov_b32 v{vL+i}, 0')
    def rowmax(n, first):
        for qt in range(2):
            S = Sreg(n, qt); m = 32 + 2*qt
            if first: p(f'v_max3_f32 v{m}, v{S}, v{S+1}, v{S+2}')
            else: p(f'v_max3_f32 v{m}, v{m}, v{S+1}, v{S+2}\nv_max_f32 v{m}, v{m}, v{S}')
            for i in range(3, 15, 2): p(f'v_max3_f32 v{m}, v{m}, v{S+i}, v{S+i+1}')
            p(f'v_max_f32 v{m}, v{m}, v{S+15}')
    def set_negm():
        p('v_mov_b32 v33, v32\nv_mov_b32 v35, v34\ns_nop 0\nv_permlane32_swap_b32 v32, v33\nv_permlane32_swap_b32 v34, v35\ns_nop 0')
        for qt in range(2):
            m = 32 + 2*qt
            p(f'v_max_f32 v{m}, v{m}, v{m+1}\nv_sub_f32 v{vN+16*qt}, 0, v{m}\nv_mov_b32 v{vN+16*qt+1}, v{vN+16*qt}')
            for i in range(2, 16, 2): p(f'v_pk_mul_f32 v[{vN+16*qt+i}:{vN+16*qt+i+1}], v[{vN+16*qt}:{vN+16*qt+1}], 1.0 op_sel_hi:[1,0]')
    ts.stamp(p, 4)
    c0 = zero
    if not cfg.m0:
        c0 = negm
        rowmax(0, True); set_negm()
        for qt in range(2):
            S = Sreg(0, qt)
            for i in range(0, 16, 2): p(f'v_pk_add_f32 v[{S+i}:{S+i+1}], v[{S+i}:{S+i+1}], v[{vN+16*qt}:{vN+16*qt+1}]')
    ts.stamp(p, 4)
    S_WD, S_WO, S_AH, S_AO, S_X, S_OUT, S_P = 12, 8, 16, 20, 24, 28, 60
    sJ, sRC, sCC = 70, 71, 76
    kWD, kWO, kAH, kAO, cMW, cTG = 77, 75, 78, 42, 79, 49
    dD, dO, aH, aO, cTr, cA, cC = 40, 8, 48, 4, 52, 64, 128
    vFH = 60
    SLOT = 32768
    k_h = lambda pc: 4*pc
    k_o = lambda pc: 4*((pc & 1) | ((pc & 2) << 1) | ((pc & 4) >> 1))
    sDE = 85
    def x_dma_addr(dst, kmap):
        t = 36
        p(f's_lshl_b32 s{sT+2}, s{sW}, 16\ns_lshl_b32 s{sT+3}, s{sCC}, 8\ns_add_u32 s{sT+2}, s{sT+2}, s{sT+3}')
        p(f'v_lshrrev_b32 v{t}, 4, v1\nv_and_b32 v{t+1}, 15, v1\nv_lshlrev_b32 v{t+2}, 1, v{t}\nv_xor_b32 v{t+1}, v{t+1}, v{t+2}')
        p(f'v_lshlrev_b32 v{t}, 11, v{t}\nv_add_u32 v{t}, s{sT+2}, v{t}')
        for e in range(2):
            p(f'v_xor_b32 v{t+2}, {8*e}, v{t+1}\nv_lshl_add_u32 v{dst+e}, v{t+2}, 4, v{t}')
            if cfg.cdel: p(f'v_lshrrev_b32 v{t+2}, 3, v{t+2}\nv_mad_i32_i24 v{dst+e}, v{t+2}, s{sDE}, v{dst+e}')
        for pc in range(7, -1, -1):
            o = (kmap(pc) << 11) - 1024*(pc % 4)
            if o or pc > 1: p(f'v_add_u32 v{dst+pc}, {o}, v{dst + (pc & 1)}')
    NS = ND + NSS; kind = lambda sg: 'd' if sg < ND else 's'
    def cdma(pc, sg):
        D_, S_, K_ = (dD, S_WD, kWD) if kind(sg) == 'd' else (dO, S_WO, kWO)
        g = []
        if pc % 4 == 0: g += [f's_add_u32 m0, s{cMW}, {(sg % 4)*SLOT + 1024*pc}', m0gap]
        g.append((f'buffer_load_dwordx4 v{D_+pc}, s[{S_}:{S_+3}], s{K_} offen offset:{1024*(pc%4)} {cfg.wsc} lds', ('C', 4, sg, 0)))
        if pc == 7: g.append(f's_add_u32 s{K_}, s{K_}, {128*2048}')
        return g
    def cact(sub, b):
        A_, S_, K_ = (aH, S_AH, kAH) if kind(sub // 4) == 'd' else (aO, S_AO, kAO)
        r = 128 + 16*(sub % 8) + 4*b
        g = [f'buffer_load_dwordx4 a[{r}:{r+3}], v{A_+b}, s[{S_}:{S_+3}], s{K_} offen offset:{1024*(sub % 4)}{SC}']
        if b == 3 and sub % 4 == 3: g.append(f's_add_u32 s{K_}, s{K_}, 4096')
        return g
    PF = cfg.PF; vPF = 25; sDM = 55; sPF = 44
    pairs = []; sm = []; start = {}
    for n in range(17):
        st = len(pairs); start[n] = st
        if n <= 14:
            for s_ in range(8): pairs.append((qk(n+1, s_, 0, c0), qk(n+1, s_, 1, c0), kread(n+1, s_, None) if n else []))
        if n >= 1:
            for f in range(8): pairs.append((pv(n-1, f, (f & 1)*cfg.snake, n == 1), pv(n-1, f, 1 - (f & 1)*cfg.snake, n == 1), vread(n-1, f, ('V', 4, (n-1)//2, 0))))
        if n <= 15: sm.append((st, len(pairs), softmax_ops(n)))
    mf = []; hi.clear(); lo.clear()
    for a_, b_, _ in pairs: mf += [a_, b_]
    n_ = len(mf)
    bargap = {}
    for j in range(8):
        g = 2*(start[2*j+1] - PF) - 1; bargap[j] = g
        def bar_(p, j=j):
            if j < 7: p.need(('K', 4, j+1, 0))
            p.need(('V', 4, j, 0))
            if j == cfg.hbar: p.need(('Hst', 1, 0, 0))
            p('s_barrier')
        H(g, bar_)
    for i in range(len(pairs) - PF):
        for k, r in enumerate(pairs[i + PF][2]): H(2*i + k, r)
    for (st, en, sl) in sm:
        ng = 2*(en - st)
        for e, ops in enumerate(sl):
            for o in ops: H(2*st + min(ng - 1, e*ng//32), o)
    def act_addr(dst, stride, tmp):
        p(f's_and_b32 s{sT+3}, s{sJ}, 1\ns_mul_i32 s{sT+3}, s{sT+3}, {2*stride}\nv_lshlrev_b32 v{tmp}, 4, v1\nv_add_u32 v{dst+2}, s{sT+2}, v{tmp}')
        p(f'v_add_u32 v{dst}, s{sT+3}, v{dst+2}\nv_add_u32 v{dst+1}, {stride}, v{dst}\ns_sub_u32 s{sT+3}, {2*stride}, s{sT+3}\nv_add_u32 v{dst+2}, s{sT+3}, v{dst+2}\nv_add_u32 v{dst+3}, {stride}, v{dst+2}')
    def out_addr(dst):
        p(f's_lshl_b32 s{sT+2}, s{sRC}, 8\ns_lshl_b32 s{sT+3}, s{sW}, 6\ns_add_u32 s{sT+2}, s{sT+2}, s{sT+3}\ns_and_b32 s{sT+3}, s{sJ}, 1\ns_lshl_b32 s{sT+3}, s{sT+3}, 5\ns_add_u32 s{sT+2}, s{sT+2}, s{sT+3}\ns_lshl_b32 s{sT+2}, s{sT+2}, 11')
        p(f's_lshl_b32 s{sT+3}, s{sCC}, 8\ns_add_u32 s{sT+2}, s{sT+2}, s{sT+3}\ns_lshr_b32 s{sT+3}, s{sJ}, 1\ns_lshl_b32 s{sT+3}, s{sT+3}, 7\ns_add_u32 s{sT+2}, s{sT+2}, s{sT+3}')
        t = 36
        p(f'v_and_b32 v{t}, 7, v1\nv_lshlrev_b32 v{t}, 11, v{t}\nv_bfe_u32 v{t+1}, v1, 3, 1\nv_lshl_add_u32 v{t}, v{t+1}, 6, v{t}\nv_bfe_u32 v{t+1}, v1, 4, 1\nv_lshl_add_u32 v{t}, v{t+1}, 5, v{t}')
        p(f'v_lshrrev_b32 v{t+1}, 5, v1\nv_lshl_add_u32 v{t}, v{t+1}, 4, v{t}\nv_add_u32 v{dst}, s{sT+2}, v{t}')
    XL = 0x20000 + 4096
    def x_stage():
        out_addr(39)
        srd(p, S_H, pX, 0, 4 << 20)
        for b in range(4):
            p(f's_add_u32 m0, s{sDM}, {4096 + 1024*b}\ns_mov_b32 s{sT+2}, {b*0x4000}')
            p(f'buffer_load_dwordx4 v39, s[{S_H}:{S_H+3}], s{sT+2} offen lds')
    def setup1():
        p(f's_lshl_b32 s{sT}, s2, 2\ns_add_u32 s{sT}, s{sT}, s{sW}\ns_lshl_b32 s{sT+1}, s{sT}, 13\ns_mul_i32 s{sT}, s{sT}, 7168')
        p(f'v_lshlrev_b32 v{vPF}, 4, v1\nv_add_u32 v{vPF+1}, s{sT}, v{vPF}\nv_add_u32 v{vPF}, s{sT+1}, v{vPF}')
        srd(p, S_WO, pWO, 0, 8 << 20); srd(p, S_WD, pWD, 0, 7 << 20)
        p(f's_lshl_b32 s{sDM}, s{sMK}, 1\ns_add_u32 s{sDM}, s{sDM}, 0x20000\ns_mov_b32 s{sPF}, 0')
        p(f's_lshl_b32 s{sT}, s{sRB}, 12\ns_lshl_b32 s{sT+1}, s{sCB}, 7\ns_add_u32 s{sT}, s{sT}, s{sT+1}\ns_add_u32 s{sT}, s{sT}, {256*128}\nv_mov_b32 v{vHF}, s{sT}')
    def setup2():
        if cfg.fs:
            p(f's_lshr_b32 s{sT}, s{sNO}, 5\ns_xor_b32 s{sT}, s{sT}, s2\ns_and_b32 s{sT}, s{sT}, 1\ns_and_b32 s{sJ}, s2, 2\ns_or_b32 s{sJ}, s{sJ}, s{sT}')
            p(f's_and_b32 s{sRC}, s2, 4\ns_bfe_u32 s{sT+1}, s2, 0x20003\ns_add_u32 s{sRC}, s{sRC}, s{sT+1}\ns_lshr_b32 s{sCC}, s2, 5\ns_xor_b32 s{sCC}, s{sCC}, {cfg.ccx}')
            if cfg.fs == 1:
                p(f's_lshr_b32 s{sT+1}, s{sJ}, 1\ns_mul_i32 s{kAH}, s{sT+1}, 14\ns_lshl_b32 s{sT+2}, s{sT}, 3\ns_add_u32 s{kAH}, s{kAH}, s{sT+2}')
                p(f's_lshl_b32 s{sT+1}, s{sT+1}, 4\ns_mul_i32 s{sT+2}, s{sT}, 9\ns_add_u32 s{sT+1}, s{sT+1}, s{sT+2}\ns_mul_i32 s{sT}, s{sT}, 3\ns_sub_u32 s{sT}, 9, s{sT}')
                p(f'v_and_b32 v{vFH}, 15, v1\nv_min_u32 v{vFH}, s{sT}, v{vFH}\ns_lshl_b32 s{sT}, s{sRC}, 5\ns_add_u32 s{sT}, s{sT}, s{sT+1}\ns_add_u32 s{sT}, s{sT}, 256\ns_lshl_b32 s{sT}, s{sT}, 7')
                p(f'v_lshl_add_u32 v{vFH}, v{vFH}, 7, s{sT}')
                p(f's_lshl_b32 s{kWD}, s{kAH}, 18\ns_lshl_b32 s{kAH}, s{kAH}, 12')
            else:
                p(f's_lshl_b32 s{sT}, s{sRC}, 5\ns_lshl_b32 s{sT+1}, s{sJ}, 3\ns_add_u32 s{sT}, s{sT}, s{sT+1}\ns_add_u32 s{sT}, s{sT}, 256\ns_lshl_b32 s{sT}, s{sT}, 7')
                p(f'v_and_b32 v{vFH}, 7, v1\nv_lshl_add_u32 v{vFH}, v{vFH}, 7, s{sT}')
                p(f's_mul_i32 s{kWD}, s{sJ}, {896*2048}\ns_mul_i32 s{kAH}, s{sJ}, {28*1024}')
        else:
            p(f's_bfe_u32 s{sJ}, s2, 0x20001\ns_and_b32 s{sRC}, s2, 1\ns_lshl_b32 s{sRC}, s{sRC}, 2\ns_bfe_u32 s{sT}, s2, 0x20003\ns_add_u32 s{sRC}, s{sRC}, s{sT}\ns_lshr_b32 s{sCC}, s2, 5')
            p(f's_lshl_b32 s{sT}, s{sRC}, 5\ns_lshl_b32 s{sT+1}, s{sJ}, 3\ns_add_u32 s{sT}, s{sT}, s{sT+1}\ns_add_u32 s{sT}, s{sT}, 256\ns_lshl_b32 s{sT}, s{sT}, 7')
            p(f'v_and_b32 v{vFH}, 7, v1\nv_lshl_add_u32 v{vFH}, v{vFH}, 7, s{sT}')
            p(f's_mul_i32 s{kWD}, s{sJ}, {896*2048}\ns_mul_i32 s{kAH}, s{sJ}, {28*1024}')
        p(f's_lshl_b32 s{sT}, s{sCC}, 8\ns_add_u32 s{sT}, s{sT}, 128\ns_add_u32 s{sDE}, s{sT}, {cfg.cdel}\ns_and_b32 s{sDE}, s{sDE}, 2047\ns_sub_u32 s{sDE}, s{sDE}, s{sT}')
        x_dma_addr(dD, k_h)
        p(f's_lshl_b32 s{cMW}, s{sW}, 13')
        srd(p, S_AH, pWS, WS_H, 15 << 20)
        p(f's_lshl_b32 s{sT}, s{sRC}, 4\ns_lshl_b32 s{sT+2}, s{sW}, 2\ns_add_u32 s{sT}, s{sT}, s{sT+2}\ns_mul_i32 s{sT+2}, s{sT}, {HST}')
        act_addr(aH, HST, 36)
        t = 36
        p(f's_and_b32 s{sT+3}, s{sJ}, 2\ns_lshl_b32 s{sT+3}, s{sT+3}, 1')
        p(f'v_lshrrev_b32 v{t}, 2, v1\nv_and_b32 v{t+1}, 7, v{t}\nv_xor_b32 v{t+1}, s{sT+3}, v{t+1}\nv_lshlrev_b32 v{t}, 8, v{t}\nv_and_b32 v{t+2}, 3, v1\nv_lshl_add_u32 v{t}, v{t+2}, 3, v{t}')
        for tt in range(8):
            p(f'v_xor_b32 v{t+2}, {tt}, v{t+1}\nv_lshl_add_u32 v{cTr+tt}, v{t+2}, 5, v{t}')
        p(f's_mov_b32 s{cTG}, 0x10000')
        if cfg.c3:
            p(f's_lshr_b32 s{sT}, s2, 3\ns_lshl_b32 s{sT}, s{sT}, 2\ns_add_u32 s{sT}, s{sT}, s{sW}\ns_lshl_b32 s{sT}, s{sT}, 11\ns_add_u32 s{sT}, s{sT}, {cfg.c3l*128}')
            p(f'v_bfe_u32 v36, v1, 2, 2\nv_lshlrev_b32 v36, 18, v36\nv_bfe_u32 v37, v1, 1, 1\nv_lshl_add_u32 v36, v37, 10, v36\nv_and_b32 v37, 1, v1\nv_lshl_add_u32 v36, v37, 6, v36\nv_add_u32 v39, s{sT}, v36')
    def clear_setup():
        srd(p, S_H, pWS, WS_P + 256*3*16384, 12 << 20)
        p(f's_lshl_b32 s45, s{sRC}, 3\ns_add_u32 s45, s45, s{sCC}\ns_lshl_b32 s45, s45, 2\ns_add_u32 s45, s45, s{sJ}\ns_lshl_b32 s45, s45, 2\ns_add_u32 s45, s45, s{sW}\ns_mul_i32 s45, s45, 12288')
        p('v_lshlrev_b32 v39, 4, v1')
        for i in range(4): p(f'v_mov_b32 v{32+i}, -1')
    s2q = collect(setup2); s2per = -(-len(s2q) // 4)
    if cfg.apre:
        setup1(); setup2(); s2q = []
    else:
        for x in collect(setup1): L(16, x)
    npf = 0
    for j in range(7):
        g = bargap[j] + 1
        if j + 3 <= 7:
            L(g, f's_add_u32 s{sT+5}, s{sKV}, {(j+3)*16384}') if False else None
            L(g, f's_add_u32 s{sT+4}, s{sKV}, {(j+3)*16384}'); L(g, f's_add_u32 m0, s{sMK}, {((j+3) % 4)*16384}'); L(g, m0gap)
            for k in range(4): L(g + 3*k, kdma(k, sT+4, ('K', 4, j+3, 0)))
        if j + 2 <= 7:
            L(g + 12, f's_add_u32 s{sT+4}, s{sKV}, {(j+2)*16384}'); L(g + 12, f's_add_u32 m0, s{sMK}, {0x10000 + ((j+2) % 4)*16384}'); L(g + 12, m0gap)
            for k in range(4): L(g + 12 + 3*k, vdma(k, sT+4, ('V', 4, j+2, 0)))
        if j < 5:
            L(g + 24, f's_mov_b32 m0, s{sDM}'); L(g + 24, m0gap)
            for k in range(3):
                wo_ = npf % 2 == 0
                L(g + 24 + 4*k, f'buffer_load_dwordx4 v{vPF if wo_ else vPF+1}, s[{S_WO if wo_ else S_WD}:{(S_WO if wo_ else S_WD)+3}], s{sPF} offen lds')
                if not wo_: L(g + 24 + 4*k, f's_add_u32 s{sPF}, s{sPF}, 1024')
                npf += 1
        if cfg.cpf2 and (j in (1, 4) or cfg.cpf2 >= 2):
            for x in code_pf(S_DB, 61): L(g + 35, x)
        if j < 4:
            for x in s2q[j*s2per:(j+1)*s2per]: L(g + 36, x)
        if cfg.sent and j == 0:
            for x in collect(clear_setup): L(g + 60, x)
        if cfg.sent and 1 <= j <= 3:
            for k in range(4): L(g + 4 + 14*k, f'buffer_store_dwordx4 v[32:35], v39, s[{S_H}:{S_H+3}], s45 offen offset:{1024*k} sc1')
            L(g + 50, 's_add_u32 s45, s45, 4096')
        if j == cfg.hbar: H(g, flag_store('A_hf', vHF))
        if j == 4:
            for k, x in enumerate(collect(x_stage)): L(g + 36 + k//2, x)
        if j == 4: L(g + 40, f'buffer_load_dwordx2 v[62:63], v{vFH}, s[{S_FL}:{S_FL+3}], 0 offen sc1')
        if j == 5:
            for pc in range(8):
                for x in cdma(pc, 0): L(g + 24 + 3*pc, x)
            L(g + 50, '\n'.join(flagchk('L_h', vFH, 62)))
        if j == 6:
            for sub in range(4):
                for b in range(4):
                    for x in cact(sub, b): L(g + 3*(4*sub + b), x)
    for pc in range(8):
        for x in cdma(pc, 1): L(bargap[7] + 1 + 3*pc, x)
    if cfg.c3:
        L(bargap[6] - 4, f's_add_u32 s{sT+4}, s{kWD}, {128*2048}'); L(bargap[6] - 4, f'buffer_load_dword v61, v39, s[{S_WD}:{S_WD+3}], s{sT+4} offen ;pf')
    g = 2*start[16]
    lchk = []
    for qt in range(2):
        l = vL + 2*qt
        lchk += [f'v_add_f32 v{l}, v{l}, v{l+1}', f'v_mov_b32 v{l+1}, v{l}']
    lchk += [None, f'v_permlane32_swap_b32 v{vL}, v{vL+1}', f'v_permlane32_swap_b32 v{vL+2}, v{vL+3}', None,
             f'v_add_f32 v{vL}, v{vL}, v{vL+1}', f'v_add_f32 v{vL+2}, v{vL+2}, v{vL+3}',
             f's_mov_b32 s{sT+2}, {f2u(2.0**cfg.thr):#x}', f's_mov_b32 s{sT+3}, {f2u(2.0**-cfg.thr):#x}',
             f'v_cmp_nlt_f32 vcc, v{vL}, s{sT+2}', f'v_cmp_nlt_f32 s[{sT}:{sT+1}], v{vL+2}, s{sT+2}', None, f's_or_b64 vcc, vcc, s[{sT}:{sT+1}]',
             f'v_cmp_ngt_f32 s[{sT}:{sT+1}], v{vL}, s{sT+3}', None, f's_or_b64 vcc, vcc, s[{sT}:{sT+1}]',
             f'v_cmp_ngt_f32 s[{sT}:{sT+1}], v{vL+2}, s{sT+3}', None, f's_or_b64 vcc, vcc, s[{sT}:{sT+1}]']
    k = 0
    for x in lchk:
        if x is None: g += 1; k = 0; continue
        H(g, x); k += 1
        if k == 3: g += 1; k = 0
    assert g < n_ - 1
    def cyc(x):
        t_ = x[0] if isinstance(x, tuple) else x
        if callable(t_): return 8
        o = t_.split()[0]
        if o in TRANS: return 8
        if o.startswith('v_cvt_pk'): return 5
        if o.startswith('buffer_'): return cfg.vmc
        return 4*len(t_.split('\n')) if '\n' in t_ and ';cond' not in t_ else 4
    def cls(x):
        t_ = x[0] if isinstance(x, tuple) else x
        if callable(t_): return 'x'
        o = t_.split()[0]
        return 'm' if o.startswith('buffer_') else 'd' if o.startswith('ds_') else 'v' if o.startswith('v_') else 's'
    fill = {}; q_ = []
    for i in range(-1, n_):
        cur = list(hi.get(i, [])); cc_ = [cls(x) for x in cur]
        nd_ = cc_.count('d'); nv = nd_ + cc_.count('s') + 2*cc_.count('x') + (1 if i % 2 == 1 else 0); mem = nd_
        vroom = (cfg.av1 if nd_ else cfg.av0) - max(0, cc_.count('v') - 3); tookv = False
        for x in lo.get(i, []): q_.append((i, x))
        while q_:
            x = q_[0][1]; c_ = cls(x); force = i == n_ - 1 or i - q_[0][0] >= cfg.amax
            if c_ == 'v':
                if vroom <= 0 and not force: break
                vroom -= 1; tookv = True
            else:
                w_ = len((x[0] if isinstance(x, tuple) else x).split('\n')) if c_ == 's' else 1
                if (tookv or nv + min(w_, 2) > cfg.anv or (c_ == 'm' and mem >= cfg.amem)) and not force: break
                nv += w_; mem += c_ == 'm'
            cur.append(q_.pop(0)[1])
        fill[i] = cur
    fix_m0(fill, n_)
    if cfg.aab:
        tx = lambda x: x[0] if isinstance(x, tuple) else x
        for i in fill:
            if 2*start[3] <= i < 2*start[11]:
                if cfg.aab & 1: fill[i] = [x for x in fill[i] if callable(tx(x)) or not tx(x).startswith('buffer_load')]
                if cfg.aab & 2: fill[i] = [x for x in fill[i] if callable(tx(x)) or x in hi.get(i, []) or tx(x).startswith('buffer_load') or 'm0' in tx(x) or 's54' in tx(x)]
                if cfg.aab & 4: fill[i] = [x for x in fill[i] if not callable(tx(x))]
    for n in (1, 3, 7, 11, 15):
        t_ = ts.text(4)
        if t_: fill[2*start[n] - 1].append(t_)
    interleave(p, mf, fill)
    ts.stamp(p, 5)
    p('s_cbranch_vccnz A_slow')
    p('A_done:')
    ad = cfg.cad; P = cfg.cP
    for sub in range(4, ad):
        for b in range(4):
            for x in cact(sub, b): emit(p, x)
    p(f'v_rcp_f32 v{vL}, v{vL}\nv_rcp_f32 v{vL+2}, v{vL+2}')
    p.need(('C', 4, 0, 0)); p('s_barrier')
    for G in range(P):
        r = cA + 4*G; t_, s_ = (G // 2, G % 2) if cfg.chain else (G, 0)
        p(f'ds_read_b64_tr_b16 v[{r}:{r+1}], v{cTr+t_} offset:{8192*s_}', ('C', 4, 0, 0)); p(f'ds_read_b64_tr_b16 v[{r+2}:{r+3}], v{cTr+t_} offset:{8192*s_+4096}', ('C', 4, 0, 0))
    p(';SPLIT')
    OE = cfg.oe if ND >= 7 else cfg.oes
    vO, vX, vFO, vFD, vFS, vFQ = 16, 96, 20, 21, 22, 23
    sPS, sPR = 32, 33
    def o_epi(packed):
        t = 32
        p(f'v_mov_b32 v{vL+1}, v{vL}\nv_mov_b32 v{vL+3}, v{vL+2}')
        p(f's_lshl_b32 s{sT}, s{sRB}, 4\ns_lshl_b32 s{sT+1}, s{sW}, 2\ns_add_u32 s{sT}, s{sT}, s{sT+1}\ns_mul_i32 s{sT}, s{sT}, {OST}\ns_lshl_b32 s{sT+1}, s{sCB}, 12\ns_add_u32 s{sT}, s{sT}, s{sT+1}')
        p(f'v_bfe_u32 v{t}, v1, 4, 1\nv_mul_u32_u24 v{t}, {OST}, v{t}\nv_lshrrev_b32 v{t+1}, 5, v1\nv_lshlrev_b32 v{t+1}, 8, v{t+1}\nv_and_b32 v{t+2}, 15, v1\nv_lshlrev_b32 v{t+2}, 4, v{t+2}')
        p(f'v_add3_u32 v{t}, v{t}, v{t+1}, v{t+2}\nv_add_u32 v34, s{sT}, v{t}\nv_add_u32 v35, {2*OST}, v34')
        n = 0
        for dt in range(4):
            for qt in range(2):
                o = (dt*2+qt)*16
                for half in range(2):
                    x = 96 + 8*(n % 2); d = 112 + 4*(n % 4); n += 1
                    for i in range(8): p(f'v_accvgpr_read_b32 v{x+i}, a{o+8*half+i}')
                    if packed:
                        for i in range(0, 8, 2): p(f'v_pk_mul_f32 v[{x+i}:{x+i+1}], v[{x+i}:{x+i+1}], v[{vL+2*qt}:{vL+2*qt+1}]')
                    else:
                        for i in range(8): p(f'v_mul_f32{cfg.e64} v{x+i}, v{x+i}, v{vL+2*qt}')
                        for i in range(cfg.xs): p(f's_mov_b32 s{sT+5}, {cfg.xl}')
                    for i in range(0, 8, 2): p(f'v_cvt_pk_bf16_f32 v{d+i//2}, v{x+i}, v{x+i+1}')
                    p(f'buffer_store_dwordx4 v[{d}:{d+3}], v{34+qt}, s[{S_O}:{S_O+3}], 0 offen offset:{dt*1024 + half*512} {cfg.ost}', ('Ost', 1, 0, 0))
    def s_setup():
        x_dma_addr(dO, k_o)
        srd(p, S_AO, pWS, WS_O, 17 << 20)
        p(f's_lshl_b32 s{kAO}, s{sJ}, 3')
        if NSS == 7 and cfg.fs == 2: p(f's_add_u32 s{kAO}, s{kAO}, 1')
        p(f's_lshl_b32 s{sT}, s{sRC}, 5\ns_add_u32 s{sT}, s{sT}, s{kAO}\ns_add_u32 s{sT}, s{sT}, 512\ns_lshl_b32 s{sT}, s{sT}, 7')
        p(f'v_and_b32 v{vFH}, 15, v1\nv_min_u32 v{vFH}, {NSS-1}, v{vFH}\nv_lshl_add_u32 v{vFH}, v{vFH}, 7, s{sT}')
        p(f's_lshl_b32 s{kWO}, s{kAO}, 18\ns_lshl_b32 s{kAO}, s{kAO}, 12')
        p(f's_lshl_b32 s{sT}, s{sRC}, 4\ns_lshl_b32 s{sT+2}, s{sW}, 2\ns_add_u32 s{sT}, s{sT}, s{sT+2}\ns_mul_i32 s{sT+2}, s{sT}, {OST}')
        act_addr(aO, OST, 24)
        p(f'v_add_u32 v{vFO}, {256*128}, v{vHF}')
        srd(p, S_OUT, pOUT, 0, 4 << 20); srd(p, S_P, pWS, WS_P, 24 << 20)
        p(f's_lshl_b32 s{sT}, s{sRC}, 3\ns_add_u32 s{sT}, s{sT}, s{sCC}\ns_lshl_b32 s{sT}, s{sT}, 2\ns_add_u32 s{sT+1}, s{sT}, s{sJ}')
        p(f's_add_u32 s{sT+2}, s{sT+1}, 768\ns_lshl_b32 s{sT+2}, s{sT+2}, 7\nv_mov_b32 v{vFD}, s{sT+2}\nv_add_u32 v{vFS}, {256*128}, v{vFD}')
        p(f's_add_u32 s{sT+2}, s{sT}, 768\ns_lshl_b32 s{sT+2}, s{sT+2}, 7\nv_and_b32 v{vFQ}, 3, v1\nv_lshl_add_u32 v{vFQ}, v{vFQ}, 7, s{sT+2}')
        p(f's_mul_i32 s{sT+3}, s{sW}, 12288\ns_mul_i32 s{sPR}, s{sT+1}, {3*16384}\ns_add_u32 s{sPR}, s{sPR}, s{sT+3}')
        for q_ in (1, 2, 3):
            p(f's_xor_b32 s{sT+2}, s{sT+1}, {q_}\ns_mul_i32 s{sT+2}, s{sT+2}, {3*16384}\ns_add_u32 s{sT+2}, s{sT+2}, s{sT+3}\ns_add_u32 s{sT+2}, s{sT+2}, {(q_-1)*4096}\nv_add_u32 v{24+q_}, s{sT+2}, v24')
        out_addr(vO)
    QUADS = [(t_, bp) for t_ in (4, 5, 6, 7) for bp in (0, 1)] + [(t_, 1) for t_ in range(4)]
    nsent = [0]
    def send(gemm, quads):
        for (t_, bp) in quads:
            c = 16*t_ + 8*bp; k = nsent[0]; nsent[0] += 1; d = 112 + 4*(k % 4); q_ = 2*(t_ >> 2) + bp
            if gemm == 0:
                for r in range(4): p(f'v_cvt_pk_bf16_f32 v{d+r}, v{cC+c+2*r}, v{cC+c+2*r+1}')
            else:
                x = 160 + 8*(k % 4)
                for r in range(8): p(f'v_accvgpr_read_b32 v{x+r}, a{c+r}')
                for r in range(4): p(f'v_cvt_pk_bf16_f32 v{d+r}, v{x+2*r}, v{x+2*r+1}')
                if cfg.sent:
                    for r in range(4): p(f'v_min_u32 v{d+r}, -2, v{d+r}')
            so = '0' if gemm == 0 else f's{sT+4}'
            p(f'buffer_store_dwordx4 v[{d}:{d+3}], v{24 + q_}, s[{S_P}:{S_P+3}], {so} offen offset:{1024*(t_ & 3)} {cfg.pst}', ('Pst', 1, gemm, 0))
    def send_d():
        send(0, QUADS)
        for i in (1, 2, 3):
            for r in range(8): p(f'v_mov_b32 v{cC+8*i+r}, v{cC+16*i+r}')
    mf = []; hi.clear(); lo.clear()
    ST = 128; TMS = cfg.tms
    NSUB = 4*NS
    CH = cfg.chain
    if CH: order = [((2*u + e) // 4, (2*u + e) % 4, t) for u in range((NSUB - TMS)//2) for t in range(8) for e in range(2)]
    else: order = [(sub // 4, sub % 4, t) for sub in range(NSUB - TMS) for t in range(8)]
    order += [(sub // 4, sub % 4, t) for t in (4, 5, 6, 7, 0, 1, 2, 3) for sub in range(NSUB - TMS, NSUB)]
    assert TMS <= 4 or NS % 2 == 0
    def ctr(G):
        sg, s, t = order[G]
        r = cA + 4*(G % 8); off = (sg % 2)*SLOT + s*8192
        a = cTr + t
        return [(f'ds_read_b64_tr_b16 v[{r}:{r+1}], v{a} offset:{off}', ('C', 4, sg, 0)),
                (f'ds_read_b64_tr_b16 v[{r+2}:{r+3}], v{a} offset:{off + 4096}', ('C', 4, sg, 0))]
    obar = math.ceil(OE) + 1; dbar = ND + math.ceil(cfg.de) + 1
    def bar(p, sgn):
        p.need(('C', 4, sgn, 0))
        if sgn == obar: p.need(('Ost', 1, 0, 0))
        if sgn == dbar: p.need(('Pst', 1, 0, 0))
        p('s_barrier')
    firstG = {}
    for G, (sg, s, t) in enumerate(order): firstG.setdefault(sg, G)
    seen = set()
    def c_mfma(G, b):
        sg, s, t = order[G]; sub = 4*sg + s
        ra = cA + 4*(G % 8); rb = 128 + 16*(sub % 8) + 4*b; c = (t*4+b)*4
        acc_ = f'v[{cC+c}:{cC+c+3}]' if kind(sg) == 'd' else f'a[{c}:{c+3}]'
        first = acc_ not in seen; seen.add(acc_)
        mf.append(f'v_mfma_f32_16x16x32_bf16 {acc_}, v[{ra}:{ra+3}], a[{rb}:{rb+3}], {"0" if first else acc_}')
    for G in range(32*NS):
        if CH:
            if G % 2 == 0:
                for k, b in enumerate(range(3, -1, -1) if (G // 2) % 2 else range(4)):
                    c_mfma(G + k % 2, b); c_mfma(G + 1 - k % 2, b)
        else:
            for b in (range(3, -1, -1) if cfg.snake and G % 2 else range(4)): c_mfma(G, b)
        i0 = 4*G; Gn = G + P
        if CH and cfg.ltouch and G % 2 == 1 and G + 2 < 32*NS: H(i0+3, lambda p, r=cA + 4*((G + 2) % 8): p.touch(f'v[{r}:{r+3}]'))
        if Gn < 32*NS:
            if firstG[order[Gn][0]] == Gn: H(i0-1, lambda p, sgn=order[Gn][0]: bar(p, sgn))
            r0, r1 = ctr(Gn)
            H(i0, r0); H(i0+1, r1)
            if order[Gn][1] == 3 and order[Gn][0] % 2 == 1 and order[Gn][0] < NS - 1: H(i0+2, f'v_xor_b32 v{cTr + order[Gn][2]}, s{cTG}, v{cTr + order[Gn][2]}')
        sgc, g = divmod(G, 32)
        dstr = 2 if (TMS > 4 and sgc + 2 == NS - 1) else cfg.cdstr
        if g % dstr == 1 and g // dstr < 8 and sgc + 2 < NS:
            for x in cdma(g // dstr, sgc + 2): L(i0, x)
    last_act = 0
    def act_t(sub):
        t0 = max((sub - (6 if CH and sub % 2 == 0 else 7))*32, min((sub - ad)*32, (4*NS - 8)*32 - (4*NS - 1 - sub)*cfg.ramp)) if TMS else (sub - ad)*32
        if sub >= 4*ND: t0 = max(t0, (4*ND - cfg.odl)*32 + (sub - 4*ND)*cfg.ramp)
        return t0
    for sub in range(ad, 4*NS):
        t0 = act_t(sub); t1 = max(act_t(sub + 1), t0 + 12)
        for b in range(4):
            last_act = t0 + b*min(8, (t1 - t0)//4)
            for x in cact(sub, b): L(last_act, x)
    if cfg.cpf2:
        for k in ((1,) if cfg.cpf2 < 2 else range(0, math.floor(OE))):
            for x in code_pf(S_DB, 61): L(k*ST + 4*30, x)
        for x in code_srd(S_AH, 'L_pc3' + SFX): L(ND*ST, x)
        for k in ((ND, ND + 3) if cfg.cpf2 < 2 else range(ND, NS - 2)):
            for x in code_pf(S_AH, 61): L(k*ST + 4*30, x)
    if cfg.c3:
        L((ND - 2)*ST, f's_add_u32 s{sT+4}, s{kWO}, {cfg.c3s*128*2048}'); L((ND - 2)*ST, f'buffer_load_dword v61, v39, s[{S_WO}:{S_WO+3}], s{sT+4} offen ;pf')
    n = len(mf)
    fill = spread(hi, {k: lo[k] for k in sorted(lo)}, n, cfg.cap, 16, cost=lambda i: 1 if i % 4 == 3 else 0)
    fix_m0(fill, n)
    def ride(items, g0, g1):
        q_ = list(items); per = len(q_) / (g1 - g0); due = 0.0; done = 0
        for i in range(g0, g1):
            due += per
            used = len(fill[i]) + (1 if i % 4 == 3 else 0)
            while q_ and done < due + 2 and (used < cfg.cap or done < due - cfg.lag):
                fill[i].append(q_.pop(0)); used += 1; done += 1
        fill[g1-1] += q_
    oq = collect(lambda: o_epi(cfg.ox > 0))
    nx = 0
    if cfg.ox:
        idx = [i for i, x in enumerate(oq) if x[0].startswith('buffer_store')]
        nx = idx[cfg.ox - 1] + 1
        fill[-1] = oq[:nx] + fill[-1]
        oq2 = collect(lambda: o_epi(False))
        idx2 = [i for i, x in enumerate(oq2) if x[0].startswith('buffer_store')]
        oq = oq2[idx2[cfg.ox - 1] + 1:]
    if oq: ride(oq, 2, int(OE*ST))
    ride(collect(s_setup), int(OE*ST), int(OE*ST) + ST - 20)
    fill[obar*ST - 4*P + 2].append(flag_store('C_of' + SFX, vFO))
    first_o = act_t(4*ND)
    assert first_o - 2 > int(OE*ST) + ST - 20 and (ND - 2)*ST > int(OE*ST) + ST - 20
    fill[first_o - cfg.fl].append(f'buffer_load_dwordx2 v[62:63], v{vFH}, s[{S_FL}:{S_FL+3}], 0 offen sc1')
    fill[first_o - 2].append('\n'.join(flagchk('L_o' + SFX, vFH, 62)))
    ride(collect(send_d), ND*ST + 8, ND*ST + int(cfg.de*ST))
    fill[dbar*ST - 4*P + 2].append(flag_store('C_df' + SFX, vFD))
    xl = [f's_lshl_b32 s{sT+2}, s{sW}, 13', f's_add_u32 s{sT+2}, s{sT+2}, {XL}', 'v_and_b32 v36, 0x37, v1', 'v_lshlrev_b32 v36, 4, v36', 'v_bfe_u32 v37, v1, 3, 1', 'v_lshl_add_u32 v36, v37, 10, v36', f'v_add_u32 v39, s{sT+2}, v36']
    xl += [f'ds_read_b128 v[{vX+8*b+4*pr}:{vX+8*b+4*pr+3}], v39 offset:{2048*b + 128*pr}' for b in range(2) for pr in range(2)]
    vR = 192
    def recv(gemm):
        p(f's_add_u32 s{sT+2}, s{sPR}, {gemm*256*3*16384}')
        for q_ in range(3):
            for i in range(4):
                r = vR + 16*q_ + 4*i
                p(f'buffer_load_dwordx4 v[{r}:{r+3}], v24, s[{S_P}:{S_P+3}], s{sT+2} offen offset:{1024*i} sc1')
            if q_ < 2: p(f's_add_u32 s{sT+2}, s{sT+2}, 4096')
    dchk = NS - cfg.dchk
    assert not cfg.sent or int(dchk*ST) < (NSUB - TMS)*32 + TMS*4
    fill[int(dchk*ST) - cfg.fl].append(f'buffer_load_dwordx2 v[62:63], v{vFQ}, s[{S_FL}:{S_FL+3}], 0 offen sc1')
    fill[int(dchk*ST)].append('\n'.join(flagchk('L_d' + SFX, vFQ, 62)))
    r0_ = max(int(dchk*ST) + 2, last_act + 18)
    ride(collect(lambda: recv(0)), r0_, r0_ + 48)
    fill[(NS - 3)*ST].append(f's_mov_b32 s{sT+4}, {256*3*16384}')
    left = list(QUADS)
    if TMS:
        base = (NSUB - TMS)*32; plen = TMS*4
        for k, t_ in enumerate((4, 5, 6, 7, 0, 1, 2)):
            qs_ = [x for x in QUADS if x[0] == t_]; left = [x for x in left if x[0] != t_]
            g0 = base + (k + 1)*plen + 3
            ride(collect(lambda: send(1, qs_)), g0, min(n, g0 + plen))
    ts.stamp(p, 7)
    for k in range(1, 15):
        if k in (1, 2, 3, 4, 5, 6, 7, 8, 9, 11, 13):
            t_ = ts.text(2)
            if t_: fill[k*ST - 1].append(t_)
    interleave(p, mf, fill)
    if cfg.pw:
        p(f's_lshl_b32 s{sT+2}, s{sW}, 7\ns_add_u32 s{sT+2}, s{sT+2}, {(2304 - 4*768)*128}\nv_lshl_add_u32 v{vFS}, v{vFD}, 2, s{sT+2}\nv_lshl_add_u32 v{vFQ}, v{vFQ}, 2, s{sT+2}')
        p(f's_mov_b32 s{sT+3}, 0xffff0000\ns_nop 2')
    else:
        p(f's_mov_b32 s{sT+3}, 0xffff0000\nv_add_u32 v{vFQ}, {256*128}, v{vFQ}\ns_nop 4')
    ts.stamp(p, 3)
    for x in xl: p(x)
    send(1, left)
    RS = (160, 176, 240)
    def recv_s(q_, cond=''):
        for i in range(4):
            p(f'buffer_load_dwordx4 v[{RS[q_]+4*i}:{RS[q_]+4*i+3}], v24, s[{S_P}:{S_P+3}], s{44+q_} offen offset:{1024*i} sc1{cond}')
    if cfg.sent:
        p(f's_add_u32 s44, s{sPR}, {256*3*16384}\ns_add_u32 s45, s44, 4096\ns_add_u32 s46, s45, 4096')
        for q_ in range(3): recv_s(q_)
    pk = lambda r: f'v[{r}:{r+1}]'
    def addparts(dst, i, src):
        for q_ in range(3):
            rr = src[q_] + 4*i; tt = 32 + 8*(q_ % 2)
            for r in range(4): p(f'v_lshlrev_b32 v{tt+2*r}, 16, v{rr+r}\nv_and_b32 v{tt+2*r+1}, s{sT+3}, v{rr+r}')
            for r in range(0, 8, 2): p(f'v_pk_add_f32 {pk(dst+r)}, {pk(dst+r)}, {pk(tt+r)}')
    p(f'v_mov_b32 v28, {f2u(-math.log2(math.e)):#x}\nv_mov_b32 v29, v28')
    RD = (vR, vR + 16, vR + 32)
    for i in range(4):
        c = cC + 8*i; B = 48
        addparts(c, i, RD)
        for r in range(0, 8, 2): p(f'v_pk_mul_f32 {pk(B+r)}, {pk(c+r)}, v[28:29]')
        for r in range(8): p(f'v_exp_f32 v{B+r}, v{B+r}')
        p('s_nop 0')
        for r in range(0, 8, 2): p(f'v_pk_add_f32 {pk(B+r)}, {pk(B+r)}, 1.0 op_sel_hi:[1,0]')
        for r in range(8): p(f'v_rcp_f32 v{B+r}, v{B+r}')
        p('s_nop 0')
        for r in range(0, 8, 2): p(f'v_pk_mul_f32 {pk(c+r)}, {pk(c+r)}, {pk(B+r)}')
    vSs = 64
    for i in range(32): p(f'v_accvgpr_read_b32 v{vSs+i}, a{16*(i//8) + i % 8}')
    E = 192 if cfg.sent else 160
    def xunpack():
        for b in range(4):
            for q in range(4): p(f'v_lshlrev_b32 v{E+8*b+2*q}, 16, v{vX+4*b+q}\nv_and_b32 v{E+8*b+2*q+1}, s{sT+3}, v{vX+4*b+q}')
    if cfg.sent:
        xunpack()
        ts.stamp(p)
        p(f'C_chk{SFX}:\ns_waitcnt vmcnt(0)\ns_mov_b32 s47, 0')
        for q_ in range(3):
            r = RS[q_]
            p(f'v_max3_u32 v32, v{r}, v{r+1}, v{r+2}')
            for k in range(3, 15, 2): p(f'v_max3_u32 v32, v32, v{r+k}, v{r+k+1}')
            p(f'v_max_u32 v32, v32, v{r+15}\nv_cmp_eq_u32 vcc, -1, v32\ns_nop 1\ns_cbranch_vccz C_ok{q_}{SFX}')
            p.cond(True)
            p(f's_sleep {cfg.slp2}\ns_mov_b32 s47, 1'); recv_s(q_)
            p.cond(False)
            p(f'C_ok{q_}{SFX}:')
        p(f's_cmp_lg_u32 s47, 0\ns_cbranch_scc1 C_chk{SFX}')
        ts.stamp(p)
        src = RS
    else:
        if cfg.pw:
            xunpack()
            p('s_waitcnt vmcnt(0)')
            ts.stamp(p)
            p(f'buffer_store_dwordx2 v[2:3], v{vFS}, s[{S_FL}:{S_FL+3}], 0 offen sc1')
            p.cond(True)
            poll('C_poll' + SFX, vFQ, 'C_got' + SFX)
            p.cond(False)
            p(f'C_got{SFX}:')
            ts.stamp(p)
        else:
            p('s_waitcnt vmcnt(0)\ns_barrier')
            ts.stamp(p)
            p(f's_cmp_eq_u32 s{sW}, 1\ns_cbranch_scc0 C_got{SFX}')
            p.cond(True)
            p(f'buffer_store_dwordx2 v[2:3], v{vFS}, s[{S_FL}:{S_FL+3}], 0 offen sc1')
            poll('C_poll' + SFX, vFQ, 'C_got' + SFX)
            p.cond(False)
            p(f'C_got{SFX}:\ns_barrier')
            ts.stamp(p)
        recv(1)
        if not cfg.pw: xunpack()
        src = RD
    for i in range(4): addparts(vSs + 8*i, i, src)
    for i in range(0, 32, 2): p(f'v_pk_mul_f32 {pk(vSs+i)}, {pk(vSs+i)}, {pk(cC+i)}')
    for b in range(2):
        P0, P1, T_ = 112 + 8*b, 116 + 8*b, 32
        for pr in range(2):
            c0 = vSs + 16*pr + 4*b; c1 = c0 + 8
            for r in range(4): p(f'v_permlane16_swap_b32 v{c0+r}, v{c1+r}')
        for pr in range(2):
            c0 = vSs + 16*pr + 4*b; c1 = c0 + 8; e = E + 16*b + 8*pr
            for q in range(4):
                c = (c0, c0+2, c1, c1+2)[q]
                p(f'v_pk_add_f32 {pk(e+2*q)}, {pk(e+2*q)}, {pk(c)}')
            for q in range(4): p(f'v_cvt_pk_bf16_f32 v{(P0, P1)[pr]+q}, v{e+2*q}, v{e+2*q+1}')
        for q in range(4): p(f'v_mov_b32 v{T_+q}, v{P1+q}')
        for q in range(4): p(f'v_mov_b32_dpp v{P1+q}, v{P0+q} row_ror:8 row_mask:0xf bank_mask:0x3')
        for q in range(4): p(f'v_mov_b32_dpp v{P0+q}, v{T_+q} row_ror:8 row_mask:0xf bank_mask:0xc')
        p(f's_mov_b32 s{sT}, {2*b*0x4000}\ns_mov_b32 s{sT+1}, {(2*b+1)*0x4000}')
        p(f'buffer_store_dwordx4 v[{P0}:{P0+3}], v{vO}, s[{S_OUT}:{S_OUT+3}], s{sT} offen {cfg.osc}')
        p(f'buffer_store_dwordx4 v[{P1}:{P1+3}], v{vO}, s[{S_OUT}:{S_OUT+3}], s{sT+1} offen {cfg.osc}')
    ts.stamp(p)
    if cfg.ts: p('s_waitcnt vmcnt(0)')
    ts.stamp(p)
    ts.dump(p, pWS)
    p('s_endpgm')
    autowait(p)
    if cfg.hoist: hoist(p)
    if not cfg.aab: check(p, 'main')

    z = Prog(); main = p; p = z
    p('A_slow:')
    p('s_waitcnt vmcnt(0) lgkmcnt(0)')
    srd(p, S_K, pK, 0, 2 << 20); srd(p, S_V, pV, 0, 2 << 20)
    zK, zD, zV = 13, 14, 21
    zKV, zN = sT, sT+1
    p(f's_lshr_b32 s{zKV}, s{sCB}, 3\ns_lshl_b32 s{zKV}, s{zKV}, 19\ns_add_u32 s{zKV}, s{zKV}, {1536*256}')
    p(f'v_and_b32 v{zK}, 31, v1\nv_lshlrev_b32 v{zK}, 8, v{zK}\nv_lshrrev_b32 v36, 5, v1\nv_lshl_add_u32 v{zK}, v36, 4, v{zK}')
    p(f'v_lshrrev_b32 v36, 4, v1\nv_and_b32 v37, 15, v1\nv_lshlrev_b32 v38, 2, v36\nv_xor_b32 v37, v37, v38\nv_lshlrev_b32 v36, 8, v36\nv_lshl_add_u32 v{zD}, v37, 4, v36\nv_add_u32 v{zD+1}, 0x1000, v{zD}')
    t = 36
    p(f'v_lshrrev_b32 v{t}, 5, v1\nv_lshlrev_b32 v{t}, 2, v{t}\nv_bfe_u32 v{t+1}, v1, 2, 2\nv_add_u32 v{t}, v{t}, v{t+1}\nv_lshlrev_b32 v{t}, 8, v{t}')
    p(f'v_bfe_u32 v{t+2}, v1, 4, 1\nv_lshlrev_b32 v{t+2}, 5, v{t+2}\nv_and_b32 v{t+3}, 3, v1\nv_lshlrev_b32 v{t+3}, 3, v{t+3}\nv_add3_u32 v{t}, v{t}, v{t+2}, v{t+3}')
    p(f's_lshl_b32 s{sT+2}, s{sW}, 13\ns_add_u32 s{sT+2}, s{sT+2}, 0x10000\nv_add_u32 v{t}, s{sT+2}, v{t}')
    for dt in range(4): p(f'v_xor_b32 v{t+2}, {dt}, v{t+1}\nv_lshl_add_u32 v{zV+dt}, v{t+2}, 6, v{t}')
    def kglob():
        for s in range(8): p(f'buffer_load_dwordx4 a[{aF+4*s}:{aF+4*s+3}], v{zK}, s[{S_K}:{S_K+3}], s{zN} offen offset:{32*s}')
    p(f'v_mov_b32 v32, 0xff800000\nv_mov_b32 v34, 0xff800000\ns_mov_b32 s{zN}, s{zKV}\ns_mov_b32 s{sT+3}, 16')
    p.loop_begin('Z1_loop', 16, align=False)
    kglob()
    for s in range(8):
        for qt in range(2): p(qk(0, s, qt, zero))
    p('s_nop 7\ns_nop 3')
    rowmax(0, False)
    p(f's_add_u32 s{zN}, s{zN}, 8192\ns_sub_u32 s{sT+3}, s{sT+3}, 1\ns_cmp_lg_u32 s{sT+3}, 0\ns_cbranch_scc1 Z1_loop')
    p.loop_end()
    set_negm()
    for i in range(128): p(f'v_accvgpr_write_b32 a{i}, 0')
    for i in range(4): p(f'v_mov_b32 v{vL+i}, 0')
    p(f's_mov_b32 s{zN}, s{zKV}\ns_mov_b32 s{sT+3}, 16')
    p.loop_begin('Z2_loop', 16, align=False)
    kglob()
    for j in range(8):
        if j % 4 == 0: p(f's_add_u32 m0, s{sT+2}, {1024*j}\ns_nop 0')
        p(f'buffer_load_dwordx4 v{zD + j//4}, s[{S_V}:{S_V+3}], s{zN} offen offset:{1024*(j%4)} lds')
    for s in range(8):
        for qt in range(2): p(qk(0, s, qt, negm))
    p('s_nop 7\ns_nop 3')
    for ops in softmax_ops(0):
        for o in ops: p(o)
    p('s_waitcnt vmcnt(0)')
    for f in range(8):
        for r in vread(0, f, None, base=zV, off0=0): emit(p, r)
    for f in range(8):
        for qt in range(2): p(pv(0, f, qt))
    p(f's_add_u32 s{zN}, s{zN}, 8192\ns_sub_u32 s{sT+3}, s{sT+3}, 1\ns_cmp_lg_u32 s{sT+3}, 0\ns_cbranch_scc1 Z2_loop')
    p.loop_end()
    p('s_nop 7\ns_nop 7')
    for qt in range(2):
        l = vL + 2*qt
        p(f'v_add_f32 v{l}, v{l}, v{l+1}\nv_mov_b32 v{l+1}, v{l}\ns_nop 1\nv_permlane32_swap_b32 v{l}, v{l+1}\ns_nop 1\nv_add_f32 v{l}, v{l}, v{l+1}')
    p('s_branch A_done')
    autowait(z); check(z, 'slow')
    txt = main.text()
    if cfg.jit:
        n_ = [0]
        def jit(m):
            n_[0] += 1
            if n_[0] % cfg.jit: return m.group(0)
            l = f'J{SFX if ";SPLIT" in txt[:m.start()] else ""}_{n_[0]}'
            return (f'  s_mul_i32 s98, s2, {7 + 2*n_[0]}\n  s_mul_i32 s99, s36, {13 + n_[0]}\n  s_add_u32 s98, s98, s99\n  s_getreg_b32 s99, hwreg(HW_REG_SHADER_CYCLES, 0, 8)\n'
                    if False else
                    f'  s_mov_b32 s99, scc\n' if False else '') + f'  s_cselect_b32 s97, 1, 0\n  s_mul_i32 s98, s2, {7 + 2*n_[0]}\n  s_mul_i32 s99, s36, {13 + n_[0]}\n  s_add_u32 s98, s98, s99\n  s_and_b32 s98, s98, 7\n{l}:\n  s_sleep 8\n  s_sub_u32 s98, s98, 1\n  s_cmp_ge_i32 s98, 0\n  s_cbranch_scc1 {l}\n  s_cmp_eq_u32 s97, 1\n' + m.group(0)
        import re
        txt = re.sub(r'  s_barrier', jit, txt)
    pre_, c_ = txt.split(';SPLIT')
    return pre_, c_, z.text(), sJ

def main():
    cfg = Cfg()
    cfg.ts = 1; cfg.xmap = 'b'; cfg.stag = 0; cfg.P = 4; cfg.late1 = 1; cfg.w0 = 0; cfg.cw0 = 8
    cfg.d0 = 8; cfg.dstr = 3; cfg.a0 = 0; cfg.astr = 1; cfg.ad = 3; cfg.PF = 3; cfg.cap = 2
    cfg.cad = 5; cfg.cdstr = 4; cfg.cP = 5; cfg.thr = 40; cfg.tail0 = 4; cfg.sum = 'add'; cfg.hbar = 2; cfg.t1e = 1; cfg.t0e = 0; cfg.npre = 2; cfg.slp3 = 4; cfg.p2 = 0; cfg.btouch = 1; cfg.ltouch = 1; cfg.chain = 1; cfg.snake = 1; cfg.odl = 3; cfg.gl = 1; cfg.perm = 0; cfg.lad = 1; cfg.pw = 0; cfg.av0 = 2; cfg.av1 = 1; cfg.anv = 2; cfg.amem = 2; cfg.hoist = 1; cfg.apre = 0; cfg.jit = 0; cfg.ost = 'sc1'; cfg.pst = 'sc1'; cfg.m0 = 0; cfg.c3 = 0; cfg.xat = -1; cfg.c3l = 3; cfg.c3s = 2; cfg.wsc = ''; cfg.gsc = ''; cfg.cdel = 0; cfg.ccx = 0; cfg.xbar = 10; cfg.fs1 = 6; cfg.xe = 1; cfg.xchk = 180; cfg.xfl = 60; cfg.xt = 0; cfg.fs = 2; cfg.oes = 2; cfg.sent = 0; cfg.slp2 = 4; cfg.trk = 2; cfg.kvp = 1; cfg.trk0 = 1; cfg.pf4 = 0; cfg.pf4n = 8; cfg.pf3 = 0; cfg.aab = 0; cfg.e64 = ''; cfg.xs = 0; cfg.xl = 1; cfg.cpf2 = 2; cfg.loc = 0; cfg.fremote = 0; cfg.ox = 0; cfg.ramp = 20; cfg.lag = 3; cfg.vmc = 8; cfg.acap = 24; cfg.amax = 40; cfg.wb = 0; cfg.opad = 256; cfg.xpad = 256; cfg.hpad = 0; cfg.oe = 3; cfg.de = 3; cfg.tms = 6; cfg.fl = 128; cfg.dchk = 1.65; cfg.dbg = 0; cfg.cpf = 1; cfg.tlb = 0; cfg.osc = 'sc1'; cfg.slp = 1; cfg.late0 = 2
    for a in sys.argv[2:]:
        k, v = a.split('='); setattr(cfg, k, int(v) if v.lstrip('-').isdigit() else float(v) if v.replace('.','').isdigit() else v)
    kn = NAME + '_kernel'
    doc = """; out = x + (attn(LN(x) wq, K, V) wo) * silu((gelu(LN(x) wg) * (LN(x) wu)) wd)      bf16 in/out, fp32 accumulation
; Kernarg: 0 x, 8 k_cache, 16 v_cache, 24 wq, 32 wo, 40 (unused), 48 w_gate, 56 w_up, 64 w_down, 72 out, 80 debug, 88 workspace
;  0  LayerNorm statistics of 8 tokens -> {mean, 1/std} records and normalised rows (MFMA B-fragment order) in the workspace
"""
    hdr = (f'; opad={cfg.opad} hoff={WS_H} xpad={cfg.xpad} hpad={cfg.hpad} ooff={WS_O}\n' + doc + f'; @launch grid=(256,1,1) block=(256,1,1) lds={LDS_TOT}\n'
           '.amdgcn_target "amdgcn-amd-amdhsa--gfx950"\n')
    if cfg.fs:
        (a, c8, z, sJ), (a6, c6, _, _) = (gen(cfg, 8), gen(cfg, 6)) if cfg.fs == 1 else (gen(cfg, 7, 9), gen(cfg, 7, 7))
        assert a == a6
        body = a + f'  s_bitcmp1_b32 s{sJ}, 0\n  s_cbranch_scc1 C_short\n' + c8 + '\nC_short:\n' + c6
    else:
        a, c7, z, _ = gen(cfg, 7); body = a + c7
    s = hdr + kernel_head(kn) + body + '\nK_end:\n  s_endpgm\n' + z + '\nK_last:\n' + kernel_desc(kn, 512, 256)
    s = '\n'.join(l for l in s.split('\n') if not l.strip().startswith(('; need', '; touch'))).replace(' offset:0 ', ' ').replace(' offset:0\n', '\n').replace('\n  ', '\n ')
    open(sys.argv[1], 'w').write(s)
if __name__ == '__main__': main()
```

```python
import sys, struct, math
from dsl import *
from gen2 import (f2u, srd, kernel_head, kernel_desc, emit, interleave, spread, m0gap, fix_m0, chk_tail, Cfg)

NAME = 'recurrent_scan__sliding_block_cached__geglu_ffn__prompt'
WS_XN = 0
WS_O  = 5 << 20
WS_H  = 23 << 20
WS_G  = 36 << 20
WS_FL = 40 << 20
WS_ST = 41 << 20
WS_TS = 48 << 20
WS_P  = 64 << 20
HS = 22528; NHS = 7
LDS_SCR = NHS*HS
LDS_TOT = 163840

class TS:
    def __init__(self, on): self.on = on; self.n = 0
    def text(self, grp):
        if not self.on & grp or self.n >= 14: return None
        s = 88 + self.n; self.n += 1
        clk = 's_memtime' if self.on & 8 else 's_memrealtime'
        return f's_waitcnt lgkmcnt(0)\n{clk} s[4:5]\ns_waitcnt lgkmcnt(0)\ns_mov_b32 s{s}, s4'
    def stamp(self, p, grp=1):
        t = self.text(grp)
        if t: p(t)
    def old(self, p):
        if not self.on: return
        s = 88 + self.n; self.n += 1;
        if s >= 102: return
        p(f's_waitcnt lgkmcnt(0)\ns_memrealtime s[4:5]\ns_waitcnt lgkmcnt(0)\ns_mov_b32 s{s}, s4')
    def dump(self, p, wsptr):
        if not self.on: return
        if self.on & 16:
            p('s_load_dwordx2 s[12:13], s[0:1], 80\ns_waitcnt lgkmcnt(0)\ns_mov_b32 s14, 256\ns_mov_b32 s15, 0x20000\nv_mov_b32 v8, 0\ns_mov_b64 exec, 1')
            for i in range(min(self.n, 14)):
                p(f's_sub_u32 s4, s{88+i}, s6\nv_mov_b32 v4, s4\nbuffer_atomic_smax v4, v8, s[12:15], 0 offen offset:{8+4*i}\ns_nop 1')
            return
        srd(p, 12, wsptr, WS_TS, 1 << 20)
        p('s_lshl_b32 s3, s2, 8\ns_lshl_b32 s4, s36, 6\ns_add_u32 s3, s3, s4\nv_mov_b32 v8, s3')
        p('s_getreg_b32 s4, hwreg(HW_REG_XCC_ID, 0, 4)\nv_mov_b32 v4, s4\nbuffer_store_dword v4, v8, s[12:15], 0 offen offset:60\ns_nop 1')
        for i in range(min(self.n, 14)):
            p(f'v_mov_b32 v4, s{88+i}\nbuffer_store_dword v4, v8, s[12:15], 0 offen offset:{4*i}\ns_nop 1')

def gen(cfg, ND, NSS=8):
    SFX = f'_{ND}{NSS}'
    OST = 131072 + cfg.opad; XST = 32768 + cfg.xpad; HST = 112*1024 + cfg.hpad
    p = Prog(); ts = TS(cfg.ts)
    SC = ' sc1'; LS = '' if cfg.loc else ' sc1'
    assert cfg.xmap == 'c' or not cfg.loc
    pX, pK, pV, pWQ, pWO, pWG, pWU, pWD, pOUT, pDBG, pWS = 64, 66, 68, 70, 72, 76, 78, 80, 82, 84, 86
    S_W, S_Q, S_XN, S_H, S_K, S_V, S_O = 8, 12, 16, 20, 24, 28, 32
    S_FL, S_DB = 56, 60
    sW, sRB, sCB, sKW, sKQ, sKA, sCNT = 36, 37, 38, 39, 40, 41, 42
    sMW, sMQ, sRD, sDL, sLEFT, sLEFA, sRW, sRQ = 43, 44, 45, 46, 47, 48, 49, 3
    sT = 50
    p('K_first:\ns_cmp_ge_u32 s2, 256\ns_cbranch_scc1 K_end')
    if cfg.perm: p(f's_lshr_b32 s3, s2, 3\ns_and_b32 s3, s3, 7\ns_mul_i32 s3, s3, {cfg.perm}\ns_and_b32 s3, s3, 7\ns_xor_b32 s2, s2, s3')
    p('s_load_dwordx16 s[64:79], s[0:1], 0\ns_load_dwordx8 s[80:87], s[0:1], 64')
    p(f'v_lshrrev_b32 v2, 6, v0\nv_and_b32 v1, 63, v0\nv_readfirstlane_b32 s{sW}, v2')
    p(f's_and_b32 s{sT}, s2, 7\ns_lshr_b32 s{sT+1}, s2, 3')
    if cfg.xmap == 'c':
        p(f's_and_b32 s{sRB}, s{sT}, 1\ns_lshl_b32 s{sRB}, s{sRB}, 2\ns_and_b32 s{sT+2}, s{sT+1}, 3\ns_add_u32 s{sRB}, s{sRB}, s{sT+2}')
        p(f's_lshr_b32 s{sCB}, s{sT}, 1\ns_lshl_b32 s{sCB}, s{sCB}, 3\ns_lshr_b32 s{sT+2}, s{sT+1}, 2\ns_add_u32 s{sCB}, s{sCB}, s{sT+2}')
    else:
        p(f's_and_b32 s{sRB}, s{sT+1}, 7\ns_lshl_b32 s{sCB}, s{sT}, 2\ns_lshr_b32 s{sT+2}, s{sT+1}, 3\ns_add_u32 s{sCB}, s{sCB}, s{sT+2}')
    vAct, vDW, vDQ, vTr, vTq, vT = 4, 8, 15, 19, 20, 28
    vA, RA = 32, 8
    vB, RB = 64, 4
    def acc(t, b):
        if t < 16: c = (t*4+b)*4; return f'a[{c}:{c+3}]'
        c = 160 + ((t-16)*4+b)*4; return f'v[{c}:{c+3}]'
    def accr(t, b, r):
        if t < 16: return f'a{(t*4+b)*4+r}'
        return f'v{160+((t-16)*4+b)*4+r}'
    vLX, vLO, vLS = 128, 129, 130
    t = 132
    p(f's_lshl_b32 s{sT}, s{sRB}, 8\ns_lshl_b32 s{sT+1}, s{sCB}, 3\ns_add_u32 s{sT}, s{sT}, s{sT+1}\ns_lshl_b32 s{sT}, s{sT}, 11\ns_lshl_b32 s{sT+1}, s{sW}, 9\ns_add_u32 s{sT}, s{sT}, s{sT+1}')
    p(f'v_and_b32 v{t}, 7, v1\nv_bfe_u32 v{t+1}, v1, 3, 1\nv_lshrrev_b32 v{t+2}, 4, v1')
    p(f'v_lshlrev_b32 v{t+3}, 11, v{t}\nv_lshlrev_b32 v{t+4}, 8, v{t+1}\nv_lshlrev_b32 v{t+5}, 4, v{t+2}\nv_add3_u32 v{t+3}, v{t+3}, v{t+4}, v{t+5}\nv_add_u32 v{vLX}, s{sT}, v{t+3}')
    KW, KQ, KA, NT = 64*7168, 64*8192, 2048, 16
    sNO = 6
    vRX = 140; RAWL = 4*HS
    vSR = 139
    def late_addr():
        t = 132
        p(f's_lshl_b32 s{sT}, s{sRB}, 4\ns_lshr_b32 s{sT+1}, s{sCB}, 1\ns_add_u32 s{sT}, s{sT}, s{sT+1}\ns_mul_i32 s{sT}, s{sT}, {XST}\ns_lshl_b32 s{sT+1}, s{sW}, 13\ns_add_u32 s{sT}, s{sT}, s{sT+1}')
        p(f's_and_b32 s{sT+1}, s{sCB}, 1\ns_lshl_b32 s{sT+1}, s{sT+1}, 7\ns_add_u32 s{sT}, s{sT}, s{sT+1}')
        p(f'v_lshlrev_b32 v{t+3}, 4, v{t}\nv_lshlrev_b32 v{t+4}, 12, v{t+1}\nv_lshlrev_b32 v{t+5}, 8, v{t+2}\nv_add3_u32 v{t+4}, v{t+3}, v{t+4}, v{t+5}\nv_add_u32 v{vLO}, s{sT}, v{t+4}')
        p(f'v_add_u32 v{vLS}, {LDS_SCR}, v{t+3}\nv_lshl_add_u32 v{vLS+1}, v2, 2, v{vLS}')
        p(f's_and_b32 s{sT}, s{sW}, 1\ns_mul_i32 s{sT}, s{sT}, {32*7168}\ns_mul_i32 s{sT+1}, s{sCB}, 224\ns_add_u32 s{sT}, s{sT}, s{sT+1}')
        p(f's_mov_b32 s{sT+1}, 4682\ns_mov_b32 s{sT+2}, 7168')
        for n in range(448): assert (n*4682) >> 16 == n // 14
        t = 32
        for pc in range(7):
            p(f'v_add_u32 v{t}, {64*pc}, v1')
            p(f'v_mul_u32_u24 v{t+1}, s{sT+1}, v{t}\nv_lshrrev_b32 v{t+1}, 16, v{t+1}')
            p(f'v_mul_u32_u24 v{t+2}, 14, v{t+1}\nv_sub_u32 v{t+2}, v{t}, v{t+2}')
            p(f'v_and_b32 v{t+3}, 0x13, v{t+1}\nv_and_b32 v{t+4}, 4, v{t+1}\nv_lshl_or_b32 v{t+3}, v{t+4}, 1, v{t+3}')
            p(f'v_bfe_u32 v{t+4}, v{t+1}, 3, 1\nv_lshl_or_b32 v{t+3}, v{t+4}, 2, v{t+3}')
            p(f'v_mul_u32_u24 v{t+3}, s{sT+2}, v{t+3}\nv_lshlrev_b32 v{t+2}, 4, v{t+2}\nv_add3_u32 v{vDW+pc}, v{t+3}, v{t+2}, s{sT}')
            if pc % 4: p(f'v_subrev_u32 v{vDW+pc}, {1024*(pc%4)}, v{vDW+pc}')
        p(f's_lshl_b32 s{sT}, s{sW}, 17\ns_lshl_b32 s{sT+1}, s{sCB}, 8\ns_add_u32 s{sT}, s{sT}, s{sT+1}')
        p(f'v_lshrrev_b32 v{t}, 4, v1\nv_and_b32 v{t+1}, 15, v1\nv_lshlrev_b32 v{t+2}, 1, v{t}\nv_xor_b32 v{t+1}, v{t+1}, v{t+2}')
        p(f'v_lshlrev_b32 v{t}, 13, v{t}\nv_add_u32 v{t}, s{sT}, v{t}')
        for j in range(4):
            p(f'v_xor_b32 v{t+2}, {8*(j>>1)}, v{t+1}\nv_lshl_add_u32 v{t+2}, v{t+2}, 4, v{t}')
            p(f'v_add_u32 v{vDQ+j}, {j*(4*8192-1024)}, v{t+2}')
        p(f's_and_b32 s{sT}, s{sW}, 1\ns_lshr_b32 s{sT+1}, s{sW}, 1')
        p(f's_mul_i32 s{sMW}, s{sT}, {HS}\ns_mul_i32 s{sRW}, s{sT+1}, 7168')
        p(f's_mul_i32 s{sMQ}, s{sT+1}, {HS}\ns_lshl_b32 s{sRQ}, s{sT}, 12\ns_add_u32 s{sRQ}, s{sRQ}, 14336')
        p(f's_mov_b32 s{sKW}, 0\ns_mov_b32 s{sKQ}, 0\ns_mov_b32 s{sKA}, {2*KA}')
        p(f's_mov_b32 s{sRD}, 0')
        p(f's_lshl_b32 s{sT}, s{sRB}, 8\ns_lshl_b32 s{sT+1}, s{sW}, 6\ns_add_u32 s{sT+5}, s{sT}, s{sT+1}\ns_lshl_b32 s{sT}, s{sT+5}, 11')
        p(f'v_and_b32 v32, 15, v1\nv_lshrrev_b32 v34, 4, v1')
        for j in range(4):
            p(f'v_add_u32 v33, {4*j}, v34\nv_xor_b32 v35, v33, v32\nv_lshlrev_b32 v33, 11, v33\nv_lshl_add_u32 v33, v35, 4, v33\ns_sub_u32 s{sT+1}, s{sT}, {1024*j}\nv_add_u32 v{vRX+j}, s{sT+1}, v33')
        p(f's_lshl_b32 s{sT}, s{sT+5}, 4\nv_lshl_add_u32 v{vSR}, v32, 4, s{sT}')

    if not cfg.lad: late_addr()
    p('s_waitcnt lgkmcnt(0)')
    ts.stamp(p, 33)
    S_X0 = S_H
    srd(p, S_X0, pX, 0, 4 << 20)
    vLD = 144
    for i in range(4): p(f'buffer_load_dwordx4 v[{vLD+4*i}:{vLD+4*i+3}], v{vLX}, s[{S_X0}:{S_X0+3}], 0 offen offset:{64*i}')
    vP1, vP2, vPD = 136, 137, 138
    def code_srd(q, lbl):
        return [f's_getpc_b64 s[{q}:{q+1}]\n{lbl}:\ns_sub_u32 s{q}, s{q}, {lbl}-K_first\ns_subb_u32 s{q+1}, s{q+1}, 0', f's_mov_b32 s{q+2}, K_last-K_first', f's_mov_b32 s{q+3}, 0x20000']
    def code_pf(q, dst):
        return [f'buffer_load_dword v{dst}, v0, s[{q}:{q+3}], 0 offen ;pf']
    for x in code_srd(S_O, 'L_pc1'): p(x)
    p(f's_lshr_b32 s{sT}, s2, 3\ns_lshl_b32 s{sT}, s{sT}, 2\ns_add_u32 s{sT}, s{sT}, s{sW}\ns_lshl_b32 s{sT}, s{sT}, 10\nv_and_b32 v32, 15, v1\nv_lshl_add_u32 v0, v32, 6, s{sT}')
    for x in code_pf(S_O, vPD): p(x)
    def raw(q):
        p(f's_lshl_b32 s{sT}, s{sW}, 14\ns_add_u32 m0, s{sT}, {RAWL + 4096*q}\ns_mov_b32 s{sT}, {32768*q}')
        for j in range(4): p(f'buffer_load_dwordx4 v{vRX+j}, s[{S_X0}:{S_X0+3}], s{sT} offen offset:{1024*j} lds', ('R', 1, 0, 0))
    srd(p, S_DB, pDBG, 0, 256)
    p(f's_lshl_b32 s{sT}, s2, 2\ns_add_u32 s{sT}, s{sT}, s{sW}\ns_cmp_eq_u32 s{sT}, 1\ns_cbranch_scc0 L_no_nonce')
    p.cond(True)
    p(f's_memrealtime s[{sNO}:{sNO+1}]\nv_mov_b32 v34, 0\ns_waitcnt lgkmcnt(0)\ns_and_b32 s{sNO}, s{sNO}, 0xffffffc0\ns_or_b32 s{sNO}, s{sNO}, 1\ns_getreg_b32 s{sT}, hwreg(HW_REG_XCC_ID, 0, 1)\ns_lshl_b32 s{sT}, s{sT}, 5\ns_or_b32 s{sNO}, s{sNO}, s{sT}\nv_mov_b32 v32, s{sNO}\nv_mov_b32 v33, s{sNO+1}')
    p(f'buffer_store_dwordx2 v[32:33], v34, s[{S_DB}:{S_DB+3}], 0 offen sc1')
    p.cond(False)
    p('L_no_nonce:')
    if cfg.lad == 1: late_addr()
    p(f's_cmp_ge_u32 s{sW}, 2\ns_cselect_b32 s{S_W}, s{pWU}, s{pWG}\ns_cselect_b32 s{S_W+1}, s{pWU+1}, s{pWG+1}')
    p(f's_mov_b32 s{S_W+2}, {1024*7168:#x}\ns_mov_b32 s{S_W+3}, 0x20000')
    srd(p, S_Q, pWQ, 0, 8 << 20)
    def adv_w():
        return [f's_add_u32 s{sKW}, s{sKW}, {KW}',
                f's_add_u32 s{sMW}, s{sMW}, {2*HS}', f's_cmp_ge_u32 s{sMW}, {NHS*HS}\ns_cselect_b32 s{sT}, {NHS*HS}, 0\ns_sub_u32 s{sMW}, s{sMW}, s{sT}']
    def adv_q():
        return [f's_add_u32 s{sKQ}, s{sKQ}, {KQ}',
                f's_add_u32 s{sMQ}, s{sMQ}, {2*HS}', f's_cmp_ge_u32 s{sMQ}, {NHS*HS}\ns_cselect_b32 s{sT}, {NHS*HS}, 0\ns_sub_u32 s{sMQ}, s{sMQ}, s{sT}']
    def adv_a():
        return [f's_add_u32 s{sKA}, s{sKA}, {KA}',
                f's_cmp_eq_u32 s{sKA}, {NT*KA}\ns_cselect_b32 s{S_XN+2}, 0, s{S_XN+2}']
    sRD1, sDL1, vTr1 = 47, 48, 144
    def adv_rd(e):
        r_, d_ = (sRD, sDL) if e == 0 else (sRD1, sDL1)
        return [f's_add_u32 s{r_}, s{r_}, {2*HS}', f's_mov_b32 s{d_}, {2*HS}',
                f's_cmp_ge_u32 s{r_}, {NHS*HS}\ns_cselect_b32 s{d_}, {-(NHS-2)*HS}, s{d_}\ns_cselect_b32 s{sT}, {NHS*HS}, 0', f's_sub_u32 s{r_}, s{r_}, s{sT}']
    def dma(pc, tile, stride):
        tag = ('W', NHS, 2*tile + 1, 2*stride)
        if pc < 7: return (f'buffer_load_dwordx4 v{vDW+pc}, s[{S_W}:{S_W+3}], s{sKW} offen offset:{1024*(pc%4)} {cfg.gsc} lds', tag)
        return (f'buffer_load_dwordx4 v{vDQ+pc-7}, s[{S_Q}:{S_Q+3}], s{sKQ} offen offset:{1024*(pc-7)} {cfg.gsc} lds', tag)
    def m0set(pc):
        if pc == 0: return [f's_add_u32 m0, s{sMW}, s{sRW}']
        if pc == 4: return [f's_add_u32 m0, m0, 4096']
        if pc == 7: return [f's_add_u32 m0, s{sMQ}, s{sRQ}']
        return []
    def dma_tile(tile):
        for d in range(11):
            for x in m0set(d): p(x)
            if m0set(d): p('s_nop 0')
            emit(p, dma(d, tile, 0))
            if d == 6:
                for x in adv_w(): p(x)
            if d == 10:
                for x in adv_q(): p(x)
    if cfg.t0e & 1: dma_tile(0)
    if cfg.t0e & 2:
        for q in range(4): raw(q)
    srd(p, S_FL, pWS, WS_FL, 4352*128)
    srd(p, S_XN, pWS, WS_XN, 5 << 20)
    p(f's_lshl_b32 s{sT}, s{sRB}, 4\ns_lshl_b32 s{sT+1}, s{sW}, 2\ns_add_u32 s{sT}, s{sT}, s{sT+1}\ns_mul_i32 s{sT}, s{sT}, {XST}')
    p(f'v_lshlrev_b32 v{vT}, 4, v1\nv_add_u32 v{vAct}, s{sT}, v{vT}')
    for b in range(1, 4): p(f'v_add_u32 v{vAct+b}, {b*XST:#x}, v{vAct}')
    t = 32
    p(f'v_lshrrev_b32 v{t}, 5, v1\nv_lshlrev_b32 v{t}, 4, v{t}\nv_bfe_u32 v{t+1}, v1, 4, 1\nv_lshlrev_b32 v{t+1}, 2, v{t+1}\nv_bfe_u32 v{t+2}, v1, 2, 2')
    p(f'v_add3_u32 v{t}, v{t}, v{t+1}, v{t+2}\nv_mul_u32_u24 v{t}, 224, v{t}\nv_and_b32 v{t+3}, 3, v1\nv_lshlrev_b32 v{t+3}, 3, v{t+3}\nv_add_u32 v{vTr}, v{t}, v{t+3}')
    p(f'v_or_b32 v{t+1}, v{t+1}, v{t+2}')
    p(f'v_lshrrev_b32 v{t}, 4, v1\nv_lshlrev_b32 v{t}, 3, v{t}\nv_add_u32 v{t}, v{t}, v{t+2}\nv_lshlrev_b32 v{t}, 8, v{t}')
    p(f'v_add_u32 v{t}, 14336, v{t}\nv_add_u32 v{t}, v{t}, v{t+3}')
    for tt in range(8):
        p(f'v_xor_b32 v{t+2}, {tt}, v{t+1}\nv_lshl_add_u32 v{vTq+tt}, v{t+2}, 5, v{t}')
    if cfg.trk:
        p(f'v_lshrrev_b32 v32, 3, v1\nv_and_b32 v33, 7, v1\ns_lshl_b32 s{sT}, s{sRB}, 3\ns_add_u32 s{sT}, s{sT}, {64*cfg.trk}\nv_add_u32 v32, s{sT}, v32\nv_lshlrev_b32 v35, 6, v33')
        p(f's_mul_i32 s{sT+1}, s{sCB}, 224\ns_add_u32 s{sT+2}, s{sT+1}, {224+127}\ns_and_b32 s{sT+1}, s{sT+1}, -128\ns_and_b32 s{sT+2}, s{sT+2}, -128\ns_sub_u32 s{sT+2}, s{sT+2}, s{sT+1}')
        p(f'v_mul_u32_u24 v34, 7168, v32\nv_add3_u32 v{vP1}, v34, v35, s{sT+1}')
        p(f'v_lshlrev_b32 v34, 13, v32\ns_lshl_b32 s{sT+1}, s{sCB}, 8\nv_add3_u32 v{vP2}, v34, v35, s{sT+1}')
        p(f'v_cmp_gt_u32 vcc, s{sT+2}, v35\ns_and_b32 s{sT}, s{sW}, 1\ns_cmp_eq_u32 s{sT}, 0\ns_cselect_b64 vcc, vcc, 0\nv_mov_b32 v34, 0xf0000000\ns_nop 1\nv_cndmask_b32 v{vP1}, v34, v{vP1}, vcc')
        p(f'v_cmp_gt_u32 vcc, 4, v33\ns_cmp_eq_u32 s{sW}, 1\ns_cselect_b64 vcc, vcc, 0\ns_nop 1\nv_cndmask_b32 v{vP2}, v34, v{vP2}, vcc')
    def touch_tiles(tiles):
        p(f'v_subrev_u32 v34, {64*cfg.trk*7168}, v{vP1}\nv_subrev_u32 v35, {64*cfg.trk*8192}, v{vP2}')
        for tl in tiles:
            p(f's_mov_b32 s{sT}, {tl*KW}\ns_mov_b32 s{sT+1}, {tl*KQ}')
            p(f'buffer_load_dword v{vPD}, v34, s[{S_W}:{S_W+3}], s{sT} offen ;pf\nbuffer_load_dword v{vPD}, v35, s[{S_Q}:{S_Q+3}], s{sT+1} offen ;pf')
    if cfg.trk: touch_tiles(([] if cfg.t0e & 1 else [0]) + ([1] if cfg.t1e else []))
    ts.stamp(p, 32)
    X = 160; sM = sT + 4
    p(f's_mov_b32 s{sM}, 0xffff0000')
    p(f's_lshl_b32 s{sT}, s{sRB}, 5\ns_add_u32 s{sT+1}, s{sT}, s{sCB}\ns_lshl_b32 s{sT+1}, s{sT+1}, 7\nv_mov_b32 v45, s{sT+1}')
    p(f's_lshl_b32 s{sT+3}, s{sT+1}, 2\ns_lshl_b32 s{sT+2}, s{sW}, 7\ns_add_u32 s{sT+3}, s{sT+3}, s{sT+2}\ns_add_u32 s{sT+3}, s{sT+3}, {1280*128}\nv_mov_b32 v31, s{sT+3}')
    p(f's_lshl_b32 s{sT+2}, s{sW}, 3\ns_add_u32 s{sT}, s{sT}, s{sT+2}\ns_lshl_b32 s{sT}, s{sT}, 9\ns_add_u32 s{sT}, s{sT}, {1280*128}\nv_and_b32 v30, 31, v1\nv_lshl_add_u32 v30, v30, 7, s{sT}')
    p(f'v_lshl_add_u32 v46, v1, 4, v45\nv_cmp_gt_u32 vcc, 8, v1\nv_mov_b32 v47, -1\ns_nop 0\nv_cndmask_b32 v46, v47, v46, vcc\nv_mov_b32 v44, 0')
    for i in range(16): p(f'v_lshlrev_b32 v{X+2*i}, 16, v{vLD+i}\nv_and_b32 v{X+2*i+1}, s{sM}, v{vLD+i}')
    def red(v, tt, off):
        p(f's_nop 1\nv_add_f32_dpp v{v}, v{v}, v{v} row_ror:8 row_mask:0xf bank_mask:0xf')
        p(f'v_mov_b32 v{tt}, v{v}\ns_nop 1\nv_permlane16_swap_b32 v{v}, v{tt}\ns_nop 1\nv_add_f32 v{v}, v{v}, v{tt}')
        p(f'v_mov_b32 v{tt}, v{v}\ns_nop 1\nv_permlane32_swap_b32 v{v}, v{tt}\ns_nop 1\nv_add_f32 v{v}, v{v}, v{tt}')
        p(f'ds_write_b32 v{vLS+1}, v{v} offset:{off}\ns_waitcnt lgkmcnt(0)\ns_barrier')
        p(f'ds_read_b128 v[40:43], v{vLS} offset:{off}')
        p(f'v_add_f32 v40, v40, v41\nv_add_f32 v42, v42, v43\nv_add_f32 v{v}, v40, v42\nv_mul_f32 v{v}, {f2u(1/1024):#x}, v{v}')
    ts.stamp(p, 32)
    p(f'buffer_load_dwordx2 v[2:3], v44, s[{S_DB}:{S_DB+3}], 0 offen sc1')
    for a in range(0, 4, 2): p(f'v_pk_add_f32 v[{32+a}:{33+a}], v[{X+a}:{X+a+1}], v[{X+4+a}:{X+5+a}]')
    for i in range(8, 32, 2): p(f'v_pk_add_f32 v[{32+i%4}:{33+i%4}], v[{32+i%4}:{33+i%4}], v[{X+i}:{X+i+1}]')
    p('v_pk_add_f32 v[32:33], v[32:33], v[34:35]\nv_add_f32 v32, v32, v33')
    red(32, 33, 0)
    p('v_mov_b32 v33, v32')
    for i in range(0, 32, 2): p(f'v_pk_add_f32 v[{X+32+i}:{X+33+i}], v[{X+i}:{X+i+1}], v[32:33] neg_lo:[0,1] neg_hi:[0,1]')
    for a in range(0, 4, 2): p(f'v_pk_mul_f32 v[{36+a}:{37+a}], v[{X+32+a}:{X+33+a}], v[{X+32+a}:{X+33+a}]')
    for i in range(4, 32, 2): p(f'v_pk_fma_f32 v[{36+i%4}:{37+i%4}], v[{X+32+i}:{X+33+i}], v[{X+32+i}:{X+33+i}], v[{36+i%4}:{37+i%4}]')
    p('v_pk_add_f32 v[36:37], v[36:37], v[38:39]\nv_add_f32 v36, v36, v37')
    red(36, 37, 128)
    def rnd(v): p(f'v_cvt_pk_bf16_f32 v{v}, v{v}, v{v}\nv_lshlrev_b32 v{v}, 16, v{v}')
    rnd(32); rnd(36)
    p(f'v_add_f32 v36, {f2u(1e-5):#x}, v36'); rnd(36)
    p('v_sqrt_f32 v36, v36\ns_nop 0'); rnd(36)
    p('v_rcp_f32 v36, v36')
    S_ST = S_V
    srd(p, S_ST, pWS, WS_ST, 2048*16)
    ts.stamp(p, 32)
    p.touch('v[2:3]')
    p('L_no_retry:')
    p(f'v_readfirstlane_b32 s{sNO}, v2\nv_readfirstlane_b32 s{sNO+1}, v3\ns_nop 0\ns_cmp_lg_u32 s{sNO}, 0\ns_cbranch_scc1 L_no_ok')
    p.cond(True)
    p(f'buffer_load_dwordx2 v[2:3], v44, s[{S_DB}:{S_DB+3}], 0 offen sc1\ns_waitcnt vmcnt(0)\ns_branch L_no_retry')
    p.cond(False)
    p('L_no_ok:')
    p(f's_cmp_eq_u32 s{sW}, 1\ns_cbranch_scc0 L_st_skip')
    p.cond(True)
    p(f'v_mov_b32 v40, v32\nv_mov_b32 v41, v36\nv_mov_b32 v42, v2\nv_mov_b32 v43, v3\nbuffer_store_dwordx4 v[40:43], v46, s[{S_ST}:{S_ST+3}], 0 offen sc1')
    p.cond(False)
    p('L_st_skip:')
    ts.stamp(p, 33)
    p('v_mov_b32 v33, v32\nv_mov_b32 v37, v36')
    if not cfg.t0e & 1: dma_tile(0)
    for i in range(16):
        if i % 4 == 0 and not cfg.t0e & 2: raw(i // 4)
        a, b = X+2*i, X+2*i+1
        p(f'v_pk_add_f32 v[{a}:{b}], v[{a}:{b}], v[32:33] neg_lo:[0,1] neg_hi:[0,1]\nv_cvt_pk_bf16_f32 v{a}, v{a}, v{b}')
        p(f'v_and_b32 v{b}, s{sM}, v{a}\nv_lshlrev_b32 v{a}, 16, v{a}')
        p(f'v_pk_mul_f32 v[{a}:{b}], v[{a}:{b}], v[36:37]\nv_cvt_pk_bf16_f32 v{240+i}, v{a}, v{b}')
    RC = 224
    def rec_loads():
        for b in range(4): p(f'buffer_load_dwordx4 v[{RC+4*b}:{RC+4*b+3}], v{vSR}, s[{S_ST}:{S_ST+3}], 0 offen offset:{256*b} sc1')
    rec_loads()
    xst = [(f'buffer_store_dwordx4 v[{240+4*i}:{240+4*i+3}], v{vLO}, s[{S_XN}:{S_XN+3}], 0 offen offset:{1024*i} sc1', ('Xst', 1, 0, 0)) for i in range(4)]
    if cfg.xe:
        for x in xst: emit(p, x)
    p(f'v_and_b32 v32, 15, v1\nv_lshrrev_b32 v33, 4, v1\nv_xor_b32 v33, v33, v32\nv_lshlrev_b32 v32, 8, v32\ns_lshl_b32 s{sT}, s{sW}, 14\ns_add_u32 s{sT}, s{sT}, {RAWL}\nv_add_u32 v32, s{sT}, v32')
    for u in range(4): p(f'v_xor_b32 v34, {4*u}, v33\nv_lshl_add_u32 v{36+u}, v34, 4, v32')
    p.need(('R', 1, 0, 0))
    for u in range(4):
        for b in range(4): p(f'ds_read_b128 v[{vB+16*u+4*b}:{vB+16*u+4*b+3}], v{36+u} offset:{4096*b}')
    if cfg.pun:
        for k in range(9): p(f'v_add_u32 v{vTr1+k}, {HS}, v{vTr+k}')
        for i in range(32): p(f'v_lshlrev_b32 v{X+2*i}, 16, v{vB+i}\nv_and_b32 v{X+2*i+1}, s{sM}, v{vB+i}')
    ts.stamp(p, 32)
    p.touch(f'v[{RC}:{RC+15}]')
    ts.stamp(p, 32)
    p('L_rec_chk:')
    p(f'v_cmp_ne_u64 vcc, s[{sNO}:{sNO+1}], v[{RC+2}:{RC+3}]')
    for b in range(1, 4): p(f'v_cmp_ne_u64 s[{sT+2}:{sT+3}], s[{sNO}:{sNO+1}], v[{RC+4*b+2}:{RC+4*b+3}]\ns_nop 0\ns_or_b64 vcc, vcc, s[{sT+2}:{sT+3}]')
    p('s_cbranch_vccz L_rec_ok')
    p.cond(True)
    rec_loads(); p('s_waitcnt vmcnt(0)\ns_branch L_rec_chk')
    p.cond(False)
    p('L_rec_ok:')
    ts.stamp(p, 33)
    vRI = 132; vMR = [128, 130, 131, 139]
    for b in range(4): p(f'v_mov_b32 v{vRI+b}, v{RC+4*b+1}\nv_mul_f32 v{vMR[b]}, v{RC+4*b}, v{RC+4*b+1}')
    NT0 = 140
    def norm(sub):
        out = []
        for b in range(4):
            for r in range(4):
                q = vB + 16*sub + 4*b + r; t0 = NT0 + 2*((4*b + r) % 2)
                out += [f'v_lshlrev_b32 v{t0}, 16, v{q}', f'v_and_b32 v{t0+1}, s{sM}, v{q}',
                        f'v_fma_f32 v{t0}, v{t0}, v{vRI+b}, -v{vMR[b]}', f'v_fma_f32 v{t0+1}, v{t0+1}, v{vRI+b}, -v{vMR[b]}',
                        f'v_cvt_pk_bf16_f32 v{q}, v{t0}, v{t0+1}']
        return out
    ts.stamp(p, 32)
    p('s_nop 0')
    def norm_pk(sub):
        for b in range(4):
            p(f'v_mov_b32 v32, v{vRI+b}\nv_mov_b32 v33, v{vRI+b}\nv_sub_f32 v34, 0, v{vMR[b]}\nv_sub_f32 v35, 0, v{vMR[b]}')
            for r in range(4):
                q = vB + 16*sub + 4*b + r
                p(f'v_lshlrev_b32 v{36+2*r}, 16, v{q}\nv_and_b32 v{37+2*r}, s{sM}, v{q}')
            for r in range(4): p(f'v_pk_fma_f32 v[{36+2*r}:{37+2*r}], v[{36+2*r}:{37+2*r}], v[32:33], v[34:35]')
            for r in range(4): p(f'v_cvt_pk_bf16_f32 v{vB + 16*sub + 4*b + r}, v{36+2*r}, v{37+2*r}')
    if cfg.pun:
        assert cfg.npre == 2
        for b in range(4):
            p(f'v_sub_f32 v{32+2*b}, 0, v{vMR[b]}\nv_mov_b32 v{RC+4*b}, v{vRI+b}\nv_mov_b32 v{33+2*b}, v{32+2*b}')
        for b in range(4):
            for sub in range(2):
                for r in range(4):
                    i = 16*sub + 4*b + r
                    p(f'v_pk_fma_f32 v[{X+2*i}:{X+2*i+1}], v[{X+2*i}:{X+2*i+1}], v[{RC+4*b}:{RC+4*b+1}], v[{32+2*b}:{33+2*b}]')
        for i in range(32): p(f'v_cvt_pk_bf16_f32 v{vB+i}, v{X+2*i}, v{X+2*i+1}')
    else:
        for sub in range(cfg.npre): norm_pk(sub)
    srd(p, S_K, pK, 0, 2 << 20); srd(p, S_V, pV, 0, 2 << 20)
    if cfg.trk: touch_tiles(range(2, cfg.trk + 2))
    if cfg.kvp:
        p(f's_lshr_b32 s{sT}, s2, 3\ns_lshl_b32 s{sT}, s{sT}, 2\ns_add_u32 s{sT}, s{sT}, s{sW}\ns_lshl_b32 s{sT}, s{sT}, 10')
        p(f's_lshr_b32 s{sT+1}, s{sCB}, 3\ns_lshl_b32 s{sT+1}, s{sT+1}, 19\ns_add_u32 s{sT}, s{sT}, s{sT+1}\ns_add_u32 s{sT}, s{sT}, {1536*256}')
        p(f'v_and_b32 v40, 15, v1\nv_lshlrev_b32 v40, 6, v40')
        p(f'buffer_load_dword v{vPD}, v40, s[{S_K}:{S_K+3}], s{sT} offen ;pf\nbuffer_load_dword v{vPD}, v40, s[{S_V}:{S_V+3}], s{sT} offen ;pf')
    ts.stamp(p, 32)
    def act(sub, b):
        r = vB + 16*(sub % RB) + 4*b
        return f'buffer_load_dwordx4 v[{r}:{r+3}], v{vAct+b}, s[{S_XN}:{S_XN+3}], s{sKA} offen offset:{1024*(sub % 2)}{SC}'
    NG = 22
    def vm_sched(step, g2):
        d = None; a = None
        if cfg.d0 <= g2 < cfg.d0 + 11*cfg.dstr and (g2 - cfg.d0) % cfg.dstr == 0: d = (g2 - cfg.d0)//cfg.dstr
        if cfg.a0 <= g2 < cfg.a0 + 8*cfg.astr and (g2 - cfg.a0) % cfg.astr == 0:
            k = (g2 - cfg.a0)//cfg.astr; a = (2*step + 2 + k // 4, k % 4)
        return d, a
    def flagchk(lbl, vaddr, vd):
        return [f'v_cmp_ne_u64 vcc, s[{sNO}:{sNO+1}], v[{vd}:{vd+1}]', 's_nop 0', 's_nop 0', f's_cbranch_vccz {lbl}_ok',
                f'{lbl}_spin: ;cond', f's_sleep {cfg.slp3} ;cond', f'buffer_load_dwordx2 v[{vd}:{vd+1}], v{vaddr}, s[{S_FL}:{S_FL+3}], 0 offen sc1 ;cond', 's_waitcnt vmcnt(0) ;cond',
                f'v_cmp_ne_u64 vcc, s[{sNO}:{sNO+1}], v[{vd}:{vd+1}] ;cond', 's_nop 1 ;cond', f's_cbranch_vccnz {lbl}_spin ;cond', f'{lbl}_ok:']
    def flag_store(lbl, va):
        return f's_cmp_eq_u32 s{sW}, 1\ns_cbranch_scc0 {lbl}\nbuffer_store_dwordx2 v[2:3], v{va}, s[{S_FL}:{S_FL+3}], 0 offen sc1 ;cond\n{lbl}:'
    def poll(lbl, vaddr, done):
        ld = lambda r: f'buffer_load_dwordx2 v[{r}:{r+1}], v{vaddr}, s[{S_FL}:{S_FL+3}], 0 offen sc1'
        if cfg.p2:
            p(f'{ld(36)}\ns_sleep {cfg.p2}\n{lbl}:\n{ld(38)}\ns_waitcnt vmcnt(1)\nv_cmp_ne_u64 vcc, s[{sNO}:{sNO+1}], v[36:37]\ns_nop 1\ns_cbranch_vccz {lbl}_x')
            p(f'{ld(36)}\ns_waitcnt vmcnt(1)\nv_cmp_ne_u64 vcc, s[{sNO}:{sNO+1}], v[38:39]\ns_nop 1\ns_cbranch_vccnz {lbl}\n{lbl}_x:')
            return
        p(f'{lbl}:')
        p(f'{ld(36)}\ns_waitcnt vmcnt(0)')
        p(f'v_cmp_ne_u64 vcc, s[{sNO}:{sNO+1}], v[36:37]\ns_nop 1\ns_cbranch_vccz {done}\ns_sleep {cfg.slp}\ns_branch {lbl}')
    vHF = 27
    srd(p, S_H, pWS, WS_H, 15 << 20)
    for q_ in range(4): p(f's_mov_b32 s{S_DB+q_}, s{S_O+q_}') if q_ < 3 else p(f's_mov_b32 s{S_DB+3}, 0x20000')
    p.need(('W', NHS, 1, 0))
    xflag = f'buffer_store_dwordx2 v[2:3], v31, s[{S_FL}:{S_FL+3}], 0 offen sc1'
    p('s_waitcnt lgkmcnt(0)\ns_barrier')
    P = cfg.P
    def trr(G, tile0, stride):
        step, g2 = divmod(G, 2*NG); t, s = divmod(g2, 2)
        r = vA + 4*(G % RA)
        tag = ('W', NHS, 2*(tile0 + step) + 1, 2*stride) if s == 1 else ('We!', 1, 0, 0)
        if t < 14: off = (t // 7)*7168 + (t % 7)*32; a = (vTr, vTr1)[s]; hh = 8*224
        else: off = 0; a = (vTq, vTr1 + 1)[s] + t - 14; hh = 1024
        return [(f'ds_read_b64_tr_b16 v[{r}:{r+1}], v{a} offset:{off}', tag),
                (f'ds_read_b64_tr_b16 v[{r+2}:{r+3}], v{a} offset:{off + hh}', tag)]
    if not cfg.pun:
        for k in range(9): p(f'v_add_u32 v{vTr1+k}, {HS}, v{vTr+k}')
    for G in range(P):
        for f in trr(G, 0, 0): emit(p, f)
    UN = 2
    p(f's_mov_b32 s{sDL}, 0\ns_mov_b32 s{sDL1}, 0\ns_mov_b32 s{sRD1}, {HS}\ns_mov_b32 s{sCNT}, {NT//UN - 1 - cfg.gl}')
    hi = {}; lo = {}
    def H(i, x): hi.setdefault(i, []).append(x)
    def L(i, x): lo.setdefault(i, []).append(x)
    NGB = 2*NG*UN
    vDK, vDV, vK, vV = 8, 12, 14, 18
    sKV, sMK, sAD, sPF = 39, 40, 43, 44
    k1 = -2*math.sqrt(2/math.pi)*math.log2(math.e); k2 = k1*0.044715
    vC = 28; vHs = 132
    def post_g():
        t = 128
        srd(p, S_O, pWS, WS_O, 17 << 20)
        p(f'v_lshrrev_b32 v{t}, 4, v1\nv_and_b32 v{t+1}, 15, v1')
        p(f's_lshl_b32 s{sMK}, s{sW}, 12')
        p(f'v_lshlrev_b32 v{t+2}, 8, v{t}\nv_add_u32 v{t+2}, s{sMK}, v{t+2}')
        for j in range(4):
            p(f'v_add_u32 v{t+3}, {4*j}, v{t}\nv_xor_b32 v{t+3}, v{t+3}, v{t+1}\nv_lshl_add_u32 v{vDK+j}, v{t+3}, 4, v{t+2}')
        p(f'v_lshlrev_b32 v{t+3}, 1, v{t}\nv_xor_b32 v{t+3}, v{t+3}, v{t+1}\nv_lshl_add_u32 v{vDV}, v{t+3}, 4, v{t+2}\nv_xor_b32 v{vDV+1}, 128, v{vDV}')
        p(f's_lshr_b32 s{sKV}, s{sCB}, 3\ns_lshl_b32 s{sKV}, s{sKV}, 19\ns_add_u32 s{sKV}, s{sKV}, {1536*256}')
        p(f'v_mov_b32 v{vC}, {f2u(k1):#x}\nv_mov_b32 v{vC+1}, {f2u(k1):#x}\nv_mov_b32 v{vC+2}, {f2u(k2):#x}\nv_mov_b32 v{vC+3}, {f2u(k2):#x}')
        p(f's_lshl_b32 s{sT+2}, s{sRB}, 4\ns_lshl_b32 s{sT+3}, s{sW}, 2\ns_add_u32 s{sT+2}, s{sT+2}, s{sT+3}\ns_mul_i32 s{sT+2}, s{sT+2}, {HST}')
        p(f's_mul_i32 s{sT+3}, s{sCB}, 7\ns_add_u32 s{sT+3}, s{sT+3}, 1\ns_lshr_b32 s{sT+3}, s{sT+3}, 1\ns_lshl_b32 s{sT+3}, s{sT+3}, 10')
        p(f's_add_u32 s{sT+2}, s{sT+2}, s{sT+3}')
        p(f'v_lshlrev_b32 v{t}, 4, v1\nv_add_u32 v{vAct}, s{sT+2}, v{t}')
        for b in range(1, 4): p(f'v_add_u32 v{vAct+b}, {b*HST:#x}, v{vAct}')
        p(f's_and_b32 s{sT+3}, s{sCB}, 1\ns_mul_i32 s{sT+4}, s{sT+3}, {-1016-3072}\ns_add_u32 s{sT+4}, s{sT+4}, 3072')
        for b in range(4): p(f'v_add_u32 v{vHs+b}, s{sT+4}, v{vAct+b}')
    def collect(fn):
        nonlocal p
        w = Prog(); q = p; p = w; fn(); p = q
        out = []
        for it in w.items:
            if it.op == 's_addc_u32': out[-1] = (out[-1][0] + '\n' + it.text, None)
            else: out.append((it.text, it.tag))
        return out
    def g_body(first, last=False):
        hi.clear(); lo.clear(); mf = []
        t0_, st_ = (0, 0) if first else (NT - UN, 0) if last else (UN, UN)
        if first:
            if not cfg.xe:
                for k, x in enumerate(xst): L(2 + cfg.fs1*2*k, x)
            H(cfg.xbar, lambda p: (p.need(('Xst', 1, 0, 0)), p(xflag)))
            for d in range(11):
                g_ = 2 + cfg.fs1*(2*d + 1 if d < 4 else d + 4)
                for x in m0set(d): L(g_, x)
                if m0set(d): L(g_, m0gap)
                L(g_, dma(d, 1, 0))
                if d == 6:
                    for x in adv_w(): L(g_, x)
                if d == 10:
                    for x in adv_q(): L(g_, x)
        seen = set()
        for G in range(NGB):
            step, g2 = divmod(G, 2*NG)
            if G % 2 == 0:
                t = g2 // 2
                for k, b in enumerate(range(3, -1, -1) if t % 2 else range(4)):
                    for s in (k % 2, 1 - k % 2):
                        ra = vA + 4*((G + s) % RA); rb = vB + 16*((2*step + s) % RB) + 4*b
                        new_ = first and (t, b) not in seen; seen.add((t, b))
                        mf.append(f'v_mfma_f32_16x16x32_bf16 {acc(t,b)}, v[{ra}:{ra+3}], v[{rb}:{rb+3}], {"0" if new_ else acc(t,b)}')
            i0 = 4*G; Gn = G + P; fn = Gn % (2*NG)
            if cfg.ltouch and G % 2 == 1 and not (last and G + 2 >= NGB): H(i0+3, lambda p, r=vA + 4*((G + 2) % RA): p.touch(f'v[{r}:{r+3}]'))
            if last and Gn >= NGB: continue
            if fn == 0:
                stepn = Gn // (2*NG)
                def bar_(p, stepn=stepn):
                    p.need(('W', NHS, 2*(t0_ + stepn) + 1, 2*st_))
                    if cfg.btouch: p.touch(f'v[{vB + 32*(stepn % 2)}:{vB + 32*(stepn % 2) + 31}]')
                    p.needrd(('We!', 1, 0, 0))
                    p('s_barrier')
                H(i0-1, bar_)
            Gr = Gn + (1 if fn == 41 else -1 if fn == 42 else 0)
            r0, r1 = trr(Gr % NGB, t0_ + (Gr // NGB)*UN, st_)
            H(i0, r0); H(i0+1, r1)
            if 2 <= fn <= 9: L(i0, f'v_add_u32 v{vTq+fn-2}, s{sDL}, v{vTq+fn-2}')
            if 10 <= fn <= 17: L(i0, f'v_add_u32 v{vTr1+1+fn-10}, s{sDL1}, v{vTr1+1+fn-10}')
            if fn in (18, 20):
                for x in adv_rd((fn - 18)//2): L(i0, x)
            if fn == 29: H(i0+2, f'v_add_u32 v{vTr}, s{sDL}, v{vTr}')
            if fn == 30: H(i0+2, f'v_add_u32 v{vTr1}, s{sDL1}, v{vTr1}')
            pc, a = vm_sched(step, g2)
            if last: pc = None
            if a is not None and not (first and a[0] < 4) and not (last and a[0] >= 4):
                g_ = max(i0, cfg.xchk + 4 + 8*(4*(a[0] - 4) + a[1])) if first else i0
                assert g_ < 320 or not first
                L(g_, act(*a))
                if a[1] == 3 and a[0] % 2 == 1:
                    for x in adv_a(): L(g_, x)
            if pc is not None:
                g_ = max(i0, 2 + cfg.fs1*(15 + pc)) if first and step == 0 else i0
                if cfg.trk and pc == 0:
                    L(g_, f'buffer_load_dword v{vPD}, v{vP1}, s[{S_W}:{S_W+3}], s{sKW} offen ;pf')
                    L(g_, f'buffer_load_dword v{vPD}, v{vP2}, s[{S_Q}:{S_Q+3}], s{sKQ} offen ;pf')
                for x in m0set(pc): L(g_, x)
                if m0set(pc): L(g_, m0gap)
                L(g_, dma(pc, t0_ + step + 2, st_))
                if pc == 6:
                    for x in adv_w(): L(g_, x)
                if pc == 10:
                    for x in adv_q(): L(g_, x)
        for x in code_pf(S_DB, vPD): L(4*(cfg.d0 + 10*cfg.dstr) + 1, x)
        if first:
            H(cfg.xchk - cfg.xfl, f'buffer_load_dwordx2 v[28:29], v30, s[{S_FL}:{S_FL+3}], 0 offen sc1')
            H(cfg.xchk, '\n'.join(flagchk('L_x', 30, 28)))
        elif last:
            assert 4*(cfg.a0 + 7*cfg.astr) < 4*(22 - P) + 4
            for x in collect(post_g): L(4*(22 - P) + 4, x)
            H(len(mf)-6, 's_waitcnt lgkmcnt(0)\ns_barrier')
        else:
            H(len(mf)-3, f's_sub_u32 s{sCNT}, s{sCNT}, 1'); H(len(mf)-2, f's_cmp_lg_u32 s{sCNT}, 0')
            H(len(mf)-1, 's_cbranch_scc1 G_loop')
        lo_ = {k: lo[k] for k in sorted(lo)}
        fill = spread(hi, lo_, len(mf), cfg.cap, 60 if first else 200 if last else 16, cost=lambda i: 1 if i % 8 == 7 else 2 if i == -1 else 0)
        fix_m0(fill, len(mf))
        if first:
            nn = 4 - cfg.npre
            for k, sub in enumerate(range(cfg.npre, 4)):
                g0, g1 = 172*k//nn, 172*(k + 1)//nn
                q_ = norm(sub); per = len(q_)/(g1 - g0); due = 0.0; done = 0
                for i in range(g0, g1):
                    due += per; used = len(fill[i]) + (1 if i % 4 == 3 else 0)
                    while q_ and done < due + 2 and (used < cfg.cap or done < due - cfg.lag):
                        fill[i].append(q_.pop(0)); used += 1; done += 1
                fill[g1 - 1] += q_
        elif not last: chk_tail(fill, len(mf))
        if first:
            for i in (43, 87, 131, 175, 219, 263, 307):
                t_ = ts.text(64)
                if t_: fill[i].append(t_)
        interleave(p, mf, fill)
    ts.stamp(p, 97)
    g_body(True)
    if cfg.xt: p.touch(f'v[{vB}:{vB+16*cfg.xt-1}]')
    ts.stamp(p, 96)
    p.loop_begin('G_loop', NT//UN - 1 - cfg.gl)
    g_body(False)
    p.loop_end()
    if cfg.gl: g_body(False, True); p('s_nop 3')
    else:
        p('s_waitcnt vmcnt(0) lgkmcnt(0)\ns_barrier'); post_g()
    ts.stamp(p, 5)

    def kdma(j, soff, tag): return (f'buffer_load_dwordx4 v{vDK+j}, s[{S_K}:{S_K+3}], s{soff} offen offset:{1024*j} lds', tag)
    def vdma(j, soff, tag): return (f'buffer_load_dwordx4 v{vDV + (j & 1)}, s[{S_V}:{S_V+3}], s{soff} offen offset:{1024*j} lds', tag)
    kvq = []
    for (kind, tl) in (('K', 0), ('K', 1), ('V', 0), ('K', 2), ('V', 1)):
        g = [f's_add_u32 s{sT+5}, s{sKV}, {tl*16384}', f's_add_u32 m0, s{sMK}, {tl*16384 + (65536 if kind == "V" else 0)}', 's_nop 0']
        for j in range(4):
            kvq.append(g + [(kdma if kind == 'K' else vdma)(j, sT+5, (kind, 4, tl, 0))]); g = []
    p(f's_bitcmp0_b32 s{sCB}, 0')
    def gelu_tiles(tiles):
        n = len(tiles)
        Xs = [32 + 12*i for i in range(n)]
        pk = lambda r: f'v[{r}:{r+1}]'
        for (t, b, d), X in zip(tiles, Xs):
            for r in range(4): p(f'v_accvgpr_read_b32 v{X+r}, {accr(t,b,r)}')
        for X in Xs:
            for r in (0, 2): p(f'v_pk_mul_f32 {pk(X+8+r)}, {pk(X+r)}, {pk(X+r)}')
        for X in Xs:
            for r in (0, 2): p(f'v_pk_fma_f32 {pk(X+8+r)}, {pk(X+8+r)}, {pk(vC+2)}, {pk(vC)}')
        for X in Xs:
            for r in (0, 2): p(f'v_pk_mul_f32 {pk(X+8+r)}, {pk(X+8+r)}, {pk(X+r)}')
        for (t, b, d), X in zip(tiles, Xs):
            for r in range(4): p(f'v_exp_f32 v{X+8+r}, v{X+8+r}')
            for r in range(4): p(f'v_accvgpr_read_b32 v{X+4+r}, {accr(t+7,b,r)}')
        for X in Xs:
            for r in (0, 2): p(f'v_pk_add_f32 {pk(X+8+r)}, {pk(X+8+r)}, 1.0 op_sel_hi:[1,0]')
        for X in Xs:
            for r in range(4): p(f'v_rcp_f32 v{X+8+r}, v{X+8+r}')
            for r in (0, 2): p(f'v_pk_mul_f32 {pk(X+4+r)}, {pk(X+4+r)}, {pk(X+r)}')
        for X in Xs:
            for r in (0, 2): p(f'v_pk_mul_f32 {pk(X+4+r)}, {pk(X+4+r)}, {pk(X+8+r)}')
        for (t, b, d), X in zip(tiles, Xs):
            p(f'v_cvt_pk_bf16_f32 v{d}, v{X+4}, v{X+5}\nv_cvt_pk_bf16_f32 v{d+1}, v{X+6}, v{X+7}')
    for par in range(2):
        if par == 0: p('s_cbranch_scc0 B_epi_odd')
        else: p.cond(True); p('B_epi_odd:')
        n = 0; kq = list(kvq)
        for b in range(4):
            for pr in range(3):
                d = 64 + 4*(n % 8); n += 1
                for _ in range(2):
                    if kq:
                        for x in kq.pop(0): emit(p, x)
                gelu_tiles([(2*pr + par, b, d), (2*pr + 1 + par, b, d + 2)])
                p(f'buffer_store_dwordx4 v[{d}:{d+3}], v{vAct+b}, s[{S_H}:{S_H+3}], 0 offen offset:{1024*pr}{LS}', ('Hst', 1, 0, 0))
        for b in range(0, 4, 2):
            d = 64 + 4*(n % 8); n += 1
            gelu_tiles([(6 if par == 0 else 0, b, d), (6 if par == 0 else 0, b+1, d+2)])
            p(f'buffer_store_dwordx2 v[{d}:{d+1}], v{vHs+b}, s[{S_H}:{S_H+3}], 0 offen{LS}', ('Hst', 1, 0, 0))
            p(f'buffer_store_dwordx2 v[{d+2}:{d+3}], v{vHs+b+1}, s[{S_H}:{S_H+3}], 0 offen{LS}', ('Hst', 1, 0, 0))
        if par == 0: p('s_branch B_epi_done')
    p.cond(False)
    p('B_epi_done:')
    ts.stamp(p, 5)
    vQ = 64
    qs = math.log2(math.e)/math.sqrt(128)
    def Qreg(b, u): return vQ + (u*4 + b)*4
    def qconv(b, u):
        d = Qreg(b, u)
        for half in range(2):
            x = 32 + 4*half; tl = 14 + 2*u + half
            src = accr(tl, b, 0)
            if src[0] == 'a':
                for r in range(4): p(f'v_accvgpr_read_b32 v{x+r}, {accr(tl, b, r)}')
                s0 = x
            else: s0 = int(src[1:])
            for r in (0, 2): p(f'v_pk_mul_f32 v[{x+r}:{x+r+1}], v[{s0+r}:{s0+r+1}], v[{vC}:{vC+1}]')
            p(f'v_cvt_pk_bf16_f32 v{d+2*half}, v{x}, v{x+1}\nv_cvt_pk_bf16_f32 v{d+2*half+1}, v{x+2}, v{x+3}')
    def qswap(b, u):
        d = Qreg(b, u)
        p(f'v_permlane16_swap_b32 v{d}, v{d+2}\nv_permlane16_swap_b32 v{d+1}, v{d+3}')
    t = 32
    def perm_g(dst, tmp):
        p(f'v_bfe_u32 v{dst}, v1, 4, 1\nv_lshlrev_b32 v{dst}, 1, v{dst}\nv_lshrrev_b32 v{tmp}, 5, v1\nv_or_b32 v{dst}, v{dst}, v{tmp}')
    perm_g(t+1, t+2)
    p(f'v_and_b32 v{t}, 15, v1\nv_xor_b32 v{t+1}, v{t+1}, v{t}\nv_lshlrev_b32 v{t}, 8, v{t}')
    for u in range(4):
        p(f'v_xor_b32 v{t+2}, {4*u}, v{t+1}\nv_lshl_add_u32 v{vK+u}, v{t+2}, 4, v{t}')
    p(f'v_mov_b32 v{vC}, {f2u(qs):#x}\nv_mov_b32 v{vC+1}, {f2u(qs):#x}')
    vS = [128, 160]; vP = [192, 208]; vN = 224; vL = 28
    aF = 192
    def Sreg(n, b): return vS[n % 2] + 8*b
    def Preg(n, b): return vP[n % 2] + 4*b
    AL = cfg.aloop
    def kread(n, s, st=0):
        r = aF + 4*s; h = n % 8 if not AL or n < 4 else n % 2 if n < 12 else n - 12
        return [(f'ds_read_b128 a[{r}:{r+3}], v{vK + s % 4} offset:{h*8192 + (s // 4)*4096}', ('K', 4, n//2, st))]
    def vread(n, f, tag, base=None, off0=None):
        r = aF + 32 + 4*f
        off = (n % 8 if not AL or n < 2 else n % 2 if n < 10 else n - 10)*8192 if off0 is None else off0
        b = vV if base is None else base
        return [(f'ds_read_b64_tr_b16 a[{r}:{r+1}], v{b+f} offset:{off}', tag),
                (f'ds_read_b64_tr_b16 a[{r+2}:{r+3}], v{b+f} offset:{off+4096}', tag)]
    def qk2(n, m, c0):
        out = []
        for k, b in enumerate(range(3, -1, -1) if m % 2 else range(4)):
            for i, e in enumerate((k % 2, 1 - k % 2)):
                s_ = 2*m + e; S = Sreg(n, b) + 4*(s_ // 4); Q = Qreg(b, s_ % 4)
                c = c0(b) if m % 2 == 0 and i == 0 else f'v[{S}:{S+3}]'
                out.append(f'v_mfma_f32_16x16x32_bf16 v[{S}:{S+3}], a[{aF+4*s_}:{aF+4*s_+3}], v[{Q}:{Q+3}], {c}')
        return out
    def pv(n, f, first=False):
        out = []
        for b in (range(3, -1, -1) if f % 2 else range(4)):
            o = (f*4+b)*4; P_ = Preg(n, b)
            out.append(f'v_mfma_f32_16x16x32_bf16 a[{o}:{o+3}], a[{aF+32+4*f}:{aF+32+4*f+3}], v[{P_}:{P_+3}], {"0" if first else f"a[{o}:{o+3}]"}')
        return out
    negm = lambda b: f'v[{vN+4*b}:{vN+4*b+3}]'
    zero = lambda b: '0'
    def sm_E(n, e): S = Sreg(n, 0) + e; return f'v_exp_f32 v{S}, v{S}'
    def sm_A(n, e, two=True):
        l = (240 if two and cfg.l2 and e % 2 else vL) + e//8
        return f'v_add_f32 v{l}, v{l}, v{Sreg(n, 0) + e}'
    def sm_C(n, e): S = Sreg(n, 0) + e; return f'v_cvt_pk_bf16_f32 v{Preg(n, 0) + e//2}, v{S}, v{S+1}'
    p.need(('K', 4, 0, 0)); p('s_barrier')
    for s in range(8): emit(p, kread(0, s)[0])
    ts.stamp(p, 5)
    for u in range(2):
        for b in range(4): qconv(b, u)
        for b in range(4): qswap(b, u)
    q0 = [qk2(0, m, zero) for m in range(4)]
    todo = [(b, u) for u in (2, 3) for b in range(4)]
    for k, (b, u) in enumerate(todo):
        qconv(b, u)
        if k: qswap(*todo[k-1])
        p(q0[0][k]); p(q0[2][k])
    for s in (0, 1, 4, 5): emit(p, kread(1, s)[0])
    qswap(*todo[-1])
    t = 36
    p(f'v_lshrrev_b32 v{t}, 2, v1\nv_and_b32 v{t+1}, 7, v{t}\nv_lshlrev_b32 v{t}, 8, v{t}\nv_and_b32 v{t+2}, 3, v1\nv_lshl_add_u32 v{t}, v{t+2}, 3, v{t}\nv_add_u32 v{t}, 0x10000, v{t}')
    for k in range(8):
        p(q0[1][k]); p(q0[3][k])
        p(f'v_xor_b32 v{t+2}, {k}, v{t+1}\nv_lshl_add_u32 v{vV+k}, v{t+2}, 5, v{t}')
    for s in (2, 3, 6, 7): emit(p, kread(1, s)[0])
    for i in range(4): p(f'v_mov_b32 v{vL+i}, 0\nv_mov_b32 v{240+i}, 0')
    def rowmax(n, first):
        for b in range(4):
            S = Sreg(n, b); m = 32 + b
            if first: p(f'v_max3_f32 v{m}, v{S}, v{S+1}, v{S+2}')
            else: p(f'v_max3_f32 v{m}, v{m}, v{S+1}, v{S+2}\nv_max_f32 v{m}, v{m}, v{S}')
            p(f'v_max3_f32 v{m}, v{m}, v{S+3}, v{S+4}\nv_max3_f32 v{m}, v{m}, v{S+5}, v{S+6}\nv_max_f32 v{m}, v{m}, v{S+7}')
    def xred(r, op):
        l = []
        for sw in ('v_permlane16_swap_b32', 'v_permlane32_swap_b32'):
            l += [f'v_mov_b32 v{36+b}, v{r+b}' for b in range(4)] + [None] + [f'{sw} v{r+b}, v{36+b}' for b in range(4)] + [None]
            l += [f'{op} v{r+b}, v{r+b}, v{36+b}' for b in range(4)]
        return l
    def set_negm():
        for x in xred(32, 'v_max_f32'): p(x if x else 's_nop 0')
        for b in range(4):
            p(f'v_sub_f32 v{vN+4*b}, 0, v{32+b}\nv_sub_f32 v{vN+4*b+1}, 0, v{32+b}\nv_pk_mul_f32 v[{vN+4*b+2}:{vN+4*b+3}], v[{vN+4*b}:{vN+4*b+1}], 1.0 op_sel_hi:[1,0]')
    ts.stamp(p, 4)
    c0 = negm
    rowmax(0, True); set_negm()
    for b in range(4):
        S = Sreg(0, b)
        for i in range(0, 8, 2): p(f'v_pk_add_f32 v[{S+i}:{S+i+1}], v[{S+i}:{S+i+1}], v[{vN+4*b}:{vN+4*b+1}]')
    ts.stamp(p, 4)
    S_WD, S_WO, S_AH, S_AO, S_X, S_OUT, S_P = 12, 8, 16, 20, 24, 28, 60
    sJ, sRC, sCC = 70, 71, 76
    kWD, kWO, kAH, kAO, cMW, cTG = 77, 75, 78, 42, 79, 49
    dD, dO, aH, aO, cTr, cA, cC = 40, 8, 48, 4, 52, 64, 128
    vFH = 60
    SLOT = 32768
    k_h = lambda pc: 4*pc
    k_o = lambda pc: 4*((pc & 1) | ((pc & 2) << 1) | ((pc & 4) >> 1))
    sDE = 85
    def x_dma_addr(dst, kmap):
        t = 36
        p(f's_lshl_b32 s{sT+2}, s{sW}, 16\ns_lshl_b32 s{sT+3}, s{sCC}, 8\ns_add_u32 s{sT+2}, s{sT+2}, s{sT+3}')
        p(f'v_lshrrev_b32 v{t}, 4, v1\nv_and_b32 v{t+1}, 15, v1\nv_lshlrev_b32 v{t+2}, 1, v{t}\nv_xor_b32 v{t+1}, v{t+1}, v{t+2}')
        p(f'v_lshlrev_b32 v{t}, 11, v{t}\nv_add_u32 v{t}, s{sT+2}, v{t}')
        for e in range(2):
            p(f'v_xor_b32 v{t+2}, {8*e}, v{t+1}\nv_lshl_add_u32 v{dst+e}, v{t+2}, 4, v{t}')
            if cfg.cdel: p(f'v_lshrrev_b32 v{t+2}, 3, v{t+2}\nv_mad_i32_i24 v{dst+e}, v{t+2}, s{sDE}, v{dst+e}')
        for pc in range(7, -1, -1):
            o = (kmap(pc) << 11) - 1024*(pc % 4)
            if o or pc > 1: p(f'v_add_u32 v{dst+pc}, {o}, v{dst + (pc & 1)}')
    NS = ND + NSS; kind = lambda sg: 'd' if sg < ND else 's'
    def cdma(pc, sg):
        D_, S_, K_ = (dD, S_WD, kWD) if kind(sg) == 'd' else (dD, S_WO, kWO)
        g = []
        if pc % 4 == 0: g += [f's_add_u32 m0, s{cMW}, {(sg % 4)*SLOT + 1024*pc}', m0gap]
        g.append((f'buffer_load_dwordx4 v{D_+pc}, s[{S_}:{S_+3}], s{K_} offen offset:{1024*(pc%4)} {cfg.wsc} lds', ('C', 4, sg, 0)))
        if pc == 7: g.append(f's_add_u32 s{K_}, s{K_}, {128*2048}')
        return g
    def cact(sub, b):
        A_, S_, K_ = (aH, S_AH, kAH) if kind(sub // 4) == 'd' else (aO, S_AO, kAO)
        r = 128 + 16*(sub % 8) + 4*b
        g = [f'buffer_load_dwordx4 a[{r}:{r+3}], v{A_+b}, s[{S_}:{S_+3}], s{K_} offen offset:{1024*(sub % 4)}{SC}']
        if b == 3 and sub % 4 == 3: g.append(f's_add_u32 s{K_}, s{K_}, 4096')
        return g
    PF = cfg.PF; vPF = 33; sDM = 55; sPF = 44
    def L2(i, x): H(i, x)
    mf = []; hi.clear(); lo.clear()
    rds = []; start = {}; wgap = set()
    B1, B2, B5 = 4*(8 + 32), 4*(8 + 64), 4*(8 + 160)
    inl = lambda g: int(bool(AL) and B1 <= g < B2)
    for n in range(17):
        start[n] = len(rds)
        if n <= 14:
            for m in range(4):
                wgap.add(len(mf) - 1)
                if len(mf): H(len(mf) - 1, lambda p, r=aF + 8*m: p.touch(f'a[{r}:{r+7}]'))
                mf += qk2(n+1, m, c0)
                for e in range(2): rds.append(kread(n+1, 2*m+e, inl(4*(len(rds) - PF))) if n else [])
        if n >= 1:
            for f in range(8): wgap.add(len(mf) - 1); mf += pv(n-1, f, n == 1); rds.append(vread(n-1, f, ('V', 4, (n-1)//2, inl(4*(len(rds) - PF)))))
    n_ = len(mf)
    assert 4*start[3] == B1 and 4*start[5] == B2 and 4*start[11] == B5
    bargap = {}
    for j in range(8):
        g = 4*(start[2*j+1] - PF) - 1; bargap[j] = g
        def bar_(p, j=j, st=inl(g)):
            if j < 7: p.need(('K', 4, j+1, st))
            p.need(('V', 4, j, st))
            if j == cfg.hbar and not AL: p.need(('Hst', 1, 0, 0))
            p('s_barrier')
        hi.setdefault(g, []).insert(0, bar_)
    for i in range(len(rds) - PF):
        for k, r in enumerate(rds[i + PF]): H(4*i + k, r)
    for n in range(16):
        g0 = 4*start[n]; full = start[n+1] - start[n] == 16
        for k in range(17):
            ga, gb, gc, gd = (g0 + 4*k, g0 + 4*k + 1, g0 + 4*k + 2, g0 + 4*k + 3) if full else (g0 + 2*k, g0 + 2*k, g0 + 2*k + 1, g0 + 2*k + 1)
            if cfg.slag:
                if k == 16 and not full: gc = ga + 1
                if k: H(ga, sm_A(n, 2*k - 2))
                if k < 16: H(gb, sm_E(n, 2*k))
                if k: H(gc, sm_C(n, 2*k - 2) if not full or cfg.slag == 2 else sm_A(n, 2*k - 1)); H(gc, sm_A(n, 2*k - 1) if not full or cfg.slag == 2 else sm_C(n, 2*k - 2))
                if k < 16: H(gd, sm_E(n, 2*k + 1))
                continue
            if k == 16: gc = ga
            if k: H(ga, sm_A(n, 2*k - 1))
            if k < 16: H(gb, sm_E(n, 2*k))
            if k and not full: H(gc, sm_C(n, 2*k - 2))
            if k < 16: H(gc, sm_A(n, 2*k))
            if k and full: H(gc, sm_C(n, 2*k - 2))
            if k < 16: H(gd, sm_E(n, 2*k + 1))
    def act_addr(dst, stride, tmp):
        p(f's_and_b32 s{sT+3}, s{sJ}, 1\ns_mul_i32 s{sT+3}, s{sT+3}, {2*stride}\nv_lshlrev_b32 v{tmp}, 4, v1\nv_add_u32 v{dst+2}, s{sT+2}, v{tmp}')
        p(f'v_add_u32 v{dst}, s{sT+3}, v{dst+2}\nv_add_u32 v{dst+1}, {stride}, v{dst}\ns_sub_u32 s{sT+3}, {2*stride}, s{sT+3}\nv_add_u32 v{dst+2}, s{sT+3}, v{dst+2}\nv_add_u32 v{dst+3}, {stride}, v{dst+2}')
    def out_addr(dst):
        p(f's_lshl_b32 s{sT+2}, s{sRC}, 8\ns_lshl_b32 s{sT+3}, s{sW}, 6\ns_add_u32 s{sT+2}, s{sT+2}, s{sT+3}\ns_and_b32 s{sT+3}, s{sJ}, 1\ns_lshl_b32 s{sT+3}, s{sT+3}, 5\ns_add_u32 s{sT+2}, s{sT+2}, s{sT+3}\ns_lshl_b32 s{sT+2}, s{sT+2}, 11')
        p(f's_lshl_b32 s{sT+3}, s{sCC}, 8\ns_add_u32 s{sT+2}, s{sT+2}, s{sT+3}\ns_lshr_b32 s{sT+3}, s{sJ}, 1\ns_lshl_b32 s{sT+3}, s{sT+3}, 7\ns_add_u32 s{sT+2}, s{sT+2}, s{sT+3}')
        t = 36
        p(f'v_and_b32 v{t}, 7, v1\nv_lshlrev_b32 v{t}, 11, v{t}\nv_bfe_u32 v{t+1}, v1, 3, 1\nv_lshl_add_u32 v{t}, v{t+1}, 6, v{t}\nv_bfe_u32 v{t+1}, v1, 4, 1\nv_lshl_add_u32 v{t}, v{t+1}, 5, v{t}')
        p(f'v_lshrrev_b32 v{t+1}, 5, v1\nv_lshl_add_u32 v{t}, v{t+1}, 4, v{t}\nv_add_u32 v{dst}, s{sT+2}, v{t}')
    XL = 0x20000 + 4096
    def x_stage():
        out_addr(39)
        srd(p, S_H, pX, 0, 4 << 20)
        for b in range(4):
            p(f's_add_u32 m0, s{sDM}, {4096 + 1024*b}\ns_mov_b32 s{sT+2}, {b*0x4000}')
            p(f'buffer_load_dwordx4 v39, s[{S_H}:{S_H+3}], s{sT+2} offen lds')
    def setup1():
        p(f's_lshl_b32 s{sT}, s2, 2\ns_add_u32 s{sT}, s{sT}, s{sW}\ns_lshl_b32 s{sT+1}, s{sT}, 13\ns_mul_i32 s{sT}, s{sT}, 7168')
        p(f'v_lshlrev_b32 v{vPF}, 4, v1\nv_add_u32 v{vPF+1}, s{sT}, v{vPF}\nv_add_u32 v{vPF}, s{sT+1}, v{vPF}')
        srd(p, S_WO, pWO, 0, 8 << 20); srd(p, S_WD, pWD, 0, 7 << 20)
        p(f's_lshl_b32 s{sDM}, s{sMK}, 1\ns_add_u32 s{sDM}, s{sDM}, 0x20000\ns_mov_b32 s{sPF}, 0')
        p(f's_lshl_b32 s{sT}, s{sRB}, 12\ns_lshl_b32 s{sT+1}, s{sCB}, 7\ns_add_u32 s{sT}, s{sT}, s{sT+1}\ns_add_u32 s{sT}, s{sT}, {256*128}\nv_mov_b32 v{vHF}, s{sT}')
    def setup2():
        if cfg.fs:
            p(f's_lshr_b32 s{sT}, s{sNO}, 5\ns_xor_b32 s{sT}, s{sT}, s2\ns_and_b32 s{sT}, s{sT}, 1\ns_and_b32 s{sJ}, s2, 2\ns_or_b32 s{sJ}, s{sJ}, s{sT}')
            p(f's_and_b32 s{sRC}, s2, 4\ns_bfe_u32 s{sT+1}, s2, 0x20003\ns_add_u32 s{sRC}, s{sRC}, s{sT+1}\ns_lshr_b32 s{sCC}, s2, 5\ns_xor_b32 s{sCC}, s{sCC}, {cfg.ccx}')
            if cfg.fs == 1:
                p(f's_lshr_b32 s{sT+1}, s{sJ}, 1\ns_mul_i32 s{kAH}, s{sT+1}, 14\ns_lshl_b32 s{sT+2}, s{sT}, 3\ns_add_u32 s{kAH}, s{kAH}, s{sT+2}')
                p(f's_lshl_b32 s{sT+1}, s{sT+1}, 4\ns_mul_i32 s{sT+2}, s{sT}, 9\ns_add_u32 s{sT+1}, s{sT+1}, s{sT+2}\ns_mul_i32 s{sT}, s{sT}, 3\ns_sub_u32 s{sT}, 9, s{sT}')
                p(f'v_and_b32 v{vFH}, 15, v1\nv_min_u32 v{vFH}, s{sT}, v{vFH}\ns_lshl_b32 s{sT}, s{sRC}, 5\ns_add_u32 s{sT}, s{sT}, s{sT+1}\ns_add_u32 s{sT}, s{sT}, 256\ns_lshl_b32 s{sT}, s{sT}, 7')
                p(f'v_lshl_add_u32 v{vFH}, v{vFH}, 7, s{sT}')
                p(f's_lshl_b32 s{kWD}, s{kAH}, 18\ns_lshl_b32 s{kAH}, s{kAH}, 12')
            else:
                p(f's_lshl_b32 s{sT}, s{sRC}, 5\ns_lshl_b32 s{sT+1}, s{sJ}, 3\ns_add_u32 s{sT}, s{sT}, s{sT+1}\ns_add_u32 s{sT}, s{sT}, 256\ns_lshl_b32 s{sT}, s{sT}, 7')
                p(f'v_and_b32 v{vFH}, 7, v1\nv_lshl_add_u32 v{vFH}, v{vFH}, 7, s{sT}')
                p(f's_mul_i32 s{kWD}, s{sJ}, {896*2048}\ns_mul_i32 s{kAH}, s{sJ}, {28*1024}')
        else:
            p(f's_bfe_u32 s{sJ}, s2, 0x20001\ns_and_b32 s{sRC}, s2, 1\ns_lshl_b32 s{sRC}, s{sRC}, 2\ns_bfe_u32 s{sT}, s2, 0x20003\ns_add_u32 s{sRC}, s{sRC}, s{sT}\ns_lshr_b32 s{sCC}, s2, 5')
            p(f's_lshl_b32 s{sT}, s{sRC}, 5\ns_lshl_b32 s{sT+1}, s{sJ}, 3\ns_add_u32 s{sT}, s{sT}, s{sT+1}\ns_add_u32 s{sT}, s{sT}, 256\ns_lshl_b32 s{sT}, s{sT}, 7')
            p(f'v_and_b32 v{vFH}, 7, v1\nv_lshl_add_u32 v{vFH}, v{vFH}, 7, s{sT}')
            p(f's_mul_i32 s{kWD}, s{sJ}, {896*2048}\ns_mul_i32 s{kAH}, s{sJ}, {28*1024}')
        p(f's_lshl_b32 s{sT}, s{sCC}, 8\ns_add_u32 s{sT}, s{sT}, 128\ns_add_u32 s{sDE}, s{sT}, {cfg.cdel}\ns_and_b32 s{sDE}, s{sDE}, 2047\ns_sub_u32 s{sDE}, s{sDE}, s{sT}')
        x_dma_addr(dD, k_h)
        p(f's_lshl_b32 s{cMW}, s{sW}, 13')
        srd(p, S_AH, pWS, WS_H, 15 << 20)
        p(f's_lshl_b32 s{sT}, s{sRC}, 4\ns_lshl_b32 s{sT+2}, s{sW}, 2\ns_add_u32 s{sT}, s{sT}, s{sT+2}\ns_mul_i32 s{sT+2}, s{sT}, {HST}')
        act_addr(aH, HST, 36)
        t = 36
        p(f's_and_b32 s{sT+3}, s{sJ}, 2\ns_lshl_b32 s{sT+3}, s{sT+3}, 1')
        p(f'v_lshrrev_b32 v{t}, 2, v1\nv_and_b32 v{t+1}, 7, v{t}\nv_xor_b32 v{t+1}, s{sT+3}, v{t+1}\nv_lshlrev_b32 v{t}, 8, v{t}\nv_and_b32 v{t+2}, 3, v1\nv_lshl_add_u32 v{t}, v{t+2}, 3, v{t}')
        for tt in range(8):
            p(f'v_xor_b32 v{t+2}, {tt}, v{t+1}\nv_lshl_add_u32 v{cTr+tt}, v{t+2}, 5, v{t}')
        p(f's_mov_b32 s{cTG}, 0x10000')
        if cfg.c3:
            p(f's_lshr_b32 s{sT}, s2, 3\ns_lshl_b32 s{sT}, s{sT}, 2\ns_add_u32 s{sT}, s{sT}, s{sW}\ns_lshl_b32 s{sT}, s{sT}, 11\ns_add_u32 s{sT}, s{sT}, {cfg.c3l*128}')
            p(f'v_bfe_u32 v36, v1, 2, 2\nv_lshlrev_b32 v36, 18, v36\nv_bfe_u32 v37, v1, 1, 1\nv_lshl_add_u32 v36, v37, 10, v36\nv_and_b32 v37, 1, v1\nv_lshl_add_u32 v36, v37, 6, v36\nv_add_u32 v39, s{sT}, v36')
    def clear_setup():
        srd(p, S_H, pWS, WS_P + 256*3*16384, 12 << 20)
        p(f's_lshl_b32 s45, s{sRC}, 3\ns_add_u32 s45, s45, s{sCC}\ns_lshl_b32 s45, s45, 2\ns_add_u32 s45, s45, s{sJ}\ns_lshl_b32 s45, s45, 2\ns_add_u32 s45, s45, s{sW}\ns_mul_i32 s45, s45, 12288')
        p('v_lshlrev_b32 v39, 4, v1')
        for i in range(4): p(f'v_mov_b32 v{32+i}, -1')
    s2q = collect(setup2); s2per = -(-len(s2q) // 4)
    if cfg.apre:
        setup1(); setup2(); s2q = []
    else:
        for x in collect(setup1): L(32, x)
    npf = 0
    sLK, sLV, sLG, sLN, sLH, sD0, sD1 = 41, 45, 46, 47, 48, 43, 3
    def pfl(g, wo_): L(g, f'buffer_load_dwordx4 v{vPF if wo_ else vPF+1}, s[{S_WO if wo_ else S_WD}:{(S_WO if wo_ else S_WD)+3}], s{sPF} offen lds')
    if AL:
        gK, gV = 4*(24 - PF), 4*(32 - PF) + 2
        B0 = B1 - 128
        for u in range(4): L2(B0 + gK + 4*u, f'v_add_u32 v{vK+u}, 0x8000, v{vK+u}')
        L2(B0 + gV + 7, f's_mov_b32 s{sD1}, 0x4000')
        L2(B0 + gV + 8, f's_mov_b32 s{sLK}, 0'); L2(B0 + gV + 8, f's_mov_b32 s{sLV}, {3*16384}'); L2(B0 + gV + 9, f's_add_u32 s{sLG}, s{sKV}, {3*16384}')
        L2(B0 + gV + 10, f's_mov_b32 s{sLN}, 4'); L2(B0 + gV + 11, f's_cmp_eq_u32 s{sW}, 1\ns_cselect_b32 s{sLH}, 3, -1')
        g = B1
        L(g, f's_add_u32 s{sT+4}, s{sLG}, 16384'); L(g, f's_add_u32 m0, s{sMK}, s{sLK}'); L(g, m0gap)
        for k in range(4): L(g + 6*k, kdma(k, sT+4, ('K', 4, 4, 1)))
        L(g + 24, f's_add_u32 s{sT+4}, s{sLV}, 0x10000'); L(g + 24, f's_add_u32 m0, s{sMK}, s{sT+4}'); L(g + 24, m0gap)
        for k in range(4): L(g + 24 + 6*k, vdma(k, sLG, ('V', 4, 3, 1)))
        L(g + 46, f's_mov_b32 s{sD0}, 0x4000'); L(g + 46, f's_cmp_eq_u32 s{sLK}, {16384}\ns_cselect_b32 s{sD0}, -0xc000, s{sD0}')
        L(g + 46, f's_mov_b32 s{sD1}, 0x4000'); L(g + 46, f's_cmp_eq_u32 s{sLV}, {16384}\ns_cselect_b32 s{sD1}, -0xc000, s{sD1}')
        L(g + 46, f's_mov_b32 s{sLV}, s{sLK}'); L(g + 46, f's_add_u32 s{sLK}, s{sLK}, 16384'); L(g + 46, f's_and_b32 s{sLK}, s{sLK}, 0xffff'); L(g + 46, f's_add_u32 s{sLG}, s{sLG}, 16384')
        L(g + 52, f's_mov_b32 m0, s{sDM}'); L(g + 52, m0gap)
        pfl(g + 52, True); pfl(g + 58, False); L(g + 58, f's_add_u32 s{sPF}, s{sPF}, 1024')
        for x in code_pf(S_DB, 61): L(g + 66, x)
        L(g + 70, f's_cmp_eq_u32 s{sLN}, s{sLH}\ns_cbranch_scc0 A_hf\nbuffer_store_dwordx2 v[2:3], v{vHF}, s[{S_FL}:{S_FL+3}], 0 offen sc1 ;cond\nA_hf:')
        for u in range(4): L2(g + gK + 4*u, f'v_add_u32 v{vK+u}, s{sD0}, v{vK+u}')
        for f in range(8):
            for b_ in (B1, B5): L2(b_ + 4*f + (4 if f == 0 else 0), f'v_add_u32 v{vV+f}, s{sD1}, v{vV+f}')
        H(B2 - 3, f's_sub_u32 s{sLN}, s{sLN}, 1'); H(B2 - 2, f's_cmp_lg_u32 s{sLN}, 0')
    for j in range(7):
        g = bargap[j] + 1
        if AL and 1 <= j <= 4: continue
        if AL and j == 5: g = B5
        if j + 3 <= 7:
            L(g, f's_add_u32 s{sT+4}, s{sKV}, {(j+3)*16384}'); L(g, f's_add_u32 m0, s{sMK}, {((j+3) % 4)*16384}'); L(g, m0gap)
            for k in range(4): L(g + 6*k, kdma(k, sT+4, ('K', 4, j+3, 0)))
        if j + 2 <= 7:
            L(g + 24, f's_add_u32 s{sT+4}, s{sKV}, {(j+2)*16384}'); L(g + 24, f's_add_u32 m0, s{sMK}, {0x10000 + ((j+2) % 4)*16384}'); L(g + 24, m0gap)
            for k in range(4): L(g + 24 + 6*k, vdma(k, sT+4, ('V', 4, j+2, 0)))
        if AL:
            if j == 0:
                L(g + 48, f's_mov_b32 m0, s{sDM}'); L(g + 48, m0gap)
                for k in range(2): pfl(g + 48 + 12*k, True); pfl(g + 54 + 12*k, False); L(g + 54 + 12*k, f's_add_u32 s{sPF}, s{sPF}, 1024')
                for x in s2q[:cfg.s2a]: L(g + 72, x)
            if j == 5:
                for x in s2q[cfg.s2a:]: L(g, x)
                L(g + 1, f'buffer_load_dwordx2 v[62:63], v{vFH}, s[{S_FL}:{S_FL+3}], 0 offen sc1')
                L(g + 44, f's_mov_b32 m0, s{sDM}'); L(g + 44, m0gap)
                pfl(g + 44, True); pfl(g + 45, False); L(g + 45, f's_add_u32 s{sPF}, s{sPF}, 1024'); pfl(g + 46, True)
            if j == 6:
                for k, x in enumerate(collect(x_stage)): L(g + 100 + k//2, x)
            for x in code_pf(S_DB, 61): L(g + 47, x)
        else:
            if j < 5:
                L(g + 48, f's_mov_b32 m0, s{sDM}'); L(g + 48, m0gap)
                for k in range(3):
                    wo_ = npf % 2 == 0
                    pfl(g + 48 + 8*k, wo_)
                    if not wo_: L(g + 48 + 8*k, f's_add_u32 s{sPF}, s{sPF}, 1024')
                    npf += 1
            for x in code_pf(S_DB, 61): L(g + 70, x)
            if j < 4:
                for x in s2q[j*s2per:(j+1)*s2per]: L(g + 72, x)
            if j == cfg.hbar: H(g, flag_store('A_hf', vHF))
            if j == 4:
                for k, x in enumerate(collect(x_stage)): L(g + 72 + k, x)
            if j == 4: L(g + 80, f'buffer_load_dwordx2 v[62:63], v{vFH}, s[{S_FL}:{S_FL+3}], 0 offen sc1')
        if j == 5:
            for pc in range(8):
                for x in cdma(pc, 0): L(g + 48 + 6*pc, x)
            L(g + 100, '\n'.join(flagchk('L_h', vFH, 62)))
        if j == 6:
            for sub in range(4):
                for b in range(4):
                    for x in cact(sub, b): L(g + 6*(4*sub + b), x)
    for pc in range(8):
        for x in cdma(pc, 1): L(bargap[7] + 1 + 6*pc, x)
    g = 4*start[16] + 2
    lchk = ([f'v_add_f32 v{vL+b}, v{vL+b}, v{240+b}' for b in range(4)] if cfg.l2 else []) + xred(vL, 'v_add_f32') + [f'v_add_f32 v36, v{vL}, v{vL+1}', f'v_add_f32 v37, v{vL+2}, v{vL+3}', f's_mov_b32 s{sT+2}, {f2u(2.0**cfg.thr):#x}',
                                    'v_add_f32 v36, v36, v37', f'v_cmp_nlt_f32 vcc, v36, s{sT+2}']
    k = 0
    for x in lchk:
        if x is None: g += 1; k = 0; continue
        H(g, x); k += 1
        if k == (1 if 'swap' in x else 2): g += 1; k = 0
    assert g < n_ - 1
    def cyc(x):
        t_ = x[0] if isinstance(x, tuple) else x
        if callable(t_): return 8
        o = t_.split()[0]
        if o in TRANS: return 8
        if o.startswith('v_cvt_pk'): return 5
        if o.startswith('buffer_'): return cfg.vmc
        return 4*len(t_.split('\n')) if '\n' in t_ and ';cond' not in t_ else 4
    def cls(x):
        t_ = x[0] if isinstance(x, tuple) else x
        if callable(t_): return 'x'
        o = t_.split()[0]
        return 'm' if o.startswith('buffer_') else 'd' if o.startswith('ds_') else 'v' if o.startswith('v_') else 's'
    fill = {}; q_ = []
    for i in range(-1, n_):
        cur = list(hi.get(i, [])); cc_ = [cls(x) for x in cur]
        nd_ = cc_.count('d'); nv = nd_ + cc_.count('s') + (1 if i in wgap else 0) + sum(2 for x in cur if callable(x) and 'need' in x.__code__.co_names); mem = nd_
        vroom = cfg.av0 - sum(2 if x.split()[0] in TRANS or 'swap' in x else 1 for x, c_ in zip(cur, cc_) if c_ == 'v'); tookv = False
        for x in lo.get(i, []): q_.append((i, x))
        while q_:
            x = q_[0][1]; c_ = cls(x); force = i == n_ - 1 or i - q_[0][0] >= cfg.amax or (AL and i in (B1 - 1, B2 - 4))
            if c_ == 'v':
                if vroom <= 0 and not force: break
                vroom -= 1; tookv = True
            else:
                w_ = len((x[0] if isinstance(x, tuple) else x).split('\n')) if c_ == 's' else 1
                if (tookv or nv + min(w_, 2) > cfg.anv or (c_ == 'm' and (mem >= cfg.amem or (cfg.mpos and i % 4 not in (0, 3))))) and not force: break
                nv += w_; mem += c_ == 'm'
            cur.append(q_.pop(0)[1])
        fill[i] = cur
    fix_m0(fill, n_)
    for n in ((1, 3, 7, 11, 15) if not AL else (1, 3)):
        t_ = ts.text(4)
        if t_: fill[4*start[n] - 1].append(t_)
    if AL:
        seg = lambda a_, b_: (mf[a_:b_], {i - a_: fill[i] for i in range(a_ - (1 if a_ == 0 else 0), b_)})
        interleave(p, *seg(0, B1))
        p.loop_begin('A_loop', 4)
        fill[B2 - 1].append('s_cbranch_scc1 A_loop')
        interleave(p, *seg(B1, B2))
        p.loop_end()
        ts.stamp(p, 4)
        t_ = ts.text(4)
        if t_: fill[4*start[15] - 1].append(t_)
        interleave(p, *seg(B5, n_))
    else: interleave(p, mf, fill)
    ts.stamp(p, 5)
    p('s_cbranch_vccnz A_slow')
    p('A_done:')
    ad = cfg.cad; P = cfg.cP
    for sub in range(4, ad):
        for b in range(4):
            for x in cact(sub, b): emit(p, x)
    for b in range(4): p(f'v_rcp_f32 v{vL+b}, v{vL+b}')
    p.need(('C', 4, 0, 0)); p('s_barrier')
    for G in range(P):
        r = cA + 4*G; t_, s_ = (G // 2, G % 2) if cfg.chain else (G, 0)
        p(f'ds_read_b64_tr_b16 v[{r}:{r+1}], v{cTr+t_} offset:{8192*s_}', ('C', 4, 0, 0)); p(f'ds_read_b64_tr_b16 v[{r+2}:{r+3}], v{cTr+t_} offset:{8192*s_+4096}', ('C', 4, 0, 0))
    p(';SPLIT')
    OE = cfg.oe if ND >= 7 else cfg.oes
    vO, vX, vFO, vFD, vFS, vFQ = 16, 96, 20, 21, 22, 23
    sPS, sPR = 32, 33
    def o_epi(packed):
        if cfg.opw: p(f's_lshl_b32 s{sT}, s{sW}, 7\ns_add_u32 s{sT}, s{sT}, {(3328 - 4*256)*128}\nv_lshl_add_u32 v{vFO}, v{vHF}, 2, s{sT}')
        p(f's_lshl_b32 s{sT}, s{sRB}, 4\ns_lshl_b32 s{sT+1}, s{sW}, 2\ns_add_u32 s{sT}, s{sT}, s{sT+1}\ns_mul_i32 s{sT}, s{sT}, {OST}\ns_lshl_b32 s{sT+1}, s{sCB}, 12\ns_add_u32 s{sT}, s{sT}, s{sT+1}')
        p(f'v_lshlrev_b32 v34, 4, v1')
        n = 0
        for b in range(4):
            for u in range(4):
                x = 96 + 8*(n % 2); d = 112 + 4*(n % 4); n += 1
                for i in range(8): p(f'v_accvgpr_read_b32 v{x+i}, a{((2*u + i//4)*4 + b)*4 + i % 4}')
                for i in range(8): p(f'v_mul_f32 v{x+i}, v{x+i}, v{vL+b}')
                for i in range(0, 8, 2): p(f'v_cvt_pk_bf16_f32 v{d+i//2}, v{x+i}, v{x+i+1}')
                p(f'buffer_store_dwordx4 v[{d}:{d+3}], v34, s[{S_O}:{S_O+3}], s{sT} offen offset:{u*1024} {cfg.ost}', ('Ost', 1, 0, 0))
            if b < 3: p(f's_add_u32 s{sT}, s{sT}, {OST}')
    def s_setup():
        srd(p, S_AO, pWS, WS_O, 17 << 20)
        p(f's_lshl_b32 s{kAO}, s{sJ}, 3')
        if NSS == 7 and cfg.fs == 2: p(f's_add_u32 s{kAO}, s{kAO}, 1')
        p(f's_lshl_b32 s{sT}, s{sRC}, 5\ns_add_u32 s{sT}, s{sT}, s{kAO}\ns_add_u32 s{sT}, s{sT}, 512\ns_lshl_b32 s{sT}, s{sT}, 7')
        p(f'v_and_b32 v{vFH}, 15, v1\nv_min_u32 v{vFH}, {NSS-1}, v{vFH}\nv_lshl_add_u32 v{vFH}, v{vFH}, 7, s{sT}')
        p(f's_lshl_b32 s{kWO}, s{kAO}, 18\ns_lshl_b32 s{kAO}, s{kAO}, 12')
        p(f's_lshl_b32 s{sT}, s{sRC}, 4\ns_lshl_b32 s{sT+2}, s{sW}, 2\ns_add_u32 s{sT}, s{sT}, s{sT+2}\ns_mul_i32 s{sT+2}, s{sT}, {OST}')
        act_addr(aO, OST, 24)
        if cfg.opw: p(f's_lshl_b32 s{sT}, s{sW}, 7\ns_add_u32 s{sT}, s{sT}, {(3328 - 4*256)*128}\nv_subrev_u32 v{vFH}, {256*128}, v{vFH}\nv_lshl_add_u32 v{vFH}, v{vFH}, 2, s{sT}')
        else: p(f'v_add_u32 v{vFO}, {256*128}, v{vHF}')
        srd(p, S_OUT, pOUT, 0, 4 << 20); srd(p, S_P, pWS, WS_P, 24 << 20)
        p(f's_lshl_b32 s{sT}, s{sRC}, 3\ns_add_u32 s{sT}, s{sT}, s{sCC}\ns_lshl_b32 s{sT}, s{sT}, 2\ns_add_u32 s{sT+1}, s{sT}, s{sJ}')
        p(f's_add_u32 s{sT+2}, s{sT+1}, 768\ns_lshl_b32 s{sT+2}, s{sT+2}, 7\nv_mov_b32 v{vFD}, s{sT+2}\nv_add_u32 v{vFS}, {256*128}, v{vFD}')
        p(f's_add_u32 s{sT+2}, s{sT}, 768\ns_lshl_b32 s{sT+2}, s{sT+2}, 7\nv_and_b32 v{vFQ}, 3, v1\nv_lshl_add_u32 v{vFQ}, v{vFQ}, 7, s{sT+2}')
        p(f's_mul_i32 s{sT+3}, s{sW}, 12288\ns_mul_i32 s{sPR}, s{sT+1}, {3*16384}\ns_add_u32 s{sPR}, s{sPR}, s{sT+3}')
        for q_ in (1, 2, 3):
            p(f's_xor_b32 s{sT+2}, s{sT+1}, {q_}\ns_mul_i32 s{sT+2}, s{sT+2}, {3*16384}\ns_add_u32 s{sT+2}, s{sT+2}, s{sT+3}\ns_add_u32 s{sT+2}, s{sT+2}, {(q_-1)*4096}\nv_add_u32 v{24+q_}, s{sT+2}, v24')
        out_addr(vO)
    QUADS = [(t_, bp) for t_ in (4, 5, 6, 7) for bp in (0, 1)] + [(t_, 1) for t_ in range(4)]
    nsent = [0]
    def send(gemm, quads):
        for (t_, bp) in quads:
            c = 16*t_ + 8*bp; k = nsent[0]; nsent[0] += 1; d = 112 + 4*(k % 4); q_ = 2*(t_ >> 2) + bp
            if gemm == 0:
                for r in range(4): p(f'v_cvt_pk_bf16_f32 v{d+r}, v{cC+c+2*r}, v{cC+c+2*r+1}')
            else:
                x = 160 + 8*(k % 4)
                for r in range(8): p(f'v_accvgpr_read_b32 v{x+r}, a{c+r}')
                for r in range(4): p(f'v_cvt_pk_bf16_f32 v{d+r}, v{x+2*r}, v{x+2*r+1}')
                if cfg.sent:
                    for r in range(4): p(f'v_min_u32 v{d+r}, -2, v{d+r}')
            so = '0' if gemm == 0 else f's{sT+4}'
            p(f'buffer_store_dwordx4 v[{d}:{d+3}], v{24 + q_}, s[{S_P}:{S_P+3}], {so} offen offset:{1024*(t_ & 3)} {cfg.pst}', ('Pst', 1, gemm, 0))
    def send_d():
        send(0, QUADS)
        for i in (1, 2, 3):
            for r in range(8): p(f'v_mov_b32 v{cC+8*i+r}, v{cC+16*i+r}')
    mf = []; hi.clear(); lo.clear()
    ST = 128; TMS = cfg.tms
    NSUB = 4*NS
    CH = cfg.chain
    if CH: order = [((2*u + e) // 4, (2*u + e) % 4, t) for u in range((NSUB - TMS)//2) for t in range(8) for e in range(2)]
    else: order = [(sub // 4, sub % 4, t) for sub in range(NSUB - TMS) for t in range(8)]
    order += [(sub // 4, sub % 4, t) for t in (4, 5, 6, 7, 0, 1, 2, 3) for sub in range(NSUB - TMS, NSUB)]
    assert TMS <= 4 or NS % 2 == 0
    def ctr(G):
        sg, s, t = order[G]
        r = cA + 4*(G % 8); off = (sg % 2)*SLOT + s*8192
        a = cTr + t
        return [(f'ds_read_b64_tr_b16 v[{r}:{r+1}], v{a} offset:{off}', ('C', 4, sg, 0)),
                (f'ds_read_b64_tr_b16 v[{r+2}:{r+3}], v{a} offset:{off + 4096}', ('C', 4, sg, 0))]
    obar = math.ceil(OE) + 1; dbar = ND + math.ceil(cfg.de) + 1
    def bar(p, sgn):
        p.need(('C', 4, sgn, 0))
        if sgn == obar and not cfg.opw: p.need(('Ost', 1, 0, 0))
        if sgn == dbar: p.need(('Pst', 1, 0, 0))
        p('s_barrier')
    firstG = {}
    for G, (sg, s, t) in enumerate(order): firstG.setdefault(sg, G)
    seen = set()
    def c_mfma(G, b):
        sg, s, t = order[G]; sub = 4*sg + s
        ra = cA + 4*(G % 8); rb = 128 + 16*(sub % 8) + 4*b; c = (t*4+b)*4
        acc_ = f'v[{cC+c}:{cC+c+3}]' if kind(sg) == 'd' else f'a[{c}:{c+3}]'
        first = acc_ not in seen; seen.add(acc_)
        mf.append(f'v_mfma_f32_16x16x32_bf16 {acc_}, v[{ra}:{ra+3}], a[{rb}:{rb+3}], {"0" if first else acc_}')
    for G in range(32*NS):
        if CH:
            if G % 2 == 0:
                for k, b in enumerate(range(3, -1, -1) if (G // 2) % 2 else range(4)):
                    c_mfma(G + k % 2, b); c_mfma(G + 1 - k % 2, b)
        else:
            for b in (range(3, -1, -1) if cfg.snake and G % 2 else range(4)): c_mfma(G, b)
        i0 = 4*G; Gn = G + P
        if CH and cfg.ltouch and G % 2 == 1 and G + 2 < 32*NS: H(i0+3, lambda p, r=cA + 4*((G + 2) % 8): p.touch(f'v[{r}:{r+3}]'))
        if Gn < 32*NS:
            if firstG[order[Gn][0]] == Gn: H(i0-1, lambda p, sgn=order[Gn][0]: bar(p, sgn))
            r0, r1 = ctr(Gn)
            H(i0, r0); H(i0+1, r1)
            if order[Gn][1] == 3 and order[Gn][0] % 2 == 1 and order[Gn][0] < NS - 1: H(i0+2, f'v_xor_b32 v{cTr + order[Gn][2]}, s{cTG}, v{cTr + order[Gn][2]}')
        sgc, g = divmod(G, 32)
        dstr = 2 if (TMS > 4 and sgc + 2 == NS - 1) else cfg.cdstr
        if g % dstr == 1 and g // dstr < 8 and sgc + 2 < NS:
            for x in cdma(g // dstr, sgc + 2): L(i0, x)
    last_act = 0
    def act_t(sub):
        t0 = max((sub - (6 if CH and sub % 2 == 0 else 7))*32, min((sub - ad)*32, (4*NS - 8)*32 - (4*NS - 1 - sub)*cfg.ramp)) if TMS else (sub - ad)*32
        if sub >= 4*ND: t0 = max(t0, (4*ND - cfg.odl)*32 + (sub - 4*ND)*cfg.ramp)
        return t0
    for sub in range(ad, 4*NS):
        t0 = act_t(sub); t1 = max(act_t(sub + 1), t0 + 12)
        for b in range(4):
            last_act = t0 + b*min(8, (t1 - t0)//4)
            for x in cact(sub, b): L(last_act, x)
    if cfg.cpf2:
        for k in ((1,) if cfg.cpf2 < 2 else range(0, math.floor(OE))):
            for x in code_pf(S_DB, 61): L(k*ST + 4*30, x)
        for x in code_srd(S_AH, 'L_pc3' + SFX): L(ND*ST, x)
        for k in ((ND, ND + 3) if cfg.cpf2 < 2 else range(ND, NS - 2)):
            for x in code_pf(S_AH, 61): L(k*ST + 4*30, x)
    if cfg.c3:
        L((ND - 2)*ST, f's_add_u32 s{sT+4}, s{kWO}, {cfg.c3s*128*2048}'); L((ND - 2)*ST, f'buffer_load_dword v61, v39, s[{S_WO}:{S_WO+3}], s{sT+4} offen ;pf')
    n = len(mf)
    fill = spread(hi, {k: lo[k] for k in sorted(lo)}, n, cfg.cap, 16, cost=lambda i: 1 if i % 4 == 3 else 0)
    fix_m0(fill, n)
    def ride(items, g0, g1):
        q_ = list(items); per = len(q_) / (g1 - g0); due = 0.0; done = 0
        for i in range(g0, g1):
            due += per
            used = len(fill[i]) + (1 if i % 4 == 3 else 0)
            while q_ and done < due + 2 and (used < cfg.cap or done < due - cfg.lag):
                fill[i].append(q_.pop(0)); used += 1; done += 1
        fill[g1-1] += q_
    oq = collect(lambda: o_epi(cfg.ox > 0))
    nx = 0
    if cfg.ox:
        idx = [i for i, x in enumerate(oq) if x[0].startswith('buffer_store')]
        nx = idx[cfg.ox - 1] + 1
        fill[-1] = oq[:nx] + fill[-1]
        oq2 = collect(lambda: o_epi(False))
        idx2 = [i for i, x in enumerate(oq2) if x[0].startswith('buffer_store')]
        oq = oq2[idx2[cfg.ox - 1] + 1:]
    if oq: ride(oq, 2, int(OE*ST))
    ride(collect(s_setup), int(OE*ST), int(OE*ST) + ST - 20)
    if cfg.opw: fill[int(OE*ST) + cfg.opw].append(lambda p: (p.need(('Ost', 1, 0, 0)), p(f'buffer_store_dwordx2 v[2:3], v{vFO}, s[{S_FL}:{S_FL+3}], 0 offen sc1')))
    else: fill[obar*ST - 4*P + 2].append(flag_store('C_of' + SFX, vFO))
    first_o = act_t(4*ND)
    assert first_o - 2 > int(OE*ST) + ST - 20 and (ND - 2)*ST > int(OE*ST) + ST - 20
    fill[first_o - cfg.fl].append(f'buffer_load_dwordx2 v[62:63], v{vFH}, s[{S_FL}:{S_FL+3}], 0 offen sc1')
    fill[first_o - 2].append('\n'.join(flagchk('L_o' + SFX, vFH, 62)))
    ride(collect(send_d), ND*ST + 8, ND*ST + int(cfg.de*ST))
    fill[dbar*ST - 4*P + 2].append(flag_store('C_df' + SFX, vFD))
    xl = [f's_lshl_b32 s{sT+2}, s{sW}, 13', f's_add_u32 s{sT+2}, s{sT+2}, {XL}', 'v_and_b32 v36, 0x37, v1', 'v_lshlrev_b32 v36, 4, v36', 'v_bfe_u32 v37, v1, 3, 1', 'v_lshl_add_u32 v36, v37, 10, v36', f'v_add_u32 v39, s{sT+2}, v36']
    xl += [f'ds_read_b128 v[{vX+8*b+4*pr}:{vX+8*b+4*pr+3}], v39 offset:{2048*b + 128*pr}' for b in range(2) for pr in range(2)]
    vR = 192
    def recv(gemm):
        p(f's_add_u32 s{sT+2}, s{sPR}, {gemm*256*3*16384}')
        for q_ in range(3):
            for i in range(4):
                r = vR + 16*q_ + 4*i
                p(f'buffer_load_dwordx4 v[{r}:{r+3}], v24, s[{S_P}:{S_P+3}], s{sT+2} offen offset:{1024*i} sc1')
            if q_ < 2: p(f's_add_u32 s{sT+2}, s{sT+2}, 4096')
    dchk = NS - cfg.dchk
    assert not cfg.sent or int(dchk*ST) < (NSUB - TMS)*32 + TMS*4
    fill[int(dchk*ST) - cfg.fl].append(f'buffer_load_dwordx2 v[62:63], v{vFQ}, s[{S_FL}:{S_FL+3}], 0 offen sc1')
    fill[int(dchk*ST)].append('\n'.join(flagchk('L_d' + SFX, vFQ, 62)))
    r0_ = max(int(dchk*ST) + 2, last_act + 18)
    ride(collect(lambda: recv(0)), r0_, r0_ + 48)
    fill[(NS - 3)*ST].append(f's_mov_b32 s{sT+4}, {256*3*16384}')
    left = list(QUADS)
    if TMS:
        base = (NSUB - TMS)*32; plen = TMS*4
        for k, t_ in enumerate((4, 5, 6, 7, 0, 1, 2)):
            qs_ = [x for x in QUADS if x[0] == t_]; left = [x for x in left if x[0] != t_]
            g0 = base + (k + 1)*plen + 3
            ride(collect(lambda: send(1, qs_)), g0, min(n, g0 + plen))
    ts.stamp(p, 7)
    for k in range(1, 15):
        if k in (1, 2, 3, 4, 5, 6, 7, 8, 9, 11, 13):
            t_ = ts.text(2)
            if t_: fill[k*ST - 1].append(t_)
    interleave(p, mf, fill)
    if cfg.pw:
        p(f's_lshl_b32 s{sT+2}, s{sW}, 7\ns_add_u32 s{sT+2}, s{sT+2}, {(2304 - 4*768)*128}\nv_lshl_add_u32 v{vFS}, v{vFD}, 2, s{sT+2}\nv_lshl_add_u32 v{vFQ}, v{vFQ}, 2, s{sT+2}')
        p(f's_mov_b32 s{sT+3}, 0xffff0000\ns_nop 2')
    else:
        p(f's_mov_b32 s{sT+3}, 0xffff0000\nv_add_u32 v{vFQ}, {256*128}, v{vFQ}\ns_nop 4')
    ts.stamp(p, 3)
    for x in xl: p(x)
    send(1, left)
    RS = (160, 176, 240)
    def recv_s(q_, cond=''):
        for i in range(4):
            p(f'buffer_load_dwordx4 v[{RS[q_]+4*i}:{RS[q_]+4*i+3}], v24, s[{S_P}:{S_P+3}], s{44+q_} offen offset:{1024*i} sc1{cond}')
    if cfg.sent:
        p(f's_add_u32 s44, s{sPR}, {256*3*16384}\ns_add_u32 s45, s44, 4096\ns_add_u32 s46, s45, 4096')
        for q_ in range(3): recv_s(q_)
    pk = lambda r: f'v[{r}:{r+1}]'
    def addparts(dst, i, src):
        for q_ in range(3):
            rr = src[q_] + 4*i; tt = 32 + 8*(q_ % 2)
            for r in range(4): p(f'v_lshlrev_b32 v{tt+2*r}, 16, v{rr+r}\nv_and_b32 v{tt+2*r+1}, s{sT+3}, v{rr+r}')
            for r in range(0, 8, 2): p(f'v_pk_add_f32 {pk(dst+r)}, {pk(dst+r)}, {pk(tt+r)}')
    p(f'v_mov_b32 v28, {f2u(-math.log2(math.e)):#x}\nv_mov_b32 v29, v28')
    RD = (vR, vR + 16, vR + 32)
    for i in range(4):
        c = cC + 8*i; B = 48
        addparts(c, i, RD)
        for r in range(0, 8, 2): p(f'v_pk_mul_f32 {pk(B+r)}, {pk(c+r)}, v[28:29]')
        for r in range(8): p(f'v_exp_f32 v{B+r}, v{B+r}')
        p('s_nop 0')
        for r in range(0, 8, 2): p(f'v_pk_add_f32 {pk(B+r)}, {pk(B+r)}, 1.0 op_sel_hi:[1,0]')
        for r in range(8): p(f'v_rcp_f32 v{B+r}, v{B+r}')
        p('s_nop 0')
        for r in range(0, 8, 2): p(f'v_pk_mul_f32 {pk(c+r)}, {pk(c+r)}, {pk(B+r)}')
    vSs = 64
    for i in range(32): p(f'v_accvgpr_read_b32 v{vSs+i}, a{16*(i//8) + i % 8}')
    E = 192 if cfg.sent else 160
    def xunpack():
        for b in range(4):
            for q in range(4): p(f'v_lshlrev_b32 v{E+8*b+2*q}, 16, v{vX+4*b+q}\nv_and_b32 v{E+8*b+2*q+1}, s{sT+3}, v{vX+4*b+q}')
    if cfg.sent:
        xunpack()
        ts.stamp(p)
        p(f'C_chk{SFX}:\ns_waitcnt vmcnt(0)\ns_mov_b32 s47, 0')
        for q_ in range(3):
            r = RS[q_]
            p(f'v_max3_u32 v32, v{r}, v{r+1}, v{r+2}')
            for k in range(3, 15, 2): p(f'v_max3_u32 v32, v32, v{r+k}, v{r+k+1}')
            p(f'v_max_u32 v32, v32, v{r+15}\nv_cmp_eq_u32 vcc, -1, v32\ns_nop 1\ns_cbranch_vccz C_ok{q_}{SFX}')
            p.cond(True)
            p(f's_sleep {cfg.slp2}\ns_mov_b32 s47, 1'); recv_s(q_)
            p.cond(False)
            p(f'C_ok{q_}{SFX}:')
        p(f's_cmp_lg_u32 s47, 0\ns_cbranch_scc1 C_chk{SFX}')
        ts.stamp(p)
        src = RS
    else:
        if cfg.pw:
            xunpack()
            p('s_waitcnt vmcnt(0)')
            ts.stamp(p)
            p(f'buffer_store_dwordx2 v[2:3], v{vFS}, s[{S_FL}:{S_FL+3}], 0 offen sc1')
            p.cond(True)
            poll('C_poll' + SFX, vFQ, 'C_got' + SFX)
            p.cond(False)
            p(f'C_got{SFX}:')
            ts.stamp(p)
        else:
            p('s_waitcnt vmcnt(0)\ns_barrier')
            ts.stamp(p)
            p(f's_cmp_eq_u32 s{sW}, 1\ns_cbranch_scc0 C_got{SFX}')
            p.cond(True)
            p(f'buffer_store_dwordx2 v[2:3], v{vFS}, s[{S_FL}:{S_FL+3}], 0 offen sc1')
            poll('C_poll' + SFX, vFQ, 'C_got' + SFX)
            p.cond(False)
            p(f'C_got{SFX}:\ns_barrier')
            ts.stamp(p)
        recv(1)
        if not cfg.pw: xunpack()
        src = RD
    for i in range(4): addparts(vSs + 8*i, i, src)
    for i in range(0, 32, 2): p(f'v_pk_mul_f32 {pk(vSs+i)}, {pk(vSs+i)}, {pk(cC+i)}')
    for b in range(2):
        P0, P1, T_ = 112 + 8*b, 116 + 8*b, 32
        for pr in range(2):
            c0 = vSs + 16*pr + 4*b; c1 = c0 + 8
            for r in range(4): p(f'v_permlane16_swap_b32 v{c0+r}, v{c1+r}')
        for pr in range(2):
            c0 = vSs + 16*pr + 4*b; c1 = c0 + 8; e = E + 16*b + 8*pr
            for q in range(4):
                c = (c0, c0+2, c1, c1+2)[q]
                p(f'v_pk_add_f32 {pk(e+2*q)}, {pk(e+2*q)}, {pk(c)}')
            for q in range(4): p(f'v_cvt_pk_bf16_f32 v{(P0, P1)[pr]+q}, v{e+2*q}, v{e+2*q+1}')
        for q in range(4): p(f'v_mov_b32 v{T_+q}, v{P1+q}')
        for q in range(4): p(f'v_mov_b32_dpp v{P1+q}, v{P0+q} row_ror:8 row_mask:0xf bank_mask:0x3')
        for q in range(4): p(f'v_mov_b32_dpp v{P0+q}, v{T_+q} row_ror:8 row_mask:0xf bank_mask:0xc')
        p(f's_mov_b32 s{sT}, {2*b*0x4000}\ns_mov_b32 s{sT+1}, {(2*b+1)*0x4000}')
        p(f'buffer_store_dwordx4 v[{P0}:{P0+3}], v{vO}, s[{S_OUT}:{S_OUT+3}], s{sT} offen {cfg.osc}')
        p(f'buffer_store_dwordx4 v[{P1}:{P1+3}], v{vO}, s[{S_OUT}:{S_OUT+3}], s{sT+1} offen {cfg.osc}')
    ts.stamp(p)
    if cfg.ts: p('s_waitcnt vmcnt(0)')
    ts.stamp(p)
    ts.dump(p, pWS)
    p('s_endpgm')
    autowait(p)
    if cfg.hoist: hoist(p)
    if not cfg.aab: check(p, 'main')

    z = Prog(); main = p; p = z
    p('A_slow:')
    p('s_waitcnt vmcnt(0) lgkmcnt(0)')
    srd(p, S_K, pK, 0, 2 << 20); srd(p, S_V, pV, 0, 2 << 20)
    zK, zD, zV = 14, 8, 18
    zKV, zN = sT, sT+1
    p(f's_lshr_b32 s{zKV}, s{sCB}, 3\ns_lshl_b32 s{zKV}, s{zKV}, 19\ns_add_u32 s{zKV}, s{zKV}, {1536*256}')
    perm_g(36, 37)
    p(f'v_and_b32 v{zK}, 15, v1\nv_lshlrev_b32 v{zK}, 8, v{zK}\nv_lshl_add_u32 v{zK}, v36, 4, v{zK}\nv_add_u32 v{zK+1}, 0x1000, v{zK}')
    p(f'v_lshrrev_b32 v36, 4, v1\nv_and_b32 v37, 15, v1\nv_lshlrev_b32 v38, 1, v36\nv_xor_b32 v37, v37, v38\nv_lshlrev_b32 v36, 8, v36\nv_lshl_add_u32 v{zD}, v37, 4, v36\nv_xor_b32 v{zD+1}, 128, v{zD}')
    p(f'v_add_u32 v{zD+2}, 0x1000, v{zD}\nv_add_u32 v{zD+3}, 0x1000, v{zD+1}')
    t = 36
    p(f's_lshl_b32 s{sT+2}, s{sW}, 13\ns_add_u32 s{sT+2}, s{sT+2}, 0x10000')
    p(f'v_lshrrev_b32 v{t}, 2, v1\nv_and_b32 v{t+1}, 7, v{t}\nv_lshlrev_b32 v{t}, 8, v{t}\nv_and_b32 v{t+2}, 3, v1\nv_lshl_add_u32 v{t}, v{t+2}, 3, v{t}\nv_add_u32 v{t}, s{sT+2}, v{t}')
    for k in range(8): p(f'v_xor_b32 v{t+2}, {k}, v{t+1}\nv_lshl_add_u32 v{zV+k}, v{t+2}, 5, v{t}')
    def kglob():
        for s in range(8): p(f'buffer_load_dwordx4 a[{aF+4*s}:{aF+4*s+3}], v{zK + s//4}, s[{S_K}:{S_K+3}], s{zN} offen offset:{64*(s % 4)}')
    for b in range(4): p(f'v_mov_b32 v{32+b}, 0xff800000')
    p(f's_mov_b32 s{zN}, s{zKV}\ns_mov_b32 s{sT+3}, 16')
    p.loop_begin('Z1_loop', 16, align=False)
    kglob()
    for m in range(4):
        for x in qk2(0, m, zero): p(x)
    p('s_nop 7')
    rowmax(0, False)
    p(f's_add_u32 s{zN}, s{zN}, 8192\ns_sub_u32 s{sT+3}, s{sT+3}, 1\ns_cmp_lg_u32 s{sT+3}, 0\ns_cbranch_scc1 Z1_loop')
    p.loop_end()
    set_negm()
    for i in range(128): p(f'v_accvgpr_write_b32 a{i}, 0')
    for i in range(4): p(f'v_mov_b32 v{vL+i}, 0')
    p(f's_mov_b32 s{zN}, s{zKV}\ns_mov_b32 s{sT+3}, 16')
    p.loop_begin('Z2_loop', 16, align=False)
    kglob()
    for j in range(8):
        if j % 4 == 0: p(f's_add_u32 m0, s{sT+2}, {1024*j}\ns_nop 0')
        p(f'buffer_load_dwordx4 v{zD + 2*(j//4) + (j & 1)}, s[{S_V}:{S_V+3}], s{zN} offen offset:{1024*(j%4)} lds')
    for m in range(4):
        for x in qk2(0, m, negm): p(x)
    p('s_nop 7')
    for e in range(32): p(sm_E(0, e))
    for e in range(32): p(sm_A(0, e, False))
    for e in range(0, 32, 2): p(sm_C(0, e))
    p('s_waitcnt vmcnt(0)')
    for f in range(8):
        for r in vread(0, f, None, base=zV, off0=0): emit(p, r)
    for f in range(8):
        for x in pv(0, f): p(x)
    p(f's_add_u32 s{zN}, s{zN}, 8192\ns_sub_u32 s{sT+3}, s{sT+3}, 1\ns_cmp_lg_u32 s{sT+3}, 0\ns_cbranch_scc1 Z2_loop')
    p.loop_end()
    p('s_nop 7')
    for x in xred(vL, 'v_add_f32'): p(x if x else 's_nop 1')
    p('s_branch A_done')
    autowait(z); check(z, 'slow')
    txt = main.text()
    if cfg.jit:
        n_ = [0]
        def jit(m):
            n_[0] += 1
            if n_[0] % cfg.jit: return m.group(0)
            l = f'J{SFX if ";SPLIT" in txt[:m.start()] else ""}_{n_[0]}'
            return (f'  s_mul_i32 s98, s2, {7 + 2*n_[0]}\n  s_mul_i32 s99, s36, {13 + n_[0]}\n  s_add_u32 s98, s98, s99\n  s_getreg_b32 s99, hwreg(HW_REG_SHADER_CYCLES, 0, 8)\n'
                    if False else
                    f'  s_mov_b32 s99, scc\n' if False else '') + f'  s_cselect_b32 s97, 1, 0\n  s_mul_i32 s98, s2, {7 + 2*n_[0]}\n  s_mul_i32 s99, s36, {13 + n_[0]}\n  s_add_u32 s98, s98, s99\n  s_and_b32 s98, s98, 7\n{l}:\n  s_sleep 8\n  s_sub_u32 s98, s98, 1\n  s_cmp_ge_i32 s98, 0\n  s_cbranch_scc1 {l}\n  s_cmp_eq_u32 s97, 1\n' + m.group(0)
        import re
        txt = re.sub(r'  s_barrier', jit, txt)
    pre_, c_ = txt.split(';SPLIT')
    return pre_, c_, z.text(), sJ

def main():
    cfg = Cfg()
    cfg.ts = 1; cfg.xmap = 'b'; cfg.stag = 0; cfg.P = 4; cfg.late1 = 1; cfg.w0 = 0; cfg.cw0 = 8
    cfg.d0 = 8; cfg.dstr = 3; cfg.a0 = 0; cfg.astr = 1; cfg.ad = 3; cfg.PF = 4; cfg.cap = 2
    cfg.cad = 5; cfg.cdstr = 4; cfg.cP = 5; cfg.thr = 40; cfg.tail0 = 4; cfg.sum = 'add'; cfg.hbar = 2; cfg.t1e = 1; cfg.t0e = 0; cfg.npre = 2; cfg.aloop = 0; cfg.l2 = 0; cfg.mpos = 0; cfg.s2a = 40; cfg.slag = 1; cfg.pun = 1; cfg.opw = 0; cfg.slp3 = 4; cfg.p2 = 0; cfg.btouch = 1; cfg.ltouch = 1; cfg.chain = 1; cfg.snake = 1; cfg.odl = 3; cfg.gl = 1; cfg.perm = 0; cfg.lad = 1; cfg.pw = 0; cfg.av0 = 2; cfg.av1 = 1; cfg.anv = 2; cfg.amem = 2; cfg.hoist = 1; cfg.apre = 0; cfg.jit = 0; cfg.ost = 'sc1'; cfg.pst = 'sc1'; cfg.m0 = 0; cfg.c3 = 0; cfg.xat = -1; cfg.c3l = 3; cfg.c3s = 2; cfg.wsc = ''; cfg.gsc = ''; cfg.cdel = 0; cfg.ccx = 0; cfg.xbar = 10; cfg.fs1 = 6; cfg.xe = 1; cfg.xchk = 180; cfg.xfl = 60; cfg.xt = 0; cfg.fs = 2; cfg.oes = 2; cfg.sent = 0; cfg.slp2 = 4; cfg.trk = 2; cfg.kvp = 1; cfg.trk0 = 1; cfg.pf4 = 0; cfg.pf4n = 8; cfg.pf3 = 0; cfg.aab = 0; cfg.e64 = ''; cfg.xs = 0; cfg.xl = 1; cfg.cpf2 = 2; cfg.loc = 0; cfg.fremote = 0; cfg.ox = 0; cfg.ramp = 20; cfg.lag = 3; cfg.vmc = 8; cfg.acap = 24; cfg.amax = 80; cfg.wb = 0; cfg.opad = 256; cfg.xpad = 256; cfg.hpad = 0; cfg.oe = 3; cfg.de = 3; cfg.tms = 6; cfg.fl = 128; cfg.dchk = 1.65; cfg.dbg = 0; cfg.cpf = 1; cfg.tlb = 0; cfg.osc = 'sc1'; cfg.slp = 1; cfg.late0 = 2
    for a in sys.argv[2:]:
        k, v = a.split('='); setattr(cfg, k, int(v) if v.lstrip('-').isdigit() else float(v) if v.replace('.','').isdigit() else v)
    kn = NAME + '_kernel'
    doc = """; out = x + (attn(LN(x) wq, K, V) wo) * silu((gelu(LN(x) wg) * (LN(x) wu)) wd)      bf16 in/out, fp32 accumulation
; Kernarg: 0 x, 8 k_cache, 16 v_cache, 24 wq, 32 wo, 40 (unused), 48 w_gate, 56 w_up, 64 w_down, 72 out, 80 debug, 88 workspace
;  0  LayerNorm statistics of 8 tokens -> {mean, 1/std} records and normalised rows (MFMA B-fragment order) in the workspace
;     registers; the first 128 of K are normalised locally from raw x so that the GEMM need not wait for phase 0's hand-off
"""
    hdr = (f'; opad={cfg.opad} hoff={WS_H} xpad={cfg.xpad} hpad={cfg.hpad} ooff={WS_O} omap=1\n' + doc + f'; @launch grid=(256,1,1) block=(256,1,1) lds={LDS_TOT}\n'
           '.amdgcn_target "amdgcn-amd-amdhsa--gfx950"\n')
    if cfg.fs:
        (a, c8, z, sJ), (a6, c6, _, _) = (gen(cfg, 8), gen(cfg, 6)) if cfg.fs == 1 else (gen(cfg, 7, 9), gen(cfg, 7, 7))
        assert a == a6
        body = a + f'  s_bitcmp1_b32 s{sJ}, 0\n  s_cbranch_scc1 C_short\n' + c8 + '\nC_short:\n' + c6
    else:
        a, c7, z, _ = gen(cfg, 7); body = a + c7
    s = hdr + kernel_head(kn) + body + '\nK_end:\n  s_endpgm\n' + z + '\nK_last:\n' + kernel_desc(kn, 512, 256)
    s = '\n'.join(l for l in s.split('\n') if not l.strip().startswith(('; need', '; touch'))).replace(' offset:0 ', ' ').replace(' offset:0\n', '\n').replace('\n  ', '\n ').replace('\n .amdhsa', '\n  .amdhsa')
    open(sys.argv[1], 'w').write(s)
if __name__ == '__main__': main()
```

```python
import sys, struct, math
from dsl import *
from gen2 import (f2u, srd, kernel_head, kernel_desc, emit, interleave, spread, m0gap, fix_m0, chk_tail, Cfg)

NAME = 'recurrent_scan__sliding_block_cached__geglu_ffn__prompt'
WS_XN = 0
WS_O  = 5 << 20
WS_H  = 23 << 20
WS_G  = 36 << 20
WS_FL = 40 << 20
WS_ST = 41 << 20
WS_TS = 48 << 20
WS_P  = 64 << 20
HS = 22528; NHS = 7
LDS_SCR = NHS*HS
LDS_TOT = 163840

class TS:
    def __init__(self, on): self.on = on; self.n = 0
    def text(self, grp):
        if not self.on & grp or self.n >= 14: return None
        s = 88 + self.n; self.n += 1
        clk = 's_memtime' if self.on & 8 else 's_memrealtime'
        return f's_waitcnt lgkmcnt(0)\n{clk} s[4:5]\ns_waitcnt lgkmcnt(0)\ns_mov_b32 s{s}, s4'
    def stamp(self, p, grp=1):
        t = self.text(grp)
        if t: p(t)
    def old(self, p):
        if not self.on: return
        s = 88 + self.n; self.n += 1;
        if s >= 102: return
        p(f's_waitcnt lgkmcnt(0)\ns_memrealtime s[4:5]\ns_waitcnt lgkmcnt(0)\ns_mov_b32 s{s}, s4')
    def dump(self, p, wsptr):
        if not self.on: return
        if self.on & 16:
            p('s_load_dwordx2 s[12:13], s[0:1], 80\ns_waitcnt lgkmcnt(0)\ns_mov_b32 s14, 256\ns_mov_b32 s15, 0x20000\nv_mov_b32 v8, 0\ns_mov_b64 exec, 1')
            for i in range(min(self.n, 14)):
                p(f's_sub_u32 s4, s{88+i}, s6\nv_mov_b32 v4, s4\nbuffer_atomic_smax v4, v8, s[12:15], 0 offen offset:{8+4*i}\ns_nop 1')
            return
        srd(p, 12, wsptr, WS_TS, 1 << 20)
        p('s_lshl_b32 s3, s2, 8\ns_lshl_b32 s4, s36, 6\ns_add_u32 s3, s3, s4\nv_mov_b32 v8, s3')
        p('s_getreg_b32 s4, hwreg(HW_REG_XCC_ID, 0, 4)\nv_mov_b32 v4, s4\nbuffer_store_dword v4, v8, s[12:15], 0 offen offset:60\ns_nop 1')
        for i in range(min(self.n, 14)):
            p(f'v_mov_b32 v4, s{88+i}\nbuffer_store_dword v4, v8, s[12:15], 0 offen offset:{4*i}\ns_nop 1')

def gen(cfg, ND, NSS=8):
    SFX = f'_{ND}{NSS}'
    OST = 131072 + cfg.opad; XST = 32768 + cfg.xpad; HST = 112*1024 + cfg.hpad
    p = Prog(); ts = TS(cfg.ts)
    SC = ' sc1'; LS = '' if cfg.loc else ' sc1'
    assert cfg.xmap == 'c' or not cfg.loc
    pX, pK, pV, pWQ, pWO, pWG, pWU, pWD, pOUT, pDBG, pWS = 64, 66, 68, 70, 72, 76, 78, 80, 82, 84, 86
    S_W, S_Q, S_XN, S_H, S_K, S_V, S_O = 8, 12, 16, 20, 24, 28, 32
    S_FL, S_DB = 56, 60
    sW, sRB, sCB, sKW, sKQ, sKA, sCNT = 36, 37, 38, 39, 40, 41, 42
    sMW, sMQ, sRD, sDL, sLEFT, sLEFA, sRW, sRQ = 43, 44, 45, 46, 47, 48, 49, 3
    sT = 50
    p('K_first:\ns_cmp_ge_u32 s2, 256\ns_cbranch_scc0 K_go\ns_endpgm ;cond\nK_go:')
    if cfg.perm: p(f's_lshr_b32 s3, s2, 3\ns_and_b32 s3, s3, 7\ns_mul_i32 s3, s3, {cfg.perm}\ns_and_b32 s3, s3, 7\ns_xor_b32 s2, s2, s3')
    p('s_load_dwordx16 s[64:79], s[0:1], 0\ns_load_dwordx8 s[80:87], s[0:1], 64')
    p(f'v_lshrrev_b32 v2, 6, v0\nv_and_b32 v1, 63, v0\nv_readfirstlane_b32 s{sW}, v2')
    p(f's_and_b32 s{sT}, s2, 7\ns_lshr_b32 s{sT+1}, s2, 3')
    if cfg.xmap == 'c':
        p(f's_and_b32 s{sRB}, s{sT}, 1\ns_lshl_b32 s{sRB}, s{sRB}, 2\ns_and_b32 s{sT+2}, s{sT+1}, 3\ns_add_u32 s{sRB}, s{sRB}, s{sT+2}')
        p(f's_lshr_b32 s{sCB}, s{sT}, 1\ns_lshl_b32 s{sCB}, s{sCB}, 3\ns_lshr_b32 s{sT+2}, s{sT+1}, 2\ns_add_u32 s{sCB}, s{sCB}, s{sT+2}')
    else:
        p(f's_and_b32 s{sRB}, s{sT+1}, 7\ns_lshl_b32 s{sCB}, s{sT}, 2\ns_lshr_b32 s{sT+2}, s{sT+1}, 3\ns_add_u32 s{sCB}, s{sCB}, s{sT+2}')
    vAct, vDW, vDQ, vTr, vTq, vT = 4, 8, 15, 19, 20, 28
    vA, RA = 32, 8
    vB, RB = 64, 4
    def acc(t, b):
        if t < 16: c = (t*4+b)*4; return f'a[{c}:{c+3}]'
        c = 160 + ((t-16)*4+b)*4; return f'v[{c}:{c+3}]'
    def accr(t, b, r):
        if t < 16: return f'a{(t*4+b)*4+r}'
        return f'v{160+((t-16)*4+b)*4+r}'
    vLX, vLO, vLS = 128, 129, 130
    t = 132
    p(f's_lshl_b32 s{sT}, s{sRB}, 8\ns_lshl_b32 s{sT+1}, s{sCB}, 3\ns_add_u32 s{sT}, s{sT}, s{sT+1}\ns_lshl_b32 s{sT}, s{sT}, 11\ns_lshl_b32 s{sT+1}, s{sW}, 9\ns_add_u32 s{sT}, s{sT}, s{sT+1}')
    p(f'v_and_b32 v{t}, 7, v1\nv_bfe_u32 v{t+1}, v1, 3, 1\nv_lshrrev_b32 v{t+2}, 4, v1')
    p(f'v_lshlrev_b32 v{t+3}, 11, v{t}\nv_lshlrev_b32 v{t+4}, 8, v{t+1}\nv_lshlrev_b32 v{t+5}, 4, v{t+2}\nv_add3_u32 v{t+3}, v{t+3}, v{t+4}, v{t+5}\nv_add_u32 v{vLX}, s{sT}, v{t+3}')
    KW, KQ, KA, NT = 64*7168, 64*8192, 2048, 16
    sNO = 6
    vRX = 140; RAWL = 4*HS
    vSR = 139
    def late_addr():
        t = 132
        p(f's_lshl_b32 s{sT}, s{sRB}, 4\ns_lshr_b32 s{sT+1}, s{sCB}, 1\ns_add_u32 s{sT}, s{sT}, s{sT+1}\ns_mul_i32 s{sT}, s{sT}, {XST}\ns_lshl_b32 s{sT+1}, s{sW}, 13\ns_add_u32 s{sT}, s{sT}, s{sT+1}')
        p(f's_and_b32 s{sT+1}, s{sCB}, 1\ns_lshl_b32 s{sT+1}, s{sT+1}, 7\ns_add_u32 s{sT}, s{sT}, s{sT+1}')
        p(f'v_lshlrev_b32 v{t+3}, 4, v{t}\nv_lshlrev_b32 v{t+4}, 12, v{t+1}\nv_lshlrev_b32 v{t+5}, 8, v{t+2}\nv_add3_u32 v{t+4}, v{t+3}, v{t+4}, v{t+5}\nv_add_u32 v{vLO}, s{sT}, v{t+4}')
        p(f'v_add_u32 v{vLS}, {LDS_SCR}, v{t+3}\nv_lshl_add_u32 v{vLS+1}, v2, 2, v{vLS}')
        p(f's_and_b32 s{sT}, s{sW}, 1\ns_mul_i32 s{sT}, s{sT}, {32*7168}\ns_mul_i32 s{sT+1}, s{sCB}, 224\ns_add_u32 s{sT}, s{sT}, s{sT+1}')
        p(f's_mov_b32 s{sT+1}, 4682\ns_mov_b32 s{sT+2}, 7168')
        for n in range(448): assert (n*4682) >> 16 == n // 14
        t = 32
        for pc in range(7):
            p(f'v_add_u32 v{t}, {64*pc}, v1')
            p(f'v_mul_u32_u24 v{t+1}, s{sT+1}, v{t}\nv_lshrrev_b32 v{t+1}, 16, v{t+1}')
            p(f'v_mul_u32_u24 v{t+2}, 14, v{t+1}\nv_sub_u32 v{t+2}, v{t}, v{t+2}')
            p(f'v_and_b32 v{t+3}, 0x13, v{t+1}\nv_and_b32 v{t+4}, 4, v{t+1}\nv_lshl_or_b32 v{t+3}, v{t+4}, 1, v{t+3}')
            p(f'v_bfe_u32 v{t+4}, v{t+1}, 3, 1\nv_lshl_or_b32 v{t+3}, v{t+4}, 2, v{t+3}')
            p(f'v_mul_u32_u24 v{t+3}, s{sT+2}, v{t+3}\nv_lshlrev_b32 v{t+2}, 4, v{t+2}\nv_add3_u32 v{vDW+pc}, v{t+3}, v{t+2}, s{sT}')
            if pc % 4: p(f'v_subrev_u32 v{vDW+pc}, {1024*(pc%4)}, v{vDW+pc}')
        p(f's_lshl_b32 s{sT}, s{sW}, 17\ns_lshl_b32 s{sT+1}, s{sCB}, 8\ns_add_u32 s{sT}, s{sT}, s{sT+1}')
        p(f'v_lshrrev_b32 v{t}, 4, v1\nv_and_b32 v{t+1}, 15, v1\nv_lshlrev_b32 v{t+2}, 1, v{t}\nv_xor_b32 v{t+1}, v{t+1}, v{t+2}')
        p(f'v_lshlrev_b32 v{t}, 13, v{t}\nv_add_u32 v{t}, s{sT}, v{t}')
        for j in range(4):
            p(f'v_xor_b32 v{t+2}, {8*(j>>1)}, v{t+1}\nv_lshl_add_u32 v{t+2}, v{t+2}, 4, v{t}')
            p(f'v_add_u32 v{vDQ+j}, {j*(4*8192-1024)}, v{t+2}')
        p(f's_and_b32 s{sT}, s{sW}, 1\ns_lshr_b32 s{sT+1}, s{sW}, 1')
        p(f's_mul_i32 s{sMW}, s{sT}, {HS}\ns_mul_i32 s{sRW}, s{sT+1}, 7168')
        p(f's_mul_i32 s{sMQ}, s{sT+1}, {HS}\ns_lshl_b32 s{sRQ}, s{sT}, 12\ns_add_u32 s{sRQ}, s{sRQ}, 14336')
        p(f's_mov_b32 s{sKW}, 0\ns_mov_b32 s{sKQ}, 0\ns_mov_b32 s{sKA}, {2*KA}')
        p(f's_mov_b32 s{sRD}, 0')
        p(f's_lshl_b32 s{sT}, s{sRB}, 8\ns_lshl_b32 s{sT+1}, s{sW}, 6\ns_add_u32 s{sT+5}, s{sT}, s{sT+1}\ns_lshl_b32 s{sT}, s{sT+5}, 11')
        p(f'v_and_b32 v32, 15, v1\nv_lshrrev_b32 v34, 4, v1')
        for j in range(4):
            p(f'v_add_u32 v33, {4*j}, v34\nv_xor_b32 v35, v33, v32\nv_lshlrev_b32 v33, 11, v33\nv_lshl_add_u32 v33, v35, 4, v33\ns_sub_u32 s{sT+1}, s{sT}, {1024*j}\nv_add_u32 v{vRX+j}, s{sT+1}, v33')
        p(f's_lshl_b32 s{sT}, s{sT+5}, 4\nv_lshl_add_u32 v{vSR}, v32, 4, s{sT}')

    if not cfg.lad: late_addr()
    p('s_waitcnt lgkmcnt(0)')
    ts.stamp(p, 33)
    S_X0 = S_H
    srd(p, S_X0, pX, 0, 4 << 20)
    vLD = 144
    for i in range(4): p(f'buffer_load_dwordx4 v[{vLD+4*i}:{vLD+4*i+3}], v{vLX}, s[{S_X0}:{S_X0+3}], 0 offen offset:{64*i}')
    vP1, vP2, vPD = 136, 137, 138
    def code_srd(q, lbl):
        return [f's_getpc_b64 s[{q}:{q+1}]\n{lbl}:\ns_sub_u32 s{q}, s{q}, {lbl}-K_first\ns_subb_u32 s{q+1}, s{q+1}, 0', f's_mov_b32 s{q+2}, K_last-K_first', f's_mov_b32 s{q+3}, 0x20000']
    def code_pf(q, dst):
        return [f'buffer_load_dword v{dst}, v0, s[{q}:{q+3}], 0 offen ;pf']
    for x in code_srd(S_O, 'L_pc1'): p(x)
    p(f's_lshr_b32 s{sT}, s2, 3\ns_lshl_b32 s{sT}, s{sT}, 2\ns_add_u32 s{sT}, s{sT}, s{sW}\ns_lshl_b32 s{sT}, s{sT}, 10\nv_and_b32 v32, 15, v1\nv_lshl_add_u32 v0, v32, 6, s{sT}')
    for x in code_pf(S_O, vPD): p(x)
    def raw(q):
        p(f's_lshl_b32 s{sT}, s{sW}, 14\ns_add_u32 m0, s{sT}, {RAWL + 4096*q}\ns_mov_b32 s{sT}, {32768*q}')
        for j in range(4): p(f'buffer_load_dwordx4 v{vRX+j}, s[{S_X0}:{S_X0+3}], s{sT} offen offset:{1024*j} lds', ('R', 1, 0, 0))
    srd(p, S_DB, pDBG, 0, 256)
    p(f's_lshl_b32 s{sT}, s2, 2\ns_add_u32 s{sT}, s{sT}, s{sW}\ns_cmp_eq_u32 s{sT}, 1\ns_cbranch_scc0 L_no_nonce')
    p.cond(True)
    p(f's_memrealtime s[{sNO}:{sNO+1}]\nv_mov_b32 v34, 0\ns_waitcnt lgkmcnt(0)\ns_and_b32 s{sNO}, s{sNO}, 0xffffffc0\ns_or_b32 s{sNO}, s{sNO}, 1\ns_getreg_b32 s{sT}, hwreg(HW_REG_XCC_ID, 0, 1)\ns_lshl_b32 s{sT}, s{sT}, 5\ns_or_b32 s{sNO}, s{sNO}, s{sT}\nv_mov_b32 v32, s{sNO}\nv_mov_b32 v33, s{sNO+1}')
    p(f'buffer_store_dwordx2 v[32:33], v34, s[{S_DB}:{S_DB+3}], 0 offen sc1')
    p.cond(False)
    p('L_no_nonce:')
    if cfg.lad == 1: late_addr()
    p(f's_cmp_ge_u32 s{sW}, 2\ns_cselect_b32 s{S_W}, s{pWU}, s{pWG}\ns_cselect_b32 s{S_W+1}, s{pWU+1}, s{pWG+1}')
    p(f's_mov_b32 s{S_W+2}, {1024*7168:#x}\ns_mov_b32 s{S_W+3}, 0x20000')
    srd(p, S_Q, pWQ, 0, 8 << 20)
    def adv_w():
        return [f's_add_u32 s{sKW}, s{sKW}, {KW}',
                f's_add_u32 s{sMW}, s{sMW}, {2*HS}', f's_cmp_ge_u32 s{sMW}, {NHS*HS}\ns_cselect_b32 s{sT}, {NHS*HS}, 0\ns_sub_u32 s{sMW}, s{sMW}, s{sT}']
    def adv_q():
        return [f's_add_u32 s{sKQ}, s{sKQ}, {KQ}',
                f's_add_u32 s{sMQ}, s{sMQ}, {2*HS}', f's_cmp_ge_u32 s{sMQ}, {NHS*HS}\ns_cselect_b32 s{sT}, {NHS*HS}, 0\ns_sub_u32 s{sMQ}, s{sMQ}, s{sT}']
    def adv_a():
        return [f's_add_u32 s{sKA}, s{sKA}, {KA}',
                f's_cmp_eq_u32 s{sKA}, {NT*KA}\ns_cselect_b32 s{S_XN+2}, 0, s{S_XN+2}']
    sRD1, sDL1, vTr1 = 47, 48, 144
    def adv_rd(e):
        r_, d_ = (sRD, sDL) if e == 0 else (sRD1, sDL1)
        return [f's_add_u32 s{r_}, s{r_}, {2*HS}', f's_mov_b32 s{d_}, {2*HS}',
                f's_cmp_ge_u32 s{r_}, {NHS*HS}\ns_cselect_b32 s{d_}, {-(NHS-2)*HS}, s{d_}\ns_cselect_b32 s{sT}, {NHS*HS}, 0', f's_sub_u32 s{r_}, s{r_}, s{sT}']
    def dma(pc, tile, stride):
        tag = ('W', NHS, 2*tile + 1, 2*stride)
        if pc < 7: return (f'buffer_load_dwordx4 v{vDW+pc}, s[{S_W}:{S_W+3}], s{sKW} offen offset:{1024*(pc%4)} {cfg.gsc} lds', tag)
        return (f'buffer_load_dwordx4 v{vDQ+pc-7}, s[{S_Q}:{S_Q+3}], s{sKQ} offen offset:{1024*(pc-7)} {cfg.gsc} lds', tag)
    def m0set(pc):
        if pc == 0: return [f's_add_u32 m0, s{sMW}, s{sRW}']
        if pc == 4: return [f's_add_u32 m0, m0, 4096']
        if pc == 7: return [f's_add_u32 m0, s{sMQ}, s{sRQ}']
        return []
    def dma_tile(tile):
        for d in range(11):
            for x in m0set(d): p(x)
            if m0set(d): p('s_nop 0')
            emit(p, dma(d, tile, 0))
            if d == 6:
                for x in adv_w(): p(x)
            if d == 10:
                for x in adv_q(): p(x)
    if cfg.t0e & 1: dma_tile(0)
    if cfg.t0e & 2:
        for q in range(4): raw(q)
    srd(p, S_FL, pWS, WS_FL, 4352*128)
    srd(p, S_XN, pWS, WS_XN, 5 << 20)
    p(f's_lshl_b32 s{sT}, s{sRB}, 4\ns_lshl_b32 s{sT+1}, s{sW}, 2\ns_add_u32 s{sT}, s{sT}, s{sT+1}\ns_mul_i32 s{sT}, s{sT}, {XST}')
    p(f'v_lshlrev_b32 v{vT}, 4, v1\nv_add_u32 v{vAct}, s{sT}, v{vT}')
    for b in range(1, 4): p(f'v_add_u32 v{vAct+b}, {b*XST:#x}, v{vAct}')
    t = 32
    p(f'v_lshrrev_b32 v{t}, 5, v1\nv_lshlrev_b32 v{t}, 4, v{t}\nv_bfe_u32 v{t+1}, v1, 4, 1\nv_lshlrev_b32 v{t+1}, 2, v{t+1}\nv_bfe_u32 v{t+2}, v1, 2, 2')
    p(f'v_add3_u32 v{t}, v{t}, v{t+1}, v{t+2}\nv_mul_u32_u24 v{t}, 224, v{t}\nv_and_b32 v{t+3}, 3, v1\nv_lshlrev_b32 v{t+3}, 3, v{t+3}\nv_add_u32 v{vTr}, v{t}, v{t+3}')
    p(f'v_or_b32 v{t+1}, v{t+1}, v{t+2}')
    p(f'v_lshrrev_b32 v{t}, 4, v1\nv_lshlrev_b32 v{t}, 3, v{t}\nv_add_u32 v{t}, v{t}, v{t+2}\nv_lshlrev_b32 v{t}, 8, v{t}')
    p(f'v_add_u32 v{t}, 14336, v{t}\nv_add_u32 v{t}, v{t}, v{t+3}')
    for tt in range(8):
        p(f'v_xor_b32 v{t+2}, {tt}, v{t+1}\nv_lshl_add_u32 v{vTq+tt}, v{t+2}, 5, v{t}')
    if cfg.trk:
        p(f'v_lshrrev_b32 v32, 3, v1\nv_and_b32 v33, 7, v1\ns_lshl_b32 s{sT}, s{sRB}, 3\ns_add_u32 s{sT}, s{sT}, {64*cfg.trk}\nv_add_u32 v32, s{sT}, v32\nv_lshlrev_b32 v35, 6, v33')
        p(f's_mul_i32 s{sT+1}, s{sCB}, 224\ns_add_u32 s{sT+2}, s{sT+1}, {224+127}\ns_and_b32 s{sT+1}, s{sT+1}, -128\ns_and_b32 s{sT+2}, s{sT+2}, -128\ns_sub_u32 s{sT+2}, s{sT+2}, s{sT+1}')
        p(f'v_mul_u32_u24 v34, 7168, v32\nv_add3_u32 v{vP1}, v34, v35, s{sT+1}')
        p(f'v_lshlrev_b32 v34, 13, v32\ns_lshl_b32 s{sT+1}, s{sCB}, 8\nv_add3_u32 v{vP2}, v34, v35, s{sT+1}')
        p(f'v_cmp_gt_u32 vcc, s{sT+2}, v35\ns_and_b32 s{sT}, s{sW}, 1\ns_cmp_eq_u32 s{sT}, 0\ns_cselect_b64 vcc, vcc, 0\nv_mov_b32 v34, 0xf0000000\ns_nop 1\nv_cndmask_b32 v{vP1}, v34, v{vP1}, vcc')
        p(f'v_cmp_gt_u32 vcc, 4, v33\ns_cmp_eq_u32 s{sW}, 1\ns_cselect_b64 vcc, vcc, 0\ns_nop 1\nv_cndmask_b32 v{vP2}, v34, v{vP2}, vcc')
    def touch_tiles(tiles):
        p(f'v_subrev_u32 v34, {64*cfg.trk*7168}, v{vP1}\nv_subrev_u32 v35, {64*cfg.trk*8192}, v{vP2}')
        for tl in tiles:
            p(f's_mov_b32 s{sT}, {tl*KW}\ns_mov_b32 s{sT+1}, {tl*KQ}')
            p(f'buffer_load_dword v{vPD}, v34, s[{S_W}:{S_W+3}], s{sT} offen ;pf\nbuffer_load_dword v{vPD}, v35, s[{S_Q}:{S_Q+3}], s{sT+1} offen ;pf')
    if cfg.trk: touch_tiles(([] if cfg.t0e & 1 else [0]) + ([1] if cfg.t1e else []))
    ts.stamp(p, 32)
    X = 160; sM = sT + 4
    p(f's_mov_b32 s{sM}, 0xffff0000')
    p(f's_lshl_b32 s{sT}, s{sRB}, 5\ns_add_u32 s{sT+1}, s{sT}, s{sCB}\ns_lshl_b32 s{sT+1}, s{sT+1}, 7\nv_mov_b32 v45, s{sT+1}')
    p(f's_lshl_b32 s{sT+3}, s{sT+1}, 2\ns_lshl_b32 s{sT+2}, s{sW}, 7\ns_add_u32 s{sT+3}, s{sT+3}, s{sT+2}\ns_add_u32 s{sT+3}, s{sT+3}, {1280*128}\nv_mov_b32 v31, s{sT+3}')
    p(f's_lshl_b32 s{sT+2}, s{sW}, 3\ns_add_u32 s{sT}, s{sT}, s{sT+2}\ns_lshl_b32 s{sT}, s{sT}, 9\ns_add_u32 s{sT}, s{sT}, {1280*128}\nv_and_b32 v30, 31, v1\nv_lshl_add_u32 v30, v30, 7, s{sT}')
    p(f'v_lshl_add_u32 v46, v1, 4, v45\nv_cmp_gt_u32 vcc, 8, v1\nv_mov_b32 v47, -1\ns_nop 0\nv_cndmask_b32 v46, v47, v46, vcc\nv_mov_b32 v44, 0')
    for i in range(16): p(f'v_lshlrev_b32 v{X+2*i}, 16, v{vLD+i}\nv_and_b32 v{X+2*i+1}, s{sM}, v{vLD+i}')
    def red(v, tt, off):
        p(f's_nop 1\nv_add_f32_dpp v{v}, v{v}, v{v} row_ror:8 row_mask:0xf bank_mask:0xf')
        p(f'v_mov_b32 v{tt}, v{v}\ns_nop 1\nv_permlane16_swap_b32 v{v}, v{tt}\ns_nop 1\nv_add_f32 v{v}, v{v}, v{tt}')
        p(f'v_mov_b32 v{tt}, v{v}\ns_nop 1\nv_permlane32_swap_b32 v{v}, v{tt}\ns_nop 1\nv_add_f32 v{v}, v{v}, v{tt}')
        p(f'ds_write_b32 v{vLS+1}, v{v} offset:{off}\ns_waitcnt lgkmcnt(0)\ns_barrier')
        p(f'ds_read_b128 v[40:43], v{vLS} offset:{off}')
        p(f'v_add_f32 v40, v40, v41\nv_add_f32 v42, v42, v43\nv_add_f32 v{v}, v40, v42\nv_mul_f32 v{v}, {f2u(1/1024):#x}, v{v}')
    ts.stamp(p, 32)
    p(f'buffer_load_dwordx2 v[2:3], v44, s[{S_DB}:{S_DB+3}], 0 offen sc1')
    for a in range(0, 4, 2): p(f'v_pk_add_f32 v[{32+a}:{33+a}], v[{X+a}:{X+a+1}], v[{X+4+a}:{X+5+a}]')
    for i in range(8, 32, 2): p(f'v_pk_add_f32 v[{32+i%4}:{33+i%4}], v[{32+i%4}:{33+i%4}], v[{X+i}:{X+i+1}]')
    p('v_pk_add_f32 v[32:33], v[32:33], v[34:35]\nv_add_f32 v32, v32, v33')
    red(32, 33, 0)
    p('v_mov_b32 v33, v32')
    for i in range(0, 32, 2): p(f'v_pk_add_f32 v[{X+32+i}:{X+33+i}], v[{X+i}:{X+i+1}], v[32:33] neg_lo:[0,1] neg_hi:[0,1]')
    for a in range(0, 4, 2): p(f'v_pk_mul_f32 v[{36+a}:{37+a}], v[{X+32+a}:{X+33+a}], v[{X+32+a}:{X+33+a}]')
    for i in range(4, 32, 2): p(f'v_pk_fma_f32 v[{36+i%4}:{37+i%4}], v[{X+32+i}:{X+33+i}], v[{X+32+i}:{X+33+i}], v[{36+i%4}:{37+i%4}]')
    p('v_pk_add_f32 v[36:37], v[36:37], v[38:39]\nv_add_f32 v36, v36, v37')
    red(36, 37, 128)
    def rnd(v): p(f'v_cvt_pk_bf16_f32 v{v}, v{v}, v{v}\nv_lshlrev_b32 v{v}, 16, v{v}')
    rnd(32); rnd(36)
    p(f'v_add_f32 v36, {f2u(1e-5):#x}, v36'); rnd(36)
    p('v_sqrt_f32 v36, v36\ns_nop 0'); rnd(36)
    p('v_rcp_f32 v36, v36')
    S_ST = S_V
    srd(p, S_ST, pWS, WS_ST, 2048*16)
    ts.stamp(p, 32)
    p.touch('v[2:3]')
    p('L_no_retry:')
    p(f'v_readfirstlane_b32 s{sNO}, v2\nv_readfirstlane_b32 s{sNO+1}, v3\ns_nop 0\ns_cmp_lg_u32 s{sNO}, 0\ns_cbranch_scc1 L_no_ok')
    p.cond(True)
    p(f'buffer_load_dwordx2 v[2:3], v44, s[{S_DB}:{S_DB+3}], 0 offen sc1\ns_waitcnt vmcnt(0)\ns_branch L_no_retry')
    p.cond(False)
    p('L_no_ok:')
    p(f's_cmp_eq_u32 s{sW}, 1\ns_cbranch_scc0 L_st_skip')
    p.cond(True)
    p(f'v_mov_b32 v40, v32\nv_mov_b32 v41, v36\nv_mov_b32 v42, v2\nv_mov_b32 v43, v3\nbuffer_store_dwordx4 v[40:43], v46, s[{S_ST}:{S_ST+3}], 0 offen sc1')
    p.cond(False)
    p('L_st_skip:')
    ts.stamp(p, 33)
    p('v_mov_b32 v33, v32\nv_mov_b32 v37, v36')
    if not cfg.t0e & 1: dma_tile(0)
    for i in range(16):
        if i % 4 == 0 and not cfg.t0e & 2: raw(i // 4)
        a, b = X+2*i, X+2*i+1
        p(f'v_pk_add_f32 v[{a}:{b}], v[{a}:{b}], v[32:33] neg_lo:[0,1] neg_hi:[0,1]\nv_cvt_pk_bf16_f32 v{a}, v{a}, v{b}')
        p(f'v_and_b32 v{b}, s{sM}, v{a}\nv_lshlrev_b32 v{a}, 16, v{a}')
        p(f'v_pk_mul_f32 v[{a}:{b}], v[{a}:{b}], v[36:37]\nv_cvt_pk_bf16_f32 v{240+i}, v{a}, v{b}')
    RC = 224
    def rec_loads():
        for b in range(4): p(f'buffer_load_dwordx4 v[{RC+4*b}:{RC+4*b+3}], v{vSR}, s[{S_ST}:{S_ST+3}], 0 offen offset:{256*b} sc1')
    rec_loads()
    xst = [(f'buffer_store_dwordx4 v[{240+4*i}:{240+4*i+3}], v{vLO}, s[{S_XN}:{S_XN+3}], 0 offen offset:{1024*i} sc1', ('Xst', 1, 0, 0)) for i in range(4)]
    if cfg.xe:
        for x in xst: emit(p, x)
    p(f'v_and_b32 v32, 15, v1\nv_lshrrev_b32 v33, 4, v1\nv_xor_b32 v33, v33, v32\nv_lshlrev_b32 v32, 8, v32\ns_lshl_b32 s{sT}, s{sW}, 14\ns_add_u32 s{sT}, s{sT}, {RAWL}\nv_add_u32 v32, s{sT}, v32')
    for u in range(4): p(f'v_xor_b32 v34, {4*u}, v33\nv_lshl_add_u32 v{36+u}, v34, 4, v32')
    p.need(('R', 1, 0, 0))
    for u in range(4):
        for b in range(4): p(f'ds_read_b128 v[{vB+16*u+4*b}:{vB+16*u+4*b+3}], v{36+u} offset:{4096*b}')
    if cfg.pun:
        for k in range(9): p(f'v_add_u32 v{vTr1+k}, {HS}, v{vTr+k}')
        for i in range(32): p(f'v_lshlrev_b32 v{X+2*i}, 16, v{vB+i}\nv_and_b32 v{X+2*i+1}, s{sM}, v{vB+i}')
    ts.stamp(p, 32)
    p.touch(f'v[{RC}:{RC+15}]')
    ts.stamp(p, 32)
    p('L_rec_chk:')
    p(f'v_cmp_ne_u64 vcc, s[{sNO}:{sNO+1}], v[{RC+2}:{RC+3}]')
    for b in range(1, 4): p(f'v_cmp_ne_u64 s[{sT+2}:{sT+3}], s[{sNO}:{sNO+1}], v[{RC+4*b+2}:{RC+4*b+3}]\ns_nop 0\ns_or_b64 vcc, vcc, s[{sT+2}:{sT+3}]')
    p('s_cbranch_vccz L_rec_ok')
    p.cond(True)
    rec_loads(); p('s_waitcnt vmcnt(0)\ns_branch L_rec_chk')
    p.cond(False)
    p('L_rec_ok:')
    ts.stamp(p, 33)
    vRI = 132; vMR = [128, 130, 131, 139]
    for b in range(4): p(f'v_mov_b32 v{vRI+b}, v{RC+4*b+1}\nv_mul_f32 v{vMR[b]}, v{RC+4*b}, v{RC+4*b+1}')
    NT0 = 140
    def norm(sub):
        out = []
        for b in range(4):
            for r in range(4):
                q = vB + 16*sub + 4*b + r; t0 = NT0 + 2*((4*b + r) % 2)
                out += [f'v_lshlrev_b32 v{t0}, 16, v{q}', f'v_and_b32 v{t0+1}, s{sM}, v{q}',
                        f'v_fma_f32 v{t0}, v{t0}, v{vRI+b}, -v{vMR[b]}', f'v_fma_f32 v{t0+1}, v{t0+1}, v{vRI+b}, -v{vMR[b]}',
                        f'v_cvt_pk_bf16_f32 v{q}, v{t0}, v{t0+1}']
        return out
    ts.stamp(p, 32)
    p('s_nop 0')
    def norm_pk(sub):
        for b in range(4):
            p(f'v_mov_b32 v32, v{vRI+b}\nv_mov_b32 v33, v{vRI+b}\nv_sub_f32 v34, 0, v{vMR[b]}\nv_sub_f32 v35, 0, v{vMR[b]}')
            for r in range(4):
                q = vB + 16*sub + 4*b + r
                p(f'v_lshlrev_b32 v{36+2*r}, 16, v{q}\nv_and_b32 v{37+2*r}, s{sM}, v{q}')
            for r in range(4): p(f'v_pk_fma_f32 v[{36+2*r}:{37+2*r}], v[{36+2*r}:{37+2*r}], v[32:33], v[34:35]')
            for r in range(4): p(f'v_cvt_pk_bf16_f32 v{vB + 16*sub + 4*b + r}, v{36+2*r}, v{37+2*r}')
    if cfg.pun:
        assert cfg.npre == 2
        for b in range(4):
            p(f'v_sub_f32 v{32+2*b}, 0, v{vMR[b]}\nv_mov_b32 v{RC+4*b}, v{vRI+b}\nv_mov_b32 v{33+2*b}, v{32+2*b}')
        for b in range(4):
            for sub in range(2):
                for r in range(4):
                    i = 16*sub + 4*b + r
                    p(f'v_pk_fma_f32 v[{X+2*i}:{X+2*i+1}], v[{X+2*i}:{X+2*i+1}], v[{RC+4*b}:{RC+4*b+1}], v[{32+2*b}:{33+2*b}]')
        for i in range(32): p(f'v_cvt_pk_bf16_f32 v{vB+i}, v{X+2*i}, v{X+2*i+1}')
    else:
        for sub in range(cfg.npre): norm_pk(sub)
    srd(p, S_K, pK, 0, 2 << 20); srd(p, S_V, pV, 0, 2 << 20)
    if cfg.trk: touch_tiles(range(2, cfg.trk + 2))
    if cfg.kvp:
        p(f's_lshr_b32 s{sT}, s2, 3\ns_lshl_b32 s{sT}, s{sT}, 2\ns_add_u32 s{sT}, s{sT}, s{sW}\ns_lshl_b32 s{sT}, s{sT}, 10')
        p(f's_lshr_b32 s{sT+1}, s{sCB}, 3\ns_lshl_b32 s{sT+1}, s{sT+1}, 19\ns_add_u32 s{sT}, s{sT}, s{sT+1}\ns_add_u32 s{sT}, s{sT}, {1536*256}')
        p(f'v_and_b32 v40, 15, v1\nv_lshlrev_b32 v40, 6, v40')
        p(f'buffer_load_dword v{vPD}, v40, s[{S_K}:{S_K+3}], s{sT} offen ;pf\nbuffer_load_dword v{vPD}, v40, s[{S_V}:{S_V+3}], s{sT} offen ;pf')
    ts.stamp(p, 32)
    def act(sub, b):
        r = vB + 16*(sub % RB) + 4*b
        return f'buffer_load_dwordx4 v[{r}:{r+3}], v{vAct+b}, s[{S_XN}:{S_XN+3}], s{sKA} offen offset:{1024*(sub % 2)}{SC}'
    NG = 22
    def vm_sched(step, g2):
        d = None; a = None
        if cfg.d0 <= g2 < cfg.d0 + 11*cfg.dstr and (g2 - cfg.d0) % cfg.dstr == 0: d = (g2 - cfg.d0)//cfg.dstr
        if cfg.a0 <= g2 < cfg.a0 + 8*cfg.astr and (g2 - cfg.a0) % cfg.astr == 0:
            k = (g2 - cfg.a0)//cfg.astr; a = (2*step + 2 + k // 4, k % 4)
        return d, a
    def flagchk(lbl, vaddr, vd):
        return [f'v_cmp_ne_u64 vcc, s[{sNO}:{sNO+1}], v[{vd}:{vd+1}]', 's_nop 0', 's_nop 0', f's_cbranch_vccz {lbl}_ok',
                f'{lbl}_spin: ;cond', f's_sleep {cfg.slp3} ;cond', f'buffer_load_dwordx2 v[{vd}:{vd+1}], v{vaddr}, s[{S_FL}:{S_FL+3}], 0 offen sc1 ;cond', 's_waitcnt vmcnt(0) ;cond',
                f'v_cmp_ne_u64 vcc, s[{sNO}:{sNO+1}], v[{vd}:{vd+1}] ;cond', 's_nop 1 ;cond', f's_cbranch_vccnz {lbl}_spin ;cond', f'{lbl}_ok:']
    def flag_store(lbl, va):
        return f's_cmp_eq_u32 s{sW}, 1\ns_cbranch_scc0 {lbl}\nbuffer_store_dwordx2 v[2:3], v{va}, s[{S_FL}:{S_FL+3}], 0 offen sc1 ;cond\n{lbl}:'
    def poll(lbl, vaddr, done):
        ld = lambda r: f'buffer_load_dwordx2 v[{r}:{r+1}], v{vaddr}, s[{S_FL}:{S_FL+3}], 0 offen sc1'
        if cfg.p2:
            p(f'{ld(36)}\ns_sleep {cfg.p2}\n{lbl}:\n{ld(38)}\ns_waitcnt vmcnt(1)\nv_cmp_ne_u64 vcc, s[{sNO}:{sNO+1}], v[36:37]\ns_nop 1\ns_cbranch_vccz {lbl}_x')
            p(f'{ld(36)}\ns_waitcnt vmcnt(1)\nv_cmp_ne_u64 vcc, s[{sNO}:{sNO+1}], v[38:39]\ns_nop 1\ns_cbranch_vccnz {lbl}\n{lbl}_x:')
            return
        p(f'{lbl}:')
        p(f'{ld(36)}\ns_waitcnt vmcnt(0)')
        p(f'v_cmp_ne_u64 vcc, s[{sNO}:{sNO+1}], v[36:37]\ns_nop 1\ns_cbranch_vccz {done}\ns_sleep {cfg.slp}\ns_branch {lbl}')
    vHF = 27
    srd(p, S_H, pWS, WS_H, 15 << 20)
    for q_ in range(4): p(f's_mov_b32 s{S_DB+q_}, s{S_O+q_}') if q_ < 3 else p(f's_mov_b32 s{S_DB+3}, 0x20000')
    p.need(('W', NHS, 1, 0))
    xflag = f'buffer_store_dwordx2 v[2:3], v31, s[{S_FL}:{S_FL+3}], 0 offen sc1'
    p('s_waitcnt lgkmcnt(0)\ns_barrier')
    P = cfg.P
    def trr(G, tile0, stride):
        step, g2 = divmod(G, 2*NG); t, s = divmod(g2, 2)
        r = vA + 4*(G % RA)
        tag = ('W', NHS, 2*(tile0 + step) + 1, 2*stride) if s == 1 else ('We!', 1, 0, 0)
        if t < 14: off = (t // 7)*7168 + (t % 7)*32; a = (vTr, vTr1)[s]; hh = 8*224
        else: off = 0; a = (vTq, vTr1 + 1)[s] + t - 14; hh = 1024
        return [(f'ds_read_b64_tr_b16 v[{r}:{r+1}], v{a} offset:{off}', tag),
                (f'ds_read_b64_tr_b16 v[{r+2}:{r+3}], v{a} offset:{off + hh}', tag)]
    if not cfg.pun:
        for k in range(9): p(f'v_add_u32 v{vTr1+k}, {HS}, v{vTr+k}')
    for G in range(P):
        for f in trr(G, 0, 0): emit(p, f)
    UN = 2
    p(f's_mov_b32 s{sDL}, 0\ns_mov_b32 s{sDL1}, 0\ns_mov_b32 s{sRD1}, {HS}\ns_mov_b32 s{sCNT}, {NT//UN - 1 - cfg.gl}')
    hi = {}; lo = {}
    def H(i, x): hi.setdefault(i, []).append(x)
    def L(i, x): lo.setdefault(i, []).append(x)
    NGB = 2*NG*UN
    vDK, vDV, vK, vV = 8, 12, 14, 18
    sKV, sMK, sAD, sPF = 39, 40, 43, 44
    k1 = -2*math.sqrt(2/math.pi)*math.log2(math.e); k2 = k1*0.044715
    vC = 28; vHs = 132
    def post_g():
        t = 128
        srd(p, S_O, pWS, WS_O, 17 << 20)
        p(f'v_lshrrev_b32 v{t}, 4, v1\nv_and_b32 v{t+1}, 15, v1')
        p(f's_lshl_b32 s{sMK}, s{sW}, 12')
        p(f'v_lshlrev_b32 v{t+2}, 8, v{t}\nv_add_u32 v{t+2}, s{sMK}, v{t+2}')
        for j in range(4):
            p(f'v_add_u32 v{t+3}, {4*j}, v{t}\nv_xor_b32 v{t+3}, v{t+3}, v{t+1}\nv_lshl_add_u32 v{vDK+j}, v{t+3}, 4, v{t+2}')
        p(f'v_lshlrev_b32 v{t+3}, 1, v{t}\nv_xor_b32 v{t+3}, v{t+3}, v{t+1}\nv_lshl_add_u32 v{vDV}, v{t+3}, 4, v{t+2}\nv_xor_b32 v{vDV+1}, 128, v{vDV}')
        p(f's_lshr_b32 s{sKV}, s{sCB}, 3\ns_lshl_b32 s{sKV}, s{sKV}, 19\ns_add_u32 s{sKV}, s{sKV}, {1536*256}')
        p(f'v_mov_b32 v{vC}, {f2u(k1):#x}\nv_mov_b32 v{vC+1}, {f2u(k1):#x}\nv_mov_b32 v{vC+2}, {f2u(k2):#x}\nv_mov_b32 v{vC+3}, {f2u(k2):#x}')
        p(f's_lshl_b32 s{sT+2}, s{sRB}, 4\ns_lshl_b32 s{sT+3}, s{sW}, 2\ns_add_u32 s{sT+2}, s{sT+2}, s{sT+3}\ns_mul_i32 s{sT+2}, s{sT+2}, {HST}')
        p(f's_mul_i32 s{sT+3}, s{sCB}, 7\ns_add_u32 s{sT+3}, s{sT+3}, 1\ns_lshr_b32 s{sT+3}, s{sT+3}, 1\ns_lshl_b32 s{sT+3}, s{sT+3}, 10')
        p(f's_add_u32 s{sT+2}, s{sT+2}, s{sT+3}')
        p(f'v_lshlrev_b32 v{t}, 4, v1\nv_add_u32 v{vAct}, s{sT+2}, v{t}')
        for b in range(1, 4): p(f'v_add_u32 v{vAct+b}, {b*HST:#x}, v{vAct}')
        p(f's_and_b32 s{sT+3}, s{sCB}, 1\ns_mul_i32 s{sT+4}, s{sT+3}, {-1016-3072}\ns_add_u32 s{sT+4}, s{sT+4}, 3072')
        for b in range(4): p(f'v_add_u32 v{vHs+b}, s{sT+4}, v{vAct+b}')
    def collect(fn):
        nonlocal p
        w = Prog(); q = p; p = w; fn(); p = q
        out = []
        for it in w.items:
            if it.op == 's_addc_u32': out[-1] = (out[-1][0] + '\n' + it.text, None)
            else: out.append((it.text, it.tag))
        return out
    def g_body(first, last=False):
        hi.clear(); lo.clear(); mf = []
        t0_, st_ = (0, 0) if first else (NT - UN, 0) if last else (UN, UN)
        if first:
            if not cfg.xe:
                for k, x in enumerate(xst): L(2 + cfg.fs1*2*k, x)
            H(cfg.xbar, lambda p: (p.need(('Xst', 1, 0, 0)), p(xflag)))
            for d in range(11):
                g_ = 2 + cfg.fs1*(2*d + 1 if d < 4 else d + 4)
                for x in m0set(d): L(g_, x)
                if m0set(d): L(g_, m0gap)
                L(g_, dma(d, 1, 0))
                if d == 6:
                    for x in adv_w(): L(g_, x)
                if d == 10:
                    for x in adv_q(): L(g_, x)
        seen = set()
        for G in range(NGB):
            step, g2 = divmod(G, 2*NG)
            if G % 2 == 0:
                t = g2 // 2
                for k, b in enumerate(range(3, -1, -1) if t % 2 else range(4)):
                    for s in (k % 2, 1 - k % 2):
                        ra = vA + 4*((G + s) % RA); rb = vB + 16*((2*step + s) % RB) + 4*b
                        new_ = first and (t, b) not in seen; seen.add((t, b))
                        mf.append(f'v_mfma_f32_16x16x32_bf16 {acc(t,b)}, v[{ra}:{ra+3}], v[{rb}:{rb+3}], {"0" if new_ else acc(t,b)}')
            i0 = 4*G; Gn = G + P; fn = Gn % (2*NG)
            if cfg.ltouch and G % 2 == 1 and not (last and G + 2 >= NGB): H(i0+3, lambda p, r=vA + 4*((G + 2) % RA): p.touch(f'v[{r}:{r+3}]'))
            if last and Gn >= NGB: continue
            if fn == 0:
                stepn = Gn // (2*NG)
                def bar_(p, stepn=stepn):
                    p.need(('W', NHS, 2*(t0_ + stepn) + 1, 2*st_))
                    if cfg.btouch: p.touch(f'v[{vB + 32*(stepn % 2)}:{vB + 32*(stepn % 2) + 31}]')
                    p.needrd(('We!', 1, 0, 0))
                    p('s_barrier')
                H(i0-1, bar_)
            Gr = Gn + (1 if fn == 41 else -1 if fn == 42 else 0)
            r0, r1 = trr(Gr % NGB, t0_ + (Gr // NGB)*UN, st_)
            H(i0, r0); H(i0+1, r1)
            if 2 <= fn <= 9: L(i0, f'v_add_u32 v{vTq+fn-2}, s{sDL}, v{vTq+fn-2}')
            if 10 <= fn <= 17: L(i0, f'v_add_u32 v{vTr1+1+fn-10}, s{sDL1}, v{vTr1+1+fn-10}')
            if fn in (18, 20):
                for x in adv_rd((fn - 18)//2): L(i0, x)
            if fn == 29: H(i0+2, f'v_add_u32 v{vTr}, s{sDL}, v{vTr}')
            if fn == 30: H(i0+2, f'v_add_u32 v{vTr1}, s{sDL1}, v{vTr1}')
            pc, a = vm_sched(step, g2)
            if last: pc = None
            if a is not None and not (first and a[0] < 4) and not (last and a[0] >= 4):
                g_ = max(i0, cfg.xchk + 4 + 8*(4*(a[0] - 4) + a[1])) if first else i0
                assert g_ < 320 or not first
                L(g_, act(*a))
                if a[1] == 3 and a[0] % 2 == 1:
                    for x in adv_a(): L(g_, x)
            if pc is not None:
                g_ = max(i0, 2 + cfg.fs1*(15 + pc)) if first and step == 0 else i0
                if cfg.trk and pc == 0:
                    L(g_, f'buffer_load_dword v{vPD}, v{vP1}, s[{S_W}:{S_W+3}], s{sKW} offen ;pf')
                    L(g_, f'buffer_load_dword v{vPD}, v{vP2}, s[{S_Q}:{S_Q+3}], s{sKQ} offen ;pf')
                for x in m0set(pc): L(g_, x)
                if m0set(pc): L(g_, m0gap)
                L(g_, dma(pc, t0_ + step + 2, st_))
                if pc == 6:
                    for x in adv_w(): L(g_, x)
                if pc == 10:
                    for x in adv_q(): L(g_, x)
        for x in code_pf(S_DB, vPD): L(4*(cfg.d0 + 10*cfg.dstr) + 1, x)
        if first:
            H(cfg.xchk - cfg.xfl, f'buffer_load_dwordx2 v[28:29], v30, s[{S_FL}:{S_FL+3}], 0 offen sc1')
            H(cfg.xchk, '\n'.join(flagchk('L_x', 30, 28)))
        elif last:
            assert 4*(cfg.a0 + 7*cfg.astr) < 4*(22 - P) + 4
            for x in collect(post_g): L(4*(22 - P) + 4, x)
            H(len(mf)-6, 's_waitcnt lgkmcnt(0)\ns_barrier')
        else:
            H(len(mf)-3, f's_sub_u32 s{sCNT}, s{sCNT}, 1'); H(len(mf)-2, f's_cmp_lg_u32 s{sCNT}, 0')
            H(len(mf)-1, 's_cbranch_scc1 G_loop')
        lo_ = {k: lo[k] for k in sorted(lo)}
        fill = spread(hi, lo_, len(mf), cfg.cap, 60 if first else 200 if last else 16, cost=lambda i: 1 if i % 8 == 7 else 2 if i == -1 else 0)
        fix_m0(fill, len(mf))
        if first:
            nn = 4 - cfg.npre
            for k, sub in enumerate(range(cfg.npre, 4)):
                g0, g1 = 172*k//nn, 172*(k + 1)//nn
                q_ = norm(sub); per = len(q_)/(g1 - g0); due = 0.0; done = 0
                for i in range(g0, g1):
                    due += per; used = len(fill[i]) + (1 if i % 4 == 3 else 0)
                    while q_ and done < due + 2 and (used < cfg.cap or done < due - cfg.lag):
                        fill[i].append(q_.pop(0)); used += 1; done += 1
                fill[g1 - 1] += q_
        elif not last: chk_tail(fill, len(mf))
        if first:
            for i in (43, 87, 131, 175, 219, 263, 307):
                t_ = ts.text(64)
                if t_: fill[i].append(t_)
        interleave(p, mf, fill)
    ts.stamp(p, 97)
    g_body(True)
    if cfg.xt: p.touch(f'v[{vB}:{vB+16*cfg.xt-1}]')
    ts.stamp(p, 96)
    p.loop_begin('G_loop', NT//UN - 1 - cfg.gl)
    g_body(False)
    p.loop_end()
    if cfg.gl: g_body(False, True); p('s_nop 3')
    else:
        p('s_waitcnt vmcnt(0) lgkmcnt(0)\ns_barrier'); post_g()
    ts.stamp(p, 5)

    def kdma(j, soff, tag): return (f'buffer_load_dwordx4 v{vDK+j}, s[{S_K}:{S_K+3}], s{soff} offen offset:{1024*j} lds', tag)
    def vdma(j, soff, tag): return (f'buffer_load_dwordx4 v{vDV + (j & 1)}, s[{S_V}:{S_V+3}], s{soff} offen offset:{1024*j} lds', tag)
    kvq = []
    for (kind, tl) in (('K', 0), ('K', 1), ('V', 0), ('K', 2), ('V', 1)):
        g = [f's_add_u32 s{sT+5}, s{sKV}, {tl*16384}', f's_add_u32 m0, s{sMK}, {tl*16384 + (65536 if kind == "V" else 0)}', 's_nop 0']
        for j in range(4):
            kvq.append(g + [(kdma if kind == 'K' else vdma)(j, sT+5, (kind, 4, tl, 0))]); g = []
    p(f's_bitcmp0_b32 s{sCB}, 0')
    def gelu_tiles(tiles):
        n = len(tiles)
        Xs = [32 + 12*i for i in range(n)]
        pk = lambda r: f'v[{r}:{r+1}]'
        for (t, b, d), X in zip(tiles, Xs):
            for r in range(4): p(f'v_accvgpr_read_b32 v{X+r}, {accr(t,b,r)}')
        for X in Xs:
            for r in (0, 2): p(f'v_pk_mul_f32 {pk(X+8+r)}, {pk(X+r)}, {pk(X+r)}')
        for X in Xs:
            for r in (0, 2): p(f'v_pk_fma_f32 {pk(X+8+r)}, {pk(X+8+r)}, {pk(vC+2)}, {pk(vC)}')
        for X in Xs:
            for r in (0, 2): p(f'v_pk_mul_f32 {pk(X+8+r)}, {pk(X+8+r)}, {pk(X+r)}')
        for (t, b, d), X in zip(tiles, Xs):
            for r in range(4): p(f'v_exp_f32 v{X+8+r}, v{X+8+r}')
            for r in range(4): p(f'v_accvgpr_read_b32 v{X+4+r}, {accr(t+7,b,r)}')
        for X in Xs:
            for r in (0, 2): p(f'v_pk_add_f32 {pk(X+8+r)}, {pk(X+8+r)}, 1.0 op_sel_hi:[1,0]')
        for X in Xs:
            for r in range(4): p(f'v_rcp_f32 v{X+8+r}, v{X+8+r}')
            for r in (0, 2): p(f'v_pk_mul_f32 {pk(X+4+r)}, {pk(X+4+r)}, {pk(X+r)}')
        for X in Xs:
            for r in (0, 2): p(f'v_pk_mul_f32 {pk(X+4+r)}, {pk(X+4+r)}, {pk(X+8+r)}')
        for (t, b, d), X in zip(tiles, Xs):
            p(f'v_cvt_pk_bf16_f32 v{d}, v{X+4}, v{X+5}\nv_cvt_pk_bf16_f32 v{d+1}, v{X+6}, v{X+7}')
    for par in range(2):
        if par == 0: p('s_cbranch_scc0 B_epi_odd')
        else: p.cond(True); p('B_epi_odd:')
        n = 0; kq = list(kvq)
        for b in range(4):
            for pr in range(3):
                d = 64 + 4*(n % 8); n += 1
                for _ in range(2):
                    if kq:
                        for x in kq.pop(0): emit(p, x)
                gelu_tiles([(2*pr + par, b, d), (2*pr + 1 + par, b, d + 2)])
                p(f'buffer_store_dwordx4 v[{d}:{d+3}], v{vAct+b}, s[{S_H}:{S_H+3}], 0 offen offset:{1024*pr}{LS}', ('Hst', 1, 0, 0))
        for b in range(0, 4, 2):
            d = 64 + 4*(n % 8); n += 1
            gelu_tiles([(6 if par == 0 else 0, b, d), (6 if par == 0 else 0, b+1, d+2)])
            p(f'buffer_store_dwordx2 v[{d}:{d+1}], v{vHs+b}, s[{S_H}:{S_H+3}], 0 offen{LS}', ('Hst', 1, 0, 0))
            p(f'buffer_store_dwordx2 v[{d+2}:{d+3}], v{vHs+b+1}, s[{S_H}:{S_H+3}], 0 offen{LS}', ('Hst', 1, 0, 0))
        if par == 0: p('s_branch B_epi_done')
    p.cond(False)
    p('B_epi_done:')
    ts.stamp(p, 5)
    vQ = 64
    qs = math.log2(math.e)/math.sqrt(128)
    def Qreg(b, u): return vQ + (u*4 + b)*4
    def qconv(b, u):
        d = Qreg(b, u)
        for half in range(2):
            x = 32 + 4*half; tl = 14 + 2*u + half
            src = accr(tl, b, 0)
            if src[0] == 'a':
                for r in range(4): p(f'v_accvgpr_read_b32 v{x+r}, {accr(tl, b, r)}')
                s0 = x
            else: s0 = int(src[1:])
            for r in (0, 2): p(f'v_pk_mul_f32 v[{x+r}:{x+r+1}], v[{s0+r}:{s0+r+1}], v[{vC}:{vC+1}]')
            p(f'v_cvt_pk_bf16_f32 v{d+2*half}, v{x}, v{x+1}\nv_cvt_pk_bf16_f32 v{d+2*half+1}, v{x+2}, v{x+3}')
    def qswap(b, u):
        d = Qreg(b, u)
        p(f'v_permlane16_swap_b32 v{d}, v{d+2}\nv_permlane16_swap_b32 v{d+1}, v{d+3}')
    t = 32
    def perm_g(dst, tmp):
        p(f'v_bfe_u32 v{dst}, v1, 4, 1\nv_lshlrev_b32 v{dst}, 1, v{dst}\nv_lshrrev_b32 v{tmp}, 5, v1\nv_or_b32 v{dst}, v{dst}, v{tmp}')
    perm_g(t+1, t+2)
    p(f'v_and_b32 v{t}, 15, v1\nv_xor_b32 v{t+1}, v{t+1}, v{t}\nv_lshlrev_b32 v{t}, 8, v{t}')
    for u in range(4):
        p(f'v_xor_b32 v{t+2}, {4*u}, v{t+1}\nv_lshl_add_u32 v{vK+u}, v{t+2}, 4, v{t}')
    p(f'v_mov_b32 v{vC}, {f2u(qs):#x}\nv_mov_b32 v{vC+1}, {f2u(qs):#x}')
    vS = [128, 160]; vP = [192, 208]; vN = 224; vL = 28
    aF = 192
    def Sreg(n, b): return vS[n % 2] + 8*b
    def Preg(n, b): return vP[n % 2] + 4*b
    AL = cfg.aloop
    def kread(n, s, st=0):
        r = aF + 4*s; h = n % 8 if not AL or n < 4 else n % 2 if n < 12 else n - 12
        return [(f'ds_read_b128 a[{r}:{r+3}], v{vK + s % 4} offset:{h*8192 + (s // 4)*4096}', ('K', 4, n//2, st))]
    def vread(n, f, tag, base=None, off0=None):
        r = aF + 32 + 4*f
        off = (n % 8 if not AL or n < 2 else n % 2 if n < 10 else n - 10)*8192 if off0 is None else off0
        b = vV if base is None else base
        return [(f'ds_read_b64_tr_b16 a[{r}:{r+1}], v{b+f} offset:{off}', tag),
                (f'ds_read_b64_tr_b16 a[{r+2}:{r+3}], v{b+f} offset:{off+4096}', tag)]
    def qk2(n, m, c0):
        out = []
        for k, b in enumerate(range(3, -1, -1) if m % 2 else range(4)):
            for i, e in enumerate((k % 2, 1 - k % 2)):
                s_ = 2*m + e; S = Sreg(n, b) + 4*(s_ // 4); Q = Qreg(b, s_ % 4)
                c = c0(b) if m % 2 == 0 and i == 0 else f'v[{S}:{S+3}]'
                out.append(f'v_mfma_f32_16x16x32_bf16 v[{S}:{S+3}], a[{aF+4*s_}:{aF+4*s_+3}], v[{Q}:{Q+3}], {c}')
        return out
    def pv(n, f, first=False):
        out = []
        for b in (range(3, -1, -1) if f % 2 else range(4)):
            o = (f*4+b)*4; P_ = Preg(n, b)
            out.append(f'v_mfma_f32_16x16x32_bf16 a[{o}:{o+3}], a[{aF+32+4*f}:{aF+32+4*f+3}], v[{P_}:{P_+3}], {"0" if first else f"a[{o}:{o+3}]"}')
        return out
    negm = lambda b: f'v[{vN+4*b}:{vN+4*b+3}]'
    zero = lambda b: '0'
    def sm_E(n, e): S = Sreg(n, 0) + e; return f'v_exp_f32 v{S}, v{S}'
    def sm_A(n, e, two=True):
        l = (240 if two and cfg.l2 and e % 2 else vL) + e//8
        return f'v_add_f32 v{l}, v{l}, v{Sreg(n, 0) + e}'
    def sm_C(n, e): S = Sreg(n, 0) + e; return f'v_cvt_pk_bf16_f32 v{Preg(n, 0) + e//2}, v{S}, v{S+1}'
    p.need(('K', 4, 0, 0)); p('s_barrier')
    for s in range(8): emit(p, kread(0, s)[0])
    ts.stamp(p, 5)
    for u in range(2):
        for b in range(4): qconv(b, u)
        for b in range(4): qswap(b, u)
    q0 = [qk2(0, m, zero) for m in range(4)]
    todo = [(b, u) for u in (2, 3) for b in range(4)]
    for k, (b, u) in enumerate(todo):
        qconv(b, u)
        if k: qswap(*todo[k-1])
        p(q0[0][k]); p(q0[2][k])
    for s in (0, 1, 4, 5): emit(p, kread(1, s)[0])
    qswap(*todo[-1])
    t = 36
    p(f'v_lshrrev_b32 v{t}, 2, v1\nv_and_b32 v{t+1}, 7, v{t}\nv_lshlrev_b32 v{t}, 8, v{t}\nv_and_b32 v{t+2}, 3, v1\nv_lshl_add_u32 v{t}, v{t+2}, 3, v{t}\nv_add_u32 v{t}, 0x10000, v{t}')
    for k in range(8):
        p(q0[1][k]); p(q0[3][k])
        p(f'v_xor_b32 v{t+2}, {k}, v{t+1}\nv_lshl_add_u32 v{vV+k}, v{t+2}, 5, v{t}')
    for s in (2, 3, 6, 7): emit(p, kread(1, s)[0])
    for i in range(4): p(f'v_mov_b32 v{vL+i}, 0\nv_mov_b32 v{240+i}, 0')
    def rowmax(n, first):
        for b in range(4):
            S = Sreg(n, b); m = 32 + b
            if first: p(f'v_max3_f32 v{m}, v{S}, v{S+1}, v{S+2}')
            else: p(f'v_max3_f32 v{m}, v{m}, v{S+1}, v{S+2}\nv_max_f32 v{m}, v{m}, v{S}')
            p(f'v_max3_f32 v{m}, v{m}, v{S+3}, v{S+4}\nv_max3_f32 v{m}, v{m}, v{S+5}, v{S+6}\nv_max_f32 v{m}, v{m}, v{S+7}')
    def xred(r, op):
        l = []
        for sw in ('v_permlane16_swap_b32', 'v_permlane32_swap_b32'):
            l += [f'v_mov_b32 v{36+b}, v{r+b}' for b in range(4)] + [None] + [f'{sw} v{r+b}, v{36+b}' for b in range(4)] + [None]
            l += [f'{op} v{r+b}, v{r+b}, v{36+b}' for b in range(4)]
        return l
    def set_negm():
        for x in xred(32, 'v_max_f32'): p(x if x else 's_nop 0')
        for b in range(4):
            p(f'v_sub_f32 v{vN+4*b}, 0, v{32+b}\nv_sub_f32 v{vN+4*b+1}, 0, v{32+b}\nv_pk_mul_f32 v[{vN+4*b+2}:{vN+4*b+3}], v[{vN+4*b}:{vN+4*b+1}], 1.0 op_sel_hi:[1,0]')
    ts.stamp(p, 4)
    c0 = negm
    rowmax(0, True); set_negm()
    for b in range(4):
        S = Sreg(0, b)
        for i in range(0, 8, 2): p(f'v_pk_add_f32 v[{S+i}:{S+i+1}], v[{S+i}:{S+i+1}], v[{vN+4*b}:{vN+4*b+1}]')
    ts.stamp(p, 4)
    S_WD, S_WO, S_AH, S_AO, S_X, S_OUT, S_P = 12, 8, 16, 20, 24, 28, 60
    sJ, sRC, sCC = 70, 71, 76
    kWD, kWO, kAH, kAO, cMW, cTG = 77, 75, 78, 42, 79, 49
    dD, dO, aH, aO, cTr, cA, cC = 40, 8, 48, 4, 52, 64, 128
    vFH = 60
    SLOT = 32768
    k_h = lambda pc: 4*pc
    k_o = lambda pc: 4*((pc & 1) | ((pc & 2) << 1) | ((pc & 4) >> 1))
    sDE = 85
    def x_dma_addr(dst, kmap):
        t = 36
        p(f's_lshl_b32 s{sT+2}, s{sW}, 16\ns_lshl_b32 s{sT+3}, s{sCC}, 8\ns_add_u32 s{sT+2}, s{sT+2}, s{sT+3}')
        p(f'v_lshrrev_b32 v{t}, 4, v1\nv_and_b32 v{t+1}, 15, v1\nv_lshlrev_b32 v{t+2}, 1, v{t}\nv_xor_b32 v{t+1}, v{t+1}, v{t+2}')
        p(f'v_lshlrev_b32 v{t}, 11, v{t}\nv_add_u32 v{t}, s{sT+2}, v{t}')
        for e in range(2):
            p(f'v_xor_b32 v{t+2}, {8*e}, v{t+1}\nv_lshl_add_u32 v{dst+e}, v{t+2}, 4, v{t}')
            if cfg.cdel: p(f'v_lshrrev_b32 v{t+2}, 3, v{t+2}\nv_mad_i32_i24 v{dst+e}, v{t+2}, s{sDE}, v{dst+e}')
        for pc in range(7, -1, -1):
            o = (kmap(pc) << 11) - 1024*(pc % 4)
            if o or pc > 1: p(f'v_add_u32 v{dst+pc}, {o}, v{dst + (pc & 1)}')
    NS = ND + NSS; kind = lambda sg: 'd' if sg < ND else 's'
    def cdma(pc, sg):
        D_, S_, K_ = (dD, S_WD, kWD) if kind(sg) == 'd' else (dD, S_WO, kWO)
        g = []
        if pc % 4 == 0: g += [f's_add_u32 m0, s{cMW}, {(sg % 4)*SLOT + 1024*pc}', m0gap]
        g.append((f'buffer_load_dwordx4 v{D_+pc}, s[{S_}:{S_+3}], s{K_} offen offset:{1024*(pc%4)} {cfg.wsc} lds', ('C', 4, sg, 0)))
        if pc == 7: g.append(f's_add_u32 s{K_}, s{K_}, {128*2048}')
        return g
    def cact(sub, b):
        A_, S_, K_ = (aH, S_AH, kAH) if kind(sub // 4) == 'd' else (aO, S_AO, kAO)
        r = 128 + 16*(sub % 8) + 4*b
        g = [f'buffer_load_dwordx4 a[{r}:{r+3}], v{A_+b}, s[{S_}:{S_+3}], s{K_} offen offset:{1024*(sub % 4)}{SC}']
        if b == 3 and sub % 4 == 3: g.append(f's_add_u32 s{K_}, s{K_}, 4096')
        return g
    PF = cfg.PF; vPF = 33; sDM = 55; sPF = 44
    def L2(i, x): H(i, x)
    mf = []; hi.clear(); lo.clear()
    rds = []; start = {}; wgap = set()
    B1, B2, B5 = 4*(8 + 32), 4*(8 + 64), 4*(8 + 160)
    inl = lambda g: int(bool(AL) and B1 <= g < B2)
    for n in range(17):
        start[n] = len(rds)
        if n <= 14:
            for m in range(4):
                wgap.add(len(mf) - 1)
                if len(mf): H(len(mf) - 1, lambda p, r=aF + 8*m: p.touch(f'a[{r}:{r+7}]'))
                mf += qk2(n+1, m, c0)
                for e in range(2): rds.append(kread(n+1, 2*m+e, inl(4*(len(rds) - PF))) if n else [])
        if n >= 1:
            for f in range(8): wgap.add(len(mf) - 1); mf += pv(n-1, f, n == 1); rds.append(vread(n-1, f, ('V', 4, (n-1)//2, inl(4*(len(rds) - PF)))))
    n_ = len(mf)
    assert 4*start[3] == B1 and 4*start[5] == B2 and 4*start[11] == B5
    bargap = {}
    for j in range(8):
        g = 4*(start[2*j+1] - PF) - 1; bargap[j] = g
        def bar_(p, j=j, st=inl(g)):
            if j < 7: p.need(('K', 4, j+1, st))
            p.need(('V', 4, j, st))
            if j == cfg.hbar and not AL: p.need(('Hst', 1, 0, 0))
            p('s_barrier')
        hi.setdefault(g, []).insert(0, bar_)
    for i in range(len(rds) - PF):
        for k, r in enumerate(rds[i + PF]): H(4*i + k, r)
    for n in range(16):
        g0 = 4*start[n]; full = start[n+1] - start[n] == 16
        for k in range(17):
            ga, gb, gc, gd = (g0 + 4*k, g0 + 4*k + 1, g0 + 4*k + 2, g0 + 4*k + 3) if full else (g0 + 2*k, g0 + 2*k, g0 + 2*k + 1, g0 + 2*k + 1)
            if cfg.slag:
                if k == 16 and not full: gc = ga + 1
                if k: H(ga, sm_A(n, 2*k - 2))
                if k < 16: H(gb, sm_E(n, 2*k))
                if k: H(gc, sm_C(n, 2*k - 2) if not full or cfg.slag == 2 else sm_A(n, 2*k - 1)); H(gc, sm_A(n, 2*k - 1) if not full or cfg.slag == 2 else sm_C(n, 2*k - 2))
                if k < 16: H(gd, sm_E(n, 2*k + 1))
                continue
            if k == 16: gc = ga
            if k: H(ga, sm_A(n, 2*k - 1))
            if k < 16: H(gb, sm_E(n, 2*k))
            if k and not full: H(gc, sm_C(n, 2*k - 2))
            if k < 16: H(gc, sm_A(n, 2*k))
            if k and full: H(gc, sm_C(n, 2*k - 2))
            if k < 16: H(gd, sm_E(n, 2*k + 1))
    def act_addr(dst, stride, tmp):
        p(f's_and_b32 s{sT+3}, s{sJ}, 1\ns_mul_i32 s{sT+3}, s{sT+3}, {2*stride}\nv_lshlrev_b32 v{tmp}, 4, v1\nv_add_u32 v{dst+2}, s{sT+2}, v{tmp}')
        p(f'v_add_u32 v{dst}, s{sT+3}, v{dst+2}\nv_add_u32 v{dst+1}, {stride}, v{dst}\ns_sub_u32 s{sT+3}, {2*stride}, s{sT+3}\nv_add_u32 v{dst+2}, s{sT+3}, v{dst+2}\nv_add_u32 v{dst+3}, {stride}, v{dst+2}')
    def out_addr(dst):
        p(f's_lshl_b32 s{sT+2}, s{sRC}, 8\ns_lshl_b32 s{sT+3}, s{sW}, 6\ns_add_u32 s{sT+2}, s{sT+2}, s{sT+3}\ns_and_b32 s{sT+3}, s{sJ}, 1\ns_lshl_b32 s{sT+3}, s{sT+3}, 5\ns_add_u32 s{sT+2}, s{sT+2}, s{sT+3}\ns_lshl_b32 s{sT+2}, s{sT+2}, 11')
        p(f's_lshl_b32 s{sT+3}, s{sCC}, 8\ns_add_u32 s{sT+2}, s{sT+2}, s{sT+3}\ns_lshr_b32 s{sT+3}, s{sJ}, 1\ns_lshl_b32 s{sT+3}, s{sT+3}, 7\ns_add_u32 s{sT+2}, s{sT+2}, s{sT+3}')
        t = 36
        p(f'v_and_b32 v{t}, 7, v1\nv_lshlrev_b32 v{t}, 11, v{t}\nv_bfe_u32 v{t+1}, v1, 3, 1\nv_lshl_add_u32 v{t}, v{t+1}, 6, v{t}\nv_bfe_u32 v{t+1}, v1, 4, 1\nv_lshl_add_u32 v{t}, v{t+1}, 5, v{t}')
        p(f'v_lshrrev_b32 v{t+1}, 5, v1\nv_lshl_add_u32 v{t}, v{t+1}, 4, v{t}\nv_add_u32 v{dst}, s{sT+2}, v{t}')
    XL = 0x20000 + 4096
    def x_stage():
        out_addr(39)
        srd(p, S_H, pX, 0, 4 << 20)
        for b in range(4):
            p(f's_add_u32 m0, s{sDM}, {4096 + 1024*b}\ns_mov_b32 s{sT+2}, {b*0x4000}')
            p(f'buffer_load_dwordx4 v39, s[{S_H}:{S_H+3}], s{sT+2} offen lds')
    def setup1():
        p(f's_lshl_b32 s{sT}, s2, 2\ns_add_u32 s{sT}, s{sT}, s{sW}\ns_lshl_b32 s{sT+1}, s{sT}, 13\ns_mul_i32 s{sT}, s{sT}, 7168')
        p(f'v_lshlrev_b32 v{vPF}, 4, v1\nv_add_u32 v{vPF+1}, s{sT}, v{vPF}\nv_add_u32 v{vPF}, s{sT+1}, v{vPF}')
        srd(p, S_WO, pWO, 0, 8 << 20); srd(p, S_WD, pWD, 0, 7 << 20)
        p(f's_lshl_b32 s{sDM}, s{sMK}, 1\ns_add_u32 s{sDM}, s{sDM}, 0x20000\ns_mov_b32 s{sPF}, 0')
        p(f's_lshl_b32 s{sT}, s{sRB}, 12\ns_lshl_b32 s{sT+1}, s{sCB}, 7\ns_add_u32 s{sT}, s{sT}, s{sT+1}\ns_add_u32 s{sT}, s{sT}, {256*128}\nv_mov_b32 v{vHF}, s{sT}')
    def setup2():
        if cfg.fs:
            p(f's_lshr_b32 s{sT}, s{sNO}, 5\ns_xor_b32 s{sT}, s{sT}, s2\ns_and_b32 s{sT}, s{sT}, 1\ns_and_b32 s{sJ}, s2, 2\ns_or_b32 s{sJ}, s{sJ}, s{sT}')
            p(f's_and_b32 s{sRC}, s2, 4\ns_bfe_u32 s{sT+1}, s2, 0x20003\ns_add_u32 s{sRC}, s{sRC}, s{sT+1}\ns_lshr_b32 s{sCC}, s2, 5\ns_xor_b32 s{sCC}, s{sCC}, {cfg.ccx}')
            if cfg.fs == 1:
                p(f's_lshr_b32 s{sT+1}, s{sJ}, 1\ns_mul_i32 s{kAH}, s{sT+1}, 14\ns_lshl_b32 s{sT+2}, s{sT}, 3\ns_add_u32 s{kAH}, s{kAH}, s{sT+2}')
                p(f's_lshl_b32 s{sT+1}, s{sT+1}, 4\ns_mul_i32 s{sT+2}, s{sT}, 9\ns_add_u32 s{sT+1}, s{sT+1}, s{sT+2}\ns_mul_i32 s{sT}, s{sT}, 3\ns_sub_u32 s{sT}, 9, s{sT}')
                p(f'v_and_b32 v{vFH}, 15, v1\nv_min_u32 v{vFH}, s{sT}, v{vFH}\ns_lshl_b32 s{sT}, s{sRC}, 5\ns_add_u32 s{sT}, s{sT}, s{sT+1}\ns_add_u32 s{sT}, s{sT}, 256\ns_lshl_b32 s{sT}, s{sT}, 7')
                p(f'v_lshl_add_u32 v{vFH}, v{vFH}, 7, s{sT}')
                p(f's_lshl_b32 s{kWD}, s{kAH}, 18\ns_lshl_b32 s{kAH}, s{kAH}, 12')
            else:
                p(f's_lshl_b32 s{sT}, s{sRC}, 5\ns_lshl_b32 s{sT+1}, s{sJ}, 3\ns_add_u32 s{sT}, s{sT}, s{sT+1}\ns_add_u32 s{sT}, s{sT}, 256\ns_lshl_b32 s{sT}, s{sT}, 7')
                p(f'v_and_b32 v{vFH}, 7, v1\nv_lshl_add_u32 v{vFH}, v{vFH}, 7, s{sT}')
                p(f's_mul_i32 s{kWD}, s{sJ}, {896*2048}\ns_mul_i32 s{kAH}, s{sJ}, {28*1024}')
        else:
            p(f's_bfe_u32 s{sJ}, s2, 0x20001\ns_and_b32 s{sRC}, s2, 1\ns_lshl_b32 s{sRC}, s{sRC}, 2\ns_bfe_u32 s{sT}, s2, 0x20003\ns_add_u32 s{sRC}, s{sRC}, s{sT}\ns_lshr_b32 s{sCC}, s2, 5')
            p(f's_lshl_b32 s{sT}, s{sRC}, 5\ns_lshl_b32 s{sT+1}, s{sJ}, 3\ns_add_u32 s{sT}, s{sT}, s{sT+1}\ns_add_u32 s{sT}, s{sT}, 256\ns_lshl_b32 s{sT}, s{sT}, 7')
            p(f'v_and_b32 v{vFH}, 7, v1\nv_lshl_add_u32 v{vFH}, v{vFH}, 7, s{sT}')
            p(f's_mul_i32 s{kWD}, s{sJ}, {896*2048}\ns_mul_i32 s{kAH}, s{sJ}, {28*1024}')
        p(f's_lshl_b32 s{sT}, s{sCC}, 8\ns_add_u32 s{sT}, s{sT}, 128\ns_add_u32 s{sDE}, s{sT}, {cfg.cdel}\ns_and_b32 s{sDE}, s{sDE}, 2047\ns_sub_u32 s{sDE}, s{sDE}, s{sT}')
        x_dma_addr(dD, k_h)
        p(f's_lshl_b32 s{cMW}, s{sW}, 13')
        srd(p, S_AH, pWS, WS_H, 15 << 20)
        p(f's_lshl_b32 s{sT}, s{sRC}, 4\ns_lshl_b32 s{sT+2}, s{sW}, 2\ns_add_u32 s{sT}, s{sT}, s{sT+2}\ns_mul_i32 s{sT+2}, s{sT}, {HST}')
        act_addr(aH, HST, 36)
        t = 36
        p(f's_and_b32 s{sT+3}, s{sJ}, 2\ns_lshl_b32 s{sT+3}, s{sT+3}, 1')
        p(f'v_lshrrev_b32 v{t}, 2, v1\nv_and_b32 v{t+1}, 7, v{t}\nv_xor_b32 v{t+1}, s{sT+3}, v{t+1}\nv_lshlrev_b32 v{t}, 8, v{t}\nv_and_b32 v{t+2}, 3, v1\nv_lshl_add_u32 v{t}, v{t+2}, 3, v{t}')
        for tt in range(8):
            p(f'v_xor_b32 v{t+2}, {tt}, v{t+1}\nv_lshl_add_u32 v{cTr+tt}, v{t+2}, 5, v{t}')
        p(f's_mov_b32 s{cTG}, 0x10000')
        if cfg.c3:
            p(f's_lshr_b32 s{sT}, s2, 3\ns_lshl_b32 s{sT}, s{sT}, 2\ns_add_u32 s{sT}, s{sT}, s{sW}\ns_lshl_b32 s{sT}, s{sT}, 11\ns_add_u32 s{sT}, s{sT}, {cfg.c3l*128}')
            p(f'v_bfe_u32 v36, v1, 2, 2\nv_lshlrev_b32 v36, 18, v36\nv_bfe_u32 v37, v1, 1, 1\nv_lshl_add_u32 v36, v37, 10, v36\nv_and_b32 v37, 1, v1\nv_lshl_add_u32 v36, v37, 6, v36\nv_add_u32 v39, s{sT}, v36')
    def clear_setup():
        srd(p, S_H, pWS, WS_P + 256*3*16384, 12 << 20)
        p(f's_lshl_b32 s45, s{sRC}, 3\ns_add_u32 s45, s45, s{sCC}\ns_lshl_b32 s45, s45, 2\ns_add_u32 s45, s45, s{sJ}\ns_lshl_b32 s45, s45, 2\ns_add_u32 s45, s45, s{sW}\ns_mul_i32 s45, s45, 12288')
        p('v_lshlrev_b32 v39, 4, v1')
        for i in range(4): p(f'v_mov_b32 v{32+i}, -1')
    s2q = collect(setup2); s2per = -(-len(s2q) // 4)
    if cfg.apre:
        setup1(); setup2(); s2q = []
    else:
        for x in collect(setup1): L(32, x)
    npf = 0
    sLK, sLV, sLG, sLN, sLH, sD0, sD1 = 41, 45, 46, 47, 48, 43, 3
    def pfl(g, wo_): L(g, f'buffer_load_dwordx4 v{vPF if wo_ else vPF+1}, s[{S_WO if wo_ else S_WD}:{(S_WO if wo_ else S_WD)+3}], s{sPF} offen lds')
    if AL:
        gK, gV = 4*(24 - PF), 4*(32 - PF) + 2
        B0 = B1 - 128
        for u in range(4): L2(B0 + gK + 4*u, f'v_add_u32 v{vK+u}, 0x8000, v{vK+u}')
        L2(B0 + gV + 7, f's_mov_b32 s{sD1}, 0x4000')
        L2(B0 + gV + 8, f's_mov_b32 s{sLK}, 0'); L2(B0 + gV + 8, f's_mov_b32 s{sLV}, {3*16384}'); L2(B0 + gV + 9, f's_add_u32 s{sLG}, s{sKV}, {3*16384}')
        L2(B0 + gV + 10, f's_mov_b32 s{sLN}, 4'); L2(B0 + gV + 11, f's_cmp_eq_u32 s{sW}, 1\ns_cselect_b32 s{sLH}, 3, -1')
        g = B1
        L(g, f's_add_u32 s{sT+4}, s{sLG}, 16384'); L(g, f's_add_u32 m0, s{sMK}, s{sLK}'); L(g, m0gap)
        for k in range(4): L(g + 6*k, kdma(k, sT+4, ('K', 4, 4, 1)))
        L(g + 24, f's_add_u32 s{sT+4}, s{sLV}, 0x10000'); L(g + 24, f's_add_u32 m0, s{sMK}, s{sT+4}'); L(g + 24, m0gap)
        for k in range(4): L(g + 24 + 6*k, vdma(k, sLG, ('V', 4, 3, 1)))
        L(g + 46, f's_mov_b32 s{sD0}, 0x4000'); L(g + 46, f's_cmp_eq_u32 s{sLK}, {16384}\ns_cselect_b32 s{sD0}, -0xc000, s{sD0}')
        L(g + 46, f's_mov_b32 s{sD1}, 0x4000'); L(g + 46, f's_cmp_eq_u32 s{sLV}, {16384}\ns_cselect_b32 s{sD1}, -0xc000, s{sD1}')
        L(g + 46, f's_mov_b32 s{sLV}, s{sLK}'); L(g + 46, f's_add_u32 s{sLK}, s{sLK}, 16384'); L(g + 46, f's_and_b32 s{sLK}, s{sLK}, 0xffff'); L(g + 46, f's_add_u32 s{sLG}, s{sLG}, 16384')
        L(g + 52, f's_mov_b32 m0, s{sDM}'); L(g + 52, m0gap)
        pfl(g + 52, True); pfl(g + 58, False); L(g + 58, f's_add_u32 s{sPF}, s{sPF}, 1024')
        for x in code_pf(S_DB, 61): L(g + 66, x)
        L(g + 70, f's_cmp_eq_u32 s{sLN}, s{sLH}\ns_cbranch_scc0 A_hf\nbuffer_store_dwordx2 v[2:3], v{vHF}, s[{S_FL}:{S_FL+3}], 0 offen sc1 ;cond\nA_hf:')
        for u in range(4): L2(g + gK + 4*u, f'v_add_u32 v{vK+u}, s{sD0}, v{vK+u}')
        for f in range(8):
            for b_ in (B1, B5): L2(b_ + 4*f + (4 if f == 0 else 0), f'v_add_u32 v{vV+f}, s{sD1}, v{vV+f}')
        H(B2 - 3, f's_sub_u32 s{sLN}, s{sLN}, 1'); H(B2 - 2, f's_cmp_lg_u32 s{sLN}, 0')
    for j in range(7):
        g = bargap[j] + 1
        if AL and 1 <= j <= 4: continue
        if AL and j == 5: g = B5
        if j + 3 <= 7:
            L(g, f's_add_u32 s{sT+4}, s{sKV}, {(j+3)*16384}'); L(g, f's_add_u32 m0, s{sMK}, {((j+3) % 4)*16384}'); L(g, m0gap)
            for k in range(4): L(g + 6*k, kdma(k, sT+4, ('K', 4, j+3, 0)))
        if j + 2 <= 7:
            L(g + 24, f's_add_u32 s{sT+4}, s{sKV}, {(j+2)*16384}'); L(g + 24, f's_add_u32 m0, s{sMK}, {0x10000 + ((j+2) % 4)*16384}'); L(g + 24, m0gap)
            for k in range(4): L(g + 24 + 6*k, vdma(k, sT+4, ('V', 4, j+2, 0)))
        if AL:
            if j == 0:
                L(g + 48, f's_mov_b32 m0, s{sDM}'); L(g + 48, m0gap)
                for k in range(2): pfl(g + 48 + 12*k, True); pfl(g + 54 + 12*k, False); L(g + 54 + 12*k, f's_add_u32 s{sPF}, s{sPF}, 1024')
                for x in s2q[:cfg.s2a]: L(g + 72, x)
            if j == 5:
                for x in s2q[cfg.s2a:]: L(g, x)
                L(g + 1, f'buffer_load_dwordx2 v[62:63], v{vFH}, s[{S_FL}:{S_FL+3}], 0 offen sc1')
                L(g + 44, f's_mov_b32 m0, s{sDM}'); L(g + 44, m0gap)
                pfl(g + 44, True); pfl(g + 45, False); L(g + 45, f's_add_u32 s{sPF}, s{sPF}, 1024'); pfl(g + 46, True)
            if j == 6:
                for k, x in enumerate(collect(x_stage)): L(g + 100 + k//2, x)
            for x in code_pf(S_DB, 61): L(g + 47, x)
        else:
            if j < 5:
                L(g + 48, f's_mov_b32 m0, s{sDM}'); L(g + 48, m0gap)
                for k in range(3):
                    wo_ = npf % 2 == 0
                    pfl(g + 48 + 8*k, wo_)
                    if not wo_: L(g + 48 + 8*k, f's_add_u32 s{sPF}, s{sPF}, 1024')
                    npf += 1
            for x in code_pf(S_DB, 61): L(g + 70, x)
            if j < 4:
                for x in s2q[j*s2per:(j+1)*s2per]: L(g + 72, x)
            if j == cfg.hbar: H(g, flag_store('A_hf', vHF))
            if j == 4:
                for k, x in enumerate(collect(x_stage)): L(g + 72 + k, x)
            if j == 4: L(g + 80, f'buffer_load_dwordx2 v[62:63], v{vFH}, s[{S_FL}:{S_FL+3}], 0 offen sc1')
        if j == 5:
            for pc in range(8):
                for x in cdma(pc, 0): L(g + 48 + 6*pc, x)
            L(g + 100, '\n'.join(flagchk('L_h', vFH, 62)))
        if j == 6:
            for sub in range(4):
                for b in range(4):
                    for x in cact(sub, b): L(g + 6*(4*sub + b), x)
    for pc in range(8):
        for x in cdma(pc, 1): L(bargap[7] + 1 + 6*pc, x)
    g = 4*start[16] + 2
    lchk = ([f'v_add_f32 v{vL+b}, v{vL+b}, v{240+b}' for b in range(4)] if cfg.l2 else []) + xred(vL, 'v_add_f32') + [f'v_add_f32 v36, v{vL}, v{vL+1}', f'v_add_f32 v37, v{vL+2}, v{vL+3}', f's_mov_b32 s{sT+2}, {f2u(2.0**cfg.thr):#x}',
                                    'v_add_f32 v36, v36, v37', f'v_cmp_nlt_f32 vcc, v36, s{sT+2}']
    k = 0
    for x in lchk:
        if x is None: g += 1; k = 0; continue
        H(g, x); k += 1
        if k == (1 if 'swap' in x else 2): g += 1; k = 0
    assert g < n_ - 1
    def cyc(x):
        t_ = x[0] if isinstance(x, tuple) else x
        if callable(t_): return 8
        o = t_.split()[0]
        if o in TRANS: return 8
        if o.startswith('v_cvt_pk'): return 5
        if o.startswith('buffer_'): return cfg.vmc
        return 4*len(t_.split('\n')) if '\n' in t_ and ';cond' not in t_ else 4
    def cls(x):
        t_ = x[0] if isinstance(x, tuple) else x
        if callable(t_): return 'x'
        o = t_.split()[0]
        return 'm' if o.startswith('buffer_') else 'd' if o.startswith('ds_') else 'v' if o.startswith('v_') else 's'
    fill = {}; q_ = []
    for i in range(-1, n_):
        cur = list(hi.get(i, [])); cc_ = [cls(x) for x in cur]
        nd_ = cc_.count('d'); nv = nd_ + cc_.count('s') + (1 if i in wgap else 0) + sum(2 for x in cur if callable(x) and 'need' in x.__code__.co_names); mem = nd_
        vroom = cfg.av0 - sum(2 if x.split()[0] in TRANS or 'swap' in x else 1 for x, c_ in zip(cur, cc_) if c_ == 'v'); tookv = False
        for x in lo.get(i, []): q_.append((i, x))
        while q_:
            x = q_[0][1]; c_ = cls(x); force = i == n_ - 1 or i - q_[0][0] >= cfg.amax or (AL and i in (B1 - 1, B2 - 4))
            if c_ == 'v':
                if vroom <= 0 and not force: break
                vroom -= 1; tookv = True
            else:
                w_ = len((x[0] if isinstance(x, tuple) else x).split('\n')) if c_ == 's' else 1
                if (tookv or nv + min(w_, 2) > cfg.anv or (c_ == 'm' and (mem >= cfg.amem or (cfg.mpos and i % 4 not in (0, 3))))) and not force: break
                nv += w_; mem += c_ == 'm'
            cur.append(q_.pop(0)[1])
        fill[i] = cur
    fix_m0(fill, n_)
    if cfg.aab:
        tx = lambda x: x[0] if isinstance(x, tuple) else x
        for i in fill:
            if 4*start[3] <= i < 4*start[11]:
                if cfg.aab & 1: fill[i] = [x for x in fill[i] if callable(tx(x)) or not tx(x).startswith('buffer_load')]
                if cfg.aab & 2: fill[i] = [x for x in fill[i] if callable(tx(x)) or not (tx(x).startswith('buffer_load') and ('s44' in tx(x) or ';pf' in tx(x)))]
                if cfg.aab & 4: fill[i] = [x for x in fill[i] if not (callable(tx(x)) and 'need' in tx(x).__code__.co_names)]
    for n in ((1, 3, 7, 11, 15) if not AL else (1, 3)):
        t_ = ts.text(4)
        if t_: fill[4*start[n] - 1].append(t_)
    if AL:
        seg = lambda a_, b_: (mf[a_:b_], {i - a_: fill[i] for i in range(a_ - (1 if a_ == 0 else 0), b_)})
        interleave(p, *seg(0, B1))
        p.loop_begin('A_loop', 4)
        fill[B2 - 1].append('s_cbranch_scc1 A_loop')
        interleave(p, *seg(B1, B2))
        p.loop_end()
        ts.stamp(p, 4)
        t_ = ts.text(4)
        if t_: fill[4*start[15] - 1].append(t_)
        interleave(p, *seg(B5, n_))
    else: interleave(p, mf, fill)
    ts.stamp(p, 5)
    p('s_cbranch_vccnz A_slow')
    p('A_done:')
    ad = cfg.cad; P = cfg.cP
    for sub in range(4, ad):
        for b in range(4):
            for x in cact(sub, b): emit(p, x)
    for b in range(4): p(f'v_rcp_f32 v{vL+b}, v{vL+b}')
    p.need(('C', 4, 0, 0)); p('s_barrier')
    for G in range(P):
        r = cA + 4*G; t_, s_ = (G // 2, G % 2) if cfg.chain else (G, 0)
        p(f'ds_read_b64_tr_b16 v[{r}:{r+1}], v{cTr+t_} offset:{8192*s_}', ('C', 4, 0, 0)); p(f'ds_read_b64_tr_b16 v[{r+2}:{r+3}], v{cTr+t_} offset:{8192*s_+4096}', ('C', 4, 0, 0))
    p(';SPLIT')
    OE = cfg.oe if ND >= 7 else cfg.oes
    vO, vX, vFO, vFD, vFS, vFQ = 16, 96, 20, 21, 22, 23
    sPS, sPR = 32, 33
    def o_epi(packed):
        if cfg.opw: p(f's_lshl_b32 s{sT}, s{sW}, 7\ns_add_u32 s{sT}, s{sT}, {(3328 - 4*256)*128}\nv_lshl_add_u32 v{vFO}, v{vHF}, 2, s{sT}')
        p(f's_lshl_b32 s{sT}, s{sRB}, 4\ns_lshl_b32 s{sT+1}, s{sW}, 2\ns_add_u32 s{sT}, s{sT}, s{sT+1}\ns_mul_i32 s{sT}, s{sT}, {OST}\ns_lshl_b32 s{sT+1}, s{sCB}, 12\ns_add_u32 s{sT}, s{sT}, s{sT+1}')
        p(f'v_lshlrev_b32 v34, 4, v1')
        n = 0
        for b in range(4):
            for u in range(4):
                x = 96 + 8*(n % 2); d = 112 + 4*(n % 4); n += 1
                for i in range(8): p(f'v_accvgpr_read_b32 v{x+i}, a{((2*u + i//4)*4 + b)*4 + i % 4}')
                for i in range(8): p(f'v_mul_f32 v{x+i}, v{x+i}, v{vL+b}')
                for i in range(0, 8, 2): p(f'v_cvt_pk_bf16_f32 v{d+i//2}, v{x+i}, v{x+i+1}')
                p(f'buffer_store_dwordx4 v[{d}:{d+3}], v34, s[{S_O}:{S_O+3}], s{sT} offen offset:{u*1024} {cfg.ost}', ('Ost', 1, 0, 0))
            if b < 3: p(f's_add_u32 s{sT}, s{sT}, {OST}')
    def s_setup():
        srd(p, S_AO, pWS, WS_O, 17 << 20)
        p(f's_lshl_b32 s{kAO}, s{sJ}, 3')
        if NSS == 7 and cfg.fs == 2: p(f's_add_u32 s{kAO}, s{kAO}, 1')
        p(f's_lshl_b32 s{sT}, s{sRC}, 5\ns_add_u32 s{sT}, s{sT}, s{kAO}\ns_add_u32 s{sT}, s{sT}, 512\ns_lshl_b32 s{sT}, s{sT}, 7')
        p(f'v_and_b32 v{vFH}, 15, v1\nv_min_u32 v{vFH}, {NSS-1}, v{vFH}\nv_lshl_add_u32 v{vFH}, v{vFH}, 7, s{sT}')
        p(f's_lshl_b32 s{kWO}, s{kAO}, 18\ns_lshl_b32 s{kAO}, s{kAO}, 12')
        p(f's_lshl_b32 s{sT}, s{sRC}, 4\ns_lshl_b32 s{sT+2}, s{sW}, 2\ns_add_u32 s{sT}, s{sT}, s{sT+2}\ns_mul_i32 s{sT+2}, s{sT}, {OST}')
        act_addr(aO, OST, 24)
        if cfg.opw: p(f's_lshl_b32 s{sT}, s{sW}, 7\ns_add_u32 s{sT}, s{sT}, {(3328 - 4*256)*128}\nv_subrev_u32 v{vFH}, {256*128}, v{vFH}\nv_lshl_add_u32 v{vFH}, v{vFH}, 2, s{sT}')
        else: p(f'v_add_u32 v{vFO}, {256*128}, v{vHF}')
        srd(p, S_OUT, pOUT, 0, 4 << 20); srd(p, S_P, pWS, WS_P, 24 << 20)
        p(f's_lshl_b32 s{sT}, s{sRC}, 3\ns_add_u32 s{sT}, s{sT}, s{sCC}\ns_lshl_b32 s{sT}, s{sT}, 2\ns_add_u32 s{sT+1}, s{sT}, s{sJ}')
        p(f's_add_u32 s{sT+2}, s{sT+1}, 768\ns_lshl_b32 s{sT+2}, s{sT+2}, 7\nv_mov_b32 v{vFD}, s{sT+2}\nv_add_u32 v{vFS}, {256*128}, v{vFD}')
        p(f's_add_u32 s{sT+2}, s{sT}, 768\ns_lshl_b32 s{sT+2}, s{sT+2}, 7\nv_and_b32 v{vFQ}, 3, v1\nv_lshl_add_u32 v{vFQ}, v{vFQ}, 7, s{sT+2}')
        p(f's_mul_i32 s{sT+3}, s{sW}, 12288\ns_mul_i32 s{sPR}, s{sT+1}, {3*16384}\ns_add_u32 s{sPR}, s{sPR}, s{sT+3}')
        for q_ in (1, 2, 3):
            p(f's_xor_b32 s{sT+2}, s{sT+1}, {q_}\ns_mul_i32 s{sT+2}, s{sT+2}, {3*16384}\ns_add_u32 s{sT+2}, s{sT+2}, s{sT+3}\ns_add_u32 s{sT+2}, s{sT+2}, {(q_-1)*4096}\nv_add_u32 v{24+q_}, s{sT+2}, v24')
        out_addr(vO)
    QUADS = [(t_, bp) for t_ in (4, 5, 6, 7) for bp in (0, 1)] + [(t_, 1) for t_ in range(4)]
    nsent = [0]
    def send(gemm, quads):
        for (t_, bp) in quads:
            c = 16*t_ + 8*bp; k = nsent[0]; nsent[0] += 1; d = 112 + 4*(k % 4); q_ = 2*(t_ >> 2) + bp
            if gemm == 0:
                for r in range(4): p(f'v_cvt_pk_bf16_f32 v{d+r}, v{cC+c+2*r}, v{cC+c+2*r+1}')
            else:
                x = 160 + 8*(k % 4)
                for r in range(8): p(f'v_accvgpr_read_b32 v{x+r}, a{c+r}')
                for r in range(4): p(f'v_cvt_pk_bf16_f32 v{d+r}, v{x+2*r}, v{x+2*r+1}')
                if cfg.sent:
                    for r in range(4): p(f'v_min_u32 v{d+r}, -2, v{d+r}')
            so = '0' if gemm == 0 else f's{sT+4}'
            p(f'buffer_store_dwordx4 v[{d}:{d+3}], v{24 + q_}, s[{S_P}:{S_P+3}], {so} offen offset:{1024*(t_ & 3)} {cfg.pst}', ('Pst', 1, gemm, 0))
    def send_d():
        send(0, QUADS)
        for i in (1, 2, 3):
            for r in range(8): p(f'v_mov_b32 v{cC+8*i+r}, v{cC+16*i+r}')
    mf = []; hi.clear(); lo.clear()
    ST = 128; TMS = cfg.tms
    NSUB = 4*NS
    CH = cfg.chain
    if CH: order = [((2*u + e) // 4, (2*u + e) % 4, t) for u in range((NSUB - TMS)//2) for t in range(8) for e in range(2)]
    else: order = [(sub // 4, sub % 4, t) for sub in range(NSUB - TMS) for t in range(8)]
    order += [(sub // 4, sub % 4, t) for t in (4, 5, 6, 7, 0, 1, 2, 3) for sub in range(NSUB - TMS, NSUB)]
    assert TMS <= 4 or NS % 2 == 0
    def ctr(G):
        sg, s, t = order[G]
        r = cA + 4*(G % 8); off = (sg % 2)*SLOT + s*8192
        a = cTr + t
        return [(f'ds_read_b64_tr_b16 v[{r}:{r+1}], v{a} offset:{off}', ('C', 4, sg, 0)),
                (f'ds_read_b64_tr_b16 v[{r+2}:{r+3}], v{a} offset:{off + 4096}', ('C', 4, sg, 0))]
    obar = math.ceil(OE) + 1; dbar = ND + math.ceil(cfg.de) + 1
    def bar(p, sgn):
        p.need(('C', 4, sgn, 0))
        if sgn == obar and not cfg.opw: p.need(('Ost', 1, 0, 0))
        if sgn == dbar: p.need(('Pst', 1, 0, 0))
        p('s_barrier')
    firstG = {}
    for G, (sg, s, t) in enumerate(order): firstG.setdefault(sg, G)
    seen = set()
    def c_mfma(G, b):
        sg, s, t = order[G]; sub = 4*sg + s
        ra = cA + 4*(G % 8); rb = 128 + 16*(sub % 8) + 4*b; c = (t*4+b)*4
        acc_ = f'v[{cC+c}:{cC+c+3}]' if kind(sg) == 'd' else f'a[{c}:{c+3}]'
        first = acc_ not in seen; seen.add(acc_)
        mf.append(f'v_mfma_f32_16x16x32_bf16 {acc_}, v[{ra}:{ra+3}], a[{rb}:{rb+3}], {"0" if first else acc_}')
    for G in range(32*NS):
        if CH:
            if G % 2 == 0:
                for k, b in enumerate(range(3, -1, -1) if (G // 2) % 2 else range(4)):
                    c_mfma(G + k % 2, b); c_mfma(G + 1 - k % 2, b)
        else:
            for b in (range(3, -1, -1) if cfg.snake and G % 2 else range(4)): c_mfma(G, b)
        i0 = 4*G; Gn = G + P
        if CH and cfg.ltouch and G % 2 == 1 and G + 2 < 32*NS: H(i0+3, lambda p, r=cA + 4*((G + 2) % 8): p.touch(f'v[{r}:{r+3}]'))
        if Gn < 32*NS:
            if firstG[order[Gn][0]] == Gn: H(i0-1, lambda p, sgn=order[Gn][0]: bar(p, sgn))
            r0, r1 = ctr(Gn)
            H(i0, r0); H(i0+1, r1)
            if order[Gn][1] == 3 and order[Gn][0] % 2 == 1 and order[Gn][0] < NS - 1: H(i0+2, f'v_xor_b32 v{cTr + order[Gn][2]}, s{cTG}, v{cTr + order[Gn][2]}')
        sgc, g = divmod(G, 32)
        dstr = 2 if (TMS > 4 and sgc + 2 == NS - 1) else cfg.cdstr
        if g % dstr == 1 and g // dstr < 8 and sgc + 2 < NS:
            for x in cdma(g // dstr, sgc + 2): L(i0, x)
    last_act = 0
    def act_t(sub):
        t0 = max((sub - (6 if CH and sub % 2 == 0 else 7))*32, min((sub - ad)*32, (4*NS - 8)*32 - (4*NS - 1 - sub)*cfg.ramp)) if TMS else (sub - ad)*32
        if sub >= 4*ND: t0 = max(t0, (4*ND - cfg.odl)*32 + (sub - 4*ND)*cfg.ramp)
        return t0
    for sub in range(ad, 4*NS):
        t0 = act_t(sub); t1 = max(act_t(sub + 1), t0 + 12)
        for b in range(4):
            last_act = t0 + b*min(8, (t1 - t0)//4)
            for x in cact(sub, b): L(last_act, x)
    if cfg.cpf2:
        for k in ((1,) if cfg.cpf2 < 2 else range(0, math.floor(OE))):
            for x in code_pf(S_DB, 61): L(k*ST + 4*30, x)
        for x in code_srd(S_AH, 'L_pc3' + SFX): L(ND*ST, x)
        for k in ((ND, ND + 3) if cfg.cpf2 < 2 else range(ND, NS - 2)):
            for x in code_pf(S_AH, 61): L(k*ST + 4*30, x)
    if cfg.c3:
        L((ND - 2)*ST, f's_add_u32 s{sT+4}, s{kWO}, {cfg.c3s*128*2048}'); L((ND - 2)*ST, f'buffer_load_dword v61, v39, s[{S_WO}:{S_WO+3}], s{sT+4} offen ;pf')
    n = len(mf)
    fill = spread(hi, {k: lo[k] for k in sorted(lo)}, n, cfg.cap, 16, cost=lambda i: 1 if i % 4 == 3 else 0)
    fix_m0(fill, n)
    def ride(items, g0, g1):
        q_ = list(items); per = len(q_) / (g1 - g0); due = 0.0; done = 0
        for i in range(g0, g1):
            due += per
            used = len(fill[i]) + (1 if i % 4 == 3 else 0)
            while q_ and done < due + 2 and (used < cfg.cap or done < due - cfg.lag):
                fill[i].append(q_.pop(0)); used += 1; done += 1
        fill[g1-1] += q_
    oq = collect(lambda: o_epi(cfg.ox > 0))
    nx = 0
    if cfg.ox:
        idx = [i for i, x in enumerate(oq) if x[0].startswith('buffer_store')]
        nx = idx[cfg.ox - 1] + 1
        fill[-1] = oq[:nx] + fill[-1]
        oq2 = collect(lambda: o_epi(False))
        idx2 = [i for i, x in enumerate(oq2) if x[0].startswith('buffer_store')]
        oq = oq2[idx2[cfg.ox - 1] + 1:]
    if oq: ride(oq, 2, int(OE*ST))
    ride(collect(s_setup), int(OE*ST), int(OE*ST) + ST - 20)
    if cfg.opw: fill[int(OE*ST) + cfg.opw].append(lambda p: (p.need(('Ost', 1, 0, 0)), p(f'buffer_store_dwordx2 v[2:3], v{vFO}, s[{S_FL}:{S_FL+3}], 0 offen sc1')))
    else: fill[obar*ST - 4*P + 2].append(flag_store('C_of' + SFX, vFO))
    first_o = act_t(4*ND)
    assert first_o - 2 > int(OE*ST) + ST - 20 and (ND - 2)*ST > int(OE*ST) + ST - 20
    fill[first_o - cfg.fl].append(f'buffer_load_dwordx2 v[62:63], v{vFH}, s[{S_FL}:{S_FL+3}], 0 offen sc1')
    fill[first_o - 2].append('\n'.join(flagchk('L_o' + SFX, vFH, 62)))
    ride(collect(send_d), ND*ST + 8, ND*ST + int(cfg.de*ST))
    fill[dbar*ST - 4*P + 2].append(flag_store('C_df' + SFX, vFD))
    xl = [f's_lshl_b32 s{sT+2}, s{sW}, 13', f's_add_u32 s{sT+2}, s{sT+2}, {XL}', 'v_and_b32 v36, 0x37, v1', 'v_lshlrev_b32 v36, 4, v36', 'v_bfe_u32 v37, v1, 3, 1', 'v_lshl_add_u32 v36, v37, 10, v36', f'v_add_u32 v39, s{sT+2}, v36']
    xl += [f'ds_read_b128 v[{vX+8*b+4*pr}:{vX+8*b+4*pr+3}], v39 offset:{2048*b + 128*pr}' for b in range(2) for pr in range(2)]
    vR = 192
    def recv(gemm):
        p(f's_add_u32 s{sT+2}, s{sPR}, {gemm*256*3*16384}')
        for q_ in range(3):
            for i in range(4):
                r = vR + 16*q_ + 4*i
                p(f'buffer_load_dwordx4 v[{r}:{r+3}], v24, s[{S_P}:{S_P+3}], s{sT+2} offen offset:{1024*i} sc1')
            if q_ < 2: p(f's_add_u32 s{sT+2}, s{sT+2}, 4096')
    dchk = NS - cfg.dchk
    assert not cfg.sent or int(dchk*ST) < (NSUB - TMS)*32 + TMS*4
    fill[int(dchk*ST) - cfg.fl].append(f'buffer_load_dwordx2 v[62:63], v{vFQ}, s[{S_FL}:{S_FL+3}], 0 offen sc1')
    fill[int(dchk*ST)].append('\n'.join(flagchk('L_d' + SFX, vFQ, 62)))
    r0_ = max(int(dchk*ST) + 2, last_act + 18)
    ride(collect(lambda: recv(0)), r0_, r0_ + 48)
    fill[(NS - 3)*ST].append(f's_mov_b32 s{sT+4}, {256*3*16384}')
    left = list(QUADS)
    if TMS:
        base = (NSUB - TMS)*32; plen = TMS*4
        for k, t_ in enumerate((4, 5, 6, 7, 0, 1, 2)):
            qs_ = [x for x in QUADS if x[0] == t_]; left = [x for x in left if x[0] != t_]
            g0 = base + (k + 1)*plen + 3
            ride(collect(lambda: send(1, qs_)), g0, min(n, g0 + plen))
    ts.stamp(p, 7)
    for k in range(1, 15):
        if k in (1, 2, 3, 4, 5, 6, 7, 8, 9, 11, 13):
            t_ = ts.text(2)
            if t_: fill[k*ST - 1].append(t_)
    interleave(p, mf, fill)
    if cfg.pw:
        p(f's_lshl_b32 s{sT+2}, s{sW}, 7\ns_add_u32 s{sT+2}, s{sT+2}, {(2304 - 4*768)*128}\nv_lshl_add_u32 v{vFS}, v{vFD}, 2, s{sT+2}\nv_lshl_add_u32 v{vFQ}, v{vFQ}, 2, s{sT+2}')
        p(f's_mov_b32 s{sT+3}, 0xffff0000\ns_nop 2')
    else:
        p(f's_mov_b32 s{sT+3}, 0xffff0000\nv_add_u32 v{vFQ}, {256*128}, v{vFQ}\ns_nop 4')
    ts.stamp(p, 3)
    for x in xl: p(x)
    send(1, left)
    RS = (160, 176, 240)
    def recv_s(q_, cond=''):
        for i in range(4):
            p(f'buffer_load_dwordx4 v[{RS[q_]+4*i}:{RS[q_]+4*i+3}], v24, s[{S_P}:{S_P+3}], s{44+q_} offen offset:{1024*i} sc1{cond}')
    if cfg.sent:
        p(f's_add_u32 s44, s{sPR}, {256*3*16384}\ns_add_u32 s45, s44, 4096\ns_add_u32 s46, s45, 4096')
        for q_ in range(3): recv_s(q_)
    pk = lambda r: f'v[{r}:{r+1}]'
    def addparts(dst, i, src):
        for q_ in range(3):
            rr = src[q_] + 4*i; tt = 32 + 8*(q_ % 2)
            for r in range(4): p(f'v_lshlrev_b32 v{tt+2*r}, 16, v{rr+r}\nv_and_b32 v{tt+2*r+1}, s{sT+3}, v{rr+r}')
            for r in range(0, 8, 2): p(f'v_pk_add_f32 {pk(dst+r)}, {pk(dst+r)}, {pk(tt+r)}')
    p(f'v_mov_b32 v28, {f2u(-math.log2(math.e)):#x}\nv_mov_b32 v29, v28')
    RD = (vR, vR + 16, vR + 32)
    for i in range(4):
        c = cC + 8*i; B = 48
        addparts(c, i, RD)
        for r in range(0, 8, 2): p(f'v_pk_mul_f32 {pk(B+r)}, {pk(c+r)}, v[28:29]')
        for r in range(8): p(f'v_exp_f32 v{B+r}, v{B+r}')
        p('s_nop 0')
        for r in range(0, 8, 2): p(f'v_pk_add_f32 {pk(B+r)}, {pk(B+r)}, 1.0 op_sel_hi:[1,0]')
        for r in range(8): p(f'v_rcp_f32 v{B+r}, v{B+r}')
        p('s_nop 0')
        for r in range(0, 8, 2): p(f'v_pk_mul_f32 {pk(c+r)}, {pk(c+r)}, {pk(B+r)}')
    vSs = 64
    for i in range(32): p(f'v_accvgpr_read_b32 v{vSs+i}, a{16*(i//8) + i % 8}')
    E = 192 if cfg.sent else 160
    def xunpack():
        for b in range(4):
            for q in range(4): p(f'v_lshlrev_b32 v{E+8*b+2*q}, 16, v{vX+4*b+q}\nv_and_b32 v{E+8*b+2*q+1}, s{sT+3}, v{vX+4*b+q}')
    if cfg.sent:
        xunpack()
        ts.stamp(p)
        p(f'C_chk{SFX}:\ns_waitcnt vmcnt(0)\ns_mov_b32 s47, 0')
        for q_ in range(3):
            r = RS[q_]
            p(f'v_max3_u32 v32, v{r}, v{r+1}, v{r+2}')
            for k in range(3, 15, 2): p(f'v_max3_u32 v32, v32, v{r+k}, v{r+k+1}')
            p(f'v_max_u32 v32, v32, v{r+15}\nv_cmp_eq_u32 vcc, -1, v32\ns_nop 1\ns_cbranch_vccz C_ok{q_}{SFX}')
            p.cond(True)
            p(f's_sleep {cfg.slp2}\ns_mov_b32 s47, 1'); recv_s(q_)
            p.cond(False)
            p(f'C_ok{q_}{SFX}:')
        p(f's_cmp_lg_u32 s47, 0\ns_cbranch_scc1 C_chk{SFX}')
        ts.stamp(p)
        src = RS
    else:
        if cfg.pw:
            xunpack()
            p('s_waitcnt vmcnt(0)')
            ts.stamp(p)
            p(f'buffer_store_dwordx2 v[2:3], v{vFS}, s[{S_FL}:{S_FL+3}], 0 offen sc1')
            p.cond(True)
            poll('C_poll' + SFX, vFQ, 'C_got' + SFX)
            p.cond(False)
            p(f'C_got{SFX}:')
            ts.stamp(p)
        else:
            p('s_waitcnt vmcnt(0)\ns_barrier')
            ts.stamp(p)
            p(f's_cmp_eq_u32 s{sW}, 1\ns_cbranch_scc0 C_got{SFX}')
            p.cond(True)
            p(f'buffer_store_dwordx2 v[2:3], v{vFS}, s[{S_FL}:{S_FL+3}], 0 offen sc1')
            poll('C_poll' + SFX, vFQ, 'C_got' + SFX)
            p.cond(False)
            p(f'C_got{SFX}:\ns_barrier')
            ts.stamp(p)
        recv(1)
        if not cfg.pw: xunpack()
        src = RD
    for i in range(4): addparts(vSs + 8*i, i, src)
    for i in range(0, 32, 2): p(f'v_pk_mul_f32 {pk(vSs+i)}, {pk(vSs+i)}, {pk(cC+i)}')
    for b in range(2):
        P0, P1, T_ = 112 + 8*b, 116 + 8*b, 32
        for pr in range(2):
            c0 = vSs + 16*pr + 4*b; c1 = c0 + 8
            for r in range(4): p(f'v_permlane16_swap_b32 v{c0+r}, v{c1+r}')
        for pr in range(2):
            c0 = vSs + 16*pr + 4*b; c1 = c0 + 8; e = E + 16*b + 8*pr
            for q in range(4):
                c = (c0, c0+2, c1, c1+2)[q]
                p(f'v_pk_add_f32 {pk(e+2*q)}, {pk(e+2*q)}, {pk(c)}')
            for q in range(4): p(f'v_cvt_pk_bf16_f32 v{(P0, P1)[pr]+q}, v{e+2*q}, v{e+2*q+1}')
        for q in range(4): p(f'v_mov_b32 v{T_+q}, v{P1+q}')
        for q in range(4): p(f'v_mov_b32_dpp v{P1+q}, v{P0+q} row_ror:8 row_mask:0xf bank_mask:0x3')
        for q in range(4): p(f'v_mov_b32_dpp v{P0+q}, v{T_+q} row_ror:8 row_mask:0xf bank_mask:0xc')
        p(f's_mov_b32 s{sT}, {2*b*0x4000}\ns_mov_b32 s{sT+1}, {(2*b+1)*0x4000}')
        p(f'buffer_store_dwordx4 v[{P0}:{P0+3}], v{vO}, s[{S_OUT}:{S_OUT+3}], s{sT} offen {cfg.osc}')
        p(f'buffer_store_dwordx4 v[{P1}:{P1+3}], v{vO}, s[{S_OUT}:{S_OUT+3}], s{sT+1} offen {cfg.osc}')
    ts.stamp(p)
    if cfg.ts: p('s_waitcnt vmcnt(0)')
    ts.stamp(p)
    ts.dump(p, pWS)
    p('s_endpgm')
    autowait(p)
    if cfg.hoist: hoist(p)
    if not cfg.aab: check(p, 'main')

    z = Prog(); main = p; p = z
    p('A_slow:')
    p('s_waitcnt vmcnt(0) lgkmcnt(0)')
    srd(p, S_K, pK, 0, 2 << 20); srd(p, S_V, pV, 0, 2 << 20)
    zK, zD, zV = 14, 8, 18
    zKV, zN = sT, sT+1
    p(f's_lshr_b32 s{zKV}, s{sCB}, 3\ns_lshl_b32 s{zKV}, s{zKV}, 19\ns_add_u32 s{zKV}, s{zKV}, {1536*256}')
    perm_g(36, 37)
    p(f'v_and_b32 v{zK}, 15, v1\nv_lshlrev_b32 v{zK}, 8, v{zK}\nv_lshl_add_u32 v{zK}, v36, 4, v{zK}\nv_add_u32 v{zK+1}, 0x1000, v{zK}')
    p(f'v_lshrrev_b32 v36, 4, v1\nv_and_b32 v37, 15, v1\nv_lshlrev_b32 v38, 1, v36\nv_xor_b32 v37, v37, v38\nv_lshlrev_b32 v36, 8, v36\nv_lshl_add_u32 v{zD}, v37, 4, v36\nv_xor_b32 v{zD+1}, 128, v{zD}')
    p(f'v_add_u32 v{zD+2}, 0x1000, v{zD}\nv_add_u32 v{zD+3}, 0x1000, v{zD+1}')
    t = 36
    p(f's_lshl_b32 s{sT+2}, s{sW}, 13\ns_add_u32 s{sT+2}, s{sT+2}, 0x10000')
    p(f'v_lshrrev_b32 v{t}, 2, v1\nv_and_b32 v{t+1}, 7, v{t}\nv_lshlrev_b32 v{t}, 8, v{t}\nv_and_b32 v{t+2}, 3, v1\nv_lshl_add_u32 v{t}, v{t+2}, 3, v{t}\nv_add_u32 v{t}, s{sT+2}, v{t}')
    for k in range(8): p(f'v_xor_b32 v{t+2}, {k}, v{t+1}\nv_lshl_add_u32 v{zV+k}, v{t+2}, 5, v{t}')
    def kglob():
        for s in range(8): p(f'buffer_load_dwordx4 a[{aF+4*s}:{aF+4*s+3}], v{zK + s//4}, s[{S_K}:{S_K+3}], s{zN} offen offset:{64*(s % 4)}')
    for b in range(4): p(f'v_mov_b32 v{32+b}, 0xff800000')
    p(f's_mov_b32 s{zN}, s{zKV}\ns_mov_b32 s{sT+3}, 16')
    p.loop_begin('Z1_loop', 16, align=False)
    kglob()
    for m in range(4):
        for x in qk2(0, m, zero): p(x)
    p('s_nop 7')
    rowmax(0, False)
    p(f's_add_u32 s{zN}, s{zN}, 8192\ns_sub_u32 s{sT+3}, s{sT+3}, 1\ns_cmp_lg_u32 s{sT+3}, 0\ns_cbranch_scc1 Z1_loop')
    p.loop_end()
    set_negm()
    for i in range(128): p(f'v_accvgpr_write_b32 a{i}, 0')
    for i in range(4): p(f'v_mov_b32 v{vL+i}, 0')
    p(f's_mov_b32 s{zN}, s{zKV}\ns_mov_b32 s{sT+3}, 16')
    p.loop_begin('Z2_loop', 16, align=False)
    kglob()
    for j in range(8):
        if j % 4 == 0: p(f's_add_u32 m0, s{sT+2}, {1024*j}\ns_nop 0')
        p(f'buffer_load_dwordx4 v{zD + 2*(j//4) + (j & 1)}, s[{S_V}:{S_V+3}], s{zN} offen offset:{1024*(j%4)} lds')
    for m in range(4):
        for x in qk2(0, m, negm): p(x)
    p('s_nop 7')
    for e in range(32): p(sm_E(0, e))
    for e in range(32): p(sm_A(0, e, False))
    for e in range(0, 32, 2): p(sm_C(0, e))
    p('s_waitcnt vmcnt(0)')
    for f in range(8):
        for r in vread(0, f, None, base=zV, off0=0): emit(p, r)
    for f in range(8):
        for x in pv(0, f): p(x)
    p(f's_add_u32 s{zN}, s{zN}, 8192\ns_sub_u32 s{sT+3}, s{sT+3}, 1\ns_cmp_lg_u32 s{sT+3}, 0\ns_cbranch_scc1 Z2_loop')
    p.loop_end()
    p('s_nop 7')
    for x in xred(vL, 'v_add_f32'): p(x if x else 's_nop 1')
    p('s_branch A_done')
    autowait(z); check(z, 'slow')
    txt = main.text()
    if cfg.jit:
        n_ = [0]
        def jit(m):
            n_[0] += 1
            if n_[0] % cfg.jit: return m.group(0)
            l = f'J{SFX if ";SPLIT" in txt[:m.start()] else ""}_{n_[0]}'
            return (f'  s_mul_i32 s98, s2, {7 + 2*n_[0]}\n  s_mul_i32 s99, s36, {13 + n_[0]}\n  s_add_u32 s98, s98, s99\n  s_getreg_b32 s99, hwreg(HW_REG_SHADER_CYCLES, 0, 8)\n'
                    if False else
                    f'  s_mov_b32 s99, scc\n' if False else '') + f'  s_cselect_b32 s97, 1, 0\n  s_mul_i32 s98, s2, {7 + 2*n_[0]}\n  s_mul_i32 s99, s36, {13 + n_[0]}\n  s_add_u32 s98, s98, s99\n  s_and_b32 s98, s98, 7\n{l}:\n  s_sleep 8\n  s_sub_u32 s98, s98, 1\n  s_cmp_ge_i32 s98, 0\n  s_cbranch_scc1 {l}\n  s_cmp_eq_u32 s97, 1\n' + m.group(0)
        import re
        txt = re.sub(r'  s_barrier', jit, txt)
    pre_, c_ = txt.split(';SPLIT')
    return pre_, c_, z.text(), sJ

def main():
    cfg = Cfg()
    cfg.ts = 1; cfg.xmap = 'b'; cfg.stag = 0; cfg.P = 4; cfg.late1 = 1; cfg.w0 = 0; cfg.cw0 = 8
    cfg.d0 = 8; cfg.dstr = 3; cfg.a0 = 0; cfg.astr = 1; cfg.ad = 3; cfg.PF = 4; cfg.cap = 2
    cfg.cad = 5; cfg.cdstr = 4; cfg.cP = 5; cfg.thr = 40; cfg.tail0 = 4; cfg.sum = 'add'; cfg.hbar = 2; cfg.t1e = 1; cfg.t0e = 0; cfg.npre = 2; cfg.aloop = 0; cfg.l2 = 0; cfg.mpos = 0; cfg.s2a = 40; cfg.slag = 1; cfg.pun = 1; cfg.opw = 0; cfg.slp3 = 4; cfg.p2 = 0; cfg.btouch = 1; cfg.ltouch = 1; cfg.chain = 1; cfg.snake = 1; cfg.odl = 3; cfg.gl = 1; cfg.perm = 0; cfg.lad = 1; cfg.pw = 0; cfg.av0 = 2; cfg.av1 = 1; cfg.anv = 2; cfg.amem = 2; cfg.hoist = 1; cfg.apre = 0; cfg.jit = 0; cfg.ost = 'sc1'; cfg.pst = 'sc1'; cfg.m0 = 0; cfg.c3 = 0; cfg.xat = -1; cfg.c3l = 3; cfg.c3s = 2; cfg.wsc = ''; cfg.gsc = ''; cfg.cdel = 0; cfg.ccx = 0; cfg.xbar = 10; cfg.fs1 = 6; cfg.xe = 1; cfg.xchk = 180; cfg.xfl = 60; cfg.xt = 0; cfg.fs = 2; cfg.oes = 2; cfg.sent = 0; cfg.slp2 = 4; cfg.trk = 2; cfg.kvp = 1; cfg.trk0 = 1; cfg.pf4 = 0; cfg.pf4n = 8; cfg.pf3 = 0; cfg.aab = 0; cfg.e64 = ''; cfg.xs = 0; cfg.xl = 1; cfg.cpf2 = 2; cfg.loc = 0; cfg.fremote = 0; cfg.ox = 0; cfg.ramp = 20; cfg.lag = 3; cfg.vmc = 8; cfg.acap = 24; cfg.amax = 80; cfg.wb = 0; cfg.opad = 256; cfg.xpad = 256; cfg.hpad = 0; cfg.oe = 3; cfg.de = 3; cfg.tms = 6; cfg.fl = 128; cfg.dchk = 1.65; cfg.dbg = 0; cfg.cpf = 1; cfg.tlb = 0; cfg.osc = 'sc1'; cfg.slp = 1; cfg.late0 = 2
    for a in sys.argv[2:]:
        k, v = a.split('='); setattr(cfg, k, int(v) if v.lstrip('-').isdigit() else float(v) if v.replace('.','').isdigit() else v)
    kn = NAME + '_kernel'
    doc = """; out = x + (attn(LN(x) wq, K, V) wo) * silu((gelu(LN(x) wg) * (LN(x) wu)) wd)      bf16 in/out, fp32 accumulation
; Kernarg: 0 x, 8 k_cache, 16 v_cache, 24 wq, 32 wo, 40 (unused), 48 w_gate, 56 w_up, 64 w_down, 72 out, 80 debug, 88 workspace
;  0  LayerNorm statistics of 8 tokens -> {mean, 1/std} records and normalised rows (MFMA B-fragment order) in the workspace
;     registers; the first 128 of K are normalised locally from raw x so that the GEMM need not wait for phase 0's hand-off
"""
    hdr = (f'; opad={cfg.opad} hoff={WS_H} xpad={cfg.xpad} hpad={cfg.hpad} ooff={WS_O} omap=1\n' + doc + f'; @launch grid=(256,1,1) block=(256,1,1) lds={LDS_TOT}\n'
           '.amdgcn_target "amdgcn-amd-amdhsa--gfx950"\n')
    if cfg.fs:
        (a, c8, z, sJ), (a6, c6, _, _) = (gen(cfg, 8), gen(cfg, 6)) if cfg.fs == 1 else (gen(cfg, 7, 9), gen(cfg, 7, 7))
        assert a == a6
        body = a + f'  s_bitcmp1_b32 s{sJ}, 0\n  s_cbranch_scc1 C_short\n' + c8 + '\nC_short:\n' + c6
    else:
        a, c7, z, _ = gen(cfg, 7); body = a + c7
    s = hdr + kernel_head(kn) + body + '\n' + z + '\nK_last:\n' + kernel_desc(kn, 512, 256)
    s = '\n'.join(l for l in s.split('\n') if not l.strip().startswith(('; need', '; touch'))).replace(' offset:0 ', ' ').replace(' offset:0\n', '\n').replace('\n  ', '\n ').replace('\n .amdhsa', '\n  .amdhsa')
    open(sys.argv[1], 'w').write(s)
if __name__ == '__main__': main()
```
